```python
import torch

def _softmax(x, axis=-1):
    return torch.softmax(x, dim=axis)
def _gelu(x):
    return torch.nn.functional.gelu(x, approximate="tanh")
def _silu(x):
    return torch.nn.functional.silu(x)
def _sigmoid(x):
    return torch.sigmoid(x)
def _layernorm(x, axis=-1, eps=1e-5):
    m = x.mean(dim=axis, keepdim=True)
    v = x.var(dim=axis, keepdim=True, unbiased=False)
    return (x - m) / torch.sqrt(v + eps)
def _scatter_add(tgt, idx, src, axis=0):
    return tgt.clone().index_add_(axis, idx, src)
def _segment_sum(src, seg, n):
    out = torch.zeros((n,) + src.shape[1:], dtype=src.dtype)
    return out.index_add_(0, seg, src)
def _pad(x, pw):
    flat = tuple(v for pair in reversed(pw) for v in pair)
    return torch.nn.functional.pad(x, flat)

kernel_name = 'interleave_layers__linear_attn_block__mixer_channel_mlp__prompt'

def setup_inputs():

    _w = (lambda a: (lambda t: t.to(torch.bfloat16) if t.is_floating_point() else t)(torch.as_tensor(a)))
    def _A_setup():
        B, S, D = 1, 2048, 448
        return {
            "x": _w((lambda *s: torch.randn(*s, dtype=torch.bfloat16) * 0.05)(B, S, D)),
            "wqkv": _w((lambda *s: torch.randn(*s, dtype=torch.bfloat16) * 0.1)(D, 3 * D)),
            "wo": _w((lambda *s: torch.randn(*s, dtype=torch.bfloat16) * 0.05)(D, D)),
        }
    _A_in = _A_setup()

    def _B_setup():
        B, S, D, F = 1, 2048, 448, 1792
        return {
            "x": _w((lambda *s: torch.randn(*s, dtype=torch.bfloat16) * 0.05)(B, S, D)),
            "w1": _w((lambda *s: torch.randn(*s, dtype=torch.bfloat16) * 3.2)(D, F) * (D ** -0.5)),
            "b1": _w((lambda *s: torch.randn(*s, dtype=torch.bfloat16) * 0.8)(F)),
            "w2": _w((lambda *s: torch.randn(*s, dtype=torch.bfloat16) * 0.8)(F, D) * (F ** -0.5)),
            "b2": _w((lambda *s: torch.randn(*s, dtype=torch.bfloat16) * 0.8)(D)),
        }
    _B_in = _B_setup()

    return {
        "A_x": _A_in["x"],
        "A_wqkv": _A_in["wqkv"],
        "A_wo": _A_in["wo"],
        "B_x": _B_in["x"],
        "B_w1": _B_in["w1"],
        "B_b1": _B_in["b1"],
        "B_w2": _B_in["w2"],
        "B_b2": _B_in["b2"],
    }

def reference(A_x, A_wqkv, A_wo, B_x, B_w1, B_b1, B_w2, B_b2):
    def _A_ref(x, wqkv, wo):
        B, S, D = x.shape
        H = 16; Dh = D // H
        qkv = (lambda x, *d: x.permute(*d))((x @ wqkv).reshape(B, S, 3, H, Dh), 2, 0, 3, 1, 4)
        q, k, v = qkv[0], qkv[1], qkv[2]
        phi = lambda t: torch.where(t > 0, t + 1, torch.exp(t)) + 1e-6
        pq, pk = phi(q), phi(k)
        kv = torch.einsum("bhsd,bhse->bhde", pk, v)
        z = torch.einsum("bhsd->bhd", pk)
        num = torch.einsum("bhqd,bhde->bhqe", pq, kv)
        den = torch.einsum("bhqd,bhd->bhq", pq, z)[..., None] + 1e-6
        o = num / den
        return (lambda x, *d: x.permute(*d))(o, 0, 2, 1, 3).reshape(B, S, D) @ wo

    def _B_ref(x, w1, b1, w2, b2):
        y = _layernorm(x, axis=-1)
        h = _gelu(torch.einsum("bsd,df->bsf", y, w1) + b1)
        return torch.einsum("bsf,fd->bsd", h, w2) + b2

    x = A_x
    x = x + _A_ref(_layernorm(x, axis=-1), A_wqkv, A_wo)
    x = x + _B_ref(_layernorm(x, axis=-1), B_w1, B_b1, B_w2, B_b2)
    x = x + _A_ref(_layernorm(x, axis=-1), A_wqkv, A_wo)
    x = x + _B_ref(_layernorm(x, axis=-1), B_w1, B_b1, B_w2, B_b2)
    return x
```

```python
import re

TRANS = ('v_exp_f32', 'v_log_f32', 'v_rcp_f32', 'v_rsq_f32', 'v_sqrt_f32', 'v_sin_f32', 'v_cos_f32')
NO_DST_S = ('s_cmp', 's_cbranch', 's_waitcnt', 's_barrier', 's_nop', 's_sleep', 's_branch', 's_endpgm',
            's_setprio', 's_bitcmp')

_reg_re = re.compile(r'^(-|\|)?(abs\()?([vas])(\d+|\[(\d+):(\d+)\])\)?\|?$')


def regs_of(opnd):
    opnd = opnd.strip()
    if opnd in ('vcc', 'vcc_lo', 'vcc_hi'):
        return [('x', 'vcc')]
    if opnd in ('exec', 'exec_lo', 'exec_hi'):
        return [('x', 'exec')]
    if opnd == 'm0':
        return [('x', 'm0')]
    m = _reg_re.match(opnd)
    if not m:
        return []
    k = m.group(3)
    if m.group(5) is not None:
        return [(k, i) for i in range(int(m.group(5)), int(m.group(6)) + 1)]
    return [(k, int(m.group(4)))]


class I:
    __slots__ = ('text', 'op', 'kind', 'dst', 'src', 'ops', 'nvm', 'tok', 'waits', 'cost', 'wide', 'drain_vm',
                 'drain_lgkm', 'states', 'srcC', 'srcAB')

    def __init__(self, text, kind=None, dst=None, src=None, nvm=0, waits=(), states=1, cost=None, wide=None,
                 drain_vm=False, drain_lgkm=False):
        self.text = text
        self.waits = list(waits)
        self.tok = None
        self.nvm = nvm
        self.wide = wide or []
        self.drain_vm = drain_vm
        self.drain_lgkm = drain_lgkm
        self.states = states
        self.srcC = []
        self.srcAB = []
        if kind is not None:
            self.kind = kind
            self.op = kind
            self.dst = list(dst or [])
            self.src = list(src or [])
            self.ops = []
            self.cost = cost if cost is not None else 4
            return
        t = text.split(';')[0].strip()
        sp = t.split(None, 1)
        op = sp[0]
        self.op = op
        rest = sp[1] if len(sp) > 1 else ''
        parts = [p.strip() for p in rest.split(',')] if rest else []
        mods = ''
        if parts:
            last = parts[-1].split(None, 1)
            parts[-1] = last[0]
            mods = last[1] if len(last) > 1 else ''
        self.ops = parts
        R = [regs_of(p) for p in parts]
        flat = lambda xs: [r for x in xs for r in x]
        dst, src = [], []
        if op.startswith('v_mfma'):
            kind = 'mfma'
            dst = R[0]
            src = flat(R[1:])
            self.srcAB = R[1] + R[2]
            self.srcC = R[3]
        elif op.startswith('v_'):
            kind = 'valu'
            if op.startswith('v_permlane') and 'swap' in op:
                dst = R[0] + R[1]
                src = R[0] + R[1]
            elif op.startswith(('v_add_co', 'v_sub_co', 'v_addc_co', 'v_subb_co')):
                dst = R[0] + R[1]
                src = flat(R[2:])
            else:
                dst = R[0]
                src = flat(R[1:])
                if op.startswith(('v_fmac', 'v_dot2c', 'v_writelane')):
                    src = src + R[0]
                if op.startswith('v_cndmask') and len(parts) == 3:
                    src = src + [('x', 'vcc')]
        elif op.startswith('ds_read') or op.startswith('ds_bpermute') or op.startswith('ds_swizzle'):
            kind = 'dsr'
            dst = R[0]
            src = flat(R[1:])
        elif op.startswith('ds_write') or op.startswith('ds_add'):
            kind = 'dsw'
            src = flat(R)
        elif op.startswith(('buffer_load', 'global_load')):
            islds = ' lds' in (' ' + mods) or '_lds_' in op
            self.nvm = 1
            if islds:
                kind = 'dma'
                src = flat(R) + [('x', 'm0')]
            else:
                kind = 'vload'
                dst = R[0]
                src = flat(R[1:])
        elif op.startswith(('buffer_store', 'global_store')):
            kind = 'vstore'
            self.nvm = 1
            src = flat(R)
            if 'x4' in op or 'x3' in op:
                self.wide = R[0] if op.startswith('buffer') else R[1]
        elif op.startswith(('s_load', 's_memtime', 's_memrealtime')):
            kind = 'smem'
            dst = R[0]
            src = flat(R[1:])
        elif op.startswith('s_'):
            kind = 'salu'
            if op.startswith(NO_DST_S):
                src = flat(R)
                if op in ('s_cbranch_vccz', 's_cbranch_vccnz'):
                    src = [('x', 'vcc')]
            else:
                dst = R[0]
                src = flat(R[1:])
                if op.startswith(('s_addk', 's_mulk')):
                    src = src + R[0]
            if op == 's_nop':
                self.states = int(parts[0], 0) + 1
        else:
            raise ValueError('unknown instruction: ' + text)
        self.kind = kind
        self.dst = dst
        self.src = src
        if cost is None:
            cost = 4
            if op.startswith(TRANS):
                cost = 8
            elif op.startswith('v_dot2'):
                cost = 8
            elif kind == 'mfma':
                cost = 8
            elif kind == 'dsw':
                cost = 16 if 'b128' in op else 8
            elif kind in ('dma',):
                cost = 8
        self.cost = cost


class Tok:
    pass


class Prog:
    def __init__(self):
        self.L = []
        self.nlabel = 0

    def __call__(self, text, **kw):
        out = None
        for line in text.split('\n'):
            line = line.strip()
            if not line:
                continue
            out = I(line, **kw)
            self.L.append(out)
        return out

    def add(self, insts):
        self.L.extend(insts)

    def label(self, name):
        self.L.append(I(name + ':', kind='label', states=0, cost=0))

    def newlabel(self, p='L'):
        self.nlabel += 1
        return '%s_%d' % (p, self.nlabel)

    def comment(self, t):
        self.L.append(I('; ' + t, kind='comment', states=0, cost=0))


def mk(text, **kw):
    return [I(l.strip(), **kw) for l in text.split('\n') if l.strip()]


def tok(inst):
    inst.tok = Tok()
    return inst.tok


def wait_tok(*toks):
    return I('', kind='waittok', waits=toks, states=0, cost=0)


def weave(main, fill, budget=24, start=0, final_flush=True):
    out = []
    fill = list(fill)
    fi = 0
    debt = 0
    for si, slot in enumerate(main):
        out.extend(slot)
        if si < start:
            continue
        avail = budget - sum(x.cost for x in slot if x.kind != 'mfma') + debt
        while fi < len(fill) and avail >= fill[fi].cost:
            avail -= fill[fi].cost
            out.append(fill[fi])
            fi += 1
        debt = min(avail, 4) if avail > 0 else max(avail, -8)
    if final_flush:
        out.extend(fill[fi:])
        return out
    return out, fill[fi:]


def spread(main, fill, start=0, end=None):
    end = len(main) if end is None else end
    total = sum(x.cost for x in fill)
    n = end - start
    out = []
    fi = 0
    acc = 0
    for si, slot in enumerate(main):
        out.extend(slot)
        if start <= si < end:
            target = total * (si - start + 1) / n
            while fi < len(fill) and (acc + fill[fi].cost / 2.0 <= target or si == end - 1):
                acc += fill[fi].cost
                out.append(fill[fi])
                fi += 1
    out.extend(fill[fi:])
    return out


def insert_waits(L):
    out = []
    vm = []
    lg = []
    sm = []

    def emit_wait(nv, nl):
        parts = []
        if nv is not None:
            parts.append('vmcnt(%d)' % nv)
        if nl is not None:
            parts.append('lgkmcnt(%d)' % nl)
        out.append(I('s_waitcnt ' + ' '.join(parts)))

    for ins in L:
        k = ins.kind
        if k in ('label', 'comment'):
            out.append(ins)
            continue
        touched = set(ins.src) | set(ins.dst)
        need_v = None
        need_l = None
        for idx, (d, t) in enumerate(vm):
            if (d & touched) or (t is not None and t in ins.waits):
                need_v = len(vm) - 1 - idx
        for idx, d in enumerate(lg):
            if d & touched:
                need_l = len(lg) - 1 - idx
        if any(d & touched for d in sm):
            need_l = 0
        if need_v is not None or need_l is not None:
            if need_v is not None:
                need_v = min(need_v, 63)
                del vm[:len(vm) - need_v]
            if need_l is not None:
                need_l = min(need_l, 15)
                del lg[:len(lg) - need_l]
                if need_l == 0:
                    sm = []
            emit_wait(need_v, need_l)
        if k == 'waittok':
            continue
        if ins.op == 's_waitcnt':
            m = re.search(r'vmcnt\((\d+)\)', ins.text)
            if m:
                n = int(m.group(1))
                del vm[:max(0, len(vm) - n)]
            m = re.search(r'lgkmcnt\((\d+)\)', ins.text)
            if m:
                n = int(m.group(1))
                del lg[:max(0, len(lg) - n)]
                if n == 0:
                    sm = []
        if ins.drain_vm:
            vm = []
        if ins.drain_lgkm:
            lg = []
            sm = []
        if k == 'vload':
            vm.append((set(ins.dst), ins.tok))
        elif ins.nvm:
            for j in range(ins.nvm):
                vm.append((set(), ins.tok if j == ins.nvm - 1 else None))
        if k == 'dsr':
            lg.append(set(ins.dst))
        elif k == 'dsw':
            lg.append(set())
        elif k == 'smem':
            sm.append(set(ins.dst))
        assert len(vm) <= 63 + 0 or True
        out.append(ins)
    return out


def insert_nops(L):
    out = []
    rec = []

    def need(ins):
        n = 0
        src = set(ins.src)
        dst = set(ins.dst)
        k = ins.kind
        isvalu = k == 'valu'
        vmem = k in ('vload', 'vstore', 'dma', 'block')
        for kind, regs, age, extra in rec:
            w = 0
            if kind == 'valu_w':
                if k == 'mfma' and regs & src:
                    w = 2
                elif isvalu and regs & src:
                    if ins.op.startswith('v_permlane') or '_dpp' in ins.op:
                        w = 2
                    elif ins.op.startswith(('v_readlane', 'v_readfirstlane')):
                        w = 1
            elif kind == 'trans_w':
                if (isvalu or k == 'mfma' or vmem or k in ('dsw', 'dsr')) and regs & src:
                    w = 1
            elif kind == 'dot_w':
                if regs & (src | dst):
                    if ins.op == extra and not (regs & set(r for p in ins.ops[1:3] for r in regs_of(p))):
                        w = 0
                    else:
                        w = 3
            elif kind == 'sgpr_w':
                if isvalu and regs & src:
                    w = 4 if ins.op.startswith(('v_readlane', 'v_writelane')) else 2
                elif vmem and regs & src:
                    w = 5
            elif kind == 'mfma_d':
                if k == 'mfma':
                    if regs & set(ins.srcAB):
                        w = 12
                    elif regs & set(ins.srcC):
                        w = 0 if set(ins.srcC) == regs else 10
                    elif regs & dst:
                        w = 10
                elif (isvalu or vmem or k in ('dsr', 'dsw')) and regs & (src | dst):
                    w = 12
            elif kind == 'mfma_c':
                if isvalu and regs & dst:
                    w = 7
            elif kind == 'wide':
                if regs & dst:
                    w = 2
            elif kind == 'm0':
                if ('x', 'm0') in src and k != 'salu':
                    w = 1
            n = max(n, w - age)
        return n

    for ins in L:
        if ins.kind in ('label', 'comment'):
            out.append(ins)
            continue
        n = need(ins)
        while n > 0:
            c = min(n, 16)
            out.append(I('s_nop %d' % (c - 1)))
            for r in rec:
                r[2] += c
            n -= c
        out.append(ins)
        for r in rec:
            r[2] += ins.states
        rec = [r for r in rec if r[2] < 20]
        k = ins.kind
        if k == 'valu' or (k == 'block' and ins.dst):
            vd = set(r for r in ins.dst if r[0] in 'va')
            sd = set(r for r in ins.dst if r[0] in 'sx')
            if vd:
                rec.append(['valu_w', vd, 0, None])
                if ins.op.startswith(TRANS):
                    rec.append(['trans_w', vd, 0, None])
                if ins.op.startswith('v_dot2'):
                    rec.append(['dot_w', vd, 0, ins.op])
            if sd:
                rec.append(['sgpr_w', sd, 0, None])
        elif k == 'mfma':
            rec.append(['mfma_d', set(ins.dst), 0, None])
            c = set(ins.srcC)
            if c:
                rec.append(['mfma_c', c, 0, None])
        if ins.wide:
            rec.append(['wide', set(ins.wide), 0, None])
        if k == 'salu' and ('x', 'm0') in ins.dst:
            rec.append(['m0', {('x', 'm0')}, 0, None])
    return out


def finalize(L):
    L = insert_waits(L)
    L = insert_nops(L)
    lines = []
    for ins in L:
        if ins.kind == 'label':
            lines.append(ins.text)
        else:
            for t in ins.text.split('\n'):
                t = t.strip()
                if t:
                    lines.append(t if t.endswith(':') else '    ' + t)
    return '\n'.join(lines) + '\n', L


def v(a, n=1):
    return 'v%d' % a if n == 1 else 'v[%d:%d]' % (a, a + n - 1)


def a(x, n=1):
    return 'a%d' % x if n == 1 else 'a[%d:%d]' % (x, x + n - 1)


def s(x, n=1):
    return 's%d' % x if n == 1 else 's[%d:%d]' % (x, x + n - 1)
```

```python
import sys, struct
from asmgen import *

KNAME = 'interleave_layers__linear_attn_block__mixer_channel_mlp__prompt_kernel'


def f32(x):
    return '0x%08x' % struct.unpack('<I', struct.pack('<f', x))[0]


LOG2E = 1.4426950408889634
LN2 = 0.6931471805599453

WS_XCC = 0x8000
WS_STAMP = 0x10000
WS_KVP = 0x200000
WS_CL = 0x400000
LOFF = 0xD5000
O_OFF, X1_OFF, H_OFF, X2_OFF, FL_OFF = 0, 0x20000, 0x40000, 0xB0000, 0xD4000
X2_BS = 36864
FO, FX1, FX2, FH = FL_OFF, FL_OFF + 512, FL_OFF + 1024, FL_OFF + 1536

L_WQ = 0
L_XB = 28672
L_EX = 86016
L_WO = 114688
L_KVS = 143616
L_KVB = L_KVS + 16384
L_CS = L_KVB + 2048
L_CB1 = L_CS + 512
LDS_BYTES = 163840
assert L_CB1 + 1024 <= LDS_BYTES

SRD_WQ, SRD_WO, SRD_W1, SRD_W2, SRD_X, SRD_OUT, SRD_B1, SRD_B2, SRD_CL, SRD_WS = range(4, 44, 4)
sC, sM, sW, sNonce, sSlow, sX, sSpin = 44, 45, 46, 47, 48, 49, 50
sT0, sT1, sT2, sT3, sT4, sT5 = 51, 52, 53, 54, 55, 56
sLn2, sXcc = 57, 58
sN28, sHalf = 60, 62
sN0 = 64
sKA = 68
sEb, sLb = 68, 69
sC0, sC1 = 70, 71
sHs = 72
sStamp = 90

vLane, vL16, vL4, vTr, vNonce, vMean, vRl, vCsK, vCsV, vPoll, vPA = range(0, 11)
vT = 11
vStamp = 15
W2A = 0
W1A = 224
W1V = 176


def w1reg(k):
    return a(W1A + 4 * k, 4) if k < 8 else v(W1V + 4 * (k - 8), 4)


def w1half(k, hh):
    return a(W1A + 4 * k + 2 * hh, 2) if k < 8 else v(W1V + 4 * (k - 8) + 2 * hh, 2)


class Gen:
    def __init__(self, stop=None, stamps=False, kvdelay=10):
        self.P = Prog()
        self.ool = []
        self.stop = stop
        self.stamps = stamps
        self.nstamp = 0
        self.kvdelay = kvdelay
        self.stamp_names = []

    def srd(self, r):
        return s(r, 4)

    def stamp(self, name):
        if not self.stamps:
            return []
        i = self.nstamp
        self.nstamp += 1
        self.stamp_names.append(name)
        t = 's_memtime s[%d:%d]\ns_waitcnt lgkmcnt(0)\nv_writelane_b32 v%d, s%d, %d' % (sStamp, sStamp + 1, vStamp, sStamp, i)
        return [I(t, kind='block', dst=[], src=[], drain_lgkm=True, states=3)]

    def stores(self, lines, sc1_always=False):
        insts = mk('\n'.join(lines))
        src = [r for x in insts for r in x.src]
        wide = [r for x in insts for r in x.wide]
        if sc1_always:
            return [I(l + ' sc1') for l in lines]
        ls, lb = self.P.newlabel('Lslow'), self.P.newlabel('Lback')
        txt = 's_cmp_lg_u32 s%d, 0\ns_cbranch_scc1 %s\n%s\n%s:' % (sSlow, ls, '\n'.join(lines), lb)
        self.ool.append('%s:\n%s\ns_branch %s' % (ls, '\n'.join(l + ' sc1' for l in lines), lb))
        return [I(txt, kind='block', src=src, nvm=len(lines), wide=wide, states=1, cost=8 + 4 * len(lines))]

    def flag(self, toks, soff):
        st = self.stores(['buffer_store_dword v%d, off, %s, s%d' % (vNonce, self.srd(SRD_CL), soff)])[0]
        st.text = 's_mov_b64 exec, 1\n' + st.text + '\ns_mov_b64 exec, -1'
        st.cost += 8
        return [wait_tok(*toks), st]

    def poll_issue(self, soff):
        return mk('buffer_load_dword v%d, v%d, %s, s%d offen sc1' % (vPoll, vPA, self.srd(SRD_CL), soff))

    def poll_check(self, soff, sleep=0):
        ls, lb = self.P.newlabel('Lspin'), self.P.newlabel('Lgot')
        self.ool.append('\n'.join([
            '%s:' % ls,
            ('s_sleep %d' % sleep) if sleep else '',
            'buffer_load_dword v%d, v%d, %s, s%d offen sc1' % (vPoll, vPA, self.srd(SRD_CL), soff),
            's_add_u32 s%d, s%d, 1' % (sSpin, sSpin),
            's_cmp_gt_u32 s%d, 0x40000' % sSpin,
            's_cbranch_scc1 L_end',
            's_waitcnt vmcnt(0)',
            'v_cmp_ne_u32 vcc, s%d, v%d' % (sNonce, vPoll),
            's_cbranch_vccnz %s' % ls,
            's_branch %s' % lb]))
        return mk('v_cmp_ne_u32 vcc, s%d, v%d' % (sNonce, vPoll)) + \
            [I('s_cbranch_vccnz %s\n%s:' % (ls, lb), kind='block', src=[], states=1)]

    def trbase(self, dst, RS, kh, add=0, xor16=None):
        t = vT
        L = ['v_lshrrev_b32 v%d, 5, v%d' % (dst, vLane),
             'v_mul_u32_u24 v%d, %d, v%d' % (dst, kh, dst),
             'v_bfe_u32 v%d, v%d, 2, 2' % (t, vLane),
             'v_add_u32 v%d, v%d, v%d' % (dst, dst, t),
             'v_mul_u32_u24 v%d, %d, v%d' % (dst, RS, dst),
             'v_bfe_u32 v%d, v%d, 4, 1' % (t, vLane)]
        if xor16 is not None:
            L.append('v_xor_b32 v%d, s%d, v%d' % (t, xor16, t))
        L += ['v_lshl_add_u32 v%d, v%d, 5, v%d' % (dst, t, dst),
              'v_and_b32 v%d, 3, v%d' % (t, vLane),
              'v_lshl_add_u32 v%d, v%d, 3, v%d' % (dst, t, dst)]
        if add:
            L.append('v_add_u32 v%d, %d, v%d' % (dst, add, dst))
        return mk('\n'.join(L))

    def frag_loads(self, dsts, srd, sbase, const0, stride=1024, flags='', voff=vL16, stmp=(sT0, sT1)):
        out = []
        cur = None
        n = 0
        for i, d in enumerate(dsts):
            off = const0 + i * stride
            grp = []
            if cur is None or not (0 <= off - cur <= 4095 - 0):
                st = stmp[n % len(stmp)]
                n += 1
                cur = off
                grp += mk('s_add_u32 s%d, s%d, %d' % (st, sbase, off))
                self._st = st
            grp += mk('buffer_load_dwordx4 %s, v%d, %s, s%d offen offset:%d %s' %
                      (d, voff, self.srd(srd), self._st, off - cur, flags))
            out.append(grp)
        return out

    def stats_finish(self, acc, double_ln):
        t1, t2 = vT + 1, vT + 2
        L = ['v_mov_b32 v%d, v%d' % (t1, acc),
             'v_mov_b32 v%d, v%d' % (vMean, acc),
             'v_permlane32_swap_b32 v%d, v%d' % (vMean, t1),
             'v_mul_f32 v%d, %s, v%d' % (vMean, f32(1.0 / 448), vMean),
             'v_mul_f32 v%d, %s, v%d' % (t1, f32(1.0 / 448), t1),
             'v_fma_f32 v%d, -v%d, v%d, v%d' % (t1, vMean, vMean, t1),
             'v_max_f32 v%d, 0, v%d' % (t1, t1),
             'v_add_f32 v%d, %s, v%d' % (t2, f32(1e-5), t1),
             'v_rsq_f32 v%d, v%d' % (vRl, t2)]
        if double_ln:
            L += ['v_mul_f32 v%d, v%d, v%d' % (t2, vRl, vRl),
                  'v_fmaak_f32 v%d, v%d, v%d, %s' % (t1, t1, t2, f32(1e-5)),
                  'v_rsq_f32 v%d, v%d' % (t1, t1),
                  'v_mul_f32 v%d, v%d, v%d' % (vRl, vRl, t1)]
        else:
            L += ['v_mul_f32 v%d, %s, v%d' % (vRl, f32(LOG2E), vRl)]
        return mk('\n'.join(L))

    def phi4(self, regs, M, C, R, T):
        L = []
        for i, r in enumerate(regs):
            L.append('v_fma_f32 v%d, -v%d, v%d, v%d' % (r, M[i], C[i], r))
        for i, r in enumerate(regs):
            L.append('v_mul_f32 v%d, v%d, v%d' % (r, r, R[i]))
        for i, r in enumerate(regs):
            L.append('v_exp_f32 v%d, v%d clamp' % (T + i, r))
            L.append('v_max_f32 v%d, 0, v%d' % (r, r))
        for i, r in enumerate(regs):
            L.append('v_fma_f32 v%d, v%d, s%d, v%d' % (r, r, sLn2, T + i))
        for i, r in enumerate(regs):
            L.append('v_add_f32 v%d, %s, v%d' % (r, f32(1e-6), r))
        return mk('\n'.join(L))

    def pack(self, dst, src, n):
        return mk('\n'.join('v_cvt_pk_bf16_f32 v%d, v%d, v%d' % (dst + i, src + 2 * i, src + 2 * i + 1) for i in range(n)))

    def unpack(self, dst, src, n):
        L = []
        for i in reversed(range(n)):
            L.append('v_and_b32 v%d, 0xffff0000, v%d' % (dst + 2 * i + 1, src + i))
            L.append('v_lshlrev_b32 v%d, 16, v%d' % (dst + 2 * i, src + i))
        return mk('\n'.join(L))

    def row_stats(self, src, n, acc, ones):
        t = acc + 1
        L = ['v_mov_b32 v%d, 0x3f803f80' % ones]
        for i in range(n):
            L.append('v_dot2_f32_bf16 v%d, v%d, v%d, %s' % (acc, src + i, ones, 'v%d' % acc if i else '0'))
            L.append('v_dot2_f32_bf16 v%d, v%d, v%d, %s' % (t, src + i, src + i, 'v%d' % t if i else '0'))
        L += ['v_permlane32_swap_b32 v%d, v%d' % (acc, t), 'v_add_f32 v%d, v%d, v%d' % (acc, acc, t)]
        return mk('\n'.join(L))

    def wq_dma(self, groups, vq):
        out = []
        for t in groups:
            g = []
            g += mk('s_mul_i32 s%d, s%d, %d\ns_add_u32 s%d, s%d, %d' % (sT2, sW, 16 * 2688, sT2, sT2, t * 64 * 2688))
            g += mk('s_mul_i32 s%d, s%d, 3072\ns_add_u32 m0, s%d, %d' % (sT3, sW, sT3, L_WQ + t * 4 * 3072))
            for p in range(3):
                if p:
                    g += mk('s_add_u32 m0, m0, 1024')
                g += mk('buffer_load_dwordx4 v%d, %s, s%d offen lds' % (vq + p, self.srd(SRD_WQ), sT2))
            out.append(g)
        return out

    def wq_addr(self, vq):
        L = []
        t, u = vT, vT + 1
        for p in range(3):
            d = vq + p
            L += ['v_add_u32 v%d, %d, v%d' % (t, 64 * p, vLane),
                  'v_mul_u32_u24 v%d, 0x1556, v%d' % (d, t),
                  'v_lshrrev_b32 v%d, 16, v%d' % (d, d),
                  'v_mul_u32_u24 v%d, 12, v%d' % (u, d),
                  'v_sub_u32 v%d, v%d, v%d' % (t, t, u),
                  'v_mul_u32_u24 v%d, 2688, v%d' % (d, d),
                  'v_lshrrev_b32 v%d, 2, v%d' % (u, t),
                  'v_mul_u32_u24 v%d, 896, v%d' % (u, u),
                  'v_add_u32 v%d, v%d, v%d' % (d, d, u),
                  'v_and_b32 v%d, 3, v%d' % (t, t),
                  'v_lshl_add_u32 v%d, v%d, 4, v%d' % (d, t, d),
                  's_mul_i32 s%d, s%d, 56' % (sT2, sM),
                  'v_add_u32 v%d, s%d, v%d' % (d, sT2, d)]
        return mk('\n'.join(L))

    def prologue(self):
        P = self.P
        P('s_cmp_ge_u32 s2, 256\ns_cbranch_scc1 L_end')
        P('s_load_dwordx16 s[%d:%d], s[0:1], 0' % (sKA, sKA + 15))
        P('s_load_dwordx4 s[%d:%d], s[0:1], 64' % (sKA + 16, sKA + 19))
        P('s_load_dwordx2 s[%d:%d], s[0:1], 80' % (sKA + 20, sKA + 21))
        P('v_lshrrev_b32 v%d, 6, v0\nv_and_b32 v0, 63, v0\nv_readfirstlane_b32 s%d, v%d' % (vT, sW, vT))
        P('s_and_b32 s%d, s2, 7\ns_lshr_b32 s%d, s2, 3\ns_lshr_b32 s%d, s%d, 4\ns_lshl_b32 s%d, s%d, 3\ns_add_u32 s%d, s%d, s%d\ns_and_b32 s%d, s%d, 15'
          % (sC, sM, sT0, sM, sT0, sT0, sC, sC, sT0, sM, sM))
        P('v_lshlrev_b32 v%d, 4, v0\nv_lshlrev_b32 v%d, 2, v0' % (vL16, vL4))
        if self.stamps:
            P('v_mov_b32 v%d, 0' % vStamp)
            P.add(self.stamp('start'))
        P('s_lshl_b32 s%d, s%d, 2\ns_add_u32 s%d, s%d, s%d\ns_mul_i32 s%d, s%d, %d' % (sX, sC, sX, sX, sW, sX, sX, 32 * 896))
        vq = 160
        P.add(self.wq_addr(vq))
        vxo = 163
        P('v_and_b32 v%d, 31, v0\nv_mul_u32_u24 v%d, 896, v%d\nv_lshrrev_b32 v%d, 5, v0\nv_lshl_add_u32 v%d, v%d, 4, v%d'
          % (vxo, vxo, vxo, vT, vxo, vT, vxo))
        ka = sKA
        def mksrd(r, p, size):
            P('s_mov_b32 s%d, s%d\ns_mov_b32 s%d, s%d\ns_mov_b32 s%d, %d\ns_mov_b32 s%d, 0x20000' % (r, p, r + 1, p + 1, r + 2, size, r + 3))
        mksrd(SRD_X, ka + 0, 2048 * 896)
        mksrd(SRD_WQ, ka + 2, 448 * 2688)
        P('s_load_dword s%d, s[%d:%d], 0' % (sNonce, ka + 20, ka + 21))
        self.xreg0 = [16 + 4 * i if i < 20 else 176 + 4 * (i - 20) for i in range(28)]
        for i in range(28):
            P('buffer_load_dwordx4 %s, v%d, %s, s%d offen offset:%d' % (v(self.xreg0[i], 4), vxo, self.srd(SRD_X), sX, 32 * i))
        last = None
        for g in self.wq_dma(range(7), vq):
            P.add(g)
            last = g[-1]
        self.tok_wq = tok(last)
        mksrd(SRD_WO, ka + 4, 448 * 896)
        mksrd(SRD_W1, ka + 8, 448 * 3584)
        mksrd(SRD_B1, ka + 10, 3584)
        mksrd(SRD_W2, ka + 12, 1792 * 896)
        mksrd(SRD_B2, ka + 14, 896)
        mksrd(SRD_OUT, ka + 16, 2048 * 896)
        mksrd(SRD_WS, ka + 20, WS_CL)
        P('s_lshl_b32 s%d, s%d, 21\ns_add_u32 s%d, s%d, %d' % (sT0, sC, sT0, sT0, WS_CL))
        P('s_add_u32 s%d, s%d, s%d\ns_addc_u32 s%d, s%d, 0\ns_mov_b32 s%d, 0x200000\ns_mov_b32 s%d, 0x20000'
          % (SRD_CL, ka + 20, sT0, SRD_CL + 1, ka + 21, SRD_CL + 2, SRD_CL + 3))
        vwo = 164
        P('v_lshrrev_b32 v%d, 2, v0\nv_mul_u32_u24 v%d, 896, v%d\nv_and_b32 v%d, 3, v0\nv_lshl_add_u32 v%d, v%d, 4, v%d\ns_lshl_b32 s%d, s%d, 6\nv_add_u32 v%d, s%d, v%d'
          % (vwo, vwo, vwo, vT, vwo, vT, vwo, sT2, sM, vwo, sT2, vwo))
        P('s_mul_i32 s%d, s%d, %d\ns_lshl_b32 s%d, s%d, 10\ns_add_u32 m0, s%d, %d' % (sT2, sW, 16 * 896, sT3, sW, sT3, L_WO))
        for t in range(7):
            if t:
                P('s_add_u32 s%d, s%d, %d\ns_add_u32 m0, m0, 4096' % (sT2, sT2, 64 * 896))
            P('buffer_load_dwordx4 v%d, %s, s%d offen lds' % (vwo, self.srd(SRD_WO), sT2))
        P('s_mov_b32 s%d, %d\ns_mov_b32 m0, %d\ns_mov_b64 exec, 0xffff' % (sT2, 448 * 896, L_WO + 28672))
        self.tok_wo = tok(P('buffer_load_dwordx4 v%d, %s, s%d offen lds' % (vwo, self.srd(SRD_WO), sT2)))
        P('s_mov_b64 exec, -1')
        P('s_mov_b32 s%d, %s\ns_mov_b32 s%d, 0\ns_mov_b32 s%d, -1' % (sLn2, f32(LN2), sHalf, sHalf + 1))
        P('s_mov_b32 s%d, 0x10000000\ns_mov_b32 s%d, 0x10000000\ns_mov_b32 s%d, 0' % (sN28, sN28 + 1, sSpin))
        P('s_getreg_b32 s%d, hwreg(HW_REG_XCC_ID, 0, 4)' % sXcc)
        P('s_add_u32 s%d, s%d, 0x01010101' % (sNonce, sNonce))
        for k in range(4):
            P('s_bfe_u32 s%d, s%d, 0x%x' % (sN0 + k, sNonce, (8 << 16) | (8 * k)))
        P('v_mov_b32 v%d, s%d' % (vNonce, sNonce))
        P('s_and_b32 s%d, s%d, 1\ns_sub_u32 s%d, 3, s%d' % (sEb, sM, sLb, sEb))
        c0 = -2.0 * 0.7978845608028654 * LOG2E
        P('s_mov_b32 s%d, %s\ns_mov_b32 s%d, %s' % (sC0, f32(c0), sC1, f32(c0 * 0.044715)))
        P('s_lshl_b32 s%d, s%d, 4\ns_add_u32 s%d, s%d, s%d\ns_lshl_b32 s%d, s%d, 7\ns_add_u32 s%d, s%d, %d'
          % (sT2, sC, sT2, sT2, sM, sT2, sT2, sT2, sT2, WS_XCC))
        P('s_add_u32 s%d, s%d, s%d\nv_mov_b32 v%d, s%d\ns_mov_b64 exec, 1' % (sT3, sNonce, sXcc, vT, sT3))
        P('buffer_store_dword v%d, off, %s, s%d sc1' % (vT, self.srd(SRD_WS), sT2))
        P('s_mov_b64 exec, -1')

    def s1(self, l):
        P = self.P
        AK, AV, AQ, WB, SB = 96, 112, 128, 144, 160
        NB = 4
        P.comment('==== layer %d : S1' % l)
        P.add(self.trbase(vTr, 192, 8 if l == 0 else 4, add=L_WQ))
        d2 = 4 * 192 if l == 0 else 8 * 192
        if l == 0:
            xreg = self.xreg0
            P.add([wait_tok(self.tok_wq)])
            P('s_barrier')
            P.add(self.stamp('wq_ready'))
            vo, vb = SB, SB + 4
            P('\n'.join('v_mov_b32 v%d, 0x3f803f80' % (vo + i) for i in range(4)))
            P('s_mul_i32 s%d, s%d, %d\nv_add_u32 v%d, s%d, v%d' % (sT0, sW, 7 * 3072, vb, sT0, vTr))
            jobs = [(t, k) for k in range(7) for t in range(3)]
            rd = lambda j: mk('ds_read_b64_tr_b16 %s, v%d offset:%d\nds_read_b64_tr_b16 %s, v%d offset:%d' % (
                v(WB + 4 * (j % NB), 2), vb, jobs[j][1] * 3072 + 64 * jobs[j][0],
                v(WB + 4 * (j % NB) + 2, 2), vb, jobs[j][1] * 3072 + 64 * jobs[j][0] + d2))
            for j in range(NB):
                P.add(rd(j))
            for j, (t, k) in enumerate(jobs):
                acc = (AQ, AK, AV)[t]
                P('v_mfma_f32_32x32x16_bf16 %s, %s, %s, %s' % (v(acc, 16), v(vo, 4), v(WB + 4 * (j % NB), 4), v(acc, 16) if k else '0'))
                if j + NB < len(jobs):
                    P.add(rd(j + NB))
            P('v_and_b32 v%d, 31, v0\nv_lshlrev_b32 v%d, 2, v%d\ns_mul_i32 s%d, s%d, 384\nv_add_u32 v%d, s%d, v%d'
              % (vb, vb, vb, sT0, sW, vb, sT0, vb))
            for t in range(3):
                P('v_add_u32 v%d, %d, v%d\nds_write_b32 v%d, v%d' % (vb + 1, L_KVB + 128 * t, vb, vb + 1, (AQ, AK, AV)[t]))
        else:
            xreg = [16 + 4 * (i % 20) for i in range(28)]
            P('v_and_b32 v%d, 31, v0\nv_min_u32 v%d, 27, v%d\nv_lshlrev_b32 v%d, 2, v%d' % (vPA, vPA, vPA, vPA, vPA))
            P('s_lshl_b32 s%d, s%d, 7\ns_add_u32 s%d, s%d, %d' % (sT4, sW, sT4, sT4, FX2))
            P.add(self.poll_issue(sT4))
            P('s_mul_i32 s%d, s%d, %d' % (sT5, sW, X2_BS))
            P.add([wait_tok(self.tok_wq)])
            P('s_barrier')
            P.add(self.poll_check(sT4))
            P.add(self.stamp('x2_seen'))
            lds = self.frag_loads([v(r, 4) for r in xreg], SRD_CL, sT5, X2_OFF)
            for g in lds[:20]:
                P.add(g)
            self.x_late = lds[20:]
            st = lambda i: mk('buffer_load_dword v%d, v%d, %s, s%d offen offset:%d' % (SB + i % 14, vL4, self.srd(SRD_CL), sT4, 256 * (i % 14)))
            P('s_add_u32 s%d, s%d, %d' % (sT4, sT5, X2_OFF + 28672))
            for i in range(14):
                P.add(st(i))
        jobs = []
        for k in range(28):
            jobs += [('k', k), ('v', k)] + ([('q', k)] if k < 8 else [])
        nmain = len(jobs)
        jobs += [('q', k) for k in range(8, 28)]
        vTr2 = vPA
        P('v_add_u32 v%d, %d, v%d' % (vTr2, 16 * 3072, vTr))

        def rd(j):
            t, k = jobs[j]
            base, off = (vTr, k * 3072) if k < 16 else (vTr2, (k - 16) * 3072)
            off += 64 * 'qkv'.index(t)
            return mk('ds_read_b64_tr_b16 %s, v%d offset:%d\nds_read_b64_tr_b16 %s, v%d offset:%d' % (
                v(WB + 4 * (j % NB), 2), base, off, v(WB + 4 * (j % NB) + 2, 2), base, off + d2))
        for j in range(NB):
            P.add(rd(j))
        slots = []
        vS, vS2 = vT + 2, vT + 3
        for j, (t, k) in enumerate(jobs):
            acc = {'q': AQ, 'k': AK, 'v': AV}[t]
            w = v(WB + 4 * (j % NB), 4)
            x = v(xreg[k], 4)
            A, B = (w, x) if t == 'q' else (x, w)
            sl = mk('v_mfma_f32_32x32x16_bf16 %s, %s, %s, %s' % (v(acc, 16), A, B, v(acc, 16) if k else '0'))
            if j + NB < len(jobs):
                sl += rd(j + NB)
            if l == 0 and j < nmain and t in 'kv':
                if j == 0:
                    sl += mk('v_mov_b32 v%d, 0x3f803f80' % (vT + 1))
                for i in ((0, 1) if t == 'k' else (2, 3)):
                    first = (k == 0 and i == 0)
                    sl += mk('v_dot2_f32_bf16 v%d, v%d, v%d, %s' % (vS, xreg[k] + i, vT + 1, '0' if first else 'v%d' % vS))
                    sl += mk('v_dot2_f32_bf16 v%d, v%d, v%d, %s' % (vS2, xreg[k] + i, xreg[k] + i, '0' if first else 'v%d' % vS2))
            if l == 1 and t == 'q' and k < 8:
                sl += self.x_late[k]
            slots.append(sl)
        if l == 0:
            j0 = 30
            vb = SB
            ex = mk('s_waitcnt lgkmcnt(0)\ns_barrier')
            ex += mk('v_and_b32 v%d, 31, v0\nv_lshlrev_b32 v%d, 2, v%d\nv_add_u32 v%d, %d, v%d' % (vb, vb, vb, vb, L_KVB, vb))
            for t in range(3):
                for ww in range(4):
                    ex += mk('ds_read_b32 v%d, v%d offset:%d' % (vb + 1 + 4 * t + ww, vb, 384 * ww + 128 * t))
            slots[j0] += ex
            ex = []
            for t in range(3):
                r = vb + 1 + 4 * t
                d = (r, vCsK, vCsV)[t]
                ex += mk('v_add_f32 v%d, v%d, v%d\nv_add_f32 v%d, v%d, v%d\nv_add_f32 v%d, v%d, v%d' % (r, r, r + 1, r + 2, r + 2, r + 3, d, r, r + 2))
            ex += mk('ds_write_b32 v%d, v%d offset:%d' % (vb, vb + 1, L_CS - L_KVB))
            slots[j0 + 4] += ex
            pre = mk('v_permlane32_swap_b32 v%d, v%d\nv_add_f32 v%d, v%d, v%d' % (vS, vS2, vS, vS, vS2))
        else:
            ex = mk('v_add_f32 v%d, v%d, v%d' % (vS, SB, SB + 1))
            for i in range(2, 14):
                ex += mk('v_add_f32 v%d, v%d, v%d' % (vS, vS, SB + i))
            ex += mk('s_add_u32 s%d, s%d, %d' % (sT4, sT5, X2_OFF + 28672 + 14 * 256))
            for i in range(14):
                ex += st(i)
            slots[44] += ex
            pre = []
            for i in range(14):
                pre += mk('v_add_f32 v%d, v%d, v%d' % (vS, vS, SB + i))
        fill = pre + self.stats_finish(vS, False)
        fill += mk('v_cndmask_b32 v%d, v%d, v%d, s[%d:%d]' % (vT, vMean, vRl, sHalf, sHalf + 1))
        fill += mk('s_lshl_b32 s%d, s%d, 12\ns_add_u32 s%d, s%d, %d' % (sT0, sW, sT0, sT0, L_KVS))
        fill += mk('v_add_u32 v%d, s%d, v%d\nds_write_b32 v%d, v%d' % (vT + 1, sT0, vL4, vT + 1, vT))
        fill += mk('v_lshrrev_b32 v%d, 5, v0\nv_lshl_add_u32 v%d, v%d, 4, s%d' % (vT + 1, vT + 1, vT + 1, sT0))
        bc = lambda g: mk('ds_read_b128 %s, v%d offset:%d\nds_read_b128 %s, v%d offset:%d' % (
            v(SB + 8 * (g & 1), 4), vT + 1, 32 * g, v(SB + 8 * (g & 1) + 4, 4), vT + 1, 128 + 32 * g))
        fill += bc(0) + bc(1)
        fill += mk('v_mov_b32 v%d, 0x3f803f80' % vPoll)
        for g in range(4):
            M = [SB + 8 * (g & 1) + i for i in range(4)]
            R = [SB + 8 * (g & 1) + 4 + i for i in range(4)]
            e = self.phi4([AK + 4 * g + i for i in range(4)], M, [vCsK] * 4, R, xreg[8])
            e2 = []
            for i in range(4):
                e2 += mk('v_fma_f32 v%d, -v%d, v%d, v%d' % (AV + 4 * g + i, M[i], vCsV, AV + 4 * g + i))
            for i in range(4):
                e2 += mk('v_mul_f32 v%d, v%d, v%d' % (AV + 4 * g + i, AV + 4 * g + i, R[i]))
            fill += e[:8] + e2
            if g + 2 < 4:
                fill += bc(g + 2)
            fill += e[8:]
            fill += self.pack(AK + 2 * g, AK + 4 * g, 2) + self.pack(AV + 2 * g, AV + 4 * g, 2)
            for i in range(2):
                fill += mk('v_cndmask_b32 v%d, v%d, v%d, s[%d:%d]' % (AV + 2 * g + i, AV + 2 * g + i, vPoll, sN28, sN28 + 1))
        P.add([x for sl in slots[:nmain] for x in sl])
        P.add(self.stamp('s1_kv_mfma'))
        P.add(spread(slots[nmain:], fill))
        DK = 16
        P('v_mfma_f32_32x32x16_bf16 %s, %s, %s, 0' % (v(DK, 16), v(AK, 4), v(AV, 4)))
        P('v_mfma_f32_32x32x16_bf16 %s, %s, %s, %s' % (v(DK, 16), v(AK + 4, 4), v(AV + 4, 4), v(DK, 16)))
        P('v_add_u32 v%d, s%d, v%d' % (vT, sT0, vL16))
        P('s_lshl_b32 s%d, s%d, 10\ns_add_u32 s%d, s%d, %d\nv_add_u32 v%d, s%d, v%d' % (sT1, sW, sT1, sT1, L_KVS, vT + 1, sT1, vL16))
        P('v_mov_b32 v%d, 0xff' % (vT + 2))
        P('s_lshl_b32 s%d, s%d, 2\ns_add_u32 s%d, s%d, s%d\ns_lshl_b32 s%d, s%d, 14\ns_add_u32 s%d, s%d, %d'
          % (sT5, sM, sT5, sT5, sW, sT5, sT5, sT5, sT5, WS_KVP + l * 0x100000))
        P('s_lshl_b32 s%d, s%d, 10\ns_add_u32 s%d, s%d, s%d' % (sT4, sC, sT4, sT4, sT5))
        for q in range(4):
            P('ds_write_b128 v%d, %s offset:%d' % (vT, v(DK + 4 * q, 4), 1024 * q))
        P('s_waitcnt lgkmcnt(0)\ns_barrier')
        for ww in range(4):
            P('ds_read_b128 %s, v%d offset:%d' % (v(32 + 4 * ww, 4), vT + 1, 4096 * ww))
        for i in range(4):
            P('v_add_f32 v%d, v%d, v%d' % (32 + i, 32 + i, 36 + i))
        for i in range(4):
            P('v_add_f32 v%d, v%d, v%d' % (40 + i, 40 + i, 44 + i))
        for i in range(4):
            P('v_add_f32 v%d, v%d, v%d' % (32 + i, 32 + i, 40 + i))
        for i in range(4):
            P('v_bfi_b32 v%d, v%d, s%d, v%d' % (32 + i, vT + 2, sN0 + i, 32 + i))
        P('buffer_store_dwordx4 %s, v%d, %s, s%d offen sc1' % (v(32, 4), vL16, self.srd(SRD_WS), sT4))
        P.add(self.stamp('kv_pub'))
        P('v_lshrrev_b32 v%d, 5, v0\nv_lshlrev_b32 v%d, 4, v%d\nv_add_u32 v%d, %d, v%d' % (vT, vT, vT, vT, L_CS, vT))
        for g in range(4):
            P('ds_read_b128 %s, v%d offset:%d' % (v(SB + 4 * g, 4), vT, 32 * g))
        PQ = 104
        for g in range(4):
            P.add(self.phi4([AQ + 4 * g + i for i in range(4)], [vMean] * 4, [SB + 4 * g + i for i in range(4)], [vRl] * 4, 48))
            P.add(self.pack(PQ + 2 * g, AQ + 4 * g, 2))
        for i in (6, 7):
            P('v_cndmask_b32 v%d, v%d, 0, s[%d:%d]' % (PQ + i, PQ + i, sHalf, sHalf + 1))
        self.PQ = PQ

    def staging(self):
        P = self.P
        lskip = P.newlabel('Lnostage')
        P('s_cmp_ge_u32 s%d, 14\ns_cbranch_scc1 %s' % (sM, lskip))
        v1a, v2a, t1, t2 = 112, 113, 114, 115
        P('v_lshrrev_b32 v%d, 2, v0\nv_mul_u32_u24 v%d, 3584, v%d\nv_and_b32 v%d, 3, v0\nv_lshl_add_u32 v%d, v%d, 4, v%d'
          % (v1a, v1a, v1a, vT, v1a, vT, v1a))
        P('s_lshl_b32 s%d, s%d, 2\ns_add_u32 s%d, s%d, s%d\ns_lshl_b32 s%d, s%d, 6\nv_add_u32 v%d, s%d, v%d' % (sT0, sM, sT0, sT0, sW, sT0, sT0, v1a, sT0, v1a))
        P('v_lshrrev_b32 v%d, 3, v0\nv_mul_u32_u24 v%d, 896, v%d\nv_and_b32 v%d, 7, v0\nv_lshl_add_u32 v%d, v%d, 4, v%d'
          % (v2a, v2a, v2a, vT, v2a, vT, v2a))
        P('s_lshr_b32 s%d, s%d, 1\ns_lshl_b32 s%d, s%d, 7\ns_mul_i32 s%d, s%d, %d\ns_add_u32 s%d, s%d, s%d\nv_add_u32 v%d, s%d, v%d'
          % (sT0, sM, sT0, sT0, sT1, sW, 32 * 896, sT0, sT0, sT1, v2a, sT0, v2a))
        P('s_mul_i32 s%d, s%d, 28672' % (sT3, sW))
        P.add(self.trbase(t1, 64, 4))
        P('v_add_u32 v%d, s%d, v%d' % (t1, sT3, t1))
        P('s_lshr_b32 s%d, s%d, 1' % (sT0, sW))
        P.add(self.trbase(t2, 128, 4, xor16=sT0))
        P('v_add_u32 v%d, s%d, v%d' % (t2, sT3, t2))
        P('s_and_b32 s%d, s%d, 1\ns_lshl_b32 s%d, s%d, 6\ns_xor_b32 s%d, s%d, 64\nv_add_u32 v%d, s%d, v%d\nv_add_u32 v%d, s%d, v%d'
          % (sT0, sW, sT0, sT0, sT1, sT0, t2 + 1, sT1, t2, t2, sT0, t2))

        def issue(r):
            last = None
            P('s_add_u32 m0, s%d, %d' % (sT3, (r % 2) * 14336))
            for i in range(14):
                if i:
                    P('s_add_u32 m0, m0, 1024')
                if r < 2:
                    P('s_mov_b32 s%d, %d' % (sT2, (r * 14 + i) * 16 * 3584))
                    last = P('buffer_load_dwordx4 v%d, %s, s%d offen lds' % (v1a, self.srd(SRD_W1), sT2))
                else:
                    kap = (r - 2) * 7 + i // 2
                    row = 128 * (kap // 2) + 16 * (kap % 2) + 8 * (i % 2)
                    P('s_mov_b32 s%d, %d' % (sT2, row * 896))
                    last = P('buffer_load_dwordx4 v%d, %s, s%d offen lds' % (v2a, self.srd(SRD_W2), sT2))
            return tok(last)

        def consume(r, tk):
            P.add([wait_tok(tk)])
            o = (r % 2) * 14336
            if r < 2:
                for i in range(14):
                    k = r * 14 + i
                    P('ds_read_b64_tr_b16 %s, v%d offset:%d' % (w1half(k, 0), t1, o + 1024 * i))
                    P('ds_read_b64_tr_b16 %s, v%d offset:%d' % (w1half(k, 1), t1, o + 1024 * i + 512))
            else:
                for i in range(7):
                    kap = (r - 2) * 7 + i
                    for js in range(2):
                        b = W2A + 8 * kap + 4 * js
                        P('ds_read_b64_tr_b16 %s, v%d offset:%d' % (a(b, 2), t2 + js, o + 2048 * i))
                        P('ds_read_b64_tr_b16 %s, v%d offset:%d' % (a(b + 2, 2), t2 + js, o + 2048 * i + 1024))
            P('s_waitcnt lgkmcnt(0)')
        tk = [issue(0), issue(1)]
        vb = 120
        P('v_lshrrev_b32 v%d, 5, v0\nv_lshlrev_b32 v%d, 3, v%d' % (vT, vT, vT))
        P('s_lshl_b32 s%d, s%d, 2\ns_add_u32 s%d, s%d, s%d\ns_lshl_b32 s%d, s%d, 6' % (sT0, sM, sT0, sT0, sW, sT0, sT0))
        for g in range(4):
            P('buffer_load_dwordx2 %s, v%d, %s, s%d offen offset:%d' % (v(vb + 2 * g, 2), vT, self.srd(SRD_B1), sT0, 16 * g))
        for r in range(6):
            consume(r, tk[r])
            if r + 2 < 6:
                tk.append(issue(r + 2))
            if r == 1:
                vo, D = 160, 128
                P('\n'.join('v_mov_b32 v%d, 0x3f803f80' % (vo + i) for i in range(4)))
                for k in range(28):
                    P('v_mfma_f32_32x32x16_bf16 %s, %s, %s, %s' % (v(D, 16), w1reg(k), v(vo, 4), v(D, 16) if k else '0'))
                P.add(self.unpack(144, vb, 8))
                P('v_lshrrev_b32 v%d, 5, v0\nv_lshlrev_b32 v%d, 4, v%d\ns_lshl_b32 s%d, s%d, 8\ns_add_u32 s%d, s%d, %d\nv_add_u32 v%d, s%d, v%d'
                  % (vT, vT, vT, sT0, sW, sT0, sT0, L_CB1, vT, sT0, vT))
                for g in range(4):
                    P('ds_write_b128 v%d, %s offset:%d' % (vT, v(144 + 4 * g, 4), 128 + 32 * g))
                for g in range(4):
                    P('ds_write_b128 v%d, %s offset:%d' % (vT, v(D + 4 * g, 4), 32 * g))
        P.label(lskip)
        P.add([I('s_nop 1', kind='block', states=2)])

    def kvx(self, l):
        P = self.P
        P.comment('==== layer %d : kv exchange' % l)
        if l == 0:
            lw = P.newlabel('Lxcc')
            P('s_lshl_b32 s%d, s%d, 11\ns_add_u32 s%d, s%d, %d' % (sT0, sC, sT0, sT0, WS_XCC))
            P('v_and_b32 v%d, 15, v0\nv_lshlrev_b32 v%d, 7, v%d' % (vPA, vPA, vPA))
            P.label(lw)
            P.add([I('\n'.join([
                'buffer_load_dword v%d, v%d, %s, s%d offen sc1' % (vPoll, vPA, self.srd(SRD_WS), sT0),
                's_add_u32 s%d, s%d, 1' % (sSpin, sSpin),
                's_cmp_gt_u32 s%d, 0x40000' % sSpin,
                's_cbranch_scc1 L_end',
                's_waitcnt vmcnt(0)',
                'v_subrev_u32 v%d, s%d, v%d' % (vPoll, sNonce, vPoll),
                'v_cmp_lt_u32 vcc, 15, v%d' % vPoll,
                's_cbranch_vccnz %s' % lw,
                'v_cmp_ne_u32 vcc, s%d, v%d' % (sXcc, vPoll),
                's_cmp_lg_u64 vcc, 0',
                's_cselect_b32 s%d, 1, 0' % sSlow]), kind='block', src=[('v', vPA)], dst=[('v', vPoll), ('x', 'vcc')],
                drain_vm=True, states=1)])
        elif self.kvdelay:
            P('s_sleep %d' % self.kvdelay)
        RES = 160
        if l == 0:
            P('v_and_b32 v%d, 31, v0\nv_mul_u32_u24 v%d, 896, v%d\nv_lshrrev_b32 v%d, 5, v0\nv_lshl_add_u32 v%d, v%d, 3, v%d'
              % (vT, vT, vT, vT + 1, vT, vT + 1, vT))
            P('s_lshl_b32 s%d, s%d, 6\ns_add_u32 s%d, s%d, s%d' % (sT0, sM, sT0, sT0, sX))
            for g in range(4):
                P('buffer_load_dwordx2 %s, v%d, %s, s%d offen offset:%d' % (v(RES + 2 * g, 2), vT, self.srd(SRD_X), sT0, 16 * g))
        else:
            P('s_mul_i32 s%d, s%d, %d\ns_lshl_b32 s%d, s%d, 11\ns_add_u32 s%d, s%d, s%d' % (sT0, sW, X2_BS, sT1, sM, sT0, sT0, sT1))
            P('s_add_u32 s%d, s%d, %d' % (sT0, sT0, X2_OFF))
            for j in range(2):
                P('buffer_load_dwordx4 %s, v%d, %s, s%d offen offset:%d' % (v(RES + 4 * j, 4), vL16, self.srd(SRD_CL), sT0, 1024 * j))
        lsw, lre = P.newlabel('Lsweep'), P.newlabel('Lresweep')
        P.add(self.stamp('sweep_start'))
        P.label(lsw)
        B = 32
        for g in self.frag_loads([v(B + 4 * i, 4) for i in range(16)], SRD_WS, sT5, 0, flags='sc1'):
            P.add(g)
        bad, S = vT, 16
        P('v_mov_b32 v%d, 0' % bad)
        for i in range(16):
            for k in range(4):
                P('v_xor_b32 v%d, s%d, v%d' % (B + 4 * i + k, sN0 + k, B + 4 * i + k))
            for k in (0, 2):
                P('v_or3_b32 v%d, v%d, v%d, v%d' % (bad, B + 4 * i + k, B + 4 * i + k + 1, bad))
            if i == 1:
                for k in range(4):
                    P('v_add_f32 v%d, v%d, v%d' % (S + k, B + k, B + 4 + k))
            elif i > 1:
                for k in range(4):
                    P('v_add_f32 v%d, v%d, v%d' % (S + k, S + k, B + 4 * i + k))
        P('v_and_b32 v%d, 0xff, v%d\nv_cmp_ne_u32 vcc, 0, v%d' % (bad, bad, bad))
        P.add([I('s_cbranch_vccnz %s' % lre, kind='block', states=1)])
        self.ool.append('%s:\ns_sleep 6\ns_add_u32 s%d, s%d, 1\ns_cmp_gt_u32 s%d, 0x40000\ns_cbranch_scc1 L_end\ns_branch %s'
                        % (lre, sSpin, sSpin, sSpin, lsw))
        P.add(self.stamp('sweep_done'))
        P.add(self.pack(S, S, 2))
        P('v_lshlrev_b32 v%d, 5, v0\nv_add_u32 v%d, %d, v%d\ns_lshl_b32 s%d, s%d, 3\nv_add_u32 v%d, s%d, v%d'
          % (vT, vT, L_KVB, vT, sT0, sW, vT + 1, sT0, vT))
        P('ds_write_b64 v%d, %s' % (vT + 1, v(S, 2)))
        if l == 0:
            P.add([wait_tok(self.tok_wo)])
        P('s_waitcnt lgkmcnt(0)\ns_barrier')
        KF, D = 32, 16
        P('ds_read_b128 %s, v%d\nds_read_b128 %s, v%d offset:16' % (v(KF, 4), vT, v(KF + 4, 4), vT))
        P('s_lshl_b32 s%d, s%d, 15\ns_lshl_b32 s%d, s%d, 11\ns_add_u32 s%d, s%d, s%d\ns_add_u32 s%d, s%d, %d'
          % (sT0, sW, sT1, sM, sT1, sT1, sT0, sT1, sT1, l * LOFF + O_OFF))
        P('s_lshl_b32 s%d, s%d, 7\ns_add_u32 s%d, s%d, %d\ns_lshl_b32 s%d, s%d, 2\ns_add_u32 s%d, s%d, s%d'
          % (sT4, sW, sT4, sT4, l * LOFF + FO, sT2, sM, sT2, sT2, sT4))
        P('v_mfma_f32_32x32x16_bf16 %s, %s, %s, 0' % (v(D, 16), v(KF, 4), v(self.PQ, 4)))
        P('v_mfma_f32_32x32x16_bf16 %s, %s, %s, %s' % (v(D, 16), v(KF + 4, 4), v(self.PQ + 4, 4), v(D, 16)))
        t1, t2 = vT, vT + 1
        P('v_mov_b32 v%d, v%d\nv_mov_b32 v%d, v%d\nv_permlane32_swap_b32 v%d, v%d' % (t1, D + 12, t2, D + 12, t1, t2))
        P('v_add_f32 v%d, %s, v%d\nv_rcp_f32 v%d, v%d\nv_mul_f32 v%d, s%d, v%d' % (t2, f32(1e-6), t2, t2, t2, t2, sLn2, t2))
        P('v_cndmask_b32 v%d, v%d, 0, s[%d:%d]' % (t1, t2, sHalf, sHalf + 1))
        for r in range(16):
            P('v_mul_f32 v%d, v%d, v%d' % (D + r, D + r, t2 if r < 12 else t1))
        P.add(self.pack(D, D, 8))
        st = self.stores(['buffer_store_dwordx4 %s, v%d, %s, s%d offen offset:%d' % (v(D + 4 * j, 4), vL16, self.srd(SRD_CL), sT1, 1024 * j) for j in range(2)])
        tk = tok(st[-1])
        P.add(st)
        P('v_and_b32 v%d, 15, v0\nv_lshlrev_b32 v%d, 2, v%d' % (vPA, vPA, vPA))
        P.add(self.flag([tk], sT2))
        P.add(self.stamp('o_pub'))

    def s2(self, l):
        P = self.P
        P.comment('==== layer %d : S2' % l)
        ACC, OF, WB, RES = 16, 32, 144, 160
        NB = 4
        P.add(self.poll_issue(sT4))
        P.add(self.unpack(ACC, RES, 8))
        P.add(self.trbase(vTr, 64, 4, add=L_WO))
        jobs = [(h, j) for h in range(16) for j in range(2)]
        rd = lambda i: mk('ds_read_b64_tr_b16 %s, v%d offset:%d\nds_read_b64_tr_b16 %s, v%d offset:%d' % (
            v(WB + 4 * (i % NB), 2), vTr, 1792 * jobs[i][0] + 1024 * jobs[i][1],
            v(WB + 4 * (i % NB) + 2, 2), vTr, 1792 * jobs[i][0] + 1024 * jobs[i][1] + 512))
        for i in range(NB):
            P.add(rd(i))
        P.add(self.poll_check(sT4))
        P.add(self.stamp('o_seen'))
        oreg = [OF + 4 * (i % 28) for i in range(32)]
        lds = self.frag_loads([v(r, 4) for r in oreg], SRD_CL, sT0, l * LOFF + O_OFF, stmp=(sT1, sT2))
        for g in lds[:28]:
            P.add(g)
        for i in range(32):
            P('v_mfma_f32_32x32x16_bf16 %s, %s, %s, %s' % (v(ACC, 16), v(WB + 4 * (i % NB), 4), v(oreg[i], 4), v(ACC, 16)))
            if i + NB < 32:
                P.add(rd(i + NB))
            if i < 4:
                P.add(lds[28 + i])
        P('s_lshl_b32 s%d, s%d, 11\ns_add_u32 s%d, s%d, s%d\ns_add_u32 s%d, s%d, %d' % (sT1, sM, sT1, sT1, sT0, sT1, sT1, l * LOFF + X1_OFF))
        P('s_lshl_b32 s%d, s%d, 8\ns_add_u32 s%d, s%d, s%d\ns_add_u32 s%d, s%d, %d' % (sT2, sM, sT2, sT2, sT0, sT2, sT2, l * LOFF + X1_OFF + 28672))
        P('s_lshl_b32 s%d, s%d, 7\ns_lshl_b32 s%d, s%d, 2\ns_add_u32 s%d, s%d, s%d\ns_add_u32 s%d, s%d, %d'
          % (sT3, sW, sT4, sM, sT3, sT3, sT4, sT3, sT3, l * LOFF + FX1))
        P.add(self.pack(OF, ACC, 8))
        st = self.stores(['buffer_store_dwordx4 %s, v%d, %s, s%d offen offset:%d' % (v(OF + 4 * j, 4), vL16, self.srd(SRD_CL), sT1, 1024 * j) for j in range(2)])
        P.add(st)
        P.add(self.row_stats(OF, 8, vT, vT + 2))
        st = self.stores(['buffer_store_dword v%d, v%d, %s, s%d offen' % (vT, vL4, self.srd(SRD_CL), sT2)])
        tk = tok(st[-1])
        P.add(st)
        P('v_and_b32 v%d, 15, v0\nv_min_u32 v%d, 13, v%d\nv_lshlrev_b32 v%d, 2, v%d\nv_lshrrev_b32 v%d, 4, v0\nv_lshl_add_u32 v%d, v%d, 7, v%d'
          % (vPA, vPA, vPA, vPA, vPA, vT + 1, vPA, vT + 1, vPA))
        P.add(self.flag([tk], sT3))
        P.add(self.stamp('x1_pub'))

    def gelu(self, acc, CS, B1, T, H):
        L = []
        for g in range(4):
            rs = [acc + 4 * g + i for i in range(4)]
            for i, r in enumerate(rs):
                L.append('v_fma_f32 v%d, -v%d, v%d, v%d' % (r, vMean, CS + 4 * g + i, r))
            for i, r in enumerate(rs):
                L.append('v_fma_f32 v%d, v%d, v%d, v%d' % (r, r, vRl, B1 + 4 * g + i))
            for i, r in enumerate(rs):
                L.append('v_mul_f32 v%d, v%d, v%d' % (T + i, r, r))
            for i, r in enumerate(rs):
                L.append('v_fma_f32 v%d, v%d, s%d, v%d' % (T + i, T + i, sC1, T + 4))
            for i, r in enumerate(rs):
                L.append('v_mul_f32 v%d, v%d, v%d' % (T + i, T + i, r))
            for i, r in enumerate(rs):
                L.append('v_exp_f32 v%d, v%d' % (T + i, T + i))
            for i, r in enumerate(rs):
                L.append('v_add_f32 v%d, 1.0, v%d' % (T + i, T + i))
            for i, r in enumerate(rs):
                L.append('v_rcp_f32 v%d, v%d' % (T + i, T + i))
            for i, r in enumerate(rs):
                L.append('v_mul_f32 v%d, v%d, v%d' % (r, r, T + i))
            for i in range(2):
                L.append('v_cvt_pk_bf16_f32 v%d, v%d, v%d' % (H + 2 * g + i, rs[2 * i], rs[2 * i + 1]))
        return mk('\n'.join(L))

    def mlp(self, l):
        P = self.P
        P.comment('==== layer %d : MLP' % l)
        LO = l * LOFF
        ACC = (16, 32)
        XB, CS, B1, T, H, RING = 48, 64, 80, 96, 104, 112
        NB = 4
        P('s_mov_b32 s%d, %d' % (sT4, LO + FX1))
        P.add(self.poll_issue(sT4))
        P('v_lshrrev_b32 v%d, 5, v0\nv_lshlrev_b32 v%d, 4, v%d\ns_lshl_b32 s%d, s%d, 8\ns_add_u32 s%d, s%d, %d\nv_add_u32 v%d, s%d, v%d'
          % (vT, vT, vT, sT0, sW, sT0, sT0, L_CB1, vT, sT0, vT))
        for g in range(4):
            P('ds_read_b128 %s, v%d offset:%d' % (v(CS + 4 * g, 4), vT, 32 * g))
            P('ds_read_b128 %s, v%d offset:%d' % (v(B1 + 4 * g, 4), vT, 128 + 32 * g))
        P('v_mov_b32 v%d, s%d' % (T + 4, sC0))
        P('s_mul_i32 s%d, s%d, 7168' % (sT3, sW))
        P.add(self.poll_check(sT4))
        P.add(self.stamp('x1_seen'))
        tb = []
        for b in range(4):
            last = None
            for i in range(7):
                if i % 4 == 0:
                    P('s_add_u32 m0, s%d, %d\ns_add_u32 s%d, s%d, %d' % (sT3, b * L_XB + 1024 * i, sT2, sT3, LO + X1_OFF + b * 32768 + 1024 * i))
                last = P('buffer_load_dwordx4 v%d, %s, s%d offen offset:%d lds' % (vL16, self.srd(SRD_CL), sT2, 1024 * (i % 4)))
            tb.append(tok(last))
            if b == 0:
                P('s_lshl_b32 s%d, s%d, 15\ns_add_u32 s%d, s%d, %d' % (sT1, sW, sT1, sT1, LO + X1_OFF + 28672))
                for i in range(14):
                    P('buffer_load_dword v%d, v%d, %s, s%d offen offset:%d' % (RING + i, vL4, self.srd(SRD_CL), sT1, 256 * i))
        st0 = mk('v_add_f32 v%d, v%d, v%d' % (T, RING, RING + 1))
        for i in range(2, 14):
            st0 += mk('v_add_f32 v%d, v%d, v%d' % (T, T, RING + i))
        st0 += self.stats_finish(T, True)
        st0 += mk('v_cndmask_b32 v%d, v%d, v%d, s[%d:%d]' % (vT, vMean, vRl, sHalf, sHalf + 1))
        st0 += mk('s_lshl_b32 s%d, s%d, 8\ns_add_u32 s%d, s%d, %d\nv_add_u32 v%d, s%d, v%d\nds_write_b32 v%d, v%d'
                  % (sT0, sW, sT0, sT0, L_KVB, vT + 1, sT0, vL4, vT + 1, vT))
        vSt = vTr
        P('v_and_b32 v%d, 31, v0\nv_lshlrev_b32 v%d, 2, v%d\nv_add_u32 v%d, %d, v%d' % (vSt, vSt, vSt, vSt, L_KVB, vSt))
        vX2 = vT + 3
        P('v_add_u32 v%d, %d, v%d' % (vX2, 2 * L_XB, vL16))
        sH, sF = sT5, sT3
        rdx = lambda b, k: mk('ds_read_b128 %s, v%d offset:%d' % (v(XB + 4 * (k % NB), 4), vL16 if b < 2 else vX2, (b & 1) * L_XB + 1024 * k))

        def hpub(b):
            pre = mk('s_lshl_b32 s%d, s%d, 2\ns_add_u32 s%d, s%d, s%d\ns_lshl_b32 s%d, s%d, 11\ns_add_u32 s%d, s%d, %d'
                     % (sH, sM, sH, sH, sW, sH, sH, sH, sH, LO + H_OFF + b * 114688))
            st = self.stores(['buffer_store_dwordx4 %s, v%d, %s, s%d offen offset:%d' % (v(H + 4 * j, 4), vL16, self.srd(SRD_CL), sH, 1024 * j) for j in range(2)])
            return pre + st, tok(st[-1])

        def hflag(b, tk):
            pre = mk('s_lshl_b32 s%d, s%d, 5\ns_add_u32 s%d, s%d, s%d\ns_lshl_b32 s%d, s%d, 2\ns_add_u32 s%d, s%d, %d'
                     % (sF, sW, sF, sF, sM, sF, sF, sF, sF, LO + FH + b * 512))
            return pre + self.flag([tk], sF)
        statrd = lambda b: mk('ds_read_b32 v%d, v%d offset:%d\nds_read_b32 v%d, v%d offset:%d' % (vMean, vSt, 256 * b, vRl, vSt, 256 * b + 128))
        pend = None
        hreg = [RING + 4 * (i % 16) for i in range(56)]
        for b in range(4):
            P.add([wait_tok(tb[b])])
            if b == 1:
                P('s_waitcnt lgkmcnt(0)')
            P('s_barrier')
            P.add(self.stamp('s3_b%d' % b))
            for k in range(NB):
                P.add(rdx(b, k))
            slots = []
            for k in range(28):
                sl = mk('v_mfma_f32_32x32x16_bf16 %s, %s, %s, %s' % (v(ACC[b & 1], 16), w1reg(k), v(XB + 4 * (k % NB), 4), v(ACC[b & 1], 16) if k else '0'))
                if k + NB < 28:
                    sl += rdx(b, k + NB)
                slots.append(sl)
            fill = []
            if b == 0:
                fill += st0
            if b > 0:
                fill += statrd(b - 1)
                g = self.gelu(ACC[(b - 1) & 1], CS, B1, T, H)
                if pend is not None:
                    g = g[:30] + hflag(b - 2, pend) + g[30:]
                st, pend = hpub(b - 1)
                fill += g + st
            if b == 3:
                pl = mk('v_and_b32 v%d, 15, v0\nv_min_u32 v%d, 13, v%d\nv_lshlrev_b32 v%d, 2, v%d' % (vPA, vPA, vPA, vPA, vPA))
                pl += mk('s_lshl_b32 s%d, s%d, 2\ns_add_u32 s%d, s%d, s%d\ns_lshl_b32 s%d, s%d, 7\ns_add_u32 s%d, s%d, %d'
                         % (sT4, sEb, sT4, sT4, sW, sT4, sT4, sT4, sT4, LO + FH))
                pl += self.poll_issue(sT4)
                fill = fill[:110] + pl + fill[110:]
            P.add(spread(slots, fill, start=1 if b else 8))
        P('s_barrier')
        P.add(self.stamp('s3_end'))
        P.add(self.poll_check(sT4))
        sHE, sHL = sT0, sT1
        P('s_mul_i32 s%d, s%d, 114688\ns_lshl_b32 s%d, s%d, 11\ns_add_u32 s%d, s%d, s%d' % (sHE, sEb, sT2, sW, sHE, sHE, sT2))
        P('s_mul_i32 s%d, s%d, 114688\ns_add_u32 s%d, s%d, s%d' % (sHL, sLb, sHL, sHL, sT2))

        def hload(i):
            blk, kap = divmod(i, 28)
            g = []
            if kap % 2 == 0:
                g += mk('s_add_u32 s%d, s%d, %d' % (sHs, (sHE, sHL)[blk], LO + H_OFF + 8192 * (kap // 2)))
            g += mk('buffer_load_dwordx4 %s, v%d, %s, s%d offen offset:%d' % (v(hreg[i], 4), vL16, self.srd(SRD_CL), sHs, 1024 * (kap % 2)))
            return g
        for i in range(16):
            P.add(hload(i))
        P.add(statrd(3))
        g = self.gelu(ACC[1], CS, B1, T, H)
        P.add(g[:30] + hflag(2, pend) + g[30:])
        st, pend = hpub(3)
        P.add(st)
        if l == 0:
            vq = 100
            P.add(self.wq_addr(vq))
            wqg = self.wq_dma(range(7), vq)
        P.add(self.stamp('g3_done'))
        AE, AL, RX, RS = 16, 48, 80, 104
        sFe = sT5
        own = mk('s_lshr_b32 s%d, s%d, 1\ns_lshl_b32 s%d, s%d, 2\ns_and_b32 s%d, s%d, 1\ns_lshl_b32 s%d, s%d, 1\ns_add_u32 s%d, s%d, s%d\ns_lshr_b32 s%d, s%d, 1\ns_add_u32 s%d, s%d, s%d'
                 % (sFe, sM, sFe, sFe, sT3, sW, sT3, sT3, sFe, sFe, sT3, sT3, sW, sFe, sFe, sT3))
        vEW, vER = vTr, vT + 3

        def exch_write(A):
            L = []
            for x, r in ((2, A + 8), (1, A + 16), (3, A + 24)):
                L += mk('s_xor_b32 s%d, s%d, %d\ns_mul_i32 s%d, s%d, 6144\ns_add_u32 s%d, s%d, %d\nv_add_u32 v%d, s%d, v%d'
                        % (sT3, sW, x, sT3, sT3, sT3, sT3, L_EX + 2048 * (x - 1), vEW, sT3, vL16))
                L += mk('ds_write_b128 v%d, %s\nds_write_b128 v%d, %s offset:1024' % (vEW, v(r, 4), vEW, v(r + 4, 4)))
            return L

        def exch_read():
            L = mk('s_mul_i32 s%d, s%d, 6144\ns_add_u32 s%d, s%d, %d\nv_add_u32 v%d, s%d, v%d' % (sT3, sW, sT3, sT3, L_EX, vER, sT3, vL16))
            for q in range(6):
                L += mk('ds_read_b128 %s, v%d offset:%d' % (v(RX + 4 * q, 4), vER, 1024 * q))
            return L

        def resid_load(sB):
            L = mk('s_lshl_b32 s%d, s%d, 15\ns_lshl_b32 s%d, s%d, 10\ns_add_u32 s%d, s%d, s%d\ns_add_u32 s%d, s%d, %d'
                   % (sT3, sB, sT4, sFe, sT3, sT3, sT4, sT3, sT3, LO + X1_OFF))
            L += mk('buffer_load_dwordx4 %s, v%d, %s, s%d offen' % (v(RS, 4), vL16, self.srd(SRD_CL), sT3))
            L += mk('v_lshrrev_b32 v%d, 5, v0\nv_lshlrev_b32 v%d, 3, v%d\ns_lshl_b32 s%d, s%d, 5' % (vT, vT, vT, sT3, sFe))
            L += mk('buffer_load_dwordx2 %s, v%d, %s, s%d offen\nbuffer_load_dwordx2 %s, v%d, %s, s%d offen offset:16'
                    % (v(RS + 4, 2), vT, self.srd(SRD_B2), sT3, v(RS + 6, 2), vT, self.srd(SRD_B2), sT3))
            return L

        def resid_add(A):
            L = []
            for src in (RS, RS + 4):
                for i in range(4):
                    L += mk('v_lshlrev_b32 v%d, 16, v%d\nv_and_b32 v%d, 0xffff0000, v%d\nv_add_f32 v%d, v%d, v%d\nv_add_f32 v%d, v%d, v%d'
                            % (vT, src + i, vT + 1, src + i, A + 2 * i, A + 2 * i, vT, A + 2 * i + 1, A + 2 * i + 1, vT + 1))
            return L

        def finish(A, sB):
            L = []
            for i in range(8):
                L += mk('v_add_f32 v%d, v%d, v%d' % (RX + i, RX + i, RX + 8 + i))
            for i in range(8):
                L += mk('v_add_f32 v%d, v%d, v%d' % (A + i, A + i, RX + 16 + i))
            for i in range(8):
                L += mk('v_add_f32 v%d, v%d, v%d' % (A + i, A + i, RX + i))
            L += self.pack(A, A, 4)
            if l == 0:
                L += mk('s_mul_i32 s%d, s%d, %d\ns_lshl_b32 s%d, s%d, 10\ns_add_u32 s%d, s%d, s%d\ns_add_u32 s%d, s%d, %d'
                        % (sT3, sB, X2_BS, sT4, sFe, sT4, sT4, sT3, sT4, sT4, X2_OFF))
                L += self.stores(['buffer_store_dwordx4 %s, v%d, %s, s%d offen' % (v(A, 4), vL16, self.srd(SRD_CL), sT4)])
                L += self.row_stats(A, 4, vT, vT + 2)
                L += mk('s_lshl_b32 s%d, s%d, 8\ns_add_u32 s%d, s%d, s%d\ns_add_u32 s%d, s%d, %d' % (sT4, sFe, sT4, sT4, sT3, sT4, sT4, X2_OFF + 28672))
                st = self.stores(['buffer_store_dword v%d, v%d, %s, s%d offen' % (vT, vL4, self.srd(SRD_CL), sT4)])
                tk = tok(st[-1])
                L += st
                fl = mk('s_lshl_b32 s%d, s%d, 5\ns_add_u32 s%d, s%d, s%d\ns_lshl_b32 s%d, s%d, 2\ns_add_u32 s%d, s%d, %d'
                        % (sT4, sB, sT4, sT4, sFe, sT4, sT4, sT4, sT4, FX2)) + self.flag([tk], sT4)
                return L, fl
            L += mk('v_permlane32_swap_b32 v%d, v%d\nv_permlane32_swap_b32 v%d, v%d' % (A, A + 2, A + 1, A + 3))
            L += mk('v_and_b32 v%d, 31, v0\nv_mul_u32_u24 v%d, 896, v%d\nv_lshrrev_b32 v%d, 5, v0\nv_lshl_add_u32 v%d, v%d, 4, v%d'
                    % (vT, vT, vT, vT + 1, vT, vT + 1, vT))
            L += mk('s_lshl_b32 s%d, s%d, 2\ns_add_u32 s%d, s%d, s%d\ns_mul_i32 s%d, s%d, %d\ns_lshl_b32 s%d, s%d, 5\ns_add_u32 s%d, s%d, s%d'
                    % (sT3, sC, sT3, sT3, sB, sT3, sT3, 32 * 896, sT4, sFe, sT3, sT3, sT4))
            L += mk('buffer_store_dwordx4 %s, v%d, %s, s%d offen' % (v(A, 4), vT, self.srd(SRD_OUT), sT3))
            return L, []

        slots = []
        for i in range(56):
            blk, kap = divmod(i, 28)
            A = (AE, AL)[blk]
            for js in range(2):
                sl = mk('v_mfma_f32_32x32x16_bf16 %s, %s, %s, %s' % (v(A + 16 * js, 16), a(W2A + 8 * kap + 4 * js, 4), v(hreg[i], 4), v(A + 16 * js, 16) if kap else '0'))
                slots.append(sl)
        pollL = mk('s_lshl_b32 s%d, s%d, 2\ns_add_u32 s%d, s%d, s%d\ns_lshl_b32 s%d, s%d, 7\ns_add_u32 s%d, s%d, %d'
                   % (sX, sLb, sX, sX, sW, sX, sX, sX, sX, LO + FH)) + self.poll_issue(sX)
        for i in range(16, 56):
            sl = slots[2 * (i - 16) + 1]
            if i == 28:
                sl += self.poll_check(sX)
            sl += hload(i)
        slots[4] += hflag(3, pend)
        slots[14] += pollL
        slots[0] += own
        slots[30] += resid_load(sEb)
        if l == 0:
            for t, g in enumerate(wqg):
                slots[8 + 6 * t] += g
            self.tok_wq = tok(wqg[-1][-1])
        P.add([x for sl in slots[:56] for x in sl])
        P.add(self.stamp('s4_E'))
        late = slots[56:]
        f1 = resid_add(AE) + exch_write(AE) + mk('s_waitcnt lgkmcnt(0)\ns_barrier') + exch_read()
        fin, fl = finish(AE, sEb)
        f2 = fin + resid_load(sLb) + mk('s_barrier') + fl
        P.add(spread(late[:20], f1, start=1))
        P.add(spread(late[20:], f2, start=2, end=30))
        P.add(self.stamp('s4_L'))
        P.add(exch_write(AL) + resid_add(AL) + mk('s_waitcnt lgkmcnt(0)\ns_barrier') + exch_read())
        fin, fl = finish(AL, sLb)
        P.add(fin + fl)
        P.add(self.stamp('x2_pub'))

    def build(self):
        P = self.P
        self.prologue()
        stages = []
        for l in range(2):
            self.s1(l)
            if l == 0:
                self.staging()
            if self.stop == 's1_%d' % l:
                break
            self.kvx(l)
            if self.stop == 'o_%d' % l:
                break
            lnext = 'L_layer%d' % (l + 1)
            if l == 0:
                lsk = P.newlabel('Lskipmlp')
                P.add([I('s_cmp_ge_u32 s%d, 14\ns_cbranch_scc1 %s' % (sM, lsk), kind='block')])
                self.ool.append('%s:\ns_waitcnt vmcnt(0) lgkmcnt(0)\ns_sleep 127\ns_sleep 60\ns_branch %s' % (lsk, lnext))
            else:
                P.add([I('s_cmp_ge_u32 s%d, 14\ns_cbranch_scc1 L_fin' % sM, kind='block')])
            self.s2(l)
            if self.stop == 'x1_%d' % l:
                P.label(lnext)
                break
            self.mlp(l)
            P.label(lnext)
            if self.stop == 'x2_%d' % l:
                break
        P.add([I('s_cmp_lg_u32 s2, 0\ns_cbranch_scc1 L_fin\ns_cmp_lg_u32 s%d, 0\ns_cbranch_scc1 L_fin' % sW, kind='block')])
        P('s_mov_b64 exec, 1\nbuffer_store_dword v%d, off, %s, 0 sc1\ns_mov_b64 exec, -1' % (vNonce, self.srd(SRD_WS)))
        P.label('L_fin')
        if self.stamps:
            P('s_lshl_b32 s%d, s2, 2\ns_add_u32 s%d, s%d, s%d\ns_lshl_b32 s%d, s%d, 8\ns_add_u32 s%d, s%d, %d' % (sT0, sT0, sT0, sW, sT0, sT0, sT0, sT0, WS_STAMP))
            P.add(self.stamp('end'))
            P('s_memrealtime s[%d:%d]\ns_waitcnt lgkmcnt(0)\nv_writelane_b32 v%d, s%d, 63' % (sStamp, sStamp + 1, vStamp, sStamp))
            P('buffer_store_dword v%d, v%d, %s, s%d offen' % (vStamp, vL4, self.srd(SRD_WS), sT0))
        P.label('L_end')
        P('s_endpgm')
        body, L = finalize(P.L)
        self.final = L
        ool = '\n'.join('\n'.join(('    ' + t if not t.endswith(':') else t) for t in b.split('\n') if t.strip()) for b in self.ool)
        head = open('cdna_kernels/%s.s.ref' % KNAME[:-7]).read().split('\n')
        hdr = [h for h in head if h.startswith(';') and '@launch' not in h]
        txt = '\n'.join(hdr) + '\n; @launch grid=(256,1,1) block=(256,1,1) lds=%d\n' % LDS_BYTES
        txt += '.amdgcn_target "amdgcn-amd-amdhsa--gfx950"\n.text\n.globl %s\n.p2align 8\n.type %s,@function\n%s:\n' % (KNAME, KNAME, KNAME)
        txt += body + ool + '\n'
        txt += '''.section .rodata,"a"
.p2align 6
.amdhsa_kernel %s
  .amdhsa_next_free_vgpr 512
  .amdhsa_next_free_sgpr 102
  .amdhsa_accum_offset 256
  .amdhsa_group_segment_fixed_size 0
  .amdhsa_kernarg_size 88
  .amdhsa_user_sgpr_count 2
  .amdhsa_user_sgpr_kernarg_segment_ptr 1
  .amdhsa_system_sgpr_workgroup_id_x 1
.end_amdhsa_kernel
''' % KNAME
        return txt


if __name__ == '__main__':
    import argparse
    ap = argparse.ArgumentParser()
    ap.add_argument('-o', default='k.s')
    ap.add_argument('--stop', default=None)
    ap.add_argument('--stamps', action='store_true')
    ap.add_argument('--kvdelay', type=int, default=10)
    A = ap.parse_args()
    g = Gen(stop=A.stop, stamps=A.stamps, kvdelay=A.kvdelay)
    open(A.o, 'w').write(g.build())
    if A.stamps:
        open(A.o + '.stamps', 'w').write('\n'.join(g.stamp_names))
    n = {}
    for x in g.final:
        n[x.kind] = n.get(x.kind, 0) + 1
    nops = sum(x.states for x in g.final if x.op == 's_nop')
    print('instructions', n, 'nop states', nops)
```

```python
import re

TRANS = ('v_exp_f32', 'v_log_f32', 'v_rcp_f32', 'v_rsq_f32', 'v_sqrt_f32', 'v_sin_f32', 'v_cos_f32')
NO_DST_S = ('s_cmp', 's_cbranch', 's_waitcnt', 's_barrier', 's_nop', 's_sleep', 's_branch', 's_endpgm',
            's_setprio', 's_bitcmp')

_reg_re = re.compile(r'^(-|\|)?(abs\()?([vas])(\d+|\[(\d+):(\d+)\])\)?\|?$')


def regs_of(opnd):
    opnd = opnd.strip()
    if opnd in ('vcc', 'vcc_lo', 'vcc_hi'):
        return [('x', 'vcc')]
    if opnd in ('exec', 'exec_lo', 'exec_hi'):
        return [('x', 'exec')]
    if opnd == 'm0':
        return [('x', 'm0')]
    m = _reg_re.match(opnd)
    if not m:
        return []
    k = m.group(3)
    if m.group(5) is not None:
        return [(k, i) for i in range(int(m.group(5)), int(m.group(6)) + 1)]
    return [(k, int(m.group(4)))]


class I:
    __slots__ = ('text', 'op', 'kind', 'dst', 'src', 'ops', 'nvm', 'tok', 'waits', 'cost', 'wide', 'drain_vm',
                 'drain_lgkm', 'states', 'srcC', 'srcAB', 'extra')

    def __init__(self, text, kind=None, dst=None, src=None, nvm=0, waits=(), states=1, cost=None, wide=None,
                 drain_vm=False, drain_lgkm=False):
        self.text = text
        self.waits = list(waits)
        self.tok = None
        self.nvm = nvm
        self.wide = wide or []
        self.drain_vm = drain_vm
        self.drain_lgkm = drain_lgkm
        self.states = states
        self.srcC = []
        self.srcAB = []
        self.extra = []
        if kind is not None:
            self.kind = kind
            self.op = kind
            self.dst = list(dst or [])
            self.src = list(src or [])
            self.ops = []
            self.cost = cost if cost is not None else 4
            return
        t = text.split(';')[0].strip()
        sp = t.split(None, 1)
        op = sp[0]
        self.op = op
        rest = sp[1] if len(sp) > 1 else ''
        rest = re.sub(r'\s+(op_sel|op_sel_hi|neg_lo|neg_hi):\[[^\]]*\]', '', rest)
        parts = [p.strip() for p in rest.split(',')] if rest else []
        mods = ''
        if parts:
            last = parts[-1].split(None, 1)
            parts[-1] = last[0]
            mods = last[1] if len(last) > 1 else ''
        self.ops = parts
        R = [regs_of(p) for p in parts]
        flat = lambda xs: [r for x in xs for r in x]
        dst, src = [], []
        if op.startswith('v_mfma'):
            kind = 'mfma'
            dst = R[0]
            src = flat(R[1:])
            self.srcAB = R[1] + R[2]
            self.srcC = R[3]
        elif op.startswith('v_'):
            kind = 'valu'
            if op.startswith('v_permlane') and 'swap' in op:
                dst = R[0] + R[1]
                src = R[0] + R[1]
            elif op.startswith(('v_add_co', 'v_sub_co', 'v_addc_co', 'v_subb_co')):
                dst = R[0] + R[1]
                src = flat(R[2:])
            else:
                dst = R[0]
                src = flat(R[1:])
                if op.startswith(('v_fmac', 'v_dot2c', 'v_writelane')):
                    src = src + R[0]
                if op.startswith('v_cndmask') and len(parts) == 3:
                    src = src + [('x', 'vcc')]
        elif op.startswith('ds_read') or op.startswith('ds_bpermute') or op.startswith('ds_swizzle'):
            kind = 'dsr'
            dst = R[0]
            src = flat(R[1:])
        elif op.startswith('ds_write') or op.startswith('ds_add'):
            kind = 'dsw'
            src = flat(R)
        elif op.startswith(('buffer_load', 'global_load')):
            islds = ' lds' in (' ' + mods) or '_lds_' in op
            self.nvm = 1
            if islds:
                kind = 'dma'
                src = flat(R) + [('x', 'm0')]
            else:
                kind = 'vload'
                dst = R[0]
                src = flat(R[1:])
        elif op.startswith(('buffer_store', 'global_store')):
            kind = 'vstore'
            self.nvm = 1
            src = flat(R)
            if 'x4' in op or 'x3' in op:
                self.wide = R[0] if op.startswith('buffer') else R[1]
        elif op.startswith(('s_load', 's_memtime', 's_memrealtime')):
            kind = 'smem'
            dst = R[0]
            src = flat(R[1:])
        elif op.startswith('s_'):
            kind = 'salu'
            if op.startswith(NO_DST_S):
                src = flat(R)
                if op in ('s_cbranch_vccz', 's_cbranch_vccnz'):
                    src = [('x', 'vcc')]
            else:
                dst = R[0]
                src = flat(R[1:])
                if op.startswith(('s_addk', 's_mulk')):
                    src = src + R[0]
            if op == 's_nop':
                self.states = int(parts[0], 0) + 1
        else:
            raise ValueError('unknown instruction: ' + text)
        self.kind = kind
        self.dst = dst
        self.src = src
        if cost is None:
            cost = 4
            if op.startswith(TRANS):
                cost = 8
            elif op.startswith('v_dot2'):
                cost = 8
            elif kind == 'mfma':
                cost = 8
            elif kind == 'dsw':
                cost = 16 if 'b128' in op else 8
            elif kind in ('dma',):
                cost = 8
        self.cost = cost


def nodst(insts):
    for x in insts:
        if x.kind == 'vload':
            x.dst = []
            x.kind = 'dma'
    return insts


def also_waits_for(ins, opnd):
    ins.extra = regs_of(opnd)
    return ins


class Tok:
    pass


class Prog:
    def __init__(self):
        self.L = []
        self.nlabel = 0

    def __call__(self, text, **kw):
        out = None
        for line in text.split('\n'):
            line = line.strip()
            if not line:
                continue
            out = I(line, **kw)
            self.L.append(out)
        return out

    def add(self, insts):
        self.L.extend(insts)

    def label(self, name):
        self.L.append(I(name + ':', kind='label', states=0, cost=0))

    def newlabel(self, p='L'):
        self.nlabel += 1
        return '%s_%d' % (p, self.nlabel)

    def comment(self, t):
        self.L.append(I('; ' + t, kind='comment', states=0, cost=0))


def mk(text, **kw):
    return [I(l.strip(), **kw) for l in text.split('\n') if l.strip()]


def tok(inst):
    inst.tok = Tok()
    return inst.tok


def wait_tok(*toks):
    return I('', kind='waittok', waits=toks, states=0, cost=0)


def weave(main, fill, budget=24, start=0, final_flush=True):
    out = []
    fill = list(fill)
    fi = 0
    debt = 0
    for si, slot in enumerate(main):
        out.extend(slot)
        if si < start:
            continue
        avail = budget - sum(x.cost for x in slot if x.kind != 'mfma') + debt
        while fi < len(fill) and avail >= fill[fi].cost:
            avail -= fill[fi].cost
            out.append(fill[fi])
            fi += 1
        debt = min(avail, 4) if avail > 0 else max(avail, -8)
    if final_flush:
        out.extend(fill[fi:])
        return out
    return out, fill[fi:]


def spread(main, fill, start=0, end=None):
    end = len(main) if end is None else end
    total = sum(x.cost for x in fill)
    n = end - start
    out = []
    fi = 0
    acc = 0
    for si, slot in enumerate(main):
        out.extend(slot)
        if start <= si < end:
            target = total * (si - start + 1) / n
            while fi < len(fill) and (acc + fill[fi].cost / 2.0 <= target or si == end - 1):
                acc += fill[fi].cost
                out.append(fill[fi])
                fi += 1
    out.extend(fill[fi:])
    return out


def insert_waits(L):
    out = []
    vm = []
    lg = []
    sm = []

    def emit_wait(nv, nl):
        parts = []
        if nv is not None:
            parts.append('vmcnt(%d)' % nv)
        if nl is not None:
            parts.append('lgkmcnt(%d)' % nl)
        out.append(I('s_waitcnt ' + ' '.join(parts)))

    for ins in L:
        k = ins.kind
        if k in ('label', 'comment'):
            out.append(ins)
            continue
        touched = set(ins.src) | set(ins.dst) | set(ins.extra)
        need_v = None
        need_l = None
        for idx, (d, t) in enumerate(vm):
            if (d & touched) or (t is not None and t in ins.waits):
                need_v = len(vm) - 1 - idx
        for idx, d in enumerate(lg):
            if d & touched:
                need_l = len(lg) - 1 - idx
        if any(d & touched for d in sm):
            need_l = 0
        if need_v is not None or need_l is not None:
            if need_v is not None:
                need_v = min(need_v, 63)
                del vm[:len(vm) - need_v]
            if need_l is not None:
                need_l = min(need_l, 15)
                del lg[:len(lg) - need_l]
                if need_l == 0:
                    sm = []
            emit_wait(need_v, need_l)
        if k == 'waittok':
            continue
        if ins.op == 's_waitcnt':
            m = re.search(r'vmcnt\((\d+)\)', ins.text)
            if m:
                n = int(m.group(1))
                del vm[:max(0, len(vm) - n)]
            m = re.search(r'lgkmcnt\((\d+)\)', ins.text)
            if m:
                n = int(m.group(1))
                del lg[:max(0, len(lg) - n)]
                if n == 0:
                    sm = []
        if ins.drain_vm:
            vm = []
        if ins.drain_lgkm:
            lg = []
            sm = []
        if k == 'vload':
            vm.append((set(ins.dst), ins.tok))
        elif ins.nvm:
            for j in range(ins.nvm):
                vm.append((set(), ins.tok if j == ins.nvm - 1 else None))
        if k == 'dsr':
            lg.append(set(ins.dst))
        elif k == 'dsw':
            lg.append(set())
        elif k == 'smem':
            sm.append(set(ins.dst))
        assert len(vm) <= 63 + 0 or True
        out.append(ins)
    return out


def insert_nops(L):
    out = []
    rec = []

    def need(ins):
        n = 0
        src = set(ins.src)
        dst = set(ins.dst)
        k = ins.kind
        isvalu = k == 'valu'
        vmem = k in ('vload', 'vstore', 'dma', 'block')
        for kind, regs, age, extra in rec:
            w = 0
            if kind == 'valu_w':
                if k == 'mfma' and regs & src:
                    w = 2
                elif isvalu and regs & src:
                    if ins.op.startswith('v_permlane') or '_dpp' in ins.op:
                        w = 2
                    elif ins.op.startswith(('v_readlane', 'v_readfirstlane')):
                        w = 1
            elif kind == 'trans_w':
                if (isvalu or k == 'mfma' or vmem or k in ('dsw', 'dsr')) and regs & src:
                    w = 1
            elif kind == 'dot_w':
                if regs & (src | dst):
                    if ins.op == extra and not (regs & set(r for p in ins.ops[1:3] for r in regs_of(p))):
                        w = 0
                    else:
                        w = 3
            elif kind == 'sgpr_w':
                if isvalu and regs & src:
                    w = 4 if ins.op.startswith(('v_readlane', 'v_writelane')) else 2
                elif vmem and regs & src:
                    w = 5
            elif kind == 'mfma_d':
                if k == 'mfma':
                    if regs & set(ins.srcAB):
                        w = 12
                    elif regs & set(ins.srcC):
                        w = 0 if set(ins.srcC) == regs else 10
                    elif regs & dst:
                        w = 10
                elif (isvalu or vmem or k in ('dsr', 'dsw')) and regs & (src | dst):
                    w = 12
            elif kind == 'mfma_c':
                if isvalu and regs & dst:
                    w = 7
            elif kind == 'wide':
                if regs & dst:
                    w = 2
            elif kind == 'm0':
                if ('x', 'm0') in src and k != 'salu':
                    w = 1
            n = max(n, w - age)
        return n

    for ins in L:
        if ins.kind in ('label', 'comment'):
            out.append(ins)
            continue
        n = need(ins)
        while n > 0:
            c = min(n, 16)
            out.append(I('s_nop %d' % (c - 1)))
            for r in rec:
                r[2] += c
            n -= c
        out.append(ins)
        for r in rec:
            r[2] += ins.states
        rec = [r for r in rec if r[2] < 20]
        k = ins.kind
        if k == 'valu' or (k == 'block' and ins.dst):
            vd = set(r for r in ins.dst if r[0] in 'va')
            sd = set(r for r in ins.dst if r[0] in 'sx')
            if vd:
                rec.append(['valu_w', vd, 0, None])
                if ins.op.startswith(TRANS):
                    rec.append(['trans_w', vd, 0, None])
                if ins.op.startswith('v_dot2'):
                    rec.append(['dot_w', vd, 0, ins.op])
            if sd:
                rec.append(['sgpr_w', sd, 0, None])
        elif k == 'mfma':
            rec.append(['mfma_d', set(ins.dst), 0, None])
            c = set(ins.srcC)
            if c:
                rec.append(['mfma_c', c, 0, None])
        if ins.wide:
            rec.append(['wide', set(ins.wide), 0, None])
        if k == 'salu' and ('x', 'm0') in ins.dst:
            rec.append(['m0', {('x', 'm0')}, 0, None])
    return out


def finalize(L):
    L = insert_waits(L)
    L = insert_nops(L)
    lines = []
    for ins in L:
        if ins.kind == 'label':
            lines.append(ins.text)
        else:
            for t in ins.text.split('\n'):
                t = t.strip()
                if t:
                    lines.append(t if t.endswith(':') else '    ' + t)
    return '\n'.join(lines) + '\n', L


def v(a, n=1):
    return 'v%d' % a if n == 1 else 'v[%d:%d]' % (a, a + n - 1)


def a(x, n=1):
    return 'a%d' % x if n == 1 else 'a[%d:%d]' % (x, x + n - 1)


def s(x, n=1):
    return 's%d' % x if n == 1 else 's[%d:%d]' % (x, x + n - 1)
```

```python
import sys, struct
from asmgen import *

KNAME = 'interleave_layers__linear_attn_block__mixer_channel_mlp__prompt_kernel'


def f32(x):
    return '0x%08x' % struct.unpack('<I', struct.pack('<f', x))[0]


LOG2E = 1.4426950408889634
LN2 = 0.6931471805599453
MF = 'v_mfma_f32_32x32x16_bf16'

WS_XCC = 0x8000
WS_STAMP = 0x10000
WS_KVP = 0x200000
WS_CL = 0x400000
LOFF = 0xD5000
O_OFF, X1_OFF, H_OFF, XIN_OFF, FL_OFF = 0, 0x20000, 0x40000, 0xB0000, 0xD4000
XIN_BS = 36864
FO, FX1, FXIN, FH = FL_OFF, FL_OFF + 512, FL_OFF + 1024, FL_OFF + 1536

L_WQ = 0
L_XB = 28672
L_EX = 86016
L_XS = 86016
L_WO = 114688
L_KVS = 143616
L_KVB = L_KVS + 16384
L_CS = L_KVB + 2048
LDS_BYTES = 163840
assert L_CS + 768 <= LDS_BYTES

SRD_WQ, SRD_WO, SRD_W1, SRD_W2, SRD_X, SRD_OUT, SRD_B1, SRD_B2, SRD_CL, SRD_WS = range(4, 44, 4)
sC, sM, sW, sNonce, sSlow, sX, sSpin = 44, 45, 46, 47, 48, 49, 50
sT0, sT1, sT2, sT3, sT4, sT5 = 51, 52, 53, 54, 55, 56
sLn2, sXcc, sWi = 57, 58, 59
sN28, sHalf = 60, 62
sN0 = 64
sKA = 68
sEb, sLb, sC0, sC1, sHs, sFe = 68, 69, 70, 71, 72, 73
sBlk, sOst, sFo, sFoMy, sKv, sKvMy, sHE, sHL, sPE, sPL = 74, 75, 76, 77, 78, 79, 80, 81, 82, 83
sHst = 84
sRot = 85
sQ0, sQ1 = 86, 87
sStamp = 90
sPC = 92

vLane, vL16, vDummy, vTr, vNonce, vMean, vRl, vW1X, _w1x1, vPoll, vPA = range(0, 11)
vT = 11
vStamp = 15
W2A = 0
W1A = 224
W1V = 176


def w1reg(k):
    return a(W1A + 4 * k, 4) if k < 8 else v(W1V + 4 * (k - 8), 4)


def w1half(k, hh):
    return a(W1A + 4 * k + 2 * hh, 2) if k < 8 else v(W1V + 4 * (k - 8) + 2 * hh, 2)


def flat(LL):
    return [x for L in LL for x in L]


def mfma(D, A, B, first=False):
    return mk('%s %s, %s, %s, %s' % (MF, v(D, 16), A, B, '0' if first else v(D, 16)))


class Gen:
    def __init__(self, stop=None, stamps=False, **opt):
        self.P = Prog()
        self.ool = []
        self.stop = stop
        self.stamps = stamps
        self.nstamp = 0
        self.stamp_names = []
        self.o = dict(kvdelay=10, pollE=75, flagpos=25, g3end=30, pollL=40, lateL=46, lead=12, look=6, pref=0, touch=1, codepf=1, rot=1, stnt=0, idlewq=1, reuse=1, npre=4, wqlate=84, pf0=1, w1e=14, wqrot=1)
        self.o.update(opt)

    def srd(self, r):
        return s(r, 4)

    def stamp(self, name):
        if not self.stamps:
            return []
        i = self.nstamp
        self.nstamp += 1
        self.stamp_names.append(name)
        t = 's_memtime s[%d:%d]\ns_waitcnt lgkmcnt(0)\nv_writelane_b32 v%d, s%d, %d' % (sStamp, sStamp + 1, vStamp, sStamp, i)
        return [I(t, kind='block', dst=[], src=[], drain_lgkm=True, states=3)]

    def stores(self, lines):
        insts = mk('\n'.join(lines))
        src = [r for x in insts for r in x.src]
        wide = [r for x in insts for r in x.wide]
        ls, lb = self.P.newlabel('Lslow'), self.P.newlabel('Lback')
        txt = 's_cmp_lg_u32 s%d, 0\ns_cbranch_scc1 %s\n%s\n%s:' % (sSlow, ls, '\n'.join(lines), lb)
        self.ool.append('%s:\n%s\ns_branch %s' % (ls, '\n'.join(l + ' sc1' for l in lines), lb))
        return [I(txt, kind='block', src=src, nvm=len(lines), wide=wide, states=1, cost=8 + 4 * len(lines))]

    def flag(self, toks, soff, off=0):
        st = self.stores(['buffer_store_dword v%d, off, %s, s%d offset:%d' % (vNonce, self.srd(SRD_CL), soff, off)])[0]
        st.text = 's_mov_b64 exec, 1\n' + st.text + '\ns_mov_b64 exec, -1'
        st.cost += 8
        return [wait_tok(*toks), st]

    def poll_issue(self, soff):
        return mk('buffer_load_dword v%d, v%d, %s, s%d offen sc1' % (vPoll, vPA, self.srd(SRD_CL), soff))

    def poll_check(self, soff, sleep=0):
        ls, lb = self.P.newlabel('Lspin'), self.P.newlabel('Lgot')
        self.ool.append('\n'.join([
            '%s:' % ls,
            ('s_sleep %d' % sleep) if sleep else '',
            'buffer_load_dword v%d, v%d, %s, s%d offen sc1' % (vPoll, vPA, self.srd(SRD_CL), soff),
            's_add_u32 s%d, s%d, 1' % (sSpin, sSpin),
            's_cmp_gt_u32 s%d, 0x40000' % sSpin,
            's_cbranch_scc1 L_end',
            's_waitcnt vmcnt(0)',
            'v_cmp_ne_u32 vcc, s%d, v%d' % (sNonce, vPoll),
            's_cbranch_vccnz %s' % ls,
            's_branch %s' % lb]))
        c = mk('v_cmp_ne_u32 vcc, s%d, v%d' % (sNonce, vPoll))[0]
        return [I(c.text + '\ns_cbranch_vccnz %s\n%s:' % (ls, lb), kind='block', src=c.src, dst=c.dst, states=2, cost=8)]

    def pa(self, n, blocks=False):
        L = 'v_and_b32 v%d, %d, v0\n' % (vPA, 15 if n <= 16 else 31)
        if n not in (16, 32):
            L += 'v_min_u32 v%d, %d, v%d\n' % (vPA, n - 1, vPA)
        L += 'v_lshlrev_b32 v%d, 2, v%d\n' % (vPA, vPA)
        if blocks:
            L += 'v_lshrrev_b32 v%d, 4, v0\nv_lshl_add_u32 v%d, v%d, 7, v%d' % (vT + 3, vPA, vT + 3, vPA)
        return mk(L)

    def trbase(self, dst, RS, kh, add=0, xor16=None):
        t = vT
        L = ['v_lshrrev_b32 v%d, 5, v%d' % (dst, vLane),
             'v_mul_u32_u24 v%d, %d, v%d' % (dst, kh, dst),
             'v_bfe_u32 v%d, v%d, 2, 2' % (t, vLane),
             'v_add_u32 v%d, v%d, v%d' % (dst, dst, t),
             'v_mul_u32_u24 v%d, %d, v%d' % (dst, RS, dst),
             'v_bfe_u32 v%d, v%d, 4, 1' % (t, vLane)]
        if xor16 is not None:
            L.append('v_xor_b32 v%d, s%d, v%d' % (t, xor16, t))
        L += ['v_lshl_add_u32 v%d, v%d, 5, v%d' % (dst, t, dst),
              'v_and_b32 v%d, 3, v%d' % (t, vLane),
              'v_lshl_add_u32 v%d, v%d, 3, v%d' % (dst, t, dst)]
        if add:
            L.append('v_add_u32 v%d, %d, v%d' % (dst, add, dst))
        return mk('\n'.join(L))

    def frag_loads(self, dsts, srd, sbase, const0, stride=1024, flags='', st=sT0):
        out = []
        cur = None
        for i, d in enumerate(dsts):
            off = const0 + i * stride
            grp = []
            if cur is None or not (0 <= off - cur <= 4095):
                cur = off
                grp += mk('s_add_u32 s%d, s%d, %d' % (st, sbase, off))
            grp += mk('buffer_load_dwordx4 %s, v%d, %s, s%d offen offset:%d %s' % (d, vL16, self.srd(srd), st, off - cur, flags))
            out.append(grp)
        return out

    def stats_finish(self, acc, double_ln):
        t1, t2 = vT + 1, vT + 2
        L = ['v_mov_b32 v%d, v%d' % (t1, acc),
             'v_mov_b32 v%d, v%d' % (vMean, acc),
             'v_permlane32_swap_b32 v%d, v%d' % (vMean, t1),
             'v_mul_f32 v%d, %s, v%d' % (vMean, f32(1.0 / 448), vMean),
             'v_mul_f32 v%d, %s, v%d' % (t1, f32(1.0 / 448), t1),
             'v_fma_f32 v%d, -v%d, v%d, v%d' % (t1, vMean, vMean, t1),
             'v_max_f32 v%d, 0, v%d' % (t1, t1),
             'v_add_f32 v%d, %s, v%d' % (t2, f32(1e-5), t1),
             'v_rsq_f32 v%d, v%d' % (vRl, t2)]
        if double_ln:
            L += ['v_mul_f32 v%d, v%d, v%d' % (t2, vRl, vRl),
                  'v_fmaak_f32 v%d, v%d, v%d, %s' % (t1, t1, t2, f32(1e-5)),
                  'v_rsq_f32 v%d, v%d' % (t1, t1),
                  'v_mul_f32 v%d, v%d, v%d' % (vRl, vRl, t1)]
        else:
            L += ['v_mul_f32 v%d, %s, v%d' % (vRl, f32(LOG2E), vRl)]
        return mk('\n'.join(L))

    def split_act(self, d0, val, t):
        return mk('\n'.join([
            'v_cvt_pk_bf16_f32 v%d, v%d, v%d' % (d0 + 1, val, val),
            'v_and_b32 v%d, 0xffff0000, v%d' % (t, d0 + 1),
            'v_sub_f32 v%d, v%d, v%d' % (t, val, t),
            'v_cvt_pk_bf16_f32 v%d, v%d, v%d' % (d0, val, t),
            'v_and_b32 v%d, 0xffff, v%d' % (d0 + 1, d0 + 1),
            'v_cndmask_b32 v%d, v%d, 0, s[%d:%d]' % (d0 + 1, d0 + 1, sHalf, sHalf + 1)]))

    def split_w(self, d0, val, t):
        return mk('\n'.join([
            'v_cvt_pk_bf16_f32 v%d, v%d, v%d' % (d0, val, val),
            'v_and_b32 v%d, 0xffff0000, v%d' % (t, d0),
            'v_sub_f32 v%d, v%d, v%d' % (t, val, t),
            'v_cvt_pk_bf16_f32 v%d, v%d, 0' % (d0 + 1, t)]))

    def phi4(self, regs, R, T):
        L = []
        for i, r in enumerate(regs):
            L.append('v_mul_f32 v%d, v%d, v%d' % (r, r, R[i]))
        for i, r in enumerate(regs):
            L.append('v_exp_f32 v%d, v%d clamp' % (T + i, r))
            L.append('v_max_f32 v%d, 0, v%d' % (r, r))
        for i, r in enumerate(regs):
            L.append('v_fma_f32 v%d, v%d, s%d, v%d' % (r, r, sLn2, T + i))
        for i, r in enumerate(regs):
            L.append('v_add_f32 v%d, %s, v%d' % (r, f32(1e-6), r))
        return mk('\n'.join(L))

    def pack(self, dst, src, n):
        return mk('\n'.join('v_cvt_pk_bf16_f32 v%d, v%d, v%d' % (dst + i, src + 2 * i, src + 2 * i + 1) for i in range(n)))

    def unpack(self, dst, src, n):
        L = []
        for i in reversed(range(n)):
            L.append('v_and_b32 v%d, 0xffff0000, v%d' % (dst + 2 * i + 1, src + i))
            L.append('v_lshlrev_b32 v%d, 16, v%d' % (dst + 2 * i, src + i))
        return mk('\n'.join(L))

    def dots(self, regs, acc, ones, first):
        L = []
        for i, r in enumerate(regs):
            z = first and i == 0
            L.append('v_dot2_f32_bf16 v%d, v%d, v%d, %s' % (acc, r, ones, '0' if z else 'v%d' % acc))
            L.append('v_dot2_f32_bf16 v%d, v%d, v%d, %s' % (acc + 1, r, r, '0' if z else 'v%d' % (acc + 1)))
        return mk('\n'.join(L))

    def dots_end(self, acc):
        return mk('v_permlane32_swap_b32 v%d, v%d\nv_add_f32 v%d, v%d, v%d' % (acc, acc + 1, acc, acc, acc + 1))

    def row_stats(self, src, n, acc, ones):
        return mk('v_mov_b32 v%d, 0x3f803f80' % ones) + self.dots(range(src, src + n), acc, ones, True) + self.dots_end(acc)

    def wq_dma(self, groups, vq, rot=False):
        out = []
        for t in groups:
            for p in range(3):
                g = []
                if p == 0:
                    if rot:
                        g += mk('s_add_u32 s%d, s%d, %d\ns_cmp_ge_u32 s%d, 7\ns_cselect_b32 s%d, 7, 0\ns_sub_u32 s%d, s%d, s%d\ns_lshl_b32 s%d, s%d, 2\ns_add_u32 s%d, s%d, s%d'
                                % (sQ1, sRot, t, sQ1, sQ0, sQ1, sQ1, sQ0, sQ1, sQ1, sQ1, sQ1, sW))
                    else:
                        g += mk('s_add_u32 s%d, s%d, %d' % (sQ1, sW, 4 * t))
                    g += mk('s_mul_i32 s%d, s%d, %d\ns_mul_i32 s%d, s%d, 3072' % (sQ0, sQ1, 16 * 2688, sQ1, sQ1))
                g += mk('s_add_u32 m0, s%d, %d' % (sQ1, L_WQ + 1024 * p))
                g += mk('buffer_load_dwordx4 v%d, %s, s%d offen lds' % (vq[p] if isinstance(vq, tuple) else vq + p, self.srd(SRD_WQ), sQ0))
                out.append(g)
        return out

    def wq_addr(self, vq):
        L = ['s_mul_i32 s%d, s%d, 56' % (sT2, sM)]
        t, u = vT, vT + 1
        for p in range(3):
            d = vq + p
            L += ['v_add_u32 v%d, %d, v%d' % (t, 64 * p, vLane),
                  'v_mul_u32_u24 v%d, 0x1556, v%d' % (d, t),
                  'v_lshrrev_b32 v%d, 16, v%d' % (d, d),
                  'v_mul_u32_u24 v%d, 12, v%d' % (u, d),
                  'v_sub_u32 v%d, v%d, v%d' % (t, t, u),
                  'v_mul_u32_u24 v%d, 2688, v%d' % (d, d),
                  'v_lshrrev_b32 v%d, 2, v%d' % (u, t),
                  'v_mul_u32_u24 v%d, 896, v%d' % (u, u),
                  'v_add3_u32 v%d, v%d, v%d, s%d' % (d, d, u, sT2),
                  'v_and_b32 v%d, 3, v%d' % (t, t),
                  'v_lshl_add_u32 v%d, v%d, 4, v%d' % (d, t, d)]
        return mk('\n'.join(L))

    def touch(self, items, va):
        if not self.o['touch']:
            return []
        txt = ['v_lshlrev_b32 v%d, 7, v0' % va]
        cur = None
        n = 0
        for nl, srd, sg, c in items:
            if nl != cur:
                txt.append('s_mov_b64 exec, 0x%x' % ((1 << nl) - 1))
                cur = nl
            txt.append('s_add_u32 s%d, s%d, %d' % (sT2, sg, c) if sg is not None else 's_mov_b32 s%d, %d' % (sT2, c))
            txt.append('buffer_load_dword v%d, v%d, %s, s%d offen sc1' % (vDummy, va, self.srd(srd), sT2))
            n += 1
        txt.append('s_mov_b64 exec, -1')
        return [I('\n'.join(txt), kind='block', nvm=n, dst=[('v', va)], src=[('v', 0)], states=1, cost=12 * n)]

    def touch_attn(self, lo, va):
        pre = mk('s_lshr_b32 s%d, s%d, 2\ns_lshl_b32 s%d, s%d, 10\ns_add_u32 s%d, s%d, s%d' % (sT1, sM, sT1, sT1, sT1, sT1, sBlk))
        return pre + self.touch([(16, SRD_CL, sOst, lo), (16, SRD_CL, sOst, lo + X1_OFF), (8, SRD_CL, sT1, lo + X1_OFF + 28672),
                                 (28, SRD_CL, None, lo + FL_OFF)], va)

    def prefetch(self, va):
        nl = self.o['pref']
        if not nl:
            return []
        txt = 'v_lshlrev_b32 v%d, 7, v0\ns_mul_i32 s%d, s%d, %d\n' % (va, sT2, sWi, nl * 128)
        txt += 's_mov_b32 exec_lo, 0x%x\ns_mov_b32 exec_hi, 0x%x\n' % (((1 << nl) - 1) & 0xffffffff, ((1 << nl) - 1) >> 32)
        txt += 'buffer_load_dword v%d, v%d, %s, s%d offen\ns_mov_b64 exec, -1' % (vDummy, va, self.srd(SRD_W1), sT2)
        return [I(txt, kind='block', nvm=1, src=[('v', 0)], dst=[('v', va)])]

    def idle_work(self):
        va = vT
        l = self.P.newlabel('Lnowarm')
        T = ['s_cmp_lg_u32 s%d, 0' % sSlow, 's_cbranch_scc1 %s' % l,
             'v_lshlrev_b32 v%d, 7, v0' % va,
             's_and_b32 s%d, s%d, 1' % (sT0, sM), 's_lshl_b32 s%d, s%d, 2' % (sT0, sT0), 's_add_u32 s%d, s%d, s%d' % (sT0, sT0, sW)]
        ld = lambda srd, fl: 'buffer_load_dword v%d, v%d, %s, s%d offen %s' % (vDummy, va, self.srd(srd), sT2, fl)
        for i in range(7):
            T += ['s_lshl_b32 s%d, s%d, 13' % (sT2, sT0), 's_add_u32 s%d, s%d, %d' % (sT2, sT2, H_OFF + i * 65536), ld(SRD_CL, 'sc1')]
        if self.o['idlewq']:
            T += ['s_lshr_b32 s%d, s%d, 3' % (sT1, sC), 's_lshl_b32 s%d, s%d, 3' % (sT1, sT1), 's_add_u32 s%d, s%d, s%d' % (sT1, sT1, sT0)]
            for i in range(10):
                T += ['s_lshl_b32 s%d, s%d, 13' % (sT2, sT1), 's_add_u32 s%d, s%d, %d' % (sT2, sT2, i * 131072), ld(SRD_WQ, '')]
        for i in range(3):
            T += ['s_lshl_b32 s%d, s%d, 13' % (sT2, sT0), 's_add_u32 s%d, s%d, %d' % (sT2, sT2, XIN_OFF + i * 65536)]
            if i == 2:
                T += ['s_min_u32 s%d, s%d, %d' % (sT2, sT2, FL_OFF - 8192)]
            T += [ld(SRD_CL, 'sc1')]
        T += ['v_lshrrev_b32 v%d, 3, v0' % (va + 1), 'v_lshlrev_b32 v%d, 14, v%d' % (va + 1, va + 1), 'v_and_b32 v%d, 7, v0' % va,
              'v_lshl_add_u32 v%d, v%d, 7, v%d' % (va, va, va + 1),
              's_lshl_b32 s%d, s%d, 17' % (sT2, sT0), 's_lshl_b32 s%d, s%d, 10' % (sT1, sC), 's_add_u32 s%d, s%d, s%d' % (sT2, sT2, sT1),
              's_add_u32 s%d, s%d, %d' % (sT2, sT2, WS_KVP + 0x100000), ld(SRD_WS, 'sc1'), l + ':']
        return '\n'.join(T)

    def prologue(self):
        P = self.P
        o = self.o
        P('s_cmp_ge_u32 s2, 256\ns_cbranch_scc1 L_end')
        P('s_load_dwordx16 s[%d:%d], s[0:1], 0' % (sKA, sKA + 15))
        P('s_load_dwordx4 s[%d:%d], s[0:1], 64' % (sKA + 16, sKA + 19))
        P('s_load_dwordx2 s[%d:%d], s[0:1], 80' % (sKA + 20, sKA + 21))
        P('v_lshrrev_b32 v%d, 6, v0\nv_and_b32 v0, 63, v0\nv_readfirstlane_b32 s%d, v%d' % (vT, sW, vT))
        P('s_lshr_b32 s%d, s2, 3\ns_lshl_b32 s%d, s%d, 2\ns_add_u32 s%d, s%d, s%d' % (sM, sWi, sM, sWi, sWi, sW))
        if o['codepf']:
            P.add([I('s_getpc_b64 s[%d:%d]\nL_pc:' % (sPC, sPC + 1), kind='block', dst=[], states=1)])
            P('s_lshl_b32 s%d, s%d, 9\nv_lshlrev_b32 v%d, 7, v0\nv_add_u32 v%d, s%d, v%d' % (sT0, sWi, vT, vT, sT0, vT))
            P.add([I('v_min_u32 v%d, L_code_end-L_pc-4, v%d\ns_mov_b64 exec, 15\nglobal_load_dword v%d, v%d, s[%d:%d]\ns_mov_b64 exec, -1'
                     % (vT, vT, vDummy, vT, sPC, sPC + 1), kind='block', dst=[('v', vT)], src=[('v', vT)], nvm=1)])
        P('s_and_b32 s%d, s2, 7\ns_lshr_b32 s%d, s%d, 4\ns_lshl_b32 s%d, s%d, 3\ns_add_u32 s%d, s%d, s%d\ns_and_b32 s%d, s%d, 15'
          % (sC, sT0, sM, sT0, sT0, sC, sC, sT0, sM, sM))
        P('v_lshlrev_b32 v%d, 4, v0' % vL16)
        if self.stamps:
            P('v_mov_b32 v%d, 0' % vStamp)
            P.add(self.stamp('start'))
            P('s_memrealtime s[%d:%d]\ns_waitcnt lgkmcnt(0)\nv_writelane_b32 v%d, s%d, 62' % (sStamp, sStamp + 1, vStamp, sStamp))
        P('s_lshl_b32 s%d, s%d, 2\ns_add_u32 s%d, s%d, s%d\ns_mul_i32 s%d, s%d, %d' % (sX, sC, sX, sX, sW, sX, sX, 32 * 896))
        vq, vxb, vxh, vxa, vrd = 160, 163, 164, 165, 167
        P('v_lshrrev_b32 v%d, 5, v0\nv_and_b32 v%d, 31, v0\nv_xor_b32 v%d, v%d, v%d\nv_lshlrev_b32 v%d, 4, v%d\nv_mul_u32_u24 v%d, 896, v%d'
          % (vxh, vT, vxb, vT, vxh, vxb, vxb, vxh, vxh))
        ka = sKA

        def mksrd(r, p, size):
            P('s_mov_b32 s%d, s%d\ns_mov_b32 s%d, s%d\ns_mov_b32 s%d, %d\ns_mov_b32 s%d, 0x20000' % (r, p, r + 1, p + 1, r + 2, size, r + 3))
        P('s_lshl_b32 s%d, s%d, 14\ns_add_u32 s%d, s%d, %d' % (sT5, sW, sT5, sT5, L_XS))
        mksrd(SRD_X, ka + 0, 2048 * 896)

        def xdma(half):
            out = []
            for i in range(16):
                g = mk('s_add_u32 s%d, s%d, %d\ns_and_b32 s%d, s%d, 15' % (sT4, sM, i, sT4, sT4) if o['rot'] else 's_mov_b32 s%d, %d' % (sT4, i))
                g += mk('s_lshl_b32 s%d, s%d, 5\ns_and_b32 s%d, s%d, 0xf0\nv_xad_u32 v%d, v%d, s%d, v%d' % (sT0, sT4, sT0, sT0, vxa + (i & 1), vxb, sT0, vxh))
                g += mk('s_mul_i32 s%d, s%d, 1792\ns_add_u32 s%d, s%d, s%d\ns_lshl_b32 s%d, s%d, 10\ns_add_u32 m0, s%d, s%d' % (sT1, sT4, sT1, sT1, sX, sT4, sT4, sT4, sT5))
                g += mk('buffer_load_dwordx4 v%d, %s, s%d offen lds' % (vxa + (i & 1), self.srd(SRD_X), sT1))
                out.append(g)
            if half:
                out[0] = mk('v_add_u32 v%d, 512, v%d' % (vxh, vxh)) + out[0]
            return out
        mksrd(SRD_WQ, ka + 2, 448 * 2688)
        if o['pf0']:
            P('v_lshlrev_b32 v%d, 7, v0\ns_lshl_b32 s%d, s%d, 2\ns_add_u32 s%d, s%d, s%d\ns_mul_i32 s%d, s%d, %d\ns_mul_i32 s%d, s%d, %d\ns_add_u32 s%d, s%d, s%d\ns_mul_i32 s%d, s%d, %d'
              % (vxa, sT0, sM, sT0, sT0, sW, sT0, sT0, 14 * 128, sT1, sC, 128 * 896, sT0, sT0, sT1, sT1, sWi, 74 * 128))
            P.add([I('s_mov_b64 exec, 0x3fff\nbuffer_load_dword v%d, v%d, %s, s%d offen\ns_mov_b64 exec, -1\nbuffer_load_dword v%d, v%d, %s, s%d offen\n'
                     's_add_u32 s%d, s%d, 8192\ns_mov_b64 exec, 0x3ff\nbuffer_load_dword v%d, v%d, %s, s%d offen\ns_mov_b64 exec, -1'
                     % (vDummy, vxa, self.srd(SRD_X), sT0, vDummy, vxa, self.srd(SRD_WQ), sT1, sT1, sT1, vDummy, vxa, self.srd(SRD_WQ), sT1),
                     kind='block', nvm=3, src=[('v', vxa)])])
        body = [x.text for x in xdma(0)[0]]
        body[0] = 's_add_u32 s%d, s%d, s%d' % (sT4, sM, sT2) if o['rot'] else 's_mov_b32 s%d, s%d' % (sT4, sT2)
        loop = I('\n'.join(['s_mov_b32 s%d, 0' % sT2, 'L_xa:'] + body[:-1] + ['s_add_u32 s%d, s%d, 1' % (sT2, sT2), 's_cmp_lt_u32 s%d, 16' % sT2, body[-1],
                                                                            's_cbranch_scc1 L_xa']), kind='block', nvm=16, src=[('v', vxb), ('v', vxh)] + regs_of(s(SRD_X, 4)), dst=[('v', vxa)])
        tA = tok(loop)
        P.add([loop])
        P('s_load_dword s%d, s[%d:%d], 0' % (sNonce, ka + 20, ka + 21))
        P.add(self.wq_addr(vq))
        mksrd(SRD_OUT, ka + 16, 2048 * 896)
        P('s_and_b32 s%d, s%d, 3\ns_lshr_b32 s%d, s%d, 3\ns_lshl_b32 s%d, s%d, 2\ns_add_u32 s%d, s%d, s%d\ns_min_u32 s%d, s%d, 6'
          % (sRot, sM, sT0, sC, sT0, sT0, sRot, sRot, sT0, sRot, sRot))
        wq = self.wq_dma(range(7), vq, rot=o['wqrot'])
        self.tok_wq = tok(wq[-1][-1])
        P.add(flat(wq[:9]))
        mksrd(SRD_WO, ka + 4, 448 * 896)
        mksrd(SRD_W1, ka + 8, 448 * 3584)
        P('s_cmp_lt_u32 s%d, 14\ns_cselect_b32 s%d, s%d, 0' % (sM, SRD_W1 + 2, SRD_W1 + 2))
        mksrd(SRD_B1, ka + 10, 3584)
        mksrd(SRD_W2, ka + 12, 1792 * 896)
        mksrd(SRD_B2, ka + 14, 896)
        mksrd(SRD_WS, ka + 20, WS_CL)
        P('s_lshl_b32 s%d, s%d, 21\ns_add_u32 s%d, s%d, %d' % (sT0, sC, sT0, sT0, WS_CL))
        P('s_add_u32 s%d, s%d, s%d\ns_addc_u32 s%d, s%d, 0\ns_mov_b32 s%d, 0x200000\ns_mov_b32 s%d, 0x20000'
          % (SRD_CL, ka + 20, sT0, SRD_CL + 1, ka + 21, SRD_CL + 2, SRD_CL + 3))
        P('s_mov_b32 s%d, %s\ns_mov_b32 s%d, 0\ns_mov_b32 s%d, -1' % (sLn2, f32(LN2), sHalf, sHalf + 1))
        P('s_mov_b32 s%d, 0x10000000\ns_mov_b32 s%d, 0x10000000\ns_mov_b32 s%d, 0' % (sN28, sN28 + 1, sSpin))
        P('s_getreg_b32 s%d, hwreg(HW_REG_XCC_ID, 0, 4)' % sXcc)
        P('s_and_b32 s%d, s%d, 1\ns_sub_u32 s%d, 3, s%d' % (sEb, sM, sLb, sEb))
        c0 = -2.0 * 0.7978845608028654 * LOG2E
        P('s_mov_b32 s%d, %s\ns_mov_b32 s%d, %s' % (sC0, f32(c0), sC1, f32(c0 * 0.044715)))
        P('s_lshr_b32 s%d, s%d, 1\ns_lshl_b32 s%d, s%d, 2\ns_and_b32 s%d, s%d, 1\ns_lshl_b32 s%d, s%d, 1\ns_add_u32 s%d, s%d, s%d\ns_lshr_b32 s%d, s%d, 1\ns_add_u32 s%d, s%d, s%d'
          % (sFe, sM, sFe, sFe, sT0, sW, sT0, sT0, sFe, sFe, sT0, sT0, sW, sFe, sFe, sT0))
        P('s_lshl_b32 s%d, s%d, 15\ns_lshl_b32 s%d, s%d, 11\ns_add_u32 s%d, s%d, s%d' % (sBlk, sW, sOst, sM, sOst, sOst, sBlk))
        P('s_lshl_b32 s%d, s%d, 7\ns_add_u32 s%d, s%d, %d\ns_lshl_b32 s%d, s%d, 2\ns_add_u32 s%d, s%d, s%d' % (sFo, sW, sFo, sFo, FL_OFF, sT0, sM, sFoMy, sFo, sT0))
        P('s_lshl_b32 s%d, s%d, 2\ns_add_u32 s%d, s%d, s%d\ns_lshl_b32 s%d, s%d, 14\ns_add_u32 s%d, s%d, %d' % (sT1, sM, sT1, sT1, sW, sKv, sT1, sKv, sKv, WS_KVP))
        P('s_lshl_b32 s%d, s%d, 10\ns_add_u32 s%d, s%d, s%d' % (sKvMy, sC, sKvMy, sKvMy, sKv))
        P('s_lshl_b32 s%d, s%d, 11\ns_add_u32 s%d, s%d, %d' % (sHst, sT1, sHst, sHst, H_OFF))
        P('s_lshl_b32 s%d, s%d, 11\ns_add_u32 s%d, s%d, %d' % (sT1, sW, sT1, sT1, H_OFF))
        P('s_mul_i32 s%d, s%d, 114688\ns_add_u32 s%d, s%d, s%d\ns_mul_i32 s%d, s%d, 114688\ns_add_u32 s%d, s%d, s%d' % (sHE, sEb, sHE, sHE, sT1, sHL, sLb, sHL, sHL, sT1))
        P('s_lshl_b32 s%d, s%d, 9\ns_add_u32 s%d, s%d, s%d\ns_add_u32 s%d, s%d, %d' % (sPE, sEb, sPE, sPE, sFo, sPE, sPE, FH - FL_OFF))
        P('s_lshl_b32 s%d, s%d, 9\ns_add_u32 s%d, s%d, s%d\ns_add_u32 s%d, s%d, %d' % (sPL, sLb, sPL, sPL, sFo, sPL, sPL, FH - FL_OFF))
        self.xreg0 = xr = [16 + 4 * i if i < 20 else 176 + 4 * (i - 20) for i in range(28)]
        P('v_and_b32 v%d, 15, v0\nv_lshrrev_b32 v%d, 5, v0\nv_xor_b32 v%d, v%d, v%d\nv_lshlrev_b32 v%d, 4, v%d\nv_and_b32 v%d, 31, v0\nv_lshl_add_u32 v%d, v%d, 9, v%d\nv_add_u32 v%d, s%d, v%d'
          % (vT, vrd, vrd, vrd, vT, vrd, vrd, vT, vrd, vT, vrd, vrd, sT5, vrd))
        xrd = lambda k: mk('v_xor_b32 v%d, %d, v%d\nds_read_b128 %s, v%d' % (vrd + 1 + (k & 1), 32 * (k & 15), vrd, v(xr[k], 4), vrd + 1 + (k & 1)))
        P.add(self.stamp('issued'))
        P.add([wait_tok(tA)])
        P.add(self.stamp('xA'))
        for k in range(16):
            P.add(xrd(k))
        vS, vOne = vT + 2, vT + 1
        P('v_mov_b32 v%d, 0x3f803f80\ns_waitcnt lgkmcnt(0)' % vOne)
        xb = xdma(1)
        tB = tok(xb[-1][-1])
        d = self.dots([xr[k] + i for k in range(16) for i in range(4)], vS, vOne, True)
        P.add(spread(xb + wq[9:], d))
        P('s_add_u32 s%d, s%d, 0x01010101' % (sNonce, sNonce))
        for k in range(4):
            P('s_bfe_u32 s%d, s%d, 0x%x' % (sN0 + k, sNonce, (8 << 16) | (8 * k)))
        P('v_mov_b32 v%d, s%d' % (vNonce, sNonce))
        P('s_lshl_b32 s%d, s%d, 4\ns_add_u32 s%d, s%d, s%d\ns_lshl_b32 s%d, s%d, 7\ns_add_u32 s%d, s%d, %d'
          % (sT2, sC, sT2, sT2, sM, sT2, sT2, sT2, sT2, WS_XCC))
        P('s_add_u32 s%d, s%d, s%d\nv_mov_b32 v%d, s%d\ns_mov_b64 exec, 1' % (sT3, sNonce, sXcc, vT, sT3))
        P('buffer_store_dword v%d, off, %s, s%d sc1' % (vT, self.srd(SRD_WS), sT2))
        P('s_mov_b64 exec, -1')
        P.add(self.stamp('issued2'))
        P.add([wait_tok(tB)])
        P.add(self.stamp('xB'))
        for k in range(16, 28):
            P.add(xrd(k))
        P.add(self.dots([xr[k] + i for k in range(16, 28) for i in range(4)], vS, vOne, False) + self.dots_end(vS))

    def s1(self, l):
        P = self.P
        o = self.o
        AK, AV, AQ, WB, SB = 96, 112, 128, 144, 160
        RLB, XE = SB, SB + 8
        NB = 4
        vS = vT + 2
        P.comment('==== layer %d : S1' % l)
        d2 = 4 * 192 if l == 0 else 8 * 192
        fin = self.stats_finish(vS, False)
        fin += mk('s_lshl_b32 s%d, s%d, 12\ns_add_u32 s%d, s%d, %d' % (sT4, sW, sT4, sT4, L_KVS))
        bounce = mk('v_and_b32 v%d, 31, v0\nv_lshl_add_u32 v%d, v%d, 2, s%d\nds_write_b32 v%d, v%d' % (vT + 1, vT + 1, vT + 1, sT4, vT + 1, vRl))
        if l == 1:
            fin += bounce
        fin += mk('v_sub_f32 v%d, 0, v%d' % (vMean, vMean)) + self.split_act(XE, vMean, vT)
        fin += mk('v_cndmask_b32 v%d, v%d, 0, s[%d:%d]\nv_mov_b32 v%d, 0\nv_mov_b32 v%d, 0' % (XE, XE, sHalf, sHalf + 1, XE + 2, XE + 3))
        if l == 0:
            xreg = self.xreg0
            P.add(fin)
            P.add(self.trbase(vTr, 192, 8, add=L_WQ))
            P.add([wait_tok(self.tok_wq)])
            P('s_barrier')
            P.add(self.stamp('wq_ready'))
            P.add(bounce)
            vo, vb = RLB, RLB + 4
            P('\n'.join('v_mov_b32 v%d, 0x3f803f80' % (vo + i) for i in range(4)))
            P('s_mul_i32 s%d, s%d, %d\nv_add_u32 v%d, s%d, v%d' % (sT0, sW, 7 * 3072, vb, sT0, vTr))
            cj = [(t, k) for k in range(7) for t in range(3)]
            rd = lambda j: mk('ds_read_b64_tr_b16 %s, v%d offset:%d\nds_read_b64_tr_b16 %s, v%d offset:%d' % (
                v(WB + 4 * (j % NB), 2), vb, cj[j][1] * 3072 + 64 * cj[j][0],
                v(WB + 4 * (j % NB) + 2, 2), vb, cj[j][1] * 3072 + 64 * cj[j][0] + d2))
            for j in range(NB):
                P.add(rd(j))
            wo = [self.touch([(8, SRD_WS, sKvMy, 0)], vT) + self.touch_attn(0, vT)] + self.w1_early()
            for j, (t, k) in enumerate(cj):
                acc = (AQ, AK, AV)[t]
                P.add(mfma(acc, v(vo, 4), v(WB + 4 * (j % NB), 4), k == 0))
                if j + NB < len(cj):
                    P.add(rd(j + NB))
                if j < len(wo):
                    P.add(wo[j])
            P('v_and_b32 v%d, 31, v0\nv_lshlrev_b32 v%d, 2, v%d\ns_mul_i32 s%d, s%d, 384\ns_add_u32 s%d, s%d, %d\nv_add_u32 v%d, s%d, v%d'
              % (vb, vb, vb, sT0, sW, sT0, sT0, L_KVB, vb, sT0, vb))
            for t in range(3):
                P('ds_write_b32 v%d, v%d offset:%d' % (vb, (AQ, AK, AV)[t], 128 * t))
            lds = []
        else:
            xreg = [16 + 4 * (i % 20) for i in range(28)]
            P.add(self.pa(28))
            P('s_add_u32 s%d, s%d, %d' % (sT4, sFo, FXIN - FL_OFF))
            P.add(self.poll_issue(sT4))
            P('s_mul_i32 s%d, s%d, %d' % (sT5, sW, XIN_BS))
            P.add(self.trbase(vTr, 192, 4, add=L_WQ))
            P.add([wait_tok(self.tok_wq)])
            P('s_barrier')
            lds = self.frag_loads([v(r, 4) for r in xreg], SRD_CL, sT5, XIN_OFF)
        jobs = []
        for k in range(28):
            jobs += [('k', k), ('v', k)] + ([('q', k)] if k < 8 else [])
        jobs += [('k', 'e'), ('v', 'e')]
        nmain = len(jobs)
        jobs += [('q', k) for k in range(8, 28)] + [('q', 'e')]
        vTr2, vCs = vT + 3, vPA

        def rd(j):
            t, k = jobs[j]
            b = WB + 4 * (j % NB)
            if k == 'e':
                return mk('ds_read_b64 %s, v%d offset:%d\nv_mov_b32 v%d, 0\nv_mov_b32 v%d, 0' % (v(b, 2), vCs, 256 * 'qkv'.index(t), b + 2, b + 3))
            base, off = (vTr, k * 3072) if k < 16 else (vTr2, (k - 16) * 3072)
            off += 64 * 'qkv'.index(t)
            return mk('ds_read_b64_tr_b16 %s, v%d offset:%d\nds_read_b64_tr_b16 %s, v%d offset:%d' % (v(b, 2), base, off, v(b + 2, 2), base, off + d2))
        P('v_add_u32 v%d, %d, v%d' % (vTr2, 16 * 3072, vTr))
        for j in range(NB):
            P.add(rd(j))
        if l == 1:
            P.add(self.poll_check(sT4))
            P.add(self.stamp('x2_seen'))
            P.add(flat(lds[:o['look']]))
        P('v_and_b32 v%d, 31, v0\nv_lshlrev_b32 v%d, 3, v%d\nv_add_u32 v%d, %d, v%d' % (vCs, vCs, vCs, vCs, L_CS, vCs))
        slots = []
        for j, (t, k) in enumerate(jobs):
            acc = {'q': AQ, 'k': AK, 'v': AV}[t]
            w = v(WB + 4 * (j % NB), 4)
            x = v(XE if k == 'e' else xreg[k], 4)
            A, B = (w, x) if t == 'q' else (x, w)
            sl = mfma(acc, A, B, k == 0)
            if j + NB < len(jobs):
                sl += rd(j + NB)
            slots.append(sl)
        if l == 0:
            vb = RLB
            ex = mk('s_waitcnt lgkmcnt(0)\ns_barrier')
            ex += mk('v_and_b32 v%d, 31, v0\nv_lshlrev_b32 v%d, 2, v%d\nv_add_u32 v%d, %d, v%d' % (vb, vb, vb, vb, L_KVB, vb))
            slots[20] += ex
            for t in range(3):
                r = vb + 2
                slots[21 + 6 * t] += mk('\n'.join('ds_read_b32 v%d, v%d offset:%d' % (r + ww, vb, 384 * ww + 128 * t) for ww in range(4)))
                ex = mk('v_add_f32 v%d, v%d, v%d\nv_add_f32 v%d, v%d, v%d\nv_add_f32 v%d, v%d, v%d' % (r, r, r + 1, r + 2, r + 2, r + 3, r, r, r + 2))
                slots[24 + 6 * t] += ex
                slots[25 + 6 * t] += self.split_w(r + 2, r, r + 1) + mk('ds_write_b64 v%d, %s offset:%d' % (vCs, v(r + 2, 2), 256 * t))
        else:
            n = o['look']
            for j in range(0, nmain, 2):
                if n < 28:
                    k_free = n - 20
                    assert k_free < 0 or j >= jobs.index(('q', k_free))
                    slots[j] += lds[n]
                    n += 1
            st = self.frag_loads([v(SB + 4 * (i % 4), 4) for i in range(7)], SRD_CL, sT5, XIN_OFF + 28672, st=sT1)
            for i in range(4):
                slots[25 + 2 * i] += st[i]
            ex = []
            for i in range(1, 16):
                ex += mk('v_add_f32 v%d, v%d, v%d' % (vS, vS if i > 1 else SB, SB + i))
            for i in range(0, 15, 3):
                slots[40 + i // 3] += ex[i:i + 3]
            for i in range(3):
                slots[45 + i] += st[4 + i]
            ex = flat(mk('v_add_f32 v%d, v%d, v%d' % (vS, vS, SB + i)) for i in range(12)) + fin
            per = (len(ex) + 8) // 9
            for i in range(9):
                slots[54 + i] += ex[i * per:(i + 1) * per]
        fill = mk('v_lshrrev_b32 v%d, 5, v0\nv_lshl_add_u32 v%d, v%d, 4, s%d' % (vT + 1, vT + 1, vT + 1, sT4))
        bc = lambda g: mk('ds_read_b128 %s, v%d offset:%d' % (v(RLB + 4 * (g & 1), 4), vT + 1, 32 * g))
        fill += bc(0) + bc(1)
        slots[nmain - 3] += fill
        fill = mk('v_mov_b32 v%d, 0x3f803f80' % vPoll)
        for g in range(4):
            R = [RLB + 4 * (g & 1) + i for i in range(4)]
            e = self.phi4([AK + 4 * g + i for i in range(4)], R, xreg[8])
            e2 = flat(mk('v_mul_f32 v%d, v%d, v%d' % (AV + 4 * g + i, AV + 4 * g + i, R[i])) for i in range(4))
            fill += e[:4] + e2
            if g + 2 < 4:
                fill += bc(g + 2)
            fill += e[4:]
            fill += self.pack(AK + 2 * g, AK + 4 * g, 2) + self.pack(AV + 2 * g, AV + 4 * g, 2)
            for i in range(2):
                fill += mk('v_cndmask_b32 v%d, v%d, v%d, s[%d:%d]' % (AV + 2 * g + i, AV + 2 * g + i, vPoll, sN28, sN28 + 1))
        fill += mk('v_add_u32 v%d, s%d, v%d' % (vT, sT4, vL16))
        fill += mk('s_lshl_b32 s%d, s%d, 10\ns_add_u32 s%d, s%d, %d\nv_add_u32 v%d, s%d, v%d' % (sT1, sW, sT1, sT1, L_KVS, vT + 1, sT1, vL16))
        fill += mk('v_mov_b32 v%d, 0xff' % (vT + 2))
        P.add(flat(slots[:nmain]))
        P.add(self.stamp('s1_kv_mfma'))
        P.add(spread(slots[nmain:], fill, start=1))
        DK = 16
        P.add(mfma(DK, v(AK, 4), v(AV, 4), True) + mfma(DK, v(AK + 4, 4), v(AV + 4, 4)))
        for q in range(4):
            P('ds_write_b128 v%d, %s offset:%d' % (vT, v(DK + 4 * q, 4), 1024 * q))
        P('s_waitcnt lgkmcnt(0)\ns_barrier')
        for ww in range(4):
            P('ds_read_b128 %s, v%d offset:%d' % (v(32 + 4 * ww, 4), vT + 1, 4096 * ww))
        for x, y in ((32, 36), (40, 44), (32, 40)):
            for i in (0, 2):
                P('v_pk_add_f32 %s, %s, %s' % (v(x + i, 2), v(x + i, 2), v(y + i, 2)))
        for i in range(4):
            P('v_bfi_b32 v%d, v%d, s%d, v%d' % (32 + i, vT + 2, sN0 + i, 32 + i))
        P('buffer_store_dwordx4 %s, v%d, %s, s%d offen sc1' % (v(32, 4), vL16, self.srd(SRD_WS), sKvMy))
        P.add(self.stamp('kv_pub'))
        if l == 0:
            P('s_lshl_b32 s%d, s%d, 11\ns_add_u32 s%d, s%d, %d' % (sT4, sC, sT4, sT4, WS_XCC))
            P('v_and_b32 v%d, 15, v0\nv_lshlrev_b32 v%d, 7, v%d' % (vPA, vPA, vPA))
        PQ = self.PQ = 104

        def qepi():
            L = []
            for g in range(4):
                L += self.phi4([AQ + 4 * g + i for i in range(4)], [vRl] * 4, 48) + self.pack(PQ + 2 * g, AQ + 4 * g, 2)
            for i in (6, 7):
                L += mk('v_cndmask_b32 v%d, v%d, 0, s[%d:%d]' % (PQ + i, PQ + i, sHalf, sHalf + 1))
            return L
        if l == 0:
            self.staging(qepi)
        else:
            P.add(qepi())

    V1A = 208

    def w1_early(self):
        v1a = self.V1A
        pre = mk('v_lshrrev_b32 v%d, 2, v0\nv_mul_u32_u24 v%d, 3584, v%d\nv_and_b32 v%d, 3, v0\nv_lshl_add_u32 v%d, v%d, 4, v%d'
                 % (v1a, v1a, v1a, vT, v1a, vT, v1a))
        pre += mk('s_lshl_b32 s%d, s%d, 2\ns_add_u32 s%d, s%d, s%d\ns_lshl_b32 s%d, s%d, 6\nv_add_u32 v%d, s%d, v%d' % (sT5, sM, sT5, sT5, sW, sT5, sT5, v1a, sT5, v1a))
        pre += mk('s_mul_i32 s%d, s%d, 14336\ns_add_u32 s%d, s%d, %d' % (sT3, sW, sT3, sT3, L_EX))
        out = [pre]
        for i in range(14):
            g = mk('s_add_u32 m0, s%d, %d\ns_mov_b32 s%d, %d' % (sT3, 1024 * i, sT2, i * 16 * 3584))
            g += mk('buffer_load_dwordx4 v%d, %s, s%d offen lds' % (v1a, self.srd(SRD_W1), sT2))
            out.append(g)
        self.tok_w1a = tok(out[-1][-1])
        return out

    def staging(self, qepi):
        P = self.P
        lskip, ljoin = P.newlabel('Lnostage'), P.newlabel('Lstaged')
        P.add([I('s_cmp_ge_u32 s%d, 14\ns_cbranch_scc1 %s' % (sM, lskip), kind='block')])
        txt, _ = finalize(mk('s_nop 7') + qepi())
        self.ool.append('%s:\n%s\ns_branch %s' % (lskip, '\n'.join(t.strip() for t in txt.split('\n')), ljoin))
        v1a, v2a, t0, t1, t2, vb, vwo = 112, 113, 114, 115, 116, 120, 121
        nt = ' nt' if self.o['stnt'] else ''
        NS = 10
        P('v_mov_b32 v%d, v%d\ns_mul_i32 s%d, s%d, %d' % (v1a, self.V1A, sQ1, sW, NS * 2048))
        P('v_lshrrev_b32 v%d, 3, v0\nv_mul_u32_u24 v%d, 896, v%d\nv_and_b32 v%d, 7, v0\nv_lshl_add_u32 v%d, v%d, 4, v%d'
          % (v2a, v2a, v2a, vT, v2a, vT, v2a))
        P('s_lshr_b32 s%d, s%d, 1\ns_lshl_b32 s%d, s%d, 7\ns_mul_i32 s%d, s%d, %d\ns_add_u32 s%d, s%d, s%d\nv_add_u32 v%d, s%d, v%d'
          % (sT0, sM, sT0, sT0, sT1, sW, 32 * 896, sT0, sT0, sT1, v2a, sT0, v2a))
        NU = 35

        def issue(u):
            out = []
            for i in range(2):
                if u < 7:
                    va, srd, src = v1a, SRD_W1, (14 + 2 * u + i) * 16 * 3584
                else:
                    kap = u - 7
                    va, srd, src = v2a, SRD_W2, (128 * (kap // 2) + 16 * (kap % 2) + 8 * i) * 896
                g = mk('s_add_u32 m0, s%d, %d\ns_mov_b32 s%d, %d' % (sQ1, (u % NS) * 2048 + 1024 * i, sQ0, src))
                g += mk('buffer_load_dwordx4 v%d, %s, s%d offen%s lds' % (va, self.srd(srd), sQ0, nt))
                out.append(g)
            return out, tok(out[-1][-1])

        def w1rd(k, va, o):
            return mk('ds_read_b64_tr_b16 %s, v%d offset:%d\nds_read_b64_tr_b16 %s, v%d offset:%d' % (w1half(k, 0), va, o, w1half(k, 1), va, o + 512))

        def consume(u):
            o = (u % NS) * 2048
            if u < 7:
                return w1rd(14 + 2 * u, t1, o) + w1rd(15 + 2 * u, t1, o + 1024)
            L = []
            for js in range(2):
                b = W2A + 8 * (u - 7) + 4 * js
                L += mk('ds_read_b64_tr_b16 %s, v%d offset:%d\nds_read_b64_tr_b16 %s, v%d offset:%d' % (a(b, 2), t2 + js, o, a(b + 2, 2), t2 + js, o + 1024))
            return L
        ad = self.trbase(t1, 64, 4) + mk('v_add_u32 v%d, s%d, v%d\nv_add_u32 v%d, s%d, v%d' % (t0, sT3, t1, t1, sQ1, t1))
        ad += mk('s_lshr_b32 s%d, s%d, 1' % (sT0, sW)) + self.trbase(t2, 128, 4, xor16=sT0) + mk('v_add_u32 v%d, s%d, v%d' % (t2, sQ1, t2))
        ad += mk('s_and_b32 s%d, s%d, 1\ns_lshl_b32 s%d, s%d, 6\ns_xor_b32 s%d, s%d, 64\nv_add_u32 v%d, s%d, v%d\nv_add_u32 v%d, s%d, v%d'
                 % (sT0, sW, sT0, sT0, sT1, sT0, t2 + 1, sT1, t2, t2, sT0, t2))
        ad += mk('v_and_b32 v%d, 31, v0\nv_lshlrev_b32 v%d, 1, v%d\nbuffer_load_ushort v%d, v%d, %s, s%d offen' % (vT, vT, vT, vb, vT, self.srd(SRD_B1), sT5))
        ad += mk('v_lshrrev_b32 v%d, 2, v0\nv_mul_u32_u24 v%d, 896, v%d\nv_and_b32 v%d, 3, v0\nv_lshl_add_u32 v%d, v%d, 4, v%d\ns_lshl_b32 s%d, s%d, 6\nv_add_u32 v%d, s%d, v%d'
                 % (vwo, vwo, vwo, vT, vwo, vT, vwo, sT2, sM, vwo, sT2, vwo))
        tk, first = [], []
        for u in range(NS - 1):
            g, t = issue(u)
            first += g
            tk.append(t)
        early = [wait_tok(self.tok_w1a)] + flat(w1rd(k, t0, 1024 * k) for k in range(14))
        P.add(spread(first, qepi() + ad + early))
        P('s_waitcnt lgkmcnt(0)\ns_barrier')
        wo = [mk('s_mul_i32 s%d, s%d, %d\ns_lshl_b32 s%d, s%d, 10\ns_add_u32 s%d, s%d, %d' % (sT2, sW, 16 * 896, sT3, sW, sT3, sT3, L_WO))]
        for t in range(7):
            wo.append(mk('s_add_u32 m0, s%d, %d\ns_add_u32 s%d, s%d, %d\nbuffer_load_dwordx4 v%d, %s, s%d offen lds' % (sT3, 4096 * t, sT0, sT2, t * 64 * 896, vwo, self.srd(SRD_WO), sT0)))
        last = I('s_mov_b32 s%d, %d\ns_mov_b32 m0, %d\ns_mov_b64 exec, 0xffff\nbuffer_load_dwordx4 v%d, %s, s%d offen lds\ns_mov_b64 exec, -1'
                 % (sT2, 448 * 896, L_WO + 28672, vwo, self.srd(SRD_WO), sT2), kind='block', nvm=1, src=[('v', vwo)])
        self.tok_wo = tok(last)
        wo.append([last])
        vo, D = 160, 128
        cs = [mk('\n'.join('v_mov_b32 v%d, 0x3f803f80' % (vo + i) for i in range(4)))]
        for k in range(0, 28, 2):
            cs.append(mfma(D, v(vo, 4), w1reg(k), k == 0) + mfma(D, v(vo, 4), w1reg(k + 1)))
        cs.append([])
        cs.append(self.split_w(vW1X, D, vT) + mk('v_lshl_or_b32 v%d, v%d, 16, v%d' % (vb, vb, vb))
                  + mk('v_cndmask_b32 v%d, v%d, v%d, s[%d:%d]\nv_cndmask_b32 v%d, v%d, 0, s[%d:%d]'
                       % (vW1X, vW1X, vb, sHalf, sHalf + 1, vW1X + 1, vW1X + 1, sHalf, sHalf + 1)))
        for u in range(NU):
            P.add([wait_tok(tk[u])] + consume(u))
            if u + NS - 1 < NU:
                if u:
                    P('s_waitcnt lgkmcnt(4)')
                g, t = issue(u + NS - 1)
                tk.append(t)
                P.add(flat(g))
            if 8 <= u < 8 + len(cs):
                P.add(cs[u - 8])
            if u >= NU - len(wo):
                P.add(wo[u - (NU - len(wo))])
        P.label(ljoin)
        P.add([I('s_nop 1', kind='block', states=2)])

    def kvx(self, l):
        P = self.P
        P.comment('==== layer %d : kv exchange' % l)
        if l == 0:
            lw = P.newlabel('Lxcc')
            P.label(lw)
            P.add([I('\n'.join([
                'buffer_load_dword v%d, v%d, %s, s%d offen sc1' % (vPoll, vPA, self.srd(SRD_WS), sT4),
                's_add_u32 s%d, s%d, 1' % (sSpin, sSpin),
                's_cmp_gt_u32 s%d, 0x40000' % sSpin,
                's_cbranch_scc1 L_end',
                's_waitcnt vmcnt(0)',
                'v_subrev_u32 v%d, s%d, v%d' % (vPoll, sNonce, vPoll),
                'v_cmp_lt_u32 vcc, 15, v%d' % vPoll,
                's_cbranch_vccnz %s' % lw,
                'v_cmp_ne_u32 vcc, s%d, v%d' % (sXcc, vPoll),
                's_cmp_lg_u64 vcc, 0',
                's_cselect_b32 s%d, 1, 0' % sSlow]), kind='block', src=[('v', vPA)], dst=[('v', vPoll), ('x', 'vcc')],
                drain_vm=True, states=1)])
        RES = 160
        if l == 0:
            P('v_and_b32 v%d, 31, v0\nv_mul_u32_u24 v%d, 896, v%d\nv_lshrrev_b32 v%d, 5, v0\nv_lshl_add_u32 v%d, v%d, 3, v%d'
              % (vT, vT, vT, vT + 1, vT, vT + 1, vT))
            P('s_lshl_b32 s%d, s%d, 6\ns_add_u32 s%d, s%d, s%d' % (sT0, sM, sT0, sT0, sX))
            for g in range(4):
                P('buffer_load_dwordx2 %s, v%d, %s, s%d offen offset:%d' % (v(RES + 2 * g, 2), vT, self.srd(SRD_X), sT0, 16 * g))
        else:
            P('s_lshl_b32 s%d, s%d, 11\ns_add_u32 s%d, s%d, s%d\ns_add_u32 s%d, s%d, %d' % (sT1, sM, sT0, sT5, sT1, sT0, sT0, XIN_OFF))
            for j in range(2):
                P('buffer_load_dwordx4 %s, v%d, %s, s%d offen offset:%d' % (v(RES + 4 * j, 4), vL16, self.srd(SRD_CL), sT0, 1024 * j))
            P('s_add_u32 s%d, s%d, 1\nv_mov_b32 v%d, s%d' % (sNonce, sNonce, vNonce, sNonce))
            if self.o['reuse']:
                P('s_mul_i32 s%d, s%d, %d' % (sT0, sSlow, LOFF))
            else:
                P('s_mov_b32 s%d, %d' % (sT0, LOFF))
            P('s_add_u32 s%d, s%d, s%d\ns_addc_u32 s%d, s%d, 0\ns_sub_u32 s%d, s%d, s%d' % (SRD_CL, SRD_CL, sT0, SRD_CL + 1, SRD_CL + 1, SRD_CL + 2, SRD_CL + 2, sT0))
            if self.o['kvdelay']:
                P('s_sleep %d' % self.o['kvdelay'])
        P('v_lshlrev_b32 v%d, 5, v0\nv_add_u32 v%d, %d, v%d\ns_lshl_b32 s%d, s%d, 3\nv_add_u32 v%d, s%d, v%d'
          % (vT + 2, vT + 2, L_KVB, vT + 2, sT0, sW, vT + 1, sT0, vT + 2))
        P.add(self.pa(16))
        P.add(self.trbase(vTr, 64, 4, add=L_WO))
        lsw, lre = P.newlabel('Lsweep'), P.newlabel('Lresweep')
        P.add(self.stamp('sweep_start'))
        P.label(lsw)
        B = 32
        P.add(flat(self.frag_loads([v(B + 4 * i, 4) for i in range(16)], SRD_WS, sKv, 0, flags='sc1')))
        bad, S = vT, 16
        P('v_mov_b32 v%d, 0' % bad)
        for i in range(16):
            for k in range(4):
                P('v_xor_b32 v%d, s%d, v%d' % (B + 4 * i + k, sN0 + k, B + 4 * i + k))
            for k in (0, 2):
                P('v_or3_b32 v%d, v%d, v%d, v%d' % (bad, B + 4 * i + k, B + 4 * i + k + 1, bad))
            if i >= 1:
                for k in (0, 2):
                    P('v_pk_add_f32 %s, %s, %s' % (v(S + k, 2), v((S if i > 1 else B) + k, 2), v(B + 4 * i + k, 2)))
        P('v_and_b32 v%d, 0xff, v%d\nv_cmp_ne_u32 vcc, 0, v%d' % (bad, bad, bad))
        P.add([I('s_cbranch_vccnz %s' % lre, kind='block', states=1)])
        self.ool.append('%s:\ns_sleep 6\ns_add_u32 s%d, s%d, 1\ns_cmp_gt_u32 s%d, 0x40000\ns_cbranch_scc1 L_end\ns_branch %s'
                        % (lre, sSpin, sSpin, sSpin, lsw))
        P.add(self.stamp('sweep_done'))
        P.add(self.pack(S, S, 2))
        P('ds_write_b64 v%d, %s' % (vT + 1, v(S, 2)))
        if l == 0:
            P.add([wait_tok(self.tok_wo)])
        P('s_waitcnt lgkmcnt(0)\ns_barrier')
        KF, D = 32, 16
        P('ds_read_b128 %s, v%d\nds_read_b128 %s, v%d offset:16' % (v(KF, 4), vT + 2, v(KF + 4, 4), vT + 2))
        P.add(mfma(D, v(KF, 4), v(self.PQ, 4), True) + mfma(D, v(KF + 4, 4), v(self.PQ + 4, 4)))
        t1, t2 = 40, 42
        P('v_mov_b32 v%d, v%d\nv_mov_b32 v%d, v%d\nv_permlane32_swap_b32 v%d, v%d' % (t1, D + 12, t2, D + 12, t1, t2))
        P('v_add_f32 v%d, %s, v%d\nv_rcp_f32 v%d, v%d\nv_mul_f32 v%d, s%d, v%d\nv_mul_f32 v%d, s%d, v%d' % (t2, f32(1e-6), t2, t2, t2, t1, sLn2, t2, t1 + 1, sLn2, t2))
        P('v_cndmask_b32 v%d, v%d, 0, s[%d:%d]\nv_cndmask_b32 v%d, v%d, 0, s[%d:%d]' % (t2, t1, sHalf, sHalf + 1, t2 + 1, t1, sHalf, sHalf + 1))
        for r in range(0, 16, 2):
            P('v_pk_mul_f32 %s, %s, %s' % (v(D + r, 2), v(D + r, 2), v(t1 if r < 12 else t2, 2)))
        P.add(self.pack(D, D, 8))
        st = self.stores(['buffer_store_dwordx4 %s, v%d, %s, s%d offen offset:%d' % (v(D + 4 * j, 4), vL16, self.srd(SRD_CL), sOst, 1024 * j) for j in range(2)])
        tk = tok(st[-1])
        P.add(st)
        P.add(self.flag([tk], sFoMy))
        P.add(self.stamp('o_pub'))

    def s2(self, l):
        P = self.P
        o = self.o
        P.comment('==== layer %d : S2' % l)
        ACC, OF, WB, RES = 16, 32, 144, 160
        NB = 4
        P.add(self.poll_issue(sFo))
        P.add(self.unpack(ACC, RES, 8))
        jobs = [(h, j) for h in range(16) for j in range(2)]
        rd = lambda i: mk('ds_read_b64_tr_b16 %s, v%d offset:%d\nds_read_b64_tr_b16 %s, v%d offset:%d' % (
            v(WB + 4 * (i % NB), 2), vTr, 1792 * jobs[i][0] + 1024 * jobs[i][1],
            v(WB + 4 * (i % NB) + 2, 2), vTr, 1792 * jobs[i][0] + 1024 * jobs[i][1] + 512))
        for i in range(NB):
            P.add(rd(i))
        P('s_add_u32 s%d, s%d, %d' % (sT4, sOst, X1_OFF))
        P('s_lshr_b32 s%d, s%d, 2\ns_lshl_b32 s%d, s%d, 10\ns_and_b32 s%d, s%d, 3\ns_lshl_b32 s%d, s%d, 2\ns_add_u32 s%d, s%d, s%d\ns_add_u32 s%d, s%d, s%d\ns_add_u32 s%d, s%d, %d'
          % (sT5, sM, sT5, sT5, sT1, sM, sT1, sT1, sT5, sT5, sT1, sT5, sT5, sBlk, sT5, sT5, X1_OFF + 28672))
        P.add(self.poll_check(sFo))
        P.add(self.stamp('o_seen'))
        oreg = [OF + 4 * (i % 28) for i in range(32)]
        lds = self.frag_loads([v(r, 4) for r in oreg], SRD_CL, sBlk, O_OFF, flags='sc1')
        n = o['look']
        P.add(flat(lds[:n]))
        for i in range(32):
            P.add(mfma(ACC, v(WB + 4 * (i % NB), 4), v(oreg[i], 4)))
            if i + n < 32:
                P.add(lds[i + n])
            if i + NB < 32:
                P.add(rd(i + NB))
        P.add(self.pa(14, blocks=True))
        P.add(self.pack(OF, ACC, 8))
        P.add(self.stores(['buffer_store_dwordx4 %s, v%d, %s, s%d offen offset:%d' % (v(OF + 4 * j, 4), vL16, self.srd(SRD_CL), sT4, 1024 * j) for j in range(2)]))
        P.add(self.row_stats(OF, 8, vT, vT + 2))
        st = self.stores(['buffer_store_dword v%d, v%d, %s, s%d offen' % (vT, vL16, self.srd(SRD_CL), sT5)])
        tk = tok(st[-1])
        P.add(st)
        P.add(self.flag([tk], sFoMy, FX1 - FO))
        P.add(self.stamp('x1_pub'))

    def gelu(self, acc, KK, T, H):
        L = []
        for g in range(4):
            rs = [acc + 4 * g + i for i in range(4)]
            for i, r in enumerate(rs):
                L.append('v_mul_f32 v%d, v%d, v%d' % (T + i, r, r))
            for i, r in enumerate(rs):
                L.append('v_fma_f32 v%d, v%d, v%d, v%d' % (T + i, T + i, KK + 1, KK))
            for i, r in enumerate(rs):
                L.append('v_mul_f32 v%d, v%d, v%d' % (T + i, T + i, r))
            for i, r in enumerate(rs):
                L.append('v_exp_f32 v%d, v%d' % (T + i, T + i))
            for i, r in enumerate(rs):
                L.append('v_fma_f32 v%d, v%d, v%d, v%d' % (T + i, T + i, KK + 2, KK + 2))
            for i, r in enumerate(rs):
                L.append('v_rcp_f32 v%d, v%d' % (T + i, T + i))
            for i, r in enumerate(rs):
                L.append('v_mul_f32 v%d, v%d, v%d' % (r, r, T + i))
            for i in range(2):
                L.append('v_cvt_pk_bf16_f32 v%d, v%d, v%d' % (H + 2 * g + i, rs[2 * i], rs[2 * i + 1]))
        return mk('\n'.join(L))

    def mlp(self, l):
        P = self.P
        o = self.o
        P.comment('==== layer %d : MLP' % l)
        ACC = (16, 32)
        XB, EXB, WEX, T, KK, H, VQ, RING = 48, 72, 76, 80, 84, 88, 96, 112
        NB = 6
        P('s_mov_b32 s%d, %d' % (sT4, FX1))
        P.add(self.poll_issue(sT4))
        P('s_mul_i32 s%d, s%d, 7168' % (sT5, sW))
        P('v_mov_b32 v%d, v%d\nv_mov_b32 v%d, v%d' % (WEX, vW1X, WEX + 1, vW1X + 1))
        P('\n'.join('v_mov_b32 v%d, 0' % r for r in (WEX + 2, WEX + 3, EXB + 2, EXB + 3)))
        vE8, vK16, vX2 = vTr, vT + 3, 100
        P('v_lshlrev_b32 v%d, 3, v0\nv_add_u32 v%d, %d, v%d' % (vE8, vE8, L_KVS, vE8))
        P('v_and_b32 v%d, 31, v0\nv_lshlrev_b32 v%d, 4, v%d\nv_add_u32 v%d, %d, v%d' % (vK16, vK16, vK16, vK16, L_KVS + 512, vK16))
        P('v_add_u32 v%d, %d, v%d' % (vX2, 2 * L_XB, vL16))
        if l == 0:
            P.add(self.wq_addr(VQ))
            VQ2 = (vMean, vRl, vDummy)
            wqg = self.wq_dma(range(4), VQ) + self.wq_dma(range(4, 7), VQ2)
            self.tok_wq = tok(wqg[-1][-1])
        P('s_add_u32 s%d, s%d, %d' % (sT1, sBlk, X1_OFF + 28672))
        P.add(self.poll_check(sT4))
        P.add(self.stamp('x1_seen'))
        xd, tb = [], []
        for b in range(4):
            gs = []
            for i in range(7):
                g = []
                if i % 4 == 0:
                    g += mk('s_add_u32 m0, s%d, %d\ns_add_u32 s%d, s%d, %d' % (sT5, b * L_XB + 1024 * i, sT0, sT5, X1_OFF + b * 32768 + 1024 * i))
                g += mk('buffer_load_dwordx4 v%d, %s, s%d offen offset:%d sc1 lds' % (vL16, self.srd(SRD_CL), sT0, 1024 * (i % 4)))
                gs.append(g)
            tb.append(tok(gs[-1][-1]))
            xd.append(gs)
        P.add(flat(xd[0]))
        stl = [mk('buffer_load_dwordx4 %s, v%d, %s, s%d offen offset:%d sc1' % (v(RING + 4 * i, 4), vL16, self.srd(SRD_CL), sT1, 1024 * i)) for i in range(4)]
        st0 = mk('v_add_f32 v%d, v%d, v%d' % (T, RING, RING + 1))
        for i in range(2, 14):
            st0 += mk('v_add_f32 v%d, v%d, v%d' % (T, T, RING + i))
        st0 += self.stats_finish(T, True)
        st0 += mk('\n'.join(['v_rcp_f32 v%d, v%d' % (KK + 2, vRl),
                             'v_mul_f32 v%d, s%d, v%d' % (KK, sC0, vRl),
                             'v_mul_f32 v%d, v%d, v%d' % (T, vRl, vRl),
                             'v_mul_f32 v%d, s%d, v%d' % (KK + 1, sC1, vRl),
                             'v_mul_f32 v%d, v%d, v%d' % (KK + 1, KK + 1, T),
                             'v_sub_f32 v%d, 0, v%d' % (vMean, vMean),
                             'v_cndmask_b32 v%d, v%d, v%d, s[%d:%d]' % (vMean, vMean, KK + 2, sHalf, sHalf + 1)]))
        st0 += self.split_act(T + 2, vMean, T)
        st0 += mk('s_lshl_b32 s%d, s%d, 10\nv_add_u32 v%d, s%d, v%d\nv_add_u32 v%d, s%d, v%d' % (sT4, sW, vT, sT4, vE8, vT + 1, sT4, vK16))
        st0 += mk('ds_write_b64 v%d, %s\nds_write_b128 v%d, %s' % (vT, v(T + 2, 2), vT + 1, v(KK, 4)))
        rdx = lambda b, k: mk('ds_read_b128 %s, v%d offset:%d' % (v(XB + 4 * (k % NB), 4), vL16 if b < 2 else vX2, (b & 1) * L_XB + 1024 * k))

        def hpub(b):
            pre = mk('s_add_u32 s%d, s%d, %d' % (sT4, sHst, b * 114688))
            st = self.stores(['buffer_store_dwordx4 %s, v%d, %s, s%d offen offset:%d' % (v(H + 4 * j, 4), vL16, self.srd(SRD_CL), sT4, 1024 * j) for j in range(2)])
            return pre + st, tok(st[-1])
        hflag = lambda b, tk: self.flag([tk], sFoMy, FH - FO + 512 * b)
        extrd = lambda b, q: mk('ds_read_b128 %s, v%d offset:%d' % (v(KK, 4), vK16, 1024 * b) if q else 'ds_read_b64 %s, v%d offset:%d' % (v(EXB, 2), vE8, 1024 * b))
        extmf = lambda b: mfma(ACC[b & 1], v(WEX, 4), v(EXB, 4))
        hreg = [RING + 4 * (i % 16) for i in range(56)]

        def hload(i):
            blk, kap = divmod(i, 28)
            g = []
            if kap % 2 == 0:
                g += mk('s_add_u32 s%d, s%d, %d' % (sHs, (sHE, sHL)[blk], 8192 * (kap // 2)))
            g += mk('buffer_load_dwordx4 %s, v%d, %s, s%d offen offset:%d sc1' % (v(hreg[i], 4), vL16, self.srd(SRD_CL), sHs, 1024 * (kap % 2)))
            return g
        pend = None
        npre = o['npre']
        P.add([wait_tok(tb[0])])
        P('s_barrier')
        P.add(self.stamp('s3_b0'))
        job = [(b, k) for b in range(4) for k in range(28)]
        rdj = lambda j: mk('ds_read_b128 %s, v%d offset:%d' % (v(XB + 4 * (j % NB), 4), vL16 if job[j][0] < 2 else vX2, (job[j][0] & 1) * L_XB + 1024 * job[j][1]))
        for j in range(NB):
            P.add(rdj(j))
        BAR = 28 - NB - 1
        for b in range(4):
            slots = []
            for k in range(28):
                j = 28 * b + k
                sl = mfma(ACC[b & 1], w1reg(k), v(XB + 4 * (j % NB), 4), k == 0)
                if k % 2 == 0:
                    also_waits_for(sl[0], v(XB + 4 * ((j + 1) % NB), 4))
                if k == BAR and b < 3:
                    sl += [wait_tok(tb[b + 1])] + (mk('s_waitcnt lgkmcnt(0)') if b == 0 else []) + mk('s_barrier')
                if k % 2 == 1:
                    for jj in (j + NB - 1, j + NB):
                        if jj < 112:
                            sl += rdj(jj)
                if k == 25:
                    sl += extrd(b, 0)
                slots.append(sl)
            slots[27] += extmf(b)
            if b == 0:
                for i, g in enumerate(stl + xd[1] + xd[2][:3]):
                    slots[(3 * i) // 2] += g
                P.add(spread(slots, st0, start=7, end=BAR))
                continue
            if b == 1:
                for i, g in enumerate(xd[2][3:] + xd[3]):
                    slots[2 * i] += g
            g = extrd(b - 1, 1) + self.gelu(ACC[(b - 1) & 1], KK, T, H)
            fp = o['flagpos']
            mid = []
            if pend is not None:
                mid += hflag(b - 2, pend)
            if l == 0 and b >= 2:
                wsel = {2: wqg[0:6], 3: wqg[6:12]}[b]
                for i, gg in enumerate(wsel):
                    slots[9 + 2 * i] += gg
                if b == 3:
                    slots[0] += mk('\n'.join('v_mov_b32 v%d, v%d' % (VQ2[p], VQ + p) for p in range(3)))
            st, pend = hpub(b - 1)
            fill = g[:fp] + mid + g[fp:] + st
            if b == 3:
                pe = o['pollE']
                fill = fill[:pe] + self.pa(14) + self.poll_issue(sPE) + fill[pe:]
                slots[-npre] += self.poll_check(sPE)
                for i in range(npre):
                    slots[-npre + i] += hload(i)
            if b == 1:
                P.add(self.stamp('s3_b1'))
            P.add(spread(slots, fill, start=1))
        P('s_barrier')
        P.add(self.stamp('s3_end'))
        AE, AL, RX, RS = 48, 16, 80, 104
        vEW, vER = vTr, vT + 3

        def exch_write(A):
            pre, L = [], []
            for n, (x, r) in enumerate(((2, A + 8), (1, A + 16), (3, A + 24))):
                va = (vEW, vT, vT + 1)[n]
                pre += mk('s_xor_b32 s%d, s%d, %d\ns_mul_i32 s%d, s%d, 6144\ns_add_u32 s%d, s%d, %d\nv_add_u32 v%d, s%d, v%d'
                          % (sT3, sW, x, sT3, sT3, sT3, sT3, L_EX + 2048 * (x - 1), va, sT3, vL16))
                L += mk('ds_write_b128 v%d, %s\nds_write_b128 v%d, %s offset:1024' % (va, v(r, 4), va, v(r + 4, 4)))
            pre += mk('s_mul_i32 s%d, s%d, 6144\ns_add_u32 s%d, s%d, %d\nv_add_u32 v%d, s%d, v%d' % (sT3, sW, sT3, sT3, L_EX, vER, sT3, vL16))
            return pre, L

        exch_read = lambda: flat(mk('ds_read_b128 %s, v%d offset:%d' % (v(RX + 4 * q, 4), vER, 1024 * q)) for q in range(6))

        def resid_load(sB):
            L = mk('s_lshl_b32 s%d, s%d, 15\ns_lshl_b32 s%d, s%d, 10\ns_add_u32 s%d, s%d, s%d\ns_add_u32 s%d, s%d, %d'
                   % (sT3, sB, sT4, sFe, sT3, sT3, sT4, sT3, sT3, X1_OFF))
            L += mk('buffer_load_dwordx4 %s, v%d, %s, s%d offen sc1' % (v(RS, 4), vL16, self.srd(SRD_CL), sT3))
            L += mk('v_lshrrev_b32 v%d, 5, v0\nv_lshlrev_b32 v%d, 3, v%d\ns_lshl_b32 s%d, s%d, 5' % (vT + 2, vT + 2, vT + 2, sT3, sFe))
            L += mk('buffer_load_dwordx2 %s, v%d, %s, s%d offen\nbuffer_load_dwordx2 %s, v%d, %s, s%d offen offset:16'
                    % (v(RS + 4, 2), vT + 2, self.srd(SRD_B2), sT3, v(RS + 6, 2), vT + 2, self.srd(SRD_B2), sT3))
            return L

        def resid_sum(D):
            L = self.unpack(D, RS, 4)
            for i in range(4):
                L += mk('v_lshlrev_b32 v%d, 16, v%d\nv_and_b32 v%d, 0xffff0000, v%d\nv_add_f32 v%d, v%d, v%d\nv_add_f32 v%d, v%d, v%d'
                        % (RS, RS + 4 + i, RS + 1, RS + 4 + i, D + 2 * i, D + 2 * i, RS, D + 2 * i + 1, D + 2 * i + 1, RS + 1))
            return L

        def addv(d, x, y, n, pk):
            if pk:
                return flat(mk('v_pk_add_f32 %s, %s, %s' % (v(d + i, 2), v(x + i, 2), v(y + i, 2))) for i in range(0, n, 2))
            return flat(mk('v_add_f32 v%d, v%d, v%d' % (d + i, x + i, y + i)) for i in range(n))

        def finish(A, sB, pk):
            pre = []
            L = addv(RX, RX, RX + 8, 8, pk) + addv(A, A, RX + 16, 8, pk) + addv(A, A, RX, 8, pk) + self.pack(A, A, 4)
            if l == 0:
                pre += mk('s_mul_i32 s%d, s%d, %d\ns_lshl_b32 s%d, s%d, 10\ns_add_u32 s%d, s%d, s%d\ns_add_u32 s%d, s%d, %d'
                          % (sT0, sB, XIN_BS, sT4, sFe, sT4, sT4, sT0, sT4, sT4, XIN_OFF))
                pre += mk('s_lshr_b32 s%d, s%d, 2\ns_lshl_b32 s%d, s%d, 10\ns_add_u32 s%d, s%d, s%d\ns_and_b32 s%d, s%d, 3\ns_lshl_b32 s%d, s%d, 2\ns_add_u32 s%d, s%d, s%d\ns_add_u32 s%d, s%d, %d'
                          % (sT1, sFe, sT1, sT1, sT0, sT0, sT1, sT1, sFe, sT1, sT1, sT0, sT0, sT1, sT0, sT0, XIN_OFF + 28672))
                pre += mk('s_lshl_b32 s%d, s%d, 5\ns_add_u32 s%d, s%d, s%d\ns_lshl_b32 s%d, s%d, 2\ns_add_u32 s%d, s%d, %d'
                          % (sT1, sB, sT1, sT1, sFe, sT1, sT1, sT1, sT1, FXIN))
                L += self.stores(['buffer_store_dwordx4 %s, v%d, %s, s%d offen' % (v(A, 4), vL16, self.srd(SRD_CL), sT4)])
                L += self.row_stats(A, 4, RX, RX + 2)
                st = self.stores(['buffer_store_dword v%d, v%d, %s, s%d offen' % (RX, vL16, self.srd(SRD_CL), sT0)])
                tk = tok(st[-1])
                L += st
                return pre, L, self.flag([tk], sT1)
            pre += mk('v_and_b32 v%d, 31, v0\nv_mul_u32_u24 v%d, 896, v%d\nv_lshrrev_b32 v%d, 5, v0\nv_lshl_add_u32 v%d, v%d, 4, v%d'
                      % (vPA, vPA, vPA, vPoll, vPA, vPoll, vPA))
            pre += mk('s_lshl_b32 s%d, s%d, 2\ns_add_u32 s%d, s%d, s%d\ns_mul_i32 s%d, s%d, %d\ns_lshl_b32 s%d, s%d, 5\ns_add_u32 s%d, s%d, s%d'
                      % (sT0, sC, sT0, sT0, sB, sT0, sT0, 32 * 896, sT4, sFe, sT0, sT0, sT4))
            L += mk('v_permlane32_swap_b32 v%d, v%d\nv_permlane32_swap_b32 v%d, v%d' % (A, A + 2, A + 1, A + 3))
            L += mk('buffer_store_dwordx4 %s, v%d, %s, s%d offen' % (v(A, 4), vPA, self.srd(SRD_OUT), sT0))
            return pre, L, []

        slots = [extrd(3, 1)]
        for i in range(56):
            blk, kap = divmod(i, 28)
            A = (AE, AL)[blk]
            for js in range(2):
                slots.append(mfma(A + 16 * js, a(W2A + 8 * kap + 4 * js, 4), v(hreg[i], 4), kap == 0))
        sidx = 0
        for i in range(npre, 56):
            lo = 2 * (i - 16) + 2 if i >= 16 else 0
            if i == 28:
                lo = max(lo, o['lateL'])
            sidx = max(sidx, lo)
            if i == 28:
                slots[sidx] += self.poll_check(sPL)
            slots[sidx] += hload(i)
            assert sidx <= 2 * i + 1 - 6
            sidx += 1 if 2 * (i + 1) + 1 - sidx - 2 < o['lead'] else 2
        g = self.gelu(ACC[1], KK, T, H)
        fp = o['flagpos']
        st, p3 = hpub(3)
        fill = g[:fp] + hflag(2, pend) + g[fp:] + st
        ge = o['g3end']
        slots[ge + 10] += hflag(3, p3)
        slots[o['pollL']] += self.poll_issue(sPL)
        slots[ge + 2] += resid_load(sEb)
        if l == 0:
            for i, gg in enumerate(wqg[12:]):
                slots[o['wqlate'] + 2 * i] += gg
        P.add(spread(slots[:ge], fill, start=2))
        pre, wr = exch_write(AE)
        P.add(spread(slots[ge:57], resid_sum(RX + 16) + pre, start=14))
        P.add(self.stamp('s4_E'))
        late = slots[57:]
        f1 = addv(AE, AE, RX + 16, 8, False) + wr + resid_load(sLb) + mk('s_waitcnt lgkmcnt(0)\ns_barrier') + exch_read()
        pre, fin, fl = finish(AE, sEb, False)
        pre2, wr2 = exch_write(AL)
        pre3, fin3, fl3 = finish(AL, sLb, True)
        P.add(spread(late[:16], f1 + pre, start=2))
        P.add(spread(late[16:], fin + mk('s_barrier') + resid_sum(AE + 8) + fl + pre2 + pre3, start=2, end=36))
        P.add(self.stamp('s4_L'))
        P.add(wr2 + addv(AL, AL, AE + 8, 8, True) + mk('s_waitcnt lgkmcnt(0)\ns_barrier') + exch_read())
        P.add(fin3 + fl3)
        P.add(self.stamp('x2_pub'))

    def build(self):
        P = self.P
        self.prologue()
        for l in range(2):
            self.s1(l)
            if self.stop == 's1_%d' % l:
                break
            self.kvx(l)
            if self.stop == 'o_%d' % l:
                break
            lnext = 'L_layer%d' % (l + 1)
            if l == 0:
                lsk = P.newlabel('Lskipmlp')
                P.add([I('s_cmp_ge_u32 s%d, 14\ns_cbranch_scc1 %s' % (sM, lsk), kind='block')])
                self.ool.append('%s:\n%s\ns_waitcnt vmcnt(0) lgkmcnt(0)\ns_sleep 60\ns_branch %s' % (lsk, self.idle_work(), lnext))
            else:
                P.add([I('s_cmp_ge_u32 s%d, 14\ns_cbranch_scc1 L_fin' % sM, kind='block')])
            self.s2(l)
            if self.stop == 'x1_%d' % l:
                P.label(lnext)
                break
            self.mlp(l)
            P.label(lnext)
            if l == 0:
                P('s_add_u32 s%d, s%d, 0x100000\ns_add_u32 s%d, s%d, 0x100000' % (sKv, sKv, sKvMy, sKvMy))
            if self.stop == 'x2_%d' % l:
                break
        P.add([I('s_cmp_lg_u32 s2, 0\ns_cbranch_scc1 L_fin\ns_cmp_lg_u32 s%d, 0\ns_cbranch_scc1 L_fin' % sW, kind='block')])
        P('s_mov_b64 exec, 1\nbuffer_store_dword v%d, off, %s, 0 sc1\ns_mov_b64 exec, -1' % (vNonce, self.srd(SRD_WS)))
        P.label('L_fin')
        if self.stamps:
            P('s_lshl_b32 s%d, s2, 2\ns_add_u32 s%d, s%d, s%d\ns_lshl_b32 s%d, s%d, 8\ns_add_u32 s%d, s%d, %d' % (sT0, sT0, sT0, sW, sT0, sT0, sT0, sT0, WS_STAMP))
            P.add(self.stamp('end'))
            P('s_memrealtime s[%d:%d]\ns_waitcnt lgkmcnt(0)\nv_writelane_b32 v%d, s%d, 63' % (sStamp, sStamp + 1, vStamp, sStamp))
            P('v_writelane_b32 v%d, s%d, 61' % (vStamp, sSpin))
            P('v_lshlrev_b32 v%d, 2, v0\nbuffer_store_dword v%d, v%d, %s, s%d offen' % (vT, vStamp, vT, self.srd(SRD_WS), sT0))
        P.label('L_end')
        P('s_endpgm')
        body, L = finalize(P.L)
        self.final = L
        ool = '\n'.join('\n'.join(('    ' + t if not t.endswith(':') else t) for t in b.split('\n') if t.strip()) for b in self.ool)
        head = open('cdna_kernels/%s.s.ref' % KNAME[:-7]).read().split('\n')
        hdr = [h for h in head if h.startswith(';') and '@launch' not in h]
        txt = '\n'.join(hdr) + '\n; @launch grid=(256,1,1) block=(256,1,1) lds=%d\n' % LDS_BYTES
        txt += '.amdgcn_target "amdgcn-amd-amdhsa--gfx950"\n.text\n.globl %s\n.p2align 8\n.type %s,@function\n%s:\n' % (KNAME, KNAME, KNAME)
        txt += body + ool + '\nL_code_end:\n'
        txt += '''.section .rodata,"a"
.p2align 6
.amdhsa_kernel %s
  .amdhsa_next_free_vgpr 512
  .amdhsa_next_free_sgpr 102
  .amdhsa_accum_offset 256
  .amdhsa_group_segment_fixed_size 0
  .amdhsa_kernarg_size 88
  .amdhsa_user_sgpr_count 2
  .amdhsa_user_sgpr_kernarg_segment_ptr 1
  .amdhsa_system_sgpr_workgroup_id_x 1
.end_amdhsa_kernel
''' % KNAME
        return txt


if __name__ == '__main__':
    import argparse
    ap = argparse.ArgumentParser()
    ap.add_argument('-o', default='k.s')
    ap.add_argument('--stop', default=None)
    ap.add_argument('--stamps', action='store_true')
    ap.add_argument('opts', nargs='*')
    A = ap.parse_args()
    opt = {k: int(x) for k, x in (t.split('=') for t in A.opts)}
    g = Gen(stop=A.stop, stamps=A.stamps, **opt)
    open(A.o, 'w').write(g.build())
    if A.stamps:
        open(A.o + '.stamps', 'w').write('\n'.join(g.stamp_names))
    n = {}
    for x in g.final:
        n[x.kind] = n.get(x.kind, 0) + 1
    nops = sum(x.states for x in g.final if x.op == 's_nop')
    print('instructions', n, 'nop states', nops)
```

```python
import sys, struct
from asmgen import *

KNAME = 'interleave_layers__linear_attn_block__mixer_channel_mlp__prompt_kernel'


def f32(x):
    return '0x%08x' % struct.unpack('<I', struct.pack('<f', x))[0]


LOG2E = 1.4426950408889634
LN2 = 0.6931471805599453
MF = 'v_mfma_f32_32x32x16_bf16'

WS_XCC = 0x8000
WS_STAMP = 0x10000
WS_KVP = 0x200000
WS_CL = 0x400000
LOFF = 0xD5000
O_OFF, X1_OFF, H_OFF, XIN_OFF, FL_OFF = 0, 0x20000, 0x40000, 0xB0000, 0xD4000
XIN_BS = 36864
FO, FX1, FXIN, FH = FL_OFF, FL_OFF + 512, FL_OFF + 1024, FL_OFF + 1536

L_WQ = 0
L_XB = 28672
L_EX = 86016
L_XS = 86016
L_WO = 114688
L_KVS = 143616
L_KVB = L_KVS + 16384
L_CS = L_KVB + 2048
LDS_BYTES = 163840
assert L_CS + 768 <= LDS_BYTES

SRD_WQ, SRD_WO, SRD_W1, SRD_W2, SRD_X, SRD_OUT, SRD_B1, SRD_B2, SRD_CL, SRD_WS = range(4, 44, 4)
sC, sM, sW, sNonce, sSlow, sX, sSpin = 44, 45, 46, 47, 48, 49, 50
sT0, sT1, sT2, sT3, sT4, sT5 = 51, 52, 53, 54, 55, 56
sLn2, sXcc, sWi = 57, 58, 59
sN28, sHalf = 60, 62
sN0 = 64
sKA = 68
sEb, sLb, sC0, sC1, sHs, sFe = 68, 69, 70, 71, 72, 73
sBlk, sOst, sFo, sFoMy, sKv, sKvMy, sHE, sHL, sPE, sPL = 74, 75, 76, 77, 78, 79, 80, 81, 82, 83
sHst = 84
sRot = 85
sQ0, sQ1 = 86, 87
sStamp = 90
sPC = 92

vLane, vL16, vDummy, vTr, vNonce, vMean, vRl, vW1X, _w1x1, vPoll, vPA = range(0, 11)
vT = 11
vStamp = 15
W2A = 0
W1A = 224
W1V = 176


def w1reg(k):
    return a(W1A + 4 * k, 4) if k < 8 else v(W1V + 4 * (k - 8), 4)


def w1half(k, hh):
    return a(W1A + 4 * k + 2 * hh, 2) if k < 8 else v(W1V + 4 * (k - 8) + 2 * hh, 2)


def flat(LL):
    return [x for L in LL for x in L]


def mfma(D, A, B, first=False):
    return mk('%s %s, %s, %s, %s' % (MF, v(D, 16), A, B, '0' if first else v(D, 16)))


class Gen:
    def __init__(self, stop=None, stamps=False, **opt):
        self.P = Prog()
        self.ool = []
        self.stop = stop
        self.stamps = stamps
        self.nstamp = 0
        self.stamp_names = []
        self.probe = opt.pop('probe', None)
        self.seen = {}
        self.o = dict(kvdelay=10, pollE=75, flagpos=25, g3end=30, pollL=40, lateL=46, lead=12, look=6, pref=0, touch=1, codepf=1, rot=1, stnt=0, idlewq=1, reuse=1, npre=4, wqlate=84, pf0=1, w1e=14, wqrot=1)
        self.o.update(opt)

    def srd(self, r):
        return s(r, 4)

    def stamp(self, name):
        if self.probe is not None:
            self.seen[name] = self.seen.get(name, 0) + 1
            if self.probe == '%s#%d' % (name, self.seen[name]):
                return [I('s_memrealtime s[94:95]', kind='block', states=1)]
            return []
        if not self.stamps:
            return []
        i = self.nstamp
        self.nstamp += 1
        self.stamp_names.append(name)
        t = 's_memtime s[%d:%d]\ns_waitcnt lgkmcnt(0)\nv_writelane_b32 v%d, s%d, %d' % (sStamp, sStamp + 1, vStamp, sStamp, i)
        return [I(t, kind='block', dst=[], src=[], drain_lgkm=True, states=3)]

    def stores(self, lines):
        insts = mk('\n'.join(lines))
        src = [r for x in insts for r in x.src]
        wide = [r for x in insts for r in x.wide]
        ls, lb = self.P.newlabel('Lslow'), self.P.newlabel('Lback')
        txt = 's_cmp_lg_u32 s%d, 0\ns_cbranch_scc1 %s\n%s\n%s:' % (sSlow, ls, '\n'.join(lines), lb)
        self.ool.append('%s:\n%s\ns_branch %s' % (ls, '\n'.join(l + ' sc1' for l in lines), lb))
        return [I(txt, kind='block', src=src, nvm=len(lines), wide=wide, states=1, cost=8 + 4 * len(lines))]

    def flag(self, toks, soff, off=0):
        st = self.stores(['buffer_store_dword v%d, off, %s, s%d offset:%d' % (vNonce, self.srd(SRD_CL), soff, off)])[0]
        st.text = 's_mov_b64 exec, 1\n' + st.text + '\ns_mov_b64 exec, -1'
        st.cost += 8
        return [wait_tok(*toks), st]

    def poll_issue(self, soff):
        return mk('buffer_load_dword v%d, v%d, %s, s%d offen sc1' % (vPoll, vPA, self.srd(SRD_CL), soff))

    def poll_check(self, soff, sleep=0):
        ls, lb = self.P.newlabel('Lspin'), self.P.newlabel('Lgot')
        self.ool.append('\n'.join([
            '%s:' % ls,
            ('s_sleep %d' % sleep) if sleep else '',
            'buffer_load_dword v%d, v%d, %s, s%d offen sc1' % (vPoll, vPA, self.srd(SRD_CL), soff),
            's_add_u32 s%d, s%d, 1' % (sSpin, sSpin),
            's_cmp_gt_u32 s%d, 0x40000' % sSpin,
            's_cbranch_scc1 L_end',
            's_waitcnt vmcnt(0)',
            'v_cmp_ne_u32 vcc, s%d, v%d' % (sNonce, vPoll),
            's_cbranch_vccnz %s' % ls,
            's_branch %s' % lb]))
        c = mk('v_cmp_ne_u32 vcc, s%d, v%d' % (sNonce, vPoll))[0]
        return [I(c.text + '\ns_cbranch_vccnz %s\n%s:' % (ls, lb), kind='block', src=c.src, dst=c.dst, states=2, cost=8)]

    def pa(self, n, blocks=False):
        L = 'v_and_b32 v%d, %d, v0\n' % (vPA, 15 if n <= 16 else 31)
        if n not in (16, 32):
            L += 'v_min_u32 v%d, %d, v%d\n' % (vPA, n - 1, vPA)
        L += 'v_lshlrev_b32 v%d, 2, v%d\n' % (vPA, vPA)
        if blocks:
            L += 'v_lshrrev_b32 v%d, 4, v0\nv_lshl_add_u32 v%d, v%d, 7, v%d' % (vT + 3, vPA, vT + 3, vPA)
        return mk(L)

    def trbase(self, dst, RS, kh, add=0, xor16=None):
        t = vT
        L = ['v_lshrrev_b32 v%d, 5, v%d' % (dst, vLane),
             'v_mul_u32_u24 v%d, %d, v%d' % (dst, kh, dst),
             'v_bfe_u32 v%d, v%d, 2, 2' % (t, vLane),
             'v_add_u32 v%d, v%d, v%d' % (dst, dst, t),
             'v_mul_u32_u24 v%d, %d, v%d' % (dst, RS, dst),
             'v_bfe_u32 v%d, v%d, 4, 1' % (t, vLane)]
        if xor16 is not None:
            L.append('v_xor_b32 v%d, s%d, v%d' % (t, xor16, t))
        L += ['v_lshl_add_u32 v%d, v%d, 5, v%d' % (dst, t, dst),
              'v_and_b32 v%d, 3, v%d' % (t, vLane),
              'v_lshl_add_u32 v%d, v%d, 3, v%d' % (dst, t, dst)]
        if add:
            L.append('v_add_u32 v%d, %d, v%d' % (dst, add, dst))
        return mk('\n'.join(L))

    def frag_loads(self, dsts, srd, sbase, const0, stride=1024, flags='', st=sT0):
        out = []
        cur = None
        for i, d in enumerate(dsts):
            off = const0 + i * stride
            grp = []
            if cur is None or not (0 <= off - cur <= 4095):
                cur = off
                grp += mk('s_add_u32 s%d, s%d, %d' % (st, sbase, off))
            grp += mk('buffer_load_dwordx4 %s, v%d, %s, s%d offen offset:%d %s' % (d, vL16, self.srd(srd), st, off - cur, flags))
            out.append(grp)
        return out

    def stats_finish(self, acc, double_ln):
        t1, t2 = vT + 1, vT + 2
        L = ['v_mov_b32 v%d, v%d' % (t1, acc),
             'v_mov_b32 v%d, v%d' % (vMean, acc),
             'v_permlane32_swap_b32 v%d, v%d' % (vMean, t1),
             'v_mul_f32 v%d, %s, v%d' % (vMean, f32(1.0 / 448), vMean),
             'v_mul_f32 v%d, %s, v%d' % (t1, f32(1.0 / 448), t1),
             'v_fma_f32 v%d, -v%d, v%d, v%d' % (t1, vMean, vMean, t1),
             'v_max_f32 v%d, 0, v%d' % (t1, t1),
             'v_add_f32 v%d, %s, v%d' % (t2, f32(1e-5), t1),
             'v_rsq_f32 v%d, v%d' % (vRl, t2)]
        if double_ln:
            L += ['v_mul_f32 v%d, v%d, v%d' % (t2, vRl, vRl),
                  'v_fmaak_f32 v%d, v%d, v%d, %s' % (t1, t1, t2, f32(1e-5)),
                  'v_rsq_f32 v%d, v%d' % (t1, t1),
                  'v_mul_f32 v%d, v%d, v%d' % (vRl, vRl, t1)]
        else:
            L += ['v_mul_f32 v%d, %s, v%d' % (vRl, f32(LOG2E), vRl)]
        return mk('\n'.join(L))

    def split_act(self, d0, val, t):
        return mk('\n'.join([
            'v_cvt_pk_bf16_f32 v%d, v%d, v%d' % (d0 + 1, val, val),
            'v_and_b32 v%d, 0xffff0000, v%d' % (t, d0 + 1),
            'v_sub_f32 v%d, v%d, v%d' % (t, val, t),
            'v_cvt_pk_bf16_f32 v%d, v%d, v%d' % (d0, val, t),
            'v_and_b32 v%d, 0xffff, v%d' % (d0 + 1, d0 + 1),
            'v_cndmask_b32 v%d, v%d, 0, s[%d:%d]' % (d0 + 1, d0 + 1, sHalf, sHalf + 1)]))

    def split_w(self, d0, val, t):
        return mk('\n'.join([
            'v_cvt_pk_bf16_f32 v%d, v%d, v%d' % (d0, val, val),
            'v_and_b32 v%d, 0xffff0000, v%d' % (t, d0),
            'v_sub_f32 v%d, v%d, v%d' % (t, val, t),
            'v_cvt_pk_bf16_f32 v%d, v%d, 0' % (d0 + 1, t)]))

    def phi4(self, regs, R, T):
        L = []
        for i, r in enumerate(regs):
            L.append('v_mul_f32 v%d, v%d, v%d' % (r, r, R[i]))
        for i, r in enumerate(regs):
            L.append('v_exp_f32 v%d, v%d clamp' % (T + i, r))
            L.append('v_max_f32 v%d, 0, v%d' % (r, r))
        for i, r in enumerate(regs):
            L.append('v_fma_f32 v%d, v%d, s%d, v%d' % (r, r, sLn2, T + i))
        for i, r in enumerate(regs):
            L.append('v_add_f32 v%d, %s, v%d' % (r, f32(1e-6), r))
        return mk('\n'.join(L))

    def pack(self, dst, src, n):
        return mk('\n'.join('v_cvt_pk_bf16_f32 v%d, v%d, v%d' % (dst + i, src + 2 * i, src + 2 * i + 1) for i in range(n)))

    def unpack(self, dst, src, n):
        L = []
        for i in reversed(range(n)):
            L.append('v_and_b32 v%d, 0xffff0000, v%d' % (dst + 2 * i + 1, src + i))
            L.append('v_lshlrev_b32 v%d, 16, v%d' % (dst + 2 * i, src + i))
        return mk('\n'.join(L))

    def dots(self, regs, acc, ones, first):
        L = []
        for i, r in enumerate(regs):
            z = first and i == 0
            L.append('v_dot2_f32_bf16 v%d, v%d, v%d, %s' % (acc, r, ones, '0' if z else 'v%d' % acc))
            L.append('v_dot2_f32_bf16 v%d, v%d, v%d, %s' % (acc + 1, r, r, '0' if z else 'v%d' % (acc + 1)))
        return mk('\n'.join(L))

    def dots_end(self, acc):
        return mk('v_permlane32_swap_b32 v%d, v%d\nv_add_f32 v%d, v%d, v%d' % (acc, acc + 1, acc, acc, acc + 1))

    def row_stats(self, src, n, acc, ones):
        return mk('v_mov_b32 v%d, 0x3f803f80' % ones) + self.dots(range(src, src + n), acc, ones, True) + self.dots_end(acc)

    def wq_dma(self, groups, vq, rot=False):
        out = []
        for t in groups:
            for p in range(3):
                g = []
                if p == 0:
                    if rot:
                        g += mk('s_add_u32 s%d, s%d, %d\ns_cmp_ge_u32 s%d, 7\ns_cselect_b32 s%d, 7, 0\ns_sub_u32 s%d, s%d, s%d\ns_lshl_b32 s%d, s%d, 2\ns_add_u32 s%d, s%d, s%d'
                                % (sQ1, sRot, t, sQ1, sQ0, sQ1, sQ1, sQ0, sQ1, sQ1, sQ1, sQ1, sW))
                    else:
                        g += mk('s_add_u32 s%d, s%d, %d' % (sQ1, sW, 4 * t))
                    g += mk('s_mul_i32 s%d, s%d, %d\ns_mul_i32 s%d, s%d, 3072' % (sQ0, sQ1, 16 * 2688, sQ1, sQ1))
                g += mk('s_add_u32 m0, s%d, %d' % (sQ1, L_WQ + 1024 * p))
                g += mk('buffer_load_dwordx4 v%d, %s, s%d offen lds' % (vq[p] if isinstance(vq, tuple) else vq + p, self.srd(SRD_WQ), sQ0))
                out.append(g)
        return out

    def wq_addr(self, vq):
        L = ['s_mul_i32 s%d, s%d, 56' % (sT2, sM)]
        t, u = vT, vT + 1
        for p in range(3):
            d = vq + p
            L += ['v_add_u32 v%d, %d, v%d' % (t, 64 * p, vLane),
                  'v_mul_u32_u24 v%d, 0x1556, v%d' % (d, t),
                  'v_lshrrev_b32 v%d, 16, v%d' % (d, d),
                  'v_mul_u32_u24 v%d, 12, v%d' % (u, d),
                  'v_sub_u32 v%d, v%d, v%d' % (t, t, u),
                  'v_mul_u32_u24 v%d, 2688, v%d' % (d, d),
                  'v_lshrrev_b32 v%d, 2, v%d' % (u, t),
                  'v_mul_u32_u24 v%d, 896, v%d' % (u, u),
                  'v_add3_u32 v%d, v%d, v%d, s%d' % (d, d, u, sT2),
                  'v_and_b32 v%d, 3, v%d' % (t, t),
                  'v_lshl_add_u32 v%d, v%d, 4, v%d' % (d, t, d)]
        return mk('\n'.join(L))

    def touch(self, items, va):
        if not self.o['touch']:
            return []
        txt = ['v_lshlrev_b32 v%d, 7, v0' % va]
        cur = None
        n = 0
        for nl, srd, sg, c in items:
            if nl != cur:
                txt.append('s_mov_b64 exec, 0x%x' % ((1 << nl) - 1))
                cur = nl
            txt.append('s_add_u32 s%d, s%d, %d' % (sT2, sg, c) if sg is not None else 's_mov_b32 s%d, %d' % (sT2, c))
            txt.append('buffer_load_dword v%d, v%d, %s, s%d offen sc1' % (vDummy, va, self.srd(srd), sT2))
            n += 1
        txt.append('s_mov_b64 exec, -1')
        return [I('\n'.join(txt), kind='block', nvm=n, dst=[('v', va)], src=[('v', 0)], states=1, cost=12 * n)]

    def touch_attn(self, lo, va):
        pre = mk('s_lshr_b32 s%d, s%d, 2\ns_lshl_b32 s%d, s%d, 10\ns_add_u32 s%d, s%d, s%d' % (sT1, sM, sT1, sT1, sT1, sT1, sBlk))
        return pre + self.touch([(16, SRD_CL, sOst, lo), (16, SRD_CL, sOst, lo + X1_OFF), (8, SRD_CL, sT1, lo + X1_OFF + 28672),
                                 (28, SRD_CL, None, lo + FL_OFF)], va)

    def prefetch(self, va):
        nl = self.o['pref']
        if not nl:
            return []
        txt = 'v_lshlrev_b32 v%d, 7, v0\ns_mul_i32 s%d, s%d, %d\n' % (va, sT2, sWi, nl * 128)
        txt += 's_mov_b32 exec_lo, 0x%x\ns_mov_b32 exec_hi, 0x%x\n' % (((1 << nl) - 1) & 0xffffffff, ((1 << nl) - 1) >> 32)
        txt += 'buffer_load_dword v%d, v%d, %s, s%d offen\ns_mov_b64 exec, -1' % (vDummy, va, self.srd(SRD_W1), sT2)
        return [I(txt, kind='block', nvm=1, src=[('v', 0)], dst=[('v', va)])]

    def idle_work(self):
        va = vT
        l = self.P.newlabel('Lnowarm')
        T = ['s_cmp_lg_u32 s%d, 0' % sSlow, 's_cbranch_scc1 %s' % l,
             'v_lshlrev_b32 v%d, 7, v0' % va,
             's_and_b32 s%d, s%d, 1' % (sT0, sM), 's_lshl_b32 s%d, s%d, 2' % (sT0, sT0), 's_add_u32 s%d, s%d, s%d' % (sT0, sT0, sW)]
        ld = lambda srd, fl: 'buffer_load_dword v%d, v%d, %s, s%d offen %s' % (vDummy, va, self.srd(srd), sT2, fl)
        for i in range(7):
            T += ['s_lshl_b32 s%d, s%d, 13' % (sT2, sT0), 's_add_u32 s%d, s%d, %d' % (sT2, sT2, H_OFF + i * 65536), ld(SRD_CL, 'sc1')]
        if self.o['idlewq']:
            T += ['s_lshr_b32 s%d, s%d, 3' % (sT1, sC), 's_lshl_b32 s%d, s%d, 3' % (sT1, sT1), 's_add_u32 s%d, s%d, s%d' % (sT1, sT1, sT0)]
            for i in range(10):
                T += ['s_lshl_b32 s%d, s%d, 13' % (sT2, sT1), 's_add_u32 s%d, s%d, %d' % (sT2, sT2, i * 131072), ld(SRD_WQ, '')]
        for i in range(3):
            T += ['s_lshl_b32 s%d, s%d, 13' % (sT2, sT0), 's_add_u32 s%d, s%d, %d' % (sT2, sT2, XIN_OFF + i * 65536)]
            if i == 2:
                T += ['s_min_u32 s%d, s%d, %d' % (sT2, sT2, FL_OFF - 8192)]
            T += [ld(SRD_CL, 'sc1')]
        T += ['v_lshrrev_b32 v%d, 3, v0' % (va + 1), 'v_lshlrev_b32 v%d, 14, v%d' % (va + 1, va + 1), 'v_and_b32 v%d, 7, v0' % va,
              'v_lshl_add_u32 v%d, v%d, 7, v%d' % (va, va, va + 1),
              's_lshl_b32 s%d, s%d, 17' % (sT2, sT0), 's_lshl_b32 s%d, s%d, 10' % (sT1, sC), 's_add_u32 s%d, s%d, s%d' % (sT2, sT2, sT1),
              's_add_u32 s%d, s%d, %d' % (sT2, sT2, WS_KVP + 0x100000), ld(SRD_WS, 'sc1'), l + ':']
        return '\n'.join(T)

    def prologue(self):
        P = self.P
        o = self.o
        P('s_cmp_ge_u32 s2, 256\ns_cbranch_scc1 L_end')
        if self.probe is not None:
            P.add([I('s_memrealtime s[96:97]\ns_memrealtime s[94:95]', kind='block', states=1)])
        P('s_load_dwordx16 s[%d:%d], s[0:1], 0' % (sKA, sKA + 15))
        P('s_load_dwordx4 s[%d:%d], s[0:1], 64' % (sKA + 16, sKA + 19))
        P('s_load_dwordx2 s[%d:%d], s[0:1], 80' % (sKA + 20, sKA + 21))
        P('v_lshrrev_b32 v%d, 6, v0\nv_and_b32 v0, 63, v0\nv_readfirstlane_b32 s%d, v%d' % (vT, sW, vT))
        P('s_lshr_b32 s%d, s2, 3\ns_lshl_b32 s%d, s%d, 2\ns_add_u32 s%d, s%d, s%d' % (sM, sWi, sM, sWi, sWi, sW))
        if o['codepf']:
            P.add([I('s_getpc_b64 s[%d:%d]\nL_pc:' % (sPC, sPC + 1), kind='block', dst=[], states=1)])
            P('s_lshl_b32 s%d, s%d, 9\nv_lshlrev_b32 v%d, 7, v0\nv_add_u32 v%d, s%d, v%d' % (sT0, sWi, vT, vT, sT0, vT))
            P.add([I('v_min_u32 v%d, L_code_end-L_pc-4, v%d\ns_mov_b64 exec, 15\nglobal_load_dword v%d, v%d, s[%d:%d]\ns_mov_b64 exec, -1'
                     % (vT, vT, vDummy, vT, sPC, sPC + 1), kind='block', dst=[('v', vT)], src=[('v', vT)], nvm=1)])
        P('s_and_b32 s%d, s2, 7\ns_lshr_b32 s%d, s%d, 4\ns_lshl_b32 s%d, s%d, 3\ns_add_u32 s%d, s%d, s%d\ns_and_b32 s%d, s%d, 15'
          % (sC, sT0, sM, sT0, sT0, sC, sC, sT0, sM, sM))
        P('v_lshlrev_b32 v%d, 4, v0' % vL16)
        if self.stamps:
            P('v_mov_b32 v%d, 0' % vStamp)
            P.add(self.stamp('start'))
            P('s_memrealtime s[%d:%d]\ns_waitcnt lgkmcnt(0)\nv_writelane_b32 v%d, s%d, 62' % (sStamp, sStamp + 1, vStamp, sStamp))
        P('s_lshl_b32 s%d, s%d, 2\ns_add_u32 s%d, s%d, s%d\ns_mul_i32 s%d, s%d, %d' % (sX, sC, sX, sX, sW, sX, sX, 32 * 896))
        vq, vxb, vxh, vxa, vrd = 160, 163, 164, 165, 167
        P('v_lshrrev_b32 v%d, 5, v0\nv_and_b32 v%d, 31, v0\nv_xor_b32 v%d, v%d, v%d\nv_lshlrev_b32 v%d, 4, v%d\nv_mul_u32_u24 v%d, 896, v%d'
          % (vxh, vT, vxb, vT, vxh, vxb, vxb, vxh, vxh))
        ka = sKA

        def mksrd(r, p, size):
            P('s_mov_b32 s%d, s%d\ns_mov_b32 s%d, s%d\ns_mov_b32 s%d, %d\ns_mov_b32 s%d, 0x20000' % (r, p, r + 1, p + 1, r + 2, size, r + 3))
        P('s_lshl_b32 s%d, s%d, 14\ns_add_u32 s%d, s%d, %d' % (sT5, sW, sT5, sT5, L_XS))
        mksrd(SRD_X, ka + 0, 2048 * 896)

        def xdma(half):
            out = []
            for i in range(16):
                g = mk('s_add_u32 s%d, s%d, %d\ns_and_b32 s%d, s%d, 15' % (sT4, sM, i, sT4, sT4) if o['rot'] else 's_mov_b32 s%d, %d' % (sT4, i))
                g += mk('s_lshl_b32 s%d, s%d, 5\ns_and_b32 s%d, s%d, 0xf0\nv_xad_u32 v%d, v%d, s%d, v%d' % (sT0, sT4, sT0, sT0, vxa + (i & 1), vxb, sT0, vxh))
                g += mk('s_mul_i32 s%d, s%d, 1792\ns_add_u32 s%d, s%d, s%d\ns_lshl_b32 s%d, s%d, 10\ns_add_u32 m0, s%d, s%d' % (sT1, sT4, sT1, sT1, sX, sT4, sT4, sT4, sT5))
                g += mk('buffer_load_dwordx4 v%d, %s, s%d offen lds' % (vxa + (i & 1), self.srd(SRD_X), sT1))
                out.append(g)
            if half:
                out[0] = mk('v_add_u32 v%d, 512, v%d' % (vxh, vxh)) + out[0]
            return out
        mksrd(SRD_WQ, ka + 2, 448 * 2688)
        if o['pf0']:
            P('v_lshlrev_b32 v%d, 7, v0\ns_lshl_b32 s%d, s%d, 2\ns_add_u32 s%d, s%d, s%d\ns_mul_i32 s%d, s%d, %d\ns_mul_i32 s%d, s%d, %d\ns_add_u32 s%d, s%d, s%d\ns_mul_i32 s%d, s%d, %d'
              % (vxa, sT0, sM, sT0, sT0, sW, sT0, sT0, 14 * 128, sT1, sC, 128 * 896, sT0, sT0, sT1, sT1, sWi, 74 * 128))
            P.add([I('s_mov_b64 exec, 0x3fff\nbuffer_load_dword v%d, v%d, %s, s%d offen\ns_mov_b64 exec, -1\nbuffer_load_dword v%d, v%d, %s, s%d offen\n'
                     's_add_u32 s%d, s%d, 8192\ns_mov_b64 exec, 0x3ff\nbuffer_load_dword v%d, v%d, %s, s%d offen\ns_mov_b64 exec, -1'
                     % (vDummy, vxa, self.srd(SRD_X), sT0, vDummy, vxa, self.srd(SRD_WQ), sT1, sT1, sT1, vDummy, vxa, self.srd(SRD_WQ), sT1),
                     kind='block', nvm=3, src=[('v', vxa)])])
        body = [x.text for x in xdma(0)[0]]
        body[0] = 's_add_u32 s%d, s%d, s%d' % (sT4, sM, sT2) if o['rot'] else 's_mov_b32 s%d, s%d' % (sT4, sT2)
        loop = I('\n'.join(['s_mov_b32 s%d, 0' % sT2, 'L_xa:'] + body[:-1] + ['s_add_u32 s%d, s%d, 1' % (sT2, sT2), 's_cmp_lt_u32 s%d, 16' % sT2, body[-1],
                                                                            's_cbranch_scc1 L_xa']), kind='block', nvm=16, src=[('v', vxb), ('v', vxh)] + regs_of(s(SRD_X, 4)), dst=[('v', vxa)])
        tA = tok(loop)
        P.add([loop])
        P('s_load_dword s%d, s[%d:%d], 0' % (sNonce, ka + 20, ka + 21))
        P.add(self.wq_addr(vq))
        mksrd(SRD_OUT, ka + 16, 2048 * 896)
        P('s_and_b32 s%d, s%d, 3\ns_lshr_b32 s%d, s%d, 3\ns_lshl_b32 s%d, s%d, 2\ns_add_u32 s%d, s%d, s%d\ns_min_u32 s%d, s%d, 6'
          % (sRot, sM, sT0, sC, sT0, sT0, sRot, sRot, sT0, sRot, sRot))
        wq = self.wq_dma(range(7), vq, rot=o['wqrot'])
        self.tok_wq = tok(wq[-1][-1])
        P.add(flat(wq[:9]))
        mksrd(SRD_WO, ka + 4, 448 * 896)
        mksrd(SRD_W1, ka + 8, 448 * 3584)
        P('s_cmp_lt_u32 s%d, 14\ns_cselect_b32 s%d, s%d, 0' % (sM, SRD_W1 + 2, SRD_W1 + 2))
        mksrd(SRD_B1, ka + 10, 3584)
        mksrd(SRD_W2, ka + 12, 1792 * 896)
        mksrd(SRD_B2, ka + 14, 896)
        mksrd(SRD_WS, ka + 20, WS_CL)
        P('s_lshl_b32 s%d, s%d, 21\ns_add_u32 s%d, s%d, %d' % (sT0, sC, sT0, sT0, WS_CL))
        P('s_add_u32 s%d, s%d, s%d\ns_addc_u32 s%d, s%d, 0\ns_mov_b32 s%d, 0x200000\ns_mov_b32 s%d, 0x20000'
          % (SRD_CL, ka + 20, sT0, SRD_CL + 1, ka + 21, SRD_CL + 2, SRD_CL + 3))
        P('s_mov_b32 s%d, %s\ns_mov_b32 s%d, 0\ns_mov_b32 s%d, -1' % (sLn2, f32(LN2), sHalf, sHalf + 1))
        P('s_mov_b32 s%d, 0x10000000\ns_mov_b32 s%d, 0x10000000\ns_mov_b32 s%d, 0' % (sN28, sN28 + 1, sSpin))
        P('s_getreg_b32 s%d, hwreg(HW_REG_XCC_ID, 0, 4)' % sXcc)
        P('s_and_b32 s%d, s%d, 1\ns_sub_u32 s%d, 3, s%d' % (sEb, sM, sLb, sEb))
        c0 = -2.0 * 0.7978845608028654 * LOG2E
        P('s_mov_b32 s%d, %s\ns_mov_b32 s%d, %s' % (sC0, f32(c0), sC1, f32(c0 * 0.044715)))
        P('s_lshr_b32 s%d, s%d, 1\ns_lshl_b32 s%d, s%d, 2\ns_and_b32 s%d, s%d, 1\ns_lshl_b32 s%d, s%d, 1\ns_add_u32 s%d, s%d, s%d\ns_lshr_b32 s%d, s%d, 1\ns_add_u32 s%d, s%d, s%d'
          % (sFe, sM, sFe, sFe, sT0, sW, sT0, sT0, sFe, sFe, sT0, sT0, sW, sFe, sFe, sT0))
        P('s_lshl_b32 s%d, s%d, 15\ns_lshl_b32 s%d, s%d, 11\ns_add_u32 s%d, s%d, s%d' % (sBlk, sW, sOst, sM, sOst, sOst, sBlk))
        P('s_lshl_b32 s%d, s%d, 7\ns_add_u32 s%d, s%d, %d\ns_lshl_b32 s%d, s%d, 2\ns_add_u32 s%d, s%d, s%d' % (sFo, sW, sFo, sFo, FL_OFF, sT0, sM, sFoMy, sFo, sT0))
        P('s_lshl_b32 s%d, s%d, 2\ns_add_u32 s%d, s%d, s%d\ns_lshl_b32 s%d, s%d, 14\ns_add_u32 s%d, s%d, %d' % (sT1, sM, sT1, sT1, sW, sKv, sT1, sKv, sKv, WS_KVP))
        P('s_lshl_b32 s%d, s%d, 10\ns_add_u32 s%d, s%d, s%d' % (sKvMy, sC, sKvMy, sKvMy, sKv))
        P('s_lshl_b32 s%d, s%d, 11\ns_add_u32 s%d, s%d, %d' % (sHst, sT1, sHst, sHst, H_OFF))
        P('s_lshl_b32 s%d, s%d, 11\ns_add_u32 s%d, s%d, %d' % (sT1, sW, sT1, sT1, H_OFF))
        P('s_mul_i32 s%d, s%d, 114688\ns_add_u32 s%d, s%d, s%d\ns_mul_i32 s%d, s%d, 114688\ns_add_u32 s%d, s%d, s%d' % (sHE, sEb, sHE, sHE, sT1, sHL, sLb, sHL, sHL, sT1))
        P('s_lshl_b32 s%d, s%d, 9\ns_add_u32 s%d, s%d, s%d\ns_add_u32 s%d, s%d, %d' % (sPE, sEb, sPE, sPE, sFo, sPE, sPE, FH - FL_OFF))
        P('s_lshl_b32 s%d, s%d, 9\ns_add_u32 s%d, s%d, s%d\ns_add_u32 s%d, s%d, %d' % (sPL, sLb, sPL, sPL, sFo, sPL, sPL, FH - FL_OFF))
        self.xreg0 = xr = [16 + 4 * i if i < 20 else 176 + 4 * (i - 20) for i in range(28)]
        P('v_and_b32 v%d, 15, v0\nv_lshrrev_b32 v%d, 5, v0\nv_xor_b32 v%d, v%d, v%d\nv_lshlrev_b32 v%d, 4, v%d\nv_and_b32 v%d, 31, v0\nv_lshl_add_u32 v%d, v%d, 9, v%d\nv_add_u32 v%d, s%d, v%d'
          % (vT, vrd, vrd, vrd, vT, vrd, vrd, vT, vrd, vT, vrd, vrd, sT5, vrd))
        xrd = lambda k: mk('v_xor_b32 v%d, %d, v%d\nds_read_b128 %s, v%d' % (vrd + 1 + (k & 1), 32 * (k & 15), vrd, v(xr[k], 4), vrd + 1 + (k & 1)))
        P.add(self.stamp('issued'))
        P.add([wait_tok(tA)])
        P.add(self.stamp('xA'))
        for k in range(16):
            P.add(xrd(k))
        vS, vOne = vT + 2, vT + 1
        P('v_mov_b32 v%d, 0x3f803f80\ns_waitcnt lgkmcnt(0)' % vOne)
        xb = xdma(1)
        tB = tok(xb[-1][-1])
        d = self.dots([xr[k] + i for k in range(16) for i in range(4)], vS, vOne, True)
        P.add(spread(xb + wq[9:], d))
        P('s_add_u32 s%d, s%d, 0x01010101' % (sNonce, sNonce))
        for k in range(4):
            P('s_bfe_u32 s%d, s%d, 0x%x' % (sN0 + k, sNonce, (8 << 16) | (8 * k)))
        P('v_mov_b32 v%d, s%d' % (vNonce, sNonce))
        P('s_lshl_b32 s%d, s%d, 4\ns_add_u32 s%d, s%d, s%d\ns_lshl_b32 s%d, s%d, 7\ns_add_u32 s%d, s%d, %d'
          % (sT2, sC, sT2, sT2, sM, sT2, sT2, sT2, sT2, WS_XCC))
        P('s_add_u32 s%d, s%d, s%d\nv_mov_b32 v%d, s%d\ns_mov_b64 exec, 1' % (sT3, sNonce, sXcc, vT, sT3))
        P('buffer_store_dword v%d, off, %s, s%d sc1' % (vT, self.srd(SRD_WS), sT2))
        P('s_mov_b64 exec, -1')
        P.add(self.stamp('issued2'))
        P.add([wait_tok(tB)])
        P.add(self.stamp('xB'))
        for k in range(16, 28):
            P.add(xrd(k))
        P.add(self.dots([xr[k] + i for k in range(16, 28) for i in range(4)], vS, vOne, False) + self.dots_end(vS))

    def s1(self, l):
        P = self.P
        o = self.o
        AK, AV, AQ, WB, SB = 96, 112, 128, 144, 160
        RLB, XE = SB, SB + 8
        NB = 4
        vS = vT + 2
        P.comment('==== layer %d : S1' % l)
        d2 = 4 * 192 if l == 0 else 8 * 192
        fin = self.stats_finish(vS, False)
        fin += mk('s_lshl_b32 s%d, s%d, 12\ns_add_u32 s%d, s%d, %d' % (sT4, sW, sT4, sT4, L_KVS))
        bounce = mk('v_and_b32 v%d, 31, v0\nv_lshl_add_u32 v%d, v%d, 2, s%d\nds_write_b32 v%d, v%d' % (vT + 1, vT + 1, vT + 1, sT4, vT + 1, vRl))
        if l == 1:
            fin += bounce
        fin += mk('v_sub_f32 v%d, 0, v%d' % (vMean, vMean)) + self.split_act(XE, vMean, vT)
        fin += mk('v_cndmask_b32 v%d, v%d, 0, s[%d:%d]\nv_mov_b32 v%d, 0\nv_mov_b32 v%d, 0' % (XE, XE, sHalf, sHalf + 1, XE + 2, XE + 3))
        if l == 0:
            xreg = self.xreg0
            P.add(fin)
            P.add(self.trbase(vTr, 192, 8, add=L_WQ))
            P.add([wait_tok(self.tok_wq)])
            P('s_barrier')
            P.add(self.stamp('wq_ready'))
            P.add(bounce)
            vo, vb = RLB, RLB + 4
            P('\n'.join('v_mov_b32 v%d, 0x3f803f80' % (vo + i) for i in range(4)))
            P('s_mul_i32 s%d, s%d, %d\nv_add_u32 v%d, s%d, v%d' % (sT0, sW, 7 * 3072, vb, sT0, vTr))
            cj = [(t, k) for k in range(7) for t in range(3)]
            rd = lambda j: mk('ds_read_b64_tr_b16 %s, v%d offset:%d\nds_read_b64_tr_b16 %s, v%d offset:%d' % (
                v(WB + 4 * (j % NB), 2), vb, cj[j][1] * 3072 + 64 * cj[j][0],
                v(WB + 4 * (j % NB) + 2, 2), vb, cj[j][1] * 3072 + 64 * cj[j][0] + d2))
            for j in range(NB):
                P.add(rd(j))
            wo = [self.touch([(8, SRD_WS, sKvMy, 0)], vT) + self.touch_attn(0, vT)] + self.w1_early()
            for j, (t, k) in enumerate(cj):
                acc = (AQ, AK, AV)[t]
                P.add(mfma(acc, v(vo, 4), v(WB + 4 * (j % NB), 4), k == 0))
                if j + NB < len(cj):
                    P.add(rd(j + NB))
                if j < len(wo):
                    P.add(wo[j])
            P('v_and_b32 v%d, 31, v0\nv_lshlrev_b32 v%d, 2, v%d\ns_mul_i32 s%d, s%d, 384\ns_add_u32 s%d, s%d, %d\nv_add_u32 v%d, s%d, v%d'
              % (vb, vb, vb, sT0, sW, sT0, sT0, L_KVB, vb, sT0, vb))
            for t in range(3):
                P('ds_write_b32 v%d, v%d offset:%d' % (vb, (AQ, AK, AV)[t], 128 * t))
            lds = []
        else:
            xreg = [16 + 4 * (i % 20) for i in range(28)]
            P.add(self.pa(28))
            P('s_add_u32 s%d, s%d, %d' % (sT4, sFo, FXIN - FL_OFF))
            P.add(self.poll_issue(sT4))
            P('s_mul_i32 s%d, s%d, %d' % (sT5, sW, XIN_BS))
            P.add(self.trbase(vTr, 192, 4, add=L_WQ))
            P.add([wait_tok(self.tok_wq)])
            P('s_barrier')
            lds = self.frag_loads([v(r, 4) for r in xreg], SRD_CL, sT5, XIN_OFF)
        jobs = []
        for k in range(28):
            jobs += [('k', k), ('v', k)] + ([('q', k)] if k < 8 else [])
        jobs += [('k', 'e'), ('v', 'e')]
        nmain = len(jobs)
        jobs += [('q', k) for k in range(8, 28)] + [('q', 'e')]
        vTr2, vCs = vT + 3, vPA

        def rd(j):
            t, k = jobs[j]
            b = WB + 4 * (j % NB)
            if k == 'e':
                return mk('ds_read_b64 %s, v%d offset:%d\nv_mov_b32 v%d, 0\nv_mov_b32 v%d, 0' % (v(b, 2), vCs, 256 * 'qkv'.index(t), b + 2, b + 3))
            base, off = (vTr, k * 3072) if k < 16 else (vTr2, (k - 16) * 3072)
            off += 64 * 'qkv'.index(t)
            return mk('ds_read_b64_tr_b16 %s, v%d offset:%d\nds_read_b64_tr_b16 %s, v%d offset:%d' % (v(b, 2), base, off, v(b + 2, 2), base, off + d2))
        P('v_add_u32 v%d, %d, v%d' % (vTr2, 16 * 3072, vTr))
        for j in range(NB):
            P.add(rd(j))
        if l == 1:
            P.add(self.poll_check(sT4))
            P.add(self.stamp('x2_seen'))
            P.add(flat(lds[:o['look']]))
        P('v_and_b32 v%d, 31, v0\nv_lshlrev_b32 v%d, 3, v%d\nv_add_u32 v%d, %d, v%d' % (vCs, vCs, vCs, vCs, L_CS, vCs))
        slots = []
        for j, (t, k) in enumerate(jobs):
            acc = {'q': AQ, 'k': AK, 'v': AV}[t]
            w = v(WB + 4 * (j % NB), 4)
            x = v(XE if k == 'e' else xreg[k], 4)
            A, B = (w, x) if t == 'q' else (x, w)
            sl = mfma(acc, A, B, k == 0)
            if j + NB < len(jobs):
                sl += rd(j + NB)
            slots.append(sl)
        if l == 0:
            vb = RLB
            ex = mk('s_waitcnt lgkmcnt(0)\ns_barrier')
            ex += mk('v_and_b32 v%d, 31, v0\nv_lshlrev_b32 v%d, 2, v%d\nv_add_u32 v%d, %d, v%d' % (vb, vb, vb, vb, L_KVB, vb))
            slots[20] += ex
            for t in range(3):
                r = vb + 2
                slots[21 + 6 * t] += mk('\n'.join('ds_read_b32 v%d, v%d offset:%d' % (r + ww, vb, 384 * ww + 128 * t) for ww in range(4)))
                ex = mk('v_add_f32 v%d, v%d, v%d\nv_add_f32 v%d, v%d, v%d\nv_add_f32 v%d, v%d, v%d' % (r, r, r + 1, r + 2, r + 2, r + 3, r, r, r + 2))
                slots[24 + 6 * t] += ex
                slots[25 + 6 * t] += self.split_w(r + 2, r, r + 1) + mk('ds_write_b64 v%d, %s offset:%d' % (vCs, v(r + 2, 2), 256 * t))
        else:
            n = o['look']
            for j in range(0, nmain, 2):
                if n < 28:
                    k_free = n - 20
                    assert k_free < 0 or j >= jobs.index(('q', k_free))
                    slots[j] += lds[n]
                    n += 1
            st = self.frag_loads([v(SB + 4 * (i % 4), 4) for i in range(7)], SRD_CL, sT5, XIN_OFF + 28672, st=sT1)
            for i in range(4):
                slots[25 + 2 * i] += st[i]
            ex = []
            for i in range(1, 16):
                ex += mk('v_add_f32 v%d, v%d, v%d' % (vS, vS if i > 1 else SB, SB + i))
            for i in range(0, 15, 3):
                slots[40 + i // 3] += ex[i:i + 3]
            for i in range(3):
                slots[45 + i] += st[4 + i]
            ex = flat(mk('v_add_f32 v%d, v%d, v%d' % (vS, vS, SB + i)) for i in range(12)) + fin
            per = (len(ex) + 8) // 9
            for i in range(9):
                slots[54 + i] += ex[i * per:(i + 1) * per]
        fill = mk('v_lshrrev_b32 v%d, 5, v0\nv_lshl_add_u32 v%d, v%d, 4, s%d' % (vT + 1, vT + 1, vT + 1, sT4))
        bc = lambda g: mk('ds_read_b128 %s, v%d offset:%d' % (v(RLB + 4 * (g & 1), 4), vT + 1, 32 * g))
        fill += bc(0) + bc(1)
        slots[nmain - 3] += fill
        fill = mk('v_mov_b32 v%d, 0x3f803f80' % vPoll)
        for g in range(4):
            R = [RLB + 4 * (g & 1) + i for i in range(4)]
            e = self.phi4([AK + 4 * g + i for i in range(4)], R, xreg[8])
            e2 = flat(mk('v_mul_f32 v%d, v%d, v%d' % (AV + 4 * g + i, AV + 4 * g + i, R[i])) for i in range(4))
            fill += e[:4] + e2
            if g + 2 < 4:
                fill += bc(g + 2)
            fill += e[4:]
            fill += self.pack(AK + 2 * g, AK + 4 * g, 2) + self.pack(AV + 2 * g, AV + 4 * g, 2)
            for i in range(2):
                fill += mk('v_cndmask_b32 v%d, v%d, v%d, s[%d:%d]' % (AV + 2 * g + i, AV + 2 * g + i, vPoll, sN28, sN28 + 1))
        fill += mk('v_add_u32 v%d, s%d, v%d' % (vT, sT4, vL16))
        fill += mk('s_lshl_b32 s%d, s%d, 10\ns_add_u32 s%d, s%d, %d\nv_add_u32 v%d, s%d, v%d' % (sT1, sW, sT1, sT1, L_KVS, vT + 1, sT1, vL16))
        fill += mk('v_mov_b32 v%d, 0xff' % (vT + 2))
        P.add(flat(slots[:nmain]))
        P.add(self.stamp('s1_kv_mfma'))
        P.add(spread(slots[nmain:], fill, start=1))
        DK = 16
        P.add(mfma(DK, v(AK, 4), v(AV, 4), True) + mfma(DK, v(AK + 4, 4), v(AV + 4, 4)))
        for q in range(4):
            P('ds_write_b128 v%d, %s offset:%d' % (vT, v(DK + 4 * q, 4), 1024 * q))
        P('s_waitcnt lgkmcnt(0)\ns_barrier')
        for ww in range(4):
            P('ds_read_b128 %s, v%d offset:%d' % (v(32 + 4 * ww, 4), vT + 1, 4096 * ww))
        for x, y in ((32, 36), (40, 44), (32, 40)):
            for i in (0, 2):
                P('v_pk_add_f32 %s, %s, %s' % (v(x + i, 2), v(x + i, 2), v(y + i, 2)))
        for i in range(4):
            P('v_bfi_b32 v%d, v%d, s%d, v%d' % (32 + i, vT + 2, sN0 + i, 32 + i))
        P('buffer_store_dwordx4 %s, v%d, %s, s%d offen sc1' % (v(32, 4), vL16, self.srd(SRD_WS), sKvMy))
        P.add(self.stamp('kv_pub'))
        if l == 0:
            P('s_lshl_b32 s%d, s%d, 11\ns_add_u32 s%d, s%d, %d' % (sT4, sC, sT4, sT4, WS_XCC))
            P('v_and_b32 v%d, 15, v0\nv_lshlrev_b32 v%d, 7, v%d' % (vPA, vPA, vPA))
        PQ = self.PQ = 104

        def qepi():
            L = []
            for g in range(4):
                L += self.phi4([AQ + 4 * g + i for i in range(4)], [vRl] * 4, 48) + self.pack(PQ + 2 * g, AQ + 4 * g, 2)
            for i in (6, 7):
                L += mk('v_cndmask_b32 v%d, v%d, 0, s[%d:%d]' % (PQ + i, PQ + i, sHalf, sHalf + 1))
            return L
        if l == 0:
            self.staging(qepi)
        else:
            P.add(qepi())

    V1A = 208

    def w1_early(self):
        v1a = self.V1A
        pre = mk('v_lshrrev_b32 v%d, 2, v0\nv_mul_u32_u24 v%d, 3584, v%d\nv_and_b32 v%d, 3, v0\nv_lshl_add_u32 v%d, v%d, 4, v%d'
                 % (v1a, v1a, v1a, vT, v1a, vT, v1a))
        pre += mk('s_lshl_b32 s%d, s%d, 2\ns_add_u32 s%d, s%d, s%d\ns_lshl_b32 s%d, s%d, 6\nv_add_u32 v%d, s%d, v%d' % (sT5, sM, sT5, sT5, sW, sT5, sT5, v1a, sT5, v1a))
        pre += mk('s_mul_i32 s%d, s%d, 14336\ns_add_u32 s%d, s%d, %d' % (sT3, sW, sT3, sT3, L_EX))
        out = [pre]
        for i in range(14):
            g = mk('s_add_u32 m0, s%d, %d\ns_mov_b32 s%d, %d' % (sT3, 1024 * i, sT2, i * 16 * 3584))
            g += mk('buffer_load_dwordx4 v%d, %s, s%d offen lds' % (v1a, self.srd(SRD_W1), sT2))
            out.append(g)
        self.tok_w1a = tok(out[-1][-1])
        return out

    def staging(self, qepi):
        P = self.P
        lskip, ljoin = P.newlabel('Lnostage'), P.newlabel('Lstaged')
        P.add([I('s_cmp_ge_u32 s%d, 14\ns_cbranch_scc1 %s' % (sM, lskip), kind='block')])
        txt, _ = finalize(mk('s_nop 7') + qepi())
        self.ool.append('%s:\n%s\ns_branch %s' % (lskip, '\n'.join(t.strip() for t in txt.split('\n')), ljoin))
        v1a, v2a, t0, t1, t2, vb, vwo = 112, 113, 114, 115, 116, 120, 121
        nt = ' nt' if self.o['stnt'] else ''
        NS = 10
        P('v_mov_b32 v%d, v%d\ns_mul_i32 s%d, s%d, %d' % (v1a, self.V1A, sQ1, sW, NS * 2048))
        P('v_lshrrev_b32 v%d, 3, v0\nv_mul_u32_u24 v%d, 896, v%d\nv_and_b32 v%d, 7, v0\nv_lshl_add_u32 v%d, v%d, 4, v%d'
          % (v2a, v2a, v2a, vT, v2a, vT, v2a))
        P('s_lshr_b32 s%d, s%d, 1\ns_lshl_b32 s%d, s%d, 7\ns_mul_i32 s%d, s%d, %d\ns_add_u32 s%d, s%d, s%d\nv_add_u32 v%d, s%d, v%d'
          % (sT0, sM, sT0, sT0, sT1, sW, 32 * 896, sT0, sT0, sT1, v2a, sT0, v2a))
        NU = 35

        def issue(u):
            out = []
            for i in range(2):
                if u < 7:
                    va, srd, src = v1a, SRD_W1, (14 + 2 * u + i) * 16 * 3584
                else:
                    kap = u - 7
                    va, srd, src = v2a, SRD_W2, (128 * (kap // 2) + 16 * (kap % 2) + 8 * i) * 896
                g = mk('s_add_u32 m0, s%d, %d\ns_mov_b32 s%d, %d' % (sQ1, (u % NS) * 2048 + 1024 * i, sQ0, src))
                g += mk('buffer_load_dwordx4 v%d, %s, s%d offen%s lds' % (va, self.srd(srd), sQ0, nt))
                out.append(g)
            return out, tok(out[-1][-1])

        def w1rd(k, va, o):
            return mk('ds_read_b64_tr_b16 %s, v%d offset:%d\nds_read_b64_tr_b16 %s, v%d offset:%d' % (w1half(k, 0), va, o, w1half(k, 1), va, o + 512))

        def consume(u):
            o = (u % NS) * 2048
            if u < 7:
                return w1rd(14 + 2 * u, t1, o) + w1rd(15 + 2 * u, t1, o + 1024)
            L = []
            for js in range(2):
                b = W2A + 8 * (u - 7) + 4 * js
                L += mk('ds_read_b64_tr_b16 %s, v%d offset:%d\nds_read_b64_tr_b16 %s, v%d offset:%d' % (a(b, 2), t2 + js, o, a(b + 2, 2), t2 + js, o + 1024))
            return L
        ad = self.trbase(t1, 64, 4) + mk('v_add_u32 v%d, s%d, v%d\nv_add_u32 v%d, s%d, v%d' % (t0, sT3, t1, t1, sQ1, t1))
        ad += mk('s_lshr_b32 s%d, s%d, 1' % (sT0, sW)) + self.trbase(t2, 128, 4, xor16=sT0) + mk('v_add_u32 v%d, s%d, v%d' % (t2, sQ1, t2))
        ad += mk('s_and_b32 s%d, s%d, 1\ns_lshl_b32 s%d, s%d, 6\ns_xor_b32 s%d, s%d, 64\nv_add_u32 v%d, s%d, v%d\nv_add_u32 v%d, s%d, v%d'
                 % (sT0, sW, sT0, sT0, sT1, sT0, t2 + 1, sT1, t2, t2, sT0, t2))
        ad += mk('v_and_b32 v%d, 31, v0\nv_lshlrev_b32 v%d, 1, v%d\nbuffer_load_ushort v%d, v%d, %s, s%d offen' % (vT, vT, vT, vb, vT, self.srd(SRD_B1), sT5))
        ad += mk('v_lshrrev_b32 v%d, 2, v0\nv_mul_u32_u24 v%d, 896, v%d\nv_and_b32 v%d, 3, v0\nv_lshl_add_u32 v%d, v%d, 4, v%d\ns_lshl_b32 s%d, s%d, 6\nv_add_u32 v%d, s%d, v%d'
                 % (vwo, vwo, vwo, vT, vwo, vT, vwo, sT2, sM, vwo, sT2, vwo))
        tk, first = [], []
        for u in range(NS - 1):
            g, t = issue(u)
            first += g
            tk.append(t)
        early = [wait_tok(self.tok_w1a)] + flat(w1rd(k, t0, 1024 * k) for k in range(14))
        P.add(spread(first, qepi() + ad + early))
        P('s_waitcnt lgkmcnt(0)\ns_barrier')
        wo = [mk('s_mul_i32 s%d, s%d, %d\ns_lshl_b32 s%d, s%d, 10\ns_add_u32 s%d, s%d, %d' % (sT2, sW, 16 * 896, sT3, sW, sT3, sT3, L_WO))]
        for t in range(7):
            wo.append(mk('s_add_u32 m0, s%d, %d\ns_add_u32 s%d, s%d, %d\nbuffer_load_dwordx4 v%d, %s, s%d offen lds' % (sT3, 4096 * t, sT0, sT2, t * 64 * 896, vwo, self.srd(SRD_WO), sT0)))
        last = I('s_mov_b32 s%d, %d\ns_mov_b32 m0, %d\ns_mov_b64 exec, 0xffff\nbuffer_load_dwordx4 v%d, %s, s%d offen lds\ns_mov_b64 exec, -1'
                 % (sT2, 448 * 896, L_WO + 28672, vwo, self.srd(SRD_WO), sT2), kind='block', nvm=1, src=[('v', vwo)])
        self.tok_wo = tok(last)
        wo.append([last])
        vo, D = 160, 128
        cs = [mk('\n'.join('v_mov_b32 v%d, 0x3f803f80' % (vo + i) for i in range(4)))]
        for k in range(0, 28, 2):
            cs.append(mfma(D, v(vo, 4), w1reg(k), k == 0) + mfma(D, v(vo, 4), w1reg(k + 1)))
        cs.append([])
        cs.append(self.split_w(vW1X, D, vT) + mk('v_lshl_or_b32 v%d, v%d, 16, v%d' % (vb, vb, vb))
                  + mk('v_cndmask_b32 v%d, v%d, v%d, s[%d:%d]\nv_cndmask_b32 v%d, v%d, 0, s[%d:%d]'
                       % (vW1X, vW1X, vb, sHalf, sHalf + 1, vW1X + 1, vW1X + 1, sHalf, sHalf + 1)))
        for u in range(NU):
            P.add([wait_tok(tk[u])] + consume(u))
            if u + NS - 1 < NU:
                if u:
                    P('s_waitcnt lgkmcnt(4)')
                g, t = issue(u + NS - 1)
                tk.append(t)
                P.add(flat(g))
            if 8 <= u < 8 + len(cs):
                P.add(cs[u - 8])
            if u >= NU - len(wo):
                P.add(wo[u - (NU - len(wo))])
        P.label(ljoin)
        P.add([I('s_nop 1', kind='block', states=2)])

    def kvx(self, l):
        P = self.P
        P.comment('==== layer %d : kv exchange' % l)
        if l == 0:
            lw = P.newlabel('Lxcc')
            P.label(lw)
            P.add([I('\n'.join([
                'buffer_load_dword v%d, v%d, %s, s%d offen sc1' % (vPoll, vPA, self.srd(SRD_WS), sT4),
                's_add_u32 s%d, s%d, 1' % (sSpin, sSpin),
                's_cmp_gt_u32 s%d, 0x40000' % sSpin,
                's_cbranch_scc1 L_end',
                's_waitcnt vmcnt(0)',
                'v_subrev_u32 v%d, s%d, v%d' % (vPoll, sNonce, vPoll),
                'v_cmp_lt_u32 vcc, 15, v%d' % vPoll,
                's_cbranch_vccnz %s' % lw,
                'v_cmp_ne_u32 vcc, s%d, v%d' % (sXcc, vPoll),
                's_cmp_lg_u64 vcc, 0',
                's_cselect_b32 s%d, 1, 0' % sSlow]), kind='block', src=[('v', vPA)], dst=[('v', vPoll), ('x', 'vcc')],
                drain_vm=True, states=1)])
        RES = 160
        if l == 0:
            P('v_and_b32 v%d, 31, v0\nv_mul_u32_u24 v%d, 896, v%d\nv_lshrrev_b32 v%d, 5, v0\nv_lshl_add_u32 v%d, v%d, 3, v%d'
              % (vT, vT, vT, vT + 1, vT, vT + 1, vT))
            P('s_lshl_b32 s%d, s%d, 6\ns_add_u32 s%d, s%d, s%d' % (sT0, sM, sT0, sT0, sX))
            for g in range(4):
                P('buffer_load_dwordx2 %s, v%d, %s, s%d offen offset:%d' % (v(RES + 2 * g, 2), vT, self.srd(SRD_X), sT0, 16 * g))
        else:
            P('s_lshl_b32 s%d, s%d, 11\ns_add_u32 s%d, s%d, s%d\ns_add_u32 s%d, s%d, %d' % (sT1, sM, sT0, sT5, sT1, sT0, sT0, XIN_OFF))
            for j in range(2):
                P('buffer_load_dwordx4 %s, v%d, %s, s%d offen offset:%d' % (v(RES + 4 * j, 4), vL16, self.srd(SRD_CL), sT0, 1024 * j))
            P('s_add_u32 s%d, s%d, 1\nv_mov_b32 v%d, s%d' % (sNonce, sNonce, vNonce, sNonce))
            if self.o['reuse']:
                P('s_mul_i32 s%d, s%d, %d' % (sT0, sSlow, LOFF))
            else:
                P('s_mov_b32 s%d, %d' % (sT0, LOFF))
            P('s_add_u32 s%d, s%d, s%d\ns_addc_u32 s%d, s%d, 0\ns_sub_u32 s%d, s%d, s%d' % (SRD_CL, SRD_CL, sT0, SRD_CL + 1, SRD_CL + 1, SRD_CL + 2, SRD_CL + 2, sT0))
            if self.o['kvdelay']:
                P('s_sleep %d' % self.o['kvdelay'])
        P('v_lshlrev_b32 v%d, 5, v0\nv_add_u32 v%d, %d, v%d\ns_lshl_b32 s%d, s%d, 3\nv_add_u32 v%d, s%d, v%d'
          % (vT + 2, vT + 2, L_KVB, vT + 2, sT0, sW, vT + 1, sT0, vT + 2))
        P.add(self.pa(16))
        P.add(self.trbase(vTr, 64, 4, add=L_WO))
        lsw, lre = P.newlabel('Lsweep'), P.newlabel('Lresweep')
        P.add(self.stamp('sweep_start'))
        P.label(lsw)
        B = 32
        P.add(flat(self.frag_loads([v(B + 4 * i, 4) for i in range(16)], SRD_WS, sKv, 0, flags='sc1')))
        bad, S = vT, 16
        P('v_mov_b32 v%d, 0' % bad)
        for i in range(16):
            for k in range(4):
                P('v_xor_b32 v%d, s%d, v%d' % (B + 4 * i + k, sN0 + k, B + 4 * i + k))
            for k in (0, 2):
                P('v_or3_b32 v%d, v%d, v%d, v%d' % (bad, B + 4 * i + k, B + 4 * i + k + 1, bad))
            if i >= 1:
                for k in (0, 2):
                    P('v_pk_add_f32 %s, %s, %s' % (v(S + k, 2), v((S if i > 1 else B) + k, 2), v(B + 4 * i + k, 2)))
        P('v_and_b32 v%d, 0xff, v%d\nv_cmp_ne_u32 vcc, 0, v%d' % (bad, bad, bad))
        P.add([I('s_cbranch_vccnz %s' % lre, kind='block', states=1)])
        self.ool.append('%s:\ns_sleep 6\ns_add_u32 s%d, s%d, 1\ns_cmp_gt_u32 s%d, 0x40000\ns_cbranch_scc1 L_end\ns_branch %s'
                        % (lre, sSpin, sSpin, sSpin, lsw))
        P.add(self.stamp('sweep_done'))
        P.add(self.pack(S, S, 2))
        P('ds_write_b64 v%d, %s' % (vT + 1, v(S, 2)))
        if l == 0:
            P.add([wait_tok(self.tok_wo)])
        P('s_waitcnt lgkmcnt(0)\ns_barrier')
        KF, D = 32, 16
        P('ds_read_b128 %s, v%d\nds_read_b128 %s, v%d offset:16' % (v(KF, 4), vT + 2, v(KF + 4, 4), vT + 2))
        P.add(mfma(D, v(KF, 4), v(self.PQ, 4), True) + mfma(D, v(KF + 4, 4), v(self.PQ + 4, 4)))
        t1, t2 = 40, 42
        P('v_mov_b32 v%d, v%d\nv_mov_b32 v%d, v%d\nv_permlane32_swap_b32 v%d, v%d' % (t1, D + 12, t2, D + 12, t1, t2))
        P('v_add_f32 v%d, %s, v%d\nv_rcp_f32 v%d, v%d\nv_mul_f32 v%d, s%d, v%d\nv_mul_f32 v%d, s%d, v%d' % (t2, f32(1e-6), t2, t2, t2, t1, sLn2, t2, t1 + 1, sLn2, t2))
        P('v_cndmask_b32 v%d, v%d, 0, s[%d:%d]\nv_cndmask_b32 v%d, v%d, 0, s[%d:%d]' % (t2, t1, sHalf, sHalf + 1, t2 + 1, t1, sHalf, sHalf + 1))
        for r in range(0, 16, 2):
            P('v_pk_mul_f32 %s, %s, %s' % (v(D + r, 2), v(D + r, 2), v(t1 if r < 12 else t2, 2)))
        P.add(self.pack(D, D, 8))
        st = self.stores(['buffer_store_dwordx4 %s, v%d, %s, s%d offen offset:%d' % (v(D + 4 * j, 4), vL16, self.srd(SRD_CL), sOst, 1024 * j) for j in range(2)])
        tk = tok(st[-1])
        P.add(st)
        P.add(self.flag([tk], sFoMy))
        P.add(self.stamp('o_pub'))

    def s2(self, l):
        P = self.P
        o = self.o
        P.comment('==== layer %d : S2' % l)
        ACC, OF, WB, RES = 16, 32, 144, 160
        NB = 4
        P.add(self.poll_issue(sFo))
        P.add(self.unpack(ACC, RES, 8))
        jobs = [(h, j) for h in range(16) for j in range(2)]
        rd = lambda i: mk('ds_read_b64_tr_b16 %s, v%d offset:%d\nds_read_b64_tr_b16 %s, v%d offset:%d' % (
            v(WB + 4 * (i % NB), 2), vTr, 1792 * jobs[i][0] + 1024 * jobs[i][1],
            v(WB + 4 * (i % NB) + 2, 2), vTr, 1792 * jobs[i][0] + 1024 * jobs[i][1] + 512))
        for i in range(NB):
            P.add(rd(i))
        P('s_add_u32 s%d, s%d, %d' % (sT4, sOst, X1_OFF))
        P('s_lshr_b32 s%d, s%d, 2\ns_lshl_b32 s%d, s%d, 10\ns_and_b32 s%d, s%d, 3\ns_lshl_b32 s%d, s%d, 2\ns_add_u32 s%d, s%d, s%d\ns_add_u32 s%d, s%d, s%d\ns_add_u32 s%d, s%d, %d'
          % (sT5, sM, sT5, sT5, sT1, sM, sT1, sT1, sT5, sT5, sT1, sT5, sT5, sBlk, sT5, sT5, X1_OFF + 28672))
        P.add(self.poll_check(sFo))
        P.add(self.stamp('o_seen'))
        oreg = [OF + 4 * (i % 28) for i in range(32)]
        lds = self.frag_loads([v(r, 4) for r in oreg], SRD_CL, sBlk, O_OFF, flags='sc1')
        n = o['look']
        P.add(flat(lds[:n]))
        for i in range(32):
            P.add(mfma(ACC, v(WB + 4 * (i % NB), 4), v(oreg[i], 4)))
            if i + n < 32:
                P.add(lds[i + n])
            if i + NB < 32:
                P.add(rd(i + NB))
        P.add(self.pa(14, blocks=True))
        P.add(self.pack(OF, ACC, 8))
        P.add(self.stores(['buffer_store_dwordx4 %s, v%d, %s, s%d offen offset:%d' % (v(OF + 4 * j, 4), vL16, self.srd(SRD_CL), sT4, 1024 * j) for j in range(2)]))
        P.add(self.row_stats(OF, 8, vT, vT + 2))
        st = self.stores(['buffer_store_dword v%d, v%d, %s, s%d offen' % (vT, vL16, self.srd(SRD_CL), sT5)])
        tk = tok(st[-1])
        P.add(st)
        P.add(self.flag([tk], sFoMy, FX1 - FO))
        P.add(self.stamp('x1_pub'))

    def gelu(self, acc, KK, T, H):
        L = []
        for g in range(4):
            rs = [acc + 4 * g + i for i in range(4)]
            for i, r in enumerate(rs):
                L.append('v_mul_f32 v%d, v%d, v%d' % (T + i, r, r))
            for i, r in enumerate(rs):
                L.append('v_fma_f32 v%d, v%d, v%d, v%d' % (T + i, T + i, KK + 1, KK))
            for i, r in enumerate(rs):
                L.append('v_mul_f32 v%d, v%d, v%d' % (T + i, T + i, r))
            for i, r in enumerate(rs):
                L.append('v_exp_f32 v%d, v%d' % (T + i, T + i))
            for i, r in enumerate(rs):
                L.append('v_fma_f32 v%d, v%d, v%d, v%d' % (T + i, T + i, KK + 2, KK + 2))
            for i, r in enumerate(rs):
                L.append('v_rcp_f32 v%d, v%d' % (T + i, T + i))
            for i, r in enumerate(rs):
                L.append('v_mul_f32 v%d, v%d, v%d' % (r, r, T + i))
            for i in range(2):
                L.append('v_cvt_pk_bf16_f32 v%d, v%d, v%d' % (H + 2 * g + i, rs[2 * i], rs[2 * i + 1]))
        return mk('\n'.join(L))

    def mlp(self, l):
        P = self.P
        o = self.o
        P.comment('==== layer %d : MLP' % l)
        ACC = (16, 32)
        XB, EXB, WEX, T, KK, H, VQ, RING = 48, 72, 76, 80, 84, 88, 96, 112
        NB = 6
        P('s_mov_b32 s%d, %d' % (sT4, FX1))
        P.add(self.poll_issue(sT4))
        P('s_mul_i32 s%d, s%d, 7168' % (sT5, sW))
        P('v_mov_b32 v%d, v%d\nv_mov_b32 v%d, v%d' % (WEX, vW1X, WEX + 1, vW1X + 1))
        P('\n'.join('v_mov_b32 v%d, 0' % r for r in (WEX + 2, WEX + 3, EXB + 2, EXB + 3)))
        vE8, vK16, vX2 = vTr, vT + 3, 100
        P('v_lshlrev_b32 v%d, 3, v0\nv_add_u32 v%d, %d, v%d' % (vE8, vE8, L_KVS, vE8))
        P('v_and_b32 v%d, 31, v0\nv_lshlrev_b32 v%d, 4, v%d\nv_add_u32 v%d, %d, v%d' % (vK16, vK16, vK16, vK16, L_KVS + 512, vK16))
        P('v_add_u32 v%d, %d, v%d' % (vX2, 2 * L_XB, vL16))
        if l == 0:
            P.add(self.wq_addr(VQ))
            VQ2 = (vMean, vRl, vDummy)
            wqg = self.wq_dma(range(4), VQ) + self.wq_dma(range(4, 7), VQ2)
            self.tok_wq = tok(wqg[-1][-1])
        P('s_add_u32 s%d, s%d, %d' % (sT1, sBlk, X1_OFF + 28672))
        P.add(self.poll_check(sT4))
        P.add(self.stamp('x1_seen'))
        xd, tb = [], []
        for b in range(4):
            gs = []
            for i in range(7):
                g = []
                if i % 4 == 0:
                    g += mk('s_add_u32 m0, s%d, %d\ns_add_u32 s%d, s%d, %d' % (sT5, b * L_XB + 1024 * i, sT0, sT5, X1_OFF + b * 32768 + 1024 * i))
                g += mk('buffer_load_dwordx4 v%d, %s, s%d offen offset:%d sc1 lds' % (vL16, self.srd(SRD_CL), sT0, 1024 * (i % 4)))
                gs.append(g)
            tb.append(tok(gs[-1][-1]))
            xd.append(gs)
        P.add(flat(xd[0]))
        stl = [mk('buffer_load_dwordx4 %s, v%d, %s, s%d offen offset:%d sc1' % (v(RING + 4 * i, 4), vL16, self.srd(SRD_CL), sT1, 1024 * i)) for i in range(4)]
        st0 = mk('v_add_f32 v%d, v%d, v%d' % (T, RING, RING + 1))
        for i in range(2, 14):
            st0 += mk('v_add_f32 v%d, v%d, v%d' % (T, T, RING + i))
        st0 += self.stats_finish(T, True)
        st0 += mk('\n'.join(['v_rcp_f32 v%d, v%d' % (KK + 2, vRl),
                             'v_mul_f32 v%d, s%d, v%d' % (KK, sC0, vRl),
                             'v_mul_f32 v%d, v%d, v%d' % (T, vRl, vRl),
                             'v_mul_f32 v%d, s%d, v%d' % (KK + 1, sC1, vRl),
                             'v_mul_f32 v%d, v%d, v%d' % (KK + 1, KK + 1, T),
                             'v_sub_f32 v%d, 0, v%d' % (vMean, vMean),
                             'v_cndmask_b32 v%d, v%d, v%d, s[%d:%d]' % (vMean, vMean, KK + 2, sHalf, sHalf + 1)]))
        st0 += self.split_act(T + 2, vMean, T)
        st0 += mk('s_lshl_b32 s%d, s%d, 10\nv_add_u32 v%d, s%d, v%d\nv_add_u32 v%d, s%d, v%d' % (sT4, sW, vT, sT4, vE8, vT + 1, sT4, vK16))
        st0 += mk('ds_write_b64 v%d, %s\nds_write_b128 v%d, %s' % (vT, v(T + 2, 2), vT + 1, v(KK, 4)))
        rdx = lambda b, k: mk('ds_read_b128 %s, v%d offset:%d' % (v(XB + 4 * (k % NB), 4), vL16 if b < 2 else vX2, (b & 1) * L_XB + 1024 * k))

        def hpub(b):
            pre = mk('s_add_u32 s%d, s%d, %d' % (sT4, sHst, b * 114688))
            st = self.stores(['buffer_store_dwordx4 %s, v%d, %s, s%d offen offset:%d' % (v(H + 4 * j, 4), vL16, self.srd(SRD_CL), sT4, 1024 * j) for j in range(2)])
            return pre + st, tok(st[-1])
        hflag = lambda b, tk: self.flag([tk], sFoMy, FH - FO + 512 * b)
        extrd = lambda b, q: mk('ds_read_b128 %s, v%d offset:%d' % (v(KK, 4), vK16, 1024 * b) if q else 'ds_read_b64 %s, v%d offset:%d' % (v(EXB, 2), vE8, 1024 * b))
        extmf = lambda b: mfma(ACC[b & 1], v(WEX, 4), v(EXB, 4))
        hreg = [RING + 4 * (i % 16) for i in range(56)]

        def hload(i):
            blk, kap = divmod(i, 28)
            g = []
            if kap % 2 == 0:
                g += mk('s_add_u32 s%d, s%d, %d' % (sHs, (sHE, sHL)[blk], 8192 * (kap // 2)))
            g += mk('buffer_load_dwordx4 %s, v%d, %s, s%d offen offset:%d sc1' % (v(hreg[i], 4), vL16, self.srd(SRD_CL), sHs, 1024 * (kap % 2)))
            return g
        pend = None
        npre = o['npre']
        P.add([wait_tok(tb[0])])
        P('s_barrier')
        P.add(self.stamp('s3_b0'))
        job = [(b, k) for b in range(4) for k in range(28)]
        rdj = lambda j: mk('ds_read_b128 %s, v%d offset:%d' % (v(XB + 4 * (j % NB), 4), vL16 if job[j][0] < 2 else vX2, (job[j][0] & 1) * L_XB + 1024 * job[j][1]))
        for j in range(NB):
            P.add(rdj(j))
        BAR = 28 - NB - 1
        for b in range(4):
            slots = []
            for k in range(28):
                j = 28 * b + k
                sl = mfma(ACC[b & 1], w1reg(k), v(XB + 4 * (j % NB), 4), k == 0)
                if k % 2 == 0:
                    also_waits_for(sl[0], v(XB + 4 * ((j + 1) % NB), 4))
                if k == BAR and b < 3:
                    sl += [wait_tok(tb[b + 1])] + (mk('s_waitcnt lgkmcnt(0)') if b == 0 else []) + mk('s_barrier')
                if k % 2 == 1:
                    for jj in (j + NB - 1, j + NB):
                        if jj < 112:
                            sl += rdj(jj)
                if k == 25:
                    sl += extrd(b, 0)
                slots.append(sl)
            slots[27] += extmf(b)
            if b == 0:
                for i, g in enumerate(stl + xd[1] + xd[2][:3]):
                    slots[(3 * i) // 2] += g
                P.add(spread(slots, st0, start=7, end=BAR))
                continue
            if b == 1:
                for i, g in enumerate(xd[2][3:] + xd[3]):
                    slots[2 * i] += g
            g = extrd(b - 1, 1) + self.gelu(ACC[(b - 1) & 1], KK, T, H)
            fp = o['flagpos']
            mid = []
            if pend is not None:
                mid += hflag(b - 2, pend)
            if l == 0 and b >= 2:
                wsel = {2: wqg[0:6], 3: wqg[6:12]}[b]
                for i, gg in enumerate(wsel):
                    slots[9 + 2 * i] += gg
                if b == 3:
                    slots[0] += mk('\n'.join('v_mov_b32 v%d, v%d' % (VQ2[p], VQ + p) for p in range(3)))
            st, pend = hpub(b - 1)
            fill = g[:fp] + mid + g[fp:] + st
            if b == 3:
                pe = o['pollE']
                fill = fill[:pe] + self.pa(14) + self.poll_issue(sPE) + fill[pe:]
                slots[-npre] += self.poll_check(sPE)
                for i in range(npre):
                    slots[-npre + i] += hload(i)
            if b == 1:
                P.add(self.stamp('s3_b1'))
            P.add(spread(slots, fill, start=1))
        P('s_barrier')
        P.add(self.stamp('s3_end'))
        AE, AL, RX, RS = 48, 16, 80, 104
        vEW, vER = vTr, vT + 3

        def exch_write(A):
            pre, L = [], []
            for n, (x, r) in enumerate(((2, A + 8), (1, A + 16), (3, A + 24))):
                va = (vEW, vT, vT + 1)[n]
                pre += mk('s_xor_b32 s%d, s%d, %d\ns_mul_i32 s%d, s%d, 6144\ns_add_u32 s%d, s%d, %d\nv_add_u32 v%d, s%d, v%d'
                          % (sT3, sW, x, sT3, sT3, sT3, sT3, L_EX + 2048 * (x - 1), va, sT3, vL16))
                L += mk('ds_write_b128 v%d, %s\nds_write_b128 v%d, %s offset:1024' % (va, v(r, 4), va, v(r + 4, 4)))
            pre += mk('s_mul_i32 s%d, s%d, 6144\ns_add_u32 s%d, s%d, %d\nv_add_u32 v%d, s%d, v%d' % (sT3, sW, sT3, sT3, L_EX, vER, sT3, vL16))
            return pre, L

        exch_read = lambda: flat(mk('ds_read_b128 %s, v%d offset:%d' % (v(RX + 4 * q, 4), vER, 1024 * q)) for q in range(6))

        def resid_load(sB):
            L = mk('s_lshl_b32 s%d, s%d, 15\ns_lshl_b32 s%d, s%d, 10\ns_add_u32 s%d, s%d, s%d\ns_add_u32 s%d, s%d, %d'
                   % (sT3, sB, sT4, sFe, sT3, sT3, sT4, sT3, sT3, X1_OFF))
            L += mk('buffer_load_dwordx4 %s, v%d, %s, s%d offen sc1' % (v(RS, 4), vL16, self.srd(SRD_CL), sT3))
            L += mk('v_lshrrev_b32 v%d, 5, v0\nv_lshlrev_b32 v%d, 3, v%d\ns_lshl_b32 s%d, s%d, 5' % (vT + 2, vT + 2, vT + 2, sT3, sFe))
            L += mk('buffer_load_dwordx2 %s, v%d, %s, s%d offen\nbuffer_load_dwordx2 %s, v%d, %s, s%d offen offset:16'
                    % (v(RS + 4, 2), vT + 2, self.srd(SRD_B2), sT3, v(RS + 6, 2), vT + 2, self.srd(SRD_B2), sT3))
            return L

        def resid_sum(D):
            L = self.unpack(D, RS, 4)
            for i in range(4):
                L += mk('v_lshlrev_b32 v%d, 16, v%d\nv_and_b32 v%d, 0xffff0000, v%d\nv_add_f32 v%d, v%d, v%d\nv_add_f32 v%d, v%d, v%d'
                        % (RS, RS + 4 + i, RS + 1, RS + 4 + i, D + 2 * i, D + 2 * i, RS, D + 2 * i + 1, D + 2 * i + 1, RS + 1))
            return L

        def addv(d, x, y, n, pk):
            if pk:
                return flat(mk('v_pk_add_f32 %s, %s, %s' % (v(d + i, 2), v(x + i, 2), v(y + i, 2))) for i in range(0, n, 2))
            return flat(mk('v_add_f32 v%d, v%d, v%d' % (d + i, x + i, y + i)) for i in range(n))

        def finish(A, sB, pk):
            pre = []
            L = addv(RX, RX, RX + 8, 8, pk) + addv(A, A, RX + 16, 8, pk) + addv(A, A, RX, 8, pk) + self.pack(A, A, 4)
            if l == 0:
                pre += mk('s_mul_i32 s%d, s%d, %d\ns_lshl_b32 s%d, s%d, 10\ns_add_u32 s%d, s%d, s%d\ns_add_u32 s%d, s%d, %d'
                          % (sT0, sB, XIN_BS, sT4, sFe, sT4, sT4, sT0, sT4, sT4, XIN_OFF))
                pre += mk('s_lshr_b32 s%d, s%d, 2\ns_lshl_b32 s%d, s%d, 10\ns_add_u32 s%d, s%d, s%d\ns_and_b32 s%d, s%d, 3\ns_lshl_b32 s%d, s%d, 2\ns_add_u32 s%d, s%d, s%d\ns_add_u32 s%d, s%d, %d'
                          % (sT1, sFe, sT1, sT1, sT0, sT0, sT1, sT1, sFe, sT1, sT1, sT0, sT0, sT1, sT0, sT0, XIN_OFF + 28672))
                pre += mk('s_lshl_b32 s%d, s%d, 5\ns_add_u32 s%d, s%d, s%d\ns_lshl_b32 s%d, s%d, 2\ns_add_u32 s%d, s%d, %d'
                          % (sT1, sB, sT1, sT1, sFe, sT1, sT1, sT1, sT1, FXIN))
                L += self.stores(['buffer_store_dwordx4 %s, v%d, %s, s%d offen' % (v(A, 4), vL16, self.srd(SRD_CL), sT4)])
                L += self.row_stats(A, 4, RX, RX + 2)
                st = self.stores(['buffer_store_dword v%d, v%d, %s, s%d offen' % (RX, vL16, self.srd(SRD_CL), sT0)])
                tk = tok(st[-1])
                L += st
                return pre, L, self.flag([tk], sT1)
            pre += mk('v_and_b32 v%d, 31, v0\nv_mul_u32_u24 v%d, 896, v%d\nv_lshrrev_b32 v%d, 5, v0\nv_lshl_add_u32 v%d, v%d, 4, v%d'
                      % (vPA, vPA, vPA, vPoll, vPA, vPoll, vPA))
            pre += mk('s_lshl_b32 s%d, s%d, 2\ns_add_u32 s%d, s%d, s%d\ns_mul_i32 s%d, s%d, %d\ns_lshl_b32 s%d, s%d, 5\ns_add_u32 s%d, s%d, s%d'
                      % (sT0, sC, sT0, sT0, sB, sT0, sT0, 32 * 896, sT4, sFe, sT0, sT0, sT4))
            L += mk('v_permlane32_swap_b32 v%d, v%d\nv_permlane32_swap_b32 v%d, v%d' % (A, A + 2, A + 1, A + 3))
            L += mk('buffer_store_dwordx4 %s, v%d, %s, s%d offen' % (v(A, 4), vPA, self.srd(SRD_OUT), sT0))
            return pre, L, []

        slots = [extrd(3, 1)]
        for i in range(56):
            blk, kap = divmod(i, 28)
            A = (AE, AL)[blk]
            for js in range(2):
                slots.append(mfma(A + 16 * js, a(W2A + 8 * kap + 4 * js, 4), v(hreg[i], 4), kap == 0))
        sidx = 0
        for i in range(npre, 56):
            lo = 2 * (i - 16) + 2 if i >= 16 else 0
            if i == 28:
                lo = max(lo, o['lateL'])
            sidx = max(sidx, lo)
            if i == 28:
                slots[sidx] += self.poll_check(sPL)
            slots[sidx] += hload(i)
            assert sidx <= 2 * i + 1 - 6
            sidx += 1 if 2 * (i + 1) + 1 - sidx - 2 < o['lead'] else 2
        g = self.gelu(ACC[1], KK, T, H)
        fp = o['flagpos']
        st, p3 = hpub(3)
        fill = g[:fp] + hflag(2, pend) + g[fp:] + st
        ge = o['g3end']
        slots[ge + 10] += hflag(3, p3)
        slots[o['pollL']] += self.poll_issue(sPL)
        slots[ge + 2] += resid_load(sEb)
        if l == 0:
            for i, gg in enumerate(wqg[12:]):
                slots[o['wqlate'] + 2 * i] += gg
        P.add(spread(slots[:ge], fill, start=2))
        pre, wr = exch_write(AE)
        P.add(spread(slots[ge:57], resid_sum(RX + 16) + pre, start=14))
        P.add(self.stamp('s4_E'))
        late = slots[57:]
        f1 = addv(AE, AE, RX + 16, 8, False) + wr + resid_load(sLb) + mk('s_waitcnt lgkmcnt(0)\ns_barrier') + exch_read()
        pre, fin, fl = finish(AE, sEb, False)
        pre2, wr2 = exch_write(AL)
        pre3, fin3, fl3 = finish(AL, sLb, True)
        P.add(spread(late[:16], f1 + pre, start=2))
        P.add(spread(late[16:], fin + mk('s_barrier') + resid_sum(AE + 8) + fl + pre2 + pre3, start=2, end=36))
        P.add(self.stamp('s4_L'))
        P.add(wr2 + addv(AL, AL, AE + 8, 8, True) + mk('s_waitcnt lgkmcnt(0)\ns_barrier') + exch_read())
        P.add(fin3 + fl3)
        P.add(self.stamp('x2_pub'))

    def build(self):
        P = self.P
        self.prologue()
        for l in range(2):
            self.s1(l)
            if self.stop == 's1_%d' % l:
                break
            self.kvx(l)
            if self.stop == 'o_%d' % l:
                break
            lnext = 'L_layer%d' % (l + 1)
            if l == 0:
                lsk = P.newlabel('Lskipmlp')
                P.add([I('s_cmp_ge_u32 s%d, 14\ns_cbranch_scc1 %s' % (sM, lsk), kind='block')])
                self.ool.append('%s:\n%s\ns_waitcnt vmcnt(0) lgkmcnt(0)\ns_sleep 60\ns_branch %s' % (lsk, self.idle_work(), lnext))
            else:
                P.add([I('s_cmp_ge_u32 s%d, 14\ns_cbranch_scc1 L_fin' % sM, kind='block')])
            self.s2(l)
            if self.stop == 'x1_%d' % l:
                P.label(lnext)
                break
            self.mlp(l)
            P.label(lnext)
            if l == 0:
                P('s_add_u32 s%d, s%d, 0x100000\ns_add_u32 s%d, s%d, 0x100000' % (sKv, sKv, sKvMy, sKvMy))
            if self.stop == 'x2_%d' % l:
                break
        P.add([I('s_cmp_lg_u32 s2, 0\ns_cbranch_scc1 L_fin\ns_cmp_lg_u32 s%d, 0\ns_cbranch_scc1 L_fin' % sW, kind='block')])
        P('s_mov_b64 exec, 1\nbuffer_store_dword v%d, off, %s, 0 sc1\ns_mov_b64 exec, -1' % (vNonce, self.srd(SRD_WS)))
        if self.probe is not None:
            P.add(self.stamp('end'))
            P.add([I('s_waitcnt lgkmcnt(0)\ns_sub_u32 s94, s94, s96\ns_lshl_b32 s94, s94, 2\ns_add_u32 s94, s94, 10000\nL_pr:\ns_memrealtime s[98:99]\ns_waitcnt lgkmcnt(0)\n'
                     's_sub_u32 s98, s98, s96\ns_cmp_lt_u32 s98, s94\ns_cbranch_scc1 L_pr', kind='block')])
        P.label('L_fin')
        if self.stamps:
            P('s_lshl_b32 s%d, s2, 2\ns_add_u32 s%d, s%d, s%d\ns_lshl_b32 s%d, s%d, 8\ns_add_u32 s%d, s%d, %d' % (sT0, sT0, sT0, sW, sT0, sT0, sT0, sT0, WS_STAMP))
            P.add(self.stamp('end'))
            P('s_memrealtime s[%d:%d]\ns_waitcnt lgkmcnt(0)\nv_writelane_b32 v%d, s%d, 63' % (sStamp, sStamp + 1, vStamp, sStamp))
            P('v_writelane_b32 v%d, s%d, 61' % (vStamp, sSpin))
            P('v_lshlrev_b32 v%d, 2, v0\nbuffer_store_dword v%d, v%d, %s, s%d offen' % (vT, vStamp, vT, self.srd(SRD_WS), sT0))
        P.label('L_end')
        P('s_endpgm')
        body, L = finalize(P.L)
        self.final = L
        ool = '\n'.join('\n'.join(('    ' + t if not t.endswith(':') else t) for t in b.split('\n') if t.strip()) for b in self.ool)
        head = open('cdna_kernels/%s.s.ref' % KNAME[:-7]).read().split('\n')
        hdr = [h for h in head if h.startswith(';') and '@launch' not in h]
        txt = '\n'.join(hdr) + '\n; @launch grid=(256,1,1) block=(256,1,1) lds=%d\n' % LDS_BYTES
        txt += '.amdgcn_target "amdgcn-amd-amdhsa--gfx950"\n.text\n.globl %s\n.p2align 8\n.type %s,@function\n%s:\n' % (KNAME, KNAME, KNAME)
        txt += body + ool + '\nL_code_end:\n'
        txt += '''.section .rodata,"a"
.p2align 6
.amdhsa_kernel %s
  .amdhsa_next_free_vgpr 512
  .amdhsa_next_free_sgpr 102
  .amdhsa_accum_offset 256
  .amdhsa_group_segment_fixed_size 0
  .amdhsa_kernarg_size 88
  .amdhsa_user_sgpr_count 2
  .amdhsa_user_sgpr_kernarg_segment_ptr 1
  .amdhsa_system_sgpr_workgroup_id_x 1
.end_amdhsa_kernel
''' % KNAME
        return txt


if __name__ == '__main__':
    import argparse
    ap = argparse.ArgumentParser()
    ap.add_argument('-o', default='k.s')
    ap.add_argument('--stop', default=None)
    ap.add_argument('--stamps', action='store_true')
    ap.add_argument('opts', nargs='*')
    A = ap.parse_args()
    opt = {k: (x if k == 'probe' else int(x)) for k, x in (t.split('=') for t in A.opts)}
    g = Gen(stop=A.stop, stamps=A.stamps, **opt)
    open(A.o, 'w').write(g.build())
    if A.stamps:
        open(A.o + '.stamps', 'w').write('\n'.join(g.stamp_names))
    n = {}
    for x in g.final:
        n[x.kind] = n.get(x.kind, 0) + 1
    nops = sum(x.states for x in g.final if x.op == 's_nop')
    print('instructions', n, 'nop states', nops)
```

```python
import sys, struct
from asmgen import *

KNAME = 'interleave_layers__linear_attn_block__mixer_channel_mlp__prompt_kernel'


def f32(x):
    return '0x%08x' % struct.unpack('<I', struct.pack('<f', x))[0]


LOG2E = 1.4426950408889634
LN2 = 0.6931471805599453
MF = 'v_mfma_f32_32x32x16_bf16'

WS_XCC = 0x8000
WS_STAMP = 0x10000
WS_KVP = 0x200000
KVP_CH = 9216
KVP_L = 0xA0000
WS_CL = 0x400000
LOFF = 0xD5000
O_OFF, X1_OFF, H_OFF, XIN_OFF, FL_OFF = 0, 0x20000, 0x40000, 0xB0000, 0xD4000
XIN_BS = 36864
FO, FX1, FXIN, FH = FL_OFF, FL_OFF + 512, FL_OFF + 1024, FL_OFF + 1536

L_WQ = 0
L_XB = 28672
L_EX = 86016
L_XS = 86016
L_WO = 114688
L_KVS = 143616
L_KVB = L_KVS + 16384
L_CS = L_KVB + 2048
L_B2 = L_CS + 768
LDS_BYTES = 163840
assert L_B2 + 512 <= LDS_BYTES

SRD_WQ, SRD_WO, SRD_W1, SRD_W2, SRD_X, SRD_OUT, SRD_B1, SRD_B2, SRD_CL, SRD_WS = range(4, 44, 4)
sC, sM, sW, sNonce, sSlow, sX, sSpin = 44, 45, 46, 47, 48, 49, 50
sT0, sT1, sT2, sT3, sT4, sT5 = 51, 52, 53, 54, 55, 56
sLn2, sXcc, sWi = 57, 58, 59
sN28, sHalf = 60, 62
sZm = 64
sMo, sD1 = 66, 67
sKA = 68
sEb, sLb, sC0, sC1, sHs, sFe = 68, 69, 70, 71, 72, 73
sBlk, sOst, sFo, sFoMy, sKv, sKvMy, sHE, sHL, sPE, sPL = 74, 75, 76, 77, 78, 79, 80, 81, 82, 83
sHst = 84
sRot = 85
sQ0, sQ1 = 86, 87
sFin, sRes = 12, 18
sPm = 88
sStamp = 90
sPC = 92

vLane, vL16, vDummy, vTr, vNonce, vMean, vRl, vW1X, _w1x1, vPoll, vPA = range(0, 11)
vT = 11
vStamp = 15
W2A = 0
W1A = 224
W1V = 176


def w1reg(k):
    return a(W1A + 4 * k, 4) if k < 8 else v(W1V + 4 * (k - 8), 4)


def w1half(k, hh):
    return a(W1A + 4 * k + 2 * hh, 2) if k < 8 else v(W1V + 4 * (k - 8) + 2 * hh, 2)


def flat(LL):
    return [x for L in LL for x in L]


def mfma(D, A, B, first=False):
    return mk('%s %s, %s, %s, %s' % (MF, v(D, 16), A, B, '0' if first else v(D, 16)))


class Gen:
    def __init__(self, stop=None, stamps=False, **opt):
        self.P = Prog()
        self.ool = []
        self.stop = stop
        self.stamps = stamps
        self.nstamp = 0
        self.stamp_names = []
        self.probe = opt.pop('probe', None)
        self.light = opt.pop('light', None)
        if self.light is not None:
            self.light = self.light.split('+')
            assert len(self.light) <= 5
        self.seen = {}
        self.o = dict(kvdelay=10, pollE=18, flagpos=6, pollL=16, flag3=8, lead=16, look=6, pref=0, touch=1, codepf=1, rot=1, stnt=0, idlewq=1, reuse=1, npre=12, wqlate=84, pf0=1, nxb1=8, wo0=0, latespan=24, strot=1, w1b2=70, look2=10, l1touch=0, xsc1=1, storder=0)
        self.o.update(opt)

    def srd(self, r):
        return s(r, 4)

    def stamp(self, name):
        if self.probe is not None:
            self.seen[name] = self.seen.get(name, 0) + 1
            if self.probe == '%s#%d' % (name, self.seen[name]):
                return [I('s_memrealtime s[94:95]', kind='block', states=1)]
            return []
        if not self.stamps:
            return []
        if self.light is not None:
            self.seen[name] = self.seen.get(name, 0) + 1
            key = '%s#%d' % (name, self.seen[name])
            if name == 'end':
                self.stamp_names.append('end')
                t = ['s_memtime s[88:89]', 's_waitcnt lgkmcnt(0)']
                for i, r in enumerate([100] + [90 + 2 * j for j in range(len(self.stamp_names) - 2)] + [88]):
                    t.append('v_writelane_b32 v%d, s%d, %d' % (vStamp, r, i))
                return [I('\n'.join(t), kind='block', drain_lgkm=True)]
            if name != 'start' and key not in self.light:
                return []
            r = 100 if name == 'start' else 90 + 2 * (len(self.stamp_names) - 1)
            self.stamp_names.append(key if name != 'start' else name)
            return [I('s_memtime s[%d:%d]' % (r, r + 1), kind='block')]
        i = self.nstamp
        self.nstamp += 1
        self.stamp_names.append(name)
        t = 's_memtime s[%d:%d]\ns_waitcnt lgkmcnt(0)\nv_writelane_b32 v%d, s%d, %d' % (sStamp, sStamp + 1, vStamp, sStamp, i)
        return [I(t, kind='block', dst=[], src=[], drain_lgkm=True, states=3)]

    def stores(self, lines):
        insts = mk('\n'.join(lines))
        src = [r for x in insts for r in x.src]
        wide = [r for x in insts for r in x.wide]
        ls, lb = self.P.newlabel('Lslow'), self.P.newlabel('Lback')
        txt = 's_cmp_lg_u32 s%d, 0\ns_cbranch_scc1 %s\n%s\n%s:' % (sSlow, ls, '\n'.join(lines), lb)
        self.ool.append('%s:\n%s\ns_branch %s' % (ls, '\n'.join(l + ' sc1' for l in lines), lb))
        return [I(txt, kind='block', src=src, nvm=len(lines), wide=wide, states=1, cost=8 + 4 * len(lines))]

    def flag(self, toks, soff, off=0):
        st = self.stores(['buffer_store_dword v%d, off, %s, s%d offset:%d' % (vNonce, self.srd(SRD_CL), soff, off)])[0]
        st.text = 's_mov_b64 exec, 1\n' + st.text + '\ns_mov_b64 exec, -1'
        st.cost += 8
        return [wait_tok(*toks), st]

    def poll_issue(self, soff):
        return mk('buffer_load_dword v%d, v%d, %s, s%d offen sc1' % (vPoll, vPA, self.srd(SRD_CL), soff))

    def poll_check(self, soff, sleep=0):
        ls, lb = self.P.newlabel('Lspin'), self.P.newlabel('Lgot')
        self.ool.append('\n'.join([
            '%s:' % ls,
            ('s_sleep %d' % sleep) if sleep else '',
            'buffer_load_dword v%d, v%d, %s, s%d offen sc1' % (vPoll, vPA, self.srd(SRD_CL), soff),
            's_add_u32 s%d, s%d, 1' % (sSpin, sSpin),
            's_cmp_gt_u32 s%d, 0x40000' % sSpin,
            's_cbranch_scc1 L_end',
            's_waitcnt vmcnt(0)',
            'v_cmp_ne_u32 vcc, s%d, v%d' % (sNonce, vPoll),
            's_cbranch_vccnz %s' % ls,
            's_branch %s' % lb]))
        c = mk('v_cmp_ne_u32 vcc, s%d, v%d' % (sNonce, vPoll))[0]
        return [I(c.text + '\ns_cbranch_vccnz %s\n%s:' % (ls, lb), kind='block', src=c.src, dst=c.dst, states=2, cost=8)]

    def pa(self, n, blocks=False):
        L = 'v_and_b32 v%d, %d, v0\n' % (vPA, 15 if n <= 16 else 31)
        if n not in (16, 32):
            L += 'v_min_u32 v%d, %d, v%d\n' % (vPA, n - 1, vPA)
        L += 'v_lshlrev_b32 v%d, 2, v%d\n' % (vPA, vPA)
        if blocks:
            L += 'v_lshrrev_b32 v%d, 4, v0\nv_lshl_add_u32 v%d, v%d, 7, v%d' % (vT + 3, vPA, vT + 3, vPA)
        return mk(L)

    def trbase(self, dst, RS, kh, add=0, xor16=None):
        t = vT
        L = ['v_lshrrev_b32 v%d, 5, v%d' % (dst, vLane),
             'v_mul_u32_u24 v%d, %d, v%d' % (dst, kh, dst),
             'v_bfe_u32 v%d, v%d, 2, 2' % (t, vLane),
             'v_add_u32 v%d, v%d, v%d' % (dst, dst, t),
             'v_mul_u32_u24 v%d, %d, v%d' % (dst, RS, dst),
             'v_bfe_u32 v%d, v%d, 4, 1' % (t, vLane)]
        if xor16 is not None:
            L.append('v_xor_b32 v%d, s%d, v%d' % (t, xor16, t))
        L += ['v_lshl_add_u32 v%d, v%d, 5, v%d' % (dst, t, dst),
              'v_and_b32 v%d, 3, v%d' % (t, vLane),
              'v_lshl_add_u32 v%d, v%d, 3, v%d' % (dst, t, dst)]
        if add:
            L.append('v_add_u32 v%d, %d, v%d' % (dst, add, dst))
        return mk('\n'.join(L))

    def frag_loads(self, dsts, srd, sbase, const0, stride=1024, flags='', st=sT0):
        out = []
        cur = None
        for i, d in enumerate(dsts):
            off = const0 + i * stride
            grp = []
            if cur is None or not (0 <= off - cur <= 4095):
                cur = off
                grp += mk('s_add_u32 s%d, s%d, %d' % (st, sbase, off))
            grp += mk('buffer_load_dwordx4 %s, v%d, %s, s%d offen offset:%d %s' % (d, vL16, self.srd(srd), st, off - cur, flags))
            out.append(grp)
        return out

    def stats_finish(self, acc, double_ln):
        t1, t2 = vT + 1, vT + 2
        L = ['v_mov_b32 v%d, v%d' % (t1, acc),
             'v_mov_b32 v%d, v%d' % (vMean, acc),
             'v_permlane32_swap_b32 v%d, v%d' % (vMean, t1),
             'v_mul_f32 v%d, %s, v%d' % (vMean, f32(1.0 / 448), vMean),
             'v_mul_f32 v%d, %s, v%d' % (t1, f32(1.0 / 448), t1),
             'v_fma_f32 v%d, -v%d, v%d, v%d' % (t1, vMean, vMean, t1),
             'v_max_f32 v%d, 0, v%d' % (t1, t1),
             'v_add_f32 v%d, %s, v%d' % (t2, f32(1e-5), t1),
             'v_rsq_f32 v%d, v%d' % (vRl, t2)]
        if double_ln:
            L += ['v_mul_f32 v%d, v%d, v%d' % (t2, vRl, vRl),
                  'v_fmaak_f32 v%d, v%d, v%d, %s' % (t1, t1, t2, f32(1e-5)),
                  'v_rsq_f32 v%d, v%d' % (t1, t1),
                  'v_mul_f32 v%d, v%d, v%d' % (vRl, vRl, t1)]
        else:
            L += ['v_mul_f32 v%d, %s, v%d' % (vRl, f32(LOG2E), vRl)]
        return mk('\n'.join(L))

    def split_act(self, d0, val, t):
        return mk('\n'.join([
            'v_cvt_pk_bf16_f32 v%d, v%d, v%d' % (d0 + 1, val, val),
            'v_and_b32 v%d, 0xffff0000, v%d' % (t, d0 + 1),
            'v_sub_f32 v%d, v%d, v%d' % (t, val, t),
            'v_cvt_pk_bf16_f32 v%d, v%d, v%d' % (d0, val, t),
            'v_and_b32 v%d, 0xffff, v%d' % (d0 + 1, d0 + 1),
            'v_cndmask_b32 v%d, v%d, 0, s[%d:%d]' % (d0 + 1, d0 + 1, sHalf, sHalf + 1)]))

    def split_w(self, d0, val, t):
        return mk('\n'.join([
            'v_cvt_pk_bf16_f32 v%d, v%d, v%d' % (d0, val, val),
            'v_and_b32 v%d, 0xffff0000, v%d' % (t, d0),
            'v_sub_f32 v%d, v%d, v%d' % (t, val, t),
            'v_cvt_pk_bf16_f32 v%d, v%d, 0' % (d0 + 1, t)]))

    def phi4(self, regs, R, T):
        L = []
        for i, r in enumerate(regs):
            L.append('v_mul_f32 v%d, v%d, v%d' % (r, r, R[i]))
        for i, r in enumerate(regs):
            L.append('v_exp_f32 v%d, v%d clamp' % (T + i, r))
            L.append('v_max_f32 v%d, 0, v%d' % (r, r))
        for i, r in enumerate(regs):
            L.append('v_fma_f32 v%d, v%d, s%d, v%d' % (r, r, sLn2, T + i))
        for i, r in enumerate(regs):
            L.append('v_add_f32 v%d, %s, v%d' % (r, f32(1e-6), r))
        return mk('\n'.join(L))

    def pack(self, dst, src, n):
        return mk('\n'.join('v_cvt_pk_bf16_f32 v%d, v%d, v%d' % (dst + i, src + 2 * i, src + 2 * i + 1) for i in range(n)))

    def unpack(self, dst, src, n):
        L = []
        for i in reversed(range(n)):
            L.append('v_and_b32 v%d, 0xffff0000, v%d' % (dst + 2 * i + 1, src + i))
            L.append('v_lshlrev_b32 v%d, 16, v%d' % (dst + 2 * i, src + i))
        return mk('\n'.join(L))

    def dots(self, regs, acc, ones, first):
        L = []
        for i, r in enumerate(regs):
            z = first and i == 0
            L.append('v_dot2_f32_bf16 v%d, v%d, v%d, %s' % (acc, r, ones, '0' if z else 'v%d' % acc))
            L.append('v_dot2_f32_bf16 v%d, v%d, v%d, %s' % (acc + 1, r, r, '0' if z else 'v%d' % (acc + 1)))
        return mk('\n'.join(L))

    def dots_end(self, acc):
        return mk('v_permlane32_swap_b32 v%d, v%d\nv_add_f32 v%d, v%d, v%d' % (acc, acc + 1, acc, acc, acc + 1))

    def row_stats(self, src, n, acc, ones):
        return mk('v_mov_b32 v%d, 0x3f803f80' % ones) + self.dots(range(src, src + n), acc, ones, True) + self.dots_end(acc)

    def kv_lane_addr(self, d, t, u, gather):
        L = []
        if gather:
            L += ['v_and_b32 v%d, 31, v0' % t, 'v_lshrrev_b32 v%d, 5, v0' % d]
        else:
            L += ['v_lshrrev_b32 v%d, 5, v0' % t, 'v_and_b32 v%d, 15, v0' % u, 'v_lshl_add_u32 v%d, v%d, 1, v%d' % (t, u, t), 'v_bfe_u32 v%d, v0, 4, 1' % d]
        L += ['v_lshrrev_b32 v%d, 3, v%d' % (u, t), 'v_sub_u32 v%d, v%d, v%d' % (u, t, u)]
        if not gather:
            L += ['v_and_b32 v%d, 7, v%d' % (t, t), 'v_cmp_eq_u32 vcc, 7, v%d' % t, 'v_cndmask_b32 v%d, v%d, 31, vcc' % (u, u)]
        L += ['v_lshl_add_u32 v%d, v%d, 5, v%d' % (d, d, u)]
        sh, qs, base = (4, 10, L_KVS) if gather else (5, 3, L_KVB)
        L += ['s_lshl_b32 s%d, s%d, %d' % (sT2, sW, qs), 'v_lshlrev_b32 v%d, %d, v%d' % (d, sh, d), 'v_add_u32 v%d, s%d, v%d' % (d, sT2, d)]
        L += ['v_and_b32 v%d, 1, v%d' % (t, u), 'v_lshlrev_b32 v%d, %d, v%d' % (t, 5 + sh, t), 'v_lshrrev_b32 v%d, 1, v%d' % (u, u)]
        L += ['v_cmp_gt_u32 vcc, 4, v%d' % u]
        L += ['v_lshl_add_u32 v%d, v%d, %d, v%d' % (t, u, qs, t), 'v_add_u32 v%d, %d, v%d' % (t, 28 << sh, t)]
        L += ['s_and_b64 vcc, vcc, s[%d:%d]' % ((sZm, sZm + 1) if gather else (sPm, sPm + 1)), 'v_cndmask_b32 v%d, v%d, v%d, vcc' % (d, d, t),
              'v_add_u32 v%d, %d, v%d' % (d, base, d)]
        return mk('\n'.join(L))

    def wq_dma(self, groups, vq, rot=False):
        out = []
        for t in groups:
            for p in range(3):
                g = []
                if p == 0:
                    if rot:
                        g += mk('s_add_u32 s%d, s%d, %d\ns_cmp_ge_u32 s%d, 7\ns_cselect_b32 s%d, 7, 0\ns_sub_u32 s%d, s%d, s%d\ns_lshl_b32 s%d, s%d, 2\ns_add_u32 s%d, s%d, s%d'
                                % (sQ1, sRot, t, sQ1, sQ0, sQ1, sQ1, sQ0, sQ1, sQ1, sQ1, sQ1, sW))
                    else:
                        g += mk('s_add_u32 s%d, s%d, %d' % (sQ1, sW, 4 * t))
                    g += mk('s_mul_i32 s%d, s%d, %d\ns_mul_i32 s%d, s%d, 3072' % (sQ0, sQ1, 16 * 2688, sQ1, sQ1))
                g += mk('s_add_u32 m0, s%d, %d' % (sQ1, L_WQ + 1024 * p))
                g += mk('buffer_load_dwordx4 v%d, %s, s%d offen lds' % (vq[p] if isinstance(vq, tuple) else vq + p, self.srd(SRD_WQ), sQ0))
                out.append(g)
        return out

    def wq_addr(self, vq):
        L = ['s_mul_i32 s%d, s%d, 56' % (sT2, sM)]
        t, u = vT, vT + 1
        for p in range(3):
            d = vq + p
            L += ['v_add_u32 v%d, %d, v%d' % (t, 64 * p, vLane),
                  'v_mul_u32_u24 v%d, 0x1556, v%d' % (d, t),
                  'v_lshrrev_b32 v%d, 16, v%d' % (d, d),
                  'v_mul_u32_u24 v%d, 12, v%d' % (u, d),
                  'v_sub_u32 v%d, v%d, v%d' % (t, t, u),
                  'v_mul_u32_u24 v%d, 2688, v%d' % (d, d),
                  'v_lshrrev_b32 v%d, 2, v%d' % (u, t),
                  'v_mul_u32_u24 v%d, 896, v%d' % (u, u),
                  'v_add3_u32 v%d, v%d, v%d, s%d' % (d, d, u, sT2),
                  'v_and_b32 v%d, 3, v%d' % (t, t),
                  'v_lshl_add_u32 v%d, v%d, 4, v%d' % (d, t, d)]
        return mk('\n'.join(L))

    def touch(self, items, va):
        if not self.o['touch']:
            return []
        txt = ['v_lshlrev_b32 v%d, 7, v0' % va]
        cur = None
        n = 0
        for nl, srd, sg, c in items:
            if nl != cur:
                txt.append('s_mov_b64 exec, 0x%x' % ((1 << nl) - 1))
                cur = nl
            txt.append('s_add_u32 s%d, s%d, %d' % (sT2, sg, c) if sg is not None else 's_mov_b32 s%d, %d' % (sT2, c))
            txt.append('buffer_load_dword v%d, v%d, %s, s%d offen sc1' % (vDummy, va, self.srd(srd), sT2))
            n += 1
        txt.append('s_mov_b64 exec, -1')
        return [I('\n'.join(txt), kind='block', nvm=n, dst=[('v', va)], src=[('v', 0)], states=1, cost=12 * n)]

    def touch_attn(self, lo, va):
        pre = mk('s_lshr_b32 s%d, s%d, 2\ns_lshl_b32 s%d, s%d, 10\ns_add_u32 s%d, s%d, s%d' % (sT1, sM, sT1, sT1, sT1, sT1, sBlk))
        return pre + self.touch([(16, SRD_CL, sOst, lo), (16, SRD_CL, sOst, lo + X1_OFF), (8, SRD_CL, sT1, lo + X1_OFF + 28672),
                                 (28, SRD_CL, None, lo + FL_OFF)], va)

    def prefetch(self, va):
        nl = self.o['pref']
        if not nl:
            return []
        txt = 'v_lshlrev_b32 v%d, 7, v0\ns_mul_i32 s%d, s%d, %d\n' % (va, sT2, sWi, nl * 128)
        txt += 's_mov_b32 exec_lo, 0x%x\ns_mov_b32 exec_hi, 0x%x\n' % (((1 << nl) - 1) & 0xffffffff, ((1 << nl) - 1) >> 32)
        txt += 'buffer_load_dword v%d, v%d, %s, s%d offen\ns_mov_b64 exec, -1' % (vDummy, va, self.srd(SRD_W1), sT2)
        return [I(txt, kind='block', nvm=1, src=[('v', 0)], dst=[('v', va)])]

    def idle_work(self):
        va = vT
        l = self.P.newlabel('Lnowarm')
        T = ['s_cmp_lg_u32 s%d, 0' % sSlow, 's_cbranch_scc1 %s' % l,
             'v_lshlrev_b32 v%d, 7, v0' % va,
             's_and_b32 s%d, s%d, 1' % (sT0, sM), 's_lshl_b32 s%d, s%d, 2' % (sT0, sT0), 's_add_u32 s%d, s%d, s%d' % (sT0, sT0, sW)]
        ld = lambda srd, fl: 'buffer_load_dword v%d, v%d, %s, s%d offen %s' % (vDummy, va, self.srd(srd), sT2, fl)
        for i in range(7):
            T += ['s_lshl_b32 s%d, s%d, 13' % (sT2, sT0), 's_add_u32 s%d, s%d, %d' % (sT2, sT2, H_OFF + i * 65536), ld(SRD_CL, 'sc1')]
        if self.o['idlewq']:
            T += ['s_lshr_b32 s%d, s%d, 3' % (sT1, sC), 's_lshl_b32 s%d, s%d, 3' % (sT1, sT1), 's_add_u32 s%d, s%d, s%d' % (sT1, sT1, sT0)]
            for i in range(10):
                T += ['s_lshl_b32 s%d, s%d, 13' % (sT2, sT1), 's_add_u32 s%d, s%d, %d' % (sT2, sT2, i * 131072), ld(SRD_WQ, '')]
        for i in range(3):
            T += ['s_lshl_b32 s%d, s%d, 13' % (sT2, sT0), 's_add_u32 s%d, s%d, %d' % (sT2, sT2, XIN_OFF + i * 65536)]
            if i == 2:
                T += ['s_min_u32 s%d, s%d, %d' % (sT2, sT2, FL_OFF - 8192)]
            T += [ld(SRD_CL, 'sc1')]
        T += [l + ':']
        return '\n'.join(T)

    def prologue(self):
        P = self.P
        o = self.o
        P('s_cmp_ge_u32 s2, 256\ns_cbranch_scc1 L_end')
        if self.probe is not None:
            P.add([I('s_memrealtime s[96:97]\ns_memrealtime s[94:95]', kind='block', states=1)])
        P('s_load_dwordx16 s[%d:%d], s[0:1], 0' % (sKA, sKA + 15))
        P('s_load_dwordx4 s[%d:%d], s[0:1], 64' % (sKA + 16, sKA + 19))
        P('s_load_dwordx2 s[%d:%d], s[0:1], 80' % (sKA + 20, sKA + 21))
        P('v_lshrrev_b32 v%d, 6, v0\nv_and_b32 v0, 63, v0\nv_readfirstlane_b32 s%d, v%d' % (vT, sW, vT))
        P('s_lshr_b32 s%d, s2, 3\ns_lshl_b32 s%d, s%d, 2\ns_add_u32 s%d, s%d, s%d' % (sM, sWi, sM, sWi, sWi, sW))
        if o['codepf']:
            P.add([I('s_getpc_b64 s[%d:%d]\nL_pc:' % (sPC, sPC + 1), kind='block', dst=[], states=1)])
            P('s_lshl_b32 s%d, s%d, 9\nv_lshlrev_b32 v%d, 7, v0\nv_add_u32 v%d, s%d, v%d' % (sT0, sWi, vT, vT, sT0, vT))
            P.add([I('v_min_u32 v%d, L_code_end-L_pc-4, v%d\ns_mov_b64 exec, 15\nglobal_load_dword v%d, v%d, s[%d:%d]\ns_mov_b64 exec, -1'
                     % (vT, vT, vDummy, vT, sPC, sPC + 1), kind='block', dst=[('v', vT)], src=[('v', vT)], nvm=1)])
        P('s_and_b32 s%d, s2, 7\ns_lshr_b32 s%d, s%d, 4\ns_lshl_b32 s%d, s%d, 3\ns_add_u32 s%d, s%d, s%d\ns_and_b32 s%d, s%d, 15'
          % (sC, sT0, sM, sT0, sT0, sC, sC, sT0, sM, sM))
        P('v_lshlrev_b32 v%d, 4, v0' % vL16)
        if self.stamps:
            P('v_mov_b32 v%d, 0' % vStamp)
            P.add(self.stamp('start'))
            P('s_memrealtime s[%d:%d]\ns_waitcnt lgkmcnt(0)\nv_writelane_b32 v%d, s%d, 62' % (sStamp, sStamp + 1, vStamp, sStamp))
        P('s_lshl_b32 s%d, s%d, 2\ns_add_u32 s%d, s%d, s%d\ns_mul_i32 s%d, s%d, %d' % (sX, sC, sX, sX, sW, sX, sX, 32 * 896))
        vq, vxb, vxh, vxa, vrd = 160, 163, 164, 165, 167
        P('v_lshrrev_b32 v%d, 5, v0\nv_and_b32 v%d, 31, v0\nv_xor_b32 v%d, v%d, v%d\nv_lshlrev_b32 v%d, 4, v%d\nv_mul_u32_u24 v%d, 896, v%d'
          % (vxh, vT, vxb, vT, vxh, vxb, vxb, vxh, vxh))
        ka = sKA

        def mksrd(r, p, size):
            P('s_mov_b32 s%d, s%d\ns_mov_b32 s%d, s%d\ns_mov_b32 s%d, %d\ns_mov_b32 s%d, 0x20000' % (r, p, r + 1, p + 1, r + 2, size, r + 3))
        P('s_lshl_b32 s%d, s%d, 14\ns_add_u32 s%d, s%d, %d' % (sT5, sW, sT5, sT5, L_XS))
        mksrd(SRD_X, ka + 0, 2048 * 896)

        def xdma(half):
            out = []
            for i in range(16):
                if half:
                    g = mk('s_mov_b32 s%d, %d\nv_xad_u32 v%d, v%d, s%d, v%d' % (sT0, ((2 * i) & 15) << 4, vxa + (i & 1), vxb, sT0, vxh))
                    g += mk('s_add_u32 s%d, s%d, %d\ns_add_u32 m0, s%d, %d' % (sT1, sX, 2 * i * 896 + 512, sT5, 1024 * i))
                    out.append(g + mk('buffer_load_dwordx4 v%d, %s, s%d offen lds' % (vxa + (i & 1), self.srd(SRD_X), sT1)))
                    continue
                g = mk('s_add_u32 s%d, s%d, %d\ns_and_b32 s%d, s%d, 15' % (sT4, sM, i, sT4, sT4) if o['rot'] else 's_mov_b32 s%d, %d' % (sT4, i))
                g += mk('s_lshl_b32 s%d, s%d, 5\ns_and_b32 s%d, s%d, 0xf0\nv_xad_u32 v%d, v%d, s%d, v%d' % (sT0, sT4, sT0, sT0, vxa + (i & 1), vxb, sT0, vxh))
                g += mk('s_mul_i32 s%d, s%d, 1792\ns_add_u32 s%d, s%d, s%d\ns_lshl_b32 s%d, s%d, 10\ns_add_u32 m0, s%d, s%d' % (sT1, sT4, sT1, sT1, sX, sT4, sT4, sT4, sT5))
                g += mk('buffer_load_dwordx4 v%d, %s, s%d offen lds' % (vxa + (i & 1), self.srd(SRD_X), sT1))
                out.append(g)
            return out
        mksrd(SRD_WQ, ka + 2, 448 * 2688)
        if o['pf0']:
            P('v_lshlrev_b32 v%d, 7, v0\ns_lshl_b32 s%d, s%d, 2\ns_add_u32 s%d, s%d, s%d\ns_mul_i32 s%d, s%d, %d\ns_mul_i32 s%d, s%d, %d\ns_add_u32 s%d, s%d, s%d\ns_mul_i32 s%d, s%d, %d'
              % (vxa, sT0, sM, sT0, sT0, sW, sT0, sT0, 14 * 128, sT1, sC, 128 * 896, sT0, sT0, sT1, sT1, sWi, 74 * 128))
            P.add([I('s_mov_b64 exec, 0x3fff\nbuffer_load_dword v%d, v%d, %s, s%d offen\ns_mov_b64 exec, -1\nbuffer_load_dword v%d, v%d, %s, s%d offen\n'
                     's_add_u32 s%d, s%d, 8192\ns_mov_b64 exec, 0x3ff\nbuffer_load_dword v%d, v%d, %s, s%d offen\ns_mov_b64 exec, -1'
                     % (vDummy, vxa, self.srd(SRD_X), sT0, vDummy, vxa, self.srd(SRD_WQ), sT1, sT1, sT1, vDummy, vxa, self.srd(SRD_WQ), sT1),
                     kind='block', nvm=3, src=[('v', vxa)])])
        body = [x.text for x in xdma(0)[0]]
        body[0] = 's_add_u32 s%d, s%d, s%d' % (sT4, sM, sT2) if o['rot'] else 's_mov_b32 s%d, s%d' % (sT4, sT2)
        loop = I('\n'.join(['s_mov_b32 s%d, 0' % sT2, 'L_xa:'] + body[:-1] + ['s_add_u32 s%d, s%d, 1' % (sT2, sT2), 's_cmp_lt_u32 s%d, 16' % sT2, body[-1],
                                                                            's_cbranch_scc1 L_xa']), kind='block', nvm=16, src=[('v', vxb), ('v', vxh)] + regs_of(s(SRD_X, 4)), dst=[('v', vxa)])
        tA = tok(loop)
        P.add([loop])
        P('s_load_dword s%d, s[%d:%d], 0' % (sNonce, ka + 20, ka + 21))
        P.add(self.wq_addr(vq))
        mksrd(SRD_OUT, ka + 16, 2048 * 896)
        wq = self.wq_dma(range(7), vq)
        self.tok_wq1, self.tok_wq = tok(wq[11][-1]), tok(wq[-1][-1])
        P.add(flat(wq[:12]))
        mksrd(SRD_WO, ka + 4, 448 * 896)
        mksrd(SRD_W1, ka + 8, 448 * 3584)
        P('s_cmp_lt_u32 s%d, 14\ns_cselect_b32 s%d, s%d, 0' % (sM, SRD_W1 + 2, SRD_W1 + 2))
        mksrd(SRD_B1, ka + 10, 3584)
        mksrd(SRD_W2, ka + 12, 1792 * 896)
        mksrd(SRD_B2, ka + 14, 896)
        mksrd(SRD_WS, ka + 20, WS_CL)
        P('s_lshl_b32 s%d, s%d, 21\ns_add_u32 s%d, s%d, %d' % (sT0, sC, sT0, sT0, WS_CL))
        P('s_add_u32 s%d, s%d, s%d\ns_addc_u32 s%d, s%d, 0\ns_mov_b32 s%d, 0x200000\ns_mov_b32 s%d, 0x20000'
          % (SRD_CL, ka + 20, sT0, SRD_CL + 1, ka + 21, SRD_CL + 2, SRD_CL + 3))
        P('s_mov_b32 s%d, %s\ns_mov_b32 s%d, 0\ns_mov_b32 s%d, -1' % (sLn2, f32(LN2), sHalf, sHalf + 1))
        P('s_mov_b32 s%d, 0x10000000\ns_mov_b32 s%d, 0x10000000\ns_mov_b32 s%d, 0' % (sN28, sN28 + 1, sSpin))
        P('s_getreg_b32 s%d, hwreg(HW_REG_XCC_ID, 0, 4)' % sXcc)
        P('s_and_b32 s%d, s%d, 1\ns_sub_u32 s%d, 3, s%d' % (sEb, sM, sLb, sEb))
        P('s_cmp_eq_u32 s%d, 3\ns_cselect_b32 s%d, -1, 0\ns_mov_b32 s%d, 0' % (sW, sZm + 1, sZm))
        P('s_lshr_b32 s%d, s%d, 3\ns_lshl_b32 s%d, s%d, 1\ns_add_u32 s%d, s%d, s%d\ns_mul_i32 s%d, s%d, 7\ns_add_u32 s%d, s%d, 1\ns_lshr_b32 s%d, s%d, 1'
          % (sD1, sC, sMo, sD1, sMo, sMo, sEb, sMo, sMo, sMo, sMo, sMo, sMo))
        if not o['strot']:
            P('s_mov_b32 s%d, 0\ns_mov_b32 s%d, 0' % (sMo, sD1))
        c0 = -2.0 * 0.7978845608028654 * LOG2E
        P('s_mov_b32 s%d, %s\ns_mov_b32 s%d, %s' % (sC0, f32(c0), sC1, f32(c0 * 0.044715)))
        P('s_lshr_b32 s%d, s%d, 1\ns_lshl_b32 s%d, s%d, 2\ns_and_b32 s%d, s%d, 1\ns_lshl_b32 s%d, s%d, 1\ns_add_u32 s%d, s%d, s%d\ns_lshr_b32 s%d, s%d, 1\ns_add_u32 s%d, s%d, s%d'
          % (sFe, sM, sFe, sFe, sT0, sW, sT0, sT0, sFe, sFe, sT0, sT0, sW, sFe, sFe, sT0))
        P('s_lshl_b32 s%d, s%d, 15\ns_lshl_b32 s%d, s%d, 11\ns_add_u32 s%d, s%d, s%d' % (sBlk, sW, sOst, sM, sOst, sOst, sBlk))
        P('s_lshl_b32 s%d, s%d, 7\ns_add_u32 s%d, s%d, %d\ns_lshl_b32 s%d, s%d, 2\ns_add_u32 s%d, s%d, s%d' % (sFo, sW, sFo, sFo, FL_OFF, sT0, sM, sFoMy, sFo, sT0))
        P('s_lshl_b32 s%d, s%d, 2\ns_add_u32 s%d, s%d, s%d\ns_mul_i32 s%d, s%d, %d\ns_add_u32 s%d, s%d, %d' % (sT1, sM, sT1, sT1, sW, sKv, sT1, KVP_CH, sKv, sKv, WS_KVP))
        P('s_lshl_b32 s%d, s%d, 9\ns_add_u32 s%d, s%d, s%d' % (sKvMy, sC, sKvMy, sKvMy, sKv))
        P('s_lshl_b32 s%d, s%d, 11\ns_add_u32 s%d, s%d, %d' % (sHst, sT1, sHst, sHst, H_OFF))
        P('s_lshl_b32 s%d, s%d, 11\ns_add_u32 s%d, s%d, %d' % (sT1, sW, sT1, sT1, H_OFF))
        P('s_mul_i32 s%d, s%d, 114688\ns_add_u32 s%d, s%d, s%d\ns_mul_i32 s%d, s%d, 114688\ns_add_u32 s%d, s%d, s%d' % (sHE, sEb, sHE, sHE, sT1, sHL, sLb, sHL, sHL, sT1))
        P('s_lshl_b32 s%d, s%d, 9\ns_add_u32 s%d, s%d, s%d\ns_add_u32 s%d, s%d, %d' % (sPE, sEb, sPE, sPE, sFo, sPE, sPE, FH - FL_OFF))
        P('s_lshl_b32 s%d, s%d, 9\ns_add_u32 s%d, s%d, s%d\ns_add_u32 s%d, s%d, %d' % (sPL, sLb, sPL, sPL, sFo, sPL, sPL, FH - FL_OFF))
        self.xreg0 = xr = [16 + 4 * i if i < 20 else 176 + 4 * (i - 20) for i in range(28)]
        P('v_and_b32 v%d, 15, v0\nv_lshrrev_b32 v%d, 5, v0\nv_xor_b32 v%d, v%d, v%d\nv_lshlrev_b32 v%d, 4, v%d\nv_and_b32 v%d, 31, v0\nv_lshl_add_u32 v%d, v%d, 9, v%d\nv_add_u32 v%d, s%d, v%d'
          % (vT, vrd, vrd, vrd, vT, vrd, vrd, vT, vrd, vT, vrd, vrd, sT5, vrd))
        xrd = lambda k: mk('v_xor_b32 v%d, %d, v%d\nds_read_b128 %s, v%d' % (vrd + 1 + (k & 1), 32 * (k & 15), vrd, v(xr[k], 4), vrd + 1 + (k & 1)))
        vrs = vrd + 3
        P('v_and_b32 v%d, 15, v0\nv_lshlrev_b32 v%d, 4, v%d\nv_lshrrev_b32 v%d, 5, v0\nv_lshl_add_u32 v%d, v%d, 3, v%d\nv_and_b32 v%d, 31, v0\nv_lshl_add_u32 v%d, v%d, 9, v%d\nv_add_u32 v%d, s%d, v%d'
          % (vrs, vrs, vrs, vT, vrs, vT, vrs, vT, vrs, vT, vrs, vrs, sT5, vrs))
        P('s_and_b32 s%d, s%d, 7\ns_lshl_b32 s%d, s%d, 6\nv_xor_b32 v%d, s%d, v%d' % (sT0, sM, sT0, sT0, vrs, sT0, vrs))

        def resrd(half):
            l = P.newlabel('Lres')
            t = ['s_cmp_%s_u32 s%d, 8' % ('lt' if half else 'ge', sM), 's_cbranch_scc1 %s' % l]
            for g in range(4):
                t += ['v_xor_b32 v%d, %d, v%d' % (vrs + 1, 16 * g, vrs), 'ds_read_b64 %s, v%d' % (a(216 + 2 * g, 2), vrs + 1)]
            return [I('\n'.join(t + [l + ':']), kind='block', src=[('v', vrs)], dst=[('v', vrs + 1)])]
        P.add(self.stamp('issued'))
        P.add([wait_tok(tA)])
        P.add(self.stamp('xA'))
        for k in range(16):
            P.add(xrd(k))
        P.add(resrd(0))
        vS, vOne = vT + 2, vT + 1
        P('v_mov_b32 v%d, 0x3f803f80\ns_waitcnt lgkmcnt(0)' % vOne)
        xb = xdma(1)
        self.tok_xb = tok(xb[-1][-1])
        d = self.dots([xr[k] + i for k in range(16) for i in range(4)], vS, vOne, True)
        P.add(spread(xb[:o['nxb1']], d))
        self.late_dma = xb[o['nxb1']:] + wq[12:]
        self.late_rd = [xrd(k) for k in range(16, 28)] + [resrd(1)]
        self.late_dots = self.dots([xr[k] + i for k in range(16, 28) for i in range(4)], vS, vOne, False) + self.dots_end(vS)
        P('s_add_u32 s%d, s%d, 0x01010101' % (sNonce, sNonce))
        P('v_mov_b32 v%d, s%d' % (vNonce, sNonce))
        P('s_lshl_b32 s%d, s%d, 4\ns_add_u32 s%d, s%d, s%d\ns_lshl_b32 s%d, s%d, 7\ns_add_u32 s%d, s%d, %d'
          % (sT2, sC, sT2, sT2, sM, sT2, sT2, sT2, sT2, WS_XCC))
        P('s_add_u32 s%d, s%d, s%d\nv_mov_b32 v%d, s%d\ns_mov_b64 exec, 1' % (sT3, sNonce, sXcc, vT, sT3))
        P('buffer_store_dword v%d, off, %s, s%d sc1' % (vT, self.srd(SRD_WS), sT2))
        P('s_mov_b64 exec, -1')

    def s1(self, l):
        P = self.P
        o = self.o
        AK, AV, AQ, WB, SB = 96, 112, 128, 144, 160
        RLB, XE = SB, SB + 8
        NB = 4
        vS = vT + 2
        P.comment('==== layer %d : S1' % l)
        d2 = 4 * 192 if l == 0 else 8 * 192
        fin = self.stats_finish(vS, False)
        fin += mk('s_lshl_b32 s%d, s%d, 12\ns_add_u32 s%d, s%d, %d' % (sT4, sW, sT4, sT4, L_KVS))
        bounce = mk('v_and_b32 v%d, 31, v0\nv_lshl_add_u32 v%d, v%d, 2, s%d\nds_write_b32 v%d, v%d' % (vT + 1, vT + 1, vT + 1, sT4, vT + 1, vRl))
        fin += bounce
        fin += mk('v_sub_f32 v%d, 0, v%d' % (vMean, vMean)) + self.split_act(XE, vMean, vT)
        fin += mk('v_cndmask_b32 v%d, v%d, 0, s[%d:%d]\nv_mov_b32 v%d, 0\nv_mov_b32 v%d, 0' % (XE, XE, sHalf, sHalf + 1, XE + 2, XE + 3))
        if l == 0:
            xreg = self.xreg0
            P.add(self.trbase(vTr, 192, 8, add=L_WQ))
            P.add([wait_tok(self.tok_wq1)])
            P('s_barrier')
            P.add(self.stamp('wq_ready'))
            lds = []
        else:
            xreg = [16 + 4 * (i % 20) for i in range(28)]
            P.add(self.pa(28))
            P('s_add_u32 s%d, s%d, %d' % (sT4, sFo, FXIN - FL_OFF))
            P.add(self.poll_issue(sT4))
            P('s_mul_i32 s%d, s%d, %d' % (sT5, sW, XIN_BS))
            P.add(self.trbase(vTr, 192, 4, add=L_WQ))
            P.add([wait_tok(self.tok_wq)])
            P('s_barrier')
            lds = self.frag_loads([v(r, 4) for r in xreg], SRD_CL, sT5, XIN_OFF)
        jobs = []
        for k in range(28):
            if l == 0 and k == 16:
                jobs += [(t.upper(), kk) for kk in range(7) for t in 'qkv']
            jobs += [('k', k), ('v', k)] + ([('q', k)] if k < 8 else [])
        jobs += [('k', 'e'), ('v', 'e')]
        nmain = len(jobs)
        jobs += [('q', k) for k in range(8, 28)] + [('q', 'e')]
        vTr2, vCs = vT + 3, vPA
        vo, vb, CSA = RLB, RLB + 4, 208

        def rd(j):
            t, k = jobs[j]
            b = WB + 4 * (j % NB)
            if k == 'e':
                return mk('ds_read_b64 %s, v%d offset:%d\nv_mov_b32 v%d, 0\nv_mov_b32 v%d, 0' % (v(b, 2), vCs, 256 * 'qkv'.index(t), b + 2, b + 3))
            base, off = (vb, k * 3072) if t.isupper() else (vTr, k * 3072) if k < 16 else (vTr2, (k - 16) * 3072)
            off += 64 * 'qkv'.index(t.lower())
            return mk('ds_read_b64_tr_b16 %s, v%d offset:%d\nds_read_b64_tr_b16 %s, v%d offset:%d' % (v(b, 2), base, off, v(b + 2, 2), base, off + d2))
        tr2 = mk('v_add_u32 v%d, %d, v%d' % (vTr2, 16 * 3072, vTr))
        if l == 1:
            P.add(tr2)
        for j in range(NB):
            P.add(rd(j))
        if l == 1:
            P.add(self.poll_check(sT4))
            P.add(self.stamp('x2_seen'))
            P.add(flat(lds[:o['look']]))
            P('s_add_u32 s%d, s%d, 1\nv_mov_b32 v%d, s%d' % (sNonce, sNonce, vNonce, sNonce))
        P('v_and_b32 v%d, 31, v0\nv_lshlrev_b32 v%d, 3, v%d\nv_add_u32 v%d, %d, v%d' % (vCs, vCs, vCs, vCs, L_CS, vCs))
        slots = []
        for j, (t, k) in enumerate(jobs):
            w = v(WB + 4 * (j % NB), 4)
            if t.isupper():
                sl = mfma(CSA + 16 * 'QKV'.index(t), v(vo, 4), w, k == 0)
            else:
                x = v(XE if k == 'e' else xreg[k], 4)
                A, B = (w, x) if t == 'q' else (x, w)
                sl = mfma({'q': AQ, 'k': AK, 'v': AV}[t], A, B, k == 0)
            if l == 0 and j == 40 - NB:
                sl += [wait_tok(self.tok_wq)] + mk('s_waitcnt lgkmcnt(0)\ns_barrier') + (self.stamp('bar2') if self.light else [])
                sl += mk('s_mul_i32 s%d, s%d, %d\nv_add_u32 v%d, s%d, v%d' % (sT0, sW, 7 * 3072, vb, sT0, vTr))
            if j + NB < len(jobs):
                sl += rd(j + NB)
            slots.append(sl)
        c0 = 21 if l == 0 else 0
        if l == 0:
            n = len(self.late_dma)
            for i, g in enumerate(self.late_dma):
                slots[(i * o['latespan']) // n] += g
            slots[28] += [wait_tok(self.tok_xb)]
            for i, g in enumerate(self.late_rd):
                slots[28 + i // 2] += g
            slots[37] += mk('\n'.join('v_mov_b32 v%d, 0x3f803f80' % (vo + i) for i in range(4)))
            slots[39] += self.late_dots + fin + tr2
            w1e = self.w1_early()
            for i, g in enumerate(w1e[:8] + [self.touch_attn(0, vT)]):
                slots[40 + 2 * i] += g
            for i, g in enumerate(w1e[8:]):
                slots[o['w1b2'] + 2 * i] += g
            slots[62] += mk('v_and_b32 v%d, 31, v0\nv_lshlrev_b32 v%d, 2, v%d\ns_mul_i32 s%d, s%d, 384\nv_add_u32 v%d, %d, v%d\nv_add_u32 v%d, s%d, v%d'
                            % (vb, vb, vb, sT0, sW, vb, L_KVB, vb, vb + 1, sT0, vb))
            slots[63] += mk('\n'.join('ds_write_b32 v%d, v%d offset:%d' % (vb + 1, CSA + 16 * t, 128 * t) for t in range(3)))
            slots[65] += mk('s_waitcnt lgkmcnt(0)\ns_barrier')
            for t in range(3):
                r = RLB
                tt = (1, 2, 0)[t]
                slots[65 + 5 * t] += mk('\n'.join('ds_read_b32 v%d, v%d offset:%d' % (r + ww, vb, 384 * ww + 128 * tt) for ww in range(4)))
                slots[68 + 5 * t] += mk('v_add_f32 v%d, v%d, v%d\nv_add_f32 v%d, v%d, v%d\nv_add_f32 v%d, v%d, v%d' % (r, r, r + 1, r + 2, r + 2, r + 3, r, r, r + 2))
                slots[69 + 5 * t] += self.split_w(r + 2, r, r + 1) + mk('ds_write_b64 v%d, %s offset:%d' % (vCs, v(r + 2, 2), 256 * tt))
        else:
            n = o['look']
            for j in range(0, nmain, 2):
                if n < 28:
                    k_free = n - 20
                    assert k_free < 0 or j >= jobs.index(('q', k_free))
                    slots[j] += lds[n]
                    n += 1
            st = self.frag_loads([v(SB + 4 * (i % 4), 4) for i in range(7)], SRD_CL, sT5, XIN_OFF + 28672, st=sT1)
            for i in range(4):
                slots[25 + 2 * i] += st[i]
            ex = []
            for i in range(1, 16):
                ex += mk('v_add_f32 v%d, v%d, v%d' % (vS, vS if i > 1 else SB, SB + i))
            for i in range(0, 15, 3):
                slots[40 + i // 3] += ex[i:i + 3]
            for i in range(3):
                slots[45 + i] += st[4 + i]
            ex = flat(mk('v_add_f32 v%d, v%d, v%d' % (vS, vS, SB + i)) for i in range(12)) + fin
            per = (len(ex) + 8) // 9
            for i in range(9):
                slots[54 + i] += ex[i * per:(i + 1) * per]
        fill = mk('v_lshrrev_b32 v%d, 5, v0\nv_lshl_add_u32 v%d, v%d, 4, s%d' % (vT + 1, vT + 1, vT + 1, sT4))
        bc = lambda g: mk('ds_read_b128 %s, v%d offset:%d' % (v(RLB + 4 * (g & 1), 4), vT + 1, 32 * g))
        fill += bc(0) + bc(1)
        slots[nmain - 3] += fill
        fill = mk('v_mov_b32 v%d, 0x3f803f80' % vPoll)
        for g in range(4):
            R = [RLB + 4 * (g & 1) + i for i in range(4)]
            e = self.phi4([AK + 4 * g + i for i in range(4)], R, xreg[8])
            e2 = flat(mk('v_mul_f32 v%d, v%d, v%d' % (AV + 4 * g + i, AV + 4 * g + i, R[i])) for i in range(4))
            fill += e[:4] + e2
            if g + 2 < 4:
                fill += bc(g + 2)
            fill += e[4:]
            fill += self.pack(AK + 2 * g, AK + 4 * g, 2) + self.pack(AV + 2 * g, AV + 4 * g, 2)
            for i in range(2):
                fill += mk('v_cndmask_b32 v%d, v%d, v%d, s[%d:%d]' % (AV + 2 * g + i, AV + 2 * g + i, vPoll, sN28, sN28 + 1))
        fill += mk('v_add_u32 v%d, s%d, v%d' % (vT, sT4, vL16))
        vG = SB + 12
        ga = self.kv_lane_addr(vG, vG + 1, vG + 2, gather=True)
        for i in range(0, len(ga), 3):
            slots[46 + c0 // 3 + i // 3] += ga[i:i + 3]
        P.add(flat(slots[:nmain]))
        P.add(self.stamp('s1_kv_mfma'))
        P.add(spread(slots[nmain:], fill, start=1))
        DK = 16
        P.add(mfma(DK, v(AK, 4), v(AV, 4), True) + mfma(DK, v(AK + 4, 4), v(AV + 4, 4)))
        for q in range(4):
            P('ds_write_b128 v%d, %s offset:%d' % (vT, v(DK + 4 * q, 4), 1024 * q))
        P('s_waitcnt lgkmcnt(0)\ns_barrier')
        for ww in range(4):
            P('ds_read_b128 %s, v%d offset:%d' % (v(32 + 4 * ww, 4), vG, 4096 * ww))
        P('v_lshlrev_b32 v%d, 3, v0\ns_mov_b32 s%d, 0x80808080\ns_mov_b32 s%d, 0x80808080' % (vT, sT0 + 1, sT0 + 2))
        for x, y in ((32, 36), (40, 44), (32, 40)):
            for i in (0, 2):
                P('v_pk_add_f32 %s, %s, %s' % (v(x + i, 2), v(x + i, 2), v(y + i, 2)))
        P.add(self.pack(32, 32, 2))
        for i in range(2):
            P('v_cndmask_b32 v%d, v%d, v%d, s[%d:%d]' % (32 + i, 32 + i, vNonce, sT0 + 1, sT0 + 2))
        P('buffer_store_dwordx2 %s, v%d, %s, s%d offen sc1' % (v(32, 2), vT, self.srd(SRD_WS), sKvMy))
        P.add(self.stamp('kv_pub'))
        if l == 0:
            P('s_lshl_b32 s%d, s%d, 11\ns_add_u32 s%d, s%d, %d' % (sT4, sC, sT4, sT4, WS_XCC))
            P('v_and_b32 v%d, 15, v0\nv_lshlrev_b32 v%d, 7, v%d' % (vPA, vPA, vPA))
            P('buffer_load_dword v%d, v%d, %s, s%d offen sc1' % (vPoll, vPA, self.srd(SRD_WS), sT4))
        if l == 1 and o['l1touch'] & 1:
            P.add(self.touch_attn(0, vT))
        if l == 1 and o['l1touch'] & 2:
            P.add(self.touch([(16, SRD_CL, sHst, b * 114688) for b in range(4)], vT))
        PQ = self.PQ = 104

        def qepi():
            L = []
            for g in range(4):
                L += self.phi4([AQ + 4 * g + i for i in range(4)], [vRl] * 4, 48) + self.pack(PQ + 2 * g, AQ + 4 * g, 2)
            for i in (6, 7):
                L += mk('v_cndmask_b32 v%d, v%d, 0, s[%d:%d]' % (PQ + i, PQ + i, sHalf, sHalf + 1))
            return L
        if l == 0:
            self.staging(qepi)
        else:
            P.add(qepi())

    V1A = 175

    def w1_early(self):
        v1a = self.V1A
        pre = mk('v_lshrrev_b32 v%d, 2, v0\nv_mul_u32_u24 v%d, 3584, v%d\nv_and_b32 v%d, 3, v0\nv_lshl_add_u32 v%d, v%d, 4, v%d'
                 % (v1a, v1a, v1a, vT, v1a, vT, v1a))
        pre += mk('s_lshl_b32 s%d, s%d, 2\ns_add_u32 s%d, s%d, s%d\ns_lshl_b32 s%d, s%d, 6\nv_add_u32 v%d, s%d, v%d' % (sT5, sM, sT5, sT5, sW, sT5, sT5, v1a, sT5, v1a))
        pre += mk('s_mul_i32 s%d, s%d, 14336\ns_add_u32 s%d, s%d, %d\ns_mul_i32 s%d, s%d, %d' % (sT3, sW, sT3, sT3, L_EX, sQ1, sD1, 14 * 16 * 3584))
        out = [pre]
        for i in range(14):
            g = mk('s_add_u32 m0, s%d, %d\ns_add_u32 s%d, s%d, %d' % (sT3, 1024 * i, sQ0, sQ1, i * 16 * 3584))
            g += mk('buffer_load_dwordx4 v%d, %s, s%d offen lds' % (v1a, self.srd(SRD_W1), sQ0))
            out.append(g)
        self.tok_w1a = tok(out[-1][-1])
        return out

    def staging(self, qepi):
        P = self.P
        lskip, ljoin = P.newlabel('Lnostage'), P.newlabel('Lstaged')
        P.add([I('s_cmp_ge_u32 s%d, 14\ns_cbranch_scc1 %s' % (sM, lskip), kind='block')])
        txt, _ = finalize(mk('s_nop 7') + qepi())
        self.ool.append('%s:\n%s\ns_waitcnt vmcnt(0)\ns_branch %s' % (lskip, '\n'.join(t.strip() for t in txt.split('\n')), ljoin))
        v1a, v2a, t0, t1, t2, vb, vwo = 112, 113, 114, 115, 116, 120, 121
        nt = ' nt' if self.o['stnt'] else ''
        NS = 10
        P('v_mov_b32 v%d, v%d\ns_mov_b32 s%d, s%d\ns_mul_i32 s%d, s%d, %d\ns_mul_i32 s%d, s%d, %d' % (v1a, self.V1A, sWi, sQ1, sQ1, sW, NS * 2048, sRot, sMo, 128 * 896))
        P('v_lshrrev_b32 v%d, 3, v0\nv_mul_u32_u24 v%d, 896, v%d\nv_and_b32 v%d, 7, v0\nv_lshl_add_u32 v%d, v%d, 4, v%d'
          % (v2a, v2a, v2a, vT, v2a, vT, v2a))
        P('s_lshr_b32 s%d, s%d, 1\ns_lshl_b32 s%d, s%d, 7\ns_mul_i32 s%d, s%d, %d\ns_add_u32 s%d, s%d, s%d\nv_add_u32 v%d, s%d, v%d'
          % (sT0, sM, sT0, sT0, sT1, sW, 32 * 896, sT0, sT0, sT1, v2a, sT0, v2a))
        P('\n'.join('v_accvgpr_read_b32 v%d, a%d' % (160 + i, 216 + i) for i in range(8)))
        NU = 35

        def issue(u):
            out = []
            for i in range(2):
                g = mk('s_add_u32 m0, s%d, %d' % (sQ1, (u % NS) * 2048 + 1024 * i))
                if u < 7:
                    va, srd = v1a, SRD_W1
                    g += mk('s_sub_u32 s%d, %d, s%d' % (sQ0, (14 + 2 * u + i) * 16 * 3584, sWi))
                else:
                    kap = u - 7
                    va, srd = v2a, SRD_W2
                    if kap % 2 == 0 and i == 0 and kap:
                        g += mk('s_add_u32 s%d, s%d, %d\ns_cmp_ge_u32 s%d, %d\ns_cselect_b32 s%d, %d, 0\ns_sub_u32 s%d, s%d, s%d'
                                % (sRot, sRot, 128 * 896, sRot, 14 * 128 * 896, sQ0, 14 * 128 * 896, sRot, sRot, sQ0))
                    g += mk('s_add_u32 s%d, s%d, %d' % (sQ0, sRot, (16 * (kap % 2) + 8 * i) * 896))
                g += mk('buffer_load_dwordx4 v%d, %s, s%d offen%s lds' % (va, self.srd(srd), sQ0, nt))
                out.append(g)
            return out, tok(out[-1][-1])

        def w1rd(k, va, o):
            return mk('ds_read_b64_tr_b16 %s, v%d offset:%d\nds_read_b64_tr_b16 %s, v%d offset:%d' % (w1half(k, 0), va, o, w1half(k, 1), va, o + 512))

        def consume(u):
            o = (u % NS) * 2048
            if u < 7:
                return w1rd(14 + 2 * u, t1, o) + w1rd(15 + 2 * u, t1, o + 1024)
            L = []
            for js in range(2):
                b = W2A + 8 * (u - 7) + 4 * js
                L += mk('ds_read_b64_tr_b16 %s, v%d offset:%d\nds_read_b64_tr_b16 %s, v%d offset:%d' % (a(b, 2), t2 + js, o, a(b + 2, 2), t2 + js, o + 1024))
            return L
        ad = self.trbase(t1, 64, 4) + mk('v_add_u32 v%d, s%d, v%d\nv_add_u32 v%d, s%d, v%d' % (t0, sT3, t1, t1, sQ1, t1))
        ad += mk('s_lshr_b32 s%d, s%d, 1' % (sT0, sW)) + self.trbase(t2, 128, 4, xor16=sT0) + mk('v_add_u32 v%d, s%d, v%d' % (t2, sQ1, t2))
        ad += mk('s_and_b32 s%d, s%d, 1\ns_lshl_b32 s%d, s%d, 6\ns_xor_b32 s%d, s%d, 64\nv_add_u32 v%d, s%d, v%d\nv_add_u32 v%d, s%d, v%d'
                 % (sT0, sW, sT0, sT0, sT1, sT0, t2 + 1, sT1, t2, t2, sT0, t2))
        ad += mk('v_and_b32 v%d, 31, v0\nv_lshlrev_b32 v%d, 1, v%d\nbuffer_load_ushort v%d, v%d, %s, s%d offen' % (vT, vT, vT, vb, vT, self.srd(SRD_B1), sT5))
        ad += mk('v_lshrrev_b32 v%d, 2, v0\nv_mul_u32_u24 v%d, 896, v%d\nv_and_b32 v%d, 3, v0\nv_lshl_add_u32 v%d, v%d, 4, v%d\ns_lshl_b32 s%d, s%d, 6\nv_add_u32 v%d, s%d, v%d'
                 % (vwo, vwo, vwo, vT, vwo, vT, vwo, sT2, sM, vwo, sT2, vwo))
        vb2 = 168
        ad += mk('v_lshrrev_b32 v%d, 5, v0\nv_lshlrev_b32 v%d, 3, v%d\ns_lshl_b32 s%d, s%d, 5' % (vT, vT, vT, sT2, sFe))
        ad += mk('buffer_load_dwordx2 %s, v%d, %s, s%d offen\nbuffer_load_dwordx2 %s, v%d, %s, s%d offen offset:16'
                 % (v(vb2, 2), vT, self.srd(SRD_B2), sT2, v(vb2 + 2, 2), vT, self.srd(SRD_B2), sT2))
        tk, first = [], []
        for u in range(NS - 1):
            g, t = issue(u)
            first += g
            tk.append(t)
        early = [wait_tok(self.tok_w1a)] + flat(w1rd(k, t0, 1024 * k) for k in range(14))
        P.add(spread(first, qepi() + ad + early))
        P('s_waitcnt lgkmcnt(0)\ns_barrier')
        if self.light:
            P.add(self.stamp('st_bar'))
        wo = [mk('s_mul_i32 s%d, s%d, %d\ns_lshl_b32 s%d, s%d, 10\ns_add_u32 s%d, s%d, %d' % (sT2, sW, 16 * 896, sT3, sW, sT3, sT3, L_WO))]
        for t in range(7):
            wo.append(mk('s_add_u32 m0, s%d, %d\ns_add_u32 s%d, s%d, %d\nbuffer_load_dwordx4 v%d, %s, s%d offen lds' % (sT3, 4096 * t, sT0, sT2, t * 64 * 896, vwo, self.srd(SRD_WO), sT0)))
        last = I('s_mov_b32 s%d, %d\ns_mov_b32 m0, %d\ns_mov_b64 exec, 0xffff\nbuffer_load_dwordx4 v%d, %s, s%d offen lds\ns_mov_b64 exec, -1'
                 % (sT2, 448 * 896, L_WO + 28672, vwo, self.srd(SRD_WO), sT2), kind='block', nvm=1, src=[('v', vwo)])
        self.tok_wo = tok(last)
        wo.append([last])
        vo, D = 124, 128
        cs = [mk('\n'.join('v_mov_b32 v%d, 0x3f803f80' % (vo + i) for i in range(4)))]
        for k in range(0, 28, 2):
            cs.append(mfma(D, v(vo, 4), w1reg(k), k == 0) + mfma(D, v(vo, 4), w1reg(k + 1)))
        cs.append([])
        cs.append(self.split_w(vW1X, D, vT) + mk('v_lshl_or_b32 v%d, v%d, 16, v%d' % (vb, vb, vb))
                  + mk('v_cndmask_b32 v%d, v%d, v%d, s[%d:%d]\nv_cndmask_b32 v%d, v%d, 0, s[%d:%d]'
                       % (vW1X, vW1X, vb, sHalf, sHalf + 1, vW1X + 1, vW1X + 1, sHalf, sHalf + 1)))
        cs.append(self.unpack(144, vb2, 4) + mk('\n'.join('v_mov_b32 v%d, 0' % r for r in range(152, 156)))
                  + mk('s_lshl_b32 s%d, s%d, 7\ns_add_u32 s%d, s%d, %d\nv_lshrrev_b32 v%d, 5, v0\nv_lshl_add_u32 v%d, v%d, 6, s%d' % (sT0, sW, sT0, sT0, L_B2, vT, vT, vT, sT0))
                  + [I('ds_write_b128 v%d, %s\nds_write_b128 v%d, %s offset:16\nds_write_b128 v%d, %s offset:32\nds_write_b128 v%d, %s offset:48\ns_waitcnt lgkmcnt(0)'
                       % (vT, v(144, 4), vT, v(148, 4), vT, v(152, 4), vT, v(152, 4)), kind='block', src=regs_of(v(144, 12)) + [('v', vT)], drain_lgkm=True)])
        o0 = self.o['wo0']
        for u in range(NU):
            P.add([wait_tok(tk[u])] + consume(u))
            if self.light:
                P.add(self.stamp('st_%d' % u))
            if u + NS - 1 < NU:
                if u:
                    P('s_waitcnt lgkmcnt(4)')
                g, t = issue(u + NS - 1)
                tk.append(t)
                P.add(flat(g))
            if 8 <= u < 8 + len(cs):
                P.add(cs[u - 8])
            if o0 <= u < o0 + len(wo):
                P.add(wo[u - o0])
        P.label(ljoin)
        P.add([I('s_nop 1', kind='block', states=2)])

    def kvx(self, l):
        P = self.P
        P.comment('==== layer %d : kv exchange' % l)
        if l == 0:
            lw, lb = P.newlabel('Lxcc'), P.newlabel('Lxok')
            P('v_subrev_u32 v%d, s%d, v%d\nv_cmp_lt_u32 vcc, 15, v%d' % (vPoll, sNonce, vPoll, vPoll))
            P.add([I('s_cbranch_vccnz %s\n%s:' % (lw, lb), kind='block')])
            self.ool.append('\n'.join([
                lw + ':',
                'buffer_load_dword v%d, v%d, %s, s%d offen sc1' % (vPoll, vPA, self.srd(SRD_WS), sT4),
                's_add_u32 s%d, s%d, 1' % (sSpin, sSpin),
                's_cmp_gt_u32 s%d, 0x40000' % sSpin,
                's_cbranch_scc1 L_end',
                's_waitcnt vmcnt(0)',
                'v_subrev_u32 v%d, s%d, v%d' % (vPoll, sNonce, vPoll),
                'v_cmp_lt_u32 vcc, 15, v%d' % vPoll,
                's_cbranch_vccnz %s' % lw,
                's_branch %s' % lb]))
            P('v_cmp_ne_u32 vcc, s%d, v%d\ns_cmp_lg_u64 vcc, 0\ns_cselect_b32 s%d, 1, 0' % (sXcc, vPoll, sSlow))
        RES = 160
        if l == 1:
            P('s_lshl_b32 s%d, s%d, 11\ns_add_u32 s%d, s%d, s%d\ns_add_u32 s%d, s%d, %d' % (sT1, sM, sT0, sT5, sT1, sT0, sT0, XIN_OFF))
            for j in range(2):
                P('buffer_load_dwordx4 %s, v%d, %s, s%d offen offset:%d' % (v(RES + 4 * j, 4), vL16, self.srd(SRD_CL), sT0, 1024 * j))
            if self.o['reuse']:
                P('s_mul_i32 s%d, s%d, %d' % (sT0, sSlow, LOFF))
            else:
                P('s_mov_b32 s%d, %d' % (sT0, LOFF))
            P('s_add_u32 s%d, s%d, s%d\ns_addc_u32 s%d, s%d, 0\ns_sub_u32 s%d, s%d, s%d' % (SRD_CL, SRD_CL, sT0, SRD_CL + 1, SRD_CL + 1, SRD_CL + 2, SRD_CL + 2, sT0))
            if self.o['kvdelay']:
                P('s_sleep %d' % self.o['kvdelay'])
        P('s_cmp_eq_u32 s%d, 3\ns_cselect_b32 s%d, 0xffff0000, 0\ns_cselect_b32 s%d, 0xffff0000, 0' % (sW, sPm, sPm + 1))
        P.add(self.kv_lane_addr(vT + 1, vT + 2, vT + 3, gather=False))
        P('v_lshlrev_b32 v%d, 5, v0\nv_add_u32 v%d, %d, v%d' % (vT + 2, vT + 2, L_KVB, vT + 2))
        K10, K01 = 96, 97
        P('v_mov_b32 v%d, 0x3f80\nv_mov_b32 v%d, 0x3f800000\ns_mov_b32 s%d, 0x88888888\ns_mov_b32 s%d, 0x88888888' % (K10, K01, sPm, sPm + 1))
        P.add(self.pa(16))
        P.add(self.trbase(vTr, 64, 4, add=L_WO))
        lsw, lre = P.newlabel('Lsweep'), P.newlabel('Lresweep')
        P.add(self.stamp('sweep_start'))
        P.label(lsw)
        B = 32
        P.add(flat(self.frag_loads([v(B + 4 * i, 4) for i in range(8)], SRD_WS, sKv, 0, flags='sc1')))
        bad, S = vT, 16
        P('v_mov_b32 v%d, 0' % bad)
        for i in range(8):
            for k in range(4):
                for hh, K in enumerate((K10, K01)):
                    P('v_dot2_f32_bf16 v%d, v%d, v%d, %s' % (S + 2 * k + hh, B + 4 * i + k, K, 'v%d' % (S + 2 * k + hh) if i else '0'))
            for k in (2, 3):
                P('v_bitop3_b32 v%d, v%d, s%d, v%d bitop3:0xbe' % (bad, B + 4 * i + k, sNonce, bad))
        P('v_cmp_ne_u32 vcc, 0, v%d\ns_and_b64 vcc, vcc, s[%d:%d]' % (bad, sPm, sPm + 1))
        P.add([I('s_cbranch_vccnz %s' % lre, kind='block', states=1)])
        self.ool.append('%s:\ns_sleep 6\ns_add_u32 s%d, s%d, 1\ns_cmp_gt_u32 s%d, 0x40000\ns_cbranch_scc1 L_end\ns_branch %s'
                        % (lre, sSpin, sSpin, sSpin, lsw))
        P.add(self.stamp('sweep_done'))
        for k in range(4):
            P('v_permlane32_swap_b32 v%d, v%d' % (S + k, S + 4 + k))
        for k in (0, 2):
            P('v_pk_add_f32 %s, %s, %s' % (v(S + k, 2), v(S + k, 2), v(S + 4 + k, 2)))
        P.add(self.pack(S, S, 2))
        P('ds_write_b64 v%d, %s' % (vT + 1, v(S, 2)))
        if l == 0:
            P.add([wait_tok(self.tok_wo)])
        P('s_waitcnt lgkmcnt(0)\ns_barrier')
        KF, D = 32, 16
        P('ds_read_b128 %s, v%d\nds_read_b128 %s, v%d offset:16' % (v(KF, 4), vT + 2, v(KF + 4, 4), vT + 2))
        P.add(mfma(D, v(KF, 4), v(self.PQ, 4), True))
        for i in (6, 7):
            P('v_cndmask_b32 v%d, v%d, 0, s[%d:%d]' % (KF + i, KF + i, sHalf, sHalf + 1))
        P.add(mfma(D, v(KF + 4, 4), v(self.PQ + 4, 4)))
        t1, t2 = 40, 42
        P('v_mov_b32 v%d, v%d\nv_mov_b32 v%d, v%d\nv_permlane32_swap_b32 v%d, v%d' % (t1, D + 12, t2, D + 12, t1, t2))
        P('v_add_f32 v%d, %s, v%d\nv_rcp_f32 v%d, v%d\nv_mul_f32 v%d, s%d, v%d\nv_mul_f32 v%d, s%d, v%d' % (t2, f32(1e-6), t2, t2, t2, t1, sLn2, t2, t1 + 1, sLn2, t2))
        for r in range(0, 16, 2):
            P('v_pk_mul_f32 %s, %s, %s' % (v(D + r, 2), v(D + r, 2), v(t1, 2)))
        P.add(self.pack(D, D, 8))
        for i in (6, 7):
            P('v_cndmask_b32 v%d, v%d, 0, s[%d:%d]' % (D + i, D + i, sHalf, sHalf + 1))
        st = self.stores(['buffer_store_dwordx4 %s, v%d, %s, s%d offen offset:%d' % (v(D + 4 * j, 4), vL16, self.srd(SRD_CL), sOst, 1024 * j) for j in range(2)])
        tk = tok(st[-1])
        P.add(st)
        P.add(self.flag([tk], sFoMy))
        P.add(self.stamp('o_pub'))

    def s2(self, l):
        P = self.P
        o = self.o
        P.comment('==== layer %d : S2' % l)
        ACC, OF, WB, RES = 16, 32, 144, 160
        NB = 4
        P.add(self.poll_issue(sFo))
        P.add(self.unpack(ACC, RES, 8))
        jobs = [(h, j) for h in range(16) for j in range(2)]
        rd = lambda i: mk('ds_read_b64_tr_b16 %s, v%d offset:%d\nds_read_b64_tr_b16 %s, v%d offset:%d' % (
            v(WB + 4 * (i % NB), 2), vTr, 1792 * jobs[i][0] + 1024 * jobs[i][1],
            v(WB + 4 * (i % NB) + 2, 2), vTr, 1792 * jobs[i][0] + 1024 * jobs[i][1] + 512))
        for i in range(NB):
            P.add(rd(i))
        P('s_add_u32 s%d, s%d, %d' % (sT4, sOst, X1_OFF))
        P('s_lshr_b32 s%d, s%d, 2\ns_lshl_b32 s%d, s%d, 10\ns_and_b32 s%d, s%d, 3\ns_lshl_b32 s%d, s%d, 2\ns_add_u32 s%d, s%d, s%d\ns_add_u32 s%d, s%d, s%d\ns_add_u32 s%d, s%d, %d'
          % (sT5, sM, sT5, sT5, sT1, sM, sT1, sT1, sT5, sT5, sT1, sT5, sT5, sBlk, sT5, sT5, X1_OFF + 28672))
        P.add(self.poll_check(sFo))
        P.add(self.stamp('o_seen'))
        oreg = [OF + 4 * (i % 28) for i in range(32)]
        lds = self.frag_loads([v(r, 4) for r in oreg], SRD_CL, sBlk, O_OFF, flags='sc1')
        n = o['look2']
        P.add(flat(lds[:n]))
        for i in range(32):
            P.add(mfma(ACC, v(WB + 4 * (i % NB), 4), v(oreg[i], 4)))
            if self.light and i in (0, 8, 16, 31):
                P.add(self.stamp('s2_%d' % i))
            if i + n < 32:
                P.add(lds[i + n])
            if i + NB < 32:
                P.add(rd(i + NB))
        P.add(self.pa(14, blocks=True))
        P.add(self.pack(OF, ACC, 8))
        P.add(self.stores(['buffer_store_dwordx4 %s, v%d, %s, s%d offen offset:%d' % (v(OF + 4 * j, 4), vL16, self.srd(SRD_CL), sT4, 1024 * j) for j in range(2)]))
        P.add(self.row_stats(OF, 8, vT, vT + 2))
        st = self.stores(['buffer_store_dword v%d, v%d, %s, s%d offen' % (vT, vL16, self.srd(SRD_CL), sT5)])
        tk = tok(st[-1])
        P.add(st)
        if self.light:
            P.add(self.stamp('x1_st'))
        P.add(self.flag([tk], sFoMy, FX1 - FO))
        P.add(self.stamp('x1_pub'))

    def gelu(self, acc, KK, T):
        pr = range(0, 16, 2)
        A = flat(mk('v_pk_mul_f32 %s, %s, %s' % (v(T + i, 2), v(acc + i, 2), v(acc + i, 2))) for i in pr)
        A += flat(mk('v_pk_fma_f32 %s, %s, %s, %s op_sel:[0,1,0] op_sel_hi:[1,1,0]' % (v(T + i, 2), v(T + i, 2), v(KK, 2), v(KK, 2))) for i in pr)
        A += flat(mk('v_pk_mul_f32 %s, %s, %s' % (v(T + i, 2), v(T + i, 2), v(acc + i, 2))) for i in pr)
        E = flat(mk('v_exp_f32 v%d, v%d' % (T + i, T + i)) for i in range(16))
        B = flat(mk('v_pk_fma_f32 %s, %s, %s, %s op_sel_hi:[1,0,0]' % (v(T + i, 2), v(T + i, 2), v(KK + 2, 2), v(KK + 2, 2))) for i in pr)
        R = flat(mk('v_rcp_f32 v%d, v%d' % (T + i, T + i)) for i in range(16))
        C = flat(mk('v_pk_mul_f32 %s, %s, %s' % (v(acc + i, 2), v(acc + i, 2), v(T + i, 2))) for i in pr)
        return A, E, B, R, C, self.pack(acc, acc, 8)

    def mlp(self, l):
        P = self.P
        o = self.o
        P.comment('==== layer %d : MLP' % l)
        ACC = (16, 32)
        XB, EXB, WEX, T, KK, VQ, RING = 48, 72, 76, 80, 96, 100, 112
        NB = 6
        P('s_mov_b32 s%d, %d' % (sT4, FX1))
        P.add(self.poll_issue(sT4))
        P('s_mul_i32 s%d, s%d, 7168' % (sT5, sW))
        P('v_mov_b32 v%d, v%d\nv_mov_b32 v%d, v%d' % (WEX, vW1X, WEX + 1, vW1X + 1))
        P('\n'.join('v_mov_b32 v%d, 0' % r for r in (WEX + 2, WEX + 3, EXB + 2, EXB + 3)))
        vE8, vK16, vX2 = vTr, vT + 3, 104
        P('v_lshlrev_b32 v%d, 3, v0\nv_add_u32 v%d, %d, v%d' % (vE8, vE8, L_KVS, vE8))
        P('v_and_b32 v%d, 31, v0\nv_lshlrev_b32 v%d, 4, v%d\nv_add_u32 v%d, %d, v%d' % (vK16, vK16, vK16, vK16, L_KVS + 512, vK16))
        vXA, vXB = vX2, vX2 + 1
        P('s_mul_i32 s%d, s%d, 14336\nv_add_u32 v%d, s%d, v%d\ns_sub_u32 s%d, 14336, s%d\nv_add_u32 v%d, s%d, v%d' % (sT0, sD1, vXA, sT0, vL16, sT0, sT0, vXB, sT0, vL16))
        if l == 0:
            P.add(self.wq_addr(VQ))
            VQ2 = (vMean, vRl, vDummy)
            wqg = self.wq_dma(range(4), VQ) + self.wq_dma(range(4, 7), VQ2)
            self.tok_wq = tok(wqg[-1][-1])
        for q, sB in enumerate((sEb, sLb)):
            P('s_lshl_b32 s%d, s%d, 15\ns_lshl_b32 s%d, s%d, 10\ns_add_u32 s%d, s%d, s%d\ns_add_u32 s%d, s%d, %d' % (sT0, sB, sT1, sFe, sT0, sT0, sT1, sRes + q, sT0, X1_OFF))
            if l == 0:
                P('s_mul_i32 s%d, s%d, %d\ns_add_u32 s%d, s%d, %d\ns_add_u32 s%d, s%d, s%d' % (sT0, sB, XIN_BS, sT0, sT0, XIN_OFF, sFin + q, sT0, sT1))
                P('s_lshr_b32 s%d, s%d, 2\ns_lshl_b32 s%d, s%d, 10\ns_add_u32 s%d, s%d, s%d\ns_and_b32 s%d, s%d, 3\ns_lshl_b32 s%d, s%d, 2\ns_add_u32 s%d, s%d, s%d\ns_add_u32 s%d, s%d, 28672'
                  % (sT1, sFe, sT1, sT1, sT0, sT0, sT1, sT1, sFe, sT1, sT1, sT0, sT0, sT1, sFin + 2 + q, sT0))
                P('s_lshl_b32 s%d, s%d, 5\ns_add_u32 s%d, s%d, s%d\ns_lshl_b32 s%d, s%d, 2\ns_add_u32 s%d, s%d, %d' % (sT1, sB, sT1, sT1, sFe, sT1, sT1, sFin + 4 + q, sT1, FXIN))
            else:
                P('s_lshl_b32 s%d, s%d, 2\ns_add_u32 s%d, s%d, s%d\ns_mul_i32 s%d, s%d, %d\ns_lshl_b32 s%d, s%d, 5\ns_add_u32 s%d, s%d, s%d'
                  % (sT0, sC, sT0, sT0, sB, sT0, sT0, 32 * 896, sT1, sFe, sFin + q, sT0, sT1))
        P('s_add_u32 s%d, s%d, %d' % (sT1, sBlk, X1_OFF + 28672))
        P.add(self.poll_check(sT4))
        P.add(self.stamp('x1_seen'))
        xd, tb = [], []
        for b in range(4):
            gs = []
            for i in range(7):
                g = []
                if i % 4 == 0:
                    g += mk('s_add_u32 m0, s%d, %d\ns_add_u32 s%d, s%d, %d' % (sT5, b * L_XB + 1024 * i, sT0, sT5, X1_OFF + b * 32768 + 1024 * i))
                g += mk('buffer_load_dwordx4 v%d, %s, s%d offen offset:%d %s lds' % (vL16, self.srd(SRD_CL), sT0, 1024 * (i % 4), 'sc1' if o['xsc1'] else ''))
                gs.append(g)
            tb.append(tok(gs[-1][-1]))
            xd.append(gs)
        P.add(flat(xd[0]))
        stl = [mk('buffer_load_dwordx4 %s, v%d, %s, s%d offen offset:%d sc1' % (v(RING + 4 * i, 4), vL16, self.srd(SRD_CL), sT1, 1024 * i)) for i in range(4)]
        st0 = mk('v_add_f32 v%d, v%d, v%d' % (T, RING, RING + 1))
        for i in range(2, 14):
            st0 += mk('v_add_f32 v%d, v%d, v%d' % (T, T, RING + i))
        st0 += self.stats_finish(T, True)
        st0 += mk('\n'.join(['v_rcp_f32 v%d, v%d' % (KK + 2, vRl),
                             'v_mul_f32 v%d, s%d, v%d' % (KK, sC0, vRl),
                             'v_mul_f32 v%d, v%d, v%d' % (T, vRl, vRl),
                             'v_mul_f32 v%d, s%d, v%d' % (KK + 1, sC1, vRl),
                             'v_mul_f32 v%d, v%d, v%d' % (KK + 1, KK + 1, T),
                             'v_sub_f32 v%d, 0, v%d' % (vMean, vMean),
                             'v_cndmask_b32 v%d, v%d, v%d, s[%d:%d]' % (vMean, vMean, KK + 2, sHalf, sHalf + 1)]))
        st0 += self.split_act(T + 2, vMean, T)
        st0 += mk('s_lshl_b32 s%d, s%d, 10\nv_add_u32 v%d, s%d, v%d\nv_add_u32 v%d, s%d, v%d' % (sT4, sW, vT, sT4, vE8, vT + 1, sT4, vK16))
        st0 += mk('ds_write_b64 v%d, %s\nds_write_b128 v%d, %s' % (vT, v(T + 2, 2), vT + 1, v(KK, 4)))

        def hpub(b):
            pre = mk('s_add_u32 s%d, s%d, %d' % (sT4, sHst, b * 114688))
            st = self.stores(['buffer_store_dwordx4 %s, v%d, %s, s%d offen offset:%d' % (v(ACC[b & 1] + 4 * j, 4), vL16, self.srd(SRD_CL), sT4, 1024 * j) for j in range(2)])
            return pre + st, tok(st[-1])
        hflag = lambda b, tk: self.flag([tk], sFoMy, FH - FO + 512 * b)
        extrd = lambda b, q: mk('ds_read_b128 %s, v%d offset:%d' % (v(KK, 4), vK16, 1024 * b) if q else 'ds_read_b64 %s, v%d offset:%d' % (v(EXB, 2), vE8, 1024 * b))
        extmf = lambda b: mfma(ACC[b & 1], v(WEX, 4), v(EXB, 4))
        hreg = [RING + 4 * (i % 16) for i in range(56)]

        def hload(i):
            blk, kap = divmod(i, 28)
            g = []
            if i == 0:
                g += mk('s_lshl_b32 s%d, s%d, 13' % (sRot, sMo))
            elif kap % 2 == 0:
                g += mk('s_add_u32 s%d, s%d, 8192\ns_cmp_ge_u32 s%d, %d\ns_cselect_b32 s%d, %d, 0\ns_sub_u32 s%d, s%d, s%d'
                        % (sRot, sRot, sRot, 14 * 8192, sHs, 14 * 8192, sRot, sRot, sHs))
            if kap % 2 == 0:
                g += mk('s_add_u32 s%d, s%d, s%d' % (sHs, (sHE, sHL)[blk], sRot))
            g += mk('buffer_load_dwordx4 %s, v%d, %s, s%d offen offset:%d sc1' % (v(hreg[i], 4), vL16, self.srd(SRD_CL), sHs, 1024 * (kap % 2)))
            return g
        pend = None
        npre = o['npre']
        if o['storder']:
            P.add(flat(stl))
        P.add([wait_tok(tb[0])])
        P('s_barrier')
        P.add(self.stamp('s3_b0'))
        job = [(b, k) for b in range(4) for k in range(28)]
        rdj = lambda j: mk('ds_read_b128 %s, v%d offset:%d' % (v(XB + 4 * (j % NB), 4), vXA if job[j][1] < 14 else vXB, (job[j][0] & 1) * L_XB + 1024 * (job[j][1] % 14)))
        for j in range(NB):
            P.add(rdj(j))
        BAR = 28 - NB - 1
        for b in range(4):
            slots = []
            for k in range(28):
                j = 28 * b + k
                sl = mfma(ACC[b & 1], w1reg(k), v(XB + 4 * (j % NB), 4), k == 0)
                if k % 2 == 0:
                    also_waits_for(sl[0], v(XB + 4 * ((j + 1) % NB), 4))
                if k == BAR and b == 0 and self.light:
                    sl += self.stamp('s3_bar')
                if k == BAR and b < 3:
                    sl += [wait_tok(tb[b + 1])] + (mk('s_waitcnt lgkmcnt(0)') if b == 0 else []) + mk('s_barrier')
                if k % 2 == 1:
                    for jj in (j + NB - 1, j + NB):
                        if jj < 112:
                            sl += rdj(jj)
                if k == 25:
                    sl += extrd(b, 0)
                if k == 22 and b == 1:
                    sl += mk('v_add_u32 v%d, %d, v%d\nv_add_u32 v%d, %d, v%d' % (vXA, 2 * L_XB, vXA, vXB, 2 * L_XB, vXB))
                slots.append(sl)
            slots[27] += extmf(b)
            if b == 0:
                slots[26] += extrd(0, 1)
                if o['storder'] == 0:
                    for i, g in enumerate(stl + xd[1] + xd[2][:3]):
                        slots[(3 * i) // 2] += g
                    P.add(spread(slots, st0, start=7, end=BAR))
                else:
                    for i, g in enumerate(xd[1] + xd[2][:3]):
                        slots[2 * i] += g
                    P.add(spread(slots, st0, start=o['storder'], end=BAR))
                continue
            if b == 1:
                for i, g in enumerate(xd[2][3:] + xd[3]):
                    slots[2 * i] += g
            gA, gE, gB, gR, gC, gP = self.gelu(ACC[(b - 1) & 1], KK, T)
            if l == 0 and b >= 2:
                wsel = {2: wqg[0:6], 3: wqg[6:12]}[b]
                for i, gg in enumerate(wsel):
                    slots[9 + 2 * i] += gg
                if b == 3:
                    slots[0] += mk('\n'.join('v_mov_b32 v%d, v%d' % (VQ2[p], VQ + p) for p in range(3)))
            slots[2] += gA
            for i in range(8):
                slots[3 + i] += gE[2 * i:2 * i + 2]
                slots[12 + i] += gR[2 * i:2 * i + 2]
            slots[11] += gB
            slots[20] += gC
            slots[21] += gP[:3]
            slots[22] += gP[3:6]
            st, nxt = hpub(b - 1)
            slots[23] += gP[6:] + st
            if pend is not None:
                slots[o['flagpos']] += hflag(b - 2, pend)
            pend = nxt
            slots[24] += extrd(b, 1)
            if b == 3:
                slots[o['pollE']] += self.pa(14) + self.poll_issue(sPE)
            if b == 1 or self.light:
                P.add(self.stamp('s3_b%d' % b))
            P.add(flat(slots))
        P('s_barrier')
        P.add(self.stamp('s3_end'))
        AE, AL, RX, SEL, RS = 48, 16, 80, 104, 108
        vEW, vER, vB2 = (vTr, vT, vT + 1), vT + 3, vT + 2
        P.add((self.stamp('preE') if self.light else []) + self.poll_check(sPE) + (self.stamp('gotE') if self.light else []))
        resid = lambda q: mk('buffer_load_dwordx4 %s, v%d, %s, s%d offen sc1' % (v(RS, 4), vL16, self.srd(SRD_CL), sRes + q))
        cinit = lambda A: flat(mk('ds_read_b128 %s, v%d offset:%d' % (v(A + 4 * q, 4), vB2, 16 * q)) for q in range(4))
        ad = []
        for n, x in enumerate((2, 1, 3)):
            ad += mk('s_xor_b32 s%d, s%d, %d\ns_mul_i32 s%d, s%d, 6144\ns_add_u32 s%d, s%d, %d\nv_add_u32 v%d, s%d, v%d'
                     % (sT3, sW, x, sT3, sT3, sT3, sT3, L_EX + 2048 * (x - 1), vEW[n], sT3, vL16))
        ad += mk('s_mul_i32 s%d, s%d, 6144\ns_add_u32 s%d, s%d, %d\nv_add_u32 v%d, s%d, v%d' % (sT3, sW, sT3, sT3, L_EX, vER, sT3, vL16))
        sel = mk('\n'.join(['s_lshl_b32 s%d, s%d, 7' % (sT3, sW), 's_add_u32 s%d, s%d, %d' % (sT3, sT3, L_B2),
                             'v_lshrrev_b32 v%d, 5, v0' % SEL, 'v_lshl_add_u32 v%d, v%d, 6, s%d' % (vB2, SEL, sT3),
                             'v_lshlrev_b32 v%d, 2, v%d' % (SEL, SEL), 'v_and_b32 v%d, 31, v0' % (SEL + 1), 'v_sub_u32 v%d, v%d, v%d' % (RS, SEL + 1, SEL),
                             'v_mov_b32 v%d, 0x3f80' % (RS + 1), 'v_mov_b32 v%d, 0x3f800000' % (RS + 2)]))
        for q, r0 in enumerate((0, 2, 8, 10)):
            sel += mk('v_cmp_eq_u32 vcc, %d, v%d\nv_cndmask_b32 v%d, 0, v%d, vcc\nv_cmp_eq_u32 vcc, %d, v%d\nv_cndmask_b32 v%d, v%d, v%d, vcc'
                      % (r0, RS, SEL + q, RS + 1, r0 + 1, RS, SEL + q, SEL + q, RS + 2))
        gA, gE, gB, gR, gC, gP = self.gelu(ACC[1], KK, T)
        st, p3 = hpub(3)
        npre = o['npre']
        P.add(spread([hload(i) for i in range(npre)], sel + resid(0) + gA + hflag(2, pend) + gE + cinit(AE) + gB + gR + gC + gP + st))
        if self.light:
            P.add(self.stamp('g3_end'))

        exch_write = lambda A: flat(mk('ds_write_b128 v%d, %s\nds_write_b128 v%d, %s offset:1024' % (vEW[n], v(r, 4), vEW[n], v(r + 4, 4)))
                                    for n, r in enumerate((A + 8, A + 16, A + 24)))
        exch_read = lambda: flat(mk('ds_read_b128 %s, v%d offset:%d' % (v(RX + 4 * q, 4), vER, 1024 * q)) for q in range(6))

        def addv(d, x, y, n, pk):
            if pk:
                return flat(mk('v_pk_add_f32 %s, %s, %s' % (v(d + i, 2), v(x + i, 2), v(y + i, 2))) for i in range(0, n, 2))
            return flat(mk('v_add_f32 v%d, v%d, v%d' % (d + i, x + i, y + i)) for i in range(n))

        def finish(A, q, pk):
            L = addv(A, A, RX, 8, pk) + addv(RX + 8, RX + 8, RX + 16, 8, pk) + addv(A, A, RX + 8, 8, pk) + self.pack(A, A, 4)
            if l == 0:
                L += self.stores(['buffer_store_dwordx4 %s, v%d, %s, s%d offen' % (v(A, 4), vL16, self.srd(SRD_CL), sFin + q)])
                rs = self.row_stats(A, 4, RX, RX + 2)
                blk = I('\n'.join(x.text for x in rs[:9]), kind='block', src=[r for x in rs[:9] for r in x.src], dst=[('v', RX), ('v', RX + 1), ('v', RX + 2)], states=1, cost=60)
                L += [blk] + mk('s_nop 2') + rs[9:]
                st = self.stores(['buffer_store_dword v%d, v%d, %s, s%d offen' % (RX, vL16, self.srd(SRD_CL), sFin + 2 + q)])
                tk = tok(st[-1])
                return L + st, self.flag([tk], sFin + 4 + q)
            L += mk('v_permlane32_swap_b32 v%d, v%d\nv_permlane32_swap_b32 v%d, v%d' % (A, A + 2, A + 1, A + 3))
            L += mk('buffer_store_dwordx4 %s, v%d, %s, s%d offen' % (v(A, 4), vPA, self.srd(SRD_OUT), sFin + q))
            return L, []

        slots = []
        for i in range(56):
            blk, kap = divmod(i, 28)
            A = (AE, AL)[blk]
            for js in range(2):
                sl = mfma(A, v(SEL, 4), v(RS, 4)) if kap == 0 and js == 0 else []
                slots.append(sl + mfma(A + 16 * js, a(W2A + 8 * kap + 4 * js, 4), v(hreg[i], 4), kap == 0 and js == 1))
        sidx = 0
        for i in range(npre, 56):
            sidx = max(sidx, 2 * (i - 16) + 1 if i >= 16 else 0)
            if i == 28:
                slots[sidx] += (self.stamp('preL') if self.light else []) + self.poll_check(sPL) + (self.stamp('gotL') if self.light else [])
            slots[sidx] += hload(i)
            assert sidx <= 2 * i - 6
            sidx += 1 if 2 * (i + 1) - sidx - 2 < o['lead'] else 2
        slots[o['flag3']] += hflag(3, p3)
        slots[o['pollL']] += self.poll_issue(sPL)
        for i in range(0, len(ad), 4):
            slots[2 * (i // 4) + 30] += ad[i:i + 4]
        slots[40] += resid(1)
        slots[46] += cinit(AL)
        if l == 0:
            for i, gg in enumerate(wqg[12:]):
                slots[o['wqlate'] + 2 * i] += gg
        else:
            slots[44] += mk('v_and_b32 v%d, 31, v0\nv_mul_u32_u24 v%d, 896, v%d\nv_lshrrev_b32 v%d, 5, v0\nv_lshl_add_u32 v%d, v%d, 4, v%d'
                            % (vPA, vPA, vPA, vPoll, vPA, vPoll, vPA))
        P.add(flat(slots[:56]))
        P.add(self.stamp('s4_E'))
        late = slots[56:]
        fin, fl = finish(AE, 0, False)
        P.add(spread(late[:10], exch_write(AE), start=2))
        late[10] += mk('s_waitcnt lgkmcnt(0)\ns_barrier') + exch_read()
        late[34] += mk('s_barrier')
        late[44] += fl
        P.add(spread(late[10:], fin, start=4, end=22))
        P.add(self.stamp('s4_L'))
        P.add(exch_write(AL) + mk('s_waitcnt lgkmcnt(0)\ns_barrier') + exch_read())
        fin, fl = finish(AL, 1, True)
        P.add(fin + fl)
        P.add(self.stamp('x2_pub'))

    def build(self):
        P = self.P
        self.prologue()
        for l in range(2):
            self.s1(l)
            if self.stop == 's1_%d' % l:
                break
            self.kvx(l)
            if self.stop == 'o_%d' % l:
                break
            lnext = 'L_layer%d' % (l + 1)
            if l == 0:
                lsk = P.newlabel('Lskipmlp')
                P.add([I('s_cmp_ge_u32 s%d, 14\ns_cbranch_scc1 %s' % (sM, lsk), kind='block')])
                self.ool.append('%s:\n%s\ns_waitcnt vmcnt(0) lgkmcnt(0)\ns_sleep 60\ns_branch %s' % (lsk, self.idle_work(), lnext))
            else:
                P.add([I('s_cmp_ge_u32 s%d, 14\ns_cbranch_scc1 L_fin' % sM, kind='block')])
            self.s2(l)
            if self.stop == 'x1_%d' % l:
                P.label(lnext)
                break
            self.mlp(l)
            P.label(lnext)
            if l == 0:
                P('s_add_u32 s%d, s%d, %d\ns_add_u32 s%d, s%d, %d' % (sKv, sKv, KVP_L, sKvMy, sKvMy, KVP_L))
            if self.stop == 'x2_%d' % l:
                break
        P.add([I('s_cmp_lg_u32 s2, 0\ns_cbranch_scc1 L_fin\ns_cmp_lg_u32 s%d, 0\ns_cbranch_scc1 L_fin' % sW, kind='block')])
        P('s_mov_b64 exec, 1\nbuffer_store_dword v%d, off, %s, 0 sc1\ns_mov_b64 exec, -1' % (vNonce, self.srd(SRD_WS)))
        if self.probe is not None:
            P.add(self.stamp('end'))
            P.add([I('s_waitcnt lgkmcnt(0)\ns_sub_u32 s94, s94, s96\ns_lshl_b32 s94, s94, 2\ns_add_u32 s94, s94, 10000\nL_pr:\ns_memrealtime s[98:99]\ns_waitcnt lgkmcnt(0)\n'
                     's_sub_u32 s98, s98, s96\ns_cmp_lt_u32 s98, s94\ns_cbranch_scc1 L_pr', kind='block')])
        P.label('L_fin')
        if self.stamps:
            P('s_lshl_b32 s%d, s2, 2\ns_add_u32 s%d, s%d, s%d\ns_lshl_b32 s%d, s%d, 8\ns_add_u32 s%d, s%d, %d' % (sT0, sT0, sT0, sW, sT0, sT0, sT0, sT0, WS_STAMP))
            P.add(self.stamp('end'))
            P('s_memrealtime s[%d:%d]\ns_waitcnt lgkmcnt(0)\nv_writelane_b32 v%d, s%d, 63' % (sStamp, sStamp + 1, vStamp, sStamp))
            P('v_writelane_b32 v%d, s%d, 61' % (vStamp, sSpin))
            P('v_lshlrev_b32 v%d, 2, v0\nbuffer_store_dword v%d, v%d, %s, s%d offen' % (vT, vStamp, vT, self.srd(SRD_WS), sT0))
        P.label('L_end')
        P('s_endpgm')
        body, L = finalize(P.L)
        self.final = L
        ool = '\n'.join('\n'.join(('    ' + t if not t.endswith(':') else t) for t in b.split('\n') if t.strip()) for b in self.ool)
        head = open('cdna_kernels/%s.s.ref' % KNAME[:-7]).read().split('\n')
        hdr = [h for h in head if h.startswith(';') and '@launch' not in h]
        txt = '\n'.join(hdr) + '\n; @launch grid=(256,1,1) block=(256,1,1) lds=%d\n' % LDS_BYTES
        txt += '.amdgcn_target "amdgcn-amd-amdhsa--gfx950"\n.text\n.globl %s\n.p2align 8\n.type %s,@function\n%s:\n' % (KNAME, KNAME, KNAME)
        txt += body + ool + '\nL_code_end:\n'
        txt += '''.section .rodata,"a"
.p2align 6
.amdhsa_kernel %s
  .amdhsa_next_free_vgpr 512
  .amdhsa_next_free_sgpr 102
  .amdhsa_accum_offset 256
  .amdhsa_group_segment_fixed_size 0
  .amdhsa_kernarg_size 88
  .amdhsa_user_sgpr_count 2
  .amdhsa_user_sgpr_kernarg_segment_ptr 1
  .amdhsa_system_sgpr_workgroup_id_x 1
.end_amdhsa_kernel
''' % KNAME
        return txt


if __name__ == '__main__':
    import argparse
    ap = argparse.ArgumentParser()
    ap.add_argument('-o', default='k.s')
    ap.add_argument('--stop', default=None)
    ap.add_argument('--stamps', action='store_true')
    ap.add_argument('opts', nargs='*')
    A = ap.parse_args()
    opt = {k: (x if k in ('probe', 'light') else int(x)) for k, x in (t.split('=') for t in A.opts)}
    g = Gen(stop=A.stop, stamps=A.stamps, **opt)
    open(A.o, 'w').write(g.build())
    if A.stamps:
        open(A.o + '.stamps', 'w').write('\n'.join(g.stamp_names))
    n = {}
    for x in g.final:
        n[x.kind] = n.get(x.kind, 0) + 1
    nops = sum(x.states for x in g.final if x.op == 's_nop')
    print('instructions', n, 'nop states', nops)
```

```python
import re

TRANS = ('v_exp_f32', 'v_log_f32', 'v_rcp_f32', 'v_rsq_f32', 'v_sqrt_f32', 'v_sin_f32', 'v_cos_f32')
NO_DST_S = ('s_cmp', 's_cbranch', 's_waitcnt', 's_barrier', 's_nop', 's_sleep', 's_branch', 's_endpgm',
            's_setprio', 's_bitcmp')

_reg_re = re.compile(r'^(-|\|)?(abs\()?([vas])(\d+|\[(\d+):(\d+)\])\)?\|?$')


def regs_of(opnd):
    opnd = opnd.strip()
    if opnd in ('vcc', 'vcc_lo', 'vcc_hi'):
        return [('x', 'vcc')]
    if opnd in ('exec', 'exec_lo', 'exec_hi'):
        return [('x', 'exec')]
    if opnd == 'm0':
        return [('x', 'm0')]
    m = _reg_re.match(opnd)
    if not m:
        return []
    k = m.group(3)
    if m.group(5) is not None:
        return [(k, i) for i in range(int(m.group(5)), int(m.group(6)) + 1)]
    return [(k, int(m.group(4)))]


class I:
    __slots__ = ('text', 'op', 'kind', 'dst', 'src', 'ops', 'nvm', 'tok', 'waits', 'cost', 'wide', 'drain_vm',
                 'drain_lgkm', 'states', 'srcC', 'srcAB', 'extra')

    def __init__(self, text, kind=None, dst=None, src=None, nvm=0, waits=(), states=1, cost=None, wide=None,
                 drain_vm=False, drain_lgkm=False):
        self.text = text
        self.waits = list(waits)
        self.tok = None
        self.nvm = nvm
        self.wide = wide or []
        self.drain_vm = drain_vm
        self.drain_lgkm = drain_lgkm
        self.states = states
        self.srcC = []
        self.srcAB = []
        self.extra = []
        if kind is not None:
            self.kind = kind
            self.op = kind
            self.dst = list(dst or [])
            self.src = list(src or [])
            self.ops = []
            self.cost = cost if cost is not None else 4
            return
        t = text.split(';')[0].strip()
        sp = t.split(None, 1)
        op = sp[0]
        self.op = op
        rest = sp[1] if len(sp) > 1 else ''
        rest = re.sub(r'\s+(op_sel|op_sel_hi|neg_lo|neg_hi):\[[^\]]*\]', '', rest)
        parts = [p.strip() for p in rest.split(',')] if rest else []
        mods = ''
        if parts:
            last = parts[-1].split(None, 1)
            parts[-1] = last[0]
            mods = last[1] if len(last) > 1 else ''
        self.ops = parts
        R = [regs_of(p) for p in parts]
        flat = lambda xs: [r for x in xs for r in x]
        dst, src = [], []
        if op.startswith('v_mfma'):
            kind = 'mfma'
            dst = R[0]
            src = flat(R[1:])
            self.srcAB = R[1] + R[2]
            self.srcC = R[3]
        elif op.startswith('v_'):
            kind = 'valu'
            if op.startswith('v_permlane') and 'swap' in op:
                dst = R[0] + R[1]
                src = R[0] + R[1]
            elif op.startswith(('v_add_co', 'v_sub_co', 'v_addc_co', 'v_subb_co')):
                dst = R[0] + R[1]
                src = flat(R[2:])
            else:
                dst = R[0]
                src = flat(R[1:])
                if op.startswith(('v_fmac', 'v_dot2c', 'v_writelane')):
                    src = src + R[0]
                if op.startswith('v_cndmask') and len(parts) == 3:
                    src = src + [('x', 'vcc')]
        elif op.startswith('ds_read') or op.startswith('ds_bpermute') or op.startswith('ds_swizzle'):
            kind = 'dsr'
            dst = R[0]
            src = flat(R[1:])
        elif op.startswith('ds_write') or op.startswith('ds_add'):
            kind = 'dsw'
            src = flat(R)
        elif op.startswith(('buffer_load', 'global_load')):
            islds = ' lds' in (' ' + mods) or '_lds_' in op
            self.nvm = 1
            if islds:
                kind = 'dma'
                src = flat(R) + [('x', 'm0')]
            else:
                kind = 'vload'
                dst = R[0]
                src = flat(R[1:])
        elif op.startswith(('buffer_store', 'global_store')):
            kind = 'vstore'
            self.nvm = 1
            src = flat(R)
            if 'x4' in op or 'x3' in op:
                self.wide = R[0] if op.startswith('buffer') else R[1]
        elif op.startswith(('s_load', 's_memtime', 's_memrealtime')):
            kind = 'smem'
            dst = R[0]
            src = flat(R[1:])
        elif op.startswith('s_'):
            kind = 'salu'
            if op.startswith(NO_DST_S):
                src = flat(R)
                if op in ('s_cbranch_vccz', 's_cbranch_vccnz'):
                    src = [('x', 'vcc')]
            else:
                dst = R[0]
                src = flat(R[1:])
                if op.startswith(('s_addk', 's_mulk')):
                    src = src + R[0]
            if op == 's_nop':
                self.states = int(parts[0], 0) + 1
        else:
            raise ValueError('unknown instruction: ' + text)
        self.kind = kind
        self.dst = dst
        self.src = src
        if cost is None:
            cost = 4
            if op.startswith(TRANS):
                cost = 8
            elif op.startswith('v_dot2'):
                cost = 8
            elif kind == 'mfma':
                cost = 8
            elif kind == 'dsw':
                cost = 16 if 'b128' in op else 8
            elif kind in ('dma',):
                cost = 8
        self.cost = cost


def nodst(insts):
    for x in insts:
        if x.kind == 'vload':
            x.dst = []
            x.kind = 'dma'
    return insts


def also_waits_for(ins, opnd):
    ins.extra = regs_of(opnd)
    return ins


class Tok:
    pass


class Prog:
    def __init__(self):
        self.L = []
        self.nlabel = 0

    def __call__(self, text, **kw):
        out = None
        for line in text.split('\n'):
            line = line.strip()
            if not line:
                continue
            out = I(line, **kw)
            self.L.append(out)
        return out

    def add(self, insts):
        self.L.extend(insts)

    def label(self, name):
        self.L.append(I(name + ':', kind='label', states=0, cost=0))

    def newlabel(self, p='L'):
        self.nlabel += 1
        return '%s_%d' % (p, self.nlabel)

    def comment(self, t):
        self.L.append(I('; ' + t, kind='comment', states=0, cost=0))


def mk(text, **kw):
    return [I(l.strip(), **kw) for l in text.split('\n') if l.strip()]


def tok(inst):
    inst.tok = Tok()
    return inst.tok


def wait_tok(*toks):
    return I('', kind='waittok', waits=toks, states=0, cost=0)


def weave(main, fill, budget=24, start=0, final_flush=True):
    out = []
    fill = list(fill)
    fi = 0
    debt = 0
    for si, slot in enumerate(main):
        out.extend(slot)
        if si < start:
            continue
        avail = budget - sum(x.cost for x in slot if x.kind != 'mfma') + debt
        while fi < len(fill) and avail >= fill[fi].cost:
            avail -= fill[fi].cost
            out.append(fill[fi])
            fi += 1
        debt = min(avail, 4) if avail > 0 else max(avail, -8)
    if final_flush:
        out.extend(fill[fi:])
        return out
    return out, fill[fi:]


def spread(main, fill, start=0, end=None):
    end = len(main) if end is None else end
    total = sum(x.cost for x in fill)
    n = end - start
    out = []
    fi = 0
    acc = 0
    for si, slot in enumerate(main):
        out.extend(slot)
        if start <= si < end:
            target = total * (si - start + 1) / n
            while fi < len(fill) and (acc + fill[fi].cost / 2.0 <= target or si == end - 1):
                acc += fill[fi].cost
                out.append(fill[fi])
                fi += 1
    out.extend(fill[fi:])
    return out


def insert_waits(L):
    out = []
    vm = []
    lg = []
    sm = []

    def emit_wait(nv, nl):
        parts = []
        if nv is not None:
            parts.append('vmcnt(%d)' % nv)
        if nl is not None:
            parts.append('lgkmcnt(%d)' % nl)
        out.append(I('s_waitcnt ' + ' '.join(parts)))

    for ins in L:
        k = ins.kind
        if k in ('label', 'comment'):
            out.append(ins)
            continue
        touched = set(ins.src) | set(ins.dst) | set(ins.extra)
        need_v = None
        need_l = None
        for idx, (d, t) in enumerate(vm):
            if (d & touched) or (t is not None and t in ins.waits):
                need_v = len(vm) - 1 - idx
        for idx, (d, t) in enumerate(lg):
            if (d & touched) or (t is not None and t in ins.waits):
                need_l = len(lg) - 1 - idx
        if any(d & touched for d in sm):
            need_l = 0
        if need_v is not None or need_l is not None:
            if need_v is not None:
                need_v = min(need_v, 63)
                del vm[:len(vm) - need_v]
            if need_l is not None:
                need_l = min(need_l, 15)
                del lg[:len(lg) - need_l]
                if need_l == 0:
                    sm = []
            emit_wait(need_v, need_l)
        if k == 'waittok':
            continue
        if ins.op == 's_waitcnt':
            m = re.search(r'vmcnt\((\d+)\)', ins.text)
            if m:
                n = int(m.group(1))
                del vm[:max(0, len(vm) - n)]
            m = re.search(r'lgkmcnt\((\d+)\)', ins.text)
            if m:
                n = int(m.group(1))
                del lg[:max(0, len(lg) - n)]
                if n == 0:
                    sm = []
        if ins.drain_vm:
            vm = []
        if ins.drain_lgkm:
            lg = []
            sm = []
        if k == 'vload':
            vm.append((set(ins.dst), ins.tok))
        elif ins.nvm:
            for j in range(ins.nvm):
                vm.append((set(), ins.tok if j == ins.nvm - 1 else None))
        if k == 'dsr':
            lg.append((set(ins.dst), ins.tok))
        elif k == 'dsw':
            lg.append((set(), ins.tok))
        elif k == 'smem':
            sm.append(set(ins.dst))
        assert len(vm) <= 63 + 0 or True
        out.append(ins)
    return out


def insert_nops(L):
    out = []
    rec = []

    def need(ins):
        n = 0
        src = set(ins.src)
        dst = set(ins.dst)
        k = ins.kind
        isvalu = k == 'valu'
        vmem = k in ('vload', 'vstore', 'dma', 'block')
        for kind, regs, age, extra in rec:
            w = 0
            if kind == 'valu_w':
                if k == 'mfma' and regs & src:
                    w = 2
                elif isvalu and regs & src:
                    if ins.op.startswith('v_permlane') or '_dpp' in ins.op:
                        w = 2
                    elif ins.op.startswith(('v_readlane', 'v_readfirstlane')):
                        w = 1
            elif kind == 'trans_w':
                if (isvalu or k == 'mfma' or vmem or k in ('dsw', 'dsr')) and regs & src:
                    w = 1
            elif kind == 'dot_w':
                if regs & (src | dst):
                    if ins.op == extra and not (regs & set(r for p in ins.ops[1:3] for r in regs_of(p))):
                        w = 0
                    else:
                        w = 3
            elif kind == 'sgpr_w':
                if isvalu and regs & src:
                    w = 4 if ins.op.startswith(('v_readlane', 'v_writelane')) else 2
                elif vmem and regs & src:
                    w = 5
            elif kind == 'mfma_d':
                if k == 'mfma':
                    if regs & set(ins.srcAB):
                        w = 12
                    elif regs & set(ins.srcC):
                        w = 0 if set(ins.srcC) == regs else 10
                    elif regs & dst:
                        w = 10
                elif (isvalu or vmem or k in ('dsr', 'dsw')) and regs & (src | dst):
                    w = 12
            elif kind == 'mfma_c':
                if isvalu and regs & dst:
                    w = 7
            elif kind == 'wide':
                if regs & dst:
                    w = 2
            elif kind == 'm0':
                if ('x', 'm0') in src and k != 'salu':
                    w = 1
            n = max(n, w - age)
        return n

    for ins in L:
        if ins.kind in ('label', 'comment'):
            out.append(ins)
            continue
        n = need(ins)
        while n > 0:
            c = min(n, 16)
            out.append(I('s_nop %d' % (c - 1)))
            for r in rec:
                r[2] += c
            n -= c
        out.append(ins)
        for r in rec:
            r[2] += ins.states
        rec = [r for r in rec if r[2] < 20]
        k = ins.kind
        if k == 'valu' or (k == 'block' and ins.dst):
            vd = set(r for r in ins.dst if r[0] in 'va')
            sd = set(r for r in ins.dst if r[0] in 'sx')
            if vd:
                rec.append(['valu_w', vd, 0, None])
                if ins.op.startswith(TRANS):
                    rec.append(['trans_w', vd, 0, None])
                if ins.op.startswith('v_dot2'):
                    rec.append(['dot_w', vd, 0, ins.op])
            if sd:
                rec.append(['sgpr_w', sd, 0, None])
        elif k == 'mfma':
            rec.append(['mfma_d', set(ins.dst), 0, None])
            c = set(ins.srcC)
            if c:
                rec.append(['mfma_c', c, 0, None])
        if ins.wide:
            rec.append(['wide', set(ins.wide), 0, None])
        if k == 'salu' and ('x', 'm0') in ins.dst:
            rec.append(['m0', {('x', 'm0')}, 0, None])
    return out


def finalize(L):
    L = insert_waits(L)
    L = insert_nops(L)
    lines = []
    for ins in L:
        if ins.kind == 'label':
            lines.append(ins.text)
        else:
            for t in ins.text.split('\n'):
                t = t.strip()
                if t:
                    lines.append(t if t.endswith(':') else '    ' + t)
    return '\n'.join(lines) + '\n', L


def v(a, n=1):
    return 'v%d' % a if n == 1 else 'v[%d:%d]' % (a, a + n - 1)


def a(x, n=1):
    return 'a%d' % x if n == 1 else 'a[%d:%d]' % (x, x + n - 1)


def s(x, n=1):
    return 's%d' % x if n == 1 else 's[%d:%d]' % (x, x + n - 1)
```

```python
import sys, struct
from asmgen import *

KNAME = 'interleave_layers__linear_attn_block__mixer_channel_mlp__prompt_kernel'


def f32(x):
    return '0x%08x' % struct.unpack('<I', struct.pack('<f', x))[0]


LOG2E = 1.4426950408889634
LN2 = 0.6931471805599453
MF = 'v_mfma_f32_32x32x16_bf16'

WS_XCC = 0x8000
WS_STAMP = 0x10000
WS_KVP = 0x200000
KVP_CH = 9216
KVP_L = 0xA0000
WS_CL = 0x400000
LOFF = 0xD5000
O_OFF, X1_OFF, H_OFF, XIN_OFF, FL_OFF = 0, 0x20000, 0x40000, 0xB0000, 0xD4000
XIN_BS = 36864
FO, FX1, FXIN, FH = FL_OFF, FL_OFF + 512, FL_OFF + 1024, FL_OFF + 1536

L_WQ = 0
L_XB = 28672
L_EX = 86016
L_XS = 86016
L_WO = 114688
L_KVS = 143616
L_KVB = L_KVS + 16384
L_CS = L_KVB + 2048
L_B2 = L_CS + 768
LDS_BYTES = 163840
assert L_B2 + 512 <= LDS_BYTES

SRD_WQ, SRD_WO, SRD_W1, SRD_W2, SRD_X, SRD_OUT, SRD_B1, SRD_B2, SRD_CL, SRD_WS = range(4, 44, 4)
sC, sM, sW, sNonce, sSlow, sX, sSpin = 44, 45, 46, 47, 48, 49, 50
sT0, sT1, sT2, sT3, sT4, sT5 = 51, 52, 53, 54, 55, 56
sLn2, sXcc, sWi = 57, 58, 59
sN28, sHalf = 60, 62
sZm = 64
sMo, sD1 = 66, 67
sKA = 68
sEb, sLb, sC0, sC1, sHs, sFe = 68, 69, 70, 71, 72, 73
sBlk, sOst, sFo, sFoMy, sKv, sKvMy, sHE, sHL, sPE, sPL = 74, 75, 76, 77, 78, 79, 80, 81, 82, 83
sHst = 84
sRot = 85
sQ0, sQ1 = 86, 87
sFin, sRes = 28, 34
sPm = 88
sStamp = 90
sPC = 92

vLane, vL16, vDummy, vTr, vNonce, vMean, vRl, vW1X, _w1x1, vPoll, vPA = range(0, 11)
vT = 11
vStamp = 15
W2A = 0
W1A = 224
W1V = 176


def w1reg(k):
    return a(W1A + 4 * k, 4) if k < 8 else v(W1V + 4 * (k - 8), 4)


def w1half(k, hh):
    return a(W1A + 4 * k + 2 * hh, 2) if k < 8 else v(W1V + 4 * (k - 8) + 2 * hh, 2)


def flat(LL):
    return [x for L in LL for x in L]


def mfma(D, A, B, first=False):
    return mk('%s %s, %s, %s, %s' % (MF, v(D, 16), A, B, '0' if first else v(D, 16)))


class Gen:
    def __init__(self, stop=None, stamps=False, **opt):
        self.P = Prog()
        self.ool = []
        self.stop = stop
        self.stamps = stamps
        self.nstamp = 0
        self.stamp_names = []
        self.probe = opt.pop('probe', None)
        self.light = opt.pop('light', None)
        if self.light is not None:
            self.light = self.light.split('+')
            assert len(self.light) <= 5
        self.seen = {}
        self.o = dict(kvdelay=10, pollE=18, flagpos=6, pollL=16, flag3=8, lead=16, look=6, pref=0, touch=1, codepf=1, rot=1, stnt=0, idlewq=0, reuse=1, npre=12, wqlate=84, pf0=1, nxb1=8, pfseg=1, pfslot=24, woslot=42, tslot=40, latespan=24, strot=1, w1b2=70, look2=10, l1touch=0, xsc1=1, storder=0)
        self.o.update(opt)

    def srd(self, r):
        return s(r, 4)

    def stamp(self, name):
        if self.probe is not None:
            self.seen[name] = self.seen.get(name, 0) + 1
            if self.probe == '%s#%d' % (name, self.seen[name]):
                return [I('s_memrealtime s[94:95]', kind='block', states=1)]
            return []
        if not self.stamps:
            return []
        if self.light is not None:
            self.seen[name] = self.seen.get(name, 0) + 1
            key = '%s#%d' % (name, self.seen[name])
            if name == 'end':
                self.stamp_names.append('end')
                t = ['s_memtime s[88:89]', 's_waitcnt lgkmcnt(0)']
                for i, r in enumerate([100] + [90 + 2 * j for j in range(len(self.stamp_names) - 2)] + [88]):
                    t.append('v_writelane_b32 v%d, s%d, %d' % (vStamp, r, i))
                return [I('\n'.join(t), kind='block', drain_lgkm=True)]
            if name != 'start' and key not in self.light:
                return []
            r = 100 if name == 'start' else 90 + 2 * (len(self.stamp_names) - 1)
            self.stamp_names.append(key if name != 'start' else name)
            return [I('s_memtime s[%d:%d]' % (r, r + 1), kind='block')]
        i = self.nstamp
        self.nstamp += 1
        self.stamp_names.append(name)
        t = 's_memtime s[%d:%d]\ns_waitcnt lgkmcnt(0)\nv_writelane_b32 v%d, s%d, %d' % (sStamp, sStamp + 1, vStamp, sStamp, i)
        return [I(t, kind='block', dst=[], src=[], drain_lgkm=True, states=3)]

    def stores(self, lines):
        insts = mk('\n'.join(lines))
        src = [r for x in insts for r in x.src]
        wide = [r for x in insts for r in x.wide]
        ls, lb = self.P.newlabel('Lslow'), self.P.newlabel('Lback')
        txt = 's_cmp_lg_u32 s%d, 0\ns_cbranch_scc1 %s\n%s\n%s:' % (sSlow, ls, '\n'.join(lines), lb)
        self.ool.append('%s:\n%s\ns_branch %s' % (ls, '\n'.join(l + ' sc1' for l in lines), lb))
        return [I(txt, kind='block', src=src, nvm=len(lines), wide=wide, states=1, cost=8 + 4 * len(lines))]

    def flag(self, toks, soff, off=0):
        st = self.stores(['buffer_store_dword v%d, off, %s, s%d offset:%d' % (vNonce, self.srd(SRD_CL), soff, off)])[0]
        st.text = 's_mov_b64 exec, 1\n' + st.text + '\ns_mov_b64 exec, -1'
        st.cost += 8
        return [wait_tok(*toks), st]

    def poll_issue(self, soff):
        return mk('buffer_load_dword v%d, v%d, %s, s%d offen sc1' % (vPoll, vPA, self.srd(SRD_CL), soff))

    def poll_check(self, soff, sleep=0):
        ls, lb = self.P.newlabel('Lspin'), self.P.newlabel('Lgot')
        self.ool.append('\n'.join([
            '%s:' % ls,
            ('s_sleep %d' % sleep) if sleep else '',
            'buffer_load_dword v%d, v%d, %s, s%d offen sc1' % (vPoll, vPA, self.srd(SRD_CL), soff),
            's_add_u32 s%d, s%d, 1' % (sSpin, sSpin),
            's_cmp_gt_u32 s%d, 0x40000' % sSpin,
            's_cbranch_scc1 L_end',
            's_waitcnt vmcnt(0)',
            'v_cmp_ne_u32 vcc, s%d, v%d' % (sNonce, vPoll),
            's_cbranch_vccnz %s' % ls,
            's_branch %s' % lb]))
        c = mk('v_cmp_ne_u32 vcc, s%d, v%d' % (sNonce, vPoll))[0]
        return [I(c.text + '\ns_cbranch_vccnz %s\n%s:' % (ls, lb), kind='block', src=c.src, dst=c.dst, states=2, cost=8)]

    def pa(self, n, blocks=False):
        L = 'v_and_b32 v%d, %d, v0\n' % (vPA, 15 if n <= 16 else 31)
        if n not in (16, 32):
            L += 'v_min_u32 v%d, %d, v%d\n' % (vPA, n - 1, vPA)
        L += 'v_lshlrev_b32 v%d, 2, v%d\n' % (vPA, vPA)
        if blocks:
            L += 'v_lshrrev_b32 v%d, 4, v0\nv_lshl_add_u32 v%d, v%d, 7, v%d' % (vT + 3, vPA, vT + 3, vPA)
        return mk(L)

    def trbase(self, dst, RS, kh, add=0, xor16=None):
        t = vT
        L = ['v_lshrrev_b32 v%d, 5, v%d' % (dst, vLane),
             'v_mul_u32_u24 v%d, %d, v%d' % (dst, kh, dst),
             'v_bfe_u32 v%d, v%d, 2, 2' % (t, vLane),
             'v_add_u32 v%d, v%d, v%d' % (dst, dst, t),
             'v_mul_u32_u24 v%d, %d, v%d' % (dst, RS, dst),
             'v_bfe_u32 v%d, v%d, 4, 1' % (t, vLane)]
        if xor16 is not None:
            L.append('v_xor_b32 v%d, s%d, v%d' % (t, xor16, t))
        L += ['v_lshl_add_u32 v%d, v%d, 5, v%d' % (dst, t, dst),
              'v_and_b32 v%d, 3, v%d' % (t, vLane),
              'v_lshl_add_u32 v%d, v%d, 3, v%d' % (dst, t, dst)]
        if add:
            L.append('v_add_u32 v%d, %d, v%d' % (dst, add, dst))
        return mk('\n'.join(L))

    def frag_loads(self, dsts, srd, sbase, const0, stride=1024, flags='', st=sT0):
        out = []
        cur = None
        for i, d in enumerate(dsts):
            off = const0 + i * stride
            grp = []
            if cur is None or not (0 <= off - cur <= 4095):
                cur = off
                grp += mk('s_add_u32 s%d, s%d, %d' % (st, sbase, off))
            grp += mk('buffer_load_dwordx4 %s, v%d, %s, s%d offen offset:%d %s' % (d, vL16, self.srd(srd), st, off - cur, flags))
            out.append(grp)
        return out

    def stats_finish(self, acc, double_ln):
        t1, t2 = vT + 1, vT + 2
        L = ['v_mov_b32 v%d, v%d' % (t1, acc),
             'v_mov_b32 v%d, v%d' % (vMean, acc),
             'v_permlane32_swap_b32 v%d, v%d' % (vMean, t1),
             'v_mul_f32 v%d, %s, v%d' % (vMean, f32(1.0 / 448), vMean),
             'v_mul_f32 v%d, %s, v%d' % (t1, f32(1.0 / 448), t1),
             'v_fma_f32 v%d, -v%d, v%d, v%d' % (t1, vMean, vMean, t1),
             'v_max_f32 v%d, 0, v%d' % (t1, t1),
             'v_add_f32 v%d, %s, v%d' % (t2, f32(1e-5), t1),
             'v_rsq_f32 v%d, v%d' % (vRl, t2)]
        if double_ln:
            L += ['v_mul_f32 v%d, v%d, v%d' % (t2, vRl, vRl),
                  'v_fmaak_f32 v%d, v%d, v%d, %s' % (t1, t1, t2, f32(1e-5)),
                  'v_rsq_f32 v%d, v%d' % (t1, t1),
                  'v_mul_f32 v%d, v%d, v%d' % (vRl, vRl, t1)]
        else:
            L += ['v_mul_f32 v%d, %s, v%d' % (vRl, f32(LOG2E), vRl)]
        return mk('\n'.join(L))

    def split_act(self, d0, val, t):
        return mk('\n'.join([
            'v_cvt_pk_bf16_f32 v%d, v%d, v%d' % (d0 + 1, val, val),
            'v_and_b32 v%d, 0xffff0000, v%d' % (t, d0 + 1),
            'v_sub_f32 v%d, v%d, v%d' % (t, val, t),
            'v_cvt_pk_bf16_f32 v%d, v%d, v%d' % (d0, val, t),
            'v_and_b32 v%d, 0xffff, v%d' % (d0 + 1, d0 + 1),
            'v_cndmask_b32 v%d, v%d, 0, s[%d:%d]' % (d0 + 1, d0 + 1, sHalf, sHalf + 1)]))

    def split_w(self, d0, val, t):
        return mk('\n'.join([
            'v_cvt_pk_bf16_f32 v%d, v%d, v%d' % (d0, val, val),
            'v_and_b32 v%d, 0xffff0000, v%d' % (t, d0),
            'v_sub_f32 v%d, v%d, v%d' % (t, val, t),
            'v_cvt_pk_bf16_f32 v%d, v%d, 0' % (d0 + 1, t)]))

    def phi4(self, regs, R, T):
        L = []
        for i, r in enumerate(regs):
            L.append('v_mul_f32 v%d, v%d, v%d' % (r, r, R[i]))
        for i, r in enumerate(regs):
            L.append('v_exp_f32 v%d, v%d clamp' % (T + i, r))
            L.append('v_max_f32 v%d, 0, v%d' % (r, r))
        for i, r in enumerate(regs):
            L.append('v_fma_f32 v%d, v%d, s%d, v%d' % (r, r, sLn2, T + i))
        for i, r in enumerate(regs):
            L.append('v_add_f32 v%d, %s, v%d' % (r, f32(1e-6), r))
        return mk('\n'.join(L))

    def pack(self, dst, src, n):
        return mk('\n'.join('v_cvt_pk_bf16_f32 v%d, v%d, v%d' % (dst + i, src + 2 * i, src + 2 * i + 1) for i in range(n)))

    def unpack(self, dst, src, n):
        L = []
        for i in reversed(range(n)):
            L.append('v_and_b32 v%d, 0xffff0000, v%d' % (dst + 2 * i + 1, src + i))
            L.append('v_lshlrev_b32 v%d, 16, v%d' % (dst + 2 * i, src + i))
        return mk('\n'.join(L))

    def dots(self, regs, acc, ones, first):
        L = []
        for i, r in enumerate(regs):
            z = first and i == 0
            L.append('v_dot2_f32_bf16 v%d, v%d, v%d, %s' % (acc, r, ones, '0' if z else 'v%d' % acc))
            L.append('v_dot2_f32_bf16 v%d, v%d, v%d, %s' % (acc + 1, r, r, '0' if z else 'v%d' % (acc + 1)))
        return mk('\n'.join(L))

    def dots_end(self, acc):
        return mk('v_permlane32_swap_b32 v%d, v%d\nv_add_f32 v%d, v%d, v%d' % (acc, acc + 1, acc, acc, acc + 1))

    def row_stats(self, src, n, acc, ones):
        return mk('v_mov_b32 v%d, 0x3f803f80' % ones) + self.dots(range(src, src + n), acc, ones, True) + self.dots_end(acc)

    def kv_lane_addr(self, d, t, u, gather):
        L = []
        if gather:
            L += ['v_and_b32 v%d, 31, v0' % t, 'v_lshrrev_b32 v%d, 5, v0' % d]
        else:
            L += ['v_lshrrev_b32 v%d, 5, v0' % t, 'v_and_b32 v%d, 15, v0' % u, 'v_lshl_add_u32 v%d, v%d, 1, v%d' % (t, u, t), 'v_bfe_u32 v%d, v0, 4, 1' % d]
        L += ['v_lshrrev_b32 v%d, 3, v%d' % (u, t), 'v_sub_u32 v%d, v%d, v%d' % (u, t, u)]
        if not gather:
            L += ['v_and_b32 v%d, 7, v%d' % (t, t), 'v_cmp_eq_u32 vcc, 7, v%d' % t, 'v_cndmask_b32 v%d, v%d, 31, vcc' % (u, u)]
        L += ['v_lshl_add_u32 v%d, v%d, 5, v%d' % (d, d, u)]
        sh, qs, base = (4, 10, L_KVS) if gather else (5, 3, L_KVB)
        L += ['s_lshl_b32 s%d, s%d, %d' % (sT2, sW, qs), 'v_lshlrev_b32 v%d, %d, v%d' % (d, sh, d), 'v_add_u32 v%d, s%d, v%d' % (d, sT2, d)]
        L += ['v_and_b32 v%d, 1, v%d' % (t, u), 'v_lshlrev_b32 v%d, %d, v%d' % (t, 5 + sh, t), 'v_lshrrev_b32 v%d, 1, v%d' % (u, u)]
        L += ['v_cmp_gt_u32 vcc, 4, v%d' % u]
        L += ['v_lshl_add_u32 v%d, v%d, %d, v%d' % (t, u, qs, t), 'v_add_u32 v%d, %d, v%d' % (t, 28 << sh, t)]
        L += ['s_and_b64 vcc, vcc, s[%d:%d]' % ((sZm, sZm + 1) if gather else (sPm, sPm + 1)), 'v_cndmask_b32 v%d, v%d, v%d, vcc' % (d, d, t),
              'v_add_u32 v%d, %d, v%d' % (d, base, d)]
        return mk('\n'.join(L))

    def wq_dma(self, groups, vq, rot=False):
        out = []
        for t in groups:
            for p in range(3):
                g = []
                if p == 0:
                    if rot:
                        g += mk('s_add_u32 s%d, s%d, %d\ns_cmp_ge_u32 s%d, 7\ns_cselect_b32 s%d, 7, 0\ns_sub_u32 s%d, s%d, s%d\ns_lshl_b32 s%d, s%d, 2\ns_add_u32 s%d, s%d, s%d'
                                % (sQ1, sRot, t, sQ1, sQ0, sQ1, sQ1, sQ0, sQ1, sQ1, sQ1, sQ1, sW))
                    else:
                        g += mk('s_add_u32 s%d, s%d, %d' % (sQ1, sW, 4 * t))
                    g += mk('s_mul_i32 s%d, s%d, %d\ns_mul_i32 s%d, s%d, 3072' % (sQ0, sQ1, 16 * 2688, sQ1, sQ1))
                g += mk('s_add_u32 m0, s%d, %d' % (sQ1, L_WQ + 1024 * p))
                g += mk('buffer_load_dwordx4 v%d, %s, s%d offen lds' % (vq[p] if isinstance(vq, tuple) else vq + p, self.srd(SRD_WQ), sQ0))
                out.append(g)
        return out

    def wq_addr(self, vq):
        L = ['s_mul_i32 s%d, s%d, 56' % (sT2, sM)]
        t, u = vT, vT + 1
        for p in range(3):
            d = vq + p
            L += ['v_add_u32 v%d, %d, v%d' % (t, 64 * p, vLane),
                  'v_mul_u32_u24 v%d, 0x1556, v%d' % (d, t),
                  'v_lshrrev_b32 v%d, 16, v%d' % (d, d),
                  'v_mul_u32_u24 v%d, 12, v%d' % (u, d),
                  'v_sub_u32 v%d, v%d, v%d' % (t, t, u),
                  'v_mul_u32_u24 v%d, 2688, v%d' % (d, d),
                  'v_lshrrev_b32 v%d, 2, v%d' % (u, t),
                  'v_mul_u32_u24 v%d, 896, v%d' % (u, u),
                  'v_add3_u32 v%d, v%d, v%d, s%d' % (d, d, u, sT2),
                  'v_and_b32 v%d, 3, v%d' % (t, t),
                  'v_lshl_add_u32 v%d, v%d, 4, v%d' % (d, t, d)]
        return mk('\n'.join(L))

    def touch(self, items, va):
        if not self.o['touch']:
            return []
        txt = ['v_lshlrev_b32 v%d, 7, v0' % va]
        cur = None
        n = 0
        for nl, srd, sg, c in items:
            if nl != cur:
                txt.append('s_mov_b64 exec, 0x%x' % ((1 << nl) - 1))
                cur = nl
            txt.append('s_add_u32 s%d, s%d, %d' % (sT2, sg, c) if sg is not None else 's_mov_b32 s%d, %d' % (sT2, c))
            txt.append('buffer_load_dword v%d, v%d, %s, s%d offen sc1' % (vDummy, va, self.srd(srd), sT2))
            n += 1
        txt.append('s_mov_b64 exec, -1')
        return [I('\n'.join(txt), kind='block', nvm=n, dst=[('v', va)], src=[('v', 0)], states=1, cost=12 * n)]

    def touch_attn(self, lo, va):
        pre = mk('s_lshr_b32 s%d, s%d, 2\ns_lshl_b32 s%d, s%d, 10\ns_add_u32 s%d, s%d, s%d' % (sT1, sM, sT1, sT1, sT1, sT1, sBlk))
        return pre + self.touch([(16, SRD_CL, sOst, lo), (16, SRD_CL, sOst, lo + X1_OFF), (8, SRD_CL, sT1, lo + X1_OFF + 28672),
                                 (28, SRD_CL, None, lo + FL_OFF)], va)

    def prefetch(self, va):
        nl = self.o['pref']
        if not nl:
            return []
        txt = 'v_lshlrev_b32 v%d, 7, v0\ns_mul_i32 s%d, s%d, %d\n' % (va, sT2, sWi, nl * 128)
        txt += 's_mov_b32 exec_lo, 0x%x\ns_mov_b32 exec_hi, 0x%x\n' % (((1 << nl) - 1) & 0xffffffff, ((1 << nl) - 1) >> 32)
        txt += 'buffer_load_dword v%d, v%d, %s, s%d offen\ns_mov_b64 exec, -1' % (vDummy, va, self.srd(SRD_W1), sT2)
        return [I(txt, kind='block', nvm=1, src=[('v', 0)], dst=[('v', va)])]

    def idle_work(self):
        va = vT
        l = self.P.newlabel('Lnowarm')
        T = ['s_cmp_lg_u32 s%d, 0' % sSlow, 's_cbranch_scc1 %s' % l,
             'v_lshlrev_b32 v%d, 7, v0' % va,
             's_and_b32 s%d, s%d, 1' % (sT0, sM), 's_lshl_b32 s%d, s%d, 2' % (sT0, sT0), 's_add_u32 s%d, s%d, s%d' % (sT0, sT0, sW)]
        ld = lambda srd, fl: 'buffer_load_dword v%d, v%d, %s, s%d offen %s' % (vDummy, va, self.srd(srd), sT2, fl)
        for i in range(7):
            T += ['s_lshl_b32 s%d, s%d, 13' % (sT2, sT0), 's_add_u32 s%d, s%d, %d' % (sT2, sT2, H_OFF + i * 65536), ld(SRD_CL, 'sc1')]
        if self.o['idlewq']:
            T += ['s_lshr_b32 s%d, s%d, 3' % (sT1, sC), 's_lshl_b32 s%d, s%d, 3' % (sT1, sT1), 's_add_u32 s%d, s%d, s%d' % (sT1, sT1, sT0)]
            for i in range(10):
                T += ['s_lshl_b32 s%d, s%d, 13' % (sT2, sT1), 's_add_u32 s%d, s%d, %d' % (sT2, sT2, i * 131072), ld(SRD_WQ, '')]
        for i in range(3):
            T += ['s_lshl_b32 s%d, s%d, 13' % (sT2, sT0), 's_add_u32 s%d, s%d, %d' % (sT2, sT2, XIN_OFF + i * 65536)]
            if i == 2:
                T += ['s_min_u32 s%d, s%d, %d' % (sT2, sT2, FL_OFF - 8192)]
            T += [ld(SRD_CL, 'sc1')]
        T += [l + ':']
        return '\n'.join(T)

    def prologue(self):
        P = self.P
        o = self.o
        P('s_cmp_ge_u32 s2, 256\ns_cbranch_scc1 L_end')
        if self.probe is not None:
            P.add([I('s_memrealtime s[96:97]\ns_memrealtime s[94:95]', kind='block', states=1)])
        P('s_load_dwordx16 s[%d:%d], s[0:1], 0' % (sKA, sKA + 15))
        P('s_load_dwordx4 s[%d:%d], s[0:1], 64' % (sKA + 16, sKA + 19))
        P('s_load_dwordx2 s[%d:%d], s[0:1], 80' % (sKA + 20, sKA + 21))
        P('v_lshrrev_b32 v%d, 6, v0\nv_and_b32 v0, 63, v0\nv_readfirstlane_b32 s%d, v%d' % (vT, sW, vT))
        P('s_lshr_b32 s%d, s2, 3\ns_lshl_b32 s%d, s%d, 2\ns_add_u32 s%d, s%d, s%d' % (sM, sWi, sM, sWi, sWi, sW))
        if o['codepf']:
            P.add([I('s_getpc_b64 s[%d:%d]\nL_pc:' % (sPC, sPC + 1), kind='block', dst=[], states=1)])
            P('s_lshl_b32 s%d, s%d, 9\nv_lshlrev_b32 v%d, 7, v0\nv_add_u32 v%d, s%d, v%d' % (sT0, sWi, vT, vT, sT0, vT))
            P.add([I('v_min_u32 v%d, L_code_end-L_pc-4, v%d\ns_mov_b64 exec, 15\nglobal_load_dword v%d, v%d, s[%d:%d]\ns_mov_b64 exec, -1'
                     % (vT, vT, vDummy, vT, sPC, sPC + 1), kind='block', dst=[('v', vT)], src=[('v', vT)], nvm=1)])
        P('s_and_b32 s%d, s2, 7\ns_lshr_b32 s%d, s%d, 4\ns_lshl_b32 s%d, s%d, 3\ns_add_u32 s%d, s%d, s%d\ns_and_b32 s%d, s%d, 15'
          % (sC, sT0, sM, sT0, sT0, sC, sC, sT0, sM, sM))
        P('v_lshlrev_b32 v%d, 4, v0' % vL16)
        if self.stamps:
            P('v_mov_b32 v%d, 0' % vStamp)
            P.add(self.stamp('start'))
            P('s_memrealtime s[%d:%d]\ns_waitcnt lgkmcnt(0)\nv_writelane_b32 v%d, s%d, 62' % (sStamp, sStamp + 1, vStamp, sStamp))
        P('s_lshl_b32 s%d, s%d, 2\ns_add_u32 s%d, s%d, s%d\ns_mul_i32 s%d, s%d, %d' % (sX, sC, sX, sX, sW, sX, sX, 32 * 896))
        vq, vxb, vxh, vxa, vrd = 160, 163, 164, 165, 167
        P('v_lshrrev_b32 v%d, 5, v0\nv_and_b32 v%d, 31, v0\nv_xor_b32 v%d, v%d, v%d\nv_lshlrev_b32 v%d, 4, v%d\nv_mul_u32_u24 v%d, 896, v%d'
          % (vxh, vT, vxb, vT, vxh, vxb, vxb, vxh, vxh))
        ka = sKA

        def mksrd(r, p, size):
            P('s_mov_b32 s%d, s%d\ns_mov_b32 s%d, s%d\ns_mov_b32 s%d, %d\ns_mov_b32 s%d, 0x20000' % (r, p, r + 1, p + 1, r + 2, size, r + 3))
        P('s_lshl_b32 s%d, s%d, 14\ns_add_u32 s%d, s%d, %d' % (sT5, sW, sT5, sT5, L_XS))
        mksrd(SRD_X, ka + 0, 2048 * 896)

        def xdma(half):
            out = []
            for i in range(16):
                if half:
                    g = mk('s_mov_b32 s%d, %d\nv_xad_u32 v%d, v%d, s%d, v%d' % (sT0, ((2 * i) & 15) << 4, vxa + (i & 1), vxb, sT0, vxh))
                    g += mk('s_add_u32 s%d, s%d, %d\ns_add_u32 m0, s%d, %d' % (sT1, sX, 2 * i * 896 + 512, sT5, 1024 * i))
                    out.append(g + mk('buffer_load_dwordx4 v%d, %s, s%d offen lds' % (vxa + (i & 1), self.srd(SRD_X), sT1)))
                    continue
                g = mk('s_add_u32 s%d, s%d, %d\ns_and_b32 s%d, s%d, 15' % (sT4, sM, i, sT4, sT4) if o['rot'] else 's_mov_b32 s%d, %d' % (sT4, i))
                g += mk('s_lshl_b32 s%d, s%d, 5\ns_and_b32 s%d, s%d, 0xf0\nv_xad_u32 v%d, v%d, s%d, v%d' % (sT0, sT4, sT0, sT0, vxa + (i & 1), vxb, sT0, vxh))
                g += mk('s_mul_i32 s%d, s%d, 1792\ns_add_u32 s%d, s%d, s%d\ns_lshl_b32 s%d, s%d, 10\ns_add_u32 m0, s%d, s%d' % (sT1, sT4, sT1, sT1, sX, sT4, sT4, sT4, sT5))
                g += mk('buffer_load_dwordx4 v%d, %s, s%d offen lds' % (vxa + (i & 1), self.srd(SRD_X), sT1))
                out.append(g)
            return out
        mksrd(SRD_WQ, ka + 2, 448 * 2688)
        if o['pf0']:
            P('v_lshlrev_b32 v%d, 7, v0\ns_lshl_b32 s%d, s%d, 2\ns_add_u32 s%d, s%d, s%d\ns_mul_i32 s%d, s%d, %d\ns_mul_i32 s%d, s%d, %d\ns_add_u32 s%d, s%d, s%d\ns_mul_i32 s%d, s%d, %d'
              % (vxa, sT0, sM, sT0, sT0, sW, sT0, sT0, 14 * 128, sT1, sC, 128 * 896, sT0, sT0, sT1, sT1, sWi, 74 * 128))
            P.add([I('s_mov_b64 exec, 0x3fff\nbuffer_load_dword v%d, v%d, %s, s%d offen\ns_mov_b64 exec, -1\nbuffer_load_dword v%d, v%d, %s, s%d offen\n'
                     's_add_u32 s%d, s%d, 8192\ns_mov_b64 exec, 0x3ff\nbuffer_load_dword v%d, v%d, %s, s%d offen\ns_mov_b64 exec, -1'
                     % (vDummy, vxa, self.srd(SRD_X), sT0, vDummy, vxa, self.srd(SRD_WQ), sT1, sT1, sT1, vDummy, vxa, self.srd(SRD_WQ), sT1),
                     kind='block', nvm=3, src=[('v', vxa)])])
        body = [x.text for x in xdma(0)[0]]
        body[0] = 's_add_u32 s%d, s%d, s%d' % (sT4, sM, sT2) if o['rot'] else 's_mov_b32 s%d, s%d' % (sT4, sT2)
        loop = I('\n'.join(['s_mov_b32 s%d, 0' % sT2, 'L_xa:'] + body[:-1] + ['s_add_u32 s%d, s%d, 1' % (sT2, sT2), 's_cmp_lt_u32 s%d, 16' % sT2, body[-1],
                                                                            's_cbranch_scc1 L_xa']), kind='block', nvm=16, src=[('v', vxb), ('v', vxh)] + regs_of(s(SRD_X, 4)), dst=[('v', vxa)])
        tA = tok(loop)
        P.add([loop])
        P('s_load_dword s%d, s[%d:%d], 0' % (sNonce, ka + 20, ka + 21))
        P.add(self.wq_addr(vq))
        mksrd(SRD_OUT, ka + 16, 2048 * 896)
        wq = self.wq_dma(range(7), vq)
        self.tok_wq1, self.tok_wq = tok(wq[11][-1]), tok(wq[-1][-1])
        P.add(flat(wq[:12]))
        mksrd(SRD_WO, ka + 4, 448 * 896)
        mksrd(SRD_W1, ka + 8, 448 * 3584)
        P('s_cmp_lt_u32 s%d, 14\ns_cselect_b32 s%d, s%d, 0' % (sM, SRD_WO + 2, SRD_WO + 2))
        mksrd(SRD_B1, ka + 10, 3584)
        mksrd(SRD_W2, ka + 12, 1792 * 896)
        mksrd(SRD_B2, ka + 14, 896)
        mksrd(SRD_WS, ka + 20, WS_CL)
        P('s_lshl_b32 s%d, s%d, 21\ns_add_u32 s%d, s%d, %d' % (sT0, sC, sT0, sT0, WS_CL))
        P('s_add_u32 s%d, s%d, s%d\ns_addc_u32 s%d, s%d, 0\ns_mov_b32 s%d, 0x200000\ns_mov_b32 s%d, 0x20000'
          % (SRD_CL, ka + 20, sT0, SRD_CL + 1, ka + 21, SRD_CL + 2, SRD_CL + 3))
        P('s_mov_b32 s%d, %s\ns_mov_b32 s%d, 0\ns_mov_b32 s%d, -1' % (sLn2, f32(LN2), sHalf, sHalf + 1))
        P('s_mov_b32 s%d, 0x10000000\ns_mov_b32 s%d, 0x10000000\ns_mov_b32 s%d, 0' % (sN28, sN28 + 1, sSpin))
        P('s_getreg_b32 s%d, hwreg(HW_REG_XCC_ID, 0, 4)' % sXcc)
        P('s_and_b32 s%d, s%d, 1\ns_sub_u32 s%d, 3, s%d' % (sEb, sM, sLb, sEb))
        P('s_cmp_eq_u32 s%d, 3\ns_cselect_b32 s%d, -1, 0\ns_mov_b32 s%d, 0' % (sW, sZm + 1, sZm))
        P('s_lshr_b32 s%d, s%d, 3\ns_lshl_b32 s%d, s%d, 1\ns_add_u32 s%d, s%d, s%d\ns_mul_i32 s%d, s%d, 7\ns_add_u32 s%d, s%d, 1\ns_lshr_b32 s%d, s%d, 1'
          % (sD1, sC, sMo, sD1, sMo, sMo, sEb, sMo, sMo, sMo, sMo, sMo, sMo))
        if not o['strot']:
            P('s_mov_b32 s%d, 0\ns_mov_b32 s%d, 0' % (sMo, sD1))
        c0 = -2.0 * 0.7978845608028654 * LOG2E
        P('s_mov_b32 s%d, %s\ns_mov_b32 s%d, %s' % (sC0, f32(c0), sC1, f32(c0 * 0.044715)))
        P('s_lshr_b32 s%d, s%d, 1\ns_lshl_b32 s%d, s%d, 2\ns_and_b32 s%d, s%d, 1\ns_lshl_b32 s%d, s%d, 1\ns_add_u32 s%d, s%d, s%d\ns_lshr_b32 s%d, s%d, 1\ns_add_u32 s%d, s%d, s%d'
          % (sFe, sM, sFe, sFe, sT0, sW, sT0, sT0, sFe, sFe, sT0, sT0, sW, sFe, sFe, sT0))
        P('s_lshl_b32 s%d, s%d, 15\ns_lshl_b32 s%d, s%d, 11\ns_add_u32 s%d, s%d, s%d' % (sBlk, sW, sOst, sM, sOst, sOst, sBlk))
        P('s_lshl_b32 s%d, s%d, 7\ns_add_u32 s%d, s%d, %d\ns_lshl_b32 s%d, s%d, 2\ns_add_u32 s%d, s%d, s%d' % (sFo, sW, sFo, sFo, FL_OFF, sT0, sM, sFoMy, sFo, sT0))
        P('s_lshl_b32 s%d, s%d, 2\ns_add_u32 s%d, s%d, s%d\ns_mul_i32 s%d, s%d, %d\ns_add_u32 s%d, s%d, %d' % (sT1, sM, sT1, sT1, sW, sKv, sT1, KVP_CH, sKv, sKv, WS_KVP))
        P('s_lshl_b32 s%d, s%d, 9\ns_add_u32 s%d, s%d, s%d' % (sKvMy, sC, sKvMy, sKvMy, sKv))
        P('s_lshl_b32 s%d, s%d, 11\ns_add_u32 s%d, s%d, %d' % (sHst, sT1, sHst, sHst, H_OFF))
        P('s_lshl_b32 s%d, s%d, 11\ns_add_u32 s%d, s%d, %d' % (sT1, sW, sT1, sT1, H_OFF))
        P('s_mul_i32 s%d, s%d, 114688\ns_add_u32 s%d, s%d, s%d\ns_mul_i32 s%d, s%d, 114688\ns_add_u32 s%d, s%d, s%d' % (sHE, sEb, sHE, sHE, sT1, sHL, sLb, sHL, sHL, sT1))
        P('s_lshl_b32 s%d, s%d, 9\ns_add_u32 s%d, s%d, s%d\ns_add_u32 s%d, s%d, %d' % (sPE, sEb, sPE, sPE, sFo, sPE, sPE, FH - FL_OFF))
        P('s_lshl_b32 s%d, s%d, 9\ns_add_u32 s%d, s%d, s%d\ns_add_u32 s%d, s%d, %d' % (sPL, sLb, sPL, sPL, sFo, sPL, sPL, FH - FL_OFF))
        self.xreg0 = xr = [16 + 4 * i if i < 20 else 176 + 4 * (i - 20) for i in range(28)]
        P('v_and_b32 v%d, 15, v0\nv_lshrrev_b32 v%d, 5, v0\nv_xor_b32 v%d, v%d, v%d\nv_lshlrev_b32 v%d, 4, v%d\nv_and_b32 v%d, 31, v0\nv_lshl_add_u32 v%d, v%d, 9, v%d\nv_add_u32 v%d, s%d, v%d'
          % (vT, vrd, vrd, vrd, vT, vrd, vrd, vT, vrd, vT, vrd, vrd, sT5, vrd))
        xrd = lambda k: mk('v_xor_b32 v%d, %d, v%d\nds_read_b128 %s, v%d' % (vrd + 1 + (k & 1), 32 * (k & 15), vrd, v(xr[k], 4), vrd + 1 + (k & 1)))
        vrs = vrd + 3
        P('v_and_b32 v%d, 15, v0\nv_lshlrev_b32 v%d, 4, v%d\nv_lshrrev_b32 v%d, 5, v0\nv_lshl_add_u32 v%d, v%d, 3, v%d\nv_and_b32 v%d, 31, v0\nv_lshl_add_u32 v%d, v%d, 9, v%d\nv_add_u32 v%d, s%d, v%d'
          % (vrs, vrs, vrs, vT, vrs, vT, vrs, vT, vrs, vT, vrs, vrs, sT5, vrs))
        P('s_and_b32 s%d, s%d, 7\ns_lshl_b32 s%d, s%d, 6\nv_xor_b32 v%d, s%d, v%d' % (sT0, sM, sT0, sT0, vrs, sT0, vrs))

        def resrd(half):
            l = P.newlabel('Lres')
            t = ['s_cmp_%s_u32 s%d, 8' % ('lt' if half else 'ge', sM), 's_cbranch_scc1 %s' % l]
            for g in range(4):
                t += ['v_xor_b32 v%d, %d, v%d' % (vrs + 1, 16 * g, vrs), 'ds_read_b64 %s, v%d' % (a(216 + 2 * g, 2), vrs + 1)]
            return [I('\n'.join(t + [l + ':']), kind='block', src=[('v', vrs)], dst=[('v', vrs + 1)])]
        P.add(self.stamp('issued'))
        P.add([wait_tok(tA)])
        P.add(self.stamp('xA'))
        for k in range(16):
            P.add(xrd(k))
        P.add(resrd(0))
        vS, vOne = vT + 2, vT + 1
        P('v_mov_b32 v%d, 0x3f803f80\ns_waitcnt lgkmcnt(0)' % vOne)
        xb = xdma(1)
        self.tok_xb = tok(xb[-1][-1])
        d = self.dots([xr[k] + i for k in range(16) for i in range(4)], vS, vOne, True)
        P.add(spread(xb[:o['nxb1']], d))
        self.late_dma = xb[o['nxb1']:] + wq[12:]
        self.late_rd = [xrd(k) for k in range(16, 28)] + [resrd(1)]
        self.late_dots = self.dots([xr[k] + i for k in range(16, 28) for i in range(4)], vS, vOne, False) + self.dots_end(vS)
        P('s_add_u32 s%d, s%d, 0x01010101' % (sNonce, sNonce))
        P('v_mov_b32 v%d, s%d' % (vNonce, sNonce))
        P('s_lshl_b32 s%d, s%d, 4\ns_add_u32 s%d, s%d, s%d\ns_lshl_b32 s%d, s%d, 7\ns_add_u32 s%d, s%d, %d'
          % (sT2, sC, sT2, sT2, sM, sT2, sT2, sT2, sT2, WS_XCC))
        P('s_add_u32 s%d, s%d, s%d\nv_mov_b32 v%d, s%d\ns_mov_b64 exec, 1' % (sT3, sNonce, sXcc, vT, sT3))
        P('buffer_store_dword v%d, off, %s, s%d sc1' % (vT, self.srd(SRD_WS), sT2))
        P('s_mov_b64 exec, -1')

    def s1(self, l):
        P = self.P
        o = self.o
        AK, AV, AQ, WB, SB = 96, 112, 128, 144, 160
        RLB, XE = SB, SB + 8
        NB = 4
        vS = vT + 2
        P.comment('==== layer %d : S1' % l)
        d2 = 4 * 192 if l == 0 else 8 * 192
        fin = self.stats_finish(vS, False)
        fin += mk('s_lshl_b32 s%d, s%d, 12\ns_add_u32 s%d, s%d, %d' % (sT4, sW, sT4, sT4, L_KVS))
        bounce = mk('v_and_b32 v%d, 31, v0\nv_lshl_add_u32 v%d, v%d, 2, s%d\nds_write_b32 v%d, v%d' % (vT + 1, vT + 1, vT + 1, sT4, vT + 1, vRl))
        fin += bounce
        fin += mk('v_sub_f32 v%d, 0, v%d' % (vMean, vMean)) + self.split_act(XE, vMean, vT)
        fin += mk('v_cndmask_b32 v%d, v%d, 0, s[%d:%d]\nv_mov_b32 v%d, 0\nv_mov_b32 v%d, 0' % (XE, XE, sHalf, sHalf + 1, XE + 2, XE + 3))
        if l == 0:
            xreg = self.xreg0
            P.add(self.trbase(vTr, 192, 8, add=L_WQ))
            P.add([wait_tok(self.tok_wq1)])
            P('s_barrier')
            P.add(self.stamp('wq_ready'))
            lds = []
        else:
            xreg = [16 + 4 * (i % 20) for i in range(28)]
            P.add(self.pa(28))
            P('s_add_u32 s%d, s%d, %d' % (sT4, sFo, FXIN - FL_OFF))
            P.add(self.poll_issue(sT4))
            P('s_mul_i32 s%d, s%d, %d' % (sT5, sW, XIN_BS))
            P.add(self.trbase(vTr, 192, 4, add=L_WQ))
            lds = self.frag_loads([v(r, 4) for r in xreg], SRD_CL, sT5, XIN_OFF)
        jobs = []
        for k in range(28):
            if l == 0 and k == 16:
                jobs += [(t.upper(), kk) for kk in range(7) for t in 'qkv']
            jobs += [('k', k), ('v', k)] + ([('q', k)] if k < 8 else [])
        jobs += [('k', 'e'), ('v', 'e')]
        nmain = len(jobs)
        jobs += [('q', k) for k in range(8, 28)] + [('q', 'e')]
        vTr2, vCs = vT + 3, vPA
        vo, vb, CSA = RLB, RLB + 4, 208

        def rd(j):
            t, k = jobs[j]
            b = WB + 4 * (j % NB)
            if k == 'e':
                return mk('ds_read_b64 %s, v%d offset:%d\nv_mov_b32 v%d, 0\nv_mov_b32 v%d, 0' % (v(b, 2), vCs, 256 * 'qkv'.index(t), b + 2, b + 3))
            base, off = (vb, k * 3072) if t.isupper() else (vTr, k * 3072) if k < 16 else (vTr2, (k - 16) * 3072)
            off += 64 * 'qkv'.index(t.lower())
            return mk('ds_read_b64_tr_b16 %s, v%d offset:%d\nds_read_b64_tr_b16 %s, v%d offset:%d' % (v(b, 2), base, off, v(b + 2, 2), base, off + d2))
        tr2 = mk('v_add_u32 v%d, %d, v%d' % (vTr2, 16 * 3072, vTr))
        if l == 1:
            P.add(tr2)
        for j in range(NB):
            P.add(rd(j))
        if l == 1:
            P.add(self.poll_check(sT4))
            P.add(self.stamp('x2_seen'))
            P.add(flat(lds[:o['look']]))
            P('s_add_u32 s%d, s%d, 1\nv_mov_b32 v%d, s%d' % (sNonce, sNonce, vNonce, sNonce))
        P('v_and_b32 v%d, 31, v0\nv_lshlrev_b32 v%d, 3, v%d\nv_add_u32 v%d, %d, v%d' % (vCs, vCs, vCs, vCs, L_CS, vCs))
        slots = []
        for j, (t, k) in enumerate(jobs):
            w = v(WB + 4 * (j % NB), 4)
            if t.isupper():
                sl = mfma(CSA + 16 * 'QKV'.index(t), v(vo, 4), w, k == 0)
            else:
                x = v(XE if k == 'e' else xreg[k], 4)
                A, B = (w, x) if t == 'q' else (x, w)
                sl = mfma({'q': AQ, 'k': AK, 'v': AV}[t], A, B, k == 0)
            if l == 0 and j == 40 - NB:
                sl += [wait_tok(self.tok_wq)] + mk('s_waitcnt lgkmcnt(0)\ns_barrier') + (self.stamp('bar2') if self.light else [])
                sl += mk('s_mul_i32 s%d, s%d, %d\nv_add_u32 v%d, s%d, v%d' % (sT0, sW, 7 * 3072, vb, sT0, vTr))
            if j + NB < len(jobs):
                sl += rd(j + NB)
            slots.append(sl)
        c0 = 21 if l == 0 else 0
        if l == 0:
            n = len(self.late_dma)
            for i, g in enumerate(self.late_dma):
                slots[(i * o['latespan']) // n] += g
            slots[28] += [wait_tok(self.tok_xb)]
            for i, g in enumerate(self.late_rd):
                slots[28 + i // 2] += g
            slots[37] += mk('\n'.join('v_mov_b32 v%d, 0x3f803f80' % (vo + i) for i in range(4)))
            slots[39] += self.late_dots + fin + tr2
            for i, g in enumerate(self.wo_dma(175)):
                slots[o['woslot'] + 2 * i] += g
            slots[o['tslot']] += self.touch_attn(0, vT)
            slots[62] += mk('v_and_b32 v%d, 31, v0\nv_lshlrev_b32 v%d, 2, v%d\ns_mul_i32 s%d, s%d, 384\nv_add_u32 v%d, %d, v%d\nv_add_u32 v%d, s%d, v%d'
                            % (vb, vb, vb, sT0, sW, vb, L_KVB, vb, vb + 1, sT0, vb))
            slots[63] += mk('\n'.join('ds_write_b32 v%d, v%d offset:%d' % (vb + 1, CSA + 16 * t, 128 * t) for t in range(3)))
            slots[65] += mk('s_waitcnt lgkmcnt(0)\ns_barrier')
            for t in range(3):
                r = RLB
                tt = (1, 2, 0)[t]
                slots[65 + 5 * t] += mk('\n'.join('ds_read_b32 v%d, v%d offset:%d' % (r + ww, vb, 384 * ww + 128 * tt) for ww in range(4)))
                slots[68 + 5 * t] += mk('v_add_f32 v%d, v%d, v%d\nv_add_f32 v%d, v%d, v%d\nv_add_f32 v%d, v%d, v%d' % (r, r, r + 1, r + 2, r + 2, r + 3, r, r, r + 2))
                slots[69 + 5 * t] += self.split_w(r + 2, r, r + 1) + mk('ds_write_b64 v%d, %s offset:%d' % (vCs, v(r + 2, 2), 256 * tt))
        else:
            n = o['look']
            for j in range(0, nmain, 2):
                if n < 28:
                    k_free = n - 20
                    assert k_free < 0 or j >= jobs.index(('q', k_free))
                    slots[j] += lds[n]
                    n += 1
            st = self.frag_loads([v(SB + 4 * (i % 4), 4) for i in range(7)], SRD_CL, sT5, XIN_OFF + 28672, st=sT1)
            for i in range(4):
                slots[25 + 2 * i] += st[i]
            ex = []
            for i in range(1, 16):
                ex += mk('v_add_f32 v%d, v%d, v%d' % (vS, vS if i > 1 else SB, SB + i))
            for i in range(0, 15, 3):
                slots[40 + i // 3] += ex[i:i + 3]
            for i in range(3):
                slots[45 + i] += st[4 + i]
            ex = flat(mk('v_add_f32 v%d, v%d, v%d' % (vS, vS, SB + i)) for i in range(12)) + fin
            per = (len(ex) + 8) // 9
            for i in range(9):
                slots[54 + i] += ex[i * per:(i + 1) * per]
        fill = mk('v_lshrrev_b32 v%d, 5, v0\nv_lshl_add_u32 v%d, v%d, 4, s%d' % (vT + 1, vT + 1, vT + 1, sT4))
        bc = lambda g: mk('ds_read_b128 %s, v%d offset:%d' % (v(RLB + 4 * (g & 1), 4), vT + 1, 32 * g))
        fill += bc(0) + bc(1)
        slots[nmain - 3] += fill
        fill = mk('v_mov_b32 v%d, 0x3f803f80' % vPoll)
        for g in range(4):
            R = [RLB + 4 * (g & 1) + i for i in range(4)]
            e = self.phi4([AK + 4 * g + i for i in range(4)], R, xreg[8])
            e2 = flat(mk('v_mul_f32 v%d, v%d, v%d' % (AV + 4 * g + i, AV + 4 * g + i, R[i])) for i in range(4))
            fill += e[:4] + e2
            if g + 2 < 4:
                fill += bc(g + 2)
            fill += e[4:]
            fill += self.pack(AK + 2 * g, AK + 4 * g, 2) + self.pack(AV + 2 * g, AV + 4 * g, 2)
            for i in range(2):
                fill += mk('v_cndmask_b32 v%d, v%d, v%d, s[%d:%d]' % (AV + 2 * g + i, AV + 2 * g + i, vPoll, sN28, sN28 + 1))
        fill += mk('v_add_u32 v%d, s%d, v%d' % (vT, sT4, vL16))
        vG = SB + 12
        ga = self.kv_lane_addr(vG, vG + 1, vG + 2, gather=True)
        for i in range(0, len(ga), 3):
            slots[46 + c0 // 3 + i // 3] += ga[i:i + 3]
        P.add(flat(slots[:nmain]))
        P.add(self.stamp('s1_kv_mfma'))
        P.add(spread(slots[nmain:], fill, start=1))
        DK = 16
        P.add(mfma(DK, v(AK, 4), v(AV, 4), True) + mfma(DK, v(AK + 4, 4), v(AV + 4, 4)))
        for q in range(4):
            P('ds_write_b128 v%d, %s offset:%d' % (vT, v(DK + 4 * q, 4), 1024 * q))
        P('s_waitcnt lgkmcnt(0)\ns_barrier')
        for ww in range(4):
            P('ds_read_b128 %s, v%d offset:%d' % (v(32 + 4 * ww, 4), vG, 4096 * ww))
        P('v_lshlrev_b32 v%d, 3, v0\ns_mov_b32 s%d, 0x80808080\ns_mov_b32 s%d, 0x80808080' % (vT, sT0 + 1, sT0 + 2))
        for x, y in ((32, 36), (40, 44), (32, 40)):
            for i in (0, 2):
                P('v_pk_add_f32 %s, %s, %s' % (v(x + i, 2), v(x + i, 2), v(y + i, 2)))
        P.add(self.pack(32, 32, 2))
        for i in range(2):
            P('v_cndmask_b32 v%d, v%d, v%d, s[%d:%d]' % (32 + i, 32 + i, vNonce, sT0 + 1, sT0 + 2))
        P('buffer_store_dwordx2 %s, v%d, %s, s%d offen sc1' % (v(32, 2), vT, self.srd(SRD_WS), sKvMy))
        P.add(self.stamp('kv_pub'))
        if l == 0:
            P('s_lshl_b32 s%d, s%d, 11\ns_add_u32 s%d, s%d, %d' % (sT4, sC, sT4, sT4, WS_XCC))
            P('v_and_b32 v%d, 15, v0\nv_lshlrev_b32 v%d, 7, v%d' % (vPA, vPA, vPA))
            P('buffer_load_dword v%d, v%d, %s, s%d offen sc1' % (vPoll, vPA, self.srd(SRD_WS), sT4))
        if l == 1 and o['l1touch'] & 1:
            P.add(self.touch_attn(0, vT))
        if l == 1 and o['l1touch'] & 2:
            P.add(self.touch([(16, SRD_CL, sHst, b * 114688) for b in range(4)], vT))
        PQ = self.PQ = 104

        def qepi():
            L = []
            for g in range(4):
                L += self.phi4([AQ + 4 * g + i for i in range(4)], [vRl] * 4, 48) + self.pack(PQ + 2 * g, AQ + 4 * g, 2)
            for i in (6, 7):
                L += mk('v_cndmask_b32 v%d, v%d, 0, s[%d:%d]' % (PQ + i, PQ + i, sHalf, sHalf + 1))
            return L
        if l == 0:
            self.staging(qepi)
        else:
            P.add(qepi())

    PARK = 140

    def wo_dma(self, vwo):
        wo = [mk('v_lshrrev_b32 v%d, 2, v0\nv_mul_u32_u24 v%d, 896, v%d\nv_and_b32 v%d, 3, v0\nv_lshl_add_u32 v%d, v%d, 4, v%d\ns_lshl_b32 s%d, s%d, 6\nv_add_u32 v%d, s%d, v%d'
                 % (vwo, vwo, vwo, vT, vwo, vT, vwo, sQ0, sM, vwo, sQ0, vwo))
              + mk('s_mul_i32 s%d, s%d, %d\ns_lshl_b32 s%d, s%d, 10\ns_add_u32 s%d, s%d, %d' % (sQ1, sW, 16 * 896, sT3, sW, sT3, sT3, L_WO))]
        for t in range(7):
            wo.append(mk('s_add_u32 m0, s%d, %d\ns_add_u32 s%d, s%d, %d\nbuffer_load_dwordx4 v%d, %s, s%d offen lds' % (sT3, 4096 * t, sQ0, sQ1, t * 64 * 896, vwo, self.srd(SRD_WO), sQ0)))
        last = I('s_mov_b32 s%d, %d\ns_mov_b32 m0, %d\ns_mov_b64 exec, 0xffff\nbuffer_load_dwordx4 v%d, %s, s%d offen lds\ns_mov_b64 exec, -1'
                 % (sQ0, 448 * 896, L_WO + 28672, vwo, self.srd(SRD_WO), sQ0), kind='block', nvm=1, src=[('v', vwo)])
        self.tok_wo = tok(last)
        return wo + [[last]]

    def staging(self, qepi):
        P = self.P
        lskip, ljoin = P.newlabel('Lnostage'), P.newlabel('Lstaged')
        P.add([I('s_cmp_ge_u32 s%d, 14\ns_cbranch_scc1 %s' % (sM, lskip), kind='block')])
        txt, _ = finalize(mk('s_nop 7') + qepi())
        self.ool.append('%s:\n%s\ns_waitcnt vmcnt(0)\ns_branch %s' % (lskip, '\n'.join(t.strip() for t in txt.split('\n')), ljoin))
        v1a, t0, t1, vp, vb, vb2 = 112, 113, 114, 115, 120, 168
        P('v_lshrrev_b32 v%d, 2, v0\nv_mul_u32_u24 v%d, 3584, v%d\nv_and_b32 v%d, 3, v0\nv_lshl_add_u32 v%d, v%d, 4, v%d'
          % (v1a, v1a, v1a, vT, v1a, vT, v1a))
        P('s_lshl_b32 s%d, s%d, 2\ns_add_u32 s%d, s%d, s%d\ns_lshl_b32 s%d, s%d, 6\nv_add_u32 v%d, s%d, v%d' % (sT5, sM, sT5, sT5, sW, sT5, sT5, v1a, sT5, v1a))
        P('s_mul_i32 s%d, s%d, 7168\ns_add_u32 s%d, s%d, %d\ns_mul_i32 s%d, s%d, 21504\ns_mul_i32 s%d, s%d, %d' % (sT3, sW, sT3, sT3, L_EX, sQ1, sW, sWi, sD1, 14 * 16 * 3584))

        def issue(k):
            g = mk('s_add_u32 m0, s%d, %d' % ((sT3, 1024 * k) if k < 7 else (sQ1, 1024 * (k - 7))))
            g += mk('s_add_u32 s%d, s%d, %d' % (sQ0, sWi, k * 16 * 3584) if k < 14 else 's_sub_u32 s%d, %d, s%d' % (sQ0, k * 16 * 3584, sWi))
            g += mk('buffer_load_dwordx4 v%d, %s, s%d offen lds' % (v1a, self.srd(SRD_W1), sQ0))
            return g
        dm = [issue(k) for k in range(28)]
        tk = [tok(g[-1]) for g in dm]
        park = mk('\n'.join('v_accvgpr_read_b32 v%d, a%d' % (160 + i, 216 + i) for i in range(8)))
        park += mk('v_add_u32 v%d, s%d, v%d' % (vp, sQ1, vL16))
        park += flat(mk('ds_read_b128 %s, v%d offset:%d' % (a(self.PARK + 4 * i, 4), vp, 1024 * i)) for i in range(21))
        P.add(spread(dm[:7], park))
        P('s_waitcnt lgkmcnt(0)')
        ad = self.trbase(t1, 64, 4) + mk('v_add_u32 v%d, s%d, v%d\nv_add_u32 v%d, s%d, v%d' % (t0, sT3, t1, t1, sQ1, t1))
        ad += mk('v_and_b32 v%d, 31, v0\nv_lshlrev_b32 v%d, 1, v%d\nbuffer_load_ushort v%d, v%d, %s, s%d offen' % (vT, vT, vT, vb, vT, self.srd(SRD_B1), sT5))
        ad += mk('v_lshrrev_b32 v%d, 5, v0\nv_lshlrev_b32 v%d, 3, v%d\ns_lshl_b32 s%d, s%d, 5' % (vT, vT, vT, sT2, sFe))
        ad += mk('buffer_load_dwordx2 %s, v%d, %s, s%d offen\nbuffer_load_dwordx2 %s, v%d, %s, s%d offen offset:16'
                 % (v(vb2, 2), vT, self.srd(SRD_B2), sT2, v(vb2 + 2, 2), vT, self.srd(SRD_B2), sT2))
        vo, D = 124, 128
        P.add(spread(dm[7:], ad + qepi() + mk('\n'.join('v_mov_b32 v%d, 0x3f803f80' % (vo + i) for i in range(4)))))
        if self.light:
            P.add(self.stamp('st_iss'))
        for k in range(28):
            va, o = (t0, 1024 * k) if k < 7 else (t1, 1024 * (k - 7))
            P.add([wait_tok(tk[k])] + mk('ds_read_b64_tr_b16 %s, v%d offset:%d\nds_read_b64_tr_b16 %s, v%d offset:%d' % (w1half(k, 0), va, o, w1half(k, 1), va, o + 512)))
            if k >= 2:
                P.add(mfma(D, v(vo, 4), w1reg(k - 2), k == 2))
        P.add(mfma(D, v(vo, 4), w1reg(26)) + mfma(D, v(vo, 4), w1reg(27)))
        P.add(self.unpack(144, vb2, 4) + mk('\n'.join('v_mov_b32 v%d, 0' % r for r in range(152, 156))))
        P('s_lshl_b32 s%d, s%d, 7\ns_add_u32 s%d, s%d, %d\nv_lshrrev_b32 v%d, 5, v0\nv_lshl_add_u32 v%d, v%d, 6, s%d' % (sT0, sW, sT0, sT0, L_B2, vT, vT, vT, sT0))
        for q in range(4):
            P('ds_write_b128 v%d, %s offset:%d' % (vT, v(144 + 4 * min(q, 2), 4), 16 * q))
        P.add(self.split_w(vW1X, D, vT + 1) + mk('v_lshl_or_b32 v%d, v%d, 16, v%d' % (vb, vb, vb)))
        P('v_cndmask_b32 v%d, v%d, v%d, s[%d:%d]\nv_cndmask_b32 v%d, v%d, 0, s[%d:%d]' % (vW1X, vW1X, vb, sHalf, sHalf + 1, vW1X + 1, vW1X + 1, sHalf, sHalf + 1))
        P.label(ljoin)
        P.add([I('s_nop 1', kind='block', states=2)])

    def w2_prefetch(self, va):
        txt = ['s_lshr_b32 s%d, s%d, 3' % (sQ0, sC), 's_mul_i32 s%d, s%d, 14' % (sQ0, sQ0), 's_add_u32 s%d, s%d, s%d' % (sQ0, sQ0, sM),
               's_lshl_b32 s%d, s%d, 2' % (sQ0, sQ0), 's_add_u32 s%d, s%d, s%d' % (sQ0, sQ0, sW), 's_mul_i32 s%d, s%d, %d' % (sQ0, sQ0, 112 * 128),
               'v_lshlrev_b32 v%d, 7, v0' % va,
               'buffer_load_dword v%d, v%d, %s, s%d offen' % (vDummy, va, self.srd(SRD_W2), sQ0), 's_add_u32 s%d, s%d, 8192' % (sQ0, sQ0),
               's_mov_b32 exec_hi, 0xffff', 'buffer_load_dword v%d, v%d, %s, s%d offen' % (vDummy, va, self.srd(SRD_W2), sQ0), 's_mov_b64 exec, -1']
        return [I('\n'.join(txt), kind='block', nvm=2, src=[('v', 0)], dst=[('v', va)], cost=60)]

    def w2_stage(self, fill, R, extra):
        P = self.P
        v2a, tA, tB, vp = R, R + 1, R + 3, R + 5
        P('v_lshrrev_b32 v%d, 3, v0\nv_mul_u32_u24 v%d, 896, v%d\nv_lshrrev_b32 v%d, 2, v0\nv_and_b32 v%d, 4, v%d\nv_xor_b32 v%d, v%d, v0\nv_and_b32 v%d, 7, v%d\nv_lshl_add_u32 v%d, v%d, 4, v%d'
          % (v2a, v2a, v2a, vT, vT, vT, vT, vT, vT, vT, v2a, vT, v2a))
        P('s_lshr_b32 s%d, s%d, 1\ns_lshl_b32 s%d, s%d, 7\ns_mul_i32 s%d, s%d, %d\ns_add_u32 s%d, s%d, s%d\nv_add_u32 v%d, s%d, v%d'
          % (sT0, sM, sT0, sT0, sT1, sW, 32 * 896, sT0, sT0, sT1, v2a, sT0, v2a))
        P('s_mul_i32 s%d, s%d, 7168\ns_add_u32 s%d, s%d, %d\ns_lshl_b32 s%d, s%d, 12\ns_add_u32 s%d, s%d, %d\ns_mul_i32 s%d, s%d, %d'
          % (sT3, sW, sT3, sT3, L_EX, sT5, sW, sT5, sT5, L_KVS, sRot, sMo, 128 * 896))
        NS = 5

        def issue(u):
            out = []
            base, o = (sT3, (u % NS) * 2048) if u % NS < 3 else (sT5, (u % NS - 3) * 2048)
            for i in range(2):
                g = mk('s_add_u32 m0, s%d, %d' % (base, o + 1024 * i))
                if u % 2 == 0 and i == 0 and u:
                    g += mk('s_add_u32 s%d, s%d, %d\ns_cmp_eq_u32 s%d, %d\ns_cselect_b32 s%d, 0, s%d' % (sRot, sRot, 128 * 896, sRot, 14 * 128 * 896, sRot, sRot))
                g += mk('s_add_u32 s%d, s%d, %d' % (sQ0, sRot, (16 * (u % 2) + 8 * i) * 896))
                out += g + mk('buffer_load_dwordx4 v%d, %s, s%d offen lds' % (v2a, self.srd(SRD_W2), sQ0))
            return out, tok(out[-1])
        tk = []
        for u in range(NS - 1):
            g, t = issue(u)
            tk.append(t)
            P.add(g)
        P('s_lshr_b32 s%d, s%d, 1' % (sT0, sW))
        P.add(self.trbase(tA, 128, 4, xor16=sT0))
        P('s_and_b32 s%d, s%d, 1\nv_bfe_u32 v%d, v0, 3, 1\nv_xor_b32 v%d, s%d, v%d\nv_lshl_add_u32 v%d, v%d, 6, v%d\nv_xor_b32 v%d, 64, v%d'
          % (sT0, sW, vT, vT, sT0, vT, tA, vT, tA, tA + 1, tA))
        P('v_add_u32 v%d, s%d, v%d\nv_add_u32 v%d, s%d, v%d\nv_add_u32 v%d, s%d, v%d\nv_add_u32 v%d, s%d, v%d' % (tB, sT5, tA, tB + 1, sT5, tA + 1, tA, sT3, tA, tA + 1, sT3, tA + 1))
        P('s_mul_i32 s%d, s%d, 21504\nv_add_u32 v%d, s%d, v%d' % (sT0, sW, vp, sT0, vL16))
        steps = []
        for u in range(28):
            ta, o = (tA, (u % NS) * 2048) if u % NS < 3 else (tB, (u % NS - 3) * 2048)
            L = []
            if u + NS - 1 < 28:
                if u:
                    L += [wait_tok(prev_rd)]
                g, t = issue(u + NS - 1)
                tk.append(t)
                L += g
            L += [wait_tok(tk[u])]
            for js in range(2):
                b = W2A + 8 * u + 4 * js
                L += mk('ds_read_b64_tr_b16 %s, v%d offset:%d\nds_read_b64_tr_b16 %s, v%d offset:%d' % (a(b, 2), ta + js, o, a(b + 2, 2), ta + js, o + 1024))
            prev_rd = tok(L[-1])
            L += extra.get(u, [])
            if u < 11:
                L += flat(mk('ds_write_b128 v%d, %s offset:%d' % (vp, a(self.PARK + 4 * i, 4), 1024 * i)) for i in range(2 * u, min(2 * u + 2, 21)))
            steps.append(L)
        P.add(spread(steps, fill, start=0, end=14))

    def kvx(self, l):
        P = self.P
        P.comment('==== layer %d : kv exchange' % l)
        if l == 0:
            lw, lb = P.newlabel('Lxcc'), P.newlabel('Lxok')
            P('v_subrev_u32 v%d, s%d, v%d\nv_cmp_lt_u32 vcc, 15, v%d' % (vPoll, sNonce, vPoll, vPoll))
            P.add([I('s_cbranch_vccnz %s\n%s:' % (lw, lb), kind='block')])
            self.ool.append('\n'.join([
                lw + ':',
                'buffer_load_dword v%d, v%d, %s, s%d offen sc1' % (vPoll, vPA, self.srd(SRD_WS), sT4),
                's_add_u32 s%d, s%d, 1' % (sSpin, sSpin),
                's_cmp_gt_u32 s%d, 0x40000' % sSpin,
                's_cbranch_scc1 L_end',
                's_waitcnt vmcnt(0)',
                'v_subrev_u32 v%d, s%d, v%d' % (vPoll, sNonce, vPoll),
                'v_cmp_lt_u32 vcc, 15, v%d' % vPoll,
                's_cbranch_vccnz %s' % lw,
                's_branch %s' % lb]))
            P('v_cmp_ne_u32 vcc, s%d, v%d\ns_cmp_lg_u64 vcc, 0\ns_cselect_b32 s%d, 1, 0' % (sXcc, vPoll, sSlow))
        RES = 160
        if l == 1:
            P('s_lshl_b32 s%d, s%d, 11\ns_add_u32 s%d, s%d, s%d\ns_add_u32 s%d, s%d, %d' % (sT1, sM, sT0, sT5, sT1, sT0, sT0, XIN_OFF))
            for j in range(2):
                P('buffer_load_dwordx4 %s, v%d, %s, s%d offen offset:%d' % (v(RES + 4 * j, 4), vL16, self.srd(SRD_CL), sT0, 1024 * j))
            if self.o['reuse']:
                P('s_mul_i32 s%d, s%d, %d' % (sT0, sSlow, LOFF))
            else:
                P('s_mov_b32 s%d, %d' % (sT0, LOFF))
            P('s_add_u32 s%d, s%d, s%d\ns_addc_u32 s%d, s%d, 0\ns_sub_u32 s%d, s%d, s%d' % (SRD_CL, SRD_CL, sT0, SRD_CL + 1, SRD_CL + 1, SRD_CL + 2, SRD_CL + 2, sT0))
            if self.o['kvdelay']:
                P('s_sleep %d' % self.o['kvdelay'])
        P('s_cmp_eq_u32 s%d, 3\ns_cselect_b32 s%d, 0xffff0000, 0\ns_cselect_b32 s%d, 0xffff0000, 0' % (sW, sPm, sPm + 1))
        P.add(self.kv_lane_addr(vT + 1, vT + 2, vT + 3, gather=False))
        P('v_lshlrev_b32 v%d, 5, v0\nv_add_u32 v%d, %d, v%d' % (vT + 2, vT + 2, L_KVB, vT + 2))
        K10, K01 = 96, 97
        P('v_mov_b32 v%d, 0x3f80\nv_mov_b32 v%d, 0x3f800000\ns_mov_b32 s%d, 0x88888888\ns_mov_b32 s%d, 0x88888888' % (K10, K01, sPm, sPm + 1))
        P.add(self.pa(16))
        P.add(self.trbase(vTr, 64, 4, add=L_WO))
        lsw, lre = P.newlabel('Lsweep'), P.newlabel('Lresweep')
        P.add(self.stamp('sweep_start'))
        P.label(lsw)
        B = 32
        P.add(flat(self.frag_loads([v(B + 4 * i, 4) for i in range(8)], SRD_WS, sKv, 0, flags='sc1')))
        bad, S = vT, 16
        P('v_mov_b32 v%d, 0' % bad)
        for i in range(8):
            for k in range(4):
                for hh, K in enumerate((K10, K01)):
                    P('v_dot2_f32_bf16 v%d, v%d, v%d, %s' % (S + 2 * k + hh, B + 4 * i + k, K, 'v%d' % (S + 2 * k + hh) if i else '0'))
            for k in (2, 3):
                P('v_bitop3_b32 v%d, v%d, s%d, v%d bitop3:0xbe' % (bad, B + 4 * i + k, sNonce, bad))
        P('v_cmp_ne_u32 vcc, 0, v%d\ns_and_b64 vcc, vcc, s[%d:%d]' % (bad, sPm, sPm + 1))
        P.add([I('s_cbranch_vccnz %s' % lre, kind='block', states=1)])
        self.ool.append('%s:\ns_sleep 6\ns_add_u32 s%d, s%d, 1\ns_cmp_gt_u32 s%d, 0x40000\ns_cbranch_scc1 L_end\ns_branch %s'
                        % (lre, sSpin, sSpin, sSpin, lsw))
        P.add(self.stamp('sweep_done'))
        for k in range(4):
            P('v_permlane32_swap_b32 v%d, v%d' % (S + k, S + 4 + k))
        for k in (0, 2):
            P('v_pk_add_f32 %s, %s, %s' % (v(S + k, 2), v(S + k, 2), v(S + 4 + k, 2)))
        P.add(self.pack(S, S, 2))
        P('ds_write_b64 v%d, %s' % (vT + 1, v(S, 2)))
        if l == 0:
            P.add([wait_tok(self.tok_wo)])
        P('s_waitcnt lgkmcnt(0)\ns_barrier')
        KF, D = 32, 16
        P('ds_read_b128 %s, v%d\nds_read_b128 %s, v%d offset:16' % (v(KF, 4), vT + 2, v(KF + 4, 4), vT + 2))
        P.add(mfma(D, v(KF, 4), v(self.PQ, 4), True))
        for i in (6, 7):
            P('v_cndmask_b32 v%d, v%d, 0, s[%d:%d]' % (KF + i, KF + i, sHalf, sHalf + 1))
        P.add(mfma(D, v(KF + 4, 4), v(self.PQ + 4, 4)))
        t1, t2 = 40, 42
        P('v_mov_b32 v%d, v%d\nv_mov_b32 v%d, v%d\nv_permlane32_swap_b32 v%d, v%d' % (t1, D + 12, t2, D + 12, t1, t2))
        P('v_add_f32 v%d, %s, v%d\nv_rcp_f32 v%d, v%d\nv_mul_f32 v%d, s%d, v%d\nv_mul_f32 v%d, s%d, v%d' % (t2, f32(1e-6), t2, t2, t2, t1, sLn2, t2, t1 + 1, sLn2, t2))
        for r in range(0, 16, 2):
            P('v_pk_mul_f32 %s, %s, %s' % (v(D + r, 2), v(D + r, 2), v(t1, 2)))
        P.add(self.pack(D, D, 8))
        for i in (6, 7):
            P('v_cndmask_b32 v%d, v%d, 0, s[%d:%d]' % (D + i, D + i, sHalf, sHalf + 1))
        st = self.stores(['buffer_store_dwordx4 %s, v%d, %s, s%d offen offset:%d' % (v(D + 4 * j, 4), vL16, self.srd(SRD_CL), sOst, 1024 * j) for j in range(2)])
        tk = tok(st[-1])
        P.add(st)
        P.add(self.flag([tk], sFoMy))
        P.add(self.stamp('o_pub'))

    def s2(self, l):
        P = self.P
        o = self.o
        P.comment('==== layer %d : S2' % l)
        ACC, OF, WB, RES = 16, 32, 144, 160
        NB = 4
        P.add(self.poll_issue(sFo))
        P.add(self.unpack(ACC, RES, 8))
        jobs = [(h, j) for h in range(16) for j in range(2)]
        rd = lambda i: mk('ds_read_b64_tr_b16 %s, v%d offset:%d\nds_read_b64_tr_b16 %s, v%d offset:%d' % (
            v(WB + 4 * (i % NB), 2), vTr, 1792 * jobs[i][0] + 1024 * jobs[i][1],
            v(WB + 4 * (i % NB) + 2, 2), vTr, 1792 * jobs[i][0] + 1024 * jobs[i][1] + 512))
        for i in range(NB):
            P.add(rd(i))
        P('s_add_u32 s%d, s%d, %d' % (sT4, sOst, X1_OFF))
        P('s_lshr_b32 s%d, s%d, 2\ns_lshl_b32 s%d, s%d, 10\ns_and_b32 s%d, s%d, 3\ns_lshl_b32 s%d, s%d, 2\ns_add_u32 s%d, s%d, s%d\ns_add_u32 s%d, s%d, s%d\ns_add_u32 s%d, s%d, %d'
          % (sT5, sM, sT5, sT5, sT1, sM, sT1, sT1, sT5, sT5, sT1, sT5, sT5, sBlk, sT5, sT5, X1_OFF + 28672))
        P.add(self.poll_check(sFo))
        P.add(self.stamp('o_seen'))
        oreg = [OF + 4 * (i % 28) for i in range(32)]
        lds = self.frag_loads([v(r, 4) for r in oreg], SRD_CL, sBlk, O_OFF, flags='sc1')
        n = o['look2']
        P.add(flat(lds[:n]))
        for i in range(32):
            P.add(mfma(ACC, v(WB + 4 * (i % NB), 4), v(oreg[i], 4)))
            if self.light and i in (0, 8, 16, 31):
                P.add(self.stamp('s2_%d' % i))
            if i + n < 32:
                P.add(lds[i + n])
            if i + NB < 32:
                P.add(rd(i + NB))
        P.add(self.pa(14, blocks=True))
        P.add(self.pack(OF, ACC, 8))
        P.add(self.stores(['buffer_store_dwordx4 %s, v%d, %s, s%d offen offset:%d' % (v(OF + 4 * j, 4), vL16, self.srd(SRD_CL), sT4, 1024 * j) for j in range(2)]))
        P.add(self.row_stats(OF, 8, vT, vT + 2))
        st = self.stores(['buffer_store_dword v%d, v%d, %s, s%d offen' % (vT, vL16, self.srd(SRD_CL), sT5)])
        tk = tok(st[-1])
        P.add(st)
        if self.light:
            P.add(self.stamp('x1_st'))
        P.add(self.flag([tk], sFoMy, FX1 - FO))
        P.add(self.stamp('x1_pub'))

    def gelu(self, acc, KK, T):
        pr = range(0, 16, 2)
        A = flat(mk('v_pk_mul_f32 %s, %s, %s' % (v(T + i, 2), v(acc + i, 2), v(acc + i, 2))) for i in pr)
        A += flat(mk('v_pk_fma_f32 %s, %s, %s, %s op_sel:[0,1,0] op_sel_hi:[1,1,0]' % (v(T + i, 2), v(T + i, 2), v(KK, 2), v(KK, 2))) for i in pr)
        A += flat(mk('v_pk_mul_f32 %s, %s, %s' % (v(T + i, 2), v(T + i, 2), v(acc + i, 2))) for i in pr)
        E = flat(mk('v_exp_f32 v%d, v%d' % (T + i, T + i)) for i in range(16))
        B = flat(mk('v_pk_fma_f32 %s, %s, %s, %s op_sel_hi:[1,0,0]' % (v(T + i, 2), v(T + i, 2), v(KK + 2, 2), v(KK + 2, 2))) for i in pr)
        R = flat(mk('v_rcp_f32 v%d, v%d' % (T + i, T + i)) for i in range(16))
        C = flat(mk('v_pk_mul_f32 %s, %s, %s' % (v(acc + i, 2), v(acc + i, 2), v(T + i, 2))) for i in pr)
        return A, E, B, R, C, self.pack(acc, acc, 8)

    def mlp(self, l):
        P = self.P
        o = self.o
        P.comment('==== layer %d : MLP' % l)
        ACC = (16, 32)
        XB, EXB, WEX, T, KK, VQ, RING = 48, 72, 76, 80, 96, 100, 112
        NB = 6
        P('s_mov_b32 s%d, %d' % (sT4, FX1))
        P.add(self.poll_issue(sT4))
        P('s_mul_i32 s%d, s%d, 7168' % (sT5, sW))
        P('v_mov_b32 v%d, v%d\nv_mov_b32 v%d, v%d' % (WEX, vW1X, WEX + 1, vW1X + 1))
        P('\n'.join('v_mov_b32 v%d, 0' % r for r in (WEX + 2, WEX + 3, EXB + 2, EXB + 3)))
        vE8, vK16, vX2 = vTr, vT + 3, 104
        P('v_lshlrev_b32 v%d, 3, v0\nv_add_u32 v%d, %d, v%d' % (vE8, vE8, L_KVS, vE8))
        P('v_and_b32 v%d, 31, v0\nv_lshlrev_b32 v%d, 4, v%d\nv_add_u32 v%d, %d, v%d' % (vK16, vK16, vK16, vK16, L_KVS + 512, vK16))
        vXA, vXB = vX2, vX2 + 1
        P('s_mul_i32 s%d, s%d, 14336\nv_add_u32 v%d, s%d, v%d\ns_sub_u32 s%d, 14336, s%d\nv_add_u32 v%d, s%d, v%d' % (sT0, sD1, vXA, sT0, vL16, sT0, sT0, vXB, sT0, vL16))
        for q, sB in enumerate((sEb, sLb)):
            P('s_lshl_b32 s%d, s%d, 15\ns_lshl_b32 s%d, s%d, 10\ns_add_u32 s%d, s%d, s%d\ns_add_u32 s%d, s%d, %d' % (sT0, sB, sT1, sFe, sT0, sT0, sT1, sRes + q, sT0, X1_OFF))
            if l == 0:
                P('s_mul_i32 s%d, s%d, %d\ns_add_u32 s%d, s%d, %d\ns_add_u32 s%d, s%d, s%d' % (sT0, sB, XIN_BS, sT0, sT0, XIN_OFF, sFin + q, sT0, sT1))
                P('s_lshr_b32 s%d, s%d, 2\ns_lshl_b32 s%d, s%d, 10\ns_add_u32 s%d, s%d, s%d\ns_and_b32 s%d, s%d, 3\ns_lshl_b32 s%d, s%d, 2\ns_add_u32 s%d, s%d, s%d\ns_add_u32 s%d, s%d, 28672'
                  % (sT1, sFe, sT1, sT1, sT0, sT0, sT1, sT1, sFe, sT1, sT1, sT0, sT0, sT1, sFin + 2 + q, sT0))
                P('s_lshl_b32 s%d, s%d, 5\ns_add_u32 s%d, s%d, s%d\ns_lshl_b32 s%d, s%d, 2\ns_add_u32 s%d, s%d, %d' % (sT1, sB, sT1, sT1, sFe, sT1, sT1, sFin + 4 + q, sT1, FXIN))
            else:
                P('s_lshl_b32 s%d, s%d, 2\ns_add_u32 s%d, s%d, s%d\ns_mul_i32 s%d, s%d, %d\ns_lshl_b32 s%d, s%d, 5\ns_add_u32 s%d, s%d, s%d'
                  % (sT0, sC, sT0, sT0, sB, sT0, sT0, 32 * 896, sT1, sFe, sFin + q, sT0, sT1))
        P('s_add_u32 s%d, s%d, %d' % (sT1, sBlk, X1_OFF + 28672))
        P.add(self.poll_check(sT4))
        P.add(self.stamp('x1_seen'))
        xd, tb = [], []
        for b in range(4):
            gs = []
            for i in range(7):
                g = []
                if i % 4 == 0:
                    g += mk('s_add_u32 m0, s%d, %d\ns_add_u32 s%d, s%d, %d' % (sT5, b * L_XB + 1024 * i, sT0, sT5, X1_OFF + b * 32768 + 1024 * i))
                g += mk('buffer_load_dwordx4 v%d, %s, s%d offen offset:%d %s lds' % (vL16, self.srd(SRD_CL), sT0, 1024 * (i % 4), 'sc1' if o['xsc1'] else ''))
                gs.append(g)
            tb.append(tok(gs[-1][-1]))
            xd.append(gs)
        P.add(flat(xd[0]))
        stl = [mk('buffer_load_dwordx4 %s, v%d, %s, s%d offen offset:%d sc1' % (v(RING + 4 * i, 4), vL16, self.srd(SRD_CL), sT1, 1024 * i)) for i in range(4)]
        st0 = mk('v_add_f32 v%d, v%d, v%d' % (T, RING, RING + 1))
        for i in range(2, 14):
            st0 += mk('v_add_f32 v%d, v%d, v%d' % (T, T, RING + i))
        st0 += self.stats_finish(T, True)
        st0 += mk('\n'.join(['v_rcp_f32 v%d, v%d' % (KK + 2, vRl),
                             'v_mul_f32 v%d, s%d, v%d' % (KK, sC0, vRl),
                             'v_mul_f32 v%d, v%d, v%d' % (T, vRl, vRl),
                             'v_mul_f32 v%d, s%d, v%d' % (KK + 1, sC1, vRl),
                             'v_mul_f32 v%d, v%d, v%d' % (KK + 1, KK + 1, T),
                             'v_sub_f32 v%d, 0, v%d' % (vMean, vMean),
                             'v_cndmask_b32 v%d, v%d, v%d, s[%d:%d]' % (vMean, vMean, KK + 2, sHalf, sHalf + 1)]))
        st0 += self.split_act(T + 2, vMean, T)
        st0 += mk('s_lshl_b32 s%d, s%d, 10\nv_add_u32 v%d, s%d, v%d\nv_add_u32 v%d, s%d, v%d' % (sT4, sW, vT, sT4, vE8, vT + 1, sT4, vK16))
        st0 += mk('ds_write_b64 v%d, %s\nds_write_b128 v%d, %s' % (vT, v(T + 2, 2), vT + 1, v(KK, 4)))

        def hpub(b):
            pre = mk('s_add_u32 s%d, s%d, %d' % (sT4, sHst, b * 114688))
            st = self.stores(['buffer_store_dwordx4 %s, v%d, %s, s%d offen offset:%d' % (v(ACC[b & 1] + 4 * j, 4), vL16, self.srd(SRD_CL), sT4, 1024 * j) for j in range(2)])
            return pre + st, tok(st[-1])
        hflag = lambda b, tk: self.flag([tk], sFoMy, FH - FO + 512 * b)
        extrd = lambda b, q: mk('ds_read_b128 %s, v%d offset:%d' % (v(KK, 4), vK16, 1024 * b) if q else 'ds_read_b64 %s, v%d offset:%d' % (v(EXB, 2), vE8, 1024 * b))
        extmf = lambda b: mfma(ACC[b & 1], v(WEX, 4), v(EXB, 4))
        hreg = [RING + 4 * (i % 16) for i in range(56)]

        def hload(i):
            blk, kap = divmod(i, 28)
            g = []
            if i == 0:
                g += mk('s_lshl_b32 s%d, s%d, 13' % (sRot, sMo))
            elif kap % 2 == 0:
                g += mk('s_add_u32 s%d, s%d, 8192\ns_cmp_ge_u32 s%d, %d\ns_cselect_b32 s%d, %d, 0\ns_sub_u32 s%d, s%d, s%d'
                        % (sRot, sRot, sRot, 14 * 8192, sHs, 14 * 8192, sRot, sRot, sHs))
            if kap % 2 == 0:
                g += mk('s_add_u32 s%d, s%d, s%d' % (sHs, (sHE, sHL)[blk], sRot))
            g += mk('buffer_load_dwordx4 %s, v%d, %s, s%d offen offset:%d sc1' % (v(hreg[i], 4), vL16, self.srd(SRD_CL), sHs, 1024 * (kap % 2)))
            return g
        pend = None
        npre = o['npre']
        if o['storder']:
            P.add(flat(stl))
        P.add([wait_tok(tb[0])])
        P('s_barrier')
        P.add(self.stamp('s3_b0'))
        job = [(b, k) for b in range(4) for k in range(28)]
        rdj = lambda j: mk('ds_read_b128 %s, v%d offset:%d' % (v(XB + 4 * (j % NB), 4), vXA if job[j][1] < 14 else vXB, (job[j][0] & 1) * L_XB + 1024 * (job[j][1] % 14)))
        for j in range(NB):
            P.add(rdj(j))
        BAR = 28 - NB - 1
        for b in range(4):
            slots = []
            for k in range(28):
                j = 28 * b + k
                sl = mfma(ACC[b & 1], w1reg(k), v(XB + 4 * (j % NB), 4), k == 0)
                if k % 2 == 0:
                    also_waits_for(sl[0], v(XB + 4 * ((j + 1) % NB), 4))
                if k == BAR and b == 0 and self.light:
                    sl += self.stamp('s3_bar')
                if k == BAR and b < 3:
                    sl += [wait_tok(tb[b + 1])] + (mk('s_waitcnt lgkmcnt(0)') if b == 0 else []) + mk('s_barrier')
                if k % 2 == 1:
                    for jj in (j + NB - 1, j + NB):
                        if jj < 112:
                            sl += rdj(jj)
                if k == 25:
                    sl += extrd(b, 0)
                if k == 22 and b == 1:
                    sl += mk('v_add_u32 v%d, %d, v%d\nv_add_u32 v%d, %d, v%d' % (vXA, 2 * L_XB, vXA, vXB, 2 * L_XB, vXB))
                slots.append(sl)
            slots[27] += extmf(b)
            if b == 0:
                slots[26] += extrd(0, 1)
                if o['storder'] == 0:
                    for i, g in enumerate(stl + xd[1] + xd[2][:3]):
                        slots[(3 * i) // 2] += g
                    P.add(spread(slots, st0, start=7, end=BAR))
                else:
                    for i, g in enumerate(xd[1] + xd[2][:3]):
                        slots[2 * i] += g
                    P.add(spread(slots, st0, start=o['storder'], end=BAR))
                continue
            if b == 1:
                for i, g in enumerate(xd[2][3:] + xd[3]):
                    slots[2 * i] += g
            gA, gE, gB, gR, gC, gP = self.gelu(ACC[(b - 1) & 1], KK, T)
            if l == 0 and b == o['pfseg']:
                slots[o['pfslot']] += self.w2_prefetch(vT)
            slots[2] += gA
            for i in range(8):
                slots[3 + i] += gE[2 * i:2 * i + 2]
                slots[12 + i] += gR[2 * i:2 * i + 2]
            slots[11] += gB
            slots[20] += gC
            slots[21] += gP[:3]
            slots[22] += gP[3:6]
            st, nxt = hpub(b - 1)
            slots[23] += gP[6:] + st
            if pend is not None and l == 1:
                slots[o['flagpos']] += hflag(b - 2, pend)
            pend = nxt
            slots[24] += extrd(b, 1)
            if b == 3 and l == 1:
                slots[o['pollE']] += self.pa(14) + self.poll_issue(sPE)
            if b == 1 or self.light:
                P.add(self.stamp('s3_b%d' % b))
            P.add(flat(slots))
        P('s_waitcnt lgkmcnt(0)\ns_barrier')
        P.add(self.stamp('s3_end'))
        AE, AL, RX, SEL, RS = 48, 16, 80, 104, 108
        vEW, vER, vB2 = (vTr, vT, vT + 1), vT + 3, vT + 2
        resid = lambda q: mk('buffer_load_dwordx4 %s, v%d, %s, s%d offen sc1' % (v(RS, 4), vL16, self.srd(SRD_CL), sRes + q))
        cinit = lambda A: flat(mk('ds_read_b128 %s, v%d offset:%d' % (v(A + 4 * q, 4), vB2, 16 * q)) for q in range(4))
        ad = []
        for n, x in enumerate((2, 1, 3)):
            ad += mk('s_xor_b32 s%d, s%d, %d\ns_mul_i32 s%d, s%d, 6144\ns_add_u32 s%d, s%d, %d\nv_add_u32 v%d, s%d, v%d'
                     % (sT3, sW, x, sT3, sT3, sT3, sT3, L_EX + 2048 * (x - 1), vEW[n], sT3, vL16))
        ad += mk('s_mul_i32 s%d, s%d, 6144\ns_add_u32 s%d, s%d, %d\nv_add_u32 v%d, s%d, v%d' % (sT3, sW, sT3, sT3, L_EX, vER, sT3, vL16))
        sel = mk('\n'.join(['s_lshl_b32 s%d, s%d, 7' % (sT3, sW), 's_add_u32 s%d, s%d, %d' % (sT3, sT3, L_B2),
                             'v_lshrrev_b32 v%d, 5, v0' % SEL, 'v_lshl_add_u32 v%d, v%d, 6, s%d' % (vB2, SEL, sT3),
                             'v_lshlrev_b32 v%d, 2, v%d' % (SEL, SEL), 'v_and_b32 v%d, 31, v0' % (SEL + 1), 'v_sub_u32 v%d, v%d, v%d' % (RS, SEL + 1, SEL),
                             'v_mov_b32 v%d, 0x3f80' % (RS + 1), 'v_mov_b32 v%d, 0x3f800000' % (RS + 2)]))
        for q, r0 in enumerate((0, 2, 8, 10)):
            sel += mk('v_cmp_eq_u32 vcc, %d, v%d\nv_cndmask_b32 v%d, 0, v%d, vcc\nv_cmp_eq_u32 vcc, %d, v%d\nv_cndmask_b32 v%d, v%d, v%d, vcc'
                      % (r0, RS, SEL + q, RS + 1, r0 + 1, RS, SEL + q, SEL + q, RS + 2))
        gA, gE, gB, gR, gC, gP = self.gelu(ACC[1], KK, T)
        st, p3 = hpub(3)
        npre = o['npre']
        chk = (self.stamp('preE') if self.light else []) + self.poll_check(sPE) + (self.stamp('gotE') if self.light else [])
        if l == 0:
            self.w2_stage(gA + gE + gB + gR + gC + gP + hflag(0, pend) + hflag(1, pend) + hflag(2, pend) + st, RING,
                          {17: hflag(3, p3), 21: self.pa(14) + self.poll_issue(sPE)})
            P.add(chk + sel + resid(0) + cinit(AE) + flat(hload(i) for i in range(4)))
            npre = 4
        else:
            P.add(chk)
            P.add(spread([hload(i) for i in range(npre)], sel + resid(0) + gA + hflag(2, pend) + gE + cinit(AE) + gB + gR + gC + gP + st))
        if self.light:
            P.add(self.stamp('g3_end'))

        exch_write = lambda A: flat(mk('ds_write_b128 v%d, %s\nds_write_b128 v%d, %s offset:1024' % (vEW[n], v(r, 4), vEW[n], v(r + 4, 4)))
                                    for n, r in enumerate((A + 8, A + 16, A + 24)))
        exch_read = lambda: flat(mk('ds_read_b128 %s, v%d offset:%d' % (v(RX + 4 * q, 4), vER, 1024 * q)) for q in range(6))

        def addv(d, x, y, n, pk):
            if pk:
                return flat(mk('v_pk_add_f32 %s, %s, %s' % (v(d + i, 2), v(x + i, 2), v(y + i, 2))) for i in range(0, n, 2))
            return flat(mk('v_add_f32 v%d, v%d, v%d' % (d + i, x + i, y + i)) for i in range(n))

        def finish(A, q, pk):
            L = addv(A, A, RX, 8, pk) + addv(RX + 8, RX + 8, RX + 16, 8, pk) + addv(A, A, RX + 8, 8, pk) + self.pack(A, A, 4)
            if l == 0:
                L += self.stores(['buffer_store_dwordx4 %s, v%d, %s, s%d offen' % (v(A, 4), vL16, self.srd(SRD_CL), sFin + q)])
                rs = self.row_stats(A, 4, RX, RX + 2)
                blk = I('\n'.join(x.text for x in rs[:9]), kind='block', src=[r for x in rs[:9] for r in x.src], dst=[('v', RX), ('v', RX + 1), ('v', RX + 2)], states=1, cost=60)
                L += [blk] + mk('s_nop 2') + rs[9:]
                st = self.stores(['buffer_store_dword v%d, v%d, %s, s%d offen' % (RX, vL16, self.srd(SRD_CL), sFin + 2 + q)])
                tk = tok(st[-1])
                return L + st, self.flag([tk], sFin + 4 + q)
            L += mk('v_permlane32_swap_b32 v%d, v%d\nv_permlane32_swap_b32 v%d, v%d' % (A, A + 2, A + 1, A + 3))
            L += mk('buffer_store_dwordx4 %s, v%d, %s, s%d offen' % (v(A, 4), vPA, self.srd(SRD_OUT), sFin + q))
            return L, []

        slots = []
        for i in range(56):
            blk, kap = divmod(i, 28)
            A = (AE, AL)[blk]
            for js in range(2):
                sl = mfma(A, v(SEL, 4), v(RS, 4)) if kap == 0 and js == 0 else []
                slots.append(sl + mfma(A + 16 * js, a(W2A + 8 * kap + 4 * js, 4), v(hreg[i], 4), kap == 0 and js == 1))
        sidx = 0
        for i in range(npre, 56):
            sidx = max(sidx, 2 * (i - 16) + 1 if i >= 16 else 0)
            if i == 28:
                slots[sidx] += (self.stamp('preL') if self.light else []) + self.poll_check(sPL) + (self.stamp('gotL') if self.light else [])
            slots[sidx] += hload(i)
            assert sidx <= 2 * i - 6
            sidx += 1 if 2 * (i + 1) - sidx - 2 < o['lead'] else 2
        if l == 1:
            slots[o['flag3']] += hflag(3, p3)
        slots[o['pollL']] += self.poll_issue(sPL)
        for i in range(0, len(ad), 4):
            slots[2 * (i // 4) + 30] += ad[i:i + 4]
        slots[40] += resid(1)
        if l == 0:
            slots[20] += mk('s_barrier')
        slots[46] += cinit(AL)
        if l == 1:
            slots[44] += mk('v_and_b32 v%d, 31, v0\nv_mul_u32_u24 v%d, 896, v%d\nv_lshrrev_b32 v%d, 5, v0\nv_lshl_add_u32 v%d, v%d, 4, v%d'
                            % (vPA, vPA, vPA, vPoll, vPA, vPoll, vPA))
        P.add(flat(slots[:56]))
        P.add(self.stamp('s4_E'))
        late = slots[56:]
        fin, fl = finish(AE, 0, False)
        P.add(spread(late[:10], exch_write(AE), start=2))
        late[10] += mk('s_waitcnt lgkmcnt(0)\ns_barrier') + exch_read()
        late[34] += mk('s_barrier')
        late[44] += fl
        P.add(spread(late[10:], fin, start=4, end=22))
        P.add(self.stamp('s4_L'))
        P.add(exch_write(AL) + mk('s_waitcnt lgkmcnt(0)\ns_barrier') + exch_read())
        fin, fl = finish(AL, 1, True)
        P.add(fin + fl)
        P.add(self.stamp('x2_pub'))

    def build(self):
        P = self.P
        self.prologue()
        for l in range(2):
            self.s1(l)
            if self.stop == 's1_%d' % l:
                break
            self.kvx(l)
            if self.stop == 'o_%d' % l:
                break
            lnext = 'L_layer%d' % (l + 1)
            if l == 0:
                lsk = P.newlabel('Lskipmlp')
                P.add([I('s_cmp_ge_u32 s%d, 14\ns_cbranch_scc1 %s' % (sM, lsk), kind='block')])
                self.ool.append('%s:\n%s\ns_waitcnt vmcnt(0) lgkmcnt(0)\ns_sleep 60\ns_branch %s' % (lsk, self.idle_work(), lnext))
            else:
                P.add([I('s_cmp_ge_u32 s%d, 14\ns_cbranch_scc1 L_fin' % sM, kind='block')])
            self.s2(l)
            if self.stop == 'x1_%d' % l:
                P.label(lnext)
                break
            self.mlp(l)
            P.label(lnext)
            if l == 0:
                P('s_add_u32 s%d, s%d, %d\ns_add_u32 s%d, s%d, %d' % (sKv, sKv, KVP_L, sKvMy, sKvMy, KVP_L))
            if self.stop == 'x2_%d' % l:
                break
        P.add([I('s_cmp_lg_u32 s2, 0\ns_cbranch_scc1 L_fin\ns_cmp_lg_u32 s%d, 0\ns_cbranch_scc1 L_fin' % sW, kind='block')])
        P('s_mov_b64 exec, 1\nbuffer_store_dword v%d, off, %s, 0 sc1\ns_mov_b64 exec, -1' % (vNonce, self.srd(SRD_WS)))
        if self.probe is not None:
            P.add(self.stamp('end'))
            P.add([I('s_waitcnt lgkmcnt(0)\ns_sub_u32 s94, s94, s96\ns_lshl_b32 s94, s94, 2\ns_add_u32 s94, s94, 10000\nL_pr:\ns_memrealtime s[98:99]\ns_waitcnt lgkmcnt(0)\n'
                     's_sub_u32 s98, s98, s96\ns_cmp_lt_u32 s98, s94\ns_cbranch_scc1 L_pr', kind='block')])
        P.label('L_fin')
        if self.stamps:
            P('s_lshl_b32 s%d, s2, 2\ns_add_u32 s%d, s%d, s%d\ns_lshl_b32 s%d, s%d, 8\ns_add_u32 s%d, s%d, %d' % (sT0, sT0, sT0, sW, sT0, sT0, sT0, sT0, WS_STAMP))
            P.add(self.stamp('end'))
            P('s_memrealtime s[%d:%d]\ns_waitcnt lgkmcnt(0)\nv_writelane_b32 v%d, s%d, 63' % (sStamp, sStamp + 1, vStamp, sStamp))
            P('v_writelane_b32 v%d, s%d, 61' % (vStamp, sSpin))
            P('v_lshlrev_b32 v%d, 2, v0\nbuffer_store_dword v%d, v%d, %s, s%d offen' % (vT, vStamp, vT, self.srd(SRD_WS), sT0))
        P.label('L_end')
        P('s_endpgm')
        body, L = finalize(P.L)
        self.final = L
        ool = '\n'.join('\n'.join(('    ' + t if not t.endswith(':') else t) for t in b.split('\n') if t.strip()) for b in self.ool)
        head = open('cdna_kernels/%s.s.ref' % KNAME[:-7]).read().split('\n')
        hdr = [h for h in head if h.startswith(';') and '@launch' not in h]
        txt = '\n'.join(hdr) + '\n; @launch grid=(256,1,1) block=(256,1,1) lds=%d\n' % LDS_BYTES
        txt += '.amdgcn_target "amdgcn-amd-amdhsa--gfx950"\n.text\n.globl %s\n.p2align 8\n.type %s,@function\n%s:\n' % (KNAME, KNAME, KNAME)
        txt += body + ool + '\nL_code_end:\n'
        txt += '''.section .rodata,"a"
.p2align 6
.amdhsa_kernel %s
  .amdhsa_next_free_vgpr 512
  .amdhsa_next_free_sgpr 102
  .amdhsa_accum_offset 256
  .amdhsa_group_segment_fixed_size 0
  .amdhsa_kernarg_size 88
  .amdhsa_user_sgpr_count 2
  .amdhsa_user_sgpr_kernarg_segment_ptr 1
  .amdhsa_system_sgpr_workgroup_id_x 1
.end_amdhsa_kernel
''' % KNAME
        return txt


if __name__ == '__main__':
    import argparse
    ap = argparse.ArgumentParser()
    ap.add_argument('-o', default='k.s')
    ap.add_argument('--stop', default=None)
    ap.add_argument('--stamps', action='store_true')
    ap.add_argument('opts', nargs='*')
    A = ap.parse_args()
    opt = {k: (x if k in ('probe', 'light') else int(x)) for k, x in (t.split('=') for t in A.opts)}
    g = Gen(stop=A.stop, stamps=A.stamps, **opt)
    open(A.o, 'w').write(g.build())
    if A.stamps:
        open(A.o + '.stamps', 'w').write('\n'.join(g.stamp_names))
    n = {}
    for x in g.final:
        n[x.kind] = n.get(x.kind, 0) + 1
    nops = sum(x.states for x in g.final if x.op == 's_nop')
    print('instructions', n, 'nop states', nops)
```

```python
import sys, struct
from asmgen import *

KNAME = 'interleave_layers__linear_attn_block__mixer_channel_mlp__prompt_kernel'


def f32(x):
    return '0x%08x' % struct.unpack('<I', struct.pack('<f', x))[0]


LOG2E = 1.4426950408889634
LN2 = 0.6931471805599453
MF = 'v_mfma_f32_32x32x16_bf16'

WS_XCC = 0x8000
WS_STAMP = 0x10000
WS_KVP = 0x200000
KVP_CH = 9216
KVP_L = 0xA0000
WS_CL = 0x400000
LOFF = 0xD5000
O_OFF, X1_OFF, H_OFF, XIN_OFF, FL_OFF = 0, 0x20000, 0x40000, 0xB0000, 0xD4000
XIN_BS = 36864
FO, FX1, FXIN, FH = FL_OFF, FL_OFF + 512, FL_OFF + 1024, FL_OFF + 1536

L_WQ = 0
L_XB = 28672
L_EX = 86016
L_XS = 86016
L_WO = 114688
L_KVS = 143616
L_KVB = L_KVS + 16384
L_CS = L_KVB + 2048
L_B2 = L_CS + 768
LDS_BYTES = 163840
assert L_B2 + 512 <= LDS_BYTES

SRD_WQ, SRD_WO, SRD_W1, SRD_W2, SRD_X, SRD_OUT, SRD_B1, SRD_B2, SRD_CL, SRD_WS = range(4, 44, 4)
sC, sM, sW, sNonce, sSlow, sX, sSpin = 44, 45, 46, 47, 48, 49, 50
sT0, sT1, sT2, sT3, sT4, sT5 = 51, 52, 53, 54, 55, 56
sLn2, sXcc, sWi = 57, 58, 59
sN28, sHalf = 60, 62
sZm = 64
sMo, sD1 = 66, 67
sKA = 68
sEb, sLb, sC0, sC1, sHs, sFe = 68, 69, 70, 71, 72, 73
sBlk, sOst, sFo, sFoMy, sKv, sKvMy, sHE, sHL, sPE, sPL = 74, 75, 76, 77, 78, 79, 80, 81, 82, 83
sHst = 84
sRot = 85
sQ0, sQ1 = 86, 87
sFin, sRes = 28, 34
sPm = 88
sStamp = 90
sPC = 92

vLane, vL16, vDummy, vTr, vNonce, vMean, vRl, vW1X, _w1x1, vPoll, vPA = range(0, 11)
vT = 11
vStamp = 15
W2A = 0
W1A = 224
W1V = 176


def w1reg(k):
    return a(W1A + 4 * k, 4) if k < 8 else v(W1V + 4 * (k - 8), 4)


def w1half(k, hh):
    return a(W1A + 4 * k + 2 * hh, 2) if k < 8 else v(W1V + 4 * (k - 8) + 2 * hh, 2)


def flat(LL):
    return [x for L in LL for x in L]


def mfma(D, A, B, first=False):
    return mk('%s %s, %s, %s, %s' % (MF, v(D, 16), A, B, '0' if first else v(D, 16)))


class Gen:
    def __init__(self, stop=None, stamps=False, **opt):
        self.P = Prog()
        self.ool = []
        self.stop = stop
        self.stamps = stamps
        self.nstamp = 0
        self.stamp_names = []
        self.probe = opt.pop('probe', None)
        self.light = opt.pop('light', None)
        if self.light is not None:
            self.light = self.light.split('+')
            assert len(self.light) <= 5
        self.seen = {}
        self.o = dict(kvdelay=10, pollE=13, n3=6, st0=15, flagpos=8, gend=26, pollL=20, lateL=32, flag3=12, xbar=13, lead=16, look=6, pref=0, touch=1, codepf=1, rot=1, stnt=0, idlewq=0, reuse=1, npre=14, wqlate=84, pf0=1, nxb1=8, pfslot=50, w2fill=12, rest0=8, idleh=1, idlew2=0, pfw2=1, woslot=42, tslot=84, latespan=24, strot=1, w1b2=70, look2=10, l1touch=0, xsc1=1, storder=0)
        self.o.update(opt)

    def srd(self, r):
        return s(r, 4)

    def stamp(self, name):
        if self.probe is not None:
            self.seen[name] = self.seen.get(name, 0) + 1
            if self.probe == '%s#%d' % (name, self.seen[name]):
                return [I('s_memrealtime s[94:95]', kind='block', states=1)]
            return []
        if not self.stamps:
            return []
        if self.light is not None:
            self.seen[name] = self.seen.get(name, 0) + 1
            key = '%s#%d' % (name, self.seen[name])
            if name == 'end':
                self.stamp_names.append('end')
                t = ['s_memtime s[88:89]', 's_waitcnt lgkmcnt(0)']
                for i, r in enumerate([100] + [90 + 2 * j for j in range(len(self.stamp_names) - 2)] + [88]):
                    t.append('v_writelane_b32 v%d, s%d, %d' % (vStamp, r, i))
                return [I('\n'.join(t), kind='block', drain_lgkm=True)]
            if name != 'start' and key not in self.light:
                return []
            r = 100 if name == 'start' else 90 + 2 * (len(self.stamp_names) - 1)
            self.stamp_names.append(key if name != 'start' else name)
            return [I('s_memtime s[%d:%d]' % (r, r + 1), kind='block')]
        i = self.nstamp
        self.nstamp += 1
        self.stamp_names.append(name)
        t = 's_memtime s[%d:%d]\ns_waitcnt lgkmcnt(0)\nv_writelane_b32 v%d, s%d, %d' % (sStamp, sStamp + 1, vStamp, sStamp, i)
        return [I(t, kind='block', dst=[], src=[], drain_lgkm=True, states=3)]

    def stores(self, lines):
        insts = mk('\n'.join(lines))
        src = [r for x in insts for r in x.src]
        wide = [r for x in insts for r in x.wide]
        ls, lb = self.P.newlabel('Lslow'), self.P.newlabel('Lback')
        txt = 's_cmp_lg_u32 s%d, 0\ns_cbranch_scc1 %s\n%s\n%s:' % (sSlow, ls, '\n'.join(lines), lb)
        self.ool.append('%s:\n%s\ns_branch %s' % (ls, '\n'.join(l + ' sc1' for l in lines), lb))
        return [I(txt, kind='block', src=src, nvm=len(lines), wide=wide, states=1, cost=8 + 4 * len(lines))]

    def flag(self, toks, soff, off=0):
        st = self.stores(['buffer_store_dword v%d, off, %s, s%d offset:%d' % (vNonce, self.srd(SRD_CL), soff, off)])[0]
        st.text = 's_mov_b64 exec, 1\n' + st.text + '\ns_mov_b64 exec, -1'
        st.cost += 8
        return [wait_tok(*toks), st]

    def poll_issue(self, soff):
        return mk('buffer_load_dword v%d, v%d, %s, s%d offen sc1' % (vPoll, vPA, self.srd(SRD_CL), soff))

    def poll_check(self, soff, sleep=0):
        ls, lb = self.P.newlabel('Lspin'), self.P.newlabel('Lgot')
        self.ool.append('\n'.join([
            '%s:' % ls,
            ('s_sleep %d' % sleep) if sleep else '',
            'buffer_load_dword v%d, v%d, %s, s%d offen sc1' % (vPoll, vPA, self.srd(SRD_CL), soff),
            's_add_u32 s%d, s%d, 1' % (sSpin, sSpin),
            's_cmp_gt_u32 s%d, 0x40000' % sSpin,
            's_cbranch_scc1 L_end',
            's_waitcnt vmcnt(0)',
            'v_cmp_ne_u32 vcc, s%d, v%d' % (sNonce, vPoll),
            's_cbranch_vccnz %s' % ls,
            's_branch %s' % lb]))
        c = mk('v_cmp_ne_u32 vcc, s%d, v%d' % (sNonce, vPoll))[0]
        return [I(c.text + '\ns_cbranch_vccnz %s\n%s:' % (ls, lb), kind='block', src=c.src, dst=c.dst, states=2, cost=8)]

    def pa(self, n, blocks=False):
        L = 'v_and_b32 v%d, %d, v0\n' % (vPA, 15 if n <= 16 else 31)
        if n not in (16, 32):
            L += 'v_min_u32 v%d, %d, v%d\n' % (vPA, n - 1, vPA)
        L += 'v_lshlrev_b32 v%d, 2, v%d\n' % (vPA, vPA)
        if blocks:
            L += 'v_lshrrev_b32 v%d, 4, v0\nv_lshl_add_u32 v%d, v%d, 7, v%d' % (vT + 3, vPA, vT + 3, vPA)
        return mk(L)

    def trbase(self, dst, RS, kh, add=0, xor16=None):
        t = vT
        L = ['v_lshrrev_b32 v%d, 5, v%d' % (dst, vLane),
             'v_mul_u32_u24 v%d, %d, v%d' % (dst, kh, dst),
             'v_bfe_u32 v%d, v%d, 2, 2' % (t, vLane),
             'v_add_u32 v%d, v%d, v%d' % (dst, dst, t),
             'v_mul_u32_u24 v%d, %d, v%d' % (dst, RS, dst),
             'v_bfe_u32 v%d, v%d, 4, 1' % (t, vLane)]
        if xor16 is not None:
            L.append('v_xor_b32 v%d, s%d, v%d' % (t, xor16, t))
        L += ['v_lshl_add_u32 v%d, v%d, 5, v%d' % (dst, t, dst),
              'v_and_b32 v%d, 3, v%d' % (t, vLane),
              'v_lshl_add_u32 v%d, v%d, 3, v%d' % (dst, t, dst)]
        if add:
            L.append('v_add_u32 v%d, %d, v%d' % (dst, add, dst))
        return mk('\n'.join(L))

    def frag_loads(self, dsts, srd, sbase, const0, stride=1024, flags='', st=sT0):
        out = []
        cur = None
        for i, d in enumerate(dsts):
            off = const0 + i * stride
            grp = []
            if cur is None or not (0 <= off - cur <= 4095):
                cur = off
                grp += mk('s_add_u32 s%d, s%d, %d' % (st, sbase, off))
            grp += mk('buffer_load_dwordx4 %s, v%d, %s, s%d offen offset:%d %s' % (d, vL16, self.srd(srd), st, off - cur, flags))
            out.append(grp)
        return out

    def stats_finish(self, acc, double_ln):
        t1, t2 = vT + 1, vT + 2
        L = ['v_mov_b32 v%d, v%d' % (t1, acc),
             'v_mov_b32 v%d, v%d' % (vMean, acc),
             'v_permlane32_swap_b32 v%d, v%d' % (vMean, t1),
             'v_mul_f32 v%d, %s, v%d' % (vMean, f32(1.0 / 448), vMean),
             'v_mul_f32 v%d, %s, v%d' % (t1, f32(1.0 / 448), t1),
             'v_fma_f32 v%d, -v%d, v%d, v%d' % (t1, vMean, vMean, t1),
             'v_max_f32 v%d, 0, v%d' % (t1, t1),
             'v_add_f32 v%d, %s, v%d' % (t2, f32(1e-5), t1),
             'v_rsq_f32 v%d, v%d' % (vRl, t2)]
        if double_ln:
            L += ['v_mul_f32 v%d, v%d, v%d' % (t2, vRl, vRl),
                  'v_fmaak_f32 v%d, v%d, v%d, %s' % (t1, t1, t2, f32(1e-5)),
                  'v_rsq_f32 v%d, v%d' % (t1, t1),
                  'v_mul_f32 v%d, v%d, v%d' % (vRl, vRl, t1)]
        else:
            L += ['v_mul_f32 v%d, %s, v%d' % (vRl, f32(LOG2E), vRl)]
        return mk('\n'.join(L))

    def split_act(self, d0, val, t):
        return mk('\n'.join([
            'v_cvt_pk_bf16_f32 v%d, v%d, v%d' % (d0 + 1, val, val),
            'v_and_b32 v%d, 0xffff0000, v%d' % (t, d0 + 1),
            'v_sub_f32 v%d, v%d, v%d' % (t, val, t),
            'v_cvt_pk_bf16_f32 v%d, v%d, v%d' % (d0, val, t),
            'v_and_b32 v%d, 0xffff, v%d' % (d0 + 1, d0 + 1),
            'v_cndmask_b32 v%d, v%d, 0, s[%d:%d]' % (d0 + 1, d0 + 1, sHalf, sHalf + 1)]))

    def split_w(self, d0, val, t):
        return mk('\n'.join([
            'v_cvt_pk_bf16_f32 v%d, v%d, v%d' % (d0, val, val),
            'v_and_b32 v%d, 0xffff0000, v%d' % (t, d0),
            'v_sub_f32 v%d, v%d, v%d' % (t, val, t),
            'v_cvt_pk_bf16_f32 v%d, v%d, 0' % (d0 + 1, t)]))

    def phi8(self, r0, R, T, eps):
        L = ['v_pk_mul_f32 %s, %s, %s' % (v(r0 + i, 2), v(r0 + i, 2), R(i)) for i in range(0, 8, 2)]
        for i in range(8):
            L += ['v_exp_f32 v%d, v%d clamp' % (T + i, r0 + i), 'v_max_f32 v%d, 0, v%d' % (r0 + i, r0 + i)]
        L += ['v_pk_fma_f32 %s, %s, s[%d:%d], %s op_sel:[0,1,0] op_sel_hi:[1,1,1]' % (v(r0 + i, 2), v(r0 + i, 2), sLn2 - 1, sLn2, v(T + i, 2)) for i in range(0, 8, 2)]
        L += ['v_pk_add_f32 %s, %s, %s op_sel_hi:[1,0]' % (v(r0 + i, 2), v(r0 + i, 2), v(eps, 2)) for i in range(0, 8, 2)]
        return mk('\n'.join(L))

    def pack(self, dst, src, n):
        return mk('\n'.join('v_cvt_pk_bf16_f32 v%d, v%d, v%d' % (dst + i, src + 2 * i, src + 2 * i + 1) for i in range(n)))

    def unpack(self, dst, src, n):
        L = []
        for i in reversed(range(n)):
            L.append('v_and_b32 v%d, 0xffff0000, v%d' % (dst + 2 * i + 1, src + i))
            L.append('v_lshlrev_b32 v%d, 16, v%d' % (dst + 2 * i, src + i))
        return mk('\n'.join(L))

    def dots(self, regs, acc, ones, first):
        L = []
        for i, r in enumerate(regs):
            z = first and i == 0
            L.append('v_dot2_f32_bf16 v%d, v%d, v%d, %s' % (acc, r, ones, '0' if z else 'v%d' % acc))
            L.append('v_dot2_f32_bf16 v%d, v%d, v%d, %s' % (acc + 1, r, r, '0' if z else 'v%d' % (acc + 1)))
        return mk('\n'.join(L))

    def dots_end(self, acc):
        return mk('v_permlane32_swap_b32 v%d, v%d\nv_add_f32 v%d, v%d, v%d' % (acc, acc + 1, acc, acc, acc + 1))

    def row_stats(self, src, n, acc, ones):
        return mk('v_mov_b32 v%d, 0x3f803f80' % ones) + self.dots(range(src, src + n), acc, ones, True) + self.dots_end(acc)

    def kv_lane_addr(self, d, t, u, gather):
        L = []
        if gather:
            L += ['v_and_b32 v%d, 31, v0' % t, 'v_lshrrev_b32 v%d, 5, v0' % d]
        else:
            L += ['v_lshrrev_b32 v%d, 5, v0' % t, 'v_and_b32 v%d, 15, v0' % u, 'v_lshl_add_u32 v%d, v%d, 1, v%d' % (t, u, t), 'v_bfe_u32 v%d, v0, 4, 1' % d]
        L += ['v_lshrrev_b32 v%d, 3, v%d' % (u, t), 'v_sub_u32 v%d, v%d, v%d' % (u, t, u)]
        if not gather:
            L += ['v_and_b32 v%d, 7, v%d' % (t, t), 'v_cmp_eq_u32 vcc, 7, v%d' % t, 'v_cndmask_b32 v%d, v%d, 31, vcc' % (u, u)]
        L += ['v_lshl_add_u32 v%d, v%d, 5, v%d' % (d, d, u)]
        sh, qs, base = (4, 10, L_KVS) if gather else (5, 3, L_KVB)
        L += ['s_lshl_b32 s%d, s%d, %d' % (sT2, sW, qs), 'v_lshlrev_b32 v%d, %d, v%d' % (d, sh, d), 'v_add_u32 v%d, s%d, v%d' % (d, sT2, d)]
        L += ['v_and_b32 v%d, 1, v%d' % (t, u), 'v_lshlrev_b32 v%d, %d, v%d' % (t, 5 + sh, t), 'v_lshrrev_b32 v%d, 1, v%d' % (u, u)]
        L += ['v_cmp_gt_u32 vcc, 4, v%d' % u]
        L += ['v_lshl_add_u32 v%d, v%d, %d, v%d' % (t, u, qs, t), 'v_add_u32 v%d, %d, v%d' % (t, 28 << sh, t)]
        L += ['s_and_b64 vcc, vcc, s[%d:%d]' % ((sZm, sZm + 1) if gather else (sPm, sPm + 1)), 'v_cndmask_b32 v%d, v%d, v%d, vcc' % (d, d, t),
              'v_add_u32 v%d, %d, v%d' % (d, base, d)]
        return mk('\n'.join(L))

    def wq_dma(self, groups, vq, rot=False):
        out = []
        for t in groups:
            for p in range(3):
                g = []
                if p == 0:
                    if rot:
                        g += mk('s_add_u32 s%d, s%d, %d\ns_cmp_ge_u32 s%d, 7\ns_cselect_b32 s%d, 7, 0\ns_sub_u32 s%d, s%d, s%d\ns_lshl_b32 s%d, s%d, 2\ns_add_u32 s%d, s%d, s%d'
                                % (sQ1, sRot, t, sQ1, sQ0, sQ1, sQ1, sQ0, sQ1, sQ1, sQ1, sQ1, sW))
                    else:
                        g += mk('s_add_u32 s%d, s%d, %d' % (sQ1, sW, 4 * t))
                    g += mk('s_mul_i32 s%d, s%d, %d\ns_mul_i32 s%d, s%d, 3072' % (sQ0, sQ1, 16 * 2688, sQ1, sQ1))
                g += mk('s_add_u32 m0, s%d, %d' % (sQ1, L_WQ + 1024 * p))
                g += mk('buffer_load_dwordx4 v%d, %s, s%d offen lds' % (vq[p] if isinstance(vq, tuple) else vq + p, self.srd(SRD_WQ), sQ0))
                out.append(g)
        return out

    def wq_addr(self, vq):
        L = ['s_mul_i32 s%d, s%d, 56' % (sT2, sM)]
        t, u = vT, vT + 1
        for p in range(3):
            d = vq + p
            L += ['v_add_u32 v%d, %d, v%d' % (t, 64 * p, vLane),
                  'v_mul_u32_u24 v%d, 0x1556, v%d' % (d, t),
                  'v_lshrrev_b32 v%d, 16, v%d' % (d, d),
                  'v_mul_u32_u24 v%d, 12, v%d' % (u, d),
                  'v_sub_u32 v%d, v%d, v%d' % (t, t, u),
                  'v_mul_u32_u24 v%d, 2688, v%d' % (d, d),
                  'v_lshrrev_b32 v%d, 2, v%d' % (u, t),
                  'v_mul_u32_u24 v%d, 896, v%d' % (u, u),
                  'v_add3_u32 v%d, v%d, v%d, s%d' % (d, d, u, sT2),
                  'v_and_b32 v%d, 3, v%d' % (t, t),
                  'v_lshl_add_u32 v%d, v%d, 4, v%d' % (d, t, d)]
        return mk('\n'.join(L))

    def touch(self, items, va):
        if not self.o['touch']:
            return []
        txt = ['v_lshlrev_b32 v%d, 7, v0' % va]
        cur = None
        n = 0
        for nl, srd, sg, c in items:
            if nl != cur:
                txt.append('s_mov_b64 exec, 0x%x' % ((1 << nl) - 1))
                cur = nl
            txt.append('s_add_u32 s%d, s%d, %d' % (sT2, sg, c) if sg is not None else 's_mov_b32 s%d, %d' % (sT2, c))
            txt.append('buffer_load_dword v%d, v%d, %s, s%d offen sc1' % (vDummy, va, self.srd(srd), sT2))
            n += 1
        txt.append('s_mov_b64 exec, -1')
        return [I('\n'.join(txt), kind='block', nvm=n, dst=[('v', va)], src=[('v', 0)], states=1, cost=12 * n)]

    def touch_attn(self, lo, va):
        pre = mk('s_lshr_b32 s%d, s%d, 2\ns_lshl_b32 s%d, s%d, 10\ns_add_u32 s%d, s%d, s%d' % (sT1, sM, sT1, sT1, sT1, sT1, sBlk))
        return pre + self.touch([(16, SRD_CL, sOst, lo), (16, SRD_CL, sOst, lo + X1_OFF), (8, SRD_CL, sT1, lo + X1_OFF + 28672),
                                 (28, SRD_CL, None, lo + FL_OFF)], va)

    def prefetch(self, va):
        nl = self.o['pref']
        if not nl:
            return []
        txt = 'v_lshlrev_b32 v%d, 7, v0\ns_mul_i32 s%d, s%d, %d\n' % (va, sT2, sWi, nl * 128)
        txt += 's_mov_b32 exec_lo, 0x%x\ns_mov_b32 exec_hi, 0x%x\n' % (((1 << nl) - 1) & 0xffffffff, ((1 << nl) - 1) >> 32)
        txt += 'buffer_load_dword v%d, v%d, %s, s%d offen\ns_mov_b64 exec, -1' % (vDummy, va, self.srd(SRD_W1), sT2)
        return [I(txt, kind='block', nvm=1, src=[('v', 0)], dst=[('v', va)])]

    def idle_work(self):
        va = vT
        l = self.P.newlabel('Lnowarm')
        T = ['s_cmp_lg_u32 s%d, 0' % sSlow, 's_cbranch_scc1 %s' % l,
             'v_lshlrev_b32 v%d, 7, v0' % va,
             's_and_b32 s%d, s%d, 1' % (sT0, sM), 's_lshl_b32 s%d, s%d, 2' % (sT0, sT0), 's_add_u32 s%d, s%d, s%d' % (sT0, sT0, sW)]
        ld = lambda srd, fl: 'buffer_load_dword v%d, v%d, %s, s%d offen %s' % (vDummy, va, self.srd(srd), sT2, fl)
        if self.o['idleh']:
            for i in range(7):
                T += ['s_lshl_b32 s%d, s%d, 13' % (sT2, sT0), 's_add_u32 s%d, s%d, %d' % (sT2, sT2, H_OFF + i * 65536), ld(SRD_CL, 'sc1')]
        if self.o['idlew2']:
            T += ['s_lshr_b32 s%d, s%d, 3' % (sT1, sC), 's_lshl_b32 s%d, s%d, 3' % (sT1, sT1), 's_add_u32 s%d, s%d, s%d' % (sT1, sT1, sT0),
                  's_lshl_b32 s%d, s%d, 13' % (sT1, sT1), 's_and_b32 s%d, s%d, 7' % (sT2, sC), 's_mul_i32 s%d, s%d, %d' % (sT2, sT2, 1568 * 128),
                  's_add_u32 s%d, s%d, s%d' % (sT2, sT2, sT1)]
            for i in range(13):
                T += [ld(SRD_W2, ''), 's_add_u32 s%d, s%d, 131072' % (sT2, sT2), 's_cmp_ge_u32 s%d, %d' % (sT2, 13 * 131072),
                      's_cselect_b32 s%d, %d, 0' % (sT3, 13 * 131072), 's_sub_u32 s%d, s%d, s%d' % (sT2, sT2, sT3)]
        for i in range(3):
            T += ['s_lshl_b32 s%d, s%d, 13' % (sT2, sT0), 's_add_u32 s%d, s%d, %d' % (sT2, sT2, XIN_OFF + i * 65536)]
            if i == 2:
                T += ['s_min_u32 s%d, s%d, %d' % (sT2, sT2, FL_OFF - 8192)]
            T += [ld(SRD_CL, 'sc1')]
        T += [l + ':']
        return '\n'.join(T)

    def prologue(self):
        P = self.P
        o = self.o
        P('s_cmp_ge_u32 s2, 256\ns_cbranch_scc1 L_end')
        if self.probe is not None:
            P.add([I('s_memrealtime s[96:97]\ns_memrealtime s[94:95]', kind='block', states=1)])
        P('s_load_dwordx16 s[%d:%d], s[0:1], 0' % (sKA, sKA + 15))
        P('s_load_dwordx4 s[%d:%d], s[0:1], 64' % (sKA + 16, sKA + 19))
        P('s_load_dwordx2 s[%d:%d], s[0:1], 80' % (sKA + 20, sKA + 21))
        P('v_lshrrev_b32 v%d, 6, v0\nv_and_b32 v0, 63, v0\nv_readfirstlane_b32 s%d, v%d' % (vT, sW, vT))
        P('s_lshr_b32 s%d, s2, 3\ns_lshl_b32 s%d, s%d, 2\ns_add_u32 s%d, s%d, s%d' % (sM, sWi, sM, sWi, sWi, sW))
        if o['codepf']:
            P.add([I('s_getpc_b64 s[%d:%d]\nL_pc:' % (sPC, sPC + 1), kind='block', dst=[], states=1)])
            P('s_lshl_b32 s%d, s%d, 9\nv_lshlrev_b32 v%d, 7, v0\nv_add_u32 v%d, s%d, v%d' % (sT0, sWi, vT, vT, sT0, vT))
            P.add([I('v_min_u32 v%d, L_code_end-L_pc-4, v%d\ns_mov_b64 exec, 15\nglobal_load_dword v%d, v%d, s[%d:%d]\ns_mov_b64 exec, -1'
                     % (vT, vT, vDummy, vT, sPC, sPC + 1), kind='block', dst=[('v', vT)], src=[('v', vT)], nvm=1)])
        P('s_and_b32 s%d, s2, 7\ns_lshr_b32 s%d, s%d, 4\ns_lshl_b32 s%d, s%d, 3\ns_add_u32 s%d, s%d, s%d\ns_and_b32 s%d, s%d, 15'
          % (sC, sT0, sM, sT0, sT0, sC, sC, sT0, sM, sM))
        P('v_lshlrev_b32 v%d, 4, v0' % vL16)
        if self.stamps:
            P('v_mov_b32 v%d, 0' % vStamp)
            P.add(self.stamp('start'))
            P('s_memrealtime s[%d:%d]\ns_waitcnt lgkmcnt(0)\nv_writelane_b32 v%d, s%d, 62' % (sStamp, sStamp + 1, vStamp, sStamp))
        P('s_lshl_b32 s%d, s%d, 2\ns_add_u32 s%d, s%d, s%d\ns_mul_i32 s%d, s%d, %d' % (sX, sC, sX, sX, sW, sX, sX, 32 * 896))
        vq, vxb, vxh, vxa, vrd = 160, 163, 164, 165, 167
        P('v_lshrrev_b32 v%d, 5, v0\nv_and_b32 v%d, 31, v0\nv_xor_b32 v%d, v%d, v%d\nv_lshlrev_b32 v%d, 4, v%d\nv_mul_u32_u24 v%d, 896, v%d'
          % (vxh, vT, vxb, vT, vxh, vxb, vxb, vxh, vxh))
        ka = sKA

        def mksrd(r, p, size):
            P('s_mov_b32 s%d, s%d\ns_mov_b32 s%d, s%d\ns_mov_b32 s%d, %d\ns_mov_b32 s%d, 0x20000' % (r, p, r + 1, p + 1, r + 2, size, r + 3))
        P('s_lshl_b32 s%d, s%d, 14\ns_add_u32 s%d, s%d, %d' % (sT5, sW, sT5, sT5, L_XS))
        mksrd(SRD_X, ka + 0, 2048 * 896)

        def xdma(half):
            out = []
            for i in range(16):
                if half:
                    g = mk('s_mov_b32 s%d, %d\nv_xad_u32 v%d, v%d, s%d, v%d' % (sT0, ((2 * i) & 15) << 4, vxa + (i & 1), vxb, sT0, vxh))
                    g += mk('s_add_u32 s%d, s%d, %d\ns_add_u32 m0, s%d, %d' % (sT1, sX, 2 * i * 896 + 512, sT5, 1024 * i))
                    out.append(g + mk('buffer_load_dwordx4 v%d, %s, s%d offen lds' % (vxa + (i & 1), self.srd(SRD_X), sT1)))
                    continue
                g = mk('s_add_u32 s%d, s%d, %d\ns_and_b32 s%d, s%d, 15' % (sT4, sM, i, sT4, sT4) if o['rot'] else 's_mov_b32 s%d, %d' % (sT4, i))
                g += mk('s_lshl_b32 s%d, s%d, 5\ns_and_b32 s%d, s%d, 0xf0\nv_xad_u32 v%d, v%d, s%d, v%d' % (sT0, sT4, sT0, sT0, vxa + (i & 1), vxb, sT0, vxh))
                g += mk('s_mul_i32 s%d, s%d, 1792\ns_add_u32 s%d, s%d, s%d\ns_lshl_b32 s%d, s%d, 10\ns_add_u32 m0, s%d, s%d' % (sT1, sT4, sT1, sT1, sX, sT4, sT4, sT4, sT5))
                g += mk('buffer_load_dwordx4 v%d, %s, s%d offen lds' % (vxa + (i & 1), self.srd(SRD_X), sT1))
                out.append(g)
            return out
        mksrd(SRD_WQ, ka + 2, 448 * 2688)
        if o['pf0']:
            P('v_lshlrev_b32 v%d, 7, v0\ns_lshl_b32 s%d, s%d, 2\ns_add_u32 s%d, s%d, s%d\ns_mul_i32 s%d, s%d, %d\ns_mul_i32 s%d, s%d, %d\ns_add_u32 s%d, s%d, s%d\ns_mul_i32 s%d, s%d, %d'
              % (vxa, sT0, sM, sT0, sT0, sW, sT0, sT0, 14 * 128, sT1, sC, 128 * 896, sT0, sT0, sT1, sT1, sWi, 74 * 128))
            P.add([I('s_mov_b64 exec, 0x3fff\nbuffer_load_dword v%d, v%d, %s, s%d offen\ns_mov_b64 exec, -1\nbuffer_load_dword v%d, v%d, %s, s%d offen\n'
                     's_add_u32 s%d, s%d, 8192\ns_mov_b64 exec, 0x3ff\nbuffer_load_dword v%d, v%d, %s, s%d offen\ns_mov_b64 exec, -1'
                     % (vDummy, vxa, self.srd(SRD_X), sT0, vDummy, vxa, self.srd(SRD_WQ), sT1, sT1, sT1, vDummy, vxa, self.srd(SRD_WQ), sT1),
                     kind='block', nvm=3, src=[('v', vxa)])])
        body = [x.text for x in xdma(0)[0]]
        body[0] = 's_add_u32 s%d, s%d, s%d' % (sT4, sM, sT2) if o['rot'] else 's_mov_b32 s%d, s%d' % (sT4, sT2)
        loop = I('\n'.join(['s_mov_b32 s%d, 0' % sT2, 'L_xa:'] + body[:-1] + ['s_add_u32 s%d, s%d, 1' % (sT2, sT2), 's_cmp_lt_u32 s%d, 16' % sT2, body[-1],
                                                                            's_cbranch_scc1 L_xa']), kind='block', nvm=16, src=[('v', vxb), ('v', vxh)] + regs_of(s(SRD_X, 4)), dst=[('v', vxa)])
        tA = tok(loop)
        P.add([loop])
        P('s_load_dword s%d, s[%d:%d], 0' % (sNonce, ka + 20, ka + 21))
        P.add(self.wq_addr(vq))
        mksrd(SRD_OUT, ka + 16, 2048 * 896)
        wq = self.wq_dma(range(7), vq)
        self.tok_wq1, self.tok_wq = tok(wq[11][-1]), tok(wq[-1][-1])
        P.add(flat(wq[:12]))
        mksrd(SRD_WO, ka + 4, 448 * 896)
        mksrd(SRD_W1, ka + 8, 448 * 3584)
        P('s_cmp_lt_u32 s%d, 14\ns_cselect_b32 s%d, s%d, 0\ns_cselect_b32 s%d, s%d, 0' % (sM, SRD_WO + 2, SRD_WO + 2, SRD_W1 + 2, SRD_W1 + 2))
        mksrd(SRD_B1, ka + 10, 3584)
        mksrd(SRD_W2, ka + 12, 1792 * 896)
        mksrd(SRD_B2, ka + 14, 896)
        mksrd(SRD_WS, ka + 20, WS_CL)
        P('s_lshl_b32 s%d, s%d, 21\ns_add_u32 s%d, s%d, %d' % (sT0, sC, sT0, sT0, WS_CL))
        P('s_add_u32 s%d, s%d, s%d\ns_addc_u32 s%d, s%d, 0\ns_mov_b32 s%d, 0x200000\ns_mov_b32 s%d, 0x20000'
          % (SRD_CL, ka + 20, sT0, SRD_CL + 1, ka + 21, SRD_CL + 2, SRD_CL + 3))
        P('s_mov_b32 s%d, %s\ns_mov_b32 s%d, 0\ns_mov_b32 s%d, -1' % (sLn2, f32(LN2), sHalf, sHalf + 1))
        P('s_mov_b32 s%d, 0x10000000\ns_mov_b32 s%d, 0x10000000\ns_mov_b32 s%d, 0' % (sN28, sN28 + 1, sSpin))
        P('s_getreg_b32 s%d, hwreg(HW_REG_XCC_ID, 0, 4)' % sXcc)
        P('s_and_b32 s%d, s%d, 1\ns_sub_u32 s%d, 3, s%d' % (sEb, sM, sLb, sEb))
        P('s_cmp_eq_u32 s%d, 3\ns_cselect_b32 s%d, -1, 0\ns_mov_b32 s%d, 0' % (sW, sZm + 1, sZm))
        P('s_lshr_b32 s%d, s%d, 3\ns_lshl_b32 s%d, s%d, 1\ns_add_u32 s%d, s%d, s%d\ns_mul_i32 s%d, s%d, 7\ns_add_u32 s%d, s%d, 1\ns_lshr_b32 s%d, s%d, 1'
          % (sD1, sC, sMo, sD1, sMo, sMo, sEb, sMo, sMo, sMo, sMo, sMo, sMo))
        if not o['strot']:
            P('s_mov_b32 s%d, 0\ns_mov_b32 s%d, 0' % (sMo, sD1))
        c0 = -2.0 * 0.7978845608028654 * LOG2E
        P('s_mov_b32 s%d, %s\ns_mov_b32 s%d, %s' % (sC0, f32(c0), sC1, f32(c0 * 0.044715)))
        P('s_lshr_b32 s%d, s%d, 1\ns_lshl_b32 s%d, s%d, 2\ns_and_b32 s%d, s%d, 1\ns_lshl_b32 s%d, s%d, 1\ns_add_u32 s%d, s%d, s%d\ns_lshr_b32 s%d, s%d, 1\ns_add_u32 s%d, s%d, s%d'
          % (sFe, sM, sFe, sFe, sT0, sW, sT0, sT0, sFe, sFe, sT0, sT0, sW, sFe, sFe, sT0))
        P('s_lshl_b32 s%d, s%d, 15\ns_lshl_b32 s%d, s%d, 11\ns_add_u32 s%d, s%d, s%d' % (sBlk, sW, sOst, sM, sOst, sOst, sBlk))
        P('s_lshl_b32 s%d, s%d, 7\ns_add_u32 s%d, s%d, %d\ns_lshl_b32 s%d, s%d, 2\ns_add_u32 s%d, s%d, s%d' % (sFo, sW, sFo, sFo, FL_OFF, sT0, sM, sFoMy, sFo, sT0))
        P('s_lshl_b32 s%d, s%d, 2\ns_add_u32 s%d, s%d, s%d\ns_mul_i32 s%d, s%d, %d\ns_add_u32 s%d, s%d, %d' % (sT1, sM, sT1, sT1, sW, sKv, sT1, KVP_CH, sKv, sKv, WS_KVP))
        P('s_lshl_b32 s%d, s%d, 9\ns_add_u32 s%d, s%d, s%d' % (sKvMy, sC, sKvMy, sKvMy, sKv))
        P('s_lshl_b32 s%d, s%d, 11\ns_add_u32 s%d, s%d, %d' % (sHst, sT1, sHst, sHst, H_OFF))
        P('s_lshl_b32 s%d, s%d, 11\ns_add_u32 s%d, s%d, %d' % (sT1, sW, sT1, sT1, H_OFF))
        P('s_mul_i32 s%d, s%d, 114688\ns_add_u32 s%d, s%d, s%d\ns_mul_i32 s%d, s%d, 114688\ns_add_u32 s%d, s%d, s%d' % (sHE, sEb, sHE, sHE, sT1, sHL, sLb, sHL, sHL, sT1))
        P('s_lshl_b32 s%d, s%d, 9\ns_add_u32 s%d, s%d, s%d\ns_add_u32 s%d, s%d, %d' % (sPE, sEb, sPE, sPE, sFo, sPE, sPE, FH - FL_OFF))
        P('s_lshl_b32 s%d, s%d, 9\ns_add_u32 s%d, s%d, s%d\ns_add_u32 s%d, s%d, %d' % (sPL, sLb, sPL, sPL, sFo, sPL, sPL, FH - FL_OFF))
        self.xreg0 = xr = [16 + 4 * i if i < 20 else 176 + 4 * (i - 20) for i in range(28)]
        P('v_and_b32 v%d, 15, v0\nv_lshrrev_b32 v%d, 5, v0\nv_xor_b32 v%d, v%d, v%d\nv_lshlrev_b32 v%d, 4, v%d\nv_and_b32 v%d, 31, v0\nv_lshl_add_u32 v%d, v%d, 9, v%d\nv_add_u32 v%d, s%d, v%d'
          % (vT, vrd, vrd, vrd, vT, vrd, vrd, vT, vrd, vT, vrd, vrd, sT5, vrd))
        xrd = lambda k: mk('v_xor_b32 v%d, %d, v%d\nds_read_b128 %s, v%d' % (vrd + 1 + (k & 1), 32 * (k & 15), vrd, v(xr[k], 4), vrd + 1 + (k & 1)))
        vrs = vrd + 3
        P('v_and_b32 v%d, 15, v0\nv_lshlrev_b32 v%d, 4, v%d\nv_lshrrev_b32 v%d, 5, v0\nv_lshl_add_u32 v%d, v%d, 3, v%d\nv_and_b32 v%d, 31, v0\nv_lshl_add_u32 v%d, v%d, 9, v%d\nv_add_u32 v%d, s%d, v%d'
          % (vrs, vrs, vrs, vT, vrs, vT, vrs, vT, vrs, vT, vrs, vrs, sT5, vrs))
        P('s_and_b32 s%d, s%d, 7\ns_lshl_b32 s%d, s%d, 6\nv_xor_b32 v%d, s%d, v%d' % (sT0, sM, sT0, sT0, vrs, sT0, vrs))

        def resrd(half):
            l = P.newlabel('Lres')
            t = ['s_cmp_%s_u32 s%d, 8' % ('lt' if half else 'ge', sM), 's_cbranch_scc1 %s' % l]
            for g in range(4):
                t += ['v_xor_b32 v%d, %d, v%d' % (vrs + 1, 16 * g, vrs), 'ds_read_b64 %s, v%d' % (a(216 + 2 * g, 2), vrs + 1)]
            return [I('\n'.join(t + [l + ':']), kind='block', src=[('v', vrs)], dst=[('v', vrs + 1)])]
        P.add(self.stamp('issued'))
        P.add([wait_tok(tA)])
        P.add(self.stamp('xA'))
        for k in range(16):
            P.add(xrd(k))
        P.add(resrd(0))
        vS, vOne = vT + 2, vT + 1
        P('v_mov_b32 v%d, 0x3f803f80\ns_waitcnt lgkmcnt(0)' % vOne)
        xb = xdma(1)
        self.tok_xb = tok(xb[-1][-1])
        d = self.dots([xr[k] + i for k in range(16) for i in range(4)], vS, vOne, True)
        P.add(spread(xb[:o['nxb1']], d))
        self.late_dma = xb[o['nxb1']:] + wq[12:]
        self.late_rd = [xrd(k) for k in range(16, 28)] + [resrd(1)]
        self.late_dots = self.dots([xr[k] + i for k in range(16, 28) for i in range(4)], vS, vOne, False) + self.dots_end(vS)
        P('s_add_u32 s%d, s%d, 0x01010101' % (sNonce, sNonce))
        P('v_mov_b32 v%d, s%d' % (vNonce, sNonce))
        P('s_lshl_b32 s%d, s%d, 4\ns_add_u32 s%d, s%d, s%d\ns_lshl_b32 s%d, s%d, 7\ns_add_u32 s%d, s%d, %d'
          % (sT2, sC, sT2, sT2, sM, sT2, sT2, sT2, sT2, WS_XCC))
        P('s_add_u32 s%d, s%d, s%d\nv_mov_b32 v%d, s%d\ns_mov_b64 exec, 1' % (sT3, sNonce, sXcc, vT, sT3))
        P('buffer_store_dword v%d, off, %s, s%d sc1' % (vT, self.srd(SRD_WS), sT2))
        P('s_mov_b64 exec, -1')

    def s1(self, l):
        P = self.P
        o = self.o
        AK, AV, AQ, WB, SB = 96, 112, 128, 144, 160
        RLB, XE = SB, SB + 8
        NB = 4
        vS = vT + 2
        P.comment('==== layer %d : S1' % l)
        d2 = 4 * 192 if l == 0 else 8 * 192
        fin = self.stats_finish(vS, False)
        fin += mk('s_lshl_b32 s%d, s%d, 12\ns_add_u32 s%d, s%d, %d' % (sT4, sW, sT4, sT4, L_KVS))
        bounce = mk('v_and_b32 v%d, 31, v0\nv_lshl_add_u32 v%d, v%d, 2, s%d\nds_write_b32 v%d, v%d' % (vT + 1, vT + 1, vT + 1, sT4, vT + 1, vRl))
        fin += bounce
        fin += mk('v_sub_f32 v%d, 0, v%d' % (vMean, vMean)) + self.split_act(XE, vMean, vT)
        fin += mk('v_cndmask_b32 v%d, v%d, 0, s[%d:%d]\nv_mov_b32 v%d, 0\nv_mov_b32 v%d, 0' % (XE, XE, sHalf, sHalf + 1, XE + 2, XE + 3))
        if l == 0:
            xreg = self.xreg0
            P.add(self.trbase(vTr, 192, 8, add=L_WQ))
            P.add([wait_tok(self.tok_wq1)])
            P('s_barrier')
            P.add(self.stamp('wq_ready'))
            lds = []
        else:
            xreg = [16 + 4 * (i % 20) for i in range(28)]
            P.add(self.pa(28))
            P('s_add_u32 s%d, s%d, %d' % (sT4, sFo, FXIN - FL_OFF))
            P.add(self.poll_issue(sT4))
            P('s_mul_i32 s%d, s%d, %d' % (sT5, sW, XIN_BS))
            P.add(self.trbase(vTr, 192, 4, add=L_WQ))
            lds = self.frag_loads([v(r, 4) for r in xreg], SRD_CL, sT5, XIN_OFF)
        jobs = []
        for k in range(28):
            if l == 0 and k == 16:
                jobs += [(t.upper(), kk) for kk in range(7) for t in 'qkv']
            jobs += [('k', k), ('v', k)] + ([('q', k)] if k < 8 else [])
        jobs += [('k', 'e'), ('v', 'e')]
        nmain = len(jobs)
        jobs += [('q', k) for k in range(8, 28)] + [('q', 'e')]
        vTr2, vCs = vT + 3, vPA
        vo, vb, CSA = RLB, RLB + 4, 208

        def rd(j):
            t, k = jobs[j]
            b = WB + 4 * (j % NB)
            if k == 'e':
                return mk('ds_read_b64 %s, v%d offset:%d\nv_mov_b32 v%d, 0\nv_mov_b32 v%d, 0' % (v(b, 2), vCs, 256 * 'qkv'.index(t), b + 2, b + 3))
            base, off = (vb, k * 3072) if t.isupper() else (vTr, k * 3072) if k < 16 else (vTr2, (k - 16) * 3072)
            off += 64 * 'qkv'.index(t.lower())
            return mk('ds_read_b64_tr_b16 %s, v%d offset:%d\nds_read_b64_tr_b16 %s, v%d offset:%d' % (v(b, 2), base, off, v(b + 2, 2), base, off + d2))
        tr2 = mk('v_add_u32 v%d, %d, v%d' % (vTr2, 16 * 3072, vTr))
        if l == 1:
            P.add(tr2)
        for j in range(NB):
            P.add(rd(j))
        if l == 1:
            P.add(self.poll_check(sT4))
            P.add(self.stamp('x2_seen'))
            P.add(flat(lds[:o['look']]))
            P('s_add_u32 s%d, s%d, 1\nv_mov_b32 v%d, s%d' % (sNonce, sNonce, vNonce, sNonce))
        P('v_and_b32 v%d, 31, v0\nv_lshlrev_b32 v%d, 3, v%d\nv_add_u32 v%d, %d, v%d' % (vCs, vCs, vCs, vCs, L_CS, vCs))
        slots = []
        for j, (t, k) in enumerate(jobs):
            w = v(WB + 4 * (j % NB), 4)
            if t.isupper():
                sl = mfma(CSA + 16 * 'QKV'.index(t), v(vo, 4), w, k == 0)
            else:
                x = v(XE if k == 'e' else xreg[k], 4)
                A, B = (w, x) if t == 'q' else (x, w)
                sl = mfma({'q': AQ, 'k': AK, 'v': AV}[t], A, B, k == 0)
            if l == 0 and j == 40 - NB:
                sl += [wait_tok(self.tok_wq)] + mk('s_waitcnt lgkmcnt(0)\ns_barrier') + (self.stamp('bar2') if self.light else [])
                sl += mk('s_mul_i32 s%d, s%d, %d\nv_add_u32 v%d, s%d, v%d' % (sT0, sW, 7 * 3072, vb, sT0, vTr))
            if j + NB < len(jobs) and not (j < nmain <= j + NB):
                sl += rd(j + NB)
            slots.append(sl)
        c0 = 21 if l == 0 else 0
        if l == 0:
            n = len(self.late_dma)
            for i, g in enumerate(self.late_dma):
                slots[(i * o['latespan']) // n] += g
            slots[28] += [wait_tok(self.tok_xb)]
            for i, g in enumerate(self.late_rd):
                slots[28 + i // 2] += g
            slots[37] += mk('\n'.join('v_mov_b32 v%d, 0x3f803f80' % (vo + i) for i in range(4)))
            slots[39] += self.late_dots + fin + tr2
            for i, g in enumerate(self.wo_dma(175)):
                slots[o['woslot'] + 2 * i] += g
            slots[o['tslot']] += self.touch_attn(0, vT)
            slots[62] += mk('v_and_b32 v%d, 31, v0\nv_lshlrev_b32 v%d, 2, v%d\ns_mul_i32 s%d, s%d, 384\nv_add_u32 v%d, %d, v%d\nv_add_u32 v%d, s%d, v%d'
                            % (vb, vb, vb, sT0, sW, vb, L_KVB, vb, vb + 1, sT0, vb))
            slots[63] += mk('\n'.join('ds_write_b32 v%d, v%d offset:%d' % (vb + 1, CSA + 16 * t, 128 * t) for t in range(3)))
            slots[65] += mk('s_waitcnt lgkmcnt(0)\ns_barrier')
            for t in range(3):
                r = RLB
                tt = (1, 2, 0)[t]
                slots[65 + 5 * t] += mk('\n'.join('ds_read_b32 v%d, v%d offset:%d' % (r + ww, vb, 384 * ww + 128 * tt) for ww in range(4)))
                slots[68 + 5 * t] += mk('v_add_f32 v%d, v%d, v%d\nv_add_f32 v%d, v%d, v%d\nv_add_f32 v%d, v%d, v%d' % (r, r, r + 1, r + 2, r + 2, r + 3, r, r, r + 2))
                slots[69 + 5 * t] += self.split_w(r + 2, r, r + 1) + mk('ds_write_b64 v%d, %s offset:%d' % (vCs, v(r + 2, 2), 256 * tt))
        else:
            n = o['look']
            for j in range(0, nmain, 2):
                if n < 28:
                    k_free = n - 20
                    assert k_free < 0 or j >= jobs.index(('q', k_free))
                    slots[j] += lds[n]
                    n += 1
            st = self.frag_loads([v(SB + 4 * (i % 4), 4) for i in range(7)], SRD_CL, sT5, XIN_OFF + 28672, st=sT1)
            for i in range(4):
                slots[25 + 2 * i] += st[i]
            ex = []
            for i in range(1, 16):
                ex += mk('v_add_f32 v%d, v%d, v%d' % (vS, vS if i > 1 else SB, SB + i))
            for i in range(0, 15, 3):
                slots[40 + i // 3] += ex[i:i + 3]
            for i in range(3):
                slots[45 + i] += st[4 + i]
            ex = flat(mk('v_add_f32 v%d, v%d, v%d' % (vS, vS, SB + i)) for i in range(12)) + fin
            per = (len(ex) + 8) // 9
            for i in range(9):
                slots[54 + i] += ex[i * per:(i + 1) * per]
        RB = [WB + 4 * ((nmain - 4 + g) % NB) for g in range(4)]
        vEps = vT + 1
        slots[nmain - 5] += mk('v_lshrrev_b32 v%d, 5, v0\nv_lshl_add_u32 v%d, v%d, 4, s%d' % (vT + 2, vT + 2, vT + 2, sT4))
        for g in range(4):
            slots[nmain - 4 + g] += mk('ds_read_b128 %s, v%d offset:%d' % (v(RB[g], 4), vT + 2, 32 * g))
        slots[nmain - 1] += mk('v_mov_b32 v%d, 0x3f803f80\nv_add_u32 v%d, s%d, v%d\nv_mov_b32 v%d, %s' % (vPoll, vT, sT4, vL16, vEps, f32(1e-6)))
        vG = SB + 12
        ga = self.kv_lane_addr(vG, vG + 1, vG + 2, gather=True)
        for i in range(0, len(ga), 3):
            slots[46 + c0 // 3 + i // 3] += ga[i:i + 3]
        P.add(flat(slots[:nmain]))
        P.add(self.stamp('s1_kv_mfma'))
        DK = WB
        for hf in range(2):
            R = lambda i: v(RB[2 * hf + i // 4] + i % 4, 2)
            P.add(self.phi8(AK + 8 * hf, R, RLB, vEps) + self.pack(AK + 4 * hf, AK + 8 * hf, 4))
            P.add(flat(mk('v_pk_mul_f32 %s, %s, %s' % (v(AV + 8 * hf + i, 2), v(AV + 8 * hf + i, 2), R(i))) for i in range(0, 8, 2)))
            P.add(self.pack(AV + 4 * hf, AV + 8 * hf, 4))
            for i in range(4):
                P('v_cndmask_b32 v%d, v%d, v%d, s[%d:%d]' % (AV + 4 * hf + i, AV + 4 * hf + i, vPoll, sN28, sN28 + 1))
        P.add(mfma(DK, v(AK, 4), v(AV, 4), True) + mfma(DK, v(AK + 4, 4), v(AV + 4, 4)))
        P('s_mov_b32 s%d, 0x80808080\ns_mov_b32 s%d, 0x80808080' % (sT0 + 1, sT0 + 2))
        for q in range(4):
            P('ds_write_b128 v%d, %s offset:%d' % (vT, v(DK + 4 * q, 4), 1024 * q))
        P('v_lshlrev_b32 v%d, 3, v0\ns_waitcnt lgkmcnt(0)\ns_barrier' % vT)
        for ww in range(4):
            P('ds_read_b128 %s, v%d offset:%d' % (v(AK + 4 * ww, 4), vG, 4096 * ww))
        for j in range(nmain, nmain + NB):
            P.add(rd(j))
        for x, y in ((AK, AK + 4), (AK + 8, AK + 12), (AK, AK + 8)):
            for i in (0, 2):
                P('v_pk_add_f32 %s, %s, %s' % (v(x + i, 2), v(x + i, 2), v(y + i, 2)))
        P.add(self.pack(AK, AK, 2))
        for i in range(2):
            P('v_cndmask_b32 v%d, v%d, v%d, s[%d:%d]' % (AK + i, AK + i, vNonce, sT0 + 1, sT0 + 2))
        P('buffer_store_dwordx2 %s, v%d, %s, s%d offen sc1' % (v(AK, 2), vT, self.srd(SRD_WS), sKvMy))
        P.add(self.stamp('kv_pub'))
        PQ = self.PQ = 104

        def qepi():
            L = []
            for hf in range(2):
                L += self.phi8(AQ + 8 * hf, lambda i: v(vRl, 2) + ' op_sel_hi:[1,0]', 48, vEps) + self.pack(PQ + 4 * hf, AQ + 8 * hf, 4)
            for i in (6, 7):
                L += mk('v_cndmask_b32 v%d, v%d, 0, s[%d:%d]' % (PQ + i, PQ + i, sHalf, sHalf + 1))
            return L
        if l == 0:
            self.staging(slots[nmain:], qepi)
        else:
            P.add(spread(slots[nmain:], self.kvx_pre(1)))
            P.add(qepi())

    PARK = 140

    def wo_dma(self, vwo):
        wo = [mk('v_lshrrev_b32 v%d, 2, v0\nv_mul_u32_u24 v%d, 896, v%d\nv_and_b32 v%d, 3, v0\nv_lshl_add_u32 v%d, v%d, 4, v%d\ns_lshl_b32 s%d, s%d, 6\nv_add_u32 v%d, s%d, v%d'
                 % (vwo, vwo, vwo, vT, vwo, vT, vwo, sQ0, sM, vwo, sQ0, vwo))
              + mk('s_mul_i32 s%d, s%d, %d\ns_lshl_b32 s%d, s%d, 10\ns_add_u32 s%d, s%d, %d' % (sQ1, sW, 16 * 896, sT3, sW, sT3, sT3, L_WO))]
        for t in range(7):
            wo.append(mk('s_add_u32 m0, s%d, %d\ns_add_u32 s%d, s%d, %d\nbuffer_load_dwordx4 v%d, %s, s%d offen lds' % (sT3, 4096 * t, sQ0, sQ1, t * 64 * 896, vwo, self.srd(SRD_WO), sQ0)))
        last = I('s_mov_b32 s%d, %d\ns_mov_b32 m0, %d\ns_mov_b64 exec, 0xffff\nbuffer_load_dwordx4 v%d, %s, s%d offen lds\ns_mov_b64 exec, -1'
                 % (sQ0, 448 * 896, L_WO + 28672, vwo, self.srd(SRD_WO), sQ0), kind='block', nvm=1, src=[('v', vwo)])
        self.tok_wo = tok(last)
        return wo + [[last]]

    def staging(self, qslots, qepi):
        P = self.P
        lskip, ljoin = P.newlabel('Lnostage'), P.newlabel('Lstaged')
        v1a, t0, t1, vp, vb, vb2 = 112, 113, 114, 115, 120, 168
        P('v_lshrrev_b32 v%d, 2, v0\nv_mul_u32_u24 v%d, 3584, v%d\nv_and_b32 v%d, 3, v0\nv_lshl_add_u32 v%d, v%d, 4, v%d'
          % (v1a, v1a, v1a, vT, v1a, vT, v1a))
        P('s_lshl_b32 s%d, s%d, 2\ns_add_u32 s%d, s%d, s%d\ns_lshl_b32 s%d, s%d, 6\nv_add_u32 v%d, s%d, v%d' % (sT5, sM, sT5, sT5, sW, sT5, sT5, v1a, sT5, v1a))
        P('s_mul_i32 s%d, s%d, 7168\ns_add_u32 s%d, s%d, %d\ns_mul_i32 s%d, s%d, 21504\ns_mul_i32 s%d, s%d, %d' % (sT3, sW, sT3, sT3, L_EX, sQ1, sW, sWi, sD1, 14 * 16 * 3584))

        def issue(k):
            g = mk('s_add_u32 m0, s%d, %d' % ((sT3, 1024 * k) if k < 7 else (sQ1, 1024 * (k - 7))))
            g += mk('s_add_u32 s%d, s%d, %d' % (sQ0, sWi, k * 16 * 3584) if k < 14 else 's_sub_u32 s%d, %d, s%d' % (sQ0, k * 16 * 3584, sWi))
            g += mk('buffer_load_dwordx4 v%d, %s, s%d offen lds' % (v1a, self.srd(SRD_W1), sQ0))
            return g
        dm = [issue(k) for k in range(28)]
        tk = [tok(g[-1]) for g in dm]
        park = mk('\n'.join('v_accvgpr_read_b32 v%d, a%d' % (160 + i, 216 + i) for i in range(8)))
        park += mk('v_add_u32 v%d, s%d, v%d' % (vp, sQ1, vL16))
        park += flat(mk('ds_read_b128 %s, v%d offset:%d' % (a(self.PARK + 4 * i, 4), vp, 1024 * i)) for i in range(21))
        for i, g in enumerate(dm[:7]):
            qslots[2 * i] += g
        P.add(spread(qslots, park))
        P('s_lshl_b32 s%d, s%d, 11\ns_add_u32 s%d, s%d, %d' % (sT4, sC, sT4, sT4, WS_XCC))
        P('v_and_b32 v%d, 15, v0\nv_lshlrev_b32 v%d, 7, v%d' % (vPA, vPA, vPA))
        P('buffer_load_dword v%d, v%d, %s, s%d offen sc1' % (vPoll, vPA, self.srd(SRD_WS), sT4))
        P('s_waitcnt lgkmcnt(0)\ns_barrier')
        P.add([I('s_cmp_ge_u32 s%d, 14\ns_cbranch_scc1 %s' % (sM, lskip), kind='block')])
        txt, _ = finalize(mk('s_nop 7') + qepi())
        self.ool.append('%s:\n%s\ns_waitcnt vmcnt(0)\ns_branch %s' % (lskip, '\n'.join(t.strip() for t in txt.split('\n')), ljoin))
        ad = self.trbase(t1, 64, 4) + mk('v_add_u32 v%d, s%d, v%d\nv_add_u32 v%d, s%d, v%d' % (t0, sT3, t1, t1, sQ1, t1))
        ad += mk('v_and_b32 v%d, 31, v0\nv_lshlrev_b32 v%d, 1, v%d\nbuffer_load_ushort v%d, v%d, %s, s%d offen' % (vT, vT, vT, vb, vT, self.srd(SRD_B1), sT5))
        ad += mk('v_lshrrev_b32 v%d, 5, v0\nv_lshlrev_b32 v%d, 3, v%d\ns_lshl_b32 s%d, s%d, 5' % (vT, vT, vT, sT2, sFe))
        ad += mk('buffer_load_dwordx2 %s, v%d, %s, s%d offen\nbuffer_load_dwordx2 %s, v%d, %s, s%d offen offset:16'
                 % (v(vb2, 2), vT, self.srd(SRD_B2), sT2, v(vb2 + 2, 2), vT, self.srd(SRD_B2), sT2))
        vo, D = 124, 128
        P.add(spread(dm[7:], qepi() + ad + mk('\n'.join('v_mov_b32 v%d, 0x3f803f80' % (vo + i) for i in range(4)))))
        if self.light:
            P.add(self.stamp('st_iss'))
        for k in range(28):
            va, o = (t0, 1024 * k) if k < 7 else (t1, 1024 * (k - 7))
            P.add([wait_tok(tk[k])] + mk('ds_read_b64_tr_b16 %s, v%d offset:%d\nds_read_b64_tr_b16 %s, v%d offset:%d' % (w1half(k, 0), va, o, w1half(k, 1), va, o + 512)))
            if k >= 2:
                P.add(mfma(D, v(vo, 4), w1reg(k - 2), k == 2))
        P.add(mfma(D, v(vo, 4), w1reg(26)) + mfma(D, v(vo, 4), w1reg(27)))
        P.add(self.unpack(144, vb2, 4) + mk('\n'.join('v_mov_b32 v%d, 0' % r for r in range(152, 156))))
        P('s_lshl_b32 s%d, s%d, 7\ns_add_u32 s%d, s%d, %d\nv_lshrrev_b32 v%d, 5, v0\nv_lshl_add_u32 v%d, v%d, 6, s%d' % (sT0, sW, sT0, sT0, L_B2, vT, vT, vT, sT0))
        for q in range(4):
            P('ds_write_b128 v%d, %s offset:%d' % (vT, v(144 + 4 * min(q, 2), 4), 16 * q))
        P.add(self.split_w(vW1X, D, vT + 1) + mk('v_lshl_or_b32 v%d, v%d, 16, v%d' % (vb, vb, vb)))
        P('v_cndmask_b32 v%d, v%d, v%d, s[%d:%d]\nv_cndmask_b32 v%d, v%d, 0, s[%d:%d]' % (vW1X, vW1X, vb, sHalf, sHalf + 1, vW1X + 1, vW1X + 1, sHalf, sHalf + 1))
        P.label(ljoin)
        P.add([I('s_nop 1', kind='block', states=2)])

    def w2_prefetch(self, va, part):
        txt = ['s_lshr_b32 s%d, s%d, 3' % (sQ0, sC), 's_mul_i32 s%d, s%d, 14' % (sQ0, sQ0), 's_add_u32 s%d, s%d, s%d' % (sQ0, sQ0, sM),
               's_lshl_b32 s%d, s%d, 2' % (sQ0, sQ0), 's_add_u32 s%d, s%d, s%d' % (sQ0, sQ0, sW), 's_mul_i32 s%d, s%d, %d' % (sQ0, sQ0, 56 * 128),
               's_add_u32 s%d, s%d, %d' % (sQ0, sQ0, part * 112 * 56 * 128), 'v_lshlrev_b32 v%d, 7, v0' % va, 's_mov_b32 exec_hi, 0xffffff',
               'buffer_load_dword v%d, v%d, %s, s%d offen' % (vDummy, va, self.srd(SRD_W2), sQ0), 's_mov_b64 exec, -1']
        return [I('\n'.join(txt), kind='block', nvm=1, src=[('v', 0)], dst=[('v', va)], cost=48)]

    def w2_addr(self, R):
        v2a, tA, tB, vp = R, R + 1, R + 3, R + 5
        L = mk('v_lshrrev_b32 v%d, 3, v0\nv_mul_u32_u24 v%d, 896, v%d\nv_lshrrev_b32 v%d, 2, v0\nv_and_b32 v%d, 4, v%d\nv_xor_b32 v%d, v%d, v0\nv_and_b32 v%d, 7, v%d\nv_lshl_add_u32 v%d, v%d, 4, v%d'
               % (v2a, v2a, v2a, vT, vT, vT, vT, vT, vT, vT, v2a, vT, v2a))
        L += mk('s_lshr_b32 s%d, s%d, 1\ns_lshl_b32 s%d, s%d, 7\ns_mul_i32 s%d, s%d, %d\ns_add_u32 s%d, s%d, s%d\nv_add_u32 v%d, s%d, v%d'
                % (sT0, sM, sT0, sT0, sT2, sW, 32 * 896, sT0, sT0, sT2, v2a, sT0, v2a))
        L += mk('s_mul_i32 s%d, s%d, 7168\ns_add_u32 s%d, s%d, %d\ns_lshl_b32 s%d, s%d, 12\ns_add_u32 s%d, s%d, %d'
                % (sRot, sW, sRot, sRot, L_EX, sQ1, sW, sQ1, sQ1, L_KVS))
        L += mk('s_lshr_b32 s%d, s%d, 1' % (sT0, sW)) + self.trbase(tA, 128, 4, xor16=sT0)
        L += mk('s_and_b32 s%d, s%d, 1\nv_bfe_u32 v%d, v0, 3, 1\nv_xor_b32 v%d, s%d, v%d\nv_lshl_add_u32 v%d, v%d, 6, v%d\nv_xor_b32 v%d, 64, v%d'
                % (sT0, sW, vT, vT, sT0, vT, tA, vT, tA, tA + 1, tA))
        L += mk('v_add_u32 v%d, s%d, v%d\nv_add_u32 v%d, s%d, v%d\nv_add_u32 v%d, s%d, v%d\nv_add_u32 v%d, s%d, v%d' % (tB, sQ1, tA, tB + 1, sQ1, tA + 1, tA, sRot, tA, tA + 1, sRot, tA + 1))
        L += mk('s_mul_i32 s%d, s%d, 21504\nv_add_u32 v%d, s%d, v%d' % (sT0, sW, vp, sT0, vL16))
        return L

    def w2_stage(self, fill, R, extra):
        P = self.P
        v2a, tA, tB, vp = R, R + 1, R + 3, R + 5
        NS = 5

        def issue(u):
            out = []
            base, o = (sRot, (u % NS) * 2048) if u % NS < 3 else (sQ1, (u % NS - 3) * 2048)
            for i in range(2):
                g = mk('s_add_u32 m0, s%d, %d' % (base, o + 1024 * i))
                g += mk('s_mov_b32 s%d, %d' % (sQ0, (128 * (u // 2) + 16 * (u % 2) + 8 * i) * 896))
                out += g + mk('buffer_load_dwordx4 v%d, %s, s%d offen lds' % (v2a, self.srd(SRD_W2), sQ0))
            return out, tok(out[-1])
        tk = []
        for u in range(NS - 1):
            g, t = issue(u)
            tk.append(t)
            P.add(g)
        steps = []
        for u in range(28):
            ta, o = (tA, (u % NS) * 2048) if u % NS < 3 else (tB, (u % NS - 3) * 2048)
            L = []
            if u + NS - 1 < 28:
                if u:
                    L += [wait_tok(prev_rd)]
                g, t = issue(u + NS - 1)
                tk.append(t)
                L += g
            L += [wait_tok(tk[u])]
            for js in range(2):
                b = W2A + 8 * u + 4 * js
                L += mk('ds_read_b64_tr_b16 %s, v%d offset:%d\nds_read_b64_tr_b16 %s, v%d offset:%d' % (a(b, 2), ta + js, o, a(b + 2, 2), ta + js, o + 1024))
            prev_rd = tok(L[-1])
            L += extra.get(u, [])
            if self.light:
                L += self.stamp('w2_%d' % u)
            r0 = self.o['rest0']
            for i in range(21):
                if u == r0 + (i * (26 - r0)) // 21:
                    assert u < 17 + (i + 1) // 2
                    L += mk('ds_write_b128 v%d, %s offset:%d' % (vp, a(self.PARK + 4 * i, 4), 1024 * i))
            steps.append(L)
        P.add(spread(steps, fill, start=0, end=self.o['w2fill']))

    K10 = 98

    def kvx_pre(self, l):
        L = []
        RES = 160
        if l == 1:
            L += mk('s_lshl_b32 s%d, s%d, 11\ns_add_u32 s%d, s%d, s%d\ns_add_u32 s%d, s%d, %d' % (sT1, sM, sT0, sT5, sT1, sT0, sT0, XIN_OFF))
            for j in range(2):
                L += mk('buffer_load_dwordx4 %s, v%d, %s, s%d offen offset:%d' % (v(RES + 4 * j, 4), vL16, self.srd(SRD_CL), sT0, 1024 * j))
            L += [I('s_mul_i32 s%d, s%d, %d\ns_add_u32 s%d, s%d, s%d\ns_addc_u32 s%d, s%d, 0\ns_sub_u32 s%d, s%d, s%d'
                    % (sT0, sSlow, LOFF, SRD_CL, SRD_CL, sT0, SRD_CL + 1, SRD_CL + 1, SRD_CL + 2, SRD_CL + 2, sT0), kind='block', cost=16)]
        L += [I('s_cmp_eq_u32 s%d, 3\ns_cselect_b32 s%d, 0xffff0000, 0\ns_cselect_b32 s%d, 0xffff0000, 0' % (sW, sPm, sPm + 1), kind='block', cost=12)]
        L += self.kv_lane_addr(self.KA, self.KA + 1, self.KA + 2, gather=False)
        L += mk('v_lshlrev_b32 v%d, 5, v0\nv_add_u32 v%d, %d, v%d' % (self.KA + 1, self.KA + 1, L_KVB, self.KA + 1))
        L += mk('v_mov_b32 v%d, 0x3f80\nv_mov_b32 v%d, 0x3f800000\ns_mov_b32 s%d, 0x88888888\ns_mov_b32 s%d, 0x88888888' % (self.K10, self.K10 + 1, sPm, sPm + 1))
        return L

    KA = 100

    def kvx(self, l):
        P = self.P
        P.comment('==== layer %d : kv exchange' % l)
        if l == 0:
            lw, lb = P.newlabel('Lxcc'), P.newlabel('Lxok')
            P('v_subrev_u32 v%d, s%d, v%d\nv_cmp_lt_u32 vcc, 15, v%d' % (vPoll, sNonce, vPoll, vPoll))
            P.add([I('s_cbranch_vccnz %s\n%s:' % (lw, lb), kind='block')])
            self.ool.append('\n'.join([
                lw + ':',
                'buffer_load_dword v%d, v%d, %s, s%d offen sc1' % (vPoll, vPA, self.srd(SRD_WS), sT4),
                's_add_u32 s%d, s%d, 1' % (sSpin, sSpin),
                's_cmp_gt_u32 s%d, 0x40000' % sSpin,
                's_cbranch_scc1 L_end',
                's_waitcnt vmcnt(0)',
                'v_subrev_u32 v%d, s%d, v%d' % (vPoll, sNonce, vPoll),
                'v_cmp_lt_u32 vcc, 15, v%d' % vPoll,
                's_cbranch_vccnz %s' % lw,
                's_branch %s' % lb]))
            P('v_cmp_ne_u32 vcc, s%d, v%d\ns_cmp_lg_u64 vcc, 0\ns_cselect_b32 s%d, 1, 0' % (sXcc, vPoll, sSlow))
        if l == 0:
            P.add(self.kvx_pre(0))
        elif self.o['kvdelay']:
            P('s_sleep %d' % self.o['kvdelay'])
        K10, K01 = self.K10, self.K10 + 1
        P.add(self.pa(16))
        P.add(self.trbase(vTr, 64, 4, add=L_WO))
        lsw, lre = P.newlabel('Lsweep'), P.newlabel('Lresweep')
        P.add(self.stamp('sweep_start'))
        P.label(lsw)
        B = 32
        P.add(flat(self.frag_loads([v(B + 4 * i, 4) for i in range(8)], SRD_WS, sKv, 0, flags='sc1')))
        bad, S = vT, 16
        P('v_mov_b32 v%d, 0' % bad)
        for i in range(8):
            for k in range(4):
                for hh, K in enumerate((K10, K01)):
                    P('v_dot2_f32_bf16 v%d, v%d, v%d, %s' % (S + 2 * k + hh, B + 4 * i + k, K, 'v%d' % (S + 2 * k + hh) if i else '0'))
            for k in (2, 3):
                P('v_bitop3_b32 v%d, v%d, s%d, v%d bitop3:0xbe' % (bad, B + 4 * i + k, sNonce, bad))
        P('v_cmp_ne_u32 vcc, 0, v%d\ns_and_b64 vcc, vcc, s[%d:%d]' % (bad, sPm, sPm + 1))
        P.add([I('s_cbranch_vccnz %s' % lre, kind='block', states=1)])
        self.ool.append('%s:\ns_sleep 6\ns_add_u32 s%d, s%d, 1\ns_cmp_gt_u32 s%d, 0x40000\ns_cbranch_scc1 L_end\ns_branch %s'
                        % (lre, sSpin, sSpin, sSpin, lsw))
        P.add(self.stamp('sweep_done'))
        for k in range(4):
            P('v_permlane32_swap_b32 v%d, v%d' % (S + k, S + 4 + k))
        for k in (0, 2):
            P('v_pk_add_f32 %s, %s, %s' % (v(S + k, 2), v(S + k, 2), v(S + 4 + k, 2)))
        P.add(self.pack(S, S, 2))
        P('ds_write_b64 v%d, %s' % (self.KA, v(S, 2)))
        if l == 0:
            P.add([wait_tok(self.tok_wo)])
        P('s_waitcnt lgkmcnt(0)\ns_barrier')
        KF, D = 32, 16
        P('ds_read_b128 %s, v%d\nds_read_b128 %s, v%d offset:16' % (v(KF, 4), self.KA + 1, v(KF + 4, 4), self.KA + 1))
        P.add(mfma(D, v(KF, 4), v(self.PQ, 4), True))
        for i in (6, 7):
            P('v_cndmask_b32 v%d, v%d, 0, s[%d:%d]' % (KF + i, KF + i, sHalf, sHalf + 1))
        P.add(mfma(D, v(KF + 4, 4), v(self.PQ + 4, 4)))
        t1, t2 = 40, 42
        P('v_mov_b32 v%d, v%d\nv_mov_b32 v%d, v%d\nv_permlane32_swap_b32 v%d, v%d' % (t1, D + 12, t2, D + 12, t1, t2))
        P('v_add_f32 v%d, %s, v%d\nv_rcp_f32 v%d, v%d\nv_mul_f32 v%d, s%d, v%d\nv_mul_f32 v%d, s%d, v%d' % (t2, f32(1e-6), t2, t2, t2, t1, sLn2, t2, t1 + 1, sLn2, t2))
        for r in range(0, 16, 2):
            P('v_pk_mul_f32 %s, %s, %s' % (v(D + r, 2), v(D + r, 2), v(t1, 2)))
        P.add(self.pack(D, D, 8))
        for i in (6, 7):
            P('v_cndmask_b32 v%d, v%d, 0, s[%d:%d]' % (D + i, D + i, sHalf, sHalf + 1))
        st = self.stores(['buffer_store_dwordx4 %s, v%d, %s, s%d offen offset:%d' % (v(D + 4 * j, 4), vL16, self.srd(SRD_CL), sOst, 1024 * j) for j in range(2)])
        tk = tok(st[-1])
        P.add(st)
        P.add(self.flag([tk], sFoMy))
        P.add(self.stamp('o_pub'))

    def s2(self, l):
        P = self.P
        o = self.o
        P.comment('==== layer %d : S2' % l)
        ACC, OF, WB, RES = 16, 32, 144, 160
        NB = 4
        P.add(self.poll_issue(sFo))
        P.add(self.unpack(ACC, RES, 8))
        jobs = [(h, j) for h in range(16) for j in range(2)]
        rd = lambda i: mk('ds_read_b64_tr_b16 %s, v%d offset:%d\nds_read_b64_tr_b16 %s, v%d offset:%d' % (
            v(WB + 4 * (i % NB), 2), vTr, 1792 * jobs[i][0] + 1024 * jobs[i][1],
            v(WB + 4 * (i % NB) + 2, 2), vTr, 1792 * jobs[i][0] + 1024 * jobs[i][1] + 512))
        for i in range(NB):
            P.add(rd(i))
        P('s_add_u32 s%d, s%d, %d' % (sT4, sOst, X1_OFF))
        P('s_lshr_b32 s%d, s%d, 2\ns_lshl_b32 s%d, s%d, 10\ns_and_b32 s%d, s%d, 3\ns_lshl_b32 s%d, s%d, 2\ns_add_u32 s%d, s%d, s%d\ns_add_u32 s%d, s%d, s%d\ns_add_u32 s%d, s%d, %d'
          % (sT5, sM, sT5, sT5, sT1, sM, sT1, sT1, sT5, sT5, sT1, sT5, sT5, sBlk, sT5, sT5, X1_OFF + 28672))
        P.add(self.s4_consts(l))
        if l == 0:
            P.add(self.xsrc())
        P.add(self.poll_check(sFo))
        P.add(self.stamp('o_seen'))
        oreg = [OF + 4 * (i % 28) for i in range(32)]
        lds = self.frag_loads([v(r, 4) for r in oreg], SRD_CL, sBlk, O_OFF, flags='sc1')
        n = o['look2']
        P.add(flat(lds[:n]))
        for i in range(32):
            P.add(mfma(ACC, v(WB + 4 * (i % NB), 4), v(oreg[i], 4)))
            if self.light and i in (0, 8, 16, 31):
                P.add(self.stamp('s2_%d' % i))
            if i + n < 32:
                P.add(lds[i + n])
            if i + NB < 32:
                P.add(rd(i + NB))
        P.add(self.pa(14, blocks=True))
        P.add(self.pack(OF, ACC, 8))
        P.add(self.stores(['buffer_store_dwordx4 %s, v%d, %s, s%d offen offset:%d' % (v(OF + 4 * j, 4), vL16, self.srd(SRD_CL), sT4, 1024 * j) for j in range(2)]))
        P.add(self.row_stats(OF, 8, vT, vT + 2))
        st = self.stores(['buffer_store_dword v%d, v%d, %s, s%d offen' % (vT, vL16, self.srd(SRD_CL), sT5)])
        tk = tok(st[-1])
        P.add(st)
        if self.light:
            P.add(self.stamp('x1_st'))
        P.add(self.flag([tk], sFoMy, FX1 - FO))
        P.add(self.stamp('x1_pub'))

    def gelu(self, acc, KK, T):
        pr = range(0, 16, 2)
        A = flat(mk('v_pk_mul_f32 %s, %s, %s' % (v(T + i, 2), v(acc + i, 2), v(acc + i, 2))) for i in pr)
        A += flat(mk('v_pk_fma_f32 %s, %s, %s, %s op_sel:[0,1,0] op_sel_hi:[1,1,0]' % (v(T + i, 2), v(T + i, 2), v(KK, 2), v(KK, 2))) for i in pr)
        A += flat(mk('v_pk_mul_f32 %s, %s, %s' % (v(T + i, 2), v(T + i, 2), v(acc + i, 2))) for i in pr)
        E = flat(mk('v_exp_f32 v%d, v%d' % (T + i, T + i)) for i in range(16))
        B = flat(mk('v_pk_fma_f32 %s, %s, %s, %s op_sel_hi:[1,0,0]' % (v(T + i, 2), v(T + i, 2), v(KK + 2, 2), v(KK + 2, 2))) for i in pr)
        R = flat(mk('v_rcp_f32 v%d, v%d' % (T + i, T + i)) for i in range(16))
        C = flat(mk('v_pk_mul_f32 %s, %s, %s' % (v(acc + i, 2), v(acc + i, 2), v(T + i, 2))) for i in pr)
        pk = self.pack(acc, acc, 8)
        g4 = lambda f, g: flat(mk(f(4 * g + i)) for i in range(4))
        e = lambda g: E[4 * g:4 * g + 4]
        r = lambda g: R[4 * g:4 * g + 4]
        b = lambda g: g4(lambda i: 'v_fma_f32 v%d, v%d, v%d, v%d' % (T + i, T + i, KK + 2, KK + 2), g)
        c = lambda g: g4(lambda i: 'v_mul_f32 v%d, v%d, v%d' % (acc + i, acc + i, T + i), g) + pk[2 * g:2 * g + 2]
        tail = e(0) + e(1) + b(0) + r(0) + e(2) + b(1) + c(0) + r(1) + e(3) + b(2) + c(1) + r(2) + b(3) + c(2) + r(3) + c(3)
        return A, A + E + B + R + C + pk, tail

    XSRC = (4, 5, 6, 7, 8, 9, 10, 11, 12, 13, 14, 15, 20, 21)

    def xsrc(self):
        L = mk('s_lshl_b32 s%d, s%d, 1\ns_mul_i32 s%d, s%d, 14\ns_add_u32 s%d, s%d, s%d\ns_mov_b32 s%d, %d' % (sT0, sW, sT1, sD1, sT1, sT1, sT0, sT2, X1_OFF))
        for c, r in enumerate(self.XSRC):
            if c:
                L += mk('s_add_u32 s%d, s%d, 8\ns_cmp_ge_u32 s%d, 28\ns_cselect_b32 s%d, 28, 0\ns_cselect_b32 s%d, 0x8000, 0\ns_sub_u32 s%d, s%d, s%d\ns_add_u32 s%d, s%d, s%d'
                        % (sT0, sT0, sT0, sT3, r, sT0, sT0, sT3, sT2, sT2, r))
                L += mk('s_add_u32 s%d, s%d, 8\ns_cmp_ge_u32 s%d, 28\ns_cselect_b32 s%d, 28, 0\ns_sub_u32 s%d, s%d, s%d' % (sT1, sT1, sT1, sT3, sT1, sT1, sT3))
            L += mk('s_lshl_b32 s%d, s%d, 10\ns_add_u32 s%d, s%d, s%d' % (r, sT1, r, r, sT2))
        return L

    SEL = 172

    def s4_consts(self, l):
        U, SEL = 168, self.SEL
        sel = mk('\n'.join(['v_lshrrev_b32 v%d, 5, v0' % SEL,
                             'v_lshlrev_b32 v%d, 2, v%d' % (SEL, SEL), 'v_and_b32 v%d, 31, v0' % (SEL + 1), 'v_sub_u32 v%d, v%d, v%d' % (U, SEL + 1, SEL),
                             'v_mov_b32 v%d, 0x3f80' % (U + 1), 'v_mov_b32 v%d, 0x3f800000' % (U + 2)]))
        for q, r0 in enumerate((0, 2, 8, 10)):
            sel += mk('v_cmp_eq_u32 vcc, %d, v%d\nv_cmp_eq_u32 s[%d:%d], %d, v%d\ns_nop 0\nv_cndmask_b32 v%d, 0, v%d, vcc\nv_cndmask_b32 v%d, v%d, v%d, s[%d:%d]'
                      % (r0, U, sPm, sPm + 1, r0 + 1, U, SEL + q, U + 1, SEL + q, SEL + q, U + 2, sPm, sPm + 1))
        for q, sB in enumerate((sEb, sLb)):
            sel += mk('s_lshl_b32 s%d, s%d, 15\ns_lshl_b32 s%d, s%d, 10\ns_add_u32 s%d, s%d, s%d\ns_add_u32 s%d, s%d, %d' % (sT0, sB, sT2, sFe, sT0, sT0, sT2, sRes + q, sT0, X1_OFF))
            if l == 0:
                sel += mk('s_mul_i32 s%d, s%d, %d\ns_add_u32 s%d, s%d, %d\ns_add_u32 s%d, s%d, s%d' % (sT0, sB, XIN_BS, sT0, sT0, XIN_OFF, sFin + q, sT0, sT2))
                sel += mk('s_lshr_b32 s%d, s%d, 2\ns_lshl_b32 s%d, s%d, 10\ns_add_u32 s%d, s%d, s%d\ns_and_b32 s%d, s%d, 3\ns_lshl_b32 s%d, s%d, 2\ns_add_u32 s%d, s%d, s%d\ns_add_u32 s%d, s%d, 28672'
                          % (sT2, sFe, sT2, sT2, sT0, sT0, sT2, sT2, sFe, sT2, sT2, sT0, sT0, sT2, sFin + 2 + q, sT0))
                sel += mk('s_lshl_b32 s%d, s%d, 5\ns_add_u32 s%d, s%d, s%d\ns_lshl_b32 s%d, s%d, 2\ns_add_u32 s%d, s%d, %d' % (sT2, sB, sT2, sT2, sFe, sT2, sT2, sFin + 4 + q, sT2, FXIN))
            else:
                sel += mk('s_lshl_b32 s%d, s%d, 2\ns_add_u32 s%d, s%d, s%d\ns_mul_i32 s%d, s%d, %d\ns_lshl_b32 s%d, s%d, 5\ns_add_u32 s%d, s%d, s%d'
                          % (sT0, sC, sT0, sT0, sB, sT0, sT0, 32 * 896, sT2, sFe, sFin + q, sT0, sT2))

        return sel

    def mlp(self, l):
        P = self.P
        o = self.o
        P.comment('==== layer %d : MLP' % l)
        ACC = (16, 32)
        XB, EXB, WEX, T, RING = 48, 72, 76, 80, 108
        KK = (96, 100)
        SEL, vB2, vX2 = self.SEL, 104, 105
        NB = 6
        P('s_mov_b32 s%d, %d' % (sT4, FX1))
        P.add(self.poll_issue(sT4))
        P('s_lshl_b32 s%d, s%d, 11' % (sT5, sW))
        P('v_mov_b32 v%d, v%d\nv_mov_b32 v%d, v%d' % (WEX, vW1X, WEX + 1, vW1X + 1))
        P('\n'.join('v_mov_b32 v%d, 0' % r for r in (WEX + 2, WEX + 3, EXB + 2, EXB + 3)))
        vE8, vK16 = vTr, vT + 3
        P('v_lshlrev_b32 v%d, 3, v0\nv_add_u32 v%d, %d, v%d' % (vE8, vE8, L_KVS, vE8))
        P('v_and_b32 v%d, 31, v0\nv_lshlrev_b32 v%d, 4, v%d\nv_add_u32 v%d, %d, v%d' % (vK16, vK16, vK16, vK16, L_KVS + 512, vK16))
        P('v_add_u32 v%d, %d, v%d' % (vX2, 56 * 1024, vL16))
        P('s_lshl_b32 s%d, s%d, 7\ns_add_u32 s%d, s%d, %d\nv_lshrrev_b32 v%d, 5, v0\nv_lshl_add_u32 v%d, v%d, 6, s%d' % (sT3, sW, sT3, sT3, L_B2, vB2, vB2, vB2, sT3))
        P('s_add_u32 s%d, s%d, %d' % (sT1, sBlk, X1_OFF + 28672))
        P.add(self.poll_check(sT4))
        P.add(self.stamp('x1_seen'))
        xd, tc = [], []
        for c, r in enumerate(self.XSRC):
            g = mk('s_add_u32 m0, s%d, %d' % (sT5, 8192 * c))
            g += mk('buffer_load_dwordx4 v%d, %s, s%d offen sc1 lds\nbuffer_load_dwordx4 v%d, %s, s%d offen offset:1024 sc1 lds' % (vL16, self.srd(SRD_CL), r, vL16, self.srd(SRD_CL), r))
            tc.append(tok(g[-1]))
            xd.append(g)
        P.add(xd[0] + xd[1])
        stl = [mk('buffer_load_dwordx4 %s, v%d, %s, s%d offen offset:%d sc1' % (v(RING + 4 * i, 4), vL16, self.srd(SRD_CL), sT1, 1024 * i)) for i in range(4)]
        K0 = KK[1]
        st0 = mk('v_add_f32 v%d, v%d, v%d' % (T, RING, RING + 1))
        for i in range(2, 14):
            st0 += mk('v_add_f32 v%d, v%d, v%d' % (T, T, RING + i))
        st0 += self.stats_finish(T, True)
        st0 += mk('\n'.join(['v_rcp_f32 v%d, v%d' % (K0 + 2, vRl),
                             'v_mul_f32 v%d, s%d, v%d' % (K0, sC0, vRl),
                             'v_mul_f32 v%d, v%d, v%d' % (T, vRl, vRl),
                             'v_mul_f32 v%d, s%d, v%d' % (K0 + 1, sC1, vRl),
                             'v_mul_f32 v%d, v%d, v%d' % (K0 + 1, K0 + 1, T),
                             'v_sub_f32 v%d, 0, v%d' % (vMean, vMean),
                             'v_cndmask_b32 v%d, v%d, v%d, s[%d:%d]' % (vMean, vMean, K0 + 2, sHalf, sHalf + 1)]))
        st0 += self.split_act(T + 2, vMean, T)
        st0 += mk('s_lshl_b32 s%d, s%d, 10\nv_add_u32 v%d, s%d, v%d\nv_add_u32 v%d, s%d, v%d' % (sT4, sW, vT, sT4, vE8, vT + 1, sT4, vK16))
        st0 += mk('ds_write_b64 v%d, %s\nds_write_b128 v%d, %s' % (vT, v(T + 2, 2), vT + 1, v(K0, 4)))
        tst = tok(st0[-1])

        def hpub(b):
            pre = mk('s_add_u32 s%d, s%d, %d' % (sT4, sHst, b * 114688))
            st = self.stores(['buffer_store_dwordx4 %s, v%d, %s, s%d offen offset:%d' % (v(ACC[b & 1] + 4 * j, 4), vL16, self.srd(SRD_CL), sT4, 1024 * j) for j in range(2)])
            return pre + st, tok(st[-1])
        hflag = lambda b, tk: self.flag([tk], sFoMy, FH - FO + 512 * b)
        extrd = lambda b: mk('ds_read_b64 %s, v%d offset:%d\nds_read_b128 %s, v%d offset:%d' % (v(EXB, 2), vE8, 1024 * b, v(KK[b & 1], 4), vK16, 1024 * b))
        extmf = lambda b: mfma(ACC[b & 1], v(WEX, 4), v(EXB, 4))
        hreg = [RING + 4 * (i % 16) for i in range(56)]

        def hload(i):
            blk, kap = divmod(i, 28)
            g = mk('s_add_u32 s%d, s%d, %d' % (sHs, (sHE, sHL)[blk], 8192 * (kap // 2))) if kap % 2 == 0 else []
            return g + mk('buffer_load_dwordx4 %s, v%d, %s, s%d offen offset:%d sc1' % (v(hreg[i], 4), vL16, self.srd(SRD_CL), sHs, 1024 * (kap % 2)))
        P.add([wait_tok(tc[0])])
        P('s_barrier')
        P.add(self.stamp('s3_b0'))
        rdj = lambda j: mk('ds_read_b128 %s, v%d offset:%d' % (v(XB + 4 * (j % NB), 4), vL16 if j < 56 else vX2, 1024 * (j % 56)))
        for j in range(NB):
            P.add(rdj(j))
        bars = {3: [tc[1]], 11: [tc[2]], 19: [tc[3]], 27: [tc[5], tst], 43: [tc[9]], 75: [tc[13]]}
        slots = []
        for j in range(112):
            b, k = divmod(j, 28)
            sl = mfma(ACC[b & 1], w1reg(k), v(XB + 4 * (j % NB), 4), k == 0)
            if k % 2 == 0:
                also_waits_for(sl[0], v(XB + 4 * ((j + 1) % NB), 4))
            if j in bars:
                sl += (self.stamp('pb%d' % j) if self.light else []) + [wait_tok(*bars[j])] + mk('s_barrier') + (self.stamp('ab%d' % j) if self.light else [])
            if k % 2 == 1:
                for jj in (j + NB - 1, j + NB):
                    if jj < 112:
                        sl += rdj(jj)
            if (k == 25 and b) or j == 27:
                sl += extrd(b)
            if (k == 27 and b) or j == 30:
                sl += extmf(b if k == 27 else 0)
            slots.append(sl)
        slots[0] += stl[0] + stl[1]
        slots[1] += xd[2]
        slots[3] += stl[2] + stl[3]
        for c in range(3, 14):
            slots[6 + 4 * (c - 3)] += xd[c]
        W2R = RING + 32
        pre0 = self.w2_addr(W2R) if l == 0 else []
        out = spread(slots[:o['st0']], pre0) + spread(slots[o['st0']:26], st0) + slots[26] + slots[27]
        pend = None
        for b in range(1, 4):
            gA, _, tail = self.gelu(ACC[(b - 1) & 1], KK[(b - 1) & 1], T)
            s0 = 28 * b + (5 if b == 1 else 2)
            st, nxt = hpub(b - 1)
            if l == 0 and b < 3 and o['pfw2']:
                st = st + self.w2_prefetch(vT, b - 1)
            if l == 0 and not o['idleh']:
                st = st + self.touch([(16, SRD_CL, sHst, bb * 114688) for bb in ((b - 1,) if b < 3 else (2, 3))], vT)
            slots[s0] += gA
            if pend is not None and l == 1:
                slots[28 * b + o['flagpos']] += hflag(b - 2, pend)
            pend = nxt
            if b == 3 and l == 1:
                slots[84 + o['pollE']] += self.pa(14) + self.poll_issue(sPE)
                n3 = o['n3']
                slots[112 - n3] += (self.stamp('preE') if self.light else []) + self.poll_check(sPE) + (self.stamp('gotE') if self.light else [])
                for i in range(n3):
                    slots[112 - n3 + i] += hload(i)
            if b == 1 or self.light:
                out += self.stamp('s3_b%d' % b)
            out += flat(slots[28 * b:s0 + 1]) + spread(slots[s0 + 1:28 * b + 28], tail + st, end=28 * b + o['gend'] - s0)
        P.add(out)
        P('s_waitcnt lgkmcnt(0)\ns_barrier')
        P.add(self.stamp('s3_end'))
        AE, AL, RX, RS = 48, 16, 80, 96
        vEW, vER = (vTr, vT, vT + 1), vT + 3
        resid = lambda q: mk('buffer_load_dwordx4 %s, v%d, %s, s%d offen sc1' % (v(RS, 4), vL16, self.srd(SRD_CL), sRes + q))
        cinit = lambda A: flat(mk('ds_read_b128 %s, v%d offset:%d' % (v(A + 4 * q, 4), vB2, 16 * q)) for q in range(4))
        ad = []
        for n, x in enumerate((2, 1, 3)):
            ad += mk('s_xor_b32 s%d, s%d, %d\ns_mul_i32 s%d, s%d, 6144\ns_add_u32 s%d, s%d, %d\nv_add_u32 v%d, s%d, v%d'
                     % (sT3, sW, x, sT3, sT3, sT3, sT3, L_EX + 2048 * (x - 1), vEW[n], sT3, vL16))
        ad += mk('s_mul_i32 s%d, s%d, 6144\ns_add_u32 s%d, s%d, %d\nv_add_u32 v%d, s%d, v%d' % (sT3, sW, sT3, sT3, L_EX, vER, sT3, vL16))
        gA, gall, _ = self.gelu(ACC[1], KK[1], T)
        st, p3 = hpub(3)
        npre = o['npre']
        if l == 0:
            npre = 7
            self.w2_stage(gall + hflag(0, pend) + hflag(1, pend) + hflag(2, pend) + st, W2R,
                          {15: hflag(3, p3), 19: self.pa(14) + self.poll_issue(sPE), 23: self.poll_check(sPE) + resid(0) + cinit(AE) + hload(0),
                           24: hload(1) + hload(2), 25: hload(3) + hload(4), 26: hload(5) + hload(6)})
        else:
            P.add(spread([resid(0)] + [hload(i) for i in range(o['n3'], npre)], gall[:40] + hflag(2, pend) + cinit(AE) + gall[40:] + st))
        if self.light:
            P.add(self.stamp('g3_end'))

        exch_write = lambda A: flat(mk('ds_write_b128 v%d, %s\nds_write_b128 v%d, %s offset:1024' % (vEW[n], v(r, 4), vEW[n], v(r + 4, 4)))
                                    for n, r in enumerate((A + 8, A + 16, A + 24)))
        exch_read = lambda: flat(mk('ds_read_b128 %s, v%d offset:%d' % (v(RX + 4 * q, 4), vER, 1024 * q)) for q in range(6))

        def addv(d, x, y, n, pk):
            if pk:
                return flat(mk('v_pk_add_f32 %s, %s, %s' % (v(d + i, 2), v(x + i, 2), v(y + i, 2))) for i in range(0, n, 2))
            return flat(mk('v_add_f32 v%d, v%d, v%d' % (d + i, x + i, y + i)) for i in range(n))

        def finish(A, q, pk):
            L = addv(A, A, RX, 8, pk) + addv(RX + 8, RX + 8, RX + 16, 8, pk) + addv(A, A, RX + 8, 8, pk) + self.pack(A, A, 4)
            if l == 0:
                L += self.stores(['buffer_store_dwordx4 %s, v%d, %s, s%d offen' % (v(A, 4), vL16, self.srd(SRD_CL), sFin + q)])
                rs = self.row_stats(A, 4, RX, RX + 2)
                blk = I('\n'.join(x.text for x in rs[:9]), kind='block', src=[r for x in rs[:9] for r in x.src], dst=[('v', RX), ('v', RX + 1), ('v', RX + 2)], states=1, cost=60)
                L += [blk] + mk('s_nop 2') + rs[9:]
                st = self.stores(['buffer_store_dword v%d, v%d, %s, s%d offen' % (RX, vL16, self.srd(SRD_CL), sFin + 2 + q)])
                tk = tok(st[-1])
                return L + st, self.flag([tk], sFin + 4 + q)
            L += mk('v_permlane32_swap_b32 v%d, v%d\nv_permlane32_swap_b32 v%d, v%d' % (A, A + 2, A + 1, A + 3))
            L += mk('buffer_store_dwordx4 %s, v%d, %s, s%d offen' % (v(A, 4), vPA, self.srd(SRD_OUT), sFin + q))
            return L, []

        slots = []
        for i in range(56):
            blk, kap = divmod(i, 28)
            A = (AE, AL)[blk]
            for js in range(2):
                sl = mfma(A, v(SEL, 4), v(RS, 4)) if kap == 0 and js == 0 else []
                slots.append(sl + mfma(A + 16 * js, a(W2A + 8 * kap + 4 * js, 4), v(hreg[i], 4), kap == 0 and js == 1))
        sidx = 0
        for i in range(npre, 56):
            sidx = max(sidx, 2 * (i - 16) + 1 if i >= 16 else 0)
            if i == 28:
                sidx = max(sidx, o['lateL'])
                slots[sidx] += (self.stamp('preL') if self.light else []) + self.poll_check(sPL) + (self.stamp('gotL') if self.light else [])
            slots[sidx] += hload(i)
            assert sidx <= 2 * i - 6
            sidx += 1 if 2 * (i + 1) - sidx - 2 < o['lead'] else 2
        if l == 1:
            slots[o['flag3']] += (self.stamp('preF') if self.light else []) + hflag(3, p3) + (self.stamp('gotF') if self.light else [])
        slots[o['pollL']] += self.poll_issue(sPL)
        for i in range(0, len(ad), 4):
            slots[2 * (i // 4) + 30] += ad[i:i + 4]
        slots[40] += resid(1)
        if l == 0:
            slots[20] += mk('s_barrier')
        slots[46] += cinit(AL)
        if l == 1:
            slots[44] += mk('v_and_b32 v%d, 31, v0\nv_mul_u32_u24 v%d, 896, v%d\nv_lshrrev_b32 v%d, 5, v0\nv_lshl_add_u32 v%d, v%d, 4, v%d'
                            % (vPA, vPA, vPA, vPoll, vPA, vPoll, vPA))
        P.add(flat(slots[:56]))
        P.add(self.stamp('s4_E'))
        late = slots[56:]
        fin, fl = finish(AE, 0, False)
        xb0 = o['xbar']
        P.add(spread(late[:xb0], exch_write(AE), start=2, end=9))
        late[xb0] += (self.stamp('preX') if self.light else []) + mk('s_waitcnt lgkmcnt(0)\ns_barrier') + (self.stamp('gotX') if self.light else []) + exch_read()
        late[34] += (self.stamp('preY') if self.light else []) + mk('s_barrier') + (self.stamp('gotY') if self.light else [])
        late[44] += fl
        P.add(spread(late[xb0:], fin, start=4, end=33 - xb0))
        P.add(self.stamp('s4_L'))
        P.add(exch_write(AL) + mk('s_waitcnt lgkmcnt(0)\ns_barrier') + exch_read())
        fin, fl = finish(AL, 1, True)
        P.add(fin + fl)
        P.add(self.stamp('x2_pub'))

    def build(self):
        P = self.P
        self.prologue()
        for l in range(2):
            self.s1(l)
            if self.stop == 's1_%d' % l:
                break
            self.kvx(l)
            if self.stop == 'o_%d' % l:
                break
            lnext = 'L_layer%d' % (l + 1)
            if l == 0:
                lsk = P.newlabel('Lskipmlp')
                P.add([I('s_cmp_ge_u32 s%d, 14\ns_cbranch_scc1 %s' % (sM, lsk), kind='block')])
                self.ool.append('%s:\n%s\ns_waitcnt vmcnt(0) lgkmcnt(0)\ns_sleep 60\ns_branch %s' % (lsk, self.idle_work(), lnext))
            else:
                P.add([I('s_cmp_ge_u32 s%d, 14\ns_cbranch_scc1 L_fin' % sM, kind='block')])
            self.s2(l)
            if self.stop == 'x1_%d' % l:
                P.label(lnext)
                break
            self.mlp(l)
            P.label(lnext)
            if l == 0:
                P('s_add_u32 s%d, s%d, %d\ns_add_u32 s%d, s%d, %d' % (sKv, sKv, KVP_L, sKvMy, sKvMy, KVP_L))
            if self.stop == 'x2_%d' % l:
                break
        P.add([I('s_cmp_lg_u32 s2, 0\ns_cbranch_scc1 L_fin\ns_cmp_lg_u32 s%d, 0\ns_cbranch_scc1 L_fin' % sW, kind='block')])
        P('s_mov_b64 exec, 1\nbuffer_store_dword v%d, off, %s, 0 sc1\ns_mov_b64 exec, -1' % (vNonce, self.srd(SRD_WS)))
        if self.probe is not None:
            P.add(self.stamp('end'))
            P.add([I('s_waitcnt lgkmcnt(0)\ns_sub_u32 s94, s94, s96\ns_lshl_b32 s94, s94, 2\ns_add_u32 s94, s94, 10000\nL_pr:\ns_memrealtime s[98:99]\ns_waitcnt lgkmcnt(0)\n'
                     's_sub_u32 s98, s98, s96\ns_cmp_lt_u32 s98, s94\ns_cbranch_scc1 L_pr', kind='block')])
        P.label('L_fin')
        if self.stamps:
            P('s_lshl_b32 s%d, s2, 2\ns_add_u32 s%d, s%d, s%d\ns_lshl_b32 s%d, s%d, 8\ns_add_u32 s%d, s%d, %d' % (sT0, sT0, sT0, sW, sT0, sT0, sT0, sT0, WS_STAMP))
            P.add(self.stamp('end'))
            P('s_memrealtime s[%d:%d]\ns_waitcnt lgkmcnt(0)\nv_writelane_b32 v%d, s%d, 63' % (sStamp, sStamp + 1, vStamp, sStamp))
            P('v_writelane_b32 v%d, s%d, 61' % (vStamp, sSpin))
            P('v_lshlrev_b32 v%d, 2, v0\nbuffer_store_dword v%d, v%d, %s, s%d offen' % (vT, vStamp, vT, self.srd(SRD_WS), sT0))
        P.label('L_end')
        P('s_endpgm')
        body, L = finalize(P.L)
        self.final = L
        ool = '\n'.join('\n'.join(('    ' + t if not t.endswith(':') else t) for t in b.split('\n') if t.strip()) for b in self.ool)
        head = open('cdna_kernels/%s.s.ref' % KNAME[:-7]).read().split('\n')
        hdr = [h for h in head if h.startswith(';') and '@launch' not in h]
        txt = '\n'.join(hdr) + '\n; @launch grid=(256,1,1) block=(256,1,1) lds=%d\n' % LDS_BYTES
        txt += '.amdgcn_target "amdgcn-amd-amdhsa--gfx950"\n.text\n.globl %s\n.p2align 8\n.type %s,@function\n%s:\n' % (KNAME, KNAME, KNAME)
        txt += body + ool + '\nL_code_end:\n'
        txt += '''.section .rodata,"a"
.p2align 6
.amdhsa_kernel %s
  .amdhsa_next_free_vgpr 512
  .amdhsa_next_free_sgpr 102
  .amdhsa_accum_offset 256
  .amdhsa_group_segment_fixed_size 0
  .amdhsa_kernarg_size 88
  .amdhsa_user_sgpr_count 2
  .amdhsa_user_sgpr_kernarg_segment_ptr 1
  .amdhsa_system_sgpr_workgroup_id_x 1
.end_amdhsa_kernel
''' % KNAME
        return txt


if __name__ == '__main__':
    import argparse
    ap = argparse.ArgumentParser()
    ap.add_argument('-o', default='k.s')
    ap.add_argument('--stop', default=None)
    ap.add_argument('--stamps', action='store_true')
    ap.add_argument('opts', nargs='*')
    A = ap.parse_args()
    opt = {k: (x if k in ('probe', 'light') else int(x)) for k, x in (t.split('=') for t in A.opts)}
    g = Gen(stop=A.stop, stamps=A.stamps, **opt)
    open(A.o, 'w').write(g.build())
    if A.stamps:
        open(A.o + '.stamps', 'w').write('\n'.join(g.stamp_names))
    n = {}
    for x in g.final:
        n[x.kind] = n.get(x.kind, 0) + 1
    nops = sum(x.states for x in g.final if x.op == 's_nop')
    print('instructions', n, 'nop states', nops)
```

```python
import sys, struct
from asmgen import *

KNAME = 'interleave_layers__linear_attn_block__mixer_channel_mlp__prompt_kernel'


def f32(x):
    return '0x%08x' % struct.unpack('<I', struct.pack('<f', x))[0]


LOG2E = 1.4426950408889634
LN2 = 0.6931471805599453
MF = 'v_mfma_f32_32x32x16_bf16'

WS_XCC = 0x8000
WS_STAMP = 0x10000
WS_KVP = 0x200000
KVP_CH = 9216
KVP_L = 0xA0000
WS_CL = 0x400000
LOFF = 0xD5000
O_OFF, X1_OFF, H_OFF, XIN_OFF, FL_OFF = 0, 0x20000, 0x40000, 0xB0000, 0xD4000
XIN_BS = 36864
FO, FX1, FXIN, FH = FL_OFF, FL_OFF + 512, FL_OFF + 1024, FL_OFF + 1536

L_WQ = 0
L_XB = 28672
L_EX = 86016
L_XS = 86016
L_WO = 114688
L_KVS = 143616
L_KVB = L_KVS + 16384
L_CS = L_KVB + 2048
L_B2 = L_CS + 768
LDS_BYTES = 163840
assert L_B2 + 512 <= LDS_BYTES

SRD_WQ, SRD_WO, SRD_W1, SRD_W2, SRD_X, SRD_OUT, SRD_B1, SRD_B2, SRD_CL, SRD_WS = range(4, 44, 4)
sC, sM, sW, sNonce, sSlow, sX, sSpin = 44, 45, 46, 47, 48, 49, 50
sT0, sT1, sT2, sT3, sT4, sT5 = 51, 52, 53, 54, 55, 56
sLn2, sXcc, sWi = 57, 58, 59
sN28, sHalf = 60, 62
sZm = 64
sMo, sD1 = 66, 67
sKA = 68
sEb, sLb, sC0, sC1, sHs, sFe = 68, 69, 70, 71, 72, 73
sBlk, sOst, sFo, sFoMy, sKv, sKvMy, sHE, sHL, sPE, sPL = 74, 75, 76, 77, 78, 79, 80, 81, 82, 83
sHst = 84
sRot = 85
sQ0, sQ1 = 86, 87
sFin, sRes = 28, 34
sPm = 88
sStamp = 90
sPC = 92

vLane, vL16, vDummy, vTr, vNonce, vMean, vRl, vW1X, _w1x1, vPoll, vPA = range(0, 11)
vT = 11
vStamp = 15
W2A = 0
W1A = 224
W1V = 176


def w1reg(k):
    return a(W1A + 4 * k, 4) if k < 8 else v(W1V + 4 * (k - 8), 4)


def w1half(k, hh):
    return a(W1A + 4 * k + 2 * hh, 2) if k < 8 else v(W1V + 4 * (k - 8) + 2 * hh, 2)


def flat(LL):
    return [x for L in LL for x in L]


def mfma(D, A, B, first=False):
    return mk('%s %s, %s, %s, %s' % (MF, v(D, 16), A, B, '0' if first else v(D, 16)))


class Gen:
    def __init__(self, stop=None, stamps=False, **opt):
        self.P = Prog()
        self.ool = []
        self.stop = stop
        self.stamps = stamps
        self.nstamp = 0
        self.stamp_names = []
        self.probe = opt.pop('probe', None)
        self.light = opt.pop('light', None)
        if self.light is not None:
            self.light = self.light.split('+')
            assert len(self.light) <= 5
        self.seen = {}
        self.o = dict(kvdelay=10, pollE=13, n3=6, st0=15, flagpos=8, gend=26, pollL=20, lateL=32, flag3=12, xbar=13, lead=16, look=6, pref=0, touch=1, codepf=1, rot=1, stnt=0, idlewq=0, reuse=1, npre=14, wqlate=84, pf0=1, nxb1=8, pfslot=50, w2fill=12, rest0=8, wb=0, wbblk=3, outf=0, idleh=1, idlew2=0, pfw2=1, woslot=42, tslot=84, latespan=24, strot=1, w1b2=70, look2=10, l1touch=0, xsc1=1, storder=0)
        self.o.update(opt)

    def srd(self, r):
        return s(r, 4)

    def stamp(self, name):
        if self.probe is not None:
            self.seen[name] = self.seen.get(name, 0) + 1
            if self.probe == '%s#%d' % (name, self.seen[name]):
                return [I('s_memrealtime s[94:95]', kind='block', states=1)]
            return []
        if not self.stamps:
            return []
        if self.light is not None:
            self.seen[name] = self.seen.get(name, 0) + 1
            key = '%s#%d' % (name, self.seen[name])
            if name == 'end':
                self.stamp_names.append('end')
                t = ['s_memtime s[88:89]', 's_waitcnt lgkmcnt(0)']
                for i, r in enumerate([100] + [90 + 2 * j for j in range(len(self.stamp_names) - 2)] + [88]):
                    t.append('v_writelane_b32 v%d, s%d, %d' % (vStamp, r, i))
                return [I('\n'.join(t), kind='block', drain_lgkm=True)]
            if name != 'start' and key not in self.light:
                return []
            r = 100 if name == 'start' else 90 + 2 * (len(self.stamp_names) - 1)
            self.stamp_names.append(key if name != 'start' else name)
            return [I('s_memtime s[%d:%d]' % (r, r + 1), kind='block')]
        i = self.nstamp
        self.nstamp += 1
        self.stamp_names.append(name)
        t = 's_memtime s[%d:%d]\ns_waitcnt lgkmcnt(0)\nv_writelane_b32 v%d, s%d, %d' % (sStamp, sStamp + 1, vStamp, sStamp, i)
        return [I(t, kind='block', dst=[], src=[], drain_lgkm=True, states=3)]

    def stores(self, lines):
        insts = mk('\n'.join(lines))
        src = [r for x in insts for r in x.src]
        wide = [r for x in insts for r in x.wide]
        ls, lb = self.P.newlabel('Lslow'), self.P.newlabel('Lback')
        txt = 's_cmp_lg_u32 s%d, 0\ns_cbranch_scc1 %s\n%s\n%s:' % (sSlow, ls, '\n'.join(lines), lb)
        self.ool.append('%s:\n%s\ns_branch %s' % (ls, '\n'.join(l + ' sc1' for l in lines), lb))
        return [I(txt, kind='block', src=src, nvm=len(lines), wide=wide, states=1, cost=8 + 4 * len(lines))]

    def flag(self, toks, soff, off=0):
        st = self.stores(['buffer_store_dword v%d, off, %s, s%d offset:%d' % (vNonce, self.srd(SRD_CL), soff, off)])[0]
        st.text = 's_mov_b64 exec, 1\n' + st.text + '\ns_mov_b64 exec, -1'
        st.cost += 8
        return [wait_tok(*toks), st]

    def poll_issue(self, soff):
        return mk('buffer_load_dword v%d, v%d, %s, s%d offen sc1' % (vPoll, vPA, self.srd(SRD_CL), soff))

    def poll_check(self, soff, sleep=0):
        ls, lb = self.P.newlabel('Lspin'), self.P.newlabel('Lgot')
        self.ool.append('\n'.join([
            '%s:' % ls,
            ('s_sleep %d' % sleep) if sleep else '',
            'buffer_load_dword v%d, v%d, %s, s%d offen sc1' % (vPoll, vPA, self.srd(SRD_CL), soff),
            's_add_u32 s%d, s%d, 1' % (sSpin, sSpin),
            's_cmp_gt_u32 s%d, 0x40000' % sSpin,
            's_cbranch_scc1 L_end',
            's_waitcnt vmcnt(0)',
            'v_cmp_ne_u32 vcc, s%d, v%d' % (sNonce, vPoll),
            's_cbranch_vccnz %s' % ls,
            's_branch %s' % lb]))
        c = mk('v_cmp_ne_u32 vcc, s%d, v%d' % (sNonce, vPoll))[0]
        return [I(c.text + '\ns_cbranch_vccnz %s\n%s:' % (ls, lb), kind='block', src=c.src, dst=c.dst, states=2, cost=8)]

    def pa(self, n, blocks=False):
        L = 'v_and_b32 v%d, %d, v0\n' % (vPA, 15 if n <= 16 else 31)
        if n not in (16, 32):
            L += 'v_min_u32 v%d, %d, v%d\n' % (vPA, n - 1, vPA)
        L += 'v_lshlrev_b32 v%d, 2, v%d\n' % (vPA, vPA)
        if blocks:
            L += 'v_lshrrev_b32 v%d, 4, v0\nv_lshl_add_u32 v%d, v%d, 7, v%d' % (vT + 3, vPA, vT + 3, vPA)
        return mk(L)

    def trbase(self, dst, RS, kh, add=0, xor16=None):
        t = vT
        L = ['v_lshrrev_b32 v%d, 5, v%d' % (dst, vLane),
             'v_mul_u32_u24 v%d, %d, v%d' % (dst, kh, dst),
             'v_bfe_u32 v%d, v%d, 2, 2' % (t, vLane),
             'v_add_u32 v%d, v%d, v%d' % (dst, dst, t),
             'v_mul_u32_u24 v%d, %d, v%d' % (dst, RS, dst),
             'v_bfe_u32 v%d, v%d, 4, 1' % (t, vLane)]
        if xor16 is not None:
            L.append('v_xor_b32 v%d, s%d, v%d' % (t, xor16, t))
        L += ['v_lshl_add_u32 v%d, v%d, 5, v%d' % (dst, t, dst),
              'v_and_b32 v%d, 3, v%d' % (t, vLane),
              'v_lshl_add_u32 v%d, v%d, 3, v%d' % (dst, t, dst)]
        if add:
            L.append('v_add_u32 v%d, %d, v%d' % (dst, add, dst))
        return mk('\n'.join(L))

    def frag_loads(self, dsts, srd, sbase, const0, stride=1024, flags='', st=sT0):
        out = []
        cur = None
        for i, d in enumerate(dsts):
            off = const0 + i * stride
            grp = []
            if cur is None or not (0 <= off - cur <= 4095):
                cur = off
                grp += mk('s_add_u32 s%d, s%d, %d' % (st, sbase, off))
            grp += mk('buffer_load_dwordx4 %s, v%d, %s, s%d offen offset:%d %s' % (d, vL16, self.srd(srd), st, off - cur, flags))
            out.append(grp)
        return out

    def stats_finish(self, acc, double_ln):
        t1, t2 = vT + 1, vT + 2
        L = ['v_mov_b32 v%d, v%d' % (t1, acc),
             'v_mov_b32 v%d, v%d' % (vMean, acc),
             'v_permlane32_swap_b32 v%d, v%d' % (vMean, t1),
             'v_mul_f32 v%d, %s, v%d' % (vMean, f32(1.0 / 448), vMean),
             'v_mul_f32 v%d, %s, v%d' % (t1, f32(1.0 / 448), t1),
             'v_fma_f32 v%d, -v%d, v%d, v%d' % (t1, vMean, vMean, t1),
             'v_max_f32 v%d, 0, v%d' % (t1, t1),
             'v_add_f32 v%d, %s, v%d' % (t2, f32(1e-5), t1),
             'v_rsq_f32 v%d, v%d' % (vRl, t2)]
        if double_ln:
            L += ['v_mul_f32 v%d, v%d, v%d' % (t2, vRl, vRl),
                  'v_fmaak_f32 v%d, v%d, v%d, %s' % (t1, t1, t2, f32(1e-5)),
                  'v_rsq_f32 v%d, v%d' % (t1, t1),
                  'v_mul_f32 v%d, v%d, v%d' % (vRl, vRl, t1)]
        else:
            L += ['v_mul_f32 v%d, %s, v%d' % (vRl, f32(LOG2E), vRl)]
        return mk('\n'.join(L))

    def split_act(self, d0, val, t):
        return mk('\n'.join([
            'v_cvt_pk_bf16_f32 v%d, v%d, v%d' % (d0 + 1, val, val),
            'v_and_b32 v%d, 0xffff0000, v%d' % (t, d0 + 1),
            'v_sub_f32 v%d, v%d, v%d' % (t, val, t),
            'v_cvt_pk_bf16_f32 v%d, v%d, v%d' % (d0, val, t),
            'v_and_b32 v%d, 0xffff, v%d' % (d0 + 1, d0 + 1),
            'v_cndmask_b32 v%d, v%d, 0, s[%d:%d]' % (d0 + 1, d0 + 1, sHalf, sHalf + 1)]))

    def split_w(self, d0, val, t):
        return mk('\n'.join([
            'v_cvt_pk_bf16_f32 v%d, v%d, v%d' % (d0, val, val),
            'v_and_b32 v%d, 0xffff0000, v%d' % (t, d0),
            'v_sub_f32 v%d, v%d, v%d' % (t, val, t),
            'v_cvt_pk_bf16_f32 v%d, v%d, 0' % (d0 + 1, t)]))

    def phi8(self, r0, R, T, eps):
        L = ['v_pk_mul_f32 %s, %s, %s' % (v(r0 + i, 2), v(r0 + i, 2), R(i)) for i in range(0, 8, 2)]
        for i in range(8):
            L += ['v_exp_f32 v%d, v%d clamp' % (T + i, r0 + i), 'v_max_f32 v%d, 0, v%d' % (r0 + i, r0 + i)]
        L += ['v_pk_fma_f32 %s, %s, s[%d:%d], %s op_sel:[0,1,0] op_sel_hi:[1,1,1]' % (v(r0 + i, 2), v(r0 + i, 2), sLn2 - 1, sLn2, v(T + i, 2)) for i in range(0, 8, 2)]
        L += ['v_pk_add_f32 %s, %s, %s op_sel_hi:[1,0]' % (v(r0 + i, 2), v(r0 + i, 2), v(eps, 2)) for i in range(0, 8, 2)]
        return mk('\n'.join(L))

    def pack(self, dst, src, n):
        return mk('\n'.join('v_cvt_pk_bf16_f32 v%d, v%d, v%d' % (dst + i, src + 2 * i, src + 2 * i + 1) for i in range(n)))

    def unpack(self, dst, src, n):
        L = []
        for i in reversed(range(n)):
            L.append('v_and_b32 v%d, 0xffff0000, v%d' % (dst + 2 * i + 1, src + i))
            L.append('v_lshlrev_b32 v%d, 16, v%d' % (dst + 2 * i, src + i))
        return mk('\n'.join(L))

    def dots(self, regs, acc, ones, first):
        L = []
        for i, r in enumerate(regs):
            z = first and i == 0
            L.append('v_dot2_f32_bf16 v%d, v%d, v%d, %s' % (acc, r, ones, '0' if z else 'v%d' % acc))
            L.append('v_dot2_f32_bf16 v%d, v%d, v%d, %s' % (acc + 1, r, r, '0' if z else 'v%d' % (acc + 1)))
        return mk('\n'.join(L))

    def dots_end(self, acc):
        return mk('v_permlane32_swap_b32 v%d, v%d\nv_add_f32 v%d, v%d, v%d' % (acc, acc + 1, acc, acc, acc + 1))

    def row_stats(self, src, n, acc, ones):
        return mk('v_mov_b32 v%d, 0x3f803f80' % ones) + self.dots(range(src, src + n), acc, ones, True) + self.dots_end(acc)

    def kv_lane_addr(self, d, t, u, gather):
        L = []
        if gather:
            L += ['v_and_b32 v%d, 31, v0' % t, 'v_lshrrev_b32 v%d, 5, v0' % d]
        else:
            L += ['v_lshrrev_b32 v%d, 5, v0' % t, 'v_and_b32 v%d, 15, v0' % u, 'v_lshl_add_u32 v%d, v%d, 1, v%d' % (t, u, t), 'v_bfe_u32 v%d, v0, 4, 1' % d]
        L += ['v_lshrrev_b32 v%d, 3, v%d' % (u, t), 'v_sub_u32 v%d, v%d, v%d' % (u, t, u)]
        if not gather:
            L += ['v_and_b32 v%d, 7, v%d' % (t, t), 'v_cmp_eq_u32 vcc, 7, v%d' % t, 'v_cndmask_b32 v%d, v%d, 31, vcc' % (u, u)]
        L += ['v_lshl_add_u32 v%d, v%d, 5, v%d' % (d, d, u)]
        sh, qs, base = (4, 10, L_KVS) if gather else (5, 3, L_KVB)
        L += ['s_lshl_b32 s%d, s%d, %d' % (sT2, sW, qs), 'v_lshlrev_b32 v%d, %d, v%d' % (d, sh, d), 'v_add_u32 v%d, s%d, v%d' % (d, sT2, d)]
        L += ['v_and_b32 v%d, 1, v%d' % (t, u), 'v_lshlrev_b32 v%d, %d, v%d' % (t, 5 + sh, t), 'v_lshrrev_b32 v%d, 1, v%d' % (u, u)]
        L += ['v_cmp_gt_u32 vcc, 4, v%d' % u]
        L += ['v_lshl_add_u32 v%d, v%d, %d, v%d' % (t, u, qs, t), 'v_add_u32 v%d, %d, v%d' % (t, 28 << sh, t)]
        L += ['s_and_b64 vcc, vcc, s[%d:%d]' % ((sZm, sZm + 1) if gather else (sPm, sPm + 1)), 'v_cndmask_b32 v%d, v%d, v%d, vcc' % (d, d, t),
              'v_add_u32 v%d, %d, v%d' % (d, base, d)]
        return mk('\n'.join(L))

    def wq_dma(self, groups, vq, rot=False):
        out = []
        for t in groups:
            for p in range(3):
                g = []
                if p == 0:
                    if rot:
                        g += mk('s_add_u32 s%d, s%d, %d\ns_cmp_ge_u32 s%d, 7\ns_cselect_b32 s%d, 7, 0\ns_sub_u32 s%d, s%d, s%d\ns_lshl_b32 s%d, s%d, 2\ns_add_u32 s%d, s%d, s%d'
                                % (sQ1, sRot, t, sQ1, sQ0, sQ1, sQ1, sQ0, sQ1, sQ1, sQ1, sQ1, sW))
                    else:
                        g += mk('s_add_u32 s%d, s%d, %d' % (sQ1, sW, 4 * t))
                    g += mk('s_mul_i32 s%d, s%d, %d\ns_mul_i32 s%d, s%d, 3072' % (sQ0, sQ1, 16 * 2688, sQ1, sQ1))
                g += mk('s_add_u32 m0, s%d, %d' % (sQ1, L_WQ + 1024 * p))
                g += mk('buffer_load_dwordx4 v%d, %s, s%d offen lds' % (vq[p] if isinstance(vq, tuple) else vq + p, self.srd(SRD_WQ), sQ0))
                out.append(g)
        return out

    def wq_addr(self, vq):
        L = ['s_mul_i32 s%d, s%d, 56' % (sT2, sM)]
        t, u = vT, vT + 1
        for p in range(3):
            d = vq + p
            L += ['v_add_u32 v%d, %d, v%d' % (t, 64 * p, vLane),
                  'v_mul_u32_u24 v%d, 0x1556, v%d' % (d, t),
                  'v_lshrrev_b32 v%d, 16, v%d' % (d, d),
                  'v_mul_u32_u24 v%d, 12, v%d' % (u, d),
                  'v_sub_u32 v%d, v%d, v%d' % (t, t, u),
                  'v_mul_u32_u24 v%d, 2688, v%d' % (d, d),
                  'v_lshrrev_b32 v%d, 2, v%d' % (u, t),
                  'v_mul_u32_u24 v%d, 896, v%d' % (u, u),
                  'v_add3_u32 v%d, v%d, v%d, s%d' % (d, d, u, sT2),
                  'v_and_b32 v%d, 3, v%d' % (t, t),
                  'v_lshl_add_u32 v%d, v%d, 4, v%d' % (d, t, d)]
        return mk('\n'.join(L))

    def touch(self, items, va):
        if not self.o['touch']:
            return []
        txt = ['v_lshlrev_b32 v%d, 7, v0' % va]
        cur = None
        n = 0
        for nl, srd, sg, c in items:
            if nl != cur:
                txt.append('s_mov_b64 exec, 0x%x' % ((1 << nl) - 1))
                cur = nl
            txt.append('s_add_u32 s%d, s%d, %d' % (sT2, sg, c) if sg is not None else 's_mov_b32 s%d, %d' % (sT2, c))
            txt.append('buffer_load_dword v%d, v%d, %s, s%d offen sc1' % (vDummy, va, self.srd(srd), sT2))
            n += 1
        txt.append('s_mov_b64 exec, -1')
        return [I('\n'.join(txt), kind='block', nvm=n, dst=[('v', va)], src=[('v', 0)], states=1, cost=12 * n)]

    def touch_attn(self, lo, va):
        pre = mk('s_lshr_b32 s%d, s%d, 2\ns_lshl_b32 s%d, s%d, 10\ns_add_u32 s%d, s%d, s%d' % (sT1, sM, sT1, sT1, sT1, sT1, sBlk))
        return pre + self.touch([(16, SRD_CL, sOst, lo), (16, SRD_CL, sOst, lo + X1_OFF), (8, SRD_CL, sT1, lo + X1_OFF + 28672),
                                 (28, SRD_CL, None, lo + FL_OFF)], va)

    def prefetch(self, va):
        nl = self.o['pref']
        if not nl:
            return []
        txt = 'v_lshlrev_b32 v%d, 7, v0\ns_mul_i32 s%d, s%d, %d\n' % (va, sT2, sWi, nl * 128)
        txt += 's_mov_b32 exec_lo, 0x%x\ns_mov_b32 exec_hi, 0x%x\n' % (((1 << nl) - 1) & 0xffffffff, ((1 << nl) - 1) >> 32)
        txt += 'buffer_load_dword v%d, v%d, %s, s%d offen\ns_mov_b64 exec, -1' % (vDummy, va, self.srd(SRD_W1), sT2)
        return [I(txt, kind='block', nvm=1, src=[('v', 0)], dst=[('v', va)])]

    def idle_work(self):
        va = vT
        l = self.P.newlabel('Lnowarm')
        T = ['s_cmp_lg_u32 s%d, 0' % sSlow, 's_cbranch_scc1 %s' % l,
             'v_lshlrev_b32 v%d, 7, v0' % va,
             's_and_b32 s%d, s%d, 1' % (sT0, sM), 's_lshl_b32 s%d, s%d, 2' % (sT0, sT0), 's_add_u32 s%d, s%d, s%d' % (sT0, sT0, sW)]
        ld = lambda srd, fl: 'buffer_load_dword v%d, v%d, %s, s%d offen %s' % (vDummy, va, self.srd(srd), sT2, fl)
        if self.o['idleh']:
            for i in range(7):
                T += ['s_lshl_b32 s%d, s%d, 13' % (sT2, sT0), 's_add_u32 s%d, s%d, %d' % (sT2, sT2, H_OFF + i * 65536), ld(SRD_CL, 'sc1')]
        if self.o['idlew2']:
            T += ['s_lshr_b32 s%d, s%d, 3' % (sT1, sC), 's_lshl_b32 s%d, s%d, 3' % (sT1, sT1), 's_add_u32 s%d, s%d, s%d' % (sT1, sT1, sT0),
                  's_lshl_b32 s%d, s%d, 13' % (sT1, sT1), 's_and_b32 s%d, s%d, 7' % (sT2, sC), 's_mul_i32 s%d, s%d, %d' % (sT2, sT2, 1568 * 128),
                  's_add_u32 s%d, s%d, s%d' % (sT2, sT2, sT1)]
            for i in range(13):
                T += [ld(SRD_W2, ''), 's_add_u32 s%d, s%d, 131072' % (sT2, sT2), 's_cmp_ge_u32 s%d, %d' % (sT2, 13 * 131072),
                      's_cselect_b32 s%d, %d, 0' % (sT3, 13 * 131072), 's_sub_u32 s%d, s%d, s%d' % (sT2, sT2, sT3)]
        for i in range(3):
            T += ['s_lshl_b32 s%d, s%d, 13' % (sT2, sT0), 's_add_u32 s%d, s%d, %d' % (sT2, sT2, XIN_OFF + i * 65536)]
            if i == 2:
                T += ['s_min_u32 s%d, s%d, %d' % (sT2, sT2, FL_OFF - 8192)]
            T += [ld(SRD_CL, 'sc1')]
        T += [l + ':']
        return '\n'.join(T)

    def prologue(self):
        P = self.P
        o = self.o
        P('s_cmp_ge_u32 s2, 256\ns_cbranch_scc1 L_end')
        if self.probe is not None:
            P.add([I('s_memrealtime s[96:97]\ns_memrealtime s[94:95]', kind='block', states=1)])
        P('s_load_dwordx16 s[%d:%d], s[0:1], 0' % (sKA, sKA + 15))
        P('s_load_dwordx4 s[%d:%d], s[0:1], 64' % (sKA + 16, sKA + 19))
        P('s_load_dwordx2 s[%d:%d], s[0:1], 80' % (sKA + 20, sKA + 21))
        P('v_lshrrev_b32 v%d, 6, v0\nv_and_b32 v0, 63, v0\nv_readfirstlane_b32 s%d, v%d' % (vT, sW, vT))
        P('s_lshr_b32 s%d, s2, 3\ns_lshl_b32 s%d, s%d, 2\ns_add_u32 s%d, s%d, s%d' % (sM, sWi, sM, sWi, sWi, sW))
        if o['codepf']:
            P.add([I('s_getpc_b64 s[%d:%d]\nL_pc:' % (sPC, sPC + 1), kind='block', dst=[], states=1)])
            P('s_lshl_b32 s%d, s%d, 9\nv_lshlrev_b32 v%d, 7, v0\nv_add_u32 v%d, s%d, v%d' % (sT0, sWi, vT, vT, sT0, vT))
            P.add([I('v_min_u32 v%d, L_code_end-L_pc-4, v%d\ns_mov_b64 exec, 15\nglobal_load_dword v%d, v%d, s[%d:%d]\ns_mov_b64 exec, -1'
                     % (vT, vT, vDummy, vT, sPC, sPC + 1), kind='block', dst=[('v', vT)], src=[('v', vT)], nvm=1)])
        P('s_and_b32 s%d, s2, 7\ns_lshr_b32 s%d, s%d, 4\ns_lshl_b32 s%d, s%d, 3\ns_add_u32 s%d, s%d, s%d\ns_and_b32 s%d, s%d, 15'
          % (sC, sT0, sM, sT0, sT0, sC, sC, sT0, sM, sM))
        P('v_lshlrev_b32 v%d, 4, v0' % vL16)
        if self.stamps:
            P('v_mov_b32 v%d, 0' % vStamp)
            P.add(self.stamp('start'))
            P('s_memrealtime s[%d:%d]\ns_waitcnt lgkmcnt(0)\nv_writelane_b32 v%d, s%d, 62' % (sStamp, sStamp + 1, vStamp, sStamp))
        P('s_lshl_b32 s%d, s%d, 2\ns_add_u32 s%d, s%d, s%d\ns_mul_i32 s%d, s%d, %d' % (sX, sC, sX, sX, sW, sX, sX, 32 * 896))
        vq, vxb, vxh, vxa, vrd = 160, 163, 164, 165, 167
        P('v_lshrrev_b32 v%d, 5, v0\nv_and_b32 v%d, 31, v0\nv_xor_b32 v%d, v%d, v%d\nv_lshlrev_b32 v%d, 4, v%d\nv_mul_u32_u24 v%d, 896, v%d'
          % (vxh, vT, vxb, vT, vxh, vxb, vxb, vxh, vxh))
        ka = sKA

        def mksrd(r, p, size):
            P('s_mov_b32 s%d, s%d\ns_mov_b32 s%d, s%d\ns_mov_b32 s%d, %d\ns_mov_b32 s%d, 0x20000' % (r, p, r + 1, p + 1, r + 2, size, r + 3))
        P('s_lshl_b32 s%d, s%d, 14\ns_add_u32 s%d, s%d, %d' % (sT5, sW, sT5, sT5, L_XS))
        mksrd(SRD_X, ka + 0, 2048 * 896)

        def xdma(half):
            out = []
            for i in range(16):
                if half:
                    g = mk('s_mov_b32 s%d, %d\nv_xad_u32 v%d, v%d, s%d, v%d' % (sT0, ((2 * i) & 15) << 4, vxa + (i & 1), vxb, sT0, vxh))
                    g += mk('s_add_u32 s%d, s%d, %d\ns_add_u32 m0, s%d, %d' % (sT1, sX, 2 * i * 896 + 512, sT5, 1024 * i))
                    out.append(g + mk('buffer_load_dwordx4 v%d, %s, s%d offen lds' % (vxa + (i & 1), self.srd(SRD_X), sT1)))
                    continue
                g = mk('s_add_u32 s%d, s%d, %d\ns_and_b32 s%d, s%d, 15' % (sT4, sM, i, sT4, sT4) if o['rot'] else 's_mov_b32 s%d, %d' % (sT4, i))
                g += mk('s_lshl_b32 s%d, s%d, 5\ns_and_b32 s%d, s%d, 0xf0\nv_xad_u32 v%d, v%d, s%d, v%d' % (sT0, sT4, sT0, sT0, vxa + (i & 1), vxb, sT0, vxh))
                g += mk('s_mul_i32 s%d, s%d, 1792\ns_add_u32 s%d, s%d, s%d\ns_lshl_b32 s%d, s%d, 10\ns_add_u32 m0, s%d, s%d' % (sT1, sT4, sT1, sT1, sX, sT4, sT4, sT4, sT5))
                g += mk('buffer_load_dwordx4 v%d, %s, s%d offen lds' % (vxa + (i & 1), self.srd(SRD_X), sT1))
                out.append(g)
            return out
        mksrd(SRD_WQ, ka + 2, 448 * 2688)
        if o['pf0']:
            P('v_lshlrev_b32 v%d, 7, v0\ns_lshl_b32 s%d, s%d, 2\ns_add_u32 s%d, s%d, s%d\ns_mul_i32 s%d, s%d, %d\ns_mul_i32 s%d, s%d, %d\ns_add_u32 s%d, s%d, s%d\ns_mul_i32 s%d, s%d, %d'
              % (vxa, sT0, sM, sT0, sT0, sW, sT0, sT0, 14 * 128, sT1, sC, 128 * 896, sT0, sT0, sT1, sT1, sWi, 74 * 128))
            P.add([I('s_mov_b64 exec, 0x3fff\nbuffer_load_dword v%d, v%d, %s, s%d offen\ns_mov_b64 exec, -1\nbuffer_load_dword v%d, v%d, %s, s%d offen\n'
                     's_add_u32 s%d, s%d, 8192\ns_mov_b64 exec, 0x3ff\nbuffer_load_dword v%d, v%d, %s, s%d offen\ns_mov_b64 exec, -1'
                     % (vDummy, vxa, self.srd(SRD_X), sT0, vDummy, vxa, self.srd(SRD_WQ), sT1, sT1, sT1, vDummy, vxa, self.srd(SRD_WQ), sT1),
                     kind='block', nvm=3, src=[('v', vxa)])])
        body = [x.text for x in xdma(0)[0]]
        body[0] = 's_add_u32 s%d, s%d, s%d' % (sT4, sM, sT2) if o['rot'] else 's_mov_b32 s%d, s%d' % (sT4, sT2)
        loop = I('\n'.join(['s_mov_b32 s%d, 0' % sT2, 'L_xa:'] + body[:-1] + ['s_add_u32 s%d, s%d, 1' % (sT2, sT2), 's_cmp_lt_u32 s%d, 16' % sT2, body[-1],
                                                                            's_cbranch_scc1 L_xa']), kind='block', nvm=16, src=[('v', vxb), ('v', vxh)] + regs_of(s(SRD_X, 4)), dst=[('v', vxa)])
        tA = tok(loop)
        P.add([loop])
        P('s_load_dword s%d, s[%d:%d], 0' % (sNonce, ka + 20, ka + 21))
        P.add(self.wq_addr(vq))
        mksrd(SRD_OUT, ka + 16, 2048 * 896)
        wq = self.wq_dma(range(7), vq)
        self.tok_wq1, self.tok_wq = tok(wq[11][-1]), tok(wq[-1][-1])
        P.add(flat(wq[:12]))
        mksrd(SRD_WO, ka + 4, 448 * 896)
        mksrd(SRD_W1, ka + 8, 448 * 3584)
        P('s_cmp_lt_u32 s%d, 14\ns_cselect_b32 s%d, s%d, 0\ns_cselect_b32 s%d, s%d, 0' % (sM, SRD_WO + 2, SRD_WO + 2, SRD_W1 + 2, SRD_W1 + 2))
        mksrd(SRD_B1, ka + 10, 3584)
        mksrd(SRD_W2, ka + 12, 1792 * 896)
        mksrd(SRD_B2, ka + 14, 896)
        mksrd(SRD_WS, ka + 20, WS_CL)
        P('s_lshl_b32 s%d, s%d, 21\ns_add_u32 s%d, s%d, %d' % (sT0, sC, sT0, sT0, WS_CL))
        P('s_add_u32 s%d, s%d, s%d\ns_addc_u32 s%d, s%d, 0\ns_mov_b32 s%d, 0x200000\ns_mov_b32 s%d, 0x20000'
          % (SRD_CL, ka + 20, sT0, SRD_CL + 1, ka + 21, SRD_CL + 2, SRD_CL + 3))
        P('s_mov_b32 s%d, %s\ns_mov_b32 s%d, 0\ns_mov_b32 s%d, -1' % (sLn2, f32(LN2), sHalf, sHalf + 1))
        P('s_mov_b32 s%d, 0x10000000\ns_mov_b32 s%d, 0x10000000\ns_mov_b32 s%d, 0' % (sN28, sN28 + 1, sSpin))
        P('s_getreg_b32 s%d, hwreg(HW_REG_XCC_ID, 0, 4)' % sXcc)
        P('s_and_b32 s%d, s%d, 1\ns_sub_u32 s%d, 3, s%d' % (sEb, sM, sLb, sEb))
        P('s_cmp_eq_u32 s%d, 3\ns_cselect_b32 s%d, -1, 0\ns_mov_b32 s%d, 0' % (sW, sZm + 1, sZm))
        P('s_lshr_b32 s%d, s%d, 3\ns_lshl_b32 s%d, s%d, 1\ns_add_u32 s%d, s%d, s%d\ns_mul_i32 s%d, s%d, 7\ns_add_u32 s%d, s%d, 1\ns_lshr_b32 s%d, s%d, 1'
          % (sD1, sC, sMo, sD1, sMo, sMo, sEb, sMo, sMo, sMo, sMo, sMo, sMo))
        if not o['strot']:
            P('s_mov_b32 s%d, 0\ns_mov_b32 s%d, 0' % (sMo, sD1))
        c0 = -2.0 * 0.7978845608028654 * LOG2E
        P('s_mov_b32 s%d, %s\ns_mov_b32 s%d, %s' % (sC0, f32(c0), sC1, f32(c0 * 0.044715)))
        P('s_lshr_b32 s%d, s%d, 1\ns_lshl_b32 s%d, s%d, 2\ns_and_b32 s%d, s%d, 1\ns_lshl_b32 s%d, s%d, 1\ns_add_u32 s%d, s%d, s%d\ns_lshr_b32 s%d, s%d, 1\ns_add_u32 s%d, s%d, s%d'
          % (sFe, sM, sFe, sFe, sT0, sW, sT0, sT0, sFe, sFe, sT0, sT0, sW, sFe, sFe, sT0))
        P('s_lshl_b32 s%d, s%d, 15\ns_lshl_b32 s%d, s%d, 11\ns_add_u32 s%d, s%d, s%d' % (sBlk, sW, sOst, sM, sOst, sOst, sBlk))
        P('s_lshl_b32 s%d, s%d, 7\ns_add_u32 s%d, s%d, %d\ns_lshl_b32 s%d, s%d, 2\ns_add_u32 s%d, s%d, s%d' % (sFo, sW, sFo, sFo, FL_OFF, sT0, sM, sFoMy, sFo, sT0))
        P('s_lshl_b32 s%d, s%d, 2\ns_add_u32 s%d, s%d, s%d\ns_mul_i32 s%d, s%d, %d\ns_add_u32 s%d, s%d, %d' % (sT1, sM, sT1, sT1, sW, sKv, sT1, KVP_CH, sKv, sKv, WS_KVP))
        P('s_lshl_b32 s%d, s%d, 9\ns_add_u32 s%d, s%d, s%d' % (sKvMy, sC, sKvMy, sKvMy, sKv))
        P('s_lshl_b32 s%d, s%d, 11\ns_add_u32 s%d, s%d, %d' % (sHst, sT1, sHst, sHst, H_OFF))
        P('s_lshl_b32 s%d, s%d, 11\ns_add_u32 s%d, s%d, %d' % (sT1, sW, sT1, sT1, H_OFF))
        P('s_mul_i32 s%d, s%d, 114688\ns_add_u32 s%d, s%d, s%d\ns_mul_i32 s%d, s%d, 114688\ns_add_u32 s%d, s%d, s%d' % (sHE, sEb, sHE, sHE, sT1, sHL, sLb, sHL, sHL, sT1))
        P('s_lshl_b32 s%d, s%d, 9\ns_add_u32 s%d, s%d, s%d\ns_add_u32 s%d, s%d, %d' % (sPE, sEb, sPE, sPE, sFo, sPE, sPE, FH - FL_OFF))
        P('s_lshl_b32 s%d, s%d, 9\ns_add_u32 s%d, s%d, s%d\ns_add_u32 s%d, s%d, %d' % (sPL, sLb, sPL, sPL, sFo, sPL, sPL, FH - FL_OFF))
        self.xreg0 = xr = [16 + 4 * i if i < 20 else 176 + 4 * (i - 20) for i in range(28)]
        P('v_and_b32 v%d, 15, v0\nv_lshrrev_b32 v%d, 5, v0\nv_xor_b32 v%d, v%d, v%d\nv_lshlrev_b32 v%d, 4, v%d\nv_and_b32 v%d, 31, v0\nv_lshl_add_u32 v%d, v%d, 9, v%d\nv_add_u32 v%d, s%d, v%d'
          % (vT, vrd, vrd, vrd, vT, vrd, vrd, vT, vrd, vT, vrd, vrd, sT5, vrd))
        xrd = lambda k: mk('v_xor_b32 v%d, %d, v%d\nds_read_b128 %s, v%d' % (vrd + 1 + (k & 1), 32 * (k & 15), vrd, v(xr[k], 4), vrd + 1 + (k & 1)))
        vrs = vrd + 3
        P('v_and_b32 v%d, 15, v0\nv_lshlrev_b32 v%d, 4, v%d\nv_lshrrev_b32 v%d, 5, v0\nv_lshl_add_u32 v%d, v%d, 3, v%d\nv_and_b32 v%d, 31, v0\nv_lshl_add_u32 v%d, v%d, 9, v%d\nv_add_u32 v%d, s%d, v%d'
          % (vrs, vrs, vrs, vT, vrs, vT, vrs, vT, vrs, vT, vrs, vrs, sT5, vrs))
        P('s_and_b32 s%d, s%d, 7\ns_lshl_b32 s%d, s%d, 6\nv_xor_b32 v%d, s%d, v%d' % (sT0, sM, sT0, sT0, vrs, sT0, vrs))

        def resrd(half):
            l = P.newlabel('Lres')
            t = ['s_cmp_%s_u32 s%d, 8' % ('lt' if half else 'ge', sM), 's_cbranch_scc1 %s' % l]
            for g in range(4):
                t += ['v_xor_b32 v%d, %d, v%d' % (vrs + 1, 16 * g, vrs), 'ds_read_b64 %s, v%d' % (a(216 + 2 * g, 2), vrs + 1)]
            return [I('\n'.join(t + [l + ':']), kind='block', src=[('v', vrs)], dst=[('v', vrs + 1)])]
        P.add(self.stamp('issued'))
        P.add([wait_tok(tA)])
        P.add(self.stamp('xA'))
        for k in range(16):
            P.add(xrd(k))
        P.add(resrd(0))
        vS, vOne = vT + 2, vT + 1
        P('v_mov_b32 v%d, 0x3f803f80\ns_waitcnt lgkmcnt(0)' % vOne)
        xb = xdma(1)
        self.tok_xb = tok(xb[-1][-1])
        d = self.dots([xr[k] + i for k in range(16) for i in range(4)], vS, vOne, True)
        P.add(spread(xb[:o['nxb1']], d))
        self.late_dma = xb[o['nxb1']:] + wq[12:]
        self.late_rd = [xrd(k) for k in range(16, 28)] + [resrd(1)]
        self.late_dots = self.dots([xr[k] + i for k in range(16, 28) for i in range(4)], vS, vOne, False) + self.dots_end(vS)
        P('s_add_u32 s%d, s%d, 0x01010101' % (sNonce, sNonce))
        P('v_mov_b32 v%d, s%d' % (vNonce, sNonce))
        P('s_lshl_b32 s%d, s%d, 4\ns_add_u32 s%d, s%d, s%d\ns_lshl_b32 s%d, s%d, 7\ns_add_u32 s%d, s%d, %d'
          % (sT2, sC, sT2, sT2, sM, sT2, sT2, sT2, sT2, WS_XCC))
        P('s_add_u32 s%d, s%d, s%d\nv_mov_b32 v%d, s%d\ns_mov_b64 exec, 1' % (sT3, sNonce, sXcc, vT, sT3))
        P('buffer_store_dword v%d, off, %s, s%d sc1' % (vT, self.srd(SRD_WS), sT2))
        P('s_mov_b64 exec, -1')

    def s1(self, l):
        P = self.P
        o = self.o
        AK, AV, AQ, WB, SB = 96, 112, 128, 144, 160
        RLB, XE = SB, SB + 8
        NB = 4
        vS = vT + 2
        P.comment('==== layer %d : S1' % l)
        d2 = 4 * 192 if l == 0 else 8 * 192
        fin = self.stats_finish(vS, False)
        fin += mk('s_lshl_b32 s%d, s%d, 12\ns_add_u32 s%d, s%d, %d' % (sT4, sW, sT4, sT4, L_KVS))
        bounce = mk('v_and_b32 v%d, 31, v0\nv_lshl_add_u32 v%d, v%d, 2, s%d\nds_write_b32 v%d, v%d' % (vT + 1, vT + 1, vT + 1, sT4, vT + 1, vRl))
        fin += bounce
        fin += mk('v_sub_f32 v%d, 0, v%d' % (vMean, vMean)) + self.split_act(XE, vMean, vT)
        fin += mk('v_cndmask_b32 v%d, v%d, 0, s[%d:%d]\nv_mov_b32 v%d, 0\nv_mov_b32 v%d, 0' % (XE, XE, sHalf, sHalf + 1, XE + 2, XE + 3))
        if l == 0:
            xreg = self.xreg0
            P.add(self.trbase(vTr, 192, 8, add=L_WQ))
            P.add([wait_tok(self.tok_wq1)])
            P('s_barrier')
            P.add(self.stamp('wq_ready'))
            lds = []
        else:
            xreg = [16 + 4 * (i % 20) for i in range(28)]
            P.add(self.pa(28))
            P('s_add_u32 s%d, s%d, %d' % (sT4, sFo, FXIN - FL_OFF))
            P.add(self.poll_issue(sT4))
            P('s_mul_i32 s%d, s%d, %d' % (sT5, sW, XIN_BS))
            P.add(self.trbase(vTr, 192, 4, add=L_WQ))
            lds = self.frag_loads([v(r, 4) for r in xreg], SRD_CL, sT5, XIN_OFF)
        jobs = []
        for k in range(28):
            if l == 0 and k == 16:
                jobs += [(t.upper(), kk) for kk in range(7) for t in 'qkv']
            jobs += [('k', k), ('v', k)] + ([('q', k)] if k < 8 else [])
        jobs += [('k', 'e'), ('v', 'e')]
        nmain = len(jobs)
        jobs += [('q', k) for k in range(8, 28)] + [('q', 'e')]
        vTr2, vCs = vT + 3, vPA
        vo, vb, CSA = RLB, RLB + 4, 208

        def rd(j):
            t, k = jobs[j]
            b = WB + 4 * (j % NB)
            if k == 'e':
                return mk('ds_read_b64 %s, v%d offset:%d\nv_mov_b32 v%d, 0\nv_mov_b32 v%d, 0' % (v(b, 2), vCs, 256 * 'qkv'.index(t), b + 2, b + 3))
            base, off = (vb, k * 3072) if t.isupper() else (vTr, k * 3072) if k < 16 else (vTr2, (k - 16) * 3072)
            off += 64 * 'qkv'.index(t.lower())
            return mk('ds_read_b64_tr_b16 %s, v%d offset:%d\nds_read_b64_tr_b16 %s, v%d offset:%d' % (v(b, 2), base, off, v(b + 2, 2), base, off + d2))
        tr2 = mk('v_add_u32 v%d, %d, v%d' % (vTr2, 16 * 3072, vTr))
        if l == 1:
            P.add(tr2)
        for j in range(NB):
            P.add(rd(j))
        if l == 1:
            P.add(self.poll_check(sT4))
            P.add(self.stamp('x2_seen'))
            P.add(flat(lds[:o['look']]))
            P('s_add_u32 s%d, s%d, 1\nv_mov_b32 v%d, s%d' % (sNonce, sNonce, vNonce, sNonce))
        P('v_and_b32 v%d, 31, v0\nv_lshlrev_b32 v%d, 3, v%d\nv_add_u32 v%d, %d, v%d' % (vCs, vCs, vCs, vCs, L_CS, vCs))
        slots = []
        for j, (t, k) in enumerate(jobs):
            w = v(WB + 4 * (j % NB), 4)
            if t.isupper():
                sl = mfma(CSA + 16 * 'QKV'.index(t), v(vo, 4), w, k == 0)
            else:
                x = v(XE if k == 'e' else xreg[k], 4)
                A, B = (w, x) if t == 'q' else (x, w)
                sl = mfma({'q': AQ, 'k': AK, 'v': AV}[t], A, B, k == 0)
            if l == 0 and j == 40 - NB:
                sl += [wait_tok(self.tok_wq)] + mk('s_waitcnt lgkmcnt(0)\ns_barrier') + (self.stamp('bar2') if self.light else [])
                sl += mk('s_mul_i32 s%d, s%d, %d\nv_add_u32 v%d, s%d, v%d' % (sT0, sW, 7 * 3072, vb, sT0, vTr))
            if j + NB < len(jobs) and not (j < nmain <= j + NB):
                sl += rd(j + NB)
            slots.append(sl)
        c0 = 21 if l == 0 else 0
        if l == 0:
            n = len(self.late_dma)
            for i, g in enumerate(self.late_dma):
                slots[(i * o['latespan']) // n] += g
            slots[28] += [wait_tok(self.tok_xb)]
            for i, g in enumerate(self.late_rd):
                slots[28 + i // 2] += g
            slots[37] += mk('\n'.join('v_mov_b32 v%d, 0x3f803f80' % (vo + i) for i in range(4)))
            slots[39] += self.late_dots + fin + tr2
            for i, g in enumerate(self.wo_dma(175)):
                slots[o['woslot'] + 2 * i] += g
            slots[o['tslot']] += self.touch_attn(0, vT)
            slots[62] += mk('v_and_b32 v%d, 31, v0\nv_lshlrev_b32 v%d, 2, v%d\ns_mul_i32 s%d, s%d, 384\nv_add_u32 v%d, %d, v%d\nv_add_u32 v%d, s%d, v%d'
                            % (vb, vb, vb, sT0, sW, vb, L_KVB, vb, vb + 1, sT0, vb))
            slots[63] += mk('\n'.join('ds_write_b32 v%d, v%d offset:%d' % (vb + 1, CSA + 16 * t, 128 * t) for t in range(3)))
            slots[65] += mk('s_waitcnt lgkmcnt(0)\ns_barrier')
            for t in range(3):
                r = RLB
                tt = (1, 2, 0)[t]
                slots[65 + 5 * t] += mk('\n'.join('ds_read_b32 v%d, v%d offset:%d' % (r + ww, vb, 384 * ww + 128 * tt) for ww in range(4)))
                slots[68 + 5 * t] += mk('v_add_f32 v%d, v%d, v%d\nv_add_f32 v%d, v%d, v%d\nv_add_f32 v%d, v%d, v%d' % (r, r, r + 1, r + 2, r + 2, r + 3, r, r, r + 2))
                slots[69 + 5 * t] += self.split_w(r + 2, r, r + 1) + mk('ds_write_b64 v%d, %s offset:%d' % (vCs, v(r + 2, 2), 256 * tt))
        else:
            n = o['look']
            for j in range(0, nmain, 2):
                if n < 28:
                    k_free = n - 20
                    assert k_free < 0 or j >= jobs.index(('q', k_free))
                    slots[j] += lds[n]
                    n += 1
            st = self.frag_loads([v(SB + 4 * (i % 4), 4) for i in range(7)], SRD_CL, sT5, XIN_OFF + 28672, st=sT1)
            for i in range(4):
                slots[25 + 2 * i] += st[i]
            ex = []
            for i in range(1, 16):
                ex += mk('v_add_f32 v%d, v%d, v%d' % (vS, vS if i > 1 else SB, SB + i))
            for i in range(0, 15, 3):
                slots[40 + i // 3] += ex[i:i + 3]
            for i in range(3):
                slots[45 + i] += st[4 + i]
            ex = flat(mk('v_add_f32 v%d, v%d, v%d' % (vS, vS, SB + i)) for i in range(12)) + fin
            per = (len(ex) + 8) // 9
            for i in range(9):
                slots[54 + i] += ex[i * per:(i + 1) * per]
        RB = [WB + 4 * ((nmain - 4 + g) % NB) for g in range(4)]
        vEps = vT + 1
        slots[nmain - 5] += mk('v_lshrrev_b32 v%d, 5, v0\nv_lshl_add_u32 v%d, v%d, 4, s%d' % (vT + 2, vT + 2, vT + 2, sT4))
        for g in range(4):
            slots[nmain - 4 + g] += mk('ds_read_b128 %s, v%d offset:%d' % (v(RB[g], 4), vT + 2, 32 * g))
        slots[nmain - 1] += mk('v_mov_b32 v%d, 0x3f803f80\nv_add_u32 v%d, s%d, v%d\nv_mov_b32 v%d, %s' % (vPoll, vT, sT4, vL16, vEps, f32(1e-6)))
        vG = SB + 12
        ga = self.kv_lane_addr(vG, vG + 1, vG + 2, gather=True)
        for i in range(0, len(ga), 3):
            slots[46 + c0 // 3 + i // 3] += ga[i:i + 3]
        P.add(flat(slots[:nmain]))
        P.add(self.stamp('s1_kv_mfma'))
        DK = WB
        for hf in range(2):
            R = lambda i: v(RB[2 * hf + i // 4] + i % 4, 2)
            P.add(self.phi8(AK + 8 * hf, R, RLB, vEps) + self.pack(AK + 4 * hf, AK + 8 * hf, 4))
            P.add(flat(mk('v_pk_mul_f32 %s, %s, %s' % (v(AV + 8 * hf + i, 2), v(AV + 8 * hf + i, 2), R(i))) for i in range(0, 8, 2)))
            P.add(self.pack(AV + 4 * hf, AV + 8 * hf, 4))
            for i in range(4):
                P('v_cndmask_b32 v%d, v%d, v%d, s[%d:%d]' % (AV + 4 * hf + i, AV + 4 * hf + i, vPoll, sN28, sN28 + 1))
        P.add(mfma(DK, v(AK, 4), v(AV, 4), True) + mfma(DK, v(AK + 4, 4), v(AV + 4, 4)))
        P('s_mov_b32 s%d, 0x80808080\ns_mov_b32 s%d, 0x80808080' % (sT0 + 1, sT0 + 2))
        for q in range(4):
            P('ds_write_b128 v%d, %s offset:%d' % (vT, v(DK + 4 * q, 4), 1024 * q))
        P('v_lshlrev_b32 v%d, 3, v0\ns_waitcnt lgkmcnt(0)\ns_barrier' % vT)
        for ww in range(4):
            P('ds_read_b128 %s, v%d offset:%d' % (v(AK + 4 * ww, 4), vG, 4096 * ww))
        for j in range(nmain, nmain + NB):
            P.add(rd(j))
        for x, y in ((AK, AK + 4), (AK + 8, AK + 12), (AK, AK + 8)):
            for i in (0, 2):
                P('v_pk_add_f32 %s, %s, %s' % (v(x + i, 2), v(x + i, 2), v(y + i, 2)))
        P.add(self.pack(AK, AK, 2))
        for i in range(2):
            P('v_cndmask_b32 v%d, v%d, v%d, s[%d:%d]' % (AK + i, AK + i, vNonce, sT0 + 1, sT0 + 2))
        P('buffer_store_dwordx2 %s, v%d, %s, s%d offen sc1' % (v(AK, 2), vT, self.srd(SRD_WS), sKvMy))
        P.add(self.stamp('kv_pub'))
        PQ = self.PQ = 104

        def qepi():
            L = []
            for hf in range(2):
                L += self.phi8(AQ + 8 * hf, lambda i: v(vRl, 2) + ' op_sel_hi:[1,0]', 48, vEps) + self.pack(PQ + 4 * hf, AQ + 8 * hf, 4)
            for i in (6, 7):
                L += mk('v_cndmask_b32 v%d, v%d, 0, s[%d:%d]' % (PQ + i, PQ + i, sHalf, sHalf + 1))
            return L
        if l == 0:
            self.staging(slots[nmain:], qepi)
        else:
            P.add(spread(slots[nmain:], self.kvx_pre(1)))
            P.add(qepi())

    PARK = 140

    def wo_dma(self, vwo):
        wo = [mk('v_lshrrev_b32 v%d, 2, v0\nv_mul_u32_u24 v%d, 896, v%d\nv_and_b32 v%d, 3, v0\nv_lshl_add_u32 v%d, v%d, 4, v%d\ns_lshl_b32 s%d, s%d, 6\nv_add_u32 v%d, s%d, v%d'
                 % (vwo, vwo, vwo, vT, vwo, vT, vwo, sQ0, sM, vwo, sQ0, vwo))
              + mk('s_mul_i32 s%d, s%d, %d\ns_lshl_b32 s%d, s%d, 10\ns_add_u32 s%d, s%d, %d' % (sQ1, sW, 16 * 896, sT3, sW, sT3, sT3, L_WO))]
        for t in range(7):
            wo.append(mk('s_add_u32 m0, s%d, %d\ns_add_u32 s%d, s%d, %d\nbuffer_load_dwordx4 v%d, %s, s%d offen lds' % (sT3, 4096 * t, sQ0, sQ1, t * 64 * 896, vwo, self.srd(SRD_WO), sQ0)))
        last = I('s_mov_b32 s%d, %d\ns_mov_b32 m0, %d\ns_mov_b64 exec, 0xffff\nbuffer_load_dwordx4 v%d, %s, s%d offen lds\ns_mov_b64 exec, -1'
                 % (sQ0, 448 * 896, L_WO + 28672, vwo, self.srd(SRD_WO), sQ0), kind='block', nvm=1, src=[('v', vwo)])
        self.tok_wo = tok(last)
        return wo + [[last]]

    def staging(self, qslots, qepi):
        P = self.P
        lskip, ljoin = P.newlabel('Lnostage'), P.newlabel('Lstaged')
        v1a, t0, t1, vp, vb, vb2 = 112, 113, 114, 115, 120, 168
        P('v_lshrrev_b32 v%d, 2, v0\nv_mul_u32_u24 v%d, 3584, v%d\nv_and_b32 v%d, 3, v0\nv_lshl_add_u32 v%d, v%d, 4, v%d'
          % (v1a, v1a, v1a, vT, v1a, vT, v1a))
        P('s_lshl_b32 s%d, s%d, 2\ns_add_u32 s%d, s%d, s%d\ns_lshl_b32 s%d, s%d, 6\nv_add_u32 v%d, s%d, v%d' % (sT5, sM, sT5, sT5, sW, sT5, sT5, v1a, sT5, v1a))
        P('s_mul_i32 s%d, s%d, 7168\ns_add_u32 s%d, s%d, %d\ns_mul_i32 s%d, s%d, 21504\ns_mul_i32 s%d, s%d, %d' % (sT3, sW, sT3, sT3, L_EX, sQ1, sW, sWi, sD1, 14 * 16 * 3584))

        def issue(k):
            g = mk('s_add_u32 m0, s%d, %d' % ((sT3, 1024 * k) if k < 7 else (sQ1, 1024 * (k - 7))))
            g += mk('s_add_u32 s%d, s%d, %d' % (sQ0, sWi, k * 16 * 3584) if k < 14 else 's_sub_u32 s%d, %d, s%d' % (sQ0, k * 16 * 3584, sWi))
            g += mk('buffer_load_dwordx4 v%d, %s, s%d offen lds' % (v1a, self.srd(SRD_W1), sQ0))
            return g
        dm = [issue(k) for k in range(28)]
        tk = [tok(g[-1]) for g in dm]
        park = mk('\n'.join('v_accvgpr_read_b32 v%d, a%d' % (160 + i, 216 + i) for i in range(8)))
        park += mk('v_add_u32 v%d, s%d, v%d' % (vp, sQ1, vL16))
        park += flat(mk('ds_read_b128 %s, v%d offset:%d' % (a(self.PARK + 4 * i, 4), vp, 1024 * i)) for i in range(21))
        for i, g in enumerate(dm[:7]):
            qslots[2 * i] += g
        P.add(spread(qslots, park))
        P('s_lshl_b32 s%d, s%d, 11\ns_add_u32 s%d, s%d, %d' % (sT4, sC, sT4, sT4, WS_XCC))
        P('v_and_b32 v%d, 15, v0\nv_lshlrev_b32 v%d, 7, v%d' % (vPA, vPA, vPA))
        P('buffer_load_dword v%d, v%d, %s, s%d offen sc1' % (vPoll, vPA, self.srd(SRD_WS), sT4))
        P('s_waitcnt lgkmcnt(0)\ns_barrier')
        P.add([I('s_cmp_ge_u32 s%d, 14\ns_cbranch_scc1 %s' % (sM, lskip), kind='block')])
        txt, _ = finalize(mk('s_nop 7') + qepi())
        self.ool.append('%s:\n%s\ns_waitcnt vmcnt(0)\ns_branch %s' % (lskip, '\n'.join(t.strip() for t in txt.split('\n')), ljoin))
        ad = self.trbase(t1, 64, 4) + mk('v_add_u32 v%d, s%d, v%d\nv_add_u32 v%d, s%d, v%d' % (t0, sT3, t1, t1, sQ1, t1))
        ad += mk('v_and_b32 v%d, 31, v0\nv_lshlrev_b32 v%d, 1, v%d\nbuffer_load_ushort v%d, v%d, %s, s%d offen' % (vT, vT, vT, vb, vT, self.srd(SRD_B1), sT5))
        ad += mk('v_lshrrev_b32 v%d, 5, v0\nv_lshlrev_b32 v%d, 3, v%d\ns_lshl_b32 s%d, s%d, 5' % (vT, vT, vT, sT2, sFe))
        ad += mk('buffer_load_dwordx2 %s, v%d, %s, s%d offen\nbuffer_load_dwordx2 %s, v%d, %s, s%d offen offset:16'
                 % (v(vb2, 2), vT, self.srd(SRD_B2), sT2, v(vb2 + 2, 2), vT, self.srd(SRD_B2), sT2))
        vo, D = 124, 128
        P.add(spread(dm[7:], qepi() + ad + mk('\n'.join('v_mov_b32 v%d, 0x3f803f80' % (vo + i) for i in range(4)))))
        if self.light:
            P.add(self.stamp('st_iss'))
        for k in range(28):
            va, o = (t0, 1024 * k) if k < 7 else (t1, 1024 * (k - 7))
            P.add([wait_tok(tk[k])] + mk('ds_read_b64_tr_b16 %s, v%d offset:%d\nds_read_b64_tr_b16 %s, v%d offset:%d' % (w1half(k, 0), va, o, w1half(k, 1), va, o + 512)))
            if k >= 2:
                P.add(mfma(D, v(vo, 4), w1reg(k - 2), k == 2))
        P.add(mfma(D, v(vo, 4), w1reg(26)) + mfma(D, v(vo, 4), w1reg(27)))
        P.add(self.unpack(144, vb2, 4) + mk('\n'.join('v_mov_b32 v%d, 0' % r for r in range(152, 156))))
        P('s_lshl_b32 s%d, s%d, 7\ns_add_u32 s%d, s%d, %d\nv_lshrrev_b32 v%d, 5, v0\nv_lshl_add_u32 v%d, v%d, 6, s%d' % (sT0, sW, sT0, sT0, L_B2, vT, vT, vT, sT0))
        for q in range(4):
            P('ds_write_b128 v%d, %s offset:%d' % (vT, v(144 + 4 * min(q, 2), 4), 16 * q))
        P.add(self.split_w(vW1X, D, vT + 1) + mk('v_lshl_or_b32 v%d, v%d, 16, v%d' % (vb, vb, vb)))
        P('v_cndmask_b32 v%d, v%d, v%d, s[%d:%d]\nv_cndmask_b32 v%d, v%d, 0, s[%d:%d]' % (vW1X, vW1X, vb, sHalf, sHalf + 1, vW1X + 1, vW1X + 1, sHalf, sHalf + 1))
        P.label(ljoin)
        P.add([I('s_nop 1', kind='block', states=2)])

    def w2_prefetch(self, va, part):
        txt = ['s_lshr_b32 s%d, s%d, 3' % (sQ0, sC), 's_mul_i32 s%d, s%d, 14' % (sQ0, sQ0), 's_add_u32 s%d, s%d, s%d' % (sQ0, sQ0, sM),
               's_lshl_b32 s%d, s%d, 2' % (sQ0, sQ0), 's_add_u32 s%d, s%d, s%d' % (sQ0, sQ0, sW), 's_mul_i32 s%d, s%d, %d' % (sQ0, sQ0, 56 * 128),
               's_add_u32 s%d, s%d, %d' % (sQ0, sQ0, part * 112 * 56 * 128), 'v_lshlrev_b32 v%d, 7, v0' % va, 's_mov_b32 exec_hi, 0xffffff',
               'buffer_load_dword v%d, v%d, %s, s%d offen' % (vDummy, va, self.srd(SRD_W2), sQ0), 's_mov_b64 exec, -1']
        return [I('\n'.join(txt), kind='block', nvm=1, src=[('v', 0)], dst=[('v', va)], cost=48)]

    def w2_addr(self, R):
        v2a, tA, tB, vp = R, R + 1, R + 3, R + 5
        L = mk('v_lshrrev_b32 v%d, 3, v0\nv_mul_u32_u24 v%d, 896, v%d\nv_lshrrev_b32 v%d, 2, v0\nv_and_b32 v%d, 4, v%d\nv_xor_b32 v%d, v%d, v0\nv_and_b32 v%d, 7, v%d\nv_lshl_add_u32 v%d, v%d, 4, v%d'
               % (v2a, v2a, v2a, vT, vT, vT, vT, vT, vT, vT, v2a, vT, v2a))
        L += mk('s_lshr_b32 s%d, s%d, 1\ns_lshl_b32 s%d, s%d, 7\ns_mul_i32 s%d, s%d, %d\ns_add_u32 s%d, s%d, s%d\nv_add_u32 v%d, s%d, v%d'
                % (sT0, sM, sT0, sT0, sT2, sW, 32 * 896, sT0, sT0, sT2, v2a, sT0, v2a))
        L += mk('s_mul_i32 s%d, s%d, 7168\ns_add_u32 s%d, s%d, %d\ns_lshl_b32 s%d, s%d, 12\ns_add_u32 s%d, s%d, %d'
                % (sRot, sW, sRot, sRot, L_EX, sQ1, sW, sQ1, sQ1, L_KVS))
        L += mk('s_lshr_b32 s%d, s%d, 1' % (sT0, sW)) + self.trbase(tA, 128, 4, xor16=sT0)
        L += mk('s_and_b32 s%d, s%d, 1\nv_bfe_u32 v%d, v0, 3, 1\nv_xor_b32 v%d, s%d, v%d\nv_lshl_add_u32 v%d, v%d, 6, v%d\nv_xor_b32 v%d, 64, v%d'
                % (sT0, sW, vT, vT, sT0, vT, tA, vT, tA, tA + 1, tA))
        L += mk('v_add_u32 v%d, s%d, v%d\nv_add_u32 v%d, s%d, v%d\nv_add_u32 v%d, s%d, v%d\nv_add_u32 v%d, s%d, v%d' % (tB, sQ1, tA, tB + 1, sQ1, tA + 1, tA, sRot, tA, tA + 1, sRot, tA + 1))
        L += mk('s_mul_i32 s%d, s%d, 21504\nv_add_u32 v%d, s%d, v%d' % (sT0, sW, vp, sT0, vL16))
        return L

    def w2_stage(self, fill, R, extra):
        P = self.P
        v2a, tA, tB, vp = R, R + 1, R + 3, R + 5
        NS = 5

        def issue(u):
            out = []
            base, o = (sRot, (u % NS) * 2048) if u % NS < 3 else (sQ1, (u % NS - 3) * 2048)
            for i in range(2):
                g = mk('s_add_u32 m0, s%d, %d' % (base, o + 1024 * i))
                g += mk('s_mov_b32 s%d, %d' % (sQ0, (128 * (u // 2) + 16 * (u % 2) + 8 * i) * 896))
                out += g + mk('buffer_load_dwordx4 v%d, %s, s%d offen lds' % (v2a, self.srd(SRD_W2), sQ0))
            return out, tok(out[-1])
        tk = []
        for u in range(NS - 1):
            g, t = issue(u)
            tk.append(t)
            P.add(g)
        steps = []
        for u in range(28):
            ta, o = (tA, (u % NS) * 2048) if u % NS < 3 else (tB, (u % NS - 3) * 2048)
            L = []
            if u + NS - 1 < 28:
                if u:
                    L += [wait_tok(prev_rd)]
                g, t = issue(u + NS - 1)
                tk.append(t)
                L += g
            L += [wait_tok(tk[u])]
            for js in range(2):
                b = W2A + 8 * u + 4 * js
                L += mk('ds_read_b64_tr_b16 %s, v%d offset:%d\nds_read_b64_tr_b16 %s, v%d offset:%d' % (a(b, 2), ta + js, o, a(b + 2, 2), ta + js, o + 1024))
            prev_rd = tok(L[-1])
            L += extra.get(u, [])
            if self.light:
                L += self.stamp('w2_%d' % u)
            r0 = self.o['rest0']
            for i in range(21):
                if u == r0 + (i * (26 - r0)) // 21:
                    assert u < 17 + (i + 1) // 2
                    L += mk('ds_write_b128 v%d, %s offset:%d' % (vp, a(self.PARK + 4 * i, 4), 1024 * i))
            steps.append(L)
        P.add(spread(steps, fill, start=0, end=self.o['w2fill']))

    K10 = 98

    def kvx_pre(self, l):
        L = []
        RES = 160
        if l == 1:
            L += mk('s_lshl_b32 s%d, s%d, 11\ns_add_u32 s%d, s%d, s%d\ns_add_u32 s%d, s%d, %d' % (sT1, sM, sT0, sT5, sT1, sT0, sT0, XIN_OFF))
            for j in range(2):
                L += mk('buffer_load_dwordx4 %s, v%d, %s, s%d offen offset:%d' % (v(RES + 4 * j, 4), vL16, self.srd(SRD_CL), sT0, 1024 * j))
            L += [I('s_mul_i32 s%d, s%d, %d\ns_add_u32 s%d, s%d, s%d\ns_addc_u32 s%d, s%d, 0\ns_sub_u32 s%d, s%d, s%d'
                    % (sT0, sSlow, LOFF, SRD_CL, SRD_CL, sT0, SRD_CL + 1, SRD_CL + 1, SRD_CL + 2, SRD_CL + 2, sT0), kind='block', cost=16)]
        L += [I('s_cmp_eq_u32 s%d, 3\ns_cselect_b32 s%d, 0xffff0000, 0\ns_cselect_b32 s%d, 0xffff0000, 0' % (sW, sPm, sPm + 1), kind='block', cost=12)]
        L += self.kv_lane_addr(self.KA, self.KA + 1, self.KA + 2, gather=False)
        L += mk('v_lshlrev_b32 v%d, 5, v0\nv_add_u32 v%d, %d, v%d' % (self.KA + 1, self.KA + 1, L_KVB, self.KA + 1))
        L += mk('v_mov_b32 v%d, 0x3f80\nv_mov_b32 v%d, 0x3f800000\ns_mov_b32 s%d, 0x88888888\ns_mov_b32 s%d, 0x88888888' % (self.K10, self.K10 + 1, sPm, sPm + 1))
        return L

    KA = 100

    def kvx(self, l):
        P = self.P
        P.comment('==== layer %d : kv exchange' % l)
        if l == 0:
            lw, lb = P.newlabel('Lxcc'), P.newlabel('Lxok')
            P('v_subrev_u32 v%d, s%d, v%d\nv_cmp_lt_u32 vcc, 15, v%d' % (vPoll, sNonce, vPoll, vPoll))
            P.add([I('s_cbranch_vccnz %s\n%s:' % (lw, lb), kind='block')])
            self.ool.append('\n'.join([
                lw + ':',
                'buffer_load_dword v%d, v%d, %s, s%d offen sc1' % (vPoll, vPA, self.srd(SRD_WS), sT4),
                's_add_u32 s%d, s%d, 1' % (sSpin, sSpin),
                's_cmp_gt_u32 s%d, 0x40000' % sSpin,
                's_cbranch_scc1 L_end',
                's_waitcnt vmcnt(0)',
                'v_subrev_u32 v%d, s%d, v%d' % (vPoll, sNonce, vPoll),
                'v_cmp_lt_u32 vcc, 15, v%d' % vPoll,
                's_cbranch_vccnz %s' % lw,
                's_branch %s' % lb]))
            P('v_cmp_ne_u32 vcc, s%d, v%d\ns_cmp_lg_u64 vcc, 0\ns_cselect_b32 s%d, 1, 0' % (sXcc, vPoll, sSlow))
        if l == 0:
            P.add(self.kvx_pre(0))
        elif self.o['kvdelay']:
            P('s_sleep %d' % self.o['kvdelay'])
        K10, K01 = self.K10, self.K10 + 1
        P.add(self.pa(16))
        P.add(self.trbase(vTr, 64, 4, add=L_WO))
        lsw, lre = P.newlabel('Lsweep'), P.newlabel('Lresweep')
        P.add(self.stamp('sweep_start'))
        P.label(lsw)
        B = 32
        P.add(flat(self.frag_loads([v(B + 4 * i, 4) for i in range(8)], SRD_WS, sKv, 0, flags='sc1')))
        bad, S = vT, 16
        P('v_mov_b32 v%d, 0' % bad)
        for i in range(8):
            for k in range(4):
                for hh, K in enumerate((K10, K01)):
                    P('v_dot2_f32_bf16 v%d, v%d, v%d, %s' % (S + 2 * k + hh, B + 4 * i + k, K, 'v%d' % (S + 2 * k + hh) if i else '0'))
            for k in (2, 3):
                P('v_bitop3_b32 v%d, v%d, s%d, v%d bitop3:0xbe' % (bad, B + 4 * i + k, sNonce, bad))
        P('v_cmp_ne_u32 vcc, 0, v%d\ns_and_b64 vcc, vcc, s[%d:%d]' % (bad, sPm, sPm + 1))
        P.add([I('s_cbranch_vccnz %s' % lre, kind='block', states=1)])
        self.ool.append('%s:\ns_sleep 6\ns_add_u32 s%d, s%d, 1\ns_cmp_gt_u32 s%d, 0x40000\ns_cbranch_scc1 L_end\ns_branch %s'
                        % (lre, sSpin, sSpin, sSpin, lsw))
        P.add(self.stamp('sweep_done'))
        for k in range(4):
            P('v_permlane32_swap_b32 v%d, v%d' % (S + k, S + 4 + k))
        for k in (0, 2):
            P('v_pk_add_f32 %s, %s, %s' % (v(S + k, 2), v(S + k, 2), v(S + 4 + k, 2)))
        P.add(self.pack(S, S, 2))
        P('ds_write_b64 v%d, %s' % (self.KA, v(S, 2)))
        if l == 0:
            P.add([wait_tok(self.tok_wo)])
        P('s_waitcnt lgkmcnt(0)\ns_barrier')
        KF, D = 32, 16
        P('ds_read_b128 %s, v%d\nds_read_b128 %s, v%d offset:16' % (v(KF, 4), self.KA + 1, v(KF + 4, 4), self.KA + 1))
        P.add(mfma(D, v(KF, 4), v(self.PQ, 4), True))
        for i in (6, 7):
            P('v_cndmask_b32 v%d, v%d, 0, s[%d:%d]' % (KF + i, KF + i, sHalf, sHalf + 1))
        P.add(mfma(D, v(KF + 4, 4), v(self.PQ + 4, 4)))
        t1, t2 = 40, 42
        P('v_mov_b32 v%d, v%d\nv_mov_b32 v%d, v%d\nv_permlane32_swap_b32 v%d, v%d' % (t1, D + 12, t2, D + 12, t1, t2))
        P('v_add_f32 v%d, %s, v%d\nv_rcp_f32 v%d, v%d\nv_mul_f32 v%d, s%d, v%d\nv_mul_f32 v%d, s%d, v%d' % (t2, f32(1e-6), t2, t2, t2, t1, sLn2, t2, t1 + 1, sLn2, t2))
        for r in range(0, 16, 2):
            P('v_pk_mul_f32 %s, %s, %s' % (v(D + r, 2), v(D + r, 2), v(t1, 2)))
        P.add(self.pack(D, D, 8))
        for i in (6, 7):
            P('v_cndmask_b32 v%d, v%d, 0, s[%d:%d]' % (D + i, D + i, sHalf, sHalf + 1))
        st = self.stores(['buffer_store_dwordx4 %s, v%d, %s, s%d offen offset:%d' % (v(D + 4 * j, 4), vL16, self.srd(SRD_CL), sOst, 1024 * j) for j in range(2)])
        tk = tok(st[-1])
        P.add(st)
        P.add(self.flag([tk], sFoMy))
        P.add(self.stamp('o_pub'))

    def s2(self, l):
        P = self.P
        o = self.o
        P.comment('==== layer %d : S2' % l)
        ACC, OF, WB, RES = 16, 32, 144, 160
        NB = 4
        P.add(self.poll_issue(sFo))
        P.add(self.unpack(ACC, RES, 8))
        jobs = [(h, j) for h in range(16) for j in range(2)]
        rd = lambda i: mk('ds_read_b64_tr_b16 %s, v%d offset:%d\nds_read_b64_tr_b16 %s, v%d offset:%d' % (
            v(WB + 4 * (i % NB), 2), vTr, 1792 * jobs[i][0] + 1024 * jobs[i][1],
            v(WB + 4 * (i % NB) + 2, 2), vTr, 1792 * jobs[i][0] + 1024 * jobs[i][1] + 512))
        for i in range(NB):
            P.add(rd(i))
        P('s_add_u32 s%d, s%d, %d' % (sT4, sOst, X1_OFF))
        P('s_lshr_b32 s%d, s%d, 2\ns_lshl_b32 s%d, s%d, 10\ns_and_b32 s%d, s%d, 3\ns_lshl_b32 s%d, s%d, 2\ns_add_u32 s%d, s%d, s%d\ns_add_u32 s%d, s%d, s%d\ns_add_u32 s%d, s%d, %d'
          % (sT5, sM, sT5, sT5, sT1, sM, sT1, sT1, sT5, sT5, sT1, sT5, sT5, sBlk, sT5, sT5, X1_OFF + 28672))
        P.add(self.s4_consts(l))
        if l == 0:
            P.add(self.xsrc())
        P.add(self.poll_check(sFo))
        P.add(self.stamp('o_seen'))
        oreg = [OF + 4 * (i % 28) for i in range(32)]
        lds = self.frag_loads([v(r, 4) for r in oreg], SRD_CL, sBlk, O_OFF, flags='sc1')
        n = o['look2']
        P.add(flat(lds[:n]))
        for i in range(32):
            P.add(mfma(ACC, v(WB + 4 * (i % NB), 4), v(oreg[i], 4)))
            if self.light and i in (0, 8, 16, 31):
                P.add(self.stamp('s2_%d' % i))
            if i + n < 32:
                P.add(lds[i + n])
            if i + NB < 32:
                P.add(rd(i + NB))
        P.add(self.pa(14, blocks=True))
        P.add(self.pack(OF, ACC, 8))
        P.add(self.stores(['buffer_store_dwordx4 %s, v%d, %s, s%d offen offset:%d' % (v(OF + 4 * j, 4), vL16, self.srd(SRD_CL), sT4, 1024 * j) for j in range(2)]))
        P.add(self.row_stats(OF, 8, vT, vT + 2))
        st = self.stores(['buffer_store_dword v%d, v%d, %s, s%d offen' % (vT, vL16, self.srd(SRD_CL), sT5)])
        tk = tok(st[-1])
        P.add(st)
        if self.light:
            P.add(self.stamp('x1_st'))
        P.add(self.flag([tk], sFoMy, FX1 - FO))
        P.add(self.stamp('x1_pub'))

    def gelu(self, acc, KK, T):
        pr = range(0, 16, 2)
        A = flat(mk('v_pk_mul_f32 %s, %s, %s' % (v(T + i, 2), v(acc + i, 2), v(acc + i, 2))) for i in pr)
        A += flat(mk('v_pk_fma_f32 %s, %s, %s, %s op_sel:[0,1,0] op_sel_hi:[1,1,0]' % (v(T + i, 2), v(T + i, 2), v(KK, 2), v(KK, 2))) for i in pr)
        A += flat(mk('v_pk_mul_f32 %s, %s, %s' % (v(T + i, 2), v(T + i, 2), v(acc + i, 2))) for i in pr)
        E = flat(mk('v_exp_f32 v%d, v%d' % (T + i, T + i)) for i in range(16))
        B = flat(mk('v_pk_fma_f32 %s, %s, %s, %s op_sel_hi:[1,0,0]' % (v(T + i, 2), v(T + i, 2), v(KK + 2, 2), v(KK + 2, 2))) for i in pr)
        R = flat(mk('v_rcp_f32 v%d, v%d' % (T + i, T + i)) for i in range(16))
        C = flat(mk('v_pk_mul_f32 %s, %s, %s' % (v(acc + i, 2), v(acc + i, 2), v(T + i, 2))) for i in pr)
        pk = self.pack(acc, acc, 8)
        g4 = lambda f, g: flat(mk(f(4 * g + i)) for i in range(4))
        e = lambda g: E[4 * g:4 * g + 4]
        r = lambda g: R[4 * g:4 * g + 4]
        b = lambda g: g4(lambda i: 'v_fma_f32 v%d, v%d, v%d, v%d' % (T + i, T + i, KK + 2, KK + 2), g)
        c = lambda g: g4(lambda i: 'v_mul_f32 v%d, v%d, v%d' % (acc + i, acc + i, T + i), g) + pk[2 * g:2 * g + 2]
        tail = e(0) + e(1) + b(0) + r(0) + e(2) + b(1) + c(0) + r(1) + e(3) + b(2) + c(1) + r(2) + b(3) + c(2) + r(3) + c(3)
        return A, A + E + B + R + C + pk, tail

    XSRC = (4, 5, 6, 7, 8, 9, 10, 11, 12, 13, 14, 15, 20, 21)

    def xsrc(self):
        L = mk('s_lshl_b32 s%d, s%d, 1\ns_mul_i32 s%d, s%d, 14\ns_add_u32 s%d, s%d, s%d\ns_mov_b32 s%d, %d' % (sT0, sW, sT1, sD1, sT1, sT1, sT0, sT2, X1_OFF))
        for c, r in enumerate(self.XSRC):
            if c:
                L += mk('s_add_u32 s%d, s%d, 8\ns_cmp_ge_u32 s%d, 28\ns_cselect_b32 s%d, 28, 0\ns_cselect_b32 s%d, 0x8000, 0\ns_sub_u32 s%d, s%d, s%d\ns_add_u32 s%d, s%d, s%d'
                        % (sT0, sT0, sT0, sT3, r, sT0, sT0, sT3, sT2, sT2, r))
                L += mk('s_add_u32 s%d, s%d, 8\ns_cmp_ge_u32 s%d, 28\ns_cselect_b32 s%d, 28, 0\ns_sub_u32 s%d, s%d, s%d' % (sT1, sT1, sT1, sT3, sT1, sT1, sT3))
            L += mk('s_lshl_b32 s%d, s%d, 10\ns_add_u32 s%d, s%d, s%d' % (r, sT1, r, r, sT2))
        return L

    SEL = 172

    def s4_consts(self, l):
        U, SEL = 168, self.SEL
        sel = mk('\n'.join(['v_lshrrev_b32 v%d, 5, v0' % SEL,
                             'v_lshlrev_b32 v%d, 2, v%d' % (SEL, SEL), 'v_and_b32 v%d, 31, v0' % (SEL + 1), 'v_sub_u32 v%d, v%d, v%d' % (U, SEL + 1, SEL),
                             'v_mov_b32 v%d, 0x3f80' % (U + 1), 'v_mov_b32 v%d, 0x3f800000' % (U + 2)]))
        for q, r0 in enumerate((0, 2, 8, 10)):
            sel += mk('v_cmp_eq_u32 vcc, %d, v%d\nv_cmp_eq_u32 s[%d:%d], %d, v%d\ns_nop 0\nv_cndmask_b32 v%d, 0, v%d, vcc\nv_cndmask_b32 v%d, v%d, v%d, s[%d:%d]'
                      % (r0, U, sPm, sPm + 1, r0 + 1, U, SEL + q, U + 1, SEL + q, SEL + q, U + 2, sPm, sPm + 1))
        for q, sB in enumerate((sEb, sLb)):
            sel += mk('s_lshl_b32 s%d, s%d, 15\ns_lshl_b32 s%d, s%d, 10\ns_add_u32 s%d, s%d, s%d\ns_add_u32 s%d, s%d, %d' % (sT0, sB, sT2, sFe, sT0, sT0, sT2, sRes + q, sT0, X1_OFF))
            if l == 0:
                sel += mk('s_mul_i32 s%d, s%d, %d\ns_add_u32 s%d, s%d, %d\ns_add_u32 s%d, s%d, s%d' % (sT0, sB, XIN_BS, sT0, sT0, XIN_OFF, sFin + q, sT0, sT2))
                sel += mk('s_lshr_b32 s%d, s%d, 2\ns_lshl_b32 s%d, s%d, 10\ns_add_u32 s%d, s%d, s%d\ns_and_b32 s%d, s%d, 3\ns_lshl_b32 s%d, s%d, 2\ns_add_u32 s%d, s%d, s%d\ns_add_u32 s%d, s%d, 28672'
                          % (sT2, sFe, sT2, sT2, sT0, sT0, sT2, sT2, sFe, sT2, sT2, sT0, sT0, sT2, sFin + 2 + q, sT0))
                sel += mk('s_lshl_b32 s%d, s%d, 5\ns_add_u32 s%d, s%d, s%d\ns_lshl_b32 s%d, s%d, 2\ns_add_u32 s%d, s%d, %d' % (sT2, sB, sT2, sT2, sFe, sT2, sT2, sFin + 4 + q, sT2, FXIN))
            else:
                sel += mk('s_lshl_b32 s%d, s%d, 2\ns_add_u32 s%d, s%d, s%d\ns_mul_i32 s%d, s%d, %d\ns_lshl_b32 s%d, s%d, 5\ns_add_u32 s%d, s%d, s%d'
                          % (sT0, sC, sT0, sT0, sB, sT0, sT0, 32 * 896, sT2, sFe, sFin + q, sT0, sT2))

        return sel

    def mlp(self, l):
        P = self.P
        o = self.o
        P.comment('==== layer %d : MLP' % l)
        ACC = (16, 32)
        XB, EXB, WEX, T, RING = 48, 72, 76, 80, 108
        KK = (96, 100)
        SEL, vB2, vX2 = self.SEL, 104, 105
        NB = 6
        P('s_mov_b32 s%d, %d' % (sT4, FX1))
        P.add(self.poll_issue(sT4))
        P('s_lshl_b32 s%d, s%d, 11' % (sT5, sW))
        P('v_mov_b32 v%d, v%d\nv_mov_b32 v%d, v%d' % (WEX, vW1X, WEX + 1, vW1X + 1))
        P('\n'.join('v_mov_b32 v%d, 0' % r for r in (WEX + 2, WEX + 3, EXB + 2, EXB + 3)))
        vE8, vK16 = vTr, vT + 3
        P('v_lshlrev_b32 v%d, 3, v0\nv_add_u32 v%d, %d, v%d' % (vE8, vE8, L_KVS, vE8))
        P('v_and_b32 v%d, 31, v0\nv_lshlrev_b32 v%d, 4, v%d\nv_add_u32 v%d, %d, v%d' % (vK16, vK16, vK16, vK16, L_KVS + 512, vK16))
        P('v_add_u32 v%d, %d, v%d' % (vX2, 56 * 1024, vL16))
        P('s_lshl_b32 s%d, s%d, 7\ns_add_u32 s%d, s%d, %d\nv_lshrrev_b32 v%d, 5, v0\nv_lshl_add_u32 v%d, v%d, 6, s%d' % (sT3, sW, sT3, sT3, L_B2, vB2, vB2, vB2, sT3))
        P('s_add_u32 s%d, s%d, %d' % (sT1, sBlk, X1_OFF + 28672))
        P.add(self.poll_check(sT4))
        P.add(self.stamp('x1_seen'))
        xd, tc = [], []
        for c, r in enumerate(self.XSRC):
            g = mk('s_add_u32 m0, s%d, %d' % (sT5, 8192 * c))
            g += mk('buffer_load_dwordx4 v%d, %s, s%d offen sc1 lds\nbuffer_load_dwordx4 v%d, %s, s%d offen offset:1024 sc1 lds' % (vL16, self.srd(SRD_CL), r, vL16, self.srd(SRD_CL), r))
            tc.append(tok(g[-1]))
            xd.append(g)
        P.add(xd[0] + xd[1])
        stl = [mk('buffer_load_dwordx4 %s, v%d, %s, s%d offen offset:%d sc1' % (v(RING + 4 * i, 4), vL16, self.srd(SRD_CL), sT1, 1024 * i)) for i in range(4)]
        K0 = KK[1]
        st0 = mk('v_add_f32 v%d, v%d, v%d' % (T, RING, RING + 1))
        for i in range(2, 14):
            st0 += mk('v_add_f32 v%d, v%d, v%d' % (T, T, RING + i))
        st0 += self.stats_finish(T, True)
        st0 += mk('\n'.join(['v_rcp_f32 v%d, v%d' % (K0 + 2, vRl),
                             'v_mul_f32 v%d, s%d, v%d' % (K0, sC0, vRl),
                             'v_mul_f32 v%d, v%d, v%d' % (T, vRl, vRl),
                             'v_mul_f32 v%d, s%d, v%d' % (K0 + 1, sC1, vRl),
                             'v_mul_f32 v%d, v%d, v%d' % (K0 + 1, K0 + 1, T),
                             'v_sub_f32 v%d, 0, v%d' % (vMean, vMean),
                             'v_cndmask_b32 v%d, v%d, v%d, s[%d:%d]' % (vMean, vMean, K0 + 2, sHalf, sHalf + 1)]))
        st0 += self.split_act(T + 2, vMean, T)
        st0 += mk('s_lshl_b32 s%d, s%d, 10\nv_add_u32 v%d, s%d, v%d\nv_add_u32 v%d, s%d, v%d' % (sT4, sW, vT, sT4, vE8, vT + 1, sT4, vK16))
        st0 += mk('ds_write_b64 v%d, %s\nds_write_b128 v%d, %s' % (vT, v(T + 2, 2), vT + 1, v(K0, 4)))
        tst = tok(st0[-1])

        def hpub(b):
            pre = mk('s_add_u32 s%d, s%d, %d' % (sT4, sHst, b * 114688))
            st = self.stores(['buffer_store_dwordx4 %s, v%d, %s, s%d offen offset:%d' % (v(ACC[b & 1] + 4 * j, 4), vL16, self.srd(SRD_CL), sT4, 1024 * j) for j in range(2)])
            return pre + st, tok(st[-1])
        hflag = lambda b, tk: self.flag([tk], sFoMy, FH - FO + 512 * b)
        extrd = lambda b: mk('ds_read_b64 %s, v%d offset:%d\nds_read_b128 %s, v%d offset:%d' % (v(EXB, 2), vE8, 1024 * b, v(KK[b & 1], 4), vK16, 1024 * b))
        extmf = lambda b: mfma(ACC[b & 1], v(WEX, 4), v(EXB, 4))
        hreg = [RING + 4 * (i % 16) for i in range(56)]

        def hload(i):
            blk, kap = divmod(i, 28)
            g = mk('s_add_u32 s%d, s%d, %d' % (sHs, (sHE, sHL)[blk], 8192 * (kap // 2))) if kap % 2 == 0 else []
            return g + mk('buffer_load_dwordx4 %s, v%d, %s, s%d offen offset:%d sc1' % (v(hreg[i], 4), vL16, self.srd(SRD_CL), sHs, 1024 * (kap % 2)))
        P.add([wait_tok(tc[0])])
        P('s_barrier')
        P.add(self.stamp('s3_b0'))
        rdj = lambda j: mk('ds_read_b128 %s, v%d offset:%d' % (v(XB + 4 * (j % NB), 4), vL16 if j < 56 else vX2, 1024 * (j % 56)))
        for j in range(NB):
            P.add(rdj(j))
        bars = {3: [tc[1]], 11: [tc[2]], 19: [tc[3]], 27: [tc[5], tst], 43: [tc[9]], 75: [tc[13]]}
        slots = []
        for j in range(112):
            b, k = divmod(j, 28)
            sl = mfma(ACC[b & 1], w1reg(k), v(XB + 4 * (j % NB), 4), k == 0)
            if k % 2 == 0:
                also_waits_for(sl[0], v(XB + 4 * ((j + 1) % NB), 4))
            if j in bars:
                sl += (self.stamp('pb%d' % j) if self.light else []) + [wait_tok(*bars[j])] + mk('s_barrier') + (self.stamp('ab%d' % j) if self.light else [])
            if k % 2 == 1:
                for jj in (j + NB - 1, j + NB):
                    if jj < 112:
                        sl += rdj(jj)
            if (k == 25 and b) or j == 27:
                sl += extrd(b)
            if (k == 27 and b) or j == 30:
                sl += extmf(b if k == 27 else 0)
            slots.append(sl)
        slots[0] += stl[0] + stl[1]
        slots[1] += xd[2]
        slots[3] += stl[2] + stl[3]
        for c in range(3, 14):
            slots[6 + 4 * (c - 3)] += xd[c]
        W2R = RING + 32
        pre0 = self.w2_addr(W2R) if l == 0 else []
        out = spread(slots[:o['st0']], pre0) + spread(slots[o['st0']:26], st0) + slots[26] + slots[27]
        pend = None
        for b in range(1, 4):
            gA, _, tail = self.gelu(ACC[(b - 1) & 1], KK[(b - 1) & 1], T)
            s0 = 28 * b + (5 if b == 1 else 2)
            st, nxt = hpub(b - 1)
            if l == 0 and b < 3 and o['pfw2']:
                st = st + self.w2_prefetch(vT, b - 1)
            if l == 0 and not o['idleh']:
                st = st + self.touch([(16, SRD_CL, sHst, bb * 114688) for bb in ((b - 1,) if b < 3 else (2, 3))], vT)
            slots[s0] += gA
            if pend is not None and l == 1:
                slots[28 * b + o['flagpos']] += hflag(b - 2, pend)
            pend = nxt
            if b == 3 and l == 1:
                slots[84 + o['pollE']] += self.pa(14) + self.poll_issue(sPE)
                n3 = o['n3']
                slots[112 - n3] += (self.stamp('preE') if self.light else []) + self.poll_check(sPE) + (self.stamp('gotE') if self.light else [])
                for i in range(n3):
                    slots[112 - n3 + i] += hload(i)
            if b == 1 or self.light:
                out += self.stamp('s3_b%d' % b)
            out += flat(slots[28 * b:s0 + 1]) + spread(slots[s0 + 1:28 * b + 28], tail + st, end=28 * b + o['gend'] - s0)
        P.add(out)
        P('s_waitcnt lgkmcnt(0)\ns_barrier')
        P.add(self.stamp('s3_end'))
        AE, AL, RX, RS = 48, 16, 80, 96
        vEW, vER = (vTr, vT, vT + 1), vT + 3
        resid = lambda q: mk('buffer_load_dwordx4 %s, v%d, %s, s%d offen sc1' % (v(RS, 4), vL16, self.srd(SRD_CL), sRes + q))
        cinit = lambda A: flat(mk('ds_read_b128 %s, v%d offset:%d' % (v(A + 4 * q, 4), vB2, 16 * q)) for q in range(4))
        ad = []
        for n, x in enumerate((2, 1, 3)):
            ad += mk('s_xor_b32 s%d, s%d, %d\ns_mul_i32 s%d, s%d, 6144\ns_add_u32 s%d, s%d, %d\nv_add_u32 v%d, s%d, v%d'
                     % (sT3, sW, x, sT3, sT3, sT3, sT3, L_EX + 2048 * (x - 1), vEW[n], sT3, vL16))
        ad += mk('s_mul_i32 s%d, s%d, 6144\ns_add_u32 s%d, s%d, %d\nv_add_u32 v%d, s%d, v%d' % (sT3, sW, sT3, sT3, L_EX, vER, sT3, vL16))
        gA, gall, _ = self.gelu(ACC[1], KK[1], T)
        st, p3 = hpub(3)
        npre = o['npre']
        if l == 0:
            npre = 7
            self.w2_stage(gall + hflag(0, pend) + hflag(1, pend) + hflag(2, pend) + st, W2R,
                          {15: hflag(3, p3), 19: self.pa(14) + self.poll_issue(sPE), 23: self.poll_check(sPE) + resid(0) + cinit(AE) + hload(0),
                           24: hload(1) + hload(2), 25: hload(3) + hload(4), 26: hload(5) + hload(6)})
        else:
            P.add(spread([resid(0)] + [hload(i) for i in range(o['n3'], npre)], gall[:40] + hflag(2, pend) + cinit(AE) + gall[40:] + st))
        if self.light:
            P.add(self.stamp('g3_end'))

        exch_write = lambda A: flat(mk('ds_write_b128 v%d, %s\nds_write_b128 v%d, %s offset:1024' % (vEW[n], v(r, 4), vEW[n], v(r + 4, 4)))
                                    for n, r in enumerate((A + 8, A + 16, A + 24)))
        exch_read = lambda: flat(mk('ds_read_b128 %s, v%d offset:%d' % (v(RX + 4 * q, 4), vER, 1024 * q)) for q in range(6))

        def addv(d, x, y, n, pk):
            if pk:
                return flat(mk('v_pk_add_f32 %s, %s, %s' % (v(d + i, 2), v(x + i, 2), v(y + i, 2))) for i in range(0, n, 2))
            return flat(mk('v_add_f32 v%d, v%d, v%d' % (d + i, x + i, y + i)) for i in range(n))

        def finish(A, q, pk):
            L = addv(A, A, RX, 8, pk) + addv(RX + 8, RX + 8, RX + 16, 8, pk) + addv(A, A, RX + 8, 8, pk) + self.pack(A, A, 4)
            if l == 0:
                L += self.stores(['buffer_store_dwordx4 %s, v%d, %s, s%d offen' % (v(A, 4), vL16, self.srd(SRD_CL), sFin + q)])
                rs = self.row_stats(A, 4, RX, RX + 2)
                blk = I('\n'.join(x.text for x in rs[:9]), kind='block', src=[r for x in rs[:9] for r in x.src], dst=[('v', RX), ('v', RX + 1), ('v', RX + 2)], states=1, cost=60)
                L += [blk] + mk('s_nop 2') + rs[9:]
                st = self.stores(['buffer_store_dword v%d, v%d, %s, s%d offen' % (RX, vL16, self.srd(SRD_CL), sFin + 2 + q)])
                tk = tok(st[-1])
                return L + st, self.flag([tk], sFin + 4 + q)
            L += mk('v_permlane32_swap_b32 v%d, v%d\nv_permlane32_swap_b32 v%d, v%d' % (A, A + 2, A + 1, A + 3))
            L += mk('buffer_store_dwordx4 %s, v%d, %s, s%d offen %s' % (v(A, 4), vPA, self.srd(SRD_OUT), sFin + q, ('', 'sc1', 'nt', 'sc0 sc1')[o['outf']]))
            return L, []

        slots = []
        for i in range(56):
            blk, kap = divmod(i, 28)
            A = (AE, AL)[blk]
            for js in range(2):
                sl = mfma(A, v(SEL, 4), v(RS, 4)) if kap == 0 and js == 0 else []
                slots.append(sl + mfma(A + 16 * js, a(W2A + 8 * kap + 4 * js, 4), v(hreg[i], 4), kap == 0 and js == 1))
        sidx = 0
        for i in range(npre, 56):
            sidx = max(sidx, 2 * (i - 16) + 1 if i >= 16 else 0)
            if i == 28:
                sidx = max(sidx, o['lateL'])
                slots[sidx] += (self.stamp('preL') if self.light else []) + self.poll_check(sPL) + (self.stamp('gotL') if self.light else [])
            slots[sidx] += hload(i)
            assert sidx <= 2 * i - 6
            sidx += 1 if 2 * (i + 1) - sidx - 2 < o['lead'] else 2
        if l == 1:
            slots[o['flag3']] += (self.stamp('preF') if self.light else []) + hflag(3, p3) + (self.stamp('gotF') if self.light else [])
        slots[o['pollL']] += self.poll_issue(sPL)
        for i in range(0, len(ad), 4):
            slots[2 * (i // 4) + 30] += ad[i:i + 4]
        slots[40] += resid(1)
        if l == 0:
            slots[20] += mk('s_barrier')
        slots[46] += cinit(AL)
        if l == 1:
            slots[44] += mk('v_and_b32 v%d, 31, v0\nv_mul_u32_u24 v%d, 896, v%d\nv_lshrrev_b32 v%d, 5, v0\nv_lshl_add_u32 v%d, v%d, 4, v%d'
                            % (vPA, vPA, vPA, vPoll, vPA, vPoll, vPA))
        P.add(flat(slots[:56]))
        P.add(self.stamp('s4_E'))
        late = slots[56:]
        fin, fl = finish(AE, 0, False)
        xb0 = o['xbar']
        P.add(spread(late[:xb0], exch_write(AE), start=2, end=9))
        late[xb0] += (self.stamp('preX') if self.light else []) + mk('s_waitcnt lgkmcnt(0)\ns_barrier') + (self.stamp('gotX') if self.light else []) + exch_read()
        late[34] += (self.stamp('preY') if self.light else []) + mk('s_barrier') + (self.stamp('gotY') if self.light else [])
        late[44] += fl
        P.add(spread(late[xb0:], fin, start=4, end=33 - xb0))
        P.add(self.stamp('s4_L'))
        P.add(exch_write(AL) + mk('s_waitcnt lgkmcnt(0)\ns_barrier') + exch_read())
        fin, fl = finish(AL, 1, True)
        P.add(fin + fl)
        P.add(self.stamp('x2_pub'))

    def build(self):
        P = self.P
        self.prologue()
        for l in range(2):
            self.s1(l)
            if self.stop == 's1_%d' % l:
                break
            self.kvx(l)
            if self.stop == 'o_%d' % l:
                break
            lnext = 'L_layer%d' % (l + 1)
            if l == 0:
                lsk = P.newlabel('Lskipmlp')
                P.add([I('s_cmp_ge_u32 s%d, 14\ns_cbranch_scc1 %s' % (sM, lsk), kind='block')])
                self.ool.append('%s:\n%s\ns_waitcnt vmcnt(0) lgkmcnt(0)\ns_sleep 60\ns_branch %s' % (lsk, self.idle_work(), lnext))
            else:
                if self.o['wb']:
                    lw, lp = P.newlabel('Lwb'), P.newlabel('Lwbp')
                    P.add([I('s_cmp_ge_u32 s%d, 14\ns_cbranch_scc1 %s' % (sM, lw), kind='block')])
                    t = [lw + ':', 's_cmp_lg_u32 s%d, 14' % sM, 's_cbranch_scc1 L_fin', 's_cmp_lg_u32 s%d, 0' % sW, 's_cbranch_scc1 L_fin']
                    t += [x.text for x in self.pa(14, blocks=True)]
                    t += ['s_mov_b32 s%d, %d' % (sT4, FH + 512 * self.o['wbblk']), 's_sleep 100', lp + ':', 's_sleep 4',
                          'buffer_load_dword v%d, v%d, %s, s%d offen sc1' % (vPoll, vPA, self.srd(SRD_CL), sT4),
                          's_add_u32 s%d, s%d, 1' % (sSpin, sSpin), 's_cmp_gt_u32 s%d, 0x40000' % sSpin, 's_cbranch_scc1 L_end',
                          's_waitcnt vmcnt(0)', 'v_cmp_ne_u32 vcc, s%d, v%d' % (sNonce, vPoll), 's_cbranch_vccnz %s' % lp,
                          'buffer_wbl2 sc1', 's_waitcnt vmcnt(0)', 's_branch L_fin']
                    self.ool.append('\n'.join(t))
                else:
                    P.add([I('s_cmp_ge_u32 s%d, 14\ns_cbranch_scc1 L_fin' % sM, kind='block')])
            self.s2(l)
            if self.stop == 'x1_%d' % l:
                P.label(lnext)
                break
            self.mlp(l)
            P.label(lnext)
            if l == 0:
                P('s_add_u32 s%d, s%d, %d\ns_add_u32 s%d, s%d, %d' % (sKv, sKv, KVP_L, sKvMy, sKvMy, KVP_L))
            if self.stop == 'x2_%d' % l:
                break
        P.add([I('s_cmp_lg_u32 s2, 0\ns_cbranch_scc1 L_fin\ns_cmp_lg_u32 s%d, 0\ns_cbranch_scc1 L_fin' % sW, kind='block')])
        P('s_mov_b64 exec, 1\nbuffer_store_dword v%d, off, %s, 0 sc1\ns_mov_b64 exec, -1' % (vNonce, self.srd(SRD_WS)))
        if self.probe is not None:
            P.add(self.stamp('end'))
            P.add([I('s_waitcnt lgkmcnt(0)\ns_sub_u32 s94, s94, s96\ns_lshl_b32 s94, s94, 2\ns_add_u32 s94, s94, 10000\nL_pr:\ns_memrealtime s[98:99]\ns_waitcnt lgkmcnt(0)\n'
                     's_sub_u32 s98, s98, s96\ns_cmp_lt_u32 s98, s94\ns_cbranch_scc1 L_pr', kind='block')])
        P.label('L_fin')
        if self.stamps:
            P('s_lshl_b32 s%d, s2, 2\ns_add_u32 s%d, s%d, s%d\ns_lshl_b32 s%d, s%d, 8\ns_add_u32 s%d, s%d, %d' % (sT0, sT0, sT0, sW, sT0, sT0, sT0, sT0, WS_STAMP))
            P.add(self.stamp('end'))
            P('s_memrealtime s[%d:%d]\ns_waitcnt lgkmcnt(0)\nv_writelane_b32 v%d, s%d, 63' % (sStamp, sStamp + 1, vStamp, sStamp))
            P('v_writelane_b32 v%d, s%d, 61' % (vStamp, sSpin))
            P('v_lshlrev_b32 v%d, 2, v0\nbuffer_store_dword v%d, v%d, %s, s%d offen' % (vT, vStamp, vT, self.srd(SRD_WS), sT0))
        P.label('L_end')
        P('s_endpgm')
        body, L = finalize(P.L)
        self.final = L
        ool = '\n'.join('\n'.join(('    ' + t if not t.endswith(':') else t) for t in b.split('\n') if t.strip()) for b in self.ool)
        head = open('cdna_kernels/%s.s.ref' % KNAME[:-7]).read().split('\n')
        hdr = [h for h in head if h.startswith(';') and '@launch' not in h]
        txt = '\n'.join(hdr) + '\n; @launch grid=(256,1,1) block=(256,1,1) lds=%d\n' % LDS_BYTES
        txt += '.amdgcn_target "amdgcn-amd-amdhsa--gfx950"\n.text\n.globl %s\n.p2align 8\n.type %s,@function\n%s:\n' % (KNAME, KNAME, KNAME)
        txt += body + ool + '\nL_code_end:\n'
        txt += '''.section .rodata,"a"
.p2align 6
.amdhsa_kernel %s
  .amdhsa_next_free_vgpr 512
  .amdhsa_next_free_sgpr 102
  .amdhsa_accum_offset 256
  .amdhsa_group_segment_fixed_size 0
  .amdhsa_kernarg_size 88
  .amdhsa_user_sgpr_count 2
  .amdhsa_user_sgpr_kernarg_segment_ptr 1
  .amdhsa_system_sgpr_workgroup_id_x 1
.end_amdhsa_kernel
''' % KNAME
        return txt


if __name__ == '__main__':
    import argparse
    ap = argparse.ArgumentParser()
    ap.add_argument('-o', default='k.s')
    ap.add_argument('--stop', default=None)
    ap.add_argument('--stamps', action='store_true')
    ap.add_argument('opts', nargs='*')
    A = ap.parse_args()
    opt = {k: (x if k in ('probe', 'light') else int(x)) for k, x in (t.split('=') for t in A.opts)}
    g = Gen(stop=A.stop, stamps=A.stamps, **opt)
    open(A.o, 'w').write(g.build())
    if A.stamps:
        open(A.o + '.stamps', 'w').write('\n'.join(g.stamp_names))
    n = {}
    for x in g.final:
        n[x.kind] = n.get(x.kind, 0) + 1
    nops = sum(x.states for x in g.final if x.op == 's_nop')
    print('instructions', n, 'nop states', nops)
```

```python
import sys, struct
from asmgen import *

KNAME = 'interleave_layers__linear_attn_block__mixer_channel_mlp__prompt_kernel'


def f32(x):
    return '0x%08x' % struct.unpack('<I', struct.pack('<f', x))[0]


LOG2E = 1.4426950408889634
LN2 = 0.6931471805599453
MF = 'v_mfma_f32_32x32x16_bf16'

WS_XCC = 0x8000
WS_STAMP = 0x10000
WS_KVP = 0x200000
KVP_CH = 9216
KVP_L = 0xA0000
WS_CL = 0x400000
LOFF = 0xD5000
O_OFF, X1_OFF, H_OFF, XIN_OFF, FL_OFF = 0, 0x20000, 0x40000, 0xB0000, 0xD4000
XIN_BS = 36864
FO, FX1, FXIN, FH = FL_OFF, FL_OFF + 512, FL_OFF + 1024, FL_OFF + 1536

L_WQ = 0
L_XB = 28672
L_EX = 86016
L_XS = 86016
L_WO = 114688
L_KVS = 143616
L_KVB = L_KVS + 16384
L_CS = L_KVB + 2048
L_B2 = L_CS + 768
LDS_BYTES = 163840
assert L_B2 + 512 <= LDS_BYTES

SRD_WQ, SRD_WO, SRD_W1, SRD_W2, SRD_X, SRD_OUT, SRD_B1, SRD_B2, SRD_CL, SRD_WS = range(4, 44, 4)
sC, sM, sW, sNonce, sSlow, sX, sSpin = 44, 45, 46, 47, 48, 49, 50
sT0, sT1, sT2, sT3, sT4, sT5 = 51, 52, 53, 54, 55, 56
sLn2, sXcc, sWi = 57, 58, 59
sN28, sHalf = 60, 62
sZm = 64
sMo, sD1 = 66, 67
sKA = 68
sEb, sLb, sC0, sC1, sHs, sFe = 68, 69, 70, 71, 72, 73
sBlk, sOst, sFo, sFoMy, sKv, sKvMy, sHE, sHL, sPE, sPL = 74, 75, 76, 77, 78, 79, 80, 81, 82, 83
sHst = 84
sRot = 85
sQ0, sQ1 = 86, 87
sFin, sRes = 28, 34
sPm = 88
sStamp = 90
sPC = 92

vLane, vL16, vDummy, vTr, vNonce, vMean, vRl, vW1X, _w1x1, vPoll, vPA = range(0, 11)
vT = 11
vStamp = 15
W2A = 0
W1A = 224
W1V = 176


def w1reg(k):
    return a(W1A + 4 * k, 4) if k < 8 else v(W1V + 4 * (k - 8), 4)


def w1half(k, hh):
    return a(W1A + 4 * k + 2 * hh, 2) if k < 8 else v(W1V + 4 * (k - 8) + 2 * hh, 2)


def flat(LL):
    return [x for L in LL for x in L]


def mfma(D, A, B, first=False):
    return mk('%s %s, %s, %s, %s' % (MF, v(D, 16), A, B, '0' if first else v(D, 16)))


class Gen:
    def __init__(self, stop=None, stamps=False, **opt):
        self.P = Prog()
        self.ool = []
        self.stop = stop
        self.stamps = stamps
        self.nstamp = 0
        self.stamp_names = []
        self.probe = opt.pop('probe', None)
        self.light = opt.pop('light', None)
        if self.light is not None:
            self.light = self.light.split('+')
            assert len(self.light) <= 5
        self.seen = {}
        self.o = dict(kvdelay=10, pollE=13, n3=6, st0=15, flagpos=8, gend=26, pollL=20, lateL=32, flag3=12, xbar=13, lead=16, look=6, pref=0, touch=1, codepf=1, rot=1, stnt=0, idlewq=0, reuse=1, npre=14, wqlate=84, pf0=1, nxb1=8, pfslot=50, w2fill=12, rest0=8, wb=1, wbblk=3, wbsl=100, outf=0, outt=0, idleh=1, idlew2=0, pfw2=1, woslot=42, tslot=84, latespan=24, strot=1, w1b2=70, look2=10, l1touch=0, xsc1=1, storder=0)
        self.o.update(opt)

    def srd(self, r):
        return s(r, 4)

    def stamp(self, name):
        if self.probe is not None:
            self.seen[name] = self.seen.get(name, 0) + 1
            if self.probe == '%s#%d' % (name, self.seen[name]):
                return [I('s_memrealtime s[94:95]', kind='block', states=1)]
            return []
        if not self.stamps:
            return []
        if self.light is not None:
            self.seen[name] = self.seen.get(name, 0) + 1
            key = '%s#%d' % (name, self.seen[name])
            if name == 'end':
                self.stamp_names.append('end')
                t = ['s_memtime s[88:89]', 's_waitcnt lgkmcnt(0)']
                for i, r in enumerate([100] + [90 + 2 * j for j in range(len(self.stamp_names) - 2)] + [88]):
                    t.append('v_writelane_b32 v%d, s%d, %d' % (vStamp, r, i))
                return [I('\n'.join(t), kind='block', drain_lgkm=True)]
            if name != 'start' and key not in self.light:
                return []
            r = 100 if name == 'start' else 90 + 2 * (len(self.stamp_names) - 1)
            self.stamp_names.append(key if name != 'start' else name)
            return [I('s_memtime s[%d:%d]' % (r, r + 1), kind='block')]
        i = self.nstamp
        self.nstamp += 1
        self.stamp_names.append(name)
        t = 's_memtime s[%d:%d]\ns_waitcnt lgkmcnt(0)\nv_writelane_b32 v%d, s%d, %d' % (sStamp, sStamp + 1, vStamp, sStamp, i)
        return [I(t, kind='block', dst=[], src=[], drain_lgkm=True, states=3)]

    def stores(self, lines):
        insts = mk('\n'.join(lines))
        src = [r for x in insts for r in x.src]
        wide = [r for x in insts for r in x.wide]
        ls, lb = self.P.newlabel('Lslow'), self.P.newlabel('Lback')
        txt = 's_cmp_lg_u32 s%d, 0\ns_cbranch_scc1 %s\n%s\n%s:' % (sSlow, ls, '\n'.join(lines), lb)
        self.ool.append('%s:\n%s\ns_branch %s' % (ls, '\n'.join(l + ' sc1' for l in lines), lb))
        return [I(txt, kind='block', src=src, nvm=len(lines), wide=wide, states=1, cost=8 + 4 * len(lines))]

    def flag(self, toks, soff, off=0):
        st = self.stores(['buffer_store_dword v%d, off, %s, s%d offset:%d' % (vNonce, self.srd(SRD_CL), soff, off)])[0]
        st.text = 's_mov_b64 exec, 1\n' + st.text + '\ns_mov_b64 exec, -1'
        st.cost += 8
        return [wait_tok(*toks), st]

    def poll_issue(self, soff):
        return mk('buffer_load_dword v%d, v%d, %s, s%d offen sc1' % (vPoll, vPA, self.srd(SRD_CL), soff))

    def poll_check(self, soff, sleep=0):
        ls, lb = self.P.newlabel('Lspin'), self.P.newlabel('Lgot')
        self.ool.append('\n'.join([
            '%s:' % ls,
            ('s_sleep %d' % sleep) if sleep else '',
            'buffer_load_dword v%d, v%d, %s, s%d offen sc1' % (vPoll, vPA, self.srd(SRD_CL), soff),
            's_add_u32 s%d, s%d, 1' % (sSpin, sSpin),
            's_cmp_gt_u32 s%d, 0x40000' % sSpin,
            's_cbranch_scc1 L_end',
            's_waitcnt vmcnt(0)',
            'v_cmp_ne_u32 vcc, s%d, v%d' % (sNonce, vPoll),
            's_cbranch_vccnz %s' % ls,
            's_branch %s' % lb]))
        c = mk('v_cmp_ne_u32 vcc, s%d, v%d' % (sNonce, vPoll))[0]
        return [I(c.text + '\ns_cbranch_vccnz %s\n%s:' % (ls, lb), kind='block', src=c.src, dst=c.dst, states=2, cost=8)]

    def pa(self, n, blocks=False):
        L = 'v_and_b32 v%d, %d, v0\n' % (vPA, 15 if n <= 16 else 31)
        if n not in (16, 32):
            L += 'v_min_u32 v%d, %d, v%d\n' % (vPA, n - 1, vPA)
        L += 'v_lshlrev_b32 v%d, 2, v%d\n' % (vPA, vPA)
        if blocks:
            L += 'v_lshrrev_b32 v%d, 4, v0\nv_lshl_add_u32 v%d, v%d, 7, v%d' % (vT + 3, vPA, vT + 3, vPA)
        return mk(L)

    def trbase(self, dst, RS, kh, add=0, xor16=None):
        t = vT
        L = ['v_lshrrev_b32 v%d, 5, v%d' % (dst, vLane),
             'v_mul_u32_u24 v%d, %d, v%d' % (dst, kh, dst),
             'v_bfe_u32 v%d, v%d, 2, 2' % (t, vLane),
             'v_add_u32 v%d, v%d, v%d' % (dst, dst, t),
             'v_mul_u32_u24 v%d, %d, v%d' % (dst, RS, dst),
             'v_bfe_u32 v%d, v%d, 4, 1' % (t, vLane)]
        if xor16 is not None:
            L.append('v_xor_b32 v%d, s%d, v%d' % (t, xor16, t))
        L += ['v_lshl_add_u32 v%d, v%d, 5, v%d' % (dst, t, dst),
              'v_and_b32 v%d, 3, v%d' % (t, vLane),
              'v_lshl_add_u32 v%d, v%d, 3, v%d' % (dst, t, dst)]
        if add:
            L.append('v_add_u32 v%d, %d, v%d' % (dst, add, dst))
        return mk('\n'.join(L))

    def frag_loads(self, dsts, srd, sbase, const0, stride=1024, flags='', st=sT0):
        out = []
        cur = None
        for i, d in enumerate(dsts):
            off = const0 + i * stride
            grp = []
            if cur is None or not (0 <= off - cur <= 4095):
                cur = off
                grp += mk('s_add_u32 s%d, s%d, %d' % (st, sbase, off))
            grp += mk('buffer_load_dwordx4 %s, v%d, %s, s%d offen offset:%d %s' % (d, vL16, self.srd(srd), st, off - cur, flags))
            out.append(grp)
        return out

    def stats_finish(self, acc, double_ln):
        t1, t2 = vT + 1, vT + 2
        L = ['v_mov_b32 v%d, v%d' % (t1, acc),
             'v_mov_b32 v%d, v%d' % (vMean, acc),
             'v_permlane32_swap_b32 v%d, v%d' % (vMean, t1),
             'v_mul_f32 v%d, %s, v%d' % (vMean, f32(1.0 / 448), vMean),
             'v_mul_f32 v%d, %s, v%d' % (t1, f32(1.0 / 448), t1),
             'v_fma_f32 v%d, -v%d, v%d, v%d' % (t1, vMean, vMean, t1),
             'v_max_f32 v%d, 0, v%d' % (t1, t1),
             'v_add_f32 v%d, %s, v%d' % (t2, f32(1e-5), t1),
             'v_rsq_f32 v%d, v%d' % (vRl, t2)]
        if double_ln:
            L += ['v_mul_f32 v%d, v%d, v%d' % (t2, vRl, vRl),
                  'v_fmaak_f32 v%d, v%d, v%d, %s' % (t1, t1, t2, f32(1e-5)),
                  'v_rsq_f32 v%d, v%d' % (t1, t1),
                  'v_mul_f32 v%d, v%d, v%d' % (vRl, vRl, t1)]
        else:
            L += ['v_mul_f32 v%d, %s, v%d' % (vRl, f32(LOG2E), vRl)]
        return mk('\n'.join(L))

    def split_act(self, d0, val, t):
        return mk('\n'.join([
            'v_cvt_pk_bf16_f32 v%d, v%d, v%d' % (d0 + 1, val, val),
            'v_and_b32 v%d, 0xffff0000, v%d' % (t, d0 + 1),
            'v_sub_f32 v%d, v%d, v%d' % (t, val, t),
            'v_cvt_pk_bf16_f32 v%d, v%d, v%d' % (d0, val, t),
            'v_and_b32 v%d, 0xffff, v%d' % (d0 + 1, d0 + 1),
            'v_cndmask_b32 v%d, v%d, 0, s[%d:%d]' % (d0 + 1, d0 + 1, sHalf, sHalf + 1)]))

    def split_w(self, d0, val, t):
        return mk('\n'.join([
            'v_cvt_pk_bf16_f32 v%d, v%d, v%d' % (d0, val, val),
            'v_and_b32 v%d, 0xffff0000, v%d' % (t, d0),
            'v_sub_f32 v%d, v%d, v%d' % (t, val, t),
            'v_cvt_pk_bf16_f32 v%d, v%d, 0' % (d0 + 1, t)]))

    def phi8(self, r0, R, T, eps):
        L = ['v_pk_mul_f32 %s, %s, %s' % (v(r0 + i, 2), v(r0 + i, 2), R(i)) for i in range(0, 8, 2)]
        for i in range(8):
            L += ['v_exp_f32 v%d, v%d clamp' % (T + i, r0 + i), 'v_max_f32 v%d, 0, v%d' % (r0 + i, r0 + i)]
        L += ['v_pk_fma_f32 %s, %s, s[%d:%d], %s op_sel:[0,1,0] op_sel_hi:[1,1,1]' % (v(r0 + i, 2), v(r0 + i, 2), sLn2 - 1, sLn2, v(T + i, 2)) for i in range(0, 8, 2)]
        L += ['v_pk_add_f32 %s, %s, %s op_sel_hi:[1,0]' % (v(r0 + i, 2), v(r0 + i, 2), v(eps, 2)) for i in range(0, 8, 2)]
        return mk('\n'.join(L))

    def pack(self, dst, src, n):
        return mk('\n'.join('v_cvt_pk_bf16_f32 v%d, v%d, v%d' % (dst + i, src + 2 * i, src + 2 * i + 1) for i in range(n)))

    def unpack(self, dst, src, n):
        L = []
        for i in reversed(range(n)):
            L.append('v_and_b32 v%d, 0xffff0000, v%d' % (dst + 2 * i + 1, src + i))
            L.append('v_lshlrev_b32 v%d, 16, v%d' % (dst + 2 * i, src + i))
        return mk('\n'.join(L))

    def dots(self, regs, acc, ones, first):
        L = []
        for i, r in enumerate(regs):
            z = first and i == 0
            L.append('v_dot2_f32_bf16 v%d, v%d, v%d, %s' % (acc, r, ones, '0' if z else 'v%d' % acc))
            L.append('v_dot2_f32_bf16 v%d, v%d, v%d, %s' % (acc + 1, r, r, '0' if z else 'v%d' % (acc + 1)))
        return mk('\n'.join(L))

    def dots_end(self, acc):
        return mk('v_permlane32_swap_b32 v%d, v%d\nv_add_f32 v%d, v%d, v%d' % (acc, acc + 1, acc, acc, acc + 1))

    def row_stats(self, src, n, acc, ones):
        return mk('v_mov_b32 v%d, 0x3f803f80' % ones) + self.dots(range(src, src + n), acc, ones, True) + self.dots_end(acc)

    def kv_lane_addr(self, d, t, u, gather):
        L = []
        if gather:
            L += ['v_and_b32 v%d, 31, v0' % t, 'v_lshrrev_b32 v%d, 5, v0' % d]
        else:
            L += ['v_lshrrev_b32 v%d, 5, v0' % t, 'v_and_b32 v%d, 15, v0' % u, 'v_lshl_add_u32 v%d, v%d, 1, v%d' % (t, u, t), 'v_bfe_u32 v%d, v0, 4, 1' % d]
        L += ['v_lshrrev_b32 v%d, 3, v%d' % (u, t), 'v_sub_u32 v%d, v%d, v%d' % (u, t, u)]
        if not gather:
            L += ['v_and_b32 v%d, 7, v%d' % (t, t), 'v_cmp_eq_u32 vcc, 7, v%d' % t, 'v_cndmask_b32 v%d, v%d, 31, vcc' % (u, u)]
        L += ['v_lshl_add_u32 v%d, v%d, 5, v%d' % (d, d, u)]
        sh, qs, base = (4, 10, L_KVS) if gather else (5, 3, L_KVB)
        L += ['s_lshl_b32 s%d, s%d, %d' % (sT2, sW, qs), 'v_lshlrev_b32 v%d, %d, v%d' % (d, sh, d), 'v_add_u32 v%d, s%d, v%d' % (d, sT2, d)]
        L += ['v_and_b32 v%d, 1, v%d' % (t, u), 'v_lshlrev_b32 v%d, %d, v%d' % (t, 5 + sh, t), 'v_lshrrev_b32 v%d, 1, v%d' % (u, u)]
        L += ['v_cmp_gt_u32 vcc, 4, v%d' % u]
        L += ['v_lshl_add_u32 v%d, v%d, %d, v%d' % (t, u, qs, t), 'v_add_u32 v%d, %d, v%d' % (t, 28 << sh, t)]
        L += ['s_and_b64 vcc, vcc, s[%d:%d]' % ((sZm, sZm + 1) if gather else (sPm, sPm + 1)), 'v_cndmask_b32 v%d, v%d, v%d, vcc' % (d, d, t),
              'v_add_u32 v%d, %d, v%d' % (d, base, d)]
        return mk('\n'.join(L))

    def wq_dma(self, groups, vq, rot=False):
        out = []
        for t in groups:
            for p in range(3):
                g = []
                if p == 0:
                    if rot:
                        g += mk('s_add_u32 s%d, s%d, %d\ns_cmp_ge_u32 s%d, 7\ns_cselect_b32 s%d, 7, 0\ns_sub_u32 s%d, s%d, s%d\ns_lshl_b32 s%d, s%d, 2\ns_add_u32 s%d, s%d, s%d'
                                % (sQ1, sRot, t, sQ1, sQ0, sQ1, sQ1, sQ0, sQ1, sQ1, sQ1, sQ1, sW))
                    else:
                        g += mk('s_add_u32 s%d, s%d, %d' % (sQ1, sW, 4 * t))
                    g += mk('s_mul_i32 s%d, s%d, %d\ns_mul_i32 s%d, s%d, 3072' % (sQ0, sQ1, 16 * 2688, sQ1, sQ1))
                g += mk('s_add_u32 m0, s%d, %d' % (sQ1, L_WQ + 1024 * p))
                g += mk('buffer_load_dwordx4 v%d, %s, s%d offen lds' % (vq[p] if isinstance(vq, tuple) else vq + p, self.srd(SRD_WQ), sQ0))
                out.append(g)
        return out

    def wq_addr(self, vq):
        L = ['s_mul_i32 s%d, s%d, 56' % (sT2, sM)]
        t, u = vT, vT + 1
        for p in range(3):
            d = vq + p
            L += ['v_add_u32 v%d, %d, v%d' % (t, 64 * p, vLane),
                  'v_mul_u32_u24 v%d, 0x1556, v%d' % (d, t),
                  'v_lshrrev_b32 v%d, 16, v%d' % (d, d),
                  'v_mul_u32_u24 v%d, 12, v%d' % (u, d),
                  'v_sub_u32 v%d, v%d, v%d' % (t, t, u),
                  'v_mul_u32_u24 v%d, 2688, v%d' % (d, d),
                  'v_lshrrev_b32 v%d, 2, v%d' % (u, t),
                  'v_mul_u32_u24 v%d, 896, v%d' % (u, u),
                  'v_add3_u32 v%d, v%d, v%d, s%d' % (d, d, u, sT2),
                  'v_and_b32 v%d, 3, v%d' % (t, t),
                  'v_lshl_add_u32 v%d, v%d, 4, v%d' % (d, t, d)]
        return mk('\n'.join(L))

    def touch(self, items, va):
        if not self.o['touch']:
            return []
        txt = ['v_lshlrev_b32 v%d, 7, v0' % va]
        cur = None
        n = 0
        for nl, srd, sg, c in items:
            if nl != cur:
                txt.append('s_mov_b64 exec, 0x%x' % ((1 << nl) - 1))
                cur = nl
            txt.append('s_add_u32 s%d, s%d, %d' % (sT2, sg, c) if sg is not None else 's_mov_b32 s%d, %d' % (sT2, c))
            txt.append('buffer_load_dword v%d, v%d, %s, s%d offen sc1' % (vDummy, va, self.srd(srd), sT2))
            n += 1
        txt.append('s_mov_b64 exec, -1')
        return [I('\n'.join(txt), kind='block', nvm=n, dst=[('v', va)], src=[('v', 0)], states=1, cost=12 * n)]

    def touch_attn(self, lo, va):
        pre = mk('s_lshr_b32 s%d, s%d, 2\ns_lshl_b32 s%d, s%d, 10\ns_add_u32 s%d, s%d, s%d' % (sT1, sM, sT1, sT1, sT1, sT1, sBlk))
        return pre + self.touch([(16, SRD_CL, sOst, lo), (16, SRD_CL, sOst, lo + X1_OFF), (8, SRD_CL, sT1, lo + X1_OFF + 28672),
                                 (28, SRD_CL, None, lo + FL_OFF)], va)

    def prefetch(self, va):
        nl = self.o['pref']
        if not nl:
            return []
        txt = 'v_lshlrev_b32 v%d, 7, v0\ns_mul_i32 s%d, s%d, %d\n' % (va, sT2, sWi, nl * 128)
        txt += 's_mov_b32 exec_lo, 0x%x\ns_mov_b32 exec_hi, 0x%x\n' % (((1 << nl) - 1) & 0xffffffff, ((1 << nl) - 1) >> 32)
        txt += 'buffer_load_dword v%d, v%d, %s, s%d offen\ns_mov_b64 exec, -1' % (vDummy, va, self.srd(SRD_W1), sT2)
        return [I(txt, kind='block', nvm=1, src=[('v', 0)], dst=[('v', va)])]

    def idle_work(self):
        va = vT
        l = self.P.newlabel('Lnowarm')
        T = ['s_cmp_lg_u32 s%d, 0' % sSlow, 's_cbranch_scc1 %s' % l,
             'v_lshlrev_b32 v%d, 7, v0' % va,
             's_and_b32 s%d, s%d, 1' % (sT0, sM), 's_lshl_b32 s%d, s%d, 2' % (sT0, sT0), 's_add_u32 s%d, s%d, s%d' % (sT0, sT0, sW)]
        ld = lambda srd, fl: 'buffer_load_dword v%d, v%d, %s, s%d offen %s' % (vDummy, va, self.srd(srd), sT2, fl)
        if self.o['idleh']:
            for i in range(7):
                T += ['s_lshl_b32 s%d, s%d, 13' % (sT2, sT0), 's_add_u32 s%d, s%d, %d' % (sT2, sT2, H_OFF + i * 65536), ld(SRD_CL, 'sc1')]
        if self.o['idlew2']:
            T += ['s_lshr_b32 s%d, s%d, 3' % (sT1, sC), 's_lshl_b32 s%d, s%d, 3' % (sT1, sT1), 's_add_u32 s%d, s%d, s%d' % (sT1, sT1, sT0),
                  's_lshl_b32 s%d, s%d, 13' % (sT1, sT1), 's_and_b32 s%d, s%d, 7' % (sT2, sC), 's_mul_i32 s%d, s%d, %d' % (sT2, sT2, 1568 * 128),
                  's_add_u32 s%d, s%d, s%d' % (sT2, sT2, sT1)]
            for i in range(13):
                T += [ld(SRD_W2, ''), 's_add_u32 s%d, s%d, 131072' % (sT2, sT2), 's_cmp_ge_u32 s%d, %d' % (sT2, 13 * 131072),
                      's_cselect_b32 s%d, %d, 0' % (sT3, 13 * 131072), 's_sub_u32 s%d, s%d, s%d' % (sT2, sT2, sT3)]
        for i in range(3):
            T += ['s_lshl_b32 s%d, s%d, 13' % (sT2, sT0), 's_add_u32 s%d, s%d, %d' % (sT2, sT2, XIN_OFF + i * 65536)]
            if i == 2:
                T += ['s_min_u32 s%d, s%d, %d' % (sT2, sT2, FL_OFF - 8192)]
            T += [ld(SRD_CL, 'sc1')]
        T += [l + ':']
        return '\n'.join(T)

    def prologue(self):
        P = self.P
        o = self.o
        P('s_cmp_ge_u32 s2, 256\ns_cbranch_scc1 L_end')
        if self.probe is not None:
            P.add([I('s_memrealtime s[96:97]\ns_memrealtime s[94:95]', kind='block', states=1)])
        P('s_load_dwordx16 s[%d:%d], s[0:1], 0' % (sKA, sKA + 15))
        P('s_load_dwordx4 s[%d:%d], s[0:1], 64' % (sKA + 16, sKA + 19))
        P('s_load_dwordx2 s[%d:%d], s[0:1], 80' % (sKA + 20, sKA + 21))
        P('v_lshrrev_b32 v%d, 6, v0\nv_and_b32 v0, 63, v0\nv_readfirstlane_b32 s%d, v%d' % (vT, sW, vT))
        P('s_lshr_b32 s%d, s2, 3\ns_lshl_b32 s%d, s%d, 2\ns_add_u32 s%d, s%d, s%d' % (sM, sWi, sM, sWi, sWi, sW))
        if o['codepf']:
            P.add([I('s_getpc_b64 s[%d:%d]\nL_pc:' % (sPC, sPC + 1), kind='block', dst=[], states=1)])
            P('s_lshl_b32 s%d, s%d, 9\nv_lshlrev_b32 v%d, 7, v0\nv_add_u32 v%d, s%d, v%d' % (sT0, sWi, vT, vT, sT0, vT))
            P.add([I('v_min_u32 v%d, L_code_end-L_pc-4, v%d\ns_mov_b64 exec, 15\nglobal_load_dword v%d, v%d, s[%d:%d]\ns_mov_b64 exec, -1'
                     % (vT, vT, vDummy, vT, sPC, sPC + 1), kind='block', dst=[('v', vT)], src=[('v', vT)], nvm=1)])
        P('s_and_b32 s%d, s2, 7\ns_lshr_b32 s%d, s%d, 4\ns_lshl_b32 s%d, s%d, 3\ns_add_u32 s%d, s%d, s%d\ns_and_b32 s%d, s%d, 15'
          % (sC, sT0, sM, sT0, sT0, sC, sC, sT0, sM, sM))
        P('v_lshlrev_b32 v%d, 4, v0' % vL16)
        if self.stamps:
            P('v_mov_b32 v%d, 0' % vStamp)
            P.add(self.stamp('start'))
            P('s_memrealtime s[%d:%d]\ns_waitcnt lgkmcnt(0)\nv_writelane_b32 v%d, s%d, 62' % (sStamp, sStamp + 1, vStamp, sStamp))
        P('s_lshl_b32 s%d, s%d, 2\ns_add_u32 s%d, s%d, s%d\ns_mul_i32 s%d, s%d, %d' % (sX, sC, sX, sX, sW, sX, sX, 32 * 896))
        vq, vxb, vxh, vxa, vrd = 160, 163, 164, 165, 167
        P('v_lshrrev_b32 v%d, 5, v0\nv_and_b32 v%d, 31, v0\nv_xor_b32 v%d, v%d, v%d\nv_lshlrev_b32 v%d, 4, v%d\nv_mul_u32_u24 v%d, 896, v%d'
          % (vxh, vT, vxb, vT, vxh, vxb, vxb, vxh, vxh))
        ka = sKA

        def mksrd(r, p, size):
            P('s_mov_b32 s%d, s%d\ns_mov_b32 s%d, s%d\ns_mov_b32 s%d, %d\ns_mov_b32 s%d, 0x20000' % (r, p, r + 1, p + 1, r + 2, size, r + 3))
        P('s_lshl_b32 s%d, s%d, 14\ns_add_u32 s%d, s%d, %d' % (sT5, sW, sT5, sT5, L_XS))
        mksrd(SRD_X, ka + 0, 2048 * 896)

        def xdma(half):
            out = []
            for i in range(16):
                if half:
                    g = mk('s_mov_b32 s%d, %d\nv_xad_u32 v%d, v%d, s%d, v%d' % (sT0, ((2 * i) & 15) << 4, vxa + (i & 1), vxb, sT0, vxh))
                    g += mk('s_add_u32 s%d, s%d, %d\ns_add_u32 m0, s%d, %d' % (sT1, sX, 2 * i * 896 + 512, sT5, 1024 * i))
                    out.append(g + mk('buffer_load_dwordx4 v%d, %s, s%d offen lds' % (vxa + (i & 1), self.srd(SRD_X), sT1)))
                    continue
                g = mk('s_add_u32 s%d, s%d, %d\ns_and_b32 s%d, s%d, 15' % (sT4, sM, i, sT4, sT4) if o['rot'] else 's_mov_b32 s%d, %d' % (sT4, i))
                g += mk('s_lshl_b32 s%d, s%d, 5\ns_and_b32 s%d, s%d, 0xf0\nv_xad_u32 v%d, v%d, s%d, v%d' % (sT0, sT4, sT0, sT0, vxa + (i & 1), vxb, sT0, vxh))
                g += mk('s_mul_i32 s%d, s%d, 1792\ns_add_u32 s%d, s%d, s%d\ns_lshl_b32 s%d, s%d, 10\ns_add_u32 m0, s%d, s%d' % (sT1, sT4, sT1, sT1, sX, sT4, sT4, sT4, sT5))
                g += mk('buffer_load_dwordx4 v%d, %s, s%d offen lds' % (vxa + (i & 1), self.srd(SRD_X), sT1))
                out.append(g)
            return out
        mksrd(SRD_WQ, ka + 2, 448 * 2688)
        if o['pf0']:
            P('v_lshlrev_b32 v%d, 7, v0\ns_lshl_b32 s%d, s%d, 2\ns_add_u32 s%d, s%d, s%d\ns_mul_i32 s%d, s%d, %d\ns_mul_i32 s%d, s%d, %d\ns_add_u32 s%d, s%d, s%d\ns_mul_i32 s%d, s%d, %d'
              % (vxa, sT0, sM, sT0, sT0, sW, sT0, sT0, 14 * 128, sT1, sC, 128 * 896, sT0, sT0, sT1, sT1, sWi, 74 * 128))
            P.add([I('s_mov_b64 exec, 0x3fff\nbuffer_load_dword v%d, v%d, %s, s%d offen\ns_mov_b64 exec, -1\nbuffer_load_dword v%d, v%d, %s, s%d offen\n'
                     's_add_u32 s%d, s%d, 8192\ns_mov_b64 exec, 0x3ff\nbuffer_load_dword v%d, v%d, %s, s%d offen\ns_mov_b64 exec, -1'
                     % (vDummy, vxa, self.srd(SRD_X), sT0, vDummy, vxa, self.srd(SRD_WQ), sT1, sT1, sT1, vDummy, vxa, self.srd(SRD_WQ), sT1),
                     kind='block', nvm=3, src=[('v', vxa)])])
        body = [x.text for x in xdma(0)[0]]
        body[0] = 's_add_u32 s%d, s%d, s%d' % (sT4, sM, sT2) if o['rot'] else 's_mov_b32 s%d, s%d' % (sT4, sT2)
        loop = I('\n'.join(['s_mov_b32 s%d, 0' % sT2, 'L_xa:'] + body[:-1] + ['s_add_u32 s%d, s%d, 1' % (sT2, sT2), 's_cmp_lt_u32 s%d, 16' % sT2, body[-1],
                                                                            's_cbranch_scc1 L_xa']), kind='block', nvm=16, src=[('v', vxb), ('v', vxh)] + regs_of(s(SRD_X, 4)), dst=[('v', vxa)])
        tA = tok(loop)
        P.add([loop])
        P('s_load_dword s%d, s[%d:%d], 0' % (sNonce, ka + 20, ka + 21))
        P.add(self.wq_addr(vq))
        mksrd(SRD_OUT, ka + 16, 2048 * 896)
        wq = self.wq_dma(range(7), vq)
        self.tok_wq1, self.tok_wq = tok(wq[11][-1]), tok(wq[-1][-1])
        P.add(flat(wq[:12]))
        mksrd(SRD_WO, ka + 4, 448 * 896)
        mksrd(SRD_W1, ka + 8, 448 * 3584)
        P('s_cmp_lt_u32 s%d, 14\ns_cselect_b32 s%d, s%d, 0\ns_cselect_b32 s%d, s%d, 0' % (sM, SRD_WO + 2, SRD_WO + 2, SRD_W1 + 2, SRD_W1 + 2))
        mksrd(SRD_B1, ka + 10, 3584)
        mksrd(SRD_W2, ka + 12, 1792 * 896)
        mksrd(SRD_B2, ka + 14, 896)
        mksrd(SRD_WS, ka + 20, WS_CL)
        P('s_lshl_b32 s%d, s%d, 21\ns_add_u32 s%d, s%d, %d' % (sT0, sC, sT0, sT0, WS_CL))
        P('s_add_u32 s%d, s%d, s%d\ns_addc_u32 s%d, s%d, 0\ns_mov_b32 s%d, 0x200000\ns_mov_b32 s%d, 0x20000'
          % (SRD_CL, ka + 20, sT0, SRD_CL + 1, ka + 21, SRD_CL + 2, SRD_CL + 3))
        P('s_mov_b32 s%d, %s\ns_mov_b32 s%d, 0\ns_mov_b32 s%d, -1' % (sLn2, f32(LN2), sHalf, sHalf + 1))
        P('s_mov_b32 s%d, 0x10000000\ns_mov_b32 s%d, 0x10000000\ns_mov_b32 s%d, 0' % (sN28, sN28 + 1, sSpin))
        P('s_getreg_b32 s%d, hwreg(HW_REG_XCC_ID, 0, 4)' % sXcc)
        P('s_and_b32 s%d, s%d, 1\ns_sub_u32 s%d, 3, s%d' % (sEb, sM, sLb, sEb))
        P('s_cmp_eq_u32 s%d, 3\ns_cselect_b32 s%d, -1, 0\ns_mov_b32 s%d, 0' % (sW, sZm + 1, sZm))
        P('s_lshr_b32 s%d, s%d, 3\ns_lshl_b32 s%d, s%d, 1\ns_add_u32 s%d, s%d, s%d\ns_mul_i32 s%d, s%d, 7\ns_add_u32 s%d, s%d, 1\ns_lshr_b32 s%d, s%d, 1'
          % (sD1, sC, sMo, sD1, sMo, sMo, sEb, sMo, sMo, sMo, sMo, sMo, sMo))
        if not o['strot']:
            P('s_mov_b32 s%d, 0\ns_mov_b32 s%d, 0' % (sMo, sD1))
        c0 = -2.0 * 0.7978845608028654 * LOG2E
        P('s_mov_b32 s%d, %s\ns_mov_b32 s%d, %s' % (sC0, f32(c0), sC1, f32(c0 * 0.044715)))
        P('s_lshr_b32 s%d, s%d, 1\ns_lshl_b32 s%d, s%d, 2\ns_and_b32 s%d, s%d, 1\ns_lshl_b32 s%d, s%d, 1\ns_add_u32 s%d, s%d, s%d\ns_lshr_b32 s%d, s%d, 1\ns_add_u32 s%d, s%d, s%d'
          % (sFe, sM, sFe, sFe, sT0, sW, sT0, sT0, sFe, sFe, sT0, sT0, sW, sFe, sFe, sT0))
        P('s_lshl_b32 s%d, s%d, 15\ns_lshl_b32 s%d, s%d, 11\ns_add_u32 s%d, s%d, s%d' % (sBlk, sW, sOst, sM, sOst, sOst, sBlk))
        P('s_lshl_b32 s%d, s%d, 7\ns_add_u32 s%d, s%d, %d\ns_lshl_b32 s%d, s%d, 2\ns_add_u32 s%d, s%d, s%d' % (sFo, sW, sFo, sFo, FL_OFF, sT0, sM, sFoMy, sFo, sT0))
        P('s_lshl_b32 s%d, s%d, 2\ns_add_u32 s%d, s%d, s%d\ns_mul_i32 s%d, s%d, %d\ns_add_u32 s%d, s%d, %d' % (sT1, sM, sT1, sT1, sW, sKv, sT1, KVP_CH, sKv, sKv, WS_KVP))
        P('s_lshl_b32 s%d, s%d, 9\ns_add_u32 s%d, s%d, s%d' % (sKvMy, sC, sKvMy, sKvMy, sKv))
        P('s_lshl_b32 s%d, s%d, 11\ns_add_u32 s%d, s%d, %d' % (sHst, sT1, sHst, sHst, H_OFF))
        P('s_lshl_b32 s%d, s%d, 11\ns_add_u32 s%d, s%d, %d' % (sT1, sW, sT1, sT1, H_OFF))
        P('s_mul_i32 s%d, s%d, 114688\ns_add_u32 s%d, s%d, s%d\ns_mul_i32 s%d, s%d, 114688\ns_add_u32 s%d, s%d, s%d' % (sHE, sEb, sHE, sHE, sT1, sHL, sLb, sHL, sHL, sT1))
        P('s_lshl_b32 s%d, s%d, 9\ns_add_u32 s%d, s%d, s%d\ns_add_u32 s%d, s%d, %d' % (sPE, sEb, sPE, sPE, sFo, sPE, sPE, FH - FL_OFF))
        P('s_lshl_b32 s%d, s%d, 9\ns_add_u32 s%d, s%d, s%d\ns_add_u32 s%d, s%d, %d' % (sPL, sLb, sPL, sPL, sFo, sPL, sPL, FH - FL_OFF))
        self.xreg0 = xr = [16 + 4 * i if i < 20 else 176 + 4 * (i - 20) for i in range(28)]
        P('v_and_b32 v%d, 15, v0\nv_lshrrev_b32 v%d, 5, v0\nv_xor_b32 v%d, v%d, v%d\nv_lshlrev_b32 v%d, 4, v%d\nv_and_b32 v%d, 31, v0\nv_lshl_add_u32 v%d, v%d, 9, v%d\nv_add_u32 v%d, s%d, v%d'
          % (vT, vrd, vrd, vrd, vT, vrd, vrd, vT, vrd, vT, vrd, vrd, sT5, vrd))
        xrd = lambda k: mk('v_xor_b32 v%d, %d, v%d\nds_read_b128 %s, v%d' % (vrd + 1 + (k & 1), 32 * (k & 15), vrd, v(xr[k], 4), vrd + 1 + (k & 1)))
        vrs = vrd + 3
        P('v_and_b32 v%d, 15, v0\nv_lshlrev_b32 v%d, 4, v%d\nv_lshrrev_b32 v%d, 5, v0\nv_lshl_add_u32 v%d, v%d, 3, v%d\nv_and_b32 v%d, 31, v0\nv_lshl_add_u32 v%d, v%d, 9, v%d\nv_add_u32 v%d, s%d, v%d'
          % (vrs, vrs, vrs, vT, vrs, vT, vrs, vT, vrs, vT, vrs, vrs, sT5, vrs))
        P('s_and_b32 s%d, s%d, 7\ns_lshl_b32 s%d, s%d, 6\nv_xor_b32 v%d, s%d, v%d' % (sT0, sM, sT0, sT0, vrs, sT0, vrs))

        def resrd(half):
            l = P.newlabel('Lres')
            t = ['s_cmp_%s_u32 s%d, 8' % ('lt' if half else 'ge', sM), 's_cbranch_scc1 %s' % l]
            for g in range(4):
                t += ['v_xor_b32 v%d, %d, v%d' % (vrs + 1, 16 * g, vrs), 'ds_read_b64 %s, v%d' % (a(216 + 2 * g, 2), vrs + 1)]
            return [I('\n'.join(t + [l + ':']), kind='block', src=[('v', vrs)], dst=[('v', vrs + 1)])]
        P.add(self.stamp('issued'))
        P.add([wait_tok(tA)])
        P.add(self.stamp('xA'))
        for k in range(16):
            P.add(xrd(k))
        P.add(resrd(0))
        vS, vOne = vT + 2, vT + 1
        P('v_mov_b32 v%d, 0x3f803f80\ns_waitcnt lgkmcnt(0)' % vOne)
        xb = xdma(1)
        self.tok_xb = tok(xb[-1][-1])
        d = self.dots([xr[k] + i for k in range(16) for i in range(4)], vS, vOne, True)
        P.add(spread(xb[:o['nxb1']], d))
        self.late_dma = xb[o['nxb1']:] + wq[12:]
        self.late_rd = [xrd(k) for k in range(16, 28)] + [resrd(1)]
        self.late_dots = self.dots([xr[k] + i for k in range(16, 28) for i in range(4)], vS, vOne, False) + self.dots_end(vS)
        P('s_add_u32 s%d, s%d, 0x01010101' % (sNonce, sNonce))
        P('v_mov_b32 v%d, s%d' % (vNonce, sNonce))
        P('s_lshl_b32 s%d, s%d, 4\ns_add_u32 s%d, s%d, s%d\ns_lshl_b32 s%d, s%d, 7\ns_add_u32 s%d, s%d, %d'
          % (sT2, sC, sT2, sT2, sM, sT2, sT2, sT2, sT2, WS_XCC))
        P('s_add_u32 s%d, s%d, s%d\nv_mov_b32 v%d, s%d\ns_mov_b64 exec, 1' % (sT3, sNonce, sXcc, vT, sT3))
        P('buffer_store_dword v%d, off, %s, s%d sc1' % (vT, self.srd(SRD_WS), sT2))
        P('s_mov_b64 exec, -1')

    def s1(self, l):
        P = self.P
        o = self.o
        AK, AV, AQ, WB, SB = 96, 112, 128, 144, 160
        RLB, XE = SB, SB + 8
        NB = 4
        vS = vT + 2
        P.comment('==== layer %d : S1' % l)
        d2 = 4 * 192 if l == 0 else 8 * 192
        fin = self.stats_finish(vS, False)
        fin += mk('s_lshl_b32 s%d, s%d, 12\ns_add_u32 s%d, s%d, %d' % (sT4, sW, sT4, sT4, L_KVS))
        bounce = mk('v_and_b32 v%d, 31, v0\nv_lshl_add_u32 v%d, v%d, 2, s%d\nds_write_b32 v%d, v%d' % (vT + 1, vT + 1, vT + 1, sT4, vT + 1, vRl))
        fin += bounce
        fin += mk('v_sub_f32 v%d, 0, v%d' % (vMean, vMean)) + self.split_act(XE, vMean, vT)
        fin += mk('v_cndmask_b32 v%d, v%d, 0, s[%d:%d]\nv_mov_b32 v%d, 0\nv_mov_b32 v%d, 0' % (XE, XE, sHalf, sHalf + 1, XE + 2, XE + 3))
        if l == 0:
            xreg = self.xreg0
            P.add(self.trbase(vTr, 192, 8, add=L_WQ))
            P.add([wait_tok(self.tok_wq1)])
            P('s_barrier')
            P.add(self.stamp('wq_ready'))
            lds = []
        else:
            xreg = [16 + 4 * (i % 20) for i in range(28)]
            P.add(self.pa(28))
            P('s_add_u32 s%d, s%d, %d' % (sT4, sFo, FXIN - FL_OFF))
            P.add(self.poll_issue(sT4))
            P('s_mul_i32 s%d, s%d, %d' % (sT5, sW, XIN_BS))
            P.add(self.trbase(vTr, 192, 4, add=L_WQ))
            lds = self.frag_loads([v(r, 4) for r in xreg], SRD_CL, sT5, XIN_OFF)
        jobs = []
        for k in range(28):
            if l == 0 and k == 16:
                jobs += [(t.upper(), kk) for kk in range(7) for t in 'qkv']
            jobs += [('k', k), ('v', k)] + ([('q', k)] if k < 8 else [])
        jobs += [('k', 'e'), ('v', 'e')]
        nmain = len(jobs)
        jobs += [('q', k) for k in range(8, 28)] + [('q', 'e')]
        vTr2, vCs = vT + 3, vPA
        vo, vb, CSA = RLB, RLB + 4, 208

        def rd(j):
            t, k = jobs[j]
            b = WB + 4 * (j % NB)
            if k == 'e':
                return mk('ds_read_b64 %s, v%d offset:%d\nv_mov_b32 v%d, 0\nv_mov_b32 v%d, 0' % (v(b, 2), vCs, 256 * 'qkv'.index(t), b + 2, b + 3))
            base, off = (vb, k * 3072) if t.isupper() else (vTr, k * 3072) if k < 16 else (vTr2, (k - 16) * 3072)
            off += 64 * 'qkv'.index(t.lower())
            return mk('ds_read_b64_tr_b16 %s, v%d offset:%d\nds_read_b64_tr_b16 %s, v%d offset:%d' % (v(b, 2), base, off, v(b + 2, 2), base, off + d2))
        tr2 = mk('v_add_u32 v%d, %d, v%d' % (vTr2, 16 * 3072, vTr))
        if l == 1:
            P.add(tr2)
        for j in range(NB):
            P.add(rd(j))
        if l == 1:
            P.add(self.poll_check(sT4))
            P.add(self.stamp('x2_seen'))
            P.add(flat(lds[:o['look']]))
            P('s_add_u32 s%d, s%d, 1\nv_mov_b32 v%d, s%d' % (sNonce, sNonce, vNonce, sNonce))
        P('v_and_b32 v%d, 31, v0\nv_lshlrev_b32 v%d, 3, v%d\nv_add_u32 v%d, %d, v%d' % (vCs, vCs, vCs, vCs, L_CS, vCs))
        slots = []
        for j, (t, k) in enumerate(jobs):
            w = v(WB + 4 * (j % NB), 4)
            if t.isupper():
                sl = mfma(CSA + 16 * 'QKV'.index(t), v(vo, 4), w, k == 0)
            else:
                x = v(XE if k == 'e' else xreg[k], 4)
                A, B = (w, x) if t == 'q' else (x, w)
                sl = mfma({'q': AQ, 'k': AK, 'v': AV}[t], A, B, k == 0)
            if l == 0 and j == 40 - NB:
                sl += [wait_tok(self.tok_wq)] + mk('s_waitcnt lgkmcnt(0)\ns_barrier') + (self.stamp('bar2') if self.light else [])
                sl += mk('s_mul_i32 s%d, s%d, %d\nv_add_u32 v%d, s%d, v%d' % (sT0, sW, 7 * 3072, vb, sT0, vTr))
            if j + NB < len(jobs) and not (j < nmain <= j + NB):
                sl += rd(j + NB)
            slots.append(sl)
        c0 = 21 if l == 0 else 0
        if l == 0:
            n = len(self.late_dma)
            for i, g in enumerate(self.late_dma):
                slots[(i * o['latespan']) // n] += g
            slots[28] += [wait_tok(self.tok_xb)]
            for i, g in enumerate(self.late_rd):
                slots[28 + i // 2] += g
            slots[37] += mk('\n'.join('v_mov_b32 v%d, 0x3f803f80' % (vo + i) for i in range(4)))
            slots[39] += self.late_dots + fin + tr2
            for i, g in enumerate(self.wo_dma(175)):
                slots[o['woslot'] + 2 * i] += g
            slots[o['tslot']] += self.touch_attn(0, vT)
            slots[62] += mk('v_and_b32 v%d, 31, v0\nv_lshlrev_b32 v%d, 2, v%d\ns_mul_i32 s%d, s%d, 384\nv_add_u32 v%d, %d, v%d\nv_add_u32 v%d, s%d, v%d'
                            % (vb, vb, vb, sT0, sW, vb, L_KVB, vb, vb + 1, sT0, vb))
            slots[63] += mk('\n'.join('ds_write_b32 v%d, v%d offset:%d' % (vb + 1, CSA + 16 * t, 128 * t) for t in range(3)))
            slots[65] += mk('s_waitcnt lgkmcnt(0)\ns_barrier')
            for t in range(3):
                r = RLB
                tt = (1, 2, 0)[t]
                slots[65 + 5 * t] += mk('\n'.join('ds_read_b32 v%d, v%d offset:%d' % (r + ww, vb, 384 * ww + 128 * tt) for ww in range(4)))
                slots[68 + 5 * t] += mk('v_add_f32 v%d, v%d, v%d\nv_add_f32 v%d, v%d, v%d\nv_add_f32 v%d, v%d, v%d' % (r, r, r + 1, r + 2, r + 2, r + 3, r, r, r + 2))
                slots[69 + 5 * t] += self.split_w(r + 2, r, r + 1) + mk('ds_write_b64 v%d, %s offset:%d' % (vCs, v(r + 2, 2), 256 * tt))
        else:
            n = o['look']
            for j in range(0, nmain, 2):
                if n < 28:
                    k_free = n - 20
                    assert k_free < 0 or j >= jobs.index(('q', k_free))
                    slots[j] += lds[n]
                    n += 1
            st = self.frag_loads([v(SB + 4 * (i % 4), 4) for i in range(7)], SRD_CL, sT5, XIN_OFF + 28672, st=sT1)
            for i in range(4):
                slots[25 + 2 * i] += st[i]
            ex = []
            for i in range(1, 16):
                ex += mk('v_add_f32 v%d, v%d, v%d' % (vS, vS if i > 1 else SB, SB + i))
            for i in range(0, 15, 3):
                slots[40 + i // 3] += ex[i:i + 3]
            for i in range(3):
                slots[45 + i] += st[4 + i]
            ex = flat(mk('v_add_f32 v%d, v%d, v%d' % (vS, vS, SB + i)) for i in range(12)) + fin
            per = (len(ex) + 8) // 9
            for i in range(9):
                slots[54 + i] += ex[i * per:(i + 1) * per]
        RB = [WB + 4 * ((nmain - 4 + g) % NB) for g in range(4)]
        vEps = vT + 1
        slots[nmain - 5] += mk('v_lshrrev_b32 v%d, 5, v0\nv_lshl_add_u32 v%d, v%d, 4, s%d' % (vT + 2, vT + 2, vT + 2, sT4))
        for g in range(4):
            slots[nmain - 4 + g] += mk('ds_read_b128 %s, v%d offset:%d' % (v(RB[g], 4), vT + 2, 32 * g))
        slots[nmain - 1] += mk('v_mov_b32 v%d, 0x3f803f80\nv_add_u32 v%d, s%d, v%d\nv_mov_b32 v%d, %s' % (vPoll, vT, sT4, vL16, vEps, f32(1e-6)))
        vG = SB + 12
        ga = self.kv_lane_addr(vG, vG + 1, vG + 2, gather=True)
        for i in range(0, len(ga), 3):
            slots[46 + c0 // 3 + i // 3] += ga[i:i + 3]
        P.add(flat(slots[:nmain]))
        P.add(self.stamp('s1_kv_mfma'))
        DK = WB
        for hf in range(2):
            R = lambda i: v(RB[2 * hf + i // 4] + i % 4, 2)
            P.add(self.phi8(AK + 8 * hf, R, RLB, vEps) + self.pack(AK + 4 * hf, AK + 8 * hf, 4))
            P.add(flat(mk('v_pk_mul_f32 %s, %s, %s' % (v(AV + 8 * hf + i, 2), v(AV + 8 * hf + i, 2), R(i))) for i in range(0, 8, 2)))
            P.add(self.pack(AV + 4 * hf, AV + 8 * hf, 4))
            for i in range(4):
                P('v_cndmask_b32 v%d, v%d, v%d, s[%d:%d]' % (AV + 4 * hf + i, AV + 4 * hf + i, vPoll, sN28, sN28 + 1))
        P.add(mfma(DK, v(AK, 4), v(AV, 4), True) + mfma(DK, v(AK + 4, 4), v(AV + 4, 4)))
        P('s_mov_b32 s%d, 0x80808080\ns_mov_b32 s%d, 0x80808080' % (sT0 + 1, sT0 + 2))
        for q in range(4):
            P('ds_write_b128 v%d, %s offset:%d' % (vT, v(DK + 4 * q, 4), 1024 * q))
        P('v_lshlrev_b32 v%d, 3, v0\ns_waitcnt lgkmcnt(0)\ns_barrier' % vT)
        for ww in range(4):
            P('ds_read_b128 %s, v%d offset:%d' % (v(AK + 4 * ww, 4), vG, 4096 * ww))
        for j in range(nmain, nmain + NB):
            P.add(rd(j))
        for x, y in ((AK, AK + 4), (AK + 8, AK + 12), (AK, AK + 8)):
            for i in (0, 2):
                P('v_pk_add_f32 %s, %s, %s' % (v(x + i, 2), v(x + i, 2), v(y + i, 2)))
        P.add(self.pack(AK, AK, 2))
        for i in range(2):
            P('v_cndmask_b32 v%d, v%d, v%d, s[%d:%d]' % (AK + i, AK + i, vNonce, sT0 + 1, sT0 + 2))
        P('buffer_store_dwordx2 %s, v%d, %s, s%d offen sc1' % (v(AK, 2), vT, self.srd(SRD_WS), sKvMy))
        P.add(self.stamp('kv_pub'))
        PQ = self.PQ = 104

        def qepi():
            L = []
            for hf in range(2):
                L += self.phi8(AQ + 8 * hf, lambda i: v(vRl, 2) + ' op_sel_hi:[1,0]', 48, vEps) + self.pack(PQ + 4 * hf, AQ + 8 * hf, 4)
            for i in (6, 7):
                L += mk('v_cndmask_b32 v%d, v%d, 0, s[%d:%d]' % (PQ + i, PQ + i, sHalf, sHalf + 1))
            return L
        if l == 0:
            self.staging(slots[nmain:], qepi)
        else:
            P.add(spread(slots[nmain:], self.kvx_pre(1)))
            P.add(qepi())

    PARK = 140

    def wo_dma(self, vwo):
        wo = [mk('v_lshrrev_b32 v%d, 2, v0\nv_mul_u32_u24 v%d, 896, v%d\nv_and_b32 v%d, 3, v0\nv_lshl_add_u32 v%d, v%d, 4, v%d\ns_lshl_b32 s%d, s%d, 6\nv_add_u32 v%d, s%d, v%d'
                 % (vwo, vwo, vwo, vT, vwo, vT, vwo, sQ0, sM, vwo, sQ0, vwo))
              + mk('s_mul_i32 s%d, s%d, %d\ns_lshl_b32 s%d, s%d, 10\ns_add_u32 s%d, s%d, %d' % (sQ1, sW, 16 * 896, sT3, sW, sT3, sT3, L_WO))]
        for t in range(7):
            wo.append(mk('s_add_u32 m0, s%d, %d\ns_add_u32 s%d, s%d, %d\nbuffer_load_dwordx4 v%d, %s, s%d offen lds' % (sT3, 4096 * t, sQ0, sQ1, t * 64 * 896, vwo, self.srd(SRD_WO), sQ0)))
        last = I('s_mov_b32 s%d, %d\ns_mov_b32 m0, %d\ns_mov_b64 exec, 0xffff\nbuffer_load_dwordx4 v%d, %s, s%d offen lds\ns_mov_b64 exec, -1'
                 % (sQ0, 448 * 896, L_WO + 28672, vwo, self.srd(SRD_WO), sQ0), kind='block', nvm=1, src=[('v', vwo)])
        self.tok_wo = tok(last)
        return wo + [[last]]

    def staging(self, qslots, qepi):
        P = self.P
        lskip, ljoin = P.newlabel('Lnostage'), P.newlabel('Lstaged')
        v1a, t0, t1, vp, vb, vb2 = 112, 113, 114, 115, 120, 168
        P('v_lshrrev_b32 v%d, 2, v0\nv_mul_u32_u24 v%d, 3584, v%d\nv_and_b32 v%d, 3, v0\nv_lshl_add_u32 v%d, v%d, 4, v%d'
          % (v1a, v1a, v1a, vT, v1a, vT, v1a))
        P('s_lshl_b32 s%d, s%d, 2\ns_add_u32 s%d, s%d, s%d\ns_lshl_b32 s%d, s%d, 6\nv_add_u32 v%d, s%d, v%d' % (sT5, sM, sT5, sT5, sW, sT5, sT5, v1a, sT5, v1a))
        P('s_mul_i32 s%d, s%d, 7168\ns_add_u32 s%d, s%d, %d\ns_mul_i32 s%d, s%d, 21504\ns_mul_i32 s%d, s%d, %d' % (sT3, sW, sT3, sT3, L_EX, sQ1, sW, sWi, sD1, 14 * 16 * 3584))

        def issue(k):
            g = mk('s_add_u32 m0, s%d, %d' % ((sT3, 1024 * k) if k < 7 else (sQ1, 1024 * (k - 7))))
            g += mk('s_add_u32 s%d, s%d, %d' % (sQ0, sWi, k * 16 * 3584) if k < 14 else 's_sub_u32 s%d, %d, s%d' % (sQ0, k * 16 * 3584, sWi))
            g += mk('buffer_load_dwordx4 v%d, %s, s%d offen lds' % (v1a, self.srd(SRD_W1), sQ0))
            return g
        dm = [issue(k) for k in range(28)]
        tk = [tok(g[-1]) for g in dm]
        park = mk('\n'.join('v_accvgpr_read_b32 v%d, a%d' % (160 + i, 216 + i) for i in range(8)))
        park += mk('v_add_u32 v%d, s%d, v%d' % (vp, sQ1, vL16))
        park += flat(mk('ds_read_b128 %s, v%d offset:%d' % (a(self.PARK + 4 * i, 4), vp, 1024 * i)) for i in range(21))
        for i, g in enumerate(dm[:7]):
            qslots[2 * i] += g
        P.add(spread(qslots, park))
        P('s_lshl_b32 s%d, s%d, 11\ns_add_u32 s%d, s%d, %d' % (sT4, sC, sT4, sT4, WS_XCC))
        P('v_and_b32 v%d, 15, v0\nv_lshlrev_b32 v%d, 7, v%d' % (vPA, vPA, vPA))
        P('buffer_load_dword v%d, v%d, %s, s%d offen sc1' % (vPoll, vPA, self.srd(SRD_WS), sT4))
        P('s_waitcnt lgkmcnt(0)\ns_barrier')
        P.add([I('s_cmp_ge_u32 s%d, 14\ns_cbranch_scc1 %s' % (sM, lskip), kind='block')])
        txt, _ = finalize(mk('s_nop 7') + qepi())
        self.ool.append('%s:\n%s\ns_waitcnt vmcnt(0)\ns_branch %s' % (lskip, '\n'.join(t.strip() for t in txt.split('\n')), ljoin))
        ad = self.trbase(t1, 64, 4) + mk('v_add_u32 v%d, s%d, v%d\nv_add_u32 v%d, s%d, v%d' % (t0, sT3, t1, t1, sQ1, t1))
        ad += mk('v_and_b32 v%d, 31, v0\nv_lshlrev_b32 v%d, 1, v%d\nbuffer_load_ushort v%d, v%d, %s, s%d offen' % (vT, vT, vT, vb, vT, self.srd(SRD_B1), sT5))
        ad += mk('v_lshrrev_b32 v%d, 5, v0\nv_lshlrev_b32 v%d, 3, v%d\ns_lshl_b32 s%d, s%d, 5' % (vT, vT, vT, sT2, sFe))
        ad += mk('buffer_load_dwordx2 %s, v%d, %s, s%d offen\nbuffer_load_dwordx2 %s, v%d, %s, s%d offen offset:16'
                 % (v(vb2, 2), vT, self.srd(SRD_B2), sT2, v(vb2 + 2, 2), vT, self.srd(SRD_B2), sT2))
        vo, D = 124, 128
        P.add(spread(dm[7:], qepi() + ad + mk('\n'.join('v_mov_b32 v%d, 0x3f803f80' % (vo + i) for i in range(4)))))
        if self.light:
            P.add(self.stamp('st_iss'))
        for k in range(28):
            va, o = (t0, 1024 * k) if k < 7 else (t1, 1024 * (k - 7))
            P.add([wait_tok(tk[k])] + mk('ds_read_b64_tr_b16 %s, v%d offset:%d\nds_read_b64_tr_b16 %s, v%d offset:%d' % (w1half(k, 0), va, o, w1half(k, 1), va, o + 512)))
            if k >= 2:
                P.add(mfma(D, v(vo, 4), w1reg(k - 2), k == 2))
        P.add(mfma(D, v(vo, 4), w1reg(26)) + mfma(D, v(vo, 4), w1reg(27)))
        P.add(self.unpack(144, vb2, 4) + mk('\n'.join('v_mov_b32 v%d, 0' % r for r in range(152, 156))))
        P('s_lshl_b32 s%d, s%d, 7\ns_add_u32 s%d, s%d, %d\nv_lshrrev_b32 v%d, 5, v0\nv_lshl_add_u32 v%d, v%d, 6, s%d' % (sT0, sW, sT0, sT0, L_B2, vT, vT, vT, sT0))
        for q in range(4):
            P('ds_write_b128 v%d, %s offset:%d' % (vT, v(144 + 4 * min(q, 2), 4), 16 * q))
        P.add(self.split_w(vW1X, D, vT + 1) + mk('v_lshl_or_b32 v%d, v%d, 16, v%d' % (vb, vb, vb)))
        P('v_cndmask_b32 v%d, v%d, v%d, s[%d:%d]\nv_cndmask_b32 v%d, v%d, 0, s[%d:%d]' % (vW1X, vW1X, vb, sHalf, sHalf + 1, vW1X + 1, vW1X + 1, sHalf, sHalf + 1))
        P.label(ljoin)
        P.add([I('s_nop 1', kind='block', states=2)])

    def w2_prefetch(self, va, part):
        txt = ['s_lshr_b32 s%d, s%d, 3' % (sQ0, sC), 's_mul_i32 s%d, s%d, 14' % (sQ0, sQ0), 's_add_u32 s%d, s%d, s%d' % (sQ0, sQ0, sM),
               's_lshl_b32 s%d, s%d, 2' % (sQ0, sQ0), 's_add_u32 s%d, s%d, s%d' % (sQ0, sQ0, sW), 's_mul_i32 s%d, s%d, %d' % (sQ0, sQ0, 56 * 128),
               's_add_u32 s%d, s%d, %d' % (sQ0, sQ0, part * 112 * 56 * 128), 'v_lshlrev_b32 v%d, 7, v0' % va, 's_mov_b32 exec_hi, 0xffffff',
               'buffer_load_dword v%d, v%d, %s, s%d offen' % (vDummy, va, self.srd(SRD_W2), sQ0), 's_mov_b64 exec, -1']
        return [I('\n'.join(txt), kind='block', nvm=1, src=[('v', 0)], dst=[('v', va)], cost=48)]

    def w2_addr(self, R):
        v2a, tA, tB, vp = R, R + 1, R + 3, R + 5
        L = mk('v_lshrrev_b32 v%d, 3, v0\nv_mul_u32_u24 v%d, 896, v%d\nv_lshrrev_b32 v%d, 2, v0\nv_and_b32 v%d, 4, v%d\nv_xor_b32 v%d, v%d, v0\nv_and_b32 v%d, 7, v%d\nv_lshl_add_u32 v%d, v%d, 4, v%d'
               % (v2a, v2a, v2a, vT, vT, vT, vT, vT, vT, vT, v2a, vT, v2a))
        L += mk('s_lshr_b32 s%d, s%d, 1\ns_lshl_b32 s%d, s%d, 7\ns_mul_i32 s%d, s%d, %d\ns_add_u32 s%d, s%d, s%d\nv_add_u32 v%d, s%d, v%d'
                % (sT0, sM, sT0, sT0, sT2, sW, 32 * 896, sT0, sT0, sT2, v2a, sT0, v2a))
        L += mk('s_mul_i32 s%d, s%d, 7168\ns_add_u32 s%d, s%d, %d\ns_lshl_b32 s%d, s%d, 12\ns_add_u32 s%d, s%d, %d'
                % (sRot, sW, sRot, sRot, L_EX, sQ1, sW, sQ1, sQ1, L_KVS))
        L += mk('s_lshr_b32 s%d, s%d, 1' % (sT0, sW)) + self.trbase(tA, 128, 4, xor16=sT0)
        L += mk('s_and_b32 s%d, s%d, 1\nv_bfe_u32 v%d, v0, 3, 1\nv_xor_b32 v%d, s%d, v%d\nv_lshl_add_u32 v%d, v%d, 6, v%d\nv_xor_b32 v%d, 64, v%d'
                % (sT0, sW, vT, vT, sT0, vT, tA, vT, tA, tA + 1, tA))
        L += mk('v_add_u32 v%d, s%d, v%d\nv_add_u32 v%d, s%d, v%d\nv_add_u32 v%d, s%d, v%d\nv_add_u32 v%d, s%d, v%d' % (tB, sQ1, tA, tB + 1, sQ1, tA + 1, tA, sRot, tA, tA + 1, sRot, tA + 1))
        L += mk('s_mul_i32 s%d, s%d, 21504\nv_add_u32 v%d, s%d, v%d' % (sT0, sW, vp, sT0, vL16))
        return L

    def w2_stage(self, fill, R, extra):
        P = self.P
        v2a, tA, tB, vp = R, R + 1, R + 3, R + 5
        NS = 5

        def issue(u):
            out = []
            base, o = (sRot, (u % NS) * 2048) if u % NS < 3 else (sQ1, (u % NS - 3) * 2048)
            for i in range(2):
                g = mk('s_add_u32 m0, s%d, %d' % (base, o + 1024 * i))
                g += mk('s_mov_b32 s%d, %d' % (sQ0, (128 * (u // 2) + 16 * (u % 2) + 8 * i) * 896))
                out += g + mk('buffer_load_dwordx4 v%d, %s, s%d offen lds' % (v2a, self.srd(SRD_W2), sQ0))
            return out, tok(out[-1])
        tk = []
        for u in range(NS - 1):
            g, t = issue(u)
            tk.append(t)
            P.add(g)
        steps = []
        for u in range(28):
            ta, o = (tA, (u % NS) * 2048) if u % NS < 3 else (tB, (u % NS - 3) * 2048)
            L = []
            if u + NS - 1 < 28:
                if u:
                    L += [wait_tok(prev_rd)]
                g, t = issue(u + NS - 1)
                tk.append(t)
                L += g
            L += [wait_tok(tk[u])]
            for js in range(2):
                b = W2A + 8 * u + 4 * js
                L += mk('ds_read_b64_tr_b16 %s, v%d offset:%d\nds_read_b64_tr_b16 %s, v%d offset:%d' % (a(b, 2), ta + js, o, a(b + 2, 2), ta + js, o + 1024))
            prev_rd = tok(L[-1])
            L += extra.get(u, [])
            if self.light:
                L += self.stamp('w2_%d' % u)
            r0 = self.o['rest0']
            for i in range(21):
                if u == r0 + (i * (26 - r0)) // 21:
                    assert u < 17 + (i + 1) // 2
                    L += mk('ds_write_b128 v%d, %s offset:%d' % (vp, a(self.PARK + 4 * i, 4), 1024 * i))
            steps.append(L)
        P.add(spread(steps, fill, start=0, end=self.o['w2fill']))

    K10 = 98

    def kvx_pre(self, l):
        L = []
        RES = 160
        if l == 1:
            L += mk('s_lshl_b32 s%d, s%d, 11\ns_add_u32 s%d, s%d, s%d\ns_add_u32 s%d, s%d, %d' % (sT1, sM, sT0, sT5, sT1, sT0, sT0, XIN_OFF))
            for j in range(2):
                L += mk('buffer_load_dwordx4 %s, v%d, %s, s%d offen offset:%d' % (v(RES + 4 * j, 4), vL16, self.srd(SRD_CL), sT0, 1024 * j))
            L += [I('s_mul_i32 s%d, s%d, %d\ns_add_u32 s%d, s%d, s%d\ns_addc_u32 s%d, s%d, 0\ns_sub_u32 s%d, s%d, s%d'
                    % (sT0, sSlow, LOFF, SRD_CL, SRD_CL, sT0, SRD_CL + 1, SRD_CL + 1, SRD_CL + 2, SRD_CL + 2, sT0), kind='block', cost=16)]
        L += [I('s_cmp_eq_u32 s%d, 3\ns_cselect_b32 s%d, 0xffff0000, 0\ns_cselect_b32 s%d, 0xffff0000, 0' % (sW, sPm, sPm + 1), kind='block', cost=12)]
        L += self.kv_lane_addr(self.KA, self.KA + 1, self.KA + 2, gather=False)
        L += mk('v_lshlrev_b32 v%d, 5, v0\nv_add_u32 v%d, %d, v%d' % (self.KA + 1, self.KA + 1, L_KVB, self.KA + 1))
        L += mk('v_mov_b32 v%d, 0x3f80\nv_mov_b32 v%d, 0x3f800000\ns_mov_b32 s%d, 0x88888888\ns_mov_b32 s%d, 0x88888888' % (self.K10, self.K10 + 1, sPm, sPm + 1))
        return L

    KA = 100

    def kvx(self, l):
        P = self.P
        P.comment('==== layer %d : kv exchange' % l)
        if l == 0:
            lw, lb = P.newlabel('Lxcc'), P.newlabel('Lxok')
            P('v_subrev_u32 v%d, s%d, v%d\nv_cmp_lt_u32 vcc, 15, v%d' % (vPoll, sNonce, vPoll, vPoll))
            P.add([I('s_cbranch_vccnz %s\n%s:' % (lw, lb), kind='block')])
            self.ool.append('\n'.join([
                lw + ':',
                'buffer_load_dword v%d, v%d, %s, s%d offen sc1' % (vPoll, vPA, self.srd(SRD_WS), sT4),
                's_add_u32 s%d, s%d, 1' % (sSpin, sSpin),
                's_cmp_gt_u32 s%d, 0x40000' % sSpin,
                's_cbranch_scc1 L_end',
                's_waitcnt vmcnt(0)',
                'v_subrev_u32 v%d, s%d, v%d' % (vPoll, sNonce, vPoll),
                'v_cmp_lt_u32 vcc, 15, v%d' % vPoll,
                's_cbranch_vccnz %s' % lw,
                's_branch %s' % lb]))
            P('v_cmp_ne_u32 vcc, s%d, v%d\ns_cmp_lg_u64 vcc, 0\ns_cselect_b32 s%d, 1, 0' % (sXcc, vPoll, sSlow))
        if l == 0:
            P.add(self.kvx_pre(0))
        elif self.o['kvdelay']:
            P('s_sleep %d' % self.o['kvdelay'])
        K10, K01 = self.K10, self.K10 + 1
        P.add(self.pa(16))
        P.add(self.trbase(vTr, 64, 4, add=L_WO))
        lsw, lre = P.newlabel('Lsweep'), P.newlabel('Lresweep')
        P.add(self.stamp('sweep_start'))
        P.label(lsw)
        B = 32
        P.add(flat(self.frag_loads([v(B + 4 * i, 4) for i in range(8)], SRD_WS, sKv, 0, flags='sc1')))
        bad, S = vT, 16
        P('v_mov_b32 v%d, 0' % bad)
        for i in range(8):
            for k in range(4):
                for hh, K in enumerate((K10, K01)):
                    P('v_dot2_f32_bf16 v%d, v%d, v%d, %s' % (S + 2 * k + hh, B + 4 * i + k, K, 'v%d' % (S + 2 * k + hh) if i else '0'))
            for k in (2, 3):
                P('v_bitop3_b32 v%d, v%d, s%d, v%d bitop3:0xbe' % (bad, B + 4 * i + k, sNonce, bad))
        P('v_cmp_ne_u32 vcc, 0, v%d\ns_and_b64 vcc, vcc, s[%d:%d]' % (bad, sPm, sPm + 1))
        P.add([I('s_cbranch_vccnz %s' % lre, kind='block', states=1)])
        self.ool.append('%s:\ns_sleep 6\ns_add_u32 s%d, s%d, 1\ns_cmp_gt_u32 s%d, 0x40000\ns_cbranch_scc1 L_end\ns_branch %s'
                        % (lre, sSpin, sSpin, sSpin, lsw))
        P.add(self.stamp('sweep_done'))
        for k in range(4):
            P('v_permlane32_swap_b32 v%d, v%d' % (S + k, S + 4 + k))
        for k in (0, 2):
            P('v_pk_add_f32 %s, %s, %s' % (v(S + k, 2), v(S + k, 2), v(S + 4 + k, 2)))
        P.add(self.pack(S, S, 2))
        P('ds_write_b64 v%d, %s' % (self.KA, v(S, 2)))
        if l == 0:
            P.add([wait_tok(self.tok_wo)])
        P('s_waitcnt lgkmcnt(0)\ns_barrier')
        KF, D = 32, 16
        P('ds_read_b128 %s, v%d\nds_read_b128 %s, v%d offset:16' % (v(KF, 4), self.KA + 1, v(KF + 4, 4), self.KA + 1))
        P.add(mfma(D, v(KF, 4), v(self.PQ, 4), True))
        for i in (6, 7):
            P('v_cndmask_b32 v%d, v%d, 0, s[%d:%d]' % (KF + i, KF + i, sHalf, sHalf + 1))
        P.add(mfma(D, v(KF + 4, 4), v(self.PQ + 4, 4)))
        t1, t2 = 40, 42
        P('v_mov_b32 v%d, v%d\nv_mov_b32 v%d, v%d\nv_permlane32_swap_b32 v%d, v%d' % (t1, D + 12, t2, D + 12, t1, t2))
        P('v_add_f32 v%d, %s, v%d\nv_rcp_f32 v%d, v%d\nv_mul_f32 v%d, s%d, v%d\nv_mul_f32 v%d, s%d, v%d' % (t2, f32(1e-6), t2, t2, t2, t1, sLn2, t2, t1 + 1, sLn2, t2))
        for r in range(0, 16, 2):
            P('v_pk_mul_f32 %s, %s, %s' % (v(D + r, 2), v(D + r, 2), v(t1, 2)))
        P.add(self.pack(D, D, 8))
        for i in (6, 7):
            P('v_cndmask_b32 v%d, v%d, 0, s[%d:%d]' % (D + i, D + i, sHalf, sHalf + 1))
        st = self.stores(['buffer_store_dwordx4 %s, v%d, %s, s%d offen offset:%d' % (v(D + 4 * j, 4), vL16, self.srd(SRD_CL), sOst, 1024 * j) for j in range(2)])
        tk = tok(st[-1])
        P.add(st)
        P.add(self.flag([tk], sFoMy))
        P.add(self.stamp('o_pub'))

    def s2(self, l):
        P = self.P
        o = self.o
        P.comment('==== layer %d : S2' % l)
        ACC, OF, WB, RES = 16, 32, 144, 160
        NB = 4
        P.add(self.poll_issue(sFo))
        P.add(self.unpack(ACC, RES, 8))
        jobs = [(h, j) for h in range(16) for j in range(2)]
        rd = lambda i: mk('ds_read_b64_tr_b16 %s, v%d offset:%d\nds_read_b64_tr_b16 %s, v%d offset:%d' % (
            v(WB + 4 * (i % NB), 2), vTr, 1792 * jobs[i][0] + 1024 * jobs[i][1],
            v(WB + 4 * (i % NB) + 2, 2), vTr, 1792 * jobs[i][0] + 1024 * jobs[i][1] + 512))
        for i in range(NB):
            P.add(rd(i))
        P('s_add_u32 s%d, s%d, %d' % (sT4, sOst, X1_OFF))
        P('s_lshr_b32 s%d, s%d, 2\ns_lshl_b32 s%d, s%d, 10\ns_and_b32 s%d, s%d, 3\ns_lshl_b32 s%d, s%d, 2\ns_add_u32 s%d, s%d, s%d\ns_add_u32 s%d, s%d, s%d\ns_add_u32 s%d, s%d, %d'
          % (sT5, sM, sT5, sT5, sT1, sM, sT1, sT1, sT5, sT5, sT1, sT5, sT5, sBlk, sT5, sT5, X1_OFF + 28672))
        P.add(self.s4_consts(l))
        if l == 0:
            P.add(self.xsrc())
        P.add(self.poll_check(sFo))
        P.add(self.stamp('o_seen'))
        oreg = [OF + 4 * (i % 28) for i in range(32)]
        lds = self.frag_loads([v(r, 4) for r in oreg], SRD_CL, sBlk, O_OFF, flags='sc1')
        n = o['look2']
        P.add(flat(lds[:n]))
        for i in range(32):
            P.add(mfma(ACC, v(WB + 4 * (i % NB), 4), v(oreg[i], 4)))
            if self.light and i in (0, 8, 16, 31):
                P.add(self.stamp('s2_%d' % i))
            if i + n < 32:
                P.add(lds[i + n])
            if i + NB < 32:
                P.add(rd(i + NB))
        P.add(self.pa(14, blocks=True))
        P.add(self.pack(OF, ACC, 8))
        P.add(self.stores(['buffer_store_dwordx4 %s, v%d, %s, s%d offen offset:%d' % (v(OF + 4 * j, 4), vL16, self.srd(SRD_CL), sT4, 1024 * j) for j in range(2)]))
        P.add(self.row_stats(OF, 8, vT, vT + 2))
        st = self.stores(['buffer_store_dword v%d, v%d, %s, s%d offen' % (vT, vL16, self.srd(SRD_CL), sT5)])
        tk = tok(st[-1])
        P.add(st)
        if self.light:
            P.add(self.stamp('x1_st'))
        P.add(self.flag([tk], sFoMy, FX1 - FO))
        P.add(self.stamp('x1_pub'))

    def gelu(self, acc, KK, T):
        pr = range(0, 16, 2)
        A = flat(mk('v_pk_mul_f32 %s, %s, %s' % (v(T + i, 2), v(acc + i, 2), v(acc + i, 2))) for i in pr)
        A += flat(mk('v_pk_fma_f32 %s, %s, %s, %s op_sel:[0,1,0] op_sel_hi:[1,1,0]' % (v(T + i, 2), v(T + i, 2), v(KK, 2), v(KK, 2))) for i in pr)
        A += flat(mk('v_pk_mul_f32 %s, %s, %s' % (v(T + i, 2), v(T + i, 2), v(acc + i, 2))) for i in pr)
        E = flat(mk('v_exp_f32 v%d, v%d' % (T + i, T + i)) for i in range(16))
        B = flat(mk('v_pk_fma_f32 %s, %s, %s, %s op_sel_hi:[1,0,0]' % (v(T + i, 2), v(T + i, 2), v(KK + 2, 2), v(KK + 2, 2))) for i in pr)
        R = flat(mk('v_rcp_f32 v%d, v%d' % (T + i, T + i)) for i in range(16))
        C = flat(mk('v_pk_mul_f32 %s, %s, %s' % (v(acc + i, 2), v(acc + i, 2), v(T + i, 2))) for i in pr)
        pk = self.pack(acc, acc, 8)
        g4 = lambda f, g: flat(mk(f(4 * g + i)) for i in range(4))
        e = lambda g: E[4 * g:4 * g + 4]
        r = lambda g: R[4 * g:4 * g + 4]
        b = lambda g: g4(lambda i: 'v_fma_f32 v%d, v%d, v%d, v%d' % (T + i, T + i, KK + 2, KK + 2), g)
        c = lambda g: g4(lambda i: 'v_mul_f32 v%d, v%d, v%d' % (acc + i, acc + i, T + i), g) + pk[2 * g:2 * g + 2]
        tail = e(0) + e(1) + b(0) + r(0) + e(2) + b(1) + c(0) + r(1) + e(3) + b(2) + c(1) + r(2) + b(3) + c(2) + r(3) + c(3)
        return A, A + E + B + R + C + pk, tail

    XSRC = (4, 5, 6, 7, 8, 9, 10, 11, 12, 13, 14, 15, 20, 21)

    def xsrc(self):
        L = mk('s_lshl_b32 s%d, s%d, 1\ns_mul_i32 s%d, s%d, 14\ns_add_u32 s%d, s%d, s%d\ns_mov_b32 s%d, %d' % (sT0, sW, sT1, sD1, sT1, sT1, sT0, sT2, X1_OFF))
        for c, r in enumerate(self.XSRC):
            if c:
                L += mk('s_add_u32 s%d, s%d, 8\ns_cmp_ge_u32 s%d, 28\ns_cselect_b32 s%d, 28, 0\ns_cselect_b32 s%d, 0x8000, 0\ns_sub_u32 s%d, s%d, s%d\ns_add_u32 s%d, s%d, s%d'
                        % (sT0, sT0, sT0, sT3, r, sT0, sT0, sT3, sT2, sT2, r))
                L += mk('s_add_u32 s%d, s%d, 8\ns_cmp_ge_u32 s%d, 28\ns_cselect_b32 s%d, 28, 0\ns_sub_u32 s%d, s%d, s%d' % (sT1, sT1, sT1, sT3, sT1, sT1, sT3))
            L += mk('s_lshl_b32 s%d, s%d, 10\ns_add_u32 s%d, s%d, s%d' % (r, sT1, r, r, sT2))
        return L

    SEL = 172

    def s4_consts(self, l):
        U, SEL = 168, self.SEL
        sel = mk('\n'.join(['v_lshrrev_b32 v%d, 5, v0' % SEL,
                             'v_lshlrev_b32 v%d, 2, v%d' % (SEL, SEL), 'v_and_b32 v%d, 31, v0' % (SEL + 1), 'v_sub_u32 v%d, v%d, v%d' % (U, SEL + 1, SEL),
                             'v_mov_b32 v%d, 0x3f80' % (U + 1), 'v_mov_b32 v%d, 0x3f800000' % (U + 2)]))
        for q, r0 in enumerate((0, 2, 8, 10)):
            sel += mk('v_cmp_eq_u32 vcc, %d, v%d\nv_cmp_eq_u32 s[%d:%d], %d, v%d\ns_nop 0\nv_cndmask_b32 v%d, 0, v%d, vcc\nv_cndmask_b32 v%d, v%d, v%d, s[%d:%d]'
                      % (r0, U, sPm, sPm + 1, r0 + 1, U, SEL + q, U + 1, SEL + q, SEL + q, U + 2, sPm, sPm + 1))
        for q, sB in enumerate((sEb, sLb)):
            sel += mk('s_lshl_b32 s%d, s%d, 15\ns_lshl_b32 s%d, s%d, 10\ns_add_u32 s%d, s%d, s%d\ns_add_u32 s%d, s%d, %d' % (sT0, sB, sT2, sFe, sT0, sT0, sT2, sRes + q, sT0, X1_OFF))
            if l == 0:
                sel += mk('s_mul_i32 s%d, s%d, %d\ns_add_u32 s%d, s%d, %d\ns_add_u32 s%d, s%d, s%d' % (sT0, sB, XIN_BS, sT0, sT0, XIN_OFF, sFin + q, sT0, sT2))
                sel += mk('s_lshr_b32 s%d, s%d, 2\ns_lshl_b32 s%d, s%d, 10\ns_add_u32 s%d, s%d, s%d\ns_and_b32 s%d, s%d, 3\ns_lshl_b32 s%d, s%d, 2\ns_add_u32 s%d, s%d, s%d\ns_add_u32 s%d, s%d, 28672'
                          % (sT2, sFe, sT2, sT2, sT0, sT0, sT2, sT2, sFe, sT2, sT2, sT0, sT0, sT2, sFin + 2 + q, sT0))
                sel += mk('s_lshl_b32 s%d, s%d, 5\ns_add_u32 s%d, s%d, s%d\ns_lshl_b32 s%d, s%d, 2\ns_add_u32 s%d, s%d, %d' % (sT2, sB, sT2, sT2, sFe, sT2, sT2, sFin + 4 + q, sT2, FXIN))
            else:
                sel += mk('s_lshl_b32 s%d, s%d, 2\ns_add_u32 s%d, s%d, s%d\ns_mul_i32 s%d, s%d, %d\ns_lshl_b32 s%d, s%d, 5\ns_add_u32 s%d, s%d, s%d'
                          % (sT0, sC, sT0, sT0, sB, sT0, sT0, 32 * 896, sT2, sFe, sFin + q, sT0, sT2))

        return sel

    def mlp(self, l):
        P = self.P
        o = self.o
        P.comment('==== layer %d : MLP' % l)
        ACC = (16, 32)
        XB, EXB, WEX, T, RING = 48, 72, 76, 80, 108
        KK = (96, 100)
        SEL, vB2, vX2 = self.SEL, 104, 105
        NB = 6
        P('s_mov_b32 s%d, %d' % (sT4, FX1))
        P.add(self.poll_issue(sT4))
        P('s_lshl_b32 s%d, s%d, 11' % (sT5, sW))
        P('v_mov_b32 v%d, v%d\nv_mov_b32 v%d, v%d' % (WEX, vW1X, WEX + 1, vW1X + 1))
        P('\n'.join('v_mov_b32 v%d, 0' % r for r in (WEX + 2, WEX + 3, EXB + 2, EXB + 3)))
        vE8, vK16 = vTr, vT + 3
        P('v_lshlrev_b32 v%d, 3, v0\nv_add_u32 v%d, %d, v%d' % (vE8, vE8, L_KVS, vE8))
        P('v_and_b32 v%d, 31, v0\nv_lshlrev_b32 v%d, 4, v%d\nv_add_u32 v%d, %d, v%d' % (vK16, vK16, vK16, vK16, L_KVS + 512, vK16))
        P('v_add_u32 v%d, %d, v%d' % (vX2, 56 * 1024, vL16))
        P('s_lshl_b32 s%d, s%d, 7\ns_add_u32 s%d, s%d, %d\nv_lshrrev_b32 v%d, 5, v0\nv_lshl_add_u32 v%d, v%d, 6, s%d' % (sT3, sW, sT3, sT3, L_B2, vB2, vB2, vB2, sT3))
        P('s_add_u32 s%d, s%d, %d' % (sT1, sBlk, X1_OFF + 28672))
        P.add(self.poll_check(sT4))
        P.add(self.stamp('x1_seen'))
        xd, tc = [], []
        for c, r in enumerate(self.XSRC):
            g = mk('s_add_u32 m0, s%d, %d' % (sT5, 8192 * c))
            g += mk('buffer_load_dwordx4 v%d, %s, s%d offen sc1 lds\nbuffer_load_dwordx4 v%d, %s, s%d offen offset:1024 sc1 lds' % (vL16, self.srd(SRD_CL), r, vL16, self.srd(SRD_CL), r))
            tc.append(tok(g[-1]))
            xd.append(g)
        P.add(xd[0] + xd[1])
        stl = [mk('buffer_load_dwordx4 %s, v%d, %s, s%d offen offset:%d sc1' % (v(RING + 4 * i, 4), vL16, self.srd(SRD_CL), sT1, 1024 * i)) for i in range(4)]
        K0 = KK[1]
        st0 = mk('v_add_f32 v%d, v%d, v%d' % (T, RING, RING + 1))
        for i in range(2, 14):
            st0 += mk('v_add_f32 v%d, v%d, v%d' % (T, T, RING + i))
        st0 += self.stats_finish(T, True)
        st0 += mk('\n'.join(['v_rcp_f32 v%d, v%d' % (K0 + 2, vRl),
                             'v_mul_f32 v%d, s%d, v%d' % (K0, sC0, vRl),
                             'v_mul_f32 v%d, v%d, v%d' % (T, vRl, vRl),
                             'v_mul_f32 v%d, s%d, v%d' % (K0 + 1, sC1, vRl),
                             'v_mul_f32 v%d, v%d, v%d' % (K0 + 1, K0 + 1, T),
                             'v_sub_f32 v%d, 0, v%d' % (vMean, vMean),
                             'v_cndmask_b32 v%d, v%d, v%d, s[%d:%d]' % (vMean, vMean, K0 + 2, sHalf, sHalf + 1)]))
        st0 += self.split_act(T + 2, vMean, T)
        st0 += mk('s_lshl_b32 s%d, s%d, 10\nv_add_u32 v%d, s%d, v%d\nv_add_u32 v%d, s%d, v%d' % (sT4, sW, vT, sT4, vE8, vT + 1, sT4, vK16))
        st0 += mk('ds_write_b64 v%d, %s\nds_write_b128 v%d, %s' % (vT, v(T + 2, 2), vT + 1, v(K0, 4)))
        tst = tok(st0[-1])

        def hpub(b):
            pre = mk('s_add_u32 s%d, s%d, %d' % (sT4, sHst, b * 114688))
            st = self.stores(['buffer_store_dwordx4 %s, v%d, %s, s%d offen offset:%d' % (v(ACC[b & 1] + 4 * j, 4), vL16, self.srd(SRD_CL), sT4, 1024 * j) for j in range(2)])
            return pre + st, tok(st[-1])
        hflag = lambda b, tk: self.flag([tk], sFoMy, FH - FO + 512 * b)
        extrd = lambda b: mk('ds_read_b64 %s, v%d offset:%d\nds_read_b128 %s, v%d offset:%d' % (v(EXB, 2), vE8, 1024 * b, v(KK[b & 1], 4), vK16, 1024 * b))
        extmf = lambda b: mfma(ACC[b & 1], v(WEX, 4), v(EXB, 4))
        hreg = [RING + 4 * (i % 16) for i in range(56)]

        def hload(i):
            blk, kap = divmod(i, 28)
            g = mk('s_add_u32 s%d, s%d, %d' % (sHs, (sHE, sHL)[blk], 8192 * (kap // 2))) if kap % 2 == 0 else []
            return g + mk('buffer_load_dwordx4 %s, v%d, %s, s%d offen offset:%d sc1' % (v(hreg[i], 4), vL16, self.srd(SRD_CL), sHs, 1024 * (kap % 2)))
        P.add([wait_tok(tc[0])])
        P('s_barrier')
        P.add(self.stamp('s3_b0'))
        rdj = lambda j: mk('ds_read_b128 %s, v%d offset:%d' % (v(XB + 4 * (j % NB), 4), vL16 if j < 56 else vX2, 1024 * (j % 56)))
        for j in range(NB):
            P.add(rdj(j))
        bars = {3: [tc[1]], 11: [tc[2]], 19: [tc[3]], 27: [tc[5], tst], 43: [tc[9]], 75: [tc[13]]}
        slots = []
        for j in range(112):
            b, k = divmod(j, 28)
            sl = mfma(ACC[b & 1], w1reg(k), v(XB + 4 * (j % NB), 4), k == 0)
            if k % 2 == 0:
                also_waits_for(sl[0], v(XB + 4 * ((j + 1) % NB), 4))
            if j in bars:
                sl += (self.stamp('pb%d' % j) if self.light else []) + [wait_tok(*bars[j])] + mk('s_barrier') + (self.stamp('ab%d' % j) if self.light else [])
            if k % 2 == 1:
                for jj in (j + NB - 1, j + NB):
                    if jj < 112:
                        sl += rdj(jj)
            if (k == 25 and b) or j == 27:
                sl += extrd(b)
            if (k == 27 and b) or j == 30:
                sl += extmf(b if k == 27 else 0)
            slots.append(sl)
        slots[0] += stl[0] + stl[1]
        slots[1] += xd[2]
        slots[3] += stl[2] + stl[3]
        for c in range(3, 14):
            slots[6 + 4 * (c - 3)] += xd[c]
        W2R = RING + 32
        pre0 = self.w2_addr(W2R) if l == 0 else []
        out = spread(slots[:o['st0']], pre0) + spread(slots[o['st0']:26], st0) + slots[26] + slots[27]
        pend = None
        for b in range(1, 4):
            gA, _, tail = self.gelu(ACC[(b - 1) & 1], KK[(b - 1) & 1], T)
            s0 = 28 * b + (5 if b == 1 else 2)
            st, nxt = hpub(b - 1)
            if l == 0 and b < 3 and o['pfw2']:
                st = st + self.w2_prefetch(vT, b - 1)
            if l == 0 and not o['idleh']:
                st = st + self.touch([(16, SRD_CL, sHst, bb * 114688) for bb in ((b - 1,) if b < 3 else (2, 3))], vT)
            slots[s0] += gA
            if pend is not None and l == 1:
                slots[28 * b + o['flagpos']] += hflag(b - 2, pend)
            pend = nxt
            if b == 3 and l == 1:
                slots[84 + o['pollE']] += self.pa(14) + self.poll_issue(sPE)
                n3 = o['n3']
                slots[112 - n3] += (self.stamp('preE') if self.light else []) + self.poll_check(sPE) + (self.stamp('gotE') if self.light else [])
                for i in range(n3):
                    slots[112 - n3 + i] += hload(i)
            if b == 1 or self.light:
                out += self.stamp('s3_b%d' % b)
            out += flat(slots[28 * b:s0 + 1]) + spread(slots[s0 + 1:28 * b + 28], tail + st, end=28 * b + o['gend'] - s0)
        P.add(out)
        P('s_waitcnt lgkmcnt(0)\ns_barrier')
        P.add(self.stamp('s3_end'))
        AE, AL, RX, RS = 48, 16, 80, 96
        vEW, vER = (vTr, vT, vT + 1), vT + 3
        resid = lambda q: mk('buffer_load_dwordx4 %s, v%d, %s, s%d offen sc1' % (v(RS, 4), vL16, self.srd(SRD_CL), sRes + q))
        cinit = lambda A: flat(mk('ds_read_b128 %s, v%d offset:%d' % (v(A + 4 * q, 4), vB2, 16 * q)) for q in range(4))
        ad = []
        for n, x in enumerate((2, 1, 3)):
            ad += mk('s_xor_b32 s%d, s%d, %d\ns_mul_i32 s%d, s%d, 6144\ns_add_u32 s%d, s%d, %d\nv_add_u32 v%d, s%d, v%d'
                     % (sT3, sW, x, sT3, sT3, sT3, sT3, L_EX + 2048 * (x - 1), vEW[n], sT3, vL16))
        ad += mk('s_mul_i32 s%d, s%d, 6144\ns_add_u32 s%d, s%d, %d\nv_add_u32 v%d, s%d, v%d' % (sT3, sW, sT3, sT3, L_EX, vER, sT3, vL16))
        gA, gall, _ = self.gelu(ACC[1], KK[1], T)
        st, p3 = hpub(3)
        npre = o['npre']
        if l == 0:
            npre = 7
            self.w2_stage(gall + hflag(0, pend) + hflag(1, pend) + hflag(2, pend) + st, W2R,
                          {15: hflag(3, p3), 19: self.pa(14) + self.poll_issue(sPE), 23: self.poll_check(sPE) + resid(0) + cinit(AE) + hload(0),
                           24: hload(1) + hload(2), 25: hload(3) + hload(4), 26: hload(5) + hload(6)})
        else:
            P.add(spread([resid(0)] + [hload(i) for i in range(o['n3'], npre)], gall[:40] + hflag(2, pend) + cinit(AE) + gall[40:] + st))
        if self.light:
            P.add(self.stamp('g3_end'))

        exch_write = lambda A: flat(mk('ds_write_b128 v%d, %s\nds_write_b128 v%d, %s offset:1024' % (vEW[n], v(r, 4), vEW[n], v(r + 4, 4)))
                                    for n, r in enumerate((A + 8, A + 16, A + 24)))
        exch_read = lambda: flat(mk('ds_read_b128 %s, v%d offset:%d' % (v(RX + 4 * q, 4), vER, 1024 * q)) for q in range(6))

        def addv(d, x, y, n, pk):
            if pk:
                return flat(mk('v_pk_add_f32 %s, %s, %s' % (v(d + i, 2), v(x + i, 2), v(y + i, 2))) for i in range(0, n, 2))
            return flat(mk('v_add_f32 v%d, v%d, v%d' % (d + i, x + i, y + i)) for i in range(n))

        def finish(A, q, pk):
            L = addv(A, A, RX, 8, pk) + addv(RX + 8, RX + 8, RX + 16, 8, pk) + addv(A, A, RX + 8, 8, pk) + self.pack(A, A, 4)
            if l == 0:
                L += self.stores(['buffer_store_dwordx4 %s, v%d, %s, s%d offen' % (v(A, 4), vL16, self.srd(SRD_CL), sFin + q)])
                rs = self.row_stats(A, 4, RX, RX + 2)
                blk = I('\n'.join(x.text for x in rs[:9]), kind='block', src=[r for x in rs[:9] for r in x.src], dst=[('v', RX), ('v', RX + 1), ('v', RX + 2)], states=1, cost=60)
                L += [blk] + mk('s_nop 2') + rs[9:]
                st = self.stores(['buffer_store_dword v%d, v%d, %s, s%d offen' % (RX, vL16, self.srd(SRD_CL), sFin + 2 + q)])
                tk = tok(st[-1])
                return L + st, self.flag([tk], sFin + 4 + q)
            L += mk('v_permlane32_swap_b32 v%d, v%d\nv_permlane32_swap_b32 v%d, v%d' % (A, A + 2, A + 1, A + 3))
            L += mk('buffer_store_dwordx4 %s, v%d, %s, s%d offen %s' % (v(A, 4), vPA, self.srd(SRD_OUT), sFin + q, ('', 'sc1', 'nt', 'sc0 sc1')[o['outf']]))
            return L, []

        slots = []
        for i in range(56):
            blk, kap = divmod(i, 28)
            A = (AE, AL)[blk]
            for js in range(2):
                sl = mfma(A, v(SEL, 4), v(RS, 4)) if kap == 0 and js == 0 else []
                slots.append(sl + mfma(A + 16 * js, a(W2A + 8 * kap + 4 * js, 4), v(hreg[i], 4), kap == 0 and js == 1))
        sidx = 0
        for i in range(npre, 56):
            sidx = max(sidx, 2 * (i - 16) + 1 if i >= 16 else 0)
            if i == 28:
                sidx = max(sidx, o['lateL'])
                slots[sidx] += (self.stamp('preL') if self.light else []) + self.poll_check(sPL) + (self.stamp('gotL') if self.light else [])
            slots[sidx] += hload(i)
            assert sidx <= 2 * i - 6
            sidx += 1 if 2 * (i + 1) - sidx - 2 < o['lead'] else 2
        if l == 1:
            slots[o['flag3']] += (self.stamp('preF') if self.light else []) + hflag(3, p3) + (self.stamp('gotF') if self.light else [])
        slots[o['pollL']] += self.poll_issue(sPL)
        for i in range(0, len(ad), 4):
            slots[2 * (i // 4) + 30] += ad[i:i + 4]
        slots[40] += resid(1)
        if l == 0:
            slots[20] += mk('s_barrier')
        slots[46] += cinit(AL)
        if l == 1:
            slots[44] += mk('v_and_b32 v%d, 31, v0\nv_mul_u32_u24 v%d, 896, v%d\nv_lshrrev_b32 v%d, 5, v0\nv_lshl_add_u32 v%d, v%d, 4, v%d'
                            % (vPA, vPA, vPA, vPoll, vPA, vPoll, vPA))
        P.add(flat(slots[:56]))
        P.add(self.stamp('s4_E'))
        late = slots[56:]
        fin, fl = finish(AE, 0, False)
        xb0 = o['xbar']
        P.add(spread(late[:xb0], exch_write(AE), start=2, end=9))
        late[xb0] += (self.stamp('preX') if self.light else []) + mk('s_waitcnt lgkmcnt(0)\ns_barrier') + (self.stamp('gotX') if self.light else []) + exch_read()
        late[34] += (self.stamp('preY') if self.light else []) + mk('s_barrier') + (self.stamp('gotY') if self.light else [])
        late[44] += fl
        P.add(spread(late[xb0:], fin, start=4, end=33 - xb0))
        P.add(self.stamp('s4_L'))
        P.add(exch_write(AL) + mk('s_waitcnt lgkmcnt(0)\ns_barrier') + exch_read())
        fin, fl = finish(AL, 1, True)
        P.add(fin + fl)
        P.add(self.stamp('x2_pub'))

    def build(self):
        P = self.P
        self.prologue()
        for l in range(2):
            self.s1(l)
            if self.stop == 's1_%d' % l:
                break
            self.kvx(l)
            if self.stop == 'o_%d' % l:
                break
            lnext = 'L_layer%d' % (l + 1)
            if l == 0:
                lsk = P.newlabel('Lskipmlp')
                P.add([I('s_cmp_ge_u32 s%d, 14\ns_cbranch_scc1 %s' % (sM, lsk), kind='block')])
                self.ool.append('%s:\n%s\ns_waitcnt vmcnt(0) lgkmcnt(0)\ns_sleep 60\ns_branch %s' % (lsk, self.idle_work(), lnext))
            else:
                if self.o['wb']:
                    lw, lp = P.newlabel('Lwb'), P.newlabel('Lwbp')
                    P.add([I('s_cmp_ge_u32 s%d, 14\ns_cbranch_scc1 %s' % (sM, lw), kind='block')])
                    t = [lw + ':']
                    if self.o['outt']:
                        lo = P.newlabel('Lot')
                        t += ['s_cmp_lg_u32 s%d, 15' % sM, 's_cbranch_scc1 %s' % lo, 'v_lshlrev_b32 v%d, 7, v0' % vT, 's_mov_b32 exec_hi, 0xffffff']
                        for i in range(4):
                            t += ['s_add_u32 s%d, s%d, %d' % (sT2, sX, i * 56 * 128), 'buffer_load_dword v%d, v%d, %s, s%d offen' % (vDummy, vT, self.srd(SRD_OUT), sT2)]
                        t += ['s_mov_b64 exec, -1', 's_waitcnt vmcnt(0)', lo + ':']
                    t += ['s_cmp_lg_u32 s%d, 14' % sM, 's_cbranch_scc1 L_fin', 's_cmp_lg_u32 s%d, 0' % sW, 's_cbranch_scc1 L_fin']
                    t += [x.text for x in self.pa(14, blocks=True)]
                    t += ['s_mov_b32 s%d, %d' % (sT4, FH + 512 * self.o['wbblk']), 's_sleep %d' % self.o['wbsl']] + (['buffer_wbl2 sc1', 's_waitcnt vmcnt(0)'] if self.o['wb'] == 2 else []) + [lp + ':', 's_sleep 4',
                          'buffer_load_dword v%d, v%d, %s, s%d offen sc1' % (vPoll, vPA, self.srd(SRD_CL), sT4),
                          's_add_u32 s%d, s%d, 1' % (sSpin, sSpin), 's_cmp_gt_u32 s%d, 0x40000' % sSpin, 's_cbranch_scc1 L_end',
                          's_waitcnt vmcnt(0)', 'v_cmp_ne_u32 vcc, s%d, v%d' % (sNonce, vPoll), 's_cbranch_vccnz %s' % lp,
                          'buffer_wbl2 sc1', 's_waitcnt vmcnt(0)', 's_branch L_fin']
                    self.ool.append('\n'.join(t))
                else:
                    P.add([I('s_cmp_ge_u32 s%d, 14\ns_cbranch_scc1 L_fin' % sM, kind='block')])
            self.s2(l)
            if self.stop == 'x1_%d' % l:
                P.label(lnext)
                break
            self.mlp(l)
            P.label(lnext)
            if l == 0:
                P('s_add_u32 s%d, s%d, %d\ns_add_u32 s%d, s%d, %d' % (sKv, sKv, KVP_L, sKvMy, sKvMy, KVP_L))
            if self.stop == 'x2_%d' % l:
                break
        P.add([I('s_cmp_lg_u32 s2, 0\ns_cbranch_scc1 L_fin\ns_cmp_lg_u32 s%d, 0\ns_cbranch_scc1 L_fin' % sW, kind='block')])
        P('s_mov_b64 exec, 1\nbuffer_store_dword v%d, off, %s, 0 sc1\ns_mov_b64 exec, -1' % (vNonce, self.srd(SRD_WS)))
        if self.probe is not None:
            P.add(self.stamp('end'))
            P.add([I('s_waitcnt lgkmcnt(0)\ns_sub_u32 s94, s94, s96\ns_lshl_b32 s94, s94, 2\ns_add_u32 s94, s94, 10000\nL_pr:\ns_memrealtime s[98:99]\ns_waitcnt lgkmcnt(0)\n'
                     's_sub_u32 s98, s98, s96\ns_cmp_lt_u32 s98, s94\ns_cbranch_scc1 L_pr', kind='block')])
        P.label('L_fin')
        if self.stamps:
            P('s_lshl_b32 s%d, s2, 2\ns_add_u32 s%d, s%d, s%d\ns_lshl_b32 s%d, s%d, 8\ns_add_u32 s%d, s%d, %d' % (sT0, sT0, sT0, sW, sT0, sT0, sT0, sT0, WS_STAMP))
            P.add(self.stamp('end'))
            P('s_memrealtime s[%d:%d]\ns_waitcnt lgkmcnt(0)\nv_writelane_b32 v%d, s%d, 63' % (sStamp, sStamp + 1, vStamp, sStamp))
            P('v_writelane_b32 v%d, s%d, 61' % (vStamp, sSpin))
            P('v_lshlrev_b32 v%d, 2, v0\nbuffer_store_dword v%d, v%d, %s, s%d offen' % (vT, vStamp, vT, self.srd(SRD_WS), sT0))
        P.label('L_end')
        P('s_endpgm')
        body, L = finalize(P.L)
        self.final = L
        ool = '\n'.join('\n'.join(('    ' + t if not t.endswith(':') else t) for t in b.split('\n') if t.strip()) for b in self.ool)
        head = open('cdna_kernels/%s.s.ref' % KNAME[:-7]).read().split('\n')
        hdr = [h for h in head if h.startswith(';') and '@launch' not in h]
        txt = '\n'.join(hdr) + '\n; @launch grid=(256,1,1) block=(256,1,1) lds=%d\n' % LDS_BYTES
        txt += '.amdgcn_target "amdgcn-amd-amdhsa--gfx950"\n.text\n.globl %s\n.p2align 8\n.type %s,@function\n%s:\n' % (KNAME, KNAME, KNAME)
        txt += body + ool + '\nL_code_end:\n'
        txt += '''.section .rodata,"a"
.p2align 6
.amdhsa_kernel %s
  .amdhsa_next_free_vgpr 512
  .amdhsa_next_free_sgpr 102
  .amdhsa_accum_offset 256
  .amdhsa_group_segment_fixed_size 0
  .amdhsa_kernarg_size 88
  .amdhsa_user_sgpr_count 2
  .amdhsa_user_sgpr_kernarg_segment_ptr 1
  .amdhsa_system_sgpr_workgroup_id_x 1
.end_amdhsa_kernel
''' % KNAME
        return txt


if __name__ == '__main__':
    import argparse
    ap = argparse.ArgumentParser()
    ap.add_argument('-o', default='k.s')
    ap.add_argument('--stop', default=None)
    ap.add_argument('--stamps', action='store_true')
    ap.add_argument('opts', nargs='*')
    A = ap.parse_args()
    opt = {k: (x if k in ('probe', 'light') else int(x)) for k, x in (t.split('=') for t in A.opts)}
    g = Gen(stop=A.stop, stamps=A.stamps, **opt)
    open(A.o, 'w').write(g.build())
    if A.stamps:
        open(A.o + '.stamps', 'w').write('\n'.join(g.stamp_names))
    n = {}
    for x in g.final:
        n[x.kind] = n.get(x.kind, 0) + 1
    nops = sum(x.states for x in g.final if x.op == 's_nop')
    print('instructions', n, 'nop states', nops)
```

```python
import sys, struct
from asmgen import *

KNAME = 'interleave_layers__linear_attn_block__mixer_channel_mlp__prompt_kernel'


def f32(x):
    return '0x%08x' % struct.unpack('<I', struct.pack('<f', x))[0]


LOG2E = 1.4426950408889634
LN2 = 0.6931471805599453
MF = 'v_mfma_f32_32x32x16_bf16'

WS_XCC = 0x8000
WS_STAMP = 0x10000
WS_KVP = 0x200000
KVP_CH = 9216
KVP_L = 0xA0000
WS_CL = 0x400000
LOFF = 0xD5000
O_OFF, X1_OFF, H_OFF, XIN_OFF, FL_OFF = 0, 0x20000, 0x40000, 0xB0000, 0xD4000
XIN_BS = 36864
FO, FX1, FXIN, FH = FL_OFF, FL_OFF + 512, FL_OFF + 1024, FL_OFF + 1536

L_WQ = 0
L_Q = 57344
L_XB = 28672
L_EX = 86016
L_XS = 86016
L_WO = 114688
L_KVS = 143616
L_KVB = L_KVS + 16384
L_CS = L_KVB + 2048
L_B2 = L_CS + 768
LDS_BYTES = 163840
assert L_B2 + 512 <= LDS_BYTES

SRD_WQ, SRD_WO, SRD_W1, SRD_W2, SRD_X, SRD_OUT, SRD_B1, SRD_B2, SRD_CL, SRD_WS = range(4, 44, 4)
sC, sM, sW, sNonce, sSlow, sX, sSpin = 44, 45, 46, 47, 48, 49, 50
sT0, sT1, sT2, sT3, sT4, sT5 = 51, 52, 53, 54, 55, 56
sLn2, sXcc, sWi = 57, 58, 59
sN28, sHalf = 60, 62
sZm = 64
sMo, sD1 = 66, 67
sKA = 68
sEb, sLb, sC0, sC1, sHs, sFe = 68, 69, 70, 71, 72, 73
sBlk, sOst, sFo, sFoMy, sKv, sKvMy, sHE, sHL, sPE, sPL = 74, 75, 76, 77, 78, 79, 80, 81, 82, 83
sHst = 84
sRot = 85
sQ0, sQ1 = 86, 87
sFin, sRes = 28, 34
sTag = 22
sPm = 88
sStamp = 90
sPC = 92

vLane, vL16, vDummy, vTr, vNonce, vMean, vRl, vW1X, _w1x1, vPoll, vPA = range(0, 11)
vT = 11
vStamp = 15
W2A = 0
W1A = 224
W1V = 176


def w1reg(k):
    return a(W1A + 4 * k, 4) if k < 8 else v(W1V + 4 * (k - 8), 4)


def w1half(k, hh):
    return a(W1A + 4 * k + 2 * hh, 2) if k < 8 else v(W1V + 4 * (k - 8) + 2 * hh, 2)


def flat(LL):
    return [x for L in LL for x in L]


def mfma(D, A, B, first=False):
    return mk('%s %s, %s, %s, %s' % (MF, v(D, 16), A, B, '0' if first else v(D, 16)))


class Gen:
    def __init__(self, stop=None, stamps=False, **opt):
        self.P = Prog()
        self.ool = []
        self.stop = stop
        self.stamps = stamps
        self.nstamp = 0
        self.stamp_names = []
        self.probe = opt.pop('probe', None)
        self.light = opt.pop('light', None)
        if self.light is not None:
            self.light = self.light.split('+')
            assert len(self.light) <= 5
        self.seen = {}
        self.o = dict(kvdelay=10, pollE=13, n3=6, st0=15, flagpos=8, gend=26, pollL=20, lateL=32, flag3=12, xbar=13, ntail=8, lead=16, look=6, pref=0, touch=1, codepf=1, rot=1, stnt=0, idlewq=0, reuse=1, npre=14, wqlate=84, pf0=1, pfa=0, w1lag=15, nxb1=12, pfslot=50, w2fill=12, rest0=8, wb=0, wbblk=3, wbsl=100, wbslot=36, outf=0, outt=0, idleh=1, idlew2=0, pfw2=1, woslot=41, tslot=69, latespan=14, strot=1, w1b2=70, look2=10, l1touch=0, xsc1=1, storder=0)
        self.o.update(opt)

    def srd(self, r):
        return s(r, 4)

    def stamp(self, name):
        if self.probe is not None:
            self.seen[name] = self.seen.get(name, 0) + 1
            if self.probe == '%s#%d' % (name, self.seen[name]):
                return [I('s_memrealtime s[94:95]', kind='block', states=1)]
            return []
        if not self.stamps:
            return []
        if self.light is not None:
            self.seen[name] = self.seen.get(name, 0) + 1
            key = '%s#%d' % (name, self.seen[name])
            if name == 'end':
                self.stamp_names.append('end')
                t = ['s_memtime s[88:89]', 's_waitcnt lgkmcnt(0)']
                for i, r in enumerate([100] + [90 + 2 * j for j in range(len(self.stamp_names) - 2)] + [88]):
                    t.append('v_writelane_b32 v%d, s%d, %d' % (vStamp, r, i))
                return [I('\n'.join(t), kind='block', drain_lgkm=True)]
            if name != 'start' and key not in self.light:
                return []
            r = 100 if name == 'start' else 90 + 2 * (len(self.stamp_names) - 1)
            self.stamp_names.append(key if name != 'start' else name)
            return [I('s_memtime s[%d:%d]' % (r, r + 1), kind='block')]
        i = self.nstamp
        self.nstamp += 1
        self.stamp_names.append(name)
        t = 's_memtime s[%d:%d]\ns_waitcnt lgkmcnt(0)\nv_writelane_b32 v%d, s%d, %d' % (sStamp, sStamp + 1, vStamp, sStamp, i)
        return [I(t, kind='block', dst=[], src=[], drain_lgkm=True, states=3)]

    def stores(self, lines):
        insts = mk('\n'.join(lines))
        src = [r for x in insts for r in x.src]
        wide = [r for x in insts for r in x.wide]
        ls, lb = self.P.newlabel('Lslow'), self.P.newlabel('Lback')
        txt = 's_cmp_lg_u32 s%d, 0\ns_cbranch_scc1 %s\n%s\n%s:' % (sSlow, ls, '\n'.join(lines), lb)
        self.ool.append('%s:\n%s\ns_branch %s' % (ls, '\n'.join(l + ' sc1' for l in lines), lb))
        return [I(txt, kind='block', src=src, nvm=len(lines), wide=wide, states=1, cost=8 + 4 * len(lines))]

    def flag(self, toks, soff, off=0):
        st = self.stores(['buffer_store_dword v%d, off, %s, s%d offset:%d' % (vNonce, self.srd(SRD_CL), soff, off)])[0]
        st.text = 's_mov_b64 exec, 1\n' + st.text + '\ns_mov_b64 exec, -1'
        st.cost += 8
        return [wait_tok(*toks), st]

    def poll_issue(self, soff):
        return mk('buffer_load_dword v%d, v%d, %s, s%d offen sc1' % (vPoll, vPA, self.srd(SRD_CL), soff))

    def poll_check(self, soff, sleep=0, tag=False):
        ls, lb = self.P.newlabel('Lspin'), self.P.newlabel('Lgot')
        cmp = 'v_cmp_ne_u32 vcc, s%d, v%d' % (sNonce, vPoll)
        if tag:
            cmp = 'v_lshrrev_b32 v%d, 16, v%d\nv_cmp_ne_u32 vcc, s%d, v%d' % (vPoll, vPoll, sTag, vPoll)
        self.ool.append('\n'.join([
            '%s:' % ls,
            ('s_sleep %d' % sleep) if sleep else '',
            'buffer_load_dword v%d, v%d, %s, s%d offen sc1' % (vPoll, vPA, self.srd(SRD_CL), soff),
            's_add_u32 s%d, s%d, 1' % (sSpin, sSpin),
            's_cmp_gt_u32 s%d, 0x40000' % sSpin,
            's_cbranch_scc1 L_end',
            's_waitcnt vmcnt(0)',
            cmp,
            's_cbranch_vccnz %s' % ls,
            's_branch %s' % lb]))
        return [I(cmp + '\ns_cbranch_vccnz %s\n%s:' % (ls, lb), kind='block', src=[('v', vPoll)], dst=[('x', 'vcc'), ('v', vPoll)], states=2, cost=8)]

    def pa(self, n, blocks=False):
        L = 'v_and_b32 v%d, %d, v0\n' % (vPA, 15 if n <= 16 else 31)
        if n not in (16, 32):
            L += 'v_min_u32 v%d, %d, v%d\n' % (vPA, n - 1, vPA)
        L += 'v_lshlrev_b32 v%d, 2, v%d\n' % (vPA, vPA)
        if blocks:
            L += 'v_lshrrev_b32 v%d, 4, v0\nv_lshl_add_u32 v%d, v%d, 7, v%d' % (vT + 3, vPA, vT + 3, vPA)
        return mk(L)

    def trbase(self, dst, RS, kh, add=0, xor16=None):
        t = vT
        L = ['v_lshrrev_b32 v%d, 5, v%d' % (dst, vLane),
             'v_mul_u32_u24 v%d, %d, v%d' % (dst, kh, dst),
             'v_bfe_u32 v%d, v%d, 2, 2' % (t, vLane),
             'v_add_u32 v%d, v%d, v%d' % (dst, dst, t),
             'v_mul_u32_u24 v%d, %d, v%d' % (dst, RS, dst),
             'v_bfe_u32 v%d, v%d, 4, 1' % (t, vLane)]
        if xor16 is not None:
            L.append('v_xor_b32 v%d, s%d, v%d' % (t, xor16, t))
        L += ['v_lshl_add_u32 v%d, v%d, 5, v%d' % (dst, t, dst),
              'v_and_b32 v%d, 3, v%d' % (t, vLane),
              'v_lshl_add_u32 v%d, v%d, 3, v%d' % (dst, t, dst)]
        if add:
            L.append('v_add_u32 v%d, %d, v%d' % (dst, add, dst))
        return mk('\n'.join(L))

    def frag_loads(self, dsts, srd, sbase, const0, stride=1024, flags='', st=sT0):
        out = []
        cur = None
        for i, d in enumerate(dsts):
            off = const0 + i * stride
            grp = []
            if cur is None or not (0 <= off - cur <= 4095):
                cur = off
                grp += mk('s_add_u32 s%d, s%d, %d' % (st, sbase, off))
            grp += mk('buffer_load_dwordx4 %s, v%d, %s, s%d offen offset:%d %s' % (d, vL16, self.srd(srd), st, off - cur, flags))
            out.append(grp)
        return out

    def stats_finish(self, acc, double_ln):
        t1, t2 = vT + 1, vT + 2
        L = ['v_mov_b32 v%d, v%d' % (t1, acc),
             'v_mov_b32 v%d, v%d' % (vMean, acc),
             'v_permlane32_swap_b32 v%d, v%d' % (vMean, t1),
             'v_mul_f32 v%d, %s, v%d' % (vMean, f32(1.0 / 448), vMean),
             'v_mul_f32 v%d, %s, v%d' % (t1, f32(1.0 / 448), t1),
             'v_fma_f32 v%d, -v%d, v%d, v%d' % (t1, vMean, vMean, t1),
             'v_max_f32 v%d, 0, v%d' % (t1, t1),
             'v_add_f32 v%d, %s, v%d' % (t2, f32(1e-5), t1),
             'v_rsq_f32 v%d, v%d' % (vRl, t2)]
        if double_ln:
            L += ['v_mul_f32 v%d, v%d, v%d' % (t2, vRl, vRl),
                  'v_fmaak_f32 v%d, v%d, v%d, %s' % (t1, t1, t2, f32(1e-5)),
                  'v_rsq_f32 v%d, v%d' % (t1, t1),
                  'v_mul_f32 v%d, v%d, v%d' % (vRl, vRl, t1)]
        else:
            L += ['v_mul_f32 v%d, %s, v%d' % (vRl, f32(LOG2E), vRl)]
        return mk('\n'.join(L))

    def split_act(self, d0, val, t):
        return mk('\n'.join([
            'v_cvt_pk_bf16_f32 v%d, v%d, v%d' % (d0 + 1, val, val),
            'v_and_b32 v%d, 0xffff0000, v%d' % (t, d0 + 1),
            'v_sub_f32 v%d, v%d, v%d' % (t, val, t),
            'v_cvt_pk_bf16_f32 v%d, v%d, v%d' % (d0, val, t),
            'v_and_b32 v%d, 0xffff, v%d' % (d0 + 1, d0 + 1),
            'v_cndmask_b32 v%d, v%d, 0, s[%d:%d]' % (d0 + 1, d0 + 1, sHalf, sHalf + 1)]))

    def split_w(self, d0, val, t):
        return mk('\n'.join([
            'v_cvt_pk_bf16_f32 v%d, v%d, v%d' % (d0, val, val),
            'v_and_b32 v%d, 0xffff0000, v%d' % (t, d0),
            'v_sub_f32 v%d, v%d, v%d' % (t, val, t),
            'v_cvt_pk_bf16_f32 v%d, v%d, 0' % (d0 + 1, t)]))

    def phi8(self, r0, R, T, eps):
        L = ['v_pk_mul_f32 %s, %s, %s' % (v(r0 + i, 2), v(r0 + i, 2), R(i)) for i in range(0, 8, 2)]
        for i in range(8):
            L += ['v_exp_f32 v%d, v%d clamp' % (T + i, r0 + i), 'v_max_f32 v%d, 0, v%d' % (r0 + i, r0 + i)]
        L += ['v_pk_fma_f32 %s, %s, s[%d:%d], %s op_sel:[0,1,0] op_sel_hi:[1,1,1]' % (v(r0 + i, 2), v(r0 + i, 2), sLn2 - 1, sLn2, v(T + i, 2)) for i in range(0, 8, 2)]
        L += ['v_pk_add_f32 %s, %s, %s op_sel_hi:[1,0]' % (v(r0 + i, 2), v(r0 + i, 2), v(eps, 2)) for i in range(0, 8, 2)]
        return mk('\n'.join(L))

    def pack(self, dst, src, n):
        return mk('\n'.join('v_cvt_pk_bf16_f32 v%d, v%d, v%d' % (dst + i, src + 2 * i, src + 2 * i + 1) for i in range(n)))

    def unpack(self, dst, src, n):
        L = []
        for i in reversed(range(n)):
            L.append('v_and_b32 v%d, 0xffff0000, v%d' % (dst + 2 * i + 1, src + i))
            L.append('v_lshlrev_b32 v%d, 16, v%d' % (dst + 2 * i, src + i))
        return mk('\n'.join(L))

    def dots(self, regs, acc, ones, first):
        L = []
        for i, r in enumerate(regs):
            z = first and i == 0
            L.append('v_dot2_f32_bf16 v%d, v%d, v%d, %s' % (acc, r, ones, '0' if z else 'v%d' % acc))
            L.append('v_dot2_f32_bf16 v%d, v%d, v%d, %s' % (acc + 1, r, r, '0' if z else 'v%d' % (acc + 1)))
        return mk('\n'.join(L))

    def dots_end(self, acc):
        return mk('v_permlane32_swap_b32 v%d, v%d\nv_add_f32 v%d, v%d, v%d' % (acc, acc + 1, acc, acc, acc + 1))

    def row_stats(self, src, n, acc, ones):
        return mk('v_mov_b32 v%d, 0x3f803f80' % ones) + self.dots(range(src, src + n), acc, ones, True) + self.dots_end(acc)

    def kv_lane_addr(self, d, t, u, gather):
        L = []
        if gather:
            L += ['v_and_b32 v%d, 31, v0' % t, 'v_lshrrev_b32 v%d, 5, v0' % d]
        else:
            L += ['v_lshrrev_b32 v%d, 5, v0' % t, 'v_and_b32 v%d, 15, v0' % u, 'v_lshl_add_u32 v%d, v%d, 1, v%d' % (t, u, t), 'v_bfe_u32 v%d, v0, 4, 1' % d]
        L += ['v_lshrrev_b32 v%d, 3, v%d' % (u, t), 'v_sub_u32 v%d, v%d, v%d' % (u, t, u)]
        if not gather:
            L += ['v_and_b32 v%d, 7, v%d' % (t, t), 'v_cmp_eq_u32 vcc, 7, v%d' % t, 'v_cndmask_b32 v%d, v%d, 31, vcc' % (u, u)]
        L += ['v_lshl_add_u32 v%d, v%d, 5, v%d' % (d, d, u)]
        sh, qs, base = (4, 10, L_KVS) if gather else (5, 3, L_KVB)
        L += ['s_lshl_b32 s%d, s%d, %d' % (sT2, sW, qs), 'v_lshlrev_b32 v%d, %d, v%d' % (d, sh, d), 'v_add_u32 v%d, s%d, v%d' % (d, sT2, d)]
        L += ['v_and_b32 v%d, 1, v%d' % (t, u), 'v_lshlrev_b32 v%d, %d, v%d' % (t, 5 + sh, t), 'v_lshrrev_b32 v%d, 1, v%d' % (u, u)]
        L += ['v_cmp_gt_u32 vcc, 4, v%d' % u]
        L += ['v_lshl_add_u32 v%d, v%d, %d, v%d' % (t, u, qs, t), 'v_add_u32 v%d, %d, v%d' % (t, 28 << sh, t)]
        L += ['s_and_b64 vcc, vcc, s[%d:%d]' % ((sZm, sZm + 1) if gather else (sPm, sPm + 1)), 'v_cndmask_b32 v%d, v%d, v%d, vcc' % (d, d, t),
              'v_add_u32 v%d, %d, v%d' % (d, base, d)]
        return mk('\n'.join(L))

    def wq_dma(self, va, q):
        if q:
            ad = 'v_lshrrev_b32 v%d, 2, v0\nv_mul_u32_u24 v%d, 2688, v%d\nv_and_b32 v%d, 3, v0\nv_lshl_add_u32 v%d, v%d, 4, v%d' % (va, va, va, vT, va, vT, va)
        else:
            ad = ('v_lshrrev_b32 v%d, 3, v0\nv_mul_u32_u24 v%d, 2688, v%d\nv_and_b32 v%d, 3, v0\nv_lshl_add_u32 v%d, v%d, 4, v%d\n'
                  'v_lshrrev_b32 v%d, 2, v0\nv_xor_b32 v%d, v%d, v0\nv_bfe_u32 v%d, v%d, 2, 1\nv_mul_u32_u24 v%d, 896, v%d\nv_add3_u32 v%d, v%d, v%d, s%d'
                  % (va, va, va, vT, va, vT, va, vT, vT, vT, vT, vT, vT, vT, va, va, vT, sQ0))
        rows = 16 if q else 8
        pre = mk('s_mul_i32 s%d, s%d, 56\ns_add_u32 s%d, s%d, 896' % (sQ1, sM, sQ0, sQ1)) + mk(ad)
        if q:
            pre += mk('v_add_u32 v%d, s%d, v%d' % (va, sQ1, va))
        pre += mk('s_mul_i32 s%d, s%d, %d\ns_lshl_b32 s%d, s%d, 10' % (sRot, sW, rows * 2688, sQ1, sW))
        out = []
        for t in range(7 if q else 14):
            out.append(mk('s_add_u32 m0, s%d, %d\ns_add_u32 s%d, s%d, %d\nbuffer_load_dwordx4 v%d, %s, s%d offen lds'
                          % (sQ1, (L_Q if q else L_WQ) + 4096 * t, sQ0, sRot, 4 * t * rows * 2688, va, self.srd(SRD_WQ), sQ0)))
        return pre, out

    def touch(self, items, va):
        if not self.o['touch']:
            return []
        txt = ['v_lshlrev_b32 v%d, 7, v0' % va]
        cur = None
        n = 0
        for nl, srd, sg, c in items:
            if nl != cur:
                txt.append('s_mov_b64 exec, 0x%x' % ((1 << nl) - 1))
                cur = nl
            txt.append('s_add_u32 s%d, s%d, %d' % (sT2, sg, c) if sg is not None else 's_mov_b32 s%d, %d' % (sT2, c))
            txt.append('buffer_load_dword v%d, v%d, %s, s%d offen sc1' % (vDummy, va, self.srd(srd), sT2))
            n += 1
        txt.append('s_mov_b64 exec, -1')
        return [I('\n'.join(txt), kind='block', nvm=n, dst=[('v', va)], src=[('v', 0)], states=1, cost=12 * n)]

    def touch_attn(self, lo, va):
        pre = mk('s_lshr_b32 s%d, s%d, 2\ns_lshl_b32 s%d, s%d, 10\ns_add_u32 s%d, s%d, s%d\ns_mul_i32 s%d, s%d, 896' % (sT1, sM, sT1, sT1, sT1, sT1, sBlk, sT0, sW))
        return pre + self.touch([(16, SRD_CL, sOst, lo), (16, SRD_CL, sOst, lo + X1_OFF), (8, SRD_CL, sT1, lo + X1_OFF + 28672),
                                 (7, SRD_CL, sT0, lo + FL_OFF)], va)

    def prefetch(self, va, items):
        txt, n = ['v_lshlrev_b32 v%d, 7, v0' % va], 0
        for srd, per in items:
            for j in range(0, per, 64):
                nl = min(64, per - j)
                txt += ['s_mul_i32 s%d, s%d, %d' % (sT2, sWi, per * 128), 's_add_u32 s%d, s%d, %d' % (sT2, sT2, j * 128),
                        's_mov_b32 exec_lo, 0x%x' % (((1 << nl) - 1) & 0xffffffff), 's_mov_b32 exec_hi, 0x%x' % (((1 << nl) - 1) >> 32),
                        'buffer_load_dword v%d, v%d, %s, s%d offen' % (vDummy, va, self.srd(srd), sT2)]
                n += 1
        return [I('\n'.join(txt + ['s_mov_b64 exec, -1']), kind='block', nvm=n, src=[('v', 0)], dst=[('v', va)], cost=20 * n)]

    def idle_work(self):
        va = vT
        l = self.P.newlabel('Lnowarm')
        T = ['s_cmp_lg_u32 s%d, 0' % sSlow, 's_cbranch_scc1 %s' % l,
             'v_lshlrev_b32 v%d, 7, v0' % va,
             's_and_b32 s%d, s%d, 1' % (sT0, sM), 's_lshl_b32 s%d, s%d, 2' % (sT0, sT0), 's_add_u32 s%d, s%d, s%d' % (sT0, sT0, sW)]
        ld = lambda srd, fl: 'buffer_load_dword v%d, v%d, %s, s%d offen %s' % (vDummy, va, self.srd(srd), sT2, fl)
        if self.o['idleh']:
            for i in range(7):
                T += ['s_lshl_b32 s%d, s%d, 13' % (sT2, sT0), 's_add_u32 s%d, s%d, %d' % (sT2, sT2, H_OFF + i * 65536), ld(SRD_CL, 'sc1')]
        if self.o['idlew2']:
            T += ['s_lshr_b32 s%d, s%d, 3' % (sT1, sC), 's_lshl_b32 s%d, s%d, 3' % (sT1, sT1), 's_add_u32 s%d, s%d, s%d' % (sT1, sT1, sT0),
                  's_lshl_b32 s%d, s%d, 13' % (sT1, sT1), 's_and_b32 s%d, s%d, 7' % (sT2, sC), 's_mul_i32 s%d, s%d, %d' % (sT2, sT2, 1568 * 128),
                  's_add_u32 s%d, s%d, s%d' % (sT2, sT2, sT1)]
            for i in range(13):
                T += [ld(SRD_W2, ''), 's_add_u32 s%d, s%d, 131072' % (sT2, sT2), 's_cmp_ge_u32 s%d, %d' % (sT2, 13 * 131072),
                      's_cselect_b32 s%d, %d, 0' % (sT3, 13 * 131072), 's_sub_u32 s%d, s%d, s%d' % (sT2, sT2, sT3)]
        for i in range(3):
            T += ['s_lshl_b32 s%d, s%d, 13' % (sT2, sT0), 's_add_u32 s%d, s%d, %d' % (sT2, sT2, XIN_OFF + i * 65536)]
            if i == 2:
                T += ['s_min_u32 s%d, s%d, %d' % (sT2, sT2, FL_OFF - 8192)]
            T += [ld(SRD_CL, 'sc1')]
        T += [l + ':']
        return '\n'.join(T)

    def prologue(self):
        P = self.P
        o = self.o
        P('s_cmp_ge_u32 s2, 256\ns_cbranch_scc1 L_end')
        if self.probe is not None:
            P.add([I('s_memrealtime s[96:97]\ns_memrealtime s[94:95]', kind='block', states=1)])
        P('s_load_dwordx16 s[%d:%d], s[0:1], 0' % (sKA, sKA + 15))
        P('s_load_dwordx4 s[%d:%d], s[0:1], 64' % (sKA + 16, sKA + 19))
        P('s_load_dwordx2 s[%d:%d], s[0:1], 80' % (sKA + 20, sKA + 21))
        P('v_lshrrev_b32 v%d, 6, v0\nv_and_b32 v0, 63, v0\nv_readfirstlane_b32 s%d, v%d' % (vT, sW, vT))
        P('s_lshr_b32 s%d, s2, 3\ns_lshl_b32 s%d, s%d, 2\ns_add_u32 s%d, s%d, s%d' % (sM, sWi, sM, sWi, sWi, sW))
        if o['codepf']:
            P.add([I('s_getpc_b64 s[%d:%d]\nL_pc:' % (sPC, sPC + 1), kind='block', dst=[], states=1)])
            P('s_lshl_b32 s%d, s%d, 9\nv_lshlrev_b32 v%d, 7, v0\nv_add_u32 v%d, s%d, v%d' % (sT0, sWi, vT, vT, sT0, vT))
            P.add([I('v_min_u32 v%d, L_code_end-L_pc-4, v%d\ns_mov_b64 exec, 15\nglobal_load_dword v%d, v%d, s[%d:%d]\ns_mov_b64 exec, -1'
                     % (vT, vT, vDummy, vT, sPC, sPC + 1), kind='block', dst=[('v', vT)], src=[('v', vT)], nvm=1)])
        P('s_and_b32 s%d, s2, 7\ns_lshr_b32 s%d, s%d, 4\ns_lshl_b32 s%d, s%d, 3\ns_add_u32 s%d, s%d, s%d\ns_and_b32 s%d, s%d, 15'
          % (sC, sT0, sM, sT0, sT0, sC, sC, sT0, sM, sM))
        P('v_lshlrev_b32 v%d, 4, v0' % vL16)
        if self.stamps:
            P('v_mov_b32 v%d, 0' % vStamp)
            P.add(self.stamp('start'))
            P('s_memrealtime s[%d:%d]\ns_waitcnt lgkmcnt(0)\nv_writelane_b32 v%d, s%d, 62' % (sStamp, sStamp + 1, vStamp, sStamp))
        P('s_lshl_b32 s%d, s%d, 2\ns_add_u32 s%d, s%d, s%d\ns_mul_i32 s%d, s%d, %d' % (sX, sC, sX, sX, sW, sX, sX, 32 * 896))
        vq, vxb, vxh, vxa, vrd = 160, 163, 164, 165, 167
        P('v_lshrrev_b32 v%d, 5, v0\nv_and_b32 v%d, 31, v0\nv_xor_b32 v%d, v%d, v%d\nv_lshlrev_b32 v%d, 4, v%d\nv_mul_u32_u24 v%d, 896, v%d'
          % (vxh, vT, vxb, vT, vxh, vxb, vxb, vxh, vxh))
        ka = sKA

        def mksrd(r, p, size):
            P('s_mov_b32 s%d, s%d\ns_mov_b32 s%d, s%d\ns_mov_b32 s%d, %d\ns_mov_b32 s%d, 0x20000' % (r, p, r + 1, p + 1, r + 2, size, r + 3))
        P('s_lshl_b32 s%d, s%d, 14\ns_add_u32 s%d, s%d, %d' % (sT5, sW, sT5, sT5, L_XS))
        mksrd(SRD_X, ka + 0, 2048 * 896)

        def xdma(half):
            out = []
            for i in range(16):
                if half:
                    g = mk('s_mov_b32 s%d, %d\nv_xad_u32 v%d, v%d, s%d, v%d' % (sT0, ((2 * i) & 15) << 4, vxa + (i & 1), vxb, sT0, vxh))
                    g += mk('s_add_u32 s%d, s%d, %d\ns_add_u32 m0, s%d, %d' % (sT1, sX, 2 * i * 896 + 512, sT5, 1024 * i))
                    out.append(g + mk('buffer_load_dwordx4 v%d, %s, s%d offen lds' % (vxa + (i & 1), self.srd(SRD_X), sT1)))
                    continue
                g = mk('s_add_u32 s%d, s%d, %d\ns_and_b32 s%d, s%d, 15' % (sT4, sM, i, sT4, sT4) if o['rot'] else 's_mov_b32 s%d, %d' % (sT4, i))
                g += mk('s_lshl_b32 s%d, s%d, 5\ns_and_b32 s%d, s%d, 0xf0\nv_xad_u32 v%d, v%d, s%d, v%d' % (sT0, sT4, sT0, sT0, vxa + (i & 1), vxb, sT0, vxh))
                g += mk('s_mul_i32 s%d, s%d, 1792\ns_add_u32 s%d, s%d, s%d\ns_lshl_b32 s%d, s%d, 10\ns_add_u32 m0, s%d, s%d' % (sT1, sT4, sT1, sT1, sX, sT4, sT4, sT4, sT5))
                g += mk('buffer_load_dwordx4 v%d, %s, s%d offen lds' % (vxa + (i & 1), self.srd(SRD_X), sT1))
                out.append(g)
            return out
        mksrd(SRD_WQ, ka + 2, 448 * 2688)
        if o['pf0']:
            P('v_lshlrev_b32 v%d, 7, v0\ns_lshl_b32 s%d, s%d, 2\ns_add_u32 s%d, s%d, s%d\ns_mul_i32 s%d, s%d, %d\ns_mul_i32 s%d, s%d, %d\ns_add_u32 s%d, s%d, s%d\ns_mul_i32 s%d, s%d, 49'
              % (vxa, sT0, sM, sT0, sT0, sW, sT0, sT0, 14 * 128, sT1, sC, 128 * 896, sT0, sT0, sT1, sT1, sWi))
            if o['pf0'] == 1:
                P('v_add_u32 v%d, s%d, v0\nv_mul_u32_u24 v%d, 37450, v%d\nv_lshrrev_b32 v%d, 19, v%d\nv_mul_u32_u24 v%d, 896, v%d\nv_lshl_add_u32 v%d, v%d, 7, v%d'
                  % (vT, sT1, vxa + 1, vT, vxa + 1, vxa + 1, vxa + 1, vxa + 1, vxa + 1, vT, vxa + 1))
                P.add([I('s_mov_b64 exec, 0x3fff\nbuffer_load_dword v%d, v%d, %s, s%d offen\ns_mov_b32 exec_lo, -1\ns_mov_b32 exec_hi, 0x1ffff\n'
                         'buffer_load_dword v%d, v%d, %s, 0 offen offset:896\ns_mov_b64 exec, -1'
                         % (vDummy, vxa, self.srd(SRD_X), sT0, vDummy, vxa + 1, self.srd(SRD_WQ)), kind='block', nvm=2, src=[('v', vxa), ('v', vxa + 1)])])
            else:
                P.add([I('s_mov_b64 exec, 0x3fff\nbuffer_load_dword v%d, v%d, %s, s%d offen\ns_mov_b64 exec, -1' % (vDummy, vxa, self.srd(SRD_X), sT0),
                         kind='block', nvm=1, src=[('v', vxa)])])
                P.add(self.prefetch(vxa, [(SRD_WQ, 74)]))
        body = [x.text for x in xdma(0)[0]]
        body[0] = 's_add_u32 s%d, s%d, s%d' % (sT4, sM, sT2) if o['rot'] else 's_mov_b32 s%d, s%d' % (sT4, sT2)
        loop = I('\n'.join(['s_mov_b32 s%d, 0' % sT2, 'L_xa:'] + body[:-1] + ['s_add_u32 s%d, s%d, 1' % (sT2, sT2), 's_cmp_lt_u32 s%d, 16' % sT2, body[-1],
                                                                            's_cbranch_scc1 L_xa']), kind='block', nvm=16, src=[('v', vxb), ('v', vxh)] + regs_of(s(SRD_X, 4)), dst=[('v', vxa)])
        tA = tok(loop)
        P.add([loop])
        P('s_load_dword s%d, s[%d:%d], 0' % (sNonce, ka + 20, ka + 21))
        mksrd(SRD_OUT, ka + 16, 2048 * 896)
        pre, wq = self.wq_dma(vq, False)
        self.tok_wq1, self.tok_wq = tok(wq[7][-1]), tok(wq[-1][-1])
        P.add(pre + flat(wq[:8]))
        mksrd(SRD_WO, ka + 4, 448 * 896)
        mksrd(SRD_W1, ka + 8, 448 * 3584)
        if not o['pfa']:
            P('s_cmp_lt_u32 s%d, 14\ns_cselect_b32 s%d, s%d, 0' % (sM, SRD_WO + 2, SRD_WO + 2))
        mksrd(SRD_B1, ka + 10, 3584)
        mksrd(SRD_W2, ka + 12, 1792 * 896)
        mksrd(SRD_B2, ka + 14, 896)
        mksrd(SRD_WS, ka + 20, WS_CL)
        P('s_lshl_b32 s%d, s%d, 21\ns_add_u32 s%d, s%d, %d' % (sT0, sC, sT0, sT0, WS_CL))
        P('s_add_u32 s%d, s%d, s%d\ns_addc_u32 s%d, s%d, 0\ns_mov_b32 s%d, 0x200000\ns_mov_b32 s%d, 0x20000'
          % (SRD_CL, ka + 20, sT0, SRD_CL + 1, ka + 21, SRD_CL + 2, SRD_CL + 3))
        P('s_mov_b32 s%d, %s\ns_mov_b32 s%d, 0\ns_mov_b32 s%d, -1' % (sLn2, f32(LN2), sHalf, sHalf + 1))
        P('s_mov_b32 s%d, 0x10000000\ns_mov_b32 s%d, 0x10000000\ns_mov_b32 s%d, 0' % (sN28, sN28 + 1, sSpin))
        P('s_getreg_b32 s%d, hwreg(HW_REG_XCC_ID, 0, 4)' % sXcc)
        P('s_and_b32 s%d, s%d, 1\ns_sub_u32 s%d, 3, s%d' % (sEb, sM, sLb, sEb))
        P('s_cmp_eq_u32 s%d, 3\ns_cselect_b32 s%d, -1, 0\ns_mov_b32 s%d, 0' % (sW, sZm + 1, sZm))
        P('s_lshr_b32 s%d, s%d, 3\ns_lshl_b32 s%d, s%d, 1\ns_add_u32 s%d, s%d, s%d\ns_mul_i32 s%d, s%d, 7\ns_add_u32 s%d, s%d, 1\ns_lshr_b32 s%d, s%d, 1'
          % (sD1, sC, sMo, sD1, sMo, sMo, sEb, sMo, sMo, sMo, sMo, sMo, sMo))
        if not o['strot']:
            P('s_mov_b32 s%d, 0\ns_mov_b32 s%d, 0' % (sMo, sD1))
        c0 = -2.0 * 0.7978845608028654 * LOG2E
        P('s_mov_b32 s%d, %s\ns_mov_b32 s%d, %s' % (sC0, f32(c0), sC1, f32(c0 * 0.044715)))
        P('s_lshr_b32 s%d, s%d, 1\ns_lshl_b32 s%d, s%d, 2\ns_and_b32 s%d, s%d, 1\ns_lshl_b32 s%d, s%d, 1\ns_add_u32 s%d, s%d, s%d\ns_lshr_b32 s%d, s%d, 1\ns_add_u32 s%d, s%d, s%d'
          % (sFe, sM, sFe, sFe, sT0, sW, sT0, sT0, sFe, sFe, sT0, sT0, sW, sFe, sFe, sT0))
        P('s_lshl_b32 s%d, s%d, 15\ns_lshl_b32 s%d, s%d, 11\ns_add_u32 s%d, s%d, s%d' % (sBlk, sW, sOst, sM, sOst, sOst, sBlk))
        P('s_lshl_b32 s%d, s%d, 7\ns_add_u32 s%d, s%d, %d\ns_lshl_b32 s%d, s%d, 2\ns_add_u32 s%d, s%d, s%d' % (sFo, sW, sFo, sFo, FL_OFF, sT0, sM, sFoMy, sFo, sT0))
        P('s_lshl_b32 s%d, s%d, 2\ns_add_u32 s%d, s%d, s%d\ns_mul_i32 s%d, s%d, %d\ns_add_u32 s%d, s%d, %d' % (sT1, sM, sT1, sT1, sW, sKv, sT1, KVP_CH, sKv, sKv, WS_KVP))
        P('s_lshl_b32 s%d, s%d, 9\ns_add_u32 s%d, s%d, s%d' % (sKvMy, sC, sKvMy, sKvMy, sKv))
        P('s_lshl_b32 s%d, s%d, 11\ns_add_u32 s%d, s%d, %d' % (sHst, sT1, sHst, sHst, H_OFF))
        P('s_lshl_b32 s%d, s%d, 11\ns_add_u32 s%d, s%d, %d' % (sT1, sW, sT1, sT1, H_OFF))
        P('s_mul_i32 s%d, s%d, 114688\ns_add_u32 s%d, s%d, s%d\ns_mul_i32 s%d, s%d, 114688\ns_add_u32 s%d, s%d, s%d' % (sHE, sEb, sHE, sHE, sT1, sHL, sLb, sHL, sHL, sT1))
        P('s_lshl_b32 s%d, s%d, 9\ns_add_u32 s%d, s%d, s%d\ns_add_u32 s%d, s%d, %d' % (sPE, sEb, sPE, sPE, sFo, sPE, sPE, FH - FL_OFF))
        P('s_lshl_b32 s%d, s%d, 9\ns_add_u32 s%d, s%d, s%d\ns_add_u32 s%d, s%d, %d' % (sPL, sLb, sPL, sPL, sFo, sPL, sPL, FH - FL_OFF))
        self.xreg0 = xr = [16 + 4 * i if i < 20 else 176 + 4 * (i - 20) for i in range(28)]
        P('v_and_b32 v%d, 15, v0\nv_lshrrev_b32 v%d, 5, v0\nv_xor_b32 v%d, v%d, v%d\nv_lshlrev_b32 v%d, 4, v%d\nv_and_b32 v%d, 31, v0\nv_lshl_add_u32 v%d, v%d, 9, v%d\nv_add_u32 v%d, s%d, v%d'
          % (vT, vrd, vrd, vrd, vT, vrd, vrd, vT, vrd, vT, vrd, vrd, sT5, vrd))
        xrd = lambda k: mk('v_xor_b32 v%d, %d, v%d\nds_read_b128 %s, v%d' % (vrd + 1 + (k & 1), 32 * (k & 15), vrd, v(xr[k], 4), vrd + 1 + (k & 1)))
        vrs = vrd + 3
        P('v_and_b32 v%d, 15, v0\nv_lshlrev_b32 v%d, 4, v%d\nv_lshrrev_b32 v%d, 5, v0\nv_lshl_add_u32 v%d, v%d, 3, v%d\nv_and_b32 v%d, 31, v0\nv_lshl_add_u32 v%d, v%d, 9, v%d\nv_add_u32 v%d, s%d, v%d'
          % (vrs, vrs, vrs, vT, vrs, vT, vrs, vT, vrs, vT, vrs, vrs, sT5, vrs))
        P('s_and_b32 s%d, s%d, 7\ns_lshl_b32 s%d, s%d, 6\nv_xor_b32 v%d, s%d, v%d' % (sT0, sM, sT0, sT0, vrs, sT0, vrs))

        def resrd(half):
            l = P.newlabel('Lres')
            t = ['s_cmp_%s_u32 s%d, 8' % ('lt' if half else 'ge', sM), 's_cbranch_scc1 %s' % l]
            for g in range(4):
                t += ['v_xor_b32 v%d, %d, v%d' % (vrs + 1, 16 * g, vrs), 'ds_read_b64 %s, v%d' % (a(216 + 2 * g, 2), vrs + 1)]
            return [I('\n'.join(t + [l + ':']), kind='block', src=[('v', vrs)], dst=[('v', vrs + 1)])]
        P.add(self.stamp('issued'))
        P.add([wait_tok(tA)])
        P.add(self.stamp('xA'))
        for k in range(16):
            P.add(xrd(k))
        P.add(resrd(0))
        vS, vOne = 172, 174
        P('v_mov_b32 v%d, 0x3f803f80\ns_waitcnt lgkmcnt(0)' % vOne)
        xb = xdma(1)
        self.tok_xb = tok(xb[-1][-1])
        d = self.dots([xr[k] + i for k in range(16) for i in range(4)], vS, vOne, True)
        P.add(spread(xb[:o['nxb1']], d))
        self.late_dma = xb[o['nxb1']:] + wq[8:]
        self.late_rd = [xrd(k) for k in range(16, 28)] + [resrd(1)]
        self.late_dots = self.dots([xr[k] + i for k in range(16, 28) for i in range(4)], vS, vOne, False) + self.dots_end(vS)
        P('s_add_u32 s%d, s%d, 0x01010101' % (sNonce, sNonce))
        P('v_mov_b32 v%d, s%d' % (vNonce, sNonce))
        P('s_lshl_b32 s%d, s%d, 4\ns_add_u32 s%d, s%d, s%d\ns_lshl_b32 s%d, s%d, 7\ns_add_u32 s%d, s%d, %d'
          % (sT2, sC, sT2, sT2, sM, sT2, sT2, sT2, sT2, WS_XCC))
        P('s_add_u32 s%d, s%d, s%d\nv_mov_b32 v%d, s%d\ns_mov_b64 exec, 1' % (sT3, sNonce, sXcc, vT, sT3))
        P('buffer_store_dword v%d, off, %s, s%d sc1' % (vT, self.srd(SRD_WS), sT2))
        P('s_mov_b64 exec, -1')

    def s1(self, l):
        P = self.P
        o = self.o
        AK, AV, AQ, WB, SB = 96, 112, 128, 144, 160
        RLB, XE = SB, SB + 8
        NB = 4
        vS = 172 if l == 0 else vT + 2
        P.comment('==== layer %d : S1' % l)
        kh = 8 if l == 0 else 4
        vTrV, vTrQ, vCs = vT + 3, (vT + 2 if l == 0 else vDummy), vPA
        trkv = self.trbase(vTr, 128, kh, add=L_WQ) + mk('v_bfe_u32 v%d, v0, 3, 1\nv_lshl_add_u32 v%d, v%d, 6, v%d\nv_xor_b32 v%d, 64, v%d' % (vT, vTr, vT, vTr, vTrV, vTr))
        trq = self.trbase(vTrQ, 64, kh, add=L_Q)
        fin = self.stats_finish(vS, False)
        fin += mk('s_lshl_b32 s%d, s%d, 12\ns_add_u32 s%d, s%d, %d' % (sT4, sW, sT4, sT4, L_KVS))
        bounce = mk('v_and_b32 v%d, 31, v0\nv_lshl_add_u32 v%d, v%d, 2, s%d\nds_write_b32 v%d, v%d' % (vT + 1, vT + 1, vT + 1, sT4, vT + 1, vRl))
        fin += bounce
        fin += mk('v_sub_f32 v%d, 0, v%d' % (vMean, vMean)) + self.split_act(XE, vMean, vT)
        fin += mk('v_cndmask_b32 v%d, v%d, 0, s[%d:%d]\nv_mov_b32 v%d, 0\nv_mov_b32 v%d, 0' % (XE, XE, sHalf, sHalf + 1, XE + 2, XE + 3))
        if l == 0:
            xreg = self.xreg0
            P.add(trkv)
            P.add([wait_tok(self.tok_wq1)])
            P('s_barrier')
            P.add(self.stamp('wq_ready'))
            lds = []
        else:
            xreg = [16 + 4 * (i % 20) for i in range(28)]
            P.add(self.pa(28))
            P('s_add_u32 s%d, s%d, %d' % (sT4, sFo, FXIN - FL_OFF))
            P.add(self.poll_issue(sT4))
            P('s_mul_i32 s%d, s%d, %d' % (sT5, sW, XIN_BS))
            P.add(trkv + trq)
            lds = self.frag_loads([v(r, 4) for r in xreg], SRD_CL, sT5, XIN_OFF)
        nq = 0 if l == 0 else 8
        jobs = []
        for k in range(28):
            if l == 0 and k == 16:
                jobs += [(t, kk) for kk in range(7) for t in 'KV']
            jobs += [('k', k), ('v', k)] + ([('q', k)] if k < nq else [])
        jobs += [('k', 'e'), ('v', 'e')]
        nmain = len(jobs)
        jobs += [('q', k) for k in range(nq, 28)] + ([('q', 'e')] if l else [])
        vo, vb, CSA = RLB, RLB + 4, 208

        def rd(j):
            t, k = jobs[j]
            b = WB + 4 * (j % NB)
            if k == 'e':
                return mk('ds_read_b64 %s, v%d offset:%d\nv_mov_b32 v%d, 0\nv_mov_b32 v%d, 0' % (v(b, 2), vCs, 256 * 'qkv'.index(t), b + 2, b + 3))
            base = {'q': vTrQ, 'k': vTr, 'v': vTrV, 'K': vb, 'V': vb + 1}[t]
            rs = 64 if t == 'q' else 128
            return mk('ds_read_b64_tr_b16 %s, v%d offset:%d\nds_read_b64_tr_b16 %s, v%d offset:%d' % (v(b, 2), base, 16 * rs * k, v(b + 2, 2), base, 16 * rs * k + (32 // kh) * rs))
        for j in range(NB):
            P.add(rd(j))
        if l == 1:
            P.add(self.poll_check(sT4))
            P.add(self.stamp('x2_seen'))
            P.add(flat(lds[:o['look']]))
            P('s_add_u32 s%d, s%d, 1\nv_mov_b32 v%d, s%d' % (sNonce, sNonce, vNonce, sNonce))
        P('v_and_b32 v%d, 31, v0\nv_lshlrev_b32 v%d, 3, v%d\nv_add_u32 v%d, %d, v%d' % (vCs, vCs, vCs, vCs, L_CS, vCs))
        slots = []
        for j, (t, k) in enumerate(jobs):
            w = v(WB + 4 * (j % NB), 4)
            if t.isupper():
                sl = mfma(CSA + 16 * 'KV'.index(t), v(vo, 4), w, k == 0)
            else:
                x = v(XE if k == 'e' else xreg[k], 4)
                A, B = (w, x) if t == 'q' else (x, w)
                sl = mfma({'q': AQ, 'k': AK, 'v': AV}[t], A, B, k == 0)
                if l == 0 and t == 'q':
                    sl += mfma(CSA, v(CSA + 16, 4), w, k == 0)
            if l == 0 and j == 32 - NB:
                sl += [wait_tok(self.tok_wq)] + mk('s_waitcnt lgkmcnt(0)\ns_barrier') + (self.stamp('bar2') if self.light else [])
                sl += mk('s_mul_i32 s%d, s%d, %d\nv_add_u32 v%d, s%d, v%d\nv_add_u32 v%d, s%d, v%d' % (sT0, sW, 7 * 2048, vb, sT0, vTr, vb + 1, sT0, vTrV))
            if j + NB < len(jobs) and not (j < nmain <= j + NB):
                sl += rd(j + NB)
            slots.append(sl)
        if l == 0:
            n = len(self.late_dma)
            for i, g in enumerate(self.late_dma):
                slots[(i * o['latespan']) // n] += g
            r0 = 32 - NB - 7
            slots[r0] += [wait_tok(self.tok_xb)]
            for i, g in enumerate(self.late_rd):
                slots[r0 + i // 2] += g
            slots[29] += mk('\n'.join('v_mov_b32 v%d, 0x3f803f80' % (vo + i) for i in range(4)))
            slots[31] += self.late_dots + fin
            pre, qd = self.wq_dma(175, True)
            self.tok_q = tok(qd[-1][-1])
            for i, g in enumerate([pre] + qd):
                slots[32 + i] += g
            if o['pfa']:
                slots[40] += self.prefetch(vT, [(SRD_WO, 25)]) + self.touch_attn(0, vT) + self.prefetch(vT, [(SRD_W1, 98)])
            else:
                for i, g in enumerate(self.wo_dma(175)):
                    slots[o['woslot'] + 2 * i] += g
                slots[o['tslot']] += self.touch_attn(0, vT)
            slots[47] += mk('v_and_b32 v%d, 31, v0\nv_lshlrev_b32 v%d, 2, v%d\ns_lshl_b32 s%d, s%d, 8\nv_add_u32 v%d, %d, v%d\nv_add_u32 v%d, s%d, v%d'
                            % (vb, vb, vb, sT0, sW, vb, L_KVB, vb, vb + 1, sT0, vb))
            slots[48] += mk('\n'.join('ds_write_b32 v%d, v%d offset:%d' % (vb + 1, CSA + 16 * t, 128 * t) for t in range(2)))
            slots[50] += mk('s_waitcnt lgkmcnt(0)\ns_barrier')
            for t in range(2):
                r = RLB
                slots[50 + 5 * t] += mk('\n'.join('ds_read_b32 v%d, v%d offset:%d' % (r + ww, vb, 256 * ww + 128 * t) for ww in range(4)))
                slots[53 + 5 * t] += mk('v_add_f32 v%d, v%d, v%d\nv_add_f32 v%d, v%d, v%d\nv_add_f32 v%d, v%d, v%d' % (r, r, r + 1, r + 2, r + 2, r + 3, r, r, r + 2))
                slots[54 + 5 * t] += self.split_w(r + 2, r, r + 1) + mk('ds_write_b64 v%d, %s offset:%d' % (vCs, v(r + 2, 2), 256 * (t + 1)))
        else:
            n = o['look']
            for j in range(0, nmain, 2):
                if n < 28:
                    k_free = n - 20
                    assert k_free < 0 or j >= jobs.index(('q', k_free))
                    slots[j] += lds[n]
                    n += 1
            st = self.frag_loads([v(SB + 4 * (i % 4), 4) for i in range(7)], SRD_CL, sT5, XIN_OFF + 28672, st=sT1)
            for i in range(4):
                slots[25 + 2 * i] += st[i]
            ex = []
            for i in range(1, 16):
                ex += mk('v_add_f32 v%d, v%d, v%d' % (vS, vS if i > 1 else SB, SB + i))
            for i in range(0, 15, 3):
                slots[40 + i // 3] += ex[i:i + 3]
            for i in range(3):
                slots[45 + i] += st[4 + i]
            ex = flat(mk('v_add_f32 v%d, v%d, v%d' % (vS, vS, SB + i)) for i in range(12)) + fin
            per = (len(ex) + 8) // 9
            for i in range(9):
                slots[54 + i] += ex[i * per:(i + 1) * per]
        RB = [WB + 4 * ((nmain - 4 + g) % NB) for g in range(4)]
        vEps = vT + 1
        slots[nmain - 5] += mk('v_lshrrev_b32 v%d, 5, v0\nv_lshl_add_u32 v%d, v%d, 4, s%d' % (vT + 2, vT + 2, vT + 2, sT4))
        for g in range(4):
            slots[nmain - 4 + g] += mk('ds_read_b128 %s, v%d offset:%d' % (v(RB[g], 4), vT + 2, 32 * g))
        slots[nmain - 1] += mk('v_mov_b32 v%d, 0x3f803f80\nv_add_u32 v%d, s%d, v%d\nv_mov_b32 v%d, %s' % (vPoll, vT, sT4, vL16, vEps, f32(1e-6)))
        vG = SB + 12
        ga = self.kv_lane_addr(vG, vG + 1, vG + 2, gather=True)
        for i in range(0, len(ga), 3):
            slots[(46 if l else 60) + i // 3] += ga[i:i + 3]
        P.add(flat(slots[:nmain]))
        P.add(self.stamp('s1_kv_mfma'))
        DK = WB
        for hf in range(2):
            R = lambda i: v(RB[2 * hf + i // 4] + i % 4, 2)
            P.add(self.phi8(AK + 8 * hf, R, RLB, vEps) + self.pack(AK + 4 * hf, AK + 8 * hf, 4))
            P.add(flat(mk('v_pk_mul_f32 %s, %s, %s' % (v(AV + 8 * hf + i, 2), v(AV + 8 * hf + i, 2), R(i))) for i in range(0, 8, 2)))
            P.add(self.pack(AV + 4 * hf, AV + 8 * hf, 4))
            for i in range(4):
                P('v_cndmask_b32 v%d, v%d, v%d, s[%d:%d]' % (AV + 4 * hf + i, AV + 4 * hf + i, vPoll, sN28, sN28 + 1))
        P.add(mfma(DK, v(AK, 4), v(AV, 4), True) + mfma(DK, v(AK + 4, 4), v(AV + 4, 4)))
        P('s_mov_b32 s%d, 0x80808080\ns_mov_b32 s%d, 0x80808080' % (sT0 + 1, sT0 + 2))
        for q in range(4):
            P('ds_write_b128 v%d, %s offset:%d' % (vT, v(DK + 4 * q, 4), 1024 * q))
        P('v_lshlrev_b32 v%d, 3, v0\ns_waitcnt lgkmcnt(0)\ns_barrier' % vT)
        for ww in range(4):
            P('ds_read_b128 %s, v%d offset:%d' % (v(AK + 4 * ww, 4), vG, 4096 * ww))
        if l == 1:
            for j in range(nmain, nmain + NB):
                P.add(rd(j))
        for x, y in ((AK, AK + 4), (AK + 8, AK + 12), (AK, AK + 8)):
            for i in (0, 2):
                P('v_pk_add_f32 %s, %s, %s' % (v(x + i, 2), v(x + i, 2), v(y + i, 2)))
        P.add(self.pack(AK, AK, 2))
        for i in range(2):
            P('v_cndmask_b32 v%d, v%d, v%d, s[%d:%d]' % (AK + i, AK + i, vNonce, sT0 + 1, sT0 + 2))
        P('buffer_store_dwordx2 %s, v%d, %s, s%d offen sc1' % (v(AK, 2), vT, self.srd(SRD_WS), sKvMy))
        P.add(self.stamp('kv_pub'))
        PQ = self.PQ = 104

        def qepi():
            L = []
            for hf in range(2):
                L += self.phi8(AQ + 8 * hf, lambda i: v(vRl, 2) + ' op_sel_hi:[1,0]', 48, vEps) + self.pack(PQ + 4 * hf, AQ + 8 * hf, 4)
            for i in (6, 7):
                L += mk('v_cndmask_b32 v%d, v%d, 0, s[%d:%d]' % (PQ + i, PQ + i, sHalf, sHalf + 1))
            return L
        if l == 0:
            P.add(trq + mk('\n'.join('v_mov_b32 v%d, 0x3f803f80' % (CSA + 16 + i) for i in range(4))))
            pre = [wait_tok(self.tok_q)] + mk('s_barrier') + flat(rd(j) for j in range(nmain, nmain + NB))
            post = self.split_w(WB, CSA, vT) + mk('v_mov_b32 v%d, 0\nv_mov_b32 v%d, 0\nds_write_b64 v%d, %s' % (WB + 2, WB + 3, vCs, v(WB, 2)))
            post += mfma(AQ, v(WB, 4), v(XE, 4))
            qs = slots[nmain:]
            self.staging(pre, qs, post, qepi)
        else:
            P.add(spread(slots[nmain:], self.kvx_pre(1)))
            P.add(qepi())

    PARK = 140

    def wo_dma(self, vwo):
        wo = [mk('v_lshrrev_b32 v%d, 2, v0\nv_mul_u32_u24 v%d, 896, v%d\nv_and_b32 v%d, 3, v0\nv_lshl_add_u32 v%d, v%d, 4, v%d\ns_lshl_b32 s%d, s%d, 6\nv_add_u32 v%d, s%d, v%d'
                 % (vwo, vwo, vwo, vT, vwo, vT, vwo, sQ0, sM, vwo, sQ0, vwo))
              + mk('s_mul_i32 s%d, s%d, %d\ns_lshl_b32 s%d, s%d, 10\ns_add_u32 s%d, s%d, %d' % (sQ1, sW, 16 * 896, sT3, sW, sT3, sT3, L_WO))]
        for t in range(7):
            wo.append(mk('s_add_u32 m0, s%d, %d\ns_add_u32 s%d, s%d, %d\nbuffer_load_dwordx4 v%d, %s, s%d offen lds' % (sT3, 4096 * t, sQ0, sQ1, t * 64 * 896, vwo, self.srd(SRD_WO), sQ0)))
        last = I('s_mov_b32 s%d, %d\ns_mov_b32 m0, %d\ns_mov_b64 exec, 0xffff\nbuffer_load_dwordx4 v%d, %s, s%d offen lds\ns_mov_b64 exec, -1'
                 % (sQ0, 448 * 896, L_WO + 28672, vwo, self.srd(SRD_WO), sQ0), kind='block', nvm=1, src=[('v', vwo)])
        self.tok_wo = tok(last)
        return wo + [[last]]

    def staging(self, qpre, qslots, qpost, qepi):
        P = self.P
        lskip, ljoin = P.newlabel('Lnostage'), P.newlabel('Lstaged')
        v1a, t0, t1, vp, vb, vb2 = 112, 113, 114, 115, 120, 168
        P('s_cmp_lt_u32 s%d, 14\ns_cselect_b32 s%d, s%d, 0' % (sM, SRD_W1 + 2, SRD_W1 + 2))
        P('v_lshrrev_b32 v%d, 2, v0\nv_mul_u32_u24 v%d, 3584, v%d\nv_and_b32 v%d, 3, v0\nv_lshl_add_u32 v%d, v%d, 4, v%d'
          % (v1a, v1a, v1a, vT, v1a, vT, v1a))
        P('s_lshl_b32 s%d, s%d, 2\ns_add_u32 s%d, s%d, s%d\ns_lshl_b32 s%d, s%d, 6\nv_add_u32 v%d, s%d, v%d' % (sT5, sM, sT5, sT5, sW, sT5, sT5, v1a, sT5, v1a))
        P('s_mul_i32 s%d, s%d, 7168\ns_add_u32 s%d, s%d, %d\ns_mul_i32 s%d, s%d, 21504\ns_mul_i32 s%d, s%d, %d' % (sT3, sW, sT3, sT3, L_EX, sQ1, sW, sWi, sD1, 14 * 16 * 3584))

        def issue(k):
            g = mk('s_add_u32 m0, s%d, %d' % ((sT3, 1024 * k) if k < 7 else (sQ1, 1024 * (k - 7))))
            g += mk('s_add_u32 s%d, s%d, %d' % (sQ0, sWi, k * 16 * 3584) if k < 14 else 's_sub_u32 s%d, %d, s%d' % (sQ0, k * 16 * 3584, sWi))
            g += mk('buffer_load_dwordx4 v%d, %s, s%d offen lds' % (v1a, self.srd(SRD_W1), sQ0))
            return g
        dm = [issue(k) for k in range(28)]
        tk = [tok(g[-1]) for g in dm]
        park = mk('\n'.join('v_accvgpr_read_b32 v%d, a%d' % (160 + i, 216 + i) for i in range(8)))
        park += mk('v_add_u32 v%d, s%d, v%d' % (vp, sQ1, vL16))
        park += flat(mk('ds_read_b128 %s, v%d offset:%d' % (a(self.PARK + 4 * i, 4), vp, 1024 * i)) for i in range(21))
        P.add(flat(dm[:7]) + qpre)
        P.add(spread(qslots, park) + qpost)
        P('s_lshl_b32 s%d, s%d, 11\ns_add_u32 s%d, s%d, %d' % (sT4, sC, sT4, sT4, WS_XCC))
        P('v_and_b32 v%d, 15, v0\nv_lshlrev_b32 v%d, 7, v%d' % (vPA, vPA, vPA))
        P('buffer_load_dword v%d, v%d, %s, s%d offen sc1' % (vPoll, vPA, self.srd(SRD_WS), sT4))
        P('s_waitcnt lgkmcnt(0)\ns_barrier')
        P.add([I('s_cmp_ge_u32 s%d, 14\ns_cbranch_scc1 %s' % (sM, lskip), kind='block')])
        txt, _ = finalize(mk('s_nop 7') + qepi() + self.kvx_pre(0))
        self.ool.append('%s:\n%s\ns_waitcnt vmcnt(0)\ns_branch %s' % (lskip, '\n'.join(t.strip() for t in txt.split('\n')), ljoin))
        ad = self.trbase(t1, 64, 4) + mk('v_add_u32 v%d, s%d, v%d\nv_add_u32 v%d, s%d, v%d' % (t0, sT3, t1, t1, sQ1, t1))
        ad += mk('v_and_b32 v%d, 31, v0\nv_lshlrev_b32 v%d, 1, v%d\nbuffer_load_ushort v%d, v%d, %s, s%d offen' % (vT, vT, vT, vb, vT, self.srd(SRD_B1), sT5))
        ad += mk('v_lshrrev_b32 v%d, 5, v0\nv_lshlrev_b32 v%d, 3, v%d\ns_lshl_b32 s%d, s%d, 5' % (vT, vT, vT, sT2, sFe))
        ad += mk('buffer_load_dwordx2 %s, v%d, %s, s%d offen\nbuffer_load_dwordx2 %s, v%d, %s, s%d offen offset:16'
                 % (v(vb2, 2), vT, self.srd(SRD_B2), sT2, v(vb2 + 2, 2), vT, self.srd(SRD_B2), sT2))
        vo, D = 124, 128
        if self.o['pfa']:
            sv = [mk('s_mov_b32 s%d, s%d\ns_mov_b32 s%d, s%d' % (sPm, sT3, sPm + 1, sQ1))]
            P.add(flat(sv + self.wo_dma(121)) + mk('s_mov_b32 s%d, s%d\ns_mov_b32 s%d, s%d' % (sT3, sPm, sQ1, sPm + 1)))
        def consume(k):
            va, o = (t0, 1024 * k) if k < 7 else (t1, 1024 * (k - 7))
            L = [wait_tok(tk[k])] + mk('ds_read_b64_tr_b16 %s, v%d offset:%d\nds_read_b64_tr_b16 %s, v%d offset:%d' % (w1half(k, 0), va, o, w1half(k, 1), va, o + 512))
            return L + (mfma(D, v(vo, 4), w1reg(k - 2), k == 2) if k >= 2 else [])
        lag = self.o['w1lag']
        P.add(spread(dm[7:lag], ad + qepi() + mk('\n'.join('v_mov_b32 v%d, 0x3f803f80' % (vo + i) for i in range(4)))))
        for k in range(28):
            P.add((dm[k + lag] if k + lag < 28 else []) + consume(k))
            if k + lag == 27 and self.light:
                P.add(self.stamp('st_iss'))
        P.add(self.kvx_pre(0))
        P.add(mfma(D, v(vo, 4), w1reg(26)) + mfma(D, v(vo, 4), w1reg(27)))
        P.add(self.unpack(144, vb2, 4) + mk('\n'.join('v_mov_b32 v%d, 0' % r for r in range(152, 156))))
        P('s_lshl_b32 s%d, s%d, 7\ns_add_u32 s%d, s%d, %d\nv_lshrrev_b32 v%d, 5, v0\nv_lshl_add_u32 v%d, v%d, 6, s%d' % (sT0, sW, sT0, sT0, L_B2, vT, vT, vT, sT0))
        for q in range(4):
            P('ds_write_b128 v%d, %s offset:%d' % (vT, v(144 + 4 * min(q, 2), 4), 16 * q))
        P.add(self.split_w(vW1X, D, vT + 1) + mk('v_lshl_or_b32 v%d, v%d, 16, v%d' % (vb, vb, vb)))
        P('v_cndmask_b32 v%d, v%d, v%d, s[%d:%d]\nv_cndmask_b32 v%d, v%d, 0, s[%d:%d]' % (vW1X, vW1X, vb, sHalf, sHalf + 1, vW1X + 1, vW1X + 1, sHalf, sHalf + 1))
        P.label(ljoin)
        P.add([I('s_nop 1', kind='block', states=2)])

    def w2_prefetch(self, va, part):
        txt = ['s_lshr_b32 s%d, s%d, 3' % (sQ0, sC), 's_mul_i32 s%d, s%d, 14' % (sQ0, sQ0), 's_add_u32 s%d, s%d, s%d' % (sQ0, sQ0, sM),
               's_lshl_b32 s%d, s%d, 2' % (sQ0, sQ0), 's_add_u32 s%d, s%d, s%d' % (sQ0, sQ0, sW), 's_mul_i32 s%d, s%d, %d' % (sQ0, sQ0, 56 * 128),
               's_add_u32 s%d, s%d, %d' % (sQ0, sQ0, part * 112 * 56 * 128), 'v_lshlrev_b32 v%d, 7, v0' % va, 's_mov_b32 exec_hi, 0xffffff',
               'buffer_load_dword v%d, v%d, %s, s%d offen' % (vDummy, va, self.srd(SRD_W2), sQ0), 's_mov_b64 exec, -1']
        return [I('\n'.join(txt), kind='block', nvm=1, src=[('v', 0)], dst=[('v', va)], cost=48)]

    def w2_addr(self, R):
        v2a, tA, tB, vp = R, R + 1, R + 3, R + 5
        L = mk('v_lshrrev_b32 v%d, 3, v0\nv_mul_u32_u24 v%d, 896, v%d\nv_lshrrev_b32 v%d, 2, v0\nv_and_b32 v%d, 4, v%d\nv_xor_b32 v%d, v%d, v0\nv_and_b32 v%d, 7, v%d\nv_lshl_add_u32 v%d, v%d, 4, v%d'
               % (v2a, v2a, v2a, vT, vT, vT, vT, vT, vT, vT, v2a, vT, v2a))
        L += mk('s_lshr_b32 s%d, s%d, 1\ns_lshl_b32 s%d, s%d, 7\ns_mul_i32 s%d, s%d, %d\ns_add_u32 s%d, s%d, s%d\nv_add_u32 v%d, s%d, v%d'
                % (sT0, sM, sT0, sT0, sT2, sW, 32 * 896, sT0, sT0, sT2, v2a, sT0, v2a))
        L += mk('s_mul_i32 s%d, s%d, 7168\ns_add_u32 s%d, s%d, %d\ns_lshl_b32 s%d, s%d, 12\ns_add_u32 s%d, s%d, %d'
                % (sRot, sW, sRot, sRot, L_EX, sQ1, sW, sQ1, sQ1, L_KVS))
        L += mk('s_lshr_b32 s%d, s%d, 1' % (sT0, sW)) + self.trbase(tA, 128, 4, xor16=sT0)
        L += mk('s_and_b32 s%d, s%d, 1\nv_bfe_u32 v%d, v0, 3, 1\nv_xor_b32 v%d, s%d, v%d\nv_lshl_add_u32 v%d, v%d, 6, v%d\nv_xor_b32 v%d, 64, v%d'
                % (sT0, sW, vT, vT, sT0, vT, tA, vT, tA, tA + 1, tA))
        L += mk('v_add_u32 v%d, s%d, v%d\nv_add_u32 v%d, s%d, v%d\nv_add_u32 v%d, s%d, v%d\nv_add_u32 v%d, s%d, v%d' % (tB, sQ1, tA, tB + 1, sQ1, tA + 1, tA, sRot, tA, tA + 1, sRot, tA + 1))
        L += mk('s_mul_i32 s%d, s%d, 21504\nv_add_u32 v%d, s%d, v%d' % (sT0, sW, vp, sT0, vL16))
        return L

    def w2_stage(self, fill, R, extra):
        P = self.P
        v2a, tA, tB, vp = R, R + 1, R + 3, R + 5
        NS = 5

        def issue(u):
            out = []
            base, o = (sRot, (u % NS) * 2048) if u % NS < 3 else (sQ1, (u % NS - 3) * 2048)
            for i in range(2):
                g = mk('s_add_u32 m0, s%d, %d' % (base, o + 1024 * i))
                g += mk('s_mov_b32 s%d, %d' % (sQ0, (128 * (u // 2) + 16 * (u % 2) + 8 * i) * 896))
                out += g + mk('buffer_load_dwordx4 v%d, %s, s%d offen lds' % (v2a, self.srd(SRD_W2), sQ0))
            return out, tok(out[-1])
        tk = []
        for u in range(NS - 1):
            g, t = issue(u)
            tk.append(t)
            P.add(g)
        steps = []
        for u in range(28):
            ta, o = (tA, (u % NS) * 2048) if u % NS < 3 else (tB, (u % NS - 3) * 2048)
            L = []
            if u + NS - 1 < 28:
                if u:
                    L += [wait_tok(prev_rd)]
                g, t = issue(u + NS - 1)
                tk.append(t)
                L += g
            L += [wait_tok(tk[u])]
            for js in range(2):
                b = W2A + 8 * u + 4 * js
                L += mk('ds_read_b64_tr_b16 %s, v%d offset:%d\nds_read_b64_tr_b16 %s, v%d offset:%d' % (a(b, 2), ta + js, o, a(b + 2, 2), ta + js, o + 1024))
            prev_rd = tok(L[-1])
            L += extra.get(u, [])
            if self.light:
                L += self.stamp('w2_%d' % u)
            r0 = self.o['rest0']
            for i in range(21):
                if u == r0 + (i * (26 - r0)) // 21:
                    assert u < 17 + (i + 1) // 2
                    L += mk('ds_write_b128 v%d, %s offset:%d' % (vp, a(self.PARK + 4 * i, 4), 1024 * i))
            steps.append(L)
        P.add(spread(steps, fill, start=0, end=self.o['w2fill']))

    K10 = 98

    def kvx_pre(self, l):
        L = []
        RES = 160
        if l == 1:
            L += mk('s_lshl_b32 s%d, s%d, 11\ns_add_u32 s%d, s%d, s%d\ns_add_u32 s%d, s%d, %d' % (sT1, sM, sT0, sT5, sT1, sT0, sT0, XIN_OFF))
            for j in range(2):
                L += mk('buffer_load_dwordx4 %s, v%d, %s, s%d offen offset:%d' % (v(RES + 4 * j, 4), vL16, self.srd(SRD_CL), sT0, 1024 * j))
            L += [I('s_mul_i32 s%d, s%d, %d\ns_add_u32 s%d, s%d, s%d\ns_addc_u32 s%d, s%d, 0\ns_sub_u32 s%d, s%d, s%d'
                    % (sT0, sSlow, LOFF, SRD_CL, SRD_CL, sT0, SRD_CL + 1, SRD_CL + 1, SRD_CL + 2, SRD_CL + 2, sT0), kind='block', cost=16)]
        L += [I('s_cmp_eq_u32 s%d, 3\ns_cselect_b32 s%d, 0xffff0000, 0\ns_cselect_b32 s%d, 0xffff0000, 0' % (sW, sPm, sPm + 1), kind='block', cost=12)]
        L += self.kv_lane_addr(self.KA, self.KA + 1, self.KA + 2, gather=False)
        g, t = self.KA + 1, self.KA + 2
        L += mk('\n'.join(['v_bfe_u32 v%d, v0, 3, 1' % g, 'v_and_b32 v%d, 3, v0' % t, 'v_lshl_add_u32 v%d, v%d, 2, v%d' % (g, g, t),
                           'v_cmp_eq_u32 vcc, 7, v%d' % g, 'v_bfe_u32 v%d, v0, 4, 1' % t, 'v_mad_u32_u24 v%d, v%d, 14, v%d' % (g, t, g),
                           'v_bfe_u32 v%d, v0, 2, 1' % t, 'v_mad_u32_u24 v%d, v%d, 7, v%d' % (g, t, g), 'v_cndmask_b32 v%d, v%d, 28, vcc' % (g, g),
                           'v_and_b32 v%d, 32, v0' % t, 'v_add_u32 v%d, v%d, v%d' % (g, g, t), 'v_lshlrev_b32 v%d, 5, v%d' % (g, g), 'v_add_u32 v%d, %d, v%d' % (g, L_KVB, g)]))
        L += mk('s_and_b32 s%d, s%d, 0x1fff\ns_or_b32 s%d, s%d, 0x4000\ns_lshl_b32 s%d, s%d, 16' % (sTag, sNonce, sTag, sTag, sTag + 1, sTag))
        L += mk('v_mov_b32 v%d, 0x3f80\nv_mov_b32 v%d, 0x3f800000\ns_mov_b32 s%d, 0x88888888\ns_mov_b32 s%d, 0x88888888' % (self.K10, self.K10 + 1, sPm, sPm + 1))
        return L

    KA = 100

    def kvx(self, l):
        P = self.P
        P.comment('==== layer %d : kv exchange' % l)
        if l == 0:
            lw, lb = P.newlabel('Lxcc'), P.newlabel('Lxok')
            P('v_subrev_u32 v%d, s%d, v%d\nv_cmp_lt_u32 vcc, 15, v%d' % (vPoll, sNonce, vPoll, vPoll))
            P.add([I('s_cbranch_vccnz %s\n%s:' % (lw, lb), kind='block')])
            self.ool.append('\n'.join([
                lw + ':',
                'buffer_load_dword v%d, v%d, %s, s%d offen sc1' % (vPoll, vPA, self.srd(SRD_WS), sT4),
                's_add_u32 s%d, s%d, 1' % (sSpin, sSpin),
                's_cmp_gt_u32 s%d, 0x40000' % sSpin,
                's_cbranch_scc1 L_end',
                's_waitcnt vmcnt(0)',
                'v_subrev_u32 v%d, s%d, v%d' % (vPoll, sNonce, vPoll),
                'v_cmp_lt_u32 vcc, 15, v%d' % vPoll,
                's_cbranch_vccnz %s' % lw,
                's_branch %s' % lb]))
            P('v_cmp_ne_u32 vcc, s%d, v%d\ns_cmp_lg_u64 vcc, 0\ns_cselect_b32 s%d, 1, 0' % (sXcc, vPoll, sSlow))
        if l == 1 and self.o['kvdelay']:
            P('s_sleep %d' % self.o['kvdelay'])
        K10, K01 = self.K10, self.K10 + 1
        P('v_and_b32 v%d, 31, v0\nv_lshlrev_b32 v%d, 10, v%d\nv_add_u32 v%d, 1020, v%d' % (vPA, vPA, vPA, vPA, vPA))
        P.add(self.trbase(vTr, 64, 7, add=L_WO))
        lsw, lre = P.newlabel('Lsweep'), P.newlabel('Lresweep')
        P.add(self.stamp('sweep_start'))
        P.label(lsw)
        B = 32
        P.add(flat(self.frag_loads([v(B + 4 * i, 4) for i in range(8)], SRD_WS, sKv, 0, flags='sc1')))
        bad, S = vT, 16
        P('v_mov_b32 v%d, 0' % bad)
        for i in range(8):
            for k in range(4):
                for hh, K in enumerate((K10, K01)):
                    P('v_dot2_f32_bf16 v%d, v%d, v%d, %s' % (S + 2 * k + hh, B + 4 * i + k, K, 'v%d' % (S + 2 * k + hh) if i else '0'))
            for k in (2, 3):
                P('v_bitop3_b32 v%d, v%d, s%d, v%d bitop3:0xbe' % (bad, B + 4 * i + k, sNonce, bad))
        P('v_cmp_ne_u32 vcc, 0, v%d\ns_and_b64 vcc, vcc, s[%d:%d]' % (bad, sPm, sPm + 1))
        P.add([I('s_cbranch_vccnz %s' % lre, kind='block', states=1)])
        self.ool.append('%s:\ns_sleep 6\ns_add_u32 s%d, s%d, 1\ns_cmp_gt_u32 s%d, 0x40000\ns_cbranch_scc1 L_end\ns_branch %s'
                        % (lre, sSpin, sSpin, sSpin, lsw))
        P.add(self.stamp('sweep_done'))
        for k in range(4):
            P('v_permlane32_swap_b32 v%d, v%d' % (S + k, S + 4 + k))
        for k in (0, 2):
            P('v_pk_add_f32 %s, %s, %s' % (v(S + k, 2), v(S + k, 2), v(S + 4 + k, 2)))
        P.add(self.pack(S, S, 2))
        P('ds_write_b64 v%d, %s' % (self.KA, v(S, 2)))
        if l == 0:
            P.add([wait_tok(self.tok_wo)])
        P('s_waitcnt lgkmcnt(0)\ns_barrier')
        KF, D = 32, 16
        P('ds_read_b128 %s, v%d\nds_read_b128 %s, v%d offset:16' % (v(KF, 4), self.KA + 1, v(KF + 4, 4), self.KA + 1))
        P.add(mfma(D, v(KF, 4), v(self.PQ, 4), True))
        for i in (6, 7):
            P('v_cndmask_b32 v%d, v%d, 0, s[%d:%d]' % (KF + i, KF + i, sHalf, sHalf + 1))
        P.add(mfma(D, v(KF + 4, 4), v(self.PQ + 4, 4)))
        t1 = 40
        P('v_add_f32 v%d, %s, v%d\nv_rcp_f32 v%d, v%d\nv_mul_f32 v%d, s%d, v%d' % (t1, f32(1e-6), D + 7, t1, t1, t1, sLn2, t1))
        for r in range(0, 16, 2):
            P('v_pk_mul_f32 %s, %s, %s op_sel_hi:[1,0]' % (v(D + r, 2), v(D + r, 2), v(t1, 2)))
        P('v_mov_b32 v%d, s%d\nv_mov_b32 v%d, s%d' % (D + 7, sTag + 1, D + 15, sTag + 1))
        P.add(self.pack(D, D, 8))
        st = self.stores(['buffer_store_dwordx4 %s, v%d, %s, s%d offen offset:%d' % (v(D + 4 * j, 4), vL16, self.srd(SRD_CL), sOst, 1024 * j) for j in range(2)])
        P.add(st)
        P.add(self.stamp('o_pub'))

    def s2(self, l):
        P = self.P
        o = self.o
        P.comment('==== layer %d : S2' % l)
        ACC, OF, WB, RES = 16, 32, 144, 160
        NB = 4
        P.add(self.s4_consts(l))
        if l == 0:
            P.add(self.xsrc())
        P('s_add_u32 s%d, s%d, %d' % (sT4, sOst, X1_OFF))
        P('s_lshr_b32 s%d, s%d, 2\ns_lshl_b32 s%d, s%d, 10\ns_and_b32 s%d, s%d, 3\ns_lshl_b32 s%d, s%d, 2\ns_add_u32 s%d, s%d, s%d\ns_add_u32 s%d, s%d, s%d\ns_add_u32 s%d, s%d, %d'
          % (sT5, sM, sT5, sT5, sT1, sM, sT1, sT1, sT5, sT5, sT1, sT5, sT5, sBlk, sT5, sT5, X1_OFF + 28672))
        lre, lfail = P.newlabel('Ls2'), P.newlabel('Ls2again')
        P.label(lre)
        P.add(self.poll_issue(sBlk))
        P.add(self.unpack(ACC, RES, 8))
        jobs = [(h, j) for h in range(16) for j in range(2)]
        rd = lambda i: mk('ds_read_b64_tr_b16 %s, v%d offset:%d\nds_read_b64_tr_b16 %s, v%d offset:%d' % (
            v(WB + 4 * (i % NB), 2), vTr, 1792 * jobs[i][0] + 896 * jobs[i][1],
            v(WB + 4 * (i % NB) + 2, 2), vTr, 1792 * jobs[i][0] + 896 * jobs[i][1] + 256))
        for i in range(NB):
            P.add(rd(i))
        bad = vT
        P('v_mov_b32 v%d, 0' % bad)
        P.add(self.poll_check(sBlk, tag=True))
        P.add(self.stamp('o_seen'))
        oreg = [OF + 4 * (i % 28) for i in range(32)]
        lds = self.frag_loads([v(r, 4) for r in oreg], SRD_CL, sBlk, O_OFF, flags='sc1')
        n = o['look2']
        P.add(flat(lds[:n]))
        chk = lambda i: mk('v_bitop3_b32 v%d, v%d, s%d, v%d bitop3:0xbe\nv_and_b32 v%d, 0xffff, v%d' % (bad, oreg[i] + 3, sTag + 1, bad, oreg[i] + 3, oreg[i] + 3))
        P.add(chk(0))
        for i in range(32):
            if i + n < 32:
                P.add(lds[i + n])
            P.add(mfma(ACC, v(WB + 4 * (i % NB), 4), v(oreg[i], 4)))
            if self.light and i in (0, 8, 16, 31):
                P.add(self.stamp('s2_%d' % i))
            if i + NB < 32:
                P.add(rd(i + NB))
            if i + 1 < 32:
                P.add(chk(i + 1))
        P('v_cmp_lt_u32 vcc, 0xffff, v%d' % bad)
        P.add([I('s_cbranch_vccnz %s' % lfail, kind='block', states=1)])
        self.ool.append('%s:\ns_add_u32 s%d, s%d, 1\ns_cmp_gt_u32 s%d, 0x40000\ns_cbranch_scc1 L_end\ns_nop 15\ns_branch %s' % (lfail, sSpin, sSpin, sSpin, lre))
        P.add(self.pa(14, blocks=True))
        P.add(self.pack(OF, ACC, 8))
        P.add(self.stores(['buffer_store_dwordx4 %s, v%d, %s, s%d offen offset:%d' % (v(OF + 4 * j, 4), vL16, self.srd(SRD_CL), sT4, 1024 * j) for j in range(2)]))
        P.add(self.row_stats(OF, 8, vT, vT + 2))
        st = self.stores(['buffer_store_dword v%d, v%d, %s, s%d offen' % (vT, vL16, self.srd(SRD_CL), sT5)])
        tk = tok(st[-1])
        P.add(st)
        if self.light:
            P.add(self.stamp('x1_st'))
        P.add(self.flag([tk], sFoMy, FX1 - FO))
        P.add(self.stamp('x1_pub'))

    def gelu(self, acc, KK, T):
        pr = range(0, 16, 2)
        A = flat(mk('v_pk_mul_f32 %s, %s, %s' % (v(T + i, 2), v(acc + i, 2), v(acc + i, 2))) for i in pr)
        A += flat(mk('v_pk_fma_f32 %s, %s, %s, %s op_sel:[0,1,0] op_sel_hi:[1,1,0]' % (v(T + i, 2), v(T + i, 2), v(KK, 2), v(KK, 2))) for i in pr)
        A += flat(mk('v_pk_mul_f32 %s, %s, %s' % (v(T + i, 2), v(T + i, 2), v(acc + i, 2))) for i in pr)
        E = flat(mk('v_exp_f32 v%d, v%d' % (T + i, T + i)) for i in range(16))
        B = flat(mk('v_pk_fma_f32 %s, %s, %s, %s op_sel_hi:[1,0,0]' % (v(T + i, 2), v(T + i, 2), v(KK + 2, 2), v(KK + 2, 2))) for i in pr)
        R = flat(mk('v_rcp_f32 v%d, v%d' % (T + i, T + i)) for i in range(16))
        C = flat(mk('v_pk_mul_f32 %s, %s, %s' % (v(acc + i, 2), v(acc + i, 2), v(T + i, 2))) for i in pr)
        pk = self.pack(acc, acc, 8)
        g4 = lambda f, g: flat(mk(f(4 * g + i)) for i in range(4))
        e = lambda g: E[4 * g:4 * g + 4]
        r = lambda g: R[4 * g:4 * g + 4]
        b = lambda g: g4(lambda i: 'v_fma_f32 v%d, v%d, v%d, v%d' % (T + i, T + i, KK + 2, KK + 2), g)
        c = lambda g: g4(lambda i: 'v_mul_f32 v%d, v%d, v%d' % (acc + i, acc + i, T + i), g) + pk[2 * g:2 * g + 2]
        tail = e(0) + e(1) + b(0) + r(0) + e(2) + b(1) + c(0) + r(1) + e(3) + b(2) + c(1) + r(2) + b(3) + c(2) + r(3) + c(3)
        return A, A + E + B + R + C + pk, tail

    XSRC = (4, 5, 6, 7, 8, 9, 10, 11, 12, 13, 14, 15, 20, 21)

    def xsrc(self):
        L = mk('s_lshl_b32 s%d, s%d, 1\ns_mul_i32 s%d, s%d, 14\ns_add_u32 s%d, s%d, s%d\ns_mov_b32 s%d, %d' % (sT0, sW, sT1, sD1, sT1, sT1, sT0, sT2, X1_OFF))
        for c, r in enumerate(self.XSRC):
            if c:
                L += mk('s_add_u32 s%d, s%d, 8\ns_cmp_ge_u32 s%d, 28\ns_cselect_b32 s%d, 28, 0\ns_cselect_b32 s%d, 0x8000, 0\ns_sub_u32 s%d, s%d, s%d\ns_add_u32 s%d, s%d, s%d'
                        % (sT0, sT0, sT0, sT3, r, sT0, sT0, sT3, sT2, sT2, r))
                L += mk('s_add_u32 s%d, s%d, 8\ns_cmp_ge_u32 s%d, 28\ns_cselect_b32 s%d, 28, 0\ns_sub_u32 s%d, s%d, s%d' % (sT1, sT1, sT1, sT3, sT1, sT1, sT3))
            L += mk('s_lshl_b32 s%d, s%d, 10\ns_add_u32 s%d, s%d, s%d' % (r, sT1, r, r, sT2))
        return L

    SEL = 172

    def s4_consts(self, l):
        U, SEL = 168, self.SEL
        sel = mk('\n'.join(['v_lshrrev_b32 v%d, 5, v0' % SEL,
                             'v_lshlrev_b32 v%d, 2, v%d' % (SEL, SEL), 'v_and_b32 v%d, 31, v0' % (SEL + 1), 'v_sub_u32 v%d, v%d, v%d' % (U, SEL + 1, SEL),
                             'v_mov_b32 v%d, 0x3f80' % (U + 1), 'v_mov_b32 v%d, 0x3f800000' % (U + 2)]))
        for q, r0 in enumerate((0, 2, 8, 10)):
            sel += mk('v_cmp_eq_u32 vcc, %d, v%d\nv_cmp_eq_u32 s[%d:%d], %d, v%d\ns_nop 0\nv_cndmask_b32 v%d, 0, v%d, vcc\nv_cndmask_b32 v%d, v%d, v%d, s[%d:%d]'
                      % (r0, U, sPm, sPm + 1, r0 + 1, U, SEL + q, U + 1, SEL + q, SEL + q, U + 2, sPm, sPm + 1))
        for q, sB in enumerate((sEb, sLb)):
            sel += mk('s_lshl_b32 s%d, s%d, 15\ns_lshl_b32 s%d, s%d, 10\ns_add_u32 s%d, s%d, s%d\ns_add_u32 s%d, s%d, %d' % (sT0, sB, sT2, sFe, sT0, sT0, sT2, sRes + q, sT0, X1_OFF))
            if l == 0:
                sel += mk('s_mul_i32 s%d, s%d, %d\ns_add_u32 s%d, s%d, %d\ns_add_u32 s%d, s%d, s%d' % (sT0, sB, XIN_BS, sT0, sT0, XIN_OFF, sFin + q, sT0, sT2))
                sel += mk('s_lshr_b32 s%d, s%d, 2\ns_lshl_b32 s%d, s%d, 10\ns_add_u32 s%d, s%d, s%d\ns_and_b32 s%d, s%d, 3\ns_lshl_b32 s%d, s%d, 2\ns_add_u32 s%d, s%d, s%d\ns_add_u32 s%d, s%d, 28672'
                          % (sT2, sFe, sT2, sT2, sT0, sT0, sT2, sT2, sFe, sT2, sT2, sT0, sT0, sT2, sFin + 2 + q, sT0))
                sel += mk('s_lshl_b32 s%d, s%d, 5\ns_add_u32 s%d, s%d, s%d\ns_lshl_b32 s%d, s%d, 2\ns_add_u32 s%d, s%d, %d' % (sT2, sB, sT2, sT2, sFe, sT2, sT2, sFin + 4 + q, sT2, FXIN))
            else:
                sel += mk('s_lshl_b32 s%d, s%d, 2\ns_add_u32 s%d, s%d, s%d\ns_mul_i32 s%d, s%d, %d\ns_lshl_b32 s%d, s%d, 5\ns_add_u32 s%d, s%d, s%d'
                          % (sT0, sC, sT0, sT0, sB, sT0, sT0, 32 * 896, sT2, sFe, sFin + q, sT0, sT2))

        return sel

    def mlp(self, l):
        P = self.P
        o = self.o
        P.comment('==== layer %d : MLP' % l)
        ACC = (16, 32)
        XB, EXB, WEX, T, RING = 48, 72, 76, 80, 108
        KK = (96, 100)
        SEL, vB2, vX2 = self.SEL, 104, 105
        NB = 6
        P('s_mov_b32 s%d, %d' % (sT4, FX1))
        P.add(self.poll_issue(sT4))
        P('s_lshl_b32 s%d, s%d, 11' % (sT5, sW))
        P('v_mov_b32 v%d, v%d\nv_mov_b32 v%d, v%d' % (WEX, vW1X, WEX + 1, vW1X + 1))
        P('\n'.join('v_mov_b32 v%d, 0' % r for r in (WEX + 2, WEX + 3, EXB + 2, EXB + 3)))
        vE8, vK16 = vTr, vT + 3
        P('v_lshlrev_b32 v%d, 3, v0\nv_add_u32 v%d, %d, v%d' % (vE8, vE8, L_KVS, vE8))
        P('v_and_b32 v%d, 31, v0\nv_lshlrev_b32 v%d, 4, v%d\nv_add_u32 v%d, %d, v%d' % (vK16, vK16, vK16, vK16, L_KVS + 512, vK16))
        P('v_add_u32 v%d, %d, v%d' % (vX2, 56 * 1024, vL16))
        P('s_lshl_b32 s%d, s%d, 7\ns_add_u32 s%d, s%d, %d\nv_lshrrev_b32 v%d, 5, v0\nv_lshl_add_u32 v%d, v%d, 6, s%d' % (sT3, sW, sT3, sT3, L_B2, vB2, vB2, vB2, sT3))
        P('s_add_u32 s%d, s%d, %d' % (sT1, sBlk, X1_OFF + 28672))
        P.add(self.poll_check(sT4))
        P.add(self.stamp('x1_seen'))
        xd, tc = [], []
        for c, r in enumerate(self.XSRC):
            g = mk('s_add_u32 m0, s%d, %d' % (sT5, 8192 * c))
            g += mk('buffer_load_dwordx4 v%d, %s, s%d offen sc1 lds\nbuffer_load_dwordx4 v%d, %s, s%d offen offset:1024 sc1 lds' % (vL16, self.srd(SRD_CL), r, vL16, self.srd(SRD_CL), r))
            tc.append(tok(g[-1]))
            xd.append(g)
        P.add(xd[0] + xd[1])
        stl = [mk('buffer_load_dwordx4 %s, v%d, %s, s%d offen offset:%d sc1' % (v(RING + 4 * i, 4), vL16, self.srd(SRD_CL), sT1, 1024 * i)) for i in range(4)]
        K0 = KK[1]
        st0 = mk('v_add_f32 v%d, v%d, v%d' % (T, RING, RING + 1))
        for i in range(2, 14):
            st0 += mk('v_add_f32 v%d, v%d, v%d' % (T, T, RING + i))
        st0 += self.stats_finish(T, True)
        st0 += mk('\n'.join(['v_rcp_f32 v%d, v%d' % (K0 + 2, vRl),
                             'v_mul_f32 v%d, s%d, v%d' % (K0, sC0, vRl),
                             'v_mul_f32 v%d, v%d, v%d' % (T, vRl, vRl),
                             'v_mul_f32 v%d, s%d, v%d' % (K0 + 1, sC1, vRl),
                             'v_mul_f32 v%d, v%d, v%d' % (K0 + 1, K0 + 1, T),
                             'v_sub_f32 v%d, 0, v%d' % (vMean, vMean),
                             'v_cndmask_b32 v%d, v%d, v%d, s[%d:%d]' % (vMean, vMean, K0 + 2, sHalf, sHalf + 1)]))
        st0 += self.split_act(T + 2, vMean, T)
        st0 += mk('s_lshl_b32 s%d, s%d, 10\nv_add_u32 v%d, s%d, v%d\nv_add_u32 v%d, s%d, v%d' % (sT4, sW, vT, sT4, vE8, vT + 1, sT4, vK16))
        st0 += mk('ds_write_b64 v%d, %s\nds_write_b128 v%d, %s' % (vT, v(T + 2, 2), vT + 1, v(K0, 4)))
        tst = tok(st0[-1])

        def hpub(b):
            pre = mk('s_add_u32 s%d, s%d, %d' % (sT4, sHst, b * 114688))
            st = self.stores(['buffer_store_dwordx4 %s, v%d, %s, s%d offen offset:%d' % (v(ACC[b & 1] + 4 * j, 4), vL16, self.srd(SRD_CL), sT4, 1024 * j) for j in range(2)])
            return pre + st, tok(st[-1])
        hflag = lambda b, tk: self.flag([tk], sFoMy, FH - FO + 512 * b)
        extrd = lambda b: mk('ds_read_b64 %s, v%d offset:%d\nds_read_b128 %s, v%d offset:%d' % (v(EXB, 2), vE8, 1024 * b, v(KK[b & 1], 4), vK16, 1024 * b))
        extmf = lambda b: mfma(ACC[b & 1], v(WEX, 4), v(EXB, 4))
        hreg = [RING + 4 * (i % 16) for i in range(56)]

        def hload(i):
            blk, kap = divmod(i, 28)
            g = mk('s_add_u32 s%d, s%d, %d' % (sHs, (sHE, sHL)[blk], 8192 * (kap // 2))) if kap % 2 == 0 else []
            return g + mk('buffer_load_dwordx4 %s, v%d, %s, s%d offen offset:%d sc1' % (v(hreg[i], 4), vL16, self.srd(SRD_CL), sHs, 1024 * (kap % 2)))
        P.add([wait_tok(tc[0])])
        P('s_barrier')
        P.add(self.stamp('s3_b0'))
        rdj = lambda j: mk('ds_read_b128 %s, v%d offset:%d' % (v(XB + 4 * (j % NB), 4), vL16 if j < 56 else vX2, 1024 * (j % 56)))
        for j in range(NB):
            P.add(rdj(j))
        bars = {3: [tc[1]], 11: [tc[2]], 19: [tc[3]], 27: [tc[5], tst], 43: [tc[9]], 75: [tc[13]]}
        slots = []
        for j in range(112):
            b, k = divmod(j, 28)
            sl = mfma(ACC[b & 1], w1reg(k), v(XB + 4 * (j % NB), 4), k == 0)
            if k % 2 == 0:
                also_waits_for(sl[0], v(XB + 4 * ((j + 1) % NB), 4))
            if j in bars:
                sl += (self.stamp('pb%d' % j) if self.light else []) + [wait_tok(*bars[j])] + mk('s_barrier') + (self.stamp('ab%d' % j) if self.light else [])
            if k % 2 == 1:
                for jj in (j + NB - 1, j + NB):
                    if jj < 112:
                        sl += rdj(jj)
            if (k == 25 and b) or j == 27:
                sl += extrd(b)
            if (k == 27 and b) or j == 30:
                sl += extmf(b if k == 27 else 0)
            slots.append(sl)
        slots[0] += stl[0] + stl[1]
        slots[1] += xd[2]
        slots[3] += stl[2] + stl[3]
        for c in range(3, 14):
            slots[6 + 4 * (c - 3)] += xd[c]
        W2R = RING + 32
        pre0 = self.w2_addr(W2R) if l == 0 else []
        out = spread(slots[:o['st0']], pre0) + spread(slots[o['st0']:26], st0) + slots[26] + slots[27]
        pend = None
        for b in range(1, 4):
            gA, _, tail = self.gelu(ACC[(b - 1) & 1], KK[(b - 1) & 1], T)
            s0 = 28 * b + (5 if b == 1 else 2)
            st, nxt = hpub(b - 1)
            if l == 0 and b < 3 and o['pfw2']:
                st = st + self.w2_prefetch(vT, b - 1)
            if l == 0 and not o['idleh']:
                st = st + self.touch([(16, SRD_CL, sHst, bb * 114688) for bb in ((b - 1,) if b < 3 else (2, 3))], vT)
            slots[s0] += gA
            if pend is not None and l == 1:
                slots[28 * b + o['flagpos']] += hflag(b - 2, pend)
            pend = nxt
            if b == 3 and l == 1:
                slots[84 + o['pollE']] += self.pa(14) + self.poll_issue(sPE)
                n3 = o['n3']
                slots[112 - n3] += (self.stamp('preE') if self.light else []) + self.poll_check(sPE) + (self.stamp('gotE') if self.light else [])
                for i in range(n3):
                    slots[112 - n3 + i] += hload(i)
            if b == 1 or self.light:
                out += self.stamp('s3_b%d' % b)
            out += flat(slots[28 * b:s0 + 1]) + spread(slots[s0 + 1:28 * b + 28], tail + st, end=28 * b + o['gend'] - s0)
        P.add(out)
        P('s_waitcnt lgkmcnt(0)\ns_barrier')
        P.add(self.stamp('s3_end'))
        AE, AL, RX, RS = 48, 16, 80, 96
        vEW, vER = (vTr, vT, vT + 1), vT + 3
        resid = lambda q: mk('buffer_load_dwordx4 %s, v%d, %s, s%d offen sc1' % (v(RS, 4), vL16, self.srd(SRD_CL), sRes + q))
        cinit = lambda A: flat(mk('ds_read_b128 %s, v%d offset:%d' % (v(A + 4 * q, 4), vB2, 16 * q)) for q in range(4))
        ad = []
        for n, x in enumerate((2, 1, 3)):
            ad += mk('s_xor_b32 s%d, s%d, %d\ns_mul_i32 s%d, s%d, 6144\ns_add_u32 s%d, s%d, %d\nv_add_u32 v%d, s%d, v%d'
                     % (sT3, sW, x, sT3, sT3, sT3, sT3, L_EX + 2048 * (x - 1), vEW[n], sT3, vL16))
        ad += mk('s_mul_i32 s%d, s%d, 6144\ns_add_u32 s%d, s%d, %d\nv_add_u32 v%d, s%d, v%d' % (sT3, sW, sT3, sT3, L_EX, vER, sT3, vL16))
        gA, gall, _ = self.gelu(ACC[1], KK[1], T)
        st, p3 = hpub(3)
        npre = o['npre']
        if l == 0:
            npre = 7
            self.w2_stage(gall + hflag(0, pend) + hflag(1, pend) + hflag(2, pend) + st, W2R,
                          {15: hflag(3, p3), 19: self.pa(14) + self.poll_issue(sPE), 23: self.poll_check(sPE) + resid(0) + cinit(AE) + hload(0),
                           24: hload(1) + hload(2), 25: hload(3) + hload(4), 26: hload(5) + hload(6)})
        else:
            P.add(spread([resid(0)] + [hload(i) for i in range(o['n3'], npre)], gall[:40] + hflag(2, pend) + cinit(AE) + gall[40:] + st))
        if self.light:
            P.add(self.stamp('g3_end'))

        exch_write = lambda A: flat(mk('ds_write_b128 v%d, %s\nds_write_b128 v%d, %s offset:1024' % (vEW[n], v(r, 4), vEW[n], v(r + 4, 4)))
                                    for n, r in enumerate((A + 8, A + 16, A + 24)))
        exch_read = lambda: flat(mk('ds_read_b128 %s, v%d offset:%d' % (v(RX + 4 * q, 4), vER, 1024 * q)) for q in range(6))

        def addv(d, x, y, n, pk):
            if pk:
                return flat(mk('v_pk_add_f32 %s, %s, %s' % (v(d + i, 2), v(x + i, 2), v(y + i, 2))) for i in range(0, n, 2))
            return flat(mk('v_add_f32 v%d, v%d, v%d' % (d + i, x + i, y + i)) for i in range(n))

        def finish(A, q, pk):
            L = addv(A, A, RX, 8, pk) + addv(RX + 8, RX + 8, RX + 16, 8, pk) + addv(A, A, RX + 8, 8, pk) + self.pack(A, A, 4)
            if l == 0:
                L += self.stores(['buffer_store_dwordx4 %s, v%d, %s, s%d offen' % (v(A, 4), vL16, self.srd(SRD_CL), sFin + q)])
                rs = self.row_stats(A, 4, RX, RX + 2)
                blk = I('\n'.join(x.text for x in rs[:9]), kind='block', src=[r for x in rs[:9] for r in x.src], dst=[('v', RX), ('v', RX + 1), ('v', RX + 2)], states=1, cost=60)
                L += [blk] + mk('s_nop 2') + rs[9:]
                st = self.stores(['buffer_store_dword v%d, v%d, %s, s%d offen' % (RX, vL16, self.srd(SRD_CL), sFin + 2 + q)])
                tk = tok(st[-1])
                return L + st, self.flag([tk], sFin + 4 + q)
            L += mk('v_permlane32_swap_b32 v%d, v%d\nv_permlane32_swap_b32 v%d, v%d' % (A, A + 2, A + 1, A + 3))
            L += mk('buffer_store_dwordx4 %s, v%d, %s, s%d offen %s' % (v(A, 4), vPA, self.srd(SRD_OUT), sFin + q, ('', 'sc1', 'nt', 'sc0 sc1')[o['outf']]))
            return L, []

        slots = []
        nt = o['ntail']
        order = [(i, js) for i in range(56 - nt) for js in range(2)] + [(i, 1) for i in range(56 - nt, 56)] + [(i, 0) for i in range(56 - nt, 56)]
        for i, js in order:
            blk, kap = divmod(i, 28)
            A = (AE, AL)[blk]
            sl = mfma(A, v(SEL, 4), v(RS, 4)) if kap == 0 and js == 0 else []
            slots.append(sl + mfma(A + 16 * js, a(W2A + 8 * kap + 4 * js, 4), v(hreg[i], 4), kap == 0 and js == 1))
        sidx = 0
        for i in range(npre, 56):
            sidx = max(sidx, 2 * (i - 16) + 1 if i >= 16 else 0)
            if i == 28:
                sidx = max(sidx, o['lateL'])
                slots[sidx] += (self.stamp('preL') if self.light else []) + self.poll_check(sPL) + (self.stamp('gotL') if self.light else [])
            slots[sidx] += hload(i)
            assert sidx <= 2 * i - 6
            sidx += 1 if 2 * (i + 1) - sidx - 2 < o['lead'] else 2
        if l == 1:
            slots[o['flag3']] += (self.stamp('preF') if self.light else []) + hflag(3, p3) + (self.stamp('gotF') if self.light else [])
        slots[o['pollL']] += self.poll_issue(sPL)
        for i in range(0, len(ad), 4):
            slots[2 * (i // 4) + 30] += ad[i:i + 4]
        slots[40] += resid(1)
        if l == 0:
            slots[20] += mk('s_barrier')
        slots[46] += cinit(AL)
        if l == 1:
            slots[44] += mk('v_and_b32 v%d, 31, v0\nv_mul_u32_u24 v%d, 896, v%d\nv_lshrrev_b32 v%d, 5, v0\nv_lshl_add_u32 v%d, v%d, 4, v%d'
                            % (vPA, vPA, vPA, vPoll, vPA, vPoll, vPA))
        P.add(flat(slots[:56]))
        P.add(self.stamp('s4_E'))
        late = slots[56:]
        fin, fl = finish(AE, 0, False)
        xb0 = o['xbar']
        P.add(spread(late[:xb0], exch_write(AE), start=2, end=9))
        late[xb0] += (self.stamp('preX') if self.light else []) + mk('s_waitcnt lgkmcnt(0)\ns_barrier') + (self.stamp('gotX') if self.light else []) + exch_read()
        late[34] += (self.stamp('preY') if self.light else []) + mk('s_barrier') + (self.stamp('gotY') if self.light else [])
        late[44] += fl
        wl = exch_write(AL)
        if l == 1 and o['wb'] == 3:
            lw = P.newlabel('Lnowb')
            late[o['wbslot']] += [I('s_or_b32 s%d, s%d, s%d\ns_cmp_lg_u32 s%d, 0\ns_cbranch_scc1 %s\nbuffer_wbl2 sc1\n%s:' % (sT0, sM, sW, sT0, lw, lw), kind='block', cost=12)]
        for i in range(4):
            late[56 - nt + 2 + i] += [wl[2 + i]]
        P.add(spread(late[xb0:], fin, start=4, end=33 - xb0))
        P.add(self.stamp('s4_L'))
        P.add(wl[:2] + mk('s_waitcnt lgkmcnt(0)\ns_barrier') + exch_read())
        fin, fl = finish(AL, 1, True)
        P.add(fin + fl)
        P.add(self.stamp('x2_pub'))

    def build(self):
        P = self.P
        self.prologue()
        for l in range(2):
            self.s1(l)
            if self.stop == 's1_%d' % l:
                break
            self.kvx(l)
            if self.stop == 'o_%d' % l:
                break
            lnext = 'L_layer%d' % (l + 1)
            if l == 0:
                lsk = P.newlabel('Lskipmlp')
                P.add([I('s_cmp_ge_u32 s%d, 14\ns_cbranch_scc1 %s' % (sM, lsk), kind='block')])
                self.ool.append('%s:\n%s\ns_waitcnt vmcnt(0) lgkmcnt(0)\ns_sleep 60\ns_branch %s' % (lsk, self.idle_work(), lnext))
            else:
                if self.o['wb'] in (1, 2):
                    lw, lp = P.newlabel('Lwb'), P.newlabel('Lwbp')
                    P.add([I('s_cmp_ge_u32 s%d, 14\ns_cbranch_scc1 %s' % (sM, lw), kind='block')])
                    t = [lw + ':']
                    if self.o['outt']:
                        lo = P.newlabel('Lot')
                        t += ['s_cmp_lg_u32 s%d, 15' % sM, 's_cbranch_scc1 %s' % lo, 'v_lshlrev_b32 v%d, 7, v0' % vT, 's_mov_b32 exec_hi, 0xffffff']
                        for i in range(4):
                            t += ['s_add_u32 s%d, s%d, %d' % (sT2, sX, i * 56 * 128), 'buffer_load_dword v%d, v%d, %s, s%d offen' % (vDummy, vT, self.srd(SRD_OUT), sT2)]
                        t += ['s_mov_b64 exec, -1', 's_waitcnt vmcnt(0)', lo + ':']
                    t += ['s_cmp_lg_u32 s%d, 14' % sM, 's_cbranch_scc1 L_fin', 's_cmp_lg_u32 s%d, 0' % sW, 's_cbranch_scc1 L_fin']
                    t += [x.text for x in self.pa(14, blocks=True)]
                    t += ['s_mov_b32 s%d, %d' % (sT4, FH + 512 * self.o['wbblk']), 's_sleep %d' % self.o['wbsl']] + (['buffer_wbl2 sc1', 's_waitcnt vmcnt(0)'] if self.o['wb'] == 2 else []) + [lp + ':', 's_sleep 4',
                          'buffer_load_dword v%d, v%d, %s, s%d offen sc1' % (vPoll, vPA, self.srd(SRD_CL), sT4),
                          's_add_u32 s%d, s%d, 1' % (sSpin, sSpin), 's_cmp_gt_u32 s%d, 0x40000' % sSpin, 's_cbranch_scc1 L_end',
                          's_waitcnt vmcnt(0)', 'v_cmp_ne_u32 vcc, s%d, v%d' % (sNonce, vPoll), 's_cbranch_vccnz %s' % lp,
                          'buffer_wbl2 sc1', 's_waitcnt vmcnt(0)', 's_branch L_fin']
                    self.ool.append('\n'.join(t))
                else:
                    P.add([I('s_cmp_ge_u32 s%d, 14\ns_cbranch_scc1 L_fin' % sM, kind='block')])
            self.s2(l)
            if self.stop == 'x1_%d' % l:
                P.label(lnext)
                break
            self.mlp(l)
            P.label(lnext)
            if l == 0:
                P('s_add_u32 s%d, s%d, %d\ns_add_u32 s%d, s%d, %d' % (sKv, sKv, KVP_L, sKvMy, sKvMy, KVP_L))
            if self.stop == 'x2_%d' % l:
                break
        P.add([I('s_cmp_lg_u32 s2, 0\ns_cbranch_scc1 L_fin\ns_cmp_lg_u32 s%d, 0\ns_cbranch_scc1 L_fin' % sW, kind='block')])
        P('s_mov_b64 exec, 1\nbuffer_store_dword v%d, off, %s, 0 sc1\ns_mov_b64 exec, -1' % (vNonce, self.srd(SRD_WS)))
        if self.probe is not None:
            P.add(self.stamp('end'))
            P.add([I('s_waitcnt lgkmcnt(0)\ns_sub_u32 s94, s94, s96\ns_lshl_b32 s94, s94, 2\ns_add_u32 s94, s94, 10000\nL_pr:\ns_memrealtime s[98:99]\ns_waitcnt lgkmcnt(0)\n'
                     's_sub_u32 s98, s98, s96\ns_cmp_lt_u32 s98, s94\ns_cbranch_scc1 L_pr', kind='block')])
        P.label('L_fin')
        if self.stamps:
            P('s_lshl_b32 s%d, s2, 2\ns_add_u32 s%d, s%d, s%d\ns_lshl_b32 s%d, s%d, 8\ns_add_u32 s%d, s%d, %d' % (sT0, sT0, sT0, sW, sT0, sT0, sT0, sT0, WS_STAMP))
            P.add(self.stamp('end'))
            P('s_memrealtime s[%d:%d]\ns_waitcnt lgkmcnt(0)\nv_writelane_b32 v%d, s%d, 63' % (sStamp, sStamp + 1, vStamp, sStamp))
            P('v_writelane_b32 v%d, s%d, 61' % (vStamp, sSpin))
            P('v_lshlrev_b32 v%d, 2, v0\nbuffer_store_dword v%d, v%d, %s, s%d offen' % (vT, vStamp, vT, self.srd(SRD_WS), sT0))
        P.label('L_end')
        P('s_endpgm')
        body, L = finalize(P.L)
        self.final = L
        ool = '\n'.join('\n'.join(('    ' + t if not t.endswith(':') else t) for t in b.split('\n') if t.strip()) for b in self.ool)
        head = open('cdna_kernels/%s.s.ref' % KNAME[:-7]).read().split('\n')
        hdr = [h for h in head if h.startswith(';') and '@launch' not in h]
        txt = '\n'.join(hdr) + '\n; @launch grid=(256,1,1) block=(256,1,1) lds=%d\n' % LDS_BYTES
        txt += '.amdgcn_target "amdgcn-amd-amdhsa--gfx950"\n.text\n.globl %s\n.p2align 8\n.type %s,@function\n%s:\n' % (KNAME, KNAME, KNAME)
        txt += body + ool + '\nL_code_end:\n'
        txt += '''.section .rodata,"a"
.p2align 6
.amdhsa_kernel %s
  .amdhsa_next_free_vgpr 512
  .amdhsa_next_free_sgpr 102
  .amdhsa_accum_offset 256
  .amdhsa_group_segment_fixed_size 0
  .amdhsa_kernarg_size 88
  .amdhsa_user_sgpr_count 2
  .amdhsa_user_sgpr_kernarg_segment_ptr 1
  .amdhsa_system_sgpr_workgroup_id_x 1
.end_amdhsa_kernel
''' % KNAME
        return txt


if __name__ == '__main__':
    import argparse
    ap = argparse.ArgumentParser()
    ap.add_argument('-o', default='k.s')
    ap.add_argument('--stop', default=None)
    ap.add_argument('--stamps', action='store_true')
    ap.add_argument('opts', nargs='*')
    A = ap.parse_args()
    opt = {k: (x if k in ('probe', 'light') else int(x)) for k, x in (t.split('=') for t in A.opts)}
    g = Gen(stop=A.stop, stamps=A.stamps, **opt)
    open(A.o, 'w').write(g.build())
    if A.stamps:
        open(A.o + '.stamps', 'w').write('\n'.join(g.stamp_names))
    n = {}
    for x in g.final:
        n[x.kind] = n.get(x.kind, 0) + 1
    nops = sum(x.states for x in g.final if x.op == 's_nop')
    print('instructions', n, 'nop states', nops)
```

```python
import sys, struct
from asmgen import *

KNAME = 'interleave_layers__linear_attn_block__mixer_channel_mlp__prompt_kernel'


def f32(x):
    return '0x%08x' % struct.unpack('<I', struct.pack('<f', x))[0]


LOG2E = 1.4426950408889634
LN2 = 0.6931471805599453
MF = 'v_mfma_f32_32x32x16_bf16'

WS_XCC = 0x8000
WS_STAMP = 0x10000
WS_KVP = 0x200000
KVP_CH = 9216
KVP_L = 0xA0000
WS_CL = 0x400000
LOFF = 0xD5000
O_OFF, X1_OFF, H_OFF, XIN_OFF, FL_OFF = 0, 0x20000, 0x40000, 0xB0000, 0xD4000
XIN_BS = 36864
FO, FX1, FXIN, FH = FL_OFF, FL_OFF + 512, FL_OFF + 1024, FL_OFF + 1536

L_WQ = 0
L_Q = 57344
L_XB = 28672
L_EX = 86016
L_XS = 86016
L_WO = 114688
L_KVS = 143616
L_KVB = L_KVS + 16384
L_CS = L_KVB + 2048
L_B2 = L_CS + 768
LDS_BYTES = 163840
assert L_B2 + 512 <= LDS_BYTES

SRD_WQ, SRD_WO, SRD_W1, SRD_W2, SRD_X, SRD_OUT, SRD_B1, SRD_B2, SRD_CL, SRD_WS = range(4, 44, 4)
sC, sM, sW, sNonce, sSlow, sX, sSpin = 44, 45, 46, 47, 48, 49, 50
sT0, sT1, sT2, sT3, sT4, sT5 = 51, 52, 53, 54, 55, 56
sLn2, sXcc, sWi = 57, 58, 59
sN28, sHalf = 60, 62
sZm = 64
sMo, sD1 = 66, 67
sKA = 68
sEb, sLb, sC0, sC1, sHs, sFe = 68, 69, 70, 71, 72, 73
sBlk, sOst, sFo, sFoMy, sKv, sKvMy, sHE, sHL, sPE, sPL = 74, 75, 76, 77, 78, 79, 80, 81, 82, 83
sHst = 84
sRot = 85
sQ0, sQ1 = 86, 87
sFin, sRes = 28, 34
sTag = 22
sPm = 88
sStamp = 90
sPC = 92

vLane, vL16, vDummy, vTr, vNonce, vMean, vRl, vW1X, _w1x1, vPoll, vPA = range(0, 11)
vT = 11
vStamp = 15
W2A = 0
W1A = 224
W1V = 176


def w1reg(k):
    return a(W1A + 4 * k, 4) if k < 8 else v(W1V + 4 * (k - 8), 4)


def w1half(k, hh):
    return a(W1A + 4 * k + 2 * hh, 2) if k < 8 else v(W1V + 4 * (k - 8) + 2 * hh, 2)


def flat(LL):
    return [x for L in LL for x in L]


def mfma(D, A, B, first=False):
    return mk('%s %s, %s, %s, %s' % (MF, v(D, 16), A, B, '0' if first else v(D, 16)))


class Gen:
    def __init__(self, stop=None, stamps=False, **opt):
        self.P = Prog()
        self.ool = []
        self.stop = stop
        self.stamps = stamps
        self.nstamp = 0
        self.stamp_names = []
        self.probe = opt.pop('probe', None)
        self.light = opt.pop('light', None)
        self.fine = bool(self.light or self.probe)
        if self.light is not None:
            self.light = self.light.split('+')
            assert len(self.light) <= 5
        self.seen = {}
        self.o = dict(kvdelay=10, pollE=13, n3=6, st0=15, flagpos=8, gend=26, pollL=20, lateL=32, flag3=12, xbar=13, ntail=8, lead=16, look=6, pref=0, touch=1, codepf=1, rot=1, stnt=0, idlewq=0, reuse=1, npre=14, wqlate=84, pf0=1, pfa=0, w1lag=15, nxb1=12, pfslot=50, w2fill=12, rest0=8, wb=0, wbblk=3, wbsl=100, wbslot=36, outf=0, outt=0, idleh=1, idlew2=0, pfw2=1, woslot=41, tslot=69, latespan=14, strot=1, w1b2=70, look2=10, l1touch=0, xsc1=1, storder=0)
        self.o.update(opt)

    def srd(self, r):
        return s(r, 4)

    def stamp(self, name):
        if self.probe is not None:
            self.seen[name] = self.seen.get(name, 0) + 1
            if self.probe == '%s#%d' % (name, self.seen[name]):
                return [I('s_memrealtime s[94:95]', kind='block', states=1)]
            return []
        if not self.stamps:
            return []
        if self.light is not None:
            self.seen[name] = self.seen.get(name, 0) + 1
            key = '%s#%d' % (name, self.seen[name])
            if name == 'end':
                self.stamp_names.append('end')
                t = ['s_memtime s[88:89]', 's_waitcnt lgkmcnt(0)']
                for i, r in enumerate([100] + [90 + 2 * j for j in range(len(self.stamp_names) - 2)] + [88]):
                    t.append('v_writelane_b32 v%d, s%d, %d' % (vStamp, r, i))
                return [I('\n'.join(t), kind='block', drain_lgkm=True)]
            if name != 'start' and key not in self.light:
                return []
            r = 100 if name == 'start' else 90 + 2 * (len(self.stamp_names) - 1)
            self.stamp_names.append(key if name != 'start' else name)
            return [I('s_memtime s[%d:%d]' % (r, r + 1), kind='block')]
        i = self.nstamp
        self.nstamp += 1
        self.stamp_names.append(name)
        t = 's_memtime s[%d:%d]\ns_waitcnt lgkmcnt(0)\nv_writelane_b32 v%d, s%d, %d' % (sStamp, sStamp + 1, vStamp, sStamp, i)
        return [I(t, kind='block', dst=[], src=[], drain_lgkm=True, states=3)]

    def stores(self, lines):
        insts = mk('\n'.join(lines))
        src = [r for x in insts for r in x.src]
        wide = [r for x in insts for r in x.wide]
        ls, lb = self.P.newlabel('Lslow'), self.P.newlabel('Lback')
        txt = 's_cmp_lg_u32 s%d, 0\ns_cbranch_scc1 %s\n%s\n%s:' % (sSlow, ls, '\n'.join(lines), lb)
        self.ool.append('%s:\n%s\ns_branch %s' % (ls, '\n'.join(l + ' sc1' for l in lines), lb))
        return [I(txt, kind='block', src=src, nvm=len(lines), wide=wide, states=1, cost=8 + 4 * len(lines))]

    def flag(self, toks, soff, off=0):
        st = self.stores(['buffer_store_dword v%d, off, %s, s%d offset:%d' % (vNonce, self.srd(SRD_CL), soff, off)])[0]
        st.text = 's_mov_b64 exec, 1\n' + st.text + '\ns_mov_b64 exec, -1'
        st.cost += 8
        return [wait_tok(*toks), st]

    def poll_issue(self, soff):
        return mk('buffer_load_dword v%d, v%d, %s, s%d offen sc1' % (vPoll, vPA, self.srd(SRD_CL), soff))

    def poll_check(self, soff, sleep=0, tag=False):
        ls, lb = self.P.newlabel('Lspin'), self.P.newlabel('Lgot')
        cmp = 'v_cmp_ne_u32 vcc, s%d, v%d' % (sNonce, vPoll)
        if tag:
            cmp = 'v_lshrrev_b32 v%d, 16, v%d\nv_cmp_ne_u32 vcc, s%d, v%d' % (vPoll, vPoll, sTag, vPoll)
        self.ool.append('\n'.join([
            '%s:' % ls,
            ('s_sleep %d' % sleep) if sleep else '',
            'buffer_load_dword v%d, v%d, %s, s%d offen sc1' % (vPoll, vPA, self.srd(SRD_CL), soff),
            's_add_u32 s%d, s%d, 1' % (sSpin, sSpin),
            's_cmp_gt_u32 s%d, 0x40000' % sSpin,
            's_cbranch_scc1 L_end',
            's_waitcnt vmcnt(0)',
            cmp,
            's_cbranch_vccnz %s' % ls,
            's_branch %s' % lb]))
        return [I(cmp + '\ns_cbranch_vccnz %s\n%s:' % (ls, lb), kind='block', src=[('v', vPoll)], dst=[('x', 'vcc'), ('v', vPoll)], states=2, cost=8)]

    def pa(self, n, blocks=False):
        L = 'v_and_b32 v%d, %d, v0\n' % (vPA, 15 if n <= 16 else 31)
        if n not in (16, 32):
            L += 'v_min_u32 v%d, %d, v%d\n' % (vPA, n - 1, vPA)
        L += 'v_lshlrev_b32 v%d, 2, v%d\n' % (vPA, vPA)
        if blocks:
            L += 'v_lshrrev_b32 v%d, 4, v0\nv_lshl_add_u32 v%d, v%d, 7, v%d' % (vT + 3, vPA, vT + 3, vPA)
        return mk(L)

    def trbase(self, dst, RS, kh, add=0, xor16=None):
        t = vT
        L = ['v_lshrrev_b32 v%d, 5, v%d' % (dst, vLane),
             'v_mul_u32_u24 v%d, %d, v%d' % (dst, kh, dst),
             'v_bfe_u32 v%d, v%d, 2, 2' % (t, vLane),
             'v_add_u32 v%d, v%d, v%d' % (dst, dst, t),
             'v_mul_u32_u24 v%d, %d, v%d' % (dst, RS, dst),
             'v_bfe_u32 v%d, v%d, 4, 1' % (t, vLane)]
        if xor16 is not None:
            L.append('v_xor_b32 v%d, s%d, v%d' % (t, xor16, t))
        L += ['v_lshl_add_u32 v%d, v%d, 5, v%d' % (dst, t, dst),
              'v_and_b32 v%d, 3, v%d' % (t, vLane),
              'v_lshl_add_u32 v%d, v%d, 3, v%d' % (dst, t, dst)]
        if add:
            L.append('v_add_u32 v%d, %d, v%d' % (dst, add, dst))
        return mk('\n'.join(L))

    def frag_loads(self, dsts, srd, sbase, const0, stride=1024, flags='', st=sT0):
        out = []
        cur = None
        for i, d in enumerate(dsts):
            off = const0 + i * stride
            grp = []
            if cur is None or not (0 <= off - cur <= 4095):
                cur = off
                grp += mk('s_add_u32 s%d, s%d, %d' % (st, sbase, off))
            grp += mk('buffer_load_dwordx4 %s, v%d, %s, s%d offen offset:%d %s' % (d, vL16, self.srd(srd), st, off - cur, flags))
            out.append(grp)
        return out

    def stats_finish(self, acc, double_ln):
        t1, t2 = vT + 1, vT + 2
        L = ['v_mov_b32 v%d, v%d' % (t1, acc),
             'v_mov_b32 v%d, v%d' % (vMean, acc),
             'v_permlane32_swap_b32 v%d, v%d' % (vMean, t1),
             'v_mul_f32 v%d, %s, v%d' % (vMean, f32(1.0 / 448), vMean),
             'v_mul_f32 v%d, %s, v%d' % (t1, f32(1.0 / 448), t1),
             'v_fma_f32 v%d, -v%d, v%d, v%d' % (t1, vMean, vMean, t1),
             'v_max_f32 v%d, 0, v%d' % (t1, t1),
             'v_add_f32 v%d, %s, v%d' % (t2, f32(1e-5), t1),
             'v_rsq_f32 v%d, v%d' % (vRl, t2)]
        if double_ln:
            L += ['v_mul_f32 v%d, v%d, v%d' % (t2, vRl, vRl),
                  'v_fmaak_f32 v%d, v%d, v%d, %s' % (t1, t1, t2, f32(1e-5)),
                  'v_rsq_f32 v%d, v%d' % (t1, t1),
                  'v_mul_f32 v%d, v%d, v%d' % (vRl, vRl, t1)]
        else:
            L += ['v_mul_f32 v%d, %s, v%d' % (vRl, f32(LOG2E), vRl)]
        return mk('\n'.join(L))

    def split_act(self, d0, val, t):
        return mk('\n'.join([
            'v_cvt_pk_bf16_f32 v%d, v%d, v%d' % (d0 + 1, val, val),
            'v_and_b32 v%d, 0xffff0000, v%d' % (t, d0 + 1),
            'v_sub_f32 v%d, v%d, v%d' % (t, val, t),
            'v_cvt_pk_bf16_f32 v%d, v%d, v%d' % (d0, val, t),
            'v_and_b32 v%d, 0xffff, v%d' % (d0 + 1, d0 + 1),
            'v_cndmask_b32 v%d, v%d, 0, s[%d:%d]' % (d0 + 1, d0 + 1, sHalf, sHalf + 1)]))

    def split_w(self, d0, val, t):
        return mk('\n'.join([
            'v_cvt_pk_bf16_f32 v%d, v%d, v%d' % (d0, val, val),
            'v_and_b32 v%d, 0xffff0000, v%d' % (t, d0),
            'v_sub_f32 v%d, v%d, v%d' % (t, val, t),
            'v_cvt_pk_bf16_f32 v%d, v%d, 0' % (d0 + 1, t)]))

    def phi8(self, r0, R, T, eps):
        L = ['v_pk_mul_f32 %s, %s, %s' % (v(r0 + i, 2), v(r0 + i, 2), R(i)) for i in range(0, 8, 2)]
        for i in range(8):
            L += ['v_exp_f32 v%d, v%d clamp' % (T + i, r0 + i), 'v_max_f32 v%d, 0, v%d' % (r0 + i, r0 + i)]
        L += ['v_pk_fma_f32 %s, %s, s[%d:%d], %s op_sel:[0,1,0] op_sel_hi:[1,1,1]' % (v(r0 + i, 2), v(r0 + i, 2), sLn2 - 1, sLn2, v(T + i, 2)) for i in range(0, 8, 2)]
        L += ['v_pk_add_f32 %s, %s, %s op_sel_hi:[1,0]' % (v(r0 + i, 2), v(r0 + i, 2), v(eps, 2)) for i in range(0, 8, 2)]
        return mk('\n'.join(L))

    def pack(self, dst, src, n):
        return mk('\n'.join('v_cvt_pk_bf16_f32 v%d, v%d, v%d' % (dst + i, src + 2 * i, src + 2 * i + 1) for i in range(n)))

    def unpack(self, dst, src, n):
        L = []
        for i in reversed(range(n)):
            L.append('v_and_b32 v%d, 0xffff0000, v%d' % (dst + 2 * i + 1, src + i))
            L.append('v_lshlrev_b32 v%d, 16, v%d' % (dst + 2 * i, src + i))
        return mk('\n'.join(L))

    def dots(self, regs, acc, ones, first):
        L = []
        for i, r in enumerate(regs):
            z = first and i == 0
            L.append('v_dot2_f32_bf16 v%d, v%d, v%d, %s' % (acc, r, ones, '0' if z else 'v%d' % acc))
            L.append('v_dot2_f32_bf16 v%d, v%d, v%d, %s' % (acc + 1, r, r, '0' if z else 'v%d' % (acc + 1)))
        return mk('\n'.join(L))

    def dots_end(self, acc):
        return mk('v_permlane32_swap_b32 v%d, v%d\nv_add_f32 v%d, v%d, v%d' % (acc, acc + 1, acc, acc, acc + 1))

    def row_stats(self, src, n, acc, ones):
        return mk('v_mov_b32 v%d, 0x3f803f80' % ones) + self.dots(range(src, src + n), acc, ones, True) + self.dots_end(acc)

    def kv_lane_addr(self, d, t, u, gather):
        L = []
        if gather:
            L += ['v_and_b32 v%d, 31, v0' % t, 'v_lshrrev_b32 v%d, 5, v0' % d]
        else:
            L += ['v_lshrrev_b32 v%d, 5, v0' % t, 'v_and_b32 v%d, 15, v0' % u, 'v_lshl_add_u32 v%d, v%d, 1, v%d' % (t, u, t), 'v_bfe_u32 v%d, v0, 4, 1' % d]
        L += ['v_lshrrev_b32 v%d, 3, v%d' % (u, t), 'v_sub_u32 v%d, v%d, v%d' % (u, t, u)]
        if not gather:
            L += ['v_and_b32 v%d, 7, v%d' % (t, t), 'v_cmp_eq_u32 vcc, 7, v%d' % t, 'v_cndmask_b32 v%d, v%d, 31, vcc' % (u, u)]
        L += ['v_lshl_add_u32 v%d, v%d, 5, v%d' % (d, d, u)]
        sh, qs, base = (4, 10, L_KVS) if gather else (5, 3, L_KVB)
        L += ['s_lshl_b32 s%d, s%d, %d' % (sT2, sW, qs), 'v_lshlrev_b32 v%d, %d, v%d' % (d, sh, d), 'v_add_u32 v%d, s%d, v%d' % (d, sT2, d)]
        L += ['v_and_b32 v%d, 1, v%d' % (t, u), 'v_lshlrev_b32 v%d, %d, v%d' % (t, 5 + sh, t), 'v_lshrrev_b32 v%d, 1, v%d' % (u, u)]
        L += ['v_cmp_gt_u32 vcc, 4, v%d' % u]
        L += ['v_lshl_add_u32 v%d, v%d, %d, v%d' % (t, u, qs, t), 'v_add_u32 v%d, %d, v%d' % (t, 28 << sh, t)]
        L += ['s_and_b64 vcc, vcc, s[%d:%d]' % ((sZm, sZm + 1) if gather else (sPm, sPm + 1)), 'v_cndmask_b32 v%d, v%d, v%d, vcc' % (d, d, t),
              'v_add_u32 v%d, %d, v%d' % (d, base, d)]
        return mk('\n'.join(L))

    def wq_dma(self, va, q):
        if q:
            ad = 'v_lshrrev_b32 v%d, 2, v0\nv_mul_u32_u24 v%d, 2688, v%d\nv_and_b32 v%d, 3, v0\nv_lshl_add_u32 v%d, v%d, 4, v%d' % (va, va, va, vT, va, vT, va)
        else:
            ad = ('v_lshrrev_b32 v%d, 3, v0\nv_mul_u32_u24 v%d, 2688, v%d\nv_and_b32 v%d, 3, v0\nv_lshl_add_u32 v%d, v%d, 4, v%d\n'
                  'v_lshrrev_b32 v%d, 2, v0\nv_xor_b32 v%d, v%d, v0\nv_bfe_u32 v%d, v%d, 2, 1\nv_mul_u32_u24 v%d, 896, v%d\nv_add3_u32 v%d, v%d, v%d, s%d'
                  % (va, va, va, vT, va, vT, va, vT, vT, vT, vT, vT, vT, vT, va, va, vT, sQ0))
        rows = 16 if q else 8
        pre = mk('s_mul_i32 s%d, s%d, 56\ns_add_u32 s%d, s%d, 896' % (sQ1, sM, sQ0, sQ1)) + mk(ad)
        if q:
            pre += mk('v_add_u32 v%d, s%d, v%d' % (va, sQ1, va))
        pre += mk('s_mul_i32 s%d, s%d, %d\ns_lshl_b32 s%d, s%d, 10' % (sRot, sW, rows * 2688, sQ1, sW))
        out = []
        for t in range(7 if q else 14):
            out.append(mk('s_add_u32 m0, s%d, %d\ns_add_u32 s%d, s%d, %d\nbuffer_load_dwordx4 v%d, %s, s%d offen lds'
                          % (sQ1, (L_Q if q else L_WQ) + 4096 * t, sQ0, sRot, 4 * t * rows * 2688, va, self.srd(SRD_WQ), sQ0)))
        return pre, out

    def touch(self, items, va):
        if not self.o['touch']:
            return []
        txt = ['v_lshlrev_b32 v%d, 7, v0' % va]
        cur = None
        n = 0
        for nl, srd, sg, c in items:
            if nl != cur:
                txt.append('s_mov_b64 exec, 0x%x' % ((1 << nl) - 1))
                cur = nl
            txt.append('s_add_u32 s%d, s%d, %d' % (sT2, sg, c) if sg is not None else 's_mov_b32 s%d, %d' % (sT2, c))
            txt.append('buffer_load_dword v%d, v%d, %s, s%d offen sc1' % (vDummy, va, self.srd(srd), sT2))
            n += 1
        txt.append('s_mov_b64 exec, -1')
        return [I('\n'.join(txt), kind='block', nvm=n, dst=[('v', va)], src=[('v', 0)], states=1, cost=12 * n)]

    def touch_attn(self, lo, va):
        pre = mk('s_lshr_b32 s%d, s%d, 2\ns_lshl_b32 s%d, s%d, 10\ns_add_u32 s%d, s%d, s%d\ns_mul_i32 s%d, s%d, 896' % (sT1, sM, sT1, sT1, sT1, sT1, sBlk, sT0, sW))
        return pre + self.touch([(16, SRD_CL, sOst, lo), (16, SRD_CL, sOst, lo + X1_OFF), (8, SRD_CL, sT1, lo + X1_OFF + 28672),
                                 (7, SRD_CL, sT0, lo + FL_OFF)], va)

    def prefetch(self, va, items):
        txt, n = ['v_lshlrev_b32 v%d, 7, v0' % va], 0
        for srd, per in items:
            for j in range(0, per, 64):
                nl = min(64, per - j)
                txt += ['s_mul_i32 s%d, s%d, %d' % (sT2, sWi, per * 128), 's_add_u32 s%d, s%d, %d' % (sT2, sT2, j * 128),
                        's_mov_b32 exec_lo, 0x%x' % (((1 << nl) - 1) & 0xffffffff), 's_mov_b32 exec_hi, 0x%x' % (((1 << nl) - 1) >> 32),
                        'buffer_load_dword v%d, v%d, %s, s%d offen' % (vDummy, va, self.srd(srd), sT2)]
                n += 1
        return [I('\n'.join(txt + ['s_mov_b64 exec, -1']), kind='block', nvm=n, src=[('v', 0)], dst=[('v', va)], cost=20 * n)]

    def idle_work(self):
        va = vT
        l = self.P.newlabel('Lnowarm')
        T = ['s_cmp_lg_u32 s%d, 0' % sSlow, 's_cbranch_scc1 %s' % l,
             'v_lshlrev_b32 v%d, 7, v0' % va,
             's_and_b32 s%d, s%d, 1' % (sT0, sM), 's_lshl_b32 s%d, s%d, 2' % (sT0, sT0), 's_add_u32 s%d, s%d, s%d' % (sT0, sT0, sW)]
        ld = lambda srd, fl: 'buffer_load_dword v%d, v%d, %s, s%d offen %s' % (vDummy, va, self.srd(srd), sT2, fl)
        if self.o['idleh']:
            for i in range(7):
                T += ['s_lshl_b32 s%d, s%d, 13' % (sT2, sT0), 's_add_u32 s%d, s%d, %d' % (sT2, sT2, H_OFF + i * 65536), ld(SRD_CL, 'sc1')]
        if self.o['idlew2']:
            T += ['s_lshr_b32 s%d, s%d, 3' % (sT1, sC), 's_lshl_b32 s%d, s%d, 3' % (sT1, sT1), 's_add_u32 s%d, s%d, s%d' % (sT1, sT1, sT0),
                  's_lshl_b32 s%d, s%d, 13' % (sT1, sT1), 's_and_b32 s%d, s%d, 7' % (sT2, sC), 's_mul_i32 s%d, s%d, %d' % (sT2, sT2, 1568 * 128),
                  's_add_u32 s%d, s%d, s%d' % (sT2, sT2, sT1)]
            for i in range(13):
                T += [ld(SRD_W2, ''), 's_add_u32 s%d, s%d, 131072' % (sT2, sT2), 's_cmp_ge_u32 s%d, %d' % (sT2, 13 * 131072),
                      's_cselect_b32 s%d, %d, 0' % (sT3, 13 * 131072), 's_sub_u32 s%d, s%d, s%d' % (sT2, sT2, sT3)]
        for i in range(3):
            T += ['s_lshl_b32 s%d, s%d, 13' % (sT2, sT0), 's_add_u32 s%d, s%d, %d' % (sT2, sT2, XIN_OFF + i * 65536)]
            if i == 2:
                T += ['s_min_u32 s%d, s%d, %d' % (sT2, sT2, FL_OFF - 8192)]
            T += [ld(SRD_CL, 'sc1')]
        T += [l + ':']
        return '\n'.join(T)

    def prologue(self):
        P = self.P
        o = self.o
        P('s_cmp_ge_u32 s2, 256\ns_cbranch_scc1 L_end')
        if self.probe is not None:
            P.add([I('s_memrealtime s[96:97]\ns_memrealtime s[94:95]', kind='block', states=1)])
        P('s_load_dwordx16 s[%d:%d], s[0:1], 0' % (sKA, sKA + 15))
        P('s_load_dwordx4 s[%d:%d], s[0:1], 64' % (sKA + 16, sKA + 19))
        P('s_load_dwordx2 s[%d:%d], s[0:1], 80' % (sKA + 20, sKA + 21))
        P('v_lshrrev_b32 v%d, 6, v0\nv_and_b32 v0, 63, v0\nv_readfirstlane_b32 s%d, v%d' % (vT, sW, vT))
        P('s_lshr_b32 s%d, s2, 3\ns_lshl_b32 s%d, s%d, 2\ns_add_u32 s%d, s%d, s%d' % (sM, sWi, sM, sWi, sWi, sW))
        if o['codepf']:
            P.add([I('s_getpc_b64 s[%d:%d]\nL_pc:' % (sPC, sPC + 1), kind='block', dst=[], states=1)])
            P('s_lshl_b32 s%d, s%d, 9\nv_lshlrev_b32 v%d, 7, v0\nv_add_u32 v%d, s%d, v%d' % (sT0, sWi, vT, vT, sT0, vT))
            P.add([I('v_min_u32 v%d, L_code_end-L_pc-4, v%d\ns_mov_b64 exec, 15\nglobal_load_dword v%d, v%d, s[%d:%d]\ns_mov_b64 exec, -1'
                     % (vT, vT, vDummy, vT, sPC, sPC + 1), kind='block', dst=[('v', vT)], src=[('v', vT)], nvm=1)])
        P('s_and_b32 s%d, s2, 7\ns_lshr_b32 s%d, s%d, 4\ns_lshl_b32 s%d, s%d, 3\ns_add_u32 s%d, s%d, s%d\ns_and_b32 s%d, s%d, 15'
          % (sC, sT0, sM, sT0, sT0, sC, sC, sT0, sM, sM))
        P('v_lshlrev_b32 v%d, 4, v0' % vL16)
        if self.stamps:
            P('v_mov_b32 v%d, 0' % vStamp)
            P.add(self.stamp('start'))
            P('s_memrealtime s[%d:%d]\ns_waitcnt lgkmcnt(0)\nv_writelane_b32 v%d, s%d, 62' % (sStamp, sStamp + 1, vStamp, sStamp))
        P('s_lshl_b32 s%d, s%d, 2\ns_add_u32 s%d, s%d, s%d\ns_mul_i32 s%d, s%d, %d' % (sX, sC, sX, sX, sW, sX, sX, 32 * 896))
        vq, vxb, vxh, vxa, vrd = 160, 163, 164, 165, 167
        P('v_lshrrev_b32 v%d, 5, v0\nv_and_b32 v%d, 31, v0\nv_xor_b32 v%d, v%d, v%d\nv_lshlrev_b32 v%d, 4, v%d\nv_mul_u32_u24 v%d, 896, v%d'
          % (vxh, vT, vxb, vT, vxh, vxb, vxb, vxh, vxh))
        ka = sKA

        def mksrd(r, p, size):
            P('s_mov_b32 s%d, s%d\ns_mov_b32 s%d, s%d\ns_mov_b32 s%d, %d\ns_mov_b32 s%d, 0x20000' % (r, p, r + 1, p + 1, r + 2, size, r + 3))
        P('s_lshl_b32 s%d, s%d, 14\ns_add_u32 s%d, s%d, %d' % (sT5, sW, sT5, sT5, L_XS))
        mksrd(SRD_X, ka + 0, 2048 * 896)

        def xdma(half):
            out = []
            for i in range(16):
                if half:
                    g = mk('s_mov_b32 s%d, %d\nv_xad_u32 v%d, v%d, s%d, v%d' % (sT0, ((2 * i) & 15) << 4, vxa + (i & 1), vxb, sT0, vxh))
                    g += mk('s_add_u32 s%d, s%d, %d\ns_add_u32 m0, s%d, %d' % (sT1, sX, 2 * i * 896 + 512, sT5, 1024 * i))
                    out.append(g + mk('buffer_load_dwordx4 v%d, %s, s%d offen lds' % (vxa + (i & 1), self.srd(SRD_X), sT1)))
                    continue
                g = mk('s_add_u32 s%d, s%d, %d\ns_and_b32 s%d, s%d, 15' % (sT4, sM, i, sT4, sT4) if o['rot'] else 's_mov_b32 s%d, %d' % (sT4, i))
                g += mk('s_lshl_b32 s%d, s%d, 5\ns_and_b32 s%d, s%d, 0xf0\nv_xad_u32 v%d, v%d, s%d, v%d' % (sT0, sT4, sT0, sT0, vxa + (i & 1), vxb, sT0, vxh))
                g += mk('s_mul_i32 s%d, s%d, 1792\ns_add_u32 s%d, s%d, s%d\ns_lshl_b32 s%d, s%d, 10\ns_add_u32 m0, s%d, s%d' % (sT1, sT4, sT1, sT1, sX, sT4, sT4, sT4, sT5))
                g += mk('buffer_load_dwordx4 v%d, %s, s%d offen lds' % (vxa + (i & 1), self.srd(SRD_X), sT1))
                out.append(g)
            return out
        mksrd(SRD_WQ, ka + 2, 448 * 2688)
        if o['pf0']:
            P('v_lshlrev_b32 v%d, 7, v0\ns_lshl_b32 s%d, s%d, 2\ns_add_u32 s%d, s%d, s%d\ns_mul_i32 s%d, s%d, %d\ns_mul_i32 s%d, s%d, %d\ns_add_u32 s%d, s%d, s%d\ns_mul_i32 s%d, s%d, 49'
              % (vxa, sT0, sM, sT0, sT0, sW, sT0, sT0, 14 * 128, sT1, sC, 128 * 896, sT0, sT0, sT1, sT1, sWi))
            if o['pf0'] == 1:
                P('v_add_u32 v%d, s%d, v0\nv_mul_u32_u24 v%d, 37450, v%d\nv_lshrrev_b32 v%d, 19, v%d\nv_mul_u32_u24 v%d, 896, v%d\nv_lshl_add_u32 v%d, v%d, 7, v%d'
                  % (vT, sT1, vxa + 1, vT, vxa + 1, vxa + 1, vxa + 1, vxa + 1, vxa + 1, vT, vxa + 1))
                P.add([I('s_mov_b64 exec, 0x3fff\nbuffer_load_dword v%d, v%d, %s, s%d offen\ns_mov_b32 exec_lo, -1\ns_mov_b32 exec_hi, 0x1ffff\n'
                         'buffer_load_dword v%d, v%d, %s, 0 offen offset:896\ns_mov_b64 exec, -1'
                         % (vDummy, vxa, self.srd(SRD_X), sT0, vDummy, vxa + 1, self.srd(SRD_WQ)), kind='block', nvm=2, src=[('v', vxa), ('v', vxa + 1)])])
            else:
                P.add([I('s_mov_b64 exec, 0x3fff\nbuffer_load_dword v%d, v%d, %s, s%d offen\ns_mov_b64 exec, -1' % (vDummy, vxa, self.srd(SRD_X), sT0),
                         kind='block', nvm=1, src=[('v', vxa)])])
                P.add(self.prefetch(vxa, [(SRD_WQ, 74)]))
        body = [x.text for x in xdma(0)[0]]
        body[0] = 's_add_u32 s%d, s%d, s%d' % (sT4, sM, sT2) if o['rot'] else 's_mov_b32 s%d, s%d' % (sT4, sT2)
        loop = I('\n'.join(['s_mov_b32 s%d, 0' % sT2, 'L_xa:'] + body[:-1] + ['s_add_u32 s%d, s%d, 1' % (sT2, sT2), 's_cmp_lt_u32 s%d, 16' % sT2, body[-1],
                                                                            's_cbranch_scc1 L_xa']), kind='block', nvm=16, src=[('v', vxb), ('v', vxh)] + regs_of(s(SRD_X, 4)), dst=[('v', vxa)])
        tA = tok(loop)
        P.add([loop])
        P('s_load_dword s%d, s[%d:%d], 0' % (sNonce, ka + 20, ka + 21))
        mksrd(SRD_OUT, ka + 16, 2048 * 896)
        pre, wq = self.wq_dma(vq, False)
        self.tok_wq1, self.tok_wq = tok(wq[7][-1]), tok(wq[-1][-1])
        P.add(pre + flat(wq[:8]))
        mksrd(SRD_WO, ka + 4, 448 * 896)
        mksrd(SRD_W1, ka + 8, 448 * 3584)
        if not o['pfa']:
            P('s_cmp_lt_u32 s%d, 14\ns_cselect_b32 s%d, s%d, 0' % (sM, SRD_WO + 2, SRD_WO + 2))
        mksrd(SRD_B1, ka + 10, 3584)
        mksrd(SRD_W2, ka + 12, 1792 * 896)
        mksrd(SRD_B2, ka + 14, 896)
        mksrd(SRD_WS, ka + 20, WS_CL)
        P('s_lshl_b32 s%d, s%d, 21\ns_add_u32 s%d, s%d, %d' % (sT0, sC, sT0, sT0, WS_CL))
        P('s_add_u32 s%d, s%d, s%d\ns_addc_u32 s%d, s%d, 0\ns_mov_b32 s%d, 0x200000\ns_mov_b32 s%d, 0x20000'
          % (SRD_CL, ka + 20, sT0, SRD_CL + 1, ka + 21, SRD_CL + 2, SRD_CL + 3))
        P('s_mov_b32 s%d, %s\ns_mov_b32 s%d, 0\ns_mov_b32 s%d, -1' % (sLn2, f32(LN2), sHalf, sHalf + 1))
        P('s_mov_b32 s%d, 0x10000000\ns_mov_b32 s%d, 0x10000000\ns_mov_b32 s%d, 0' % (sN28, sN28 + 1, sSpin))
        P('s_getreg_b32 s%d, hwreg(HW_REG_XCC_ID, 0, 4)' % sXcc)
        P('s_and_b32 s%d, s%d, 1\ns_sub_u32 s%d, 3, s%d' % (sEb, sM, sLb, sEb))
        P('s_cmp_eq_u32 s%d, 3\ns_cselect_b32 s%d, -1, 0\ns_mov_b32 s%d, 0' % (sW, sZm + 1, sZm))
        P('s_lshr_b32 s%d, s%d, 3\ns_lshl_b32 s%d, s%d, 1\ns_add_u32 s%d, s%d, s%d\ns_mul_i32 s%d, s%d, 7\ns_add_u32 s%d, s%d, 1\ns_lshr_b32 s%d, s%d, 1'
          % (sD1, sC, sMo, sD1, sMo, sMo, sEb, sMo, sMo, sMo, sMo, sMo, sMo))
        if not o['strot']:
            P('s_mov_b32 s%d, 0\ns_mov_b32 s%d, 0' % (sMo, sD1))
        c0 = -2.0 * 0.7978845608028654 * LOG2E
        P('s_mov_b32 s%d, %s\ns_mov_b32 s%d, %s' % (sC0, f32(c0), sC1, f32(c0 * 0.044715)))
        P('s_lshr_b32 s%d, s%d, 1\ns_lshl_b32 s%d, s%d, 2\ns_and_b32 s%d, s%d, 1\ns_lshl_b32 s%d, s%d, 1\ns_add_u32 s%d, s%d, s%d\ns_lshr_b32 s%d, s%d, 1\ns_add_u32 s%d, s%d, s%d'
          % (sFe, sM, sFe, sFe, sT0, sW, sT0, sT0, sFe, sFe, sT0, sT0, sW, sFe, sFe, sT0))
        P('s_lshl_b32 s%d, s%d, 15\ns_lshl_b32 s%d, s%d, 11\ns_add_u32 s%d, s%d, s%d' % (sBlk, sW, sOst, sM, sOst, sOst, sBlk))
        P('s_lshl_b32 s%d, s%d, 7\ns_add_u32 s%d, s%d, %d\ns_lshl_b32 s%d, s%d, 2\ns_add_u32 s%d, s%d, s%d' % (sFo, sW, sFo, sFo, FL_OFF, sT0, sM, sFoMy, sFo, sT0))
        P('s_lshl_b32 s%d, s%d, 2\ns_add_u32 s%d, s%d, s%d\ns_mul_i32 s%d, s%d, %d\ns_add_u32 s%d, s%d, %d' % (sT1, sM, sT1, sT1, sW, sKv, sT1, KVP_CH, sKv, sKv, WS_KVP))
        P('s_lshl_b32 s%d, s%d, 9\ns_add_u32 s%d, s%d, s%d' % (sKvMy, sC, sKvMy, sKvMy, sKv))
        P('s_lshl_b32 s%d, s%d, 11\ns_add_u32 s%d, s%d, %d' % (sHst, sT1, sHst, sHst, H_OFF))
        P('s_lshl_b32 s%d, s%d, 11\ns_add_u32 s%d, s%d, %d' % (sT1, sW, sT1, sT1, H_OFF))
        P('s_mul_i32 s%d, s%d, 114688\ns_add_u32 s%d, s%d, s%d\ns_mul_i32 s%d, s%d, 114688\ns_add_u32 s%d, s%d, s%d' % (sHE, sEb, sHE, sHE, sT1, sHL, sLb, sHL, sHL, sT1))
        P('s_lshl_b32 s%d, s%d, 9\ns_add_u32 s%d, s%d, s%d\ns_add_u32 s%d, s%d, %d' % (sPE, sEb, sPE, sPE, sFo, sPE, sPE, FH - FL_OFF))
        P('s_lshl_b32 s%d, s%d, 9\ns_add_u32 s%d, s%d, s%d\ns_add_u32 s%d, s%d, %d' % (sPL, sLb, sPL, sPL, sFo, sPL, sPL, FH - FL_OFF))
        self.xreg0 = xr = [16 + 4 * i if i < 20 else 176 + 4 * (i - 20) for i in range(28)]
        P('v_and_b32 v%d, 15, v0\nv_lshrrev_b32 v%d, 5, v0\nv_xor_b32 v%d, v%d, v%d\nv_lshlrev_b32 v%d, 4, v%d\nv_and_b32 v%d, 31, v0\nv_lshl_add_u32 v%d, v%d, 9, v%d\nv_add_u32 v%d, s%d, v%d'
          % (vT, vrd, vrd, vrd, vT, vrd, vrd, vT, vrd, vT, vrd, vrd, sT5, vrd))
        xrd = lambda k: mk('v_xor_b32 v%d, %d, v%d\nds_read_b128 %s, v%d' % (vrd + 1 + (k & 1), 32 * (k & 15), vrd, v(xr[k], 4), vrd + 1 + (k & 1)))
        vrs = vrd + 3
        P('v_and_b32 v%d, 15, v0\nv_lshlrev_b32 v%d, 4, v%d\nv_lshrrev_b32 v%d, 5, v0\nv_lshl_add_u32 v%d, v%d, 3, v%d\nv_and_b32 v%d, 31, v0\nv_lshl_add_u32 v%d, v%d, 9, v%d\nv_add_u32 v%d, s%d, v%d'
          % (vrs, vrs, vrs, vT, vrs, vT, vrs, vT, vrs, vT, vrs, vrs, sT5, vrs))
        P('s_and_b32 s%d, s%d, 7\ns_lshl_b32 s%d, s%d, 6\nv_xor_b32 v%d, s%d, v%d' % (sT0, sM, sT0, sT0, vrs, sT0, vrs))

        def resrd(half):
            l = P.newlabel('Lres')
            t = ['s_cmp_%s_u32 s%d, 8' % ('lt' if half else 'ge', sM), 's_cbranch_scc1 %s' % l]
            for g in range(4):
                t += ['v_xor_b32 v%d, %d, v%d' % (vrs + 1, 16 * g, vrs), 'ds_read_b64 %s, v%d' % (a(216 + 2 * g, 2), vrs + 1)]
            return [I('\n'.join(t + [l + ':']), kind='block', src=[('v', vrs)], dst=[('v', vrs + 1)])]
        P.add(self.stamp('issued'))
        P.add([wait_tok(tA)])
        P.add(self.stamp('xA'))
        for k in range(16):
            P.add(xrd(k))
        P.add(resrd(0))
        vS, vOne = 172, 174
        P('v_mov_b32 v%d, 0x3f803f80\ns_waitcnt lgkmcnt(0)' % vOne)
        xb = xdma(1)
        self.tok_xb = tok(xb[-1][-1])
        d = self.dots([xr[k] + i for k in range(16) for i in range(4)], vS, vOne, True)
        P.add(spread(xb[:o['nxb1']], d))
        self.late_dma = xb[o['nxb1']:] + wq[8:]
        self.late_rd = [xrd(k) for k in range(16, 28)] + [resrd(1)]
        self.late_dots = self.dots([xr[k] + i for k in range(16, 28) for i in range(4)], vS, vOne, False) + self.dots_end(vS)
        P('s_add_u32 s%d, s%d, 0x01010101' % (sNonce, sNonce))
        P('v_mov_b32 v%d, s%d' % (vNonce, sNonce))
        P('s_lshl_b32 s%d, s%d, 4\ns_add_u32 s%d, s%d, s%d\ns_lshl_b32 s%d, s%d, 7\ns_add_u32 s%d, s%d, %d'
          % (sT2, sC, sT2, sT2, sM, sT2, sT2, sT2, sT2, WS_XCC))
        P('s_add_u32 s%d, s%d, s%d\nv_mov_b32 v%d, s%d\ns_mov_b64 exec, 1' % (sT3, sNonce, sXcc, vT, sT3))
        P('buffer_store_dword v%d, off, %s, s%d sc1' % (vT, self.srd(SRD_WS), sT2))
        P('s_mov_b64 exec, -1')

    def s1(self, l):
        P = self.P
        o = self.o
        AK, AV, AQ, WB, SB = 96, 112, 128, 144, 160
        RLB, XE = SB, SB + 8
        NB = 4
        vS = 172 if l == 0 else vT + 2
        P.comment('==== layer %d : S1' % l)
        kh = 8 if l == 0 else 4
        vTrV, vTrQ, vCs = vT + 3, (vT + 2 if l == 0 else vDummy), vPA
        trkv = self.trbase(vTr, 128, kh, add=L_WQ) + mk('v_bfe_u32 v%d, v0, 3, 1\nv_lshl_add_u32 v%d, v%d, 6, v%d\nv_xor_b32 v%d, 64, v%d' % (vT, vTr, vT, vTr, vTrV, vTr))
        trq = self.trbase(vTrQ, 64, kh, add=L_Q)
        fin = self.stats_finish(vS, False)
        fin += mk('s_lshl_b32 s%d, s%d, 12\ns_add_u32 s%d, s%d, %d' % (sT4, sW, sT4, sT4, L_KVS))
        bounce = mk('v_and_b32 v%d, 31, v0\nv_lshl_add_u32 v%d, v%d, 2, s%d\nds_write_b32 v%d, v%d' % (vT + 1, vT + 1, vT + 1, sT4, vT + 1, vRl))
        fin += bounce
        fin += mk('v_sub_f32 v%d, 0, v%d' % (vMean, vMean)) + self.split_act(XE, vMean, vT)
        fin += mk('v_cndmask_b32 v%d, v%d, 0, s[%d:%d]\nv_mov_b32 v%d, 0\nv_mov_b32 v%d, 0' % (XE, XE, sHalf, sHalf + 1, XE + 2, XE + 3))
        if l == 0:
            xreg = self.xreg0
            P.add(trkv)
            P.add([wait_tok(self.tok_wq1)])
            P('s_barrier')
            P.add(self.stamp('wq_ready'))
            lds = []
        else:
            xreg = [16 + 4 * (i % 20) for i in range(28)]
            P.add(self.pa(28))
            P('s_add_u32 s%d, s%d, %d' % (sT4, sFo, FXIN - FL_OFF))
            P.add(self.poll_issue(sT4))
            P('s_mul_i32 s%d, s%d, %d' % (sT5, sW, XIN_BS))
            P.add(trkv + trq)
            lds = self.frag_loads([v(r, 4) for r in xreg], SRD_CL, sT5, XIN_OFF)
        nq = 0 if l == 0 else 8
        jobs = []
        for k in range(28):
            if l == 0 and k == 16:
                jobs += [(t, kk) for kk in range(7) for t in 'KV']
            jobs += [('k', k), ('v', k)] + ([('q', k)] if k < nq else [])
        jobs += [('k', 'e'), ('v', 'e')]
        nmain = len(jobs)
        jobs += [('q', k) for k in range(nq, 28)] + ([('q', 'e')] if l else [])
        vo, vb, CSA = RLB, RLB + 4, 208

        def rd(j):
            t, k = jobs[j]
            b = WB + 4 * (j % NB)
            if k == 'e':
                return mk('ds_read_b64 %s, v%d offset:%d\nv_mov_b32 v%d, 0\nv_mov_b32 v%d, 0' % (v(b, 2), vCs, 256 * 'qkv'.index(t), b + 2, b + 3))
            base = {'q': vTrQ, 'k': vTr, 'v': vTrV, 'K': vb, 'V': vb + 1}[t]
            rs = 64 if t == 'q' else 128
            return mk('ds_read_b64_tr_b16 %s, v%d offset:%d\nds_read_b64_tr_b16 %s, v%d offset:%d' % (v(b, 2), base, 16 * rs * k, v(b + 2, 2), base, 16 * rs * k + (32 // kh) * rs))
        for j in range(NB):
            P.add(rd(j))
        if l == 1:
            P.add(self.poll_check(sT4))
            P.add(self.stamp('x2_seen'))
            P.add(flat(lds[:o['look']]))
            P('s_add_u32 s%d, s%d, 1\nv_mov_b32 v%d, s%d' % (sNonce, sNonce, vNonce, sNonce))
        P('v_and_b32 v%d, 31, v0\nv_lshlrev_b32 v%d, 3, v%d\nv_add_u32 v%d, %d, v%d' % (vCs, vCs, vCs, vCs, L_CS, vCs))
        slots = []
        for j, (t, k) in enumerate(jobs):
            w = v(WB + 4 * (j % NB), 4)
            if t.isupper():
                sl = mfma(CSA + 16 * 'KV'.index(t), v(vo, 4), w, k == 0)
            else:
                x = v(XE if k == 'e' else xreg[k], 4)
                A, B = (w, x) if t == 'q' else (x, w)
                sl = mfma({'q': AQ, 'k': AK, 'v': AV}[t], A, B, k == 0)
                if l == 0 and t == 'q':
                    sl += mfma(CSA, v(CSA + 16, 4), w, k == 0)
            if l == 0 and j == 32 - NB:
                sl += [wait_tok(self.tok_wq)] + mk('s_waitcnt lgkmcnt(0)\ns_barrier') + (self.stamp('bar2') if self.fine else [])
                sl += mk('s_mul_i32 s%d, s%d, %d\nv_add_u32 v%d, s%d, v%d\nv_add_u32 v%d, s%d, v%d' % (sT0, sW, 7 * 2048, vb, sT0, vTr, vb + 1, sT0, vTrV))
            if j + NB < len(jobs) and not (j < nmain <= j + NB):
                sl += rd(j + NB)
            slots.append(sl)
        if l == 0:
            n = len(self.late_dma)
            for i, g in enumerate(self.late_dma):
                slots[(i * o['latespan']) // n] += g
            r0 = 32 - NB - 7
            slots[r0] += [wait_tok(self.tok_xb)]
            for i, g in enumerate(self.late_rd):
                slots[r0 + i // 2] += g
            slots[29] += mk('\n'.join('v_mov_b32 v%d, 0x3f803f80' % (vo + i) for i in range(4)))
            slots[31] += self.late_dots + fin
            pre, qd = self.wq_dma(175, True)
            self.tok_q = tok(qd[-1][-1])
            for i, g in enumerate([pre] + qd):
                slots[32 + i] += g
            if o['pfa']:
                slots[40] += self.prefetch(vT, [(SRD_WO, 25)]) + self.touch_attn(0, vT) + self.prefetch(vT, [(SRD_W1, 98)])
            else:
                for i, g in enumerate(self.wo_dma(175)):
                    slots[o['woslot'] + 2 * i] += g
                slots[o['tslot']] += self.touch_attn(0, vT)
            slots[47] += mk('v_and_b32 v%d, 31, v0\nv_lshlrev_b32 v%d, 2, v%d\ns_lshl_b32 s%d, s%d, 8\nv_add_u32 v%d, %d, v%d\nv_add_u32 v%d, s%d, v%d'
                            % (vb, vb, vb, sT0, sW, vb, L_KVB, vb, vb + 1, sT0, vb))
            slots[48] += mk('\n'.join('ds_write_b32 v%d, v%d offset:%d' % (vb + 1, CSA + 16 * t, 128 * t) for t in range(2)))
            slots[50] += mk('s_waitcnt lgkmcnt(0)\ns_barrier')
            for t in range(2):
                r = RLB
                slots[50 + 5 * t] += mk('\n'.join('ds_read_b32 v%d, v%d offset:%d' % (r + ww, vb, 256 * ww + 128 * t) for ww in range(4)))
                slots[53 + 5 * t] += mk('v_add_f32 v%d, v%d, v%d\nv_add_f32 v%d, v%d, v%d\nv_add_f32 v%d, v%d, v%d' % (r, r, r + 1, r + 2, r + 2, r + 3, r, r, r + 2))
                slots[54 + 5 * t] += self.split_w(r + 2, r, r + 1) + mk('ds_write_b64 v%d, %s offset:%d' % (vCs, v(r + 2, 2), 256 * (t + 1)))
        else:
            n = o['look']
            for j in range(0, nmain, 2):
                if n < 28:
                    k_free = n - 20
                    assert k_free < 0 or j >= jobs.index(('q', k_free))
                    slots[j] += lds[n]
                    n += 1
            st = self.frag_loads([v(SB + 4 * (i % 4), 4) for i in range(7)], SRD_CL, sT5, XIN_OFF + 28672, st=sT1)
            for i in range(4):
                slots[25 + 2 * i] += st[i]
            ex = []
            for i in range(1, 16):
                ex += mk('v_add_f32 v%d, v%d, v%d' % (vS, vS if i > 1 else SB, SB + i))
            for i in range(0, 15, 3):
                slots[40 + i // 3] += ex[i:i + 3]
            for i in range(3):
                slots[45 + i] += st[4 + i]
            ex = flat(mk('v_add_f32 v%d, v%d, v%d' % (vS, vS, SB + i)) for i in range(12)) + fin
            per = (len(ex) + 8) // 9
            for i in range(9):
                slots[54 + i] += ex[i * per:(i + 1) * per]
        RB = [WB + 4 * ((nmain - 4 + g) % NB) for g in range(4)]
        vEps = vT + 1
        slots[nmain - 5] += mk('v_lshrrev_b32 v%d, 5, v0\nv_lshl_add_u32 v%d, v%d, 4, s%d' % (vT + 2, vT + 2, vT + 2, sT4))
        for g in range(4):
            slots[nmain - 4 + g] += mk('ds_read_b128 %s, v%d offset:%d' % (v(RB[g], 4), vT + 2, 32 * g))
        slots[nmain - 1] += mk('v_mov_b32 v%d, 0x3f803f80\nv_add_u32 v%d, s%d, v%d\nv_mov_b32 v%d, %s' % (vPoll, vT, sT4, vL16, vEps, f32(1e-6)))
        vG = SB + 12
        ga = self.kv_lane_addr(vG, vG + 1, vG + 2, gather=True)
        for i in range(0, len(ga), 3):
            slots[(46 if l else 60) + i // 3] += ga[i:i + 3]
        P.add(flat(slots[:nmain]))
        P.add(self.stamp('s1_kv_mfma'))
        DK = WB
        for hf in range(2):
            R = lambda i: v(RB[2 * hf + i // 4] + i % 4, 2)
            P.add(self.phi8(AK + 8 * hf, R, RLB, vEps) + self.pack(AK + 4 * hf, AK + 8 * hf, 4))
            P.add(flat(mk('v_pk_mul_f32 %s, %s, %s' % (v(AV + 8 * hf + i, 2), v(AV + 8 * hf + i, 2), R(i))) for i in range(0, 8, 2)))
            P.add(self.pack(AV + 4 * hf, AV + 8 * hf, 4))
            for i in range(4):
                P('v_cndmask_b32 v%d, v%d, v%d, s[%d:%d]' % (AV + 4 * hf + i, AV + 4 * hf + i, vPoll, sN28, sN28 + 1))
        P.add(mfma(DK, v(AK, 4), v(AV, 4), True) + mfma(DK, v(AK + 4, 4), v(AV + 4, 4)))
        P('s_mov_b32 s%d, 0x80808080\ns_mov_b32 s%d, 0x80808080' % (sT0 + 1, sT0 + 2))
        for q in range(4):
            P('ds_write_b128 v%d, %s offset:%d' % (vT, v(DK + 4 * q, 4), 1024 * q))
        P('v_lshlrev_b32 v%d, 3, v0\ns_waitcnt lgkmcnt(0)\ns_barrier' % vT)
        for ww in range(4):
            P('ds_read_b128 %s, v%d offset:%d' % (v(AK + 4 * ww, 4), vG, 4096 * ww))
        if l == 1:
            for j in range(nmain, nmain + NB):
                P.add(rd(j))
        for x, y in ((AK, AK + 4), (AK + 8, AK + 12), (AK, AK + 8)):
            for i in (0, 2):
                P('v_pk_add_f32 %s, %s, %s' % (v(x + i, 2), v(x + i, 2), v(y + i, 2)))
        P.add(self.pack(AK, AK, 2))
        for i in range(2):
            P('v_cndmask_b32 v%d, v%d, v%d, s[%d:%d]' % (AK + i, AK + i, vNonce, sT0 + 1, sT0 + 2))
        P('buffer_store_dwordx2 %s, v%d, %s, s%d offen sc1' % (v(AK, 2), vT, self.srd(SRD_WS), sKvMy))
        P.add(self.stamp('kv_pub'))
        PQ = self.PQ = 104

        def qepi():
            L = []
            for hf in range(2):
                L += self.phi8(AQ + 8 * hf, lambda i: v(vRl, 2) + ' op_sel_hi:[1,0]', 48, vEps) + self.pack(PQ + 4 * hf, AQ + 8 * hf, 4)
            for i in (6, 7):
                L += mk('v_cndmask_b32 v%d, v%d, 0, s[%d:%d]' % (PQ + i, PQ + i, sHalf, sHalf + 1))
            return L
        if l == 0:
            P.add(trq + mk('\n'.join('v_mov_b32 v%d, 0x3f803f80' % (CSA + 16 + i) for i in range(4))))
            pre = [wait_tok(self.tok_q)] + mk('s_barrier') + flat(rd(j) for j in range(nmain, nmain + NB))
            post = self.split_w(WB, CSA, vT) + mk('v_mov_b32 v%d, 0\nv_mov_b32 v%d, 0\nds_write_b64 v%d, %s' % (WB + 2, WB + 3, vCs, v(WB, 2)))
            post += mfma(AQ, v(WB, 4), v(XE, 4))
            qs = slots[nmain:]
            self.staging(pre, qs, post, qepi)
        else:
            P.add(spread(slots[nmain:], self.kvx_pre(1)))
            P.add(qepi())

    PARK = 140

    def wo_dma(self, vwo):
        wo = [mk('v_lshrrev_b32 v%d, 2, v0\nv_mul_u32_u24 v%d, 896, v%d\nv_and_b32 v%d, 3, v0\nv_lshl_add_u32 v%d, v%d, 4, v%d\ns_lshl_b32 s%d, s%d, 6\nv_add_u32 v%d, s%d, v%d'
                 % (vwo, vwo, vwo, vT, vwo, vT, vwo, sQ0, sM, vwo, sQ0, vwo))
              + mk('s_mul_i32 s%d, s%d, %d\ns_lshl_b32 s%d, s%d, 10\ns_add_u32 s%d, s%d, %d' % (sQ1, sW, 16 * 896, sT3, sW, sT3, sT3, L_WO))]
        for t in range(7):
            wo.append(mk('s_add_u32 m0, s%d, %d\ns_add_u32 s%d, s%d, %d\nbuffer_load_dwordx4 v%d, %s, s%d offen lds' % (sT3, 4096 * t, sQ0, sQ1, t * 64 * 896, vwo, self.srd(SRD_WO), sQ0)))
        last = I('s_mov_b32 s%d, %d\ns_mov_b32 m0, %d\ns_mov_b64 exec, 0xffff\nbuffer_load_dwordx4 v%d, %s, s%d offen lds\ns_mov_b64 exec, -1'
                 % (sQ0, 448 * 896, L_WO + 28672, vwo, self.srd(SRD_WO), sQ0), kind='block', nvm=1, src=[('v', vwo)])
        self.tok_wo = tok(last)
        return wo + [[last]]

    def staging(self, qpre, qslots, qpost, qepi):
        P = self.P
        lskip, ljoin = P.newlabel('Lnostage'), P.newlabel('Lstaged')
        v1a, t0, t1, vp, vb, vb2 = 112, 113, 114, 115, 120, 168
        P('s_cmp_lt_u32 s%d, 14\ns_cselect_b32 s%d, s%d, 0' % (sM, SRD_W1 + 2, SRD_W1 + 2))
        P('v_lshrrev_b32 v%d, 2, v0\nv_mul_u32_u24 v%d, 3584, v%d\nv_and_b32 v%d, 3, v0\nv_lshl_add_u32 v%d, v%d, 4, v%d'
          % (v1a, v1a, v1a, vT, v1a, vT, v1a))
        P('s_lshl_b32 s%d, s%d, 2\ns_add_u32 s%d, s%d, s%d\ns_lshl_b32 s%d, s%d, 6\nv_add_u32 v%d, s%d, v%d' % (sT5, sM, sT5, sT5, sW, sT5, sT5, v1a, sT5, v1a))
        P('s_mul_i32 s%d, s%d, 7168\ns_add_u32 s%d, s%d, %d\ns_mul_i32 s%d, s%d, 21504\ns_mul_i32 s%d, s%d, %d' % (sT3, sW, sT3, sT3, L_EX, sQ1, sW, sWi, sD1, 14 * 16 * 3584))

        def issue(k):
            g = mk('s_add_u32 m0, s%d, %d' % ((sT3, 1024 * k) if k < 7 else (sQ1, 1024 * (k - 7))))
            g += mk('s_add_u32 s%d, s%d, %d' % (sQ0, sWi, k * 16 * 3584) if k < 14 else 's_sub_u32 s%d, %d, s%d' % (sQ0, k * 16 * 3584, sWi))
            g += mk('buffer_load_dwordx4 v%d, %s, s%d offen lds' % (v1a, self.srd(SRD_W1), sQ0))
            return g
        dm = [issue(k) for k in range(28)]
        tk = [tok(g[-1]) for g in dm]
        park = mk('\n'.join('v_accvgpr_read_b32 v%d, a%d' % (160 + i, 216 + i) for i in range(8)))
        park += mk('v_add_u32 v%d, s%d, v%d' % (vp, sQ1, vL16))
        park += flat(mk('ds_read_b128 %s, v%d offset:%d' % (a(self.PARK + 4 * i, 4), vp, 1024 * i)) for i in range(21))
        P.add(flat(dm[:7]) + qpre)
        P.add(spread(qslots, park) + qpost)
        P('s_lshl_b32 s%d, s%d, 11\ns_add_u32 s%d, s%d, %d' % (sT4, sC, sT4, sT4, WS_XCC))
        P('v_and_b32 v%d, 15, v0\nv_lshlrev_b32 v%d, 7, v%d' % (vPA, vPA, vPA))
        P('buffer_load_dword v%d, v%d, %s, s%d offen sc1' % (vPoll, vPA, self.srd(SRD_WS), sT4))
        P('s_waitcnt lgkmcnt(0)\ns_barrier')
        P.add([I('s_cmp_ge_u32 s%d, 14\ns_cbranch_scc1 %s' % (sM, lskip), kind='block')])
        txt, _ = finalize(mk('s_nop 7') + qepi() + self.kvx_pre(0))
        self.ool.append('%s:\n%s\ns_waitcnt vmcnt(0)\ns_branch %s' % (lskip, '\n'.join(t.strip() for t in txt.split('\n')), ljoin))
        ad = self.trbase(t1, 64, 4) + mk('v_add_u32 v%d, s%d, v%d\nv_add_u32 v%d, s%d, v%d' % (t0, sT3, t1, t1, sQ1, t1))
        ad += mk('v_and_b32 v%d, 31, v0\nv_lshlrev_b32 v%d, 1, v%d\nbuffer_load_ushort v%d, v%d, %s, s%d offen' % (vT, vT, vT, vb, vT, self.srd(SRD_B1), sT5))
        ad += mk('v_lshrrev_b32 v%d, 5, v0\nv_lshlrev_b32 v%d, 3, v%d\ns_lshl_b32 s%d, s%d, 5' % (vT, vT, vT, sT2, sFe))
        ad += mk('buffer_load_dwordx2 %s, v%d, %s, s%d offen\nbuffer_load_dwordx2 %s, v%d, %s, s%d offen offset:16'
                 % (v(vb2, 2), vT, self.srd(SRD_B2), sT2, v(vb2 + 2, 2), vT, self.srd(SRD_B2), sT2))
        vo, D = 124, 128
        if self.o['pfa']:
            sv = [mk('s_mov_b32 s%d, s%d\ns_mov_b32 s%d, s%d' % (sPm, sT3, sPm + 1, sQ1))]
            P.add(flat(sv + self.wo_dma(121)) + mk('s_mov_b32 s%d, s%d\ns_mov_b32 s%d, s%d' % (sT3, sPm, sQ1, sPm + 1)))
        def consume(k):
            va, o = (t0, 1024 * k) if k < 7 else (t1, 1024 * (k - 7))
            L = [wait_tok(tk[k])] + mk('ds_read_b64_tr_b16 %s, v%d offset:%d\nds_read_b64_tr_b16 %s, v%d offset:%d' % (w1half(k, 0), va, o, w1half(k, 1), va, o + 512))
            return L + (mfma(D, v(vo, 4), w1reg(k - 2), k == 2) if k >= 2 else [])
        lag = self.o['w1lag']
        P.add(spread(dm[7:lag], ad + qepi() + mk('\n'.join('v_mov_b32 v%d, 0x3f803f80' % (vo + i) for i in range(4)))))
        for k in range(28):
            P.add((dm[k + lag] if k + lag < 28 else []) + consume(k))
            if k + lag == 27 and self.fine:
                P.add(self.stamp('st_iss'))
        P.add(self.kvx_pre(0))
        P.add(mfma(D, v(vo, 4), w1reg(26)) + mfma(D, v(vo, 4), w1reg(27)))
        P.add(self.unpack(144, vb2, 4) + mk('\n'.join('v_mov_b32 v%d, 0' % r for r in range(152, 156))))
        P('s_lshl_b32 s%d, s%d, 7\ns_add_u32 s%d, s%d, %d\nv_lshrrev_b32 v%d, 5, v0\nv_lshl_add_u32 v%d, v%d, 6, s%d' % (sT0, sW, sT0, sT0, L_B2, vT, vT, vT, sT0))
        for q in range(4):
            P('ds_write_b128 v%d, %s offset:%d' % (vT, v(144 + 4 * min(q, 2), 4), 16 * q))
        P.add(self.split_w(vW1X, D, vT + 1) + mk('v_lshl_or_b32 v%d, v%d, 16, v%d' % (vb, vb, vb)))
        P('v_cndmask_b32 v%d, v%d, v%d, s[%d:%d]\nv_cndmask_b32 v%d, v%d, 0, s[%d:%d]' % (vW1X, vW1X, vb, sHalf, sHalf + 1, vW1X + 1, vW1X + 1, sHalf, sHalf + 1))
        P.label(ljoin)
        P.add([I('s_nop 1', kind='block', states=2)])

    def w2_prefetch(self, va, part):
        txt = ['s_lshr_b32 s%d, s%d, 3' % (sQ0, sC), 's_mul_i32 s%d, s%d, 14' % (sQ0, sQ0), 's_add_u32 s%d, s%d, s%d' % (sQ0, sQ0, sM),
               's_lshl_b32 s%d, s%d, 2' % (sQ0, sQ0), 's_add_u32 s%d, s%d, s%d' % (sQ0, sQ0, sW), 's_mul_i32 s%d, s%d, %d' % (sQ0, sQ0, 56 * 128),
               's_add_u32 s%d, s%d, %d' % (sQ0, sQ0, part * 112 * 56 * 128), 'v_lshlrev_b32 v%d, 7, v0' % va, 's_mov_b32 exec_hi, 0xffffff',
               'buffer_load_dword v%d, v%d, %s, s%d offen' % (vDummy, va, self.srd(SRD_W2), sQ0), 's_mov_b64 exec, -1']
        return [I('\n'.join(txt), kind='block', nvm=1, src=[('v', 0)], dst=[('v', va)], cost=48)]

    def w2_addr(self, R):
        v2a, tA, tB, vp = R, R + 1, R + 3, R + 5
        L = mk('v_lshrrev_b32 v%d, 3, v0\nv_mul_u32_u24 v%d, 896, v%d\nv_lshrrev_b32 v%d, 2, v0\nv_and_b32 v%d, 4, v%d\nv_xor_b32 v%d, v%d, v0\nv_and_b32 v%d, 7, v%d\nv_lshl_add_u32 v%d, v%d, 4, v%d'
               % (v2a, v2a, v2a, vT, vT, vT, vT, vT, vT, vT, v2a, vT, v2a))
        L += mk('s_lshr_b32 s%d, s%d, 1\ns_lshl_b32 s%d, s%d, 7\ns_mul_i32 s%d, s%d, %d\ns_add_u32 s%d, s%d, s%d\nv_add_u32 v%d, s%d, v%d'
                % (sT0, sM, sT0, sT0, sT2, sW, 32 * 896, sT0, sT0, sT2, v2a, sT0, v2a))
        L += mk('s_mul_i32 s%d, s%d, 7168\ns_add_u32 s%d, s%d, %d\ns_lshl_b32 s%d, s%d, 12\ns_add_u32 s%d, s%d, %d'
                % (sRot, sW, sRot, sRot, L_EX, sQ1, sW, sQ1, sQ1, L_KVS))
        L += mk('s_lshr_b32 s%d, s%d, 1' % (sT0, sW)) + self.trbase(tA, 128, 4, xor16=sT0)
        L += mk('s_and_b32 s%d, s%d, 1\nv_bfe_u32 v%d, v0, 3, 1\nv_xor_b32 v%d, s%d, v%d\nv_lshl_add_u32 v%d, v%d, 6, v%d\nv_xor_b32 v%d, 64, v%d'
                % (sT0, sW, vT, vT, sT0, vT, tA, vT, tA, tA + 1, tA))
        L += mk('v_add_u32 v%d, s%d, v%d\nv_add_u32 v%d, s%d, v%d\nv_add_u32 v%d, s%d, v%d\nv_add_u32 v%d, s%d, v%d' % (tB, sQ1, tA, tB + 1, sQ1, tA + 1, tA, sRot, tA, tA + 1, sRot, tA + 1))
        L += mk('s_mul_i32 s%d, s%d, 21504\nv_add_u32 v%d, s%d, v%d' % (sT0, sW, vp, sT0, vL16))
        return L

    def w2_stage(self, fill, R, extra):
        P = self.P
        v2a, tA, tB, vp = R, R + 1, R + 3, R + 5
        NS = 5

        def issue(u):
            out = []
            base, o = (sRot, (u % NS) * 2048) if u % NS < 3 else (sQ1, (u % NS - 3) * 2048)
            for i in range(2):
                g = mk('s_add_u32 m0, s%d, %d' % (base, o + 1024 * i))
                g += mk('s_mov_b32 s%d, %d' % (sQ0, (128 * (u // 2) + 16 * (u % 2) + 8 * i) * 896))
                out += g + mk('buffer_load_dwordx4 v%d, %s, s%d offen lds' % (v2a, self.srd(SRD_W2), sQ0))
            return out, tok(out[-1])
        tk = []
        for u in range(NS - 1):
            g, t = issue(u)
            tk.append(t)
            P.add(g)
        steps = []
        for u in range(28):
            ta, o = (tA, (u % NS) * 2048) if u % NS < 3 else (tB, (u % NS - 3) * 2048)
            L = []
            if u + NS - 1 < 28:
                if u:
                    L += [wait_tok(prev_rd)]
                g, t = issue(u + NS - 1)
                tk.append(t)
                L += g
            L += [wait_tok(tk[u])]
            for js in range(2):
                b = W2A + 8 * u + 4 * js
                L += mk('ds_read_b64_tr_b16 %s, v%d offset:%d\nds_read_b64_tr_b16 %s, v%d offset:%d' % (a(b, 2), ta + js, o, a(b + 2, 2), ta + js, o + 1024))
            prev_rd = tok(L[-1])
            L += extra.get(u, [])
            if self.fine:
                L += self.stamp('w2_%d' % u)
            r0 = self.o['rest0']
            for i in range(21):
                if u == r0 + (i * (26 - r0)) // 21:
                    assert u < 17 + (i + 1) // 2
                    L += mk('ds_write_b128 v%d, %s offset:%d' % (vp, a(self.PARK + 4 * i, 4), 1024 * i))
            steps.append(L)
        P.add(spread(steps, fill, start=0, end=self.o['w2fill']))

    K10 = 98

    def kvx_pre(self, l):
        L = []
        RES = 160
        if l == 1:
            L += mk('s_lshl_b32 s%d, s%d, 11\ns_add_u32 s%d, s%d, s%d\ns_add_u32 s%d, s%d, %d' % (sT1, sM, sT0, sT5, sT1, sT0, sT0, XIN_OFF))
            for j in range(2):
                L += mk('buffer_load_dwordx4 %s, v%d, %s, s%d offen offset:%d' % (v(RES + 4 * j, 4), vL16, self.srd(SRD_CL), sT0, 1024 * j))
            L += [I('s_mul_i32 s%d, s%d, %d\ns_add_u32 s%d, s%d, s%d\ns_addc_u32 s%d, s%d, 0\ns_sub_u32 s%d, s%d, s%d'
                    % (sT0, sSlow, LOFF, SRD_CL, SRD_CL, sT0, SRD_CL + 1, SRD_CL + 1, SRD_CL + 2, SRD_CL + 2, sT0), kind='block', cost=16)]
        L += [I('s_cmp_eq_u32 s%d, 3\ns_cselect_b32 s%d, 0xffff0000, 0\ns_cselect_b32 s%d, 0xffff0000, 0' % (sW, sPm, sPm + 1), kind='block', cost=12)]
        L += self.kv_lane_addr(self.KA, self.KA + 1, self.KA + 2, gather=False)
        g, t = self.KA + 1, self.KA + 2
        L += mk('\n'.join(['v_bfe_u32 v%d, v0, 3, 1' % g, 'v_and_b32 v%d, 3, v0' % t, 'v_lshl_add_u32 v%d, v%d, 2, v%d' % (g, g, t),
                           'v_cmp_eq_u32 vcc, 7, v%d' % g, 'v_bfe_u32 v%d, v0, 4, 1' % t, 'v_mad_u32_u24 v%d, v%d, 14, v%d' % (g, t, g),
                           'v_bfe_u32 v%d, v0, 2, 1' % t, 'v_mad_u32_u24 v%d, v%d, 7, v%d' % (g, t, g), 'v_cndmask_b32 v%d, v%d, 28, vcc' % (g, g),
                           'v_and_b32 v%d, 32, v0' % t, 'v_add_u32 v%d, v%d, v%d' % (g, g, t), 'v_lshlrev_b32 v%d, 5, v%d' % (g, g), 'v_add_u32 v%d, %d, v%d' % (g, L_KVB, g)]))
        L += mk('s_and_b32 s%d, s%d, 0x1fff\ns_or_b32 s%d, s%d, 0x4000\ns_lshl_b32 s%d, s%d, 16' % (sTag, sNonce, sTag, sTag, sTag + 1, sTag))
        L += mk('v_mov_b32 v%d, 0x3f80\nv_mov_b32 v%d, 0x3f800000\ns_mov_b32 s%d, 0x88888888\ns_mov_b32 s%d, 0x88888888' % (self.K10, self.K10 + 1, sPm, sPm + 1))
        return L

    KA = 100

    def kvx(self, l):
        P = self.P
        P.comment('==== layer %d : kv exchange' % l)
        if l == 0:
            lw, lb = P.newlabel('Lxcc'), P.newlabel('Lxok')
            P('v_subrev_u32 v%d, s%d, v%d\nv_cmp_lt_u32 vcc, 15, v%d' % (vPoll, sNonce, vPoll, vPoll))
            P.add([I('s_cbranch_vccnz %s\n%s:' % (lw, lb), kind='block')])
            self.ool.append('\n'.join([
                lw + ':',
                'buffer_load_dword v%d, v%d, %s, s%d offen sc1' % (vPoll, vPA, self.srd(SRD_WS), sT4),
                's_add_u32 s%d, s%d, 1' % (sSpin, sSpin),
                's_cmp_gt_u32 s%d, 0x40000' % sSpin,
                's_cbranch_scc1 L_end',
                's_waitcnt vmcnt(0)',
                'v_subrev_u32 v%d, s%d, v%d' % (vPoll, sNonce, vPoll),
                'v_cmp_lt_u32 vcc, 15, v%d' % vPoll,
                's_cbranch_vccnz %s' % lw,
                's_branch %s' % lb]))
            P('v_cmp_ne_u32 vcc, s%d, v%d\ns_cmp_lg_u64 vcc, 0\ns_cselect_b32 s%d, 1, 0' % (sXcc, vPoll, sSlow))
        if l == 1 and self.o['kvdelay']:
            P('s_sleep %d' % self.o['kvdelay'])
        K10, K01 = self.K10, self.K10 + 1
        P('v_and_b32 v%d, 31, v0\nv_lshlrev_b32 v%d, 10, v%d\nv_add_u32 v%d, 1020, v%d' % (vPA, vPA, vPA, vPA, vPA))
        P.add(self.trbase(vTr, 64, 7, add=L_WO))
        lsw, lre = P.newlabel('Lsweep'), P.newlabel('Lresweep')
        P.add(self.stamp('sweep_start'))
        P.label(lsw)
        B = 32
        P.add(flat(self.frag_loads([v(B + 4 * i, 4) for i in range(8)], SRD_WS, sKv, 0, flags='sc1')))
        bad, S = vT, 16
        P('v_mov_b32 v%d, 0' % bad)
        for i in range(8):
            for k in range(4):
                for hh, K in enumerate((K10, K01)):
                    P('v_dot2_f32_bf16 v%d, v%d, v%d, %s' % (S + 2 * k + hh, B + 4 * i + k, K, 'v%d' % (S + 2 * k + hh) if i else '0'))
            for k in (2, 3):
                P('v_bitop3_b32 v%d, v%d, s%d, v%d bitop3:0xbe' % (bad, B + 4 * i + k, sNonce, bad))
        P('v_cmp_ne_u32 vcc, 0, v%d\ns_and_b64 vcc, vcc, s[%d:%d]' % (bad, sPm, sPm + 1))
        P.add([I('s_cbranch_vccnz %s' % lre, kind='block', states=1)])
        self.ool.append('%s:\ns_sleep 6\ns_add_u32 s%d, s%d, 1\ns_cmp_gt_u32 s%d, 0x40000\ns_cbranch_scc1 L_end\ns_branch %s'
                        % (lre, sSpin, sSpin, sSpin, lsw))
        P.add(self.stamp('sweep_done'))
        for k in range(4):
            P('v_permlane32_swap_b32 v%d, v%d' % (S + k, S + 4 + k))
        for k in (0, 2):
            P('v_pk_add_f32 %s, %s, %s' % (v(S + k, 2), v(S + k, 2), v(S + 4 + k, 2)))
        P.add(self.pack(S, S, 2))
        P('ds_write_b64 v%d, %s' % (self.KA, v(S, 2)))
        if l == 0:
            P.add([wait_tok(self.tok_wo)])
        P('s_waitcnt lgkmcnt(0)\ns_barrier')
        KF, D = 32, 16
        P('ds_read_b128 %s, v%d\nds_read_b128 %s, v%d offset:16' % (v(KF, 4), self.KA + 1, v(KF + 4, 4), self.KA + 1))
        P.add(mfma(D, v(KF, 4), v(self.PQ, 4), True))
        for i in (6, 7):
            P('v_cndmask_b32 v%d, v%d, 0, s[%d:%d]' % (KF + i, KF + i, sHalf, sHalf + 1))
        P.add(mfma(D, v(KF + 4, 4), v(self.PQ + 4, 4)))
        t1 = 40
        P('v_add_f32 v%d, %s, v%d\nv_rcp_f32 v%d, v%d\nv_mul_f32 v%d, s%d, v%d' % (t1, f32(1e-6), D + 7, t1, t1, t1, sLn2, t1))
        for r in range(0, 16, 2):
            P('v_pk_mul_f32 %s, %s, %s op_sel_hi:[1,0]' % (v(D + r, 2), v(D + r, 2), v(t1, 2)))
        P('v_mov_b32 v%d, s%d\nv_mov_b32 v%d, s%d' % (D + 7, sTag + 1, D + 15, sTag + 1))
        P.add(self.pack(D, D, 8))
        st = self.stores(['buffer_store_dwordx4 %s, v%d, %s, s%d offen offset:%d' % (v(D + 4 * j, 4), vL16, self.srd(SRD_CL), sOst, 1024 * j) for j in range(2)])
        P.add(st)
        P.add(self.stamp('o_pub'))

    def s2(self, l):
        P = self.P
        o = self.o
        P.comment('==== layer %d : S2' % l)
        ACC, OF, WB, RES = 16, 32, 144, 160
        NB = 4
        P.add(self.s4_consts(l))
        if l == 0:
            P.add(self.xsrc())
        P('s_add_u32 s%d, s%d, %d' % (sT4, sOst, X1_OFF))
        P('s_lshr_b32 s%d, s%d, 2\ns_lshl_b32 s%d, s%d, 10\ns_and_b32 s%d, s%d, 3\ns_lshl_b32 s%d, s%d, 2\ns_add_u32 s%d, s%d, s%d\ns_add_u32 s%d, s%d, s%d\ns_add_u32 s%d, s%d, %d'
          % (sT5, sM, sT5, sT5, sT1, sM, sT1, sT1, sT5, sT5, sT1, sT5, sT5, sBlk, sT5, sT5, X1_OFF + 28672))
        lre, lfail = P.newlabel('Ls2'), P.newlabel('Ls2again')
        P.label(lre)
        P.add(self.poll_issue(sBlk))
        P.add(self.unpack(ACC, RES, 8))
        jobs = [(h, j) for h in range(16) for j in range(2)]
        rd = lambda i: mk('ds_read_b64_tr_b16 %s, v%d offset:%d\nds_read_b64_tr_b16 %s, v%d offset:%d' % (
            v(WB + 4 * (i % NB), 2), vTr, 1792 * jobs[i][0] + 896 * jobs[i][1],
            v(WB + 4 * (i % NB) + 2, 2), vTr, 1792 * jobs[i][0] + 896 * jobs[i][1] + 256))
        for i in range(NB):
            P.add(rd(i))
        bad = vT
        P('v_mov_b32 v%d, 0' % bad)
        P.add(self.poll_check(sBlk, tag=True))
        P.add(self.stamp('o_seen'))
        oreg = [OF + 4 * (i % 28) for i in range(32)]
        lds = self.frag_loads([v(r, 4) for r in oreg], SRD_CL, sBlk, O_OFF, flags='sc1')
        n = o['look2']
        P.add(flat(lds[:n]))
        chk = lambda i: mk('v_bitop3_b32 v%d, v%d, s%d, v%d bitop3:0xbe\nv_and_b32 v%d, 0xffff, v%d' % (bad, oreg[i] + 3, sTag + 1, bad, oreg[i] + 3, oreg[i] + 3))
        P.add(chk(0))
        for i in range(32):
            if i + n < 32:
                P.add(lds[i + n])
            P.add(mfma(ACC, v(WB + 4 * (i % NB), 4), v(oreg[i], 4)))
            if self.fine and i in (0, 8, 16, 31):
                P.add(self.stamp('s2_%d' % i))
            if i + NB < 32:
                P.add(rd(i + NB))
            if i + 1 < 32:
                P.add(chk(i + 1))
        P('v_cmp_lt_u32 vcc, 0xffff, v%d' % bad)
        P.add([I('s_cbranch_vccnz %s' % lfail, kind='block', states=1)])
        self.ool.append('%s:\ns_add_u32 s%d, s%d, 1\ns_cmp_gt_u32 s%d, 0x40000\ns_cbranch_scc1 L_end\ns_nop 15\ns_branch %s' % (lfail, sSpin, sSpin, sSpin, lre))
        P.add(self.pa(14, blocks=True))
        P.add(self.pack(OF, ACC, 8))
        P.add(self.stores(['buffer_store_dwordx4 %s, v%d, %s, s%d offen offset:%d' % (v(OF + 4 * j, 4), vL16, self.srd(SRD_CL), sT4, 1024 * j) for j in range(2)]))
        P.add(self.row_stats(OF, 8, vT, vT + 2))
        st = self.stores(['buffer_store_dword v%d, v%d, %s, s%d offen' % (vT, vL16, self.srd(SRD_CL), sT5)])
        tk = tok(st[-1])
        P.add(st)
        if self.fine:
            P.add(self.stamp('x1_st'))
        P.add(self.flag([tk], sFoMy, FX1 - FO))
        P.add(self.stamp('x1_pub'))

    def gelu(self, acc, KK, T):
        pr = range(0, 16, 2)
        A = flat(mk('v_pk_mul_f32 %s, %s, %s' % (v(T + i, 2), v(acc + i, 2), v(acc + i, 2))) for i in pr)
        A += flat(mk('v_pk_fma_f32 %s, %s, %s, %s op_sel:[0,1,0] op_sel_hi:[1,1,0]' % (v(T + i, 2), v(T + i, 2), v(KK, 2), v(KK, 2))) for i in pr)
        A += flat(mk('v_pk_mul_f32 %s, %s, %s' % (v(T + i, 2), v(T + i, 2), v(acc + i, 2))) for i in pr)
        E = flat(mk('v_exp_f32 v%d, v%d' % (T + i, T + i)) for i in range(16))
        B = flat(mk('v_pk_fma_f32 %s, %s, %s, %s op_sel_hi:[1,0,0]' % (v(T + i, 2), v(T + i, 2), v(KK + 2, 2), v(KK + 2, 2))) for i in pr)
        R = flat(mk('v_rcp_f32 v%d, v%d' % (T + i, T + i)) for i in range(16))
        C = flat(mk('v_pk_mul_f32 %s, %s, %s' % (v(acc + i, 2), v(acc + i, 2), v(T + i, 2))) for i in pr)
        pk = self.pack(acc, acc, 8)
        g4 = lambda f, g: flat(mk(f(4 * g + i)) for i in range(4))
        e = lambda g: E[4 * g:4 * g + 4]
        r = lambda g: R[4 * g:4 * g + 4]
        b = lambda g: g4(lambda i: 'v_fma_f32 v%d, v%d, v%d, v%d' % (T + i, T + i, KK + 2, KK + 2), g)
        c = lambda g: g4(lambda i: 'v_mul_f32 v%d, v%d, v%d' % (acc + i, acc + i, T + i), g) + pk[2 * g:2 * g + 2]
        tail = e(0) + e(1) + b(0) + r(0) + e(2) + b(1) + c(0) + r(1) + e(3) + b(2) + c(1) + r(2) + b(3) + c(2) + r(3) + c(3)
        return A, A + E + B + R + C + pk, tail

    XSRC = (4, 5, 6, 7, 8, 9, 10, 11, 12, 13, 14, 15, 20, 21)

    def xsrc(self):
        L = mk('s_lshl_b32 s%d, s%d, 1\ns_mul_i32 s%d, s%d, 14\ns_add_u32 s%d, s%d, s%d\ns_mov_b32 s%d, %d' % (sT0, sW, sT1, sD1, sT1, sT1, sT0, sT2, X1_OFF))
        for c, r in enumerate(self.XSRC):
            if c:
                L += mk('s_add_u32 s%d, s%d, 8\ns_cmp_ge_u32 s%d, 28\ns_cselect_b32 s%d, 28, 0\ns_cselect_b32 s%d, 0x8000, 0\ns_sub_u32 s%d, s%d, s%d\ns_add_u32 s%d, s%d, s%d'
                        % (sT0, sT0, sT0, sT3, r, sT0, sT0, sT3, sT2, sT2, r))
                L += mk('s_add_u32 s%d, s%d, 8\ns_cmp_ge_u32 s%d, 28\ns_cselect_b32 s%d, 28, 0\ns_sub_u32 s%d, s%d, s%d' % (sT1, sT1, sT1, sT3, sT1, sT1, sT3))
            L += mk('s_lshl_b32 s%d, s%d, 10\ns_add_u32 s%d, s%d, s%d' % (r, sT1, r, r, sT2))
        return L

    SEL = 172

    def s4_consts(self, l):
        U, SEL = 168, self.SEL
        sel = mk('\n'.join(['v_lshrrev_b32 v%d, 5, v0' % SEL,
                             'v_lshlrev_b32 v%d, 2, v%d' % (SEL, SEL), 'v_and_b32 v%d, 31, v0' % (SEL + 1), 'v_sub_u32 v%d, v%d, v%d' % (U, SEL + 1, SEL),
                             'v_mov_b32 v%d, 0x3f80' % (U + 1), 'v_mov_b32 v%d, 0x3f800000' % (U + 2)]))
        for q, r0 in enumerate((0, 2, 8, 10)):
            sel += mk('v_cmp_eq_u32 vcc, %d, v%d\nv_cmp_eq_u32 s[%d:%d], %d, v%d\ns_nop 0\nv_cndmask_b32 v%d, 0, v%d, vcc\nv_cndmask_b32 v%d, v%d, v%d, s[%d:%d]'
                      % (r0, U, sPm, sPm + 1, r0 + 1, U, SEL + q, U + 1, SEL + q, SEL + q, U + 2, sPm, sPm + 1))
        for q, sB in enumerate((sEb, sLb)):
            sel += mk('s_lshl_b32 s%d, s%d, 15\ns_lshl_b32 s%d, s%d, 10\ns_add_u32 s%d, s%d, s%d\ns_add_u32 s%d, s%d, %d' % (sT0, sB, sT2, sFe, sT0, sT0, sT2, sRes + q, sT0, X1_OFF))
            if l == 0:
                sel += mk('s_mul_i32 s%d, s%d, %d\ns_add_u32 s%d, s%d, %d\ns_add_u32 s%d, s%d, s%d' % (sT0, sB, XIN_BS, sT0, sT0, XIN_OFF, sFin + q, sT0, sT2))
                sel += mk('s_lshr_b32 s%d, s%d, 2\ns_lshl_b32 s%d, s%d, 10\ns_add_u32 s%d, s%d, s%d\ns_and_b32 s%d, s%d, 3\ns_lshl_b32 s%d, s%d, 2\ns_add_u32 s%d, s%d, s%d\ns_add_u32 s%d, s%d, 28672'
                          % (sT2, sFe, sT2, sT2, sT0, sT0, sT2, sT2, sFe, sT2, sT2, sT0, sT0, sT2, sFin + 2 + q, sT0))
                sel += mk('s_lshl_b32 s%d, s%d, 5\ns_add_u32 s%d, s%d, s%d\ns_lshl_b32 s%d, s%d, 2\ns_add_u32 s%d, s%d, %d' % (sT2, sB, sT2, sT2, sFe, sT2, sT2, sFin + 4 + q, sT2, FXIN))
            else:
                sel += mk('s_lshl_b32 s%d, s%d, 2\ns_add_u32 s%d, s%d, s%d\ns_mul_i32 s%d, s%d, %d\ns_lshl_b32 s%d, s%d, 5\ns_add_u32 s%d, s%d, s%d'
                          % (sT0, sC, sT0, sT0, sB, sT0, sT0, 32 * 896, sT2, sFe, sFin + q, sT0, sT2))

        return sel

    def mlp(self, l):
        P = self.P
        o = self.o
        P.comment('==== layer %d : MLP' % l)
        ACC = (16, 32)
        XB, EXB, WEX, T, RING = 48, 72, 76, 80, 108
        KK = (96, 100)
        SEL, vB2, vX2 = self.SEL, 104, 105
        NB = 6
        P('s_mov_b32 s%d, %d' % (sT4, FX1))
        P.add(self.poll_issue(sT4))
        P('s_lshl_b32 s%d, s%d, 11' % (sT5, sW))
        P('v_mov_b32 v%d, v%d\nv_mov_b32 v%d, v%d' % (WEX, vW1X, WEX + 1, vW1X + 1))
        P('\n'.join('v_mov_b32 v%d, 0' % r for r in (WEX + 2, WEX + 3, EXB + 2, EXB + 3)))
        vE8, vK16 = vTr, vT + 3
        P('v_lshlrev_b32 v%d, 3, v0\nv_add_u32 v%d, %d, v%d' % (vE8, vE8, L_KVS, vE8))
        P('v_and_b32 v%d, 31, v0\nv_lshlrev_b32 v%d, 4, v%d\nv_add_u32 v%d, %d, v%d' % (vK16, vK16, vK16, vK16, L_KVS + 512, vK16))
        P('v_add_u32 v%d, %d, v%d' % (vX2, 56 * 1024, vL16))
        P('s_lshl_b32 s%d, s%d, 7\ns_add_u32 s%d, s%d, %d\nv_lshrrev_b32 v%d, 5, v0\nv_lshl_add_u32 v%d, v%d, 6, s%d' % (sT3, sW, sT3, sT3, L_B2, vB2, vB2, vB2, sT3))
        P('s_add_u32 s%d, s%d, %d' % (sT1, sBlk, X1_OFF + 28672))
        P.add(self.poll_check(sT4))
        P.add(self.stamp('x1_seen'))
        xd, tc = [], []
        for c, r in enumerate(self.XSRC):
            g = mk('s_add_u32 m0, s%d, %d' % (sT5, 8192 * c))
            g += mk('buffer_load_dwordx4 v%d, %s, s%d offen sc1 lds\nbuffer_load_dwordx4 v%d, %s, s%d offen offset:1024 sc1 lds' % (vL16, self.srd(SRD_CL), r, vL16, self.srd(SRD_CL), r))
            tc.append(tok(g[-1]))
            xd.append(g)
        P.add(xd[0] + xd[1])
        stl = [mk('buffer_load_dwordx4 %s, v%d, %s, s%d offen offset:%d sc1' % (v(RING + 4 * i, 4), vL16, self.srd(SRD_CL), sT1, 1024 * i)) for i in range(4)]
        K0 = KK[1]
        st0 = mk('v_add_f32 v%d, v%d, v%d' % (T, RING, RING + 1))
        for i in range(2, 14):
            st0 += mk('v_add_f32 v%d, v%d, v%d' % (T, T, RING + i))
        st0 += self.stats_finish(T, True)
        st0 += mk('\n'.join(['v_rcp_f32 v%d, v%d' % (K0 + 2, vRl),
                             'v_mul_f32 v%d, s%d, v%d' % (K0, sC0, vRl),
                             'v_mul_f32 v%d, v%d, v%d' % (T, vRl, vRl),
                             'v_mul_f32 v%d, s%d, v%d' % (K0 + 1, sC1, vRl),
                             'v_mul_f32 v%d, v%d, v%d' % (K0 + 1, K0 + 1, T),
                             'v_sub_f32 v%d, 0, v%d' % (vMean, vMean),
                             'v_cndmask_b32 v%d, v%d, v%d, s[%d:%d]' % (vMean, vMean, K0 + 2, sHalf, sHalf + 1)]))
        st0 += self.split_act(T + 2, vMean, T)
        st0 += mk('s_lshl_b32 s%d, s%d, 10\nv_add_u32 v%d, s%d, v%d\nv_add_u32 v%d, s%d, v%d' % (sT4, sW, vT, sT4, vE8, vT + 1, sT4, vK16))
        st0 += mk('ds_write_b64 v%d, %s\nds_write_b128 v%d, %s' % (vT, v(T + 2, 2), vT + 1, v(K0, 4)))
        tst = tok(st0[-1])

        def hpub(b):
            pre = mk('s_add_u32 s%d, s%d, %d' % (sT4, sHst, b * 114688))
            st = self.stores(['buffer_store_dwordx4 %s, v%d, %s, s%d offen offset:%d' % (v(ACC[b & 1] + 4 * j, 4), vL16, self.srd(SRD_CL), sT4, 1024 * j) for j in range(2)])
            return pre + st, tok(st[-1])
        hflag = lambda b, tk: self.flag([tk], sFoMy, FH - FO + 512 * b)
        extrd = lambda b: mk('ds_read_b64 %s, v%d offset:%d\nds_read_b128 %s, v%d offset:%d' % (v(EXB, 2), vE8, 1024 * b, v(KK[b & 1], 4), vK16, 1024 * b))
        extmf = lambda b: mfma(ACC[b & 1], v(WEX, 4), v(EXB, 4))
        hreg = [RING + 4 * (i % 16) for i in range(56)]

        def hload(i):
            blk, kap = divmod(i, 28)
            g = mk('s_add_u32 s%d, s%d, %d' % (sHs, (sHE, sHL)[blk], 8192 * (kap // 2))) if kap % 2 == 0 else []
            return g + mk('buffer_load_dwordx4 %s, v%d, %s, s%d offen offset:%d sc1' % (v(hreg[i], 4), vL16, self.srd(SRD_CL), sHs, 1024 * (kap % 2)))
        P.add([wait_tok(tc[0])])
        P('s_barrier')
        P.add(self.stamp('s3_b0'))
        rdj = lambda j: mk('ds_read_b128 %s, v%d offset:%d' % (v(XB + 4 * (j % NB), 4), vL16 if j < 56 else vX2, 1024 * (j % 56)))
        for j in range(NB):
            P.add(rdj(j))
        bars = {3: [tc[1]], 11: [tc[2]], 19: [tc[3]], 27: [tc[5], tst], 43: [tc[9]], 75: [tc[13]]}
        slots = []
        for j in range(112):
            b, k = divmod(j, 28)
            sl = mfma(ACC[b & 1], w1reg(k), v(XB + 4 * (j % NB), 4), k == 0)
            if k % 2 == 0:
                also_waits_for(sl[0], v(XB + 4 * ((j + 1) % NB), 4))
            if j in bars:
                sl += (self.stamp('pb%d' % j) if self.fine else []) + [wait_tok(*bars[j])] + mk('s_barrier') + (self.stamp('ab%d' % j) if self.fine else [])
            if k % 2 == 1:
                for jj in (j + NB - 1, j + NB):
                    if jj < 112:
                        sl += rdj(jj)
            if (k == 25 and b) or j == 27:
                sl += extrd(b)
            if (k == 27 and b) or j == 30:
                sl += extmf(b if k == 27 else 0)
            slots.append(sl)
        slots[0] += stl[0] + stl[1]
        slots[1] += xd[2]
        slots[3] += stl[2] + stl[3]
        for c in range(3, 14):
            slots[6 + 4 * (c - 3)] += xd[c]
        W2R = RING + 32
        pre0 = self.w2_addr(W2R) if l == 0 else []
        out = spread(slots[:o['st0']], pre0) + spread(slots[o['st0']:26], st0) + slots[26] + slots[27]
        pend = None
        for b in range(1, 4):
            gA, _, tail = self.gelu(ACC[(b - 1) & 1], KK[(b - 1) & 1], T)
            s0 = 28 * b + (5 if b == 1 else 2)
            st, nxt = hpub(b - 1)
            if l == 0 and b < 3 and o['pfw2']:
                st = st + self.w2_prefetch(vT, b - 1)
            if l == 0 and not o['idleh']:
                st = st + self.touch([(16, SRD_CL, sHst, bb * 114688) for bb in ((b - 1,) if b < 3 else (2, 3))], vT)
            slots[s0] += gA
            if pend is not None and l == 1:
                slots[28 * b + o['flagpos']] += hflag(b - 2, pend)
            pend = nxt
            if b == 3 and l == 1:
                slots[84 + o['pollE']] += self.pa(14) + self.poll_issue(sPE)
                n3 = o['n3']
                slots[112 - n3] += (self.stamp('preE') if self.fine else []) + self.poll_check(sPE) + (self.stamp('gotE') if self.fine else [])
                for i in range(n3):
                    slots[112 - n3 + i] += hload(i)
            if b == 1 or self.fine:
                out += self.stamp('s3_b%d' % b)
            out += flat(slots[28 * b:s0 + 1]) + spread(slots[s0 + 1:28 * b + 28], tail + st, end=28 * b + o['gend'] - s0)
        P.add(out)
        P('s_waitcnt lgkmcnt(0)\ns_barrier')
        P.add(self.stamp('s3_end'))
        AE, AL, RX, RS = 48, 16, 80, 96
        vEW, vER = (vTr, vT, vT + 1), vT + 3
        resid = lambda q: mk('buffer_load_dwordx4 %s, v%d, %s, s%d offen sc1' % (v(RS, 4), vL16, self.srd(SRD_CL), sRes + q))
        cinit = lambda A: flat(mk('ds_read_b128 %s, v%d offset:%d' % (v(A + 4 * q, 4), vB2, 16 * q)) for q in range(4))
        ad = []
        for n, x in enumerate((2, 1, 3)):
            ad += mk('s_xor_b32 s%d, s%d, %d\ns_mul_i32 s%d, s%d, 6144\ns_add_u32 s%d, s%d, %d\nv_add_u32 v%d, s%d, v%d'
                     % (sT3, sW, x, sT3, sT3, sT3, sT3, L_EX + 2048 * (x - 1), vEW[n], sT3, vL16))
        ad += mk('s_mul_i32 s%d, s%d, 6144\ns_add_u32 s%d, s%d, %d\nv_add_u32 v%d, s%d, v%d' % (sT3, sW, sT3, sT3, L_EX, vER, sT3, vL16))
        gA, gall, _ = self.gelu(ACC[1], KK[1], T)
        st, p3 = hpub(3)
        npre = o['npre']
        if l == 0:
            npre = 7
            self.w2_stage(gall + hflag(0, pend) + hflag(1, pend) + hflag(2, pend) + st, W2R,
                          {15: hflag(3, p3), 19: self.pa(14) + self.poll_issue(sPE), 23: self.poll_check(sPE) + resid(0) + cinit(AE) + hload(0),
                           24: hload(1) + hload(2), 25: hload(3) + hload(4), 26: hload(5) + hload(6)})
        else:
            P.add(spread([resid(0)] + [hload(i) for i in range(o['n3'], npre)], gall[:40] + hflag(2, pend) + cinit(AE) + gall[40:] + st))
        if self.fine:
            P.add(self.stamp('g3_end'))

        exch_write = lambda A: flat(mk('ds_write_b128 v%d, %s\nds_write_b128 v%d, %s offset:1024' % (vEW[n], v(r, 4), vEW[n], v(r + 4, 4)))
                                    for n, r in enumerate((A + 8, A + 16, A + 24)))
        exch_read = lambda: flat(mk('ds_read_b128 %s, v%d offset:%d' % (v(RX + 4 * q, 4), vER, 1024 * q)) for q in range(6))

        def addv(d, x, y, n, pk):
            if pk:
                return flat(mk('v_pk_add_f32 %s, %s, %s' % (v(d + i, 2), v(x + i, 2), v(y + i, 2))) for i in range(0, n, 2))
            return flat(mk('v_add_f32 v%d, v%d, v%d' % (d + i, x + i, y + i)) for i in range(n))

        def finish(A, q, pk):
            L = addv(A, A, RX, 8, pk) + addv(RX + 8, RX + 8, RX + 16, 8, pk) + addv(A, A, RX + 8, 8, pk) + self.pack(A, A, 4)
            if l == 0:
                L += self.stores(['buffer_store_dwordx4 %s, v%d, %s, s%d offen' % (v(A, 4), vL16, self.srd(SRD_CL), sFin + q)])
                rs = self.row_stats(A, 4, RX, RX + 2)
                blk = I('\n'.join(x.text for x in rs[:9]), kind='block', src=[r for x in rs[:9] for r in x.src], dst=[('v', RX), ('v', RX + 1), ('v', RX + 2)], states=1, cost=60)
                L += [blk] + mk('s_nop 2') + rs[9:]
                st = self.stores(['buffer_store_dword v%d, v%d, %s, s%d offen' % (RX, vL16, self.srd(SRD_CL), sFin + 2 + q)])
                tk = tok(st[-1])
                return L + st, self.flag([tk], sFin + 4 + q)
            L += mk('v_permlane32_swap_b32 v%d, v%d\nv_permlane32_swap_b32 v%d, v%d' % (A, A + 2, A + 1, A + 3))
            L += mk('buffer_store_dwordx4 %s, v%d, %s, s%d offen %s' % (v(A, 4), vPA, self.srd(SRD_OUT), sFin + q, ('', 'sc1', 'nt', 'sc0 sc1')[o['outf']]))
            return L, []

        slots = []
        nt = o['ntail']
        order = [(i, js) for i in range(56 - nt) for js in range(2)] + [(i, 1) for i in range(56 - nt, 56)] + [(i, 0) for i in range(56 - nt, 56)]
        for i, js in order:
            blk, kap = divmod(i, 28)
            A = (AE, AL)[blk]
            sl = mfma(A, v(SEL, 4), v(RS, 4)) if kap == 0 and js == 0 else []
            slots.append(sl + mfma(A + 16 * js, a(W2A + 8 * kap + 4 * js, 4), v(hreg[i], 4), kap == 0 and js == 1))
        sidx = 0
        for i in range(npre, 56):
            sidx = max(sidx, 2 * (i - 16) + 1 if i >= 16 else 0)
            if i == 28:
                sidx = max(sidx, o['lateL'])
                slots[sidx] += (self.stamp('preL') if self.fine else []) + self.poll_check(sPL) + (self.stamp('gotL') if self.fine else [])
            slots[sidx] += hload(i)
            assert sidx <= 2 * i - 6
            sidx += 1 if 2 * (i + 1) - sidx - 2 < o['lead'] else 2
        if l == 1:
            slots[o['flag3']] += (self.stamp('preF') if self.fine else []) + hflag(3, p3) + (self.stamp('gotF') if self.fine else [])
        slots[o['pollL']] += self.poll_issue(sPL)
        for i in range(0, len(ad), 4):
            slots[2 * (i // 4) + 30] += ad[i:i + 4]
        slots[40] += resid(1)
        if l == 0:
            slots[20] += mk('s_barrier')
        slots[46] += cinit(AL)
        if l == 1:
            slots[44] += mk('v_and_b32 v%d, 31, v0\nv_mul_u32_u24 v%d, 896, v%d\nv_lshrrev_b32 v%d, 5, v0\nv_lshl_add_u32 v%d, v%d, 4, v%d'
                            % (vPA, vPA, vPA, vPoll, vPA, vPoll, vPA))
        P.add(flat(slots[:56]))
        P.add(self.stamp('s4_E'))
        late = slots[56:]
        fin, fl = finish(AE, 0, False)
        xb0 = o['xbar']
        P.add(spread(late[:xb0], exch_write(AE), start=2, end=9))
        late[xb0] += (self.stamp('preX') if self.fine else []) + mk('s_waitcnt lgkmcnt(0)\ns_barrier') + (self.stamp('gotX') if self.fine else []) + exch_read()
        late[34] += (self.stamp('preY') if self.fine else []) + mk('s_barrier') + (self.stamp('gotY') if self.fine else [])
        late[44] += fl
        wl = exch_write(AL)
        if l == 1 and o['wb'] == 3:
            lw = P.newlabel('Lnowb')
            late[o['wbslot']] += [I('s_or_b32 s%d, s%d, s%d\ns_cmp_lg_u32 s%d, 0\ns_cbranch_scc1 %s\nbuffer_wbl2 sc1\n%s:' % (sT0, sM, sW, sT0, lw, lw), kind='block', cost=12)]
        for i in range(4):
            late[56 - nt + 2 + i] += [wl[2 + i]]
        P.add(spread(late[xb0:], fin, start=4, end=33 - xb0))
        P.add(self.stamp('s4_L'))
        P.add(wl[:2] + mk('s_waitcnt lgkmcnt(0)\ns_barrier') + exch_read())
        fin, fl = finish(AL, 1, True)
        P.add(fin + fl)
        P.add(self.stamp('x2_pub'))

    def build(self):
        P = self.P
        self.prologue()
        for l in range(2):
            self.s1(l)
            if self.stop == 's1_%d' % l:
                break
            self.kvx(l)
            if self.stop == 'o_%d' % l:
                break
            lnext = 'L_layer%d' % (l + 1)
            if l == 0:
                lsk = P.newlabel('Lskipmlp')
                P.add([I('s_cmp_ge_u32 s%d, 14\ns_cbranch_scc1 %s' % (sM, lsk), kind='block')])
                self.ool.append('%s:\n%s\ns_waitcnt vmcnt(0) lgkmcnt(0)\ns_sleep 60\ns_branch %s' % (lsk, self.idle_work(), lnext))
            else:
                if self.o['wb'] in (1, 2):
                    lw, lp = P.newlabel('Lwb'), P.newlabel('Lwbp')
                    P.add([I('s_cmp_ge_u32 s%d, 14\ns_cbranch_scc1 %s' % (sM, lw), kind='block')])
                    t = [lw + ':']
                    if self.o['outt']:
                        lo = P.newlabel('Lot')
                        t += ['s_cmp_lg_u32 s%d, 15' % sM, 's_cbranch_scc1 %s' % lo, 'v_lshlrev_b32 v%d, 7, v0' % vT, 's_mov_b32 exec_hi, 0xffffff']
                        for i in range(4):
                            t += ['s_add_u32 s%d, s%d, %d' % (sT2, sX, i * 56 * 128), 'buffer_load_dword v%d, v%d, %s, s%d offen' % (vDummy, vT, self.srd(SRD_OUT), sT2)]
                        t += ['s_mov_b64 exec, -1', 's_waitcnt vmcnt(0)', lo + ':']
                    t += ['s_cmp_lg_u32 s%d, 14' % sM, 's_cbranch_scc1 L_fin', 's_cmp_lg_u32 s%d, 0' % sW, 's_cbranch_scc1 L_fin']
                    t += [x.text for x in self.pa(14, blocks=True)]
                    t += ['s_mov_b32 s%d, %d' % (sT4, FH + 512 * self.o['wbblk']), 's_sleep %d' % self.o['wbsl']] + (['buffer_wbl2 sc1', 's_waitcnt vmcnt(0)'] if self.o['wb'] == 2 else []) + [lp + ':', 's_sleep 4',
                          'buffer_load_dword v%d, v%d, %s, s%d offen sc1' % (vPoll, vPA, self.srd(SRD_CL), sT4),
                          's_add_u32 s%d, s%d, 1' % (sSpin, sSpin), 's_cmp_gt_u32 s%d, 0x40000' % sSpin, 's_cbranch_scc1 L_end',
                          's_waitcnt vmcnt(0)', 'v_cmp_ne_u32 vcc, s%d, v%d' % (sNonce, vPoll), 's_cbranch_vccnz %s' % lp,
                          'buffer_wbl2 sc1', 's_waitcnt vmcnt(0)', 's_branch L_fin']
                    self.ool.append('\n'.join(t))
                else:
                    P.add([I('s_cmp_ge_u32 s%d, 14\ns_cbranch_scc1 L_fin' % sM, kind='block')])
            self.s2(l)
            if self.stop == 'x1_%d' % l:
                P.label(lnext)
                break
            self.mlp(l)
            P.label(lnext)
            if l == 0:
                P('s_add_u32 s%d, s%d, %d\ns_add_u32 s%d, s%d, %d' % (sKv, sKv, KVP_L, sKvMy, sKvMy, KVP_L))
            if self.stop == 'x2_%d' % l:
                break
        P.add([I('s_cmp_lg_u32 s2, 0\ns_cbranch_scc1 L_fin\ns_cmp_lg_u32 s%d, 0\ns_cbranch_scc1 L_fin' % sW, kind='block')])
        P('s_mov_b64 exec, 1\nbuffer_store_dword v%d, off, %s, 0 sc1\ns_mov_b64 exec, -1' % (vNonce, self.srd(SRD_WS)))
        if self.probe is not None:
            P.add(self.stamp('end'))
            P.add([I('s_waitcnt lgkmcnt(0)\ns_sub_u32 s94, s94, s96\ns_lshl_b32 s94, s94, 2\ns_add_u32 s94, s94, 10000\nL_pr:\ns_memrealtime s[98:99]\ns_waitcnt lgkmcnt(0)\n'
                     's_sub_u32 s98, s98, s96\ns_cmp_lt_u32 s98, s94\ns_cbranch_scc1 L_pr', kind='block')])
        P.label('L_fin')
        if self.stamps:
            P('s_lshl_b32 s%d, s2, 2\ns_add_u32 s%d, s%d, s%d\ns_lshl_b32 s%d, s%d, 8\ns_add_u32 s%d, s%d, %d' % (sT0, sT0, sT0, sW, sT0, sT0, sT0, sT0, WS_STAMP))
            P.add(self.stamp('end'))
            P('s_memrealtime s[%d:%d]\ns_waitcnt lgkmcnt(0)\nv_writelane_b32 v%d, s%d, 63' % (sStamp, sStamp + 1, vStamp, sStamp))
            P('v_writelane_b32 v%d, s%d, 61' % (vStamp, sSpin))
            P('v_lshlrev_b32 v%d, 2, v0\nbuffer_store_dword v%d, v%d, %s, s%d offen' % (vT, vStamp, vT, self.srd(SRD_WS), sT0))
        P.label('L_end')
        P('s_endpgm')
        body, L = finalize(P.L)
        self.final = L
        ool = '\n'.join('\n'.join(('    ' + t if not t.endswith(':') else t) for t in b.split('\n') if t.strip()) for b in self.ool)
        head = open('cdna_kernels/%s.s.ref' % KNAME[:-7]).read().split('\n')
        hdr = [h for h in head if h.startswith(';') and '@launch' not in h]
        txt = '\n'.join(hdr) + '\n; @launch grid=(256,1,1) block=(256,1,1) lds=%d\n' % LDS_BYTES
        txt += '.amdgcn_target "amdgcn-amd-amdhsa--gfx950"\n.text\n.globl %s\n.p2align 8\n.type %s,@function\n%s:\n' % (KNAME, KNAME, KNAME)
        txt += body + ool + '\nL_code_end:\n'
        txt += '''.section .rodata,"a"
.p2align 6
.amdhsa_kernel %s
  .amdhsa_next_free_vgpr 512
  .amdhsa_next_free_sgpr 102
  .amdhsa_accum_offset 256
  .amdhsa_group_segment_fixed_size 0
  .amdhsa_kernarg_size 88
  .amdhsa_user_sgpr_count 2
  .amdhsa_user_sgpr_kernarg_segment_ptr 1
  .amdhsa_system_sgpr_workgroup_id_x 1
.end_amdhsa_kernel
''' % KNAME
        return txt


if __name__ == '__main__':
    import argparse
    ap = argparse.ArgumentParser()
    ap.add_argument('-o', default='k.s')
    ap.add_argument('--stop', default=None)
    ap.add_argument('--stamps', action='store_true')
    ap.add_argument('opts', nargs='*')
    A = ap.parse_args()
    opt = {k: (x if k in ('probe', 'light') else int(x)) for k, x in (t.split('=') for t in A.opts)}
    g = Gen(stop=A.stop, stamps=A.stamps, **opt)
    open(A.o, 'w').write(g.build())
    if A.stamps:
        open(A.o + '.stamps', 'w').write('\n'.join(g.stamp_names))
    n = {}
    for x in g.final:
        n[x.kind] = n.get(x.kind, 0) + 1
    nops = sum(x.states for x in g.final if x.op == 's_nop')
    print('instructions', n, 'nop states', nops)
```

```python
import sys, struct
from asmgen import *

KNAME = 'interleave_layers__linear_attn_block__mixer_channel_mlp__prompt_kernel'


def f32(x):
    return '0x%08x' % struct.unpack('<I', struct.pack('<f', x))[0]


LOG2E = 1.4426950408889634
LN2 = 0.6931471805599453
MF = 'v_mfma_f32_32x32x16_bf16'

WS_XCC = 0x8000
WS_STAMP = 0x10000
WS_KVP = 0x200000
KVP_CH = 9216
KVP_L = 0xA0000
WS_CL = 0x400000
LOFF = 0xD5000
O_OFF, X1_OFF, H_OFF, XIN_OFF, FL_OFF = 0, 0x20000, 0x40000, 0xB0000, 0xD4000
XIN_BS = 36864
FO, FX1, FXIN, FH = FL_OFF, FL_OFF + 512, FL_OFF + 1024, FL_OFF + 1536

L_WQ = 0
L_Q = 57344
L_XB = 28672
L_EX = 86016
L_XS = 86016
L_WO = 114688
L_KVS = 143616
L_KVB = L_KVS + 16384
L_CS = L_KVB + 2048
L_B2 = L_CS + 768
LDS_BYTES = 163840
assert L_B2 + 512 <= LDS_BYTES

SRD_WQ, SRD_WO, SRD_W1, SRD_W2, SRD_X, SRD_OUT, SRD_B1, SRD_B2, SRD_CL, SRD_WS = range(4, 44, 4)
sC, sM, sW, sNonce, sSlow, sX, sSpin = 44, 45, 46, 47, 48, 49, 50
sT0, sT1, sT2, sT3, sT4, sT5 = 51, 52, 53, 54, 55, 56
sLn2, sXcc, sWi = 57, 58, 59
sN28, sHalf = 60, 62
sZm = 64
sMo, sD1 = 66, 67
sKA = 68
sEb, sLb, sC0, sC1, sHs, sFe = 68, 69, 70, 71, 72, 73
sBlk, sOst, sFo, sFoMy, sKv, sKvMy, sHE, sHL, sPE, sPL = 74, 75, 76, 77, 78, 79, 80, 81, 82, 83
sHst = 84
sRot = 85
sQ0, sQ1 = 86, 87
sFin, sRes = 28, 34
sTag = 22
sPm = 88
sStamp = 90
sPC = 92

vLane, vL16, vDummy, vTr, vNonce, vMean, vRl, vW1X, _w1x1, vPoll, vPA = range(0, 11)
vT = 11
vStamp = 15
vPoll2, vPoll3 = 15, 5
W2A = 0
W1A = 224
W1V = 176


def w1reg(k):
    return a(W1A + 4 * k, 4) if k < 8 else v(W1V + 4 * (k - 8), 4)


def w1half(k, hh):
    return a(W1A + 4 * k + 2 * hh, 2) if k < 8 else v(W1V + 4 * (k - 8) + 2 * hh, 2)


def flat(LL):
    return [x for L in LL for x in L]


def mfma(D, A, B, first=False):
    return mk('%s %s, %s, %s, %s' % (MF, v(D, 16), A, B, '0' if first else v(D, 16)))


class Gen:
    def __init__(self, stop=None, stamps=False, **opt):
        self.P = Prog()
        self.ool = []
        self.stop = stop
        self.stamps = stamps
        self.nstamp = 0
        self.stamp_names = []
        self.probe = opt.pop('probe', None)
        self.light = opt.pop('light', None)
        self.fine = bool(self.light or self.probe)
        if self.light is not None:
            self.light = self.light.split('+')
            assert len(self.light) <= 4
        self.seen = {}
        self.o = dict(kvdelay=5, poll2=0, psl=0, pdo=5, pdx=2, p1=1, pdi=0, s1pair=1, sta=13, stb=33, stc=48, isl=8, isl2=8, pollE=16, n3=4, st0=15, flagpos=8, gend=26, pollL=20, lateL=32, flag3=12, xbar=13, ntail=8, lead=16, look=6, pref=0, touch=1, codepf=1, rot=1, stnt=0, idlewq=0, reuse=1, npre=14, wqlate=84, pf0=1, pfa=0, w1lag=15, nxb1=12, pfslot=50, w2fill=12, rest0=8, wb=0, wbblk=3, wbsl=100, wbslot=36, outf=0, outt=0, idleh=1, idlew2=0, pfw2=1, woslot=41, tslot=69, latespan=14, strot=1, w1b2=70, look2=10, l1touch=0, xsc1=1, storder=0)
        self.o.update(opt)

    def srd(self, r):
        return s(r, 4)

    def stamp(self, name):
        if self.probe is not None:
            self.seen[name] = self.seen.get(name, 0) + 1
            if self.probe == '%s#%d' % (name, self.seen[name]):
                return [I('s_memrealtime s[94:95]', kind='block', states=1)]
            return []
        if not self.stamps:
            return []
        if self.light is not None:
            self.seen[name] = self.seen.get(name, 0) + 1
            key = '%s#%d' % (name, self.seen[name])
            if name == 'end':
                self.stamp_names.append('end')
                t = ['s_memtime s[88:89]', 's_waitcnt lgkmcnt(0) vmcnt(0)', 'v_writelane_b32 v%d, s98, 62' % vStamp]
                for i, r in enumerate([100] + [90 + 2 * j for j in range(len(self.stamp_names) - 2)] + [88]):
                    t.append('v_writelane_b32 v%d, s%d, %d' % (vStamp, r, i))
                return [I('\n'.join(t), kind='block', drain_lgkm=True)]
            if name != 'start' and key not in self.light:
                return []
            r = 100 if name == 'start' else 90 + 2 * (len(self.stamp_names) - 1)
            self.stamp_names.append(key if name != 'start' else name)
            return [I('s_memtime s[%d:%d]' % (r, r + 1), kind='block')]
        i = self.nstamp
        self.nstamp += 1
        self.stamp_names.append(name)
        t = 's_memtime s[%d:%d]\ns_waitcnt lgkmcnt(0)\nv_writelane_b32 v%d, s%d, %d' % (sStamp, sStamp + 1, vStamp, sStamp, i)
        return [I(t, kind='block', dst=[], src=[], drain_lgkm=True, states=3)]

    def stores(self, lines):
        insts = mk('\n'.join(lines))
        src = [r for x in insts for r in x.src]
        wide = [r for x in insts for r in x.wide]
        ls, lb = self.P.newlabel('Lslow'), self.P.newlabel('Lback')
        txt = 's_cmp_lg_u32 s%d, 0\ns_cbranch_scc1 %s\n%s\n%s:' % (sSlow, ls, '\n'.join(lines), lb)
        self.ool.append('%s:\n%s\ns_branch %s' % (ls, '\n'.join(l + ' sc1' for l in lines), lb))
        return [I(txt, kind='block', src=src, nvm=len(lines), wide=wide, states=1, cost=8 + 4 * len(lines))]

    def flag(self, toks, soff, off=0):
        st = self.stores(['buffer_store_dword v%d, off, %s, s%d offset:%d' % (vNonce, self.srd(SRD_CL), soff, off)])[0]
        st.text = 's_mov_b64 exec, 1\n' + st.text + '\ns_mov_b64 exec, -1'
        st.cost += 8
        return [wait_tok(*toks), st]

    def poll_issue(self, soff, delay=0):
        return (mk('s_sleep %d' % delay) if delay else []) + mk('buffer_load_dword v%d, v%d, %s, s%d offen sc1' % (vPoll, vPA, self.srd(SRD_CL), soff))

    def poll_check(self, soff, tag=False):
        ls, lb = self.P.newlabel('Lspin'), self.P.newlabel('Lgot')

        def cmp(r):
            if tag:
                return 'v_lshrrev_b32 v%d, 16, v%d\nv_cmp_ne_u32 vcc, s%d, v%d' % (r, r, sTag, r)
            return 'v_cmp_ne_u32 vcc, s%d, v%d' % (sNonce, r)
        ld = lambda r: 'buffer_load_dword v%d, v%d, %s, s%d offen sc1' % (r, vPA, self.srd(SRD_CL), soff)
        if self.o['poll2']:
            l1 = self.P.newlabel('Lsp')
            t = [ls + ':', ld(vPoll2), 's_sleep 2', l1 + ':', ld(vPoll3), 's_waitcnt vmcnt(1)', cmp(vPoll2), 's_cbranch_vccz %s' % lb,
                 ld(vPoll2), 's_add_u32 s%d, s%d, 1' % (sSpin, sSpin), 's_cmp_gt_u32 s%d, 0x40000' % sSpin, 's_cbranch_scc1 L_end',
                 's_waitcnt vmcnt(1)', cmp(vPoll3), 's_cbranch_vccnz %s' % l1, 's_branch %s' % lb]
        else:
            t = [ls + ':'] + (['s_sleep %d' % self.o['psl']] if self.o['psl'] else []) + [ld(vPoll), 's_add_u32 s%d, s%d, 1' % (sSpin, sSpin), 's_cmp_gt_u32 s%d, 0x40000' % sSpin, 's_cbranch_scc1 L_end',
                 's_waitcnt vmcnt(0)', cmp(vPoll), 's_cbranch_vccnz %s' % ls, 's_branch %s' % lb]
        self.ool.append('\n'.join(t))
        return [I(cmp(vPoll) + '\ns_cbranch_vccnz %s\n%s:' % (ls, lb), kind='block', src=[('v', vPoll)], dst=[('x', 'vcc'), ('v', vPoll)], states=2, cost=8)]

    def pa(self, n, blocks=False, reg=vPA):
        L = 'v_and_b32 v%d, %d, v0\n' % (reg, 15 if n <= 16 else 31)
        if n not in (16, 32):
            L += 'v_min_u32 v%d, %d, v%d\n' % (reg, n - 1, reg)
        L += 'v_lshlrev_b32 v%d, 2, v%d\n' % (reg, reg)
        if blocks:
            L += 'v_lshrrev_b32 v%d, 4, v0\nv_lshl_add_u32 v%d, v%d, 7, v%d' % (vT + 3, reg, vT + 3, reg)
        return mk(L)

    def trbase(self, dst, RS, kh, add=0, xor16=None):
        t = vT
        L = ['v_lshrrev_b32 v%d, 5, v%d' % (dst, vLane),
             'v_mul_u32_u24 v%d, %d, v%d' % (dst, kh, dst),
             'v_bfe_u32 v%d, v%d, 2, 2' % (t, vLane),
             'v_add_u32 v%d, v%d, v%d' % (dst, dst, t),
             'v_mul_u32_u24 v%d, %d, v%d' % (dst, RS, dst),
             'v_bfe_u32 v%d, v%d, 4, 1' % (t, vLane)]
        if xor16 is not None:
            L.append('v_xor_b32 v%d, s%d, v%d' % (t, xor16, t))
        L += ['v_lshl_add_u32 v%d, v%d, 5, v%d' % (dst, t, dst),
              'v_and_b32 v%d, 3, v%d' % (t, vLane),
              'v_lshl_add_u32 v%d, v%d, 3, v%d' % (dst, t, dst)]
        if add:
            L.append('v_add_u32 v%d, %d, v%d' % (dst, add, dst))
        return mk('\n'.join(L))

    def frag_loads(self, dsts, srd, sbase, const0, stride=1024, flags='', st=sT0):
        out = []
        cur = None
        for i, d in enumerate(dsts):
            off = const0 + i * stride
            grp = []
            if cur is None or not (0 <= off - cur <= 4095):
                cur = off
                grp += mk('s_add_u32 s%d, s%d, %d' % (st, sbase, off))
            grp += mk('buffer_load_dwordx4 %s, v%d, %s, s%d offen offset:%d %s' % (d, vL16, self.srd(srd), st, off - cur, flags))
            out.append(grp)
        return out

    def stats_finish(self, acc, double_ln):
        t1, t2 = vT + 1, vT + 2
        L = ['v_mov_b32 v%d, v%d' % (t1, acc),
             'v_mov_b32 v%d, v%d' % (vMean, acc),
             'v_permlane32_swap_b32 v%d, v%d' % (vMean, t1),
             'v_mul_f32 v%d, %s, v%d' % (vMean, f32(1.0 / 448), vMean),
             'v_mul_f32 v%d, %s, v%d' % (t1, f32(1.0 / 448), t1),
             'v_fma_f32 v%d, -v%d, v%d, v%d' % (t1, vMean, vMean, t1),
             'v_max_f32 v%d, 0, v%d' % (t1, t1),
             'v_add_f32 v%d, %s, v%d' % (t2, f32(1e-5), t1),
             'v_rsq_f32 v%d, v%d' % (vRl, t2)]
        if double_ln:
            L += ['v_mul_f32 v%d, v%d, v%d' % (t2, vRl, vRl),
                  'v_fmaak_f32 v%d, v%d, v%d, %s' % (t1, t1, t2, f32(1e-5)),
                  'v_rsq_f32 v%d, v%d' % (t1, t1),
                  'v_mul_f32 v%d, v%d, v%d' % (vRl, vRl, t1)]
        else:
            L += ['v_mul_f32 v%d, %s, v%d' % (vRl, f32(LOG2E), vRl)]
        return mk('\n'.join(L))

    def split_act(self, d0, val, t):
        return mk('\n'.join([
            'v_cvt_pk_bf16_f32 v%d, v%d, v%d' % (d0 + 1, val, val),
            'v_and_b32 v%d, 0xffff0000, v%d' % (t, d0 + 1),
            'v_sub_f32 v%d, v%d, v%d' % (t, val, t),
            'v_cvt_pk_bf16_f32 v%d, v%d, v%d' % (d0, val, t),
            'v_and_b32 v%d, 0xffff, v%d' % (d0 + 1, d0 + 1),
            'v_cndmask_b32 v%d, v%d, 0, s[%d:%d]' % (d0 + 1, d0 + 1, sHalf, sHalf + 1)]))

    def split_w(self, d0, val, t):
        return mk('\n'.join([
            'v_cvt_pk_bf16_f32 v%d, v%d, v%d' % (d0, val, val),
            'v_and_b32 v%d, 0xffff0000, v%d' % (t, d0),
            'v_sub_f32 v%d, v%d, v%d' % (t, val, t),
            'v_cvt_pk_bf16_f32 v%d, v%d, 0' % (d0 + 1, t)]))

    def phi8(self, r0, R, T, eps):
        L = ['v_pk_mul_f32 %s, %s, %s' % (v(r0 + i, 2), v(r0 + i, 2), R(i)) for i in range(0, 8, 2)]
        for i in range(8):
            L += ['v_exp_f32 v%d, v%d clamp' % (T + i, r0 + i), 'v_max_f32 v%d, 0, v%d' % (r0 + i, r0 + i)]
        L += ['v_pk_fma_f32 %s, %s, s[%d:%d], %s op_sel:[0,1,0] op_sel_hi:[1,1,1]' % (v(r0 + i, 2), v(r0 + i, 2), sLn2 - 1, sLn2, v(T + i, 2)) for i in range(0, 8, 2)]
        L += ['v_pk_add_f32 %s, %s, %s op_sel_hi:[1,0]' % (v(r0 + i, 2), v(r0 + i, 2), v(eps, 2)) for i in range(0, 8, 2)]
        return mk('\n'.join(L))

    def pack(self, dst, src, n):
        return mk('\n'.join('v_cvt_pk_bf16_f32 v%d, v%d, v%d' % (dst + i, src + 2 * i, src + 2 * i + 1) for i in range(n)))

    def unpack(self, dst, src, n):
        L = []
        for i in reversed(range(n)):
            L.append('v_and_b32 v%d, 0xffff0000, v%d' % (dst + 2 * i + 1, src + i))
            L.append('v_lshlrev_b32 v%d, 16, v%d' % (dst + 2 * i, src + i))
        return mk('\n'.join(L))

    def dots(self, regs, acc, ones, first):
        L = []
        for i, r in enumerate(regs):
            z = first and i == 0
            L.append('v_dot2_f32_bf16 v%d, v%d, v%d, %s' % (acc, r, ones, '0' if z else 'v%d' % acc))
            L.append('v_dot2_f32_bf16 v%d, v%d, v%d, %s' % (acc + 1, r, r, '0' if z else 'v%d' % (acc + 1)))
        return mk('\n'.join(L))

    def dots_end(self, acc):
        return mk('v_permlane32_swap_b32 v%d, v%d\nv_add_f32 v%d, v%d, v%d' % (acc, acc + 1, acc, acc, acc + 1))

    def row_stats(self, src, n, acc, ones):
        return mk('v_mov_b32 v%d, 0x3f803f80' % ones) + self.dots(range(src, src + n), acc, ones, True) + self.dots_end(acc)

    def kv_lane_addr(self, d, t, u, gather):
        L = []
        if gather:
            L += ['v_and_b32 v%d, 31, v0' % t, 'v_lshrrev_b32 v%d, 5, v0' % d]
        else:
            L += ['v_lshrrev_b32 v%d, 5, v0' % t, 'v_and_b32 v%d, 15, v0' % u, 'v_lshl_add_u32 v%d, v%d, 1, v%d' % (t, u, t), 'v_bfe_u32 v%d, v0, 4, 1' % d]
        L += ['v_lshrrev_b32 v%d, 3, v%d' % (u, t), 'v_sub_u32 v%d, v%d, v%d' % (u, t, u)]
        if not gather:
            L += ['v_and_b32 v%d, 7, v%d' % (t, t), 'v_cmp_eq_u32 vcc, 7, v%d' % t, 'v_cndmask_b32 v%d, v%d, 31, vcc' % (u, u)]
        L += ['v_lshl_add_u32 v%d, v%d, 5, v%d' % (d, d, u)]
        sh, qs, base = (4, 10, L_KVS) if gather else (5, 3, L_KVB)
        L += ['s_lshl_b32 s%d, s%d, %d' % (sT2, sW, qs), 'v_lshlrev_b32 v%d, %d, v%d' % (d, sh, d), 'v_add_u32 v%d, s%d, v%d' % (d, sT2, d)]
        L += ['v_and_b32 v%d, 1, v%d' % (t, u), 'v_lshlrev_b32 v%d, %d, v%d' % (t, 5 + sh, t), 'v_lshrrev_b32 v%d, 1, v%d' % (u, u)]
        L += ['v_cmp_gt_u32 vcc, 4, v%d' % u]
        L += ['v_lshl_add_u32 v%d, v%d, %d, v%d' % (t, u, qs, t), 'v_add_u32 v%d, %d, v%d' % (t, 28 << sh, t)]
        L += ['s_and_b64 vcc, vcc, s[%d:%d]' % ((sZm, sZm + 1) if gather else (sPm, sPm + 1)), 'v_cndmask_b32 v%d, v%d, v%d, vcc' % (d, d, t),
              'v_add_u32 v%d, %d, v%d' % (d, base, d)]
        return mk('\n'.join(L))

    def wq_dma(self, va, q):
        if q:
            ad = 'v_lshrrev_b32 v%d, 2, v0\nv_mul_u32_u24 v%d, 2688, v%d\nv_and_b32 v%d, 3, v0\nv_lshl_add_u32 v%d, v%d, 4, v%d' % (va, va, va, vT, va, vT, va)
        else:
            ad = ('v_lshrrev_b32 v%d, 3, v0\nv_mul_u32_u24 v%d, 2688, v%d\nv_and_b32 v%d, 3, v0\nv_lshl_add_u32 v%d, v%d, 4, v%d\n'
                  'v_lshrrev_b32 v%d, 2, v0\nv_xor_b32 v%d, v%d, v0\nv_bfe_u32 v%d, v%d, 2, 1\nv_mul_u32_u24 v%d, 896, v%d\nv_add3_u32 v%d, v%d, v%d, s%d'
                  % (va, va, va, vT, va, vT, va, vT, vT, vT, vT, vT, vT, vT, va, va, vT, sQ0))
        rows = 16 if q else 8
        pre = mk('s_mul_i32 s%d, s%d, 56\ns_add_u32 s%d, s%d, 896' % (sQ1, sM, sQ0, sQ1)) + mk(ad)
        if q:
            pre += mk('v_add_u32 v%d, s%d, v%d' % (va, sQ1, va))
        pre += mk('s_mul_i32 s%d, s%d, %d\ns_lshl_b32 s%d, s%d, 10' % (sRot, sW, rows * 2688, sQ1, sW))
        out = []
        for t in range(7 if q else 14):
            out.append(mk('s_add_u32 m0, s%d, %d\ns_add_u32 s%d, s%d, %d\nbuffer_load_dwordx4 v%d, %s, s%d offen lds'
                          % (sQ1, (L_Q if q else L_WQ) + 4096 * t, sQ0, sRot, 4 * t * rows * 2688, va, self.srd(SRD_WQ), sQ0)))
        return pre, out

    def touch(self, items, va):
        if not self.o['touch']:
            return []
        txt = ['v_lshlrev_b32 v%d, 7, v0' % va]
        cur = None
        n = 0
        for nl, srd, sg, c in items:
            if nl != cur:
                txt.append('s_mov_b64 exec, 0x%x' % ((1 << nl) - 1))
                cur = nl
            txt.append('s_add_u32 s%d, s%d, %d' % (sT2, sg, c) if sg is not None else 's_mov_b32 s%d, %d' % (sT2, c))
            txt.append('buffer_load_dword v%d, v%d, %s, s%d offen sc1' % (vDummy, va, self.srd(srd), sT2))
            n += 1
        txt.append('s_mov_b64 exec, -1')
        return [I('\n'.join(txt), kind='block', nvm=n, dst=[('v', va)], src=[('v', 0)], states=1, cost=12 * n)]

    def touch_attn(self, lo, va):
        pre = mk('s_lshr_b32 s%d, s%d, 2\ns_lshl_b32 s%d, s%d, 10\ns_add_u32 s%d, s%d, s%d\ns_mul_i32 s%d, s%d, 896' % (sT1, sM, sT1, sT1, sT1, sT1, sBlk, sT0, sW))
        return pre + self.touch([(16, SRD_CL, sOst, lo), (16, SRD_CL, sOst, lo + X1_OFF), (8, SRD_CL, sT1, lo + X1_OFF + 28672),
                                 (7, SRD_CL, sT0, lo + FL_OFF)], va)

    def prefetch(self, va, items):
        txt, n = ['v_lshlrev_b32 v%d, 7, v0' % va], 0
        for srd, per in items:
            for j in range(0, per, 64):
                nl = min(64, per - j)
                txt += ['s_mul_i32 s%d, s%d, %d' % (sT2, sWi, per * 128), 's_add_u32 s%d, s%d, %d' % (sT2, sT2, j * 128),
                        's_mov_b32 exec_lo, 0x%x' % (((1 << nl) - 1) & 0xffffffff), 's_mov_b32 exec_hi, 0x%x' % (((1 << nl) - 1) >> 32),
                        'buffer_load_dword v%d, v%d, %s, s%d offen' % (vDummy, va, self.srd(srd), sT2)]
                n += 1
        return [I('\n'.join(txt + ['s_mov_b64 exec, -1']), kind='block', nvm=n, src=[('v', 0)], dst=[('v', va)], cost=20 * n)]

    def idle_work(self):
        va = vT
        l = self.P.newlabel('Lnowarm')
        T = ['s_cmp_lg_u32 s%d, 0' % sSlow, 's_cbranch_scc1 %s' % l,
             'v_lshlrev_b32 v%d, 7, v0' % va,
             's_and_b32 s%d, s%d, 1' % (sT0, sM), 's_lshl_b32 s%d, s%d, 2' % (sT0, sT0), 's_add_u32 s%d, s%d, s%d' % (sT0, sT0, sW)]
        ld = lambda srd, fl: 'buffer_load_dword v%d, v%d, %s, s%d offen %s' % (vDummy, va, self.srd(srd), sT2, fl)
        if self.o['idleh']:
            for i in range(7):
                T += ['s_lshl_b32 s%d, s%d, 13' % (sT2, sT0), 's_add_u32 s%d, s%d, %d' % (sT2, sT2, H_OFF + i * 65536), ld(SRD_CL, 'sc1')]
        if self.o['idlew2']:
            T += ['s_lshr_b32 s%d, s%d, 3' % (sT1, sC), 's_lshl_b32 s%d, s%d, 3' % (sT1, sT1), 's_add_u32 s%d, s%d, s%d' % (sT1, sT1, sT0),
                  's_lshl_b32 s%d, s%d, 13' % (sT1, sT1), 's_and_b32 s%d, s%d, 7' % (sT2, sC), 's_mul_i32 s%d, s%d, %d' % (sT2, sT2, 1568 * 128),
                  's_add_u32 s%d, s%d, s%d' % (sT2, sT2, sT1)]
            for i in range(13):
                T += [ld(SRD_W2, ''), 's_add_u32 s%d, s%d, 131072' % (sT2, sT2), 's_cmp_ge_u32 s%d, %d' % (sT2, 13 * 131072),
                      's_cselect_b32 s%d, %d, 0' % (sT3, 13 * 131072), 's_sub_u32 s%d, s%d, s%d' % (sT2, sT2, sT3)]
        for i in range(3):
            T += ['s_lshl_b32 s%d, s%d, 13' % (sT2, sT0), 's_add_u32 s%d, s%d, %d' % (sT2, sT2, XIN_OFF + i * 65536)]
            if i == 2:
                T += ['s_min_u32 s%d, s%d, %d' % (sT2, sT2, FL_OFF - 8192)]
            T += [ld(SRD_CL, 'sc1')]
        T += [l + ':']
        return '\n'.join(T)

    def prologue(self):
        P = self.P
        o = self.o
        P('s_cmp_ge_u32 s2, 256\ns_cbranch_scc1 L_end')
        if self.probe is not None:
            P.add([I('s_memrealtime s[96:97]\ns_memrealtime s[94:95]', kind='block', states=1)])
        P('s_load_dwordx16 s[%d:%d], s[0:1], 0' % (sKA, sKA + 15))
        P('s_load_dwordx4 s[%d:%d], s[0:1], 64' % (sKA + 16, sKA + 19))
        P('s_load_dwordx2 s[%d:%d], s[0:1], 80' % (sKA + 20, sKA + 21))
        P('v_lshrrev_b32 v%d, 6, v0\nv_and_b32 v0, 63, v0\nv_readfirstlane_b32 s%d, v%d' % (vT, sW, vT))
        P('s_lshr_b32 s%d, s2, 3\ns_lshl_b32 s%d, s%d, 2\ns_add_u32 s%d, s%d, s%d' % (sM, sWi, sM, sWi, sWi, sW))
        if o['codepf']:
            P.add([I('s_getpc_b64 s[%d:%d]\nL_pc:' % (sPC, sPC + 1), kind='block', dst=[], states=1)])
            P('s_lshl_b32 s%d, s%d, 9\nv_lshlrev_b32 v%d, 7, v0\nv_add_u32 v%d, s%d, v%d' % (sT0, sWi, vT, vT, sT0, vT))
            P.add([I('v_min_u32 v%d, L_code_end-L_pc-4, v%d\ns_mov_b64 exec, 15\nglobal_load_dword v%d, v%d, s[%d:%d]\ns_mov_b64 exec, -1'
                     % (vT, vT, vDummy, vT, sPC, sPC + 1), kind='block', dst=[('v', vT)], src=[('v', vT)], nvm=1)])
        P('s_and_b32 s%d, s2, 7\ns_lshr_b32 s%d, s%d, 4\ns_lshl_b32 s%d, s%d, 3\ns_add_u32 s%d, s%d, s%d\ns_and_b32 s%d, s%d, 15'
          % (sC, sT0, sM, sT0, sT0, sC, sC, sT0, sM, sM))
        P('v_lshlrev_b32 v%d, 4, v0' % vL16)
        if self.stamps:
            P('v_mov_b32 v%d, 0' % vStamp)
            P.add(self.stamp('start'))
            if self.light is not None:
                P('s_memrealtime s[98:99]\ns_waitcnt lgkmcnt(0)')
            else:
                assert not o['poll2']
                P('s_memrealtime s[%d:%d]\ns_waitcnt lgkmcnt(0)\nv_writelane_b32 v%d, s%d, 62' % (sStamp, sStamp + 1, vStamp, sStamp))
        P('s_lshl_b32 s%d, s%d, 2\ns_add_u32 s%d, s%d, s%d\ns_mul_i32 s%d, s%d, %d' % (sX, sC, sX, sX, sW, sX, sX, 32 * 896))
        vq, vxb, vxh, vxa, vrd = 160, 163, 164, 165, 167
        P('v_lshrrev_b32 v%d, 5, v0\nv_and_b32 v%d, 31, v0\nv_xor_b32 v%d, v%d, v%d\nv_lshlrev_b32 v%d, 4, v%d\nv_mul_u32_u24 v%d, 896, v%d'
          % (vxh, vT, vxb, vT, vxh, vxb, vxb, vxh, vxh))
        ka = sKA

        def mksrd(r, p, size):
            P('s_mov_b32 s%d, s%d\ns_mov_b32 s%d, s%d\ns_mov_b32 s%d, %d\ns_mov_b32 s%d, 0x20000' % (r, p, r + 1, p + 1, r + 2, size, r + 3))
        P('s_lshl_b32 s%d, s%d, 14\ns_add_u32 s%d, s%d, %d' % (sT5, sW, sT5, sT5, L_XS))
        mksrd(SRD_X, ka + 0, 2048 * 896)

        def xdma(half):
            out = []
            for i in range(16):
                if half:
                    g = mk('s_mov_b32 s%d, %d\nv_xad_u32 v%d, v%d, s%d, v%d' % (sT0, ((2 * i) & 15) << 4, vxa + (i & 1), vxb, sT0, vxh))
                    g += mk('s_add_u32 s%d, s%d, %d\ns_add_u32 m0, s%d, %d' % (sT1, sX, 2 * i * 896 + 512, sT5, 1024 * i))
                    out.append(g + mk('buffer_load_dwordx4 v%d, %s, s%d offen lds' % (vxa + (i & 1), self.srd(SRD_X), sT1)))
                    continue
                g = mk('s_add_u32 s%d, s%d, %d\ns_and_b32 s%d, s%d, 15' % (sT4, sM, i, sT4, sT4) if o['rot'] else 's_mov_b32 s%d, %d' % (sT4, i))
                g += mk('s_lshl_b32 s%d, s%d, 5\ns_and_b32 s%d, s%d, 0xf0\nv_xad_u32 v%d, v%d, s%d, v%d' % (sT0, sT4, sT0, sT0, vxa + (i & 1), vxb, sT0, vxh))
                g += mk('s_mul_i32 s%d, s%d, 1792\ns_add_u32 s%d, s%d, s%d\ns_lshl_b32 s%d, s%d, 10\ns_add_u32 m0, s%d, s%d' % (sT1, sT4, sT1, sT1, sX, sT4, sT4, sT4, sT5))
                g += mk('buffer_load_dwordx4 v%d, %s, s%d offen lds' % (vxa + (i & 1), self.srd(SRD_X), sT1))
                out.append(g)
            return out
        mksrd(SRD_WQ, ka + 2, 448 * 2688)
        if o['pf0']:
            P('v_lshlrev_b32 v%d, 7, v0\ns_lshl_b32 s%d, s%d, 2\ns_add_u32 s%d, s%d, s%d\ns_mul_i32 s%d, s%d, %d\ns_mul_i32 s%d, s%d, %d\ns_add_u32 s%d, s%d, s%d\ns_mul_i32 s%d, s%d, 49'
              % (vxa, sT0, sM, sT0, sT0, sW, sT0, sT0, 14 * 128, sT1, sC, 128 * 896, sT0, sT0, sT1, sT1, sWi))
            if o['pf0'] == 1:
                P('v_add_u32 v%d, s%d, v0\nv_mul_u32_u24 v%d, 37450, v%d\nv_lshrrev_b32 v%d, 19, v%d\nv_mul_u32_u24 v%d, 896, v%d\nv_lshl_add_u32 v%d, v%d, 7, v%d'
                  % (vT, sT1, vxa + 1, vT, vxa + 1, vxa + 1, vxa + 1, vxa + 1, vxa + 1, vT, vxa + 1))
                P.add([I('s_mov_b64 exec, 0x3fff\nbuffer_load_dword v%d, v%d, %s, s%d offen\ns_mov_b32 exec_lo, -1\ns_mov_b32 exec_hi, 0x1ffff\n'
                         'buffer_load_dword v%d, v%d, %s, 0 offen offset:896\ns_mov_b64 exec, -1'
                         % (vDummy, vxa, self.srd(SRD_X), sT0, vDummy, vxa + 1, self.srd(SRD_WQ)), kind='block', nvm=2, src=[('v', vxa), ('v', vxa + 1)])])
            else:
                P.add([I('s_mov_b64 exec, 0x3fff\nbuffer_load_dword v%d, v%d, %s, s%d offen\ns_mov_b64 exec, -1' % (vDummy, vxa, self.srd(SRD_X), sT0),
                         kind='block', nvm=1, src=[('v', vxa)])])
                P.add(self.prefetch(vxa, [(SRD_WQ, 74)]))
        body = [x.text for x in xdma(0)[0]]
        body[0] = 's_add_u32 s%d, s%d, s%d' % (sT4, sM, sT2) if o['rot'] else 's_mov_b32 s%d, s%d' % (sT4, sT2)
        loop = I('\n'.join(['s_mov_b32 s%d, 0' % sT2, 'L_xa:'] + body[:-1] + ['s_add_u32 s%d, s%d, 1' % (sT2, sT2), 's_cmp_lt_u32 s%d, 16' % sT2, body[-1],
                                                                            's_cbranch_scc1 L_xa']), kind='block', nvm=16, src=[('v', vxb), ('v', vxh)] + regs_of(s(SRD_X, 4)), dst=[('v', vxa)])
        tA = tok(loop)
        P.add([loop])
        P('s_load_dword s%d, s[%d:%d], 0' % (sNonce, ka + 20, ka + 21))
        mksrd(SRD_OUT, ka + 16, 2048 * 896)
        pre, wq = self.wq_dma(vq, False)
        self.tok_wq1, self.tok_wq = tok(wq[7][-1]), tok(wq[-1][-1])
        P.add(pre + flat(wq[:8]))
        mksrd(SRD_WO, ka + 4, 448 * 896)
        mksrd(SRD_W1, ka + 8, 448 * 3584)
        if not o['pfa']:
            P('s_cmp_lt_u32 s%d, 14\ns_cselect_b32 s%d, s%d, 0' % (sM, SRD_WO + 2, SRD_WO + 2))
        mksrd(SRD_B1, ka + 10, 3584)
        mksrd(SRD_W2, ka + 12, 1792 * 896)
        mksrd(SRD_B2, ka + 14, 896)
        mksrd(SRD_WS, ka + 20, WS_CL)
        P('s_lshl_b32 s%d, s%d, 21\ns_add_u32 s%d, s%d, %d' % (sT0, sC, sT0, sT0, WS_CL))
        P('s_add_u32 s%d, s%d, s%d\ns_addc_u32 s%d, s%d, 0\ns_mov_b32 s%d, 0x200000\ns_mov_b32 s%d, 0x20000'
          % (SRD_CL, ka + 20, sT0, SRD_CL + 1, ka + 21, SRD_CL + 2, SRD_CL + 3))
        P('s_mov_b32 s%d, %s\ns_mov_b32 s%d, 0\ns_mov_b32 s%d, -1' % (sLn2, f32(LN2), sHalf, sHalf + 1))
        P('s_mov_b32 s%d, 0x10000000\ns_mov_b32 s%d, 0x10000000\ns_mov_b32 s%d, 0' % (sN28, sN28 + 1, sSpin))
        P('s_getreg_b32 s%d, hwreg(HW_REG_XCC_ID, 0, 4)' % sXcc)
        P('s_and_b32 s%d, s%d, 1\ns_sub_u32 s%d, 3, s%d' % (sEb, sM, sLb, sEb))
        P('s_cmp_eq_u32 s%d, 3\ns_cselect_b32 s%d, -1, 0\ns_mov_b32 s%d, 0' % (sW, sZm + 1, sZm))
        P('s_lshr_b32 s%d, s%d, 3\ns_lshl_b32 s%d, s%d, 1\ns_add_u32 s%d, s%d, s%d\ns_mul_i32 s%d, s%d, 7\ns_add_u32 s%d, s%d, 1\ns_lshr_b32 s%d, s%d, 1'
          % (sD1, sC, sMo, sD1, sMo, sMo, sEb, sMo, sMo, sMo, sMo, sMo, sMo))
        if not o['strot']:
            P('s_mov_b32 s%d, 0\ns_mov_b32 s%d, 0' % (sMo, sD1))
        c0 = -2.0 * 0.7978845608028654 * LOG2E
        P('s_mov_b32 s%d, %s\ns_mov_b32 s%d, %s' % (sC0, f32(c0), sC1, f32(c0 * 0.044715)))
        P('s_lshr_b32 s%d, s%d, 1\ns_lshl_b32 s%d, s%d, 2\ns_and_b32 s%d, s%d, 1\ns_lshl_b32 s%d, s%d, 1\ns_add_u32 s%d, s%d, s%d\ns_lshr_b32 s%d, s%d, 1\ns_add_u32 s%d, s%d, s%d'
          % (sFe, sM, sFe, sFe, sT0, sW, sT0, sT0, sFe, sFe, sT0, sT0, sW, sFe, sFe, sT0))
        P('s_lshl_b32 s%d, s%d, 15\ns_lshl_b32 s%d, s%d, 11\ns_add_u32 s%d, s%d, s%d' % (sBlk, sW, sOst, sM, sOst, sOst, sBlk))
        P('s_lshl_b32 s%d, s%d, 7\ns_add_u32 s%d, s%d, %d\ns_lshl_b32 s%d, s%d, 2\ns_add_u32 s%d, s%d, s%d' % (sFo, sW, sFo, sFo, FL_OFF, sT0, sM, sFoMy, sFo, sT0))
        P('s_lshl_b32 s%d, s%d, 2\ns_add_u32 s%d, s%d, s%d\ns_mul_i32 s%d, s%d, %d\ns_add_u32 s%d, s%d, %d' % (sT1, sM, sT1, sT1, sW, sKv, sT1, KVP_CH, sKv, sKv, WS_KVP))
        P('s_lshl_b32 s%d, s%d, 9\ns_add_u32 s%d, s%d, s%d' % (sKvMy, sC, sKvMy, sKvMy, sKv))
        P('s_lshl_b32 s%d, s%d, 11\ns_add_u32 s%d, s%d, %d' % (sHst, sT1, sHst, sHst, H_OFF))
        P('s_lshl_b32 s%d, s%d, 11\ns_add_u32 s%d, s%d, %d' % (sT1, sW, sT1, sT1, H_OFF))
        P('s_mul_i32 s%d, s%d, 114688\ns_add_u32 s%d, s%d, s%d\ns_mul_i32 s%d, s%d, 114688\ns_add_u32 s%d, s%d, s%d' % (sHE, sEb, sHE, sHE, sT1, sHL, sLb, sHL, sHL, sT1))
        P('s_lshl_b32 s%d, s%d, 9\ns_add_u32 s%d, s%d, s%d\ns_add_u32 s%d, s%d, %d' % (sPE, sEb, sPE, sPE, sFo, sPE, sPE, FH - FL_OFF))
        P('s_lshl_b32 s%d, s%d, 9\ns_add_u32 s%d, s%d, s%d\ns_add_u32 s%d, s%d, %d' % (sPL, sLb, sPL, sPL, sFo, sPL, sPL, FH - FL_OFF))
        self.xreg0 = xr = [16 + 4 * i if i < 20 else 176 + 4 * (i - 20) for i in range(28)]
        P('v_and_b32 v%d, 15, v0\nv_lshrrev_b32 v%d, 5, v0\nv_xor_b32 v%d, v%d, v%d\nv_lshlrev_b32 v%d, 4, v%d\nv_and_b32 v%d, 31, v0\nv_lshl_add_u32 v%d, v%d, 9, v%d\nv_add_u32 v%d, s%d, v%d'
          % (vT, vrd, vrd, vrd, vT, vrd, vrd, vT, vrd, vT, vrd, vrd, sT5, vrd))
        xrd = lambda k: mk('v_xor_b32 v%d, %d, v%d\nds_read_b128 %s, v%d' % (vrd + 1 + (k & 1), 32 * (k & 15), vrd, v(xr[k], 4), vrd + 1 + (k & 1)))
        vrs = vrd + 3
        P('v_and_b32 v%d, 15, v0\nv_lshlrev_b32 v%d, 4, v%d\nv_lshrrev_b32 v%d, 5, v0\nv_lshl_add_u32 v%d, v%d, 3, v%d\nv_and_b32 v%d, 31, v0\nv_lshl_add_u32 v%d, v%d, 9, v%d\nv_add_u32 v%d, s%d, v%d'
          % (vrs, vrs, vrs, vT, vrs, vT, vrs, vT, vrs, vT, vrs, vrs, sT5, vrs))
        P('s_and_b32 s%d, s%d, 7\ns_lshl_b32 s%d, s%d, 6\nv_xor_b32 v%d, s%d, v%d' % (sT0, sM, sT0, sT0, vrs, sT0, vrs))

        def resrd(half):
            l = P.newlabel('Lres')
            t = ['s_cmp_%s_u32 s%d, 8' % ('lt' if half else 'ge', sM), 's_cbranch_scc1 %s' % l]
            for g in range(4):
                t += ['v_xor_b32 v%d, %d, v%d' % (vrs + 1, 16 * g, vrs), 'ds_read_b64 %s, v%d' % (a(216 + 2 * g, 2), vrs + 1)]
            return [I('\n'.join(t + [l + ':']), kind='block', src=[('v', vrs)], dst=[('v', vrs + 1)])]
        P.add(self.stamp('issued'))
        P.add([wait_tok(tA)])
        P.add(self.stamp('xA'))
        for k in range(16):
            P.add(xrd(k))
        P.add(resrd(0))
        vS, vOne = 172, 174
        P('v_mov_b32 v%d, 0x3f803f80\ns_waitcnt lgkmcnt(0)' % vOne)
        xb = xdma(1)
        self.tok_xb = tok(xb[-1][-1])
        d = self.dots([xr[k] + i for k in range(16) for i in range(4)], vS, vOne, True)
        P.add(spread(xb[:o['nxb1']], d))
        self.late_dma = xb[o['nxb1']:] + wq[8:]
        self.late_rd = [xrd(k) for k in range(16, 28)] + [resrd(1)]
        self.late_dots = self.dots([xr[k] + i for k in range(16, 28) for i in range(4)], vS, vOne, False) + self.dots_end(vS)
        P('s_add_u32 s%d, s%d, 0x01010101' % (sNonce, sNonce))
        P('v_mov_b32 v%d, s%d' % (vNonce, sNonce))
        P('s_lshl_b32 s%d, s%d, 4\ns_add_u32 s%d, s%d, s%d\ns_lshl_b32 s%d, s%d, 7\ns_add_u32 s%d, s%d, %d'
          % (sT2, sC, sT2, sT2, sM, sT2, sT2, sT2, sT2, WS_XCC))
        P('s_add_u32 s%d, s%d, s%d\nv_mov_b32 v%d, s%d\ns_mov_b64 exec, 1' % (sT3, sNonce, sXcc, vT, sT3))
        P('buffer_store_dword v%d, off, %s, s%d sc1' % (vT, self.srd(SRD_WS), sT2))
        P('s_mov_b64 exec, -1')

    def s1(self, l):
        P = self.P
        o = self.o
        AK, AV, AQ, WB, SB = 96, 112, 128, 144, 160
        RLB, XE = SB, SB + 8
        NB = 4
        vS = 172 if l == 0 else vT + 2
        P.comment('==== layer %d : S1' % l)
        kh = 8 if l == 0 else 4
        vTrV, vTrQ, vCs = vT + 3, (vT + 2 if l == 0 else vDummy), vPA
        trkv = self.trbase(vTr, 128, kh, add=L_WQ) + mk('v_bfe_u32 v%d, v0, 3, 1\nv_lshl_add_u32 v%d, v%d, 6, v%d\nv_xor_b32 v%d, 64, v%d' % (vT, vTr, vT, vTr, vTrV, vTr))
        trq = self.trbase(vTrQ, 64, kh, add=L_Q)
        fin = self.stats_finish(vS, False)
        fin += mk('s_lshl_b32 s%d, s%d, 12\ns_add_u32 s%d, s%d, %d' % (sT4, sW, sT4, sT4, L_KVS))
        bounce = mk('v_and_b32 v%d, 31, v0\nv_lshl_add_u32 v%d, v%d, 2, s%d\nds_write_b32 v%d, v%d' % (vT + 1, vT + 1, vT + 1, sT4, vT + 1, vRl))
        fin += bounce
        fin += mk('v_sub_f32 v%d, 0, v%d' % (vMean, vMean)) + self.split_act(XE, vMean, vT)
        fin += mk('v_cndmask_b32 v%d, v%d, 0, s[%d:%d]\nv_mov_b32 v%d, 0\nv_mov_b32 v%d, 0' % (XE, XE, sHalf, sHalf + 1, XE + 2, XE + 3))
        if l == 0:
            xreg = self.xreg0
            P.add(trkv)
            P.add([wait_tok(self.tok_wq1)])
            P('s_barrier')
            P.add(self.stamp('wq_ready'))
            lds = []
        else:
            xreg = [16 + 4 * (i % 20) for i in range(28)]
            P.add(self.pa(28))
            P('s_add_u32 s%d, s%d, %d' % (sT4, sFo, FXIN - FL_OFF))
            P.add(self.poll_issue(sT4, o['pdi']))
            P('s_mul_i32 s%d, s%d, %d' % (sT5, sW, XIN_BS))
            P.add(trkv + trq)
            lds = self.frag_loads([v(r, 4) for r in xreg], SRD_CL, sT5, XIN_OFF)
        nq = 0 if l == 0 else 8
        jobs = []
        for k in range(28):
            if l == 0 and k == 16:
                jobs += [(t, kk) for kk in range(7) for t in 'KV']
            jobs += [('k', k), ('v', k)] + ([('q', k)] if k < nq else [])
        jobs += [('k', 'e'), ('v', 'e')]
        nmain = len(jobs)
        jobs += [('q', k) for k in range(nq, 28)] + ([('q', 'e')] if l else [])
        vo, vb, CSA = RLB, RLB + 4, 208

        def rd(j):
            t, k = jobs[j]
            b = WB + 4 * (j % NB)
            if k == 'e':
                return mk('ds_read_b64 %s, v%d offset:%d\nv_mov_b32 v%d, 0\nv_mov_b32 v%d, 0' % (v(b, 2), vCs, 256 * 'qkv'.index(t), b + 2, b + 3))
            base = {'q': vTrQ, 'k': vTr, 'v': vTrV, 'K': vb, 'V': vb + 1}[t]
            rs = 64 if t == 'q' else 128
            return mk('ds_read_b64_tr_b16 %s, v%d offset:%d\nds_read_b64_tr_b16 %s, v%d offset:%d' % (v(b, 2), base, 16 * rs * k, v(b + 2, 2), base, 16 * rs * k + (32 // kh) * rs))
        for j in range(NB):
            P.add(rd(j))
        if l == 1:
            P.add(self.poll_check(sT4))
            P.add(self.stamp('x2_seen'))
            P.add(flat(lds[:o['look']]))
            P('s_add_u32 s%d, s%d, 1\nv_mov_b32 v%d, s%d' % (sNonce, sNonce, vNonce, sNonce))
        P('v_and_b32 v%d, 31, v0\nv_lshlrev_b32 v%d, 3, v%d\nv_add_u32 v%d, %d, v%d' % (vCs, vCs, vCs, vCs, L_CS, vCs))
        slots = []
        for j, (t, k) in enumerate(jobs):
            w = v(WB + 4 * (j % NB), 4)
            if t.isupper():
                sl = mfma(CSA + 16 * 'KV'.index(t), v(vo, 4), w, k == 0)
            else:
                x = v(XE if k == 'e' else xreg[k], 4)
                A, B = (w, x) if t == 'q' else (x, w)
                sl = mfma({'q': AQ, 'k': AK, 'v': AV}[t], A, B, k == 0)
                if l == 0 and t == 'q':
                    sl += mfma(CSA, v(CSA + 16, 4), w, k == 0)
            if l == 0 and j == 32 - NB:
                sl += [wait_tok(self.tok_wq)] + mk('s_waitcnt lgkmcnt(0)\ns_barrier') + (self.stamp('bar2') if self.fine else [])
                sl += mk('s_mul_i32 s%d, s%d, %d\nv_add_u32 v%d, s%d, v%d\nv_add_u32 v%d, s%d, v%d' % (sT0, sW, 7 * 2048, vb, sT0, vTr, vb + 1, sT0, vTrV))
            if j % 2 == 0 and j + 1 < len(jobs) and j + 1 != nmain and o['s1pair']:
                also_waits_for(sl[0], v(WB + 4 * ((j + 1) % NB), 4))
            if j + NB < len(jobs) and not (j < nmain <= j + NB):
                sl += rd(j + NB)
            slots.append(sl)
        if l == 0:
            n = len(self.late_dma)
            for i, g in enumerate(self.late_dma):
                slots[(i * o['latespan']) // n] += g
            r0 = 32 - NB - 7
            slots[r0] += [wait_tok(self.tok_xb)]
            for i, g in enumerate(self.late_rd):
                slots[r0 + i // 2] += g
            slots[29] += mk('\n'.join('v_mov_b32 v%d, 0x3f803f80' % (vo + i) for i in range(4)))
            slots[31] += self.late_dots + fin
            pre, qd = self.wq_dma(175, True)
            self.tok_q = tok(qd[-1][-1])
            for i, g in enumerate([pre] + qd):
                slots[32 + i] += g
            if o['pfa']:
                slots[40] += self.prefetch(vT, [(SRD_WO, 25)]) + self.touch_attn(0, vT) + self.prefetch(vT, [(SRD_W1, 98)])
            else:
                for i, g in enumerate(self.wo_dma(175)):
                    slots[o['woslot'] + 2 * i] += g
                slots[o['tslot']] += self.touch_attn(0, vT)
            slots[47] += mk('v_and_b32 v%d, 31, v0\nv_lshlrev_b32 v%d, 2, v%d\ns_lshl_b32 s%d, s%d, 8\nv_add_u32 v%d, %d, v%d\nv_add_u32 v%d, s%d, v%d'
                            % (vb, vb, vb, sT0, sW, vb, L_KVB, vb, vb + 1, sT0, vb))
            slots[48] += mk('\n'.join('ds_write_b32 v%d, v%d offset:%d' % (vb + 1, CSA + 16 * t, 128 * t) for t in range(2)))
            slots[50] += mk('s_waitcnt lgkmcnt(0)\ns_barrier')
            for t in range(2):
                r = RLB
                slots[50 + 5 * t] += mk('\n'.join('ds_read_b32 v%d, v%d offset:%d' % (r + ww, vb, 256 * ww + 128 * t) for ww in range(4)))
                slots[53 + 5 * t] += mk('v_add_f32 v%d, v%d, v%d\nv_add_f32 v%d, v%d, v%d\nv_add_f32 v%d, v%d, v%d' % (r, r, r + 1, r + 2, r + 2, r + 3, r, r, r + 2))
                slots[54 + 5 * t] += self.split_w(r + 2, r, r + 1) + mk('ds_write_b64 v%d, %s offset:%d' % (vCs, v(r + 2, 2), 256 * (t + 1)))
        else:
            n = o['look']
            for j in range(0, nmain, 2):
                if n < 28:
                    k_free = n - 20
                    assert k_free < 0 or j >= jobs.index(('q', k_free))
                    slots[j] += lds[n]
                    n += 1
            st = self.frag_loads([v(SB + 4 * (i % 4), 4) for i in range(7)], SRD_CL, sT5, XIN_OFF + 28672, st=sT1)
            a0, a1 = o['sta'], o['stb']
            for i in range(4):
                slots[a0 + 2 * i] += st[i]
            ex = []
            for i in range(1, 16):
                ex += mk('v_add_f32 v%d, v%d, v%d' % (vS, vS if i > 1 else SB, SB + i))
            for i in range(0, 15, 2):
                slots[a1 - 8 + i // 2] += ex[i:i + 2]
            for i in range(3):
                slots[a1 + 2 * i] += st[4 + i]
            ex = flat(mk('v_add_f32 v%d, v%d, v%d' % (vS, vS, SB + i)) for i in range(12)) + fin
            e0 = o['stc']
            per = -(-len(ex) // (61 - e0))
            for i in range(61 - e0):
                slots[e0 + i] += ex[i * per:(i + 1) * per]
        RB = [WB + 4 * ((nmain - 4 + g) % NB) for g in range(4)]
        vEps = vT + 1
        slots[nmain - 5] += mk('v_lshrrev_b32 v%d, 5, v0\nv_lshl_add_u32 v%d, v%d, 4, s%d' % (vT + 2, vT + 2, vT + 2, sT4))
        for g in range(4):
            slots[nmain - 4 + g] += mk('ds_read_b128 %s, v%d offset:%d' % (v(RB[g], 4), vT + 2, 32 * g))
        slots[nmain - 1] += mk('v_mov_b32 v%d, 0x3f803f80\nv_add_u32 v%d, s%d, v%d\nv_mov_b32 v%d, %s' % (vPoll, vT, sT4, vL16, vEps, f32(1e-6)))
        vG = SB + 12
        ga = self.kv_lane_addr(vG, vG + 1, vG + 2, gather=True)
        for i in range(0, len(ga), 3):
            slots[(o['stb'] + 1 if l else 60) + i // 3] += ga[i:i + 3]
        P.add(flat(slots[:nmain]))
        P.add(self.stamp('s1_kv_mfma'))
        DK = WB
        for hf in range(2):
            R = lambda i: v(RB[2 * hf + i // 4] + i % 4, 2)
            P.add(self.phi8(AK + 8 * hf, R, RLB, vEps) + self.pack(AK + 4 * hf, AK + 8 * hf, 4))
            P.add(flat(mk('v_pk_mul_f32 %s, %s, %s' % (v(AV + 8 * hf + i, 2), v(AV + 8 * hf + i, 2), R(i))) for i in range(0, 8, 2)))
            P.add(self.pack(AV + 4 * hf, AV + 8 * hf, 4))
            for i in range(4):
                P('v_cndmask_b32 v%d, v%d, v%d, s[%d:%d]' % (AV + 4 * hf + i, AV + 4 * hf + i, vPoll, sN28, sN28 + 1))
        P.add(mfma(DK, v(AK, 4), v(AV, 4), True) + mfma(DK, v(AK + 4, 4), v(AV + 4, 4)))
        P('s_mov_b32 s%d, 0x80808080\ns_mov_b32 s%d, 0x80808080' % (sT0 + 1, sT0 + 2))
        for q in range(4):
            P('ds_write_b128 v%d, %s offset:%d' % (vT, v(DK + 4 * q, 4), 1024 * q))
        P('v_lshlrev_b32 v%d, 3, v0\ns_waitcnt lgkmcnt(0)\ns_barrier' % vT)
        for ww in range(4):
            P('ds_read_b128 %s, v%d offset:%d' % (v(AK + 4 * ww, 4), vG, 4096 * ww))
        if l == 1:
            for j in range(nmain, nmain + NB):
                P.add(rd(j))
        for x, y in ((AK, AK + 4), (AK + 8, AK + 12), (AK, AK + 8)):
            for i in (0, 2):
                P('v_pk_add_f32 %s, %s, %s' % (v(x + i, 2), v(x + i, 2), v(y + i, 2)))
        P.add(self.pack(AK, AK, 2))
        for i in range(2):
            P('v_cndmask_b32 v%d, v%d, v%d, s[%d:%d]' % (AK + i, AK + i, vNonce, sT0 + 1, sT0 + 2))
        P('buffer_store_dwordx2 %s, v%d, %s, s%d offen sc1' % (v(AK, 2), vT, self.srd(SRD_WS), sKvMy))
        P.add(self.stamp('kv_pub'))
        PQ = self.PQ = 104

        def qepi():
            L = []
            for hf in range(2):
                L += self.phi8(AQ + 8 * hf, lambda i: v(vRl, 2) + ' op_sel_hi:[1,0]', 48, vEps) + self.pack(PQ + 4 * hf, AQ + 8 * hf, 4)
            for i in (6, 7):
                L += mk('v_cndmask_b32 v%d, v%d, 0, s[%d:%d]' % (PQ + i, PQ + i, sHalf, sHalf + 1))
            return L
        if l == 0:
            P.add(trq + mk('\n'.join('v_mov_b32 v%d, 0x3f803f80' % (CSA + 16 + i) for i in range(4))))
            pre = [wait_tok(self.tok_q)] + mk('s_barrier') + flat(rd(j) for j in range(nmain, nmain + NB))
            post = self.split_w(WB, CSA, vT) + mk('v_mov_b32 v%d, 0\nv_mov_b32 v%d, 0\nds_write_b64 v%d, %s' % (WB + 2, WB + 3, vCs, v(WB, 2)))
            post += mfma(AQ, v(WB, 4), v(XE, 4))
            qs = slots[nmain:]
            self.staging(pre, qs, post, qepi)
        else:
            P.add(spread(slots[nmain:], self.kvx_pre(1)))
            P.add(qepi())

    PARK = 140

    def wo_dma(self, vwo):
        wo = [mk('v_lshrrev_b32 v%d, 2, v0\nv_mul_u32_u24 v%d, 896, v%d\nv_and_b32 v%d, 3, v0\nv_lshl_add_u32 v%d, v%d, 4, v%d\ns_lshl_b32 s%d, s%d, 6\nv_add_u32 v%d, s%d, v%d'
                 % (vwo, vwo, vwo, vT, vwo, vT, vwo, sQ0, sM, vwo, sQ0, vwo))
              + mk('s_mul_i32 s%d, s%d, %d\ns_lshl_b32 s%d, s%d, 10\ns_add_u32 s%d, s%d, %d' % (sQ1, sW, 16 * 896, sT3, sW, sT3, sT3, L_WO))]
        for t in range(7):
            wo.append(mk('s_add_u32 m0, s%d, %d\ns_add_u32 s%d, s%d, %d\nbuffer_load_dwordx4 v%d, %s, s%d offen lds' % (sT3, 4096 * t, sQ0, sQ1, t * 64 * 896, vwo, self.srd(SRD_WO), sQ0)))
        last = I('s_mov_b32 s%d, %d\ns_mov_b32 m0, %d\ns_mov_b64 exec, 0xffff\nbuffer_load_dwordx4 v%d, %s, s%d offen lds\ns_mov_b64 exec, -1'
                 % (sQ0, 448 * 896, L_WO + 28672, vwo, self.srd(SRD_WO), sQ0), kind='block', nvm=1, src=[('v', vwo)])
        self.tok_wo = tok(last)
        return wo + [[last]]

    def staging(self, qpre, qslots, qpost, qepi):
        P = self.P
        lskip, ljoin = P.newlabel('Lnostage'), P.newlabel('Lstaged')
        v1a, t0, t1, vp, vb, vb2 = 112, 113, 114, 115, 120, 168
        P('s_cmp_lt_u32 s%d, 14\ns_cselect_b32 s%d, s%d, 0' % (sM, SRD_W1 + 2, SRD_W1 + 2))
        P('v_lshrrev_b32 v%d, 2, v0\nv_mul_u32_u24 v%d, 3584, v%d\nv_and_b32 v%d, 3, v0\nv_lshl_add_u32 v%d, v%d, 4, v%d'
          % (v1a, v1a, v1a, vT, v1a, vT, v1a))
        P('s_lshl_b32 s%d, s%d, 2\ns_add_u32 s%d, s%d, s%d\ns_lshl_b32 s%d, s%d, 6\nv_add_u32 v%d, s%d, v%d' % (sT5, sM, sT5, sT5, sW, sT5, sT5, v1a, sT5, v1a))
        P('s_mul_i32 s%d, s%d, 7168\ns_add_u32 s%d, s%d, %d\ns_mul_i32 s%d, s%d, 21504\ns_mul_i32 s%d, s%d, %d' % (sT3, sW, sT3, sT3, L_EX, sQ1, sW, sWi, sD1, 14 * 16 * 3584))

        def issue(k):
            g = mk('s_add_u32 m0, s%d, %d' % ((sT3, 1024 * k) if k < 7 else (sQ1, 1024 * (k - 7))))
            g += mk('s_add_u32 s%d, s%d, %d' % (sQ0, sWi, k * 16 * 3584) if k < 14 else 's_sub_u32 s%d, %d, s%d' % (sQ0, k * 16 * 3584, sWi))
            g += mk('buffer_load_dwordx4 v%d, %s, s%d offen lds' % (v1a, self.srd(SRD_W1), sQ0))
            return g
        dm = [issue(k) for k in range(28)]
        tk = [tok(g[-1]) for g in dm]
        park = mk('\n'.join('v_accvgpr_read_b32 v%d, a%d' % (160 + i, 216 + i) for i in range(8)))
        park += mk('v_add_u32 v%d, s%d, v%d' % (vp, sQ1, vL16))
        park += flat(mk('ds_read_b128 %s, v%d offset:%d' % (a(self.PARK + 4 * i, 4), vp, 1024 * i)) for i in range(21))
        P.add(flat(dm[:7]) + qpre)
        P.add(spread(qslots, park) + qpost)
        P('s_lshl_b32 s%d, s%d, 11\ns_add_u32 s%d, s%d, %d' % (sT4, sC, sT4, sT4, WS_XCC))
        P('v_and_b32 v%d, 15, v0\nv_lshlrev_b32 v%d, 7, v%d' % (vPA, vPA, vPA))
        P('buffer_load_dword v%d, v%d, %s, s%d offen sc1' % (vPoll, vPA, self.srd(SRD_WS), sT4))
        P('s_waitcnt lgkmcnt(0)\ns_barrier')
        P.add([I('s_cmp_ge_u32 s%d, 14\ns_cbranch_scc1 %s' % (sM, lskip), kind='block')])
        txt, _ = finalize(mk('s_nop 7') + qepi() + self.kvx_pre(0))
        self.ool.append('%s:\n%s\ns_waitcnt vmcnt(0)\ns_branch %s' % (lskip, '\n'.join(t.strip() for t in txt.split('\n')), ljoin))
        ad = self.trbase(t1, 64, 4) + mk('v_add_u32 v%d, s%d, v%d\nv_add_u32 v%d, s%d, v%d' % (t0, sT3, t1, t1, sQ1, t1))
        ad += mk('v_and_b32 v%d, 31, v0\nv_lshlrev_b32 v%d, 1, v%d\nbuffer_load_ushort v%d, v%d, %s, s%d offen' % (vT, vT, vT, vb, vT, self.srd(SRD_B1), sT5))
        ad += mk('v_lshrrev_b32 v%d, 5, v0\nv_lshlrev_b32 v%d, 3, v%d\ns_lshl_b32 s%d, s%d, 5' % (vT, vT, vT, sT2, sFe))
        ad += mk('buffer_load_dwordx2 %s, v%d, %s, s%d offen\nbuffer_load_dwordx2 %s, v%d, %s, s%d offen offset:16'
                 % (v(vb2, 2), vT, self.srd(SRD_B2), sT2, v(vb2 + 2, 2), vT, self.srd(SRD_B2), sT2))
        vo, D = 124, 128
        if self.o['pfa']:
            sv = [mk('s_mov_b32 s%d, s%d\ns_mov_b32 s%d, s%d' % (sPm, sT3, sPm + 1, sQ1))]
            P.add(flat(sv + self.wo_dma(121)) + mk('s_mov_b32 s%d, s%d\ns_mov_b32 s%d, s%d' % (sT3, sPm, sQ1, sPm + 1)))
        def consume(k):
            va, o = (t0, 1024 * k) if k < 7 else (t1, 1024 * (k - 7))
            L = [wait_tok(tk[k])] + mk('ds_read_b64_tr_b16 %s, v%d offset:%d\nds_read_b64_tr_b16 %s, v%d offset:%d' % (w1half(k, 0), va, o, w1half(k, 1), va, o + 512))
            return L + (mfma(D, v(vo, 4), w1reg(k - 2), k == 2) if k >= 2 else [])
        lag = self.o['w1lag']
        P.add(spread(dm[7:lag], ad + qepi() + mk('\n'.join('v_mov_b32 v%d, 0x3f803f80' % (vo + i) for i in range(4)))))
        for k in range(28):
            P.add((dm[k + lag] if k + lag < 28 else []) + consume(k))
            if k + lag == 27 and self.fine:
                P.add(self.stamp('st_iss'))
        P.add(self.kvx_pre(0))
        P.add(mfma(D, v(vo, 4), w1reg(26)) + mfma(D, v(vo, 4), w1reg(27)))
        P.add(self.unpack(144, vb2, 4) + mk('\n'.join('v_mov_b32 v%d, 0' % r for r in range(152, 156))))
        P('s_lshl_b32 s%d, s%d, 7\ns_add_u32 s%d, s%d, %d\nv_lshrrev_b32 v%d, 5, v0\nv_lshl_add_u32 v%d, v%d, 6, s%d' % (sT0, sW, sT0, sT0, L_B2, vT, vT, vT, sT0))
        for q in range(4):
            P('ds_write_b128 v%d, %s offset:%d' % (vT, v(144 + 4 * min(q, 2), 4), 16 * q))
        P.add(self.split_w(vW1X, D, vT + 1) + mk('v_lshl_or_b32 v%d, v%d, 16, v%d' % (vb, vb, vb)))
        P('v_cndmask_b32 v%d, v%d, v%d, s[%d:%d]\nv_cndmask_b32 v%d, v%d, 0, s[%d:%d]' % (vW1X, vW1X, vb, sHalf, sHalf + 1, vW1X + 1, vW1X + 1, sHalf, sHalf + 1))
        P.label(ljoin)
        P.add([I('s_nop 1', kind='block', states=2)])

    def w2_prefetch(self, va, part):
        txt = ['s_lshr_b32 s%d, s%d, 3' % (sQ0, sC), 's_mul_i32 s%d, s%d, 14' % (sQ0, sQ0), 's_add_u32 s%d, s%d, s%d' % (sQ0, sQ0, sM),
               's_lshl_b32 s%d, s%d, 2' % (sQ0, sQ0), 's_add_u32 s%d, s%d, s%d' % (sQ0, sQ0, sW), 's_mul_i32 s%d, s%d, %d' % (sQ0, sQ0, 56 * 128),
               's_add_u32 s%d, s%d, %d' % (sQ0, sQ0, part * 112 * 56 * 128), 'v_lshlrev_b32 v%d, 7, v0' % va, 's_mov_b32 exec_hi, 0xffffff',
               'buffer_load_dword v%d, v%d, %s, s%d offen' % (vDummy, va, self.srd(SRD_W2), sQ0), 's_mov_b64 exec, -1']
        return [I('\n'.join(txt), kind='block', nvm=1, src=[('v', 0)], dst=[('v', va)], cost=48)]

    def w2_addr(self, R):
        v2a, tA, tB, vp = R, R + 1, R + 3, R + 5
        L = mk('v_lshrrev_b32 v%d, 3, v0\nv_mul_u32_u24 v%d, 896, v%d\nv_lshrrev_b32 v%d, 2, v0\nv_and_b32 v%d, 4, v%d\nv_xor_b32 v%d, v%d, v0\nv_and_b32 v%d, 7, v%d\nv_lshl_add_u32 v%d, v%d, 4, v%d'
               % (v2a, v2a, v2a, vT, vT, vT, vT, vT, vT, vT, v2a, vT, v2a))
        L += mk('s_lshr_b32 s%d, s%d, 1\ns_lshl_b32 s%d, s%d, 7\ns_mul_i32 s%d, s%d, %d\ns_add_u32 s%d, s%d, s%d\nv_add_u32 v%d, s%d, v%d'
                % (sT0, sM, sT0, sT0, sT2, sW, 32 * 896, sT0, sT0, sT2, v2a, sT0, v2a))
        L += mk('s_mul_i32 s%d, s%d, 7168\ns_add_u32 s%d, s%d, %d\ns_lshl_b32 s%d, s%d, 12\ns_add_u32 s%d, s%d, %d'
                % (sRot, sW, sRot, sRot, L_EX, sQ1, sW, sQ1, sQ1, L_KVS))
        L += mk('s_lshr_b32 s%d, s%d, 1' % (sT0, sW)) + self.trbase(tA, 128, 4, xor16=sT0)
        L += mk('s_and_b32 s%d, s%d, 1\nv_bfe_u32 v%d, v0, 3, 1\nv_xor_b32 v%d, s%d, v%d\nv_lshl_add_u32 v%d, v%d, 6, v%d\nv_xor_b32 v%d, 64, v%d'
                % (sT0, sW, vT, vT, sT0, vT, tA, vT, tA, tA + 1, tA))
        L += mk('v_add_u32 v%d, s%d, v%d\nv_add_u32 v%d, s%d, v%d\nv_add_u32 v%d, s%d, v%d\nv_add_u32 v%d, s%d, v%d' % (tB, sQ1, tA, tB + 1, sQ1, tA + 1, tA, sRot, tA, tA + 1, sRot, tA + 1))
        L += mk('s_mul_i32 s%d, s%d, 21504\nv_add_u32 v%d, s%d, v%d' % (sT0, sW, vp, sT0, vL16))
        return L

    def w2_stage(self, fill, R, extra):
        P = self.P
        v2a, tA, tB, vp = R, R + 1, R + 3, R + 5
        NS = 5

        def issue(u):
            out = []
            base, o = (sRot, (u % NS) * 2048) if u % NS < 3 else (sQ1, (u % NS - 3) * 2048)
            for i in range(2):
                g = mk('s_add_u32 m0, s%d, %d' % (base, o + 1024 * i))
                g += mk('s_mov_b32 s%d, %d' % (sQ0, (128 * (u // 2) + 16 * (u % 2) + 8 * i) * 896))
                out += g + mk('buffer_load_dwordx4 v%d, %s, s%d offen lds' % (v2a, self.srd(SRD_W2), sQ0))
            return out, tok(out[-1])
        tk = []
        for u in range(NS - 1):
            g, t = issue(u)
            tk.append(t)
            P.add(g)
        steps = []
        for u in range(28):
            ta, o = (tA, (u % NS) * 2048) if u % NS < 3 else (tB, (u % NS - 3) * 2048)
            L = []
            if u + NS - 1 < 28:
                if u:
                    L += [wait_tok(prev_rd)]
                g, t = issue(u + NS - 1)
                tk.append(t)
                L += g
            L += [wait_tok(tk[u])]
            for js in range(2):
                b = W2A + 8 * u + 4 * js
                L += mk('ds_read_b64_tr_b16 %s, v%d offset:%d\nds_read_b64_tr_b16 %s, v%d offset:%d' % (a(b, 2), ta + js, o, a(b + 2, 2), ta + js, o + 1024))
            prev_rd = tok(L[-1])
            L += extra.get(u, [])
            if self.fine:
                L += self.stamp('w2_%d' % u)
            r0 = self.o['rest0']
            for i in range(21):
                if u == r0 + (i * (26 - r0)) // 21:
                    assert u < 17 + (i + 1) // 2
                    L += mk('ds_write_b128 v%d, %s offset:%d' % (vp, a(self.PARK + 4 * i, 4), 1024 * i))
            steps.append(L)
        P.add(spread(steps, fill, start=0, end=self.o['w2fill']))

    K10 = 98

    def kvx_pre(self, l):
        L = []
        RES = 160
        if l == 1:
            L += mk('s_lshl_b32 s%d, s%d, 11\ns_add_u32 s%d, s%d, s%d\ns_add_u32 s%d, s%d, %d' % (sT1, sM, sT0, sT5, sT1, sT0, sT0, XIN_OFF))
            for j in range(2):
                L += mk('buffer_load_dwordx4 %s, v%d, %s, s%d offen offset:%d' % (v(RES + 4 * j, 4), vL16, self.srd(SRD_CL), sT0, 1024 * j))
            L += [I('s_mul_i32 s%d, s%d, %d\ns_add_u32 s%d, s%d, s%d\ns_addc_u32 s%d, s%d, 0\ns_sub_u32 s%d, s%d, s%d'
                    % (sT0, sSlow, LOFF, SRD_CL, SRD_CL, sT0, SRD_CL + 1, SRD_CL + 1, SRD_CL + 2, SRD_CL + 2, sT0), kind='block', cost=16)]
        L += [I('s_cmp_eq_u32 s%d, 3\ns_cselect_b32 s%d, 0xffff0000, 0\ns_cselect_b32 s%d, 0xffff0000, 0' % (sW, sPm, sPm + 1), kind='block', cost=12)]
        L += self.kv_lane_addr(self.KA, self.KA + 1, self.KA + 2, gather=False)
        g, t = self.KA + 1, self.KA + 2
        L += mk('\n'.join(['v_bfe_u32 v%d, v0, 3, 1' % g, 'v_and_b32 v%d, 3, v0' % t, 'v_lshl_add_u32 v%d, v%d, 2, v%d' % (g, g, t),
                           'v_cmp_eq_u32 vcc, 7, v%d' % g, 'v_bfe_u32 v%d, v0, 4, 1' % t, 'v_mad_u32_u24 v%d, v%d, 14, v%d' % (g, t, g),
                           'v_bfe_u32 v%d, v0, 2, 1' % t, 'v_mad_u32_u24 v%d, v%d, 7, v%d' % (g, t, g), 'v_cndmask_b32 v%d, v%d, 28, vcc' % (g, g),
                           'v_and_b32 v%d, 32, v0' % t, 'v_add_u32 v%d, v%d, v%d' % (g, g, t), 'v_lshlrev_b32 v%d, 5, v%d' % (g, g), 'v_add_u32 v%d, %d, v%d' % (g, L_KVB, g)]))
        L += mk('s_and_b32 s%d, s%d, 0x1fff\ns_or_b32 s%d, s%d, 0x4000\ns_lshl_b32 s%d, s%d, 16' % (sTag, sNonce, sTag, sTag, sTag + 1, sTag))
        L += mk('v_mov_b32 v%d, 0x3f80\nv_mov_b32 v%d, 0x3f800000' % (self.K10, self.K10 + 1))
        return L

    KA = 100

    def kvx(self, l):
        P = self.P
        P.comment('==== layer %d : kv exchange' % l)
        if l == 0:
            lw, lb = P.newlabel('Lxcc'), P.newlabel('Lxok')
            P('v_subrev_u32 v%d, s%d, v%d\nv_cmp_lt_u32 vcc, 15, v%d' % (vPoll, sNonce, vPoll, vPoll))
            P.add([I('s_cbranch_vccnz %s\n%s:' % (lw, lb), kind='block')])
            self.ool.append('\n'.join([
                lw + ':',
                'buffer_load_dword v%d, v%d, %s, s%d offen sc1' % (vPoll, vPA, self.srd(SRD_WS), sT4),
                's_add_u32 s%d, s%d, 1' % (sSpin, sSpin),
                's_cmp_gt_u32 s%d, 0x40000' % sSpin,
                's_cbranch_scc1 L_end',
                's_waitcnt vmcnt(0)',
                'v_subrev_u32 v%d, s%d, v%d' % (vPoll, sNonce, vPoll),
                'v_cmp_lt_u32 vcc, 15, v%d' % vPoll,
                's_cbranch_vccnz %s' % lw,
                's_branch %s' % lb]))
            P('v_cmp_ne_u32 vcc, s%d, v%d\ns_cmp_lg_u64 vcc, 0\ns_cselect_b32 s%d, 1, 0' % (sXcc, vPoll, sSlow))
        K10, K01 = self.K10, self.K10 + 1
        P('v_and_b32 v%d, 15, v0\nv_lshlrev_b32 v%d, 11, v%d\nv_add_u32 v%d, 2044, v%d' % (vPA, vPA, vPA, vPA, vPA))
        P.add(self.trbase(vTr, 64, 7, add=L_WO))
        P.add(self.s2_pre(l))
        P('s_mov_b32 s%d, 0x88888888\ns_mov_b32 s%d, 0x88888888' % (sPm, sPm + 1))
        if l == 1 and self.o['kvdelay']:
            P('s_sleep %d' % self.o['kvdelay'])
        lsw, lre = P.newlabel('Lsweep'), P.newlabel('Lresweep')
        P.add(self.stamp('sweep_start'))
        P.label(lsw)
        B = 32
        P.add(flat(self.frag_loads([v(B + 4 * i, 4) for i in range(8)], SRD_WS, sKv, 0, flags='sc1')))
        bad, S = vT, 64
        P('v_mov_b32 v%d, 0' % bad)
        for i in range(8):
            for k in range(4):
                for hh, K in enumerate((K10, K01)):
                    P('v_dot2_f32_bf16 v%d, v%d, v%d, %s' % (S + 2 * k + hh, B + 4 * i + k, K, 'v%d' % (S + 2 * k + hh) if i else '0'))
            for k in (2, 3):
                P('v_bitop3_b32 v%d, v%d, s%d, v%d bitop3:0xbe' % (bad, B + 4 * i + k, sNonce, bad))
        P('v_cmp_ne_u32 vcc, 0, v%d\ns_and_b64 vcc, vcc, s[%d:%d]' % (bad, sPm, sPm + 1))
        P.add([I('s_cbranch_vccnz %s' % lre, kind='block', states=1)])
        self.ool.append('%s:\ns_sleep 6\ns_add_u32 s%d, s%d, 1\ns_cmp_gt_u32 s%d, 0x40000\ns_cbranch_scc1 L_end\ns_branch %s'
                        % (lre, sSpin, sSpin, sSpin, lsw))
        P.add(self.stamp('sweep_done'))
        for k in range(4):
            P('v_permlane32_swap_b32 v%d, v%d' % (S + k, S + 4 + k))
        for k in (0, 2):
            P('v_pk_add_f32 %s, %s, %s' % (v(S + k, 2), v(S + k, 2), v(S + 4 + k, 2)))
        P.add(self.pack(S, S, 2))
        P('ds_write_b64 v%d, %s' % (self.KA, v(S, 2)))
        if l == 0:
            P.add([wait_tok(self.tok_wo)])
        P('s_waitcnt lgkmcnt(0)\ns_barrier')
        KF, D = 72, 80
        P('ds_read_b128 %s, v%d\nds_read_b128 %s, v%d offset:16' % (v(KF, 4), self.KA + 1, v(KF + 4, 4), self.KA + 1))
        P.add(flat(self.s2_rd(i) for i in range(4)))
        P.add(mfma(D, v(KF, 4), v(self.PQ, 4), True))
        for i in (6, 7):
            P('v_cndmask_b32 v%d, v%d, 0, s[%d:%d]' % (KF + i, KF + i, sHalf, sHalf + 1))
        P.add(mfma(D, v(KF + 4, 4), v(self.PQ + 4, 4)))
        t1 = 120
        P('v_add_f32 v%d, %s, v%d\nv_rcp_f32 v%d, v%d\nv_mul_f32 v%d, s%d, v%d' % (t1, f32(1e-6), D + 7, t1, t1, t1, sLn2, t1))
        for r in range(0, 16, 2):
            P('v_pk_mul_f32 %s, %s, %s op_sel_hi:[1,0]' % (v(D + r, 2), v(D + r, 2), v(t1, 2)))
        P('v_mov_b32 v%d, s%d\nv_mov_b32 v%d, s%d' % (D + 7, sTag + 1, D + 15, sTag + 1))
        P.add(self.pack(D, D, 8))
        st = self.stores(['buffer_store_dwordx4 %s, v%d, %s, s%d offen offset:%d' % (v(D + 4 * j, 4), vL16, self.srd(SRD_CL), sOst, 1024 * j) for j in range(2)])
        P.add(st)
        P.add(self.stamp('o_pub'))

    def s2_rd(self, i):
        WB, o = 144 + 4 * (i % 4), 1792 * (i // 2) + 896 * (i % 2)
        return mk('ds_read_b64_tr_b16 %s, v%d offset:%d\nds_read_b64_tr_b16 %s, v%d offset:%d' % (v(WB, 2), vTr, o, v(WB + 2, 2), vTr, o + 256))

    def s2_pre(self, l):
        L = self.s4_consts(l) + (self.xsrc() if l == 0 else [])
        L += mk('s_add_u32 s%d, s%d, %d' % (sT4, sOst, X1_OFF))
        L += mk('s_lshr_b32 s%d, s%d, 2\ns_lshl_b32 s%d, s%d, 10\ns_and_b32 s%d, s%d, 3\ns_lshl_b32 s%d, s%d, 2\ns_add_u32 s%d, s%d, s%d\ns_add_u32 s%d, s%d, s%d\ns_add_u32 s%d, s%d, %d'
                % (sT5, sM, sT5, sT5, sT1, sM, sT1, sT1, sT5, sT5, sT1, sT5, sT5, sBlk, sT5, sT5, X1_OFF + 28672))
        return L + self.unpack(16, 160, 8)

    def s2(self, l):
        P = self.P
        o = self.o
        P.comment('==== layer %d : S2' % l)
        ACC, OF, WB, RES = 16, 32, 144, 160
        NB = 4
        lre, lfail = P.newlabel('Ls2'), P.newlabel('Ls2again')
        P.label(lre)
        P.add(self.poll_issue(sBlk, o['pdo']))
        rd = self.s2_rd
        bad = vT
        P('v_mov_b32 v%d, 0' % bad)
        P.add(self.poll_check(sBlk, tag=True))
        P.add(self.stamp('o_seen'))
        oreg = [OF + 4 * (i % 28) for i in range(32)]
        lds = self.frag_loads([v(r, 4) for r in oreg], SRD_CL, sBlk, O_OFF, flags='sc1')
        n = o['look2']
        P.add(flat(lds[:n]))
        chk = lambda i: mk('v_bitop3_b32 v%d, v%d, s%d, v%d bitop3:0xbe\nv_and_b32 v%d, 0xffff, v%d' % (bad, oreg[i] + 3, sTag + 1, bad, oreg[i] + 3, oreg[i] + 3))
        P.add(chk(0))
        for i in range(32):
            if i + n < 32:
                P.add(lds[i + n])
            P.add(mfma(ACC, v(WB + 4 * (i % NB), 4), v(oreg[i], 4)))
            if self.fine and i in (0, 8, 16, 31):
                P.add(self.stamp('s2_%d' % i))
            if i + NB < 32:
                P.add(rd(i + NB))
            if i + 1 < 32:
                P.add(chk(i + 1))
            if i == 28:
                P.add(self.pa(14, blocks=True, reg=vT + 2))
        P('v_cmp_lt_u32 vcc, 0xffff, v%d' % bad)
        P.add([I('s_cbranch_vccnz %s' % lfail, kind='block', states=1)])
        again = '\n'.join(x.text for x in self.unpack(ACC, RES, 8) + flat(rd(i) for i in range(NB)))
        self.ool.append('%s:\ns_add_u32 s%d, s%d, 1\ns_cmp_gt_u32 s%d, 0x40000\ns_cbranch_scc1 L_end\ns_nop 15\n%s\ns_waitcnt lgkmcnt(0)\ns_branch %s'
                        % (lfail, sSpin, sSpin, sSpin, again, lre))
        P('v_mov_b32 v%d, v%d' % (vPA, vT + 2))
        P.add(self.pack(OF, ACC, 8))
        P.add(self.stores(['buffer_store_dwordx4 %s, v%d, %s, s%d offen offset:%d' % (v(OF + 4 * j, 4), vL16, self.srd(SRD_CL), sT4, 1024 * j) for j in range(2)]))
        P.add(self.row_stats(OF, 8, vT, vT + 2))
        st = self.stores(['buffer_store_dword v%d, v%d, %s, s%d offen' % (vT, vL16, self.srd(SRD_CL), sT5)])
        tk = tok(st[-1])
        P.add(st)
        if self.fine:
            P.add(self.stamp('x1_st'))
        P.add(self.flag([tk], sFoMy, FX1 - FO))
        P.add(self.stamp('x1_pub'))

    def gelu(self, acc, KK, T):
        pr = range(0, 16, 2)
        A = flat(mk('v_pk_mul_f32 %s, %s, %s' % (v(T + i, 2), v(acc + i, 2), v(acc + i, 2))) for i in pr)
        A += flat(mk('v_pk_fma_f32 %s, %s, %s, %s op_sel:[0,1,0] op_sel_hi:[1,1,0]' % (v(T + i, 2), v(T + i, 2), v(KK, 2), v(KK, 2))) for i in pr)
        A += flat(mk('v_pk_mul_f32 %s, %s, %s' % (v(T + i, 2), v(T + i, 2), v(acc + i, 2))) for i in pr)
        E = flat(mk('v_exp_f32 v%d, v%d' % (T + i, T + i)) for i in range(16))
        B = flat(mk('v_pk_fma_f32 %s, %s, %s, %s op_sel_hi:[1,0,0]' % (v(T + i, 2), v(T + i, 2), v(KK + 2, 2), v(KK + 2, 2))) for i in pr)
        R = flat(mk('v_rcp_f32 v%d, v%d' % (T + i, T + i)) for i in range(16))
        C = flat(mk('v_pk_mul_f32 %s, %s, %s' % (v(acc + i, 2), v(acc + i, 2), v(T + i, 2))) for i in pr)
        pk = self.pack(acc, acc, 8)
        g4 = lambda f, g: flat(mk(f(4 * g + i)) for i in range(4))
        e = lambda g: E[4 * g:4 * g + 4]
        r = lambda g: R[4 * g:4 * g + 4]
        b = lambda g: g4(lambda i: 'v_fma_f32 v%d, v%d, v%d, v%d' % (T + i, T + i, KK + 2, KK + 2), g)
        c = lambda g: g4(lambda i: 'v_mul_f32 v%d, v%d, v%d' % (acc + i, acc + i, T + i), g) + pk[2 * g:2 * g + 2]
        tail = e(0) + e(1) + b(0) + r(0) + e(2) + b(1) + c(0) + r(1) + e(3) + b(2) + c(1) + r(2) + b(3) + c(2) + r(3) + c(3)
        return A, A + E + B + R + C + pk, tail

    XSRC = (4, 5, 6, 7, 8, 9, 10, 11, 12, 13, 14, 15, 20, 21)

    def xsrc(self):
        L = mk('s_lshl_b32 s%d, s%d, 1\ns_mul_i32 s%d, s%d, 14\ns_add_u32 s%d, s%d, s%d\ns_mov_b32 s%d, %d' % (sT0, sW, sT1, sD1, sT1, sT1, sT0, sT2, X1_OFF))
        for c, r in enumerate(self.XSRC):
            if c:
                L += mk('s_add_u32 s%d, s%d, 8\ns_cmp_ge_u32 s%d, 28\ns_cselect_b32 s%d, 28, 0\ns_cselect_b32 s%d, 0x8000, 0\ns_sub_u32 s%d, s%d, s%d\ns_add_u32 s%d, s%d, s%d'
                        % (sT0, sT0, sT0, sT3, r, sT0, sT0, sT3, sT2, sT2, r))
                L += mk('s_add_u32 s%d, s%d, 8\ns_cmp_ge_u32 s%d, 28\ns_cselect_b32 s%d, 28, 0\ns_sub_u32 s%d, s%d, s%d' % (sT1, sT1, sT1, sT3, sT1, sT1, sT3))
            L += mk('s_lshl_b32 s%d, s%d, 10\ns_add_u32 s%d, s%d, s%d' % (r, sT1, r, r, sT2))
        return L

    SEL = 172

    def s4_consts(self, l):
        U, SEL = 120, self.SEL
        sel = mk('\n'.join(['v_lshrrev_b32 v%d, 5, v0' % SEL,
                             'v_lshlrev_b32 v%d, 2, v%d' % (SEL, SEL), 'v_and_b32 v%d, 31, v0' % (SEL + 1), 'v_sub_u32 v%d, v%d, v%d' % (U, SEL + 1, SEL),
                             'v_mov_b32 v%d, 0x3f80' % (U + 1), 'v_mov_b32 v%d, 0x3f800000' % (U + 2)]))
        for q, r0 in enumerate((0, 2, 8, 10)):
            sel += mk('v_cmp_eq_u32 vcc, %d, v%d\nv_cmp_eq_u32 s[%d:%d], %d, v%d\ns_nop 0\nv_cndmask_b32 v%d, 0, v%d, vcc\nv_cndmask_b32 v%d, v%d, v%d, s[%d:%d]'
                      % (r0, U, sPm, sPm + 1, r0 + 1, U, SEL + q, U + 1, SEL + q, SEL + q, U + 2, sPm, sPm + 1))
        for q, sB in enumerate((sEb, sLb)):
            sel += mk('s_lshl_b32 s%d, s%d, 15\ns_lshl_b32 s%d, s%d, 10\ns_add_u32 s%d, s%d, s%d\ns_add_u32 s%d, s%d, %d' % (sT0, sB, sT2, sFe, sT0, sT0, sT2, sRes + q, sT0, X1_OFF))
            if l == 0:
                sel += mk('s_mul_i32 s%d, s%d, %d\ns_add_u32 s%d, s%d, %d\ns_add_u32 s%d, s%d, s%d' % (sT0, sB, XIN_BS, sT0, sT0, XIN_OFF, sFin + q, sT0, sT2))
                sel += mk('s_lshr_b32 s%d, s%d, 2\ns_lshl_b32 s%d, s%d, 10\ns_add_u32 s%d, s%d, s%d\ns_and_b32 s%d, s%d, 3\ns_lshl_b32 s%d, s%d, 2\ns_add_u32 s%d, s%d, s%d\ns_add_u32 s%d, s%d, 28672'
                          % (sT2, sFe, sT2, sT2, sT0, sT0, sT2, sT2, sFe, sT2, sT2, sT0, sT0, sT2, sFin + 2 + q, sT0))
                sel += mk('s_lshl_b32 s%d, s%d, 5\ns_add_u32 s%d, s%d, s%d\ns_lshl_b32 s%d, s%d, 2\ns_add_u32 s%d, s%d, %d' % (sT2, sB, sT2, sT2, sFe, sT2, sT2, sFin + 4 + q, sT2, FXIN))
            else:
                sel += mk('s_lshl_b32 s%d, s%d, 2\ns_add_u32 s%d, s%d, s%d\ns_mul_i32 s%d, s%d, %d\ns_lshl_b32 s%d, s%d, 5\ns_add_u32 s%d, s%d, s%d'
                          % (sT0, sC, sT0, sT0, sB, sT0, sT0, 32 * 896, sT2, sFe, sFin + q, sT0, sT2))

        return sel

    def mlp(self, l):
        P = self.P
        o = self.o
        P.comment('==== layer %d : MLP' % l)
        ACC = (16, 32)
        XB, EXB, WEX, T, RING = 48, 72, 76, 80, 108
        KK = (96, 100)
        SEL, vB2, vX2 = self.SEL, 104, 105
        NB = 6
        P('s_mov_b32 s%d, %d' % (sT4, FX1))
        if not o['p1']:
            P.add(self.poll_issue(sT4, o['pdx']))
        P('s_lshl_b32 s%d, s%d, 11' % (sT5, sW))
        P('v_mov_b32 v%d, v%d\nv_mov_b32 v%d, v%d' % (WEX, vW1X, WEX + 1, vW1X + 1))
        P('\n'.join('v_mov_b32 v%d, 0' % r for r in (WEX + 2, WEX + 3, EXB + 2, EXB + 3)))
        vE8, vK16 = vTr, vT + 3
        P('v_lshlrev_b32 v%d, 3, v0\nv_add_u32 v%d, %d, v%d' % (vE8, vE8, L_KVS, vE8))
        P('v_and_b32 v%d, 31, v0\nv_lshlrev_b32 v%d, 4, v%d\nv_add_u32 v%d, %d, v%d' % (vK16, vK16, vK16, vK16, L_KVS + 512, vK16))
        P('v_add_u32 v%d, %d, v%d' % (vX2, 56 * 1024, vL16))
        P('s_lshl_b32 s%d, s%d, 7\ns_add_u32 s%d, s%d, %d\nv_lshrrev_b32 v%d, 5, v0\nv_lshl_add_u32 v%d, v%d, 6, s%d' % (sT3, sW, sT3, sT3, L_B2, vB2, vB2, vB2, sT3))
        P('s_add_u32 s%d, s%d, %d' % (sT1, sBlk, X1_OFF + 28672))
        if o['p1']:
            lq = P.newlabel('Lnp')
            c = self.poll_check(sT4)[0]
            P.add([I('s_cmp_lg_u32 s%d, 0\ns_cbranch_scc1 %s\n%s\ns_waitcnt vmcnt(0)\n%s\n%s:\ns_barrier'
                     % (sW, lq, '\n'.join(x.text for x in self.poll_issue(sT4, o['pdx'])), c.text, lq), kind='block', src=[('v', vPA)], dst=c.dst, states=2)])
        else:
            P.add(self.poll_check(sT4))
        P.add(self.stamp('x1_seen'))
        xd, tc = [], []
        for c, r in enumerate(self.XSRC):
            g = mk('s_add_u32 m0, s%d, %d' % (sT5, 8192 * c))
            g += mk('buffer_load_dwordx4 v%d, %s, s%d offen sc1 lds\nbuffer_load_dwordx4 v%d, %s, s%d offen offset:1024 sc1 lds' % (vL16, self.srd(SRD_CL), r, vL16, self.srd(SRD_CL), r))
            tc.append(tok(g[-1]))
            xd.append(g)
        P.add(xd[0] + xd[1])
        stl = [mk('buffer_load_dwordx4 %s, v%d, %s, s%d offen offset:%d sc1' % (v(RING + 4 * i, 4), vL16, self.srd(SRD_CL), sT1, 1024 * i)) for i in range(4)]
        K0 = KK[1]
        st0 = mk('v_add_f32 v%d, v%d, v%d' % (T, RING, RING + 1))
        for i in range(2, 14):
            st0 += mk('v_add_f32 v%d, v%d, v%d' % (T, T, RING + i))
        st0 += self.stats_finish(T, True)
        st0 += mk('\n'.join(['v_rcp_f32 v%d, v%d' % (K0 + 2, vRl),
                             'v_mul_f32 v%d, s%d, v%d' % (K0, sC0, vRl),
                             'v_mul_f32 v%d, v%d, v%d' % (T, vRl, vRl),
                             'v_mul_f32 v%d, s%d, v%d' % (K0 + 1, sC1, vRl),
                             'v_mul_f32 v%d, v%d, v%d' % (K0 + 1, K0 + 1, T),
                             'v_sub_f32 v%d, 0, v%d' % (vMean, vMean),
                             'v_cndmask_b32 v%d, v%d, v%d, s[%d:%d]' % (vMean, vMean, K0 + 2, sHalf, sHalf + 1)]))
        st0 += self.split_act(T + 2, vMean, T)
        st0 += mk('s_lshl_b32 s%d, s%d, 10\nv_add_u32 v%d, s%d, v%d\nv_add_u32 v%d, s%d, v%d' % (sT4, sW, vT, sT4, vE8, vT + 1, sT4, vK16))
        st0 += mk('ds_write_b64 v%d, %s\nds_write_b128 v%d, %s' % (vT, v(T + 2, 2), vT + 1, v(K0, 4)))
        tst = tok(st0[-1])

        def hpub(b):
            pre = mk('s_add_u32 s%d, s%d, %d' % (sT4, sHst, b * 114688))
            st = self.stores(['buffer_store_dwordx4 %s, v%d, %s, s%d offen offset:%d' % (v(ACC[b & 1] + 4 * j, 4), vL16, self.srd(SRD_CL), sT4, 1024 * j) for j in range(2)])
            return pre + st, tok(st[-1])
        hflag = lambda b, tk: self.flag([tk], sFoMy, FH - FO + 512 * b)
        extrd = lambda b: mk('ds_read_b64 %s, v%d offset:%d\nds_read_b128 %s, v%d offset:%d' % (v(EXB, 2), vE8, 1024 * b, v(KK[b & 1], 4), vK16, 1024 * b))
        extmf = lambda b: mfma(ACC[b & 1], v(WEX, 4), v(EXB, 4))
        hreg = [RING + 4 * (i % 16) for i in range(56)]

        def hload(i):
            blk, kap = divmod(i, 28)
            g = mk('s_add_u32 s%d, s%d, %d' % (sHs, (sHE, sHL)[blk], 8192 * (kap // 2))) if kap % 2 == 0 else []
            return g + mk('buffer_load_dwordx4 %s, v%d, %s, s%d offen offset:%d sc1' % (v(hreg[i], 4), vL16, self.srd(SRD_CL), sHs, 1024 * (kap % 2)))
        P.add([wait_tok(tc[0])])
        P('s_barrier')
        P.add(self.stamp('s3_b0'))
        rdj = lambda j: mk('ds_read_b128 %s, v%d offset:%d' % (v(XB + 4 * (j % NB), 4), vL16 if j < 56 else vX2, 1024 * (j % 56)))
        for j in range(NB):
            P.add(rdj(j))
        bars = {3: [tc[1]], 11: [tc[2]], 19: [tc[3]], 27: [tc[5], tst], 43: [tc[9]], 75: [tc[13]]}
        slots = []
        for j in range(112):
            b, k = divmod(j, 28)
            sl = mfma(ACC[b & 1], w1reg(k), v(XB + 4 * (j % NB), 4), k == 0)
            if k % 2 == 0:
                also_waits_for(sl[0], v(XB + 4 * ((j + 1) % NB), 4))
            if j in bars:
                sl += (self.stamp('pb%d' % j) if self.fine else []) + [wait_tok(*bars[j])] + mk('s_barrier') + (self.stamp('ab%d' % j) if self.fine else [])
            if k % 2 == 1:
                for jj in (j + NB - 1, j + NB):
                    if jj < 112:
                        sl += rdj(jj)
            if (k == 25 and b) or j == 27:
                sl += extrd(b)
            if (k == 27 and b) or j == 30:
                sl += extmf(b if k == 27 else 0)
            slots.append(sl)
        slots[0] += stl[0] + stl[1]
        slots[1] += xd[2]
        slots[3] += stl[2] + stl[3]
        for c in range(3, 14):
            slots[6 + 4 * (c - 3)] += xd[c]
        W2R = RING + 32
        pre0 = self.w2_addr(W2R) if l == 0 else []
        out = spread(slots[:o['st0']], pre0) + spread(slots[o['st0']:26], st0) + slots[26] + slots[27]
        pend = None
        for b in range(1, 4):
            gA, _, tail = self.gelu(ACC[(b - 1) & 1], KK[(b - 1) & 1], T)
            s0 = 28 * b + (5 if b == 1 else 2)
            st, nxt = hpub(b - 1)
            if l == 0 and b < 3 and o['pfw2']:
                st = st + self.w2_prefetch(vT, b - 1)
            if l == 0 and not o['idleh']:
                st = st + self.touch([(16, SRD_CL, sHst, bb * 114688) for bb in ((b - 1,) if b < 3 else (2, 3))], vT)
            slots[s0] += gA
            if pend is not None and l == 1:
                slots[28 * b + o['flagpos']] += hflag(b - 2, pend)
            pend = nxt
            if b == 3 and l == 1:
                slots[84 + o['pollE']] += self.pa(14) + self.poll_issue(sPE)
                n3 = o['n3']
                slots[112 - n3] += (self.stamp('preE') if self.fine else []) + self.poll_check(sPE) + (self.stamp('gotE') if self.fine else [])
                for i in range(n3):
                    slots[112 - n3 + i] += hload(i)
            if b == 1 or self.fine:
                out += self.stamp('s3_b%d' % b)
            out += flat(slots[28 * b:s0 + 1]) + spread(slots[s0 + 1:28 * b + 28], tail + st, end=28 * b + o['gend'] - s0)
        P.add(out)
        P('s_waitcnt lgkmcnt(0)\ns_barrier')
        P.add(self.stamp('s3_end'))
        AE, AL, RX, RS = 48, 16, 80, 96
        vEW, vER = (vTr, vT, vT + 1), vT + 3
        resid = lambda q: mk('buffer_load_dwordx4 %s, v%d, %s, s%d offen sc1' % (v(RS, 4), vL16, self.srd(SRD_CL), sRes + q))
        cinit = lambda A: flat(mk('ds_read_b128 %s, v%d offset:%d' % (v(A + 4 * q, 4), vB2, 16 * q)) for q in range(4))
        ad = []
        for n, x in enumerate((2, 1, 3)):
            ad += mk('s_xor_b32 s%d, s%d, %d\ns_mul_i32 s%d, s%d, 6144\ns_add_u32 s%d, s%d, %d\nv_add_u32 v%d, s%d, v%d'
                     % (sT3, sW, x, sT3, sT3, sT3, sT3, L_EX + 2048 * (x - 1), vEW[n], sT3, vL16))
        ad += mk('s_mul_i32 s%d, s%d, 6144\ns_add_u32 s%d, s%d, %d\nv_add_u32 v%d, s%d, v%d' % (sT3, sW, sT3, sT3, L_EX, vER, sT3, vL16))
        gA, gall, _ = self.gelu(ACC[1], KK[1], T)
        st, p3 = hpub(3)
        npre = o['npre']
        if l == 0:
            npre = 7
            self.w2_stage(gall + hflag(0, pend) + hflag(1, pend) + hflag(2, pend) + st, W2R,
                          {15: hflag(3, p3), 19: self.pa(14) + self.poll_issue(sPE), 23: self.poll_check(sPE) + resid(0) + cinit(AE) + hload(0),
                           24: hload(1) + hload(2), 25: hload(3) + hload(4), 26: hload(5) + hload(6)})
        else:
            P.add(spread([resid(0)] + [hload(i) for i in range(o['n3'], npre)], gall[:40] + hflag(2, pend) + cinit(AE) + gall[40:] + st))
        if self.fine:
            P.add(self.stamp('g3_end'))

        exch_write = lambda A: flat(mk('ds_write_b128 v%d, %s\nds_write_b128 v%d, %s offset:1024' % (vEW[n], v(r, 4), vEW[n], v(r + 4, 4)))
                                    for n, r in enumerate((A + 8, A + 16, A + 24)))
        exch_read = lambda: flat(mk('ds_read_b128 %s, v%d offset:%d' % (v(RX + 4 * q, 4), vER, 1024 * q)) for q in range(6))

        def addv(d, x, y, n, pk):
            if pk:
                return flat(mk('v_pk_add_f32 %s, %s, %s' % (v(d + i, 2), v(x + i, 2), v(y + i, 2))) for i in range(0, n, 2))
            return flat(mk('v_add_f32 v%d, v%d, v%d' % (d + i, x + i, y + i)) for i in range(n))

        def finish(A, q, pk):
            L = addv(A, A, RX, 8, pk) + addv(RX + 8, RX + 8, RX + 16, 8, pk) + addv(A, A, RX + 8, 8, pk) + self.pack(A, A, 4)
            if l == 0:
                L += self.stores(['buffer_store_dwordx4 %s, v%d, %s, s%d offen' % (v(A, 4), vL16, self.srd(SRD_CL), sFin + q)])
                rs = self.row_stats(A, 4, RX, RX + 2)
                blk = I('\n'.join(x.text for x in rs[:9]), kind='block', src=[r for x in rs[:9] for r in x.src], dst=[('v', RX), ('v', RX + 1), ('v', RX + 2)], states=1, cost=60)
                L += [blk] + mk('s_nop 2') + rs[9:]
                st = self.stores(['buffer_store_dword v%d, v%d, %s, s%d offen' % (RX, vL16, self.srd(SRD_CL), sFin + 2 + q)])
                tk = tok(st[-1])
                return L + st, self.flag([tk], sFin + 4 + q)
            L += mk('v_permlane32_swap_b32 v%d, v%d\nv_permlane32_swap_b32 v%d, v%d' % (A, A + 2, A + 1, A + 3))
            L += mk('buffer_store_dwordx4 %s, v%d, %s, s%d offen %s' % (v(A, 4), vPA, self.srd(SRD_OUT), sFin + q, ('', 'sc1', 'nt', 'sc0 sc1')[o['outf']]))
            return L, []

        slots = []
        nt = o['ntail']
        order = [(i, js) for i in range(56 - nt) for js in range(2)] + [(i, 1) for i in range(56 - nt, 56)] + [(i, 0) for i in range(56 - nt, 56)]
        for i, js in order:
            blk, kap = divmod(i, 28)
            A = (AE, AL)[blk]
            sl = mfma(A, v(SEL, 4), v(RS, 4)) if kap == 0 and js == 0 else []
            slots.append(sl + mfma(A + 16 * js, a(W2A + 8 * kap + 4 * js, 4), v(hreg[i], 4), kap == 0 and js == 1))
        sidx = 0
        for i in range(npre, 56):
            sidx = max(sidx, 2 * (i - 16) + 1 if i >= 16 else 0)
            if i == 28:
                sidx = max(sidx, o['lateL'])
                slots[sidx] += (self.stamp('preL') if self.fine else []) + self.poll_check(sPL) + (self.stamp('gotL') if self.fine else [])
            slots[sidx] += hload(i)
            assert sidx <= 2 * i - 6
            sidx += 1 if 2 * (i + 1) - sidx - 2 < o['lead'] else 2
        if l == 1:
            slots[o['flag3']] += (self.stamp('preF') if self.fine else []) + hflag(3, p3) + (self.stamp('gotF') if self.fine else [])
        slots[o['pollL']] += self.poll_issue(sPL)
        for i in range(0, len(ad), 4):
            slots[2 * (i // 4) + 30] += ad[i:i + 4]
        slots[40] += resid(1)
        if l == 0:
            slots[20] += mk('s_barrier')
        slots[46] += cinit(AL)
        if l == 1:
            slots[44] += mk('v_and_b32 v%d, 31, v0\nv_mul_u32_u24 v%d, 896, v%d\nv_lshrrev_b32 v%d, 5, v0\nv_lshl_add_u32 v%d, v%d, 4, v%d'
                            % (vPA, vPA, vPA, vPoll, vPA, vPoll, vPA))
        P.add(flat(slots[:56]))
        P.add(self.stamp('s4_E'))
        late = slots[56:]
        fin, fl = finish(AE, 0, False)
        xb0 = o['xbar']
        P.add(spread(late[:xb0], exch_write(AE), start=2, end=9))
        late[xb0] += (self.stamp('preX') if self.fine else []) + mk('s_waitcnt lgkmcnt(0)\ns_barrier') + (self.stamp('gotX') if self.fine else []) + exch_read()
        late[34] += (self.stamp('preY') if self.fine else []) + mk('s_barrier') + (self.stamp('gotY') if self.fine else [])
        late[44] += fl
        wl = exch_write(AL)
        if l == 1 and o['wb'] == 3:
            lw = P.newlabel('Lnowb')
            late[o['wbslot']] += [I('s_or_b32 s%d, s%d, s%d\ns_cmp_lg_u32 s%d, 0\ns_cbranch_scc1 %s\nbuffer_wbl2 sc1\n%s:' % (sT0, sM, sW, sT0, lw, lw), kind='block', cost=12)]
        for i in range(4):
            late[56 - nt + 2 + i] += [wl[2 + i]]
        P.add(spread(late[xb0:], fin, start=4, end=33 - xb0))
        P.add(self.stamp('s4_L'))
        P.add(wl[:2] + mk('s_waitcnt lgkmcnt(0)\ns_barrier') + exch_read())
        fin, fl = finish(AL, 1, True)
        P.add(fin + fl)
        P.add(self.stamp('x2_pub'))

    def build(self):
        P = self.P
        self.prologue()
        for l in range(2):
            self.s1(l)
            if self.stop == 's1_%d' % l:
                break
            self.kvx(l)
            if self.stop == 'o_%d' % l:
                break
            lnext = 'L_layer%d' % (l + 1)
            if l == 0:
                lsk = P.newlabel('Lskipmlp')
                P.add([I('s_cmp_ge_u32 s%d, 14\ns_cbranch_scc1 %s' % (sM, lsk), kind='block')])
                lp = P.newlabel('Lidle')
                t = [x.text for x in self.pa(28)] + ['s_mov_b32 s%d, %d' % (sT4, FXIN), lp + ':', 's_sleep %d' % self.o['isl'],
                                                     'buffer_load_dword v%d, v%d, %s, s%d offen sc1' % (vPoll, vPA, self.srd(SRD_CL), sT4),
                                                     's_add_u32 s%d, s%d, 1' % (sSpin, sSpin), 's_cmp_gt_u32 s%d, 0x40000' % sSpin, 's_cbranch_scc1 L_end',
                                                     's_waitcnt vmcnt(0)', 'v_cmp_ne_u32 vcc, s%d, v%d' % (sNonce, vPoll), 's_cbranch_vccnz %s' % lp,
                                                     's_sleep %d' % self.o['isl2']]
                self.ool.append('%s:\n%s\ns_waitcnt vmcnt(0) lgkmcnt(0)\n%s\ns_branch %s' % (lsk, self.idle_work(), '\n'.join(t), lnext))
            else:
                if self.o['wb'] in (1, 2):
                    lw, lp = P.newlabel('Lwb'), P.newlabel('Lwbp')
                    P.add([I('s_cmp_ge_u32 s%d, 14\ns_cbranch_scc1 %s' % (sM, lw), kind='block')])
                    t = [lw + ':']
                    if self.o['outt']:
                        lo = P.newlabel('Lot')
                        t += ['s_cmp_lg_u32 s%d, 15' % sM, 's_cbranch_scc1 %s' % lo, 'v_lshlrev_b32 v%d, 7, v0' % vT, 's_mov_b32 exec_hi, 0xffffff']
                        for i in range(4):
                            t += ['s_add_u32 s%d, s%d, %d' % (sT2, sX, i * 56 * 128), 'buffer_load_dword v%d, v%d, %s, s%d offen' % (vDummy, vT, self.srd(SRD_OUT), sT2)]
                        t += ['s_mov_b64 exec, -1', 's_waitcnt vmcnt(0)', lo + ':']
                    t += ['s_cmp_lg_u32 s%d, 14' % sM, 's_cbranch_scc1 L_fin', 's_cmp_lg_u32 s%d, 0' % sW, 's_cbranch_scc1 L_fin']
                    t += [x.text for x in self.pa(14, blocks=True)]
                    t += ['s_mov_b32 s%d, %d' % (sT4, FH + 512 * self.o['wbblk']), 's_sleep %d' % self.o['wbsl']] + (['buffer_wbl2 sc1', 's_waitcnt vmcnt(0)'] if self.o['wb'] == 2 else []) + [lp + ':', 's_sleep 4',
                          'buffer_load_dword v%d, v%d, %s, s%d offen sc1' % (vPoll, vPA, self.srd(SRD_CL), sT4),
                          's_add_u32 s%d, s%d, 1' % (sSpin, sSpin), 's_cmp_gt_u32 s%d, 0x40000' % sSpin, 's_cbranch_scc1 L_end',
                          's_waitcnt vmcnt(0)', 'v_cmp_ne_u32 vcc, s%d, v%d' % (sNonce, vPoll), 's_cbranch_vccnz %s' % lp,
                          'buffer_wbl2 sc1', 's_waitcnt vmcnt(0)', 's_branch L_fin']
                    self.ool.append('\n'.join(t))
                else:
                    P.add([I('s_cmp_ge_u32 s%d, 14\ns_cbranch_scc1 L_fin' % sM, kind='block')])
            self.s2(l)
            if self.stop == 'x1_%d' % l:
                P.label(lnext)
                break
            self.mlp(l)
            P.label(lnext)
            if l == 0:
                P('s_add_u32 s%d, s%d, %d\ns_add_u32 s%d, s%d, %d' % (sKv, sKv, KVP_L, sKvMy, sKvMy, KVP_L))
            if self.stop == 'x2_%d' % l:
                break
        P.add([I('s_cmp_lg_u32 s2, 0\ns_cbranch_scc1 L_fin\ns_cmp_lg_u32 s%d, 0\ns_cbranch_scc1 L_fin' % sW, kind='block')])
        P('s_mov_b64 exec, 1\nbuffer_store_dword v%d, off, %s, 0 sc1\ns_mov_b64 exec, -1' % (vNonce, self.srd(SRD_WS)))
        if self.probe is not None:
            P.add(self.stamp('end'))
            P.add([I('s_waitcnt lgkmcnt(0)\ns_sub_u32 s94, s94, s96\ns_lshl_b32 s94, s94, 2\ns_add_u32 s94, s94, 10000\nL_pr:\ns_memrealtime s[98:99]\ns_waitcnt lgkmcnt(0)\n'
                     's_sub_u32 s98, s98, s96\ns_cmp_lt_u32 s98, s94\ns_cbranch_scc1 L_pr', kind='block')])
        P.label('L_fin')
        if self.stamps:
            P('s_lshl_b32 s%d, s2, 2\ns_add_u32 s%d, s%d, s%d\ns_lshl_b32 s%d, s%d, 8\ns_add_u32 s%d, s%d, %d' % (sT0, sT0, sT0, sW, sT0, sT0, sT0, sT0, WS_STAMP))
            P.add(self.stamp('end'))
            P('s_memrealtime s[%d:%d]\ns_waitcnt lgkmcnt(0)\nv_writelane_b32 v%d, s%d, 63' % (sStamp, sStamp + 1, vStamp, sStamp))
            P('v_writelane_b32 v%d, s%d, 61' % (vStamp, sSpin))
            P('v_lshlrev_b32 v%d, 2, v0\nbuffer_store_dword v%d, v%d, %s, s%d offen' % (vT, vStamp, vT, self.srd(SRD_WS), sT0))
        P.label('L_end')
        P('s_endpgm')
        body, L = finalize(P.L)
        self.final = L
        ool = '\n'.join('\n'.join(('    ' + t if not t.endswith(':') else t) for t in b.split('\n') if t.strip()) for b in self.ool)
        head = open('cdna_kernels/%s.s.ref' % KNAME[:-7]).read().split('\n')
        hdr = [h for h in head if h.startswith(';') and '@launch' not in h]
        txt = '\n'.join(hdr) + '\n; @launch grid=(256,1,1) block=(256,1,1) lds=%d\n' % LDS_BYTES
        txt += '.amdgcn_target "amdgcn-amd-amdhsa--gfx950"\n.text\n.globl %s\n.p2align 8\n.type %s,@function\n%s:\n' % (KNAME, KNAME, KNAME)
        txt += body + ool + '\nL_code_end:\n'
        txt += '''.section .rodata,"a"
.p2align 6
.amdhsa_kernel %s
  .amdhsa_next_free_vgpr 512
  .amdhsa_next_free_sgpr 102
  .amdhsa_accum_offset 256
  .amdhsa_group_segment_fixed_size 0
  .amdhsa_kernarg_size 88
  .amdhsa_user_sgpr_count 2
  .amdhsa_user_sgpr_kernarg_segment_ptr 1
  .amdhsa_system_sgpr_workgroup_id_x 1
.end_amdhsa_kernel
''' % KNAME
        return txt


if __name__ == '__main__':
    import argparse
    ap = argparse.ArgumentParser()
    ap.add_argument('-o', default='k.s')
    ap.add_argument('--stop', default=None)
    ap.add_argument('--stamps', action='store_true')
    ap.add_argument('opts', nargs='*')
    A = ap.parse_args()
    opt = {k: (x if k in ('probe', 'light') else int(x)) for k, x in (t.split('=') for t in A.opts)}
    g = Gen(stop=A.stop, stamps=A.stamps, **opt)
    open(A.o, 'w').write(g.build())
    if A.stamps:
        open(A.o + '.stamps', 'w').write('\n'.join(g.stamp_names))
    n = {}
    for x in g.final:
        n[x.kind] = n.get(x.kind, 0) + 1
    nops = sum(x.states for x in g.final if x.op == 's_nop')
    print('instructions', n, 'nop states', nops)
```

```python
import sys, struct
from asmgen import *

KNAME = 'interleave_layers__linear_attn_block__mixer_channel_mlp__prompt_kernel'


def f32(x):
    return '0x%08x' % struct.unpack('<I', struct.pack('<f', x))[0]


LOG2E = 1.4426950408889634
LN2 = 0.6931471805599453
MF = 'v_mfma_f32_32x32x16_bf16'

WS_XCC = 0x8000
WS_STAMP = 0x10000
WS_KVP = 0x200000
KVP_CH = 9216
KVP_L = 0xA0000
WS_CL = 0x400000
LOFF = 0xD9000
O_OFF, X1_OFF, H_OFF, XIN_OFF, XST_OFF, FL_OFF = 0, 0x20000, 0x40000, 0xB0000, 0xD0000, 0xD8000
FO, FX1, FXIN, FH = FL_OFF, FL_OFF + 512, FL_OFF + 1024, FL_OFF + 1536

L_WQ = 0
L_Q = 57344
L_XB = 28672
L_EX = 86016
L_XS = 86016
L_WO = 114688
L_KVS = 143616
L_KVB = L_KVS + 16384
L_CS = L_KVB + 2048
L_B2 = L_CS + 768
LDS_BYTES = 163840
assert L_B2 + 512 <= LDS_BYTES

SRD_WQ, SRD_WO, SRD_W1, SRD_W2, SRD_X, SRD_OUT, SRD_B1, SRD_B2, SRD_CL, SRD_WS = range(4, 44, 4)
sC, sM, sW, sNonce, sSlow, sX, sSpin = 44, 45, 46, 47, 48, 49, 50
sT0, sT1, sT2, sT3, sT4, sT5 = 51, 52, 53, 54, 55, 56
sLn2, sXcc, sWi = 57, 58, 59
sN28, sHalf = 60, 62
sZm = 64
sXin, sD1 = 66, 67
sKA = 68
sEb, sLb, sC0, sC1, sHs, sFe = 68, 69, 70, 71, 72, 73
sBlk, sOst, sFo, sFoMy, sKv, sKvMy, sHE, sHL, sPE, sPL = 74, 75, 76, 77, 78, 79, 80, 81, 82, 83
sHst = 84
sRot = 85
sQ0, sQ1 = 86, 87
sFin, sRes = 28, 34
sTag = 22
sPm = 88
sStamp = 90
sPC = 92

vLane, vL16, vDummy, vTr, vNonce, vMean, vRl, vW1X, _w1x1, vPoll, vPA = range(0, 11)
vT = 11
vStamp = 15
vPoll2, vPoll3 = 15, 5
W2A = 0
W1A = 224
W1V = 176


def w1reg(k):
    return a(W1A + 4 * k, 4) if k < 8 else v(W1V + 4 * (k - 8), 4)


def w1half(k, hh):
    return a(W1A + 4 * k + 2 * hh, 2) if k < 8 else v(W1V + 4 * (k - 8) + 2 * hh, 2)


def flat(LL):
    return [x for L in LL for x in L]


def mfma(D, A, B, first=False):
    return mk('%s %s, %s, %s, %s' % (MF, v(D, 16), A, B, '0' if first else v(D, 16)))


class Gen:
    def __init__(self, stop=None, stamps=False, **opt):
        self.P = Prog()
        self.ool = []
        self.stop = stop
        self.stamps = stamps
        self.nstamp = 0
        self.stamp_names = []
        self.probe = opt.pop('probe', None)
        self.light = opt.pop('light', None)
        self.fine = bool(self.light or self.probe)
        if self.light is not None:
            self.light = self.light.split('+')
            assert len(self.light) <= 4
        self.seen = {}
        self.o = dict(kvdelay=10, poll2=0, psl=0, pdo=5, pdx=2, p1=1, pdi=0, s1pair=1, sta=13, stb=33, stc=48, isl=8, isl2=8, pollE=16, n3=4, st0=15, flagpos=8, gend=26, pollL=20, lateL=32, flag3=12, xbar=13, ntail=8, lead=16, look=6, pref=0, touch=1, codepf=1, rot=1, stnt=0, idlewq=0, reuse=1, npre=14, wqlate=84, pf0=1, w1q=4, nxb1=12, pfslot=50, w2fill=5, rest0=0, nsh=17, sh0=48, shgap=6, f3u=23, peu=22, alias=1, flat=24, pf2=90, htk=0, wb=0, wbblk=3, wbsl=100, wbslot=36, outf=0, outt=0, idlew2=10, woslot=41, tslot=46, latespan=14, strot=1, w1b2=70, look2=10, l1touch=0, xsc1=1, storder=0)
        self.o.update(opt)

    def srd(self, r):
        return s(r, 4)

    def stamp(self, name):
        if self.probe is not None:
            self.seen[name] = self.seen.get(name, 0) + 1
            if self.probe == '%s#%d' % (name, self.seen[name]):
                return [I('s_memrealtime s[94:95]', kind='block', states=1)]
            return []
        if not self.stamps:
            return []
        if self.light is not None:
            self.seen[name] = self.seen.get(name, 0) + 1
            key = '%s#%d' % (name, self.seen[name])
            if name == 'end':
                self.stamp_names.append('end')
                t = ['s_memtime s[88:89]', 's_waitcnt lgkmcnt(0) vmcnt(0)', 'v_writelane_b32 v%d, s98, 62' % vStamp]
                for i, r in enumerate([100] + [90 + 2 * j for j in range(len(self.stamp_names) - 2)] + [88]):
                    t.append('v_writelane_b32 v%d, s%d, %d' % (vStamp, r, i))
                return [I('\n'.join(t), kind='block', drain_lgkm=True)]
            if name != 'start' and key not in self.light:
                return []
            r = 100 if name == 'start' else 90 + 2 * (len(self.stamp_names) - 1)
            self.stamp_names.append(key if name != 'start' else name)
            return [I('s_memtime s[%d:%d]' % (r, r + 1), kind='block')]
        i = self.nstamp
        self.nstamp += 1
        self.stamp_names.append(name)
        t = 's_memtime s[%d:%d]\ns_waitcnt lgkmcnt(0)\nv_writelane_b32 v%d, s%d, %d' % (sStamp, sStamp + 1, vStamp, sStamp, i)
        return [I(t, kind='block', dst=[], src=[], drain_lgkm=True, states=3)]

    def stores(self, lines):
        insts = mk('\n'.join(lines))
        src = [r for x in insts for r in x.src]
        wide = [r for x in insts for r in x.wide]
        ls, lb = self.P.newlabel('Lslow'), self.P.newlabel('Lback')
        txt = 's_cmp_lg_u32 s%d, 0\ns_cbranch_scc1 %s\n%s\n%s:' % (sSlow, ls, '\n'.join(lines), lb)
        self.ool.append('%s:\n%s\ns_branch %s' % (ls, '\n'.join(l + ' sc1' for l in lines), lb))
        return [I(txt, kind='block', src=src, nvm=len(lines), wide=wide, states=1, cost=8 + 4 * len(lines))]

    def flag(self, toks, soff, off=0):
        st = self.stores(['buffer_store_dword v%d, off, %s, s%d offset:%d' % (vNonce, self.srd(SRD_CL), soff, off)])[0]
        st.text = 's_mov_b64 exec, 1\n' + st.text + '\ns_mov_b64 exec, -1'
        st.cost += 8
        return [wait_tok(*toks), st]

    def poll_issue(self, soff, delay=0):
        return (mk('s_sleep %d' % delay) if delay else []) + mk('buffer_load_dword v%d, v%d, %s, s%d offen sc1' % (vPoll, vPA, self.srd(SRD_CL), soff))

    def poll_check(self, soff, tag=False):
        ls, lb = self.P.newlabel('Lspin'), self.P.newlabel('Lgot')

        def cmp(r):
            if tag:
                return 'v_lshrrev_b32 v%d, 16, v%d\nv_cmp_ne_u32 vcc, s%d, v%d' % (r, r, sTag, r)
            return 'v_cmp_ne_u32 vcc, s%d, v%d' % (sNonce, r)
        ld = lambda r: 'buffer_load_dword v%d, v%d, %s, s%d offen sc1' % (r, vPA, self.srd(SRD_CL), soff)
        if self.o['poll2']:
            l1 = self.P.newlabel('Lsp')
            t = [ls + ':', ld(vPoll2), 's_sleep 2', l1 + ':', ld(vPoll3), 's_waitcnt vmcnt(1)', cmp(vPoll2), 's_cbranch_vccz %s' % lb,
                 ld(vPoll2), 's_add_u32 s%d, s%d, 1' % (sSpin, sSpin), 's_cmp_gt_u32 s%d, 0x40000' % sSpin, 's_cbranch_scc1 L_end',
                 's_waitcnt vmcnt(1)', cmp(vPoll3), 's_cbranch_vccnz %s' % l1, 's_branch %s' % lb]
        else:
            t = [ls + ':'] + (['s_sleep %d' % self.o['psl']] if self.o['psl'] else []) + [ld(vPoll), 's_add_u32 s%d, s%d, 1' % (sSpin, sSpin), 's_cmp_gt_u32 s%d, 0x40000' % sSpin, 's_cbranch_scc1 L_end',
                 's_waitcnt vmcnt(0)', cmp(vPoll), 's_cbranch_vccnz %s' % ls, 's_branch %s' % lb]
        self.ool.append('\n'.join(t))
        return [I(cmp(vPoll) + '\ns_cbranch_vccnz %s\n%s:' % (ls, lb), kind='block', src=[('v', vPoll)], dst=[('x', 'vcc'), ('v', vPoll)], states=2, cost=8)]

    def pa(self, n, blocks=False, reg=vPA):
        L = 'v_and_b32 v%d, %d, v0\n' % (reg, 15 if n <= 16 else 31)
        if n not in (16, 32):
            L += 'v_min_u32 v%d, %d, v%d\n' % (reg, n - 1, reg)
        L += 'v_lshlrev_b32 v%d, 2, v%d\n' % (reg, reg)
        if blocks:
            L += 'v_lshrrev_b32 v%d, 4, v0\nv_lshl_add_u32 v%d, v%d, 7, v%d' % (vT + 3, reg, vT + 3, reg)
        return mk(L)

    def trbase(self, dst, RS, kh, add=0, xor16=None):
        t = vT
        L = ['v_lshrrev_b32 v%d, 5, v%d' % (dst, vLane),
             'v_mul_u32_u24 v%d, %d, v%d' % (dst, kh, dst),
             'v_bfe_u32 v%d, v%d, 2, 2' % (t, vLane),
             'v_add_u32 v%d, v%d, v%d' % (dst, dst, t),
             'v_mul_u32_u24 v%d, %d, v%d' % (dst, RS, dst),
             'v_bfe_u32 v%d, v%d, 4, 1' % (t, vLane)]
        if xor16 is not None:
            L.append('v_xor_b32 v%d, s%d, v%d' % (t, xor16, t))
        L += ['v_lshl_add_u32 v%d, v%d, 5, v%d' % (dst, t, dst),
              'v_and_b32 v%d, 3, v%d' % (t, vLane),
              'v_lshl_add_u32 v%d, v%d, 3, v%d' % (dst, t, dst)]
        if add:
            L.append('v_add_u32 v%d, %d, v%d' % (dst, add, dst))
        return mk('\n'.join(L))

    def frag_loads(self, dsts, srd, sbase, const0, stride=1024, flags='', st=sT0):
        out = []
        cur = None
        for i, d in enumerate(dsts):
            off = const0 + i * stride
            grp = []
            if cur is None or not (0 <= off - cur <= 4095):
                cur = off
                grp += mk('s_add_u32 s%d, s%d, %d' % (st, sbase, off))
            grp += mk('buffer_load_dwordx4 %s, v%d, %s, s%d offen offset:%d %s' % (d, vL16, self.srd(srd), st, off - cur, flags))
            out.append(grp)
        return out

    def stats_finish(self, acc, double_ln):
        t1, t2 = vT + 1, vT + 2
        L = ['v_mov_b32 v%d, v%d' % (t1, acc),
             'v_mov_b32 v%d, v%d' % (vMean, acc),
             'v_permlane32_swap_b32 v%d, v%d' % (vMean, t1),
             'v_mul_f32 v%d, %s, v%d' % (vMean, f32(1.0 / 448), vMean),
             'v_mul_f32 v%d, %s, v%d' % (t1, f32(1.0 / 448), t1),
             'v_fma_f32 v%d, -v%d, v%d, v%d' % (t1, vMean, vMean, t1),
             'v_max_f32 v%d, 0, v%d' % (t1, t1),
             'v_add_f32 v%d, %s, v%d' % (t2, f32(1e-5), t1),
             'v_rsq_f32 v%d, v%d' % (vRl, t2)]
        if double_ln:
            L += ['v_mul_f32 v%d, v%d, v%d' % (t2, vRl, vRl),
                  'v_fmaak_f32 v%d, v%d, v%d, %s' % (t1, t1, t2, f32(1e-5)),
                  'v_rsq_f32 v%d, v%d' % (t1, t1),
                  'v_mul_f32 v%d, v%d, v%d' % (vRl, vRl, t1)]
        else:
            L += ['v_mul_f32 v%d, %s, v%d' % (vRl, f32(LOG2E), vRl)]
        return mk('\n'.join(L))

    def split_act(self, d0, val, t):
        return mk('\n'.join([
            'v_cvt_pk_bf16_f32 v%d, v%d, v%d' % (d0 + 1, val, val),
            'v_and_b32 v%d, 0xffff0000, v%d' % (t, d0 + 1),
            'v_sub_f32 v%d, v%d, v%d' % (t, val, t),
            'v_cvt_pk_bf16_f32 v%d, v%d, v%d' % (d0, val, t),
            'v_and_b32 v%d, 0xffff, v%d' % (d0 + 1, d0 + 1),
            'v_cndmask_b32 v%d, v%d, 0, s[%d:%d]' % (d0 + 1, d0 + 1, sHalf, sHalf + 1)]))

    def split_w(self, d0, val, t):
        return mk('\n'.join([
            'v_cvt_pk_bf16_f32 v%d, v%d, v%d' % (d0, val, val),
            'v_and_b32 v%d, 0xffff0000, v%d' % (t, d0),
            'v_sub_f32 v%d, v%d, v%d' % (t, val, t),
            'v_cvt_pk_bf16_f32 v%d, v%d, 0' % (d0 + 1, t)]))

    def phi8(self, r0, R, T, eps):
        L = ['v_pk_mul_f32 %s, %s, %s' % (v(r0 + i, 2), v(r0 + i, 2), R(i)) for i in range(0, 8, 2)]
        for i in range(8):
            L += ['v_exp_f32 v%d, v%d clamp' % (T + i, r0 + i), 'v_max_f32 v%d, 0, v%d' % (r0 + i, r0 + i)]
        L += ['v_pk_fma_f32 %s, %s, s[%d:%d], %s op_sel:[0,1,0] op_sel_hi:[1,1,1]' % (v(r0 + i, 2), v(r0 + i, 2), sLn2 - 1, sLn2, v(T + i, 2)) for i in range(0, 8, 2)]
        L += ['v_pk_add_f32 %s, %s, %s op_sel_hi:[1,0]' % (v(r0 + i, 2), v(r0 + i, 2), v(eps, 2)) for i in range(0, 8, 2)]
        return mk('\n'.join(L))

    def pack(self, dst, src, n):
        return mk('\n'.join('v_cvt_pk_bf16_f32 v%d, v%d, v%d' % (dst + i, src + 2 * i, src + 2 * i + 1) for i in range(n)))

    def unpack(self, dst, src, n):
        L = []
        for i in reversed(range(n)):
            L.append('v_and_b32 v%d, 0xffff0000, v%d' % (dst + 2 * i + 1, src + i))
            L.append('v_lshlrev_b32 v%d, 16, v%d' % (dst + 2 * i, src + i))
        return mk('\n'.join(L))

    def dots(self, regs, acc, ones, first):
        L = []
        for i, r in enumerate(regs):
            z = first and i == 0
            L.append('v_dot2_f32_bf16 v%d, v%d, v%d, %s' % (acc, r, ones, '0' if z else 'v%d' % acc))
            L.append('v_dot2_f32_bf16 v%d, v%d, v%d, %s' % (acc + 1, r, r, '0' if z else 'v%d' % (acc + 1)))
        return mk('\n'.join(L))

    def dots_end(self, acc):
        return mk('v_permlane32_swap_b32 v%d, v%d\nv_add_f32 v%d, v%d, v%d' % (acc, acc + 1, acc, acc, acc + 1))

    def row_stats(self, src, n, acc, ones):
        return mk('v_mov_b32 v%d, 0x3f803f80' % ones) + self.dots(range(src, src + n), acc, ones, True) + self.dots_end(acc)

    def kv_lane_addr(self, d, t, u, gather):
        L = []
        if gather:
            L += ['v_and_b32 v%d, 31, v0' % t, 'v_lshrrev_b32 v%d, 5, v0' % d]
        else:
            L += ['v_lshrrev_b32 v%d, 5, v0' % t, 'v_and_b32 v%d, 15, v0' % u, 'v_lshl_add_u32 v%d, v%d, 1, v%d' % (t, u, t), 'v_bfe_u32 v%d, v0, 4, 1' % d]
        L += ['v_lshrrev_b32 v%d, 3, v%d' % (u, t), 'v_sub_u32 v%d, v%d, v%d' % (u, t, u)]
        if not gather:
            L += ['v_and_b32 v%d, 7, v%d' % (t, t), 'v_cmp_eq_u32 vcc, 7, v%d' % t, 'v_cndmask_b32 v%d, v%d, 31, vcc' % (u, u)]
        L += ['v_lshl_add_u32 v%d, v%d, 5, v%d' % (d, d, u)]
        sh, qs, base = (4, 10, L_KVS) if gather else (5, 3, L_KVB)
        L += ['s_lshl_b32 s%d, s%d, %d' % (sT2, sW, qs), 'v_lshlrev_b32 v%d, %d, v%d' % (d, sh, d), 'v_add_u32 v%d, s%d, v%d' % (d, sT2, d)]
        L += ['v_and_b32 v%d, 1, v%d' % (t, u), 'v_lshlrev_b32 v%d, %d, v%d' % (t, 5 + sh, t), 'v_lshrrev_b32 v%d, 1, v%d' % (u, u)]
        L += ['v_cmp_gt_u32 vcc, 4, v%d' % u]
        L += ['v_lshl_add_u32 v%d, v%d, %d, v%d' % (t, u, qs, t), 'v_add_u32 v%d, %d, v%d' % (t, 28 << sh, t)]
        L += ['s_and_b64 vcc, vcc, s[%d:%d]' % ((sZm, sZm + 1) if gather else (sPm, sPm + 1)), 'v_cndmask_b32 v%d, v%d, v%d, vcc' % (d, d, t),
              'v_add_u32 v%d, %d, v%d' % (d, base, d)]
        return mk('\n'.join(L))

    def wq_dma(self, va, q):
        if q:
            ad = 'v_lshrrev_b32 v%d, 2, v0\nv_mul_u32_u24 v%d, 2688, v%d\nv_and_b32 v%d, 3, v0\nv_lshl_add_u32 v%d, v%d, 4, v%d' % (va, va, va, vT, va, vT, va)
        else:
            ad = ('v_lshrrev_b32 v%d, 3, v0\nv_mul_u32_u24 v%d, 2688, v%d\nv_and_b32 v%d, 3, v0\nv_lshl_add_u32 v%d, v%d, 4, v%d\n'
                  'v_lshrrev_b32 v%d, 2, v0\nv_xor_b32 v%d, v%d, v0\nv_bfe_u32 v%d, v%d, 2, 1\nv_mul_u32_u24 v%d, 896, v%d\nv_add3_u32 v%d, v%d, v%d, s%d'
                  % (va, va, va, vT, va, vT, va, vT, vT, vT, vT, vT, vT, vT, va, va, vT, sQ0))
        rows = 16 if q else 8
        pre = mk('s_mul_i32 s%d, s%d, 56\ns_add_u32 s%d, s%d, 896' % (sQ1, sM, sQ0, sQ1)) + mk(ad)
        if q:
            pre += mk('v_add_u32 v%d, s%d, v%d' % (va, sQ1, va))
        pre += mk('s_mul_i32 s%d, s%d, %d\ns_lshl_b32 s%d, s%d, 10' % (sRot, sW, rows * 2688, sQ1, sW))
        out = []
        for t in range(7 if q else 14):
            out.append(mk('s_add_u32 m0, s%d, %d\ns_add_u32 s%d, s%d, %d\nbuffer_load_dwordx4 v%d, %s, s%d offen lds'
                          % (sQ1, (L_Q if q else L_WQ) + 4096 * t, sQ0, sRot, 4 * t * rows * 2688, va, self.srd(SRD_WQ), sQ0)))
        return pre, out

    def touch(self, items, va):
        if not self.o['touch']:
            return []
        txt = ['v_lshlrev_b32 v%d, 7, v0' % va]
        cur = None
        n = 0
        for nl, srd, sg, c in items:
            if nl != cur:
                txt.append('s_mov_b64 exec, 0x%x' % ((1 << nl) - 1))
                cur = nl
            txt.append('s_add_u32 s%d, s%d, %d' % (sT2, sg, c) if sg is not None else 's_mov_b32 s%d, %d' % (sT2, c))
            txt.append('buffer_load_dword v%d, v%d, %s, s%d offen sc1' % (vDummy, va, self.srd(srd), sT2))
            n += 1
        txt.append('s_mov_b64 exec, -1')
        return [I('\n'.join(txt), kind='block', nvm=n, dst=[('v', va)], src=[('v', 0)], states=1, cost=12 * n)]

    def touch_attn(self, lo, va):
        pre = mk('s_lshr_b32 s%d, s%d, 2\ns_lshl_b32 s%d, s%d, 10\ns_add_u32 s%d, s%d, s%d\ns_mul_i32 s%d, s%d, 896' % (sT1, sM, sT1, sT1, sT1, sT1, sBlk, sT0, sW))
        return pre + self.touch([(16, SRD_CL, sOst, lo), (16, SRD_CL, sOst, lo + X1_OFF), (8, SRD_CL, sT1, lo + X1_OFF + 28672),
                                 (7, SRD_CL, sT0, lo + FL_OFF)], va)

    def prefetch(self, va, items):
        txt, n = ['v_lshlrev_b32 v%d, 7, v0' % va], 0
        for srd, per in items:
            for j in range(0, per, 64):
                nl = min(64, per - j)
                txt += ['s_mul_i32 s%d, s%d, %d' % (sT2, sWi, per * 128), 's_add_u32 s%d, s%d, %d' % (sT2, sT2, j * 128),
                        's_mov_b32 exec_lo, 0x%x' % (((1 << nl) - 1) & 0xffffffff), 's_mov_b32 exec_hi, 0x%x' % (((1 << nl) - 1) >> 32),
                        'buffer_load_dword v%d, v%d, %s, s%d offen' % (vDummy, va, self.srd(srd), sT2)]
                n += 1
        return [I('\n'.join(txt + ['s_mov_b64 exec, -1']), kind='block', nvm=n, src=[('v', 0)], dst=[('v', va)], cost=20 * n)]

    def idle_work(self):
        va = vT
        l = self.P.newlabel('Lnowarm')
        T = ['s_cmp_lg_u32 s%d, 0' % sSlow, 's_cbranch_scc1 %s' % l,
             'v_lshlrev_b32 v%d, 7, v0' % va,
             's_and_b32 s%d, s%d, 1' % (sT0, sM), 's_lshl_b32 s%d, s%d, 2' % (sT0, sT0), 's_add_u32 s%d, s%d, s%d' % (sT0, sT0, sW)]
        ld = lambda srd, fl: 'buffer_load_dword v%d, v%d, %s, s%d offen %s' % (vDummy, va, self.srd(srd), sT2, fl)
        nw2 = self.o['idlew2']
        if nw2:
            T += ['s_lshr_b32 s%d, s%d, 3' % (sT1, sC), 's_lshl_b32 s%d, s%d, 3' % (sT1, sT1), 's_add_u32 s%d, s%d, s%d' % (sT1, sT1, sT0),
                  's_lshl_b32 s%d, s%d, 13' % (sT2, sT1)]
            for i in range(nw2):
                T += [ld(SRD_W2, ''), 's_add_u32 s%d, s%d, 131072' % (sT2, sT2)]
        for i in range(2 * self.o['htk'] - (self.o['htk'] > 1), 7):
            T += ['s_lshl_b32 s%d, s%d, 13' % (sT2, sT0), 's_add_u32 s%d, s%d, %d' % (sT2, sT2, H_OFF + i * 65536), ld(SRD_CL, 'sc1')]
        if not self.o['alias']:
            for i in range(2):
                T += ['s_lshl_b32 s%d, s%d, 13' % (sT2, sT0), 's_add_u32 s%d, s%d, %d' % (sT2, sT2, XIN_OFF + i * 65536), ld(SRD_CL, 'sc1')]
        T += ['s_lshl_b32 s%d, s%d, 12' % (sT2, sT0), 's_add_u32 s%d, s%d, %d' % (sT2, sT2, XST_OFF), 's_mov_b32 exec_hi, 0', ld(SRD_CL, 'sc1'), 's_mov_b64 exec, -1']
        T += [l + ':']
        return '\n'.join(T)

    def prologue(self):
        P = self.P
        o = self.o
        P('s_cmp_ge_u32 s2, 256\ns_cbranch_scc1 L_end')
        if self.probe is not None:
            P.add([I('s_memrealtime s[96:97]\ns_memrealtime s[94:95]', kind='block', states=1)])
        P('s_load_dwordx16 s[%d:%d], s[0:1], 0' % (sKA, sKA + 15))
        P('s_load_dwordx4 s[%d:%d], s[0:1], 64' % (sKA + 16, sKA + 19))
        P('s_load_dwordx2 s[%d:%d], s[0:1], 80' % (sKA + 20, sKA + 21))
        P('v_lshrrev_b32 v%d, 6, v0\nv_and_b32 v0, 63, v0\nv_readfirstlane_b32 s%d, v%d' % (vT, sW, vT))
        P('s_lshr_b32 s%d, s2, 3\ns_lshl_b32 s%d, s%d, 2\ns_add_u32 s%d, s%d, s%d' % (sM, sWi, sM, sWi, sWi, sW))
        if o['codepf']:
            P.add([I('s_getpc_b64 s[%d:%d]\nL_pc:' % (sPC, sPC + 1), kind='block', dst=[], states=1)])
            P('s_lshl_b32 s%d, s%d, 9\nv_lshlrev_b32 v%d, 7, v0\nv_add_u32 v%d, s%d, v%d' % (sT0, sWi, vT, vT, sT0, vT))
            P.add([I('v_min_u32 v%d, L_code_end-L_pc-4, v%d\ns_mov_b64 exec, 15\nglobal_load_dword v%d, v%d, s[%d:%d]\ns_mov_b64 exec, -1'
                     % (vT, vT, vDummy, vT, sPC, sPC + 1), kind='block', dst=[('v', vT)], src=[('v', vT)], nvm=1)])
        P('s_and_b32 s%d, s2, 7\ns_lshr_b32 s%d, s%d, 4\ns_lshl_b32 s%d, s%d, 3\ns_add_u32 s%d, s%d, s%d\ns_and_b32 s%d, s%d, 15'
          % (sC, sT0, sM, sT0, sT0, sC, sC, sT0, sM, sM))
        P('v_lshlrev_b32 v%d, 4, v0' % vL16)
        if self.stamps:
            P('v_mov_b32 v%d, 0' % vStamp)
            P.add(self.stamp('start'))
            if self.light is not None:
                P('s_memrealtime s[98:99]\ns_waitcnt lgkmcnt(0)')
            else:
                assert not o['poll2']
                P('s_memrealtime s[%d:%d]\ns_waitcnt lgkmcnt(0)\nv_writelane_b32 v%d, s%d, 62' % (sStamp, sStamp + 1, vStamp, sStamp))
        P('s_lshl_b32 s%d, s%d, 2\ns_add_u32 s%d, s%d, s%d\ns_mul_i32 s%d, s%d, %d' % (sX, sC, sX, sX, sW, sX, sX, 32 * 896))
        vq, vxb, vxh, vxa, vrd = 160, 163, 164, 165, 167
        P('v_lshrrev_b32 v%d, 5, v0\nv_and_b32 v%d, 31, v0\nv_xor_b32 v%d, v%d, v%d\nv_lshlrev_b32 v%d, 4, v%d\nv_mul_u32_u24 v%d, 896, v%d'
          % (vxh, vT, vxb, vT, vxh, vxb, vxb, vxh, vxh))
        ka = sKA

        def mksrd(r, p, size):
            P('s_mov_b32 s%d, s%d\ns_mov_b32 s%d, s%d\ns_mov_b32 s%d, %d\ns_mov_b32 s%d, 0x20000' % (r, p, r + 1, p + 1, r + 2, size, r + 3))
        P('s_lshl_b32 s%d, s%d, 14\ns_add_u32 s%d, s%d, %d' % (sT5, sW, sT5, sT5, L_XS))
        mksrd(SRD_X, ka + 0, 2048 * 896)

        def xdma(half):
            out = []
            for i in range(16):
                if half:
                    g = mk('s_mov_b32 s%d, %d\nv_xad_u32 v%d, v%d, s%d, v%d' % (sT0, ((2 * i) & 15) << 4, vxa + (i & 1), vxb, sT0, vxh))
                    g += mk('s_add_u32 s%d, s%d, %d\ns_add_u32 m0, s%d, %d' % (sT1, sX, 2 * i * 896 + 512, sT5, 1024 * i))
                    out.append(g + mk('buffer_load_dwordx4 v%d, %s, s%d offen lds' % (vxa + (i & 1), self.srd(SRD_X), sT1)))
                    continue
                g = mk('s_add_u32 s%d, s%d, %d\ns_and_b32 s%d, s%d, 15' % (sT4, sM, i, sT4, sT4) if o['rot'] else 's_mov_b32 s%d, %d' % (sT4, i))
                g += mk('s_lshl_b32 s%d, s%d, 5\ns_and_b32 s%d, s%d, 0xf0\nv_xad_u32 v%d, v%d, s%d, v%d' % (sT0, sT4, sT0, sT0, vxa + (i & 1), vxb, sT0, vxh))
                g += mk('s_mul_i32 s%d, s%d, 1792\ns_add_u32 s%d, s%d, s%d\ns_lshl_b32 s%d, s%d, 10\ns_add_u32 m0, s%d, s%d' % (sT1, sT4, sT1, sT1, sX, sT4, sT4, sT4, sT5))
                g += mk('buffer_load_dwordx4 v%d, %s, s%d offen lds' % (vxa + (i & 1), self.srd(SRD_X), sT1))
                out.append(g)
            return out
        mksrd(SRD_WQ, ka + 2, 448 * 2688)
        if o['pf0']:
            P('v_lshlrev_b32 v%d, 7, v0\ns_lshl_b32 s%d, s%d, 2\ns_add_u32 s%d, s%d, s%d\ns_mul_i32 s%d, s%d, %d\ns_mul_i32 s%d, s%d, %d\ns_add_u32 s%d, s%d, s%d\ns_mul_i32 s%d, s%d, 49'
              % (vxa, sT0, sM, sT0, sT0, sW, sT0, sT0, 14 * 128, sT1, sC, 128 * 896, sT0, sT0, sT1, sT1, sWi))
            if o['pf0'] == 1:
                P('v_add_u32 v%d, s%d, v0\nv_mul_u32_u24 v%d, 37450, v%d\nv_lshrrev_b32 v%d, 19, v%d\nv_mul_u32_u24 v%d, 896, v%d\nv_lshl_add_u32 v%d, v%d, 7, v%d'
                  % (vT, sT1, vxa + 1, vT, vxa + 1, vxa + 1, vxa + 1, vxa + 1, vxa + 1, vT, vxa + 1))
                P.add([I('s_mov_b64 exec, 0x3fff\nbuffer_load_dword v%d, v%d, %s, s%d offen\ns_mov_b32 exec_lo, -1\ns_mov_b32 exec_hi, 0x1ffff\n'
                         'buffer_load_dword v%d, v%d, %s, 0 offen offset:896\ns_mov_b64 exec, -1'
                         % (vDummy, vxa, self.srd(SRD_X), sT0, vDummy, vxa + 1, self.srd(SRD_WQ)), kind='block', nvm=2, src=[('v', vxa), ('v', vxa + 1)])])
            else:
                P.add([I('s_mov_b64 exec, 0x3fff\nbuffer_load_dword v%d, v%d, %s, s%d offen\ns_mov_b64 exec, -1' % (vDummy, vxa, self.srd(SRD_X), sT0),
                         kind='block', nvm=1, src=[('v', vxa)])])
                P.add(self.prefetch(vxa, [(SRD_WQ, 74)]))
        body = [x.text for x in xdma(0)[0]]
        body[0] = 's_add_u32 s%d, s%d, s%d' % (sT4, sM, sT2) if o['rot'] else 's_mov_b32 s%d, s%d' % (sT4, sT2)
        loop = I('\n'.join(['s_mov_b32 s%d, 0' % sT2, 'L_xa:'] + body[:-1] + ['s_add_u32 s%d, s%d, 1' % (sT2, sT2), 's_cmp_lt_u32 s%d, 16' % sT2, body[-1],
                                                                            's_cbranch_scc1 L_xa']), kind='block', nvm=16, src=[('v', vxb), ('v', vxh)] + regs_of(s(SRD_X, 4)), dst=[('v', vxa)])
        tA = tok(loop)
        P.add([loop])
        P('s_load_dword s%d, s[%d:%d], 0' % (sNonce, ka + 20, ka + 21))
        mksrd(SRD_OUT, ka + 16, 2048 * 896)
        pre, wq = self.wq_dma(vq, False)
        self.tok_wq1, self.tok_wq = tok(wq[7][-1]), tok(wq[-1][-1])
        P.add(pre + flat(wq[:8]))
        mksrd(SRD_WO, ka + 4, 448 * 896)
        mksrd(SRD_W1, ka + 8, 448 * 3584)
        mksrd(SRD_B1, ka + 10, 3584)
        mksrd(SRD_W2, ka + 12, 1792 * 896)
        mksrd(SRD_B2, ka + 14, 896)
        mksrd(SRD_WS, ka + 20, WS_CL)
        P('s_lshl_b32 s%d, s%d, 21\ns_add_u32 s%d, s%d, %d' % (sT0, sC, sT0, sT0, WS_CL))
        P('s_add_u32 s%d, s%d, s%d\ns_addc_u32 s%d, s%d, 0\ns_mov_b32 s%d, 0x200000\ns_mov_b32 s%d, 0x20000'
          % (SRD_CL, ka + 20, sT0, SRD_CL + 1, ka + 21, SRD_CL + 2, SRD_CL + 3))
        P('s_mov_b32 s%d, %s\ns_mov_b32 s%d, 0\ns_mov_b32 s%d, -1' % (sLn2, f32(LN2), sHalf, sHalf + 1))
        P('s_mov_b32 s%d, 0x10000000\ns_mov_b32 s%d, 0x10000000\ns_mov_b32 s%d, 0' % (sN28, sN28 + 1, sSpin))
        P('s_getreg_b32 s%d, hwreg(HW_REG_XCC_ID, 0, 4)' % sXcc)
        P('s_and_b32 s%d, s%d, 1\ns_sub_u32 s%d, 3, s%d' % (sEb, sM, sLb, sEb))
        P('s_cmp_eq_u32 s%d, 3\ns_cselect_b32 s%d, -1, 0\ns_mov_b32 s%d, 0' % (sW, sZm + 1, sZm))
        P('s_lshr_b32 s%d, s%d, 3' % (sD1, sC) if o['strot'] else 's_mov_b32 s%d, 0' % sD1)
        c0 = -2.0 * 0.7978845608028654 * LOG2E
        P('s_mov_b32 s%d, %s\ns_mov_b32 s%d, %s' % (sC0, f32(c0), sC1, f32(c0 * 0.044715)))
        P('s_lshr_b32 s%d, s%d, 1\ns_lshl_b32 s%d, s%d, 2\ns_and_b32 s%d, s%d, 1\ns_lshl_b32 s%d, s%d, 1\ns_add_u32 s%d, s%d, s%d\ns_lshr_b32 s%d, s%d, 1\ns_add_u32 s%d, s%d, s%d'
          % (sFe, sM, sFe, sFe, sT0, sW, sT0, sT0, sFe, sFe, sT0, sT0, sW, sFe, sFe, sT0))
        P('s_lshl_b32 s%d, s%d, 15\ns_lshl_b32 s%d, s%d, 11\ns_add_u32 s%d, s%d, s%d' % (sBlk, sW, sOst, sM, sOst, sOst, sBlk))
        P('s_lshl_b32 s%d, s%d, 7\ns_add_u32 s%d, s%d, %d\ns_lshl_b32 s%d, s%d, 2\ns_add_u32 s%d, s%d, s%d' % (sFo, sW, sFo, sFo, FL_OFF, sT0, sM, sFoMy, sFo, sT0))
        P('s_lshl_b32 s%d, s%d, 2\ns_add_u32 s%d, s%d, s%d\ns_mul_i32 s%d, s%d, %d\ns_add_u32 s%d, s%d, %d' % (sT1, sM, sT1, sT1, sW, sKv, sT1, KVP_CH, sKv, sKv, WS_KVP))
        P('s_lshl_b32 s%d, s%d, 9\ns_add_u32 s%d, s%d, s%d' % (sKvMy, sC, sKvMy, sKvMy, sKv))
        P('s_lshl_b32 s%d, s%d, 11\ns_add_u32 s%d, s%d, %d' % (sHst, sT1, sHst, sHst, H_OFF))
        P('s_lshl_b32 s%d, s%d, 11\ns_add_u32 s%d, s%d, %d' % (sT1, sW, sT1, sT1, H_OFF))
        P('s_mul_i32 s%d, s%d, 114688\ns_add_u32 s%d, s%d, s%d\ns_mul_i32 s%d, s%d, 114688\ns_add_u32 s%d, s%d, s%d' % (sHE, sEb, sHE, sHE, sT1, sHL, sLb, sHL, sHL, sT1))
        P('s_lshl_b32 s%d, s%d, 9\ns_add_u32 s%d, s%d, s%d\ns_add_u32 s%d, s%d, %d' % (sPE, sEb, sPE, sPE, sFo, sPE, sPE, FH - FL_OFF))
        P('s_lshl_b32 s%d, s%d, 9\ns_add_u32 s%d, s%d, s%d\ns_add_u32 s%d, s%d, %d' % (sPL, sLb, sPL, sPL, sFo, sPL, sPL, FH - FL_OFF))
        self.xreg0 = xr = [16 + 4 * i if i < 20 else 176 + 4 * (i - 20) for i in range(28)]
        P('v_and_b32 v%d, 15, v0\nv_lshrrev_b32 v%d, 5, v0\nv_xor_b32 v%d, v%d, v%d\nv_lshlrev_b32 v%d, 4, v%d\nv_and_b32 v%d, 31, v0\nv_lshl_add_u32 v%d, v%d, 9, v%d\nv_add_u32 v%d, s%d, v%d'
          % (vT, vrd, vrd, vrd, vT, vrd, vrd, vT, vrd, vT, vrd, vrd, sT5, vrd))
        xrd = lambda k: mk('v_xor_b32 v%d, %d, v%d\nds_read_b128 %s, v%d' % (vrd + 1 + (k & 1), 32 * (k & 15), vrd, v(xr[k], 4), vrd + 1 + (k & 1)))
        vrs = vrd + 3
        P('v_and_b32 v%d, 15, v0\nv_lshlrev_b32 v%d, 4, v%d\nv_lshrrev_b32 v%d, 5, v0\nv_lshl_add_u32 v%d, v%d, 3, v%d\nv_and_b32 v%d, 31, v0\nv_lshl_add_u32 v%d, v%d, 9, v%d\nv_add_u32 v%d, s%d, v%d'
          % (vrs, vrs, vrs, vT, vrs, vT, vrs, vT, vrs, vT, vrs, vrs, sT5, vrs))
        P('s_and_b32 s%d, s%d, 7\ns_lshl_b32 s%d, s%d, 6\nv_xor_b32 v%d, s%d, v%d' % (sT0, sM, sT0, sT0, vrs, sT0, vrs))

        def resrd(half):
            l = P.newlabel('Lres')
            t = ['s_cmp_%s_u32 s%d, 8' % ('lt' if half else 'ge', sM), 's_cbranch_scc1 %s' % l]
            for g in range(4):
                t += ['v_xor_b32 v%d, %d, v%d' % (vrs + 1, 16 * g, vrs), 'ds_read_b64 %s, v%d' % (a(216 + 2 * g, 2), vrs + 1)]
            return [I('\n'.join(t + [l + ':']), kind='block', src=[('v', vrs)], dst=[('v', vrs + 1)])]
        P.add(self.stamp('issued'))
        P.add([wait_tok(tA)])
        P.add(self.stamp('xA'))
        for k in range(16):
            P.add(xrd(k))
        P.add(resrd(0))
        vS, vOne = 172, 174
        P('v_mov_b32 v%d, 0x3f803f80\ns_waitcnt lgkmcnt(0)' % vOne)
        xb = xdma(1)
        self.tok_xb = tok(xb[-1][-1])
        d = self.dots([xr[k] + i for k in range(16) for i in range(4)], vS, vOne, True)
        P.add(spread(xb[:o['nxb1']], d))
        self.late_dma = xb[o['nxb1']:] + wq[8:]
        self.late_rd = [xrd(k) for k in range(16, 28)] + [resrd(1)]
        self.late_dots = self.dots([xr[k] + i for k in range(16, 28) for i in range(4)], vS, vOne, False) + self.dots_end(vS)
        P('s_add_u32 s%d, s%d, 0x01010101' % (sNonce, sNonce))
        P('v_mov_b32 v%d, s%d' % (vNonce, sNonce))
        P('s_lshl_b32 s%d, s%d, 4\ns_add_u32 s%d, s%d, s%d\ns_lshl_b32 s%d, s%d, 7\ns_add_u32 s%d, s%d, %d'
          % (sT2, sC, sT2, sT2, sM, sT2, sT2, sT2, sT2, WS_XCC))
        P('s_add_u32 s%d, s%d, s%d\nv_mov_b32 v%d, s%d\ns_mov_b64 exec, 1' % (sT3, sNonce, sXcc, vT, sT3))
        P('buffer_store_dword v%d, off, %s, s%d sc1' % (vT, self.srd(SRD_WS), sT2))
        P('s_mov_b64 exec, -1')

    def s1(self, l):
        P = self.P
        o = self.o
        AK, AV, AQ, WB, SB = 96, 112, 128, 144, 160
        RLB, XE = SB, SB + 8
        NB = 4
        vS = 172 if l == 0 else vT + 2
        P.comment('==== layer %d : S1' % l)
        kh = 8 if l == 0 else 4
        vTrV, vTrQ, vCs = vT + 3, (vT + 2 if l == 0 else vDummy), vPA
        trkv = self.trbase(vTr, 128, kh, add=L_WQ) + mk('v_bfe_u32 v%d, v0, 3, 1\nv_lshl_add_u32 v%d, v%d, 6, v%d\nv_xor_b32 v%d, 64, v%d' % (vT, vTr, vT, vTr, vTrV, vTr))
        trq = self.trbase(vTrQ, 64, kh, add=L_Q)
        fin = self.stats_finish(vS, False)
        fin += mk('s_lshl_b32 s%d, s%d, 12\ns_add_u32 s%d, s%d, %d' % (sT4, sW, sT4, sT4, L_KVS))
        bounce = mk('v_and_b32 v%d, 31, v0\nv_lshl_add_u32 v%d, v%d, 2, s%d\nds_write_b32 v%d, v%d' % (vT + 1, vT + 1, vT + 1, sT4, vT + 1, vRl))
        fin += bounce
        fin += mk('v_sub_f32 v%d, 0, v%d' % (vMean, vMean)) + self.split_act(XE, vMean, vT)
        fin += mk('v_cndmask_b32 v%d, v%d, 0, s[%d:%d]\nv_mov_b32 v%d, 0\nv_mov_b32 v%d, 0' % (XE, XE, sHalf, sHalf + 1, XE + 2, XE + 3))
        if l == 0:
            xreg = self.xreg0
            P.add(trkv)
            P.add([wait_tok(self.tok_wq1)])
            P('s_barrier')
            P.add(self.stamp('wq_ready'))
            lds = []
        else:
            xreg = [16 + 4 * (i % 20) for i in range(28)]
            P.add(self.pa(28))
            P('s_add_u32 s%d, s%d, %d' % (sT4, sFo, FXIN - FL_OFF))
            P.add(self.poll_issue(sT4, o['pdi']))
            P('s_add_u32 s%d, s%d, s%d\ns_lshl_b32 s%d, s%d, 13' % (sT5, sBlk, sXin, sT3, sW))
            P.add(trkv + trq)
            lds = self.frag_loads([v(r, 4) for r in xreg], SRD_CL, sT5, 0, flags='sc1')
        nq = 0 if l == 0 else 8
        jobs = []
        for k in range(28):
            if l == 0 and k == 16:
                jobs += [(t, kk) for kk in range(7) for t in 'KV']
            jobs += [('k', k), ('v', k)] + ([('q', k)] if k < nq else [])
        jobs += [('k', 'e'), ('v', 'e')]
        nmain = len(jobs)
        jobs += [('q', k) for k in range(nq, 28)] + ([('q', 'e')] if l else [('Q', kk) for kk in range(7)])
        vo, vb, CSA = RLB, RLB + 4, 208

        def rd(j):
            t, k = jobs[j]
            b = WB + 4 * (j % NB)
            if k == 'e':
                return mk('ds_read_b64 %s, v%d offset:%d\nv_mov_b32 v%d, 0\nv_mov_b32 v%d, 0' % (v(b, 2), vCs, 256 * 'qkv'.index(t), b + 2, b + 3))
            base = {'q': vTrQ, 'k': vTr, 'v': vTrV, 'K': vb, 'V': vb + 1, 'Q': vTr}[t]
            rs = 64 if t in 'qQ' else 128
            return mk('ds_read_b64_tr_b16 %s, v%d offset:%d\nds_read_b64_tr_b16 %s, v%d offset:%d' % (v(b, 2), base, 16 * rs * k, v(b + 2, 2), base, 16 * rs * k + (32 // kh) * rs))
        for j in range(NB):
            P.add(rd(j))
        if l == 1:
            P.add(self.poll_check(sT4))
            P.add(self.stamp('x2_seen'))
            P.add(flat(lds[:o['look']]))
            P('s_add_u32 s%d, s%d, 1\nv_mov_b32 v%d, s%d' % (sNonce, sNonce, vNonce, sNonce))
        P('v_and_b32 v%d, 31, v0\nv_lshlrev_b32 v%d, 3, v%d\nv_add_u32 v%d, %d, v%d' % (vCs, vCs, vCs, vCs, L_CS, vCs))
        slots = []
        for j, (t, k) in enumerate(jobs):
            w = v(WB + 4 * (j % NB), 4)
            if t.isupper():
                sl = mfma(CSA + 16 * (t == 'V'), v(CSA + 16 if t == 'Q' else vo, 4), w, k == 0)
            else:
                x = v(XE if k == 'e' else xreg[k], 4)
                A, B = (w, x) if t == 'q' else (x, w)
                sl = mfma({'q': AQ, 'k': AK, 'v': AV}[t], A, B, k == 0)
            if l == 0 and j == 32 - NB:
                sl += self.late_dots + [wait_tok(self.tok_wq)] + mk('s_waitcnt lgkmcnt(0)\ns_barrier') + (self.stamp('bar2') if self.fine else [])
                sl += mk('s_mul_i32 s%d, s%d, %d\nv_add_u32 v%d, s%d, v%d\nv_add_u32 v%d, s%d, v%d' % (sT0, sW, 7 * 2048, vb, sT0, vTr, vb + 1, sT0, vTrV))
            if j % 2 == 0 and j + 1 < len(jobs) and j + 1 != nmain and o['s1pair']:
                also_waits_for(sl[0], v(WB + 4 * ((j + 1) % NB), 4))
            if j + NB < len(jobs) and not (j < nmain <= j + NB):
                sl += rd(j + NB)
            slots.append(sl)
        if l == 0:
            n = len(self.late_dma)
            for i, g in enumerate(self.late_dma):
                slots[(i * o['latespan']) // n] += g
            r0 = 32 - NB - 7
            slots[r0] += [wait_tok(self.tok_xb)]
            for i, g in enumerate(self.late_rd):
                slots[r0 + i // 2] += g
            slots[29] += mk('\n'.join('v_mov_b32 v%d, 0x3f803f80' % (vo + i) for i in range(4)))
            for i in range(0, len(fin), 4):
                slots[30 + i // 4] += fin[i:i + 4]
            pre, qd = self.wq_dma(175, True)
            self.tok_q = tok(qd[-1][-1])
            for i, g in enumerate([pre] + qd):
                slots[37 + i] += g
            slots[o['tslot']] += self.prefetch(vT, [(SRD_WO, 25)]) + self.touch_attn(0, vT)
            slots[47] += mk('v_and_b32 v%d, 31, v0\nv_lshlrev_b32 v%d, 2, v%d\ns_lshl_b32 s%d, s%d, 8\nv_add_u32 v%d, %d, v%d\nv_add_u32 v%d, s%d, v%d'
                            % (vb, vb, vb, sT0, sW, vb, L_KVB, vb, vb + 1, sT0, vb))
            slots[48] += mk('\n'.join('ds_write_b32 v%d, v%d offset:%d' % (vb + 1, CSA + 16 * t, 128 * t) for t in range(2)))
            slots[50] += mk('s_waitcnt lgkmcnt(0)\ns_barrier')
            for t in range(2):
                r = RLB
                slots[50 + 5 * t] += mk('\n'.join('ds_read_b32 v%d, v%d offset:%d' % (r + ww, vb, 256 * ww + 128 * t) for ww in range(4)))
                slots[53 + 5 * t] += mk('v_add_f32 v%d, v%d, v%d\nv_add_f32 v%d, v%d, v%d\nv_add_f32 v%d, v%d, v%d' % (r, r, r + 1, r + 2, r + 2, r + 3, r, r, r + 2))
                slots[54 + 5 * t] += self.split_w(r + 2, r, r + 1) + mk('ds_write_b64 v%d, %s offset:%d' % (vCs, v(r + 2, 2), 256 * (t + 1)))
        else:
            n = o['look']
            for j in range(0, nmain, 2):
                if n < 28:
                    k_free = n - 20
                    assert k_free < 0 or j >= jobs.index(('q', k_free))
                    slots[j] += lds[n]
                    n += 1
            st = self.frag_loads([v(SB + 4 * (i % 4), 4) for i in range(7)], SRD_CL, sT3, XST_OFF, st=sT1)
            a0, a1 = o['sta'], o['stb']
            for i in range(4):
                slots[a0 + 2 * i] += st[i]
            ex = []
            for i in range(1, 16):
                ex += mk('v_add_f32 v%d, v%d, v%d' % (vS, vS if i > 1 else SB, SB + i))
            for i in range(0, 15, 2):
                slots[a1 - 8 + i // 2] += ex[i:i + 2]
            for i in range(3):
                slots[a1 + 2 * i] += st[4 + i]
            ex = flat(mk('v_add_f32 v%d, v%d, v%d' % (vS, vS, SB + i)) for i in range(12)) + fin
            e0 = o['stc']
            per = -(-len(ex) // (61 - e0))
            for i in range(61 - e0):
                slots[e0 + i] += ex[i * per:(i + 1) * per]
        RB = [WB + 4 * ((nmain - 4 + g) % NB) for g in range(4)]
        vEps = vT + 1
        slots[nmain - 5] += mk('v_lshrrev_b32 v%d, 5, v0\nv_lshl_add_u32 v%d, v%d, 4, s%d' % (vT + 2, vT + 2, vT + 2, sT4))
        for g in range(4):
            slots[nmain - 4 + g] += mk('ds_read_b128 %s, v%d offset:%d' % (v(RB[g], 4), vT + 2, 32 * g))
        slots[nmain - 1] += mk('v_mov_b32 v%d, 0x3f803f80\nv_add_u32 v%d, s%d, v%d\nv_mov_b32 v%d, %s' % (vPoll, vT, sT4, vL16, vEps, f32(1e-6)))
        vG = SB + 12
        ga = self.kv_lane_addr(vG, vG + 1, vG + 2, gather=True)
        for i in range(0, len(ga), 3):
            slots[(o['stb'] + 1 if l else 60) + i // 3] += ga[i:i + 3]
        P.add(flat(slots[:nmain]))
        P.add(self.stamp('s1_kv_mfma'))
        DK = WB
        for hf in range(2):
            R = lambda i: v(RB[2 * hf + i // 4] + i % 4, 2)
            P.add(self.phi8(AK + 8 * hf, R, RLB, vEps) + self.pack(AK + 4 * hf, AK + 8 * hf, 4))
            P.add(flat(mk('v_pk_mul_f32 %s, %s, %s' % (v(AV + 8 * hf + i, 2), v(AV + 8 * hf + i, 2), R(i))) for i in range(0, 8, 2)))
            P.add(self.pack(AV + 4 * hf, AV + 8 * hf, 4))
            for i in range(4):
                P('v_cndmask_b32 v%d, v%d, v%d, s[%d:%d]' % (AV + 4 * hf + i, AV + 4 * hf + i, vPoll, sN28, sN28 + 1))
        P.add(mfma(DK, v(AK, 4), v(AV, 4), True) + mfma(DK, v(AK + 4, 4), v(AV + 4, 4)))
        P('s_mov_b32 s%d, 0x80808080\ns_mov_b32 s%d, 0x80808080' % (sT0 + 1, sT0 + 2))
        for q in range(4):
            P('ds_write_b128 v%d, %s offset:%d' % (vT, v(DK + 4 * q, 4), 1024 * q))
        P('v_lshlrev_b32 v%d, 3, v0\ns_waitcnt lgkmcnt(0)\ns_barrier' % vT)
        for ww in range(4):
            P('ds_read_b128 %s, v%d offset:%d' % (v(AK + 4 * ww, 4), vG, 4096 * ww))
        if l == 1:
            for j in range(nmain, nmain + NB):
                P.add(rd(j))
        for x, y in ((AK, AK + 4), (AK + 8, AK + 12), (AK, AK + 8)):
            for i in (0, 2):
                P('v_pk_add_f32 %s, %s, %s' % (v(x + i, 2), v(x + i, 2), v(y + i, 2)))
        P.add(self.pack(AK, AK, 2))
        for i in range(2):
            P('v_cndmask_b32 v%d, v%d, v%d, s[%d:%d]' % (AK + i, AK + i, vNonce, sT0 + 1, sT0 + 2))
        P('buffer_store_dwordx2 %s, v%d, %s, s%d offen sc1' % (v(AK, 2), vT, self.srd(SRD_WS), sKvMy))
        P.add(self.stamp('kv_pub'))
        PQ = self.PQ = 104

        def qepi():
            L = []
            for hf in range(2):
                L += self.phi8(AQ + 8 * hf, lambda i: v(vRl, 2) + ' op_sel_hi:[1,0]', 48, vEps) + self.pack(PQ + 4 * hf, AQ + 8 * hf, 4)
            for i in (6, 7):
                L += mk('v_cndmask_b32 v%d, v%d, 0, s[%d:%d]' % (PQ + i, PQ + i, sHalf, sHalf + 1))
            return L
        if l == 0:
            P.add(trq + mk('\n'.join('v_mov_b32 v%d, 0x3f803f80' % (CSA + 16 + i) for i in range(4))))
            P('s_mul_i32 s%d, s%d, %d\nv_add_u32 v%d, s%d, v%d' % (sT0, sW, 7 * 1024, vTr, sT0, vTrQ))
            pre = [wait_tok(self.tok_q)] + mk('s_barrier') + flat(rd(j) for j in range(nmain, nmain + NB))
            va = CSA + 20
            post = mk('v_and_b32 v%d, 31, v0\nv_lshlrev_b32 v%d, 2, v%d\nv_add_u32 v%d, %d, v%d\ns_lshl_b32 s%d, s%d, 7\nv_add_u32 v%d, s%d, v%d\nds_write_b32 v%d, v%d'
                      % (va, va, va, va, L_KVS, va, sT0, sW, va + 1, sT0, va, va + 1, CSA))

            def qfin():
                L = mk('\n'.join('ds_read_b32 v%d, v%d offset:%d' % (WB + 4 + ww, va, 128 * ww) for ww in range(4)))
                L += mk('v_add_f32 v%d, v%d, v%d\nv_add_f32 v%d, v%d, v%d\nv_add_f32 v%d, v%d, v%d' % (WB + 4, WB + 4, WB + 5, WB + 6, WB + 6, WB + 7, WB + 4, WB + 4, WB + 6))
                L += self.split_w(WB, WB + 4, WB + 5) + mk('v_mov_b32 v%d, 0\nv_mov_b32 v%d, 0\nds_write_b64 v%d, %s' % (WB + 2, WB + 3, va + 2, v(WB, 2)))
                return L + mfma(AQ, v(WB, 4), v(XE, 4)) + qepi()
            post += mk('v_mov_b32 v%d, v%d' % (va + 2, vCs))
            self.staging(pre, slots[nmain:], post, qfin)
        else:
            P.add(spread(slots[nmain:], self.kvx_pre(1)))
            P.add(qepi())

    PARK = 140

    def wo_dma(self, vwo):
        wo = [mk('v_lshrrev_b32 v%d, 2, v0\nv_mul_u32_u24 v%d, 896, v%d\nv_and_b32 v%d, 3, v0\nv_lshl_add_u32 v%d, v%d, 4, v%d\ns_lshl_b32 s%d, s%d, 6\nv_add_u32 v%d, s%d, v%d'
                 % (vwo, vwo, vwo, vT, vwo, vT, vwo, sQ0, sM, vwo, sQ0, vwo))
              + mk('s_mul_i32 s%d, s%d, %d\ns_lshl_b32 s%d, s%d, 10\ns_add_u32 s%d, s%d, %d' % (sQ1, sW, 16 * 896, sT3, sW, sT3, sT3, L_WO))]
        for t in range(7):
            wo.append(mk('s_add_u32 m0, s%d, %d\ns_add_u32 s%d, s%d, %d\nbuffer_load_dwordx4 v%d, %s, s%d offen lds' % (sT3, 4096 * t, sQ0, sQ1, t * 64 * 896, vwo, self.srd(SRD_WO), sQ0)))
        last = I('s_mov_b32 s%d, %d\ns_mov_b32 m0, %d\ns_mov_b64 exec, 0xffff\nbuffer_load_dwordx4 v%d, %s, s%d offen lds\ns_mov_b64 exec, -1'
                 % (sQ0, 448 * 896, L_WO + 28672, vwo, self.srd(SRD_WO), sQ0), kind='block', nvm=1, src=[('v', vwo)])
        self.tok_wo = tok(last)
        return wo + [[last]]

    def staging(self, qpre, qslots, qpost, qepi):
        P = self.P
        lskip, ljoin = P.newlabel('Lnostage'), P.newlabel('Lstaged')
        v1a, t0, t1, vp, vb, vb2 = 112, 113, 114, 115, 120, 168
        P('s_cmp_lt_u32 s%d, 14\ns_cselect_b32 s%d, s%d, 0' % (sM, SRD_W1 + 2, SRD_W1 + 2))
        P('v_lshrrev_b32 v%d, 2, v0\nv_mul_u32_u24 v%d, 3584, v%d\nv_and_b32 v%d, 3, v0\nv_lshl_add_u32 v%d, v%d, 4, v%d'
          % (v1a, v1a, v1a, vT, v1a, vT, v1a))
        P('s_lshl_b32 s%d, s%d, 2\ns_add_u32 s%d, s%d, s%d\ns_lshl_b32 s%d, s%d, 6\nv_add_u32 v%d, s%d, v%d' % (sT5, sM, sT5, sT5, sW, sT5, sT5, v1a, sT5, v1a))
        P('s_mul_i32 s%d, s%d, 14336\ns_add_u32 s%d, s%d, %d\ns_mul_i32 s%d, s%d, 21504\ns_mul_i32 s%d, s%d, %d' % (sT3, sW, sT3, sT3, L_EX, sQ1, sW, sWi, sD1, 14 * 16 * 3584))

        def issue(k):
            g = mk('s_add_u32 m0, s%d, %d' % ((sT3, 1024 * k) if k < 14 else (sQ1, 1024 * (k - 14))))
            g += mk('s_add_u32 s%d, s%d, %d' % (sQ0, sWi, k * 16 * 3584) if k < 14 else 's_sub_u32 s%d, %d, s%d' % (sQ0, k * 16 * 3584, sWi))
            g += mk('buffer_load_dwordx4 v%d, %s, s%d offen lds' % (v1a, self.srd(SRD_W1), sQ0))
            return g
        dm = [issue(k) for k in range(28)]
        tk = [tok(g[-1]) for g in dm]
        park = mk('\n'.join('v_accvgpr_read_b32 v%d, a%d' % (160 + i, 216 + i) for i in range(8)))
        park += mk('v_add_u32 v%d, s%d, v%d' % (vp, sQ1, vL16))
        park += flat(mk('ds_read_b128 %s, v%d offset:%d' % (a(self.PARK + 4 * i, 4), vp, 1024 * i)) for i in range(21))
        ht = self.touch([(16, SRD_CL, sHst, b * 114688) for b in range(self.o['htk'])], vT) if self.o['htk'] else []
        P.add(flat(dm[:7]) + qpre + ht + (self.stamp('q_go') if self.fine else []))
        for i, g in enumerate(dm[7:14]):
            qslots[self.o['w1q'] + 2 * i] += g
        P.add(spread(qslots, park) + qpost)
        P('s_lshl_b32 s%d, s%d, 11\ns_add_u32 s%d, s%d, %d' % (sT4, sC, sT4, sT4, WS_XCC))
        P('v_and_b32 v%d, 15, v0\nv_lshlrev_b32 v%d, 7, v%d' % (vPA, vPA, vPA))
        P('buffer_load_dword v%d, v%d, %s, s%d offen sc1' % (vPoll, vPA, self.srd(SRD_WS), sT4))
        P('s_waitcnt lgkmcnt(0)\ns_barrier')
        if self.fine:
            P.add(self.stamp('q_done'))
        P.add([I('s_cmp_ge_u32 s%d, 14\ns_cbranch_scc1 %s' % (sM, lskip), kind='block')])
        txt, _ = finalize(mk('s_nop 7') + qepi())
        self.ool.append('%s:\n%s\ns_waitcnt vmcnt(0)\ns_branch %s' % (lskip, '\n'.join(t.strip() for t in txt.split('\n')), ljoin))
        ad = self.trbase(t1, 64, 4) + mk('v_add_u32 v%d, s%d, v%d\nv_add_u32 v%d, s%d, v%d' % (t0, sT3, t1, t1, sQ1, t1))
        ad += mk('v_and_b32 v%d, 31, v0\nv_lshlrev_b32 v%d, 1, v%d\nbuffer_load_ushort v%d, v%d, %s, s%d offen' % (vT, vT, vT, vb, vT, self.srd(SRD_B1), sT5))
        ad += mk('v_lshrrev_b32 v%d, 5, v0\nv_lshlrev_b32 v%d, 3, v%d\ns_lshl_b32 s%d, s%d, 5' % (vT, vT, vT, sT2, sFe))
        ad += mk('buffer_load_dwordx2 %s, v%d, %s, s%d offen\nbuffer_load_dwordx2 %s, v%d, %s, s%d offen offset:16'
                 % (v(vb2, 2), vT, self.srd(SRD_B2), sT2, v(vb2 + 2, 2), vT, self.srd(SRD_B2), sT2))
        vo, D = 124, 128
        def consume(k):
            va, o = (t0, 1024 * k) if k < 14 else (t1, 1024 * (k - 14))
            L = [wait_tok(tk[k])] + mk('ds_read_b64_tr_b16 %s, v%d offset:%d\nds_read_b64_tr_b16 %s, v%d offset:%d' % (w1half(k, 0), va, o, w1half(k, 1), va, o + 512))
            return L + (mfma(D, v(vo, 4), w1reg(k - 2), k == 2) if k >= 2 else [])
        P.add(spread(dm[14:21], qepi() + ad + mk('\n'.join('v_mov_b32 v%d, 0x3f803f80' % (vo + i) for i in range(4)))))
        for k in range(14):
            P.add((dm[21 + k // 2] if k % 2 == 0 else []) + consume(k))
        P('s_waitcnt lgkmcnt(0)\ns_barrier')
        if self.fine:
            P.add(self.stamp('st_iss'))
        wo = self.wo_dma(121)
        for k in range(14, 14 + len(wo)):
            P.add(wo[k - 14] + consume(k))
        P.label(ljoin)
        P.add(self.stamp('sweep_start') + self.sweep_loads())
        ljoin = P.newlabel('Lstaged')
        P.add([I('s_cmp_ge_u32 s%d, 14\ns_cbranch_scc1 %s' % (sM, ljoin), kind='block')])
        for k in range(14 + len(wo), 28):
            P.add(consume(k))
        P.add(mfma(D, v(vo, 4), w1reg(26)) + mfma(D, v(vo, 4), w1reg(27)))
        P.add(self.unpack(144, vb2, 4) + mk('\n'.join('v_mov_b32 v%d, 0' % r for r in range(152, 156))))
        P('s_lshl_b32 s%d, s%d, 7\ns_add_u32 s%d, s%d, %d\nv_lshrrev_b32 v%d, 5, v0\nv_lshl_add_u32 v%d, v%d, 6, s%d' % (sT0, sW, sT0, sT0, L_B2, vT, vT, vT, sT0))
        for q in range(4):
            P('ds_write_b128 v%d, %s offset:%d' % (vT, v(144 + 4 * min(q, 2), 4), 16 * q))
        P.add(self.split_w(vW1X, D, vT + 1) + mk('v_lshl_or_b32 v%d, v%d, 16, v%d' % (vb, vb, vb)))
        P('v_cndmask_b32 v%d, v%d, v%d, s[%d:%d]\nv_cndmask_b32 v%d, v%d, 0, s[%d:%d]' % (vW1X, vW1X, vb, sHalf, sHalf + 1, vW1X + 1, vW1X + 1, sHalf, sHalf + 1))
        P.label(ljoin)
        P.add([I('s_nop 1', kind='block', states=2)])
        P.add(self.kvx_pre(0))

    def sweep_loads(self):
        return flat(self.frag_loads([v(32 + 4 * i, 4) for i in range(8)], SRD_WS, sKv, 0, flags='sc1'))

    def w2_prefetch(self, va, first, per):
        m = (1 << per) - 1
        txt = ['s_lshr_b32 s%d, s%d, 3' % (sQ0, sC), 's_mul_i32 s%d, s%d, 14' % (sQ0, sQ0), 's_add_u32 s%d, s%d, s%d' % (sQ0, sQ0, sM),
               's_lshl_b32 s%d, s%d, 2' % (sQ0, sQ0), 's_add_u32 s%d, s%d, s%d' % (sQ0, sQ0, sW), 's_mul_i32 s%d, s%d, %d' % (sQ0, sQ0, per * 128),
               's_add_u32 s%d, s%d, %d' % (sQ0, sQ0, first * 128), 'v_lshlrev_b32 v%d, 7, v0' % va,
               's_mov_b32 exec_lo, 0x%x' % (m & 0xffffffff), 's_mov_b32 exec_hi, 0x%x' % (m >> 32),
               'buffer_load_dword v%d, v%d, %s, s%d offen' % (vDummy, va, self.srd(SRD_W2), sQ0), 's_mov_b64 exec, -1']
        return [I('\n'.join(txt), kind='block', nvm=1, src=[('v', 0)], dst=[('v', va)], cost=52)]

    def w2_addr(self, R):
        v2a, tA, tB, vp = R, R + 1, R + 3, R + 5
        L = mk('v_lshrrev_b32 v%d, 3, v0\nv_mul_u32_u24 v%d, 896, v%d\nv_lshrrev_b32 v%d, 2, v0\nv_and_b32 v%d, 4, v%d\nv_xor_b32 v%d, v%d, v0\nv_and_b32 v%d, 7, v%d\nv_lshl_add_u32 v%d, v%d, 4, v%d'
               % (v2a, v2a, v2a, vT, vT, vT, vT, vT, vT, vT, v2a, vT, v2a))
        L += mk('s_lshr_b32 s%d, s%d, 1\ns_lshl_b32 s%d, s%d, 7\ns_mul_i32 s%d, s%d, %d\ns_add_u32 s%d, s%d, s%d\nv_add_u32 v%d, s%d, v%d'
                % (sT0, sM, sT0, sT0, sT2, sW, 32 * 896, sT0, sT0, sT2, v2a, sT0, v2a))
        L += mk('s_mul_i32 s%d, s%d, 7168\ns_add_u32 s%d, s%d, %d\ns_lshl_b32 s%d, s%d, 12\ns_add_u32 s%d, s%d, %d'
                % (sRot, sW, sRot, sRot, L_EX, sQ1, sW, sQ1, sQ1, L_KVS))
        L += mk('s_lshr_b32 s%d, s%d, 1' % (sT0, sW)) + self.trbase(tA, 128, 4, xor16=sT0)
        L += mk('s_and_b32 s%d, s%d, 1\nv_bfe_u32 v%d, v0, 3, 1\nv_xor_b32 v%d, s%d, v%d\nv_lshl_add_u32 v%d, v%d, 6, v%d\nv_xor_b32 v%d, 64, v%d'
                % (sT0, sW, vT, vT, sT0, vT, tA, vT, tA, tA + 1, tA))
        L += mk('v_add_u32 v%d, s%d, v%d\nv_add_u32 v%d, s%d, v%d\nv_add_u32 v%d, s%d, v%d\nv_add_u32 v%d, s%d, v%d' % (tB, sQ1, tA, tB + 1, sQ1, tA + 1, tA, sRot, tA, tA + 1, sRot, tA + 1))
        L += mk('s_mul_i32 s%d, s%d, 21504\nv_add_u32 v%d, s%d, v%d' % (sT0, sW, vp, sT0, vL16))
        L += mk('s_mul_i32 s%d, s%d, 10240\ns_sub_u32 s%d, s%d, s%d\nv_add_u32 v%d, s%d, v%d\nv_add_u32 v%d, s%d, v%d' % (sWi, sW, sT0, sWi, sRot, R + 6, sT0, tA, R + 7, sT0, tA + 1))
        return L

    def w2_steps(self, R, u0, u1, shadow):
        v2a, tA, tB = R, R + 1, R + 3
        NS = 5

        def where(u):
            n = (u - u0) % NS
            if shadow:
                return sWi, R + 6, n * 2048
            return (sRot, tA, n * 2048) if n < 3 else (sQ1, tB, (n - 3) * 2048)

        def issue(u):
            out = []
            base, _, o = where(u)
            for i in range(2):
                g = mk('s_add_u32 m0, s%d, %d' % (base, o + 1024 * i))
                g += mk('s_mov_b32 s%d, %d' % (sQ0, (128 * (u // 2) + 16 * (u % 2) + 8 * i) * 896))
                out += g + mk('buffer_load_dwordx4 v%d, %s, s%d offen lds' % (v2a, self.srd(SRD_W2), sQ0))
            return out, tok(out[-1])
        tk, first, steps, prev = {}, [], [], None
        for u in range(u0, min(u0 + NS - 1, u1)):
            g, tk[u] = issue(u)
            first.append(g)
        for u in range(u0, u1):
            _, ta, o = where(u)
            A = []
            if u + NS - 1 < u1:
                if prev:
                    A += [wait_tok(prev)]
                g, tk[u + NS - 1] = issue(u + NS - 1)
                A += g
            B = [wait_tok(tk[u])]
            for js in range(2):
                b = W2A + 8 * u + 4 * js
                B += mk('ds_read_b64_tr_b16 %s, v%d offset:%d\nds_read_b64_tr_b16 %s, v%d offset:%d' % (a(b, 2), ta + js, o, a(b + 2, 2), ta + js, o + 1024))
            prev = tok(B[-1])
            steps.append((A, B))
        return first, steps

    def w2_stage(self, fill, R, u0, extra):
        P = self.P
        vp = R + 5
        first, steps = self.w2_steps(R, u0, 28, False)
        P.add(flat(first))
        rest = [mk('ds_write_b128 v%d, %s offset:%d' % (vp, a(self.PARK + 4 * i, 4), 1024 * i)) for i in range(21)]
        out, done = [], 0
        for n, (A, B) in enumerate(steps):
            u = u0 + n
            want = max(sum(1 for i in range(21) if 17 + (i + 1) // 2 <= u), min(21, ((n + 1 - self.o['rest0']) * 21) // max(1, len(steps) - 2 - self.o['rest0'])))
            L = A + flat(rest[done:max(done, want)]) + B + extra.get(u, []) + (self.stamp('w2_%d' % u) if self.fine else [])
            done = max(done, want)
            out.append(L)
        assert done == 21
        P.add(spread(out, fill, start=0, end=self.o['w2fill']))

    K10 = 98

    def kvx_pre(self, l):
        L = []
        RES = 160
        if l == 1:
            L += mk('s_add_u32 s%d, s%d, s%d' % (sT0, sOst, sXin))
            for j in range(2):
                L += mk('buffer_load_dwordx4 %s, v%d, %s, s%d offen offset:%d sc1' % (v(RES + 4 * j, 4), vL16, self.srd(SRD_CL), sT0, 1024 * j))
            L += [I('s_mul_i32 s%d, s%d, %d\ns_add_u32 s%d, s%d, s%d\ns_addc_u32 s%d, s%d, 0\ns_sub_u32 s%d, s%d, s%d'
                    % (sT0, sSlow, LOFF, SRD_CL, SRD_CL, sT0, SRD_CL + 1, SRD_CL + 1, SRD_CL + 2, SRD_CL + 2, sT0), kind='block', cost=16)]
        L += [I('s_cmp_eq_u32 s%d, 3\ns_cselect_b32 s%d, 0xffff0000, 0\ns_cselect_b32 s%d, 0xffff0000, 0' % (sW, sPm, sPm + 1), kind='block', cost=12)]
        L += self.kv_lane_addr(self.KA, self.KA + 1, self.KA + 2, gather=False)
        g, t = self.KA + 1, self.KA + 2
        L += mk('\n'.join(['v_bfe_u32 v%d, v0, 3, 1' % g, 'v_and_b32 v%d, 3, v0' % t, 'v_lshl_add_u32 v%d, v%d, 2, v%d' % (g, g, t),
                           'v_cmp_eq_u32 vcc, 7, v%d' % g, 'v_bfe_u32 v%d, v0, 4, 1' % t, 'v_mad_u32_u24 v%d, v%d, 14, v%d' % (g, t, g),
                           'v_bfe_u32 v%d, v0, 2, 1' % t, 'v_mad_u32_u24 v%d, v%d, 7, v%d' % (g, t, g), 'v_cndmask_b32 v%d, v%d, 28, vcc' % (g, g),
                           'v_and_b32 v%d, 32, v0' % t, 'v_add_u32 v%d, v%d, v%d' % (g, g, t), 'v_lshlrev_b32 v%d, 5, v%d' % (g, g), 'v_add_u32 v%d, %d, v%d' % (g, L_KVB, g)]))
        L += mk('s_and_b32 s%d, s%d, 0x1fff\ns_or_b32 s%d, s%d, 0x4000\ns_lshl_b32 s%d, s%d, 16' % (sTag, sNonce, sTag, sTag, sTag + 1, sTag))
        L += mk('v_mov_b32 v%d, 0x3f80\nv_mov_b32 v%d, 0x3f800000' % (self.K10, self.K10 + 1))
        return L

    KA = 100

    def kvx(self, l):
        P = self.P
        P.comment('==== layer %d : kv exchange' % l)
        if l == 0:
            lw, lb = P.newlabel('Lxcc'), P.newlabel('Lxok')
            P('v_subrev_u32 v%d, s%d, v%d\nv_cmp_lt_u32 vcc, 15, v%d' % (vPoll, sNonce, vPoll, vPoll))
            P.add([I('s_cbranch_vccnz %s\n%s:' % (lw, lb), kind='block')])
            self.ool.append('\n'.join([
                lw + ':',
                'buffer_load_dword v%d, v%d, %s, s%d offen sc1' % (vPoll, vPA, self.srd(SRD_WS), sT4),
                's_add_u32 s%d, s%d, 1' % (sSpin, sSpin),
                's_cmp_gt_u32 s%d, 0x40000' % sSpin,
                's_cbranch_scc1 L_end',
                's_waitcnt vmcnt(0)',
                'v_subrev_u32 v%d, s%d, v%d' % (vPoll, sNonce, vPoll),
                'v_cmp_lt_u32 vcc, 15, v%d' % vPoll,
                's_cbranch_vccnz %s' % lw,
                's_branch %s' % lb]))
            P('v_cmp_ne_u32 vcc, s%d, v%d\ns_cmp_lg_u64 vcc, 0\ns_cselect_b32 s%d, 1, 0\ns_mov_b32 s%d, %d\ns_cselect_b32 s%d, %d, s%d' % (sXcc, vPoll, sSlow, sXin, X1_OFF if self.o['alias'] else XIN_OFF, sXin, XIN_OFF, sXin))
        K10, K01 = self.K10, self.K10 + 1
        if l == 1:
            if self.o['kvdelay']:
                P('s_sleep %d' % self.o['kvdelay'])
            P.add(self.stamp('sweep_start') + self.sweep_loads())
        P('v_and_b32 v%d, 15, v0\nv_lshlrev_b32 v%d, 11, v%d\nv_add_u32 v%d, 2044, v%d' % (vPA, vPA, vPA, vPA, vPA))
        P.add(self.trbase(vTr, 64, 7, add=L_WO))
        P.add(self.s2_pre(l))
        P('s_mov_b32 s%d, 0x88888888\ns_mov_b32 s%d, 0x88888888' % (sPm, sPm + 1))
        lsw, lre = P.newlabel('Lsweep'), P.newlabel('Lresweep')
        P.label(lsw)
        B = 32
        bad, S = vT, 64
        P('v_mov_b32 v%d, 0' % bad)
        for i in range(8):
            for k in range(4):
                for hh, K in enumerate((K10, K01)):
                    P('v_dot2_f32_bf16 v%d, v%d, v%d, %s' % (S + 2 * k + hh, B + 4 * i + k, K, 'v%d' % (S + 2 * k + hh) if i else '0'))
            for k in (2, 3):
                P('v_bitop3_b32 v%d, v%d, s%d, v%d bitop3:0xbe' % (bad, B + 4 * i + k, sNonce, bad))
        P('v_cmp_ne_u32 vcc, 0, v%d\ns_and_b64 vcc, vcc, s[%d:%d]' % (bad, sPm, sPm + 1))
        P.add([I('s_cbranch_vccnz %s' % lre, kind='block', states=1)])
        self.ool.append('%s:\ns_sleep 6\ns_add_u32 s%d, s%d, 1\ns_cmp_gt_u32 s%d, 0x40000\ns_cbranch_scc1 L_end\n%s\ns_waitcnt vmcnt(0)\ns_branch %s'
                        % (lre, sSpin, sSpin, sSpin, '\n'.join(x.text for x in self.sweep_loads()), lsw))
        P.add(self.stamp('sweep_done'))
        for k in range(4):
            P('v_permlane32_swap_b32 v%d, v%d' % (S + k, S + 4 + k))
        for k in (0, 2):
            P('v_pk_add_f32 %s, %s, %s' % (v(S + k, 2), v(S + k, 2), v(S + 4 + k, 2)))
        P.add(self.pack(S, S, 2))
        P('ds_write_b64 v%d, %s' % (self.KA, v(S, 2)))
        if l == 0:
            P.add([wait_tok(self.tok_wo)])
        P('s_waitcnt lgkmcnt(0)\ns_barrier')
        KF, D = 72, 80
        P('ds_read_b128 %s, v%d\nds_read_b128 %s, v%d offset:16' % (v(KF, 4), self.KA + 1, v(KF + 4, 4), self.KA + 1))
        P.add(flat(self.s2_rd(i) for i in range(4)))
        P.add(mfma(D, v(KF, 4), v(self.PQ, 4), True))
        for i in (6, 7):
            P('v_cndmask_b32 v%d, v%d, 0, s[%d:%d]' % (KF + i, KF + i, sHalf, sHalf + 1))
        P.add(mfma(D, v(KF + 4, 4), v(self.PQ + 4, 4)))
        t1 = 120
        P('v_add_f32 v%d, %s, v%d\nv_rcp_f32 v%d, v%d\nv_mul_f32 v%d, s%d, v%d' % (t1, f32(1e-6), D + 7, t1, t1, t1, sLn2, t1))
        for r in range(0, 16, 2):
            P('v_pk_mul_f32 %s, %s, %s op_sel_hi:[1,0]' % (v(D + r, 2), v(D + r, 2), v(t1, 2)))
        P('v_mov_b32 v%d, s%d\nv_mov_b32 v%d, s%d' % (D + 7, sTag + 1, D + 15, sTag + 1))
        P.add(self.pack(D, D, 8))
        st = self.stores(['buffer_store_dwordx4 %s, v%d, %s, s%d offen offset:%d' % (v(D + 4 * j, 4), vL16, self.srd(SRD_CL), sOst, 1024 * j) for j in range(2)])
        P.add(st)
        P.add(self.stamp('o_pub'))

    def s2_rd(self, i):
        WB, o = 144 + 4 * (i % 4), 1792 * (i // 2) + 896 * (i % 2)
        return mk('ds_read_b64_tr_b16 %s, v%d offset:%d\nds_read_b64_tr_b16 %s, v%d offset:%d' % (v(WB, 2), vTr, o, v(WB + 2, 2), vTr, o + 256))

    def s2_pre(self, l):
        L = self.s4_consts(l) + (self.xsrc() if l == 0 else [])
        L += mk('s_add_u32 s%d, s%d, %d' % (sT4, sOst, X1_OFF))
        L += mk('s_lshr_b32 s%d, s%d, 2\ns_lshl_b32 s%d, s%d, 10\ns_and_b32 s%d, s%d, 3\ns_lshl_b32 s%d, s%d, 2\ns_add_u32 s%d, s%d, s%d\ns_add_u32 s%d, s%d, s%d\ns_add_u32 s%d, s%d, %d'
                % (sT5, sM, sT5, sT5, sT1, sM, sT1, sT1, sT5, sT5, sT1, sT5, sT5, sBlk, sT5, sT5, X1_OFF + 28672))
        return L + self.unpack(16, 160, 8)

    def s2(self, l):
        P = self.P
        o = self.o
        P.comment('==== layer %d : S2' % l)
        ACC, OF, WB, RES = 16, 32, 144, 160
        NB = 4
        lre, lfail = P.newlabel('Ls2'), P.newlabel('Ls2again')
        P.label(lre)
        P.add(self.poll_issue(sBlk, o['pdo']))
        rd = self.s2_rd
        bad = vT
        P('v_mov_b32 v%d, 0' % bad)
        P.add(self.poll_check(sBlk, tag=True))
        P.add(self.stamp('o_seen'))
        oreg = [OF + 4 * (i % 28) for i in range(32)]
        lds = self.frag_loads([v(r, 4) for r in oreg], SRD_CL, sBlk, O_OFF, flags='sc1')
        n = o['look2']
        P.add(flat(lds[:n]))
        chk = lambda i: mk('v_bitop3_b32 v%d, v%d, s%d, v%d bitop3:0xbe\nv_and_b32 v%d, 0xffff, v%d' % (bad, oreg[i] + 3, sTag + 1, bad, oreg[i] + 3, oreg[i] + 3))
        P.add(chk(0))
        for i in range(32):
            if i + n < 32:
                P.add(lds[i + n])
            P.add(mfma(ACC, v(WB + 4 * (i % NB), 4), v(oreg[i], 4)))
            if self.fine and i in (0, 8, 16, 31):
                P.add(self.stamp('s2_%d' % i))
            if i + NB < 32:
                P.add(rd(i + NB))
            if i + 1 < 32:
                P.add(chk(i + 1))
            if i == 28:
                P.add(self.pa(14, blocks=True, reg=vT + 2))
        P('v_cmp_lt_u32 vcc, 0xffff, v%d' % bad)
        P.add([I('s_cbranch_vccnz %s' % lfail, kind='block', states=1)])
        again = '\n'.join(x.text for x in self.unpack(ACC, RES, 8) + flat(rd(i) for i in range(NB)))
        self.ool.append('%s:\ns_add_u32 s%d, s%d, 1\ns_cmp_gt_u32 s%d, 0x40000\ns_cbranch_scc1 L_end\ns_nop 15\n%s\ns_waitcnt lgkmcnt(0)\ns_branch %s'
                        % (lfail, sSpin, sSpin, sSpin, again, lre))
        P('v_mov_b32 v%d, v%d' % (vPA, vT + 2))
        P.add(self.pack(OF, ACC, 8))
        P.add(self.stores(['buffer_store_dwordx4 %s, v%d, %s, s%d offen offset:%d' % (v(OF + 4 * j, 4), vL16, self.srd(SRD_CL), sT4, 1024 * j) for j in range(2)]))
        P.add(self.row_stats(OF, 8, vT, vT + 2))
        st = self.stores(['buffer_store_dword v%d, v%d, %s, s%d offen' % (vT, vL16, self.srd(SRD_CL), sT5)])
        tk = tok(st[-1])
        P.add(st)
        if self.fine:
            P.add(self.stamp('x1_st'))
        P.add(self.flag([tk], sFoMy, FX1 - FO))
        P.add(self.stamp('x1_pub'))

    def gelu(self, acc, KK, T):
        pr = range(0, 16, 2)
        A = flat(mk('v_pk_mul_f32 %s, %s, %s' % (v(T + i, 2), v(acc + i, 2), v(acc + i, 2))) for i in pr)
        A += flat(mk('v_pk_fma_f32 %s, %s, %s, %s op_sel:[0,1,0] op_sel_hi:[1,1,0]' % (v(T + i, 2), v(T + i, 2), v(KK, 2), v(KK, 2))) for i in pr)
        A += flat(mk('v_pk_mul_f32 %s, %s, %s' % (v(T + i, 2), v(T + i, 2), v(acc + i, 2))) for i in pr)
        E = flat(mk('v_exp_f32 v%d, v%d' % (T + i, T + i)) for i in range(16))
        B = flat(mk('v_pk_fma_f32 %s, %s, %s, %s op_sel_hi:[1,0,0]' % (v(T + i, 2), v(T + i, 2), v(KK + 2, 2), v(KK + 2, 2))) for i in pr)
        R = flat(mk('v_rcp_f32 v%d, v%d' % (T + i, T + i)) for i in range(16))
        C = flat(mk('v_pk_mul_f32 %s, %s, %s' % (v(acc + i, 2), v(acc + i, 2), v(T + i, 2))) for i in pr)
        pk = self.pack(acc, acc, 8)
        g4 = lambda f, g: flat(mk(f(4 * g + i)) for i in range(4))
        e = lambda g: E[4 * g:4 * g + 4]
        r = lambda g: R[4 * g:4 * g + 4]
        b = lambda g: g4(lambda i: 'v_fma_f32 v%d, v%d, v%d, v%d' % (T + i, T + i, KK + 2, KK + 2), g)
        c = lambda g: g4(lambda i: 'v_mul_f32 v%d, v%d, v%d' % (acc + i, acc + i, T + i), g) + pk[2 * g:2 * g + 2]
        tail = e(0) + e(1) + b(0) + r(0) + e(2) + b(1) + c(0) + r(1) + e(3) + b(2) + c(1) + r(2) + b(3) + c(2) + r(3) + c(3)
        return A, A + E + B + R + C + pk, tail

    XSRC = (4, 5, 6, 7, 8, 9, 10, 11, 12, 13, 14, 15, 20, 21)

    def xsrc(self):
        L = mk('s_lshl_b32 s%d, s%d, 1\ns_mul_i32 s%d, s%d, 14\ns_add_u32 s%d, s%d, s%d\ns_mov_b32 s%d, %d' % (sT0, sW, sT1, sD1, sT1, sT1, sT0, sT2, X1_OFF))
        for c, r in enumerate(self.XSRC):
            if c:
                L += mk('s_add_u32 s%d, s%d, 8\ns_cmp_ge_u32 s%d, 28\ns_cselect_b32 s%d, 28, 0\ns_cselect_b32 s%d, 0x8000, 0\ns_sub_u32 s%d, s%d, s%d\ns_add_u32 s%d, s%d, s%d'
                        % (sT0, sT0, sT0, sT3, r, sT0, sT0, sT3, sT2, sT2, r))
                L += mk('s_add_u32 s%d, s%d, 8\ns_cmp_ge_u32 s%d, 28\ns_cselect_b32 s%d, 28, 0\ns_sub_u32 s%d, s%d, s%d' % (sT1, sT1, sT1, sT3, sT1, sT1, sT3))
            L += mk('s_lshl_b32 s%d, s%d, 10\ns_add_u32 s%d, s%d, s%d' % (r, sT1, r, r, sT2))
        return L

    SEL = 172

    def s4_consts(self, l):
        U, SEL = 120, self.SEL
        sel = mk('\n'.join(['v_lshrrev_b32 v%d, 5, v0' % SEL,
                             'v_lshlrev_b32 v%d, 2, v%d' % (SEL, SEL), 'v_and_b32 v%d, 31, v0' % (SEL + 1), 'v_sub_u32 v%d, v%d, v%d' % (U, SEL + 1, SEL),
                             'v_mov_b32 v%d, 0x3f80' % (U + 1), 'v_mov_b32 v%d, 0x3f800000' % (U + 2)]))
        for q, r0 in enumerate((0, 2, 8, 10)):
            sel += mk('v_cmp_eq_u32 vcc, %d, v%d\nv_cmp_eq_u32 s[%d:%d], %d, v%d\ns_nop 0\nv_cndmask_b32 v%d, 0, v%d, vcc\nv_cndmask_b32 v%d, v%d, v%d, s[%d:%d]'
                      % (r0, U, sPm, sPm + 1, r0 + 1, U, SEL + q, U + 1, SEL + q, SEL + q, U + 2, sPm, sPm + 1))
        for q, sB in enumerate((sEb, sLb)):
            sel += mk('s_lshl_b32 s%d, s%d, 15\ns_lshl_b32 s%d, s%d, 10\ns_add_u32 s%d, s%d, s%d\ns_add_u32 s%d, s%d, %d' % (sT0, sB, sT2, sFe, sT0, sT0, sT2, sRes + q, sT0, X1_OFF))
            if l == 0:
                sel += mk('s_add_u32 s%d, s%d, s%d\ns_lshl_b32 s%d, s%d, 13' % (sFin + q, sT0, sXin, sT0, sB))
                sel += mk('s_lshr_b32 s%d, s%d, 2\ns_lshl_b32 s%d, s%d, 10\ns_add_u32 s%d, s%d, s%d\ns_and_b32 s%d, s%d, 3\ns_lshl_b32 s%d, s%d, 2\ns_add_u32 s%d, s%d, s%d\ns_add_u32 s%d, s%d, %d'
                          % (sT2, sFe, sT2, sT2, sT0, sT0, sT2, sT2, sFe, sT2, sT2, sT0, sT0, sT2, sFin + 2 + q, sT0, XST_OFF))
                sel += mk('s_lshl_b32 s%d, s%d, 5\ns_add_u32 s%d, s%d, s%d\ns_lshl_b32 s%d, s%d, 2\ns_add_u32 s%d, s%d, %d' % (sT2, sB, sT2, sT2, sFe, sT2, sT2, sFin + 4 + q, sT2, FXIN))
            else:
                sel += mk('s_lshl_b32 s%d, s%d, 2\ns_add_u32 s%d, s%d, s%d\ns_mul_i32 s%d, s%d, %d\ns_lshl_b32 s%d, s%d, 5\ns_add_u32 s%d, s%d, s%d'
                          % (sT0, sC, sT0, sT0, sB, sT0, sT0, 32 * 896, sT2, sFe, sFin + q, sT0, sT2))

        return sel

    def mlp(self, l):
        P = self.P
        o = self.o
        P.comment('==== layer %d : MLP' % l)
        ACC = (16, 32)
        XB, EXB, WEX, T, RING = 48, 72, 76, 80, 108
        KK = (96, 100)
        SEL, vB2, vX2 = self.SEL, 104, 105
        NB = 6
        P('s_mov_b32 s%d, %d' % (sT4, FX1))
        if not o['p1']:
            P.add(self.poll_issue(sT4, o['pdx']))
        P('s_lshl_b32 s%d, s%d, 11' % (sT5, sW))
        P('v_mov_b32 v%d, v%d\nv_mov_b32 v%d, v%d' % (WEX, vW1X, WEX + 1, vW1X + 1))
        P('\n'.join('v_mov_b32 v%d, 0' % r for r in (WEX + 2, WEX + 3, EXB + 2, EXB + 3)))
        vE8, vK16 = vTr, vT + 3
        P('v_lshlrev_b32 v%d, 3, v0\nv_add_u32 v%d, %d, v%d' % (vE8, vE8, L_KVS, vE8))
        P('v_and_b32 v%d, 31, v0\nv_lshlrev_b32 v%d, 4, v%d\nv_add_u32 v%d, %d, v%d' % (vK16, vK16, vK16, vK16, L_KVS + 512, vK16))
        P('v_add_u32 v%d, %d, v%d' % (vX2, 56 * 1024, vL16))
        P('s_lshl_b32 s%d, s%d, 7\ns_add_u32 s%d, s%d, %d\nv_lshrrev_b32 v%d, 5, v0\nv_lshl_add_u32 v%d, v%d, 6, s%d' % (sT3, sW, sT3, sT3, L_B2, vB2, vB2, vB2, sT3))
        P('s_add_u32 s%d, s%d, %d' % (sT1, sBlk, X1_OFF + 28672))
        if o['p1']:
            lq = P.newlabel('Lnp')
            c = self.poll_check(sT4)[0]
            P.add([I('s_cmp_lg_u32 s%d, 0\ns_cbranch_scc1 %s\n%s\ns_waitcnt vmcnt(0)\n%s\n%s:\ns_barrier'
                     % (sW, lq, '\n'.join(x.text for x in self.poll_issue(sT4, o['pdx'])), c.text, lq), kind='block', src=[('v', vPA)], dst=c.dst, states=2)])
        else:
            P.add(self.poll_check(sT4))
        P.add(self.stamp('x1_seen'))
        xd, tc = [], []
        for c, r in enumerate(self.XSRC):
            g = mk('s_add_u32 m0, s%d, %d' % (sT5, 8192 * c))
            g += mk('buffer_load_dwordx4 v%d, %s, s%d offen sc1 lds\nbuffer_load_dwordx4 v%d, %s, s%d offen offset:1024 sc1 lds' % (vL16, self.srd(SRD_CL), r, vL16, self.srd(SRD_CL), r))
            tc.append(tok(g[-1]))
            xd.append(g)
        P.add(xd[0] + xd[1])
        stl = [mk('buffer_load_dwordx4 %s, v%d, %s, s%d offen offset:%d sc1' % (v(RING + 4 * i, 4), vL16, self.srd(SRD_CL), sT1, 1024 * i)) for i in range(4)]
        K0 = KK[1]
        st0 = mk('v_add_f32 v%d, v%d, v%d' % (T, RING, RING + 1))
        for i in range(2, 14):
            st0 += mk('v_add_f32 v%d, v%d, v%d' % (T, T, RING + i))
        st0 += self.stats_finish(T, True)
        st0 += mk('\n'.join(['v_rcp_f32 v%d, v%d' % (K0 + 2, vRl),
                             'v_mul_f32 v%d, s%d, v%d' % (K0, sC0, vRl),
                             'v_mul_f32 v%d, v%d, v%d' % (T, vRl, vRl),
                             'v_mul_f32 v%d, s%d, v%d' % (K0 + 1, sC1, vRl),
                             'v_mul_f32 v%d, v%d, v%d' % (K0 + 1, K0 + 1, T),
                             'v_sub_f32 v%d, 0, v%d' % (vMean, vMean),
                             'v_cndmask_b32 v%d, v%d, v%d, s[%d:%d]' % (vMean, vMean, K0 + 2, sHalf, sHalf + 1)]))
        st0 += self.split_act(T + 2, vMean, T)
        st0 += mk('s_lshl_b32 s%d, s%d, 10\nv_add_u32 v%d, s%d, v%d\nv_add_u32 v%d, s%d, v%d' % (sT4, sW, vT, sT4, vE8, vT + 1, sT4, vK16))
        st0 += mk('ds_write_b64 v%d, %s\nds_write_b128 v%d, %s' % (vT, v(T + 2, 2), vT + 1, v(K0, 4)))
        tst = tok(st0[-1])

        def hpub(b):
            pre = mk('s_add_u32 s%d, s%d, %d' % (sT4, sHst, b * 114688))
            st = self.stores(['buffer_store_dwordx4 %s, v%d, %s, s%d offen offset:%d' % (v(ACC[b & 1] + 4 * j, 4), vL16, self.srd(SRD_CL), sT4, 1024 * j) for j in range(2)])
            return pre + st, tok(st[-1])
        hflag = lambda b, tk: self.flag([tk], sFoMy, FH - FO + 512 * b)
        extrd = lambda b: mk('ds_read_b64 %s, v%d offset:%d\nds_read_b128 %s, v%d offset:%d' % (v(EXB, 2), vE8, 1024 * b, v(KK[b & 1], 4), vK16, 1024 * b))
        extmf = lambda b: mfma(ACC[b & 1], v(WEX, 4), v(EXB, 4))
        hreg = [RING + 4 * (i % 16) for i in range(56)]

        def hload(i):
            blk, kap = divmod(i, 28)
            g = mk('s_add_u32 s%d, s%d, %d' % (sHs, (sHE, sHL)[blk], 8192 * (kap // 2))) if kap % 2 == 0 else []
            return g + mk('buffer_load_dwordx4 %s, v%d, %s, s%d offen offset:%d sc1' % (v(hreg[i], 4), vL16, self.srd(SRD_CL), sHs, 1024 * (kap % 2)))
        P.add([wait_tok(tc[0])])
        P('s_barrier')
        P.add(self.stamp('s3_b0'))
        rdj = lambda j: mk('ds_read_b128 %s, v%d offset:%d' % (v(XB + 4 * (j % NB), 4), vL16 if j < 56 else vX2, 1024 * (j % 56)))
        for j in range(NB):
            P.add(rdj(j))
        bars = {3: [tc[1]], 11: [tc[2]], 19: [tc[3]], 27: [tc[5], tst], 43: [tc[9]], 75: [tc[13]]}
        slots = []
        for j in range(112):
            b, k = divmod(j, 28)
            sl = mfma(ACC[b & 1], w1reg(k), v(XB + 4 * (j % NB), 4), k == 0)
            if k % 2 == 0:
                also_waits_for(sl[0], v(XB + 4 * ((j + 1) % NB), 4))
            if j in bars:
                sl += (self.stamp('pb%d' % j) if self.fine else []) + [wait_tok(*bars[j])] + mk('s_barrier') + (self.stamp('ab%d' % j) if self.fine else [])
            if k % 2 == 1:
                for jj in (j + NB - 1, j + NB):
                    if jj < 112:
                        sl += rdj(jj)
            if (k == 25 and b) or j == 27:
                sl += extrd(b)
            if (k == 27 and b) or j == 30:
                sl += extmf(b if k == 27 else 0)
            slots.append(sl)
        slots[0] += stl[0] + stl[1]
        slots[1] += xd[2]
        slots[3] += stl[2] + stl[3]
        for c in range(3, 14):
            slots[6 + 4 * (c - 3)] += xd[c]
        W2R = RING + 32
        pre0 = self.w2_addr(W2R) if l == 0 else []
        nsh = o['nsh'] if l == 0 else 0
        if nsh:
            first, steps = self.w2_steps(W2R, 0, nsh, True)
            p0 = o['sh0']
            for i, g in enumerate(first):
                slots[p0 + 2 * i] += g
            p1 = p0 + 2 * len(first) + o['shgap']
            for n, (A, B) in enumerate(steps):
                sj = p1 + (n * (110 - p1)) // nsh
                slots[sj] += A
                slots[sj + 1] += B
            if o['idlew2'] < 13:
                slots[o['pf2']] += self.w2_prefetch(vT, 1024 * o['idlew2'], -(-(12544 - 1024 * o['idlew2']) // 112))
        out = spread(slots[:o['st0']], pre0) + spread(slots[o['st0']:26], st0) + slots[26] + slots[27]
        pend = None
        for b in range(1, 4):
            gA, _, tail = self.gelu(ACC[(b - 1) & 1], KK[(b - 1) & 1], T)
            s0 = 28 * b + (5 if b == 1 else 2)
            st, nxt = hpub(b - 1)
            if l == 0 and b < 3 and not nsh:
                st = st + self.w2_prefetch(vT, (b - 1) * 6272, 56)
            slots[s0] += gA
            if pend is not None and l == 1:
                slots[28 * b + o['flagpos']] += hflag(b - 2, pend)
            pend = nxt
            if b == 3 and l == 1:
                slots[84 + o['pollE']] += self.pa(14) + self.poll_issue(sPE)
                n3 = o['n3']
                slots[112 - n3] += (self.stamp('preE') if self.fine else []) + self.poll_check(sPE) + (self.stamp('gotE') if self.fine else [])
                for i in range(n3):
                    slots[112 - n3 + i] += hload(i)
            if b == 1 or self.fine:
                out += self.stamp('s3_b%d' % b)
            out += flat(slots[28 * b:s0 + 1]) + spread(slots[s0 + 1:28 * b + 28], tail + st, end=28 * b + o['gend'] - s0)
        P.add(out)
        P('s_waitcnt lgkmcnt(0)\ns_barrier')
        P.add(self.stamp('s3_end'))
        AE, AL, RX, RS = 48, 16, 80, 96
        vEW, vER = (vTr, vT, vT + 1), vT + 3
        resid = lambda q: mk('buffer_load_dwordx4 %s, v%d, %s, s%d offen sc1' % (v(RS, 4), vL16, self.srd(SRD_CL), sRes + q))
        cinit = lambda A: flat(mk('ds_read_b128 %s, v%d offset:%d' % (v(A + 4 * q, 4), vB2, 16 * q)) for q in range(4))
        ad = []
        for n, x in enumerate((2, 1, 3)):
            ad += mk('s_xor_b32 s%d, s%d, %d\ns_mul_i32 s%d, s%d, 6144\ns_add_u32 s%d, s%d, %d\nv_add_u32 v%d, s%d, v%d'
                     % (sT3, sW, x, sT3, sT3, sT3, sT3, L_EX + 2048 * (x - 1), vEW[n], sT3, vL16))
        ad += mk('s_mul_i32 s%d, s%d, 6144\ns_add_u32 s%d, s%d, %d\nv_add_u32 v%d, s%d, v%d' % (sT3, sW, sT3, sT3, L_EX, vER, sT3, vL16))
        gA, gall, _ = self.gelu(ACC[1], KK[1], T)
        st, p3 = hpub(3)
        npre = o['npre']
        if l == 0:
            npre = 7
            fl = hflag(0, pend) + hflag(1, pend) + hflag(2, pend)
            self.w2_stage(gall[:o['flat']] + fl + gall[o['flat']:] + st, W2R, nsh,
                          {o['f3u']: hflag(3, p3), o['peu']: self.pa(14) + self.poll_issue(sPE), 25: self.poll_check(sPE) + resid(0) + cinit(AE) + hload(0) + hload(1),
                           26: hload(2) + hload(3) + hload(4), 27: hload(5) + hload(6)})
        else:
            P.add(spread([resid(0)] + [hload(i) for i in range(o['n3'], npre)], gall[:40] + hflag(2, pend) + cinit(AE) + gall[40:] + st))
        if self.fine:
            P.add(self.stamp('g3_end'))

        exch_write = lambda A: flat(mk('ds_write_b128 v%d, %s\nds_write_b128 v%d, %s offset:1024' % (vEW[n], v(r, 4), vEW[n], v(r + 4, 4)))
                                    for n, r in enumerate((A + 8, A + 16, A + 24)))
        exch_read = lambda: flat(mk('ds_read_b128 %s, v%d offset:%d' % (v(RX + 4 * q, 4), vER, 1024 * q)) for q in range(6))

        def addv(d, x, y, n, pk):
            if pk:
                return flat(mk('v_pk_add_f32 %s, %s, %s' % (v(d + i, 2), v(x + i, 2), v(y + i, 2))) for i in range(0, n, 2))
            return flat(mk('v_add_f32 v%d, v%d, v%d' % (d + i, x + i, y + i)) for i in range(n))

        def finish(A, q, pk):
            L = addv(A, A, RX, 8, pk) + addv(RX + 8, RX + 8, RX + 16, 8, pk) + addv(A, A, RX + 8, 8, pk) + self.pack(A, A, 4)
            if l == 0:
                L += self.stores(['buffer_store_dwordx4 %s, v%d, %s, s%d offen' % (v(A, 4), vL16, self.srd(SRD_CL), sFin + q)])
                rs = self.row_stats(A, 4, RX, RX + 2)
                blk = I('\n'.join(x.text for x in rs[:9]), kind='block', src=[r for x in rs[:9] for r in x.src], dst=[('v', RX), ('v', RX + 1), ('v', RX + 2)], states=1, cost=60)
                L += [blk] + mk('s_nop 2') + rs[9:]
                st = self.stores(['buffer_store_dword v%d, v%d, %s, s%d offen' % (RX, vL16, self.srd(SRD_CL), sFin + 2 + q)])
                tk = tok(st[-1])
                return L + st, self.flag([tk], sFin + 4 + q)
            L += mk('v_permlane32_swap_b32 v%d, v%d\nv_permlane32_swap_b32 v%d, v%d' % (A, A + 2, A + 1, A + 3))
            L += mk('buffer_store_dwordx4 %s, v%d, %s, s%d offen %s' % (v(A, 4), vPA, self.srd(SRD_OUT), sFin + q, ('', 'sc1', 'nt', 'sc0 sc1')[o['outf']]))
            return L, []

        slots = []
        nt = o['ntail']
        order = [(i, js) for i in range(56 - nt) for js in range(2)] + [(i, 1) for i in range(56 - nt, 56)] + [(i, 0) for i in range(56 - nt, 56)]
        for i, js in order:
            blk, kap = divmod(i, 28)
            A = (AE, AL)[blk]
            sl = mfma(A, v(SEL, 4), v(RS, 4)) if kap == 0 and js == 0 else []
            slots.append(sl + mfma(A + 16 * js, a(W2A + 8 * kap + 4 * js, 4), v(hreg[i], 4), kap == 0 and js == 1))
        sidx = 0
        for i in range(npre, 56):
            sidx = max(sidx, 2 * (i - 16) + 1 if i >= 16 else 0)
            if i == 28:
                sidx = max(sidx, o['lateL'])
                slots[sidx] += (self.stamp('preL') if self.fine else []) + self.poll_check(sPL) + (self.stamp('gotL') if self.fine else [])
            slots[sidx] += hload(i)
            assert sidx <= 2 * i - 6
            sidx += 1 if 2 * (i + 1) - sidx - 2 < o['lead'] else 2
        if l == 1:
            slots[o['flag3']] += (self.stamp('preF') if self.fine else []) + hflag(3, p3) + (self.stamp('gotF') if self.fine else [])
        slots[o['pollL']] += self.poll_issue(sPL)
        for i in range(0, len(ad), 4):
            slots[2 * (i // 4) + 30] += ad[i:i + 4]
        slots[40] += resid(1)
        if l == 0:
            slots[20] += mk('s_barrier')
        slots[46] += cinit(AL)
        if l == 1:
            slots[44] += mk('v_and_b32 v%d, 31, v0\nv_mul_u32_u24 v%d, 896, v%d\nv_lshrrev_b32 v%d, 5, v0\nv_lshl_add_u32 v%d, v%d, 4, v%d'
                            % (vPA, vPA, vPA, vPoll, vPA, vPoll, vPA))
        P.add(flat(slots[:56]))
        P.add(self.stamp('s4_E'))
        late = slots[56:]
        fin, fl = finish(AE, 0, False)
        xb0 = o['xbar']
        P.add(spread(late[:xb0], exch_write(AE), start=2, end=9))
        late[xb0] += (self.stamp('preX') if self.fine else []) + mk('s_waitcnt lgkmcnt(0)\ns_barrier') + (self.stamp('gotX') if self.fine else []) + exch_read()
        late[34] += (self.stamp('preY') if self.fine else []) + mk('s_barrier') + (self.stamp('gotY') if self.fine else [])
        late[44] += fl
        wl = exch_write(AL)
        if l == 1 and o['wb'] == 3:
            lw = P.newlabel('Lnowb')
            late[o['wbslot']] += [I('s_or_b32 s%d, s%d, s%d\ns_cmp_lg_u32 s%d, 0\ns_cbranch_scc1 %s\nbuffer_wbl2 sc1\n%s:' % (sT0, sM, sW, sT0, lw, lw), kind='block', cost=12)]
        for i in range(4):
            late[56 - nt + 2 + i] += [wl[2 + i]]
        P.add(spread(late[xb0:], fin, start=4, end=33 - xb0))
        P.add(self.stamp('s4_L'))
        P.add(wl[:2] + mk('s_waitcnt lgkmcnt(0)\ns_barrier') + exch_read())
        fin, fl = finish(AL, 1, True)
        P.add(fin + fl)
        P.add(self.stamp('x2_pub'))

    def build(self):
        P = self.P
        self.prologue()
        for l in range(2):
            self.s1(l)
            if self.stop == 's1_%d' % l:
                break
            self.kvx(l)
            if self.stop == 'o_%d' % l:
                break
            lnext = 'L_layer%d' % (l + 1)
            if l == 0:
                lsk = P.newlabel('Lskipmlp')
                P.add([I('s_cmp_ge_u32 s%d, 14\ns_cbranch_scc1 %s' % (sM, lsk), kind='block')])
                lp = P.newlabel('Lidle')
                t = [x.text for x in self.pa(28)] + ['s_mov_b32 s%d, %d' % (sT4, FXIN), lp + ':', 's_sleep %d' % self.o['isl'],
                                                     'buffer_load_dword v%d, v%d, %s, s%d offen sc1' % (vPoll, vPA, self.srd(SRD_CL), sT4),
                                                     's_add_u32 s%d, s%d, 1' % (sSpin, sSpin), 's_cmp_gt_u32 s%d, 0x40000' % sSpin, 's_cbranch_scc1 L_end',
                                                     's_waitcnt vmcnt(0)', 'v_cmp_ne_u32 vcc, s%d, v%d' % (sNonce, vPoll), 's_cbranch_vccnz %s' % lp,
                                                     's_sleep %d' % self.o['isl2']]
                self.ool.append('%s:\n%s\ns_waitcnt vmcnt(0) lgkmcnt(0)\n%s\ns_branch %s' % (lsk, self.idle_work(), '\n'.join(t), lnext))
            else:
                if self.o['wb'] in (1, 2):
                    lw, lp = P.newlabel('Lwb'), P.newlabel('Lwbp')
                    P.add([I('s_cmp_ge_u32 s%d, 14\ns_cbranch_scc1 %s' % (sM, lw), kind='block')])
                    t = [lw + ':']
                    if self.o['outt']:
                        lo = P.newlabel('Lot')
                        t += ['s_cmp_lg_u32 s%d, 15' % sM, 's_cbranch_scc1 %s' % lo, 'v_lshlrev_b32 v%d, 7, v0' % vT, 's_mov_b32 exec_hi, 0xffffff']
                        for i in range(4):
                            t += ['s_add_u32 s%d, s%d, %d' % (sT2, sX, i * 56 * 128), 'buffer_load_dword v%d, v%d, %s, s%d offen' % (vDummy, vT, self.srd(SRD_OUT), sT2)]
                        t += ['s_mov_b64 exec, -1', 's_waitcnt vmcnt(0)', lo + ':']
                    t += ['s_cmp_lg_u32 s%d, 14' % sM, 's_cbranch_scc1 L_fin', 's_cmp_lg_u32 s%d, 0' % sW, 's_cbranch_scc1 L_fin']
                    t += [x.text for x in self.pa(14, blocks=True)]
                    t += ['s_mov_b32 s%d, %d' % (sT4, FH + 512 * self.o['wbblk']), 's_sleep %d' % self.o['wbsl']] + (['buffer_wbl2 sc1', 's_waitcnt vmcnt(0)'] if self.o['wb'] == 2 else []) + [lp + ':', 's_sleep 4',
                          'buffer_load_dword v%d, v%d, %s, s%d offen sc1' % (vPoll, vPA, self.srd(SRD_CL), sT4),
                          's_add_u32 s%d, s%d, 1' % (sSpin, sSpin), 's_cmp_gt_u32 s%d, 0x40000' % sSpin, 's_cbranch_scc1 L_end',
                          's_waitcnt vmcnt(0)', 'v_cmp_ne_u32 vcc, s%d, v%d' % (sNonce, vPoll), 's_cbranch_vccnz %s' % lp,
                          'buffer_wbl2 sc1', 's_waitcnt vmcnt(0)', 's_branch L_fin']
                    self.ool.append('\n'.join(t))
                else:
                    P.add([I('s_cmp_ge_u32 s%d, 14\ns_cbranch_scc1 L_fin' % sM, kind='block')])
            self.s2(l)
            if self.stop == 'x1_%d' % l:
                P.label(lnext)
                break
            self.mlp(l)
            P.label(lnext)
            if l == 0:
                P('s_add_u32 s%d, s%d, %d\ns_add_u32 s%d, s%d, %d' % (sKv, sKv, KVP_L, sKvMy, sKvMy, KVP_L))
            if self.stop == 'x2_%d' % l:
                break
        P.add([I('s_cmp_lg_u32 s2, 0\ns_cbranch_scc1 L_fin\ns_cmp_lg_u32 s%d, 0\ns_cbranch_scc1 L_fin' % sW, kind='block')])
        P('s_mov_b64 exec, 1\nbuffer_store_dword v%d, off, %s, 0 sc1\ns_mov_b64 exec, -1' % (vNonce, self.srd(SRD_WS)))
        if self.probe is not None:
            P.add(self.stamp('end'))
            P.add([I('s_waitcnt lgkmcnt(0)\ns_sub_u32 s94, s94, s96\ns_lshl_b32 s94, s94, 2\ns_add_u32 s94, s94, 10000\nL_pr:\ns_memrealtime s[98:99]\ns_waitcnt lgkmcnt(0)\n'
                     's_sub_u32 s98, s98, s96\ns_cmp_lt_u32 s98, s94\ns_cbranch_scc1 L_pr', kind='block')])
        P.label('L_fin')
        if self.stamps:
            P('s_lshl_b32 s%d, s2, 2\ns_add_u32 s%d, s%d, s%d\ns_lshl_b32 s%d, s%d, 8\ns_add_u32 s%d, s%d, %d' % (sT0, sT0, sT0, sW, sT0, sT0, sT0, sT0, WS_STAMP))
            P.add(self.stamp('end'))
            P('s_memrealtime s[%d:%d]\ns_waitcnt lgkmcnt(0)\nv_writelane_b32 v%d, s%d, 63' % (sStamp, sStamp + 1, vStamp, sStamp))
            P('v_writelane_b32 v%d, s%d, 61' % (vStamp, sSpin))
            P('v_lshlrev_b32 v%d, 2, v0\nbuffer_store_dword v%d, v%d, %s, s%d offen' % (vT, vStamp, vT, self.srd(SRD_WS), sT0))
        P.label('L_end')
        P('s_endpgm')
        body, L = finalize(P.L)
        self.final = L
        ool = '\n'.join('\n'.join(('    ' + t if not t.endswith(':') else t) for t in b.split('\n') if t.strip()) for b in self.ool)
        head = open('cdna_kernels/%s.s.ref' % KNAME[:-7]).read().split('\n')
        hdr = [h for h in head if h.startswith(';') and '@launch' not in h]
        txt = '\n'.join(hdr) + '\n; @launch grid=(256,1,1) block=(256,1,1) lds=%d\n' % LDS_BYTES
        txt += '.amdgcn_target "amdgcn-amd-amdhsa--gfx950"\n.text\n.globl %s\n.p2align 8\n.type %s,@function\n%s:\n' % (KNAME, KNAME, KNAME)
        txt += body + ool + '\nL_code_end:\n'
        txt += '''.section .rodata,"a"
.p2align 6
.amdhsa_kernel %s
  .amdhsa_next_free_vgpr 512
  .amdhsa_next_free_sgpr 102
  .amdhsa_accum_offset 256
  .amdhsa_group_segment_fixed_size 0
  .amdhsa_kernarg_size 88
  .amdhsa_user_sgpr_count 2
  .amdhsa_user_sgpr_kernarg_segment_ptr 1
  .amdhsa_system_sgpr_workgroup_id_x 1
.end_amdhsa_kernel
''' % KNAME
        return txt


if __name__ == '__main__':
    import argparse
    ap = argparse.ArgumentParser()
    ap.add_argument('-o', default='k.s')
    ap.add_argument('--stop', default=None)
    ap.add_argument('--stamps', action='store_true')
    ap.add_argument('opts', nargs='*')
    A = ap.parse_args()
    opt = {k: (x if k in ('probe', 'light') else int(x)) for k, x in (t.split('=') for t in A.opts)}
    g = Gen(stop=A.stop, stamps=A.stamps, **opt)
    open(A.o, 'w').write(g.build())
    if A.stamps:
        open(A.o + '.stamps', 'w').write('\n'.join(g.stamp_names))
    n = {}
    for x in g.final:
        n[x.kind] = n.get(x.kind, 0) + 1
    nops = sum(x.states for x in g.final if x.op == 's_nop')
    print('instructions', n, 'nop states', nops)
```

```python
import sys, struct
from asmgen import *

KNAME = 'interleave_layers__linear_attn_block__mixer_channel_mlp__prompt_kernel'


def f32(x):
    return '0x%08x' % struct.unpack('<I', struct.pack('<f', x))[0]


LOG2E = 1.4426950408889634
LN2 = 0.6931471805599453
MF = 'v_mfma_f32_32x32x16_bf16'

WS_XCC = 0x8000
WS_STAMP = 0x10000
WS_KVP = 0x200000
KVP_CH = 9216
KVP_L = 0xA0000
WS_CL = 0x400000
LOFF = 0xD9000
O_OFF, X1_OFF, H_OFF, XIN_OFF, XST_OFF, FL_OFF = 0, 0x20000, 0x40000, 0xB0000, 0xD0000, 0xD8000
FO, FX1, FXIN, FH = FL_OFF, FL_OFF + 512, FL_OFF + 1024, FL_OFF + 1536

L_WQ = 0
L_Q = 57344
L_XB = 28672
L_EX = 86016
L_XS = 86016
L_WO = 114688
L_KVS = 143616
L_KVB = L_KVS + 16384
L_CS = L_KVB + 2048
L_B2 = L_CS + 768
LDS_BYTES = 163840
assert L_B2 + 512 <= LDS_BYTES

SRD_WQ, SRD_WO, SRD_W1, SRD_W2, SRD_X, SRD_OUT, SRD_B1, SRD_B2, SRD_CL, SRD_WS = range(4, 44, 4)
sC, sM, sW, sNonce, sSlow, sX, sSpin = 44, 45, 46, 47, 48, 49, 50
sT0, sT1, sT2, sT3, sT4, sT5 = 51, 52, 53, 54, 55, 56
sLn2, sXcc, sWi = 57, 58, 59
sN28, sHalf = 60, 62
sZm = 64
sXin, sD1 = 66, 67
sKA = 68
sEb, sLb, sC0, sC1, sHs, sFe = 68, 69, 70, 71, 72, 73
sBlk, sOst, sFo, sFoMy, sKv, sKvMy, sHE, sHL, sPE, sPL = 74, 75, 76, 77, 78, 79, 80, 81, 82, 83
sHst = 84
sRot = 85
sQ0, sQ1 = 86, 87
sFin, sRes = 28, 34
sTag = 22
sPm = 88
sStamp = 90
sPC = 92

vLane, vL16, vDummy, vTr, vNonce, vMean, vRl, vW1X, _w1x1, vPoll, vPA = range(0, 11)
vT = 11
vStamp = 15
vPoll2, vPoll3 = 15, 5
W2A = 0
W1A = 224
W1V = 176


def w1reg(k):
    return a(W1A + 4 * k, 4) if k < 8 else v(W1V + 4 * (k - 8), 4)


def w1half(k, hh):
    return a(W1A + 4 * k + 2 * hh, 2) if k < 8 else v(W1V + 4 * (k - 8) + 2 * hh, 2)


def flat(LL):
    return [x for L in LL for x in L]


def mfma(D, A, B, first=False):
    return mk('%s %s, %s, %s, %s' % (MF, v(D, 16), A, B, '0' if first else v(D, 16)))


class Gen:
    def __init__(self, stop=None, stamps=False, **opt):
        self.P = Prog()
        self.ool = []
        self.stop = stop
        self.stamps = stamps
        self.nstamp = 0
        self.stamp_names = []
        self.probe = opt.pop('probe', None)
        self.light = opt.pop('light', None)
        self.fine = bool(self.light or self.probe)
        if self.light is not None:
            self.light = self.light.split('+')
            assert len(self.light) <= 4
        self.seen = {}
        self.o = dict(kvdelay=10, poll2=0, psl=0, pdo=5, pdx=2, p1=1, pdi=0, s1pair=1, sta=13, stb=33, stc=48, isl=8, isl2=8, pollE=16, n3=4, st0=10, st1=23, stpos=1, x0=6, xstep=8, xlag=12, flagpos=8, gend=26, pollL=20, lateL=32, flag3=12, xbar=13, ntail=8, lead=16, look=6, pref=0, touch=1, codepf=1, rot=1, stnt=0, idlewq=0, reuse=1, npre=14, wqlate=84, pf0=1, w1q=4, nxb1=12, pfslot=50, w2fill=5, rest0=0, nsh=17, sh0=48, shgap=6, f3u=23, peu=22, alias=1, flat=24, pf2=98, htk=0, wb=0, wbblk=3, wbsl=100, wbslot=36, outf=0, outt=0, idlew2=11, woslot=41, tslot=46, latespan=14, strot=1, w1b2=70, look2=10, l1touch=0, xsc1=1, storder=0)
        self.o.update(opt)

    def srd(self, r):
        return s(r, 4)

    def stamp(self, name):
        if self.probe is not None:
            self.seen[name] = self.seen.get(name, 0) + 1
            if self.probe == '%s#%d' % (name, self.seen[name]):
                return [I('s_memrealtime s[94:95]', kind='block', states=1)]
            return []
        if not self.stamps:
            return []
        if self.light is not None:
            self.seen[name] = self.seen.get(name, 0) + 1
            key = '%s#%d' % (name, self.seen[name])
            if name == 'end':
                self.stamp_names.append('end')
                t = ['s_memtime s[88:89]', 's_waitcnt lgkmcnt(0) vmcnt(0)', 'v_writelane_b32 v%d, s98, 62' % vStamp]
                for i, r in enumerate([100] + [90 + 2 * j for j in range(len(self.stamp_names) - 2)] + [88]):
                    t.append('v_writelane_b32 v%d, s%d, %d' % (vStamp, r, i))
                return [I('\n'.join(t), kind='block', drain_lgkm=True)]
            if name != 'start' and key not in self.light:
                return []
            r = 100 if name == 'start' else 90 + 2 * (len(self.stamp_names) - 1)
            self.stamp_names.append(key if name != 'start' else name)
            return [I('s_memtime s[%d:%d]' % (r, r + 1), kind='block')]
        i = self.nstamp
        self.nstamp += 1
        self.stamp_names.append(name)
        t = 's_memtime s[%d:%d]\ns_waitcnt lgkmcnt(0)\nv_writelane_b32 v%d, s%d, %d' % (sStamp, sStamp + 1, vStamp, sStamp, i)
        return [I(t, kind='block', dst=[], src=[], drain_lgkm=True, states=3)]

    def stores(self, lines):
        insts = mk('\n'.join(lines))
        src = [r for x in insts for r in x.src]
        wide = [r for x in insts for r in x.wide]
        ls, lb = self.P.newlabel('Lslow'), self.P.newlabel('Lback')
        txt = 's_cmp_lg_u32 s%d, 0\ns_cbranch_scc1 %s\n%s\n%s:' % (sSlow, ls, '\n'.join(lines), lb)
        self.ool.append('%s:\n%s\ns_branch %s' % (ls, '\n'.join(l + ' sc1' for l in lines), lb))
        return [I(txt, kind='block', src=src, nvm=len(lines), wide=wide, states=1, cost=8 + 4 * len(lines))]

    def flag(self, toks, soff, off=0):
        st = self.stores(['buffer_store_dword v%d, off, %s, s%d offset:%d' % (vNonce, self.srd(SRD_CL), soff, off)])[0]
        st.text = 's_mov_b64 exec, 1\n' + st.text + '\ns_mov_b64 exec, -1'
        st.cost += 8
        return [wait_tok(*toks), st]

    def poll_issue(self, soff, delay=0):
        return (mk('s_sleep %d' % delay) if delay else []) + mk('buffer_load_dword v%d, v%d, %s, s%d offen sc1' % (vPoll, vPA, self.srd(SRD_CL), soff))

    def poll_check(self, soff, tag=False):
        ls, lb = self.P.newlabel('Lspin'), self.P.newlabel('Lgot')

        def cmp(r):
            if tag:
                return 'v_lshrrev_b32 v%d, 16, v%d\nv_cmp_ne_u32 vcc, s%d, v%d' % (r, r, sTag, r)
            return 'v_cmp_ne_u32 vcc, s%d, v%d' % (sNonce, r)
        ld = lambda r: 'buffer_load_dword v%d, v%d, %s, s%d offen sc1' % (r, vPA, self.srd(SRD_CL), soff)
        if self.o['poll2']:
            l1 = self.P.newlabel('Lsp')
            t = [ls + ':', ld(vPoll2), 's_sleep 2', l1 + ':', ld(vPoll3), 's_waitcnt vmcnt(1)', cmp(vPoll2), 's_cbranch_vccz %s' % lb,
                 ld(vPoll2), 's_add_u32 s%d, s%d, 1' % (sSpin, sSpin), 's_cmp_gt_u32 s%d, 0x40000' % sSpin, 's_cbranch_scc1 L_end',
                 's_waitcnt vmcnt(1)', cmp(vPoll3), 's_cbranch_vccnz %s' % l1, 's_branch %s' % lb]
        else:
            t = [ls + ':'] + (['s_sleep %d' % self.o['psl']] if self.o['psl'] else []) + [ld(vPoll), 's_add_u32 s%d, s%d, 1' % (sSpin, sSpin), 's_cmp_gt_u32 s%d, 0x40000' % sSpin, 's_cbranch_scc1 L_end',
                 's_waitcnt vmcnt(0)', cmp(vPoll), 's_cbranch_vccnz %s' % ls, 's_branch %s' % lb]
        self.ool.append('\n'.join(t))
        return [I(cmp(vPoll) + '\ns_cbranch_vccnz %s\n%s:' % (ls, lb), kind='block', src=[('v', vPoll)], dst=[('x', 'vcc'), ('v', vPoll)], states=2, cost=8)]

    def pa(self, n, blocks=False, reg=vPA):
        L = 'v_and_b32 v%d, %d, v0\n' % (reg, 15 if n <= 16 else 31)
        if n not in (16, 32):
            L += 'v_min_u32 v%d, %d, v%d\n' % (reg, n - 1, reg)
        L += 'v_lshlrev_b32 v%d, 2, v%d\n' % (reg, reg)
        if blocks:
            L += 'v_lshrrev_b32 v%d, 4, v0\nv_lshl_add_u32 v%d, v%d, 7, v%d' % (vT + 3, reg, vT + 3, reg)
        return mk(L)

    def trbase(self, dst, RS, kh, add=0, xor16=None):
        t = vT
        L = ['v_lshrrev_b32 v%d, 5, v%d' % (dst, vLane),
             'v_mul_u32_u24 v%d, %d, v%d' % (dst, kh, dst),
             'v_bfe_u32 v%d, v%d, 2, 2' % (t, vLane),
             'v_add_u32 v%d, v%d, v%d' % (dst, dst, t),
             'v_mul_u32_u24 v%d, %d, v%d' % (dst, RS, dst),
             'v_bfe_u32 v%d, v%d, 4, 1' % (t, vLane)]
        if xor16 is not None:
            L.append('v_xor_b32 v%d, s%d, v%d' % (t, xor16, t))
        L += ['v_lshl_add_u32 v%d, v%d, 5, v%d' % (dst, t, dst),
              'v_and_b32 v%d, 3, v%d' % (t, vLane),
              'v_lshl_add_u32 v%d, v%d, 3, v%d' % (dst, t, dst)]
        if add:
            L.append('v_add_u32 v%d, %d, v%d' % (dst, add, dst))
        return mk('\n'.join(L))

    def frag_loads(self, dsts, srd, sbase, const0, stride=1024, flags='', st=sT0):
        out = []
        cur = None
        for i, d in enumerate(dsts):
            off = const0 + i * stride
            grp = []
            if cur is None or not (0 <= off - cur <= 4095):
                cur = off
                grp += mk('s_add_u32 s%d, s%d, %d' % (st, sbase, off))
            grp += mk('buffer_load_dwordx4 %s, v%d, %s, s%d offen offset:%d %s' % (d, vL16, self.srd(srd), st, off - cur, flags))
            out.append(grp)
        return out

    def stats_finish(self, acc, double_ln):
        t1, t2 = vT + 1, vT + 2
        L = ['v_mov_b32 v%d, v%d' % (t1, acc),
             'v_mov_b32 v%d, v%d' % (vMean, acc),
             'v_permlane32_swap_b32 v%d, v%d' % (vMean, t1),
             'v_mul_f32 v%d, %s, v%d' % (vMean, f32(1.0 / 448), vMean),
             'v_mul_f32 v%d, %s, v%d' % (t1, f32(1.0 / 448), t1),
             'v_fma_f32 v%d, -v%d, v%d, v%d' % (t1, vMean, vMean, t1),
             'v_max_f32 v%d, 0, v%d' % (t1, t1),
             'v_add_f32 v%d, %s, v%d' % (t2, f32(1e-5), t1),
             'v_rsq_f32 v%d, v%d' % (vRl, t2)]
        if double_ln:
            L += ['v_mul_f32 v%d, v%d, v%d' % (t2, vRl, vRl),
                  'v_fmaak_f32 v%d, v%d, v%d, %s' % (t1, t1, t2, f32(1e-5)),
                  'v_rsq_f32 v%d, v%d' % (t1, t1),
                  'v_mul_f32 v%d, v%d, v%d' % (vRl, vRl, t1)]
        else:
            L += ['v_mul_f32 v%d, %s, v%d' % (vRl, f32(LOG2E), vRl)]
        return mk('\n'.join(L))

    def split_act(self, d0, val, t):
        return mk('\n'.join([
            'v_cvt_pk_bf16_f32 v%d, v%d, v%d' % (d0 + 1, val, val),
            'v_and_b32 v%d, 0xffff0000, v%d' % (t, d0 + 1),
            'v_sub_f32 v%d, v%d, v%d' % (t, val, t),
            'v_cvt_pk_bf16_f32 v%d, v%d, v%d' % (d0, val, t),
            'v_and_b32 v%d, 0xffff, v%d' % (d0 + 1, d0 + 1),
            'v_cndmask_b32 v%d, v%d, 0, s[%d:%d]' % (d0 + 1, d0 + 1, sHalf, sHalf + 1)]))

    def split_w(self, d0, val, t):
        return mk('\n'.join([
            'v_cvt_pk_bf16_f32 v%d, v%d, v%d' % (d0, val, val),
            'v_and_b32 v%d, 0xffff0000, v%d' % (t, d0),
            'v_sub_f32 v%d, v%d, v%d' % (t, val, t),
            'v_cvt_pk_bf16_f32 v%d, v%d, 0' % (d0 + 1, t)]))

    def phi8(self, r0, R, T, eps):
        L = ['v_pk_mul_f32 %s, %s, %s' % (v(r0 + i, 2), v(r0 + i, 2), R(i)) for i in range(0, 8, 2)]
        for i in range(8):
            L += ['v_exp_f32 v%d, v%d clamp' % (T + i, r0 + i), 'v_max_f32 v%d, 0, v%d' % (r0 + i, r0 + i)]
        L += ['v_pk_fma_f32 %s, %s, s[%d:%d], %s op_sel:[0,1,0] op_sel_hi:[1,1,1]' % (v(r0 + i, 2), v(r0 + i, 2), sLn2 - 1, sLn2, v(T + i, 2)) for i in range(0, 8, 2)]
        L += ['v_pk_add_f32 %s, %s, %s op_sel_hi:[1,0]' % (v(r0 + i, 2), v(r0 + i, 2), v(eps, 2)) for i in range(0, 8, 2)]
        return mk('\n'.join(L))

    def pack(self, dst, src, n):
        return mk('\n'.join('v_cvt_pk_bf16_f32 v%d, v%d, v%d' % (dst + i, src + 2 * i, src + 2 * i + 1) for i in range(n)))

    def unpack(self, dst, src, n):
        L = []
        for i in reversed(range(n)):
            L.append('v_and_b32 v%d, 0xffff0000, v%d' % (dst + 2 * i + 1, src + i))
            L.append('v_lshlrev_b32 v%d, 16, v%d' % (dst + 2 * i, src + i))
        return mk('\n'.join(L))

    def dots(self, regs, acc, ones, first):
        L = []
        for i, r in enumerate(regs):
            z = first and i == 0
            L.append('v_dot2_f32_bf16 v%d, v%d, v%d, %s' % (acc, r, ones, '0' if z else 'v%d' % acc))
            L.append('v_dot2_f32_bf16 v%d, v%d, v%d, %s' % (acc + 1, r, r, '0' if z else 'v%d' % (acc + 1)))
        return mk('\n'.join(L))

    def dots_end(self, acc):
        return mk('v_permlane32_swap_b32 v%d, v%d\nv_add_f32 v%d, v%d, v%d' % (acc, acc + 1, acc, acc, acc + 1))

    def row_stats(self, src, n, acc, ones):
        return mk('v_mov_b32 v%d, 0x3f803f80' % ones) + self.dots(range(src, src + n), acc, ones, True) + self.dots_end(acc)

    def kv_lane_addr(self, d, t, u, gather):
        L = []
        if gather:
            L += ['v_and_b32 v%d, 31, v0' % t, 'v_lshrrev_b32 v%d, 5, v0' % d]
        else:
            L += ['v_lshrrev_b32 v%d, 5, v0' % t, 'v_and_b32 v%d, 15, v0' % u, 'v_lshl_add_u32 v%d, v%d, 1, v%d' % (t, u, t), 'v_bfe_u32 v%d, v0, 4, 1' % d]
        L += ['v_lshrrev_b32 v%d, 3, v%d' % (u, t), 'v_sub_u32 v%d, v%d, v%d' % (u, t, u)]
        if not gather:
            L += ['v_and_b32 v%d, 7, v%d' % (t, t), 'v_cmp_eq_u32 vcc, 7, v%d' % t, 'v_cndmask_b32 v%d, v%d, 31, vcc' % (u, u)]
        L += ['v_lshl_add_u32 v%d, v%d, 5, v%d' % (d, d, u)]
        sh, qs, base = (4, 10, L_KVS) if gather else (5, 3, L_KVB)
        L += ['s_lshl_b32 s%d, s%d, %d' % (sT2, sW, qs), 'v_lshlrev_b32 v%d, %d, v%d' % (d, sh, d), 'v_add_u32 v%d, s%d, v%d' % (d, sT2, d)]
        L += ['v_and_b32 v%d, 1, v%d' % (t, u), 'v_lshlrev_b32 v%d, %d, v%d' % (t, 5 + sh, t), 'v_lshrrev_b32 v%d, 1, v%d' % (u, u)]
        L += ['v_cmp_gt_u32 vcc, 4, v%d' % u]
        L += ['v_lshl_add_u32 v%d, v%d, %d, v%d' % (t, u, qs, t), 'v_add_u32 v%d, %d, v%d' % (t, 28 << sh, t)]
        L += ['s_and_b64 vcc, vcc, s[%d:%d]' % ((sZm, sZm + 1) if gather else (sPm, sPm + 1)), 'v_cndmask_b32 v%d, v%d, v%d, vcc' % (d, d, t),
              'v_add_u32 v%d, %d, v%d' % (d, base, d)]
        return mk('\n'.join(L))

    def wq_dma(self, va, q):
        if q:
            ad = 'v_lshrrev_b32 v%d, 2, v0\nv_mul_u32_u24 v%d, 2688, v%d\nv_and_b32 v%d, 3, v0\nv_lshl_add_u32 v%d, v%d, 4, v%d' % (va, va, va, vT, va, vT, va)
        else:
            ad = ('v_lshrrev_b32 v%d, 3, v0\nv_mul_u32_u24 v%d, 2688, v%d\nv_and_b32 v%d, 3, v0\nv_lshl_add_u32 v%d, v%d, 4, v%d\n'
                  'v_lshrrev_b32 v%d, 2, v0\nv_xor_b32 v%d, v%d, v0\nv_bfe_u32 v%d, v%d, 2, 1\nv_mul_u32_u24 v%d, 896, v%d\nv_add3_u32 v%d, v%d, v%d, s%d'
                  % (va, va, va, vT, va, vT, va, vT, vT, vT, vT, vT, vT, vT, va, va, vT, sQ0))
        rows = 16 if q else 8
        pre = mk('s_mul_i32 s%d, s%d, 56\ns_add_u32 s%d, s%d, 896' % (sQ1, sM, sQ0, sQ1)) + mk(ad)
        if q:
            pre += mk('v_add_u32 v%d, s%d, v%d' % (va, sQ1, va))
        pre += mk('s_mul_i32 s%d, s%d, %d\ns_lshl_b32 s%d, s%d, 10' % (sRot, sW, rows * 2688, sQ1, sW))
        out = []
        for t in range(7 if q else 14):
            out.append(mk('s_add_u32 m0, s%d, %d\ns_add_u32 s%d, s%d, %d\nbuffer_load_dwordx4 v%d, %s, s%d offen lds'
                          % (sQ1, (L_Q if q else L_WQ) + 4096 * t, sQ0, sRot, 4 * t * rows * 2688, va, self.srd(SRD_WQ), sQ0)))
        return pre, out

    def touch(self, items, va):
        if not self.o['touch']:
            return []
        txt = ['v_lshlrev_b32 v%d, 7, v0' % va]
        cur = None
        n = 0
        for nl, srd, sg, c in items:
            if nl != cur:
                txt.append('s_mov_b64 exec, 0x%x' % ((1 << nl) - 1))
                cur = nl
            txt.append('s_add_u32 s%d, s%d, %d' % (sT2, sg, c) if sg is not None else 's_mov_b32 s%d, %d' % (sT2, c))
            txt.append('buffer_load_dword v%d, v%d, %s, s%d offen sc1' % (vDummy, va, self.srd(srd), sT2))
            n += 1
        txt.append('s_mov_b64 exec, -1')
        return [I('\n'.join(txt), kind='block', nvm=n, dst=[('v', va)], src=[('v', 0)], states=1, cost=12 * n)]

    def touch_attn(self, lo, va):
        pre = mk('s_lshr_b32 s%d, s%d, 2\ns_lshl_b32 s%d, s%d, 10\ns_add_u32 s%d, s%d, s%d\ns_mul_i32 s%d, s%d, 896' % (sT1, sM, sT1, sT1, sT1, sT1, sBlk, sT0, sW))
        return pre + self.touch([(16, SRD_CL, sOst, lo), (16, SRD_CL, sOst, lo + X1_OFF), (8, SRD_CL, sT1, lo + X1_OFF + 28672),
                                 (7, SRD_CL, sT0, lo + FL_OFF)], va)

    def prefetch(self, va, items):
        txt, n = ['v_lshlrev_b32 v%d, 7, v0' % va], 0
        for srd, per in items:
            for j in range(0, per, 64):
                nl = min(64, per - j)
                txt += ['s_mul_i32 s%d, s%d, %d' % (sT2, sWi, per * 128), 's_add_u32 s%d, s%d, %d' % (sT2, sT2, j * 128),
                        's_mov_b32 exec_lo, 0x%x' % (((1 << nl) - 1) & 0xffffffff), 's_mov_b32 exec_hi, 0x%x' % (((1 << nl) - 1) >> 32),
                        'buffer_load_dword v%d, v%d, %s, s%d offen' % (vDummy, va, self.srd(srd), sT2)]
                n += 1
        return [I('\n'.join(txt + ['s_mov_b64 exec, -1']), kind='block', nvm=n, src=[('v', 0)], dst=[('v', va)], cost=20 * n)]

    def idle_work(self):
        va = vT
        l = self.P.newlabel('Lnowarm')
        T = ['s_cmp_lg_u32 s%d, 0' % sSlow, 's_cbranch_scc1 %s' % l,
             'v_lshlrev_b32 v%d, 7, v0' % va,
             's_and_b32 s%d, s%d, 1' % (sT0, sM), 's_lshl_b32 s%d, s%d, 2' % (sT0, sT0), 's_add_u32 s%d, s%d, s%d' % (sT0, sT0, sW)]
        ld = lambda srd, fl: 'buffer_load_dword v%d, v%d, %s, s%d offen %s' % (vDummy, va, self.srd(srd), sT2, fl)
        nw2 = self.o['idlew2']
        if nw2:
            T += ['s_lshr_b32 s%d, s%d, 3' % (sT1, sC), 's_lshl_b32 s%d, s%d, 3' % (sT1, sT1), 's_add_u32 s%d, s%d, s%d' % (sT1, sT1, sT0),
                  's_lshl_b32 s%d, s%d, 13' % (sT2, sT1)]
            for i in range(nw2):
                T += [ld(SRD_W2, ''), 's_add_u32 s%d, s%d, 131072' % (sT2, sT2)]
        for i in range(2 * self.o['htk'] - (self.o['htk'] > 1), 7):
            T += ['s_lshl_b32 s%d, s%d, 13' % (sT2, sT0), 's_add_u32 s%d, s%d, %d' % (sT2, sT2, H_OFF + i * 65536), ld(SRD_CL, 'sc1')]
        if not self.o['alias']:
            for i in range(2):
                T += ['s_lshl_b32 s%d, s%d, 13' % (sT2, sT0), 's_add_u32 s%d, s%d, %d' % (sT2, sT2, XIN_OFF + i * 65536), ld(SRD_CL, 'sc1')]
        T += ['s_lshl_b32 s%d, s%d, 12' % (sT2, sT0), 's_add_u32 s%d, s%d, %d' % (sT2, sT2, XST_OFF), 's_mov_b32 exec_hi, 0', ld(SRD_CL, 'sc1'), 's_mov_b64 exec, -1']
        T += [l + ':']
        return '\n'.join(T)

    def prologue(self):
        P = self.P
        o = self.o
        P('s_cmp_ge_u32 s2, 256\ns_cbranch_scc1 L_end')
        if self.probe is not None:
            P.add([I('s_memrealtime s[96:97]\ns_memrealtime s[94:95]', kind='block', states=1)])
        P('s_load_dwordx16 s[%d:%d], s[0:1], 0' % (sKA, sKA + 15))
        P('s_load_dwordx4 s[%d:%d], s[0:1], 64' % (sKA + 16, sKA + 19))
        P('s_load_dwordx2 s[%d:%d], s[0:1], 80' % (sKA + 20, sKA + 21))
        P('v_lshrrev_b32 v%d, 6, v0\nv_and_b32 v0, 63, v0\nv_readfirstlane_b32 s%d, v%d' % (vT, sW, vT))
        P('s_lshr_b32 s%d, s2, 3\ns_lshl_b32 s%d, s%d, 2\ns_add_u32 s%d, s%d, s%d' % (sM, sWi, sM, sWi, sWi, sW))
        if o['codepf']:
            P.add([I('s_getpc_b64 s[%d:%d]\nL_pc:' % (sPC, sPC + 1), kind='block', dst=[], states=1)])
            P('s_lshl_b32 s%d, s%d, 9\nv_lshlrev_b32 v%d, 7, v0\nv_add_u32 v%d, s%d, v%d' % (sT0, sWi, vT, vT, sT0, vT))
            P.add([I('v_min_u32 v%d, L_code_end-L_pc-4, v%d\ns_mov_b64 exec, 15\nglobal_load_dword v%d, v%d, s[%d:%d]\ns_mov_b64 exec, -1'
                     % (vT, vT, vDummy, vT, sPC, sPC + 1), kind='block', dst=[('v', vT)], src=[('v', vT)], nvm=1)])
        P('s_and_b32 s%d, s2, 7\ns_lshr_b32 s%d, s%d, 4\ns_lshl_b32 s%d, s%d, 3\ns_add_u32 s%d, s%d, s%d\ns_and_b32 s%d, s%d, 15'
          % (sC, sT0, sM, sT0, sT0, sC, sC, sT0, sM, sM))
        P('v_lshlrev_b32 v%d, 4, v0' % vL16)
        if self.stamps:
            P('v_mov_b32 v%d, 0' % vStamp)
            P.add(self.stamp('start'))
            if self.light is not None:
                P('s_memrealtime s[98:99]\ns_waitcnt lgkmcnt(0)')
            else:
                assert not o['poll2']
                P('s_memrealtime s[%d:%d]\ns_waitcnt lgkmcnt(0)\nv_writelane_b32 v%d, s%d, 62' % (sStamp, sStamp + 1, vStamp, sStamp))
        P('s_lshl_b32 s%d, s%d, 2\ns_add_u32 s%d, s%d, s%d\ns_mul_i32 s%d, s%d, %d' % (sX, sC, sX, sX, sW, sX, sX, 32 * 896))
        vq, vxb, vxh, vxa, vrd = 160, 163, 164, 165, 167
        P('v_lshrrev_b32 v%d, 5, v0\nv_and_b32 v%d, 31, v0\nv_xor_b32 v%d, v%d, v%d\nv_lshlrev_b32 v%d, 4, v%d\nv_mul_u32_u24 v%d, 896, v%d'
          % (vxh, vT, vxb, vT, vxh, vxb, vxb, vxh, vxh))
        ka = sKA

        def mksrd(r, p, size):
            P('s_mov_b32 s%d, s%d\ns_mov_b32 s%d, s%d\ns_mov_b32 s%d, %d\ns_mov_b32 s%d, 0x20000' % (r, p, r + 1, p + 1, r + 2, size, r + 3))
        P('s_lshl_b32 s%d, s%d, 14\ns_add_u32 s%d, s%d, %d' % (sT5, sW, sT5, sT5, L_XS))
        mksrd(SRD_X, ka + 0, 2048 * 896)

        def xdma(half):
            out = []
            for i in range(16):
                if half:
                    g = mk('s_mov_b32 s%d, %d\nv_xad_u32 v%d, v%d, s%d, v%d' % (sT0, ((2 * i) & 15) << 4, vxa + (i & 1), vxb, sT0, vxh))
                    g += mk('s_add_u32 s%d, s%d, %d\ns_add_u32 m0, s%d, %d' % (sT1, sX, 2 * i * 896 + 512, sT5, 1024 * i))
                    out.append(g + mk('buffer_load_dwordx4 v%d, %s, s%d offen lds' % (vxa + (i & 1), self.srd(SRD_X), sT1)))
                    continue
                g = mk('s_add_u32 s%d, s%d, %d\ns_and_b32 s%d, s%d, 15' % (sT4, sM, i, sT4, sT4) if o['rot'] else 's_mov_b32 s%d, %d' % (sT4, i))
                g += mk('s_lshl_b32 s%d, s%d, 5\ns_and_b32 s%d, s%d, 0xf0\nv_xad_u32 v%d, v%d, s%d, v%d' % (sT0, sT4, sT0, sT0, vxa + (i & 1), vxb, sT0, vxh))
                g += mk('s_mul_i32 s%d, s%d, 1792\ns_add_u32 s%d, s%d, s%d\ns_lshl_b32 s%d, s%d, 10\ns_add_u32 m0, s%d, s%d' % (sT1, sT4, sT1, sT1, sX, sT4, sT4, sT4, sT5))
                g += mk('buffer_load_dwordx4 v%d, %s, s%d offen lds' % (vxa + (i & 1), self.srd(SRD_X), sT1))
                out.append(g)
            return out
        mksrd(SRD_WQ, ka + 2, 448 * 2688)
        if o['pf0']:
            P('v_lshlrev_b32 v%d, 7, v0\ns_lshl_b32 s%d, s%d, 2\ns_add_u32 s%d, s%d, s%d\ns_mul_i32 s%d, s%d, %d\ns_mul_i32 s%d, s%d, %d\ns_add_u32 s%d, s%d, s%d\ns_mul_i32 s%d, s%d, 49'
              % (vxa, sT0, sM, sT0, sT0, sW, sT0, sT0, 14 * 128, sT1, sC, 128 * 896, sT0, sT0, sT1, sT1, sWi))
            if o['pf0'] == 1:
                P('v_add_u32 v%d, s%d, v0\nv_mul_u32_u24 v%d, 37450, v%d\nv_lshrrev_b32 v%d, 19, v%d\nv_mul_u32_u24 v%d, 896, v%d\nv_lshl_add_u32 v%d, v%d, 7, v%d'
                  % (vT, sT1, vxa + 1, vT, vxa + 1, vxa + 1, vxa + 1, vxa + 1, vxa + 1, vT, vxa + 1))
                P.add([I('s_mov_b64 exec, 0x3fff\nbuffer_load_dword v%d, v%d, %s, s%d offen\ns_mov_b32 exec_lo, -1\ns_mov_b32 exec_hi, 0x1ffff\n'
                         'buffer_load_dword v%d, v%d, %s, 0 offen offset:896\ns_mov_b64 exec, -1'
                         % (vDummy, vxa, self.srd(SRD_X), sT0, vDummy, vxa + 1, self.srd(SRD_WQ)), kind='block', nvm=2, src=[('v', vxa), ('v', vxa + 1)])])
            else:
                P.add([I('s_mov_b64 exec, 0x3fff\nbuffer_load_dword v%d, v%d, %s, s%d offen\ns_mov_b64 exec, -1' % (vDummy, vxa, self.srd(SRD_X), sT0),
                         kind='block', nvm=1, src=[('v', vxa)])])
                P.add(self.prefetch(vxa, [(SRD_WQ, 74)]))
        body = [x.text for x in xdma(0)[0]]
        body[0] = 's_add_u32 s%d, s%d, s%d' % (sT4, sM, sT2) if o['rot'] else 's_mov_b32 s%d, s%d' % (sT4, sT2)
        loop = I('\n'.join(['s_mov_b32 s%d, 0' % sT2, 'L_xa:'] + body[:-1] + ['s_add_u32 s%d, s%d, 1' % (sT2, sT2), 's_cmp_lt_u32 s%d, 16' % sT2, body[-1],
                                                                            's_cbranch_scc1 L_xa']), kind='block', nvm=16, src=[('v', vxb), ('v', vxh)] + regs_of(s(SRD_X, 4)), dst=[('v', vxa)])
        tA = tok(loop)
        P.add([loop])
        P('s_load_dword s%d, s[%d:%d], 0' % (sNonce, ka + 20, ka + 21))
        mksrd(SRD_OUT, ka + 16, 2048 * 896)
        pre, wq = self.wq_dma(vq, False)
        self.tok_wq1, self.tok_wq = tok(wq[7][-1]), tok(wq[-1][-1])
        P.add(pre + flat(wq[:8]))
        mksrd(SRD_WO, ka + 4, 448 * 896)
        mksrd(SRD_W1, ka + 8, 448 * 3584)
        mksrd(SRD_B1, ka + 10, 3584)
        mksrd(SRD_W2, ka + 12, 1792 * 896)
        mksrd(SRD_B2, ka + 14, 896)
        mksrd(SRD_WS, ka + 20, WS_CL)
        P('s_lshl_b32 s%d, s%d, 21\ns_add_u32 s%d, s%d, %d' % (sT0, sC, sT0, sT0, WS_CL))
        P('s_add_u32 s%d, s%d, s%d\ns_addc_u32 s%d, s%d, 0\ns_mov_b32 s%d, 0x200000\ns_mov_b32 s%d, 0x20000'
          % (SRD_CL, ka + 20, sT0, SRD_CL + 1, ka + 21, SRD_CL + 2, SRD_CL + 3))
        P('s_mov_b32 s%d, %s\ns_mov_b32 s%d, 0\ns_mov_b32 s%d, -1' % (sLn2, f32(LN2), sHalf, sHalf + 1))
        P('s_mov_b32 s%d, 0x10000000\ns_mov_b32 s%d, 0x10000000\ns_mov_b32 s%d, 0' % (sN28, sN28 + 1, sSpin))
        P('s_getreg_b32 s%d, hwreg(HW_REG_XCC_ID, 0, 4)' % sXcc)
        P('s_and_b32 s%d, s%d, 1\ns_sub_u32 s%d, 3, s%d' % (sEb, sM, sLb, sEb))
        P('s_cmp_eq_u32 s%d, 3\ns_cselect_b32 s%d, -1, 0\ns_mov_b32 s%d, 0' % (sW, sZm + 1, sZm))
        P('s_lshr_b32 s%d, s%d, 3' % (sD1, sC) if o['strot'] else 's_mov_b32 s%d, 0' % sD1)
        c0 = -2.0 * 0.7978845608028654 * LOG2E
        P('s_mov_b32 s%d, %s\ns_mov_b32 s%d, %s' % (sC0, f32(c0), sC1, f32(c0 * 0.044715)))
        P('s_lshr_b32 s%d, s%d, 1\ns_lshl_b32 s%d, s%d, 2\ns_and_b32 s%d, s%d, 1\ns_lshl_b32 s%d, s%d, 1\ns_add_u32 s%d, s%d, s%d\ns_lshr_b32 s%d, s%d, 1\ns_add_u32 s%d, s%d, s%d'
          % (sFe, sM, sFe, sFe, sT0, sW, sT0, sT0, sFe, sFe, sT0, sT0, sW, sFe, sFe, sT0))
        P('s_lshl_b32 s%d, s%d, 15\ns_lshl_b32 s%d, s%d, 11\ns_add_u32 s%d, s%d, s%d' % (sBlk, sW, sOst, sM, sOst, sOst, sBlk))
        P('s_lshl_b32 s%d, s%d, 7\ns_add_u32 s%d, s%d, %d\ns_lshl_b32 s%d, s%d, 2\ns_add_u32 s%d, s%d, s%d' % (sFo, sW, sFo, sFo, FL_OFF, sT0, sM, sFoMy, sFo, sT0))
        P('s_lshl_b32 s%d, s%d, 2\ns_add_u32 s%d, s%d, s%d\ns_mul_i32 s%d, s%d, %d\ns_add_u32 s%d, s%d, %d' % (sT1, sM, sT1, sT1, sW, sKv, sT1, KVP_CH, sKv, sKv, WS_KVP))
        P('s_lshl_b32 s%d, s%d, 9\ns_add_u32 s%d, s%d, s%d' % (sKvMy, sC, sKvMy, sKvMy, sKv))
        P('s_lshl_b32 s%d, s%d, 11\ns_add_u32 s%d, s%d, %d' % (sHst, sT1, sHst, sHst, H_OFF))
        P('s_lshl_b32 s%d, s%d, 11\ns_add_u32 s%d, s%d, %d' % (sT1, sW, sT1, sT1, H_OFF))
        P('s_mul_i32 s%d, s%d, 114688\ns_add_u32 s%d, s%d, s%d\ns_mul_i32 s%d, s%d, 114688\ns_add_u32 s%d, s%d, s%d' % (sHE, sEb, sHE, sHE, sT1, sHL, sLb, sHL, sHL, sT1))
        P('s_lshl_b32 s%d, s%d, 9\ns_add_u32 s%d, s%d, s%d\ns_add_u32 s%d, s%d, %d' % (sPE, sEb, sPE, sPE, sFo, sPE, sPE, FH - FL_OFF))
        P('s_lshl_b32 s%d, s%d, 9\ns_add_u32 s%d, s%d, s%d\ns_add_u32 s%d, s%d, %d' % (sPL, sLb, sPL, sPL, sFo, sPL, sPL, FH - FL_OFF))
        self.xreg0 = xr = [16 + 4 * i if i < 20 else 176 + 4 * (i - 20) for i in range(28)]
        P('v_and_b32 v%d, 15, v0\nv_lshrrev_b32 v%d, 5, v0\nv_xor_b32 v%d, v%d, v%d\nv_lshlrev_b32 v%d, 4, v%d\nv_and_b32 v%d, 31, v0\nv_lshl_add_u32 v%d, v%d, 9, v%d\nv_add_u32 v%d, s%d, v%d'
          % (vT, vrd, vrd, vrd, vT, vrd, vrd, vT, vrd, vT, vrd, vrd, sT5, vrd))
        xrd = lambda k: mk('v_xor_b32 v%d, %d, v%d\nds_read_b128 %s, v%d' % (vrd + 1 + (k & 1), 32 * (k & 15), vrd, v(xr[k], 4), vrd + 1 + (k & 1)))
        vrs = vrd + 3
        P('v_and_b32 v%d, 15, v0\nv_lshlrev_b32 v%d, 4, v%d\nv_lshrrev_b32 v%d, 5, v0\nv_lshl_add_u32 v%d, v%d, 3, v%d\nv_and_b32 v%d, 31, v0\nv_lshl_add_u32 v%d, v%d, 9, v%d\nv_add_u32 v%d, s%d, v%d'
          % (vrs, vrs, vrs, vT, vrs, vT, vrs, vT, vrs, vT, vrs, vrs, sT5, vrs))
        P('s_and_b32 s%d, s%d, 7\ns_lshl_b32 s%d, s%d, 6\nv_xor_b32 v%d, s%d, v%d' % (sT0, sM, sT0, sT0, vrs, sT0, vrs))

        def resrd(half):
            l = P.newlabel('Lres')
            t = ['s_cmp_%s_u32 s%d, 8' % ('lt' if half else 'ge', sM), 's_cbranch_scc1 %s' % l]
            for g in range(4):
                t += ['v_xor_b32 v%d, %d, v%d' % (vrs + 1, 16 * g, vrs), 'ds_read_b64 %s, v%d' % (a(216 + 2 * g, 2), vrs + 1)]
            return [I('\n'.join(t + [l + ':']), kind='block', src=[('v', vrs)], dst=[('v', vrs + 1)])]
        P.add(self.stamp('issued'))
        P.add([wait_tok(tA)])
        P.add(self.stamp('xA'))
        for k in range(16):
            P.add(xrd(k))
        P.add(resrd(0))
        vS, vOne = 172, 174
        P('v_mov_b32 v%d, 0x3f803f80\ns_waitcnt lgkmcnt(0)' % vOne)
        xb = xdma(1)
        self.tok_xb = tok(xb[-1][-1])
        d = self.dots([xr[k] + i for k in range(16) for i in range(4)], vS, vOne, True)
        P.add(spread(xb[:o['nxb1']], d))
        self.late_dma = xb[o['nxb1']:] + wq[8:]
        self.late_rd = [xrd(k) for k in range(16, 28)] + [resrd(1)]
        self.late_dots = self.dots([xr[k] + i for k in range(16, 28) for i in range(4)], vS, vOne, False) + self.dots_end(vS)
        P('s_add_u32 s%d, s%d, 0x01010101' % (sNonce, sNonce))
        P('v_mov_b32 v%d, s%d' % (vNonce, sNonce))
        P('s_lshl_b32 s%d, s%d, 4\ns_add_u32 s%d, s%d, s%d\ns_lshl_b32 s%d, s%d, 7\ns_add_u32 s%d, s%d, %d'
          % (sT2, sC, sT2, sT2, sM, sT2, sT2, sT2, sT2, WS_XCC))
        P('s_add_u32 s%d, s%d, s%d\nv_mov_b32 v%d, s%d\ns_mov_b64 exec, 1' % (sT3, sNonce, sXcc, vT, sT3))
        P('buffer_store_dword v%d, off, %s, s%d sc1' % (vT, self.srd(SRD_WS), sT2))
        P('s_mov_b64 exec, -1')

    def s1(self, l):
        P = self.P
        o = self.o
        AK, AV, AQ, WB, SB = 96, 112, 128, 144, 160
        RLB, XE = SB, SB + 8
        NB = 4
        vS = 172 if l == 0 else vT + 2
        P.comment('==== layer %d : S1' % l)
        kh = 8 if l == 0 else 4
        vTrV, vTrQ, vCs = vT + 3, (vT + 2 if l == 0 else vDummy), vPA
        trkv = self.trbase(vTr, 128, kh, add=L_WQ) + mk('v_bfe_u32 v%d, v0, 3, 1\nv_lshl_add_u32 v%d, v%d, 6, v%d\nv_xor_b32 v%d, 64, v%d' % (vT, vTr, vT, vTr, vTrV, vTr))
        trq = self.trbase(vTrQ, 64, kh, add=L_Q)
        fin = self.stats_finish(vS, False)
        fin += mk('s_lshl_b32 s%d, s%d, 12\ns_add_u32 s%d, s%d, %d' % (sT4, sW, sT4, sT4, L_KVS))
        bounce = mk('v_and_b32 v%d, 31, v0\nv_lshl_add_u32 v%d, v%d, 2, s%d\nds_write_b32 v%d, v%d' % (vT + 1, vT + 1, vT + 1, sT4, vT + 1, vRl))
        fin += bounce
        fin += mk('v_sub_f32 v%d, 0, v%d' % (vMean, vMean)) + self.split_act(XE, vMean, vT)
        fin += mk('v_cndmask_b32 v%d, v%d, 0, s[%d:%d]\nv_mov_b32 v%d, 0\nv_mov_b32 v%d, 0' % (XE, XE, sHalf, sHalf + 1, XE + 2, XE + 3))
        if l == 0:
            xreg = self.xreg0
            P.add(trkv)
            P.add([wait_tok(self.tok_wq1)])
            P('s_barrier')
            P.add(self.stamp('wq_ready'))
            lds = []
        else:
            xreg = [16 + 4 * (i % 20) for i in range(28)]
            P.add(self.pa(28))
            P('s_add_u32 s%d, s%d, %d' % (sT4, sFo, FXIN - FL_OFF))
            P.add(self.poll_issue(sT4, o['pdi']))
            P('s_add_u32 s%d, s%d, s%d\ns_lshl_b32 s%d, s%d, 13' % (sT5, sBlk, sXin, sT3, sW))
            P.add(trkv + trq)
            lds = self.frag_loads([v(r, 4) for r in xreg], SRD_CL, sT5, 0, flags='sc1')
        nq = 0 if l == 0 else 8
        jobs = []
        for k in range(28):
            if l == 0 and k == 16:
                jobs += [(t, kk) for kk in range(7) for t in 'KV']
            jobs += [('k', k), ('v', k)] + ([('q', k)] if k < nq else [])
        jobs += [('k', 'e'), ('v', 'e')]
        nmain = len(jobs)
        jobs += [('q', k) for k in range(nq, 28)] + ([('q', 'e')] if l else [('Q', kk) for kk in range(7)])
        vo, vb, CSA = RLB, RLB + 4, 208

        def rd(j):
            t, k = jobs[j]
            b = WB + 4 * (j % NB)
            if k == 'e':
                return mk('ds_read_b64 %s, v%d offset:%d\nv_mov_b32 v%d, 0\nv_mov_b32 v%d, 0' % (v(b, 2), vCs, 256 * 'qkv'.index(t), b + 2, b + 3))
            base = {'q': vTrQ, 'k': vTr, 'v': vTrV, 'K': vb, 'V': vb + 1, 'Q': vTr}[t]
            rs = 64 if t in 'qQ' else 128
            return mk('ds_read_b64_tr_b16 %s, v%d offset:%d\nds_read_b64_tr_b16 %s, v%d offset:%d' % (v(b, 2), base, 16 * rs * k, v(b + 2, 2), base, 16 * rs * k + (32 // kh) * rs))
        for j in range(NB):
            P.add(rd(j))
        if l == 1:
            P.add(self.poll_check(sT4))
            P.add(self.stamp('x2_seen'))
            P.add(flat(lds[:o['look']]))
            P('s_add_u32 s%d, s%d, 1\nv_mov_b32 v%d, s%d' % (sNonce, sNonce, vNonce, sNonce))
        P('v_and_b32 v%d, 31, v0\nv_lshlrev_b32 v%d, 3, v%d\nv_add_u32 v%d, %d, v%d' % (vCs, vCs, vCs, vCs, L_CS, vCs))
        slots = []
        for j, (t, k) in enumerate(jobs):
            w = v(WB + 4 * (j % NB), 4)
            if t.isupper():
                sl = mfma(CSA + 16 * (t == 'V'), v(CSA + 16 if t == 'Q' else vo, 4), w, k == 0)
            else:
                x = v(XE if k == 'e' else xreg[k], 4)
                A, B = (w, x) if t == 'q' else (x, w)
                sl = mfma({'q': AQ, 'k': AK, 'v': AV}[t], A, B, k == 0)
            if l == 0 and j == 32 - NB:
                sl += self.late_dots + [wait_tok(self.tok_wq)] + mk('s_waitcnt lgkmcnt(0)\ns_barrier') + (self.stamp('bar2') if self.fine else [])
                sl += mk('s_mul_i32 s%d, s%d, %d\nv_add_u32 v%d, s%d, v%d\nv_add_u32 v%d, s%d, v%d' % (sT0, sW, 7 * 2048, vb, sT0, vTr, vb + 1, sT0, vTrV))
            if j % 2 == 0 and j + 1 < len(jobs) and j + 1 != nmain and o['s1pair']:
                also_waits_for(sl[0], v(WB + 4 * ((j + 1) % NB), 4))
            if j + NB < len(jobs) and not (j < nmain <= j + NB):
                sl += rd(j + NB)
            slots.append(sl)
        if l == 0:
            n = len(self.late_dma)
            for i, g in enumerate(self.late_dma):
                slots[(i * o['latespan']) // n] += g
            r0 = 32 - NB - 7
            slots[r0] += [wait_tok(self.tok_xb)]
            for i, g in enumerate(self.late_rd):
                slots[r0 + i // 2] += g
            slots[29] += mk('\n'.join('v_mov_b32 v%d, 0x3f803f80' % (vo + i) for i in range(4)))
            for i in range(0, len(fin), 4):
                slots[30 + i // 4] += fin[i:i + 4]
            pre, qd = self.wq_dma(175, True)
            self.tok_q = tok(qd[-1][-1])
            for i, g in enumerate([pre] + qd):
                slots[37 + i] += g
            slots[o['tslot']] += self.prefetch(vT, [(SRD_WO, 25)]) + self.touch_attn(0, vT)
            slots[47] += mk('v_and_b32 v%d, 31, v0\nv_lshlrev_b32 v%d, 2, v%d\ns_lshl_b32 s%d, s%d, 8\nv_add_u32 v%d, %d, v%d\nv_add_u32 v%d, s%d, v%d'
                            % (vb, vb, vb, sT0, sW, vb, L_KVB, vb, vb + 1, sT0, vb))
            slots[48] += mk('\n'.join('ds_write_b32 v%d, v%d offset:%d' % (vb + 1, CSA + 16 * t, 128 * t) for t in range(2)))
            slots[50] += mk('s_waitcnt lgkmcnt(0)\ns_barrier')
            for t in range(2):
                r = RLB
                slots[50 + 5 * t] += mk('\n'.join('ds_read_b32 v%d, v%d offset:%d' % (r + ww, vb, 256 * ww + 128 * t) for ww in range(4)))
                slots[53 + 5 * t] += mk('v_add_f32 v%d, v%d, v%d\nv_add_f32 v%d, v%d, v%d\nv_add_f32 v%d, v%d, v%d' % (r, r, r + 1, r + 2, r + 2, r + 3, r, r, r + 2))
                slots[54 + 5 * t] += self.split_w(r + 2, r, r + 1) + mk('ds_write_b64 v%d, %s offset:%d' % (vCs, v(r + 2, 2), 256 * (t + 1)))
        else:
            n = o['look']
            for j in range(0, nmain, 2):
                if n < 28:
                    k_free = n - 20
                    assert k_free < 0 or j >= jobs.index(('q', k_free))
                    slots[j] += lds[n]
                    n += 1
            st = self.frag_loads([v(SB + 4 * (i % 4), 4) for i in range(7)], SRD_CL, sT3, XST_OFF, st=sT1, flags='sc1')
            a0, a1 = o['sta'], o['stb']
            for i in range(4):
                slots[a0 + 2 * i] += st[i]
            ex = []
            for i in range(1, 16):
                ex += mk('v_add_f32 v%d, v%d, v%d' % (vS, vS if i > 1 else SB, SB + i))
            for i in range(0, 15, 2):
                slots[a1 - 8 + i // 2] += ex[i:i + 2]
            for i in range(3):
                slots[a1 + 2 * i] += st[4 + i]
            ex = flat(mk('v_add_f32 v%d, v%d, v%d' % (vS, vS, SB + i)) for i in range(12)) + fin
            e0 = o['stc']
            per = -(-len(ex) // (61 - e0))
            for i in range(61 - e0):
                slots[e0 + i] += ex[i * per:(i + 1) * per]
        RB = [WB + 4 * ((nmain - 4 + g) % NB) for g in range(4)]
        vEps = vT + 1
        slots[nmain - 5] += mk('v_lshrrev_b32 v%d, 5, v0\nv_lshl_add_u32 v%d, v%d, 4, s%d' % (vT + 2, vT + 2, vT + 2, sT4))
        for g in range(4):
            slots[nmain - 4 + g] += mk('ds_read_b128 %s, v%d offset:%d' % (v(RB[g], 4), vT + 2, 32 * g))
        slots[nmain - 1] += mk('v_mov_b32 v%d, 0x3f803f80\nv_add_u32 v%d, s%d, v%d\nv_mov_b32 v%d, %s' % (vPoll, vT, sT4, vL16, vEps, f32(1e-6)))
        vG = SB + 12
        ga = self.kv_lane_addr(vG, vG + 1, vG + 2, gather=True)
        for i in range(0, len(ga), 3):
            slots[(o['stb'] + 1 if l else 60) + i // 3] += ga[i:i + 3]
        P.add(flat(slots[:nmain]))
        P.add(self.stamp('s1_kv_mfma'))
        DK = WB
        for hf in range(2):
            R = lambda i: v(RB[2 * hf + i // 4] + i % 4, 2)
            P.add(self.phi8(AK + 8 * hf, R, RLB, vEps) + self.pack(AK + 4 * hf, AK + 8 * hf, 4))
            P.add(flat(mk('v_pk_mul_f32 %s, %s, %s' % (v(AV + 8 * hf + i, 2), v(AV + 8 * hf + i, 2), R(i))) for i in range(0, 8, 2)))
            P.add(self.pack(AV + 4 * hf, AV + 8 * hf, 4))
            for i in range(4):
                P('v_cndmask_b32 v%d, v%d, v%d, s[%d:%d]' % (AV + 4 * hf + i, AV + 4 * hf + i, vPoll, sN28, sN28 + 1))
        P.add(mfma(DK, v(AK, 4), v(AV, 4), True) + mfma(DK, v(AK + 4, 4), v(AV + 4, 4)))
        P('s_mov_b32 s%d, 0x80808080\ns_mov_b32 s%d, 0x80808080' % (sT0 + 1, sT0 + 2))
        for q in range(4):
            P('ds_write_b128 v%d, %s offset:%d' % (vT, v(DK + 4 * q, 4), 1024 * q))
        P('v_lshlrev_b32 v%d, 3, v0\ns_waitcnt lgkmcnt(0)\ns_barrier' % vT)
        for ww in range(4):
            P('ds_read_b128 %s, v%d offset:%d' % (v(AK + 4 * ww, 4), vG, 4096 * ww))
        if l == 1:
            for j in range(nmain, nmain + NB):
                P.add(rd(j))
        for x, y in ((AK, AK + 4), (AK + 8, AK + 12), (AK, AK + 8)):
            for i in (0, 2):
                P('v_pk_add_f32 %s, %s, %s' % (v(x + i, 2), v(x + i, 2), v(y + i, 2)))
        P.add(self.pack(AK, AK, 2))
        for i in range(2):
            P('v_cndmask_b32 v%d, v%d, v%d, s[%d:%d]' % (AK + i, AK + i, vNonce, sT0 + 1, sT0 + 2))
        P('buffer_store_dwordx2 %s, v%d, %s, s%d offen sc1' % (v(AK, 2), vT, self.srd(SRD_WS), sKvMy))
        P.add(self.stamp('kv_pub'))
        PQ = self.PQ = 104

        def qepi():
            L = []
            for hf in range(2):
                L += self.phi8(AQ + 8 * hf, lambda i: v(vRl, 2) + ' op_sel_hi:[1,0]', 48, vEps) + self.pack(PQ + 4 * hf, AQ + 8 * hf, 4)
            for i in (6, 7):
                L += mk('v_cndmask_b32 v%d, v%d, 0, s[%d:%d]' % (PQ + i, PQ + i, sHalf, sHalf + 1))
            return L
        if l == 0:
            P.add(trq + mk('\n'.join('v_mov_b32 v%d, 0x3f803f80' % (CSA + 16 + i) for i in range(4))))
            P('s_mul_i32 s%d, s%d, %d\nv_add_u32 v%d, s%d, v%d' % (sT0, sW, 7 * 1024, vTr, sT0, vTrQ))
            pre = [wait_tok(self.tok_q)] + mk('s_barrier') + flat(rd(j) for j in range(nmain, nmain + NB))
            va = CSA + 20
            post = mk('v_and_b32 v%d, 31, v0\nv_lshlrev_b32 v%d, 2, v%d\nv_add_u32 v%d, %d, v%d\ns_lshl_b32 s%d, s%d, 7\nv_add_u32 v%d, s%d, v%d\nds_write_b32 v%d, v%d'
                      % (va, va, va, va, L_KVS, va, sT0, sW, va + 1, sT0, va, va + 1, CSA))

            def qfin():
                L = mk('\n'.join('ds_read_b32 v%d, v%d offset:%d' % (WB + 4 + ww, va, 128 * ww) for ww in range(4)))
                L += mk('v_add_f32 v%d, v%d, v%d\nv_add_f32 v%d, v%d, v%d\nv_add_f32 v%d, v%d, v%d' % (WB + 4, WB + 4, WB + 5, WB + 6, WB + 6, WB + 7, WB + 4, WB + 4, WB + 6))
                L += self.split_w(WB, WB + 4, WB + 5) + mk('v_mov_b32 v%d, 0\nv_mov_b32 v%d, 0\nds_write_b64 v%d, %s' % (WB + 2, WB + 3, va + 2, v(WB, 2)))
                return L + mfma(AQ, v(WB, 4), v(XE, 4)) + qepi()
            post += mk('v_mov_b32 v%d, v%d' % (va + 2, vCs))
            self.staging(pre, slots[nmain:], post, qfin)
        else:
            P.add(spread(slots[nmain:], self.kvx_pre(1)))
            P.add(qepi())

    PARK = 140

    def wo_dma(self, vwo):
        wo = [mk('v_lshrrev_b32 v%d, 2, v0\nv_mul_u32_u24 v%d, 896, v%d\nv_and_b32 v%d, 3, v0\nv_lshl_add_u32 v%d, v%d, 4, v%d\ns_lshl_b32 s%d, s%d, 6\nv_add_u32 v%d, s%d, v%d'
                 % (vwo, vwo, vwo, vT, vwo, vT, vwo, sQ0, sM, vwo, sQ0, vwo))
              + mk('s_mul_i32 s%d, s%d, %d\ns_lshl_b32 s%d, s%d, 10\ns_add_u32 s%d, s%d, %d' % (sQ1, sW, 16 * 896, sT3, sW, sT3, sT3, L_WO))]
        for t in range(7):
            wo.append(mk('s_add_u32 m0, s%d, %d\ns_add_u32 s%d, s%d, %d\nbuffer_load_dwordx4 v%d, %s, s%d offen lds' % (sT3, 4096 * t, sQ0, sQ1, t * 64 * 896, vwo, self.srd(SRD_WO), sQ0)))
        last = I('s_mov_b32 s%d, %d\ns_mov_b32 m0, %d\ns_mov_b64 exec, 0xffff\nbuffer_load_dwordx4 v%d, %s, s%d offen lds\ns_mov_b64 exec, -1'
                 % (sQ0, 448 * 896, L_WO + 28672, vwo, self.srd(SRD_WO), sQ0), kind='block', nvm=1, src=[('v', vwo)])
        self.tok_wo = tok(last)
        return wo + [[last]]

    def staging(self, qpre, qslots, qpost, qepi):
        P = self.P
        lskip, ljoin = P.newlabel('Lnostage'), P.newlabel('Lstaged')
        v1a, t0, t1, vp, vb, vb2 = 112, 113, 114, 115, 120, 168
        P('s_cmp_lt_u32 s%d, 14\ns_cselect_b32 s%d, s%d, 0' % (sM, SRD_W1 + 2, SRD_W1 + 2))
        P('v_lshrrev_b32 v%d, 2, v0\nv_mul_u32_u24 v%d, 3584, v%d\nv_and_b32 v%d, 3, v0\nv_lshl_add_u32 v%d, v%d, 4, v%d'
          % (v1a, v1a, v1a, vT, v1a, vT, v1a))
        P('s_lshl_b32 s%d, s%d, 2\ns_add_u32 s%d, s%d, s%d\ns_lshl_b32 s%d, s%d, 6\nv_add_u32 v%d, s%d, v%d' % (sT5, sM, sT5, sT5, sW, sT5, sT5, v1a, sT5, v1a))
        P('s_mul_i32 s%d, s%d, 14336\ns_add_u32 s%d, s%d, %d\ns_mul_i32 s%d, s%d, 21504\ns_mul_i32 s%d, s%d, %d' % (sT3, sW, sT3, sT3, L_EX, sQ1, sW, sWi, sD1, 14 * 16 * 3584))

        def issue(k):
            g = mk('s_add_u32 m0, s%d, %d' % ((sT3, 1024 * k) if k < 14 else (sQ1, 1024 * (k - 14))))
            g += mk('s_add_u32 s%d, s%d, %d' % (sQ0, sWi, k * 16 * 3584) if k < 14 else 's_sub_u32 s%d, %d, s%d' % (sQ0, k * 16 * 3584, sWi))
            g += mk('buffer_load_dwordx4 v%d, %s, s%d offen lds' % (v1a, self.srd(SRD_W1), sQ0))
            return g
        dm = [issue(k) for k in range(28)]
        tk = [tok(g[-1]) for g in dm]
        park = mk('\n'.join('v_accvgpr_read_b32 v%d, a%d' % (160 + i, 216 + i) for i in range(8)))
        park += mk('v_add_u32 v%d, s%d, v%d' % (vp, sQ1, vL16))
        park += flat(mk('ds_read_b128 %s, v%d offset:%d' % (a(self.PARK + 4 * i, 4), vp, 1024 * i)) for i in range(21))
        ht = self.touch([(16, SRD_CL, sHst, b * 114688) for b in range(self.o['htk'])], vT) if self.o['htk'] else []
        P.add(flat(dm[:7]) + qpre + ht + (self.stamp('q_go') if self.fine else []))
        for i, g in enumerate(dm[7:14]):
            qslots[self.o['w1q'] + 2 * i] += g
        P.add(spread(qslots, park) + qpost)
        P('s_lshl_b32 s%d, s%d, 11\ns_add_u32 s%d, s%d, %d' % (sT4, sC, sT4, sT4, WS_XCC))
        P('v_and_b32 v%d, 15, v0\nv_lshlrev_b32 v%d, 7, v%d' % (vPA, vPA, vPA))
        P('buffer_load_dword v%d, v%d, %s, s%d offen sc1' % (vPoll, vPA, self.srd(SRD_WS), sT4))
        P('s_waitcnt lgkmcnt(0)\ns_barrier')
        if self.fine:
            P.add(self.stamp('q_done'))
        P.add([I('s_cmp_ge_u32 s%d, 14\ns_cbranch_scc1 %s' % (sM, lskip), kind='block')])
        txt, _ = finalize(mk('s_nop 7') + qepi())
        self.ool.append('%s:\n%s\ns_waitcnt vmcnt(0)\ns_branch %s' % (lskip, '\n'.join(t.strip() for t in txt.split('\n')), ljoin))
        ad = self.trbase(t1, 64, 4) + mk('v_add_u32 v%d, s%d, v%d\nv_add_u32 v%d, s%d, v%d' % (t0, sT3, t1, t1, sQ1, t1))
        ad += mk('v_and_b32 v%d, 31, v0\nv_lshlrev_b32 v%d, 1, v%d\nbuffer_load_ushort v%d, v%d, %s, s%d offen' % (vT, vT, vT, vb, vT, self.srd(SRD_B1), sT5))
        ad += mk('v_lshrrev_b32 v%d, 5, v0\nv_lshlrev_b32 v%d, 3, v%d\ns_lshl_b32 s%d, s%d, 5' % (vT, vT, vT, sT2, sFe))
        ad += mk('buffer_load_dwordx2 %s, v%d, %s, s%d offen\nbuffer_load_dwordx2 %s, v%d, %s, s%d offen offset:16'
                 % (v(vb2, 2), vT, self.srd(SRD_B2), sT2, v(vb2 + 2, 2), vT, self.srd(SRD_B2), sT2))
        vo, D = 124, 128
        def consume(k):
            va, o = (t0, 1024 * k) if k < 14 else (t1, 1024 * (k - 14))
            L = [wait_tok(tk[k])] + mk('ds_read_b64_tr_b16 %s, v%d offset:%d\nds_read_b64_tr_b16 %s, v%d offset:%d' % (w1half(k, 0), va, o, w1half(k, 1), va, o + 512))
            return L + (mfma(D, v(vo, 4), w1reg(k - 2), k == 2) if k >= 2 else [])
        P.add(spread(dm[14:21], qepi() + ad + mk('\n'.join('v_mov_b32 v%d, 0x3f803f80' % (vo + i) for i in range(4)))))
        for k in range(14):
            P.add((dm[21 + k // 2] if k % 2 == 0 else []) + consume(k))
        P('s_waitcnt lgkmcnt(0)\ns_barrier')
        if self.fine:
            P.add(self.stamp('st_iss'))
        wo = self.wo_dma(121)
        for k in range(14, 14 + len(wo)):
            P.add(wo[k - 14] + consume(k))
        P.label(ljoin)
        P.add(self.stamp('sweep_start') + self.sweep_loads())
        ljoin = P.newlabel('Lstaged')
        P.add([I('s_cmp_ge_u32 s%d, 14\ns_cbranch_scc1 %s' % (sM, ljoin), kind='block')])
        for k in range(14 + len(wo), 28):
            P.add(consume(k))
        P.add(mfma(D, v(vo, 4), w1reg(26)) + mfma(D, v(vo, 4), w1reg(27)))
        P.add(self.unpack(144, vb2, 4) + mk('\n'.join('v_mov_b32 v%d, 0' % r for r in range(152, 156))))
        P('s_lshl_b32 s%d, s%d, 7\ns_add_u32 s%d, s%d, %d\nv_lshrrev_b32 v%d, 5, v0\nv_lshl_add_u32 v%d, v%d, 6, s%d' % (sT0, sW, sT0, sT0, L_B2, vT, vT, vT, sT0))
        for q in range(4):
            P('ds_write_b128 v%d, %s offset:%d' % (vT, v(144 + 4 * min(q, 2), 4), 16 * q))
        P.add(self.split_w(vW1X, D, vT + 1) + mk('v_lshl_or_b32 v%d, v%d, 16, v%d' % (vb, vb, vb)))
        P('v_cndmask_b32 v%d, v%d, v%d, s[%d:%d]\nv_cndmask_b32 v%d, v%d, 0, s[%d:%d]' % (vW1X, vW1X, vb, sHalf, sHalf + 1, vW1X + 1, vW1X + 1, sHalf, sHalf + 1))
        P.label(ljoin)
        P.add([I('s_nop 1', kind='block', states=2)])
        P.add(self.kvx_pre(0))

    def sweep_loads(self):
        return flat(self.frag_loads([v(32 + 4 * i, 4) for i in range(8)], SRD_WS, sKv, 0, flags='sc1'))

    def w2_prefetch(self, va, first, per):
        m = (1 << per) - 1
        txt = ['s_lshr_b32 s%d, s%d, 3' % (sQ0, sC), 's_mul_i32 s%d, s%d, 14' % (sQ0, sQ0), 's_add_u32 s%d, s%d, s%d' % (sQ0, sQ0, sM),
               's_lshl_b32 s%d, s%d, 2' % (sQ0, sQ0), 's_add_u32 s%d, s%d, s%d' % (sQ0, sQ0, sW), 's_mul_i32 s%d, s%d, %d' % (sQ0, sQ0, per * 128),
               's_add_u32 s%d, s%d, %d' % (sQ0, sQ0, first * 128), 'v_lshlrev_b32 v%d, 7, v0' % va,
               's_mov_b32 exec_lo, 0x%x' % (m & 0xffffffff), 's_mov_b32 exec_hi, 0x%x' % (m >> 32),
               'buffer_load_dword v%d, v%d, %s, s%d offen' % (vDummy, va, self.srd(SRD_W2), sQ0), 's_mov_b64 exec, -1']
        return [I('\n'.join(txt), kind='block', nvm=1, src=[('v', 0)], dst=[('v', va)], cost=52)]

    def w2_addr(self, R):
        v2a, tA, tB, vp = R, R + 1, R + 3, R + 5
        L = mk('v_lshrrev_b32 v%d, 3, v0\nv_mul_u32_u24 v%d, 896, v%d\nv_lshrrev_b32 v%d, 2, v0\nv_and_b32 v%d, 4, v%d\nv_xor_b32 v%d, v%d, v0\nv_and_b32 v%d, 7, v%d\nv_lshl_add_u32 v%d, v%d, 4, v%d'
               % (v2a, v2a, v2a, vT, vT, vT, vT, vT, vT, vT, v2a, vT, v2a))
        L += mk('s_lshr_b32 s%d, s%d, 1\ns_lshl_b32 s%d, s%d, 7\ns_mul_i32 s%d, s%d, %d\ns_add_u32 s%d, s%d, s%d\nv_add_u32 v%d, s%d, v%d'
                % (sT0, sM, sT0, sT0, sT2, sW, 32 * 896, sT0, sT0, sT2, v2a, sT0, v2a))
        L += mk('s_mul_i32 s%d, s%d, 7168\ns_add_u32 s%d, s%d, %d\ns_lshl_b32 s%d, s%d, 12\ns_add_u32 s%d, s%d, %d'
                % (sRot, sW, sRot, sRot, L_EX, sQ1, sW, sQ1, sQ1, L_KVS))
        L += mk('s_lshr_b32 s%d, s%d, 1' % (sT0, sW)) + self.trbase(tA, 128, 4, xor16=sT0)
        L += mk('s_and_b32 s%d, s%d, 1\nv_bfe_u32 v%d, v0, 3, 1\nv_xor_b32 v%d, s%d, v%d\nv_lshl_add_u32 v%d, v%d, 6, v%d\nv_xor_b32 v%d, 64, v%d'
                % (sT0, sW, vT, vT, sT0, vT, tA, vT, tA, tA + 1, tA))
        L += mk('v_add_u32 v%d, s%d, v%d\nv_add_u32 v%d, s%d, v%d\nv_add_u32 v%d, s%d, v%d\nv_add_u32 v%d, s%d, v%d' % (tB, sQ1, tA, tB + 1, sQ1, tA + 1, tA, sRot, tA, tA + 1, sRot, tA + 1))
        L += mk('s_mul_i32 s%d, s%d, 21504\nv_add_u32 v%d, s%d, v%d' % (sT0, sW, vp, sT0, vL16))
        L += mk('s_mul_i32 s%d, s%d, 10240\ns_sub_u32 s%d, s%d, s%d\nv_add_u32 v%d, s%d, v%d\nv_add_u32 v%d, s%d, v%d' % (sWi, sW, sT0, sWi, sRot, R + 6, sT0, tA, R + 7, sT0, tA + 1))
        return L

    def w2_steps(self, R, u0, u1, shadow):
        v2a, tA, tB = R, R + 1, R + 3
        NS = 5

        def where(u):
            n = (u - u0) % NS
            if shadow:
                return sWi, R + 6, n * 2048
            return (sRot, tA, n * 2048) if n < 3 else (sQ1, tB, (n - 3) * 2048)

        def issue(u):
            out = []
            base, _, o = where(u)
            for i in range(2):
                g = mk('s_add_u32 m0, s%d, %d' % (base, o + 1024 * i))
                g += mk('s_mov_b32 s%d, %d' % (sQ0, (128 * (u // 2) + 16 * (u % 2) + 8 * i) * 896))
                out += g + mk('buffer_load_dwordx4 v%d, %s, s%d offen lds' % (v2a, self.srd(SRD_W2), sQ0))
            return out, tok(out[-1])
        tk, first, steps, prev = {}, [], [], None
        for u in range(u0, min(u0 + NS - 1, u1)):
            g, tk[u] = issue(u)
            first.append(g)
        for u in range(u0, u1):
            _, ta, o = where(u)
            A = []
            if u + NS - 1 < u1:
                if prev:
                    A += [wait_tok(prev)]
                g, tk[u + NS - 1] = issue(u + NS - 1)
                A += g
            B = [wait_tok(tk[u])]
            for js in range(2):
                b = W2A + 8 * u + 4 * js
                B += mk('ds_read_b64_tr_b16 %s, v%d offset:%d\nds_read_b64_tr_b16 %s, v%d offset:%d' % (a(b, 2), ta + js, o, a(b + 2, 2), ta + js, o + 1024))
            prev = tok(B[-1])
            steps.append((A, B))
        return first, steps

    def w2_stage(self, fill, R, u0, extra):
        P = self.P
        vp = R + 5
        first, steps = self.w2_steps(R, u0, 28, False)
        P.add(flat(first))
        rest = [mk('ds_write_b128 v%d, %s offset:%d' % (vp, a(self.PARK + 4 * i, 4), 1024 * i)) for i in range(21)]
        out, done = [], 0
        for n, (A, B) in enumerate(steps):
            u = u0 + n
            want = max(sum(1 for i in range(21) if 17 + (i + 1) // 2 <= u), min(21, ((n + 1 - self.o['rest0']) * 21) // max(1, len(steps) - 2 - self.o['rest0'])))
            L = A + flat(rest[done:max(done, want)]) + B + extra.get(u, []) + (self.stamp('w2_%d' % u) if self.fine else [])
            done = max(done, want)
            out.append(L)
        assert done == 21
        P.add(spread(out, fill, start=0, end=self.o['w2fill']))

    K10 = 98

    def kvx_pre(self, l):
        L = []
        RES = 160
        if l == 1:
            L += mk('s_add_u32 s%d, s%d, s%d' % (sT0, sOst, sXin))
            for j in range(2):
                L += mk('buffer_load_dwordx4 %s, v%d, %s, s%d offen offset:%d sc1' % (v(RES + 4 * j, 4), vL16, self.srd(SRD_CL), sT0, 1024 * j))
            L += [I('s_mul_i32 s%d, s%d, %d\ns_add_u32 s%d, s%d, s%d\ns_addc_u32 s%d, s%d, 0\ns_sub_u32 s%d, s%d, s%d'
                    % (sT0, sSlow, LOFF, SRD_CL, SRD_CL, sT0, SRD_CL + 1, SRD_CL + 1, SRD_CL + 2, SRD_CL + 2, sT0), kind='block', cost=16)]
        L += [I('s_cmp_eq_u32 s%d, 3\ns_cselect_b32 s%d, 0xffff0000, 0\ns_cselect_b32 s%d, 0xffff0000, 0' % (sW, sPm, sPm + 1), kind='block', cost=12)]
        L += self.kv_lane_addr(self.KA, self.KA + 1, self.KA + 2, gather=False)
        g, t = self.KA + 1, self.KA + 2
        L += mk('\n'.join(['v_bfe_u32 v%d, v0, 3, 1' % g, 'v_and_b32 v%d, 3, v0' % t, 'v_lshl_add_u32 v%d, v%d, 2, v%d' % (g, g, t),
                           'v_cmp_eq_u32 vcc, 7, v%d' % g, 'v_bfe_u32 v%d, v0, 4, 1' % t, 'v_mad_u32_u24 v%d, v%d, 14, v%d' % (g, t, g),
                           'v_bfe_u32 v%d, v0, 2, 1' % t, 'v_mad_u32_u24 v%d, v%d, 7, v%d' % (g, t, g), 'v_cndmask_b32 v%d, v%d, 28, vcc' % (g, g),
                           'v_and_b32 v%d, 32, v0' % t, 'v_add_u32 v%d, v%d, v%d' % (g, g, t), 'v_lshlrev_b32 v%d, 5, v%d' % (g, g), 'v_add_u32 v%d, %d, v%d' % (g, L_KVB, g)]))
        L += mk('s_and_b32 s%d, s%d, 0x1fff\ns_or_b32 s%d, s%d, 0x4000\ns_lshl_b32 s%d, s%d, 16' % (sTag, sNonce, sTag, sTag, sTag + 1, sTag))
        L += mk('v_mov_b32 v%d, 0x3f80\nv_mov_b32 v%d, 0x3f800000' % (self.K10, self.K10 + 1))
        return L

    KA = 100

    def kvx(self, l):
        P = self.P
        P.comment('==== layer %d : kv exchange' % l)
        if l == 0:
            lw, lb = P.newlabel('Lxcc'), P.newlabel('Lxok')
            P('v_subrev_u32 v%d, s%d, v%d\nv_cmp_lt_u32 vcc, 15, v%d' % (vPoll, sNonce, vPoll, vPoll))
            P.add([I('s_cbranch_vccnz %s\n%s:' % (lw, lb), kind='block')])
            self.ool.append('\n'.join([
                lw + ':',
                'buffer_load_dword v%d, v%d, %s, s%d offen sc1' % (vPoll, vPA, self.srd(SRD_WS), sT4),
                's_add_u32 s%d, s%d, 1' % (sSpin, sSpin),
                's_cmp_gt_u32 s%d, 0x40000' % sSpin,
                's_cbranch_scc1 L_end',
                's_waitcnt vmcnt(0)',
                'v_subrev_u32 v%d, s%d, v%d' % (vPoll, sNonce, vPoll),
                'v_cmp_lt_u32 vcc, 15, v%d' % vPoll,
                's_cbranch_vccnz %s' % lw,
                's_branch %s' % lb]))
            P('v_cmp_ne_u32 vcc, s%d, v%d\ns_cmp_lg_u64 vcc, 0\ns_cselect_b32 s%d, 1, 0\ns_mov_b32 s%d, %d\ns_cselect_b32 s%d, %d, s%d' % (sXcc, vPoll, sSlow, sXin, X1_OFF if self.o['alias'] else XIN_OFF, sXin, XIN_OFF, sXin))
        K10, K01 = self.K10, self.K10 + 1
        if l == 1:
            if self.o['kvdelay']:
                P('s_sleep %d' % self.o['kvdelay'])
            P.add(self.stamp('sweep_start') + self.sweep_loads())
        P('v_and_b32 v%d, 15, v0\nv_lshlrev_b32 v%d, 11, v%d\nv_add_u32 v%d, 2044, v%d' % (vPA, vPA, vPA, vPA, vPA))
        P.add(self.trbase(vTr, 64, 7, add=L_WO))
        P.add(self.s2_pre(l))
        P('s_mov_b32 s%d, 0x88888888\ns_mov_b32 s%d, 0x88888888' % (sPm, sPm + 1))
        lsw, lre = P.newlabel('Lsweep'), P.newlabel('Lresweep')
        P.label(lsw)
        B = 32
        bad, S = vT, 64
        P('v_mov_b32 v%d, 0' % bad)
        for i in range(8):
            for k in range(4):
                for hh, K in enumerate((K10, K01)):
                    P('v_dot2_f32_bf16 v%d, v%d, v%d, %s' % (S + 2 * k + hh, B + 4 * i + k, K, 'v%d' % (S + 2 * k + hh) if i else '0'))
            for k in (2, 3):
                P('v_bitop3_b32 v%d, v%d, s%d, v%d bitop3:0xbe' % (bad, B + 4 * i + k, sNonce, bad))
        P('v_cmp_ne_u32 vcc, 0, v%d\ns_and_b64 vcc, vcc, s[%d:%d]' % (bad, sPm, sPm + 1))
        P.add([I('s_cbranch_vccnz %s' % lre, kind='block', states=1)])
        self.ool.append('%s:\ns_sleep 6\ns_add_u32 s%d, s%d, 1\ns_cmp_gt_u32 s%d, 0x40000\ns_cbranch_scc1 L_end\n%s\ns_waitcnt vmcnt(0)\ns_branch %s'
                        % (lre, sSpin, sSpin, sSpin, '\n'.join(x.text for x in self.sweep_loads()), lsw))
        P.add(self.stamp('sweep_done'))
        for k in range(4):
            P('v_permlane32_swap_b32 v%d, v%d' % (S + k, S + 4 + k))
        for k in (0, 2):
            P('v_pk_add_f32 %s, %s, %s' % (v(S + k, 2), v(S + k, 2), v(S + 4 + k, 2)))
        P.add(self.pack(S, S, 2))
        P('ds_write_b64 v%d, %s' % (self.KA, v(S, 2)))
        if l == 0:
            P.add([wait_tok(self.tok_wo)])
        P('s_waitcnt lgkmcnt(0)\ns_barrier')
        KF, D = 72, 80
        P('ds_read_b128 %s, v%d\nds_read_b128 %s, v%d offset:16' % (v(KF, 4), self.KA + 1, v(KF + 4, 4), self.KA + 1))
        P.add(flat(self.s2_rd(i) for i in range(4)))
        P.add(mfma(D, v(KF, 4), v(self.PQ, 4), True))
        for i in (6, 7):
            P('v_cndmask_b32 v%d, v%d, 0, s[%d:%d]' % (KF + i, KF + i, sHalf, sHalf + 1))
        P.add(mfma(D, v(KF + 4, 4), v(self.PQ + 4, 4)))
        t1 = 120
        P('v_add_f32 v%d, %s, v%d\nv_rcp_f32 v%d, v%d\nv_mul_f32 v%d, s%d, v%d' % (t1, f32(1e-6), D + 7, t1, t1, t1, sLn2, t1))
        for r in range(0, 16, 2):
            P('v_pk_mul_f32 %s, %s, %s op_sel_hi:[1,0]' % (v(D + r, 2), v(D + r, 2), v(t1, 2)))
        P('v_mov_b32 v%d, s%d\nv_mov_b32 v%d, s%d' % (D + 7, sTag + 1, D + 15, sTag + 1))
        P.add(self.pack(D, D, 8))
        st = self.stores(['buffer_store_dwordx4 %s, v%d, %s, s%d offen offset:%d' % (v(D + 4 * j, 4), vL16, self.srd(SRD_CL), sOst, 1024 * j) for j in range(2)])
        P.add(st)
        P.add(self.stamp('o_pub'))

    def s2_rd(self, i):
        WB, o = 144 + 4 * (i % 4), 1792 * (i // 2) + 896 * (i % 2)
        return mk('ds_read_b64_tr_b16 %s, v%d offset:%d\nds_read_b64_tr_b16 %s, v%d offset:%d' % (v(WB, 2), vTr, o, v(WB + 2, 2), vTr, o + 256))

    def s2_pre(self, l):
        L = self.s4_consts(l) + (self.xsrc() if l == 0 else [])
        L += mk('s_add_u32 s%d, s%d, %d' % (sT4, sOst, X1_OFF))
        L += mk('s_lshr_b32 s%d, s%d, 2\ns_lshl_b32 s%d, s%d, 10\ns_and_b32 s%d, s%d, 3\ns_lshl_b32 s%d, s%d, 2\ns_add_u32 s%d, s%d, s%d\ns_add_u32 s%d, s%d, s%d\ns_add_u32 s%d, s%d, %d'
                % (sT5, sM, sT5, sT5, sT1, sM, sT1, sT1, sT5, sT5, sT1, sT5, sT5, sBlk, sT5, sT5, X1_OFF + 28672))
        return L + self.unpack(16, 160, 8)

    def s2(self, l):
        P = self.P
        o = self.o
        P.comment('==== layer %d : S2' % l)
        ACC, OF, WB, RES = 16, 32, 144, 160
        NB = 4
        lre, lfail = P.newlabel('Ls2'), P.newlabel('Ls2again')
        P.label(lre)
        P.add(self.poll_issue(sBlk, o['pdo']))
        rd = self.s2_rd
        bad = vT
        P('v_mov_b32 v%d, 0' % bad)
        P.add(self.poll_check(sBlk, tag=True))
        P.add(self.stamp('o_seen'))
        oreg = [OF + 4 * (i % 28) for i in range(32)]
        lds = self.frag_loads([v(r, 4) for r in oreg], SRD_CL, sBlk, O_OFF, flags='sc1')
        n = o['look2']
        P.add(flat(lds[:n]))
        chk = lambda i: mk('v_bitop3_b32 v%d, v%d, s%d, v%d bitop3:0xbe\nv_and_b32 v%d, 0xffff, v%d' % (bad, oreg[i] + 3, sTag + 1, bad, oreg[i] + 3, oreg[i] + 3))
        P.add(chk(0))
        for i in range(32):
            if i + n < 32:
                P.add(lds[i + n])
            P.add(mfma(ACC, v(WB + 4 * (i % NB), 4), v(oreg[i], 4)))
            if self.fine and i in (0, 8, 16, 31):
                P.add(self.stamp('s2_%d' % i))
            if i + NB < 32:
                P.add(rd(i + NB))
            if i + 1 < 32:
                P.add(chk(i + 1))
            if i == 28:
                P.add(self.pa(14, blocks=True, reg=vT + 2))
        P('v_cmp_lt_u32 vcc, 0xffff, v%d' % bad)
        P.add([I('s_cbranch_vccnz %s' % lfail, kind='block', states=1)])
        again = '\n'.join(x.text for x in self.unpack(ACC, RES, 8) + flat(rd(i) for i in range(NB)))
        self.ool.append('%s:\ns_add_u32 s%d, s%d, 1\ns_cmp_gt_u32 s%d, 0x40000\ns_cbranch_scc1 L_end\ns_nop 15\n%s\ns_waitcnt lgkmcnt(0)\ns_branch %s'
                        % (lfail, sSpin, sSpin, sSpin, again, lre))
        P('v_mov_b32 v%d, v%d' % (vPA, vT + 2))
        P.add(self.pack(OF, ACC, 8))
        P.add(self.stores(['buffer_store_dwordx4 %s, v%d, %s, s%d offen offset:%d' % (v(OF + 4 * j, 4), vL16, self.srd(SRD_CL), sT4, 1024 * j) for j in range(2)]))
        P.add(self.row_stats(OF, 8, vT, vT + 2))
        st = self.stores(['buffer_store_dword v%d, v%d, %s, s%d offen' % (vT, vL16, self.srd(SRD_CL), sT5)])
        tk = tok(st[-1])
        P.add(st)
        if self.fine:
            P.add(self.stamp('x1_st'))
        P.add(self.flag([tk], sFoMy, FX1 - FO))
        P.add(self.stamp('x1_pub'))

    def gelu(self, acc, KK, T):
        pr = range(0, 16, 2)
        A = flat(mk('v_pk_mul_f32 %s, %s, %s' % (v(T + i, 2), v(acc + i, 2), v(acc + i, 2))) for i in pr)
        A += flat(mk('v_pk_fma_f32 %s, %s, %s, %s op_sel:[0,1,0] op_sel_hi:[1,1,0]' % (v(T + i, 2), v(T + i, 2), v(KK, 2), v(KK, 2))) for i in pr)
        A += flat(mk('v_pk_mul_f32 %s, %s, %s' % (v(T + i, 2), v(T + i, 2), v(acc + i, 2))) for i in pr)
        E = flat(mk('v_exp_f32 v%d, v%d' % (T + i, T + i)) for i in range(16))
        B = flat(mk('v_pk_fma_f32 %s, %s, %s, %s op_sel_hi:[1,0,0]' % (v(T + i, 2), v(T + i, 2), v(KK + 2, 2), v(KK + 2, 2))) for i in pr)
        R = flat(mk('v_rcp_f32 v%d, v%d' % (T + i, T + i)) for i in range(16))
        C = flat(mk('v_pk_mul_f32 %s, %s, %s' % (v(acc + i, 2), v(acc + i, 2), v(T + i, 2))) for i in pr)
        pk = self.pack(acc, acc, 8)
        g4 = lambda f, g: flat(mk(f(4 * g + i)) for i in range(4))
        e = lambda g: E[4 * g:4 * g + 4]
        r = lambda g: R[4 * g:4 * g + 4]
        b = lambda g: g4(lambda i: 'v_fma_f32 v%d, v%d, v%d, v%d' % (T + i, T + i, KK + 2, KK + 2), g)
        c = lambda g: g4(lambda i: 'v_mul_f32 v%d, v%d, v%d' % (acc + i, acc + i, T + i), g) + pk[2 * g:2 * g + 2]
        tail = e(0) + e(1) + b(0) + r(0) + e(2) + b(1) + c(0) + r(1) + e(3) + b(2) + c(1) + r(2) + b(3) + c(2) + r(3) + c(3)
        return A, A + E + B + R + C + pk, tail

    XSRC = (4, 5, 6, 7, 8, 9, 10, 11, 12, 13, 14, 15, 20, 21)

    def xsrc(self):
        L = mk('s_lshl_b32 s%d, s%d, 1\ns_mul_i32 s%d, s%d, 14\ns_add_u32 s%d, s%d, s%d\ns_mov_b32 s%d, %d' % (sT0, sW, sT1, sD1, sT1, sT1, sT0, sT2, X1_OFF))
        for c, r in enumerate(self.XSRC):
            if c:
                L += mk('s_add_u32 s%d, s%d, 8\ns_cmp_ge_u32 s%d, 28\ns_cselect_b32 s%d, 28, 0\ns_cselect_b32 s%d, 0x8000, 0\ns_sub_u32 s%d, s%d, s%d\ns_add_u32 s%d, s%d, s%d'
                        % (sT0, sT0, sT0, sT3, r, sT0, sT0, sT3, sT2, sT2, r))
                L += mk('s_add_u32 s%d, s%d, 8\ns_cmp_ge_u32 s%d, 28\ns_cselect_b32 s%d, 28, 0\ns_sub_u32 s%d, s%d, s%d' % (sT1, sT1, sT1, sT3, sT1, sT1, sT3))
            L += mk('s_lshl_b32 s%d, s%d, 10\ns_add_u32 s%d, s%d, s%d' % (r, sT1, r, r, sT2))
        return L

    SEL = 172

    def s4_consts(self, l):
        U, SEL = 120, self.SEL
        sel = mk('\n'.join(['v_lshrrev_b32 v%d, 5, v0' % SEL,
                             'v_lshlrev_b32 v%d, 2, v%d' % (SEL, SEL), 'v_and_b32 v%d, 31, v0' % (SEL + 1), 'v_sub_u32 v%d, v%d, v%d' % (U, SEL + 1, SEL),
                             'v_mov_b32 v%d, 0x3f80' % (U + 1), 'v_mov_b32 v%d, 0x3f800000' % (U + 2)]))
        for q, r0 in enumerate((0, 2, 8, 10)):
            sel += mk('v_cmp_eq_u32 vcc, %d, v%d\nv_cmp_eq_u32 s[%d:%d], %d, v%d\ns_nop 0\nv_cndmask_b32 v%d, 0, v%d, vcc\nv_cndmask_b32 v%d, v%d, v%d, s[%d:%d]'
                      % (r0, U, sPm, sPm + 1, r0 + 1, U, SEL + q, U + 1, SEL + q, SEL + q, U + 2, sPm, sPm + 1))
        for q, sB in enumerate((sEb, sLb)):
            sel += mk('s_lshl_b32 s%d, s%d, 15\ns_lshl_b32 s%d, s%d, 10\ns_add_u32 s%d, s%d, s%d\ns_add_u32 s%d, s%d, %d' % (sT0, sB, sT2, sFe, sT0, sT0, sT2, sRes + q, sT0, X1_OFF))
            if l == 0:
                sel += mk('s_add_u32 s%d, s%d, s%d\ns_lshl_b32 s%d, s%d, 13' % (sFin + q, sT0, sXin, sT0, sB))
                sel += mk('s_lshr_b32 s%d, s%d, 2\ns_lshl_b32 s%d, s%d, 10\ns_add_u32 s%d, s%d, s%d\ns_and_b32 s%d, s%d, 3\ns_lshl_b32 s%d, s%d, 2\ns_add_u32 s%d, s%d, s%d\ns_add_u32 s%d, s%d, %d'
                          % (sT2, sFe, sT2, sT2, sT0, sT0, sT2, sT2, sFe, sT2, sT2, sT0, sT0, sT2, sFin + 2 + q, sT0, XST_OFF))
                sel += mk('s_lshl_b32 s%d, s%d, 5\ns_add_u32 s%d, s%d, s%d\ns_lshl_b32 s%d, s%d, 2\ns_add_u32 s%d, s%d, %d' % (sT2, sB, sT2, sT2, sFe, sT2, sT2, sFin + 4 + q, sT2, FXIN))
            else:
                sel += mk('s_lshl_b32 s%d, s%d, 2\ns_add_u32 s%d, s%d, s%d\ns_mul_i32 s%d, s%d, %d\ns_lshl_b32 s%d, s%d, 5\ns_add_u32 s%d, s%d, s%d'
                          % (sT0, sC, sT0, sT0, sB, sT0, sT0, 32 * 896, sT2, sFe, sFin + q, sT0, sT2))

        return sel

    def mlp(self, l):
        P = self.P
        o = self.o
        P.comment('==== layer %d : MLP' % l)
        ACC = (16, 32)
        XB, EXB, WEX, T, RING = 48, 72, 76, 80, 108
        KK = (96, 100)
        SEL, vB2, vX2 = self.SEL, 104, 105
        NB = 6
        P('s_mov_b32 s%d, %d' % (sT4, FX1))
        if not o['p1']:
            P.add(self.poll_issue(sT4, o['pdx']))
        P('s_lshl_b32 s%d, s%d, 11' % (sT5, sW))
        P('v_mov_b32 v%d, v%d\nv_mov_b32 v%d, v%d' % (WEX, vW1X, WEX + 1, vW1X + 1))
        P('\n'.join('v_mov_b32 v%d, 0' % r for r in (WEX + 2, WEX + 3, EXB + 2, EXB + 3)))
        vE8, vK16 = vTr, vT + 3
        P('v_lshlrev_b32 v%d, 3, v0\nv_add_u32 v%d, %d, v%d' % (vE8, vE8, L_KVS, vE8))
        P('v_and_b32 v%d, 31, v0\nv_lshlrev_b32 v%d, 4, v%d\nv_add_u32 v%d, %d, v%d' % (vK16, vK16, vK16, vK16, L_KVS + 512, vK16))
        P('v_add_u32 v%d, %d, v%d' % (vX2, 56 * 1024, vL16))
        P('s_lshl_b32 s%d, s%d, 7\ns_add_u32 s%d, s%d, %d\nv_lshrrev_b32 v%d, 5, v0\nv_lshl_add_u32 v%d, v%d, 6, s%d' % (sT3, sW, sT3, sT3, L_B2, vB2, vB2, vB2, sT3))
        P('s_add_u32 s%d, s%d, %d' % (sT1, sBlk, X1_OFF + 28672))
        if o['p1']:
            lq = P.newlabel('Lnp')
            c = self.poll_check(sT4)[0]
            P.add([I('s_cmp_lg_u32 s%d, 0\ns_cbranch_scc1 %s\n%s\ns_waitcnt vmcnt(0)\n%s\n%s:\ns_barrier'
                     % (sW, lq, '\n'.join(x.text for x in self.poll_issue(sT4, o['pdx'])), c.text, lq), kind='block', src=[('v', vPA)], dst=c.dst, states=2)])
        else:
            P.add(self.poll_check(sT4))
        P.add(self.stamp('x1_seen'))
        xd, tc = [], []
        for c, r in enumerate(self.XSRC):
            g = mk('s_add_u32 m0, s%d, %d' % (sT5, 8192 * c))
            g += mk('buffer_load_dwordx4 v%d, %s, s%d offen sc1 lds\nbuffer_load_dwordx4 v%d, %s, s%d offen offset:1024 sc1 lds' % (vL16, self.srd(SRD_CL), r, vL16, self.srd(SRD_CL), r))
            tc.append(tok(g[-1]))
            xd.append(g)
        stl = [mk('buffer_load_dwordx4 %s, v%d, %s, s%d offen offset:%d sc1' % (v(RING + 4 * i, 4), vL16, self.srd(SRD_CL), sT1, 1024 * i)) for i in range(4)]
        sp = o['stpos']
        P.add({0: flat(stl) + xd[0] + xd[1], 1: xd[0] + xd[1] + flat(stl), 2: xd[0] + xd[1], 3: xd[0] + flat(stl[:2]) + xd[1]}[sp])
        K0 = KK[1]
        st0 = []
        for x, y in ((0, 1), (2, 3), (4, 5), (6, 7), (8, 9), (10, 11), (12, 13), (0, 2), (4, 6), (8, 10), (0, 4), (8, 12)):
            st0 += mk('v_add_f32 v%d, v%d, v%d' % (RING + x, RING + x, RING + y))
        st0 += mk('v_add_f32 v%d, v%d, v%d' % (T, RING, RING + 8))
        st0 += self.stats_finish(T, True)
        st0 += mk('\n'.join(['v_rcp_f32 v%d, v%d' % (K0 + 2, vRl),
                             'v_mul_f32 v%d, s%d, v%d' % (K0, sC0, vRl),
                             'v_mul_f32 v%d, v%d, v%d' % (T, vRl, vRl),
                             'v_mul_f32 v%d, s%d, v%d' % (K0 + 1, sC1, vRl),
                             'v_mul_f32 v%d, v%d, v%d' % (K0 + 1, K0 + 1, T),
                             'v_sub_f32 v%d, 0, v%d' % (vMean, vMean),
                             'v_cndmask_b32 v%d, v%d, v%d, s[%d:%d]' % (vMean, vMean, K0 + 2, sHalf, sHalf + 1)]))
        st0 += self.split_act(T + 2, vMean, T)
        st0 += mk('s_lshl_b32 s%d, s%d, 10\nv_add_u32 v%d, s%d, v%d\nv_add_u32 v%d, s%d, v%d' % (sT4, sW, vT, sT4, vE8, vT + 1, sT4, vK16))
        st0 += mk('ds_write_b64 v%d, %s\nds_write_b128 v%d, %s' % (vT, v(T + 2, 2), vT + 1, v(K0, 4)))
        tst = tok(st0[-1])

        def hpub(b):
            pre = mk('s_add_u32 s%d, s%d, %d' % (sT4, sHst, b * 114688))
            st = self.stores(['buffer_store_dwordx4 %s, v%d, %s, s%d offen offset:%d' % (v(ACC[b & 1] + 4 * j, 4), vL16, self.srd(SRD_CL), sT4, 1024 * j) for j in range(2)])
            return pre + st, tok(st[-1])
        hflag = lambda b, tk: self.flag([tk], sFoMy, FH - FO + 512 * b)
        extrd = lambda b: mk('ds_read_b64 %s, v%d offset:%d\nds_read_b128 %s, v%d offset:%d' % (v(EXB, 2), vE8, 1024 * b, v(KK[b & 1], 4), vK16, 1024 * b))
        extmf = lambda b: mfma(ACC[b & 1], v(WEX, 4), v(EXB, 4))
        hreg = [RING + 4 * (i % 16) for i in range(56)]

        def hload(i):
            blk, kap = divmod(i, 28)
            g = mk('s_add_u32 s%d, s%d, %d' % (sHs, (sHE, sHL)[blk], 8192 * (kap // 2))) if kap % 2 == 0 else []
            return g + mk('buffer_load_dwordx4 %s, v%d, %s, s%d offen offset:%d sc1' % (v(hreg[i], 4), vL16, self.srd(SRD_CL), sHs, 1024 * (kap % 2)))
        P.add([wait_tok(tc[0])])
        P('s_barrier')
        P.add(self.stamp('s3_b0'))
        rdj = lambda j: mk('ds_read_b128 %s, v%d offset:%d' % (v(XB + 4 * (j % NB), 4), vL16 if j < 56 else vX2, 1024 * (j % 56)))
        for j in range(NB):
            P.add(rdj(j))
        isl = lambda c: 0 if c == 2 else o['x0'] + (o['xstep'] * (c - 3)) // 2
        bars, cov = {}, 0
        for c in range(1, 14):
            sj = 8 * c - 5
            if c > cov or sj in (27, 43):
                cov = max([c] + [d for d in range(3, 14) if isl(d) + o['xlag'] <= sj])
                bars[sj] = [tc[cov]] + ([tst] if sj == 27 else [])
        slots = []
        for j in range(112):
            b, k = divmod(j, 28)
            sl = mfma(ACC[b & 1], w1reg(k), v(XB + 4 * (j % NB), 4), k == 0)
            if k % 2 == 0:
                also_waits_for(sl[0], v(XB + 4 * ((j + 1) % NB), 4))
            if j in bars:
                sl += (self.stamp('pb%d' % j) if self.fine else []) + [wait_tok(*bars[j])] + mk('s_barrier') + (self.stamp('ab%d' % j) if self.fine else [])
            if k % 2 == 1:
                for jj in (j + NB - 1, j + NB):
                    if jj < 112:
                        sl += rdj(jj)
            if (k == 25 and b) or j == 27:
                sl += extrd(b)
            if (k == 27 and b) or j == 30:
                sl += extmf(b if k == 27 else 0)
            slots.append(sl)
        slots[0] += stl[0] + stl[1] if sp == 2 else []
        slots[1 if sp == 2 else 0] += xd[2]
        slots[3 if sp == 2 else 2] += stl[2] + stl[3] if sp >= 2 else []
        for c in range(3, 14):
            slots[isl(c)] += xd[c]
        W2R = RING + 32
        pre0 = self.w2_addr(W2R) if l == 0 else []
        nsh = o['nsh'] if l == 0 else 0
        if nsh:
            first, steps = self.w2_steps(W2R, 0, nsh, True)
            p0 = o['sh0']
            for i, g in enumerate(first):
                slots[p0 + 2 * i] += g
            p1 = p0 + 2 * len(first) + o['shgap']
            for n, (A, B) in enumerate(steps):
                sj = p1 + (n * (110 - p1)) // nsh
                slots[sj] += A
                slots[sj + 1] += B
            if o['idlew2'] < 13:
                slots[o['pf2']] += self.w2_prefetch(vT, 1024 * o['idlew2'], -(-(12544 - 1024 * o['idlew2']) // 112))
        out = spread(slots[:o['st0']], pre0) + spread(slots[o['st0']:o['st1']], st0) + flat(slots[o['st1']:28])
        pend = None
        for b in range(1, 4):
            gA, _, tail = self.gelu(ACC[(b - 1) & 1], KK[(b - 1) & 1], T)
            s0 = 28 * b + (5 if b == 1 else 2)
            st, nxt = hpub(b - 1)
            if l == 0 and b < 3 and not nsh:
                st = st + self.w2_prefetch(vT, (b - 1) * 6272, 56)
            slots[s0] += gA
            if pend is not None and l == 1:
                slots[28 * b + o['flagpos']] += hflag(b - 2, pend)
            pend = nxt
            if b == 3 and l == 1:
                slots[84 + o['pollE']] += self.pa(14) + self.poll_issue(sPE)
                n3 = o['n3']
                slots[112 - n3] += (self.stamp('preE') if self.fine else []) + self.poll_check(sPE) + (self.stamp('gotE') if self.fine else [])
                for i in range(n3):
                    slots[112 - n3 + i] += hload(i)
            if b == 1 or self.fine:
                out += self.stamp('s3_b%d' % b)
            out += flat(slots[28 * b:s0 + 1]) + spread(slots[s0 + 1:28 * b + 28], tail + st, end=28 * b + o['gend'] - s0)
        P.add(out)
        P('s_waitcnt lgkmcnt(0)\ns_barrier')
        P.add(self.stamp('s3_end'))
        AE, AL, RX, RS = 48, 16, 80, 96
        vEW, vER = (vTr, vT, vT + 1), vT + 3
        resid = lambda q: mk('buffer_load_dwordx4 %s, v%d, %s, s%d offen sc1' % (v(RS, 4), vL16, self.srd(SRD_CL), sRes + q))
        cinit = lambda A: flat(mk('ds_read_b128 %s, v%d offset:%d' % (v(A + 4 * q, 4), vB2, 16 * q)) for q in range(4))
        ad = []
        for n, x in enumerate((2, 1, 3)):
            ad += mk('s_xor_b32 s%d, s%d, %d\ns_mul_i32 s%d, s%d, 6144\ns_add_u32 s%d, s%d, %d\nv_add_u32 v%d, s%d, v%d'
                     % (sT3, sW, x, sT3, sT3, sT3, sT3, L_EX + 2048 * (x - 1), vEW[n], sT3, vL16))
        ad += mk('s_mul_i32 s%d, s%d, 6144\ns_add_u32 s%d, s%d, %d\nv_add_u32 v%d, s%d, v%d' % (sT3, sW, sT3, sT3, L_EX, vER, sT3, vL16))
        gA, gall, _ = self.gelu(ACC[1], KK[1], T)
        st, p3 = hpub(3)
        npre = o['npre']
        if l == 0:
            npre = 7
            fl = hflag(0, pend) + hflag(1, pend) + hflag(2, pend)
            self.w2_stage(gall[:o['flat']] + fl + gall[o['flat']:] + st, W2R, nsh,
                          {o['f3u']: hflag(3, p3), o['peu']: self.pa(14) + self.poll_issue(sPE), 25: self.poll_check(sPE) + resid(0) + cinit(AE) + hload(0) + hload(1),
                           26: hload(2) + hload(3) + hload(4), 27: hload(5) + hload(6)})
        else:
            P.add(spread([resid(0)] + [hload(i) for i in range(o['n3'], npre)], gall[:40] + hflag(2, pend) + cinit(AE) + gall[40:] + st))
        if self.fine:
            P.add(self.stamp('g3_end'))

        exch_write = lambda A: flat(mk('ds_write_b128 v%d, %s\nds_write_b128 v%d, %s offset:1024' % (vEW[n], v(r, 4), vEW[n], v(r + 4, 4)))
                                    for n, r in enumerate((A + 8, A + 16, A + 24)))
        exch_read = lambda: flat(mk('ds_read_b128 %s, v%d offset:%d' % (v(RX + 4 * q, 4), vER, 1024 * q)) for q in range(6))

        def addv(d, x, y, n, pk):
            if pk:
                return flat(mk('v_pk_add_f32 %s, %s, %s' % (v(d + i, 2), v(x + i, 2), v(y + i, 2))) for i in range(0, n, 2))
            return flat(mk('v_add_f32 v%d, v%d, v%d' % (d + i, x + i, y + i)) for i in range(n))

        def finish(A, q, pk):
            L = addv(A, A, RX, 8, pk) + addv(RX + 8, RX + 8, RX + 16, 8, pk) + addv(A, A, RX + 8, 8, pk) + self.pack(A, A, 4)
            if l == 0:
                L += self.stores(['buffer_store_dwordx4 %s, v%d, %s, s%d offen' % (v(A, 4), vL16, self.srd(SRD_CL), sFin + q)])
                rs = self.row_stats(A, 4, RX, RX + 2)
                blk = I('\n'.join(x.text for x in rs[:9]), kind='block', src=[r for x in rs[:9] for r in x.src], dst=[('v', RX), ('v', RX + 1), ('v', RX + 2)], states=1, cost=60)
                L += [blk] + mk('s_nop 2') + rs[9:]
                st = self.stores(['buffer_store_dword v%d, v%d, %s, s%d offen' % (RX, vL16, self.srd(SRD_CL), sFin + 2 + q)])
                tk = tok(st[-1])
                return L + st, self.flag([tk], sFin + 4 + q)
            L += mk('v_permlane32_swap_b32 v%d, v%d\nv_permlane32_swap_b32 v%d, v%d' % (A, A + 2, A + 1, A + 3))
            L += mk('buffer_store_dwordx4 %s, v%d, %s, s%d offen %s' % (v(A, 4), vPA, self.srd(SRD_OUT), sFin + q, ('', 'sc1', 'nt', 'sc0 sc1')[o['outf']]))
            return L, []

        slots = []
        nt = o['ntail']
        order = [(i, js) for i in range(56 - nt) for js in range(2)] + [(i, 1) for i in range(56 - nt, 56)] + [(i, 0) for i in range(56 - nt, 56)]
        for i, js in order:
            blk, kap = divmod(i, 28)
            A = (AE, AL)[blk]
            sl = mfma(A, v(SEL, 4), v(RS, 4)) if kap == 0 and js == 0 else []
            slots.append(sl + mfma(A + 16 * js, a(W2A + 8 * kap + 4 * js, 4), v(hreg[i], 4), kap == 0 and js == 1))
        sidx = 0
        for i in range(npre, 56):
            sidx = max(sidx, 2 * (i - 16) + 1 if i >= 16 else 0)
            if i == 28:
                sidx = max(sidx, o['lateL'])
                slots[sidx] += (self.stamp('preL') if self.fine else []) + self.poll_check(sPL) + (self.stamp('gotL') if self.fine else [])
            slots[sidx] += hload(i)
            assert sidx <= 2 * i - 6
            sidx += 1 if 2 * (i + 1) - sidx - 2 < o['lead'] else 2
        if l == 1:
            slots[o['flag3']] += (self.stamp('preF') if self.fine else []) + hflag(3, p3) + (self.stamp('gotF') if self.fine else [])
        slots[o['pollL']] += self.poll_issue(sPL)
        for i in range(0, len(ad), 4):
            slots[2 * (i // 4) + 30] += ad[i:i + 4]
        slots[40] += resid(1)
        if l == 0:
            slots[20] += mk('s_waitcnt lgkmcnt(0)\ns_barrier')
        slots[46] += cinit(AL)
        if l == 1:
            slots[44] += mk('v_and_b32 v%d, 31, v0\nv_mul_u32_u24 v%d, 896, v%d\nv_lshrrev_b32 v%d, 5, v0\nv_lshl_add_u32 v%d, v%d, 4, v%d'
                            % (vPA, vPA, vPA, vPoll, vPA, vPoll, vPA))
        P.add(flat(slots[:56]))
        P.add(self.stamp('s4_E'))
        late = slots[56:]
        fin, fl = finish(AE, 0, False)
        xb0 = o['xbar']
        P.add(spread(late[:xb0], exch_write(AE), start=2, end=9))
        late[xb0] += (self.stamp('preX') if self.fine else []) + mk('s_waitcnt lgkmcnt(0)\ns_barrier') + (self.stamp('gotX') if self.fine else []) + exch_read()
        late[34] += (self.stamp('preY') if self.fine else []) + mk('s_barrier') + (self.stamp('gotY') if self.fine else [])
        late[44] += fl
        wl = exch_write(AL)
        if l == 1 and o['wb'] == 3:
            lw = P.newlabel('Lnowb')
            late[o['wbslot']] += [I('s_or_b32 s%d, s%d, s%d\ns_cmp_lg_u32 s%d, 0\ns_cbranch_scc1 %s\nbuffer_wbl2 sc1\n%s:' % (sT0, sM, sW, sT0, lw, lw), kind='block', cost=12)]
        for i in range(4):
            late[56 - nt + 2 + i] += [wl[2 + i]]
        P.add(spread(late[xb0:], fin, start=4, end=33 - xb0))
        P.add(self.stamp('s4_L'))
        P.add(wl[:2] + mk('s_waitcnt lgkmcnt(0)\ns_barrier') + exch_read())
        fin, fl = finish(AL, 1, True)
        P.add(fin + fl)
        P.add(self.stamp('x2_pub'))

    def build(self):
        P = self.P
        self.prologue()
        for l in range(2):
            self.s1(l)
            if self.stop == 's1_%d' % l:
                break
            self.kvx(l)
            if self.stop == 'o_%d' % l:
                break
            lnext = 'L_layer%d' % (l + 1)
            if l == 0:
                lsk = P.newlabel('Lskipmlp')
                P.add([I('s_cmp_ge_u32 s%d, 14\ns_cbranch_scc1 %s' % (sM, lsk), kind='block')])
                lp = P.newlabel('Lidle')
                t = [x.text for x in self.pa(28)] + ['s_mov_b32 s%d, %d' % (sT4, FXIN), lp + ':', 's_sleep %d' % self.o['isl'],
                                                     'buffer_load_dword v%d, v%d, %s, s%d offen sc1' % (vPoll, vPA, self.srd(SRD_CL), sT4),
                                                     's_add_u32 s%d, s%d, 1' % (sSpin, sSpin), 's_cmp_gt_u32 s%d, 0x40000' % sSpin, 's_cbranch_scc1 L_end',
                                                     's_waitcnt vmcnt(0)', 'v_cmp_ne_u32 vcc, s%d, v%d' % (sNonce, vPoll), 's_cbranch_vccnz %s' % lp,
                                                     's_sleep %d' % self.o['isl2']]
                self.ool.append('%s:\n%s\ns_waitcnt vmcnt(0) lgkmcnt(0)\n%s\ns_branch %s' % (lsk, self.idle_work(), '\n'.join(t), lnext))
            else:
                if self.o['wb'] in (1, 2):
                    lw, lp = P.newlabel('Lwb'), P.newlabel('Lwbp')
                    P.add([I('s_cmp_ge_u32 s%d, 14\ns_cbranch_scc1 %s' % (sM, lw), kind='block')])
                    t = [lw + ':']
                    if self.o['outt']:
                        lo = P.newlabel('Lot')
                        t += ['s_cmp_lg_u32 s%d, 15' % sM, 's_cbranch_scc1 %s' % lo, 'v_lshlrev_b32 v%d, 7, v0' % vT, 's_mov_b32 exec_hi, 0xffffff']
                        for i in range(4):
                            t += ['s_add_u32 s%d, s%d, %d' % (sT2, sX, i * 56 * 128), 'buffer_load_dword v%d, v%d, %s, s%d offen' % (vDummy, vT, self.srd(SRD_OUT), sT2)]
                        t += ['s_mov_b64 exec, -1', 's_waitcnt vmcnt(0)', lo + ':']
                    t += ['s_cmp_lg_u32 s%d, 14' % sM, 's_cbranch_scc1 L_fin', 's_cmp_lg_u32 s%d, 0' % sW, 's_cbranch_scc1 L_fin']
                    t += [x.text for x in self.pa(14, blocks=True)]
                    t += ['s_mov_b32 s%d, %d' % (sT4, FH + 512 * self.o['wbblk']), 's_sleep %d' % self.o['wbsl']] + (['buffer_wbl2 sc1', 's_waitcnt vmcnt(0)'] if self.o['wb'] == 2 else []) + [lp + ':', 's_sleep 4',
                          'buffer_load_dword v%d, v%d, %s, s%d offen sc1' % (vPoll, vPA, self.srd(SRD_CL), sT4),
                          's_add_u32 s%d, s%d, 1' % (sSpin, sSpin), 's_cmp_gt_u32 s%d, 0x40000' % sSpin, 's_cbranch_scc1 L_end',
                          's_waitcnt vmcnt(0)', 'v_cmp_ne_u32 vcc, s%d, v%d' % (sNonce, vPoll), 's_cbranch_vccnz %s' % lp,
                          'buffer_wbl2 sc1', 's_waitcnt vmcnt(0)', 's_branch L_fin']
                    self.ool.append('\n'.join(t))
                else:
                    P.add([I('s_cmp_ge_u32 s%d, 14\ns_cbranch_scc1 L_fin' % sM, kind='block')])
            self.s2(l)
            if self.stop == 'x1_%d' % l:
                P.label(lnext)
                break
            self.mlp(l)
            P.label(lnext)
            if l == 0:
                P('s_add_u32 s%d, s%d, %d\ns_add_u32 s%d, s%d, %d' % (sKv, sKv, KVP_L, sKvMy, sKvMy, KVP_L))
            if self.stop == 'x2_%d' % l:
                break
        P.add([I('s_cmp_lg_u32 s2, 0\ns_cbranch_scc1 L_fin\ns_cmp_lg_u32 s%d, 0\ns_cbranch_scc1 L_fin' % sW, kind='block')])
        P('s_mov_b64 exec, 1\nbuffer_store_dword v%d, off, %s, 0 sc1\ns_mov_b64 exec, -1' % (vNonce, self.srd(SRD_WS)))
        if self.probe is not None:
            P.add(self.stamp('end'))
            P.add([I('s_waitcnt lgkmcnt(0)\ns_sub_u32 s94, s94, s96\ns_lshl_b32 s94, s94, 2\ns_add_u32 s94, s94, 10000\nL_pr:\ns_memrealtime s[98:99]\ns_waitcnt lgkmcnt(0)\n'
                     's_sub_u32 s98, s98, s96\ns_cmp_lt_u32 s98, s94\ns_cbranch_scc1 L_pr', kind='block')])
        P.label('L_fin')
        if self.stamps:
            P('s_lshl_b32 s%d, s2, 2\ns_add_u32 s%d, s%d, s%d\ns_lshl_b32 s%d, s%d, 8\ns_add_u32 s%d, s%d, %d' % (sT0, sT0, sT0, sW, sT0, sT0, sT0, sT0, WS_STAMP))
            P.add(self.stamp('end'))
            P('s_memrealtime s[%d:%d]\ns_waitcnt lgkmcnt(0)\nv_writelane_b32 v%d, s%d, 63' % (sStamp, sStamp + 1, vStamp, sStamp))
            P('v_writelane_b32 v%d, s%d, 61' % (vStamp, sSpin))
            P('v_lshlrev_b32 v%d, 2, v0\nbuffer_store_dword v%d, v%d, %s, s%d offen' % (vT, vStamp, vT, self.srd(SRD_WS), sT0))
        P.label('L_end')
        P('s_endpgm')
        body, L = finalize(P.L)
        self.final = L
        ool = '\n'.join('\n'.join(('    ' + t if not t.endswith(':') else t) for t in b.split('\n') if t.strip()) for b in self.ool)
        head = open('cdna_kernels/%s.s.ref' % KNAME[:-7]).read().split('\n')
        hdr = [h for h in head if h.startswith(';') and '@launch' not in h]
        txt = '\n'.join(hdr) + '\n; @launch grid=(256,1,1) block=(256,1,1) lds=%d\n' % LDS_BYTES
        txt += '.amdgcn_target "amdgcn-amd-amdhsa--gfx950"\n.text\n.globl %s\n.p2align 8\n.type %s,@function\n%s:\n' % (KNAME, KNAME, KNAME)
        txt += body + ool + '\nL_code_end:\n'
        txt += '''.section .rodata,"a"
.p2align 6
.amdhsa_kernel %s
  .amdhsa_next_free_vgpr 512
  .amdhsa_next_free_sgpr 102
  .amdhsa_accum_offset 256
  .amdhsa_group_segment_fixed_size 0
  .amdhsa_kernarg_size 88
  .amdhsa_user_sgpr_count 2
  .amdhsa_user_sgpr_kernarg_segment_ptr 1
  .amdhsa_system_sgpr_workgroup_id_x 1
.end_amdhsa_kernel
''' % KNAME
        return txt


if __name__ == '__main__':
    import argparse
    ap = argparse.ArgumentParser()
    ap.add_argument('-o', default='k.s')
    ap.add_argument('--stop', default=None)
    ap.add_argument('--stamps', action='store_true')
    ap.add_argument('opts', nargs='*')
    A = ap.parse_args()
    opt = {k: (x if k in ('probe', 'light') else int(x)) for k, x in (t.split('=') for t in A.opts)}
    g = Gen(stop=A.stop, stamps=A.stamps, **opt)
    open(A.o, 'w').write(g.build())
    if A.stamps:
        open(A.o + '.stamps', 'w').write('\n'.join(g.stamp_names))
    n = {}
    for x in g.final:
        n[x.kind] = n.get(x.kind, 0) + 1
    nops = sum(x.states for x in g.final if x.op == 's_nop')
    print('instructions', n, 'nop states', nops)
```

```python
import sys, struct
from asmgen import *

KNAME = 'interleave_layers__linear_attn_block__mixer_channel_mlp__prompt_kernel'


def f32(x):
    return '0x%08x' % struct.unpack('<I', struct.pack('<f', x))[0]


LOG2E = 1.4426950408889634
LN2 = 0.6931471805599453
MF = 'v_mfma_f32_32x32x16_bf16'

WS_XCC = 0x8000
WS_STAMP = 0x10000
WS_KVP = 0x200000
KVP_CH = 9216
KVP_L = 0xA0000
WS_CL = 0x400000
LOFF = 0xD9000
O_OFF, X1_OFF, H_OFF, XIN_OFF, XST_OFF, FL_OFF = 0, 0x20000, 0x40000, 0xB0000, 0xD0000, 0xD8000
FO, FX1, FXIN, FH = FL_OFF, FL_OFF + 512, FL_OFF + 1024, FL_OFF + 1536

L_WQ = 0
L_Q = 57344
L_XB = 28672
L_EX = 86016
L_XS = 86016
L_WO = 114688
L_KVS = 143616
L_KVB = L_KVS + 16384
L_CS = L_KVB + 2048
L_B2 = L_CS + 768
LDS_BYTES = 163840
assert L_B2 + 512 <= LDS_BYTES

SRD_WQ, SRD_WO, SRD_W1, SRD_W2, SRD_X, SRD_OUT, SRD_B1, SRD_B2, SRD_CL, SRD_WS = range(4, 44, 4)
sC, sM, sW, sNonce, sSlow, sX, sSpin = 44, 45, 46, 47, 48, 49, 50
sT0, sT1, sT2, sT3, sT4, sT5 = 51, 52, 53, 54, 55, 56
sLn2, sXcc, sWi = 57, 58, 59
sN28, sHalf = 60, 62
sZm = 64
sXin, sD1 = 66, 67
sKA = 68
sEb, sLb, sC0, sC1, sHs, sFe = 68, 69, 70, 71, 72, 73
sBlk, sOst, sFo, sFoMy, sKv, sKvMy, sHE, sHL, sPE, sPL = 74, 75, 76, 77, 78, 79, 80, 81, 82, 83
sHst = 84
sRot = 85
sQ0, sQ1 = 86, 87
sFin, sRes = 28, 34
sTag = 22
sPm = 88
sStamp = 90
sPC = 92

vLane, vL16, vDummy, vTr, vNonce, vMean, vRl, vW1X, _w1x1, vPoll, vPA = range(0, 11)
vT = 11
vStamp = 15
vPoll2, vPoll3 = 15, 5
W2A = 0
W1A = 224
W1V = 176


def w1reg(k):
    return a(W1A + 4 * k, 4) if k < 8 else v(W1V + 4 * (k - 8), 4)


def w1half(k, hh):
    return a(W1A + 4 * k + 2 * hh, 2) if k < 8 else v(W1V + 4 * (k - 8) + 2 * hh, 2)


def flat(LL):
    return [x for L in LL for x in L]


def mfma(D, A, B, first=False):
    return mk('%s %s, %s, %s, %s' % (MF, v(D, 16), A, B, '0' if first else v(D, 16)))


class Gen:
    def __init__(self, stop=None, stamps=False, **opt):
        self.P = Prog()
        self.ool = []
        self.stop = stop
        self.stamps = stamps
        self.nstamp = 0
        self.stamp_names = []
        self.probe = opt.pop('probe', None)
        self.light = opt.pop('light', None)
        self.fine = bool(self.light or self.probe)
        if self.light is not None:
            self.light = self.light.split('+')
            assert len(self.light) <= 4
        self.seen = {}
        self.o = dict(kvdelay=10, poll2=0, psl=0, pdo=5, pdx=2, p1=1, pdi=0, s1pair=1, sta=13, stb=33, stc=48, isl=8, isl2=8, pollE=16, n3=4, st0=10, st1=23, stpos=1, x0=6, xstep=8, xlag=12, flagpos=8, gend=26, pollL=20, lateL=32, flag3=12, xbar=13, ntail=8, lead=16, look=6, pref=0, touch=1, codepf=1, rot=1, stnt=0, idlewq=0, reuse=1, npre=14, wqlate=84, pf0=1, w1q=4, w1pre=4, w1o=19, nxb1=12, pfslot=50, w2fill=5, rest0=0, nsh=17, sh0=48, shgap=6, f3u=23, peu=22, alias=1, flat=24, pf2=98, htk=0, wb=0, wbblk=3, wbsl=100, wbs2=0, wbslot=36, outf=0, outt=0, idlew2=11, woslot=41, tslot=46, latespan=14, strot=1, w1b2=70, look2=10, l1touch=0, xsc1=1, storder=0)
        self.o.update(opt)

    def srd(self, r):
        return s(r, 4)

    def stamp(self, name):
        if self.probe is not None:
            self.seen[name] = self.seen.get(name, 0) + 1
            if self.probe == '%s#%d' % (name, self.seen[name]):
                return [I('s_memrealtime s[94:95]', kind='block', states=1)]
            return []
        if not self.stamps:
            return []
        if self.light is not None:
            self.seen[name] = self.seen.get(name, 0) + 1
            key = '%s#%d' % (name, self.seen[name])
            if name == 'end':
                self.stamp_names.append('end')
                t = ['s_memtime s[88:89]', 's_waitcnt lgkmcnt(0) vmcnt(0)', 'v_writelane_b32 v%d, s98, 62' % vStamp]
                for i, r in enumerate([100] + [90 + 2 * j for j in range(len(self.stamp_names) - 2)] + [88]):
                    t.append('v_writelane_b32 v%d, s%d, %d' % (vStamp, r, i))
                return [I('\n'.join(t), kind='block', drain_lgkm=True)]
            if name != 'start' and key not in self.light:
                return []
            r = 100 if name == 'start' else 90 + 2 * (len(self.stamp_names) - 1)
            self.stamp_names.append(key if name != 'start' else name)
            return [I('s_memtime s[%d:%d]' % (r, r + 1), kind='block')]
        i = self.nstamp
        self.nstamp += 1
        self.stamp_names.append(name)
        t = 's_memtime s[%d:%d]\ns_waitcnt lgkmcnt(0)\nv_writelane_b32 v%d, s%d, %d' % (sStamp, sStamp + 1, vStamp, sStamp, i)
        return [I(t, kind='block', dst=[], src=[], drain_lgkm=True, states=3)]

    def stores(self, lines):
        insts = mk('\n'.join(lines))
        src = [r for x in insts for r in x.src]
        wide = [r for x in insts for r in x.wide]
        ls, lb = self.P.newlabel('Lslow'), self.P.newlabel('Lback')
        txt = 's_cmp_lg_u32 s%d, 0\ns_cbranch_scc1 %s\n%s\n%s:' % (sSlow, ls, '\n'.join(lines), lb)
        self.ool.append('%s:\n%s\ns_branch %s' % (ls, '\n'.join(l + ' sc1' for l in lines), lb))
        return [I(txt, kind='block', src=src, nvm=len(lines), wide=wide, states=1, cost=8 + 4 * len(lines))]

    def flag(self, toks, soff, off=0):
        st = self.stores(['buffer_store_dword v%d, off, %s, s%d offset:%d' % (vNonce, self.srd(SRD_CL), soff, off)])[0]
        st.text = 's_mov_b64 exec, 1\n' + st.text + '\ns_mov_b64 exec, -1'
        st.cost += 8
        return [wait_tok(*toks), st]

    def poll_issue(self, soff, delay=0):
        return (mk('s_sleep %d' % delay) if delay else []) + mk('buffer_load_dword v%d, v%d, %s, s%d offen sc1' % (vPoll, vPA, self.srd(SRD_CL), soff))

    def poll_check(self, soff, tag=False):
        ls, lb = self.P.newlabel('Lspin'), self.P.newlabel('Lgot')

        def cmp(r):
            if tag:
                return 'v_lshrrev_b32 v%d, 16, v%d\nv_cmp_ne_u32 vcc, s%d, v%d' % (r, r, sTag, r)
            return 'v_cmp_ne_u32 vcc, s%d, v%d' % (sNonce, r)
        ld = lambda r: 'buffer_load_dword v%d, v%d, %s, s%d offen sc1' % (r, vPA, self.srd(SRD_CL), soff)
        if self.o['poll2']:
            l1 = self.P.newlabel('Lsp')
            t = [ls + ':', ld(vPoll2), 's_sleep 2', l1 + ':', ld(vPoll3), 's_waitcnt vmcnt(1)', cmp(vPoll2), 's_cbranch_vccz %s' % lb,
                 ld(vPoll2), 's_add_u32 s%d, s%d, 1' % (sSpin, sSpin), 's_cmp_gt_u32 s%d, 0x40000' % sSpin, 's_cbranch_scc1 L_end',
                 's_waitcnt vmcnt(1)', cmp(vPoll3), 's_cbranch_vccnz %s' % l1, 's_branch %s' % lb]
        else:
            t = [ls + ':'] + (['s_sleep %d' % self.o['psl']] if self.o['psl'] else []) + [ld(vPoll), 's_add_u32 s%d, s%d, 1' % (sSpin, sSpin), 's_cmp_gt_u32 s%d, 0x40000' % sSpin, 's_cbranch_scc1 L_end',
                 's_waitcnt vmcnt(0)', cmp(vPoll), 's_cbranch_vccnz %s' % ls, 's_branch %s' % lb]
        self.ool.append('\n'.join(t))
        return [I(cmp(vPoll) + '\ns_cbranch_vccnz %s\n%s:' % (ls, lb), kind='block', src=[('v', vPoll)], dst=[('x', 'vcc'), ('v', vPoll)], states=2, cost=8)]

    def pa(self, n, blocks=False, reg=vPA):
        L = 'v_and_b32 v%d, %d, v0\n' % (reg, 15 if n <= 16 else 31)
        if n not in (16, 32):
            L += 'v_min_u32 v%d, %d, v%d\n' % (reg, n - 1, reg)
        L += 'v_lshlrev_b32 v%d, 2, v%d\n' % (reg, reg)
        if blocks:
            L += 'v_lshrrev_b32 v%d, 4, v0\nv_lshl_add_u32 v%d, v%d, 7, v%d' % (vT + 3, reg, vT + 3, reg)
        return mk(L)

    def trbase(self, dst, RS, kh, add=0, xor16=None):
        t = vT
        L = ['v_lshrrev_b32 v%d, 5, v%d' % (dst, vLane),
             'v_mul_u32_u24 v%d, %d, v%d' % (dst, kh, dst),
             'v_bfe_u32 v%d, v%d, 2, 2' % (t, vLane),
             'v_add_u32 v%d, v%d, v%d' % (dst, dst, t),
             'v_mul_u32_u24 v%d, %d, v%d' % (dst, RS, dst),
             'v_bfe_u32 v%d, v%d, 4, 1' % (t, vLane)]
        if xor16 is not None:
            L.append('v_xor_b32 v%d, s%d, v%d' % (t, xor16, t))
        L += ['v_lshl_add_u32 v%d, v%d, 5, v%d' % (dst, t, dst),
              'v_and_b32 v%d, 3, v%d' % (t, vLane),
              'v_lshl_add_u32 v%d, v%d, 3, v%d' % (dst, t, dst)]
        if add:
            L.append('v_add_u32 v%d, %d, v%d' % (dst, add, dst))
        return mk('\n'.join(L))

    def frag_loads(self, dsts, srd, sbase, const0, stride=1024, flags='', st=sT0):
        out = []
        cur = None
        for i, d in enumerate(dsts):
            off = const0 + i * stride
            grp = []
            if cur is None or not (0 <= off - cur <= 4095):
                cur = off
                grp += mk('s_add_u32 s%d, s%d, %d' % (st, sbase, off))
            grp += mk('buffer_load_dwordx4 %s, v%d, %s, s%d offen offset:%d %s' % (d, vL16, self.srd(srd), st, off - cur, flags))
            out.append(grp)
        return out

    def stats_finish(self, acc, double_ln):
        t1, t2 = vT + 1, vT + 2
        L = ['v_mov_b32 v%d, v%d' % (t1, acc),
             'v_mov_b32 v%d, v%d' % (vMean, acc),
             'v_permlane32_swap_b32 v%d, v%d' % (vMean, t1),
             'v_mul_f32 v%d, %s, v%d' % (vMean, f32(1.0 / 448), vMean),
             'v_mul_f32 v%d, %s, v%d' % (t1, f32(1.0 / 448), t1),
             'v_fma_f32 v%d, -v%d, v%d, v%d' % (t1, vMean, vMean, t1),
             'v_max_f32 v%d, 0, v%d' % (t1, t1),
             'v_add_f32 v%d, %s, v%d' % (t2, f32(1e-5), t1),
             'v_rsq_f32 v%d, v%d' % (vRl, t2)]
        if double_ln:
            L += ['v_mul_f32 v%d, v%d, v%d' % (t2, vRl, vRl),
                  'v_fmaak_f32 v%d, v%d, v%d, %s' % (t1, t1, t2, f32(1e-5)),
                  'v_rsq_f32 v%d, v%d' % (t1, t1),
                  'v_mul_f32 v%d, v%d, v%d' % (vRl, vRl, t1)]
        else:
            L += ['v_mul_f32 v%d, %s, v%d' % (vRl, f32(LOG2E), vRl)]
        return mk('\n'.join(L))

    def split_act(self, d0, val, t):
        return mk('\n'.join([
            'v_cvt_pk_bf16_f32 v%d, v%d, v%d' % (d0 + 1, val, val),
            'v_and_b32 v%d, 0xffff0000, v%d' % (t, d0 + 1),
            'v_sub_f32 v%d, v%d, v%d' % (t, val, t),
            'v_cvt_pk_bf16_f32 v%d, v%d, v%d' % (d0, val, t),
            'v_and_b32 v%d, 0xffff, v%d' % (d0 + 1, d0 + 1),
            'v_cndmask_b32 v%d, v%d, 0, s[%d:%d]' % (d0 + 1, d0 + 1, sHalf, sHalf + 1)]))

    def split_w(self, d0, val, t):
        return mk('\n'.join([
            'v_cvt_pk_bf16_f32 v%d, v%d, v%d' % (d0, val, val),
            'v_and_b32 v%d, 0xffff0000, v%d' % (t, d0),
            'v_sub_f32 v%d, v%d, v%d' % (t, val, t),
            'v_cvt_pk_bf16_f32 v%d, v%d, 0' % (d0 + 1, t)]))

    def phi8(self, r0, R, T, eps):
        L = ['v_pk_mul_f32 %s, %s, %s' % (v(r0 + i, 2), v(r0 + i, 2), R(i)) for i in range(0, 8, 2)]
        for i in range(8):
            L += ['v_exp_f32 v%d, v%d clamp' % (T + i, r0 + i), 'v_max_f32 v%d, 0, v%d' % (r0 + i, r0 + i)]
        L += ['v_pk_fma_f32 %s, %s, s[%d:%d], %s op_sel:[0,1,0] op_sel_hi:[1,1,1]' % (v(r0 + i, 2), v(r0 + i, 2), sLn2 - 1, sLn2, v(T + i, 2)) for i in range(0, 8, 2)]
        L += ['v_pk_add_f32 %s, %s, %s op_sel_hi:[1,0]' % (v(r0 + i, 2), v(r0 + i, 2), v(eps, 2)) for i in range(0, 8, 2)]
        return mk('\n'.join(L))

    def pack(self, dst, src, n):
        return mk('\n'.join('v_cvt_pk_bf16_f32 v%d, v%d, v%d' % (dst + i, src + 2 * i, src + 2 * i + 1) for i in range(n)))

    def unpack(self, dst, src, n):
        L = []
        for i in reversed(range(n)):
            L.append('v_and_b32 v%d, 0xffff0000, v%d' % (dst + 2 * i + 1, src + i))
            L.append('v_lshlrev_b32 v%d, 16, v%d' % (dst + 2 * i, src + i))
        return mk('\n'.join(L))

    def dots(self, regs, acc, ones, first):
        L = []
        for i, r in enumerate(regs):
            z = first and i == 0
            L.append('v_dot2_f32_bf16 v%d, v%d, v%d, %s' % (acc, r, ones, '0' if z else 'v%d' % acc))
            L.append('v_dot2_f32_bf16 v%d, v%d, v%d, %s' % (acc + 1, r, r, '0' if z else 'v%d' % (acc + 1)))
        return mk('\n'.join(L))

    def dots_end(self, acc):
        return mk('v_permlane32_swap_b32 v%d, v%d\nv_add_f32 v%d, v%d, v%d' % (acc, acc + 1, acc, acc, acc + 1))

    def row_stats(self, src, n, acc, ones):
        return mk('v_mov_b32 v%d, 0x3f803f80' % ones) + self.dots(range(src, src + n), acc, ones, True) + self.dots_end(acc)

    def kv_lane_addr(self, d, t, u, gather):
        L = []
        if gather:
            L += ['v_and_b32 v%d, 31, v0' % t, 'v_lshrrev_b32 v%d, 5, v0' % d]
        else:
            L += ['v_lshrrev_b32 v%d, 5, v0' % t, 'v_and_b32 v%d, 15, v0' % u, 'v_lshl_add_u32 v%d, v%d, 1, v%d' % (t, u, t), 'v_bfe_u32 v%d, v0, 4, 1' % d]
        L += ['v_lshrrev_b32 v%d, 3, v%d' % (u, t), 'v_sub_u32 v%d, v%d, v%d' % (u, t, u)]
        if not gather:
            L += ['v_and_b32 v%d, 7, v%d' % (t, t), 'v_cmp_eq_u32 vcc, 7, v%d' % t, 'v_cndmask_b32 v%d, v%d, 31, vcc' % (u, u)]
        L += ['v_lshl_add_u32 v%d, v%d, 5, v%d' % (d, d, u)]
        sh, qs, base = (4, 10, L_KVS) if gather else (5, 3, L_KVB)
        L += ['s_lshl_b32 s%d, s%d, %d' % (sT2, sW, qs), 'v_lshlrev_b32 v%d, %d, v%d' % (d, sh, d), 'v_add_u32 v%d, s%d, v%d' % (d, sT2, d)]
        L += ['v_and_b32 v%d, 1, v%d' % (t, u), 'v_lshlrev_b32 v%d, %d, v%d' % (t, 5 + sh, t), 'v_lshrrev_b32 v%d, 1, v%d' % (u, u)]
        L += ['v_cmp_gt_u32 vcc, 4, v%d' % u]
        L += ['v_lshl_add_u32 v%d, v%d, %d, v%d' % (t, u, qs, t), 'v_add_u32 v%d, %d, v%d' % (t, 28 << sh, t)]
        L += ['s_and_b64 vcc, vcc, s[%d:%d]' % ((sZm, sZm + 1) if gather else (sPm, sPm + 1)), 'v_cndmask_b32 v%d, v%d, v%d, vcc' % (d, d, t),
              'v_add_u32 v%d, %d, v%d' % (d, base, d)]
        return mk('\n'.join(L))

    def wq_dma(self, va, q):
        if q:
            ad = 'v_lshrrev_b32 v%d, 2, v0\nv_mul_u32_u24 v%d, 2688, v%d\nv_and_b32 v%d, 3, v0\nv_lshl_add_u32 v%d, v%d, 4, v%d' % (va, va, va, vT, va, vT, va)
        else:
            ad = ('v_lshrrev_b32 v%d, 3, v0\nv_mul_u32_u24 v%d, 2688, v%d\nv_and_b32 v%d, 3, v0\nv_lshl_add_u32 v%d, v%d, 4, v%d\n'
                  'v_lshrrev_b32 v%d, 2, v0\nv_xor_b32 v%d, v%d, v0\nv_bfe_u32 v%d, v%d, 2, 1\nv_mul_u32_u24 v%d, 896, v%d\nv_add3_u32 v%d, v%d, v%d, s%d'
                  % (va, va, va, vT, va, vT, va, vT, vT, vT, vT, vT, vT, vT, va, va, vT, sQ0))
        rows = 16 if q else 8
        pre = mk('s_mul_i32 s%d, s%d, 56\ns_add_u32 s%d, s%d, 896' % (sQ1, sM, sQ0, sQ1)) + mk(ad)
        if q:
            pre += mk('v_add_u32 v%d, s%d, v%d' % (va, sQ1, va))
        pre += mk('s_mul_i32 s%d, s%d, %d\ns_lshl_b32 s%d, s%d, 10' % (sRot, sW, rows * 2688, sQ1, sW))
        out = []
        for t in range(7 if q else 14):
            out.append(mk('s_add_u32 m0, s%d, %d\ns_add_u32 s%d, s%d, %d\nbuffer_load_dwordx4 v%d, %s, s%d offen lds'
                          % (sQ1, (L_Q if q else L_WQ) + 4096 * t, sQ0, sRot, 4 * t * rows * 2688, va, self.srd(SRD_WQ), sQ0)))
        return pre, out

    def touch(self, items, va):
        if not self.o['touch']:
            return []
        txt = ['v_lshlrev_b32 v%d, 7, v0' % va]
        cur = None
        n = 0
        for nl, srd, sg, c in items:
            if nl != cur:
                txt.append('s_mov_b64 exec, 0x%x' % ((1 << nl) - 1))
                cur = nl
            txt.append('s_add_u32 s%d, s%d, %d' % (sT2, sg, c) if sg is not None else 's_mov_b32 s%d, %d' % (sT2, c))
            txt.append('buffer_load_dword v%d, v%d, %s, s%d offen sc1' % (vDummy, va, self.srd(srd), sT2))
            n += 1
        txt.append('s_mov_b64 exec, -1')
        return [I('\n'.join(txt), kind='block', nvm=n, dst=[('v', va)], src=[('v', 0)], states=1, cost=12 * n)]

    def touch_attn(self, lo, va):
        pre = mk('s_lshr_b32 s%d, s%d, 2\ns_lshl_b32 s%d, s%d, 10\ns_add_u32 s%d, s%d, s%d\ns_mul_i32 s%d, s%d, 896' % (sT1, sM, sT1, sT1, sT1, sT1, sBlk, sT0, sW))
        return pre + self.touch([(16, SRD_CL, sOst, lo), (16, SRD_CL, sOst, lo + X1_OFF), (8, SRD_CL, sT1, lo + X1_OFF + 28672),
                                 (7, SRD_CL, sT0, lo + FL_OFF)], va)

    def prefetch(self, va, items):
        txt, n = ['v_lshlrev_b32 v%d, 7, v0' % va], 0
        for srd, per in items:
            for j in range(0, per, 64):
                nl = min(64, per - j)
                txt += ['s_mul_i32 s%d, s%d, %d' % (sT2, sWi, per * 128), 's_add_u32 s%d, s%d, %d' % (sT2, sT2, j * 128),
                        's_mov_b32 exec_lo, 0x%x' % (((1 << nl) - 1) & 0xffffffff), 's_mov_b32 exec_hi, 0x%x' % (((1 << nl) - 1) >> 32),
                        'buffer_load_dword v%d, v%d, %s, s%d offen' % (vDummy, va, self.srd(srd), sT2)]
                n += 1
        return [I('\n'.join(txt + ['s_mov_b64 exec, -1']), kind='block', nvm=n, src=[('v', 0)], dst=[('v', va)], cost=20 * n)]

    def idle_work(self):
        va = vT
        l = self.P.newlabel('Lnowarm')
        T = ['s_cmp_lg_u32 s%d, 0' % sSlow, 's_cbranch_scc1 %s' % l,
             'v_lshlrev_b32 v%d, 7, v0' % va,
             's_and_b32 s%d, s%d, 1' % (sT0, sM), 's_lshl_b32 s%d, s%d, 2' % (sT0, sT0), 's_add_u32 s%d, s%d, s%d' % (sT0, sT0, sW)]
        ld = lambda srd, fl: 'buffer_load_dword v%d, v%d, %s, s%d offen %s' % (vDummy, va, self.srd(srd), sT2, fl)
        nw2 = self.o['idlew2']
        if nw2:
            T += ['s_lshr_b32 s%d, s%d, 3' % (sT1, sC), 's_lshl_b32 s%d, s%d, 3' % (sT1, sT1), 's_add_u32 s%d, s%d, s%d' % (sT1, sT1, sT0),
                  's_lshl_b32 s%d, s%d, 13' % (sT2, sT1)]
            for i in range(nw2):
                T += [ld(SRD_W2, ''), 's_add_u32 s%d, s%d, 131072' % (sT2, sT2)]
        for i in range(2 * self.o['htk'] - (self.o['htk'] > 1), 7):
            T += ['s_lshl_b32 s%d, s%d, 13' % (sT2, sT0), 's_add_u32 s%d, s%d, %d' % (sT2, sT2, H_OFF + i * 65536), ld(SRD_CL, 'sc1')]
        if not self.o['alias']:
            for i in range(2):
                T += ['s_lshl_b32 s%d, s%d, 13' % (sT2, sT0), 's_add_u32 s%d, s%d, %d' % (sT2, sT2, XIN_OFF + i * 65536), ld(SRD_CL, 'sc1')]
        T += ['s_lshl_b32 s%d, s%d, 12' % (sT2, sT0), 's_add_u32 s%d, s%d, %d' % (sT2, sT2, XST_OFF), 's_mov_b32 exec_hi, 0', ld(SRD_CL, 'sc1'), 's_mov_b64 exec, -1']
        T += [l + ':']
        return '\n'.join(T)

    def prologue(self):
        P = self.P
        o = self.o
        P('s_cmp_ge_u32 s2, 256\ns_cbranch_scc1 L_end')
        if self.probe is not None:
            P.add([I('s_memrealtime s[96:97]\ns_memrealtime s[94:95]', kind='block', states=1)])
        P('s_load_dwordx16 s[%d:%d], s[0:1], 0' % (sKA, sKA + 15))
        P('s_load_dwordx4 s[%d:%d], s[0:1], 64' % (sKA + 16, sKA + 19))
        P('s_load_dwordx2 s[%d:%d], s[0:1], 80' % (sKA + 20, sKA + 21))
        P('v_lshrrev_b32 v%d, 6, v0\nv_and_b32 v0, 63, v0\nv_readfirstlane_b32 s%d, v%d' % (vT, sW, vT))
        P('s_lshr_b32 s%d, s2, 3\ns_lshl_b32 s%d, s%d, 2\ns_add_u32 s%d, s%d, s%d' % (sM, sWi, sM, sWi, sWi, sW))
        if o['codepf']:
            P.add([I('s_getpc_b64 s[%d:%d]\nL_pc:' % (sPC, sPC + 1), kind='block', dst=[], states=1)])
            P('s_lshl_b32 s%d, s%d, 9\nv_lshlrev_b32 v%d, 7, v0\nv_add_u32 v%d, s%d, v%d' % (sT0, sWi, vT, vT, sT0, vT))
            P.add([I('v_min_u32 v%d, L_code_end-L_pc-4, v%d\ns_mov_b64 exec, 15\nglobal_load_dword v%d, v%d, s[%d:%d]\ns_mov_b64 exec, -1'
                     % (vT, vT, vDummy, vT, sPC, sPC + 1), kind='block', dst=[('v', vT)], src=[('v', vT)], nvm=1)])
        P('s_and_b32 s%d, s2, 7\ns_lshr_b32 s%d, s%d, 4\ns_lshl_b32 s%d, s%d, 3\ns_add_u32 s%d, s%d, s%d\ns_and_b32 s%d, s%d, 15'
          % (sC, sT0, sM, sT0, sT0, sC, sC, sT0, sM, sM))
        P('v_lshlrev_b32 v%d, 4, v0' % vL16)
        if self.stamps:
            P('v_mov_b32 v%d, 0' % vStamp)
            P.add(self.stamp('start'))
            if self.light is not None:
                P('s_memrealtime s[98:99]\ns_waitcnt lgkmcnt(0)')
            else:
                assert not o['poll2']
                P('s_memrealtime s[%d:%d]\ns_waitcnt lgkmcnt(0)\nv_writelane_b32 v%d, s%d, 62' % (sStamp, sStamp + 1, vStamp, sStamp))
        P('s_lshl_b32 s%d, s%d, 2\ns_add_u32 s%d, s%d, s%d\ns_mul_i32 s%d, s%d, %d' % (sX, sC, sX, sX, sW, sX, sX, 32 * 896))
        vq, vxb, vxh, vxa, vrd = 160, 163, 164, 165, 167
        P('v_lshrrev_b32 v%d, 5, v0\nv_and_b32 v%d, 31, v0\nv_xor_b32 v%d, v%d, v%d\nv_lshlrev_b32 v%d, 4, v%d\nv_mul_u32_u24 v%d, 896, v%d'
          % (vxh, vT, vxb, vT, vxh, vxb, vxb, vxh, vxh))
        ka = sKA

        def mksrd(r, p, size):
            P('s_mov_b32 s%d, s%d\ns_mov_b32 s%d, s%d\ns_mov_b32 s%d, %d\ns_mov_b32 s%d, 0x20000' % (r, p, r + 1, p + 1, r + 2, size, r + 3))
        P('s_lshl_b32 s%d, s%d, 14\ns_add_u32 s%d, s%d, %d' % (sT5, sW, sT5, sT5, L_XS))
        mksrd(SRD_X, ka + 0, 2048 * 896)

        def xdma(half):
            out = []
            for i in range(16):
                if half:
                    g = mk('s_mov_b32 s%d, %d\nv_xad_u32 v%d, v%d, s%d, v%d' % (sT0, ((2 * i) & 15) << 4, vxa + (i & 1), vxb, sT0, vxh))
                    g += mk('s_add_u32 s%d, s%d, %d\ns_add_u32 m0, s%d, %d' % (sT1, sX, 2 * i * 896 + 512, sT5, 1024 * i))
                    out.append(g + mk('buffer_load_dwordx4 v%d, %s, s%d offen lds' % (vxa + (i & 1), self.srd(SRD_X), sT1)))
                    continue
                g = mk('s_add_u32 s%d, s%d, %d\ns_and_b32 s%d, s%d, 15' % (sT4, sM, i, sT4, sT4) if o['rot'] else 's_mov_b32 s%d, %d' % (sT4, i))
                g += mk('s_lshl_b32 s%d, s%d, 5\ns_and_b32 s%d, s%d, 0xf0\nv_xad_u32 v%d, v%d, s%d, v%d' % (sT0, sT4, sT0, sT0, vxa + (i & 1), vxb, sT0, vxh))
                g += mk('s_mul_i32 s%d, s%d, 1792\ns_add_u32 s%d, s%d, s%d\ns_lshl_b32 s%d, s%d, 10\ns_add_u32 m0, s%d, s%d' % (sT1, sT4, sT1, sT1, sX, sT4, sT4, sT4, sT5))
                g += mk('buffer_load_dwordx4 v%d, %s, s%d offen lds' % (vxa + (i & 1), self.srd(SRD_X), sT1))
                out.append(g)
            return out
        mksrd(SRD_WQ, ka + 2, 448 * 2688)
        if o['pf0']:
            P('v_lshlrev_b32 v%d, 7, v0\ns_lshl_b32 s%d, s%d, 2\ns_add_u32 s%d, s%d, s%d\ns_mul_i32 s%d, s%d, %d\ns_mul_i32 s%d, s%d, %d\ns_add_u32 s%d, s%d, s%d\ns_mul_i32 s%d, s%d, 49'
              % (vxa, sT0, sM, sT0, sT0, sW, sT0, sT0, 14 * 128, sT1, sC, 128 * 896, sT0, sT0, sT1, sT1, sWi))
            if o['pf0'] == 1:
                P('v_add_u32 v%d, s%d, v0\nv_mul_u32_u24 v%d, 37450, v%d\nv_lshrrev_b32 v%d, 19, v%d\nv_mul_u32_u24 v%d, 896, v%d\nv_lshl_add_u32 v%d, v%d, 7, v%d'
                  % (vT, sT1, vxa + 1, vT, vxa + 1, vxa + 1, vxa + 1, vxa + 1, vxa + 1, vT, vxa + 1))
                P.add([I('s_mov_b64 exec, 0x3fff\nbuffer_load_dword v%d, v%d, %s, s%d offen\ns_mov_b32 exec_lo, -1\ns_mov_b32 exec_hi, 0x1ffff\n'
                         'buffer_load_dword v%d, v%d, %s, 0 offen offset:896\ns_mov_b64 exec, -1'
                         % (vDummy, vxa, self.srd(SRD_X), sT0, vDummy, vxa + 1, self.srd(SRD_WQ)), kind='block', nvm=2, src=[('v', vxa), ('v', vxa + 1)])])
            else:
                P.add([I('s_mov_b64 exec, 0x3fff\nbuffer_load_dword v%d, v%d, %s, s%d offen\ns_mov_b64 exec, -1' % (vDummy, vxa, self.srd(SRD_X), sT0),
                         kind='block', nvm=1, src=[('v', vxa)])])
                P.add(self.prefetch(vxa, [(SRD_WQ, 74)]))
        body = [x.text for x in xdma(0)[0]]
        body[0] = 's_add_u32 s%d, s%d, s%d' % (sT4, sM, sT2) if o['rot'] else 's_mov_b32 s%d, s%d' % (sT4, sT2)
        loop = I('\n'.join(['s_mov_b32 s%d, 0' % sT2, 'L_xa:'] + body[:-1] + ['s_add_u32 s%d, s%d, 1' % (sT2, sT2), 's_cmp_lt_u32 s%d, 16' % sT2, body[-1],
                                                                            's_cbranch_scc1 L_xa']), kind='block', nvm=16, src=[('v', vxb), ('v', vxh)] + regs_of(s(SRD_X, 4)), dst=[('v', vxa)])
        tA = tok(loop)
        P.add([loop])
        P('s_load_dword s%d, s[%d:%d], 0' % (sNonce, ka + 20, ka + 21))
        mksrd(SRD_OUT, ka + 16, 2048 * 896)
        pre, wq = self.wq_dma(vq, False)
        self.tok_wq1, self.tok_wq = tok(wq[7][-1]), tok(wq[-1][-1])
        P.add(pre + flat(wq[:8]))
        mksrd(SRD_WO, ka + 4, 448 * 896)
        mksrd(SRD_W1, ka + 8, 448 * 3584)
        mksrd(SRD_B1, ka + 10, 3584)
        mksrd(SRD_W2, ka + 12, 1792 * 896)
        mksrd(SRD_B2, ka + 14, 896)
        mksrd(SRD_WS, ka + 20, WS_CL)
        P('s_lshl_b32 s%d, s%d, 21\ns_add_u32 s%d, s%d, %d' % (sT0, sC, sT0, sT0, WS_CL))
        P('s_add_u32 s%d, s%d, s%d\ns_addc_u32 s%d, s%d, 0\ns_mov_b32 s%d, 0x200000\ns_mov_b32 s%d, 0x20000'
          % (SRD_CL, ka + 20, sT0, SRD_CL + 1, ka + 21, SRD_CL + 2, SRD_CL + 3))
        P('s_mov_b32 s%d, %s\ns_mov_b32 s%d, 0\ns_mov_b32 s%d, -1' % (sLn2, f32(LN2), sHalf, sHalf + 1))
        P('s_mov_b32 s%d, 0x10000000\ns_mov_b32 s%d, 0x10000000\ns_mov_b32 s%d, 0' % (sN28, sN28 + 1, sSpin))
        P('s_getreg_b32 s%d, hwreg(HW_REG_XCC_ID, 0, 4)' % sXcc)
        P('s_and_b32 s%d, s%d, 1\ns_sub_u32 s%d, 3, s%d' % (sEb, sM, sLb, sEb))
        P('s_cmp_eq_u32 s%d, 3\ns_cselect_b32 s%d, -1, 0\ns_mov_b32 s%d, 0' % (sW, sZm + 1, sZm))
        P('s_lshr_b32 s%d, s%d, 3' % (sD1, sC) if o['strot'] else 's_mov_b32 s%d, 0' % sD1)
        c0 = -2.0 * 0.7978845608028654 * LOG2E
        P('s_mov_b32 s%d, %s\ns_mov_b32 s%d, %s' % (sC0, f32(c0), sC1, f32(c0 * 0.044715)))
        P('s_lshr_b32 s%d, s%d, 1\ns_lshl_b32 s%d, s%d, 2\ns_and_b32 s%d, s%d, 1\ns_lshl_b32 s%d, s%d, 1\ns_add_u32 s%d, s%d, s%d\ns_lshr_b32 s%d, s%d, 1\ns_add_u32 s%d, s%d, s%d'
          % (sFe, sM, sFe, sFe, sT0, sW, sT0, sT0, sFe, sFe, sT0, sT0, sW, sFe, sFe, sT0))
        P('s_lshl_b32 s%d, s%d, 15\ns_lshl_b32 s%d, s%d, 11\ns_add_u32 s%d, s%d, s%d' % (sBlk, sW, sOst, sM, sOst, sOst, sBlk))
        P('s_lshl_b32 s%d, s%d, 7\ns_add_u32 s%d, s%d, %d\ns_lshl_b32 s%d, s%d, 2\ns_add_u32 s%d, s%d, s%d' % (sFo, sW, sFo, sFo, FL_OFF, sT0, sM, sFoMy, sFo, sT0))
        P('s_lshl_b32 s%d, s%d, 2\ns_add_u32 s%d, s%d, s%d\ns_mul_i32 s%d, s%d, %d\ns_add_u32 s%d, s%d, %d' % (sT1, sM, sT1, sT1, sW, sKv, sT1, KVP_CH, sKv, sKv, WS_KVP))
        P('s_lshl_b32 s%d, s%d, 9\ns_add_u32 s%d, s%d, s%d' % (sKvMy, sC, sKvMy, sKvMy, sKv))
        P('s_lshl_b32 s%d, s%d, 11\ns_add_u32 s%d, s%d, %d' % (sHst, sT1, sHst, sHst, H_OFF))
        P('s_lshl_b32 s%d, s%d, 11\ns_add_u32 s%d, s%d, %d' % (sT1, sW, sT1, sT1, H_OFF))
        P('s_mul_i32 s%d, s%d, 114688\ns_add_u32 s%d, s%d, s%d\ns_mul_i32 s%d, s%d, 114688\ns_add_u32 s%d, s%d, s%d' % (sHE, sEb, sHE, sHE, sT1, sHL, sLb, sHL, sHL, sT1))
        P('s_lshl_b32 s%d, s%d, 9\ns_add_u32 s%d, s%d, s%d\ns_add_u32 s%d, s%d, %d' % (sPE, sEb, sPE, sPE, sFo, sPE, sPE, FH - FL_OFF))
        P('s_lshl_b32 s%d, s%d, 9\ns_add_u32 s%d, s%d, s%d\ns_add_u32 s%d, s%d, %d' % (sPL, sLb, sPL, sPL, sFo, sPL, sPL, FH - FL_OFF))
        self.xreg0 = xr = [16 + 4 * i if i < 20 else 176 + 4 * (i - 20) for i in range(28)]
        P('v_and_b32 v%d, 15, v0\nv_lshrrev_b32 v%d, 5, v0\nv_xor_b32 v%d, v%d, v%d\nv_lshlrev_b32 v%d, 4, v%d\nv_and_b32 v%d, 31, v0\nv_lshl_add_u32 v%d, v%d, 9, v%d\nv_add_u32 v%d, s%d, v%d'
          % (vT, vrd, vrd, vrd, vT, vrd, vrd, vT, vrd, vT, vrd, vrd, sT5, vrd))
        xrd = lambda k: mk('v_xor_b32 v%d, %d, v%d\nds_read_b128 %s, v%d' % (vrd + 1 + (k & 1), 32 * (k & 15), vrd, v(xr[k], 4), vrd + 1 + (k & 1)))
        vrs = vrd + 3
        P('v_and_b32 v%d, 15, v0\nv_lshlrev_b32 v%d, 4, v%d\nv_lshrrev_b32 v%d, 5, v0\nv_lshl_add_u32 v%d, v%d, 3, v%d\nv_and_b32 v%d, 31, v0\nv_lshl_add_u32 v%d, v%d, 9, v%d\nv_add_u32 v%d, s%d, v%d'
          % (vrs, vrs, vrs, vT, vrs, vT, vrs, vT, vrs, vT, vrs, vrs, sT5, vrs))
        P('s_and_b32 s%d, s%d, 7\ns_lshl_b32 s%d, s%d, 6\nv_xor_b32 v%d, s%d, v%d' % (sT0, sM, sT0, sT0, vrs, sT0, vrs))

        def resrd(half):
            l = P.newlabel('Lres')
            t = ['s_cmp_%s_u32 s%d, 8' % ('lt' if half else 'ge', sM), 's_cbranch_scc1 %s' % l]
            for g in range(4):
                t += ['v_xor_b32 v%d, %d, v%d' % (vrs + 1, 16 * g, vrs), 'ds_read_b64 %s, v%d' % (a(216 + 2 * g, 2), vrs + 1)]
            return [I('\n'.join(t + [l + ':']), kind='block', src=[('v', vrs)], dst=[('v', vrs + 1)])]
        P.add(self.stamp('issued'))
        P.add([wait_tok(tA)])
        P.add(self.stamp('xA'))
        for k in range(16):
            P.add(xrd(k))
        P.add(resrd(0))
        vS, vOne = 172, 174
        P('v_mov_b32 v%d, 0x3f803f80\ns_waitcnt lgkmcnt(0)' % vOne)
        xb = xdma(1)
        self.tok_xb = tok(xb[-1][-1])
        d = self.dots([xr[k] + i for k in range(16) for i in range(4)], vS, vOne, True)
        P.add(spread(xb[:o['nxb1']], d))
        self.late_dma = xb[o['nxb1']:] + wq[8:]
        self.late_rd = [xrd(k) for k in range(16, 28)] + [resrd(1)]
        self.late_dots = self.dots([xr[k] + i for k in range(16, 28) for i in range(4)], vS, vOne, False) + self.dots_end(vS)
        P('s_add_u32 s%d, s%d, 0x01010101' % (sNonce, sNonce))
        P('v_mov_b32 v%d, s%d' % (vNonce, sNonce))
        P('s_lshl_b32 s%d, s%d, 4\ns_add_u32 s%d, s%d, s%d\ns_lshl_b32 s%d, s%d, 7\ns_add_u32 s%d, s%d, %d'
          % (sT2, sC, sT2, sT2, sM, sT2, sT2, sT2, sT2, WS_XCC))
        P('s_add_u32 s%d, s%d, s%d\nv_mov_b32 v%d, s%d\ns_mov_b64 exec, 1' % (sT3, sNonce, sXcc, vT, sT3))
        P('buffer_store_dword v%d, off, %s, s%d sc1' % (vT, self.srd(SRD_WS), sT2))
        P('s_mov_b64 exec, -1')

    def s1(self, l):
        P = self.P
        o = self.o
        AK, AV, AQ, WB, SB = 96, 112, 128, 144, 160
        RLB, XE = SB, SB + 8
        NB = 4
        vS = 172 if l == 0 else vT + 2
        P.comment('==== layer %d : S1' % l)
        kh = 8 if l == 0 else 4
        vTrV, vTrQ, vCs = vT + 3, (vT + 2 if l == 0 else vDummy), vPA
        trkv = self.trbase(vTr, 128, kh, add=L_WQ) + mk('v_bfe_u32 v%d, v0, 3, 1\nv_lshl_add_u32 v%d, v%d, 6, v%d\nv_xor_b32 v%d, 64, v%d' % (vT, vTr, vT, vTr, vTrV, vTr))
        trq = self.trbase(vTrQ, 64, kh, add=L_Q)
        fin = self.stats_finish(vS, False)
        fin += mk('s_lshl_b32 s%d, s%d, 12\ns_add_u32 s%d, s%d, %d' % (sT4, sW, sT4, sT4, L_KVS))
        bounce = mk('v_and_b32 v%d, 31, v0\nv_lshl_add_u32 v%d, v%d, 2, s%d\nds_write_b32 v%d, v%d' % (vT + 1, vT + 1, vT + 1, sT4, vT + 1, vRl))
        fin += bounce
        fin += mk('v_sub_f32 v%d, 0, v%d' % (vMean, vMean)) + self.split_act(XE, vMean, vT)
        fin += mk('v_cndmask_b32 v%d, v%d, 0, s[%d:%d]\nv_mov_b32 v%d, 0\nv_mov_b32 v%d, 0' % (XE, XE, sHalf, sHalf + 1, XE + 2, XE + 3))
        if l == 0:
            xreg = self.xreg0
            P.add(trkv)
            P.add([wait_tok(self.tok_wq1)])
            P('s_barrier')
            P.add(self.stamp('wq_ready'))
            lds = []
        else:
            xreg = [16 + 4 * (i % 20) for i in range(28)]
            P.add(self.pa(28))
            P('s_add_u32 s%d, s%d, %d' % (sT4, sFo, FXIN - FL_OFF))
            P.add(self.poll_issue(sT4, o['pdi']))
            P('s_add_u32 s%d, s%d, s%d\ns_lshl_b32 s%d, s%d, 13' % (sT5, sBlk, sXin, sT3, sW))
            P.add(trkv + trq)
            lds = self.frag_loads([v(r, 4) for r in xreg], SRD_CL, sT5, 0, flags='sc1')
        nq = 0 if l == 0 else 8
        jobs = []
        for k in range(28):
            if l == 0 and k == 16:
                jobs += [(t, kk) for kk in range(7) for t in 'KV']
            jobs += [('k', k), ('v', k)] + ([('q', k)] if k < nq else [])
        jobs += [('k', 'e'), ('v', 'e')]
        nmain = len(jobs)
        jobs += [('q', k) for k in range(nq, 28)] + ([('q', 'e')] if l else [('Q', kk) for kk in range(7)])
        vo, vb, CSA = RLB, RLB + 4, 208

        def rd(j):
            t, k = jobs[j]
            b = WB + 4 * (j % NB)
            if k == 'e':
                return mk('ds_read_b64 %s, v%d offset:%d\nv_mov_b32 v%d, 0\nv_mov_b32 v%d, 0' % (v(b, 2), vCs, 256 * 'qkv'.index(t), b + 2, b + 3))
            base = {'q': vTrQ, 'k': vTr, 'v': vTrV, 'K': vb, 'V': vb + 1, 'Q': vTr}[t]
            rs = 64 if t in 'qQ' else 128
            return mk('ds_read_b64_tr_b16 %s, v%d offset:%d\nds_read_b64_tr_b16 %s, v%d offset:%d' % (v(b, 2), base, 16 * rs * k, v(b + 2, 2), base, 16 * rs * k + (32 // kh) * rs))
        for j in range(NB):
            P.add(rd(j))
        if l == 1:
            P.add(self.poll_check(sT4))
            P.add(self.stamp('x2_seen'))
            P.add(flat(lds[:o['look']]))
            P('s_add_u32 s%d, s%d, 1\nv_mov_b32 v%d, s%d' % (sNonce, sNonce, vNonce, sNonce))
        P('v_and_b32 v%d, 31, v0\nv_lshlrev_b32 v%d, 3, v%d\nv_add_u32 v%d, %d, v%d' % (vCs, vCs, vCs, vCs, L_CS, vCs))
        slots = []
        for j, (t, k) in enumerate(jobs):
            w = v(WB + 4 * (j % NB), 4)
            if t.isupper():
                sl = mfma(CSA + 16 * (t == 'V'), v(CSA + 16 if t == 'Q' else vo, 4), w, k == 0)
            else:
                x = v(XE if k == 'e' else xreg[k], 4)
                A, B = (w, x) if t == 'q' else (x, w)
                sl = mfma({'q': AQ, 'k': AK, 'v': AV}[t], A, B, k == 0)
            if l == 0 and j == 32 - NB:
                sl += self.late_dots + [wait_tok(self.tok_wq)] + mk('s_waitcnt lgkmcnt(0)\ns_barrier') + (self.stamp('bar2') if self.fine else [])
                sl += mk('s_mul_i32 s%d, s%d, %d\nv_add_u32 v%d, s%d, v%d\nv_add_u32 v%d, s%d, v%d' % (sT0, sW, 7 * 2048, vb, sT0, vTr, vb + 1, sT0, vTrV))
            if j % 2 == 0 and j + 1 < len(jobs) and j + 1 != nmain and o['s1pair']:
                also_waits_for(sl[0], v(WB + 4 * ((j + 1) % NB), 4))
            if j + NB < len(jobs) and not (j < nmain <= j + NB):
                sl += rd(j + NB)
            slots.append(sl)
        if l == 0:
            n = len(self.late_dma)
            for i, g in enumerate(self.late_dma):
                slots[(i * o['latespan']) // n] += g
            r0 = 32 - NB - 7
            slots[r0] += [wait_tok(self.tok_xb)]
            for i, g in enumerate(self.late_rd):
                slots[r0 + i // 2] += g
            slots[29] += mk('\n'.join('v_mov_b32 v%d, 0x3f803f80' % (vo + i) for i in range(4)))
            for i in range(0, len(fin), 4):
                slots[30 + i // 4] += fin[i:i + 4]
            pre, qd = self.wq_dma(175, True)
            self.tok_q = tok(qd[-1][-1])
            for i, g in enumerate([pre] + qd):
                slots[37 + i] += g
            slots[o['tslot']] += self.prefetch(vT, [(SRD_WO, 25)]) + self.touch_attn(0, vT)
            slots[47] += mk('v_and_b32 v%d, 31, v0\nv_lshlrev_b32 v%d, 2, v%d\ns_lshl_b32 s%d, s%d, 8\nv_add_u32 v%d, %d, v%d\nv_add_u32 v%d, s%d, v%d'
                            % (vb, vb, vb, sT0, sW, vb, L_KVB, vb, vb + 1, sT0, vb))
            slots[48] += mk('\n'.join('ds_write_b32 v%d, v%d offset:%d' % (vb + 1, CSA + 16 * t, 128 * t) for t in range(2)))
            slots[50] += mk('s_waitcnt lgkmcnt(0)\ns_barrier')
            for t in range(2):
                r = RLB
                slots[50 + 5 * t] += mk('\n'.join('ds_read_b32 v%d, v%d offset:%d' % (r + ww, vb, 256 * ww + 128 * t) for ww in range(4)))
                slots[53 + 5 * t] += mk('v_add_f32 v%d, v%d, v%d\nv_add_f32 v%d, v%d, v%d\nv_add_f32 v%d, v%d, v%d' % (r, r, r + 1, r + 2, r + 2, r + 3, r, r, r + 2))
                slots[54 + 5 * t] += self.split_w(r + 2, r, r + 1) + mk('ds_write_b64 v%d, %s offset:%d' % (vCs, v(r + 2, 2), 256 * (t + 1)))
        else:
            n = o['look']
            for j in range(0, nmain, 2):
                if n < 28:
                    k_free = n - 20
                    assert k_free < 0 or j >= jobs.index(('q', k_free))
                    slots[j] += lds[n]
                    n += 1
            st = self.frag_loads([v(SB + 4 * (i % 4), 4) for i in range(7)], SRD_CL, sT3, XST_OFF, st=sT1, flags='sc1')
            a0, a1 = o['sta'], o['stb']
            for i in range(4):
                slots[a0 + 2 * i] += st[i]
            ex = []
            for i in range(1, 16):
                ex += mk('v_add_f32 v%d, v%d, v%d' % (vS, vS if i > 1 else SB, SB + i))
            for i in range(0, 15, 2):
                slots[a1 - 8 + i // 2] += ex[i:i + 2]
            for i in range(3):
                slots[a1 + 2 * i] += st[4 + i]
            ex = flat(mk('v_add_f32 v%d, v%d, v%d' % (vS, vS, SB + i)) for i in range(12)) + fin
            e0 = o['stc']
            per = -(-len(ex) // (61 - e0))
            for i in range(61 - e0):
                slots[e0 + i] += ex[i * per:(i + 1) * per]
        RB = [WB + 4 * ((nmain - 4 + g) % NB) for g in range(4)]
        vEps = vT + 1
        slots[nmain - 5] += mk('v_lshrrev_b32 v%d, 5, v0\nv_lshl_add_u32 v%d, v%d, 4, s%d' % (vT + 2, vT + 2, vT + 2, sT4))
        for g in range(4):
            slots[nmain - 4 + g] += mk('ds_read_b128 %s, v%d offset:%d' % (v(RB[g], 4), vT + 2, 32 * g))
        slots[nmain - 1] += mk('v_mov_b32 v%d, 0x3f803f80\nv_add_u32 v%d, s%d, v%d\nv_mov_b32 v%d, %s' % (vPoll, vT, sT4, vL16, vEps, f32(1e-6)))
        vG = SB + 12
        ga = self.kv_lane_addr(vG, vG + 1, vG + 2, gather=True)
        for i in range(0, len(ga), 3):
            slots[(o['stb'] + 1 if l else 60) + i // 3] += ga[i:i + 3]
        P.add(flat(slots[:nmain]))
        P.add(self.stamp('s1_kv_mfma'))
        DK = WB
        for hf in range(2):
            R = lambda i: v(RB[2 * hf + i // 4] + i % 4, 2)
            P.add(self.phi8(AK + 8 * hf, R, RLB, vEps) + self.pack(AK + 4 * hf, AK + 8 * hf, 4))
            P.add(flat(mk('v_pk_mul_f32 %s, %s, %s' % (v(AV + 8 * hf + i, 2), v(AV + 8 * hf + i, 2), R(i))) for i in range(0, 8, 2)))
            P.add(self.pack(AV + 4 * hf, AV + 8 * hf, 4))
            for i in range(4):
                P('v_cndmask_b32 v%d, v%d, v%d, s[%d:%d]' % (AV + 4 * hf + i, AV + 4 * hf + i, vPoll, sN28, sN28 + 1))
        P.add(mfma(DK, v(AK, 4), v(AV, 4), True) + mfma(DK, v(AK + 4, 4), v(AV + 4, 4)))
        P('s_mov_b32 s%d, 0x80808080\ns_mov_b32 s%d, 0x80808080' % (sT0 + 1, sT0 + 2))
        for q in range(4):
            P('ds_write_b128 v%d, %s offset:%d' % (vT, v(DK + 4 * q, 4), 1024 * q))
        P('v_lshlrev_b32 v%d, 3, v0\ns_waitcnt lgkmcnt(0)\ns_barrier' % vT)
        for ww in range(4):
            P('ds_read_b128 %s, v%d offset:%d' % (v(AK + 4 * ww, 4), vG, 4096 * ww))
        if l == 1:
            for j in range(nmain, nmain + NB):
                P.add(rd(j))
        for x, y in ((AK, AK + 4), (AK + 8, AK + 12), (AK, AK + 8)):
            for i in (0, 2):
                P('v_pk_add_f32 %s, %s, %s' % (v(x + i, 2), v(x + i, 2), v(y + i, 2)))
        P.add(self.pack(AK, AK, 2))
        for i in range(2):
            P('v_cndmask_b32 v%d, v%d, v%d, s[%d:%d]' % (AK + i, AK + i, vNonce, sT0 + 1, sT0 + 2))
        P('buffer_store_dwordx2 %s, v%d, %s, s%d offen sc1' % (v(AK, 2), vT, self.srd(SRD_WS), sKvMy))
        P.add(self.stamp('kv_pub'))
        PQ = self.PQ = 104

        def qepi():
            L = []
            for hf in range(2):
                L += self.phi8(AQ + 8 * hf, lambda i: v(vRl, 2) + ' op_sel_hi:[1,0]', 48, vEps) + self.pack(PQ + 4 * hf, AQ + 8 * hf, 4)
            for i in (6, 7):
                L += mk('v_cndmask_b32 v%d, v%d, 0, s[%d:%d]' % (PQ + i, PQ + i, sHalf, sHalf + 1))
            return L
        if l == 0:
            P.add(trq + mk('\n'.join('v_mov_b32 v%d, 0x3f803f80' % (CSA + 16 + i) for i in range(4))))
            P('s_mul_i32 s%d, s%d, %d\nv_add_u32 v%d, s%d, v%d' % (sT0, sW, 7 * 1024, vTr, sT0, vTrQ))
            pre = [wait_tok(self.tok_q)] + mk('s_barrier') + flat(rd(j) for j in range(nmain, nmain + NB))
            va = CSA + 20
            post = mk('v_and_b32 v%d, 31, v0\nv_lshlrev_b32 v%d, 2, v%d\nv_add_u32 v%d, %d, v%d\ns_lshl_b32 s%d, s%d, 7\nv_add_u32 v%d, s%d, v%d\nds_write_b32 v%d, v%d'
                      % (va, va, va, va, L_KVS, va, sT0, sW, va + 1, sT0, va, va + 1, CSA))

            def qfin():
                L = mk('\n'.join('ds_read_b32 v%d, v%d offset:%d' % (WB + 4 + ww, va, 128 * ww) for ww in range(4)))
                L += mk('v_add_f32 v%d, v%d, v%d\nv_add_f32 v%d, v%d, v%d\nv_add_f32 v%d, v%d, v%d' % (WB + 4, WB + 4, WB + 5, WB + 6, WB + 6, WB + 7, WB + 4, WB + 4, WB + 6))
                L += self.split_w(WB, WB + 4, WB + 5) + mk('v_mov_b32 v%d, 0\nv_mov_b32 v%d, 0\nds_write_b64 v%d, %s' % (WB + 2, WB + 3, va + 2, v(WB, 2)))
                return L + mfma(AQ, v(WB, 4), v(XE, 4)) + qepi()
            post += mk('v_mov_b32 v%d, v%d' % (va + 2, vCs))
            self.staging(pre, slots[nmain:], post, qfin)
        else:
            P.add(spread(slots[nmain:], self.kvx_pre(1)))
            P.add(qepi())

    PARK = 140

    def wo_dma(self, vwo):
        wo = [mk('v_lshrrev_b32 v%d, 2, v0\nv_mul_u32_u24 v%d, 896, v%d\nv_and_b32 v%d, 3, v0\nv_lshl_add_u32 v%d, v%d, 4, v%d\ns_lshl_b32 s%d, s%d, 6\nv_add_u32 v%d, s%d, v%d'
                 % (vwo, vwo, vwo, vT, vwo, vT, vwo, sQ0, sM, vwo, sQ0, vwo))
              + mk('s_mul_i32 s%d, s%d, %d\ns_lshl_b32 s%d, s%d, 10\ns_add_u32 s%d, s%d, %d' % (sQ1, sW, 16 * 896, sT3, sW, sT3, sT3, L_WO))]
        for t in range(7):
            wo.append(mk('s_add_u32 m0, s%d, %d\ns_add_u32 s%d, s%d, %d\nbuffer_load_dwordx4 v%d, %s, s%d offen lds' % (sT3, 4096 * t, sQ0, sQ1, t * 64 * 896, vwo, self.srd(SRD_WO), sQ0)))
        last = I('s_mov_b32 s%d, %d\ns_mov_b32 m0, %d\ns_mov_b64 exec, 0xffff\nbuffer_load_dwordx4 v%d, %s, s%d offen lds\ns_mov_b64 exec, -1'
                 % (sQ0, 448 * 896, L_WO + 28672, vwo, self.srd(SRD_WO), sQ0), kind='block', nvm=1, src=[('v', vwo)])
        self.tok_wo = tok(last)
        return wo + [[last]]

    def staging(self, qpre, qslots, qpost, qepi):
        P = self.P
        lskip, ljoin = P.newlabel('Lnostage'), P.newlabel('Lstaged')
        v1a, t0, t1, vp, vb, vb2 = 112, 113, 114, 115, 116, 168
        P('s_cmp_lt_u32 s%d, 14\ns_cselect_b32 s%d, s%d, 0' % (sM, SRD_W1 + 2, SRD_W1 + 2))
        P('v_lshrrev_b32 v%d, 2, v0\nv_mul_u32_u24 v%d, 3584, v%d\nv_and_b32 v%d, 3, v0\nv_lshl_add_u32 v%d, v%d, 4, v%d'
          % (v1a, v1a, v1a, vT, v1a, vT, v1a))
        P('s_lshl_b32 s%d, s%d, 2\ns_add_u32 s%d, s%d, s%d\ns_lshl_b32 s%d, s%d, 6\nv_add_u32 v%d, s%d, v%d' % (sT5, sM, sT5, sT5, sW, sT5, sT5, v1a, sT5, v1a))
        P('s_mul_i32 s%d, s%d, 14336\ns_add_u32 s%d, s%d, %d\ns_mul_i32 s%d, s%d, 21504\ns_mul_i32 s%d, s%d, %d' % (sT3, sW, sT3, sT3, L_EX, sQ1, sW, sWi, sD1, 14 * 16 * 3584))

        def issue(k):
            g = mk('s_add_u32 m0, s%d, %d' % ((sT3, 1024 * k) if k < 14 else (sQ1, 1024 * (k - 14))))
            g += mk('s_add_u32 s%d, s%d, %d' % (sQ0, sWi, k * 16 * 3584) if k < 14 else 's_sub_u32 s%d, %d, s%d' % (sQ0, k * 16 * 3584, sWi))
            g += mk('buffer_load_dwordx4 v%d, %s, s%d offen lds' % (v1a, self.srd(SRD_W1), sQ0))
            return g
        dm = [issue(k) for k in range(28)]
        tk = [tok(g[-1]) for g in dm]
        park = mk('\n'.join('v_accvgpr_read_b32 v%d, a%d' % (160 + i, 216 + i) for i in range(8)))
        park += mk('v_add_u32 v%d, s%d, v%d' % (vp, sQ1, vL16))
        park += flat(mk('ds_read_b128 %s, v%d offset:%d' % (a(self.PARK + 4 * i, 4), vp, 1024 * i)) for i in range(21))
        ht = self.touch([(16, SRD_CL, sHst, b * 114688) for b in range(self.o['htk'])], vT) if self.o['htk'] else []
        P.add(flat(dm[:7]) + qpre + ht + (self.stamp('q_go') if self.fine else []))
        for i, g in enumerate(dm[7:14]):
            qslots[self.o['w1q'] + 2 * i] += g
        P.add(spread(qslots, park) + qpost)
        P('s_lshl_b32 s%d, s%d, 11\ns_add_u32 s%d, s%d, %d' % (sT4, sC, sT4, sT4, WS_XCC))
        P('v_and_b32 v%d, 15, v0\nv_lshlrev_b32 v%d, 7, v%d' % (vPA, vPA, vPA))
        P('buffer_load_dword v%d, v%d, %s, s%d offen sc1' % (vPoll, vPA, self.srd(SRD_WS), sT4))
        P('s_waitcnt lgkmcnt(0)\ns_barrier')
        if self.fine:
            P.add(self.stamp('q_done'))
        vo, D = 124, 128
        ad = self.trbase(t1, 64, 4) + mk('v_add_u32 v%d, s%d, v%d\nv_add_u32 v%d, s%d, v%d' % (t0, sT3, t1, t1, sQ1, t1))
        ad += mk('\n'.join('v_mov_b32 v%d, 0x3f803f80' % (vo + i) for i in range(4)))
        n1 = self.o['w1pre']
        for k in range(14, 14 + n1):
            lb = P.newlabel('Lnw')
            blk = I('s_cmp_ge_u32 s%d, 14\ns_cbranch_scc1 %s\n%s\n%s:' % (sM, lb, '\n'.join(x.text for x in dm[k]), lb), kind='block', nvm=1, src=[('v', v1a)], cost=20)
            blk.tok = tk[k]
            dm[k] = [blk]
        P.add(spread(dm[14:14 + n1], qepi() + ad) if n1 else qepi() + ad)
        P.add(self.stamp('sweep_start') + self.sweep_loads())
        P.add([I('s_cmp_ge_u32 s%d, 14\ns_cbranch_scc1 %s' % (sM, lskip), kind='block')])
        self.ool.append('%s:\ns_waitcnt vmcnt(0)\ns_branch %s' % (lskip, ljoin))
        P('v_and_b32 v%d, 31, v0\nv_lshlrev_b32 v%d, 1, v%d\nbuffer_load_ushort v%d, v%d, %s, s%d offen' % (vT, vT, vT, vb, vT, self.srd(SRD_B1), sT5))
        P('v_lshrrev_b32 v%d, 5, v0\nv_lshlrev_b32 v%d, 3, v%d\ns_lshl_b32 s%d, s%d, 5' % (vT, vT, vT, sT2, sFe))
        P('buffer_load_dwordx2 %s, v%d, %s, s%d offen\nbuffer_load_dwordx2 %s, v%d, %s, s%d offen offset:16'
          % (v(vb2, 2), vT, self.srd(SRD_B2), sT2, v(vb2 + 2, 2), vT, self.srd(SRD_B2), sT2))

        def consume(k):
            va, o = (t0, 1024 * k) if k < 14 else (t1, 1024 * (k - 14))
            L = [wait_tok(tk[k])] + mk('ds_read_b64_tr_b16 %s, v%d offset:%d\nds_read_b64_tr_b16 %s, v%d offset:%d' % (w1half(k, 0), va, o, w1half(k, 1), va, o + 512))
            return L + (mfma(D, v(vo, 4), w1reg(k - 2), k == 2) if k >= 2 else [])
        for k in range(14):
            P.add((dm[14 + n1 + k] if 14 + n1 + k < 28 else []) + consume(k))
        P.label(ljoin)
        P.add([I('s_nop 1', kind='block', states=2)])
        P.add(self.kvx_pre(0))
        l2 = P.newlabel('Lnowo')
        wo = flat(self.wo_dma(117))
        txt, _ = finalize(wo)
        blk = I('s_cmp_ge_u32 s%d, 14\ns_cbranch_scc1 %s\n%s\n%s:' % (sM, l2, '\n'.join(t.strip() for t in txt.split('\n') if t.strip()), l2),
                kind='block', nvm=8, dst=[('v', 117), ('v', vT)], src=[('v', 0)])
        self.tok_wo = tok(blk)
        self.after_kvb = [blk]
        ns = self.o['w1o']
        L = flat(consume(k) for k in range(ns, 28)) + mfma(D, v(vo, 4), w1reg(26)) + mfma(D, v(vo, 4), w1reg(27))
        L += self.unpack(144, vb2, 4) + mk('\n'.join('v_mov_b32 v%d, 0' % r for r in range(152, 156)))
        L += mk('s_lshl_b32 s%d, s%d, 7\ns_add_u32 s%d, s%d, %d\nv_lshrrev_b32 v%d, 5, v0\nv_lshl_add_u32 v%d, v%d, 6, s%d' % (sT0, sW, sT0, sT0, L_B2, vT, vT, vT, sT0))
        for q in range(4):
            L += mk('ds_write_b128 v%d, %s offset:%d' % (vT, v(144 + 4 * min(q, 2), 4), 16 * q))
        L += self.split_w(vW1X, D, vT + 1) + mk('v_lshl_or_b32 v%d, v%d, 16, v%d' % (vb, vb, vb))
        L += mk('v_cndmask_b32 v%d, v%d, v%d, s[%d:%d]\nv_cndmask_b32 v%d, v%d, 0, s[%d:%d]' % (vW1X, vW1X, vb, sHalf, sHalf + 1, vW1X + 1, vW1X + 1, sHalf, sHalf + 1))
        self.after_x1 = L + mk('s_waitcnt lgkmcnt(0)')
        self.after_o = flat(consume(k) for k in range(14, ns)) + self.xsrc() + [wait_tok(self.tok_wo)] + mk('s_waitcnt lgkmcnt(0)\ns_barrier') + flat(self.s2_rd(i) for i in range(4))

    def sweep_loads(self):
        return flat(self.frag_loads([v(32 + 4 * i, 4) for i in range(8)], SRD_WS, sKv, 0, flags='sc1'))

    def w2_prefetch(self, va, first, per):
        m = (1 << per) - 1
        txt = ['s_lshr_b32 s%d, s%d, 3' % (sQ0, sC), 's_mul_i32 s%d, s%d, 14' % (sQ0, sQ0), 's_add_u32 s%d, s%d, s%d' % (sQ0, sQ0, sM),
               's_lshl_b32 s%d, s%d, 2' % (sQ0, sQ0), 's_add_u32 s%d, s%d, s%d' % (sQ0, sQ0, sW), 's_mul_i32 s%d, s%d, %d' % (sQ0, sQ0, per * 128),
               's_add_u32 s%d, s%d, %d' % (sQ0, sQ0, first * 128), 'v_lshlrev_b32 v%d, 7, v0' % va,
               's_mov_b32 exec_lo, 0x%x' % (m & 0xffffffff), 's_mov_b32 exec_hi, 0x%x' % (m >> 32),
               'buffer_load_dword v%d, v%d, %s, s%d offen' % (vDummy, va, self.srd(SRD_W2), sQ0), 's_mov_b64 exec, -1']
        return [I('\n'.join(txt), kind='block', nvm=1, src=[('v', 0)], dst=[('v', va)], cost=52)]

    def w2_addr(self, R):
        v2a, tA, tB, vp = R, R + 1, R + 3, R + 5
        L = mk('v_lshrrev_b32 v%d, 3, v0\nv_mul_u32_u24 v%d, 896, v%d\nv_lshrrev_b32 v%d, 2, v0\nv_and_b32 v%d, 4, v%d\nv_xor_b32 v%d, v%d, v0\nv_and_b32 v%d, 7, v%d\nv_lshl_add_u32 v%d, v%d, 4, v%d'
               % (v2a, v2a, v2a, vT, vT, vT, vT, vT, vT, vT, v2a, vT, v2a))
        L += mk('s_lshr_b32 s%d, s%d, 1\ns_lshl_b32 s%d, s%d, 7\ns_mul_i32 s%d, s%d, %d\ns_add_u32 s%d, s%d, s%d\nv_add_u32 v%d, s%d, v%d'
                % (sT0, sM, sT0, sT0, sT2, sW, 32 * 896, sT0, sT0, sT2, v2a, sT0, v2a))
        L += mk('s_mul_i32 s%d, s%d, 7168\ns_add_u32 s%d, s%d, %d\ns_lshl_b32 s%d, s%d, 12\ns_add_u32 s%d, s%d, %d'
                % (sRot, sW, sRot, sRot, L_EX, sQ1, sW, sQ1, sQ1, L_KVS))
        L += mk('s_lshr_b32 s%d, s%d, 1' % (sT0, sW)) + self.trbase(tA, 128, 4, xor16=sT0)
        L += mk('s_and_b32 s%d, s%d, 1\nv_bfe_u32 v%d, v0, 3, 1\nv_xor_b32 v%d, s%d, v%d\nv_lshl_add_u32 v%d, v%d, 6, v%d\nv_xor_b32 v%d, 64, v%d'
                % (sT0, sW, vT, vT, sT0, vT, tA, vT, tA, tA + 1, tA))
        L += mk('v_add_u32 v%d, s%d, v%d\nv_add_u32 v%d, s%d, v%d\nv_add_u32 v%d, s%d, v%d\nv_add_u32 v%d, s%d, v%d' % (tB, sQ1, tA, tB + 1, sQ1, tA + 1, tA, sRot, tA, tA + 1, sRot, tA + 1))
        L += mk('s_mul_i32 s%d, s%d, 21504\nv_add_u32 v%d, s%d, v%d' % (sT0, sW, vp, sT0, vL16))
        L += mk('s_mul_i32 s%d, s%d, 10240\ns_sub_u32 s%d, s%d, s%d\nv_add_u32 v%d, s%d, v%d\nv_add_u32 v%d, s%d, v%d' % (sWi, sW, sT0, sWi, sRot, R + 6, sT0, tA, R + 7, sT0, tA + 1))
        return L

    def w2_steps(self, R, u0, u1, shadow):
        v2a, tA, tB = R, R + 1, R + 3
        NS = 5

        def where(u):
            n = (u - u0) % NS
            if shadow:
                return sWi, R + 6, n * 2048
            return (sRot, tA, n * 2048) if n < 3 else (sQ1, tB, (n - 3) * 2048)

        def issue(u):
            out = []
            base, _, o = where(u)
            for i in range(2):
                g = mk('s_add_u32 m0, s%d, %d' % (base, o + 1024 * i))
                g += mk('s_mov_b32 s%d, %d' % (sQ0, (128 * (u // 2) + 16 * (u % 2) + 8 * i) * 896))
                out += g + mk('buffer_load_dwordx4 v%d, %s, s%d offen lds' % (v2a, self.srd(SRD_W2), sQ0))
            return out, tok(out[-1])
        tk, first, steps, prev = {}, [], [], None
        for u in range(u0, min(u0 + NS - 1, u1)):
            g, tk[u] = issue(u)
            first.append(g)
        for u in range(u0, u1):
            _, ta, o = where(u)
            A = []
            if u + NS - 1 < u1:
                if prev:
                    A += [wait_tok(prev)]
                g, tk[u + NS - 1] = issue(u + NS - 1)
                A += g
            B = [wait_tok(tk[u])]
            for js in range(2):
                b = W2A + 8 * u + 4 * js
                B += mk('ds_read_b64_tr_b16 %s, v%d offset:%d\nds_read_b64_tr_b16 %s, v%d offset:%d' % (a(b, 2), ta + js, o, a(b + 2, 2), ta + js, o + 1024))
            prev = tok(B[-1])
            steps.append((A, B))
        return first, steps

    def w2_stage(self, fill, R, u0, extra):
        P = self.P
        vp = R + 5
        first, steps = self.w2_steps(R, u0, 28, False)
        P.add(flat(first))
        rest = [mk('ds_write_b128 v%d, %s offset:%d' % (vp, a(self.PARK + 4 * i, 4), 1024 * i)) for i in range(21)]
        out, done = [], 0
        for n, (A, B) in enumerate(steps):
            u = u0 + n
            want = max(sum(1 for i in range(21) if 17 + (i + 1) // 2 <= u), min(21, ((n + 1 - self.o['rest0']) * 21) // max(1, len(steps) - 2 - self.o['rest0'])))
            L = A + flat(rest[done:max(done, want)]) + B + extra.get(u, []) + (self.stamp('w2_%d' % u) if self.fine else [])
            done = max(done, want)
            out.append(L)
        assert done == 21
        P.add(spread(out, fill, start=0, end=self.o['w2fill']))

    K10 = 98

    def kvx_pre(self, l):
        L = []
        RES = 160
        if l == 1:
            L += mk('s_add_u32 s%d, s%d, s%d' % (sT0, sOst, sXin))
            for j in range(2):
                L += mk('buffer_load_dwordx4 %s, v%d, %s, s%d offen offset:%d sc1' % (v(RES + 4 * j, 4), vL16, self.srd(SRD_CL), sT0, 1024 * j))
            L += [I('s_mul_i32 s%d, s%d, %d\ns_add_u32 s%d, s%d, s%d\ns_addc_u32 s%d, s%d, 0\ns_sub_u32 s%d, s%d, s%d'
                    % (sT0, sSlow, LOFF, SRD_CL, SRD_CL, sT0, SRD_CL + 1, SRD_CL + 1, SRD_CL + 2, SRD_CL + 2, sT0), kind='block', cost=16)]
        L += [I('s_cmp_eq_u32 s%d, 3\ns_cselect_b32 s%d, 0xffff0000, 0\ns_cselect_b32 s%d, 0xffff0000, 0' % (sW, sPm, sPm + 1), kind='block', cost=12)]
        L += self.kv_lane_addr(self.KA, self.KA + 1, self.KA + 2, gather=False)
        g, t = self.KA + 1, self.KA + 2
        L += mk('\n'.join(['v_bfe_u32 v%d, v0, 3, 1' % g, 'v_and_b32 v%d, 3, v0' % t, 'v_lshl_add_u32 v%d, v%d, 2, v%d' % (g, g, t),
                           'v_cmp_eq_u32 vcc, 7, v%d' % g, 'v_bfe_u32 v%d, v0, 4, 1' % t, 'v_mad_u32_u24 v%d, v%d, 14, v%d' % (g, t, g),
                           'v_bfe_u32 v%d, v0, 2, 1' % t, 'v_mad_u32_u24 v%d, v%d, 7, v%d' % (g, t, g), 'v_cndmask_b32 v%d, v%d, 28, vcc' % (g, g),
                           'v_and_b32 v%d, 32, v0' % t, 'v_add_u32 v%d, v%d, v%d' % (g, g, t), 'v_lshlrev_b32 v%d, 5, v%d' % (g, g), 'v_add_u32 v%d, %d, v%d' % (g, L_KVB, g)]))
        L += mk('s_and_b32 s%d, s%d, 0x1fff\ns_or_b32 s%d, s%d, 0x4000\ns_lshl_b32 s%d, s%d, 16' % (sTag, sNonce, sTag, sTag, sTag + 1, sTag))
        L += mk('v_mov_b32 v%d, 0x3f80\nv_mov_b32 v%d, 0x3f800000' % (self.K10, self.K10 + 1))
        return L

    KA = 100

    def kvx(self, l):
        P = self.P
        P.comment('==== layer %d : kv exchange' % l)
        if l == 0:
            lw, lb = P.newlabel('Lxcc'), P.newlabel('Lxok')
            P('v_subrev_u32 v%d, s%d, v%d\nv_cmp_lt_u32 vcc, 15, v%d' % (vPoll, sNonce, vPoll, vPoll))
            P.add([I('s_cbranch_vccnz %s\n%s:' % (lw, lb), kind='block')])
            self.ool.append('\n'.join([
                lw + ':',
                'buffer_load_dword v%d, v%d, %s, s%d offen sc1' % (vPoll, vPA, self.srd(SRD_WS), sT4),
                's_add_u32 s%d, s%d, 1' % (sSpin, sSpin),
                's_cmp_gt_u32 s%d, 0x40000' % sSpin,
                's_cbranch_scc1 L_end',
                's_waitcnt vmcnt(0)',
                'v_subrev_u32 v%d, s%d, v%d' % (vPoll, sNonce, vPoll),
                'v_cmp_lt_u32 vcc, 15, v%d' % vPoll,
                's_cbranch_vccnz %s' % lw,
                's_branch %s' % lb]))
            P('v_cmp_ne_u32 vcc, s%d, v%d\ns_cmp_lg_u64 vcc, 0\ns_cselect_b32 s%d, 1, 0\ns_mov_b32 s%d, %d\ns_cselect_b32 s%d, %d, s%d' % (sXcc, vPoll, sSlow, sXin, X1_OFF if self.o['alias'] else XIN_OFF, sXin, XIN_OFF, sXin))
        K10, K01 = self.K10, self.K10 + 1
        if l == 1:
            if self.o['kvdelay']:
                P('s_sleep %d' % self.o['kvdelay'])
            P.add(self.stamp('sweep_start') + self.sweep_loads())
        P('v_and_b32 v%d, 15, v0\nv_lshlrev_b32 v%d, 11, v%d\nv_add_u32 v%d, 2044, v%d' % (vPA, vPA, vPA, vPA, vPA))
        P.add(self.trbase(vTr, 64, 7, add=L_WO))
        P.add(self.s2_pre(l))
        P('s_mov_b32 s%d, 0x88888888\ns_mov_b32 s%d, 0x88888888' % (sPm, sPm + 1))
        lsw, lre = P.newlabel('Lsweep'), P.newlabel('Lresweep')
        P.label(lsw)
        B = 32
        bad, S = vT, 64
        P('v_mov_b32 v%d, 0' % bad)
        for i in range(8):
            for k in range(4):
                for hh, K in enumerate((K10, K01)):
                    P('v_dot2_f32_bf16 v%d, v%d, v%d, %s' % (S + 2 * k + hh, B + 4 * i + k, K, 'v%d' % (S + 2 * k + hh) if i else '0'))
            for k in (2, 3):
                P('v_bitop3_b32 v%d, v%d, s%d, v%d bitop3:0xbe' % (bad, B + 4 * i + k, sNonce, bad))
        P('v_cmp_ne_u32 vcc, 0, v%d\ns_and_b64 vcc, vcc, s[%d:%d]' % (bad, sPm, sPm + 1))
        P.add([I('s_cbranch_vccnz %s' % lre, kind='block', states=1)])
        self.ool.append('%s:\ns_sleep 6\ns_add_u32 s%d, s%d, 1\ns_cmp_gt_u32 s%d, 0x40000\ns_cbranch_scc1 L_end\n%s\ns_waitcnt vmcnt(0)\ns_branch %s'
                        % (lre, sSpin, sSpin, sSpin, '\n'.join(x.text for x in self.sweep_loads()), lsw))
        P.add(self.stamp('sweep_done'))
        for k in range(4):
            P('v_permlane32_swap_b32 v%d, v%d' % (S + k, S + 4 + k))
        for k in (0, 2):
            P('v_pk_add_f32 %s, %s, %s' % (v(S + k, 2), v(S + k, 2), v(S + 4 + k, 2)))
        P.add(self.pack(S, S, 2))
        P('ds_write_b64 v%d, %s' % (self.KA, v(S, 2)))
        P('s_waitcnt lgkmcnt(0)\ns_barrier')
        KF, D = 72, 80
        P('ds_read_b128 %s, v%d\nds_read_b128 %s, v%d offset:16' % (v(KF, 4), self.KA + 1, v(KF + 4, 4), self.KA + 1))
        P.add(flat(self.s2_rd(i) for i in range(4)) if l else self.after_kvb)
        P.add(mfma(D, v(KF, 4), v(self.PQ, 4), True))
        for i in (6, 7):
            P('v_cndmask_b32 v%d, v%d, 0, s[%d:%d]' % (KF + i, KF + i, sHalf, sHalf + 1))
        P.add(mfma(D, v(KF + 4, 4), v(self.PQ + 4, 4)))
        t1 = 120
        P('v_add_f32 v%d, %s, v%d\nv_rcp_f32 v%d, v%d\nv_mul_f32 v%d, s%d, v%d' % (t1, f32(1e-6), D + 7, t1, t1, t1, sLn2, t1))
        for r in range(0, 16, 2):
            P('v_pk_mul_f32 %s, %s, %s op_sel_hi:[1,0]' % (v(D + r, 2), v(D + r, 2), v(t1, 2)))
        P('v_mov_b32 v%d, s%d\nv_mov_b32 v%d, s%d' % (D + 7, sTag + 1, D + 15, sTag + 1))
        P.add(self.pack(D, D, 8))
        st = self.stores(['buffer_store_dwordx4 %s, v%d, %s, s%d offen offset:%d' % (v(D + 4 * j, 4), vL16, self.srd(SRD_CL), sOst, 1024 * j) for j in range(2)])
        P.add(st)
        P.add(self.stamp('o_pub'))

    def s2_rd(self, i):
        WB, o = 144 + 4 * (i % 4), 1792 * (i // 2) + 896 * (i % 2)
        return mk('ds_read_b64_tr_b16 %s, v%d offset:%d\nds_read_b64_tr_b16 %s, v%d offset:%d' % (v(WB, 2), vTr, o, v(WB + 2, 2), vTr, o + 256))

    def s2_pre(self, l):
        L = self.s4_consts(l)
        L += mk('s_add_u32 s%d, s%d, %d' % (sT4, sOst, X1_OFF))
        L += mk('s_lshr_b32 s%d, s%d, 2\ns_lshl_b32 s%d, s%d, 10\ns_and_b32 s%d, s%d, 3\ns_lshl_b32 s%d, s%d, 2\ns_add_u32 s%d, s%d, s%d\ns_add_u32 s%d, s%d, s%d\ns_add_u32 s%d, s%d, %d'
                % (sT5, sM, sT5, sT5, sT1, sM, sT1, sT1, sT5, sT5, sT1, sT5, sT5, sBlk, sT5, sT5, X1_OFF + 28672))
        return L + self.unpack(16, 160, 8)

    def s2(self, l):
        P = self.P
        o = self.o
        P.comment('==== layer %d : S2' % l)
        ACC, OF, WB, RES = 16, 32, 144, 160
        NB = 4
        lre, lfail = P.newlabel('Ls2'), P.newlabel('Ls2again')
        if l == 0:
            P.add(self.after_o)
        P.label(lre)
        P.add(self.poll_issue(sBlk, o['pdo'] if l else 0))
        rd = self.s2_rd
        bad = vT
        P('v_mov_b32 v%d, 0' % bad)
        P.add(self.poll_check(sBlk, tag=True))
        P.add(self.stamp('o_seen'))
        oreg = [OF + 4 * (i % (28 if l else 18)) for i in range(32)]
        lds = self.frag_loads([v(r, 4) for r in oreg], SRD_CL, sBlk, O_OFF, flags='sc1')
        n = o['look2']
        P.add(flat(lds[:n]))
        chk = lambda i: mk('v_bitop3_b32 v%d, v%d, s%d, v%d bitop3:0xbe\nv_and_b32 v%d, 0xffff, v%d' % (bad, oreg[i] + 3, sTag + 1, bad, oreg[i] + 3, oreg[i] + 3))
        P.add(chk(0))
        for i in range(32):
            if i + n < 32:
                P.add(lds[i + n])
            P.add(mfma(ACC, v(WB + 4 * (i % NB), 4), v(oreg[i], 4)))
            if self.fine and i in (0, 8, 16, 31):
                P.add(self.stamp('s2_%d' % i))
            if i + NB < 32:
                P.add(rd(i + NB))
            if i + 1 < 32:
                P.add(chk(i + 1))
            if i == 28:
                P.add(self.pa(14, blocks=True, reg=vT + 2))
        P('v_cmp_lt_u32 vcc, 0xffff, v%d' % bad)
        P.add([I('s_cbranch_vccnz %s' % lfail, kind='block', states=1)])
        again = '\n'.join(x.text for x in self.unpack(ACC, RES, 8) + flat(rd(i) for i in range(NB)))
        self.ool.append('%s:\ns_add_u32 s%d, s%d, 1\ns_cmp_gt_u32 s%d, 0x40000\ns_cbranch_scc1 L_end\ns_nop 15\n%s\ns_waitcnt lgkmcnt(0)\ns_branch %s'
                        % (lfail, sSpin, sSpin, sSpin, again, lre))
        P('v_mov_b32 v%d, v%d' % (vPA, vT + 2))
        P.add(self.pack(OF, ACC, 8))
        P.add(self.stores(['buffer_store_dwordx4 %s, v%d, %s, s%d offen offset:%d' % (v(OF + 4 * j, 4), vL16, self.srd(SRD_CL), sT4, 1024 * j) for j in range(2)]))
        P.add(self.row_stats(OF, 8, vT, vT + 2))
        st = self.stores(['buffer_store_dword v%d, v%d, %s, s%d offen' % (vT, vL16, self.srd(SRD_CL), sT5)])
        tk = tok(st[-1])
        P.add(st)
        if self.fine:
            P.add(self.stamp('x1_st'))
        P.add(self.flag([tk], sFoMy, FX1 - FO))
        P.add(self.stamp('x1_pub'))

    def gelu(self, acc, KK, T):
        pr = range(0, 16, 2)
        A = flat(mk('v_pk_mul_f32 %s, %s, %s' % (v(T + i, 2), v(acc + i, 2), v(acc + i, 2))) for i in pr)
        A += flat(mk('v_pk_fma_f32 %s, %s, %s, %s op_sel:[0,1,0] op_sel_hi:[1,1,0]' % (v(T + i, 2), v(T + i, 2), v(KK, 2), v(KK, 2))) for i in pr)
        A += flat(mk('v_pk_mul_f32 %s, %s, %s' % (v(T + i, 2), v(T + i, 2), v(acc + i, 2))) for i in pr)
        E = flat(mk('v_exp_f32 v%d, v%d' % (T + i, T + i)) for i in range(16))
        B = flat(mk('v_pk_fma_f32 %s, %s, %s, %s op_sel_hi:[1,0,0]' % (v(T + i, 2), v(T + i, 2), v(KK + 2, 2), v(KK + 2, 2))) for i in pr)
        R = flat(mk('v_rcp_f32 v%d, v%d' % (T + i, T + i)) for i in range(16))
        C = flat(mk('v_pk_mul_f32 %s, %s, %s' % (v(acc + i, 2), v(acc + i, 2), v(T + i, 2))) for i in pr)
        pk = self.pack(acc, acc, 8)
        g4 = lambda f, g: flat(mk(f(4 * g + i)) for i in range(4))
        e = lambda g: E[4 * g:4 * g + 4]
        r = lambda g: R[4 * g:4 * g + 4]
        b = lambda g: g4(lambda i: 'v_fma_f32 v%d, v%d, v%d, v%d' % (T + i, T + i, KK + 2, KK + 2), g)
        c = lambda g: g4(lambda i: 'v_mul_f32 v%d, v%d, v%d' % (acc + i, acc + i, T + i), g) + pk[2 * g:2 * g + 2]
        tail = e(0) + e(1) + b(0) + r(0) + e(2) + b(1) + c(0) + r(1) + e(3) + b(2) + c(1) + r(2) + b(3) + c(2) + r(3) + c(3)
        return A, A + E + B + R + C + pk, tail

    XSRC = (4, 5, 6, 7, 8, 9, 10, 11, 12, 13, 14, 15, 20, 21)

    def xsrc(self):
        L = mk('s_lshl_b32 s%d, s%d, 1\ns_mul_i32 s%d, s%d, 14\ns_add_u32 s%d, s%d, s%d\ns_mov_b32 s%d, %d' % (sT0, sW, sT1, sD1, sT1, sT1, sT0, sT2, X1_OFF))
        for c, r in enumerate(self.XSRC):
            if c:
                L += mk('s_add_u32 s%d, s%d, 8\ns_cmp_ge_u32 s%d, 28\ns_cselect_b32 s%d, 28, 0\ns_cselect_b32 s%d, 0x8000, 0\ns_sub_u32 s%d, s%d, s%d\ns_add_u32 s%d, s%d, s%d'
                        % (sT0, sT0, sT0, sT3, r, sT0, sT0, sT3, sT2, sT2, r))
                L += mk('s_add_u32 s%d, s%d, 8\ns_cmp_ge_u32 s%d, 28\ns_cselect_b32 s%d, 28, 0\ns_sub_u32 s%d, s%d, s%d' % (sT1, sT1, sT1, sT3, sT1, sT1, sT3))
            L += mk('s_lshl_b32 s%d, s%d, 10\ns_add_u32 s%d, s%d, s%d' % (r, sT1, r, r, sT2))
        return L

    SEL = 172

    def s4_consts(self, l):
        U, SEL = 120, self.SEL
        sel = mk('\n'.join(['v_lshrrev_b32 v%d, 5, v0' % SEL,
                             'v_lshlrev_b32 v%d, 2, v%d' % (SEL, SEL), 'v_and_b32 v%d, 31, v0' % (SEL + 1), 'v_sub_u32 v%d, v%d, v%d' % (U, SEL + 1, SEL),
                             'v_mov_b32 v%d, 0x3f80' % (U + 1), 'v_mov_b32 v%d, 0x3f800000' % (U + 2)]))
        for q, r0 in enumerate((0, 2, 8, 10)):
            sel += mk('v_cmp_eq_u32 vcc, %d, v%d\nv_cmp_eq_u32 s[%d:%d], %d, v%d\ns_nop 0\nv_cndmask_b32 v%d, 0, v%d, vcc\nv_cndmask_b32 v%d, v%d, v%d, s[%d:%d]'
                      % (r0, U, sPm, sPm + 1, r0 + 1, U, SEL + q, U + 1, SEL + q, SEL + q, U + 2, sPm, sPm + 1))
        for q, sB in enumerate((sEb, sLb)):
            sel += mk('s_lshl_b32 s%d, s%d, 15\ns_lshl_b32 s%d, s%d, 10\ns_add_u32 s%d, s%d, s%d\ns_add_u32 s%d, s%d, %d' % (sT0, sB, sT2, sFe, sT0, sT0, sT2, sRes + q, sT0, X1_OFF))
            if l == 0:
                sel += mk('s_add_u32 s%d, s%d, s%d\ns_lshl_b32 s%d, s%d, 13' % (sFin + q, sT0, sXin, sT0, sB))
                sel += mk('s_lshr_b32 s%d, s%d, 2\ns_lshl_b32 s%d, s%d, 10\ns_add_u32 s%d, s%d, s%d\ns_and_b32 s%d, s%d, 3\ns_lshl_b32 s%d, s%d, 2\ns_add_u32 s%d, s%d, s%d\ns_add_u32 s%d, s%d, %d'
                          % (sT2, sFe, sT2, sT2, sT0, sT0, sT2, sT2, sFe, sT2, sT2, sT0, sT0, sT2, sFin + 2 + q, sT0, XST_OFF))
                sel += mk('s_lshl_b32 s%d, s%d, 5\ns_add_u32 s%d, s%d, s%d\ns_lshl_b32 s%d, s%d, 2\ns_add_u32 s%d, s%d, %d' % (sT2, sB, sT2, sT2, sFe, sT2, sT2, sFin + 4 + q, sT2, FXIN))
            else:
                sel += mk('s_lshl_b32 s%d, s%d, 2\ns_add_u32 s%d, s%d, s%d\ns_mul_i32 s%d, s%d, %d\ns_lshl_b32 s%d, s%d, 5\ns_add_u32 s%d, s%d, s%d'
                          % (sT0, sC, sT0, sT0, sB, sT0, sT0, 32 * 896, sT2, sFe, sFin + q, sT0, sT2))

        return sel

    def mlp(self, l):
        P = self.P
        o = self.o
        P.comment('==== layer %d : MLP' % l)
        ACC = (16, 32)
        XB, EXB, WEX, T, RING = 48, 72, 76, 80, 108
        KK = (96, 100)
        SEL, vB2, vX2 = self.SEL, 104, 105
        NB = 6
        if l == 0:
            P.add(self.after_x1)
        P('s_mov_b32 s%d, %d' % (sT4, FX1))
        if not o['p1']:
            P.add(self.poll_issue(sT4, o['pdx']))
        P('s_lshl_b32 s%d, s%d, 11' % (sT5, sW))
        P('v_mov_b32 v%d, v%d\nv_mov_b32 v%d, v%d' % (WEX, vW1X, WEX + 1, vW1X + 1))
        P('\n'.join('v_mov_b32 v%d, 0' % r for r in (WEX + 2, WEX + 3, EXB + 2, EXB + 3)))
        vE8, vK16 = vTr, vT + 3
        P('v_lshlrev_b32 v%d, 3, v0\nv_add_u32 v%d, %d, v%d' % (vE8, vE8, L_KVS, vE8))
        P('v_and_b32 v%d, 31, v0\nv_lshlrev_b32 v%d, 4, v%d\nv_add_u32 v%d, %d, v%d' % (vK16, vK16, vK16, vK16, L_KVS + 512, vK16))
        P('v_add_u32 v%d, %d, v%d' % (vX2, 56 * 1024, vL16))
        P('s_lshl_b32 s%d, s%d, 7\ns_add_u32 s%d, s%d, %d\nv_lshrrev_b32 v%d, 5, v0\nv_lshl_add_u32 v%d, v%d, 6, s%d' % (sT3, sW, sT3, sT3, L_B2, vB2, vB2, vB2, sT3))
        P('s_add_u32 s%d, s%d, %d' % (sT1, sBlk, X1_OFF + 28672))
        if o['p1']:
            lq = P.newlabel('Lnp')
            c = self.poll_check(sT4)[0]
            P.add([I('s_cmp_lg_u32 s%d, 0\ns_cbranch_scc1 %s\n%s\ns_waitcnt vmcnt(0)\n%s\n%s:\ns_barrier'
                     % (sW, lq, '\n'.join(x.text for x in self.poll_issue(sT4, o['pdx'] if l else 0)), c.text, lq), kind='block', src=[('v', vPA)], dst=c.dst, states=2)])
        else:
            P.add(self.poll_check(sT4))
        P.add(self.stamp('x1_seen'))
        xd, tc = [], []
        for c, r in enumerate(self.XSRC):
            g = mk('s_add_u32 m0, s%d, %d' % (sT5, 8192 * c))
            g += mk('buffer_load_dwordx4 v%d, %s, s%d offen sc1 lds\nbuffer_load_dwordx4 v%d, %s, s%d offen offset:1024 sc1 lds' % (vL16, self.srd(SRD_CL), r, vL16, self.srd(SRD_CL), r))
            tc.append(tok(g[-1]))
            xd.append(g)
        stl = [mk('buffer_load_dwordx4 %s, v%d, %s, s%d offen offset:%d sc1' % (v(RING + 4 * i, 4), vL16, self.srd(SRD_CL), sT1, 1024 * i)) for i in range(4)]
        sp = o['stpos']
        P.add({0: flat(stl) + xd[0] + xd[1], 1: xd[0] + xd[1] + flat(stl), 2: xd[0] + xd[1], 3: xd[0] + flat(stl[:2]) + xd[1]}[sp])
        K0 = KK[1]
        st0 = []
        for x, y in ((0, 1), (2, 3), (4, 5), (6, 7), (8, 9), (10, 11), (12, 13), (0, 2), (4, 6), (8, 10), (0, 4), (8, 12)):
            st0 += mk('v_add_f32 v%d, v%d, v%d' % (RING + x, RING + x, RING + y))
        st0 += mk('v_add_f32 v%d, v%d, v%d' % (T, RING, RING + 8))
        st0 += self.stats_finish(T, True)
        st0 += mk('\n'.join(['v_rcp_f32 v%d, v%d' % (K0 + 2, vRl),
                             'v_mul_f32 v%d, s%d, v%d' % (K0, sC0, vRl),
                             'v_mul_f32 v%d, v%d, v%d' % (T, vRl, vRl),
                             'v_mul_f32 v%d, s%d, v%d' % (K0 + 1, sC1, vRl),
                             'v_mul_f32 v%d, v%d, v%d' % (K0 + 1, K0 + 1, T),
                             'v_sub_f32 v%d, 0, v%d' % (vMean, vMean),
                             'v_cndmask_b32 v%d, v%d, v%d, s[%d:%d]' % (vMean, vMean, K0 + 2, sHalf, sHalf + 1)]))
        st0 += self.split_act(T + 2, vMean, T)
        st0 += mk('s_lshl_b32 s%d, s%d, 10\nv_add_u32 v%d, s%d, v%d\nv_add_u32 v%d, s%d, v%d' % (sT4, sW, vT, sT4, vE8, vT + 1, sT4, vK16))
        st0 += mk('ds_write_b64 v%d, %s\nds_write_b128 v%d, %s' % (vT, v(T + 2, 2), vT + 1, v(K0, 4)))
        tst = tok(st0[-1])

        def hpub(b):
            pre = mk('s_add_u32 s%d, s%d, %d' % (sT4, sHst, b * 114688))
            st = self.stores(['buffer_store_dwordx4 %s, v%d, %s, s%d offen offset:%d' % (v(ACC[b & 1] + 4 * j, 4), vL16, self.srd(SRD_CL), sT4, 1024 * j) for j in range(2)])
            return pre + st, tok(st[-1])
        hflag = lambda b, tk: self.flag([tk], sFoMy, FH - FO + 512 * b)
        extrd = lambda b: mk('ds_read_b64 %s, v%d offset:%d\nds_read_b128 %s, v%d offset:%d' % (v(EXB, 2), vE8, 1024 * b, v(KK[b & 1], 4), vK16, 1024 * b))
        extmf = lambda b: mfma(ACC[b & 1], v(WEX, 4), v(EXB, 4))
        hreg = [RING + 4 * (i % 16) for i in range(56)]

        def hload(i):
            blk, kap = divmod(i, 28)
            g = mk('s_add_u32 s%d, s%d, %d' % (sHs, (sHE, sHL)[blk], 8192 * (kap // 2))) if kap % 2 == 0 else []
            return g + mk('buffer_load_dwordx4 %s, v%d, %s, s%d offen offset:%d sc1' % (v(hreg[i], 4), vL16, self.srd(SRD_CL), sHs, 1024 * (kap % 2)))
        P.add([wait_tok(tc[0])])
        P('s_barrier')
        P.add(self.stamp('s3_b0'))
        rdj = lambda j: mk('ds_read_b128 %s, v%d offset:%d' % (v(XB + 4 * (j % NB), 4), vL16 if j < 56 else vX2, 1024 * (j % 56)))
        for j in range(NB):
            P.add(rdj(j))
        isl = lambda c: 0 if c == 2 else o['x0'] + (o['xstep'] * (c - 3)) // 2
        bars, cov = {}, 0
        for c in range(1, 14):
            sj = 8 * c - 5
            if c > cov or sj in (27, 43):
                cov = max([c] + [d for d in range(3, 14) if isl(d) + o['xlag'] <= sj])
                bars[sj] = [tc[cov]] + ([tst] if sj == 27 else [])
        slots = []
        for j in range(112):
            b, k = divmod(j, 28)
            sl = mfma(ACC[b & 1], w1reg(k), v(XB + 4 * (j % NB), 4), k == 0)
            if k % 2 == 0:
                also_waits_for(sl[0], v(XB + 4 * ((j + 1) % NB), 4))
            if j in bars:
                sl += (self.stamp('pb%d' % j) if self.fine else []) + [wait_tok(*bars[j])] + mk('s_barrier') + (self.stamp('ab%d' % j) if self.fine else [])
            if k % 2 == 1:
                for jj in (j + NB - 1, j + NB):
                    if jj < 112:
                        sl += rdj(jj)
            if (k == 25 and b) or j == 27:
                sl += extrd(b)
            if (k == 27 and b) or j == 30:
                sl += extmf(b if k == 27 else 0)
            slots.append(sl)
        slots[0] += stl[0] + stl[1] if sp == 2 else []
        slots[1 if sp == 2 else 0] += xd[2]
        slots[3 if sp == 2 else 2] += stl[2] + stl[3] if sp >= 2 else []
        for c in range(3, 14):
            slots[isl(c)] += xd[c]
        W2R = RING + 32
        pre0 = self.w2_addr(W2R) if l == 0 else []
        nsh = o['nsh'] if l == 0 else 0
        if nsh:
            first, steps = self.w2_steps(W2R, 0, nsh, True)
            p0 = o['sh0']
            for i, g in enumerate(first):
                slots[p0 + 2 * i] += g
            p1 = p0 + 2 * len(first) + o['shgap']
            for n, (A, B) in enumerate(steps):
                sj = p1 + (n * (110 - p1)) // nsh
                slots[sj] += A
                slots[sj + 1] += B
            if o['idlew2'] < 13:
                slots[o['pf2']] += self.w2_prefetch(vT, 1024 * o['idlew2'], -(-(12544 - 1024 * o['idlew2']) // 112))
        out = spread(slots[:o['st0']], pre0) + spread(slots[o['st0']:o['st1']], st0) + flat(slots[o['st1']:28])
        pend = None
        for b in range(1, 4):
            gA, _, tail = self.gelu(ACC[(b - 1) & 1], KK[(b - 1) & 1], T)
            s0 = 28 * b + (5 if b == 1 else 2)
            st, nxt = hpub(b - 1)
            if l == 0 and b < 3 and not nsh:
                st = st + self.w2_prefetch(vT, (b - 1) * 6272, 56)
            slots[s0] += gA
            if pend is not None and l == 1:
                slots[28 * b + o['flagpos']] += hflag(b - 2, pend)
            pend = nxt
            if b == 3 and l == 1:
                slots[84 + o['pollE']] += self.pa(14) + self.poll_issue(sPE)
                n3 = o['n3']
                slots[112 - n3] += (self.stamp('preE') if self.fine else []) + self.poll_check(sPE) + (self.stamp('gotE') if self.fine else [])
                for i in range(n3):
                    slots[112 - n3 + i] += hload(i)
            if b == 1 or self.fine:
                out += self.stamp('s3_b%d' % b)
            out += flat(slots[28 * b:s0 + 1]) + spread(slots[s0 + 1:28 * b + 28], tail + st, end=28 * b + o['gend'] - s0)
        P.add(out)
        P('s_waitcnt lgkmcnt(0)\ns_barrier')
        P.add(self.stamp('s3_end'))
        AE, AL, RX, RS = 48, 16, 80, 96
        vEW, vER = (vTr, vT, vT + 1), vT + 3
        resid = lambda q: mk('buffer_load_dwordx4 %s, v%d, %s, s%d offen sc1' % (v(RS, 4), vL16, self.srd(SRD_CL), sRes + q))
        cinit = lambda A: flat(mk('ds_read_b128 %s, v%d offset:%d' % (v(A + 4 * q, 4), vB2, 16 * q)) for q in range(4))
        ad = []
        for n, x in enumerate((2, 1, 3)):
            ad += mk('s_xor_b32 s%d, s%d, %d\ns_mul_i32 s%d, s%d, 6144\ns_add_u32 s%d, s%d, %d\nv_add_u32 v%d, s%d, v%d'
                     % (sT3, sW, x, sT3, sT3, sT3, sT3, L_EX + 2048 * (x - 1), vEW[n], sT3, vL16))
        ad += mk('s_mul_i32 s%d, s%d, 6144\ns_add_u32 s%d, s%d, %d\nv_add_u32 v%d, s%d, v%d' % (sT3, sW, sT3, sT3, L_EX, vER, sT3, vL16))
        gA, gall, _ = self.gelu(ACC[1], KK[1], T)
        st, p3 = hpub(3)
        npre = o['npre']
        if l == 0:
            npre = 7
            fl = hflag(0, pend) + hflag(1, pend) + hflag(2, pend)
            self.w2_stage(gall[:o['flat']] + fl + gall[o['flat']:] + st, W2R, nsh,
                          {o['f3u']: hflag(3, p3), o['peu']: self.pa(14) + self.poll_issue(sPE), 25: self.poll_check(sPE) + resid(0) + cinit(AE) + hload(0) + hload(1),
                           26: hload(2) + hload(3) + hload(4), 27: hload(5) + hload(6)})
        else:
            P.add(spread([resid(0)] + [hload(i) for i in range(o['n3'], npre)], gall[:40] + hflag(2, pend) + cinit(AE) + gall[40:] + st))
        if self.fine:
            P.add(self.stamp('g3_end'))

        exch_write = lambda A: flat(mk('ds_write_b128 v%d, %s\nds_write_b128 v%d, %s offset:1024' % (vEW[n], v(r, 4), vEW[n], v(r + 4, 4)))
                                    for n, r in enumerate((A + 8, A + 16, A + 24)))
        exch_read = lambda: flat(mk('ds_read_b128 %s, v%d offset:%d' % (v(RX + 4 * q, 4), vER, 1024 * q)) for q in range(6))

        def addv(d, x, y, n, pk):
            if pk:
                return flat(mk('v_pk_add_f32 %s, %s, %s' % (v(d + i, 2), v(x + i, 2), v(y + i, 2))) for i in range(0, n, 2))
            return flat(mk('v_add_f32 v%d, v%d, v%d' % (d + i, x + i, y + i)) for i in range(n))

        def finish(A, q, pk):
            L = addv(A, A, RX, 8, pk) + addv(RX + 8, RX + 8, RX + 16, 8, pk) + addv(A, A, RX + 8, 8, pk) + self.pack(A, A, 4)
            if l == 0:
                L += self.stores(['buffer_store_dwordx4 %s, v%d, %s, s%d offen' % (v(A, 4), vL16, self.srd(SRD_CL), sFin + q)])
                rs = self.row_stats(A, 4, RX, RX + 2)
                blk = I('\n'.join(x.text for x in rs[:9]), kind='block', src=[r for x in rs[:9] for r in x.src], dst=[('v', RX), ('v', RX + 1), ('v', RX + 2)], states=1, cost=60)
                L += [blk] + mk('s_nop 2') + rs[9:]
                st = self.stores(['buffer_store_dword v%d, v%d, %s, s%d offen' % (RX, vL16, self.srd(SRD_CL), sFin + 2 + q)])
                tk = tok(st[-1])
                return L + st, self.flag([tk], sFin + 4 + q)
            L += mk('v_permlane32_swap_b32 v%d, v%d\nv_permlane32_swap_b32 v%d, v%d' % (A, A + 2, A + 1, A + 3))
            L += mk('buffer_store_dwordx4 %s, v%d, %s, s%d offen %s' % (v(A, 4), vPA, self.srd(SRD_OUT), sFin + q, ('', 'sc1', 'nt', 'sc0 sc1')[o['outf']]))
            return L, []

        slots = []
        nt = o['ntail']
        order = [(i, js) for i in range(56 - nt) for js in range(2)] + [(i, 1) for i in range(56 - nt, 56)] + [(i, 0) for i in range(56 - nt, 56)]
        for i, js in order:
            blk, kap = divmod(i, 28)
            A = (AE, AL)[blk]
            sl = mfma(A, v(SEL, 4), v(RS, 4)) if kap == 0 and js == 0 else []
            slots.append(sl + mfma(A + 16 * js, a(W2A + 8 * kap + 4 * js, 4), v(hreg[i], 4), kap == 0 and js == 1))
        sidx = 0
        for i in range(npre, 56):
            sidx = max(sidx, 2 * (i - 16) + 1 if i >= 16 else 0)
            if i == 28:
                sidx = max(sidx, o['lateL'])
                slots[sidx] += (self.stamp('preL') if self.fine else []) + self.poll_check(sPL) + (self.stamp('gotL') if self.fine else [])
            slots[sidx] += hload(i)
            assert sidx <= 2 * i - 6
            sidx += 1 if 2 * (i + 1) - sidx - 2 < o['lead'] else 2
        if l == 1:
            slots[o['flag3']] += (self.stamp('preF') if self.fine else []) + hflag(3, p3) + (self.stamp('gotF') if self.fine else [])
        slots[o['pollL']] += self.poll_issue(sPL)
        for i in range(0, len(ad), 4):
            slots[2 * (i // 4) + 30] += ad[i:i + 4]
        slots[40] += resid(1)
        if l == 0:
            slots[20] += mk('s_waitcnt lgkmcnt(0)\ns_barrier')
        slots[46] += cinit(AL)
        if l == 1:
            slots[44] += mk('v_and_b32 v%d, 31, v0\nv_mul_u32_u24 v%d, 896, v%d\nv_lshrrev_b32 v%d, 5, v0\nv_lshl_add_u32 v%d, v%d, 4, v%d'
                            % (vPA, vPA, vPA, vPoll, vPA, vPoll, vPA))
        P.add(flat(slots[:56]))
        P.add(self.stamp('s4_E'))
        late = slots[56:]
        fin, fl = finish(AE, 0, False)
        xb0 = o['xbar']
        P.add(spread(late[:xb0], exch_write(AE), start=2, end=9))
        late[xb0] += (self.stamp('preX') if self.fine else []) + mk('s_waitcnt lgkmcnt(0)\ns_barrier') + (self.stamp('gotX') if self.fine else []) + exch_read()
        late[34] += (self.stamp('preY') if self.fine else []) + mk('s_barrier') + (self.stamp('gotY') if self.fine else [])
        late[44] += fl
        wl = exch_write(AL)
        if l == 1 and o['wb'] == 3:
            lw = P.newlabel('Lnowb')
            late[o['wbslot']] += [I('s_or_b32 s%d, s%d, s%d\ns_cmp_lg_u32 s%d, 0\ns_cbranch_scc1 %s\nbuffer_wbl2 sc1\n%s:' % (sT0, sM, sW, sT0, lw, lw), kind='block', cost=12)]
        for i in range(4):
            late[56 - nt + 2 + i] += [wl[2 + i]]
        P.add(spread(late[xb0:], fin, start=4, end=33 - xb0))
        P.add(self.stamp('s4_L'))
        P.add(wl[:2] + mk('s_waitcnt lgkmcnt(0)\ns_barrier') + exch_read())
        fin, fl = finish(AL, 1, True)
        P.add(fin + fl)
        P.add(self.stamp('x2_pub'))

    def build(self):
        P = self.P
        self.prologue()
        for l in range(2):
            self.s1(l)
            if self.stop == 's1_%d' % l:
                break
            self.kvx(l)
            if self.stop == 'o_%d' % l:
                break
            lnext = 'L_layer%d' % (l + 1)
            if l == 0:
                lsk = P.newlabel('Lskipmlp')
                P.add([I('s_cmp_ge_u32 s%d, 14\ns_cbranch_scc1 %s' % (sM, lsk), kind='block')])
                lp = P.newlabel('Lidle')
                t = [x.text for x in self.pa(28)] + ['s_mov_b32 s%d, %d' % (sT4, FXIN), lp + ':', 's_sleep %d' % self.o['isl'],
                                                     'buffer_load_dword v%d, v%d, %s, s%d offen sc1' % (vPoll, vPA, self.srd(SRD_CL), sT4),
                                                     's_add_u32 s%d, s%d, 1' % (sSpin, sSpin), 's_cmp_gt_u32 s%d, 0x40000' % sSpin, 's_cbranch_scc1 L_end',
                                                     's_waitcnt vmcnt(0)', 'v_cmp_ne_u32 vcc, s%d, v%d' % (sNonce, vPoll), 's_cbranch_vccnz %s' % lp,
                                                     's_sleep %d' % self.o['isl2']]
                self.ool.append('%s:\n%s\ns_waitcnt vmcnt(0) lgkmcnt(0)\n%s\ns_branch %s' % (lsk, self.idle_work(), '\n'.join(t), lnext))
            else:
                if self.o['wb'] in (1, 2):
                    lw, lp = P.newlabel('Lwb'), P.newlabel('Lwbp')
                    P.add([I('s_cmp_ge_u32 s%d, 14\ns_cbranch_scc1 %s' % (sM, lw), kind='block')])
                    t = [lw + ':']
                    if self.o['outt']:
                        lo = P.newlabel('Lot')
                        t += ['s_cmp_lg_u32 s%d, 15' % sM, 's_cbranch_scc1 %s' % lo, 'v_lshlrev_b32 v%d, 7, v0' % vT, 's_mov_b32 exec_hi, 0xffffff']
                        for i in range(4):
                            t += ['s_add_u32 s%d, s%d, %d' % (sT2, sX, i * 56 * 128), 'buffer_load_dword v%d, v%d, %s, s%d offen' % (vDummy, vT, self.srd(SRD_OUT), sT2)]
                        t += ['s_mov_b64 exec, -1', 's_waitcnt vmcnt(0)', lo + ':']
                    t += ['s_cmp_lg_u32 s%d, 14' % sM, 's_cbranch_scc1 L_fin', 's_cmp_lg_u32 s%d, 0' % sW, 's_cbranch_scc1 L_fin']
                    t += [x.text for x in self.pa(14, blocks=True)]
                    t += ['s_mov_b32 s%d, %d' % (sT4, FH + 512 * self.o['wbblk'] if self.o['wbblk'] >= 0 else FX1), 's_sleep %d' % self.o['wbsl']] + (['buffer_wbl2 sc1', 's_waitcnt vmcnt(0)'] if self.o['wb'] == 2 else []) + [lp + ':', 's_sleep 4',
                          'buffer_load_dword v%d, v%d, %s, s%d offen sc1' % (vPoll, vPA, self.srd(SRD_CL), sT4),
                          's_add_u32 s%d, s%d, 1' % (sSpin, sSpin), 's_cmp_gt_u32 s%d, 0x40000' % sSpin, 's_cbranch_scc1 L_end',
                          's_waitcnt vmcnt(0)', 'v_cmp_ne_u32 vcc, s%d, v%d' % (sNonce, vPoll), 's_cbranch_vccnz %s' % lp,
                          's_sleep %d' % self.o['wbs2'], 'buffer_wbl2 sc1', 's_waitcnt vmcnt(0)', 's_branch L_fin']
                    self.ool.append('\n'.join(t))
                else:
                    P.add([I('s_cmp_ge_u32 s%d, 14\ns_cbranch_scc1 L_fin' % sM, kind='block')])
            self.s2(l)
            if self.stop == 'x1_%d' % l:
                P.label(lnext)
                break
            self.mlp(l)
            P.label(lnext)
            if l == 0:
                P('s_add_u32 s%d, s%d, %d\ns_add_u32 s%d, s%d, %d' % (sKv, sKv, KVP_L, sKvMy, sKvMy, KVP_L))
            if self.stop == 'x2_%d' % l:
                break
        P.add([I('s_cmp_lg_u32 s2, 0\ns_cbranch_scc1 L_fin\ns_cmp_lg_u32 s%d, 0\ns_cbranch_scc1 L_fin' % sW, kind='block')])
        P('s_mov_b64 exec, 1\nbuffer_store_dword v%d, off, %s, 0 sc1\ns_mov_b64 exec, -1' % (vNonce, self.srd(SRD_WS)))
        if self.probe is not None:
            P.add(self.stamp('end'))
            P.add([I('s_waitcnt lgkmcnt(0)\ns_sub_u32 s94, s94, s96\ns_lshl_b32 s94, s94, 2\ns_add_u32 s94, s94, 10000\nL_pr:\ns_memrealtime s[98:99]\ns_waitcnt lgkmcnt(0)\n'
                     's_sub_u32 s98, s98, s96\ns_cmp_lt_u32 s98, s94\ns_cbranch_scc1 L_pr', kind='block')])
        P.label('L_fin')
        if self.stamps:
            P('s_lshl_b32 s%d, s2, 2\ns_add_u32 s%d, s%d, s%d\ns_lshl_b32 s%d, s%d, 8\ns_add_u32 s%d, s%d, %d' % (sT0, sT0, sT0, sW, sT0, sT0, sT0, sT0, WS_STAMP))
            P.add(self.stamp('end'))
            P('s_memrealtime s[%d:%d]\ns_waitcnt lgkmcnt(0)\nv_writelane_b32 v%d, s%d, 63' % (sStamp, sStamp + 1, vStamp, sStamp))
            P('v_writelane_b32 v%d, s%d, 61' % (vStamp, sSpin))
            P('v_lshlrev_b32 v%d, 2, v0\nbuffer_store_dword v%d, v%d, %s, s%d offen' % (vT, vStamp, vT, self.srd(SRD_WS), sT0))
        P.label('L_end')
        P('s_endpgm')
        body, L = finalize(P.L)
        self.final = L
        ool = '\n'.join('\n'.join(('    ' + t if not t.endswith(':') else t) for t in b.split('\n') if t.strip()) for b in self.ool)
        head = open('cdna_kernels/%s.s.ref' % KNAME[:-7]).read().split('\n')
        hdr = [h for h in head if h.startswith(';') and '@launch' not in h]
        txt = '\n'.join(hdr) + '\n; @launch grid=(256,1,1) block=(256,1,1) lds=%d\n' % LDS_BYTES
        txt += '.amdgcn_target "amdgcn-amd-amdhsa--gfx950"\n.text\n.globl %s\n.p2align 8\n.type %s,@function\n%s:\n' % (KNAME, KNAME, KNAME)
        txt += body + ool + '\nL_code_end:\n'
        txt += '''.section .rodata,"a"
.p2align 6
.amdhsa_kernel %s
  .amdhsa_next_free_vgpr 512
  .amdhsa_next_free_sgpr 102
  .amdhsa_accum_offset 256
  .amdhsa_group_segment_fixed_size 0
  .amdhsa_kernarg_size 88
  .amdhsa_user_sgpr_count 2
  .amdhsa_user_sgpr_kernarg_segment_ptr 1
  .amdhsa_system_sgpr_workgroup_id_x 1
.end_amdhsa_kernel
''' % KNAME
        return txt


if __name__ == '__main__':
    import argparse
    ap = argparse.ArgumentParser()
    ap.add_argument('-o', default='k.s')
    ap.add_argument('--stop', default=None)
    ap.add_argument('--stamps', action='store_true')
    ap.add_argument('opts', nargs='*')
    A = ap.parse_args()
    opt = {k: (x if k in ('probe', 'light') else int(x)) for k, x in (t.split('=') for t in A.opts)}
    g = Gen(stop=A.stop, stamps=A.stamps, **opt)
    open(A.o, 'w').write(g.build())
    if A.stamps:
        open(A.o + '.stamps', 'w').write('\n'.join(g.stamp_names))
    n = {}
    for x in g.final:
        n[x.kind] = n.get(x.kind, 0) + 1
    nops = sum(x.states for x in g.final if x.op == 's_nop')
    print('instructions', n, 'nop states', nops)
```

```python
import sys, struct
from asmgen import *

KNAME = 'interleave_layers__linear_attn_block__mixer_channel_mlp__prompt_kernel'


def f32(x):
    return '0x%08x' % struct.unpack('<I', struct.pack('<f', x))[0]


LOG2E = 1.4426950408889634
LN2 = 0.6931471805599453
MF = 'v_mfma_f32_32x32x16_bf16'

WS_XCC = 0x8000
WS_STAMP = 0x10000
WS_KVP = 0x200000
KVP_CH = 9216
KVP_L = 0xA0000
WS_CL = 0x400000
LOFF = 0xD9000
O_OFF, X1_OFF, H_OFF, XIN_OFF, XST_OFF, FL_OFF = 0, 0x20000, 0x40000, 0xB0000, 0xD0000, 0xD8000
FO, FX1, FXIN, FH = FL_OFF, FL_OFF + 512, FL_OFF + 1024, FL_OFF + 1536

L_WQ = 0
L_Q = 57344
L_XB = 28672
L_EX = 86016
L_XS = 86016
L_WO = 114688
L_KVS = 143616
L_KVB = L_KVS + 16384
L_CS = L_KVB + 2048
L_B2 = L_CS + 768
LDS_BYTES = 163840
assert L_B2 + 512 <= LDS_BYTES

SRD_WQ, SRD_WO, SRD_W1, SRD_W2, SRD_X, SRD_OUT, SRD_B1, SRD_B2, SRD_CL, SRD_WS = range(4, 44, 4)
sC, sM, sW, sNonce, sSlow, sX, sSpin = 44, 45, 46, 47, 48, 49, 50
sT0, sT1, sT2, sT3, sT4, sT5 = 51, 52, 53, 54, 55, 56
sLn2, sXcc, sWi = 57, 58, 59
sN28, sHalf = 60, 62
sZm = 64
sXin, sD1 = 66, 67
sKA = 68
sEb, sLb, sC0, sC1, sHs, sFe = 68, 69, 70, 71, 72, 73
sBlk, sOst, sFo, sFoMy, sKv, sKvMy, sHE, sHL, sPE, sPL = 74, 75, 76, 77, 78, 79, 80, 81, 82, 83
sHst = 84
sRot = 85
sQ0, sQ1 = 86, 87
sFin, sRes = 28, 34
sTag = 22
sPm = 88
sStamp = 90
sPC = 92

vLane, vL16, vDummy, vTr, vNonce, vMean, vRl, vW1X, _w1x1, vPoll, vPA = range(0, 11)
vT = 11
vStamp = 15
vPoll2, vPoll3 = 15, 5
W2A = 0
W1A = 224
W1V = 176


def w1reg(k):
    return a(W1A + 4 * k, 4) if k < 8 else v(W1V + 4 * (k - 8), 4)


def w1half(k, hh):
    return a(W1A + 4 * k + 2 * hh, 2) if k < 8 else v(W1V + 4 * (k - 8) + 2 * hh, 2)


def flat(LL):
    return [x for L in LL for x in L]


def mfma(D, A, B, first=False):
    return mk('%s %s, %s, %s, %s' % (MF, v(D, 16), A, B, '0' if first else v(D, 16)))


class Gen:
    def __init__(self, stop=None, stamps=False, **opt):
        self.P = Prog()
        self.ool = []
        self.stop = stop
        self.stamps = stamps
        self.nstamp = 0
        self.stamp_names = []
        self.probe = opt.pop('probe', None)
        self.light = opt.pop('light', None)
        self.fine = bool(self.light or self.probe)
        if self.light is not None:
            self.light = self.light.split('+')
            assert len(self.light) <= 4
        self.seen = {}
        self.o = dict(kvdelay=10, poll2=0, psl=0, pdo=5, pdx=2, p1=1, pdi=0, s1pair=1, sta=13, stb=33, stc=48, isl=8, isl2=8, pollE=16, n3=4, st0=10, st1=23, stpos=1, x0=6, xstep=8, xlag=12, flagpos=8, gend=26, pollL=20, lateL=32, flag3=12, xbar=13, ntail=8, lead=16, look=6, pref=0, touch=1, codepf=1, rot=1, stnt=0, idlewq=0, reuse=1, npre=14, wqlate=84, pf0=1, w1q=4, w1pre=4, w1o=19, nxb1=12, pfslot=50, w2fill=3, w2u1=20, w2sp=5, npre0=9, flag30=4, nsh=17, sh0=48, shgap=6, f3u=23, peu=22, alias=1, flat=24, pf2=98, htk=0, wb=0, wbblk=3, wbsl=100, wbs2=0, wbslot=36, outf=0, outt=0, idlew2=11, woslot=41, tslot=46, latespan=14, strot=1, w1b2=70, look2=10, l1touch=0, xsc1=1, storder=0)
        self.o.update(opt)

    def srd(self, r):
        return s(r, 4)

    def stamp(self, name):
        if self.probe is not None:
            self.seen[name] = self.seen.get(name, 0) + 1
            if self.probe == '%s#%d' % (name, self.seen[name]):
                return [I('s_memrealtime s[94:95]', kind='block', states=1)]
            return []
        if not self.stamps:
            return []
        if self.light is not None:
            self.seen[name] = self.seen.get(name, 0) + 1
            key = '%s#%d' % (name, self.seen[name])
            if name == 'end':
                self.stamp_names.append('end')
                t = ['s_memtime s[88:89]', 's_waitcnt lgkmcnt(0) vmcnt(0)', 'v_writelane_b32 v%d, s98, 62' % vStamp]
                for i, r in enumerate([100] + [90 + 2 * j for j in range(len(self.stamp_names) - 2)] + [88]):
                    t.append('v_writelane_b32 v%d, s%d, %d' % (vStamp, r, i))
                return [I('\n'.join(t), kind='block', drain_lgkm=True)]
            if name != 'start' and key not in self.light:
                return []
            r = 100 if name == 'start' else 90 + 2 * (len(self.stamp_names) - 1)
            self.stamp_names.append(key if name != 'start' else name)
            return [I('s_memtime s[%d:%d]' % (r, r + 1), kind='block')]
        i = self.nstamp
        self.nstamp += 1
        self.stamp_names.append(name)
        t = 's_memtime s[%d:%d]\ns_waitcnt lgkmcnt(0)\nv_writelane_b32 v%d, s%d, %d' % (sStamp, sStamp + 1, vStamp, sStamp, i)
        return [I(t, kind='block', dst=[], src=[], drain_lgkm=True, states=3)]

    def stores(self, lines):
        insts = mk('\n'.join(lines))
        src = [r for x in insts for r in x.src]
        wide = [r for x in insts for r in x.wide]
        ls, lb = self.P.newlabel('Lslow'), self.P.newlabel('Lback')
        txt = 's_cmp_lg_u32 s%d, 0\ns_cbranch_scc1 %s\n%s\n%s:' % (sSlow, ls, '\n'.join(lines), lb)
        self.ool.append('%s:\n%s\ns_branch %s' % (ls, '\n'.join(l + ' sc1' for l in lines), lb))
        return [I(txt, kind='block', src=src, nvm=len(lines), wide=wide, states=1, cost=8 + 4 * len(lines))]

    def flag(self, toks, soff, off=0):
        st = self.stores(['buffer_store_dword v%d, off, %s, s%d offset:%d' % (vNonce, self.srd(SRD_CL), soff, off)])[0]
        st.text = 's_mov_b64 exec, 1\n' + st.text + '\ns_mov_b64 exec, -1'
        st.cost += 8
        return [wait_tok(*toks), st]

    def poll_issue(self, soff, delay=0):
        return (mk('s_sleep %d' % delay) if delay else []) + mk('buffer_load_dword v%d, v%d, %s, s%d offen sc1' % (vPoll, vPA, self.srd(SRD_CL), soff))

    def poll_check(self, soff, tag=False):
        ls, lb = self.P.newlabel('Lspin'), self.P.newlabel('Lgot')

        def cmp(r):
            if tag:
                return 'v_lshrrev_b32 v%d, 16, v%d\nv_cmp_ne_u32 vcc, s%d, v%d' % (r, r, sTag, r)
            return 'v_cmp_ne_u32 vcc, s%d, v%d' % (sNonce, r)
        ld = lambda r: 'buffer_load_dword v%d, v%d, %s, s%d offen sc1' % (r, vPA, self.srd(SRD_CL), soff)
        if self.o['poll2']:
            l1 = self.P.newlabel('Lsp')
            t = [ls + ':', ld(vPoll2), 's_sleep 2', l1 + ':', ld(vPoll3), 's_waitcnt vmcnt(1)', cmp(vPoll2), 's_cbranch_vccz %s' % lb,
                 ld(vPoll2), 's_add_u32 s%d, s%d, 1' % (sSpin, sSpin), 's_cmp_gt_u32 s%d, 0x40000' % sSpin, 's_cbranch_scc1 L_end',
                 's_waitcnt vmcnt(1)', cmp(vPoll3), 's_cbranch_vccnz %s' % l1, 's_branch %s' % lb]
        else:
            t = [ls + ':'] + (['s_sleep %d' % self.o['psl']] if self.o['psl'] else []) + [ld(vPoll), 's_add_u32 s%d, s%d, 1' % (sSpin, sSpin), 's_cmp_gt_u32 s%d, 0x40000' % sSpin, 's_cbranch_scc1 L_end',
                 's_waitcnt vmcnt(0)', cmp(vPoll), 's_cbranch_vccnz %s' % ls, 's_branch %s' % lb]
        self.ool.append('\n'.join(t))
        return [I(cmp(vPoll) + '\ns_cbranch_vccnz %s\n%s:' % (ls, lb), kind='block', src=[('v', vPoll)], dst=[('x', 'vcc'), ('v', vPoll)], states=2, cost=8)]

    def pa(self, n, blocks=False, reg=vPA):
        L = 'v_and_b32 v%d, %d, v0\n' % (reg, 15 if n <= 16 else 31)
        if n not in (16, 32):
            L += 'v_min_u32 v%d, %d, v%d\n' % (reg, n - 1, reg)
        L += 'v_lshlrev_b32 v%d, 2, v%d\n' % (reg, reg)
        if blocks:
            L += 'v_lshrrev_b32 v%d, 4, v0\nv_lshl_add_u32 v%d, v%d, 7, v%d' % (vT + 3, reg, vT + 3, reg)
        return mk(L)

    def trbase(self, dst, RS, kh, add=0, xor16=None):
        t = vT
        L = ['v_lshrrev_b32 v%d, 5, v%d' % (dst, vLane),
             'v_mul_u32_u24 v%d, %d, v%d' % (dst, kh, dst),
             'v_bfe_u32 v%d, v%d, 2, 2' % (t, vLane),
             'v_add_u32 v%d, v%d, v%d' % (dst, dst, t),
             'v_mul_u32_u24 v%d, %d, v%d' % (dst, RS, dst),
             'v_bfe_u32 v%d, v%d, 4, 1' % (t, vLane)]
        if xor16 is not None:
            L.append('v_xor_b32 v%d, s%d, v%d' % (t, xor16, t))
        L += ['v_lshl_add_u32 v%d, v%d, 5, v%d' % (dst, t, dst),
              'v_and_b32 v%d, 3, v%d' % (t, vLane),
              'v_lshl_add_u32 v%d, v%d, 3, v%d' % (dst, t, dst)]
        if add:
            L.append('v_add_u32 v%d, %d, v%d' % (dst, add, dst))
        return mk('\n'.join(L))

    def frag_loads(self, dsts, srd, sbase, const0, stride=1024, flags='', st=sT0):
        out = []
        cur = None
        for i, d in enumerate(dsts):
            off = const0 + i * stride
            grp = []
            if cur is None or not (0 <= off - cur <= 4095):
                cur = off
                grp += mk('s_add_u32 s%d, s%d, %d' % (st, sbase, off))
            grp += mk('buffer_load_dwordx4 %s, v%d, %s, s%d offen offset:%d %s' % (d, vL16, self.srd(srd), st, off - cur, flags))
            out.append(grp)
        return out

    def stats_finish(self, acc, double_ln):
        t1, t2 = vT + 1, vT + 2
        L = ['v_mov_b32 v%d, v%d' % (t1, acc),
             'v_mov_b32 v%d, v%d' % (vMean, acc),
             'v_permlane32_swap_b32 v%d, v%d' % (vMean, t1),
             'v_mul_f32 v%d, %s, v%d' % (vMean, f32(1.0 / 448), vMean),
             'v_mul_f32 v%d, %s, v%d' % (t1, f32(1.0 / 448), t1),
             'v_fma_f32 v%d, -v%d, v%d, v%d' % (t1, vMean, vMean, t1),
             'v_max_f32 v%d, 0, v%d' % (t1, t1),
             'v_add_f32 v%d, %s, v%d' % (t2, f32(1e-5), t1),
             'v_rsq_f32 v%d, v%d' % (vRl, t2)]
        if double_ln:
            L += ['v_mul_f32 v%d, v%d, v%d' % (t2, vRl, vRl),
                  'v_fmaak_f32 v%d, v%d, v%d, %s' % (t1, t1, t2, f32(1e-5)),
                  'v_rsq_f32 v%d, v%d' % (t1, t1),
                  'v_mul_f32 v%d, v%d, v%d' % (vRl, vRl, t1)]
        else:
            L += ['v_mul_f32 v%d, %s, v%d' % (vRl, f32(LOG2E), vRl)]
        return mk('\n'.join(L))

    def split_act(self, d0, val, t):
        return mk('\n'.join([
            'v_cvt_pk_bf16_f32 v%d, v%d, v%d' % (d0 + 1, val, val),
            'v_and_b32 v%d, 0xffff0000, v%d' % (t, d0 + 1),
            'v_sub_f32 v%d, v%d, v%d' % (t, val, t),
            'v_cvt_pk_bf16_f32 v%d, v%d, v%d' % (d0, val, t),
            'v_and_b32 v%d, 0xffff, v%d' % (d0 + 1, d0 + 1),
            'v_cndmask_b32 v%d, v%d, 0, s[%d:%d]' % (d0 + 1, d0 + 1, sHalf, sHalf + 1)]))

    def split_w(self, d0, val, t):
        return mk('\n'.join([
            'v_cvt_pk_bf16_f32 v%d, v%d, v%d' % (d0, val, val),
            'v_and_b32 v%d, 0xffff0000, v%d' % (t, d0),
            'v_sub_f32 v%d, v%d, v%d' % (t, val, t),
            'v_cvt_pk_bf16_f32 v%d, v%d, 0' % (d0 + 1, t)]))

    def phi8(self, r0, R, T, eps):
        L = ['v_pk_mul_f32 %s, %s, %s' % (v(r0 + i, 2), v(r0 + i, 2), R(i)) for i in range(0, 8, 2)]
        for i in range(8):
            L += ['v_exp_f32 v%d, v%d clamp' % (T + i, r0 + i), 'v_max_f32 v%d, 0, v%d' % (r0 + i, r0 + i)]
        L += ['v_pk_fma_f32 %s, %s, s[%d:%d], %s op_sel:[0,1,0] op_sel_hi:[1,1,1]' % (v(r0 + i, 2), v(r0 + i, 2), sLn2 - 1, sLn2, v(T + i, 2)) for i in range(0, 8, 2)]
        L += ['v_pk_add_f32 %s, %s, %s op_sel_hi:[1,0]' % (v(r0 + i, 2), v(r0 + i, 2), v(eps, 2)) for i in range(0, 8, 2)]
        return mk('\n'.join(L))

    def pack(self, dst, src, n):
        return mk('\n'.join('v_cvt_pk_bf16_f32 v%d, v%d, v%d' % (dst + i, src + 2 * i, src + 2 * i + 1) for i in range(n)))

    def unpack(self, dst, src, n):
        L = []
        for i in reversed(range(n)):
            L.append('v_and_b32 v%d, 0xffff0000, v%d' % (dst + 2 * i + 1, src + i))
            L.append('v_lshlrev_b32 v%d, 16, v%d' % (dst + 2 * i, src + i))
        return mk('\n'.join(L))

    def dots(self, regs, acc, ones, first):
        L = []
        for i, r in enumerate(regs):
            z = first and i == 0
            L.append('v_dot2_f32_bf16 v%d, v%d, v%d, %s' % (acc, r, ones, '0' if z else 'v%d' % acc))
            L.append('v_dot2_f32_bf16 v%d, v%d, v%d, %s' % (acc + 1, r, r, '0' if z else 'v%d' % (acc + 1)))
        return mk('\n'.join(L))

    def dots_end(self, acc):
        return mk('v_permlane32_swap_b32 v%d, v%d\nv_add_f32 v%d, v%d, v%d' % (acc, acc + 1, acc, acc, acc + 1))

    def row_stats(self, src, n, acc, ones):
        return mk('v_mov_b32 v%d, 0x3f803f80' % ones) + self.dots(range(src, src + n), acc, ones, True) + self.dots_end(acc)

    def kv_lane_addr(self, d, t, u, gather):
        L = []
        if gather:
            L += ['v_and_b32 v%d, 31, v0' % t, 'v_lshrrev_b32 v%d, 5, v0' % d]
        else:
            L += ['v_lshrrev_b32 v%d, 5, v0' % t, 'v_and_b32 v%d, 15, v0' % u, 'v_lshl_add_u32 v%d, v%d, 1, v%d' % (t, u, t), 'v_bfe_u32 v%d, v0, 4, 1' % d]
        L += ['v_lshrrev_b32 v%d, 3, v%d' % (u, t), 'v_sub_u32 v%d, v%d, v%d' % (u, t, u)]
        if not gather:
            L += ['v_and_b32 v%d, 7, v%d' % (t, t), 'v_cmp_eq_u32 vcc, 7, v%d' % t, 'v_cndmask_b32 v%d, v%d, 31, vcc' % (u, u)]
        L += ['v_lshl_add_u32 v%d, v%d, 5, v%d' % (d, d, u)]
        sh, qs, base = (4, 10, L_KVS) if gather else (5, 3, L_KVB)
        L += ['s_lshl_b32 s%d, s%d, %d' % (sT2, sW, qs), 'v_lshlrev_b32 v%d, %d, v%d' % (d, sh, d), 'v_add_u32 v%d, s%d, v%d' % (d, sT2, d)]
        L += ['v_and_b32 v%d, 1, v%d' % (t, u), 'v_lshlrev_b32 v%d, %d, v%d' % (t, 5 + sh, t), 'v_lshrrev_b32 v%d, 1, v%d' % (u, u)]
        L += ['v_cmp_gt_u32 vcc, 4, v%d' % u]
        L += ['v_lshl_add_u32 v%d, v%d, %d, v%d' % (t, u, qs, t), 'v_add_u32 v%d, %d, v%d' % (t, 28 << sh, t)]
        L += ['s_and_b64 vcc, vcc, s[%d:%d]' % ((sZm, sZm + 1) if gather else (sPm, sPm + 1)), 'v_cndmask_b32 v%d, v%d, v%d, vcc' % (d, d, t),
              'v_add_u32 v%d, %d, v%d' % (d, base, d)]
        return mk('\n'.join(L))

    def wq_dma(self, va, q):
        if q:
            ad = 'v_lshrrev_b32 v%d, 2, v0\nv_mul_u32_u24 v%d, 2688, v%d\nv_and_b32 v%d, 3, v0\nv_lshl_add_u32 v%d, v%d, 4, v%d' % (va, va, va, vT, va, vT, va)
        else:
            ad = ('v_lshrrev_b32 v%d, 3, v0\nv_mul_u32_u24 v%d, 2688, v%d\nv_and_b32 v%d, 3, v0\nv_lshl_add_u32 v%d, v%d, 4, v%d\n'
                  'v_lshrrev_b32 v%d, 2, v0\nv_xor_b32 v%d, v%d, v0\nv_bfe_u32 v%d, v%d, 2, 1\nv_mul_u32_u24 v%d, 896, v%d\nv_add3_u32 v%d, v%d, v%d, s%d'
                  % (va, va, va, vT, va, vT, va, vT, vT, vT, vT, vT, vT, vT, va, va, vT, sQ0))
        rows = 16 if q else 8
        pre = mk('s_mul_i32 s%d, s%d, 56\ns_add_u32 s%d, s%d, 896' % (sQ1, sM, sQ0, sQ1)) + mk(ad)
        if q:
            pre += mk('v_add_u32 v%d, s%d, v%d' % (va, sQ1, va))
        pre += mk('s_mul_i32 s%d, s%d, %d\ns_lshl_b32 s%d, s%d, 10' % (sRot, sW, rows * 2688, sQ1, sW))
        out = []
        for t in range(7 if q else 14):
            out.append(mk('s_add_u32 m0, s%d, %d\ns_add_u32 s%d, s%d, %d\nbuffer_load_dwordx4 v%d, %s, s%d offen lds'
                          % (sQ1, (L_Q if q else L_WQ) + 4096 * t, sQ0, sRot, 4 * t * rows * 2688, va, self.srd(SRD_WQ), sQ0)))
        return pre, out

    def touch(self, items, va):
        if not self.o['touch']:
            return []
        txt = ['v_lshlrev_b32 v%d, 7, v0' % va]
        cur = None
        n = 0
        for nl, srd, sg, c in items:
            if nl != cur:
                txt.append('s_mov_b64 exec, 0x%x' % ((1 << nl) - 1))
                cur = nl
            txt.append('s_add_u32 s%d, s%d, %d' % (sT2, sg, c) if sg is not None else 's_mov_b32 s%d, %d' % (sT2, c))
            txt.append('buffer_load_dword v%d, v%d, %s, s%d offen sc1' % (vDummy, va, self.srd(srd), sT2))
            n += 1
        txt.append('s_mov_b64 exec, -1')
        return [I('\n'.join(txt), kind='block', nvm=n, dst=[('v', va)], src=[('v', 0)], states=1, cost=12 * n)]

    def touch_attn(self, lo, va):
        pre = mk('s_lshr_b32 s%d, s%d, 2\ns_lshl_b32 s%d, s%d, 10\ns_add_u32 s%d, s%d, s%d\ns_mul_i32 s%d, s%d, 896' % (sT1, sM, sT1, sT1, sT1, sT1, sBlk, sT0, sW))
        return pre + self.touch([(16, SRD_CL, sOst, lo), (16, SRD_CL, sOst, lo + X1_OFF), (8, SRD_CL, sT1, lo + X1_OFF + 28672),
                                 (7, SRD_CL, sT0, lo + FL_OFF)], va)

    def prefetch(self, va, items):
        txt, n = ['v_lshlrev_b32 v%d, 7, v0' % va], 0
        for srd, per in items:
            for j in range(0, per, 64):
                nl = min(64, per - j)
                txt += ['s_mul_i32 s%d, s%d, %d' % (sT2, sWi, per * 128), 's_add_u32 s%d, s%d, %d' % (sT2, sT2, j * 128),
                        's_mov_b32 exec_lo, 0x%x' % (((1 << nl) - 1) & 0xffffffff), 's_mov_b32 exec_hi, 0x%x' % (((1 << nl) - 1) >> 32),
                        'buffer_load_dword v%d, v%d, %s, s%d offen' % (vDummy, va, self.srd(srd), sT2)]
                n += 1
        return [I('\n'.join(txt + ['s_mov_b64 exec, -1']), kind='block', nvm=n, src=[('v', 0)], dst=[('v', va)], cost=20 * n)]

    def idle_work(self):
        va = vT
        l = self.P.newlabel('Lnowarm')
        T = ['s_cmp_lg_u32 s%d, 0' % sSlow, 's_cbranch_scc1 %s' % l,
             'v_lshlrev_b32 v%d, 7, v0' % va,
             's_and_b32 s%d, s%d, 1' % (sT0, sM), 's_lshl_b32 s%d, s%d, 2' % (sT0, sT0), 's_add_u32 s%d, s%d, s%d' % (sT0, sT0, sW)]
        ld = lambda srd, fl: 'buffer_load_dword v%d, v%d, %s, s%d offen %s' % (vDummy, va, self.srd(srd), sT2, fl)
        nw2 = self.o['idlew2']
        if nw2:
            T += ['s_lshr_b32 s%d, s%d, 3' % (sT1, sC), 's_lshl_b32 s%d, s%d, 3' % (sT1, sT1), 's_add_u32 s%d, s%d, s%d' % (sT1, sT1, sT0),
                  's_lshl_b32 s%d, s%d, 13' % (sT2, sT1)]
            for i in range(nw2):
                T += [ld(SRD_W2, ''), 's_add_u32 s%d, s%d, 131072' % (sT2, sT2)]
        for i in range(2 * self.o['htk'] - (self.o['htk'] > 1), 7):
            T += ['s_lshl_b32 s%d, s%d, 13' % (sT2, sT0), 's_add_u32 s%d, s%d, %d' % (sT2, sT2, H_OFF + i * 65536), ld(SRD_CL, 'sc1')]
        if not self.o['alias']:
            for i in range(2):
                T += ['s_lshl_b32 s%d, s%d, 13' % (sT2, sT0), 's_add_u32 s%d, s%d, %d' % (sT2, sT2, XIN_OFF + i * 65536), ld(SRD_CL, 'sc1')]
        T += ['s_lshl_b32 s%d, s%d, 12' % (sT2, sT0), 's_add_u32 s%d, s%d, %d' % (sT2, sT2, XST_OFF), 's_mov_b32 exec_hi, 0', ld(SRD_CL, 'sc1'), 's_mov_b64 exec, -1']
        T += [l + ':']
        return '\n'.join(T)

    def prologue(self):
        P = self.P
        o = self.o
        P('s_cmp_ge_u32 s2, 256\ns_cbranch_scc1 L_end')
        if self.probe is not None:
            P.add([I('s_memrealtime s[96:97]\ns_memrealtime s[94:95]', kind='block', states=1)])
        P('s_load_dwordx16 s[%d:%d], s[0:1], 0' % (sKA, sKA + 15))
        P('s_load_dwordx4 s[%d:%d], s[0:1], 64' % (sKA + 16, sKA + 19))
        P('s_load_dwordx2 s[%d:%d], s[0:1], 80' % (sKA + 20, sKA + 21))
        P('v_lshrrev_b32 v%d, 6, v0\nv_and_b32 v0, 63, v0\nv_readfirstlane_b32 s%d, v%d' % (vT, sW, vT))
        P('s_lshr_b32 s%d, s2, 3\ns_lshl_b32 s%d, s%d, 2\ns_add_u32 s%d, s%d, s%d' % (sM, sWi, sM, sWi, sWi, sW))
        if o['codepf']:
            P.add([I('s_getpc_b64 s[%d:%d]\nL_pc:' % (sPC, sPC + 1), kind='block', dst=[], states=1)])
            P('s_lshl_b32 s%d, s%d, 9\nv_lshlrev_b32 v%d, 7, v0\nv_add_u32 v%d, s%d, v%d' % (sT0, sWi, vT, vT, sT0, vT))
            P.add([I('v_min_u32 v%d, L_code_end-L_pc-4, v%d\ns_mov_b64 exec, 15\nglobal_load_dword v%d, v%d, s[%d:%d]\ns_mov_b64 exec, -1'
                     % (vT, vT, vDummy, vT, sPC, sPC + 1), kind='block', dst=[('v', vT)], src=[('v', vT)], nvm=1)])
        P('s_and_b32 s%d, s2, 7\ns_lshr_b32 s%d, s%d, 4\ns_lshl_b32 s%d, s%d, 3\ns_add_u32 s%d, s%d, s%d\ns_and_b32 s%d, s%d, 15'
          % (sC, sT0, sM, sT0, sT0, sC, sC, sT0, sM, sM))
        P('v_lshlrev_b32 v%d, 4, v0' % vL16)
        if self.stamps:
            P('v_mov_b32 v%d, 0' % vStamp)
            P.add(self.stamp('start'))
            if self.light is not None:
                P('s_memrealtime s[98:99]\ns_waitcnt lgkmcnt(0)')
            else:
                assert not o['poll2']
                P('s_memrealtime s[%d:%d]\ns_waitcnt lgkmcnt(0)\nv_writelane_b32 v%d, s%d, 62' % (sStamp, sStamp + 1, vStamp, sStamp))
        P('s_lshl_b32 s%d, s%d, 2\ns_add_u32 s%d, s%d, s%d\ns_mul_i32 s%d, s%d, %d' % (sX, sC, sX, sX, sW, sX, sX, 32 * 896))
        vq, vxb, vxh, vxa, vrd = 160, 163, 164, 165, 167
        P('v_lshrrev_b32 v%d, 5, v0\nv_and_b32 v%d, 31, v0\nv_xor_b32 v%d, v%d, v%d\nv_lshlrev_b32 v%d, 4, v%d\nv_mul_u32_u24 v%d, 896, v%d'
          % (vxh, vT, vxb, vT, vxh, vxb, vxb, vxh, vxh))
        ka = sKA

        def mksrd(r, p, size):
            P('s_mov_b32 s%d, s%d\ns_mov_b32 s%d, s%d\ns_mov_b32 s%d, %d\ns_mov_b32 s%d, 0x20000' % (r, p, r + 1, p + 1, r + 2, size, r + 3))
        P('s_lshl_b32 s%d, s%d, 14\ns_add_u32 s%d, s%d, %d' % (sT5, sW, sT5, sT5, L_XS))
        mksrd(SRD_X, ka + 0, 2048 * 896)

        def xdma(half):
            out = []
            for i in range(16):
                if half:
                    g = mk('s_mov_b32 s%d, %d\nv_xad_u32 v%d, v%d, s%d, v%d' % (sT0, ((2 * i) & 15) << 4, vxa + (i & 1), vxb, sT0, vxh))
                    g += mk('s_add_u32 s%d, s%d, %d\ns_add_u32 m0, s%d, %d' % (sT1, sX, 2 * i * 896 + 512, sT5, 1024 * i))
                    out.append(g + mk('buffer_load_dwordx4 v%d, %s, s%d offen lds' % (vxa + (i & 1), self.srd(SRD_X), sT1)))
                    continue
                g = mk('s_add_u32 s%d, s%d, %d\ns_and_b32 s%d, s%d, 15' % (sT4, sM, i, sT4, sT4) if o['rot'] else 's_mov_b32 s%d, %d' % (sT4, i))
                g += mk('s_lshl_b32 s%d, s%d, 5\ns_and_b32 s%d, s%d, 0xf0\nv_xad_u32 v%d, v%d, s%d, v%d' % (sT0, sT4, sT0, sT0, vxa + (i & 1), vxb, sT0, vxh))
                g += mk('s_mul_i32 s%d, s%d, 1792\ns_add_u32 s%d, s%d, s%d\ns_lshl_b32 s%d, s%d, 10\ns_add_u32 m0, s%d, s%d' % (sT1, sT4, sT1, sT1, sX, sT4, sT4, sT4, sT5))
                g += mk('buffer_load_dwordx4 v%d, %s, s%d offen lds' % (vxa + (i & 1), self.srd(SRD_X), sT1))
                out.append(g)
            return out
        mksrd(SRD_WQ, ka + 2, 448 * 2688)
        if o['pf0']:
            P('v_lshlrev_b32 v%d, 7, v0\ns_lshl_b32 s%d, s%d, 2\ns_add_u32 s%d, s%d, s%d\ns_mul_i32 s%d, s%d, %d\ns_mul_i32 s%d, s%d, %d\ns_add_u32 s%d, s%d, s%d\ns_mul_i32 s%d, s%d, 49'
              % (vxa, sT0, sM, sT0, sT0, sW, sT0, sT0, 14 * 128, sT1, sC, 128 * 896, sT0, sT0, sT1, sT1, sWi))
            if o['pf0'] == 1:
                P('v_add_u32 v%d, s%d, v0\nv_mul_u32_u24 v%d, 37450, v%d\nv_lshrrev_b32 v%d, 19, v%d\nv_mul_u32_u24 v%d, 896, v%d\nv_lshl_add_u32 v%d, v%d, 7, v%d'
                  % (vT, sT1, vxa + 1, vT, vxa + 1, vxa + 1, vxa + 1, vxa + 1, vxa + 1, vT, vxa + 1))
                P.add([I('s_mov_b64 exec, 0x3fff\nbuffer_load_dword v%d, v%d, %s, s%d offen\ns_mov_b32 exec_lo, -1\ns_mov_b32 exec_hi, 0x1ffff\n'
                         'buffer_load_dword v%d, v%d, %s, 0 offen offset:896\ns_mov_b64 exec, -1'
                         % (vDummy, vxa, self.srd(SRD_X), sT0, vDummy, vxa + 1, self.srd(SRD_WQ)), kind='block', nvm=2, src=[('v', vxa), ('v', vxa + 1)])])
            else:
                P.add([I('s_mov_b64 exec, 0x3fff\nbuffer_load_dword v%d, v%d, %s, s%d offen\ns_mov_b64 exec, -1' % (vDummy, vxa, self.srd(SRD_X), sT0),
                         kind='block', nvm=1, src=[('v', vxa)])])
                P.add(self.prefetch(vxa, [(SRD_WQ, 74)]))
        body = [x.text for x in xdma(0)[0]]
        body[0] = 's_add_u32 s%d, s%d, s%d' % (sT4, sM, sT2) if o['rot'] else 's_mov_b32 s%d, s%d' % (sT4, sT2)
        loop = I('\n'.join(['s_mov_b32 s%d, 0' % sT2, 'L_xa:'] + body[:-1] + ['s_add_u32 s%d, s%d, 1' % (sT2, sT2), 's_cmp_lt_u32 s%d, 16' % sT2, body[-1],
                                                                            's_cbranch_scc1 L_xa']), kind='block', nvm=16, src=[('v', vxb), ('v', vxh)] + regs_of(s(SRD_X, 4)), dst=[('v', vxa)])
        tA = tok(loop)
        P.add([loop])
        P('s_load_dword s%d, s[%d:%d], 0' % (sNonce, ka + 20, ka + 21))
        mksrd(SRD_OUT, ka + 16, 2048 * 896)
        pre, wq = self.wq_dma(vq, False)
        self.tok_wq1, self.tok_wq = tok(wq[7][-1]), tok(wq[-1][-1])
        P.add(pre + flat(wq[:8]))
        mksrd(SRD_WO, ka + 4, 448 * 896)
        mksrd(SRD_W1, ka + 8, 448 * 3584)
        mksrd(SRD_B1, ka + 10, 3584)
        mksrd(SRD_W2, ka + 12, 1792 * 896)
        mksrd(SRD_B2, ka + 14, 896)
        mksrd(SRD_WS, ka + 20, WS_CL)
        P('s_lshl_b32 s%d, s%d, 21\ns_add_u32 s%d, s%d, %d' % (sT0, sC, sT0, sT0, WS_CL))
        P('s_add_u32 s%d, s%d, s%d\ns_addc_u32 s%d, s%d, 0\ns_mov_b32 s%d, 0x200000\ns_mov_b32 s%d, 0x20000'
          % (SRD_CL, ka + 20, sT0, SRD_CL + 1, ka + 21, SRD_CL + 2, SRD_CL + 3))
        P('s_mov_b32 s%d, %s\ns_mov_b32 s%d, 0\ns_mov_b32 s%d, -1' % (sLn2, f32(LN2), sHalf, sHalf + 1))
        P('s_mov_b32 s%d, 0x10000000\ns_mov_b32 s%d, 0x10000000\ns_mov_b32 s%d, 0' % (sN28, sN28 + 1, sSpin))
        P('s_getreg_b32 s%d, hwreg(HW_REG_XCC_ID, 0, 4)' % sXcc)
        P('s_and_b32 s%d, s%d, 1\ns_sub_u32 s%d, 3, s%d' % (sEb, sM, sLb, sEb))
        P('s_cmp_eq_u32 s%d, 3\ns_cselect_b32 s%d, -1, 0\ns_mov_b32 s%d, 0' % (sW, sZm + 1, sZm))
        P('s_lshr_b32 s%d, s%d, 3' % (sD1, sC) if o['strot'] else 's_mov_b32 s%d, 0' % sD1)
        c0 = -2.0 * 0.7978845608028654 * LOG2E
        P('s_mov_b32 s%d, %s\ns_mov_b32 s%d, %s' % (sC0, f32(c0), sC1, f32(c0 * 0.044715)))
        P('s_lshr_b32 s%d, s%d, 1\ns_lshl_b32 s%d, s%d, 2\ns_and_b32 s%d, s%d, 1\ns_lshl_b32 s%d, s%d, 1\ns_add_u32 s%d, s%d, s%d\ns_lshr_b32 s%d, s%d, 1\ns_add_u32 s%d, s%d, s%d'
          % (sFe, sM, sFe, sFe, sT0, sW, sT0, sT0, sFe, sFe, sT0, sT0, sW, sFe, sFe, sT0))
        P('s_lshl_b32 s%d, s%d, 15\ns_lshl_b32 s%d, s%d, 11\ns_add_u32 s%d, s%d, s%d' % (sBlk, sW, sOst, sM, sOst, sOst, sBlk))
        P('s_lshl_b32 s%d, s%d, 7\ns_add_u32 s%d, s%d, %d\ns_lshl_b32 s%d, s%d, 2\ns_add_u32 s%d, s%d, s%d' % (sFo, sW, sFo, sFo, FL_OFF, sT0, sM, sFoMy, sFo, sT0))
        P('s_lshl_b32 s%d, s%d, 2\ns_add_u32 s%d, s%d, s%d\ns_mul_i32 s%d, s%d, %d\ns_add_u32 s%d, s%d, %d' % (sT1, sM, sT1, sT1, sW, sKv, sT1, KVP_CH, sKv, sKv, WS_KVP))
        P('s_lshl_b32 s%d, s%d, 9\ns_add_u32 s%d, s%d, s%d' % (sKvMy, sC, sKvMy, sKvMy, sKv))
        P('s_lshl_b32 s%d, s%d, 11\ns_add_u32 s%d, s%d, %d' % (sHst, sT1, sHst, sHst, H_OFF))
        P('s_lshl_b32 s%d, s%d, 11\ns_add_u32 s%d, s%d, %d' % (sT1, sW, sT1, sT1, H_OFF))
        P('s_mul_i32 s%d, s%d, 114688\ns_add_u32 s%d, s%d, s%d\ns_mul_i32 s%d, s%d, 114688\ns_add_u32 s%d, s%d, s%d' % (sHE, sEb, sHE, sHE, sT1, sHL, sLb, sHL, sHL, sT1))
        P('s_lshl_b32 s%d, s%d, 9\ns_add_u32 s%d, s%d, s%d\ns_add_u32 s%d, s%d, %d' % (sPE, sEb, sPE, sPE, sFo, sPE, sPE, FH - FL_OFF))
        P('s_lshl_b32 s%d, s%d, 9\ns_add_u32 s%d, s%d, s%d\ns_add_u32 s%d, s%d, %d' % (sPL, sLb, sPL, sPL, sFo, sPL, sPL, FH - FL_OFF))
        self.xreg0 = xr = [16 + 4 * i if i < 20 else 176 + 4 * (i - 20) for i in range(28)]
        P('v_and_b32 v%d, 15, v0\nv_lshrrev_b32 v%d, 5, v0\nv_xor_b32 v%d, v%d, v%d\nv_lshlrev_b32 v%d, 4, v%d\nv_and_b32 v%d, 31, v0\nv_lshl_add_u32 v%d, v%d, 9, v%d\nv_add_u32 v%d, s%d, v%d'
          % (vT, vrd, vrd, vrd, vT, vrd, vrd, vT, vrd, vT, vrd, vrd, sT5, vrd))
        xrd = lambda k: mk('v_xor_b32 v%d, %d, v%d\nds_read_b128 %s, v%d' % (vrd + 1 + (k & 1), 32 * (k & 15), vrd, v(xr[k], 4), vrd + 1 + (k & 1)))
        vrs = vrd + 3
        P('v_and_b32 v%d, 15, v0\nv_lshlrev_b32 v%d, 4, v%d\nv_lshrrev_b32 v%d, 5, v0\nv_lshl_add_u32 v%d, v%d, 3, v%d\nv_and_b32 v%d, 31, v0\nv_lshl_add_u32 v%d, v%d, 9, v%d\nv_add_u32 v%d, s%d, v%d'
          % (vrs, vrs, vrs, vT, vrs, vT, vrs, vT, vrs, vT, vrs, vrs, sT5, vrs))
        P('s_and_b32 s%d, s%d, 7\ns_lshl_b32 s%d, s%d, 6\nv_xor_b32 v%d, s%d, v%d' % (sT0, sM, sT0, sT0, vrs, sT0, vrs))

        def resrd(half):
            l = P.newlabel('Lres')
            t = ['s_cmp_%s_u32 s%d, 8' % ('lt' if half else 'ge', sM), 's_cbranch_scc1 %s' % l]
            for g in range(4):
                t += ['v_xor_b32 v%d, %d, v%d' % (vrs + 1, 16 * g, vrs), 'ds_read_b64 %s, v%d' % (a(216 + 2 * g, 2), vrs + 1)]
            return [I('\n'.join(t + [l + ':']), kind='block', src=[('v', vrs)], dst=[('v', vrs + 1)])]
        P.add(self.stamp('issued'))
        P.add([wait_tok(tA)])
        P.add(self.stamp('xA'))
        for k in range(16):
            P.add(xrd(k))
        P.add(resrd(0))
        vS, vOne = 172, 174
        P('v_mov_b32 v%d, 0x3f803f80\ns_waitcnt lgkmcnt(0)' % vOne)
        xb = xdma(1)
        self.tok_xb = tok(xb[-1][-1])
        d = self.dots([xr[k] + i for k in range(16) for i in range(4)], vS, vOne, True)
        P.add(spread(xb[:o['nxb1']], d))
        self.late_dma = xb[o['nxb1']:] + wq[8:]
        self.late_rd = [xrd(k) for k in range(16, 28)] + [resrd(1)]
        self.late_dots = self.dots([xr[k] + i for k in range(16, 28) for i in range(4)], vS, vOne, False) + self.dots_end(vS)
        P('s_add_u32 s%d, s%d, 0x01010101' % (sNonce, sNonce))
        P('v_mov_b32 v%d, s%d' % (vNonce, sNonce))
        P('s_lshl_b32 s%d, s%d, 4\ns_add_u32 s%d, s%d, s%d\ns_lshl_b32 s%d, s%d, 7\ns_add_u32 s%d, s%d, %d'
          % (sT2, sC, sT2, sT2, sM, sT2, sT2, sT2, sT2, WS_XCC))
        P('s_add_u32 s%d, s%d, s%d\nv_mov_b32 v%d, s%d\ns_mov_b64 exec, 1' % (sT3, sNonce, sXcc, vT, sT3))
        P('buffer_store_dword v%d, off, %s, s%d sc1' % (vT, self.srd(SRD_WS), sT2))
        P('s_mov_b64 exec, -1')

    def s1(self, l):
        P = self.P
        o = self.o
        AK, AV, AQ, WB, SB = 96, 112, 128, 144, 160
        RLB, XE = SB, SB + 8
        NB = 4
        vS = 172 if l == 0 else vT + 2
        P.comment('==== layer %d : S1' % l)
        kh = 8 if l == 0 else 4
        vTrV, vTrQ, vCs = vT + 3, (vT + 2 if l == 0 else vDummy), vPA
        trkv = self.trbase(vTr, 128, kh, add=L_WQ) + mk('v_bfe_u32 v%d, v0, 3, 1\nv_lshl_add_u32 v%d, v%d, 6, v%d\nv_xor_b32 v%d, 64, v%d' % (vT, vTr, vT, vTr, vTrV, vTr))
        trq = self.trbase(vTrQ, 64, kh, add=L_Q)
        fin = self.stats_finish(vS, False)
        fin += mk('s_lshl_b32 s%d, s%d, 12\ns_add_u32 s%d, s%d, %d' % (sT4, sW, sT4, sT4, L_KVS))
        bounce = mk('v_and_b32 v%d, 31, v0\nv_lshl_add_u32 v%d, v%d, 2, s%d\nds_write_b32 v%d, v%d' % (vT + 1, vT + 1, vT + 1, sT4, vT + 1, vRl))
        fin += bounce
        fin += mk('v_sub_f32 v%d, 0, v%d' % (vMean, vMean)) + self.split_act(XE, vMean, vT)
        fin += mk('v_cndmask_b32 v%d, v%d, 0, s[%d:%d]\nv_mov_b32 v%d, 0\nv_mov_b32 v%d, 0' % (XE, XE, sHalf, sHalf + 1, XE + 2, XE + 3))
        if l == 0:
            xreg = self.xreg0
            P.add(trkv)
            P.add([wait_tok(self.tok_wq1)])
            P('s_barrier')
            P.add(self.stamp('wq_ready'))
            lds = []
        else:
            xreg = [16 + 4 * (i % 20) for i in range(28)]
            P.add(self.pa(28))
            P('s_add_u32 s%d, s%d, %d' % (sT4, sFo, FXIN - FL_OFF))
            P.add(self.poll_issue(sT4, o['pdi']))
            P('s_add_u32 s%d, s%d, s%d\ns_lshl_b32 s%d, s%d, 13' % (sT5, sBlk, sXin, sT3, sW))
            P.add(trkv + trq)
            lds = self.frag_loads([v(r, 4) for r in xreg], SRD_CL, sT5, 0, flags='sc1')
        nq = 0 if l == 0 else 8
        jobs = []
        for k in range(28):
            if l == 0 and k == 16:
                jobs += [(t, kk) for kk in range(7) for t in 'KV']
            jobs += [('k', k), ('v', k)] + ([('q', k)] if k < nq else [])
        jobs += [('k', 'e'), ('v', 'e')]
        nmain = len(jobs)
        jobs += [('q', k) for k in range(nq, 28)] + ([('q', 'e')] if l else [('Q', kk) for kk in range(7)])
        vo, vb, CSA = RLB, RLB + 4, 208

        def rd(j):
            t, k = jobs[j]
            b = WB + 4 * (j % NB)
            if k == 'e':
                return mk('ds_read_b64 %s, v%d offset:%d\nv_mov_b32 v%d, 0\nv_mov_b32 v%d, 0' % (v(b, 2), vCs, 256 * 'qkv'.index(t), b + 2, b + 3))
            base = {'q': vTrQ, 'k': vTr, 'v': vTrV, 'K': vb, 'V': vb + 1, 'Q': vTr}[t]
            rs = 64 if t in 'qQ' else 128
            return mk('ds_read_b64_tr_b16 %s, v%d offset:%d\nds_read_b64_tr_b16 %s, v%d offset:%d' % (v(b, 2), base, 16 * rs * k, v(b + 2, 2), base, 16 * rs * k + (32 // kh) * rs))
        for j in range(NB):
            P.add(rd(j))
        if l == 1:
            P.add(self.poll_check(sT4))
            P.add(self.stamp('x2_seen'))
            P.add(flat(lds[:o['look']]))
            P('s_add_u32 s%d, s%d, 1\nv_mov_b32 v%d, s%d' % (sNonce, sNonce, vNonce, sNonce))
        P('v_and_b32 v%d, 31, v0\nv_lshlrev_b32 v%d, 3, v%d\nv_add_u32 v%d, %d, v%d' % (vCs, vCs, vCs, vCs, L_CS, vCs))
        slots = []
        for j, (t, k) in enumerate(jobs):
            w = v(WB + 4 * (j % NB), 4)
            if t.isupper():
                sl = mfma(CSA + 16 * (t == 'V'), v(CSA + 16 if t == 'Q' else vo, 4), w, k == 0)
            else:
                x = v(XE if k == 'e' else xreg[k], 4)
                A, B = (w, x) if t == 'q' else (x, w)
                sl = mfma({'q': AQ, 'k': AK, 'v': AV}[t], A, B, k == 0)
            if l == 0 and j == 32 - NB:
                sl += self.late_dots + [wait_tok(self.tok_wq)] + mk('s_waitcnt lgkmcnt(0)\ns_barrier') + (self.stamp('bar2') if self.fine else [])
                sl += mk('s_mul_i32 s%d, s%d, %d\nv_add_u32 v%d, s%d, v%d\nv_add_u32 v%d, s%d, v%d' % (sT0, sW, 7 * 2048, vb, sT0, vTr, vb + 1, sT0, vTrV))
            if j % 2 == 0 and j + 1 < len(jobs) and j + 1 != nmain and o['s1pair']:
                also_waits_for(sl[0], v(WB + 4 * ((j + 1) % NB), 4))
            if j + NB < len(jobs) and not (j < nmain <= j + NB):
                sl += rd(j + NB)
            slots.append(sl)
        if l == 0:
            n = len(self.late_dma)
            for i, g in enumerate(self.late_dma):
                slots[(i * o['latespan']) // n] += g
            r0 = 32 - NB - 7
            slots[r0] += [wait_tok(self.tok_xb)]
            for i, g in enumerate(self.late_rd):
                slots[r0 + i // 2] += g
            slots[29] += mk('\n'.join('v_mov_b32 v%d, 0x3f803f80' % (vo + i) for i in range(4)))
            for i in range(0, len(fin), 4):
                slots[30 + i // 4] += fin[i:i + 4]
            pre, qd = self.wq_dma(175, True)
            self.tok_q = tok(qd[-1][-1])
            for i, g in enumerate([pre] + qd):
                slots[37 + i] += g
            slots[o['tslot']] += self.prefetch(vT, [(SRD_WO, 25)]) + self.touch_attn(0, vT)
            slots[47] += mk('v_and_b32 v%d, 31, v0\nv_lshlrev_b32 v%d, 2, v%d\ns_lshl_b32 s%d, s%d, 8\nv_add_u32 v%d, %d, v%d\nv_add_u32 v%d, s%d, v%d'
                            % (vb, vb, vb, sT0, sW, vb, L_KVB, vb, vb + 1, sT0, vb))
            slots[48] += mk('\n'.join('ds_write_b32 v%d, v%d offset:%d' % (vb + 1, CSA + 16 * t, 128 * t) for t in range(2)))
            slots[50] += mk('s_waitcnt lgkmcnt(0)\ns_barrier')
            for t in range(2):
                r = RLB
                slots[50 + 5 * t] += mk('\n'.join('ds_read_b32 v%d, v%d offset:%d' % (r + ww, vb, 256 * ww + 128 * t) for ww in range(4)))
                slots[53 + 5 * t] += mk('v_add_f32 v%d, v%d, v%d\nv_add_f32 v%d, v%d, v%d\nv_add_f32 v%d, v%d, v%d' % (r, r, r + 1, r + 2, r + 2, r + 3, r, r, r + 2))
                slots[54 + 5 * t] += self.split_w(r + 2, r, r + 1) + mk('ds_write_b64 v%d, %s offset:%d' % (vCs, v(r + 2, 2), 256 * (t + 1)))
        else:
            n = o['look']
            for j in range(0, nmain, 2):
                if n < 28:
                    k_free = n - 20
                    assert k_free < 0 or j >= jobs.index(('q', k_free))
                    slots[j] += lds[n]
                    n += 1
            st = self.frag_loads([v(SB + 4 * (i % 4), 4) for i in range(7)], SRD_CL, sT3, XST_OFF, st=sT1, flags='sc1')
            a0, a1 = o['sta'], o['stb']
            for i in range(4):
                slots[a0 + 2 * i] += st[i]
            ex = []
            for i in range(1, 16):
                ex += mk('v_add_f32 v%d, v%d, v%d' % (vS, vS if i > 1 else SB, SB + i))
            for i in range(0, 15, 2):
                slots[a1 - 8 + i // 2] += ex[i:i + 2]
            for i in range(3):
                slots[a1 + 2 * i] += st[4 + i]
            ex = flat(mk('v_add_f32 v%d, v%d, v%d' % (vS, vS, SB + i)) for i in range(12)) + fin
            e0 = o['stc']
            per = -(-len(ex) // (61 - e0))
            for i in range(61 - e0):
                slots[e0 + i] += ex[i * per:(i + 1) * per]
        RB = [WB + 4 * ((nmain - 4 + g) % NB) for g in range(4)]
        vEps = vT + 1
        slots[nmain - 5] += mk('v_lshrrev_b32 v%d, 5, v0\nv_lshl_add_u32 v%d, v%d, 4, s%d' % (vT + 2, vT + 2, vT + 2, sT4))
        for g in range(4):
            slots[nmain - 4 + g] += mk('ds_read_b128 %s, v%d offset:%d' % (v(RB[g], 4), vT + 2, 32 * g))
        slots[nmain - 1] += mk('v_mov_b32 v%d, 0x3f803f80\nv_add_u32 v%d, s%d, v%d\nv_mov_b32 v%d, %s' % (vPoll, vT, sT4, vL16, vEps, f32(1e-6)))
        vG = SB + 12
        ga = self.kv_lane_addr(vG, vG + 1, vG + 2, gather=True)
        for i in range(0, len(ga), 3):
            slots[(o['stb'] + 1 if l else 60) + i // 3] += ga[i:i + 3]
        P.add(flat(slots[:nmain]))
        P.add(self.stamp('s1_kv_mfma'))
        DK = WB
        for hf in range(2):
            R = lambda i: v(RB[2 * hf + i // 4] + i % 4, 2)
            P.add(self.phi8(AK + 8 * hf, R, RLB, vEps) + self.pack(AK + 4 * hf, AK + 8 * hf, 4))
            P.add(flat(mk('v_pk_mul_f32 %s, %s, %s' % (v(AV + 8 * hf + i, 2), v(AV + 8 * hf + i, 2), R(i))) for i in range(0, 8, 2)))
            P.add(self.pack(AV + 4 * hf, AV + 8 * hf, 4))
            for i in range(4):
                P('v_cndmask_b32 v%d, v%d, v%d, s[%d:%d]' % (AV + 4 * hf + i, AV + 4 * hf + i, vPoll, sN28, sN28 + 1))
        P.add(mfma(DK, v(AK, 4), v(AV, 4), True) + mfma(DK, v(AK + 4, 4), v(AV + 4, 4)))
        P('s_mov_b32 s%d, 0x80808080\ns_mov_b32 s%d, 0x80808080' % (sT0 + 1, sT0 + 2))
        for q in range(4):
            P('ds_write_b128 v%d, %s offset:%d' % (vT, v(DK + 4 * q, 4), 1024 * q))
        P('v_lshlrev_b32 v%d, 3, v0\ns_waitcnt lgkmcnt(0)\ns_barrier' % vT)
        for ww in range(4):
            P('ds_read_b128 %s, v%d offset:%d' % (v(AK + 4 * ww, 4), vG, 4096 * ww))
        if l == 1:
            for j in range(nmain, nmain + NB):
                P.add(rd(j))
        for x, y in ((AK, AK + 4), (AK + 8, AK + 12), (AK, AK + 8)):
            for i in (0, 2):
                P('v_pk_add_f32 %s, %s, %s' % (v(x + i, 2), v(x + i, 2), v(y + i, 2)))
        P.add(self.pack(AK, AK, 2))
        for i in range(2):
            P('v_cndmask_b32 v%d, v%d, v%d, s[%d:%d]' % (AK + i, AK + i, vNonce, sT0 + 1, sT0 + 2))
        P('buffer_store_dwordx2 %s, v%d, %s, s%d offen sc1' % (v(AK, 2), vT, self.srd(SRD_WS), sKvMy))
        P.add(self.stamp('kv_pub'))
        PQ = self.PQ = 104

        def qepi():
            L = []
            for hf in range(2):
                L += self.phi8(AQ + 8 * hf, lambda i: v(vRl, 2) + ' op_sel_hi:[1,0]', 48, vEps) + self.pack(PQ + 4 * hf, AQ + 8 * hf, 4)
            for i in (6, 7):
                L += mk('v_cndmask_b32 v%d, v%d, 0, s[%d:%d]' % (PQ + i, PQ + i, sHalf, sHalf + 1))
            return L
        if l == 0:
            P.add(trq + mk('\n'.join('v_mov_b32 v%d, 0x3f803f80' % (CSA + 16 + i) for i in range(4))))
            P('s_mul_i32 s%d, s%d, %d\nv_add_u32 v%d, s%d, v%d' % (sT0, sW, 7 * 1024, vTr, sT0, vTrQ))
            pre = [wait_tok(self.tok_q)] + mk('s_barrier') + flat(rd(j) for j in range(nmain, nmain + NB))
            va = CSA + 20
            post = mk('v_and_b32 v%d, 31, v0\nv_lshlrev_b32 v%d, 2, v%d\nv_add_u32 v%d, %d, v%d\ns_lshl_b32 s%d, s%d, 7\nv_add_u32 v%d, s%d, v%d\nds_write_b32 v%d, v%d'
                      % (va, va, va, va, L_KVS, va, sT0, sW, va + 1, sT0, va, va + 1, CSA))

            def qfin():
                L = mk('\n'.join('ds_read_b32 v%d, v%d offset:%d' % (WB + 4 + ww, va, 128 * ww) for ww in range(4)))
                L += mk('v_add_f32 v%d, v%d, v%d\nv_add_f32 v%d, v%d, v%d\nv_add_f32 v%d, v%d, v%d' % (WB + 4, WB + 4, WB + 5, WB + 6, WB + 6, WB + 7, WB + 4, WB + 4, WB + 6))
                L += self.split_w(WB, WB + 4, WB + 5) + mk('v_mov_b32 v%d, 0\nv_mov_b32 v%d, 0\nds_write_b64 v%d, %s' % (WB + 2, WB + 3, va + 2, v(WB, 2)))
                return L + mfma(AQ, v(WB, 4), v(XE, 4)) + qepi()
            post += mk('v_mov_b32 v%d, v%d' % (va + 2, vCs))
            self.staging(pre, slots[nmain:], post, qfin)
        else:
            P.add(spread(slots[nmain:], self.kvx_pre(1)))
            P.add(qepi())

    PARK = 140

    def wo_dma(self, vwo):
        wo = [mk('v_lshrrev_b32 v%d, 2, v0\nv_mul_u32_u24 v%d, 896, v%d\nv_and_b32 v%d, 3, v0\nv_lshl_add_u32 v%d, v%d, 4, v%d\ns_lshl_b32 s%d, s%d, 6\nv_add_u32 v%d, s%d, v%d'
                 % (vwo, vwo, vwo, vT, vwo, vT, vwo, sQ0, sM, vwo, sQ0, vwo))
              + mk('s_mul_i32 s%d, s%d, %d\ns_lshl_b32 s%d, s%d, 10\ns_add_u32 s%d, s%d, %d' % (sQ1, sW, 16 * 896, sT3, sW, sT3, sT3, L_WO))]
        for t in range(7):
            wo.append(mk('s_add_u32 m0, s%d, %d\ns_add_u32 s%d, s%d, %d\nbuffer_load_dwordx4 v%d, %s, s%d offen lds' % (sT3, 4096 * t, sQ0, sQ1, t * 64 * 896, vwo, self.srd(SRD_WO), sQ0)))
        last = I('s_mov_b32 s%d, %d\ns_mov_b32 m0, %d\ns_mov_b64 exec, 0xffff\nbuffer_load_dwordx4 v%d, %s, s%d offen lds\ns_mov_b64 exec, -1'
                 % (sQ0, 448 * 896, L_WO + 28672, vwo, self.srd(SRD_WO), sQ0), kind='block', nvm=1, src=[('v', vwo)])
        self.tok_wo = tok(last)
        return wo + [[last]]

    def staging(self, qpre, qslots, qpost, qepi):
        P = self.P
        lskip, ljoin = P.newlabel('Lnostage'), P.newlabel('Lstaged')
        v1a, t0, t1, vp, vb, vb2 = 112, 113, 114, 115, 116, 168
        P('s_cmp_lt_u32 s%d, 14\ns_cselect_b32 s%d, s%d, 0' % (sM, SRD_W1 + 2, SRD_W1 + 2))
        P('v_lshrrev_b32 v%d, 2, v0\nv_mul_u32_u24 v%d, 3584, v%d\nv_and_b32 v%d, 3, v0\nv_lshl_add_u32 v%d, v%d, 4, v%d'
          % (v1a, v1a, v1a, vT, v1a, vT, v1a))
        P('s_lshl_b32 s%d, s%d, 2\ns_add_u32 s%d, s%d, s%d\ns_lshl_b32 s%d, s%d, 6\nv_add_u32 v%d, s%d, v%d' % (sT5, sM, sT5, sT5, sW, sT5, sT5, v1a, sT5, v1a))
        P('s_mul_i32 s%d, s%d, 14336\ns_add_u32 s%d, s%d, %d\ns_mul_i32 s%d, s%d, 21504\ns_mul_i32 s%d, s%d, %d' % (sT3, sW, sT3, sT3, L_EX, sQ1, sW, sWi, sD1, 14 * 16 * 3584))

        def issue(k):
            g = mk('s_add_u32 m0, s%d, %d' % ((sT3, 1024 * k) if k < 14 else (sQ1, 1024 * (k - 14))))
            g += mk('s_add_u32 s%d, s%d, %d' % (sQ0, sWi, k * 16 * 3584) if k < 14 else 's_sub_u32 s%d, %d, s%d' % (sQ0, k * 16 * 3584, sWi))
            g += mk('buffer_load_dwordx4 v%d, %s, s%d offen lds' % (v1a, self.srd(SRD_W1), sQ0))
            return g
        dm = [issue(k) for k in range(28)]
        tk = [tok(g[-1]) for g in dm]
        park = mk('\n'.join('v_accvgpr_read_b32 v%d, a%d' % (160 + i, 216 + i) for i in range(8)))
        park += mk('v_add_u32 v%d, s%d, v%d' % (vp, sQ1, vL16))
        park += flat(mk('ds_read_b128 %s, v%d offset:%d' % (a(self.PARK + 4 * i, 4), vp, 1024 * i)) for i in range(21))
        ht = self.touch([(16, SRD_CL, sHst, b * 114688) for b in range(self.o['htk'])], vT) if self.o['htk'] else []
        P.add(flat(dm[:7]) + qpre + ht + (self.stamp('q_go') if self.fine else []))
        for i, g in enumerate(dm[7:14]):
            qslots[self.o['w1q'] + 2 * i] += g
        P.add(spread(qslots, park) + qpost)
        P('s_lshl_b32 s%d, s%d, 11\ns_add_u32 s%d, s%d, %d' % (sT4, sC, sT4, sT4, WS_XCC))
        P('v_and_b32 v%d, 15, v0\nv_lshlrev_b32 v%d, 7, v%d' % (vPA, vPA, vPA))
        P('buffer_load_dword v%d, v%d, %s, s%d offen sc1' % (vPoll, vPA, self.srd(SRD_WS), sT4))
        P('s_waitcnt lgkmcnt(0)\ns_barrier')
        if self.fine:
            P.add(self.stamp('q_done'))
        vo, D = 124, 128
        ad = self.trbase(t1, 64, 4) + mk('v_add_u32 v%d, s%d, v%d\nv_add_u32 v%d, s%d, v%d' % (t0, sT3, t1, t1, sQ1, t1))
        ad += mk('\n'.join('v_mov_b32 v%d, 0x3f803f80' % (vo + i) for i in range(4)))
        n1 = self.o['w1pre']
        for k in range(14, 14 + n1):
            lb = P.newlabel('Lnw')
            blk = I('s_cmp_ge_u32 s%d, 14\ns_cbranch_scc1 %s\n%s\n%s:' % (sM, lb, '\n'.join(x.text for x in dm[k]), lb), kind='block', nvm=1, src=[('v', v1a)], cost=20)
            blk.tok = tk[k]
            dm[k] = [blk]
        P.add(spread(dm[14:14 + n1], qepi() + ad) if n1 else qepi() + ad)
        P.add(self.stamp('sweep_start') + self.sweep_loads())
        P.add([I('s_cmp_ge_u32 s%d, 14\ns_cbranch_scc1 %s' % (sM, lskip), kind='block')])
        self.ool.append('%s:\ns_waitcnt vmcnt(0)\ns_branch %s' % (lskip, ljoin))
        P('v_and_b32 v%d, 31, v0\nv_lshlrev_b32 v%d, 1, v%d\nbuffer_load_ushort v%d, v%d, %s, s%d offen' % (vT, vT, vT, vb, vT, self.srd(SRD_B1), sT5))
        P('v_lshrrev_b32 v%d, 5, v0\nv_lshlrev_b32 v%d, 3, v%d\ns_lshl_b32 s%d, s%d, 5' % (vT, vT, vT, sT2, sFe))
        P('buffer_load_dwordx2 %s, v%d, %s, s%d offen\nbuffer_load_dwordx2 %s, v%d, %s, s%d offen offset:16'
          % (v(vb2, 2), vT, self.srd(SRD_B2), sT2, v(vb2 + 2, 2), vT, self.srd(SRD_B2), sT2))

        def consume(k):
            va, o = (t0, 1024 * k) if k < 14 else (t1, 1024 * (k - 14))
            L = [wait_tok(tk[k])] + mk('ds_read_b64_tr_b16 %s, v%d offset:%d\nds_read_b64_tr_b16 %s, v%d offset:%d' % (w1half(k, 0), va, o, w1half(k, 1), va, o + 512))
            return L + (mfma(D, v(vo, 4), w1reg(k - 2), k == 2) if k >= 2 else [])
        for k in range(14):
            P.add((dm[14 + n1 + k] if 14 + n1 + k < 28 else []) + consume(k))
        P.label(ljoin)
        P.add([I('s_nop 1', kind='block', states=2)])
        P.add(self.kvx_pre(0))
        l2 = P.newlabel('Lnowo')
        wo = flat(self.wo_dma(117))
        txt, _ = finalize(wo)
        blk = I('s_cmp_ge_u32 s%d, 14\ns_cbranch_scc1 %s\n%s\n%s:' % (sM, l2, '\n'.join(t.strip() for t in txt.split('\n') if t.strip()), l2),
                kind='block', nvm=8, dst=[('v', 117), ('v', vT)], src=[('v', 0)])
        self.tok_wo = tok(blk)
        self.after_kvb = [blk]
        ns = self.o['w1o']
        L = flat(consume(k) for k in range(ns, 28)) + mfma(D, v(vo, 4), w1reg(26)) + mfma(D, v(vo, 4), w1reg(27))
        L += self.unpack(144, vb2, 4) + mk('\n'.join('v_mov_b32 v%d, 0' % r for r in range(152, 156)))
        L += mk('s_lshl_b32 s%d, s%d, 7\ns_add_u32 s%d, s%d, %d\nv_lshrrev_b32 v%d, 5, v0\nv_lshl_add_u32 v%d, v%d, 6, s%d' % (sT0, sW, sT0, sT0, L_B2, vT, vT, vT, sT0))
        for q in range(4):
            L += mk('ds_write_b128 v%d, %s offset:%d' % (vT, v(144 + 4 * min(q, 2), 4), 16 * q))
        L += self.split_w(vW1X, D, vT + 1) + mk('v_lshl_or_b32 v%d, v%d, 16, v%d' % (vb, vb, vb))
        L += mk('v_cndmask_b32 v%d, v%d, v%d, s[%d:%d]\nv_cndmask_b32 v%d, v%d, 0, s[%d:%d]' % (vW1X, vW1X, vb, sHalf, sHalf + 1, vW1X + 1, vW1X + 1, sHalf, sHalf + 1))
        self.after_x1 = L + mk('s_waitcnt lgkmcnt(0)')
        self.after_o = flat(consume(k) for k in range(14, ns)) + self.xsrc() + [wait_tok(self.tok_wo)] + mk('s_waitcnt lgkmcnt(0)\ns_barrier') + flat(self.s2_rd(i) for i in range(4))

    def sweep_loads(self):
        return flat(self.frag_loads([v(32 + 4 * i, 4) for i in range(8)], SRD_WS, sKv, 0, flags='sc1'))

    def w2_prefetch(self, va, first, per):
        m = (1 << per) - 1
        txt = ['s_lshr_b32 s%d, s%d, 3' % (sQ0, sC), 's_mul_i32 s%d, s%d, 14' % (sQ0, sQ0), 's_add_u32 s%d, s%d, s%d' % (sQ0, sQ0, sM),
               's_lshl_b32 s%d, s%d, 2' % (sQ0, sQ0), 's_add_u32 s%d, s%d, s%d' % (sQ0, sQ0, sW), 's_mul_i32 s%d, s%d, %d' % (sQ0, sQ0, per * 128),
               's_add_u32 s%d, s%d, %d' % (sQ0, sQ0, first * 128), 'v_lshlrev_b32 v%d, 7, v0' % va,
               's_mov_b32 exec_lo, 0x%x' % (m & 0xffffffff), 's_mov_b32 exec_hi, 0x%x' % (m >> 32),
               'buffer_load_dword v%d, v%d, %s, s%d offen' % (vDummy, va, self.srd(SRD_W2), sQ0), 's_mov_b64 exec, -1']
        return [I('\n'.join(txt), kind='block', nvm=1, src=[('v', 0)], dst=[('v', va)], cost=52)]

    W2V = (15, 106, 5, 13, 140)

    def w2_addr(self):
        v2a, tA, tB, vp, tS = self.W2V
        L = mk('v_lshrrev_b32 v%d, 3, v0\nv_mul_u32_u24 v%d, 896, v%d\nv_lshrrev_b32 v%d, 2, v0\nv_and_b32 v%d, 4, v%d\nv_xor_b32 v%d, v%d, v0\nv_and_b32 v%d, 7, v%d\nv_lshl_add_u32 v%d, v%d, 4, v%d'
               % (v2a, v2a, v2a, vT, vT, vT, vT, vT, vT, vT, v2a, vT, v2a))
        L += mk('s_lshr_b32 s%d, s%d, 1\ns_lshl_b32 s%d, s%d, 7\ns_mul_i32 s%d, s%d, %d\ns_add_u32 s%d, s%d, s%d\nv_add_u32 v%d, s%d, v%d'
                % (sT0, sM, sT0, sT0, sT2, sW, 32 * 896, sT0, sT0, sT2, v2a, sT0, v2a))
        L += mk('s_mul_i32 s%d, s%d, 7168\ns_add_u32 s%d, s%d, %d\ns_lshl_b32 s%d, s%d, 12\ns_add_u32 s%d, s%d, %d'
                % (sRot, sW, sRot, sRot, L_EX, sQ1, sW, sQ1, sQ1, L_KVS))
        L += mk('s_lshr_b32 s%d, s%d, 1' % (sT0, sW)) + self.trbase(tA, 128, 4, xor16=sT0)
        L += mk('s_and_b32 s%d, s%d, 1\nv_bfe_u32 v%d, v0, 3, 1\nv_xor_b32 v%d, s%d, v%d\nv_lshl_add_u32 v%d, v%d, 6, v%d\nv_xor_b32 v%d, 64, v%d'
                % (sT0, sW, vT, vT, sT0, vT, tA, vT, tA, tA + 1, tA))
        L += mk('s_mul_i32 s%d, s%d, 10240\nv_add_u32 v%d, s%d, v%d\nv_add_u32 v%d, s%d, v%d' % (sWi, sW, tS, sWi, tA, tS + 1, sWi, tA + 1))
        L2 = mk('v_add_u32 v%d, s%d, v%d\nv_add_u32 v%d, s%d, v%d\nv_add_u32 v%d, s%d, v%d\nv_add_u32 v%d, s%d, v%d' % (tB, sQ1, tA, tB + 1, sQ1, tA + 1, tA, sRot, tA, tA + 1, sRot, tA + 1))
        L2 += mk('s_mul_i32 s%d, s%d, 21504\nv_add_u32 v%d, s%d, v%d' % (sT0, sW, vp, sT0, vL16))
        return L, L2

    def w2_steps(self, u0, u1, shadow):
        v2a, tA, tB, vp, tS = self.W2V
        NS = 5

        def where(u):
            n = (u - u0) % NS
            if shadow:
                return sWi, tS, n * 2048
            return (sRot, tA, n * 2048) if n < 3 else (sQ1, tB, (n - 3) * 2048)

        def issue(u):
            out = []
            base, _, o = where(u)
            for i in range(2):
                g = mk('s_add_u32 m0, s%d, %d' % (base, o + 1024 * i))
                g += mk('s_mov_b32 s%d, %d' % (sQ0, (128 * (u // 2) + 16 * (u % 2) + 8 * i) * 896))
                out += g + mk('buffer_load_dwordx4 v%d, %s, s%d offen lds' % (v2a, self.srd(SRD_W2), sQ0))
            return out, tok(out[-1])
        tk, first, steps, prev = {}, [], [], None
        for u in range(u0, min(u0 + NS - 1, u1)):
            g, tk[u] = issue(u)
            first.append(g)
        for u in range(u0, u1):
            _, ta, o = where(u)
            A = []
            if u + NS - 1 < u1:
                if prev:
                    A += [wait_tok(prev)]
                g, tk[u + NS - 1] = issue(u + NS - 1)
                A += g
            B = [wait_tok(tk[u])]
            for js in range(2):
                b = W2A + 8 * u + 4 * js
                B += mk('ds_read_b64_tr_b16 %s, v%d offset:%d\nds_read_b64_tr_b16 %s, v%d offset:%d' % (a(b, 2), ta + js, o, a(b + 2, 2), ta + js, o + 1024))
            prev = tok(B[-1])
            steps.append((A, B))
        return first, steps

    def w2_stage(self, fill, u0, u1, extra):
        P = self.P
        first, steps = self.w2_steps(u0, 28, False)
        P.add(flat(first))
        rest = [mk('ds_write_b128 v%d, %s offset:%d' % (self.W2V[3], a(self.PARK + 4 * i, 4), 1024 * i)) for i in range(21)]
        out, done = [], 0
        for n, (A, B) in enumerate(steps):
            u = u0 + n
            want = sum(1 for i in range(21) if 17 + (i + 1) // 2 <= u)
            out.append((A, rest[done:want], B + extra.get(u, []) + (self.stamp('w2_%d' % u) if self.fine else [])))
            done = want
        P.add(spread([A + flat(R) + B for A, R, B in out[:u1 - u0]], fill, start=0, end=self.o['w2fill']))
        return out[u1 - u0:]

    K10 = 98

    def kvx_pre(self, l):
        L = []
        RES = 160
        if l == 1:
            L += mk('s_add_u32 s%d, s%d, s%d' % (sT0, sOst, sXin))
            for j in range(2):
                L += mk('buffer_load_dwordx4 %s, v%d, %s, s%d offen offset:%d sc1' % (v(RES + 4 * j, 4), vL16, self.srd(SRD_CL), sT0, 1024 * j))
            L += [I('s_mul_i32 s%d, s%d, %d\ns_add_u32 s%d, s%d, s%d\ns_addc_u32 s%d, s%d, 0\ns_sub_u32 s%d, s%d, s%d'
                    % (sT0, sSlow, LOFF, SRD_CL, SRD_CL, sT0, SRD_CL + 1, SRD_CL + 1, SRD_CL + 2, SRD_CL + 2, sT0), kind='block', cost=16)]
        L += [I('s_cmp_eq_u32 s%d, 3\ns_cselect_b32 s%d, 0xffff0000, 0\ns_cselect_b32 s%d, 0xffff0000, 0' % (sW, sPm, sPm + 1), kind='block', cost=12)]
        L += self.kv_lane_addr(self.KA, self.KA + 1, self.KA + 2, gather=False)
        g, t = self.KA + 1, self.KA + 2
        L += mk('\n'.join(['v_bfe_u32 v%d, v0, 3, 1' % g, 'v_and_b32 v%d, 3, v0' % t, 'v_lshl_add_u32 v%d, v%d, 2, v%d' % (g, g, t),
                           'v_cmp_eq_u32 vcc, 7, v%d' % g, 'v_bfe_u32 v%d, v0, 4, 1' % t, 'v_mad_u32_u24 v%d, v%d, 14, v%d' % (g, t, g),
                           'v_bfe_u32 v%d, v0, 2, 1' % t, 'v_mad_u32_u24 v%d, v%d, 7, v%d' % (g, t, g), 'v_cndmask_b32 v%d, v%d, 28, vcc' % (g, g),
                           'v_and_b32 v%d, 32, v0' % t, 'v_add_u32 v%d, v%d, v%d' % (g, g, t), 'v_lshlrev_b32 v%d, 5, v%d' % (g, g), 'v_add_u32 v%d, %d, v%d' % (g, L_KVB, g)]))
        L += mk('s_and_b32 s%d, s%d, 0x1fff\ns_or_b32 s%d, s%d, 0x4000\ns_lshl_b32 s%d, s%d, 16' % (sTag, sNonce, sTag, sTag, sTag + 1, sTag))
        L += mk('v_mov_b32 v%d, 0x3f80\nv_mov_b32 v%d, 0x3f800000' % (self.K10, self.K10 + 1))
        return L

    KA = 100

    def kvx(self, l):
        P = self.P
        P.comment('==== layer %d : kv exchange' % l)
        if l == 0:
            lw, lb = P.newlabel('Lxcc'), P.newlabel('Lxok')
            P('v_subrev_u32 v%d, s%d, v%d\nv_cmp_lt_u32 vcc, 15, v%d' % (vPoll, sNonce, vPoll, vPoll))
            P.add([I('s_cbranch_vccnz %s\n%s:' % (lw, lb), kind='block')])
            self.ool.append('\n'.join([
                lw + ':',
                'buffer_load_dword v%d, v%d, %s, s%d offen sc1' % (vPoll, vPA, self.srd(SRD_WS), sT4),
                's_add_u32 s%d, s%d, 1' % (sSpin, sSpin),
                's_cmp_gt_u32 s%d, 0x40000' % sSpin,
                's_cbranch_scc1 L_end',
                's_waitcnt vmcnt(0)',
                'v_subrev_u32 v%d, s%d, v%d' % (vPoll, sNonce, vPoll),
                'v_cmp_lt_u32 vcc, 15, v%d' % vPoll,
                's_cbranch_vccnz %s' % lw,
                's_branch %s' % lb]))
            P('v_cmp_ne_u32 vcc, s%d, v%d\ns_cmp_lg_u64 vcc, 0\ns_cselect_b32 s%d, 1, 0\ns_mov_b32 s%d, %d\ns_cselect_b32 s%d, %d, s%d' % (sXcc, vPoll, sSlow, sXin, X1_OFF if self.o['alias'] else XIN_OFF, sXin, XIN_OFF, sXin))
        K10, K01 = self.K10, self.K10 + 1
        if l == 1:
            if self.o['kvdelay']:
                P('s_sleep %d' % self.o['kvdelay'])
            P.add(self.stamp('sweep_start') + self.sweep_loads())
        P('v_and_b32 v%d, 15, v0\nv_lshlrev_b32 v%d, 11, v%d\nv_add_u32 v%d, 2044, v%d' % (vPA, vPA, vPA, vPA, vPA))
        P.add(self.trbase(vTr, 64, 7, add=L_WO))
        P.add(self.s2_pre(l))
        P('s_mov_b32 s%d, 0x88888888\ns_mov_b32 s%d, 0x88888888' % (sPm, sPm + 1))
        lsw, lre = P.newlabel('Lsweep'), P.newlabel('Lresweep')
        P.label(lsw)
        B = 32
        bad, S = vT, 64
        P('v_mov_b32 v%d, 0' % bad)
        for i in range(8):
            for k in range(4):
                for hh, K in enumerate((K10, K01)):
                    P('v_dot2_f32_bf16 v%d, v%d, v%d, %s' % (S + 2 * k + hh, B + 4 * i + k, K, 'v%d' % (S + 2 * k + hh) if i else '0'))
            for k in (2, 3):
                P('v_bitop3_b32 v%d, v%d, s%d, v%d bitop3:0xbe' % (bad, B + 4 * i + k, sNonce, bad))
        P('v_cmp_ne_u32 vcc, 0, v%d\ns_and_b64 vcc, vcc, s[%d:%d]' % (bad, sPm, sPm + 1))
        P.add([I('s_cbranch_vccnz %s' % lre, kind='block', states=1)])
        self.ool.append('%s:\ns_sleep 6\ns_add_u32 s%d, s%d, 1\ns_cmp_gt_u32 s%d, 0x40000\ns_cbranch_scc1 L_end\n%s\ns_waitcnt vmcnt(0)\ns_branch %s'
                        % (lre, sSpin, sSpin, sSpin, '\n'.join(x.text for x in self.sweep_loads()), lsw))
        P.add(self.stamp('sweep_done'))
        for k in range(4):
            P('v_permlane32_swap_b32 v%d, v%d' % (S + k, S + 4 + k))
        for k in (0, 2):
            P('v_pk_add_f32 %s, %s, %s' % (v(S + k, 2), v(S + k, 2), v(S + 4 + k, 2)))
        P.add(self.pack(S, S, 2))
        P('ds_write_b64 v%d, %s' % (self.KA, v(S, 2)))
        P('s_waitcnt lgkmcnt(0)\ns_barrier')
        KF, D = 72, 80
        P('ds_read_b128 %s, v%d\nds_read_b128 %s, v%d offset:16' % (v(KF, 4), self.KA + 1, v(KF + 4, 4), self.KA + 1))
        P.add(flat(self.s2_rd(i) for i in range(4)) if l else self.after_kvb)
        P.add(mfma(D, v(KF, 4), v(self.PQ, 4), True))
        for i in (6, 7):
            P('v_cndmask_b32 v%d, v%d, 0, s[%d:%d]' % (KF + i, KF + i, sHalf, sHalf + 1))
        P.add(mfma(D, v(KF + 4, 4), v(self.PQ + 4, 4)))
        t1 = 120
        P('v_add_f32 v%d, %s, v%d\nv_rcp_f32 v%d, v%d\nv_mul_f32 v%d, s%d, v%d' % (t1, f32(1e-6), D + 7, t1, t1, t1, sLn2, t1))
        for r in range(0, 16, 2):
            P('v_pk_mul_f32 %s, %s, %s op_sel_hi:[1,0]' % (v(D + r, 2), v(D + r, 2), v(t1, 2)))
        P('v_mov_b32 v%d, s%d\nv_mov_b32 v%d, s%d' % (D + 7, sTag + 1, D + 15, sTag + 1))
        P.add(self.pack(D, D, 8))
        st = self.stores(['buffer_store_dwordx4 %s, v%d, %s, s%d offen offset:%d' % (v(D + 4 * j, 4), vL16, self.srd(SRD_CL), sOst, 1024 * j) for j in range(2)])
        P.add(st)
        P.add(self.stamp('o_pub'))

    def s2_rd(self, i):
        WB, o = 144 + 4 * (i % 4), 1792 * (i // 2) + 896 * (i % 2)
        return mk('ds_read_b64_tr_b16 %s, v%d offset:%d\nds_read_b64_tr_b16 %s, v%d offset:%d' % (v(WB, 2), vTr, o, v(WB + 2, 2), vTr, o + 256))

    def s2_pre(self, l):
        L = self.s4_consts(l)
        L += mk('s_add_u32 s%d, s%d, %d' % (sT4, sOst, X1_OFF))
        L += mk('s_lshr_b32 s%d, s%d, 2\ns_lshl_b32 s%d, s%d, 10\ns_and_b32 s%d, s%d, 3\ns_lshl_b32 s%d, s%d, 2\ns_add_u32 s%d, s%d, s%d\ns_add_u32 s%d, s%d, s%d\ns_add_u32 s%d, s%d, %d'
                % (sT5, sM, sT5, sT5, sT1, sM, sT1, sT1, sT5, sT5, sT1, sT5, sT5, sBlk, sT5, sT5, X1_OFF + 28672))
        return L + self.unpack(16, 160, 8)

    def s2(self, l):
        P = self.P
        o = self.o
        P.comment('==== layer %d : S2' % l)
        ACC, OF, WB, RES = 16, 32, 144, 160
        NB = 4
        lre, lfail = P.newlabel('Ls2'), P.newlabel('Ls2again')
        if l == 0:
            P.add(self.after_o)
        P.label(lre)
        P.add(self.poll_issue(sBlk, o['pdo'] if l else 0))
        rd = self.s2_rd
        bad = vT
        P('v_mov_b32 v%d, 0' % bad)
        P.add(self.poll_check(sBlk, tag=True))
        P.add(self.stamp('o_seen'))
        oreg = [OF + 4 * (i % (28 if l else 18)) for i in range(32)]
        lds = self.frag_loads([v(r, 4) for r in oreg], SRD_CL, sBlk, O_OFF, flags='sc1')
        n = o['look2']
        P.add(flat(lds[:n]))
        chk = lambda i: mk('v_bitop3_b32 v%d, v%d, s%d, v%d bitop3:0xbe\nv_and_b32 v%d, 0xffff, v%d' % (bad, oreg[i] + 3, sTag + 1, bad, oreg[i] + 3, oreg[i] + 3))
        P.add(chk(0))
        for i in range(32):
            if i + n < 32:
                P.add(lds[i + n])
            P.add(mfma(ACC, v(WB + 4 * (i % NB), 4), v(oreg[i], 4)))
            if self.fine and i in (0, 8, 16, 31):
                P.add(self.stamp('s2_%d' % i))
            if i + NB < 32:
                P.add(rd(i + NB))
            if i + 1 < 32:
                P.add(chk(i + 1))
            if i == 28:
                P.add(self.pa(14, blocks=True, reg=vT + 2))
        P('v_cmp_lt_u32 vcc, 0xffff, v%d' % bad)
        P.add([I('s_cbranch_vccnz %s' % lfail, kind='block', states=1)])
        again = '\n'.join(x.text for x in self.unpack(ACC, RES, 8) + flat(rd(i) for i in range(NB)))
        self.ool.append('%s:\ns_add_u32 s%d, s%d, 1\ns_cmp_gt_u32 s%d, 0x40000\ns_cbranch_scc1 L_end\ns_nop 15\n%s\ns_waitcnt lgkmcnt(0)\ns_branch %s'
                        % (lfail, sSpin, sSpin, sSpin, again, lre))
        P('v_mov_b32 v%d, v%d' % (vPA, vT + 2))
        P.add(self.pack(OF, ACC, 8))
        P.add(self.stores(['buffer_store_dwordx4 %s, v%d, %s, s%d offen offset:%d' % (v(OF + 4 * j, 4), vL16, self.srd(SRD_CL), sT4, 1024 * j) for j in range(2)]))
        P.add(self.row_stats(OF, 8, vT, vT + 2))
        st = self.stores(['buffer_store_dword v%d, v%d, %s, s%d offen' % (vT, vL16, self.srd(SRD_CL), sT5)])
        tk = tok(st[-1])
        P.add(st)
        if self.fine:
            P.add(self.stamp('x1_st'))
        P.add(self.flag([tk], sFoMy, FX1 - FO))
        P.add(self.stamp('x1_pub'))

    def gelu(self, acc, KK, T):
        pr = range(0, 16, 2)
        A = flat(mk('v_pk_mul_f32 %s, %s, %s' % (v(T + i, 2), v(acc + i, 2), v(acc + i, 2))) for i in pr)
        A += flat(mk('v_pk_fma_f32 %s, %s, %s, %s op_sel:[0,1,0] op_sel_hi:[1,1,0]' % (v(T + i, 2), v(T + i, 2), v(KK, 2), v(KK, 2))) for i in pr)
        A += flat(mk('v_pk_mul_f32 %s, %s, %s' % (v(T + i, 2), v(T + i, 2), v(acc + i, 2))) for i in pr)
        E = flat(mk('v_exp_f32 v%d, v%d' % (T + i, T + i)) for i in range(16))
        B = flat(mk('v_pk_fma_f32 %s, %s, %s, %s op_sel_hi:[1,0,0]' % (v(T + i, 2), v(T + i, 2), v(KK + 2, 2), v(KK + 2, 2))) for i in pr)
        R = flat(mk('v_rcp_f32 v%d, v%d' % (T + i, T + i)) for i in range(16))
        C = flat(mk('v_pk_mul_f32 %s, %s, %s' % (v(acc + i, 2), v(acc + i, 2), v(T + i, 2))) for i in pr)
        pk = self.pack(acc, acc, 8)
        g4 = lambda f, g: flat(mk(f(4 * g + i)) for i in range(4))
        e = lambda g: E[4 * g:4 * g + 4]
        r = lambda g: R[4 * g:4 * g + 4]
        b = lambda g: g4(lambda i: 'v_fma_f32 v%d, v%d, v%d, v%d' % (T + i, T + i, KK + 2, KK + 2), g)
        c = lambda g: g4(lambda i: 'v_mul_f32 v%d, v%d, v%d' % (acc + i, acc + i, T + i), g) + pk[2 * g:2 * g + 2]
        tail = e(0) + e(1) + b(0) + r(0) + e(2) + b(1) + c(0) + r(1) + e(3) + b(2) + c(1) + r(2) + b(3) + c(2) + r(3) + c(3)
        return A, A + E + B + R + C + pk, tail

    XSRC = (4, 5, 6, 7, 8, 9, 10, 11, 12, 13, 14, 15, 20, 21)

    def xsrc(self):
        L = mk('s_lshl_b32 s%d, s%d, 1\ns_mul_i32 s%d, s%d, 14\ns_add_u32 s%d, s%d, s%d\ns_mov_b32 s%d, %d' % (sT0, sW, sT1, sD1, sT1, sT1, sT0, sT2, X1_OFF))
        for c, r in enumerate(self.XSRC):
            if c:
                L += mk('s_add_u32 s%d, s%d, 8\ns_cmp_ge_u32 s%d, 28\ns_cselect_b32 s%d, 28, 0\ns_cselect_b32 s%d, 0x8000, 0\ns_sub_u32 s%d, s%d, s%d\ns_add_u32 s%d, s%d, s%d'
                        % (sT0, sT0, sT0, sT3, r, sT0, sT0, sT3, sT2, sT2, r))
                L += mk('s_add_u32 s%d, s%d, 8\ns_cmp_ge_u32 s%d, 28\ns_cselect_b32 s%d, 28, 0\ns_sub_u32 s%d, s%d, s%d' % (sT1, sT1, sT1, sT3, sT1, sT1, sT3))
            L += mk('s_lshl_b32 s%d, s%d, 10\ns_add_u32 s%d, s%d, s%d' % (r, sT1, r, r, sT2))
        return L

    SEL = 172

    def s4_consts(self, l):
        U, SEL = 120, self.SEL
        sel = mk('\n'.join(['v_lshrrev_b32 v%d, 5, v0' % SEL,
                             'v_lshlrev_b32 v%d, 2, v%d' % (SEL, SEL), 'v_and_b32 v%d, 31, v0' % (SEL + 1), 'v_sub_u32 v%d, v%d, v%d' % (U, SEL + 1, SEL),
                             'v_mov_b32 v%d, 0x3f80' % (U + 1), 'v_mov_b32 v%d, 0x3f800000' % (U + 2)]))
        for q, r0 in enumerate((0, 2, 8, 10)):
            sel += mk('v_cmp_eq_u32 vcc, %d, v%d\nv_cmp_eq_u32 s[%d:%d], %d, v%d\ns_nop 0\nv_cndmask_b32 v%d, 0, v%d, vcc\nv_cndmask_b32 v%d, v%d, v%d, s[%d:%d]'
                      % (r0, U, sPm, sPm + 1, r0 + 1, U, SEL + q, U + 1, SEL + q, SEL + q, U + 2, sPm, sPm + 1))
        for q, sB in enumerate((sEb, sLb)):
            sel += mk('s_lshl_b32 s%d, s%d, 15\ns_lshl_b32 s%d, s%d, 10\ns_add_u32 s%d, s%d, s%d\ns_add_u32 s%d, s%d, %d' % (sT0, sB, sT2, sFe, sT0, sT0, sT2, sRes + q, sT0, X1_OFF))
            if l == 0:
                sel += mk('s_add_u32 s%d, s%d, s%d\ns_lshl_b32 s%d, s%d, 13' % (sFin + q, sT0, sXin, sT0, sB))
                sel += mk('s_lshr_b32 s%d, s%d, 2\ns_lshl_b32 s%d, s%d, 10\ns_add_u32 s%d, s%d, s%d\ns_and_b32 s%d, s%d, 3\ns_lshl_b32 s%d, s%d, 2\ns_add_u32 s%d, s%d, s%d\ns_add_u32 s%d, s%d, %d'
                          % (sT2, sFe, sT2, sT2, sT0, sT0, sT2, sT2, sFe, sT2, sT2, sT0, sT0, sT2, sFin + 2 + q, sT0, XST_OFF))
                sel += mk('s_lshl_b32 s%d, s%d, 5\ns_add_u32 s%d, s%d, s%d\ns_lshl_b32 s%d, s%d, 2\ns_add_u32 s%d, s%d, %d' % (sT2, sB, sT2, sT2, sFe, sT2, sT2, sFin + 4 + q, sT2, FXIN))
            else:
                sel += mk('s_lshl_b32 s%d, s%d, 2\ns_add_u32 s%d, s%d, s%d\ns_mul_i32 s%d, s%d, %d\ns_lshl_b32 s%d, s%d, 5\ns_add_u32 s%d, s%d, s%d'
                          % (sT0, sC, sT0, sT0, sB, sT0, sT0, 32 * 896, sT2, sFe, sFin + q, sT0, sT2))

        return sel

    def mlp(self, l):
        P = self.P
        o = self.o
        P.comment('==== layer %d : MLP' % l)
        ACC = (16, 32)
        XB, EXB, WEX, T, RING = 48, 72, 76, 80, 108
        KK = (96, 100)
        SEL, vB2, vX2 = self.SEL, 104, 105
        NB = 6
        if l == 0:
            P.add(self.after_x1)
        P('s_mov_b32 s%d, %d' % (sT4, FX1))
        if not o['p1']:
            P.add(self.poll_issue(sT4, o['pdx']))
        P('s_lshl_b32 s%d, s%d, 11' % (sT5, sW))
        P('v_mov_b32 v%d, v%d\nv_mov_b32 v%d, v%d' % (WEX, vW1X, WEX + 1, vW1X + 1))
        P('\n'.join('v_mov_b32 v%d, 0' % r for r in (WEX + 2, WEX + 3, EXB + 2, EXB + 3)))
        vE8, vK16 = vTr, vT + 3
        P('v_lshlrev_b32 v%d, 3, v0\nv_add_u32 v%d, %d, v%d' % (vE8, vE8, L_KVS, vE8))
        P('v_and_b32 v%d, 31, v0\nv_lshlrev_b32 v%d, 4, v%d\nv_add_u32 v%d, %d, v%d' % (vK16, vK16, vK16, vK16, L_KVS + 512, vK16))
        P('v_add_u32 v%d, %d, v%d' % (vX2, 56 * 1024, vL16))
        P('s_lshl_b32 s%d, s%d, 7\ns_add_u32 s%d, s%d, %d\nv_lshrrev_b32 v%d, 5, v0\nv_lshl_add_u32 v%d, v%d, 6, s%d' % (sT3, sW, sT3, sT3, L_B2, vB2, vB2, vB2, sT3))
        P('s_add_u32 s%d, s%d, %d' % (sT1, sBlk, X1_OFF + 28672))
        if o['p1']:
            lq = P.newlabel('Lnp')
            c = self.poll_check(sT4)[0]
            P.add([I('s_cmp_lg_u32 s%d, 0\ns_cbranch_scc1 %s\n%s\ns_waitcnt vmcnt(0)\n%s\n%s:\ns_barrier'
                     % (sW, lq, '\n'.join(x.text for x in self.poll_issue(sT4, o['pdx'] if l else 0)), c.text, lq), kind='block', src=[('v', vPA)], dst=c.dst, states=2)])
        else:
            P.add(self.poll_check(sT4))
        P.add(self.stamp('x1_seen'))
        xd, tc = [], []
        for c, r in enumerate(self.XSRC):
            g = mk('s_add_u32 m0, s%d, %d' % (sT5, 8192 * c))
            g += mk('buffer_load_dwordx4 v%d, %s, s%d offen sc1 lds\nbuffer_load_dwordx4 v%d, %s, s%d offen offset:1024 sc1 lds' % (vL16, self.srd(SRD_CL), r, vL16, self.srd(SRD_CL), r))
            tc.append(tok(g[-1]))
            xd.append(g)
        stl = [mk('buffer_load_dwordx4 %s, v%d, %s, s%d offen offset:%d sc1' % (v(RING + 4 * i, 4), vL16, self.srd(SRD_CL), sT1, 1024 * i)) for i in range(4)]
        sp = o['stpos']
        P.add({0: flat(stl) + xd[0] + xd[1], 1: xd[0] + xd[1] + flat(stl), 2: xd[0] + xd[1], 3: xd[0] + flat(stl[:2]) + xd[1]}[sp])
        K0 = KK[1]
        st0 = []
        for x, y in ((0, 1), (2, 3), (4, 5), (6, 7), (8, 9), (10, 11), (12, 13), (0, 2), (4, 6), (8, 10), (0, 4), (8, 12)):
            st0 += mk('v_add_f32 v%d, v%d, v%d' % (RING + x, RING + x, RING + y))
        st0 += mk('v_add_f32 v%d, v%d, v%d' % (T, RING, RING + 8))
        st0 += self.stats_finish(T, True)
        st0 += mk('\n'.join(['v_rcp_f32 v%d, v%d' % (K0 + 2, vRl),
                             'v_mul_f32 v%d, s%d, v%d' % (K0, sC0, vRl),
                             'v_mul_f32 v%d, v%d, v%d' % (T, vRl, vRl),
                             'v_mul_f32 v%d, s%d, v%d' % (K0 + 1, sC1, vRl),
                             'v_mul_f32 v%d, v%d, v%d' % (K0 + 1, K0 + 1, T),
                             'v_sub_f32 v%d, 0, v%d' % (vMean, vMean),
                             'v_cndmask_b32 v%d, v%d, v%d, s[%d:%d]' % (vMean, vMean, K0 + 2, sHalf, sHalf + 1)]))
        st0 += self.split_act(T + 2, vMean, T)
        st0 += mk('s_lshl_b32 s%d, s%d, 10\nv_add_u32 v%d, s%d, v%d\nv_add_u32 v%d, s%d, v%d' % (sT4, sW, vT, sT4, vE8, vT + 1, sT4, vK16))
        st0 += mk('ds_write_b64 v%d, %s\nds_write_b128 v%d, %s' % (vT, v(T + 2, 2), vT + 1, v(K0, 4)))
        tst = tok(st0[-1])

        def hpub(b):
            pre = mk('s_add_u32 s%d, s%d, %d' % (sT4, sHst, b * 114688))
            st = self.stores(['buffer_store_dwordx4 %s, v%d, %s, s%d offen offset:%d' % (v(ACC[b & 1] + 4 * j, 4), vL16, self.srd(SRD_CL), sT4, 1024 * j) for j in range(2)])
            return pre + st, tok(st[-1])
        hflag = lambda b, tk: self.flag([tk], sFoMy, FH - FO + 512 * b)
        extrd = lambda b: mk('ds_read_b64 %s, v%d offset:%d\nds_read_b128 %s, v%d offset:%d' % (v(EXB, 2), vE8, 1024 * b, v(KK[b & 1], 4), vK16, 1024 * b))
        extmf = lambda b: mfma(ACC[b & 1], v(WEX, 4), v(EXB, 4))
        hreg = [RING + 4 * (i % 16) for i in range(56)]

        def hload(i):
            blk, kap = divmod(i, 28)
            g = mk('s_add_u32 s%d, s%d, %d' % (sHs, (sHE, sHL)[blk], 8192 * (kap // 2))) if kap % 2 == 0 else []
            return g + mk('buffer_load_dwordx4 %s, v%d, %s, s%d offen offset:%d sc1' % (v(hreg[i], 4), vL16, self.srd(SRD_CL), sHs, 1024 * (kap % 2)))
        P.add([wait_tok(tc[0])])
        P('s_barrier')
        P.add(self.stamp('s3_b0'))
        rdj = lambda j: mk('ds_read_b128 %s, v%d offset:%d' % (v(XB + 4 * (j % NB), 4), vL16 if j < 56 else vX2, 1024 * (j % 56)))
        for j in range(NB):
            P.add(rdj(j))
        isl = lambda c: 0 if c == 2 else o['x0'] + (o['xstep'] * (c - 3)) // 2
        bars, cov = {}, 0
        for c in range(1, 14):
            sj = 8 * c - 5
            if c > cov or sj in (27, 43):
                cov = max([c] + [d for d in range(3, 14) if isl(d) + o['xlag'] <= sj])
                bars[sj] = [tc[cov]] + ([tst] if sj == 27 else [])
        slots = []
        for j in range(112):
            b, k = divmod(j, 28)
            sl = mfma(ACC[b & 1], w1reg(k), v(XB + 4 * (j % NB), 4), k == 0)
            if k % 2 == 0:
                also_waits_for(sl[0], v(XB + 4 * ((j + 1) % NB), 4))
            if j in bars:
                sl += (self.stamp('pb%d' % j) if self.fine else []) + [wait_tok(*bars[j])] + mk('s_barrier') + (self.stamp('ab%d' % j) if self.fine else [])
            if k % 2 == 1:
                for jj in (j + NB - 1, j + NB):
                    if jj < 112:
                        sl += rdj(jj)
            if (k == 25 and b) or j == 27:
                sl += extrd(b)
            if (k == 27 and b) or j == 30:
                sl += extmf(b if k == 27 else 0)
            slots.append(sl)
        slots[0] += stl[0] + stl[1] if sp == 2 else []
        slots[1 if sp == 2 else 0] += xd[2]
        slots[3 if sp == 2 else 2] += stl[2] + stl[3] if sp >= 2 else []
        for c in range(3, 14):
            slots[isl(c)] += xd[c]
        pre0, pre1 = self.w2_addr() if l == 0 else ([], [])
        slots[26] += pre1
        nsh = o['nsh'] if l == 0 else 0
        if nsh:
            first, steps = self.w2_steps(0, nsh, True)
            p0 = o['sh0']
            for i, g in enumerate(first):
                slots[p0 + 2 * i] += g
            p1 = p0 + 2 * len(first) + o['shgap']
            for n, (A, B) in enumerate(steps):
                sj = p1 + (n * (110 - p1)) // nsh
                slots[sj] += A
                slots[sj + 1] += B
            if o['idlew2'] < 13:
                slots[o['pf2']] += self.w2_prefetch(vT, 1024 * o['idlew2'], -(-(12544 - 1024 * o['idlew2']) // 112))
        out = spread(slots[:o['st0']], pre0) + spread(slots[o['st0']:o['st1']], st0) + flat(slots[o['st1']:28])
        pend = None
        for b in range(1, 4):
            gA, _, tail = self.gelu(ACC[(b - 1) & 1], KK[(b - 1) & 1], T)
            s0 = 28 * b + (5 if b == 1 else 2)
            st, nxt = hpub(b - 1)
            if l == 0 and b < 3 and not nsh:
                st = st + self.w2_prefetch(vT, (b - 1) * 6272, 56)
            slots[s0] += gA
            if pend is not None and l == 1:
                slots[28 * b + o['flagpos']] += hflag(b - 2, pend)
            pend = nxt
            if b == 3 and l == 1:
                slots[84 + o['pollE']] += self.pa(14) + self.poll_issue(sPE)
                n3 = o['n3']
                slots[112 - n3] += (self.stamp('preE') if self.fine else []) + self.poll_check(sPE) + (self.stamp('gotE') if self.fine else [])
                for i in range(n3):
                    slots[112 - n3 + i] += hload(i)
            if b == 1 or self.fine:
                out += self.stamp('s3_b%d' % b)
            out += flat(slots[28 * b:s0 + 1]) + spread(slots[s0 + 1:28 * b + 28], tail + st, end=28 * b + o['gend'] - s0)
        P.add(out)
        P('s_waitcnt lgkmcnt(0)\ns_barrier')
        P.add(self.stamp('s3_end'))
        AE, AL, RX, RS = 48, 16, 80, 96
        vEW, vER = (vTr, vT, vT + 1), vT + 3
        resid = lambda q: mk('buffer_load_dwordx4 %s, v%d, %s, s%d offen sc1' % (v(RS, 4), vL16, self.srd(SRD_CL), sRes + q))
        cinit = lambda A: flat(mk('ds_read_b128 %s, v%d offset:%d' % (v(A + 4 * q, 4), vB2, 16 * q)) for q in range(4))
        ad = []
        for n, x in enumerate((2, 1, 3)):
            ad += mk('s_xor_b32 s%d, s%d, %d\ns_mul_i32 s%d, s%d, 6144\ns_add_u32 s%d, s%d, %d\nv_add_u32 v%d, s%d, v%d'
                     % (sT3, sW, x, sT3, sT3, sT3, sT3, L_EX + 2048 * (x - 1), vEW[n], sT3, vL16))
        ad += mk('s_mul_i32 s%d, s%d, 6144\ns_add_u32 s%d, s%d, %d\nv_add_u32 v%d, s%d, v%d' % (sT3, sW, sT3, sT3, L_EX, vER, sT3, vL16))
        gA, gall, _ = self.gelu(ACC[1], KK[1], T)
        st, p3 = hpub(3)
        npre = o['npre']
        if l == 0:
            npre, u1 = o['npre0'], o['w2u1']
            fl = hflag(0, pend) + hflag(1, pend) + hflag(2, pend)
            w2rest = self.w2_stage(gall[:o['flat']] + fl + gall[o['flat']:] + st, nsh, u1, {u1 - 2: self.pa(14) + self.poll_issue(sPE)})
            P.add(cinit(AE) + self.poll_check(sPE) + resid(0) + flat(hload(i) for i in range(npre)))
        else:
            P.add(spread([resid(0)] + [hload(i) for i in range(o['n3'], npre)], gall[:40] + hflag(2, pend) + cinit(AE) + gall[40:] + st))
        if self.fine:
            P.add(self.stamp('g3_end'))

        exch_write = lambda A: flat(mk('ds_write_b128 v%d, %s\nds_write_b128 v%d, %s offset:1024' % (vEW[n], v(r, 4), vEW[n], v(r + 4, 4)))
                                    for n, r in enumerate((A + 8, A + 16, A + 24)))
        exch_read = lambda: flat(mk('ds_read_b128 %s, v%d offset:%d' % (v(RX + 4 * q, 4), vER, 1024 * q)) for q in range(6))

        def addv(d, x, y, n, pk):
            if pk:
                return flat(mk('v_pk_add_f32 %s, %s, %s' % (v(d + i, 2), v(x + i, 2), v(y + i, 2))) for i in range(0, n, 2))
            return flat(mk('v_add_f32 v%d, v%d, v%d' % (d + i, x + i, y + i)) for i in range(n))

        def finish(A, q, pk):
            L = addv(A, A, RX, 8, pk) + addv(RX + 8, RX + 8, RX + 16, 8, pk) + addv(A, A, RX + 8, 8, pk) + self.pack(A, A, 4)
            if l == 0:
                L += self.stores(['buffer_store_dwordx4 %s, v%d, %s, s%d offen' % (v(A, 4), vL16, self.srd(SRD_CL), sFin + q)])
                rs = self.row_stats(A, 4, RX, RX + 2)
                blk = I('\n'.join(x.text for x in rs[:9]), kind='block', src=[r for x in rs[:9] for r in x.src], dst=[('v', RX), ('v', RX + 1), ('v', RX + 2)], states=1, cost=60)
                L += [blk] + mk('s_nop 2') + rs[9:]
                st = self.stores(['buffer_store_dword v%d, v%d, %s, s%d offen' % (RX, vL16, self.srd(SRD_CL), sFin + 2 + q)])
                tk = tok(st[-1])
                return L + st, self.flag([tk], sFin + 4 + q)
            L += mk('v_permlane32_swap_b32 v%d, v%d\nv_permlane32_swap_b32 v%d, v%d' % (A, A + 2, A + 1, A + 3))
            L += mk('buffer_store_dwordx4 %s, v%d, %s, s%d offen %s' % (v(A, 4), vPA, self.srd(SRD_OUT), sFin + q, ('', 'sc1', 'nt', 'sc0 sc1')[o['outf']]))
            return L, []

        slots = []
        nt = o['ntail']
        order = [(i, js) for i in range(56 - nt) for js in range(2)] + [(i, 1) for i in range(56 - nt, 56)] + [(i, 0) for i in range(56 - nt, 56)]
        for i, js in order:
            blk, kap = divmod(i, 28)
            A = (AE, AL)[blk]
            sl = mfma(A, v(SEL, 4), v(RS, 4)) if kap == 0 and js == 0 else []
            slots.append(sl + mfma(A + 16 * js, a(W2A + 8 * kap + 4 * js, 4), v(hreg[i], 4), kap == 0 and js == 1))
        sidx = 0
        for i in range(npre, 56):
            sidx = max(sidx, 2 * (i - 16) + 1 if i >= 16 else 0)
            if i == 28:
                sidx = max(sidx, o['lateL'])
                slots[sidx] += (self.stamp('preL') if self.fine else []) + self.poll_check(sPL) + (self.stamp('gotL') if self.fine else [])
            slots[sidx] += hload(i)
            assert sidx <= 2 * i - 6
            sidx += 1 if 2 * (i + 1) - sidx - 2 < o['lead'] else 2
        if l == 0:
            for n, (A, R, B) in enumerate(w2rest):
                sj = 1 + o['w2sp'] * n
                slots[sj] += A
                for i, g in enumerate(R):
                    slots[sj + i] += g
                slots[sj + len(R)] += B
                assert sj + len(R) <= 2 * (u1 + n) - 4
        if True:
            slots[o['flag3'] if l else o['flag30']] += (self.stamp('preF') if self.fine else []) + hflag(3, p3) + (self.stamp('gotF') if self.fine else [])
        slots[o['pollL']] += self.poll_issue(sPL)
        for i in range(0, len(ad), 4):
            slots[2 * (i // 4) + 30] += ad[i:i + 4]
        slots[40] += resid(1)
        if l == 0:
            slots[52] += mk('s_waitcnt lgkmcnt(0)\ns_barrier')
        slots[46] += cinit(AL)
        if l == 1:
            slots[44] += mk('v_and_b32 v%d, 31, v0\nv_mul_u32_u24 v%d, 896, v%d\nv_lshrrev_b32 v%d, 5, v0\nv_lshl_add_u32 v%d, v%d, 4, v%d'
                            % (vPA, vPA, vPA, vPoll, vPA, vPoll, vPA))
        P.add(flat(slots[:56]))
        P.add(self.stamp('s4_E'))
        late = slots[56:]
        fin, fl = finish(AE, 0, False)
        xb0 = o['xbar']
        P.add(spread(late[:xb0], exch_write(AE), start=2, end=9))
        late[xb0] += (self.stamp('preX') if self.fine else []) + mk('s_waitcnt lgkmcnt(0)\ns_barrier') + (self.stamp('gotX') if self.fine else []) + exch_read()
        late[34] += (self.stamp('preY') if self.fine else []) + mk('s_barrier') + (self.stamp('gotY') if self.fine else [])
        late[44] += fl
        wl = exch_write(AL)
        if l == 1 and o['wb'] == 3:
            lw = P.newlabel('Lnowb')
            late[o['wbslot']] += [I('s_or_b32 s%d, s%d, s%d\ns_cmp_lg_u32 s%d, 0\ns_cbranch_scc1 %s\nbuffer_wbl2 sc1\n%s:' % (sT0, sM, sW, sT0, lw, lw), kind='block', cost=12)]
        for i in range(4):
            late[56 - nt + 2 + i] += [wl[2 + i]]
        P.add(spread(late[xb0:], fin, start=4, end=33 - xb0))
        P.add(self.stamp('s4_L'))
        P.add(wl[:2] + mk('s_waitcnt lgkmcnt(0)\ns_barrier') + exch_read())
        fin, fl = finish(AL, 1, True)
        P.add(fin + fl)
        P.add(self.stamp('x2_pub'))

    def build(self):
        P = self.P
        self.prologue()
        for l in range(2):
            self.s1(l)
            if self.stop == 's1_%d' % l:
                break
            self.kvx(l)
            if self.stop == 'o_%d' % l:
                break
            lnext = 'L_layer%d' % (l + 1)
            if l == 0:
                lsk = P.newlabel('Lskipmlp')
                P.add([I('s_cmp_ge_u32 s%d, 14\ns_cbranch_scc1 %s' % (sM, lsk), kind='block')])
                lp = P.newlabel('Lidle')
                t = [x.text for x in self.pa(28)] + ['s_mov_b32 s%d, %d' % (sT4, FXIN), lp + ':', 's_sleep %d' % self.o['isl'],
                                                     'buffer_load_dword v%d, v%d, %s, s%d offen sc1' % (vPoll, vPA, self.srd(SRD_CL), sT4),
                                                     's_add_u32 s%d, s%d, 1' % (sSpin, sSpin), 's_cmp_gt_u32 s%d, 0x40000' % sSpin, 's_cbranch_scc1 L_end',
                                                     's_waitcnt vmcnt(0)', 'v_cmp_ne_u32 vcc, s%d, v%d' % (sNonce, vPoll), 's_cbranch_vccnz %s' % lp,
                                                     's_sleep %d' % self.o['isl2']]
                self.ool.append('%s:\n%s\ns_waitcnt vmcnt(0) lgkmcnt(0)\n%s\ns_branch %s' % (lsk, self.idle_work(), '\n'.join(t), lnext))
            else:
                if self.o['wb'] in (1, 2):
                    lw, lp = P.newlabel('Lwb'), P.newlabel('Lwbp')
                    P.add([I('s_cmp_ge_u32 s%d, 14\ns_cbranch_scc1 %s' % (sM, lw), kind='block')])
                    t = [lw + ':']
                    if self.o['outt']:
                        lo = P.newlabel('Lot')
                        t += ['s_cmp_lg_u32 s%d, 15' % sM, 's_cbranch_scc1 %s' % lo, 'v_lshlrev_b32 v%d, 7, v0' % vT, 's_mov_b32 exec_hi, 0xffffff']
                        for i in range(4):
                            t += ['s_add_u32 s%d, s%d, %d' % (sT2, sX, i * 56 * 128), 'buffer_load_dword v%d, v%d, %s, s%d offen' % (vDummy, vT, self.srd(SRD_OUT), sT2)]
                        t += ['s_mov_b64 exec, -1', 's_waitcnt vmcnt(0)', lo + ':']
                    t += ['s_cmp_lg_u32 s%d, 14' % sM, 's_cbranch_scc1 L_fin', 's_cmp_lg_u32 s%d, 0' % sW, 's_cbranch_scc1 L_fin']
                    t += [x.text for x in self.pa(14, blocks=True)]
                    t += ['s_mov_b32 s%d, %d' % (sT4, FH + 512 * self.o['wbblk'] if self.o['wbblk'] >= 0 else FX1), 's_sleep %d' % self.o['wbsl']] + (['buffer_wbl2 sc1', 's_waitcnt vmcnt(0)'] if self.o['wb'] == 2 else []) + [lp + ':', 's_sleep 4',
                          'buffer_load_dword v%d, v%d, %s, s%d offen sc1' % (vPoll, vPA, self.srd(SRD_CL), sT4),
                          's_add_u32 s%d, s%d, 1' % (sSpin, sSpin), 's_cmp_gt_u32 s%d, 0x40000' % sSpin, 's_cbranch_scc1 L_end',
                          's_waitcnt vmcnt(0)', 'v_cmp_ne_u32 vcc, s%d, v%d' % (sNonce, vPoll), 's_cbranch_vccnz %s' % lp,
                          's_sleep %d' % self.o['wbs2'], 'buffer_wbl2 sc1', 's_waitcnt vmcnt(0)', 's_branch L_fin']
                    self.ool.append('\n'.join(t))
                else:
                    P.add([I('s_cmp_ge_u32 s%d, 14\ns_cbranch_scc1 L_fin' % sM, kind='block')])
            self.s2(l)
            if self.stop == 'x1_%d' % l:
                P.label(lnext)
                break
            self.mlp(l)
            P.label(lnext)
            if l == 0:
                P('s_add_u32 s%d, s%d, %d\ns_add_u32 s%d, s%d, %d' % (sKv, sKv, KVP_L, sKvMy, sKvMy, KVP_L))
            if self.stop == 'x2_%d' % l:
                break
        P.add([I('s_cmp_lg_u32 s2, 0\ns_cbranch_scc1 L_fin\ns_cmp_lg_u32 s%d, 0\ns_cbranch_scc1 L_fin' % sW, kind='block')])
        P('s_mov_b64 exec, 1\nbuffer_store_dword v%d, off, %s, 0 sc1\ns_mov_b64 exec, -1' % (vNonce, self.srd(SRD_WS)))
        if self.probe is not None:
            P.add(self.stamp('end'))
            P.add([I('s_waitcnt lgkmcnt(0)\ns_sub_u32 s94, s94, s96\ns_lshl_b32 s94, s94, 2\ns_add_u32 s94, s94, 10000\nL_pr:\ns_memrealtime s[98:99]\ns_waitcnt lgkmcnt(0)\n'
                     's_sub_u32 s98, s98, s96\ns_cmp_lt_u32 s98, s94\ns_cbranch_scc1 L_pr', kind='block')])
        P.label('L_fin')
        if self.stamps:
            P('s_lshl_b32 s%d, s2, 2\ns_add_u32 s%d, s%d, s%d\ns_lshl_b32 s%d, s%d, 8\ns_add_u32 s%d, s%d, %d' % (sT0, sT0, sT0, sW, sT0, sT0, sT0, sT0, WS_STAMP))
            P.add(self.stamp('end'))
            P('s_memrealtime s[%d:%d]\ns_waitcnt lgkmcnt(0)\nv_writelane_b32 v%d, s%d, 63' % (sStamp, sStamp + 1, vStamp, sStamp))
            P('v_writelane_b32 v%d, s%d, 61' % (vStamp, sSpin))
            P('v_lshlrev_b32 v%d, 2, v0\nbuffer_store_dword v%d, v%d, %s, s%d offen' % (vT, vStamp, vT, self.srd(SRD_WS), sT0))
        P.label('L_end')
        P('s_endpgm')
        body, L = finalize(P.L)
        self.final = L
        ool = '\n'.join('\n'.join(('    ' + t if not t.endswith(':') else t) for t in b.split('\n') if t.strip()) for b in self.ool)
        head = open('cdna_kernels/%s.s.ref' % KNAME[:-7]).read().split('\n')
        hdr = [h for h in head if h.startswith(';') and '@launch' not in h]
        txt = '\n'.join(hdr) + '\n; @launch grid=(256,1,1) block=(256,1,1) lds=%d\n' % LDS_BYTES
        txt += '.amdgcn_target "amdgcn-amd-amdhsa--gfx950"\n.text\n.globl %s\n.p2align 8\n.type %s,@function\n%s:\n' % (KNAME, KNAME, KNAME)
        txt += body + ool + '\nL_code_end:\n'
        txt += '''.section .rodata,"a"
.p2align 6
.amdhsa_kernel %s
  .amdhsa_next_free_vgpr 512
  .amdhsa_next_free_sgpr 102
  .amdhsa_accum_offset 256
  .amdhsa_group_segment_fixed_size 0
  .amdhsa_kernarg_size 88
  .amdhsa_user_sgpr_count 2
  .amdhsa_user_sgpr_kernarg_segment_ptr 1
  .amdhsa_system_sgpr_workgroup_id_x 1
.end_amdhsa_kernel
''' % KNAME
        return txt


if __name__ == '__main__':
    import argparse
    ap = argparse.ArgumentParser()
    ap.add_argument('-o', default='k.s')
    ap.add_argument('--stop', default=None)
    ap.add_argument('--stamps', action='store_true')
    ap.add_argument('opts', nargs='*')
    A = ap.parse_args()
    opt = {k: (x if k in ('probe', 'light') else int(x)) for k, x in (t.split('=') for t in A.opts)}
    g = Gen(stop=A.stop, stamps=A.stamps, **opt)
    open(A.o, 'w').write(g.build())
    if A.stamps:
        open(A.o + '.stamps', 'w').write('\n'.join(g.stamp_names))
    n = {}
    for x in g.final:
        n[x.kind] = n.get(x.kind, 0) + 1
    nops = sum(x.states for x in g.final if x.op == 's_nop')
    print('instructions', n, 'nop states', nops)
```

```python
import sys, struct
from asmgen import *

KNAME = 'interleave_layers__linear_attn_block__mixer_channel_mlp__prompt_kernel'


def f32(x):
    return '0x%08x' % struct.unpack('<I', struct.pack('<f', x))[0]


LOG2E = 1.4426950408889634
LN2 = 0.6931471805599453
MF = 'v_mfma_f32_32x32x16_bf16'

WS_XCC = 0x8000
WS_STAMP = 0x10000
WS_KVP = 0x200000
KVP_CH = 9216
KVP_L = 0xA0000
WS_CL = 0x400000
LOFF = 0xD9000
O_OFF, X1_OFF, H_OFF, XIN_OFF, XST_OFF, FL_OFF = 0, 0x20000, 0x40000, 0xB0000, 0xD0000, 0xD8000
FO, FX1, FXIN, FH = FL_OFF, FL_OFF + 512, FL_OFF + 1024, FL_OFF + 1536

L_WQ = 0
L_Q = 57344
L_XB = 28672
L_EX = 86016
L_XS = 86016
L_WO = 114688
L_KVS = 143616
L_KVB = L_KVS + 16384
L_CS = L_KVB + 2048
L_B2 = L_CS + 768
LDS_BYTES = 163840
assert L_B2 + 512 <= LDS_BYTES

SRD_WQ, SRD_WO, SRD_W1, SRD_W2, SRD_X, SRD_OUT, SRD_B1, SRD_B2, SRD_CL, SRD_WS = range(4, 44, 4)
sC, sM, sW, sNonce, sSlow, sX, sSpin = 44, 45, 46, 47, 48, 49, 50
sT0, sT1, sT2, sT3, sT4, sT5 = 51, 52, 53, 54, 55, 56
sLn2, sXcc, sWi = 57, 58, 59
sN28, sHalf = 60, 62
sZm = 64
sXin, sD1 = 66, 67
sKA = 68
sEb, sLb, sC0, sC1, sHs, sFe = 68, 69, 70, 71, 72, 73
sBlk, sOst, sFo, sFoMy, sKv, sKvMy, sHE, sHL, sPE, sPL = 74, 75, 76, 77, 78, 79, 80, 81, 82, 83
sHst = 84
sRot = 85
sQ0, sQ1 = 86, 87
sFin, sRes = 28, 34
sTag = 22
sPm = 88
sStamp = 90
sPC = 92

vLane, vL16, vDummy, vTr, vNonce, vMean, vRl, vW1X, _w1x1, vPoll, vPA = range(0, 11)
vT = 11
vStamp = 15
vPoll2, vPoll3 = 15, 5
W2A = 0
W1A = 224
W1V = 176


def w1reg(k):
    return a(W1A + 4 * k, 4) if k < 8 else v(W1V + 4 * (k - 8), 4)


def w1half(k, hh):
    return a(W1A + 4 * k + 2 * hh, 2) if k < 8 else v(W1V + 4 * (k - 8) + 2 * hh, 2)


def flat(LL):
    return [x for L in LL for x in L]


def mfma(D, A, B, first=False):
    return mk('%s %s, %s, %s, %s' % (MF, v(D, 16), A, B, '0' if first else v(D, 16)))


class Gen:
    def __init__(self, stop=None, stamps=False, **opt):
        self.P = Prog()
        self.ool = []
        self.stop = stop
        self.stamps = stamps
        self.nstamp = 0
        self.stamp_names = []
        self.probe = opt.pop('probe', None)
        self.light = opt.pop('light', None)
        self.fine = bool(self.light or self.probe)
        if self.light is not None:
            self.light = self.light.split('+')
            assert len(self.light) <= 4
        self.seen = {}
        self.o = dict(kvdelay=10, xmask=1, stf=1, stl=1, poll2=0, psl=0, pdo=5, pdx=2, p1=1, pdi=0, s1pair=1, sta=13, stb=33, stc=48, isl=8, isl2=8, pollE=16, n3=4, st0=10, st1=23, stpos=1, x0=6, xstep=8, xlag=12, flagpos=8, gend=26, pollL=20, lateL=32, flag3=12, xbar=13, ntail=8, lead=16, look=6, pref=0, touch=1, codepf=1, rot=1, stnt=0, idlewq=0, reuse=1, npre=14, wqlate=84, pf0=1, w1q=4, w1pre=4, w1o=19, nxb1=12, pfslot=50, w2fill=4, w2u1=22, w2sp=6, npre0=9, flag30=4, nsh=17, sh0=48, shgap=6, f3u=23, peu=22, alias=1, flat=24, pf2=98, htk=0, wb=0, wbblk=3, wbsl=100, wbs2=0, wbslot=36, outf=0, outt=0, idlew2=11, woslot=41, tslot=46, latespan=14, strot=1, w1b2=70, look2=10, l1touch=0, xsc1=1, storder=0)
        self.o.update(opt)

    def srd(self, r):
        return s(r, 4)

    def stamp(self, name):
        if self.probe is not None:
            self.seen[name] = self.seen.get(name, 0) + 1
            if self.probe == '%s#%d' % (name, self.seen[name]):
                return [I('s_memrealtime s[94:95]', kind='block', states=1)]
            return []
        if not self.stamps:
            return []
        if self.light is not None:
            self.seen[name] = self.seen.get(name, 0) + 1
            key = '%s#%d' % (name, self.seen[name])
            if name == 'end':
                self.stamp_names.append('end')
                t = ['s_memtime s[88:89]', 's_waitcnt lgkmcnt(0) vmcnt(0)', 'v_writelane_b32 v%d, s98, 62' % vStamp]
                for i, r in enumerate([100] + [90 + 2 * j for j in range(len(self.stamp_names) - 2)] + [88]):
                    t.append('v_writelane_b32 v%d, s%d, %d' % (vStamp, r, i))
                return [I('\n'.join(t), kind='block', drain_lgkm=True)]
            if name != 'start' and key not in self.light:
                return []
            r = 100 if name == 'start' else 90 + 2 * (len(self.stamp_names) - 1)
            self.stamp_names.append(key if name != 'start' else name)
            return [I('s_memtime s[%d:%d]' % (r, r + 1), kind='block')]
        i = self.nstamp
        self.nstamp += 1
        self.stamp_names.append(name)
        t = 's_memtime s[%d:%d]\ns_waitcnt lgkmcnt(0)\nv_writelane_b32 v%d, s%d, %d' % (sStamp, sStamp + 1, vStamp, sStamp, i)
        return [I(t, kind='block', dst=[], src=[], drain_lgkm=True, states=3)]

    def stores(self, lines):
        insts = mk('\n'.join(lines))
        src = [r for x in insts for r in x.src]
        wide = [r for x in insts for r in x.wide]
        ls, lb = self.P.newlabel('Lslow'), self.P.newlabel('Lback')
        fl = ('', ' nt', ' sc0')[self.o['stf']] if self.layer >= self.o['stl'] and 'x4' in lines[0] else ''
        txt = 's_cmp_lg_u32 s%d, 0\ns_cbranch_scc1 %s\n%s\n%s:' % (sSlow, ls, '\n'.join(l + fl for l in lines), lb)
        self.ool.append('%s:\n%s\ns_branch %s' % (ls, '\n'.join(l + ' sc1' for l in lines), lb))
        return [I(txt, kind='block', src=src, nvm=len(lines), wide=wide, states=1, cost=8 + 4 * len(lines))]

    def flag(self, toks, soff, off=0):
        st = self.stores(['buffer_store_dword v%d, off, %s, s%d offset:%d' % (vNonce, self.srd(SRD_CL), soff, off)])[0]
        st.text = 's_mov_b64 exec, 1\n' + st.text + '\ns_mov_b64 exec, -1'
        st.cost += 8
        return [wait_tok(*toks), st]

    def poll_issue(self, soff, delay=0):
        return (mk('s_sleep %d' % delay) if delay else []) + mk('buffer_load_dword v%d, v%d, %s, s%d offen sc1' % (vPoll, vPA, self.srd(SRD_CL), soff))

    def poll_check(self, soff, tag=False):
        ls, lb = self.P.newlabel('Lspin'), self.P.newlabel('Lgot')

        def cmp(r):
            if tag:
                return 'v_lshrrev_b32 v%d, 16, v%d\nv_cmp_ne_u32 vcc, s%d, v%d' % (r, r, sTag, r)
            return 'v_cmp_ne_u32 vcc, s%d, v%d' % (sNonce, r)
        ld = lambda r: 'buffer_load_dword v%d, v%d, %s, s%d offen sc1' % (r, vPA, self.srd(SRD_CL), soff)
        if self.o['poll2']:
            l1 = self.P.newlabel('Lsp')
            t = [ls + ':', ld(vPoll2), 's_sleep 2', l1 + ':', ld(vPoll3), 's_waitcnt vmcnt(1)', cmp(vPoll2), 's_cbranch_vccz %s' % lb,
                 ld(vPoll2), 's_add_u32 s%d, s%d, 1' % (sSpin, sSpin), 's_cmp_gt_u32 s%d, 0x40000' % sSpin, 's_cbranch_scc1 L_end',
                 's_waitcnt vmcnt(1)', cmp(vPoll3), 's_cbranch_vccnz %s' % l1, 's_branch %s' % lb]
        else:
            t = [ls + ':'] + (['s_sleep %d' % self.o['psl']] if self.o['psl'] else []) + [ld(vPoll), 's_add_u32 s%d, s%d, 1' % (sSpin, sSpin), 's_cmp_gt_u32 s%d, 0x40000' % sSpin, 's_cbranch_scc1 L_end',
                 's_waitcnt vmcnt(0)', cmp(vPoll), 's_cbranch_vccnz %s' % ls, 's_branch %s' % lb]
        self.ool.append('\n'.join(t))
        return [I(cmp(vPoll) + '\ns_cbranch_vccnz %s\n%s:' % (ls, lb), kind='block', src=[('v', vPoll)], dst=[('x', 'vcc'), ('v', vPoll)], states=2, cost=8)]

    def pa(self, n, blocks=False, reg=vPA):
        L = 'v_and_b32 v%d, %d, v0\n' % (reg, 15 if n <= 16 else 31)
        if n not in (16, 32):
            L += 'v_min_u32 v%d, %d, v%d\n' % (reg, n - 1, reg)
        L += 'v_lshlrev_b32 v%d, 2, v%d\n' % (reg, reg)
        if blocks:
            L += 'v_lshrrev_b32 v%d, 4, v0\nv_lshl_add_u32 v%d, v%d, 7, v%d' % (vT + 3, reg, vT + 3, reg)
        return mk(L)

    def trbase(self, dst, RS, kh, add=0, xor16=None):
        t = vT
        L = ['v_lshrrev_b32 v%d, 5, v%d' % (dst, vLane),
             'v_mul_u32_u24 v%d, %d, v%d' % (dst, kh, dst),
             'v_bfe_u32 v%d, v%d, 2, 2' % (t, vLane),
             'v_add_u32 v%d, v%d, v%d' % (dst, dst, t),
             'v_mul_u32_u24 v%d, %d, v%d' % (dst, RS, dst),
             'v_bfe_u32 v%d, v%d, 4, 1' % (t, vLane)]
        if xor16 is not None:
            L.append('v_xor_b32 v%d, s%d, v%d' % (t, xor16, t))
        L += ['v_lshl_add_u32 v%d, v%d, 5, v%d' % (dst, t, dst),
              'v_and_b32 v%d, 3, v%d' % (t, vLane),
              'v_lshl_add_u32 v%d, v%d, 3, v%d' % (dst, t, dst)]
        if add:
            L.append('v_add_u32 v%d, %d, v%d' % (dst, add, dst))
        return mk('\n'.join(L))

    def frag_loads(self, dsts, srd, sbase, const0, stride=1024, flags='', st=sT0):
        out = []
        cur = None
        for i, d in enumerate(dsts):
            off = const0 + i * stride
            grp = []
            if cur is None or not (0 <= off - cur <= 4095):
                cur = off
                grp += mk('s_add_u32 s%d, s%d, %d' % (st, sbase, off))
            grp += mk('buffer_load_dwordx4 %s, v%d, %s, s%d offen offset:%d %s' % (d, vL16, self.srd(srd), st, off - cur, flags))
            out.append(grp)
        return out

    def stats_finish(self, acc, double_ln):
        t1, t2 = vT + 1, vT + 2
        L = ['v_mov_b32 v%d, v%d' % (t1, acc),
             'v_mov_b32 v%d, v%d' % (vMean, acc),
             'v_permlane32_swap_b32 v%d, v%d' % (vMean, t1),
             'v_mul_f32 v%d, %s, v%d' % (vMean, f32(1.0 / 448), vMean),
             'v_mul_f32 v%d, %s, v%d' % (t1, f32(1.0 / 448), t1),
             'v_fma_f32 v%d, -v%d, v%d, v%d' % (t1, vMean, vMean, t1),
             'v_max_f32 v%d, 0, v%d' % (t1, t1),
             'v_add_f32 v%d, %s, v%d' % (t2, f32(1e-5), t1),
             'v_rsq_f32 v%d, v%d' % (vRl, t2)]
        if double_ln:
            L += ['v_mul_f32 v%d, v%d, v%d' % (t2, vRl, vRl),
                  'v_fmaak_f32 v%d, v%d, v%d, %s' % (t1, t1, t2, f32(1e-5)),
                  'v_rsq_f32 v%d, v%d' % (t1, t1),
                  'v_mul_f32 v%d, v%d, v%d' % (vRl, vRl, t1)]
        else:
            L += ['v_mul_f32 v%d, %s, v%d' % (vRl, f32(LOG2E), vRl)]
        return mk('\n'.join(L))

    def split_act(self, d0, val, t):
        return mk('\n'.join([
            'v_cvt_pk_bf16_f32 v%d, v%d, v%d' % (d0 + 1, val, val),
            'v_and_b32 v%d, 0xffff0000, v%d' % (t, d0 + 1),
            'v_sub_f32 v%d, v%d, v%d' % (t, val, t),
            'v_cvt_pk_bf16_f32 v%d, v%d, v%d' % (d0, val, t),
            'v_and_b32 v%d, 0xffff, v%d' % (d0 + 1, d0 + 1),
            'v_cndmask_b32 v%d, v%d, 0, s[%d:%d]' % (d0 + 1, d0 + 1, sHalf, sHalf + 1)]))

    def split_w(self, d0, val, t):
        return mk('\n'.join([
            'v_cvt_pk_bf16_f32 v%d, v%d, v%d' % (d0, val, val),
            'v_and_b32 v%d, 0xffff0000, v%d' % (t, d0),
            'v_sub_f32 v%d, v%d, v%d' % (t, val, t),
            'v_cvt_pk_bf16_f32 v%d, v%d, 0' % (d0 + 1, t)]))

    def phi8(self, r0, R, T, eps):
        L = ['v_pk_mul_f32 %s, %s, %s' % (v(r0 + i, 2), v(r0 + i, 2), R(i)) for i in range(0, 8, 2)]
        for i in range(8):
            L += ['v_exp_f32 v%d, v%d clamp' % (T + i, r0 + i), 'v_max_f32 v%d, 0, v%d' % (r0 + i, r0 + i)]
        L += ['v_pk_fma_f32 %s, %s, s[%d:%d], %s op_sel:[0,1,0] op_sel_hi:[1,1,1]' % (v(r0 + i, 2), v(r0 + i, 2), sLn2 - 1, sLn2, v(T + i, 2)) for i in range(0, 8, 2)]
        L += ['v_pk_add_f32 %s, %s, %s op_sel_hi:[1,0]' % (v(r0 + i, 2), v(r0 + i, 2), v(eps, 2)) for i in range(0, 8, 2)]
        return mk('\n'.join(L))

    def pack(self, dst, src, n):
        return mk('\n'.join('v_cvt_pk_bf16_f32 v%d, v%d, v%d' % (dst + i, src + 2 * i, src + 2 * i + 1) for i in range(n)))

    def unpack(self, dst, src, n):
        L = []
        for i in reversed(range(n)):
            L.append('v_and_b32 v%d, 0xffff0000, v%d' % (dst + 2 * i + 1, src + i))
            L.append('v_lshlrev_b32 v%d, 16, v%d' % (dst + 2 * i, src + i))
        return mk('\n'.join(L))

    def dots(self, regs, acc, ones, first):
        L = []
        for i, r in enumerate(regs):
            z = first and i == 0
            L.append('v_dot2_f32_bf16 v%d, v%d, v%d, %s' % (acc, r, ones, '0' if z else 'v%d' % acc))
            L.append('v_dot2_f32_bf16 v%d, v%d, v%d, %s' % (acc + 1, r, r, '0' if z else 'v%d' % (acc + 1)))
        return mk('\n'.join(L))

    def dots_end(self, acc):
        return mk('v_permlane32_swap_b32 v%d, v%d\nv_add_f32 v%d, v%d, v%d' % (acc, acc + 1, acc, acc, acc + 1))

    def row_stats(self, src, n, acc, ones):
        return mk('v_mov_b32 v%d, 0x3f803f80' % ones) + self.dots(range(src, src + n), acc, ones, True) + self.dots_end(acc)

    def kv_lane_addr(self, d, t, u, gather):
        L = []
        if gather:
            L += ['v_and_b32 v%d, 31, v0' % t, 'v_lshrrev_b32 v%d, 5, v0' % d]
        else:
            L += ['v_lshrrev_b32 v%d, 5, v0' % t, 'v_and_b32 v%d, 15, v0' % u, 'v_lshl_add_u32 v%d, v%d, 1, v%d' % (t, u, t), 'v_bfe_u32 v%d, v0, 4, 1' % d]
        L += ['v_lshrrev_b32 v%d, 3, v%d' % (u, t), 'v_sub_u32 v%d, v%d, v%d' % (u, t, u)]
        if not gather:
            L += ['v_and_b32 v%d, 7, v%d' % (t, t), 'v_cmp_eq_u32 vcc, 7, v%d' % t, 'v_cndmask_b32 v%d, v%d, 31, vcc' % (u, u)]
        L += ['v_lshl_add_u32 v%d, v%d, 5, v%d' % (d, d, u)]
        sh, qs, base = (4, 10, L_KVS) if gather else (5, 3, L_KVB)
        L += ['s_lshl_b32 s%d, s%d, %d' % (sT2, sW, qs), 'v_lshlrev_b32 v%d, %d, v%d' % (d, sh, d), 'v_add_u32 v%d, s%d, v%d' % (d, sT2, d)]
        L += ['v_and_b32 v%d, 1, v%d' % (t, u), 'v_lshlrev_b32 v%d, %d, v%d' % (t, 5 + sh, t), 'v_lshrrev_b32 v%d, 1, v%d' % (u, u)]
        L += ['v_cmp_gt_u32 vcc, 4, v%d' % u]
        L += ['v_lshl_add_u32 v%d, v%d, %d, v%d' % (t, u, qs, t), 'v_add_u32 v%d, %d, v%d' % (t, 28 << sh, t)]
        L += ['s_and_b64 vcc, vcc, s[%d:%d]' % ((sZm, sZm + 1) if gather else (sPm, sPm + 1)), 'v_cndmask_b32 v%d, v%d, v%d, vcc' % (d, d, t),
              'v_add_u32 v%d, %d, v%d' % (d, base, d)]
        return mk('\n'.join(L))

    def wq_dma(self, va, q):
        if q:
            ad = 'v_lshrrev_b32 v%d, 2, v0\nv_mul_u32_u24 v%d, 2688, v%d\nv_and_b32 v%d, 3, v0\nv_lshl_add_u32 v%d, v%d, 4, v%d' % (va, va, va, vT, va, vT, va)
        else:
            ad = ('v_lshrrev_b32 v%d, 3, v0\nv_mul_u32_u24 v%d, 2688, v%d\nv_and_b32 v%d, 3, v0\nv_lshl_add_u32 v%d, v%d, 4, v%d\n'
                  'v_lshrrev_b32 v%d, 2, v0\nv_xor_b32 v%d, v%d, v0\nv_bfe_u32 v%d, v%d, 2, 1\nv_mul_u32_u24 v%d, 896, v%d\nv_add3_u32 v%d, v%d, v%d, s%d'
                  % (va, va, va, vT, va, vT, va, vT, vT, vT, vT, vT, vT, vT, va, va, vT, sQ0))
        rows = 16 if q else 8
        pre = mk('s_mul_i32 s%d, s%d, 56\ns_add_u32 s%d, s%d, 896' % (sQ1, sM, sQ0, sQ1)) + mk(ad)
        if q:
            pre += mk('v_add_u32 v%d, s%d, v%d' % (va, sQ1, va))
        pre += mk('s_mul_i32 s%d, s%d, %d\ns_lshl_b32 s%d, s%d, 10' % (sRot, sW, rows * 2688, sQ1, sW))
        out = []
        for t in range(7 if q else 14):
            out.append(mk('s_add_u32 m0, s%d, %d\ns_add_u32 s%d, s%d, %d\nbuffer_load_dwordx4 v%d, %s, s%d offen lds'
                          % (sQ1, (L_Q if q else L_WQ) + 4096 * t, sQ0, sRot, 4 * t * rows * 2688, va, self.srd(SRD_WQ), sQ0)))
        return pre, out

    def touch(self, items, va):
        if not self.o['touch']:
            return []
        txt = ['v_lshlrev_b32 v%d, 7, v0' % va]
        cur = None
        n = 0
        for nl, srd, sg, c in items:
            if nl != cur:
                txt.append('s_mov_b64 exec, 0x%x' % ((1 << nl) - 1))
                cur = nl
            txt.append('s_add_u32 s%d, s%d, %d' % (sT2, sg, c) if sg is not None else 's_mov_b32 s%d, %d' % (sT2, c))
            txt.append('buffer_load_dword v%d, v%d, %s, s%d offen sc1' % (vDummy, va, self.srd(srd), sT2))
            n += 1
        txt.append('s_mov_b64 exec, -1')
        return [I('\n'.join(txt), kind='block', nvm=n, dst=[('v', va)], src=[('v', 0)], states=1, cost=12 * n)]

    def touch_attn(self, lo, va):
        pre = mk('s_lshr_b32 s%d, s%d, 2\ns_lshl_b32 s%d, s%d, 10\ns_add_u32 s%d, s%d, s%d\ns_mul_i32 s%d, s%d, 896' % (sT1, sM, sT1, sT1, sT1, sT1, sBlk, sT0, sW))
        return pre + self.touch([(16, SRD_CL, sOst, lo), (16, SRD_CL, sOst, lo + X1_OFF), (8, SRD_CL, sT1, lo + X1_OFF + 28672),
                                 (7, SRD_CL, sT0, lo + FL_OFF)], va)

    def prefetch(self, va, items):
        txt, n = ['v_lshlrev_b32 v%d, 7, v0' % va], 0
        for srd, per in items:
            for j in range(0, per, 64):
                nl = min(64, per - j)
                txt += ['s_mul_i32 s%d, s%d, %d' % (sT2, sWi, per * 128), 's_add_u32 s%d, s%d, %d' % (sT2, sT2, j * 128),
                        's_mov_b32 exec_lo, 0x%x' % (((1 << nl) - 1) & 0xffffffff), 's_mov_b32 exec_hi, 0x%x' % (((1 << nl) - 1) >> 32),
                        'buffer_load_dword v%d, v%d, %s, s%d offen' % (vDummy, va, self.srd(srd), sT2)]
                n += 1
        return [I('\n'.join(txt + ['s_mov_b64 exec, -1']), kind='block', nvm=n, src=[('v', 0)], dst=[('v', va)], cost=20 * n)]

    def idle_work(self):
        va = vT
        l = self.P.newlabel('Lnowarm')
        T = ['s_cmp_lg_u32 s%d, 0' % sSlow, 's_cbranch_scc1 %s' % l,
             'v_lshlrev_b32 v%d, 7, v0' % va,
             's_and_b32 s%d, s%d, 1' % (sT0, sM), 's_lshl_b32 s%d, s%d, 2' % (sT0, sT0), 's_add_u32 s%d, s%d, s%d' % (sT0, sT0, sW)]
        ld = lambda srd, fl: 'buffer_load_dword v%d, v%d, %s, s%d offen %s' % (vDummy, va, self.srd(srd), sT2, fl)
        nw2 = self.o['idlew2']
        if nw2:
            T += ['s_lshr_b32 s%d, s%d, 3' % (sT1, sC), 's_lshl_b32 s%d, s%d, 3' % (sT1, sT1), 's_add_u32 s%d, s%d, s%d' % (sT1, sT1, sT0),
                  's_lshl_b32 s%d, s%d, 13' % (sT2, sT1)]
            for i in range(nw2):
                T += [ld(SRD_W2, ''), 's_add_u32 s%d, s%d, 131072' % (sT2, sT2)]
        for i in range(2 * self.o['htk'] - (self.o['htk'] > 1), 7):
            T += ['s_lshl_b32 s%d, s%d, 13' % (sT2, sT0), 's_add_u32 s%d, s%d, %d' % (sT2, sT2, H_OFF + i * 65536), ld(SRD_CL, 'sc1')]
        if not self.o['alias']:
            for i in range(2):
                T += ['s_lshl_b32 s%d, s%d, 13' % (sT2, sT0), 's_add_u32 s%d, s%d, %d' % (sT2, sT2, XIN_OFF + i * 65536), ld(SRD_CL, 'sc1')]
        T += ['s_lshl_b32 s%d, s%d, 12' % (sT2, sT0), 's_add_u32 s%d, s%d, %d' % (sT2, sT2, XST_OFF), 's_mov_b32 exec_hi, 0', ld(SRD_CL, 'sc1'), 's_mov_b64 exec, -1']
        T += [l + ':']
        return '\n'.join(T)

    def prologue(self):
        P = self.P
        o = self.o
        P('s_cmp_ge_u32 s2, 256\ns_cbranch_scc1 L_end')
        if self.probe is not None:
            P.add([I('s_memrealtime s[96:97]\ns_memrealtime s[94:95]', kind='block', states=1)])
        P('s_load_dwordx16 s[%d:%d], s[0:1], 0' % (sKA, sKA + 15))
        P('s_load_dwordx4 s[%d:%d], s[0:1], 64' % (sKA + 16, sKA + 19))
        P('s_load_dwordx2 s[%d:%d], s[0:1], 80' % (sKA + 20, sKA + 21))
        P('v_lshrrev_b32 v%d, 6, v0\nv_and_b32 v0, 63, v0\nv_readfirstlane_b32 s%d, v%d' % (vT, sW, vT))
        P('s_lshr_b32 s%d, s2, 3\ns_lshl_b32 s%d, s%d, 2\ns_add_u32 s%d, s%d, s%d' % (sM, sWi, sM, sWi, sWi, sW))
        if o['codepf']:
            P.add([I('s_getpc_b64 s[%d:%d]\nL_pc:' % (sPC, sPC + 1), kind='block', dst=[], states=1)])
            P('s_lshl_b32 s%d, s%d, 9\nv_lshlrev_b32 v%d, 7, v0\nv_add_u32 v%d, s%d, v%d' % (sT0, sWi, vT, vT, sT0, vT))
            P.add([I('v_min_u32 v%d, L_code_end-L_pc-4, v%d\ns_mov_b64 exec, 15\nglobal_load_dword v%d, v%d, s[%d:%d]\ns_mov_b64 exec, -1'
                     % (vT, vT, vDummy, vT, sPC, sPC + 1), kind='block', dst=[('v', vT)], src=[('v', vT)], nvm=1)])
        P('s_and_b32 s%d, s2, 7\ns_lshr_b32 s%d, s%d, 4\ns_lshl_b32 s%d, s%d, 3\ns_add_u32 s%d, s%d, s%d\ns_and_b32 s%d, s%d, 15'
          % (sC, sT0, sM, sT0, sT0, sC, sC, sT0, sM, sM))
        P('v_lshlrev_b32 v%d, 4, v0' % vL16)
        if self.stamps:
            P('v_mov_b32 v%d, 0' % vStamp)
            P.add(self.stamp('start'))
            if self.light is not None:
                P('s_memrealtime s[98:99]\ns_waitcnt lgkmcnt(0)')
            else:
                assert not o['poll2']
                P('s_memrealtime s[%d:%d]\ns_waitcnt lgkmcnt(0)\nv_writelane_b32 v%d, s%d, 62' % (sStamp, sStamp + 1, vStamp, sStamp))
        P('s_lshl_b32 s%d, s%d, 2\ns_add_u32 s%d, s%d, s%d\ns_mul_i32 s%d, s%d, %d' % (sX, sC, sX, sX, sW, sX, sX, 32 * 896))
        vq, vxb, vxh, vxa, vrd = 160, 163, 164, 165, 167
        P('v_lshrrev_b32 v%d, 5, v0\nv_and_b32 v%d, 31, v0\nv_xor_b32 v%d, v%d, v%d\nv_lshlrev_b32 v%d, 4, v%d\nv_mul_u32_u24 v%d, 896, v%d'
          % (vxh, vT, vxb, vT, vxh, vxb, vxb, vxh, vxh))
        ka = sKA

        def mksrd(r, p, size):
            P('s_mov_b32 s%d, s%d\ns_mov_b32 s%d, s%d\ns_mov_b32 s%d, %d\ns_mov_b32 s%d, 0x20000' % (r, p, r + 1, p + 1, r + 2, size, r + 3))
        P('s_lshl_b32 s%d, s%d, 14\ns_add_u32 s%d, s%d, %d' % (sT5, sW, sT5, sT5, L_XS))
        mksrd(SRD_X, ka + 0, 2048 * 896)

        def xdma(half):
            out = []
            for i in range(16):
                if half:
                    g = mk('s_mov_b32 s%d, %d\nv_xad_u32 v%d, v%d, s%d, v%d' % (sT0, ((2 * i) & 15) << 4, vxa + (i & 1), vxb, sT0, vxh))
                    g += mk('s_add_u32 s%d, s%d, %d\ns_add_u32 m0, s%d, %d' % (sT1, sX, 2 * i * 896 + 512, sT5, 1024 * i))
                    ld = 'buffer_load_dwordx4 v%d, %s, s%d offen lds' % (vxa + (i & 1), self.srd(SRD_X), sT1)
                    if o['xmask']:
                        m = 0xff00ffff if i & 4 else 0x00ffffff
                        out.append(g + [I('s_mov_b32 exec_lo, 0x%x\ns_mov_b32 exec_hi, 0x%x\n%s\ns_mov_b64 exec, -1' % (m, m, ld), kind='block', nvm=1,
                                          src=[('v', vxa + (i & 1))], cost=20)])
                    else:
                        out.append(g + mk(ld))
                    continue
                g = mk('s_add_u32 s%d, s%d, %d\ns_and_b32 s%d, s%d, 15' % (sT4, sM, i, sT4, sT4) if o['rot'] else 's_mov_b32 s%d, %d' % (sT4, i))
                g += mk('s_lshl_b32 s%d, s%d, 5\ns_and_b32 s%d, s%d, 0xf0\nv_xad_u32 v%d, v%d, s%d, v%d' % (sT0, sT4, sT0, sT0, vxa + (i & 1), vxb, sT0, vxh))
                g += mk('s_mul_i32 s%d, s%d, 1792\ns_add_u32 s%d, s%d, s%d\ns_lshl_b32 s%d, s%d, 10\ns_add_u32 m0, s%d, s%d' % (sT1, sT4, sT1, sT1, sX, sT4, sT4, sT4, sT5))
                g += mk('buffer_load_dwordx4 v%d, %s, s%d offen lds' % (vxa + (i & 1), self.srd(SRD_X), sT1))
                out.append(g)
            return out
        mksrd(SRD_WQ, ka + 2, 448 * 2688)
        if o['pf0']:
            P('v_lshlrev_b32 v%d, 7, v0\ns_lshl_b32 s%d, s%d, 2\ns_add_u32 s%d, s%d, s%d\ns_mul_i32 s%d, s%d, %d\ns_mul_i32 s%d, s%d, %d\ns_add_u32 s%d, s%d, s%d\ns_mul_i32 s%d, s%d, 49'
              % (vxa, sT0, sM, sT0, sT0, sW, sT0, sT0, 14 * 128, sT1, sC, 128 * 896, sT0, sT0, sT1, sT1, sWi))
            if o['pf0'] == 1:
                P('v_add_u32 v%d, s%d, v0\nv_mul_u32_u24 v%d, 37450, v%d\nv_lshrrev_b32 v%d, 19, v%d\nv_mul_u32_u24 v%d, 896, v%d\nv_lshl_add_u32 v%d, v%d, 7, v%d'
                  % (vT, sT1, vxa + 1, vT, vxa + 1, vxa + 1, vxa + 1, vxa + 1, vxa + 1, vT, vxa + 1))
                P.add([I('s_mov_b64 exec, 0x3fff\nbuffer_load_dword v%d, v%d, %s, s%d offen\ns_mov_b32 exec_lo, -1\ns_mov_b32 exec_hi, 0x1ffff\n'
                         'buffer_load_dword v%d, v%d, %s, 0 offen offset:896\ns_mov_b64 exec, -1'
                         % (vDummy, vxa, self.srd(SRD_X), sT0, vDummy, vxa + 1, self.srd(SRD_WQ)), kind='block', nvm=2, src=[('v', vxa), ('v', vxa + 1)])])
            else:
                P.add([I('s_mov_b64 exec, 0x3fff\nbuffer_load_dword v%d, v%d, %s, s%d offen\ns_mov_b64 exec, -1' % (vDummy, vxa, self.srd(SRD_X), sT0),
                         kind='block', nvm=1, src=[('v', vxa)])])
                P.add(self.prefetch(vxa, [(SRD_WQ, 74)]))
        body = [x.text for x in xdma(0)[0]]
        body[0] = 's_add_u32 s%d, s%d, s%d' % (sT4, sM, sT2) if o['rot'] else 's_mov_b32 s%d, s%d' % (sT4, sT2)
        loop = I('\n'.join(['s_mov_b32 s%d, 0' % sT2, 'L_xa:'] + body[:-1] + ['s_add_u32 s%d, s%d, 1' % (sT2, sT2), 's_cmp_lt_u32 s%d, 16' % sT2, body[-1],
                                                                            's_cbranch_scc1 L_xa']), kind='block', nvm=16, src=[('v', vxb), ('v', vxh)] + regs_of(s(SRD_X, 4)), dst=[('v', vxa)])
        tA = tok(loop)
        P.add([loop])
        P('s_load_dword s%d, s[%d:%d], 0' % (sNonce, ka + 20, ka + 21))
        mksrd(SRD_OUT, ka + 16, 2048 * 896)
        pre, wq = self.wq_dma(vq, False)
        self.tok_wq1, self.tok_wq = tok(wq[7][-1]), tok(wq[-1][-1])
        P.add(pre + flat(wq[:8]))
        mksrd(SRD_WO, ka + 4, 448 * 896)
        mksrd(SRD_W1, ka + 8, 448 * 3584)
        mksrd(SRD_B1, ka + 10, 3584)
        mksrd(SRD_W2, ka + 12, 1792 * 896)
        mksrd(SRD_B2, ka + 14, 896)
        mksrd(SRD_WS, ka + 20, WS_CL)
        P('s_lshl_b32 s%d, s%d, 21\ns_add_u32 s%d, s%d, %d' % (sT0, sC, sT0, sT0, WS_CL))
        P('s_add_u32 s%d, s%d, s%d\ns_addc_u32 s%d, s%d, 0\ns_mov_b32 s%d, 0x200000\ns_mov_b32 s%d, 0x20000'
          % (SRD_CL, ka + 20, sT0, SRD_CL + 1, ka + 21, SRD_CL + 2, SRD_CL + 3))
        P('s_mov_b32 s%d, %s\ns_mov_b32 s%d, 0\ns_mov_b32 s%d, -1' % (sLn2, f32(LN2), sHalf, sHalf + 1))
        P('s_mov_b32 s%d, 0x10000000\ns_mov_b32 s%d, 0x10000000\ns_mov_b32 s%d, 0' % (sN28, sN28 + 1, sSpin))
        P('s_getreg_b32 s%d, hwreg(HW_REG_XCC_ID, 0, 4)' % sXcc)
        P('s_and_b32 s%d, s%d, 1\ns_sub_u32 s%d, 3, s%d' % (sEb, sM, sLb, sEb))
        P('s_cmp_eq_u32 s%d, 3\ns_cselect_b32 s%d, -1, 0\ns_mov_b32 s%d, 0' % (sW, sZm + 1, sZm))
        P('s_lshr_b32 s%d, s%d, 3' % (sD1, sC) if o['strot'] else 's_mov_b32 s%d, 0' % sD1)
        c0 = -2.0 * 0.7978845608028654 * LOG2E
        P('s_mov_b32 s%d, %s\ns_mov_b32 s%d, %s' % (sC0, f32(c0), sC1, f32(c0 * 0.044715)))
        P('s_lshr_b32 s%d, s%d, 1\ns_lshl_b32 s%d, s%d, 2\ns_and_b32 s%d, s%d, 1\ns_lshl_b32 s%d, s%d, 1\ns_add_u32 s%d, s%d, s%d\ns_lshr_b32 s%d, s%d, 1\ns_add_u32 s%d, s%d, s%d'
          % (sFe, sM, sFe, sFe, sT0, sW, sT0, sT0, sFe, sFe, sT0, sT0, sW, sFe, sFe, sT0))
        P('s_lshl_b32 s%d, s%d, 15\ns_lshl_b32 s%d, s%d, 11\ns_add_u32 s%d, s%d, s%d' % (sBlk, sW, sOst, sM, sOst, sOst, sBlk))
        P('s_lshl_b32 s%d, s%d, 7\ns_add_u32 s%d, s%d, %d\ns_lshl_b32 s%d, s%d, 2\ns_add_u32 s%d, s%d, s%d' % (sFo, sW, sFo, sFo, FL_OFF, sT0, sM, sFoMy, sFo, sT0))
        P('s_lshl_b32 s%d, s%d, 2\ns_add_u32 s%d, s%d, s%d\ns_mul_i32 s%d, s%d, %d\ns_add_u32 s%d, s%d, %d' % (sT1, sM, sT1, sT1, sW, sKv, sT1, KVP_CH, sKv, sKv, WS_KVP))
        P('s_lshl_b32 s%d, s%d, 9\ns_add_u32 s%d, s%d, s%d' % (sKvMy, sC, sKvMy, sKvMy, sKv))
        P('s_lshl_b32 s%d, s%d, 11\ns_add_u32 s%d, s%d, %d' % (sHst, sT1, sHst, sHst, H_OFF))
        P('s_lshl_b32 s%d, s%d, 11\ns_add_u32 s%d, s%d, %d' % (sT1, sW, sT1, sT1, H_OFF))
        P('s_mul_i32 s%d, s%d, 114688\ns_add_u32 s%d, s%d, s%d\ns_mul_i32 s%d, s%d, 114688\ns_add_u32 s%d, s%d, s%d' % (sHE, sEb, sHE, sHE, sT1, sHL, sLb, sHL, sHL, sT1))
        P('s_lshl_b32 s%d, s%d, 9\ns_add_u32 s%d, s%d, s%d\ns_add_u32 s%d, s%d, %d' % (sPE, sEb, sPE, sPE, sFo, sPE, sPE, FH - FL_OFF))
        P('s_lshl_b32 s%d, s%d, 9\ns_add_u32 s%d, s%d, s%d\ns_add_u32 s%d, s%d, %d' % (sPL, sLb, sPL, sPL, sFo, sPL, sPL, FH - FL_OFF))
        self.xreg0 = xr = [16 + 4 * i if i < 20 else 176 + 4 * (i - 20) for i in range(28)]
        P('v_and_b32 v%d, 15, v0\nv_lshrrev_b32 v%d, 5, v0\nv_xor_b32 v%d, v%d, v%d\nv_lshlrev_b32 v%d, 4, v%d\nv_and_b32 v%d, 31, v0\nv_lshl_add_u32 v%d, v%d, 9, v%d\nv_add_u32 v%d, s%d, v%d'
          % (vT, vrd, vrd, vrd, vT, vrd, vrd, vT, vrd, vT, vrd, vrd, sT5, vrd))
        xrd = lambda k: mk('v_xor_b32 v%d, %d, v%d\nds_read_b128 %s, v%d' % (vrd + 1 + (k & 1), 32 * (k & 15), vrd, v(xr[k], 4), vrd + 1 + (k & 1)))
        vrs = vrd + 3
        P('v_and_b32 v%d, 15, v0\nv_lshlrev_b32 v%d, 4, v%d\nv_lshrrev_b32 v%d, 5, v0\nv_lshl_add_u32 v%d, v%d, 3, v%d\nv_and_b32 v%d, 31, v0\nv_lshl_add_u32 v%d, v%d, 9, v%d\nv_add_u32 v%d, s%d, v%d'
          % (vrs, vrs, vrs, vT, vrs, vT, vrs, vT, vrs, vT, vrs, vrs, sT5, vrs))
        P('s_and_b32 s%d, s%d, 7\ns_lshl_b32 s%d, s%d, 6\nv_xor_b32 v%d, s%d, v%d' % (sT0, sM, sT0, sT0, vrs, sT0, vrs))

        def resrd(half):
            l = P.newlabel('Lres')
            t = ['s_cmp_%s_u32 s%d, 8' % ('lt' if half else 'ge', sM), 's_cbranch_scc1 %s' % l]
            for g in range(4):
                t += ['v_xor_b32 v%d, %d, v%d' % (vrs + 1, 16 * g, vrs), 'ds_read_b64 %s, v%d' % (a(216 + 2 * g, 2), vrs + 1)]
            return [I('\n'.join(t + [l + ':']), kind='block', src=[('v', vrs)], dst=[('v', vrs + 1)])]
        P.add(self.stamp('issued'))
        P.add([wait_tok(tA)])
        P.add(self.stamp('xA'))
        for k in range(16):
            P.add(xrd(k))
        P.add(resrd(0))
        vS, vOne = 172, 174
        P('v_mov_b32 v%d, 0x3f803f80\ns_waitcnt lgkmcnt(0)' % vOne)
        xb = xdma(1)
        self.tok_xb = tok(xb[-1][-1])
        d = self.dots([xr[k] + i for k in range(16) for i in range(4)], vS, vOne, True)
        P.add(spread(xb[:o['nxb1']], d))
        self.late_dma = xb[o['nxb1']:] + wq[8:]
        self.late_rd = [xrd(k) for k in range(16, 28)] + [resrd(1)]
        self.late_dots = self.dots([xr[k] + i for k in range(16, 28) for i in range(4)], vS, vOne, False) + self.dots_end(vS)
        P('s_add_u32 s%d, s%d, 0x01010101' % (sNonce, sNonce))
        P('v_mov_b32 v%d, s%d' % (vNonce, sNonce))
        P('s_lshl_b32 s%d, s%d, 4\ns_add_u32 s%d, s%d, s%d\ns_lshl_b32 s%d, s%d, 7\ns_add_u32 s%d, s%d, %d'
          % (sT2, sC, sT2, sT2, sM, sT2, sT2, sT2, sT2, WS_XCC))
        P('s_add_u32 s%d, s%d, s%d\nv_mov_b32 v%d, s%d\ns_mov_b64 exec, 1' % (sT3, sNonce, sXcc, vT, sT3))
        P('buffer_store_dword v%d, off, %s, s%d sc1' % (vT, self.srd(SRD_WS), sT2))
        P('s_mov_b64 exec, -1')

    def s1(self, l):
        P = self.P
        o = self.o
        AK, AV, AQ, WB, SB = 96, 112, 128, 144, 160
        RLB, XE = SB, SB + 8
        NB = 4
        vS = 172 if l == 0 else vT + 2
        P.comment('==== layer %d : S1' % l)
        kh = 8 if l == 0 else 4
        vTrV, vTrQ, vCs = vT + 3, (vT + 2 if l == 0 else vDummy), vPA
        trkv = self.trbase(vTr, 128, kh, add=L_WQ) + mk('v_bfe_u32 v%d, v0, 3, 1\nv_lshl_add_u32 v%d, v%d, 6, v%d\nv_xor_b32 v%d, 64, v%d' % (vT, vTr, vT, vTr, vTrV, vTr))
        trq = self.trbase(vTrQ, 64, kh, add=L_Q)
        fin = self.stats_finish(vS, False)
        fin += mk('s_lshl_b32 s%d, s%d, 12\ns_add_u32 s%d, s%d, %d' % (sT4, sW, sT4, sT4, L_KVS))
        bounce = mk('v_and_b32 v%d, 31, v0\nv_lshl_add_u32 v%d, v%d, 2, s%d\nds_write_b32 v%d, v%d' % (vT + 1, vT + 1, vT + 1, sT4, vT + 1, vRl))
        fin += bounce
        fin += mk('v_sub_f32 v%d, 0, v%d' % (vMean, vMean)) + self.split_act(XE, vMean, vT)
        fin += mk('v_cndmask_b32 v%d, v%d, 0, s[%d:%d]\nv_mov_b32 v%d, 0\nv_mov_b32 v%d, 0' % (XE, XE, sHalf, sHalf + 1, XE + 2, XE + 3))
        if l == 0:
            xreg = self.xreg0
            P.add(trkv)
            P.add([wait_tok(self.tok_wq1)])
            P('s_barrier')
            P.add(self.stamp('wq_ready'))
            lds = []
        else:
            xreg = [16 + 4 * (i % 20) for i in range(28)]
            P.add(self.pa(28))
            P('s_add_u32 s%d, s%d, %d' % (sT4, sFo, FXIN - FL_OFF))
            P.add(self.poll_issue(sT4, o['pdi']))
            P('s_add_u32 s%d, s%d, s%d\ns_lshl_b32 s%d, s%d, 13' % (sT5, sBlk, sXin, sT3, sW))
            P.add(trkv + trq)
            lds = self.frag_loads([v(r, 4) for r in xreg], SRD_CL, sT5, 0, flags='sc1')
        nq = 0 if l == 0 else 8
        jobs = []
        for k in range(28):
            if l == 0 and k == 16:
                jobs += [(t, kk) for kk in range(7) for t in 'KV']
            jobs += [('k', k), ('v', k)] + ([('q', k)] if k < nq else [])
        jobs += [('k', 'e'), ('v', 'e')]
        nmain = len(jobs)
        jobs += [('q', k) for k in range(nq, 28)] + ([('q', 'e')] if l else [('Q', kk) for kk in range(7)])
        vo, vb, CSA = RLB, RLB + 4, 208

        def rd(j):
            t, k = jobs[j]
            b = WB + 4 * (j % NB)
            if k == 'e':
                return mk('ds_read_b64 %s, v%d offset:%d\nv_mov_b32 v%d, 0\nv_mov_b32 v%d, 0' % (v(b, 2), vCs, 256 * 'qkv'.index(t), b + 2, b + 3))
            base = {'q': vTrQ, 'k': vTr, 'v': vTrV, 'K': vb, 'V': vb + 1, 'Q': vTr}[t]
            rs = 64 if t in 'qQ' else 128
            return mk('ds_read_b64_tr_b16 %s, v%d offset:%d\nds_read_b64_tr_b16 %s, v%d offset:%d' % (v(b, 2), base, 16 * rs * k, v(b + 2, 2), base, 16 * rs * k + (32 // kh) * rs))
        for j in range(NB):
            P.add(rd(j))
        if l == 1:
            P.add(self.poll_check(sT4))
            P.add(self.stamp('x2_seen'))
            P.add(flat(lds[:o['look']]))
            P('s_add_u32 s%d, s%d, 1\nv_mov_b32 v%d, s%d' % (sNonce, sNonce, vNonce, sNonce))
        P('v_and_b32 v%d, 31, v0\nv_lshlrev_b32 v%d, 3, v%d\nv_add_u32 v%d, %d, v%d' % (vCs, vCs, vCs, vCs, L_CS, vCs))
        slots = []
        for j, (t, k) in enumerate(jobs):
            w = v(WB + 4 * (j % NB), 4)
            if t.isupper():
                sl = mfma(CSA + 16 * (t == 'V'), v(CSA + 16 if t == 'Q' else vo, 4), w, k == 0)
            else:
                x = v(XE if k == 'e' else xreg[k], 4)
                A, B = (w, x) if t == 'q' else (x, w)
                sl = mfma({'q': AQ, 'k': AK, 'v': AV}[t], A, B, k == 0)
            if l == 0 and j == 32 - NB:
                sl += self.late_dots + [wait_tok(self.tok_wq)] + mk('s_waitcnt lgkmcnt(0)\ns_barrier') + (self.stamp('bar2') if self.fine else [])
                sl += mk('s_mul_i32 s%d, s%d, %d\nv_add_u32 v%d, s%d, v%d\nv_add_u32 v%d, s%d, v%d' % (sT0, sW, 7 * 2048, vb, sT0, vTr, vb + 1, sT0, vTrV))
            if j % 2 == 0 and j + 1 < len(jobs) and j + 1 != nmain and o['s1pair']:
                also_waits_for(sl[0], v(WB + 4 * ((j + 1) % NB), 4))
            if j + NB < len(jobs) and not (j < nmain <= j + NB):
                sl += rd(j + NB)
            slots.append(sl)
        if l == 0:
            n = len(self.late_dma)
            for i, g in enumerate(self.late_dma):
                slots[(i * o['latespan']) // n] += g
            r0 = 32 - NB - 7
            slots[r0] += [wait_tok(self.tok_xb)]
            for i, g in enumerate(self.late_rd):
                slots[r0 + i // 2] += g
            slots[29] += mk('\n'.join('v_mov_b32 v%d, 0x3f803f80' % (vo + i) for i in range(4)))
            for i in range(0, len(fin), 4):
                slots[30 + i // 4] += fin[i:i + 4]
            pre, qd = self.wq_dma(175, True)
            self.tok_q = tok(qd[-1][-1])
            for i, g in enumerate([pre] + qd):
                slots[37 + i] += g
            slots[o['tslot']] += self.prefetch(vT, [(SRD_WO, 25)]) + self.touch_attn(0, vT)
            slots[47] += mk('v_and_b32 v%d, 31, v0\nv_lshlrev_b32 v%d, 2, v%d\ns_lshl_b32 s%d, s%d, 8\nv_add_u32 v%d, %d, v%d\nv_add_u32 v%d, s%d, v%d'
                            % (vb, vb, vb, sT0, sW, vb, L_KVB, vb, vb + 1, sT0, vb))
            slots[48] += mk('\n'.join('ds_write_b32 v%d, v%d offset:%d' % (vb + 1, CSA + 16 * t, 128 * t) for t in range(2)))
            slots[50] += mk('s_waitcnt lgkmcnt(0)\ns_barrier')
            for t in range(2):
                r = RLB
                slots[50 + 5 * t] += mk('\n'.join('ds_read_b32 v%d, v%d offset:%d' % (r + ww, vb, 256 * ww + 128 * t) for ww in range(4)))
                slots[53 + 5 * t] += mk('v_add_f32 v%d, v%d, v%d\nv_add_f32 v%d, v%d, v%d\nv_add_f32 v%d, v%d, v%d' % (r, r, r + 1, r + 2, r + 2, r + 3, r, r, r + 2))
                slots[54 + 5 * t] += self.split_w(r + 2, r, r + 1) + mk('ds_write_b64 v%d, %s offset:%d' % (vCs, v(r + 2, 2), 256 * (t + 1)))
        else:
            n = o['look']
            for j in range(0, nmain, 2):
                if n < 28:
                    k_free = n - 20
                    assert k_free < 0 or j >= jobs.index(('q', k_free))
                    slots[j] += lds[n]
                    n += 1
            st = self.frag_loads([v(SB + 4 * (i % 4), 4) for i in range(7)], SRD_CL, sT3, XST_OFF, st=sT1, flags='sc1')
            a0, a1 = o['sta'], o['stb']
            for i in range(4):
                slots[a0 + 2 * i] += st[i]
            ex = []
            for i in range(1, 16):
                ex += mk('v_add_f32 v%d, v%d, v%d' % (vS, vS if i > 1 else SB, SB + i))
            for i in range(0, 15, 2):
                slots[a1 - 8 + i // 2] += ex[i:i + 2]
            for i in range(3):
                slots[a1 + 2 * i] += st[4 + i]
            ex = flat(mk('v_add_f32 v%d, v%d, v%d' % (vS, vS, SB + i)) for i in range(12)) + fin
            e0 = o['stc']
            per = -(-len(ex) // (61 - e0))
            for i in range(61 - e0):
                slots[e0 + i] += ex[i * per:(i + 1) * per]
        RB = [WB + 4 * ((nmain - 4 + g) % NB) for g in range(4)]
        vEps = vT + 1
        slots[nmain - 5] += mk('v_lshrrev_b32 v%d, 5, v0\nv_lshl_add_u32 v%d, v%d, 4, s%d' % (vT + 2, vT + 2, vT + 2, sT4))
        for g in range(4):
            slots[nmain - 4 + g] += mk('ds_read_b128 %s, v%d offset:%d' % (v(RB[g], 4), vT + 2, 32 * g))
        slots[nmain - 1] += mk('v_mov_b32 v%d, 0x3f803f80\nv_add_u32 v%d, s%d, v%d\nv_mov_b32 v%d, %s' % (vPoll, vT, sT4, vL16, vEps, f32(1e-6)))
        vG = SB + 12
        ga = self.kv_lane_addr(vG, vG + 1, vG + 2, gather=True)
        for i in range(0, len(ga), 3):
            slots[(o['stb'] + 1 if l else 60) + i // 3] += ga[i:i + 3]
        P.add(flat(slots[:nmain]))
        P.add(self.stamp('s1_kv_mfma'))
        DK = WB
        for hf in range(2):
            R = lambda i: v(RB[2 * hf + i // 4] + i % 4, 2)
            P.add(self.phi8(AK + 8 * hf, R, RLB, vEps) + self.pack(AK + 4 * hf, AK + 8 * hf, 4))
            P.add(flat(mk('v_pk_mul_f32 %s, %s, %s' % (v(AV + 8 * hf + i, 2), v(AV + 8 * hf + i, 2), R(i))) for i in range(0, 8, 2)))
            P.add(self.pack(AV + 4 * hf, AV + 8 * hf, 4))
            for i in range(4):
                P('v_cndmask_b32 v%d, v%d, v%d, s[%d:%d]' % (AV + 4 * hf + i, AV + 4 * hf + i, vPoll, sN28, sN28 + 1))
        P.add(mfma(DK, v(AK, 4), v(AV, 4), True) + mfma(DK, v(AK + 4, 4), v(AV + 4, 4)))
        P('s_mov_b32 s%d, 0x80808080\ns_mov_b32 s%d, 0x80808080' % (sT0 + 1, sT0 + 2))
        for q in range(4):
            P('ds_write_b128 v%d, %s offset:%d' % (vT, v(DK + 4 * q, 4), 1024 * q))
        P('v_lshlrev_b32 v%d, 3, v0\ns_waitcnt lgkmcnt(0)\ns_barrier' % vT)
        for ww in range(4):
            P('ds_read_b128 %s, v%d offset:%d' % (v(AK + 4 * ww, 4), vG, 4096 * ww))
        if l == 1:
            for j in range(nmain, nmain + NB):
                P.add(rd(j))
        for x, y in ((AK, AK + 4), (AK + 8, AK + 12), (AK, AK + 8)):
            for i in (0, 2):
                P('v_pk_add_f32 %s, %s, %s' % (v(x + i, 2), v(x + i, 2), v(y + i, 2)))
        P.add(self.pack(AK, AK, 2))
        for i in range(2):
            P('v_cndmask_b32 v%d, v%d, v%d, s[%d:%d]' % (AK + i, AK + i, vNonce, sT0 + 1, sT0 + 2))
        P('buffer_store_dwordx2 %s, v%d, %s, s%d offen sc1' % (v(AK, 2), vT, self.srd(SRD_WS), sKvMy))
        P.add(self.stamp('kv_pub'))
        PQ = self.PQ = 104

        def qepi():
            L = []
            for hf in range(2):
                L += self.phi8(AQ + 8 * hf, lambda i: v(vRl, 2) + ' op_sel_hi:[1,0]', 48, vEps) + self.pack(PQ + 4 * hf, AQ + 8 * hf, 4)
            for i in (6, 7):
                L += mk('v_cndmask_b32 v%d, v%d, 0, s[%d:%d]' % (PQ + i, PQ + i, sHalf, sHalf + 1))
            return L
        if l == 0:
            P.add(trq + mk('\n'.join('v_mov_b32 v%d, 0x3f803f80' % (CSA + 16 + i) for i in range(4))))
            P('s_mul_i32 s%d, s%d, %d\nv_add_u32 v%d, s%d, v%d' % (sT0, sW, 7 * 1024, vTr, sT0, vTrQ))
            pre = [wait_tok(self.tok_q)] + mk('s_barrier') + flat(rd(j) for j in range(nmain, nmain + NB))
            va = CSA + 20
            post = mk('v_and_b32 v%d, 31, v0\nv_lshlrev_b32 v%d, 2, v%d\nv_add_u32 v%d, %d, v%d\ns_lshl_b32 s%d, s%d, 7\nv_add_u32 v%d, s%d, v%d\nds_write_b32 v%d, v%d'
                      % (va, va, va, va, L_KVS, va, sT0, sW, va + 1, sT0, va, va + 1, CSA))

            def qfin():
                L = mk('\n'.join('ds_read_b32 v%d, v%d offset:%d' % (WB + 4 + ww, va, 128 * ww) for ww in range(4)))
                L += mk('v_add_f32 v%d, v%d, v%d\nv_add_f32 v%d, v%d, v%d\nv_add_f32 v%d, v%d, v%d' % (WB + 4, WB + 4, WB + 5, WB + 6, WB + 6, WB + 7, WB + 4, WB + 4, WB + 6))
                L += self.split_w(WB, WB + 4, WB + 5) + mk('v_mov_b32 v%d, 0\nv_mov_b32 v%d, 0\nds_write_b64 v%d, %s' % (WB + 2, WB + 3, va + 2, v(WB, 2)))
                return L + mfma(AQ, v(WB, 4), v(XE, 4)) + qepi()
            post += mk('v_mov_b32 v%d, v%d' % (va + 2, vCs))
            self.staging(pre, slots[nmain:], post, qfin)
        else:
            P.add(spread(slots[nmain:], self.kvx_pre(1)))
            P.add(qepi())

    PARK = 140

    def wo_dma(self, vwo):
        wo = [mk('v_lshrrev_b32 v%d, 2, v0\nv_mul_u32_u24 v%d, 896, v%d\nv_and_b32 v%d, 3, v0\nv_lshl_add_u32 v%d, v%d, 4, v%d\ns_lshl_b32 s%d, s%d, 6\nv_add_u32 v%d, s%d, v%d'
                 % (vwo, vwo, vwo, vT, vwo, vT, vwo, sQ0, sM, vwo, sQ0, vwo))
              + mk('s_mul_i32 s%d, s%d, %d\ns_lshl_b32 s%d, s%d, 10\ns_add_u32 s%d, s%d, %d' % (sQ1, sW, 16 * 896, sT3, sW, sT3, sT3, L_WO))]
        for t in range(7):
            wo.append(mk('s_add_u32 m0, s%d, %d\ns_add_u32 s%d, s%d, %d\nbuffer_load_dwordx4 v%d, %s, s%d offen lds' % (sT3, 4096 * t, sQ0, sQ1, t * 64 * 896, vwo, self.srd(SRD_WO), sQ0)))
        last = I('s_mov_b32 s%d, %d\ns_mov_b32 m0, %d\ns_mov_b64 exec, 0xffff\nbuffer_load_dwordx4 v%d, %s, s%d offen lds\ns_mov_b64 exec, -1'
                 % (sQ0, 448 * 896, L_WO + 28672, vwo, self.srd(SRD_WO), sQ0), kind='block', nvm=1, src=[('v', vwo)])
        self.tok_wo = tok(last)
        return wo + [[last]]

    def staging(self, qpre, qslots, qpost, qepi):
        P = self.P
        lskip, ljoin = P.newlabel('Lnostage'), P.newlabel('Lstaged')
        v1a, t0, t1, vp, vb, vb2 = 112, 113, 114, 115, 116, 168
        P('s_cmp_lt_u32 s%d, 14\ns_cselect_b32 s%d, s%d, 0' % (sM, SRD_W1 + 2, SRD_W1 + 2))
        P('v_lshrrev_b32 v%d, 2, v0\nv_mul_u32_u24 v%d, 3584, v%d\nv_and_b32 v%d, 3, v0\nv_lshl_add_u32 v%d, v%d, 4, v%d'
          % (v1a, v1a, v1a, vT, v1a, vT, v1a))
        P('s_lshl_b32 s%d, s%d, 2\ns_add_u32 s%d, s%d, s%d\ns_lshl_b32 s%d, s%d, 6\nv_add_u32 v%d, s%d, v%d' % (sT5, sM, sT5, sT5, sW, sT5, sT5, v1a, sT5, v1a))
        P('s_mul_i32 s%d, s%d, 14336\ns_add_u32 s%d, s%d, %d\ns_mul_i32 s%d, s%d, 21504\ns_mul_i32 s%d, s%d, %d' % (sT3, sW, sT3, sT3, L_EX, sQ1, sW, sWi, sD1, 14 * 16 * 3584))

        def issue(k):
            g = mk('s_add_u32 m0, s%d, %d' % ((sT3, 1024 * k) if k < 14 else (sQ1, 1024 * (k - 14))))
            g += mk('s_add_u32 s%d, s%d, %d' % (sQ0, sWi, k * 16 * 3584) if k < 14 else 's_sub_u32 s%d, %d, s%d' % (sQ0, k * 16 * 3584, sWi))
            g += mk('buffer_load_dwordx4 v%d, %s, s%d offen lds' % (v1a, self.srd(SRD_W1), sQ0))
            return g
        dm = [issue(k) for k in range(28)]
        tk = [tok(g[-1]) for g in dm]
        park = mk('\n'.join('v_accvgpr_read_b32 v%d, a%d' % (160 + i, 216 + i) for i in range(8)))
        park += mk('v_add_u32 v%d, s%d, v%d' % (vp, sQ1, vL16))
        park += flat(mk('ds_read_b128 %s, v%d offset:%d' % (a(self.PARK + 4 * i, 4), vp, 1024 * i)) for i in range(21))
        ht = self.touch([(16, SRD_CL, sHst, b * 114688) for b in range(self.o['htk'])], vT) if self.o['htk'] else []
        P.add(flat(dm[:7]) + qpre + ht + (self.stamp('q_go') if self.fine else []))
        for i, g in enumerate(dm[7:14]):
            qslots[self.o['w1q'] + 2 * i] += g
        P.add(spread(qslots, park) + qpost)
        P('s_lshl_b32 s%d, s%d, 11\ns_add_u32 s%d, s%d, %d' % (sT4, sC, sT4, sT4, WS_XCC))
        P('v_and_b32 v%d, 15, v0\nv_lshlrev_b32 v%d, 7, v%d' % (vPA, vPA, vPA))
        P('buffer_load_dword v%d, v%d, %s, s%d offen sc1' % (vPoll, vPA, self.srd(SRD_WS), sT4))
        P('s_waitcnt lgkmcnt(0)\ns_barrier')
        if self.fine:
            P.add(self.stamp('q_done'))
        vo, D = 124, 128
        ad = self.trbase(t1, 64, 4) + mk('v_add_u32 v%d, s%d, v%d\nv_add_u32 v%d, s%d, v%d' % (t0, sT3, t1, t1, sQ1, t1))
        ad += mk('\n'.join('v_mov_b32 v%d, 0x3f803f80' % (vo + i) for i in range(4)))
        n1 = self.o['w1pre']
        for k in range(14, 14 + n1):
            lb = P.newlabel('Lnw')
            blk = I('s_cmp_ge_u32 s%d, 14\ns_cbranch_scc1 %s\n%s\n%s:' % (sM, lb, '\n'.join(x.text for x in dm[k]), lb), kind='block', nvm=1, src=[('v', v1a)], cost=20)
            blk.tok = tk[k]
            dm[k] = [blk]
        P.add(spread(dm[14:14 + n1], qepi() + ad) if n1 else qepi() + ad)
        P.add(self.stamp('sweep_start') + self.sweep_loads())
        P.add([I('s_cmp_ge_u32 s%d, 14\ns_cbranch_scc1 %s' % (sM, lskip), kind='block')])
        self.ool.append('%s:\ns_waitcnt vmcnt(0)\ns_branch %s' % (lskip, ljoin))
        P('v_and_b32 v%d, 31, v0\nv_lshlrev_b32 v%d, 1, v%d\nbuffer_load_ushort v%d, v%d, %s, s%d offen' % (vT, vT, vT, vb, vT, self.srd(SRD_B1), sT5))
        P('v_lshrrev_b32 v%d, 5, v0\nv_lshlrev_b32 v%d, 3, v%d\ns_lshl_b32 s%d, s%d, 5' % (vT, vT, vT, sT2, sFe))
        P('buffer_load_dwordx2 %s, v%d, %s, s%d offen\nbuffer_load_dwordx2 %s, v%d, %s, s%d offen offset:16'
          % (v(vb2, 2), vT, self.srd(SRD_B2), sT2, v(vb2 + 2, 2), vT, self.srd(SRD_B2), sT2))

        def consume(k):
            va, o = (t0, 1024 * k) if k < 14 else (t1, 1024 * (k - 14))
            L = [wait_tok(tk[k])] + mk('ds_read_b64_tr_b16 %s, v%d offset:%d\nds_read_b64_tr_b16 %s, v%d offset:%d' % (w1half(k, 0), va, o, w1half(k, 1), va, o + 512))
            return L + (mfma(D, v(vo, 4), w1reg(k - 2), k == 2) if k >= 2 else [])
        for k in range(14):
            P.add((dm[14 + n1 + k] if 14 + n1 + k < 28 else []) + consume(k))
        P.label(ljoin)
        P.add([I('s_nop 1', kind='block', states=2)])
        P.add(self.kvx_pre(0))
        l2 = P.newlabel('Lnowo')
        wo = flat(self.wo_dma(117))
        txt, _ = finalize(wo)
        blk = I('s_cmp_ge_u32 s%d, 14\ns_cbranch_scc1 %s\n%s\n%s:' % (sM, l2, '\n'.join(t.strip() for t in txt.split('\n') if t.strip()), l2),
                kind='block', nvm=8, dst=[('v', 117), ('v', vT)], src=[('v', 0)])
        self.tok_wo = tok(blk)
        self.after_kvb = [blk]
        ns = self.o['w1o']
        L = flat(consume(k) for k in range(ns, 28)) + mfma(D, v(vo, 4), w1reg(26)) + mfma(D, v(vo, 4), w1reg(27))
        L += self.unpack(144, vb2, 4) + mk('\n'.join('v_mov_b32 v%d, 0' % r for r in range(152, 156)))
        L += mk('s_lshl_b32 s%d, s%d, 7\ns_add_u32 s%d, s%d, %d\nv_lshrrev_b32 v%d, 5, v0\nv_lshl_add_u32 v%d, v%d, 6, s%d' % (sT0, sW, sT0, sT0, L_B2, vT, vT, vT, sT0))
        for q in range(4):
            L += mk('ds_write_b128 v%d, %s offset:%d' % (vT, v(144 + 4 * min(q, 2), 4), 16 * q))
        L += self.split_w(vW1X, D, vT + 1) + mk('v_lshl_or_b32 v%d, v%d, 16, v%d' % (vb, vb, vb))
        L += mk('v_cndmask_b32 v%d, v%d, v%d, s[%d:%d]\nv_cndmask_b32 v%d, v%d, 0, s[%d:%d]' % (vW1X, vW1X, vb, sHalf, sHalf + 1, vW1X + 1, vW1X + 1, sHalf, sHalf + 1))
        self.after_x1 = L + mk('s_waitcnt lgkmcnt(0)')
        self.after_o = flat(consume(k) for k in range(14, ns)) + self.xsrc() + [wait_tok(self.tok_wo)] + mk('s_waitcnt lgkmcnt(0)\ns_barrier') + flat(self.s2_rd(i) for i in range(4))

    def sweep_loads(self):
        return flat(self.frag_loads([v(32 + 4 * i, 4) for i in range(8)], SRD_WS, sKv, 0, flags='sc1'))

    def w2_prefetch(self, va, first, per):
        m = (1 << per) - 1
        txt = ['s_lshr_b32 s%d, s%d, 3' % (sQ0, sC), 's_mul_i32 s%d, s%d, 14' % (sQ0, sQ0), 's_add_u32 s%d, s%d, s%d' % (sQ0, sQ0, sM),
               's_lshl_b32 s%d, s%d, 2' % (sQ0, sQ0), 's_add_u32 s%d, s%d, s%d' % (sQ0, sQ0, sW), 's_mul_i32 s%d, s%d, %d' % (sQ0, sQ0, per * 128),
               's_add_u32 s%d, s%d, %d' % (sQ0, sQ0, first * 128), 'v_lshlrev_b32 v%d, 7, v0' % va,
               's_mov_b32 exec_lo, 0x%x' % (m & 0xffffffff), 's_mov_b32 exec_hi, 0x%x' % (m >> 32),
               'buffer_load_dword v%d, v%d, %s, s%d offen' % (vDummy, va, self.srd(SRD_W2), sQ0), 's_mov_b64 exec, -1']
        return [I('\n'.join(txt), kind='block', nvm=1, src=[('v', 0)], dst=[('v', va)], cost=52)]

    W2V = (15, 106, 5, 13, 140)

    def w2_addr(self):
        v2a, tA, tB, vp, tS = self.W2V
        L = mk('v_lshrrev_b32 v%d, 3, v0\nv_mul_u32_u24 v%d, 896, v%d\nv_lshrrev_b32 v%d, 2, v0\nv_and_b32 v%d, 4, v%d\nv_xor_b32 v%d, v%d, v0\nv_and_b32 v%d, 7, v%d\nv_lshl_add_u32 v%d, v%d, 4, v%d'
               % (v2a, v2a, v2a, vT, vT, vT, vT, vT, vT, vT, v2a, vT, v2a))
        L += mk('s_lshr_b32 s%d, s%d, 1\ns_lshl_b32 s%d, s%d, 7\ns_mul_i32 s%d, s%d, %d\ns_add_u32 s%d, s%d, s%d\nv_add_u32 v%d, s%d, v%d'
                % (sT0, sM, sT0, sT0, sT2, sW, 32 * 896, sT0, sT0, sT2, v2a, sT0, v2a))
        L += mk('s_mul_i32 s%d, s%d, 7168\ns_add_u32 s%d, s%d, %d\ns_lshl_b32 s%d, s%d, 12\ns_add_u32 s%d, s%d, %d'
                % (sRot, sW, sRot, sRot, L_EX, sQ1, sW, sQ1, sQ1, L_KVS))
        L += mk('s_lshr_b32 s%d, s%d, 1' % (sT0, sW)) + self.trbase(tA, 128, 4, xor16=sT0)
        L += mk('s_and_b32 s%d, s%d, 1\nv_bfe_u32 v%d, v0, 3, 1\nv_xor_b32 v%d, s%d, v%d\nv_lshl_add_u32 v%d, v%d, 6, v%d\nv_xor_b32 v%d, 64, v%d'
                % (sT0, sW, vT, vT, sT0, vT, tA, vT, tA, tA + 1, tA))
        L += mk('s_mul_i32 s%d, s%d, 10240\nv_add_u32 v%d, s%d, v%d\nv_add_u32 v%d, s%d, v%d' % (sWi, sW, tS, sWi, tA, tS + 1, sWi, tA + 1))
        L2 = mk('v_add_u32 v%d, s%d, v%d\nv_add_u32 v%d, s%d, v%d\nv_add_u32 v%d, s%d, v%d\nv_add_u32 v%d, s%d, v%d' % (tB, sQ1, tA, tB + 1, sQ1, tA + 1, tA, sRot, tA, tA + 1, sRot, tA + 1))
        L2 += mk('s_mul_i32 s%d, s%d, 21504\nv_add_u32 v%d, s%d, v%d' % (sT0, sW, vp, sT0, vL16))
        return L, L2

    def w2_steps(self, u0, u1, shadow):
        v2a, tA, tB, vp, tS = self.W2V
        NS = 5

        def where(u):
            n = (u - u0) % NS
            if shadow:
                return sWi, tS, n * 2048
            return (sRot, tA, n * 2048) if n < 3 else (sQ1, tB, (n - 3) * 2048)

        def issue(u):
            out = []
            base, _, o = where(u)
            for i in range(2):
                g = mk('s_add_u32 m0, s%d, %d' % (base, o + 1024 * i))
                g += mk('s_mov_b32 s%d, %d' % (sQ0, (128 * (u // 2) + 16 * (u % 2) + 8 * i) * 896))
                out += g + mk('buffer_load_dwordx4 v%d, %s, s%d offen lds' % (v2a, self.srd(SRD_W2), sQ0))
            return out, tok(out[-1])
        tk, first, steps, prev = {}, [], [], None
        for u in range(u0, min(u0 + NS - 1, u1)):
            g, tk[u] = issue(u)
            first.append(g)
        for u in range(u0, u1):
            _, ta, o = where(u)
            A = []
            if u + NS - 1 < u1:
                if prev:
                    A += [wait_tok(prev)]
                g, tk[u + NS - 1] = issue(u + NS - 1)
                A += g
            B = [wait_tok(tk[u])]
            for js in range(2):
                b = W2A + 8 * u + 4 * js
                B += mk('ds_read_b64_tr_b16 %s, v%d offset:%d\nds_read_b64_tr_b16 %s, v%d offset:%d' % (a(b, 2), ta + js, o, a(b + 2, 2), ta + js, o + 1024))
            prev = tok(B[-1])
            steps.append((A, B))
        return first, steps

    def w2_stage(self, fill, u0, u1, extra):
        P = self.P
        first, steps = self.w2_steps(u0, 28, False)
        P.add(flat(first))
        rest = [mk('ds_write_b128 v%d, %s offset:%d' % (self.W2V[3], a(self.PARK + 4 * i, 4), 1024 * i)) for i in range(21)]
        out, done = [], 0
        for n, (A, B) in enumerate(steps):
            u = u0 + n
            want = sum(1 for i in range(21) if 17 + (i + 1) // 2 <= u)
            out.append((A, rest[done:want], B + extra.get(u, []) + (self.stamp('w2_%d' % u) if self.fine else [])))
            done = want
        P.add(spread([A + flat(R) + B for A, R, B in out[:u1 - u0]], fill, start=0, end=self.o['w2fill']))
        return out[u1 - u0:]

    K10 = 98

    def kvx_pre(self, l):
        L = []
        RES = 160
        if l == 1:
            L += mk('s_add_u32 s%d, s%d, s%d' % (sT0, sOst, sXin))
            for j in range(2):
                L += mk('buffer_load_dwordx4 %s, v%d, %s, s%d offen offset:%d sc1' % (v(RES + 4 * j, 4), vL16, self.srd(SRD_CL), sT0, 1024 * j))
            L += [I('s_mul_i32 s%d, s%d, %d\ns_add_u32 s%d, s%d, s%d\ns_addc_u32 s%d, s%d, 0\ns_sub_u32 s%d, s%d, s%d'
                    % (sT0, sSlow, LOFF, SRD_CL, SRD_CL, sT0, SRD_CL + 1, SRD_CL + 1, SRD_CL + 2, SRD_CL + 2, sT0), kind='block', cost=16)]
        L += [I('s_cmp_eq_u32 s%d, 3\ns_cselect_b32 s%d, 0xffff0000, 0\ns_cselect_b32 s%d, 0xffff0000, 0' % (sW, sPm, sPm + 1), kind='block', cost=12)]
        L += self.kv_lane_addr(self.KA, self.KA + 1, self.KA + 2, gather=False)
        g, t = self.KA + 1, self.KA + 2
        L += mk('\n'.join(['v_bfe_u32 v%d, v0, 3, 1' % g, 'v_and_b32 v%d, 3, v0' % t, 'v_lshl_add_u32 v%d, v%d, 2, v%d' % (g, g, t),
                           'v_cmp_eq_u32 vcc, 7, v%d' % g, 'v_bfe_u32 v%d, v0, 4, 1' % t, 'v_mad_u32_u24 v%d, v%d, 14, v%d' % (g, t, g),
                           'v_bfe_u32 v%d, v0, 2, 1' % t, 'v_mad_u32_u24 v%d, v%d, 7, v%d' % (g, t, g), 'v_cndmask_b32 v%d, v%d, 28, vcc' % (g, g),
                           'v_and_b32 v%d, 32, v0' % t, 'v_add_u32 v%d, v%d, v%d' % (g, g, t), 'v_lshlrev_b32 v%d, 5, v%d' % (g, g), 'v_add_u32 v%d, %d, v%d' % (g, L_KVB, g)]))
        L += mk('s_and_b32 s%d, s%d, 0x1fff\ns_or_b32 s%d, s%d, 0x4000\ns_lshl_b32 s%d, s%d, 16' % (sTag, sNonce, sTag, sTag, sTag + 1, sTag))
        L += mk('v_mov_b32 v%d, 0x3f80\nv_mov_b32 v%d, 0x3f800000' % (self.K10, self.K10 + 1))
        return L

    KA = 100

    def kvx(self, l):
        P = self.P
        P.comment('==== layer %d : kv exchange' % l)
        if l == 0:
            lw, lb = P.newlabel('Lxcc'), P.newlabel('Lxok')
            P('v_subrev_u32 v%d, s%d, v%d\nv_cmp_lt_u32 vcc, 15, v%d' % (vPoll, sNonce, vPoll, vPoll))
            P.add([I('s_cbranch_vccnz %s\n%s:' % (lw, lb), kind='block')])
            self.ool.append('\n'.join([
                lw + ':',
                'buffer_load_dword v%d, v%d, %s, s%d offen sc1' % (vPoll, vPA, self.srd(SRD_WS), sT4),
                's_add_u32 s%d, s%d, 1' % (sSpin, sSpin),
                's_cmp_gt_u32 s%d, 0x40000' % sSpin,
                's_cbranch_scc1 L_end',
                's_waitcnt vmcnt(0)',
                'v_subrev_u32 v%d, s%d, v%d' % (vPoll, sNonce, vPoll),
                'v_cmp_lt_u32 vcc, 15, v%d' % vPoll,
                's_cbranch_vccnz %s' % lw,
                's_branch %s' % lb]))
            P('v_cmp_ne_u32 vcc, s%d, v%d\ns_cmp_lg_u64 vcc, 0\ns_cselect_b32 s%d, 1, 0\ns_mov_b32 s%d, %d\ns_cselect_b32 s%d, %d, s%d' % (sXcc, vPoll, sSlow, sXin, X1_OFF if self.o['alias'] else XIN_OFF, sXin, XIN_OFF, sXin))
        K10, K01 = self.K10, self.K10 + 1
        if l == 1:
            if self.o['kvdelay']:
                P('s_sleep %d' % self.o['kvdelay'])
            P.add(self.stamp('sweep_start') + self.sweep_loads())
        P('v_and_b32 v%d, 15, v0\nv_lshlrev_b32 v%d, 11, v%d\nv_add_u32 v%d, 2044, v%d' % (vPA, vPA, vPA, vPA, vPA))
        P.add(self.trbase(vTr, 64, 7, add=L_WO))
        P.add(self.s2_pre(l))
        P('s_mov_b32 s%d, 0x88888888\ns_mov_b32 s%d, 0x88888888' % (sPm, sPm + 1))
        lsw, lre = P.newlabel('Lsweep'), P.newlabel('Lresweep')
        P.label(lsw)
        B = 32
        bad, S = vT, 64
        P('v_mov_b32 v%d, 0' % bad)
        for i in range(8):
            for k in range(4):
                for hh, K in enumerate((K10, K01)):
                    P('v_dot2_f32_bf16 v%d, v%d, v%d, %s' % (S + 2 * k + hh, B + 4 * i + k, K, 'v%d' % (S + 2 * k + hh) if i else '0'))
            for k in (2, 3):
                P('v_bitop3_b32 v%d, v%d, s%d, v%d bitop3:0xbe' % (bad, B + 4 * i + k, sNonce, bad))
        P('v_cmp_ne_u32 vcc, 0, v%d\ns_and_b64 vcc, vcc, s[%d:%d]' % (bad, sPm, sPm + 1))
        P.add([I('s_cbranch_vccnz %s' % lre, kind='block', states=1)])
        self.ool.append('%s:\ns_sleep 6\ns_add_u32 s%d, s%d, 1\ns_cmp_gt_u32 s%d, 0x40000\ns_cbranch_scc1 L_end\n%s\ns_waitcnt vmcnt(0)\ns_branch %s'
                        % (lre, sSpin, sSpin, sSpin, '\n'.join(x.text for x in self.sweep_loads()), lsw))
        P.add(self.stamp('sweep_done'))
        for k in range(4):
            P('v_permlane32_swap_b32 v%d, v%d' % (S + k, S + 4 + k))
        for k in (0, 2):
            P('v_pk_add_f32 %s, %s, %s' % (v(S + k, 2), v(S + k, 2), v(S + 4 + k, 2)))
        P.add(self.pack(S, S, 2))
        P('ds_write_b64 v%d, %s' % (self.KA, v(S, 2)))
        P('s_waitcnt lgkmcnt(0)\ns_barrier')
        KF, D = 72, 80
        P('ds_read_b128 %s, v%d\nds_read_b128 %s, v%d offset:16' % (v(KF, 4), self.KA + 1, v(KF + 4, 4), self.KA + 1))
        P.add(flat(self.s2_rd(i) for i in range(4)) if l else self.after_kvb)
        P.add(mfma(D, v(KF, 4), v(self.PQ, 4), True))
        for i in (6, 7):
            P('v_cndmask_b32 v%d, v%d, 0, s[%d:%d]' % (KF + i, KF + i, sHalf, sHalf + 1))
        P.add(mfma(D, v(KF + 4, 4), v(self.PQ + 4, 4)))
        t1 = 120
        P('v_add_f32 v%d, %s, v%d\nv_rcp_f32 v%d, v%d\nv_mul_f32 v%d, s%d, v%d' % (t1, f32(1e-6), D + 7, t1, t1, t1, sLn2, t1))
        for r in range(0, 16, 2):
            P('v_pk_mul_f32 %s, %s, %s op_sel_hi:[1,0]' % (v(D + r, 2), v(D + r, 2), v(t1, 2)))
        P('v_mov_b32 v%d, s%d\nv_mov_b32 v%d, s%d' % (D + 7, sTag + 1, D + 15, sTag + 1))
        P.add(self.pack(D, D, 8))
        st = self.stores(['buffer_store_dwordx4 %s, v%d, %s, s%d offen offset:%d' % (v(D + 4 * j, 4), vL16, self.srd(SRD_CL), sOst, 1024 * j) for j in range(2)])
        P.add(st)
        P.add(self.stamp('o_pub'))

    def s2_rd(self, i):
        WB, o = 144 + 4 * (i % 4), 1792 * (i // 2) + 896 * (i % 2)
        return mk('ds_read_b64_tr_b16 %s, v%d offset:%d\nds_read_b64_tr_b16 %s, v%d offset:%d' % (v(WB, 2), vTr, o, v(WB + 2, 2), vTr, o + 256))

    def s2_pre(self, l):
        L = self.s4_consts(l)
        L += mk('s_add_u32 s%d, s%d, %d' % (sT4, sOst, X1_OFF))
        L += mk('s_lshr_b32 s%d, s%d, 2\ns_lshl_b32 s%d, s%d, 10\ns_and_b32 s%d, s%d, 3\ns_lshl_b32 s%d, s%d, 2\ns_add_u32 s%d, s%d, s%d\ns_add_u32 s%d, s%d, s%d\ns_add_u32 s%d, s%d, %d'
                % (sT5, sM, sT5, sT5, sT1, sM, sT1, sT1, sT5, sT5, sT1, sT5, sT5, sBlk, sT5, sT5, X1_OFF + 28672))
        return L + self.unpack(16, 160, 8)

    def s2(self, l):
        P = self.P
        o = self.o
        P.comment('==== layer %d : S2' % l)
        ACC, OF, WB, RES = 16, 32, 144, 160
        NB = 4
        lre, lfail = P.newlabel('Ls2'), P.newlabel('Ls2again')
        if l == 0:
            P.add(self.after_o)
        P.label(lre)
        P.add(self.poll_issue(sBlk, o['pdo'] if l else 0))
        rd = self.s2_rd
        bad = vT
        P('v_mov_b32 v%d, 0' % bad)
        P.add(self.poll_check(sBlk, tag=True))
        P.add(self.stamp('o_seen'))
        oreg = [OF + 4 * (i % (28 if l else 18)) for i in range(32)]
        lds = self.frag_loads([v(r, 4) for r in oreg], SRD_CL, sBlk, O_OFF, flags='sc1')
        n = o['look2']
        P.add(flat(lds[:n]))
        chk = lambda i: mk('v_bitop3_b32 v%d, v%d, s%d, v%d bitop3:0xbe\nv_and_b32 v%d, 0xffff, v%d' % (bad, oreg[i] + 3, sTag + 1, bad, oreg[i] + 3, oreg[i] + 3))
        P.add(chk(0))
        for i in range(32):
            if i + n < 32:
                P.add(lds[i + n])
            P.add(mfma(ACC, v(WB + 4 * (i % NB), 4), v(oreg[i], 4)))
            if self.fine and i in (0, 8, 16, 31):
                P.add(self.stamp('s2_%d' % i))
            if i + NB < 32:
                P.add(rd(i + NB))
            if i + 1 < 32:
                P.add(chk(i + 1))
            if i == 28:
                P.add(self.pa(14, blocks=True, reg=vT + 2))
        P('v_cmp_lt_u32 vcc, 0xffff, v%d' % bad)
        P.add([I('s_cbranch_vccnz %s' % lfail, kind='block', states=1)])
        again = '\n'.join(x.text for x in self.unpack(ACC, RES, 8) + flat(rd(i) for i in range(NB)))
        self.ool.append('%s:\ns_add_u32 s%d, s%d, 1\ns_cmp_gt_u32 s%d, 0x40000\ns_cbranch_scc1 L_end\ns_nop 15\n%s\ns_waitcnt lgkmcnt(0)\ns_branch %s'
                        % (lfail, sSpin, sSpin, sSpin, again, lre))
        P('v_mov_b32 v%d, v%d' % (vPA, vT + 2))
        P.add(self.pack(OF, ACC, 8))
        P.add(self.stores(['buffer_store_dwordx4 %s, v%d, %s, s%d offen offset:%d' % (v(OF + 4 * j, 4), vL16, self.srd(SRD_CL), sT4, 1024 * j) for j in range(2)]))
        P.add(self.row_stats(OF, 8, vT, vT + 2))
        st = self.stores(['buffer_store_dword v%d, v%d, %s, s%d offen' % (vT, vL16, self.srd(SRD_CL), sT5)])
        tk = tok(st[-1])
        P.add(st)
        if self.fine:
            P.add(self.stamp('x1_st'))
        P.add(self.flag([tk], sFoMy, FX1 - FO))
        P.add(self.stamp('x1_pub'))

    def gelu(self, acc, KK, T):
        pr = range(0, 16, 2)
        A = flat(mk('v_pk_mul_f32 %s, %s, %s' % (v(T + i, 2), v(acc + i, 2), v(acc + i, 2))) for i in pr)
        A += flat(mk('v_pk_fma_f32 %s, %s, %s, %s op_sel:[0,1,0] op_sel_hi:[1,1,0]' % (v(T + i, 2), v(T + i, 2), v(KK, 2), v(KK, 2))) for i in pr)
        A += flat(mk('v_pk_mul_f32 %s, %s, %s' % (v(T + i, 2), v(T + i, 2), v(acc + i, 2))) for i in pr)
        E = flat(mk('v_exp_f32 v%d, v%d' % (T + i, T + i)) for i in range(16))
        B = flat(mk('v_pk_fma_f32 %s, %s, %s, %s op_sel_hi:[1,0,0]' % (v(T + i, 2), v(T + i, 2), v(KK + 2, 2), v(KK + 2, 2))) for i in pr)
        R = flat(mk('v_rcp_f32 v%d, v%d' % (T + i, T + i)) for i in range(16))
        C = flat(mk('v_pk_mul_f32 %s, %s, %s' % (v(acc + i, 2), v(acc + i, 2), v(T + i, 2))) for i in pr)
        pk = self.pack(acc, acc, 8)
        g4 = lambda f, g: flat(mk(f(4 * g + i)) for i in range(4))
        e = lambda g: E[4 * g:4 * g + 4]
        r = lambda g: R[4 * g:4 * g + 4]
        b = lambda g: g4(lambda i: 'v_fma_f32 v%d, v%d, v%d, v%d' % (T + i, T + i, KK + 2, KK + 2), g)
        c = lambda g: g4(lambda i: 'v_mul_f32 v%d, v%d, v%d' % (acc + i, acc + i, T + i), g) + pk[2 * g:2 * g + 2]
        tail = e(0) + e(1) + b(0) + r(0) + e(2) + b(1) + c(0) + r(1) + e(3) + b(2) + c(1) + r(2) + b(3) + c(2) + r(3) + c(3)
        return A, A + E + B + R + C + pk, tail

    XSRC = (4, 5, 6, 7, 8, 9, 10, 11, 12, 13, 14, 15, 20, 21)

    def xsrc(self):
        L = mk('s_lshl_b32 s%d, s%d, 1\ns_mul_i32 s%d, s%d, 14\ns_add_u32 s%d, s%d, s%d\ns_mov_b32 s%d, %d' % (sT0, sW, sT1, sD1, sT1, sT1, sT0, sT2, X1_OFF))
        for c, r in enumerate(self.XSRC):
            if c:
                L += mk('s_add_u32 s%d, s%d, 8\ns_cmp_ge_u32 s%d, 28\ns_cselect_b32 s%d, 28, 0\ns_cselect_b32 s%d, 0x8000, 0\ns_sub_u32 s%d, s%d, s%d\ns_add_u32 s%d, s%d, s%d'
                        % (sT0, sT0, sT0, sT3, r, sT0, sT0, sT3, sT2, sT2, r))
                L += mk('s_add_u32 s%d, s%d, 8\ns_cmp_ge_u32 s%d, 28\ns_cselect_b32 s%d, 28, 0\ns_sub_u32 s%d, s%d, s%d' % (sT1, sT1, sT1, sT3, sT1, sT1, sT3))
            L += mk('s_lshl_b32 s%d, s%d, 10\ns_add_u32 s%d, s%d, s%d' % (r, sT1, r, r, sT2))
        return L

    SEL = 172

    def s4_consts(self, l):
        U, SEL = 120, self.SEL
        sel = mk('\n'.join(['v_lshrrev_b32 v%d, 5, v0' % SEL,
                             'v_lshlrev_b32 v%d, 2, v%d' % (SEL, SEL), 'v_and_b32 v%d, 31, v0' % (SEL + 1), 'v_sub_u32 v%d, v%d, v%d' % (U, SEL + 1, SEL),
                             'v_mov_b32 v%d, 0x3f80' % (U + 1), 'v_mov_b32 v%d, 0x3f800000' % (U + 2)]))
        for q, r0 in enumerate((0, 2, 8, 10)):
            sel += mk('v_cmp_eq_u32 vcc, %d, v%d\nv_cmp_eq_u32 s[%d:%d], %d, v%d\ns_nop 0\nv_cndmask_b32 v%d, 0, v%d, vcc\nv_cndmask_b32 v%d, v%d, v%d, s[%d:%d]'
                      % (r0, U, sPm, sPm + 1, r0 + 1, U, SEL + q, U + 1, SEL + q, SEL + q, U + 2, sPm, sPm + 1))
        for q, sB in enumerate((sEb, sLb)):
            sel += mk('s_lshl_b32 s%d, s%d, 15\ns_lshl_b32 s%d, s%d, 10\ns_add_u32 s%d, s%d, s%d\ns_add_u32 s%d, s%d, %d' % (sT0, sB, sT2, sFe, sT0, sT0, sT2, sRes + q, sT0, X1_OFF))
            if l == 0:
                sel += mk('s_add_u32 s%d, s%d, s%d\ns_lshl_b32 s%d, s%d, 13' % (sFin + q, sT0, sXin, sT0, sB))
                sel += mk('s_lshr_b32 s%d, s%d, 2\ns_lshl_b32 s%d, s%d, 10\ns_add_u32 s%d, s%d, s%d\ns_and_b32 s%d, s%d, 3\ns_lshl_b32 s%d, s%d, 2\ns_add_u32 s%d, s%d, s%d\ns_add_u32 s%d, s%d, %d'
                          % (sT2, sFe, sT2, sT2, sT0, sT0, sT2, sT2, sFe, sT2, sT2, sT0, sT0, sT2, sFin + 2 + q, sT0, XST_OFF))
                sel += mk('s_lshl_b32 s%d, s%d, 5\ns_add_u32 s%d, s%d, s%d\ns_lshl_b32 s%d, s%d, 2\ns_add_u32 s%d, s%d, %d' % (sT2, sB, sT2, sT2, sFe, sT2, sT2, sFin + 4 + q, sT2, FXIN))
            else:
                sel += mk('s_lshl_b32 s%d, s%d, 2\ns_add_u32 s%d, s%d, s%d\ns_mul_i32 s%d, s%d, %d\ns_lshl_b32 s%d, s%d, 5\ns_add_u32 s%d, s%d, s%d'
                          % (sT0, sC, sT0, sT0, sB, sT0, sT0, 32 * 896, sT2, sFe, sFin + q, sT0, sT2))

        return sel

    def mlp(self, l):
        P = self.P
        o = self.o
        P.comment('==== layer %d : MLP' % l)
        ACC = (16, 32)
        XB, EXB, WEX, T, RING = 48, 72, 76, 80, 108
        KK = (96, 100)
        SEL, vB2, vX2 = self.SEL, 104, 105
        NB = 6
        if l == 0:
            P.add(self.after_x1)
        P('s_mov_b32 s%d, %d' % (sT4, FX1))
        if not o['p1']:
            P.add(self.poll_issue(sT4, o['pdx']))
        P('s_lshl_b32 s%d, s%d, 11' % (sT5, sW))
        P('v_mov_b32 v%d, v%d\nv_mov_b32 v%d, v%d' % (WEX, vW1X, WEX + 1, vW1X + 1))
        P('\n'.join('v_mov_b32 v%d, 0' % r for r in (WEX + 2, WEX + 3, EXB + 2, EXB + 3)))
        vE8, vK16 = vTr, vT + 3
        P('v_lshlrev_b32 v%d, 3, v0\nv_add_u32 v%d, %d, v%d' % (vE8, vE8, L_KVS, vE8))
        P('v_and_b32 v%d, 31, v0\nv_lshlrev_b32 v%d, 4, v%d\nv_add_u32 v%d, %d, v%d' % (vK16, vK16, vK16, vK16, L_KVS + 512, vK16))
        P('v_add_u32 v%d, %d, v%d' % (vX2, 56 * 1024, vL16))
        P('s_lshl_b32 s%d, s%d, 7\ns_add_u32 s%d, s%d, %d\nv_lshrrev_b32 v%d, 5, v0\nv_lshl_add_u32 v%d, v%d, 6, s%d' % (sT3, sW, sT3, sT3, L_B2, vB2, vB2, vB2, sT3))
        P('s_add_u32 s%d, s%d, %d' % (sT1, sBlk, X1_OFF + 28672))
        if o['p1']:
            lq = P.newlabel('Lnp')
            c = self.poll_check(sT4)[0]
            P.add([I('s_cmp_lg_u32 s%d, 0\ns_cbranch_scc1 %s\n%s\ns_waitcnt vmcnt(0)\n%s\n%s:\ns_barrier'
                     % (sW, lq, '\n'.join(x.text for x in self.poll_issue(sT4, o['pdx'] if l else 0)), c.text, lq), kind='block', src=[('v', vPA)], dst=c.dst, states=2)])
        else:
            P.add(self.poll_check(sT4))
        P.add(self.stamp('x1_seen'))
        xd, tc = [], []
        for c, r in enumerate(self.XSRC):
            g = mk('s_add_u32 m0, s%d, %d' % (sT5, 8192 * c))
            g += mk('buffer_load_dwordx4 v%d, %s, s%d offen sc1 lds\nbuffer_load_dwordx4 v%d, %s, s%d offen offset:1024 sc1 lds' % (vL16, self.srd(SRD_CL), r, vL16, self.srd(SRD_CL), r))
            tc.append(tok(g[-1]))
            xd.append(g)
        stl = [mk('buffer_load_dwordx4 %s, v%d, %s, s%d offen offset:%d sc1' % (v(RING + 4 * i, 4), vL16, self.srd(SRD_CL), sT1, 1024 * i)) for i in range(4)]
        sp = o['stpos']
        P.add({0: flat(stl) + xd[0] + xd[1], 1: xd[0] + xd[1] + flat(stl), 2: xd[0] + xd[1], 3: xd[0] + flat(stl[:2]) + xd[1]}[sp])
        K0 = KK[1]
        st0 = []
        for x, y in ((0, 1), (2, 3), (4, 5), (6, 7), (8, 9), (10, 11), (12, 13), (0, 2), (4, 6), (8, 10), (0, 4), (8, 12)):
            st0 += mk('v_add_f32 v%d, v%d, v%d' % (RING + x, RING + x, RING + y))
        st0 += mk('v_add_f32 v%d, v%d, v%d' % (T, RING, RING + 8))
        st0 += self.stats_finish(T, True)
        st0 += mk('\n'.join(['v_rcp_f32 v%d, v%d' % (K0 + 2, vRl),
                             'v_mul_f32 v%d, s%d, v%d' % (K0, sC0, vRl),
                             'v_mul_f32 v%d, v%d, v%d' % (T, vRl, vRl),
                             'v_mul_f32 v%d, s%d, v%d' % (K0 + 1, sC1, vRl),
                             'v_mul_f32 v%d, v%d, v%d' % (K0 + 1, K0 + 1, T),
                             'v_sub_f32 v%d, 0, v%d' % (vMean, vMean),
                             'v_cndmask_b32 v%d, v%d, v%d, s[%d:%d]' % (vMean, vMean, K0 + 2, sHalf, sHalf + 1)]))
        st0 += self.split_act(T + 2, vMean, T)
        st0 += mk('s_lshl_b32 s%d, s%d, 10\nv_add_u32 v%d, s%d, v%d\nv_add_u32 v%d, s%d, v%d' % (sT4, sW, vT, sT4, vE8, vT + 1, sT4, vK16))
        st0 += mk('ds_write_b64 v%d, %s\nds_write_b128 v%d, %s' % (vT, v(T + 2, 2), vT + 1, v(K0, 4)))
        tst = tok(st0[-1])

        def hpub(b):
            pre = mk('s_add_u32 s%d, s%d, %d' % (sT4, sHst, b * 114688))
            st = self.stores(['buffer_store_dwordx4 %s, v%d, %s, s%d offen offset:%d' % (v(ACC[b & 1] + 4 * j, 4), vL16, self.srd(SRD_CL), sT4, 1024 * j) for j in range(2)])
            return pre + st, tok(st[-1])
        hflag = lambda b, tk: self.flag([tk], sFoMy, FH - FO + 512 * b)
        extrd = lambda b: mk('ds_read_b64 %s, v%d offset:%d\nds_read_b128 %s, v%d offset:%d' % (v(EXB, 2), vE8, 1024 * b, v(KK[b & 1], 4), vK16, 1024 * b))
        extmf = lambda b: mfma(ACC[b & 1], v(WEX, 4), v(EXB, 4))
        hreg = [RING + 4 * (i % 16) for i in range(56)]

        def hload(i):
            blk, kap = divmod(i, 28)
            g = mk('s_add_u32 s%d, s%d, %d' % (sHs, (sHE, sHL)[blk], 8192 * (kap // 2))) if kap % 2 == 0 else []
            return g + mk('buffer_load_dwordx4 %s, v%d, %s, s%d offen offset:%d sc1' % (v(hreg[i], 4), vL16, self.srd(SRD_CL), sHs, 1024 * (kap % 2)))
        P.add([wait_tok(tc[0])])
        P('s_barrier')
        P.add(self.stamp('s3_b0'))
        rdj = lambda j: mk('ds_read_b128 %s, v%d offset:%d' % (v(XB + 4 * (j % NB), 4), vL16 if j < 56 else vX2, 1024 * (j % 56)))
        for j in range(NB):
            P.add(rdj(j))
        isl = lambda c: 0 if c == 2 else o['x0'] + (o['xstep'] * (c - 3)) // 2
        bars, cov = {}, 0
        for c in range(1, 14):
            sj = 8 * c - 5
            if c > cov or sj in (27, 43):
                cov = max([c] + [d for d in range(3, 14) if isl(d) + o['xlag'] <= sj])
                bars[sj] = [tc[cov]] + ([tst] if sj == 27 else [])
        slots = []
        for j in range(112):
            b, k = divmod(j, 28)
            sl = mfma(ACC[b & 1], w1reg(k), v(XB + 4 * (j % NB), 4), k == 0)
            if k % 2 == 0:
                also_waits_for(sl[0], v(XB + 4 * ((j + 1) % NB), 4))
            if j in bars:
                sl += (self.stamp('pb%d' % j) if self.fine else []) + [wait_tok(*bars[j])] + mk('s_barrier') + (self.stamp('ab%d' % j) if self.fine else [])
            if k % 2 == 1:
                for jj in (j + NB - 1, j + NB):
                    if jj < 112:
                        sl += rdj(jj)
            if (k == 25 and b) or j == 27:
                sl += extrd(b)
            if (k == 27 and b) or j == 30:
                sl += extmf(b if k == 27 else 0)
            slots.append(sl)
        slots[0] += stl[0] + stl[1] if sp == 2 else []
        slots[1 if sp == 2 else 0] += xd[2]
        slots[3 if sp == 2 else 2] += stl[2] + stl[3] if sp >= 2 else []
        for c in range(3, 14):
            slots[isl(c)] += xd[c]
        pre0, pre1 = self.w2_addr() if l == 0 else ([], [])
        slots[26] += pre1
        nsh = o['nsh'] if l == 0 else 0
        if nsh:
            first, steps = self.w2_steps(0, nsh, True)
            p0 = o['sh0']
            for i, g in enumerate(first):
                slots[p0 + 2 * i] += g
            p1 = p0 + 2 * len(first) + o['shgap']
            for n, (A, B) in enumerate(steps):
                sj = p1 + (n * (110 - p1)) // nsh
                slots[sj] += A
                slots[sj + 1] += B
            if o['idlew2'] < 13:
                slots[o['pf2']] += self.w2_prefetch(vT, 1024 * o['idlew2'], -(-(12544 - 1024 * o['idlew2']) // 112))
        out = spread(slots[:o['st0']], pre0) + spread(slots[o['st0']:o['st1']], st0) + flat(slots[o['st1']:28])
        pend = None
        for b in range(1, 4):
            gA, _, tail = self.gelu(ACC[(b - 1) & 1], KK[(b - 1) & 1], T)
            s0 = 28 * b + (5 if b == 1 else 2)
            st, nxt = hpub(b - 1)
            if l == 0 and b < 3 and not nsh:
                st = st + self.w2_prefetch(vT, (b - 1) * 6272, 56)
            slots[s0] += gA
            if pend is not None and l == 1:
                slots[28 * b + o['flagpos']] += hflag(b - 2, pend)
            pend = nxt
            if b == 3 and l == 1:
                slots[84 + o['pollE']] += self.pa(14) + self.poll_issue(sPE)
                n3 = o['n3']
                slots[112 - n3] += (self.stamp('preE') if self.fine else []) + self.poll_check(sPE) + (self.stamp('gotE') if self.fine else [])
                for i in range(n3):
                    slots[112 - n3 + i] += hload(i)
            if b == 1 or self.fine:
                out += self.stamp('s3_b%d' % b)
            out += flat(slots[28 * b:s0 + 1]) + spread(slots[s0 + 1:28 * b + 28], tail + st, end=28 * b + o['gend'] - s0)
        P.add(out)
        P('s_waitcnt lgkmcnt(0)\ns_barrier')
        P.add(self.stamp('s3_end'))
        AE, AL, RX, RS = 48, 16, 80, 96
        vEW, vER = (vTr, vT, vT + 1), vT + 3
        resid = lambda q: mk('buffer_load_dwordx4 %s, v%d, %s, s%d offen sc1' % (v(RS, 4), vL16, self.srd(SRD_CL), sRes + q))
        cinit = lambda A: flat(mk('ds_read_b128 %s, v%d offset:%d' % (v(A + 4 * q, 4), vB2, 16 * q)) for q in range(4))
        ad = []
        for n, x in enumerate((2, 1, 3)):
            ad += mk('s_xor_b32 s%d, s%d, %d\ns_mul_i32 s%d, s%d, 6144\ns_add_u32 s%d, s%d, %d\nv_add_u32 v%d, s%d, v%d'
                     % (sT3, sW, x, sT3, sT3, sT3, sT3, L_EX + 2048 * (x - 1), vEW[n], sT3, vL16))
        ad += mk('s_mul_i32 s%d, s%d, 6144\ns_add_u32 s%d, s%d, %d\nv_add_u32 v%d, s%d, v%d' % (sT3, sW, sT3, sT3, L_EX, vER, sT3, vL16))
        gA, gall, _ = self.gelu(ACC[1], KK[1], T)
        st, p3 = hpub(3)
        npre = o['npre']
        if l == 0:
            npre, u1 = o['npre0'], o['w2u1']
            fl = hflag(0, pend) + hflag(1, pend) + hflag(2, pend)
            w2rest = self.w2_stage(gall[:o['flat']] + fl + gall[o['flat']:] + st, nsh, u1, {u1 - 2: self.pa(14) + self.poll_issue(sPE)})
            P.add(cinit(AE) + self.poll_check(sPE) + resid(0) + flat(hload(i) for i in range(npre)))
        else:
            P.add(spread([resid(0)] + [hload(i) for i in range(o['n3'], npre)], gall[:40] + hflag(2, pend) + cinit(AE) + gall[40:] + st))
        if self.fine:
            P.add(self.stamp('g3_end'))

        exch_write = lambda A: flat(mk('ds_write_b128 v%d, %s\nds_write_b128 v%d, %s offset:1024' % (vEW[n], v(r, 4), vEW[n], v(r + 4, 4)))
                                    for n, r in enumerate((A + 8, A + 16, A + 24)))
        exch_read = lambda: flat(mk('ds_read_b128 %s, v%d offset:%d' % (v(RX + 4 * q, 4), vER, 1024 * q)) for q in range(6))

        def addv(d, x, y, n, pk):
            if pk:
                return flat(mk('v_pk_add_f32 %s, %s, %s' % (v(d + i, 2), v(x + i, 2), v(y + i, 2))) for i in range(0, n, 2))
            return flat(mk('v_add_f32 v%d, v%d, v%d' % (d + i, x + i, y + i)) for i in range(n))

        def finish(A, q, pk):
            L = addv(A, A, RX, 8, pk) + addv(RX + 8, RX + 8, RX + 16, 8, pk) + addv(A, A, RX + 8, 8, pk) + self.pack(A, A, 4)
            if l == 0:
                L += self.stores(['buffer_store_dwordx4 %s, v%d, %s, s%d offen' % (v(A, 4), vL16, self.srd(SRD_CL), sFin + q)])
                rs = self.row_stats(A, 4, RX, RX + 2)
                blk = I('\n'.join(x.text for x in rs[:9]), kind='block', src=[r for x in rs[:9] for r in x.src], dst=[('v', RX), ('v', RX + 1), ('v', RX + 2)], states=1, cost=60)
                L += [blk] + mk('s_nop 2') + rs[9:]
                st = self.stores(['buffer_store_dword v%d, v%d, %s, s%d offen' % (RX, vL16, self.srd(SRD_CL), sFin + 2 + q)])
                tk = tok(st[-1])
                return L + st, self.flag([tk], sFin + 4 + q)
            L += mk('v_permlane32_swap_b32 v%d, v%d\nv_permlane32_swap_b32 v%d, v%d' % (A, A + 2, A + 1, A + 3))
            L += mk('buffer_store_dwordx4 %s, v%d, %s, s%d offen %s' % (v(A, 4), vPA, self.srd(SRD_OUT), sFin + q, ('', 'sc1', 'nt', 'sc0 sc1')[o['outf']]))
            return L, []

        slots = []
        nt = o['ntail']
        order = [(i, js) for i in range(56 - nt) for js in range(2)] + [(i, 1) for i in range(56 - nt, 56)] + [(i, 0) for i in range(56 - nt, 56)]
        for i, js in order:
            blk, kap = divmod(i, 28)
            A = (AE, AL)[blk]
            sl = mfma(A, v(SEL, 4), v(RS, 4)) if kap == 0 and js == 0 else []
            slots.append(sl + mfma(A + 16 * js, a(W2A + 8 * kap + 4 * js, 4), v(hreg[i], 4), kap == 0 and js == 1))
        sidx = 0
        for i in range(npre, 56):
            sidx = max(sidx, 2 * (i - 16) + 1 if i >= 16 else 0)
            if i == 28:
                sidx = max(sidx, o['lateL'])
                slots[sidx] += (self.stamp('preL') if self.fine else []) + self.poll_check(sPL) + (self.stamp('gotL') if self.fine else [])
            slots[sidx] += hload(i)
            assert sidx <= 2 * i - 6
            sidx += 1 if 2 * (i + 1) - sidx - 2 < o['lead'] else 2
        if l == 0:
            for n, (A, R, B) in enumerate(w2rest):
                sj = 1 + o['w2sp'] * n
                slots[sj] += A
                for i, g in enumerate(R):
                    slots[sj + i] += g
                slots[sj + len(R)] += B
                assert sj + len(R) <= 2 * (u1 + n) - 4
        if True:
            slots[o['flag3'] if l else o['flag30']] += (self.stamp('preF') if self.fine else []) + hflag(3, p3) + (self.stamp('gotF') if self.fine else [])
        slots[o['pollL']] += self.poll_issue(sPL)
        for i in range(0, len(ad), 4):
            slots[2 * (i // 4) + 30] += ad[i:i + 4]
        slots[40] += resid(1)
        if l == 0:
            slots[52] += mk('s_waitcnt lgkmcnt(0)\ns_barrier')
        slots[46] += cinit(AL)
        if l == 1:
            slots[44] += mk('v_and_b32 v%d, 31, v0\nv_mul_u32_u24 v%d, 896, v%d\nv_lshrrev_b32 v%d, 5, v0\nv_lshl_add_u32 v%d, v%d, 4, v%d'
                            % (vPA, vPA, vPA, vPoll, vPA, vPoll, vPA))
        P.add(flat(slots[:56]))
        P.add(self.stamp('s4_E'))
        late = slots[56:]
        fin, fl = finish(AE, 0, False)
        xb0 = o['xbar']
        P.add(spread(late[:xb0], exch_write(AE), start=2, end=9))
        late[xb0] += (self.stamp('preX') if self.fine else []) + mk('s_waitcnt lgkmcnt(0)\ns_barrier') + (self.stamp('gotX') if self.fine else []) + exch_read()
        late[34] += (self.stamp('preY') if self.fine else []) + mk('s_barrier') + (self.stamp('gotY') if self.fine else [])
        late[44] += fl
        wl = exch_write(AL)
        if l == 1 and o['wb'] == 3:
            lw = P.newlabel('Lnowb')
            late[o['wbslot']] += [I('s_or_b32 s%d, s%d, s%d\ns_cmp_lg_u32 s%d, 0\ns_cbranch_scc1 %s\nbuffer_wbl2 sc1\n%s:' % (sT0, sM, sW, sT0, lw, lw), kind='block', cost=12)]
        for i in range(4):
            late[56 - nt + 2 + i] += [wl[2 + i]]
        P.add(spread(late[xb0:], fin, start=4, end=33 - xb0))
        P.add(self.stamp('s4_L'))
        P.add(wl[:2] + mk('s_waitcnt lgkmcnt(0)\ns_barrier') + exch_read())
        fin, fl = finish(AL, 1, True)
        P.add(fin + fl)
        P.add(self.stamp('x2_pub'))

    def build(self):
        P = self.P
        self.prologue()
        for l in range(2):
            self.layer = l
            self.s1(l)
            if self.stop == 's1_%d' % l:
                break
            self.kvx(l)
            if self.stop == 'o_%d' % l:
                break
            lnext = 'L_layer%d' % (l + 1)
            if l == 0:
                lsk = P.newlabel('Lskipmlp')
                P.add([I('s_cmp_ge_u32 s%d, 14\ns_cbranch_scc1 %s' % (sM, lsk), kind='block')])
                lp = P.newlabel('Lidle')
                t = [x.text for x in self.pa(28)] + ['s_mov_b32 s%d, %d' % (sT4, FXIN), lp + ':', 's_sleep %d' % self.o['isl'],
                                                     'buffer_load_dword v%d, v%d, %s, s%d offen sc1' % (vPoll, vPA, self.srd(SRD_CL), sT4),
                                                     's_add_u32 s%d, s%d, 1' % (sSpin, sSpin), 's_cmp_gt_u32 s%d, 0x40000' % sSpin, 's_cbranch_scc1 L_end',
                                                     's_waitcnt vmcnt(0)', 'v_cmp_ne_u32 vcc, s%d, v%d' % (sNonce, vPoll), 's_cbranch_vccnz %s' % lp,
                                                     's_sleep %d' % self.o['isl2']]
                self.ool.append('%s:\n%s\ns_waitcnt vmcnt(0) lgkmcnt(0)\n%s\ns_branch %s' % (lsk, self.idle_work(), '\n'.join(t), lnext))
            else:
                if self.o['wb'] in (1, 2):
                    lw, lp = P.newlabel('Lwb'), P.newlabel('Lwbp')
                    P.add([I('s_cmp_ge_u32 s%d, 14\ns_cbranch_scc1 %s' % (sM, lw), kind='block')])
                    t = [lw + ':']
                    if self.o['outt']:
                        lo = P.newlabel('Lot')
                        t += ['s_cmp_lg_u32 s%d, 15' % sM, 's_cbranch_scc1 %s' % lo, 'v_lshlrev_b32 v%d, 7, v0' % vT, 's_mov_b32 exec_hi, 0xffffff']
                        for i in range(4):
                            t += ['s_add_u32 s%d, s%d, %d' % (sT2, sX, i * 56 * 128), 'buffer_load_dword v%d, v%d, %s, s%d offen' % (vDummy, vT, self.srd(SRD_OUT), sT2)]
                        t += ['s_mov_b64 exec, -1', 's_waitcnt vmcnt(0)', lo + ':']
                    t += ['s_cmp_lg_u32 s%d, 14' % sM, 's_cbranch_scc1 L_fin', 's_cmp_lg_u32 s%d, 0' % sW, 's_cbranch_scc1 L_fin']
                    t += [x.text for x in self.pa(14, blocks=True)]
                    t += ['s_mov_b32 s%d, %d' % (sT4, FH + 512 * self.o['wbblk'] if self.o['wbblk'] >= 0 else FX1), 's_sleep %d' % self.o['wbsl']] + (['buffer_wbl2 sc1', 's_waitcnt vmcnt(0)'] if self.o['wb'] == 2 else []) + [lp + ':', 's_sleep 4',
                          'buffer_load_dword v%d, v%d, %s, s%d offen sc1' % (vPoll, vPA, self.srd(SRD_CL), sT4),
                          's_add_u32 s%d, s%d, 1' % (sSpin, sSpin), 's_cmp_gt_u32 s%d, 0x40000' % sSpin, 's_cbranch_scc1 L_end',
                          's_waitcnt vmcnt(0)', 'v_cmp_ne_u32 vcc, s%d, v%d' % (sNonce, vPoll), 's_cbranch_vccnz %s' % lp,
                          's_sleep %d' % self.o['wbs2'], 'buffer_wbl2 sc1', 's_waitcnt vmcnt(0)', 's_branch L_fin']
                    self.ool.append('\n'.join(t))
                else:
                    P.add([I('s_cmp_ge_u32 s%d, 14\ns_cbranch_scc1 L_fin' % sM, kind='block')])
            self.s2(l)
            if self.stop == 'x1_%d' % l:
                P.label(lnext)
                break
            self.mlp(l)
            P.label(lnext)
            if l == 0:
                P('s_add_u32 s%d, s%d, %d\ns_add_u32 s%d, s%d, %d' % (sKv, sKv, KVP_L, sKvMy, sKvMy, KVP_L))
            if self.stop == 'x2_%d' % l:
                break
        P.add([I('s_cmp_lg_u32 s2, 0\ns_cbranch_scc1 L_fin\ns_cmp_lg_u32 s%d, 0\ns_cbranch_scc1 L_fin' % sW, kind='block')])
        P('s_mov_b64 exec, 1\nbuffer_store_dword v%d, off, %s, 0 sc1\ns_mov_b64 exec, -1' % (vNonce, self.srd(SRD_WS)))
        if self.probe is not None:
            P.add(self.stamp('end'))
            P.add([I('s_waitcnt lgkmcnt(0)\ns_sub_u32 s94, s94, s96\ns_lshl_b32 s94, s94, 2\ns_add_u32 s94, s94, 10000\nL_pr:\ns_memrealtime s[98:99]\ns_waitcnt lgkmcnt(0)\n'
                     's_sub_u32 s98, s98, s96\ns_cmp_lt_u32 s98, s94\ns_cbranch_scc1 L_pr', kind='block')])
        P.label('L_fin')
        if self.stamps:
            P('s_lshl_b32 s%d, s2, 2\ns_add_u32 s%d, s%d, s%d\ns_lshl_b32 s%d, s%d, 8\ns_add_u32 s%d, s%d, %d' % (sT0, sT0, sT0, sW, sT0, sT0, sT0, sT0, WS_STAMP))
            P.add(self.stamp('end'))
            P('s_memrealtime s[%d:%d]\ns_waitcnt lgkmcnt(0)\nv_writelane_b32 v%d, s%d, 63' % (sStamp, sStamp + 1, vStamp, sStamp))
            P('v_writelane_b32 v%d, s%d, 61' % (vStamp, sSpin))
            P('v_lshlrev_b32 v%d, 2, v0\nbuffer_store_dword v%d, v%d, %s, s%d offen' % (vT, vStamp, vT, self.srd(SRD_WS), sT0))
        P.label('L_end')
        P('s_endpgm')
        body, L = finalize(P.L)
        self.final = L
        ool = '\n'.join('\n'.join(('    ' + t if not t.endswith(':') else t) for t in b.split('\n') if t.strip()) for b in self.ool)
        head = open('cdna_kernels/%s.s.ref' % KNAME[:-7]).read().split('\n')
        hdr = [h for h in head if h.startswith(';') and '@launch' not in h]
        txt = '\n'.join(hdr) + '\n; @launch grid=(256,1,1) block=(256,1,1) lds=%d\n' % LDS_BYTES
        txt += '.amdgcn_target "amdgcn-amd-amdhsa--gfx950"\n.text\n.globl %s\n.p2align 8\n.type %s,@function\n%s:\n' % (KNAME, KNAME, KNAME)
        txt += body + ool + '\nL_code_end:\n'
        txt += '''.section .rodata,"a"
.p2align 6
.amdhsa_kernel %s
  .amdhsa_next_free_vgpr 512
  .amdhsa_next_free_sgpr 102
  .amdhsa_accum_offset 256
  .amdhsa_group_segment_fixed_size 0
  .amdhsa_kernarg_size 88
  .amdhsa_user_sgpr_count 2
  .amdhsa_user_sgpr_kernarg_segment_ptr 1
  .amdhsa_system_sgpr_workgroup_id_x 1
.end_amdhsa_kernel
''' % KNAME
        return txt


if __name__ == '__main__':
    import argparse
    ap = argparse.ArgumentParser()
    ap.add_argument('-o', default='k.s')
    ap.add_argument('--stop', default=None)
    ap.add_argument('--stamps', action='store_true')
    ap.add_argument('opts', nargs='*')
    A = ap.parse_args()
    opt = {k: (x if k in ('probe', 'light') else int(x)) for k, x in (t.split('=') for t in A.opts)}
    g = Gen(stop=A.stop, stamps=A.stamps, **opt)
    open(A.o, 'w').write(g.build())
    if A.stamps:
        open(A.o + '.stamps', 'w').write('\n'.join(g.stamp_names))
    n = {}
    for x in g.final:
        n[x.kind] = n.get(x.kind, 0) + 1
    nops = sum(x.states for x in g.final if x.op == 's_nop')
    print('instructions', n, 'nop states', nops)
```

```python
import sys, struct
from asmgen import *

KNAME = 'interleave_layers__linear_attn_block__mixer_channel_mlp__prompt_kernel'


def f32(x):
    return '0x%08x' % struct.unpack('<I', struct.pack('<f', x))[0]


LOG2E = 1.4426950408889634
LN2 = 0.6931471805599453
MF = 'v_mfma_f32_32x32x16_bf16'

WS_XCC = 0x8000
WS_STAMP = 0x10000
WS_KVP = 0x200000
KVP_CH = 9216
KVP_L = 0xA0000
WS_CL = 0x400000
LOFF = 0xD9000
O_OFF, X1_OFF, H_OFF, XIN_OFF, XST_OFF, FL_OFF = 0, 0x20000, 0x40000, 0xB0000, 0xD0000, 0xD8000
FO, FX1, FXIN, FH = FL_OFF, FL_OFF + 512, FL_OFF + 1024, FL_OFF + 1536

L_WQ = 0
L_Q = 57344
L_XB = 28672
L_EX = 86016
L_XS = 86016
L_WO = 114688
L_KVS = 143616
L_KVB = L_KVS + 16384
L_CS = L_KVB + 2048
L_B2 = L_CS + 768
LDS_BYTES = 163840
assert L_B2 + 512 <= LDS_BYTES

SRD_WQ, SRD_WO, SRD_W1, SRD_W2, SRD_X, SRD_OUT, SRD_B1, SRD_B2, SRD_CL, SRD_WS = range(4, 44, 4)
sC, sM, sW, sNonce, sSlow, sX, sSpin = 44, 45, 46, 47, 48, 49, 50
sT0, sT1, sT2, sT3, sT4, sT5 = 51, 52, 53, 54, 55, 56
sLn2, sXcc, sWi = 57, 58, 59
sN28, sHalf = 60, 62
sZm = 64
sXin, sD1 = 66, 67
sKA = 68
sEb, sLb, sC0, sC1, sHs, sFe = 68, 69, 70, 71, 72, 73
sBlk, sOst, sFo, sFoMy, sKv, sKvMy, sHE, sHL, sPE, sPL = 74, 75, 76, 77, 78, 79, 80, 81, 82, 83
sHst = 84
sRot = 85
sQ0, sQ1 = 86, 87
sFin, sRes = 28, 34
sTag = 22
sPm = 88
sStamp = 90
sPC = 92

vLane, vL16, vDummy, vTr, vNonce, vMean, vRl, vW1X, _w1x1, vPoll, vPA = range(0, 11)
vT = 11
vStamp = 15
vPoll2, vPoll3 = 15, 5
W2A = 0
W1A = 224
W1V = 176


def w1reg(k):
    return a(W1A + 4 * k, 4) if k < 8 else v(W1V + 4 * (k - 8), 4)


def w1half(k, hh):
    return a(W1A + 4 * k + 2 * hh, 2) if k < 8 else v(W1V + 4 * (k - 8) + 2 * hh, 2)


def flat(LL):
    return [x for L in LL for x in L]


def mfma(D, A, B, first=False):
    return mk('%s %s, %s, %s, %s' % (MF, v(D, 16), A, B, '0' if first else v(D, 16)))


class Gen:
    def __init__(self, stop=None, stamps=False, **opt):
        self.P = Prog()
        self.ool = []
        self.stop = stop
        self.stamps = stamps
        self.nstamp = 0
        self.stamp_names = []
        self.probe = opt.pop('probe', None)
        self.light = opt.pop('light', None)
        self.fine = bool(self.light or self.probe)
        if self.light is not None:
            self.light = self.light.split('+')
            assert len(self.light) <= 4
        self.seen = {}
        self.o = dict(kvdelay=10, swlate=0, xmask=1, stf=1, stl=1, poll2=0, psl=0, pdo=5, pdx=2, p1=1, pdi=0, s1pair=1, sta=13, stb=33, stc=48, isl=8, isl2=8, pollE=16, n3=4, st0=10, st1=23, stpos=1, x0=6, xstep=8, xlag=12, flagpos=8, gend=26, pollL=20, lateL=32, flag3=12, xbar=13, ntail=8, lead=16, look=6, pref=0, touch=1, codepf=1, rot=1, stnt=0, idlewq=0, reuse=1, npre=14, wqlate=84, pf0=1, w1q=4, w1pre=4, w1o=19, nxb1=12, pfslot=50, w2fill=4, w2u1=22, w2sp=6, npre0=9, flag30=4, nsh=17, sh0=48, shgap=6, f3u=23, peu=22, alias=1, flat=24, pf2=98, htk=0, wb=0, wbblk=3, wbsl=100, wbs2=0, wbslot=36, outf=0, outt=0, idlew2=11, woslot=41, tslot=46, latespan=14, strot=1, w1b2=70, look2=10, l1touch=0, xsc1=1, storder=0)
        self.o.update(opt)

    def srd(self, r):
        return s(r, 4)

    def stamp(self, name):
        if self.probe is not None:
            self.seen[name] = self.seen.get(name, 0) + 1
            if self.probe == '%s#%d' % (name, self.seen[name]):
                return [I('s_memrealtime s[94:95]', kind='block', states=1)]
            return []
        if not self.stamps:
            return []
        if self.light is not None:
            self.seen[name] = self.seen.get(name, 0) + 1
            key = '%s#%d' % (name, self.seen[name])
            if name == 'end':
                self.stamp_names.append('end')
                t = ['s_memtime s[88:89]', 's_waitcnt lgkmcnt(0) vmcnt(0)', 'v_writelane_b32 v%d, s98, 62' % vStamp]
                for i, r in enumerate([100] + [90 + 2 * j for j in range(len(self.stamp_names) - 2)] + [88]):
                    t.append('v_writelane_b32 v%d, s%d, %d' % (vStamp, r, i))
                return [I('\n'.join(t), kind='block', drain_lgkm=True)]
            if name != 'start' and key not in self.light:
                return []
            r = 100 if name == 'start' else 90 + 2 * (len(self.stamp_names) - 1)
            self.stamp_names.append(key if name != 'start' else name)
            return [I('s_memtime s[%d:%d]' % (r, r + 1), kind='block')]
        i = self.nstamp
        self.nstamp += 1
        self.stamp_names.append(name)
        t = 's_memtime s[%d:%d]\ns_waitcnt lgkmcnt(0)\nv_writelane_b32 v%d, s%d, %d' % (sStamp, sStamp + 1, vStamp, sStamp, i)
        return [I(t, kind='block', dst=[], src=[], drain_lgkm=True, states=3)]

    def stores(self, lines):
        insts = mk('\n'.join(lines))
        src = [r for x in insts for r in x.src]
        wide = [r for x in insts for r in x.wide]
        ls, lb = self.P.newlabel('Lslow'), self.P.newlabel('Lback')
        fl = ('', ' nt', ' sc0')[self.o['stf']] if self.layer >= self.o['stl'] and 'x4' in lines[0] else ''
        txt = 's_cmp_lg_u32 s%d, 0\ns_cbranch_scc1 %s\n%s\n%s:' % (sSlow, ls, '\n'.join(l + fl for l in lines), lb)
        self.ool.append('%s:\n%s\ns_branch %s' % (ls, '\n'.join(l + ' sc1' for l in lines), lb))
        return [I(txt, kind='block', src=src, nvm=len(lines), wide=wide, states=1, cost=8 + 4 * len(lines))]

    def flag(self, toks, soff, off=0):
        st = self.stores(['buffer_store_dword v%d, off, %s, s%d offset:%d' % (vNonce, self.srd(SRD_CL), soff, off)])[0]
        st.text = 's_mov_b64 exec, 1\n' + st.text + '\ns_mov_b64 exec, -1'
        st.cost += 8
        return [wait_tok(*toks), st]

    def poll_issue(self, soff, delay=0):
        return (mk('s_sleep %d' % delay) if delay else []) + mk('buffer_load_dword v%d, v%d, %s, s%d offen sc1' % (vPoll, vPA, self.srd(SRD_CL), soff))

    def poll_check(self, soff, tag=False):
        ls, lb = self.P.newlabel('Lspin'), self.P.newlabel('Lgot')

        def cmp(r):
            if tag:
                return 'v_lshrrev_b32 v%d, 16, v%d\nv_cmp_ne_u32 vcc, s%d, v%d' % (r, r, sTag, r)
            return 'v_cmp_ne_u32 vcc, s%d, v%d' % (sNonce, r)
        ld = lambda r: 'buffer_load_dword v%d, v%d, %s, s%d offen sc1' % (r, vPA, self.srd(SRD_CL), soff)
        if self.o['poll2']:
            l1 = self.P.newlabel('Lsp')
            t = [ls + ':', ld(vPoll2), 's_sleep 2', l1 + ':', ld(vPoll3), 's_waitcnt vmcnt(1)', cmp(vPoll2), 's_cbranch_vccz %s' % lb,
                 ld(vPoll2), 's_add_u32 s%d, s%d, 1' % (sSpin, sSpin), 's_cmp_gt_u32 s%d, 0x40000' % sSpin, 's_cbranch_scc1 L_end',
                 's_waitcnt vmcnt(1)', cmp(vPoll3), 's_cbranch_vccnz %s' % l1, 's_branch %s' % lb]
        else:
            t = [ls + ':'] + (['s_sleep %d' % self.o['psl']] if self.o['psl'] else []) + [ld(vPoll), 's_add_u32 s%d, s%d, 1' % (sSpin, sSpin), 's_cmp_gt_u32 s%d, 0x40000' % sSpin, 's_cbranch_scc1 L_end',
                 's_waitcnt vmcnt(0)', cmp(vPoll), 's_cbranch_vccnz %s' % ls, 's_branch %s' % lb]
        self.ool.append('\n'.join(t))
        return [I(cmp(vPoll) + '\ns_cbranch_vccnz %s\n%s:' % (ls, lb), kind='block', src=[('v', vPoll)], dst=[('x', 'vcc'), ('v', vPoll)], states=2, cost=8)]

    def pa(self, n, blocks=False, reg=vPA):
        L = 'v_and_b32 v%d, %d, v0\n' % (reg, 15 if n <= 16 else 31)
        if n not in (16, 32):
            L += 'v_min_u32 v%d, %d, v%d\n' % (reg, n - 1, reg)
        L += 'v_lshlrev_b32 v%d, 2, v%d\n' % (reg, reg)
        if blocks:
            L += 'v_lshrrev_b32 v%d, 4, v0\nv_lshl_add_u32 v%d, v%d, 7, v%d' % (vT + 3, reg, vT + 3, reg)
        return mk(L)

    def trbase(self, dst, RS, kh, add=0, xor16=None):
        t = vT
        L = ['v_lshrrev_b32 v%d, 5, v%d' % (dst, vLane),
             'v_mul_u32_u24 v%d, %d, v%d' % (dst, kh, dst),
             'v_bfe_u32 v%d, v%d, 2, 2' % (t, vLane),
             'v_add_u32 v%d, v%d, v%d' % (dst, dst, t),
             'v_mul_u32_u24 v%d, %d, v%d' % (dst, RS, dst),
             'v_bfe_u32 v%d, v%d, 4, 1' % (t, vLane)]
        if xor16 is not None:
            L.append('v_xor_b32 v%d, s%d, v%d' % (t, xor16, t))
        L += ['v_lshl_add_u32 v%d, v%d, 5, v%d' % (dst, t, dst),
              'v_and_b32 v%d, 3, v%d' % (t, vLane),
              'v_lshl_add_u32 v%d, v%d, 3, v%d' % (dst, t, dst)]
        if add:
            L.append('v_add_u32 v%d, %d, v%d' % (dst, add, dst))
        return mk('\n'.join(L))

    def frag_loads(self, dsts, srd, sbase, const0, stride=1024, flags='', st=sT0):
        out = []
        cur = None
        for i, d in enumerate(dsts):
            off = const0 + i * stride
            grp = []
            if cur is None or not (0 <= off - cur <= 4095):
                cur = off
                grp += mk('s_add_u32 s%d, s%d, %d' % (st, sbase, off))
            grp += mk('buffer_load_dwordx4 %s, v%d, %s, s%d offen offset:%d %s' % (d, vL16, self.srd(srd), st, off - cur, flags))
            out.append(grp)
        return out

    def stats_finish(self, acc, double_ln):
        t1, t2 = vT + 1, vT + 2
        L = ['v_mov_b32 v%d, v%d' % (t1, acc),
             'v_mov_b32 v%d, v%d' % (vMean, acc),
             'v_permlane32_swap_b32 v%d, v%d' % (vMean, t1),
             'v_mul_f32 v%d, %s, v%d' % (vMean, f32(1.0 / 448), vMean),
             'v_mul_f32 v%d, %s, v%d' % (t1, f32(1.0 / 448), t1),
             'v_fma_f32 v%d, -v%d, v%d, v%d' % (t1, vMean, vMean, t1),
             'v_max_f32 v%d, 0, v%d' % (t1, t1),
             'v_add_f32 v%d, %s, v%d' % (t2, f32(1e-5), t1),
             'v_rsq_f32 v%d, v%d' % (vRl, t2)]
        if double_ln:
            L += ['v_mul_f32 v%d, v%d, v%d' % (t2, vRl, vRl),
                  'v_fmaak_f32 v%d, v%d, v%d, %s' % (t1, t1, t2, f32(1e-5)),
                  'v_rsq_f32 v%d, v%d' % (t1, t1),
                  'v_mul_f32 v%d, v%d, v%d' % (vRl, vRl, t1)]
        else:
            L += ['v_mul_f32 v%d, %s, v%d' % (vRl, f32(LOG2E), vRl)]
        return mk('\n'.join(L))

    def split_act(self, d0, val, t):
        return mk('\n'.join([
            'v_cvt_pk_bf16_f32 v%d, v%d, v%d' % (d0 + 1, val, val),
            'v_and_b32 v%d, 0xffff0000, v%d' % (t, d0 + 1),
            'v_sub_f32 v%d, v%d, v%d' % (t, val, t),
            'v_cvt_pk_bf16_f32 v%d, v%d, v%d' % (d0, val, t),
            'v_and_b32 v%d, 0xffff, v%d' % (d0 + 1, d0 + 1),
            'v_cndmask_b32 v%d, v%d, 0, s[%d:%d]' % (d0 + 1, d0 + 1, sHalf, sHalf + 1)]))

    def split_w(self, d0, val, t):
        return mk('\n'.join([
            'v_cvt_pk_bf16_f32 v%d, v%d, v%d' % (d0, val, val),
            'v_and_b32 v%d, 0xffff0000, v%d' % (t, d0),
            'v_sub_f32 v%d, v%d, v%d' % (t, val, t),
            'v_cvt_pk_bf16_f32 v%d, v%d, 0' % (d0 + 1, t)]))

    def phi8(self, r0, R, T, eps):
        L = ['v_pk_mul_f32 %s, %s, %s' % (v(r0 + i, 2), v(r0 + i, 2), R(i)) for i in range(0, 8, 2)]
        for i in range(8):
            L += ['v_exp_f32 v%d, v%d clamp' % (T + i, r0 + i), 'v_max_f32 v%d, 0, v%d' % (r0 + i, r0 + i)]
        L += ['v_pk_fma_f32 %s, %s, s[%d:%d], %s op_sel:[0,1,0] op_sel_hi:[1,1,1]' % (v(r0 + i, 2), v(r0 + i, 2), sLn2 - 1, sLn2, v(T + i, 2)) for i in range(0, 8, 2)]
        L += ['v_pk_add_f32 %s, %s, %s op_sel_hi:[1,0]' % (v(r0 + i, 2), v(r0 + i, 2), v(eps, 2)) for i in range(0, 8, 2)]
        return mk('\n'.join(L))

    def pack(self, dst, src, n):
        return mk('\n'.join('v_cvt_pk_bf16_f32 v%d, v%d, v%d' % (dst + i, src + 2 * i, src + 2 * i + 1) for i in range(n)))

    def unpack(self, dst, src, n):
        L = []
        for i in reversed(range(n)):
            L.append('v_and_b32 v%d, 0xffff0000, v%d' % (dst + 2 * i + 1, src + i))
            L.append('v_lshlrev_b32 v%d, 16, v%d' % (dst + 2 * i, src + i))
        return mk('\n'.join(L))

    def dots(self, regs, acc, ones, first):
        L = []
        for i, r in enumerate(regs):
            z = first and i == 0
            L.append('v_dot2_f32_bf16 v%d, v%d, v%d, %s' % (acc, r, ones, '0' if z else 'v%d' % acc))
            L.append('v_dot2_f32_bf16 v%d, v%d, v%d, %s' % (acc + 1, r, r, '0' if z else 'v%d' % (acc + 1)))
        return mk('\n'.join(L))

    def dots_end(self, acc):
        return mk('v_permlane32_swap_b32 v%d, v%d\nv_add_f32 v%d, v%d, v%d' % (acc, acc + 1, acc, acc, acc + 1))

    def row_stats(self, src, n, acc, ones):
        return mk('v_mov_b32 v%d, 0x3f803f80' % ones) + self.dots(range(src, src + n), acc, ones, True) + self.dots_end(acc)

    def kv_lane_addr(self, d, t, u, gather):
        L = []
        if gather:
            L += ['v_and_b32 v%d, 31, v0' % t, 'v_lshrrev_b32 v%d, 5, v0' % d]
        else:
            L += ['v_lshrrev_b32 v%d, 5, v0' % t, 'v_and_b32 v%d, 15, v0' % u, 'v_lshl_add_u32 v%d, v%d, 1, v%d' % (t, u, t), 'v_bfe_u32 v%d, v0, 4, 1' % d]
        L += ['v_lshrrev_b32 v%d, 3, v%d' % (u, t), 'v_sub_u32 v%d, v%d, v%d' % (u, t, u)]
        if not gather:
            L += ['v_and_b32 v%d, 7, v%d' % (t, t), 'v_cmp_eq_u32 vcc, 7, v%d' % t, 'v_cndmask_b32 v%d, v%d, 31, vcc' % (u, u)]
        L += ['v_lshl_add_u32 v%d, v%d, 5, v%d' % (d, d, u)]
        sh, qs, base = (4, 10, L_KVS) if gather else (5, 3, L_KVB)
        L += ['s_lshl_b32 s%d, s%d, %d' % (sT2, sW, qs), 'v_lshlrev_b32 v%d, %d, v%d' % (d, sh, d), 'v_add_u32 v%d, s%d, v%d' % (d, sT2, d)]
        L += ['v_and_b32 v%d, 1, v%d' % (t, u), 'v_lshlrev_b32 v%d, %d, v%d' % (t, 5 + sh, t), 'v_lshrrev_b32 v%d, 1, v%d' % (u, u)]
        L += ['v_cmp_gt_u32 vcc, 4, v%d' % u]
        L += ['v_lshl_add_u32 v%d, v%d, %d, v%d' % (t, u, qs, t), 'v_add_u32 v%d, %d, v%d' % (t, 28 << sh, t)]
        L += ['s_and_b64 vcc, vcc, s[%d:%d]' % ((sZm, sZm + 1) if gather else (sPm, sPm + 1)), 'v_cndmask_b32 v%d, v%d, v%d, vcc' % (d, d, t),
              'v_add_u32 v%d, %d, v%d' % (d, base, d)]
        return mk('\n'.join(L))

    def wq_dma(self, va, q):
        if q:
            ad = 'v_lshrrev_b32 v%d, 2, v0\nv_mul_u32_u24 v%d, 2688, v%d\nv_and_b32 v%d, 3, v0\nv_lshl_add_u32 v%d, v%d, 4, v%d' % (va, va, va, vT, va, vT, va)
        else:
            ad = ('v_lshrrev_b32 v%d, 3, v0\nv_mul_u32_u24 v%d, 2688, v%d\nv_and_b32 v%d, 3, v0\nv_lshl_add_u32 v%d, v%d, 4, v%d\n'
                  'v_lshrrev_b32 v%d, 2, v0\nv_xor_b32 v%d, v%d, v0\nv_bfe_u32 v%d, v%d, 2, 1\nv_mul_u32_u24 v%d, 896, v%d\nv_add3_u32 v%d, v%d, v%d, s%d'
                  % (va, va, va, vT, va, vT, va, vT, vT, vT, vT, vT, vT, vT, va, va, vT, sQ0))
        rows = 16 if q else 8
        pre = mk('s_mul_i32 s%d, s%d, 56\ns_add_u32 s%d, s%d, 896' % (sQ1, sM, sQ0, sQ1)) + mk(ad)
        if q:
            pre += mk('v_add_u32 v%d, s%d, v%d' % (va, sQ1, va))
        pre += mk('s_mul_i32 s%d, s%d, %d\ns_lshl_b32 s%d, s%d, 10' % (sRot, sW, rows * 2688, sQ1, sW))
        out = []
        for t in range(7 if q else 14):
            out.append(mk('s_add_u32 m0, s%d, %d\ns_add_u32 s%d, s%d, %d\nbuffer_load_dwordx4 v%d, %s, s%d offen lds'
                          % (sQ1, (L_Q if q else L_WQ) + 4096 * t, sQ0, sRot, 4 * t * rows * 2688, va, self.srd(SRD_WQ), sQ0)))
        return pre, out

    def touch(self, items, va):
        if not self.o['touch']:
            return []
        txt = ['v_lshlrev_b32 v%d, 7, v0' % va]
        cur = None
        n = 0
        for nl, srd, sg, c in items:
            if nl != cur:
                txt.append('s_mov_b64 exec, 0x%x' % ((1 << nl) - 1))
                cur = nl
            txt.append('s_add_u32 s%d, s%d, %d' % (sT2, sg, c) if sg is not None else 's_mov_b32 s%d, %d' % (sT2, c))
            txt.append('buffer_load_dword v%d, v%d, %s, s%d offen sc1' % (vDummy, va, self.srd(srd), sT2))
            n += 1
        txt.append('s_mov_b64 exec, -1')
        return [I('\n'.join(txt), kind='block', nvm=n, dst=[('v', va)], src=[('v', 0)], states=1, cost=12 * n)]

    def touch_attn(self, lo, va):
        pre = mk('s_lshr_b32 s%d, s%d, 2\ns_lshl_b32 s%d, s%d, 10\ns_add_u32 s%d, s%d, s%d\ns_mul_i32 s%d, s%d, 896' % (sT1, sM, sT1, sT1, sT1, sT1, sBlk, sT0, sW))
        return pre + self.touch([(16, SRD_CL, sOst, lo), (16, SRD_CL, sOst, lo + X1_OFF), (8, SRD_CL, sT1, lo + X1_OFF + 28672),
                                 (7, SRD_CL, sT0, lo + FL_OFF)], va)

    def prefetch(self, va, items):
        txt, n = ['v_lshlrev_b32 v%d, 7, v0' % va], 0
        for srd, per in items:
            for j in range(0, per, 64):
                nl = min(64, per - j)
                txt += ['s_mul_i32 s%d, s%d, %d' % (sT2, sWi, per * 128), 's_add_u32 s%d, s%d, %d' % (sT2, sT2, j * 128),
                        's_mov_b32 exec_lo, 0x%x' % (((1 << nl) - 1) & 0xffffffff), 's_mov_b32 exec_hi, 0x%x' % (((1 << nl) - 1) >> 32),
                        'buffer_load_dword v%d, v%d, %s, s%d offen' % (vDummy, va, self.srd(srd), sT2)]
                n += 1
        return [I('\n'.join(txt + ['s_mov_b64 exec, -1']), kind='block', nvm=n, src=[('v', 0)], dst=[('v', va)], cost=20 * n)]

    def idle_work(self):
        va = vT
        l = self.P.newlabel('Lnowarm')
        T = ['s_cmp_lg_u32 s%d, 0' % sSlow, 's_cbranch_scc1 %s' % l,
             'v_lshlrev_b32 v%d, 7, v0' % va,
             's_and_b32 s%d, s%d, 1' % (sT0, sM), 's_lshl_b32 s%d, s%d, 2' % (sT0, sT0), 's_add_u32 s%d, s%d, s%d' % (sT0, sT0, sW)]
        ld = lambda srd, fl: 'buffer_load_dword v%d, v%d, %s, s%d offen %s' % (vDummy, va, self.srd(srd), sT2, fl)
        nw2 = self.o['idlew2']
        if nw2:
            T += ['s_lshr_b32 s%d, s%d, 3' % (sT1, sC), 's_lshl_b32 s%d, s%d, 3' % (sT1, sT1), 's_add_u32 s%d, s%d, s%d' % (sT1, sT1, sT0),
                  's_lshl_b32 s%d, s%d, 13' % (sT2, sT1)]
            for i in range(nw2):
                T += [ld(SRD_W2, ''), 's_add_u32 s%d, s%d, 131072' % (sT2, sT2)]
        for i in range(2 * self.o['htk'] - (self.o['htk'] > 1), 7):
            T += ['s_lshl_b32 s%d, s%d, 13' % (sT2, sT0), 's_add_u32 s%d, s%d, %d' % (sT2, sT2, H_OFF + i * 65536), ld(SRD_CL, 'sc1')]
        if not self.o['alias']:
            for i in range(2):
                T += ['s_lshl_b32 s%d, s%d, 13' % (sT2, sT0), 's_add_u32 s%d, s%d, %d' % (sT2, sT2, XIN_OFF + i * 65536), ld(SRD_CL, 'sc1')]
        T += ['s_lshl_b32 s%d, s%d, 12' % (sT2, sT0), 's_add_u32 s%d, s%d, %d' % (sT2, sT2, XST_OFF), 's_mov_b32 exec_hi, 0', ld(SRD_CL, 'sc1'), 's_mov_b64 exec, -1']
        T += [l + ':']
        return '\n'.join(T)

    def prologue(self):
        P = self.P
        o = self.o
        P('s_cmp_ge_u32 s2, 256\ns_cbranch_scc1 L_end')
        if self.probe is not None:
            P.add([I('s_memrealtime s[96:97]\ns_memrealtime s[94:95]', kind='block', states=1)])
        P('s_load_dwordx16 s[%d:%d], s[0:1], 0' % (sKA, sKA + 15))
        P('s_load_dwordx4 s[%d:%d], s[0:1], 64' % (sKA + 16, sKA + 19))
        P('s_load_dwordx2 s[%d:%d], s[0:1], 80' % (sKA + 20, sKA + 21))
        P('v_lshrrev_b32 v%d, 6, v0\nv_and_b32 v0, 63, v0\nv_readfirstlane_b32 s%d, v%d' % (vT, sW, vT))
        P('s_lshr_b32 s%d, s2, 3\ns_lshl_b32 s%d, s%d, 2\ns_add_u32 s%d, s%d, s%d' % (sM, sWi, sM, sWi, sWi, sW))
        if o['codepf']:
            P.add([I('s_getpc_b64 s[%d:%d]\nL_pc:' % (sPC, sPC + 1), kind='block', dst=[], states=1)])
            P('s_lshl_b32 s%d, s%d, 9\nv_lshlrev_b32 v%d, 7, v0\nv_add_u32 v%d, s%d, v%d' % (sT0, sWi, vT, vT, sT0, vT))
            P.add([I('v_min_u32 v%d, L_code_end-L_pc-4, v%d\ns_mov_b64 exec, 15\nglobal_load_dword v%d, v%d, s[%d:%d]\ns_mov_b64 exec, -1'
                     % (vT, vT, vDummy, vT, sPC, sPC + 1), kind='block', dst=[('v', vT)], src=[('v', vT)], nvm=1)])
        P('s_and_b32 s%d, s2, 7\ns_lshr_b32 s%d, s%d, 4\ns_lshl_b32 s%d, s%d, 3\ns_add_u32 s%d, s%d, s%d\ns_and_b32 s%d, s%d, 15'
          % (sC, sT0, sM, sT0, sT0, sC, sC, sT0, sM, sM))
        P('v_lshlrev_b32 v%d, 4, v0' % vL16)
        if self.stamps:
            P('v_mov_b32 v%d, 0' % vStamp)
            P.add(self.stamp('start'))
            if self.light is not None:
                P('s_memrealtime s[98:99]\ns_waitcnt lgkmcnt(0)')
            else:
                assert not o['poll2']
                P('s_memrealtime s[%d:%d]\ns_waitcnt lgkmcnt(0)\nv_writelane_b32 v%d, s%d, 62' % (sStamp, sStamp + 1, vStamp, sStamp))
        P('s_lshl_b32 s%d, s%d, 2\ns_add_u32 s%d, s%d, s%d\ns_mul_i32 s%d, s%d, %d' % (sX, sC, sX, sX, sW, sX, sX, 32 * 896))
        vq, vxb, vxh, vxa, vrd = 160, 163, 164, 165, 167
        P('v_lshrrev_b32 v%d, 5, v0\nv_and_b32 v%d, 31, v0\nv_xor_b32 v%d, v%d, v%d\nv_lshlrev_b32 v%d, 4, v%d\nv_mul_u32_u24 v%d, 896, v%d'
          % (vxh, vT, vxb, vT, vxh, vxb, vxb, vxh, vxh))
        ka = sKA

        def mksrd(r, p, size):
            P('s_mov_b32 s%d, s%d\ns_mov_b32 s%d, s%d\ns_mov_b32 s%d, %d\ns_mov_b32 s%d, 0x20000' % (r, p, r + 1, p + 1, r + 2, size, r + 3))
        P('s_lshl_b32 s%d, s%d, 14\ns_add_u32 s%d, s%d, %d' % (sT5, sW, sT5, sT5, L_XS))
        mksrd(SRD_X, ka + 0, 2048 * 896)
        if self.probe:
            P.add(self.stamp('karg'))

        def xdma(half):
            out = []
            for i in range(16):
                if half:
                    g = mk('s_mov_b32 s%d, %d\nv_xad_u32 v%d, v%d, s%d, v%d' % (sT0, ((2 * i) & 15) << 4, vxa + (i & 1), vxb, sT0, vxh))
                    g += mk('s_add_u32 s%d, s%d, %d\ns_add_u32 m0, s%d, %d' % (sT1, sX, 2 * i * 896 + 512, sT5, 1024 * i))
                    ld = 'buffer_load_dwordx4 v%d, %s, s%d offen lds' % (vxa + (i & 1), self.srd(SRD_X), sT1)
                    if o['xmask']:
                        m = 0xff00ffff if i & 4 else 0x00ffffff
                        out.append(g + [I('s_mov_b32 exec_lo, 0x%x\ns_mov_b32 exec_hi, 0x%x\n%s\ns_mov_b64 exec, -1' % (m, m, ld), kind='block', nvm=1,
                                          src=[('v', vxa + (i & 1))], cost=20)])
                    else:
                        out.append(g + mk(ld))
                    continue
                g = mk('s_add_u32 s%d, s%d, %d\ns_and_b32 s%d, s%d, 15' % (sT4, sM, i, sT4, sT4) if o['rot'] else 's_mov_b32 s%d, %d' % (sT4, i))
                g += mk('s_lshl_b32 s%d, s%d, 5\ns_and_b32 s%d, s%d, 0xf0\nv_xad_u32 v%d, v%d, s%d, v%d' % (sT0, sT4, sT0, sT0, vxa + (i & 1), vxb, sT0, vxh))
                g += mk('s_mul_i32 s%d, s%d, 1792\ns_add_u32 s%d, s%d, s%d\ns_lshl_b32 s%d, s%d, 10\ns_add_u32 m0, s%d, s%d' % (sT1, sT4, sT1, sT1, sX, sT4, sT4, sT4, sT5))
                g += mk('buffer_load_dwordx4 v%d, %s, s%d offen lds' % (vxa + (i & 1), self.srd(SRD_X), sT1))
                out.append(g)
            return out
        mksrd(SRD_WQ, ka + 2, 448 * 2688)
        if o['pf0']:
            P('v_lshlrev_b32 v%d, 7, v0\ns_lshl_b32 s%d, s%d, 2\ns_add_u32 s%d, s%d, s%d\ns_mul_i32 s%d, s%d, %d\ns_mul_i32 s%d, s%d, %d\ns_add_u32 s%d, s%d, s%d\ns_mul_i32 s%d, s%d, 49'
              % (vxa, sT0, sM, sT0, sT0, sW, sT0, sT0, 14 * 128, sT1, sC, 128 * 896, sT0, sT0, sT1, sT1, sWi))
            if o['pf0'] == 1:
                P('v_add_u32 v%d, s%d, v0\nv_mul_u32_u24 v%d, 37450, v%d\nv_lshrrev_b32 v%d, 19, v%d\nv_mul_u32_u24 v%d, 896, v%d\nv_lshl_add_u32 v%d, v%d, 7, v%d'
                  % (vT, sT1, vxa + 1, vT, vxa + 1, vxa + 1, vxa + 1, vxa + 1, vxa + 1, vT, vxa + 1))
                P.add([I('s_mov_b64 exec, 0x3fff\nbuffer_load_dword v%d, v%d, %s, s%d offen\ns_mov_b32 exec_lo, -1\ns_mov_b32 exec_hi, 0x1ffff\n'
                         'buffer_load_dword v%d, v%d, %s, 0 offen offset:896\ns_mov_b64 exec, -1'
                         % (vDummy, vxa, self.srd(SRD_X), sT0, vDummy, vxa + 1, self.srd(SRD_WQ)), kind='block', nvm=2, src=[('v', vxa), ('v', vxa + 1)])])
            else:
                P.add([I('s_mov_b64 exec, 0x3fff\nbuffer_load_dword v%d, v%d, %s, s%d offen\ns_mov_b64 exec, -1' % (vDummy, vxa, self.srd(SRD_X), sT0),
                         kind='block', nvm=1, src=[('v', vxa)])])
                P.add(self.prefetch(vxa, [(SRD_WQ, 74)]))
        body = [x.text for x in xdma(0)[0]]
        body[0] = 's_add_u32 s%d, s%d, s%d' % (sT4, sM, sT2) if o['rot'] else 's_mov_b32 s%d, s%d' % (sT4, sT2)
        loop = I('\n'.join(['s_mov_b32 s%d, 0' % sT2, 'L_xa:'] + body[:-1] + ['s_add_u32 s%d, s%d, 1' % (sT2, sT2), 's_cmp_lt_u32 s%d, 16' % sT2, body[-1],
                                                                            's_cbranch_scc1 L_xa']), kind='block', nvm=16, src=[('v', vxb), ('v', vxh)] + regs_of(s(SRD_X, 4)), dst=[('v', vxa)])
        tA = tok(loop)
        P.add([loop])
        if self.probe:
            P.add(self.stamp('xiss'))
        P('s_load_dword s%d, s[%d:%d], 0' % (sNonce, ka + 20, ka + 21))
        mksrd(SRD_OUT, ka + 16, 2048 * 896)
        pre, wq = self.wq_dma(vq, False)
        self.tok_wq1, self.tok_wq = tok(wq[7][-1]), tok(wq[-1][-1])
        P.add(pre + flat(wq[:8]))
        mksrd(SRD_WO, ka + 4, 448 * 896)
        mksrd(SRD_W1, ka + 8, 448 * 3584)
        mksrd(SRD_B1, ka + 10, 3584)
        mksrd(SRD_W2, ka + 12, 1792 * 896)
        mksrd(SRD_B2, ka + 14, 896)
        mksrd(SRD_WS, ka + 20, WS_CL)
        P('s_lshl_b32 s%d, s%d, 21\ns_add_u32 s%d, s%d, %d' % (sT0, sC, sT0, sT0, WS_CL))
        P('s_add_u32 s%d, s%d, s%d\ns_addc_u32 s%d, s%d, 0\ns_mov_b32 s%d, 0x200000\ns_mov_b32 s%d, 0x20000'
          % (SRD_CL, ka + 20, sT0, SRD_CL + 1, ka + 21, SRD_CL + 2, SRD_CL + 3))
        P('s_mov_b32 s%d, %s\ns_mov_b32 s%d, 0\ns_mov_b32 s%d, -1' % (sLn2, f32(LN2), sHalf, sHalf + 1))
        P('s_mov_b32 s%d, 0x10000000\ns_mov_b32 s%d, 0x10000000\ns_mov_b32 s%d, 0' % (sN28, sN28 + 1, sSpin))
        P('s_getreg_b32 s%d, hwreg(HW_REG_XCC_ID, 0, 4)' % sXcc)
        P('s_and_b32 s%d, s%d, 1\ns_sub_u32 s%d, 3, s%d' % (sEb, sM, sLb, sEb))
        P('s_cmp_eq_u32 s%d, 3\ns_cselect_b32 s%d, -1, 0\ns_mov_b32 s%d, 0' % (sW, sZm + 1, sZm))
        P('s_lshr_b32 s%d, s%d, 3' % (sD1, sC) if o['strot'] else 's_mov_b32 s%d, 0' % sD1)
        c0 = -2.0 * 0.7978845608028654 * LOG2E
        P('s_mov_b32 s%d, %s\ns_mov_b32 s%d, %s' % (sC0, f32(c0), sC1, f32(c0 * 0.044715)))
        P('s_lshr_b32 s%d, s%d, 1\ns_lshl_b32 s%d, s%d, 2\ns_and_b32 s%d, s%d, 1\ns_lshl_b32 s%d, s%d, 1\ns_add_u32 s%d, s%d, s%d\ns_lshr_b32 s%d, s%d, 1\ns_add_u32 s%d, s%d, s%d'
          % (sFe, sM, sFe, sFe, sT0, sW, sT0, sT0, sFe, sFe, sT0, sT0, sW, sFe, sFe, sT0))
        P('s_lshl_b32 s%d, s%d, 15\ns_lshl_b32 s%d, s%d, 11\ns_add_u32 s%d, s%d, s%d' % (sBlk, sW, sOst, sM, sOst, sOst, sBlk))
        P('s_lshl_b32 s%d, s%d, 7\ns_add_u32 s%d, s%d, %d\ns_lshl_b32 s%d, s%d, 2\ns_add_u32 s%d, s%d, s%d' % (sFo, sW, sFo, sFo, FL_OFF, sT0, sM, sFoMy, sFo, sT0))
        P('s_lshl_b32 s%d, s%d, 2\ns_add_u32 s%d, s%d, s%d\ns_mul_i32 s%d, s%d, %d\ns_add_u32 s%d, s%d, %d' % (sT1, sM, sT1, sT1, sW, sKv, sT1, KVP_CH, sKv, sKv, WS_KVP))
        P('s_lshl_b32 s%d, s%d, 9\ns_add_u32 s%d, s%d, s%d' % (sKvMy, sC, sKvMy, sKvMy, sKv))
        P('s_lshl_b32 s%d, s%d, 11\ns_add_u32 s%d, s%d, %d' % (sHst, sT1, sHst, sHst, H_OFF))
        P('s_lshl_b32 s%d, s%d, 11\ns_add_u32 s%d, s%d, %d' % (sT1, sW, sT1, sT1, H_OFF))
        P('s_mul_i32 s%d, s%d, 114688\ns_add_u32 s%d, s%d, s%d\ns_mul_i32 s%d, s%d, 114688\ns_add_u32 s%d, s%d, s%d' % (sHE, sEb, sHE, sHE, sT1, sHL, sLb, sHL, sHL, sT1))
        P('s_lshl_b32 s%d, s%d, 9\ns_add_u32 s%d, s%d, s%d\ns_add_u32 s%d, s%d, %d' % (sPE, sEb, sPE, sPE, sFo, sPE, sPE, FH - FL_OFF))
        P('s_lshl_b32 s%d, s%d, 9\ns_add_u32 s%d, s%d, s%d\ns_add_u32 s%d, s%d, %d' % (sPL, sLb, sPL, sPL, sFo, sPL, sPL, FH - FL_OFF))
        self.xreg0 = xr = [16 + 4 * i if i < 20 else 176 + 4 * (i - 20) for i in range(28)]
        P('v_and_b32 v%d, 15, v0\nv_lshrrev_b32 v%d, 5, v0\nv_xor_b32 v%d, v%d, v%d\nv_lshlrev_b32 v%d, 4, v%d\nv_and_b32 v%d, 31, v0\nv_lshl_add_u32 v%d, v%d, 9, v%d\nv_add_u32 v%d, s%d, v%d'
          % (vT, vrd, vrd, vrd, vT, vrd, vrd, vT, vrd, vT, vrd, vrd, sT5, vrd))
        xrd = lambda k: mk('v_xor_b32 v%d, %d, v%d\nds_read_b128 %s, v%d' % (vrd + 1 + (k & 1), 32 * (k & 15), vrd, v(xr[k], 4), vrd + 1 + (k & 1)))
        vrs = vrd + 3
        P('v_and_b32 v%d, 15, v0\nv_lshlrev_b32 v%d, 4, v%d\nv_lshrrev_b32 v%d, 5, v0\nv_lshl_add_u32 v%d, v%d, 3, v%d\nv_and_b32 v%d, 31, v0\nv_lshl_add_u32 v%d, v%d, 9, v%d\nv_add_u32 v%d, s%d, v%d'
          % (vrs, vrs, vrs, vT, vrs, vT, vrs, vT, vrs, vT, vrs, vrs, sT5, vrs))
        P('s_and_b32 s%d, s%d, 7\ns_lshl_b32 s%d, s%d, 6\nv_xor_b32 v%d, s%d, v%d' % (sT0, sM, sT0, sT0, vrs, sT0, vrs))

        def resrd(half):
            l = P.newlabel('Lres')
            t = ['s_cmp_%s_u32 s%d, 8' % ('lt' if half else 'ge', sM), 's_cbranch_scc1 %s' % l]
            for g in range(4):
                t += ['v_xor_b32 v%d, %d, v%d' % (vrs + 1, 16 * g, vrs), 'ds_read_b64 %s, v%d' % (a(216 + 2 * g, 2), vrs + 1)]
            return [I('\n'.join(t + [l + ':']), kind='block', src=[('v', vrs)], dst=[('v', vrs + 1)])]
        P.add(self.stamp('issued'))
        P.add([wait_tok(tA)])
        P.add(self.stamp('xA'))
        for k in range(16):
            P.add(xrd(k))
        P.add(resrd(0))
        vS, vOne = 172, 174
        P('v_mov_b32 v%d, 0x3f803f80\ns_waitcnt lgkmcnt(0)' % vOne)
        xb = xdma(1)
        self.tok_xb = tok(xb[-1][-1])
        d = self.dots([xr[k] + i for k in range(16) for i in range(4)], vS, vOne, True)
        P.add(spread(xb[:o['nxb1']], d))
        self.late_dma = xb[o['nxb1']:] + wq[8:]
        self.late_rd = [xrd(k) for k in range(16, 28)] + [resrd(1)]
        self.late_dots = self.dots([xr[k] + i for k in range(16, 28) for i in range(4)], vS, vOne, False) + self.dots_end(vS)
        P('s_add_u32 s%d, s%d, 0x01010101' % (sNonce, sNonce))
        P('v_mov_b32 v%d, s%d' % (vNonce, sNonce))
        P('s_lshl_b32 s%d, s%d, 4\ns_add_u32 s%d, s%d, s%d\ns_lshl_b32 s%d, s%d, 7\ns_add_u32 s%d, s%d, %d'
          % (sT2, sC, sT2, sT2, sM, sT2, sT2, sT2, sT2, WS_XCC))
        P('s_add_u32 s%d, s%d, s%d\nv_mov_b32 v%d, s%d\ns_mov_b64 exec, 1' % (sT3, sNonce, sXcc, vT, sT3))
        P('buffer_store_dword v%d, off, %s, s%d sc1' % (vT, self.srd(SRD_WS), sT2))
        P('s_mov_b64 exec, -1')

    def s1(self, l):
        P = self.P
        o = self.o
        AK, AV, AQ, WB, SB = 96, 112, 128, 144, 160
        RLB, XE = SB, SB + 8
        NB = 4
        vS = 172 if l == 0 else vT + 2
        P.comment('==== layer %d : S1' % l)
        kh = 8 if l == 0 else 4
        vTrV, vTrQ, vCs = vT + 3, (vT + 2 if l == 0 else vDummy), vPA
        trkv = self.trbase(vTr, 128, kh, add=L_WQ) + mk('v_bfe_u32 v%d, v0, 3, 1\nv_lshl_add_u32 v%d, v%d, 6, v%d\nv_xor_b32 v%d, 64, v%d' % (vT, vTr, vT, vTr, vTrV, vTr))
        trq = self.trbase(vTrQ, 64, kh, add=L_Q)
        fin = self.stats_finish(vS, False)
        fin += mk('s_lshl_b32 s%d, s%d, 12\ns_add_u32 s%d, s%d, %d' % (sT4, sW, sT4, sT4, L_KVS))
        bounce = mk('v_and_b32 v%d, 31, v0\nv_lshl_add_u32 v%d, v%d, 2, s%d\nds_write_b32 v%d, v%d' % (vT + 1, vT + 1, vT + 1, sT4, vT + 1, vRl))
        fin += bounce
        fin += mk('v_sub_f32 v%d, 0, v%d' % (vMean, vMean)) + self.split_act(XE, vMean, vT)
        fin += mk('v_cndmask_b32 v%d, v%d, 0, s[%d:%d]\nv_mov_b32 v%d, 0\nv_mov_b32 v%d, 0' % (XE, XE, sHalf, sHalf + 1, XE + 2, XE + 3))
        if l == 0:
            xreg = self.xreg0
            P.add(trkv)
            P.add([wait_tok(self.tok_wq1)])
            P('s_barrier')
            P.add(self.stamp('wq_ready'))
            lds = []
        else:
            xreg = [16 + 4 * (i % 20) for i in range(28)]
            P.add(self.pa(28))
            P('s_add_u32 s%d, s%d, %d' % (sT4, sFo, FXIN - FL_OFF))
            P.add(self.poll_issue(sT4, o['pdi']))
            P('s_add_u32 s%d, s%d, s%d\ns_lshl_b32 s%d, s%d, 13' % (sT5, sBlk, sXin, sT3, sW))
            P.add(trkv + trq)
            lds = self.frag_loads([v(r, 4) for r in xreg], SRD_CL, sT5, 0, flags='sc1')
        nq = 0 if l == 0 else 8
        jobs = []
        for k in range(28):
            if l == 0 and k == 16:
                jobs += [(t, kk) for kk in range(7) for t in 'KV']
            jobs += [('k', k), ('v', k)] + ([('q', k)] if k < nq else [])
        jobs += [('k', 'e'), ('v', 'e')]
        nmain = len(jobs)
        jobs += [('q', k) for k in range(nq, 28)] + ([('q', 'e')] if l else [('Q', kk) for kk in range(7)])
        vo, vb, CSA = RLB, RLB + 4, 208

        def rd(j):
            t, k = jobs[j]
            b = WB + 4 * (j % NB)
            if k == 'e':
                return mk('ds_read_b64 %s, v%d offset:%d\nv_mov_b32 v%d, 0\nv_mov_b32 v%d, 0' % (v(b, 2), vCs, 256 * 'qkv'.index(t), b + 2, b + 3))
            base = {'q': vTrQ, 'k': vTr, 'v': vTrV, 'K': vb, 'V': vb + 1, 'Q': vTr}[t]
            rs = 64 if t in 'qQ' else 128
            return mk('ds_read_b64_tr_b16 %s, v%d offset:%d\nds_read_b64_tr_b16 %s, v%d offset:%d' % (v(b, 2), base, 16 * rs * k, v(b + 2, 2), base, 16 * rs * k + (32 // kh) * rs))
        for j in range(NB):
            P.add(rd(j))
        if l == 1:
            P.add(self.poll_check(sT4))
            P.add(self.stamp('x2_seen'))
            P.add(flat(lds[:o['look']]))
            P('s_add_u32 s%d, s%d, 1\nv_mov_b32 v%d, s%d' % (sNonce, sNonce, vNonce, sNonce))
        P('v_and_b32 v%d, 31, v0\nv_lshlrev_b32 v%d, 3, v%d\nv_add_u32 v%d, %d, v%d' % (vCs, vCs, vCs, vCs, L_CS, vCs))
        slots = []
        for j, (t, k) in enumerate(jobs):
            w = v(WB + 4 * (j % NB), 4)
            if t.isupper():
                sl = mfma(CSA + 16 * (t == 'V'), v(CSA + 16 if t == 'Q' else vo, 4), w, k == 0)
            else:
                x = v(XE if k == 'e' else xreg[k], 4)
                A, B = (w, x) if t == 'q' else (x, w)
                sl = mfma({'q': AQ, 'k': AK, 'v': AV}[t], A, B, k == 0)
            if l == 0 and j == 32 - NB:
                sl += self.late_dots + [wait_tok(self.tok_wq)] + mk('s_waitcnt lgkmcnt(0)\ns_barrier') + (self.stamp('bar2') if self.fine else [])
                sl += mk('s_mul_i32 s%d, s%d, %d\nv_add_u32 v%d, s%d, v%d\nv_add_u32 v%d, s%d, v%d' % (sT0, sW, 7 * 2048, vb, sT0, vTr, vb + 1, sT0, vTrV))
            if j % 2 == 0 and j + 1 < len(jobs) and j + 1 != nmain and o['s1pair']:
                also_waits_for(sl[0], v(WB + 4 * ((j + 1) % NB), 4))
            if j + NB < len(jobs) and not (j < nmain <= j + NB):
                sl += rd(j + NB)
            slots.append(sl)
        if l == 0:
            n = len(self.late_dma)
            for i, g in enumerate(self.late_dma):
                slots[(i * o['latespan']) // n] += g
            r0 = 32 - NB - 7
            slots[r0] += [wait_tok(self.tok_xb)]
            for i, g in enumerate(self.late_rd):
                slots[r0 + i // 2] += g
            slots[29] += mk('\n'.join('v_mov_b32 v%d, 0x3f803f80' % (vo + i) for i in range(4)))
            for i in range(0, len(fin), 4):
                slots[30 + i // 4] += fin[i:i + 4]
            pre, qd = self.wq_dma(175, True)
            self.tok_q = tok(qd[-1][-1])
            for i, g in enumerate([pre] + qd):
                slots[37 + i] += g
            slots[o['tslot']] += self.prefetch(vT, [(SRD_WO, 25)]) + self.touch_attn(0, vT)
            slots[47] += mk('v_and_b32 v%d, 31, v0\nv_lshlrev_b32 v%d, 2, v%d\ns_lshl_b32 s%d, s%d, 8\nv_add_u32 v%d, %d, v%d\nv_add_u32 v%d, s%d, v%d'
                            % (vb, vb, vb, sT0, sW, vb, L_KVB, vb, vb + 1, sT0, vb))
            slots[48] += mk('\n'.join('ds_write_b32 v%d, v%d offset:%d' % (vb + 1, CSA + 16 * t, 128 * t) for t in range(2)))
            slots[50] += mk('s_waitcnt lgkmcnt(0)\ns_barrier')
            for t in range(2):
                r = RLB
                slots[50 + 5 * t] += mk('\n'.join('ds_read_b32 v%d, v%d offset:%d' % (r + ww, vb, 256 * ww + 128 * t) for ww in range(4)))
                slots[53 + 5 * t] += mk('v_add_f32 v%d, v%d, v%d\nv_add_f32 v%d, v%d, v%d\nv_add_f32 v%d, v%d, v%d' % (r, r, r + 1, r + 2, r + 2, r + 3, r, r, r + 2))
                slots[54 + 5 * t] += self.split_w(r + 2, r, r + 1) + mk('ds_write_b64 v%d, %s offset:%d' % (vCs, v(r + 2, 2), 256 * (t + 1)))
        else:
            n = o['look']
            for j in range(0, nmain, 2):
                if n < 28:
                    k_free = n - 20
                    assert k_free < 0 or j >= jobs.index(('q', k_free))
                    slots[j] += lds[n]
                    n += 1
            st = self.frag_loads([v(SB + 4 * (i % 4), 4) for i in range(7)], SRD_CL, sT3, XST_OFF, st=sT1, flags='sc1')
            a0, a1 = o['sta'], o['stb']
            for i in range(4):
                slots[a0 + 2 * i] += st[i]
            ex = []
            for i in range(1, 16):
                ex += mk('v_add_f32 v%d, v%d, v%d' % (vS, vS if i > 1 else SB, SB + i))
            for i in range(0, 15, 2):
                slots[a1 - 8 + i // 2] += ex[i:i + 2]
            for i in range(3):
                slots[a1 + 2 * i] += st[4 + i]
            ex = flat(mk('v_add_f32 v%d, v%d, v%d' % (vS, vS, SB + i)) for i in range(12)) + fin
            e0 = o['stc']
            per = -(-len(ex) // (61 - e0))
            for i in range(61 - e0):
                slots[e0 + i] += ex[i * per:(i + 1) * per]
        RB = [WB + 4 * ((nmain - 4 + g) % NB) for g in range(4)]
        vEps = vT + 1
        slots[nmain - 5] += mk('v_lshrrev_b32 v%d, 5, v0\nv_lshl_add_u32 v%d, v%d, 4, s%d' % (vT + 2, vT + 2, vT + 2, sT4))
        for g in range(4):
            slots[nmain - 4 + g] += mk('ds_read_b128 %s, v%d offset:%d' % (v(RB[g], 4), vT + 2, 32 * g))
        slots[nmain - 1] += mk('v_mov_b32 v%d, 0x3f803f80\nv_add_u32 v%d, s%d, v%d\nv_mov_b32 v%d, %s' % (vPoll, vT, sT4, vL16, vEps, f32(1e-6)))
        vG = SB + 12
        ga = self.kv_lane_addr(vG, vG + 1, vG + 2, gather=True)
        for i in range(0, len(ga), 3):
            slots[(o['stb'] + 1 if l else 60) + i // 3] += ga[i:i + 3]
        P.add(flat(slots[:nmain]))
        P.add(self.stamp('s1_kv_mfma'))
        DK = WB
        for hf in range(2):
            R = lambda i: v(RB[2 * hf + i // 4] + i % 4, 2)
            P.add(self.phi8(AK + 8 * hf, R, RLB, vEps) + self.pack(AK + 4 * hf, AK + 8 * hf, 4))
            P.add(flat(mk('v_pk_mul_f32 %s, %s, %s' % (v(AV + 8 * hf + i, 2), v(AV + 8 * hf + i, 2), R(i))) for i in range(0, 8, 2)))
            P.add(self.pack(AV + 4 * hf, AV + 8 * hf, 4))
            for i in range(4):
                P('v_cndmask_b32 v%d, v%d, v%d, s[%d:%d]' % (AV + 4 * hf + i, AV + 4 * hf + i, vPoll, sN28, sN28 + 1))
        P.add(mfma(DK, v(AK, 4), v(AV, 4), True) + mfma(DK, v(AK + 4, 4), v(AV + 4, 4)))
        P('s_mov_b32 s%d, 0x80808080\ns_mov_b32 s%d, 0x80808080' % (sT0 + 1, sT0 + 2))
        for q in range(4):
            P('ds_write_b128 v%d, %s offset:%d' % (vT, v(DK + 4 * q, 4), 1024 * q))
        P('v_lshlrev_b32 v%d, 3, v0\ns_waitcnt lgkmcnt(0)\ns_barrier' % vT)
        for ww in range(4):
            P('ds_read_b128 %s, v%d offset:%d' % (v(AK + 4 * ww, 4), vG, 4096 * ww))
        if l == 1:
            for j in range(nmain, nmain + NB):
                P.add(rd(j))
        for x, y in ((AK, AK + 4), (AK + 8, AK + 12), (AK, AK + 8)):
            for i in (0, 2):
                P('v_pk_add_f32 %s, %s, %s' % (v(x + i, 2), v(x + i, 2), v(y + i, 2)))
        P.add(self.pack(AK, AK, 2))
        for i in range(2):
            P('v_cndmask_b32 v%d, v%d, v%d, s[%d:%d]' % (AK + i, AK + i, vNonce, sT0 + 1, sT0 + 2))
        P('buffer_store_dwordx2 %s, v%d, %s, s%d offen sc1' % (v(AK, 2), vT, self.srd(SRD_WS), sKvMy))
        P.add(self.stamp('kv_pub'))
        PQ = self.PQ = 104

        def qepi():
            L = []
            for hf in range(2):
                L += self.phi8(AQ + 8 * hf, lambda i: v(vRl, 2) + ' op_sel_hi:[1,0]', 48, vEps) + self.pack(PQ + 4 * hf, AQ + 8 * hf, 4)
            for i in (6, 7):
                L += mk('v_cndmask_b32 v%d, v%d, 0, s[%d:%d]' % (PQ + i, PQ + i, sHalf, sHalf + 1))
            return L
        if l == 0:
            P.add(trq + mk('\n'.join('v_mov_b32 v%d, 0x3f803f80' % (CSA + 16 + i) for i in range(4))))
            P('s_mul_i32 s%d, s%d, %d\nv_add_u32 v%d, s%d, v%d' % (sT0, sW, 7 * 1024, vTr, sT0, vTrQ))
            pre = [wait_tok(self.tok_q)] + mk('s_barrier') + flat(rd(j) for j in range(nmain, nmain + NB))
            va = CSA + 20
            post = mk('v_and_b32 v%d, 31, v0\nv_lshlrev_b32 v%d, 2, v%d\nv_add_u32 v%d, %d, v%d\ns_lshl_b32 s%d, s%d, 7\nv_add_u32 v%d, s%d, v%d\nds_write_b32 v%d, v%d'
                      % (va, va, va, va, L_KVS, va, sT0, sW, va + 1, sT0, va, va + 1, CSA))

            def qfin():
                L = mk('\n'.join('ds_read_b32 v%d, v%d offset:%d' % (WB + 4 + ww, va, 128 * ww) for ww in range(4)))
                L += mk('v_add_f32 v%d, v%d, v%d\nv_add_f32 v%d, v%d, v%d\nv_add_f32 v%d, v%d, v%d' % (WB + 4, WB + 4, WB + 5, WB + 6, WB + 6, WB + 7, WB + 4, WB + 4, WB + 6))
                L += self.split_w(WB, WB + 4, WB + 5) + mk('v_mov_b32 v%d, 0\nv_mov_b32 v%d, 0\nds_write_b64 v%d, %s' % (WB + 2, WB + 3, va + 2, v(WB, 2)))
                return L + mfma(AQ, v(WB, 4), v(XE, 4)) + qepi()
            post += mk('v_mov_b32 v%d, v%d' % (va + 2, vCs))
            self.staging(pre, slots[nmain:], post, qfin)
        else:
            P.add(spread(slots[nmain:], self.kvx_pre(1)))
            P.add(qepi())

    PARK = 140

    def wo_dma(self, vwo):
        wo = [mk('v_lshrrev_b32 v%d, 2, v0\nv_mul_u32_u24 v%d, 896, v%d\nv_and_b32 v%d, 3, v0\nv_lshl_add_u32 v%d, v%d, 4, v%d\ns_lshl_b32 s%d, s%d, 6\nv_add_u32 v%d, s%d, v%d'
                 % (vwo, vwo, vwo, vT, vwo, vT, vwo, sQ0, sM, vwo, sQ0, vwo))
              + mk('s_mul_i32 s%d, s%d, %d\ns_lshl_b32 s%d, s%d, 10\ns_add_u32 s%d, s%d, %d' % (sQ1, sW, 16 * 896, sT3, sW, sT3, sT3, L_WO))]
        for t in range(7):
            wo.append(mk('s_add_u32 m0, s%d, %d\ns_add_u32 s%d, s%d, %d\nbuffer_load_dwordx4 v%d, %s, s%d offen lds' % (sT3, 4096 * t, sQ0, sQ1, t * 64 * 896, vwo, self.srd(SRD_WO), sQ0)))
        last = I('s_mov_b32 s%d, %d\ns_mov_b32 m0, %d\ns_mov_b64 exec, 0xffff\nbuffer_load_dwordx4 v%d, %s, s%d offen lds\ns_mov_b64 exec, -1'
                 % (sQ0, 448 * 896, L_WO + 28672, vwo, self.srd(SRD_WO), sQ0), kind='block', nvm=1, src=[('v', vwo)])
        self.tok_wo = tok(last)
        return wo + [[last]]

    def staging(self, qpre, qslots, qpost, qepi):
        P = self.P
        lskip, ljoin = P.newlabel('Lnostage'), P.newlabel('Lstaged')
        v1a, t0, t1, vp, vb, vb2 = 112, 113, 114, 115, 116, 168
        P('s_cmp_lt_u32 s%d, 14\ns_cselect_b32 s%d, s%d, 0' % (sM, SRD_W1 + 2, SRD_W1 + 2))
        P('v_lshrrev_b32 v%d, 2, v0\nv_mul_u32_u24 v%d, 3584, v%d\nv_and_b32 v%d, 3, v0\nv_lshl_add_u32 v%d, v%d, 4, v%d'
          % (v1a, v1a, v1a, vT, v1a, vT, v1a))
        P('s_lshl_b32 s%d, s%d, 2\ns_add_u32 s%d, s%d, s%d\ns_lshl_b32 s%d, s%d, 6\nv_add_u32 v%d, s%d, v%d' % (sT5, sM, sT5, sT5, sW, sT5, sT5, v1a, sT5, v1a))
        P('s_mul_i32 s%d, s%d, 14336\ns_add_u32 s%d, s%d, %d\ns_mul_i32 s%d, s%d, 21504\ns_mul_i32 s%d, s%d, %d' % (sT3, sW, sT3, sT3, L_EX, sQ1, sW, sWi, sD1, 14 * 16 * 3584))

        def issue(k):
            g = mk('s_add_u32 m0, s%d, %d' % ((sT3, 1024 * k) if k < 14 else (sQ1, 1024 * (k - 14))))
            g += mk('s_add_u32 s%d, s%d, %d' % (sQ0, sWi, k * 16 * 3584) if k < 14 else 's_sub_u32 s%d, %d, s%d' % (sQ0, k * 16 * 3584, sWi))
            g += mk('buffer_load_dwordx4 v%d, %s, s%d offen lds' % (v1a, self.srd(SRD_W1), sQ0))
            return g
        dm = [issue(k) for k in range(28)]
        tk = [tok(g[-1]) for g in dm]
        park = mk('\n'.join('v_accvgpr_read_b32 v%d, a%d' % (160 + i, 216 + i) for i in range(8)))
        park += mk('v_add_u32 v%d, s%d, v%d' % (vp, sQ1, vL16))
        park += flat(mk('ds_read_b128 %s, v%d offset:%d' % (a(self.PARK + 4 * i, 4), vp, 1024 * i)) for i in range(21))
        ht = self.touch([(16, SRD_CL, sHst, b * 114688) for b in range(self.o['htk'])], vT) if self.o['htk'] else []
        P.add(flat(dm[:7]) + qpre + ht + (self.stamp('q_go') if self.fine else []))
        for i, g in enumerate(dm[7:14]):
            qslots[self.o['w1q'] + 2 * i] += g
        P.add(spread(qslots, park) + qpost)
        P('s_lshl_b32 s%d, s%d, 11\ns_add_u32 s%d, s%d, %d' % (sT4, sC, sT4, sT4, WS_XCC))
        P('v_and_b32 v%d, 15, v0\nv_lshlrev_b32 v%d, 7, v%d' % (vPA, vPA, vPA))
        P('buffer_load_dword v%d, v%d, %s, s%d offen sc1' % (vPoll, vPA, self.srd(SRD_WS), sT4))
        P('s_waitcnt lgkmcnt(0)\ns_barrier')
        if self.fine:
            P.add(self.stamp('q_done'))
        vo, D = 124, 128
        ad = self.trbase(t1, 64, 4) + mk('v_add_u32 v%d, s%d, v%d\nv_add_u32 v%d, s%d, v%d' % (t0, sT3, t1, t1, sQ1, t1))
        ad += mk('\n'.join('v_mov_b32 v%d, 0x3f803f80' % (vo + i) for i in range(4)))
        n1 = self.o['w1pre']
        for k in range(14, 14 + n1):
            lb = P.newlabel('Lnw')
            blk = I('s_cmp_ge_u32 s%d, 14\ns_cbranch_scc1 %s\n%s\n%s:' % (sM, lb, '\n'.join(x.text for x in dm[k]), lb), kind='block', nvm=1, src=[('v', v1a)], cost=20)
            blk.tok = tk[k]
            dm[k] = [blk]
        P.add(spread(dm[14:14 + n1], qepi() + ad) if n1 else qepi() + ad)
        P.add(self.stamp('sweep_start') + self.sweep_loads())
        P.add([I('s_cmp_ge_u32 s%d, 14\ns_cbranch_scc1 %s' % (sM, lskip), kind='block')])
        self.ool.append('%s:\ns_waitcnt vmcnt(0)\ns_branch %s' % (lskip, ljoin))
        P('v_and_b32 v%d, 31, v0\nv_lshlrev_b32 v%d, 1, v%d\nbuffer_load_ushort v%d, v%d, %s, s%d offen' % (vT, vT, vT, vb, vT, self.srd(SRD_B1), sT5))
        P('v_lshrrev_b32 v%d, 5, v0\nv_lshlrev_b32 v%d, 3, v%d\ns_lshl_b32 s%d, s%d, 5' % (vT, vT, vT, sT2, sFe))
        P('buffer_load_dwordx2 %s, v%d, %s, s%d offen\nbuffer_load_dwordx2 %s, v%d, %s, s%d offen offset:16'
          % (v(vb2, 2), vT, self.srd(SRD_B2), sT2, v(vb2 + 2, 2), vT, self.srd(SRD_B2), sT2))

        def consume(k):
            va, o = (t0, 1024 * k) if k < 14 else (t1, 1024 * (k - 14))
            L = [wait_tok(tk[k])] + mk('ds_read_b64_tr_b16 %s, v%d offset:%d\nds_read_b64_tr_b16 %s, v%d offset:%d' % (w1half(k, 0), va, o, w1half(k, 1), va, o + 512))
            return L + (mfma(D, v(vo, 4), w1reg(k - 2), k == 2) if k >= 2 else [])
        for k in range(14):
            P.add((dm[14 + n1 + k] if 14 + n1 + k < 28 else []) + consume(k))
        P.label(ljoin)
        P.add([I('s_nop 1', kind='block', states=2)])
        P.add(self.kvx_pre(0))
        l2 = P.newlabel('Lnowo')
        wo = flat(self.wo_dma(117))
        txt, _ = finalize(wo)
        blk = I('s_cmp_ge_u32 s%d, 14\ns_cbranch_scc1 %s\n%s\n%s:' % (sM, l2, '\n'.join(t.strip() for t in txt.split('\n') if t.strip()), l2),
                kind='block', nvm=8, dst=[('v', 117), ('v', vT)], src=[('v', 0)])
        self.tok_wo = tok(blk)
        self.after_kvb = [blk]
        ns = self.o['w1o']
        L = flat(consume(k) for k in range(ns, 28)) + mfma(D, v(vo, 4), w1reg(26)) + mfma(D, v(vo, 4), w1reg(27))
        L += self.unpack(144, vb2, 4) + mk('\n'.join('v_mov_b32 v%d, 0' % r for r in range(152, 156)))
        L += mk('s_lshl_b32 s%d, s%d, 7\ns_add_u32 s%d, s%d, %d\nv_lshrrev_b32 v%d, 5, v0\nv_lshl_add_u32 v%d, v%d, 6, s%d' % (sT0, sW, sT0, sT0, L_B2, vT, vT, vT, sT0))
        for q in range(4):
            L += mk('ds_write_b128 v%d, %s offset:%d' % (vT, v(144 + 4 * min(q, 2), 4), 16 * q))
        L += self.split_w(vW1X, D, vT + 1) + mk('v_lshl_or_b32 v%d, v%d, 16, v%d' % (vb, vb, vb))
        L += mk('v_cndmask_b32 v%d, v%d, v%d, s[%d:%d]\nv_cndmask_b32 v%d, v%d, 0, s[%d:%d]' % (vW1X, vW1X, vb, sHalf, sHalf + 1, vW1X + 1, vW1X + 1, sHalf, sHalf + 1))
        self.after_x1 = L + mk('s_waitcnt lgkmcnt(0)')
        self.after_o = flat(consume(k) for k in range(14, ns)) + self.xsrc() + [wait_tok(self.tok_wo)] + mk('s_waitcnt lgkmcnt(0)\ns_barrier') + flat(self.s2_rd(i) for i in range(4))

    def sweep_loads(self):
        return flat(self.frag_loads([v(32 + 4 * i, 4) for i in range(8)], SRD_WS, sKv, 0, flags='sc1'))

    def w2_prefetch(self, va, first, per):
        m = (1 << per) - 1
        txt = ['s_lshr_b32 s%d, s%d, 3' % (sQ0, sC), 's_mul_i32 s%d, s%d, 14' % (sQ0, sQ0), 's_add_u32 s%d, s%d, s%d' % (sQ0, sQ0, sM),
               's_lshl_b32 s%d, s%d, 2' % (sQ0, sQ0), 's_add_u32 s%d, s%d, s%d' % (sQ0, sQ0, sW), 's_mul_i32 s%d, s%d, %d' % (sQ0, sQ0, per * 128),
               's_add_u32 s%d, s%d, %d' % (sQ0, sQ0, first * 128), 'v_lshlrev_b32 v%d, 7, v0' % va,
               's_mov_b32 exec_lo, 0x%x' % (m & 0xffffffff), 's_mov_b32 exec_hi, 0x%x' % (m >> 32),
               'buffer_load_dword v%d, v%d, %s, s%d offen' % (vDummy, va, self.srd(SRD_W2), sQ0), 's_mov_b64 exec, -1']
        return [I('\n'.join(txt), kind='block', nvm=1, src=[('v', 0)], dst=[('v', va)], cost=52)]

    W2V = (15, 106, 5, 13, 140)

    def w2_addr(self):
        v2a, tA, tB, vp, tS = self.W2V
        L = mk('v_lshrrev_b32 v%d, 3, v0\nv_mul_u32_u24 v%d, 896, v%d\nv_lshrrev_b32 v%d, 2, v0\nv_and_b32 v%d, 4, v%d\nv_xor_b32 v%d, v%d, v0\nv_and_b32 v%d, 7, v%d\nv_lshl_add_u32 v%d, v%d, 4, v%d'
               % (v2a, v2a, v2a, vT, vT, vT, vT, vT, vT, vT, v2a, vT, v2a))
        L += mk('s_lshr_b32 s%d, s%d, 1\ns_lshl_b32 s%d, s%d, 7\ns_mul_i32 s%d, s%d, %d\ns_add_u32 s%d, s%d, s%d\nv_add_u32 v%d, s%d, v%d'
                % (sT0, sM, sT0, sT0, sT2, sW, 32 * 896, sT0, sT0, sT2, v2a, sT0, v2a))
        L += mk('s_mul_i32 s%d, s%d, 7168\ns_add_u32 s%d, s%d, %d\ns_lshl_b32 s%d, s%d, 12\ns_add_u32 s%d, s%d, %d'
                % (sRot, sW, sRot, sRot, L_EX, sQ1, sW, sQ1, sQ1, L_KVS))
        L += mk('s_lshr_b32 s%d, s%d, 1' % (sT0, sW)) + self.trbase(tA, 128, 4, xor16=sT0)
        L += mk('s_and_b32 s%d, s%d, 1\nv_bfe_u32 v%d, v0, 3, 1\nv_xor_b32 v%d, s%d, v%d\nv_lshl_add_u32 v%d, v%d, 6, v%d\nv_xor_b32 v%d, 64, v%d'
                % (sT0, sW, vT, vT, sT0, vT, tA, vT, tA, tA + 1, tA))
        L += mk('s_mul_i32 s%d, s%d, 10240\nv_add_u32 v%d, s%d, v%d\nv_add_u32 v%d, s%d, v%d' % (sWi, sW, tS, sWi, tA, tS + 1, sWi, tA + 1))
        L2 = mk('v_add_u32 v%d, s%d, v%d\nv_add_u32 v%d, s%d, v%d\nv_add_u32 v%d, s%d, v%d\nv_add_u32 v%d, s%d, v%d' % (tB, sQ1, tA, tB + 1, sQ1, tA + 1, tA, sRot, tA, tA + 1, sRot, tA + 1))
        L2 += mk('s_mul_i32 s%d, s%d, 21504\nv_add_u32 v%d, s%d, v%d' % (sT0, sW, vp, sT0, vL16))
        return L, L2

    def w2_steps(self, u0, u1, shadow):
        v2a, tA, tB, vp, tS = self.W2V
        NS = 5

        def where(u):
            n = (u - u0) % NS
            if shadow:
                return sWi, tS, n * 2048
            return (sRot, tA, n * 2048) if n < 3 else (sQ1, tB, (n - 3) * 2048)

        def issue(u):
            out = []
            base, _, o = where(u)
            for i in range(2):
                g = mk('s_add_u32 m0, s%d, %d' % (base, o + 1024 * i))
                g += mk('s_mov_b32 s%d, %d' % (sQ0, (128 * (u // 2) + 16 * (u % 2) + 8 * i) * 896))
                out += g + mk('buffer_load_dwordx4 v%d, %s, s%d offen lds' % (v2a, self.srd(SRD_W2), sQ0))
            return out, tok(out[-1])
        tk, first, steps, prev = {}, [], [], None
        for u in range(u0, min(u0 + NS - 1, u1)):
            g, tk[u] = issue(u)
            first.append(g)
        for u in range(u0, u1):
            _, ta, o = where(u)
            A = []
            if u + NS - 1 < u1:
                if prev:
                    A += [wait_tok(prev)]
                g, tk[u + NS - 1] = issue(u + NS - 1)
                A += g
            B = [wait_tok(tk[u])]
            for js in range(2):
                b = W2A + 8 * u + 4 * js
                B += mk('ds_read_b64_tr_b16 %s, v%d offset:%d\nds_read_b64_tr_b16 %s, v%d offset:%d' % (a(b, 2), ta + js, o, a(b + 2, 2), ta + js, o + 1024))
            prev = tok(B[-1])
            steps.append((A, B))
        return first, steps

    def w2_stage(self, fill, u0, u1, extra):
        P = self.P
        first, steps = self.w2_steps(u0, 28, False)
        P.add(flat(first))
        rest = [mk('ds_write_b128 v%d, %s offset:%d' % (self.W2V[3], a(self.PARK + 4 * i, 4), 1024 * i)) for i in range(21)]
        out, done = [], 0
        for n, (A, B) in enumerate(steps):
            u = u0 + n
            want = sum(1 for i in range(21) if 17 + (i + 1) // 2 <= u)
            out.append((A, rest[done:want], B + extra.get(u, []) + (self.stamp('w2_%d' % u) if self.fine else [])))
            done = want
        P.add(spread([A + flat(R) + B for A, R, B in out[:u1 - u0]], fill, start=0, end=self.o['w2fill']))
        return out[u1 - u0:]

    K10 = 98

    def kvx_pre(self, l):
        L = []
        RES = 160
        if l == 1:
            L += mk('s_add_u32 s%d, s%d, s%d' % (sT0, sOst, sXin))
            for j in range(2):
                L += mk('buffer_load_dwordx4 %s, v%d, %s, s%d offen offset:%d sc1' % (v(RES + 4 * j, 4), vL16, self.srd(SRD_CL), sT0, 1024 * j))
            L += [I('s_mul_i32 s%d, s%d, %d\ns_add_u32 s%d, s%d, s%d\ns_addc_u32 s%d, s%d, 0\ns_sub_u32 s%d, s%d, s%d'
                    % (sT0, sSlow, LOFF, SRD_CL, SRD_CL, sT0, SRD_CL + 1, SRD_CL + 1, SRD_CL + 2, SRD_CL + 2, sT0), kind='block', cost=16)]
        L += [I('s_cmp_eq_u32 s%d, 3\ns_cselect_b32 s%d, 0xffff0000, 0\ns_cselect_b32 s%d, 0xffff0000, 0' % (sW, sPm, sPm + 1), kind='block', cost=12)]
        L += self.kv_lane_addr(self.KA, self.KA + 1, self.KA + 2, gather=False)
        g, t = self.KA + 1, self.KA + 2
        L += mk('\n'.join(['v_bfe_u32 v%d, v0, 3, 1' % g, 'v_and_b32 v%d, 3, v0' % t, 'v_lshl_add_u32 v%d, v%d, 2, v%d' % (g, g, t),
                           'v_cmp_eq_u32 vcc, 7, v%d' % g, 'v_bfe_u32 v%d, v0, 4, 1' % t, 'v_mad_u32_u24 v%d, v%d, 14, v%d' % (g, t, g),
                           'v_bfe_u32 v%d, v0, 2, 1' % t, 'v_mad_u32_u24 v%d, v%d, 7, v%d' % (g, t, g), 'v_cndmask_b32 v%d, v%d, 28, vcc' % (g, g),
                           'v_and_b32 v%d, 32, v0' % t, 'v_add_u32 v%d, v%d, v%d' % (g, g, t), 'v_lshlrev_b32 v%d, 5, v%d' % (g, g), 'v_add_u32 v%d, %d, v%d' % (g, L_KVB, g)]))
        L += mk('s_and_b32 s%d, s%d, 0x1fff\ns_or_b32 s%d, s%d, 0x4000\ns_lshl_b32 s%d, s%d, 16' % (sTag, sNonce, sTag, sTag, sTag + 1, sTag))
        L += mk('v_mov_b32 v%d, 0x3f80\nv_mov_b32 v%d, 0x3f800000' % (self.K10, self.K10 + 1))
        return L

    KA = 100

    def kvx(self, l):
        P = self.P
        P.comment('==== layer %d : kv exchange' % l)
        if l == 0:
            lw, lb = P.newlabel('Lxcc'), P.newlabel('Lxok')
            P('v_subrev_u32 v%d, s%d, v%d\nv_cmp_lt_u32 vcc, 15, v%d' % (vPoll, sNonce, vPoll, vPoll))
            P.add([I('s_cbranch_vccnz %s\n%s:' % (lw, lb), kind='block')])
            self.ool.append('\n'.join([
                lw + ':',
                'buffer_load_dword v%d, v%d, %s, s%d offen sc1' % (vPoll, vPA, self.srd(SRD_WS), sT4),
                's_add_u32 s%d, s%d, 1' % (sSpin, sSpin),
                's_cmp_gt_u32 s%d, 0x40000' % sSpin,
                's_cbranch_scc1 L_end',
                's_waitcnt vmcnt(0)',
                'v_subrev_u32 v%d, s%d, v%d' % (vPoll, sNonce, vPoll),
                'v_cmp_lt_u32 vcc, 15, v%d' % vPoll,
                's_cbranch_vccnz %s' % lw,
                's_branch %s' % lb]))
            P('v_cmp_ne_u32 vcc, s%d, v%d\ns_cmp_lg_u64 vcc, 0\ns_cselect_b32 s%d, 1, 0\ns_mov_b32 s%d, %d\ns_cselect_b32 s%d, %d, s%d' % (sXcc, vPoll, sSlow, sXin, X1_OFF if self.o['alias'] else XIN_OFF, sXin, XIN_OFF, sXin))
        K10, K01 = self.K10, self.K10 + 1
        sw = []
        if l == 1:
            sw = (mk('s_sleep %d' % self.o['kvdelay']) if self.o['kvdelay'] else []) + self.stamp('sweep_start') + self.sweep_loads()
        if not self.o['swlate']:
            P.add(sw)
        P('v_and_b32 v%d, 15, v0\nv_lshlrev_b32 v%d, 11, v%d\nv_add_u32 v%d, 2044, v%d' % (vPA, vPA, vPA, vPA, vPA))
        P.add(self.trbase(vTr, 64, 7, add=L_WO))
        P.add(self.s2_pre(l))
        P('s_mov_b32 s%d, 0x88888888\ns_mov_b32 s%d, 0x88888888' % (sPm, sPm + 1))
        if self.o['swlate']:
            P.add(sw)
        lsw, lre = P.newlabel('Lsweep'), P.newlabel('Lresweep')
        P.label(lsw)
        B = 32
        bad, S = vT, 64
        P('v_mov_b32 v%d, 0' % bad)
        for i in range(8):
            for k in range(4):
                for hh, K in enumerate((K10, K01)):
                    P('v_dot2_f32_bf16 v%d, v%d, v%d, %s' % (S + 2 * k + hh, B + 4 * i + k, K, 'v%d' % (S + 2 * k + hh) if i else '0'))
            for k in (2, 3):
                P('v_bitop3_b32 v%d, v%d, s%d, v%d bitop3:0xbe' % (bad, B + 4 * i + k, sNonce, bad))
        P('v_cmp_ne_u32 vcc, 0, v%d\ns_and_b64 vcc, vcc, s[%d:%d]' % (bad, sPm, sPm + 1))
        P.add([I('s_cbranch_vccnz %s' % lre, kind='block', states=1)])
        self.ool.append('%s:\ns_sleep 6\ns_add_u32 s%d, s%d, 1\ns_cmp_gt_u32 s%d, 0x40000\ns_cbranch_scc1 L_end\n%s\ns_waitcnt vmcnt(0)\ns_branch %s'
                        % (lre, sSpin, sSpin, sSpin, '\n'.join(x.text for x in self.sweep_loads()), lsw))
        P.add(self.stamp('sweep_done'))
        for k in range(4):
            P('v_permlane32_swap_b32 v%d, v%d' % (S + k, S + 4 + k))
        for k in (0, 2):
            P('v_pk_add_f32 %s, %s, %s' % (v(S + k, 2), v(S + k, 2), v(S + 4 + k, 2)))
        P.add(self.pack(S, S, 2))
        P('ds_write_b64 v%d, %s' % (self.KA, v(S, 2)))
        P('s_waitcnt lgkmcnt(0)\ns_barrier')
        KF, D = 72, 80
        P('ds_read_b128 %s, v%d\nds_read_b128 %s, v%d offset:16' % (v(KF, 4), self.KA + 1, v(KF + 4, 4), self.KA + 1))
        P.add(flat(self.s2_rd(i) for i in range(4)) if l else self.after_kvb)
        P.add(mfma(D, v(KF, 4), v(self.PQ, 4), True))
        for i in (6, 7):
            P('v_cndmask_b32 v%d, v%d, 0, s[%d:%d]' % (KF + i, KF + i, sHalf, sHalf + 1))
        P.add(mfma(D, v(KF + 4, 4), v(self.PQ + 4, 4)))
        t1 = 120
        P('v_add_f32 v%d, %s, v%d\nv_rcp_f32 v%d, v%d\nv_mul_f32 v%d, s%d, v%d' % (t1, f32(1e-6), D + 7, t1, t1, t1, sLn2, t1))
        for r in range(0, 16, 2):
            P('v_pk_mul_f32 %s, %s, %s op_sel_hi:[1,0]' % (v(D + r, 2), v(D + r, 2), v(t1, 2)))
        P('v_mov_b32 v%d, s%d\nv_mov_b32 v%d, s%d' % (D + 7, sTag + 1, D + 15, sTag + 1))
        P.add(self.pack(D, D, 8))
        st = self.stores(['buffer_store_dwordx4 %s, v%d, %s, s%d offen offset:%d' % (v(D + 4 * j, 4), vL16, self.srd(SRD_CL), sOst, 1024 * j) for j in range(2)])
        P.add(st)
        P.add(self.stamp('o_pub'))

    def s2_rd(self, i):
        WB, o = 144 + 4 * (i % 4), 1792 * (i // 2) + 896 * (i % 2)
        return mk('ds_read_b64_tr_b16 %s, v%d offset:%d\nds_read_b64_tr_b16 %s, v%d offset:%d' % (v(WB, 2), vTr, o, v(WB + 2, 2), vTr, o + 256))

    def s2_pre(self, l):
        L = self.s4_consts(l)
        L += mk('s_add_u32 s%d, s%d, %d' % (sT4, sOst, X1_OFF))
        L += mk('s_lshr_b32 s%d, s%d, 2\ns_lshl_b32 s%d, s%d, 10\ns_and_b32 s%d, s%d, 3\ns_lshl_b32 s%d, s%d, 2\ns_add_u32 s%d, s%d, s%d\ns_add_u32 s%d, s%d, s%d\ns_add_u32 s%d, s%d, %d'
                % (sT5, sM, sT5, sT5, sT1, sM, sT1, sT1, sT5, sT5, sT1, sT5, sT5, sBlk, sT5, sT5, X1_OFF + 28672))
        return L + self.unpack(16, 160, 8)

    def s2(self, l):
        P = self.P
        o = self.o
        P.comment('==== layer %d : S2' % l)
        ACC, OF, WB, RES = 16, 32, 144, 160
        NB = 4
        lre, lfail = P.newlabel('Ls2'), P.newlabel('Ls2again')
        if l == 0:
            P.add(self.after_o)
        P.label(lre)
        P.add(self.poll_issue(sBlk, o['pdo'] if l else 0))
        rd = self.s2_rd
        bad = vT
        P('v_mov_b32 v%d, 0' % bad)
        P.add(self.poll_check(sBlk, tag=True))
        P.add(self.stamp('o_seen'))
        oreg = [OF + 4 * (i % (28 if l else 18)) for i in range(32)]
        lds = self.frag_loads([v(r, 4) for r in oreg], SRD_CL, sBlk, O_OFF, flags='sc1')
        n = o['look2']
        P.add(flat(lds[:n]))
        chk = lambda i: mk('v_bitop3_b32 v%d, v%d, s%d, v%d bitop3:0xbe\nv_and_b32 v%d, 0xffff, v%d' % (bad, oreg[i] + 3, sTag + 1, bad, oreg[i] + 3, oreg[i] + 3))
        P.add(chk(0))
        for i in range(32):
            if i + n < 32:
                P.add(lds[i + n])
            P.add(mfma(ACC, v(WB + 4 * (i % NB), 4), v(oreg[i], 4)))
            if self.fine and i in (0, 8, 16, 31):
                P.add(self.stamp('s2_%d' % i))
            if i + NB < 32:
                P.add(rd(i + NB))
            if i + 1 < 32:
                P.add(chk(i + 1))
            if i == 28:
                P.add(self.pa(14, blocks=True, reg=vT + 2))
        P('v_cmp_lt_u32 vcc, 0xffff, v%d' % bad)
        P.add([I('s_cbranch_vccnz %s' % lfail, kind='block', states=1)])
        again = '\n'.join(x.text for x in self.unpack(ACC, RES, 8) + flat(rd(i) for i in range(NB)))
        self.ool.append('%s:\ns_add_u32 s%d, s%d, 1\ns_cmp_gt_u32 s%d, 0x40000\ns_cbranch_scc1 L_end\ns_nop 15\n%s\ns_waitcnt lgkmcnt(0)\ns_branch %s'
                        % (lfail, sSpin, sSpin, sSpin, again, lre))
        P('v_mov_b32 v%d, v%d' % (vPA, vT + 2))
        P.add(self.pack(OF, ACC, 8))
        P.add(self.stores(['buffer_store_dwordx4 %s, v%d, %s, s%d offen offset:%d' % (v(OF + 4 * j, 4), vL16, self.srd(SRD_CL), sT4, 1024 * j) for j in range(2)]))
        P.add(self.row_stats(OF, 8, vT, vT + 2))
        st = self.stores(['buffer_store_dword v%d, v%d, %s, s%d offen' % (vT, vL16, self.srd(SRD_CL), sT5)])
        tk = tok(st[-1])
        P.add(st)
        if self.fine:
            P.add(self.stamp('x1_st'))
        P.add(self.flag([tk], sFoMy, FX1 - FO))
        P.add(self.stamp('x1_pub'))

    def gelu(self, acc, KK, T):
        pr = range(0, 16, 2)
        A = flat(mk('v_pk_mul_f32 %s, %s, %s' % (v(T + i, 2), v(acc + i, 2), v(acc + i, 2))) for i in pr)
        A += flat(mk('v_pk_fma_f32 %s, %s, %s, %s op_sel:[0,1,0] op_sel_hi:[1,1,0]' % (v(T + i, 2), v(T + i, 2), v(KK, 2), v(KK, 2))) for i in pr)
        A += flat(mk('v_pk_mul_f32 %s, %s, %s' % (v(T + i, 2), v(T + i, 2), v(acc + i, 2))) for i in pr)
        E = flat(mk('v_exp_f32 v%d, v%d' % (T + i, T + i)) for i in range(16))
        B = flat(mk('v_pk_fma_f32 %s, %s, %s, %s op_sel_hi:[1,0,0]' % (v(T + i, 2), v(T + i, 2), v(KK + 2, 2), v(KK + 2, 2))) for i in pr)
        R = flat(mk('v_rcp_f32 v%d, v%d' % (T + i, T + i)) for i in range(16))
        C = flat(mk('v_pk_mul_f32 %s, %s, %s' % (v(acc + i, 2), v(acc + i, 2), v(T + i, 2))) for i in pr)
        pk = self.pack(acc, acc, 8)
        g4 = lambda f, g: flat(mk(f(4 * g + i)) for i in range(4))
        e = lambda g: E[4 * g:4 * g + 4]
        r = lambda g: R[4 * g:4 * g + 4]
        b = lambda g: g4(lambda i: 'v_fma_f32 v%d, v%d, v%d, v%d' % (T + i, T + i, KK + 2, KK + 2), g)
        c = lambda g: g4(lambda i: 'v_mul_f32 v%d, v%d, v%d' % (acc + i, acc + i, T + i), g) + pk[2 * g:2 * g + 2]
        tail = e(0) + e(1) + b(0) + r(0) + e(2) + b(1) + c(0) + r(1) + e(3) + b(2) + c(1) + r(2) + b(3) + c(2) + r(3) + c(3)
        return A, A + E + B + R + C + pk, tail

    XSRC = (4, 5, 6, 7, 8, 9, 10, 11, 12, 13, 14, 15, 20, 21)

    def xsrc(self):
        L = mk('s_lshl_b32 s%d, s%d, 1\ns_mul_i32 s%d, s%d, 14\ns_add_u32 s%d, s%d, s%d\ns_mov_b32 s%d, %d' % (sT0, sW, sT1, sD1, sT1, sT1, sT0, sT2, X1_OFF))
        for c, r in enumerate(self.XSRC):
            if c:
                L += mk('s_add_u32 s%d, s%d, 8\ns_cmp_ge_u32 s%d, 28\ns_cselect_b32 s%d, 28, 0\ns_cselect_b32 s%d, 0x8000, 0\ns_sub_u32 s%d, s%d, s%d\ns_add_u32 s%d, s%d, s%d'
                        % (sT0, sT0, sT0, sT3, r, sT0, sT0, sT3, sT2, sT2, r))
                L += mk('s_add_u32 s%d, s%d, 8\ns_cmp_ge_u32 s%d, 28\ns_cselect_b32 s%d, 28, 0\ns_sub_u32 s%d, s%d, s%d' % (sT1, sT1, sT1, sT3, sT1, sT1, sT3))
            L += mk('s_lshl_b32 s%d, s%d, 10\ns_add_u32 s%d, s%d, s%d' % (r, sT1, r, r, sT2))
        return L

    SEL = 172

    def s4_consts(self, l):
        U, SEL = 120, self.SEL
        sel = mk('\n'.join(['v_lshrrev_b32 v%d, 5, v0' % SEL,
                             'v_lshlrev_b32 v%d, 2, v%d' % (SEL, SEL), 'v_and_b32 v%d, 31, v0' % (SEL + 1), 'v_sub_u32 v%d, v%d, v%d' % (U, SEL + 1, SEL),
                             'v_mov_b32 v%d, 0x3f80' % (U + 1), 'v_mov_b32 v%d, 0x3f800000' % (U + 2)]))
        for q, r0 in enumerate((0, 2, 8, 10)):
            sel += mk('v_cmp_eq_u32 vcc, %d, v%d\nv_cmp_eq_u32 s[%d:%d], %d, v%d\ns_nop 0\nv_cndmask_b32 v%d, 0, v%d, vcc\nv_cndmask_b32 v%d, v%d, v%d, s[%d:%d]'
                      % (r0, U, sPm, sPm + 1, r0 + 1, U, SEL + q, U + 1, SEL + q, SEL + q, U + 2, sPm, sPm + 1))
        for q, sB in enumerate((sEb, sLb)):
            sel += mk('s_lshl_b32 s%d, s%d, 15\ns_lshl_b32 s%d, s%d, 10\ns_add_u32 s%d, s%d, s%d\ns_add_u32 s%d, s%d, %d' % (sT0, sB, sT2, sFe, sT0, sT0, sT2, sRes + q, sT0, X1_OFF))
            if l == 0:
                sel += mk('s_add_u32 s%d, s%d, s%d\ns_lshl_b32 s%d, s%d, 13' % (sFin + q, sT0, sXin, sT0, sB))
                sel += mk('s_lshr_b32 s%d, s%d, 2\ns_lshl_b32 s%d, s%d, 10\ns_add_u32 s%d, s%d, s%d\ns_and_b32 s%d, s%d, 3\ns_lshl_b32 s%d, s%d, 2\ns_add_u32 s%d, s%d, s%d\ns_add_u32 s%d, s%d, %d'
                          % (sT2, sFe, sT2, sT2, sT0, sT0, sT2, sT2, sFe, sT2, sT2, sT0, sT0, sT2, sFin + 2 + q, sT0, XST_OFF))
                sel += mk('s_lshl_b32 s%d, s%d, 5\ns_add_u32 s%d, s%d, s%d\ns_lshl_b32 s%d, s%d, 2\ns_add_u32 s%d, s%d, %d' % (sT2, sB, sT2, sT2, sFe, sT2, sT2, sFin + 4 + q, sT2, FXIN))
            else:
                sel += mk('s_lshl_b32 s%d, s%d, 2\ns_add_u32 s%d, s%d, s%d\ns_mul_i32 s%d, s%d, %d\ns_lshl_b32 s%d, s%d, 5\ns_add_u32 s%d, s%d, s%d'
                          % (sT0, sC, sT0, sT0, sB, sT0, sT0, 32 * 896, sT2, sFe, sFin + q, sT0, sT2))

        return sel

    def mlp(self, l):
        P = self.P
        o = self.o
        P.comment('==== layer %d : MLP' % l)
        ACC = (16, 32)
        XB, EXB, WEX, T, RING = 48, 72, 76, 80, 108
        KK = (96, 100)
        SEL, vB2, vX2 = self.SEL, 104, 105
        NB = 6
        if l == 0:
            P.add(self.after_x1)
        P('s_mov_b32 s%d, %d' % (sT4, FX1))
        if not o['p1']:
            P.add(self.poll_issue(sT4, o['pdx']))
        P('s_lshl_b32 s%d, s%d, 11' % (sT5, sW))
        P('v_mov_b32 v%d, v%d\nv_mov_b32 v%d, v%d' % (WEX, vW1X, WEX + 1, vW1X + 1))
        P('\n'.join('v_mov_b32 v%d, 0' % r for r in (WEX + 2, WEX + 3, EXB + 2, EXB + 3)))
        vE8, vK16 = vTr, vT + 3
        P('v_lshlrev_b32 v%d, 3, v0\nv_add_u32 v%d, %d, v%d' % (vE8, vE8, L_KVS, vE8))
        P('v_and_b32 v%d, 31, v0\nv_lshlrev_b32 v%d, 4, v%d\nv_add_u32 v%d, %d, v%d' % (vK16, vK16, vK16, vK16, L_KVS + 512, vK16))
        P('v_add_u32 v%d, %d, v%d' % (vX2, 56 * 1024, vL16))
        P('s_lshl_b32 s%d, s%d, 7\ns_add_u32 s%d, s%d, %d\nv_lshrrev_b32 v%d, 5, v0\nv_lshl_add_u32 v%d, v%d, 6, s%d' % (sT3, sW, sT3, sT3, L_B2, vB2, vB2, vB2, sT3))
        P('s_add_u32 s%d, s%d, %d' % (sT1, sBlk, X1_OFF + 28672))
        if o['p1']:
            lq = P.newlabel('Lnp')
            c = self.poll_check(sT4)[0]
            P.add([I('s_cmp_lg_u32 s%d, 0\ns_cbranch_scc1 %s\n%s\ns_waitcnt vmcnt(0)\n%s\n%s:\ns_barrier'
                     % (sW, lq, '\n'.join(x.text for x in self.poll_issue(sT4, o['pdx'] if l else 0)), c.text, lq), kind='block', src=[('v', vPA)], dst=c.dst, states=2)])
        else:
            P.add(self.poll_check(sT4))
        P.add(self.stamp('x1_seen'))
        xd, tc = [], []
        for c, r in enumerate(self.XSRC):
            g = mk('s_add_u32 m0, s%d, %d' % (sT5, 8192 * c))
            g += mk('buffer_load_dwordx4 v%d, %s, s%d offen sc1 lds\nbuffer_load_dwordx4 v%d, %s, s%d offen offset:1024 sc1 lds' % (vL16, self.srd(SRD_CL), r, vL16, self.srd(SRD_CL), r))
            tc.append(tok(g[-1]))
            xd.append(g)
        stl = [mk('buffer_load_dwordx4 %s, v%d, %s, s%d offen offset:%d sc1' % (v(RING + 4 * i, 4), vL16, self.srd(SRD_CL), sT1, 1024 * i)) for i in range(4)]
        sp = o['stpos']
        P.add({0: flat(stl) + xd[0] + xd[1], 1: xd[0] + xd[1] + flat(stl), 2: xd[0] + xd[1], 3: xd[0] + flat(stl[:2]) + xd[1]}[sp])
        K0 = KK[1]
        st0 = []
        for x, y in ((0, 1), (2, 3), (4, 5), (6, 7), (8, 9), (10, 11), (12, 13), (0, 2), (4, 6), (8, 10), (0, 4), (8, 12)):
            st0 += mk('v_add_f32 v%d, v%d, v%d' % (RING + x, RING + x, RING + y))
        st0 += mk('v_add_f32 v%d, v%d, v%d' % (T, RING, RING + 8))
        st0 += self.stats_finish(T, True)
        st0 += mk('\n'.join(['v_rcp_f32 v%d, v%d' % (K0 + 2, vRl),
                             'v_mul_f32 v%d, s%d, v%d' % (K0, sC0, vRl),
                             'v_mul_f32 v%d, v%d, v%d' % (T, vRl, vRl),
                             'v_mul_f32 v%d, s%d, v%d' % (K0 + 1, sC1, vRl),
                             'v_mul_f32 v%d, v%d, v%d' % (K0 + 1, K0 + 1, T),
                             'v_sub_f32 v%d, 0, v%d' % (vMean, vMean),
                             'v_cndmask_b32 v%d, v%d, v%d, s[%d:%d]' % (vMean, vMean, K0 + 2, sHalf, sHalf + 1)]))
        st0 += self.split_act(T + 2, vMean, T)
        st0 += mk('s_lshl_b32 s%d, s%d, 10\nv_add_u32 v%d, s%d, v%d\nv_add_u32 v%d, s%d, v%d' % (sT4, sW, vT, sT4, vE8, vT + 1, sT4, vK16))
        st0 += mk('ds_write_b64 v%d, %s\nds_write_b128 v%d, %s' % (vT, v(T + 2, 2), vT + 1, v(K0, 4)))
        tst = tok(st0[-1])

        def hpub(b):
            pre = mk('s_add_u32 s%d, s%d, %d' % (sT4, sHst, b * 114688))
            st = self.stores(['buffer_store_dwordx4 %s, v%d, %s, s%d offen offset:%d' % (v(ACC[b & 1] + 4 * j, 4), vL16, self.srd(SRD_CL), sT4, 1024 * j) for j in range(2)])
            return pre + st, tok(st[-1])
        hflag = lambda b, tk: self.flag([tk], sFoMy, FH - FO + 512 * b)
        extrd = lambda b: mk('ds_read_b64 %s, v%d offset:%d\nds_read_b128 %s, v%d offset:%d' % (v(EXB, 2), vE8, 1024 * b, v(KK[b & 1], 4), vK16, 1024 * b))
        extmf = lambda b: mfma(ACC[b & 1], v(WEX, 4), v(EXB, 4))
        hreg = [RING + 4 * (i % 16) for i in range(56)]

        def hload(i):
            blk, kap = divmod(i, 28)
            g = mk('s_add_u32 s%d, s%d, %d' % (sHs, (sHE, sHL)[blk], 8192 * (kap // 2))) if kap % 2 == 0 else []
            return g + mk('buffer_load_dwordx4 %s, v%d, %s, s%d offen offset:%d sc1' % (v(hreg[i], 4), vL16, self.srd(SRD_CL), sHs, 1024 * (kap % 2)))
        P.add([wait_tok(tc[0])])
        P('s_barrier')
        P.add(self.stamp('s3_b0'))
        rdj = lambda j: mk('ds_read_b128 %s, v%d offset:%d' % (v(XB + 4 * (j % NB), 4), vL16 if j < 56 else vX2, 1024 * (j % 56)))
        for j in range(NB):
            P.add(rdj(j))
        isl = lambda c: 0 if c == 2 else o['x0'] + (o['xstep'] * (c - 3)) // 2
        bars, cov = {}, 0
        for c in range(1, 14):
            sj = 8 * c - 5
            if c > cov or sj in (27, 43):
                cov = max([c] + [d for d in range(3, 14) if isl(d) + o['xlag'] <= sj])
                bars[sj] = [tc[cov]] + ([tst] if sj == 27 else [])
        slots = []
        for j in range(112):
            b, k = divmod(j, 28)
            sl = mfma(ACC[b & 1], w1reg(k), v(XB + 4 * (j % NB), 4), k == 0)
            if k % 2 == 0:
                also_waits_for(sl[0], v(XB + 4 * ((j + 1) % NB), 4))
            if j in bars:
                sl += (self.stamp('pb%d' % j) if self.fine else []) + [wait_tok(*bars[j])] + mk('s_barrier') + (self.stamp('ab%d' % j) if self.fine else [])
            if k % 2 == 1:
                for jj in (j + NB - 1, j + NB):
                    if jj < 112:
                        sl += rdj(jj)
            if (k == 25 and b) or j == 27:
                sl += extrd(b)
            if (k == 27 and b) or j == 30:
                sl += extmf(b if k == 27 else 0)
            slots.append(sl)
        slots[0] += stl[0] + stl[1] if sp == 2 else []
        slots[1 if sp == 2 else 0] += xd[2]
        slots[3 if sp == 2 else 2] += stl[2] + stl[3] if sp >= 2 else []
        for c in range(3, 14):
            slots[isl(c)] += xd[c]
        pre0, pre1 = self.w2_addr() if l == 0 else ([], [])
        slots[26] += pre1
        nsh = o['nsh'] if l == 0 else 0
        if nsh:
            first, steps = self.w2_steps(0, nsh, True)
            p0 = o['sh0']
            for i, g in enumerate(first):
                slots[p0 + 2 * i] += g
            p1 = p0 + 2 * len(first) + o['shgap']
            for n, (A, B) in enumerate(steps):
                sj = p1 + (n * (110 - p1)) // nsh
                slots[sj] += A
                slots[sj + 1] += B
            if o['idlew2'] < 13:
                slots[o['pf2']] += self.w2_prefetch(vT, 1024 * o['idlew2'], -(-(12544 - 1024 * o['idlew2']) // 112))
        out = spread(slots[:o['st0']], pre0) + spread(slots[o['st0']:o['st1']], st0) + flat(slots[o['st1']:28])
        pend = None
        for b in range(1, 4):
            gA, _, tail = self.gelu(ACC[(b - 1) & 1], KK[(b - 1) & 1], T)
            s0 = 28 * b + (5 if b == 1 else 2)
            st, nxt = hpub(b - 1)
            if l == 0 and b < 3 and not nsh:
                st = st + self.w2_prefetch(vT, (b - 1) * 6272, 56)
            slots[s0] += gA
            if pend is not None and l == 1:
                slots[28 * b + o['flagpos']] += hflag(b - 2, pend)
            pend = nxt
            if b == 3 and l == 1:
                slots[84 + o['pollE']] += self.pa(14) + self.poll_issue(sPE)
                n3 = o['n3']
                slots[112 - n3] += (self.stamp('preE') if self.fine else []) + self.poll_check(sPE) + (self.stamp('gotE') if self.fine else [])
                for i in range(n3):
                    slots[112 - n3 + i] += hload(i)
            if b == 1 or self.fine:
                out += self.stamp('s3_b%d' % b)
            out += flat(slots[28 * b:s0 + 1]) + spread(slots[s0 + 1:28 * b + 28], tail + st, end=28 * b + o['gend'] - s0)
        P.add(out)
        P('s_waitcnt lgkmcnt(0)\ns_barrier')
        P.add(self.stamp('s3_end'))
        AE, AL, RX, RS = 48, 16, 80, 96
        vEW, vER = (vTr, vT, vT + 1), vT + 3
        resid = lambda q: mk('buffer_load_dwordx4 %s, v%d, %s, s%d offen sc1' % (v(RS, 4), vL16, self.srd(SRD_CL), sRes + q))
        cinit = lambda A: flat(mk('ds_read_b128 %s, v%d offset:%d' % (v(A + 4 * q, 4), vB2, 16 * q)) for q in range(4))
        ad = []
        for n, x in enumerate((2, 1, 3)):
            ad += mk('s_xor_b32 s%d, s%d, %d\ns_mul_i32 s%d, s%d, 6144\ns_add_u32 s%d, s%d, %d\nv_add_u32 v%d, s%d, v%d'
                     % (sT3, sW, x, sT3, sT3, sT3, sT3, L_EX + 2048 * (x - 1), vEW[n], sT3, vL16))
        ad += mk('s_mul_i32 s%d, s%d, 6144\ns_add_u32 s%d, s%d, %d\nv_add_u32 v%d, s%d, v%d' % (sT3, sW, sT3, sT3, L_EX, vER, sT3, vL16))
        gA, gall, _ = self.gelu(ACC[1], KK[1], T)
        st, p3 = hpub(3)
        npre = o['npre']
        if l == 0:
            npre, u1 = o['npre0'], o['w2u1']
            fl = hflag(0, pend) + hflag(1, pend) + hflag(2, pend)
            w2rest = self.w2_stage(gall[:o['flat']] + fl + gall[o['flat']:] + st, nsh, u1, {u1 - 2: self.pa(14) + self.poll_issue(sPE)})
            P.add(cinit(AE) + self.poll_check(sPE) + resid(0) + flat(hload(i) for i in range(npre)))
        else:
            P.add(spread([resid(0)] + [hload(i) for i in range(o['n3'], npre)], gall[:40] + hflag(2, pend) + cinit(AE) + gall[40:] + st))
        if self.fine:
            P.add(self.stamp('g3_end'))

        exch_write = lambda A: flat(mk('ds_write_b128 v%d, %s\nds_write_b128 v%d, %s offset:1024' % (vEW[n], v(r, 4), vEW[n], v(r + 4, 4)))
                                    for n, r in enumerate((A + 8, A + 16, A + 24)))
        exch_read = lambda: flat(mk('ds_read_b128 %s, v%d offset:%d' % (v(RX + 4 * q, 4), vER, 1024 * q)) for q in range(6))

        def addv(d, x, y, n, pk):
            if pk:
                return flat(mk('v_pk_add_f32 %s, %s, %s' % (v(d + i, 2), v(x + i, 2), v(y + i, 2))) for i in range(0, n, 2))
            return flat(mk('v_add_f32 v%d, v%d, v%d' % (d + i, x + i, y + i)) for i in range(n))

        def finish(A, q, pk):
            L = addv(A, A, RX, 8, pk) + addv(RX + 8, RX + 8, RX + 16, 8, pk) + addv(A, A, RX + 8, 8, pk) + self.pack(A, A, 4)
            if l == 0:
                L += self.stores(['buffer_store_dwordx4 %s, v%d, %s, s%d offen' % (v(A, 4), vL16, self.srd(SRD_CL), sFin + q)])
                rs = self.row_stats(A, 4, RX, RX + 2)
                blk = I('\n'.join(x.text for x in rs[:9]), kind='block', src=[r for x in rs[:9] for r in x.src], dst=[('v', RX), ('v', RX + 1), ('v', RX + 2)], states=1, cost=60)
                L += [blk] + mk('s_nop 2') + rs[9:]
                st = self.stores(['buffer_store_dword v%d, v%d, %s, s%d offen' % (RX, vL16, self.srd(SRD_CL), sFin + 2 + q)])
                tk = tok(st[-1])
                return L + st, self.flag([tk], sFin + 4 + q)
            L += mk('v_permlane32_swap_b32 v%d, v%d\nv_permlane32_swap_b32 v%d, v%d' % (A, A + 2, A + 1, A + 3))
            L += mk('buffer_store_dwordx4 %s, v%d, %s, s%d offen %s' % (v(A, 4), vPA, self.srd(SRD_OUT), sFin + q, ('', 'sc1', 'nt', 'sc0 sc1')[o['outf']]))
            return L, []

        slots = []
        nt = o['ntail']
        order = [(i, js) for i in range(56 - nt) for js in range(2)] + [(i, 1) for i in range(56 - nt, 56)] + [(i, 0) for i in range(56 - nt, 56)]
        for i, js in order:
            blk, kap = divmod(i, 28)
            A = (AE, AL)[blk]
            sl = mfma(A, v(SEL, 4), v(RS, 4)) if kap == 0 and js == 0 else []
            slots.append(sl + mfma(A + 16 * js, a(W2A + 8 * kap + 4 * js, 4), v(hreg[i], 4), kap == 0 and js == 1))
        sidx = 0
        for i in range(npre, 56):
            sidx = max(sidx, 2 * (i - 16) + 1 if i >= 16 else 0)
            if i == 28:
                sidx = max(sidx, o['lateL'])
                slots[sidx] += (self.stamp('preL') if self.fine else []) + self.poll_check(sPL) + (self.stamp('gotL') if self.fine else [])
            slots[sidx] += hload(i)
            assert sidx <= 2 * i - 6
            sidx += 1 if 2 * (i + 1) - sidx - 2 < o['lead'] else 2
        if l == 0:
            for n, (A, R, B) in enumerate(w2rest):
                sj = 1 + o['w2sp'] * n
                slots[sj] += A
                for i, g in enumerate(R):
                    slots[sj + i] += g
                slots[sj + len(R)] += B
                assert sj + len(R) <= 2 * (u1 + n) - 4
        if True:
            slots[o['flag3'] if l else o['flag30']] += (self.stamp('preF') if self.fine else []) + hflag(3, p3) + (self.stamp('gotF') if self.fine else [])
        slots[o['pollL']] += self.poll_issue(sPL)
        for i in range(0, len(ad), 4):
            slots[2 * (i // 4) + 30] += ad[i:i + 4]
        slots[40] += resid(1)
        if l == 0:
            slots[52] += mk('s_waitcnt lgkmcnt(0)\ns_barrier')
        slots[46] += cinit(AL)
        if l == 1:
            slots[44] += mk('v_and_b32 v%d, 31, v0\nv_mul_u32_u24 v%d, 896, v%d\nv_lshrrev_b32 v%d, 5, v0\nv_lshl_add_u32 v%d, v%d, 4, v%d'
                            % (vPA, vPA, vPA, vPoll, vPA, vPoll, vPA))
        P.add(flat(slots[:56]))
        P.add(self.stamp('s4_E'))
        late = slots[56:]
        fin, fl = finish(AE, 0, False)
        xb0 = o['xbar']
        P.add(spread(late[:xb0], exch_write(AE), start=2, end=9))
        late[xb0] += (self.stamp('preX') if self.fine else []) + mk('s_waitcnt lgkmcnt(0)\ns_barrier') + (self.stamp('gotX') if self.fine else []) + exch_read()
        late[34] += (self.stamp('preY') if self.fine else []) + mk('s_barrier') + (self.stamp('gotY') if self.fine else [])
        late[44] += fl
        wl = exch_write(AL)
        if l == 1 and o['wb'] == 3:
            lw = P.newlabel('Lnowb')
            late[o['wbslot']] += [I('s_or_b32 s%d, s%d, s%d\ns_cmp_lg_u32 s%d, 0\ns_cbranch_scc1 %s\nbuffer_wbl2 sc1\n%s:' % (sT0, sM, sW, sT0, lw, lw), kind='block', cost=12)]
        for i in range(4):
            late[56 - nt + 2 + i] += [wl[2 + i]]
        P.add(spread(late[xb0:], fin, start=4, end=33 - xb0))
        P.add(self.stamp('s4_L'))
        P.add(wl[:2] + mk('s_waitcnt lgkmcnt(0)\ns_barrier') + exch_read())
        fin, fl = finish(AL, 1, True)
        P.add(fin + fl)
        P.add(self.stamp('x2_pub'))

    def build(self):
        P = self.P
        self.prologue()
        for l in range(2):
            self.layer = l
            self.s1(l)
            if self.stop == 's1_%d' % l:
                break
            self.kvx(l)
            if self.stop == 'o_%d' % l:
                break
            lnext = 'L_layer%d' % (l + 1)
            if l == 0:
                lsk = P.newlabel('Lskipmlp')
                P.add([I('s_cmp_ge_u32 s%d, 14\ns_cbranch_scc1 %s' % (sM, lsk), kind='block')])
                lp = P.newlabel('Lidle')
                t = [x.text for x in self.pa(28)] + ['s_mov_b32 s%d, %d' % (sT4, FXIN), lp + ':', 's_sleep %d' % self.o['isl'],
                                                     'buffer_load_dword v%d, v%d, %s, s%d offen sc1' % (vPoll, vPA, self.srd(SRD_CL), sT4),
                                                     's_add_u32 s%d, s%d, 1' % (sSpin, sSpin), 's_cmp_gt_u32 s%d, 0x40000' % sSpin, 's_cbranch_scc1 L_end',
                                                     's_waitcnt vmcnt(0)', 'v_cmp_ne_u32 vcc, s%d, v%d' % (sNonce, vPoll), 's_cbranch_vccnz %s' % lp,
                                                     's_sleep %d' % self.o['isl2']]
                self.ool.append('%s:\n%s\ns_waitcnt vmcnt(0) lgkmcnt(0)\n%s\ns_branch %s' % (lsk, self.idle_work(), '\n'.join(t), lnext))
            else:
                if self.o['wb'] in (1, 2):
                    lw, lp = P.newlabel('Lwb'), P.newlabel('Lwbp')
                    P.add([I('s_cmp_ge_u32 s%d, 14\ns_cbranch_scc1 %s' % (sM, lw), kind='block')])
                    t = [lw + ':']
                    if self.o['outt']:
                        lo = P.newlabel('Lot')
                        t += ['s_cmp_lg_u32 s%d, 15' % sM, 's_cbranch_scc1 %s' % lo, 'v_lshlrev_b32 v%d, 7, v0' % vT, 's_mov_b32 exec_hi, 0xffffff']
                        for i in range(4):
                            t += ['s_add_u32 s%d, s%d, %d' % (sT2, sX, i * 56 * 128), 'buffer_load_dword v%d, v%d, %s, s%d offen' % (vDummy, vT, self.srd(SRD_OUT), sT2)]
                        t += ['s_mov_b64 exec, -1', 's_waitcnt vmcnt(0)', lo + ':']
                    t += ['s_cmp_lg_u32 s%d, 14' % sM, 's_cbranch_scc1 L_fin', 's_cmp_lg_u32 s%d, 0' % sW, 's_cbranch_scc1 L_fin']
                    t += [x.text for x in self.pa(14, blocks=True)]
                    t += ['s_mov_b32 s%d, %d' % (sT4, FH + 512 * self.o['wbblk'] if self.o['wbblk'] >= 0 else FX1), 's_sleep %d' % self.o['wbsl']] + (['buffer_wbl2 sc1', 's_waitcnt vmcnt(0)'] if self.o['wb'] == 2 else []) + [lp + ':', 's_sleep 4',
                          'buffer_load_dword v%d, v%d, %s, s%d offen sc1' % (vPoll, vPA, self.srd(SRD_CL), sT4),
                          's_add_u32 s%d, s%d, 1' % (sSpin, sSpin), 's_cmp_gt_u32 s%d, 0x40000' % sSpin, 's_cbranch_scc1 L_end',
                          's_waitcnt vmcnt(0)', 'v_cmp_ne_u32 vcc, s%d, v%d' % (sNonce, vPoll), 's_cbranch_vccnz %s' % lp,
                          's_sleep %d' % self.o['wbs2'], 'buffer_wbl2 sc1', 's_waitcnt vmcnt(0)', 's_branch L_fin']
                    self.ool.append('\n'.join(t))
                else:
                    P.add([I('s_cmp_ge_u32 s%d, 14\ns_cbranch_scc1 L_fin' % sM, kind='block')])
            self.s2(l)
            if self.stop == 'x1_%d' % l:
                P.label(lnext)
                break
            self.mlp(l)
            P.label(lnext)
            if l == 0:
                P('s_add_u32 s%d, s%d, %d\ns_add_u32 s%d, s%d, %d' % (sKv, sKv, KVP_L, sKvMy, sKvMy, KVP_L))
            if self.stop == 'x2_%d' % l:
                break
        P.add([I('s_cmp_lg_u32 s2, 0\ns_cbranch_scc1 L_fin\ns_cmp_lg_u32 s%d, 0\ns_cbranch_scc1 L_fin' % sW, kind='block')])
        P('s_mov_b64 exec, 1\nbuffer_store_dword v%d, off, %s, 0 sc1\ns_mov_b64 exec, -1' % (vNonce, self.srd(SRD_WS)))
        if self.probe is not None:
            P.add(self.stamp('end'))
            P.add([I('s_waitcnt lgkmcnt(0)\ns_sub_u32 s94, s94, s96\ns_lshl_b32 s94, s94, 2\ns_add_u32 s94, s94, 10000\nL_pr:\ns_memrealtime s[98:99]\ns_waitcnt lgkmcnt(0)\n'
                     's_sub_u32 s98, s98, s96\ns_cmp_lt_u32 s98, s94\ns_cbranch_scc1 L_pr', kind='block')])
        P.label('L_fin')
        if self.stamps:
            P('s_lshl_b32 s%d, s2, 2\ns_add_u32 s%d, s%d, s%d\ns_lshl_b32 s%d, s%d, 8\ns_add_u32 s%d, s%d, %d' % (sT0, sT0, sT0, sW, sT0, sT0, sT0, sT0, WS_STAMP))
            P.add(self.stamp('end'))
            P('s_memrealtime s[%d:%d]\ns_waitcnt lgkmcnt(0)\nv_writelane_b32 v%d, s%d, 63' % (sStamp, sStamp + 1, vStamp, sStamp))
            P('v_writelane_b32 v%d, s%d, 61' % (vStamp, sSpin))
            P('v_lshlrev_b32 v%d, 2, v0\nbuffer_store_dword v%d, v%d, %s, s%d offen' % (vT, vStamp, vT, self.srd(SRD_WS), sT0))
        P.label('L_end')
        P('s_endpgm')
        body, L = finalize(P.L)
        self.final = L
        ool = '\n'.join('\n'.join(('    ' + t if not t.endswith(':') else t) for t in b.split('\n') if t.strip()) for b in self.ool)
        head = open('cdna_kernels/%s.s.ref' % KNAME[:-7]).read().split('\n')
        hdr = [h for h in head if h.startswith(';') and '@launch' not in h]
        txt = '\n'.join(hdr) + '\n; @launch grid=(256,1,1) block=(256,1,1) lds=%d\n' % LDS_BYTES
        txt += '.amdgcn_target "amdgcn-amd-amdhsa--gfx950"\n.text\n.globl %s\n.p2align 8\n.type %s,@function\n%s:\n' % (KNAME, KNAME, KNAME)
        txt += body + ool + '\nL_code_end:\n'
        txt += '''.section .rodata,"a"
.p2align 6
.amdhsa_kernel %s
  .amdhsa_next_free_vgpr 512
  .amdhsa_next_free_sgpr 102
  .amdhsa_accum_offset 256
  .amdhsa_group_segment_fixed_size 0
  .amdhsa_kernarg_size 88
  .amdhsa_user_sgpr_count 2
  .amdhsa_user_sgpr_kernarg_segment_ptr 1
  .amdhsa_system_sgpr_workgroup_id_x 1
.end_amdhsa_kernel
''' % KNAME
        return txt


if __name__ == '__main__':
    import argparse
    ap = argparse.ArgumentParser()
    ap.add_argument('-o', default='k.s')
    ap.add_argument('--stop', default=None)
    ap.add_argument('--stamps', action='store_true')
    ap.add_argument('opts', nargs='*')
    A = ap.parse_args()
    opt = {k: (x if k in ('probe', 'light') else int(x)) for k, x in (t.split('=') for t in A.opts)}
    g = Gen(stop=A.stop, stamps=A.stamps, **opt)
    open(A.o, 'w').write(g.build())
    if A.stamps:
        open(A.o + '.stamps', 'w').write('\n'.join(g.stamp_names))
    n = {}
    for x in g.final:
        n[x.kind] = n.get(x.kind, 0) + 1
    nops = sum(x.states for x in g.final if x.op == 's_nop')
    print('instructions', n, 'nop states', nops)
```

```python
import sys, struct
from asmgen import *

KNAME = 'interleave_layers__linear_attn_block__mixer_channel_mlp__prompt_kernel'


def f32(x):
    return '0x%08x' % struct.unpack('<I', struct.pack('<f', x))[0]


LOG2E = 1.4426950408889634
LN2 = 0.6931471805599453
MF = 'v_mfma_f32_32x32x16_bf16'

WS_XCC = 0x8000
WS_STAMP = 0x10000
WS_KVP = 0x200000
KVP_CH = 9216
KVP_L = 0xA0000
WS_CL = 0x400000
LOFF = 0xD9000
O_OFF, X1_OFF, H_OFF, XIN_OFF, XST_OFF, FL_OFF = 0, 0x20000, 0x40000, 0xB0000, 0xD0000, 0xD8000
FO, FX1, FXIN, FH = FL_OFF, FL_OFF + 512, FL_OFF + 1024, FL_OFF + 1536

L_WQ = 0
L_Q = 57344
L_XB = 28672
L_EX = 86016
L_XS = 86016
L_WO = 114688
L_KVS = 143616
L_KVB = L_KVS + 16384
L_CS = L_KVB + 2048
L_B2 = L_CS + 768
LDS_BYTES = 163840
assert L_B2 + 512 <= LDS_BYTES

SRD_WQ, SRD_WO, SRD_W1, SRD_W2, SRD_X, SRD_OUT, SRD_B1, SRD_B2, SRD_CL, SRD_WS = range(4, 44, 4)
sC, sM, sW, sNonce, sSlow, sX, sSpin = 44, 45, 46, 47, 48, 49, 50
sT0, sT1, sT2, sT3, sT4, sT5 = 51, 52, 53, 54, 55, 56
sLn2, sXcc, sWi = 57, 58, 59
sN28, sHalf = 60, 62
sZm = 64
sXin, sD1 = 66, 67
sKA = 68
sEb, sLb, sC0, sC1, sHs, sFe = 68, 69, 70, 71, 72, 73
sBlk, sOst, sFo, sFoMy, sKv, sKvMy, sHE, sHL, sPE, sPL = 74, 75, 76, 77, 78, 79, 80, 81, 82, 83
sHst = 84
sRot = 85
sQ0, sQ1 = 86, 87
sFin, sRes = 28, 34
sTag = 22
sPm = 88
sStamp = 90
sPC = 92

vLane, vL16, vDummy, vTr, vNonce, vMean, vRl, vW1X, _w1x1, vPoll, vPA = range(0, 11)
vT = 11
vStamp = 15
vPoll2, vPoll3 = 15, 5
W2A = 0
W1A = 224
W1V = 176


def w1reg(k):
    return a(W1A + 4 * k, 4) if k < 8 else v(W1V + 4 * (k - 8), 4)


def w1half(k, hh):
    return a(W1A + 4 * k + 2 * hh, 2) if k < 8 else v(W1V + 4 * (k - 8) + 2 * hh, 2)


def flat(LL):
    return [x for L in LL for x in L]


def mfma(D, A, B, first=False):
    return mk('%s %s, %s, %s, %s' % (MF, v(D, 16), A, B, '0' if first else v(D, 16)))


DOC = """
;   cluster c = 16 workgroups that share 128 tokens (ids with equal id%8, i.e. normally one die); member m = head m.
;   and nothing is reused, so the result does not depend on the placement.  Readers always bypass L1 (sc1).
"""


class Gen:
    def __init__(self, stop=None, stamps=False, **opt):
        self.P = Prog()
        self.ool = []
        self.stop = stop
        self.stamps = stamps
        self.nstamp = 0
        self.stamp_names = []
        self.probe = opt.pop('probe', None)
        self.light = opt.pop('light', None)
        self.fine = bool(self.light or self.probe)
        if self.light is not None:
            self.light = self.light.split('+')
            assert len(self.light) <= 4
        self.seen = {}
        self.o = dict(kvdelay=8, swlate=0, xmask=1, stf=7, poll2=0, psl=0, pdo=5, pdx=2, p1=1, pdi=0, s1pair=1, sta=13, stb=33, stc=48, isl=8, isl2=8, pollE=16, n3=4, st0=10, st1=23, stpos=1, x0=6, xstep=8, xlag=12, flagpos=8, gend=26, pollL=20, lateL=32, flag3=12, xbar=13, ntail=8, lead=16, look=6, pref=0, touch=1, codepf=1, rot=1, stnt=0, idlewq=0, reuse=1, npre=14, wqlate=84, pf0=1, w1q=4, w1pre=4, w1o=19, nxb1=12, pfslot=50, w2fill=4, w2u1=22, w2sp=6, npre0=9, flag30=4, nsh=17, sh0=48, shgap=6, f3u=23, peu=22, alias=1, flat=24, pf2=98, htk=0, wb=0, wbblk=3, wbsl=100, wbs2=0, wbslot=36, outf=0, outt=0, idlew2=11, woslot=41, tslot=46, latespan=14, strot=1, w1b2=70, look2=10, l1touch=0, xsc1=1, storder=0)
        self.o.update(opt)

    def srd(self, r):
        return s(r, 4)

    def stamp(self, name):
        if self.probe is not None:
            self.seen[name] = self.seen.get(name, 0) + 1
            if self.probe == '%s#%d' % (name, self.seen[name]):
                return [I('s_memrealtime s[94:95]', kind='block', states=1)]
            return []
        if not self.stamps:
            return []
        if self.light is not None:
            self.seen[name] = self.seen.get(name, 0) + 1
            key = '%s#%d' % (name, self.seen[name])
            if name == 'end':
                self.stamp_names.append('end')
                t = ['s_memtime s[88:89]', 's_waitcnt lgkmcnt(0) vmcnt(0)', 'v_writelane_b32 v%d, s98, 62' % vStamp]
                for i, r in enumerate([100] + [90 + 2 * j for j in range(len(self.stamp_names) - 2)] + [88]):
                    t.append('v_writelane_b32 v%d, s%d, %d' % (vStamp, r, i))
                return [I('\n'.join(t), kind='block', drain_lgkm=True)]
            if name != 'start' and key not in self.light:
                return []
            r = 100 if name == 'start' else 90 + 2 * (len(self.stamp_names) - 1)
            self.stamp_names.append(key if name != 'start' else name)
            return [I('s_memtime s[%d:%d]' % (r, r + 1), kind='block')]
        i = self.nstamp
        self.nstamp += 1
        self.stamp_names.append(name)
        t = 's_memtime s[%d:%d]\ns_waitcnt lgkmcnt(0)\nv_writelane_b32 v%d, s%d, %d' % (sStamp, sStamp + 1, vStamp, sStamp, i)
        return [I(t, kind='block', dst=[], src=[], drain_lgkm=True, states=3)]

    def stores(self, lines, last=0):
        insts = mk('\n'.join(lines))
        src = [r for x in insts for r in x.src]
        wide = [r for x in insts for r in x.wide]
        ls, lb = self.P.newlabel('Lslow'), self.P.newlabel('Lback')
        fl = ' nt' if self.layer == 1 and self.o['stf'] & last else ''
        txt = 's_cmp_lg_u32 s%d, 0\ns_cbranch_scc1 %s\n%s\n%s:' % (sSlow, ls, '\n'.join(l + fl for l in lines), lb)
        self.ool.append('%s:\n%s\ns_branch %s' % (ls, '\n'.join(l + ' sc1' for l in lines), lb))
        return [I(txt, kind='block', src=src, nvm=len(lines), wide=wide, states=1, cost=8 + 4 * len(lines))]

    def flag(self, toks, soff, off=0):
        st = self.stores(['buffer_store_dword v%d, off, %s, s%d offset:%d' % (vNonce, self.srd(SRD_CL), soff, off)])[0]
        st.text = 's_mov_b64 exec, 1\n' + st.text + '\ns_mov_b64 exec, -1'
        st.cost += 8
        return [wait_tok(*toks), st]

    def poll_issue(self, soff, delay=0):
        return (mk('s_sleep %d' % delay) if delay else []) + mk('buffer_load_dword v%d, v%d, %s, s%d offen sc1' % (vPoll, vPA, self.srd(SRD_CL), soff))

    def poll_check(self, soff, tag=False):
        ls, lb = self.P.newlabel('Lspin'), self.P.newlabel('Lgot')

        def cmp(r):
            if tag:
                return 'v_lshrrev_b32 v%d, 16, v%d\nv_cmp_ne_u32 vcc, s%d, v%d' % (r, r, sTag, r)
            return 'v_cmp_ne_u32 vcc, s%d, v%d' % (sNonce, r)
        ld = lambda r: 'buffer_load_dword v%d, v%d, %s, s%d offen sc1' % (r, vPA, self.srd(SRD_CL), soff)
        if self.o['poll2']:
            l1 = self.P.newlabel('Lsp')
            t = [ls + ':', ld(vPoll2), 's_sleep 2', l1 + ':', ld(vPoll3), 's_waitcnt vmcnt(1)', cmp(vPoll2), 's_cbranch_vccz %s' % lb,
                 ld(vPoll2), 's_add_u32 s%d, s%d, 1' % (sSpin, sSpin), 's_cmp_gt_u32 s%d, 0x40000' % sSpin, 's_cbranch_scc1 L_end',
                 's_waitcnt vmcnt(1)', cmp(vPoll3), 's_cbranch_vccnz %s' % l1, 's_branch %s' % lb]
        else:
            t = [ls + ':'] + (['s_sleep %d' % self.o['psl']] if self.o['psl'] else []) + [ld(vPoll), 's_add_u32 s%d, s%d, 1' % (sSpin, sSpin), 's_cmp_gt_u32 s%d, 0x40000' % sSpin, 's_cbranch_scc1 L_end',
                 's_waitcnt vmcnt(0)', cmp(vPoll), 's_cbranch_vccnz %s' % ls, 's_branch %s' % lb]
        self.ool.append('\n'.join(t))
        return [I(cmp(vPoll) + '\ns_cbranch_vccnz %s\n%s:' % (ls, lb), kind='block', src=[('v', vPoll)], dst=[('x', 'vcc'), ('v', vPoll)], states=2, cost=8)]

    def pa(self, n, blocks=False, reg=vPA):
        L = 'v_and_b32 v%d, %d, v0\n' % (reg, 15 if n <= 16 else 31)
        if n not in (16, 32):
            L += 'v_min_u32 v%d, %d, v%d\n' % (reg, n - 1, reg)
        L += 'v_lshlrev_b32 v%d, 2, v%d\n' % (reg, reg)
        if blocks:
            L += 'v_lshrrev_b32 v%d, 4, v0\nv_lshl_add_u32 v%d, v%d, 7, v%d' % (vT + 3, reg, vT + 3, reg)
        return mk(L)

    def trbase(self, dst, RS, kh, add=0, xor16=None):
        t = vT
        L = ['v_lshrrev_b32 v%d, 5, v%d' % (dst, vLane),
             'v_mul_u32_u24 v%d, %d, v%d' % (dst, kh, dst),
             'v_bfe_u32 v%d, v%d, 2, 2' % (t, vLane),
             'v_add_u32 v%d, v%d, v%d' % (dst, dst, t),
             'v_mul_u32_u24 v%d, %d, v%d' % (dst, RS, dst),
             'v_bfe_u32 v%d, v%d, 4, 1' % (t, vLane)]
        if xor16 is not None:
            L.append('v_xor_b32 v%d, s%d, v%d' % (t, xor16, t))
        L += ['v_lshl_add_u32 v%d, v%d, 5, v%d' % (dst, t, dst),
              'v_and_b32 v%d, 3, v%d' % (t, vLane),
              'v_lshl_add_u32 v%d, v%d, 3, v%d' % (dst, t, dst)]
        if add:
            L.append('v_add_u32 v%d, %d, v%d' % (dst, add, dst))
        return mk('\n'.join(L))

    def frag_loads(self, dsts, srd, sbase, const0, stride=1024, flags='', st=sT0):
        out = []
        cur = None
        for i, d in enumerate(dsts):
            off = const0 + i * stride
            grp = []
            if cur is None or not (0 <= off - cur <= 4095):
                cur = off
                grp += mk('s_add_u32 s%d, s%d, %d' % (st, sbase, off))
            grp += mk('buffer_load_dwordx4 %s, v%d, %s, s%d offen offset:%d %s' % (d, vL16, self.srd(srd), st, off - cur, flags))
            out.append(grp)
        return out

    def stats_finish(self, acc, double_ln):
        t1, t2 = vT + 1, vT + 2
        L = ['v_mov_b32 v%d, v%d' % (t1, acc),
             'v_mov_b32 v%d, v%d' % (vMean, acc),
             'v_permlane32_swap_b32 v%d, v%d' % (vMean, t1),
             'v_mul_f32 v%d, %s, v%d' % (vMean, f32(1.0 / 448), vMean),
             'v_mul_f32 v%d, %s, v%d' % (t1, f32(1.0 / 448), t1),
             'v_fma_f32 v%d, -v%d, v%d, v%d' % (t1, vMean, vMean, t1),
             'v_max_f32 v%d, 0, v%d' % (t1, t1),
             'v_add_f32 v%d, %s, v%d' % (t2, f32(1e-5), t1),
             'v_rsq_f32 v%d, v%d' % (vRl, t2)]
        if double_ln:
            L += ['v_mul_f32 v%d, v%d, v%d' % (t2, vRl, vRl),
                  'v_fmaak_f32 v%d, v%d, v%d, %s' % (t1, t1, t2, f32(1e-5)),
                  'v_rsq_f32 v%d, v%d' % (t1, t1),
                  'v_mul_f32 v%d, v%d, v%d' % (vRl, vRl, t1)]
        else:
            L += ['v_mul_f32 v%d, %s, v%d' % (vRl, f32(LOG2E), vRl)]
        return mk('\n'.join(L))

    def split_act(self, d0, val, t):
        return mk('\n'.join([
            'v_cvt_pk_bf16_f32 v%d, v%d, v%d' % (d0 + 1, val, val),
            'v_and_b32 v%d, 0xffff0000, v%d' % (t, d0 + 1),
            'v_sub_f32 v%d, v%d, v%d' % (t, val, t),
            'v_cvt_pk_bf16_f32 v%d, v%d, v%d' % (d0, val, t),
            'v_and_b32 v%d, 0xffff, v%d' % (d0 + 1, d0 + 1),
            'v_cndmask_b32 v%d, v%d, 0, s[%d:%d]' % (d0 + 1, d0 + 1, sHalf, sHalf + 1)]))

    def split_w(self, d0, val, t):
        return mk('\n'.join([
            'v_cvt_pk_bf16_f32 v%d, v%d, v%d' % (d0, val, val),
            'v_and_b32 v%d, 0xffff0000, v%d' % (t, d0),
            'v_sub_f32 v%d, v%d, v%d' % (t, val, t),
            'v_cvt_pk_bf16_f32 v%d, v%d, 0' % (d0 + 1, t)]))

    def phi8(self, r0, R, T, eps):
        L = ['v_pk_mul_f32 %s, %s, %s' % (v(r0 + i, 2), v(r0 + i, 2), R(i)) for i in range(0, 8, 2)]
        for i in range(8):
            L += ['v_exp_f32 v%d, v%d clamp' % (T + i, r0 + i), 'v_max_f32 v%d, 0, v%d' % (r0 + i, r0 + i)]
        L += ['v_pk_fma_f32 %s, %s, s[%d:%d], %s op_sel:[0,1,0] op_sel_hi:[1,1,1]' % (v(r0 + i, 2), v(r0 + i, 2), sLn2 - 1, sLn2, v(T + i, 2)) for i in range(0, 8, 2)]
        L += ['v_pk_add_f32 %s, %s, %s op_sel_hi:[1,0]' % (v(r0 + i, 2), v(r0 + i, 2), v(eps, 2)) for i in range(0, 8, 2)]
        return mk('\n'.join(L))

    def pack(self, dst, src, n):
        return mk('\n'.join('v_cvt_pk_bf16_f32 v%d, v%d, v%d' % (dst + i, src + 2 * i, src + 2 * i + 1) for i in range(n)))

    def unpack(self, dst, src, n):
        L = []
        for i in reversed(range(n)):
            L.append('v_and_b32 v%d, 0xffff0000, v%d' % (dst + 2 * i + 1, src + i))
            L.append('v_lshlrev_b32 v%d, 16, v%d' % (dst + 2 * i, src + i))
        return mk('\n'.join(L))

    def dots(self, regs, acc, ones, first):
        L = []
        for i, r in enumerate(regs):
            z = first and i == 0
            L.append('v_dot2_f32_bf16 v%d, v%d, v%d, %s' % (acc, r, ones, '0' if z else 'v%d' % acc))
            L.append('v_dot2_f32_bf16 v%d, v%d, v%d, %s' % (acc + 1, r, r, '0' if z else 'v%d' % (acc + 1)))
        return mk('\n'.join(L))

    def dots_end(self, acc):
        return mk('v_permlane32_swap_b32 v%d, v%d\nv_add_f32 v%d, v%d, v%d' % (acc, acc + 1, acc, acc, acc + 1))

    def row_stats(self, src, n, acc, ones):
        return mk('v_mov_b32 v%d, 0x3f803f80' % ones) + self.dots(range(src, src + n), acc, ones, True) + self.dots_end(acc)

    def kv_lane_addr(self, d, t, u, gather):
        L = []
        if gather:
            L += ['v_and_b32 v%d, 31, v0' % t, 'v_lshrrev_b32 v%d, 5, v0' % d]
        else:
            L += ['v_lshrrev_b32 v%d, 5, v0' % t, 'v_and_b32 v%d, 15, v0' % u, 'v_lshl_add_u32 v%d, v%d, 1, v%d' % (t, u, t), 'v_bfe_u32 v%d, v0, 4, 1' % d]
        L += ['v_lshrrev_b32 v%d, 3, v%d' % (u, t), 'v_sub_u32 v%d, v%d, v%d' % (u, t, u)]
        if not gather:
            L += ['v_and_b32 v%d, 7, v%d' % (t, t), 'v_cmp_eq_u32 vcc, 7, v%d' % t, 'v_cndmask_b32 v%d, v%d, 31, vcc' % (u, u)]
        L += ['v_lshl_add_u32 v%d, v%d, 5, v%d' % (d, d, u)]
        sh, qs, base = (4, 10, L_KVS) if gather else (5, 3, L_KVB)
        L += ['s_lshl_b32 s%d, s%d, %d' % (sT2, sW, qs), 'v_lshlrev_b32 v%d, %d, v%d' % (d, sh, d), 'v_add_u32 v%d, s%d, v%d' % (d, sT2, d)]
        L += ['v_and_b32 v%d, 1, v%d' % (t, u), 'v_lshlrev_b32 v%d, %d, v%d' % (t, 5 + sh, t), 'v_lshrrev_b32 v%d, 1, v%d' % (u, u)]
        L += ['v_cmp_gt_u32 vcc, 4, v%d' % u]
        L += ['v_lshl_add_u32 v%d, v%d, %d, v%d' % (t, u, qs, t), 'v_add_u32 v%d, %d, v%d' % (t, 28 << sh, t)]
        L += ['s_and_b64 vcc, vcc, s[%d:%d]' % ((sZm, sZm + 1) if gather else (sPm, sPm + 1)), 'v_cndmask_b32 v%d, v%d, v%d, vcc' % (d, d, t),
              'v_add_u32 v%d, %d, v%d' % (d, base, d)]
        return mk('\n'.join(L))

    def wq_dma(self, va, q):
        if q:
            ad = 'v_lshrrev_b32 v%d, 2, v0\nv_mul_u32_u24 v%d, 2688, v%d\nv_and_b32 v%d, 3, v0\nv_lshl_add_u32 v%d, v%d, 4, v%d' % (va, va, va, vT, va, vT, va)
        else:
            ad = ('v_lshrrev_b32 v%d, 3, v0\nv_mul_u32_u24 v%d, 2688, v%d\nv_and_b32 v%d, 3, v0\nv_lshl_add_u32 v%d, v%d, 4, v%d\n'
                  'v_lshrrev_b32 v%d, 2, v0\nv_xor_b32 v%d, v%d, v0\nv_bfe_u32 v%d, v%d, 2, 1\nv_mul_u32_u24 v%d, 896, v%d\nv_add3_u32 v%d, v%d, v%d, s%d'
                  % (va, va, va, vT, va, vT, va, vT, vT, vT, vT, vT, vT, vT, va, va, vT, sQ0))
        rows = 16 if q else 8
        pre = mk('s_mul_i32 s%d, s%d, 56\ns_add_u32 s%d, s%d, 896' % (sQ1, sM, sQ0, sQ1)) + mk(ad)
        if q:
            pre += mk('v_add_u32 v%d, s%d, v%d' % (va, sQ1, va))
        pre += mk('s_mul_i32 s%d, s%d, %d\ns_lshl_b32 s%d, s%d, 10' % (sRot, sW, rows * 2688, sQ1, sW))
        out = []
        for t in range(7 if q else 14):
            out.append(mk('s_add_u32 m0, s%d, %d\ns_add_u32 s%d, s%d, %d\nbuffer_load_dwordx4 v%d, %s, s%d offen lds'
                          % (sQ1, (L_Q if q else L_WQ) + 4096 * t, sQ0, sRot, 4 * t * rows * 2688, va, self.srd(SRD_WQ), sQ0)))
        return pre, out

    def touch(self, items, va):
        if not self.o['touch']:
            return []
        txt = ['v_lshlrev_b32 v%d, 7, v0' % va]
        cur = None
        n = 0
        for nl, srd, sg, c in items:
            if nl != cur:
                txt.append('s_mov_b64 exec, 0x%x' % ((1 << nl) - 1))
                cur = nl
            txt.append('s_add_u32 s%d, s%d, %d' % (sT2, sg, c) if sg is not None else 's_mov_b32 s%d, %d' % (sT2, c))
            txt.append('buffer_load_dword v%d, v%d, %s, s%d offen sc1' % (vDummy, va, self.srd(srd), sT2))
            n += 1
        txt.append('s_mov_b64 exec, -1')
        return [I('\n'.join(txt), kind='block', nvm=n, dst=[('v', va)], src=[('v', 0)], states=1, cost=12 * n)]

    def touch_attn(self, lo, va):
        pre = mk('s_lshr_b32 s%d, s%d, 2\ns_lshl_b32 s%d, s%d, 10\ns_add_u32 s%d, s%d, s%d\ns_add_u32 s%d, s%d, %d\ns_add_u32 s%d, s%d, %d\ns_mul_i32 s%d, s%d, 896'
                 % (sT1, sM, sT1, sT1, sT1, sT1, sBlk, sT1, sT1, X1_OFF + 28672, sT3, sOst, X1_OFF, sT0, sW))
        pre = [I('\n'.join(x.text for x in pre) + '\ns_cmp_lt_u32 s%d, 14\ns_cselect_b32 s%d, s%d, s%d\ns_cselect_b32 s%d, s%d, s%d'
                 % (sM, sT1, sT1, sOst, sT3, sT3, sOst), kind='block', cost=36)]
        return pre + self.touch([(16, SRD_CL, sOst, lo), (16, SRD_CL, sT3, lo), (8, SRD_CL, sT1, lo), (7, SRD_CL, sT0, lo + FL_OFF)], va)

    def prefetch(self, va, items):
        txt, n = ['v_lshlrev_b32 v%d, 7, v0' % va], 0
        for srd, per in items:
            for j in range(0, per, 64):
                nl = min(64, per - j)
                txt += ['s_mul_i32 s%d, s%d, %d' % (sT2, sWi, per * 128), 's_add_u32 s%d, s%d, %d' % (sT2, sT2, j * 128),
                        's_mov_b32 exec_lo, 0x%x' % (((1 << nl) - 1) & 0xffffffff), 's_mov_b32 exec_hi, 0x%x' % (((1 << nl) - 1) >> 32),
                        'buffer_load_dword v%d, v%d, %s, s%d offen' % (vDummy, va, self.srd(srd), sT2)]
                n += 1
        return [I('\n'.join(txt + ['s_mov_b64 exec, -1']), kind='block', nvm=n, src=[('v', 0)], dst=[('v', va)], cost=20 * n)]

    def idle_work(self):
        va = vT
        l = self.P.newlabel('Lnowarm')
        T = ['s_cmp_lg_u32 s%d, 0' % sSlow, 's_cbranch_scc1 %s' % l,
             'v_lshlrev_b32 v%d, 7, v0' % va,
             's_and_b32 s%d, s%d, 1' % (sT0, sM), 's_lshl_b32 s%d, s%d, 2' % (sT0, sT0), 's_add_u32 s%d, s%d, s%d' % (sT0, sT0, sW)]
        ld = lambda srd, fl: 'buffer_load_dword v%d, v%d, %s, s%d offen %s' % (vDummy, va, self.srd(srd), sT2, fl)
        nw2 = self.o['idlew2']
        if nw2:
            T += ['s_lshr_b32 s%d, s%d, 3' % (sT1, sC), 's_lshl_b32 s%d, s%d, 3' % (sT1, sT1), 's_add_u32 s%d, s%d, s%d' % (sT1, sT1, sT0),
                  's_lshl_b32 s%d, s%d, 13' % (sT2, sT1)]
            for i in range(nw2):
                T += [ld(SRD_W2, ''), 's_add_u32 s%d, s%d, 131072' % (sT2, sT2)]
        for i in range(2 * self.o['htk'] - (self.o['htk'] > 1), 7):
            T += ['s_lshl_b32 s%d, s%d, 13' % (sT2, sT0), 's_add_u32 s%d, s%d, %d' % (sT2, sT2, H_OFF + i * 65536), ld(SRD_CL, 'sc1')]
        if not self.o['alias']:
            for i in range(2):
                T += ['s_lshl_b32 s%d, s%d, 13' % (sT2, sT0), 's_add_u32 s%d, s%d, %d' % (sT2, sT2, XIN_OFF + i * 65536), ld(SRD_CL, 'sc1')]
        T += ['s_lshl_b32 s%d, s%d, 12' % (sT2, sT0), 's_add_u32 s%d, s%d, %d' % (sT2, sT2, XST_OFF), 's_mov_b32 exec_hi, 0', ld(SRD_CL, 'sc1'), 's_mov_b64 exec, -1']
        T += [l + ':']
        return '\n'.join(T)

    def prologue(self):
        P = self.P
        o = self.o
        P('s_cmp_ge_u32 s2, 256\ns_cbranch_scc1 L_end')
        if self.probe is not None:
            P.add([I('s_memrealtime s[96:97]\ns_memrealtime s[94:95]', kind='block', states=1)])
        P('s_load_dwordx16 s[%d:%d], s[0:1], 0' % (sKA, sKA + 15))
        P('s_load_dwordx4 s[%d:%d], s[0:1], 64' % (sKA + 16, sKA + 19))
        P('s_load_dwordx2 s[%d:%d], s[0:1], 80' % (sKA + 20, sKA + 21))
        P('v_lshrrev_b32 v%d, 6, v0\nv_and_b32 v0, 63, v0\nv_readfirstlane_b32 s%d, v%d' % (vT, sW, vT))
        P('s_lshr_b32 s%d, s2, 3\ns_lshl_b32 s%d, s%d, 2\ns_add_u32 s%d, s%d, s%d' % (sM, sWi, sM, sWi, sWi, sW))
        if o['codepf']:
            P.add([I('s_getpc_b64 s[%d:%d]\nL_pc:' % (sPC, sPC + 1), kind='block', dst=[], states=1)])
            P('s_lshl_b32 s%d, s%d, 9\nv_lshlrev_b32 v%d, 7, v0\nv_add_u32 v%d, s%d, v%d' % (sT0, sWi, vT, vT, sT0, vT))
            P.add([I('v_min_u32 v%d, L_code_end-L_pc-4, v%d\ns_mov_b64 exec, 15\nglobal_load_dword v%d, v%d, s[%d:%d]\ns_mov_b64 exec, -1'
                     % (vT, vT, vDummy, vT, sPC, sPC + 1), kind='block', dst=[('v', vT)], src=[('v', vT)], nvm=1)])
        P('s_and_b32 s%d, s2, 7\ns_lshr_b32 s%d, s%d, 4\ns_lshl_b32 s%d, s%d, 3\ns_add_u32 s%d, s%d, s%d\ns_and_b32 s%d, s%d, 15'
          % (sC, sT0, sM, sT0, sT0, sC, sC, sT0, sM, sM))
        P('v_lshlrev_b32 v%d, 4, v0' % vL16)
        if self.stamps:
            P('v_mov_b32 v%d, 0' % vStamp)
            P.add(self.stamp('start'))
            if self.light is not None:
                P('s_memrealtime s[98:99]\ns_waitcnt lgkmcnt(0)')
            else:
                assert not o['poll2']
                P('s_memrealtime s[%d:%d]\ns_waitcnt lgkmcnt(0)\nv_writelane_b32 v%d, s%d, 62' % (sStamp, sStamp + 1, vStamp, sStamp))
        P('s_lshl_b32 s%d, s%d, 2\ns_add_u32 s%d, s%d, s%d\ns_mul_i32 s%d, s%d, %d' % (sX, sC, sX, sX, sW, sX, sX, 32 * 896))
        vq, vxb, vxh, vxa, vrd = 160, 163, 164, 165, 167
        P('v_lshrrev_b32 v%d, 5, v0\nv_and_b32 v%d, 31, v0\nv_xor_b32 v%d, v%d, v%d\nv_lshlrev_b32 v%d, 4, v%d\nv_mul_u32_u24 v%d, 896, v%d'
          % (vxh, vT, vxb, vT, vxh, vxb, vxb, vxh, vxh))
        ka = sKA

        def mksrd(r, p, size):
            P('s_mov_b32 s%d, s%d\ns_mov_b32 s%d, s%d\ns_mov_b32 s%d, %d\ns_mov_b32 s%d, 0x20000' % (r, p, r + 1, p + 1, r + 2, size, r + 3))
        P('s_lshl_b32 s%d, s%d, 14\ns_add_u32 s%d, s%d, %d' % (sT5, sW, sT5, sT5, L_XS))
        mksrd(SRD_X, ka + 0, 2048 * 896)
        if self.probe:
            P.add(self.stamp('karg'))

        def xdma(half):
            out = []
            for i in range(16):
                if half:
                    g = mk('s_mov_b32 s%d, %d\nv_xad_u32 v%d, v%d, s%d, v%d' % (sT0, ((2 * i) & 15) << 4, vxa + (i & 1), vxb, sT0, vxh))
                    g += mk('s_add_u32 s%d, s%d, %d\ns_add_u32 m0, s%d, %d' % (sT1, sX, 2 * i * 896 + 512, sT5, 1024 * i))
                    ld = 'buffer_load_dwordx4 v%d, %s, s%d offen lds' % (vxa + (i & 1), self.srd(SRD_X), sT1)
                    if o['xmask']:
                        m = 0xff00ffff if i & 4 else 0x00ffffff
                        out.append(g + [I('s_mov_b32 exec_lo, 0x%x\ns_mov_b32 exec_hi, 0x%x\n%s\ns_mov_b64 exec, -1' % (m, m, ld), kind='block', nvm=1,
                                          src=[('v', vxa + (i & 1))], cost=20)])
                    else:
                        out.append(g + mk(ld))
                    continue
                g = mk('s_add_u32 s%d, s%d, %d\ns_and_b32 s%d, s%d, 15' % (sT4, sM, i, sT4, sT4) if o['rot'] else 's_mov_b32 s%d, %d' % (sT4, i))
                g += mk('s_lshl_b32 s%d, s%d, 5\ns_and_b32 s%d, s%d, 0xf0\nv_xad_u32 v%d, v%d, s%d, v%d' % (sT0, sT4, sT0, sT0, vxa + (i & 1), vxb, sT0, vxh))
                g += mk('s_mul_i32 s%d, s%d, 1792\ns_add_u32 s%d, s%d, s%d\ns_lshl_b32 s%d, s%d, 10\ns_add_u32 m0, s%d, s%d' % (sT1, sT4, sT1, sT1, sX, sT4, sT4, sT4, sT5))
                g += mk('buffer_load_dwordx4 v%d, %s, s%d offen lds' % (vxa + (i & 1), self.srd(SRD_X), sT1))
                out.append(g)
            return out
        mksrd(SRD_WQ, ka + 2, 448 * 2688)
        if o['pf0']:
            P('v_lshlrev_b32 v%d, 7, v0\ns_lshl_b32 s%d, s%d, 2\ns_add_u32 s%d, s%d, s%d\ns_mul_i32 s%d, s%d, %d\ns_mul_i32 s%d, s%d, %d\ns_add_u32 s%d, s%d, s%d\ns_mul_i32 s%d, s%d, 49'
              % (vxa, sT0, sM, sT0, sT0, sW, sT0, sT0, 14 * 128, sT1, sC, 128 * 896, sT0, sT0, sT1, sT1, sWi))
            if o['pf0'] == 1:
                P('v_add_u32 v%d, s%d, v0\nv_mul_u32_u24 v%d, 37450, v%d\nv_lshrrev_b32 v%d, 19, v%d\nv_mul_u32_u24 v%d, 896, v%d\nv_lshl_add_u32 v%d, v%d, 7, v%d'
                  % (vT, sT1, vxa + 1, vT, vxa + 1, vxa + 1, vxa + 1, vxa + 1, vxa + 1, vT, vxa + 1))
                P.add([I('s_mov_b64 exec, 0x3fff\nbuffer_load_dword v%d, v%d, %s, s%d offen\ns_mov_b32 exec_lo, -1\ns_mov_b32 exec_hi, 0x1ffff\n'
                         'buffer_load_dword v%d, v%d, %s, 0 offen offset:896\ns_mov_b64 exec, -1'
                         % (vDummy, vxa, self.srd(SRD_X), sT0, vDummy, vxa + 1, self.srd(SRD_WQ)), kind='block', nvm=2, src=[('v', vxa), ('v', vxa + 1)])])
            else:
                P.add([I('s_mov_b64 exec, 0x3fff\nbuffer_load_dword v%d, v%d, %s, s%d offen\ns_mov_b64 exec, -1' % (vDummy, vxa, self.srd(SRD_X), sT0),
                         kind='block', nvm=1, src=[('v', vxa)])])
                P.add(self.prefetch(vxa, [(SRD_WQ, 74)]))
        body = [x.text for x in xdma(0)[0]]
        body[0] = 's_add_u32 s%d, s%d, s%d' % (sT4, sM, sT2) if o['rot'] else 's_mov_b32 s%d, s%d' % (sT4, sT2)
        loop = I('\n'.join(['s_mov_b32 s%d, 0' % sT2, 'L_xa:'] + body[:-1] + ['s_add_u32 s%d, s%d, 1' % (sT2, sT2), 's_cmp_lt_u32 s%d, 16' % sT2, body[-1],
                                                                            's_cbranch_scc1 L_xa']), kind='block', nvm=16, src=[('v', vxb), ('v', vxh)] + regs_of(s(SRD_X, 4)), dst=[('v', vxa)])
        tA = tok(loop)
        P.add([loop])
        if self.probe:
            P.add(self.stamp('xiss'))
        P('s_load_dword s%d, s[%d:%d], 0' % (sNonce, ka + 20, ka + 21))
        mksrd(SRD_OUT, ka + 16, 2048 * 896)
        pre, wq = self.wq_dma(vq, False)
        self.tok_wq1, self.tok_wq = tok(wq[7][-1]), tok(wq[-1][-1])
        P.add(pre + flat(wq[:8]))
        mksrd(SRD_WO, ka + 4, 448 * 896)
        mksrd(SRD_W1, ka + 8, 448 * 3584)
        mksrd(SRD_B1, ka + 10, 3584)
        mksrd(SRD_W2, ka + 12, 1792 * 896)
        mksrd(SRD_B2, ka + 14, 896)
        mksrd(SRD_WS, ka + 20, WS_CL)
        P('s_lshl_b32 s%d, s%d, 21\ns_add_u32 s%d, s%d, %d' % (sT0, sC, sT0, sT0, WS_CL))
        P('s_add_u32 s%d, s%d, s%d\ns_addc_u32 s%d, s%d, 0\ns_mov_b32 s%d, 0x200000\ns_mov_b32 s%d, 0x20000'
          % (SRD_CL, ka + 20, sT0, SRD_CL + 1, ka + 21, SRD_CL + 2, SRD_CL + 3))
        P('s_mov_b32 s%d, %s\ns_mov_b32 s%d, 0\ns_mov_b32 s%d, -1' % (sLn2, f32(LN2), sHalf, sHalf + 1))
        P('s_mov_b32 s%d, 0x10000000\ns_mov_b32 s%d, 0x10000000\ns_mov_b32 s%d, 0' % (sN28, sN28 + 1, sSpin))
        P('s_getreg_b32 s%d, hwreg(HW_REG_XCC_ID, 0, 4)' % sXcc)
        P('s_and_b32 s%d, s%d, 1\ns_sub_u32 s%d, 3, s%d' % (sEb, sM, sLb, sEb))
        P('s_cmp_eq_u32 s%d, 3\ns_cselect_b32 s%d, -1, 0\ns_mov_b32 s%d, 0' % (sW, sZm + 1, sZm))
        P('s_lshr_b32 s%d, s%d, 3' % (sD1, sC) if o['strot'] else 's_mov_b32 s%d, 0' % sD1)
        c0 = -2.0 * 0.7978845608028654 * LOG2E
        P('s_mov_b32 s%d, %s\ns_mov_b32 s%d, %s' % (sC0, f32(c0), sC1, f32(c0 * 0.044715)))
        P('s_lshr_b32 s%d, s%d, 1\ns_lshl_b32 s%d, s%d, 2\ns_and_b32 s%d, s%d, 1\ns_lshl_b32 s%d, s%d, 1\ns_add_u32 s%d, s%d, s%d\ns_lshr_b32 s%d, s%d, 1\ns_add_u32 s%d, s%d, s%d'
          % (sFe, sM, sFe, sFe, sT0, sW, sT0, sT0, sFe, sFe, sT0, sT0, sW, sFe, sFe, sT0))
        P('s_lshl_b32 s%d, s%d, 15\ns_lshl_b32 s%d, s%d, 11\ns_add_u32 s%d, s%d, s%d' % (sBlk, sW, sOst, sM, sOst, sOst, sBlk))
        P('s_lshl_b32 s%d, s%d, 7\ns_add_u32 s%d, s%d, %d\ns_lshl_b32 s%d, s%d, 2\ns_add_u32 s%d, s%d, s%d' % (sFo, sW, sFo, sFo, FL_OFF, sT0, sM, sFoMy, sFo, sT0))
        P('s_lshl_b32 s%d, s%d, 2\ns_add_u32 s%d, s%d, s%d\ns_mul_i32 s%d, s%d, %d\ns_add_u32 s%d, s%d, %d' % (sT1, sM, sT1, sT1, sW, sKv, sT1, KVP_CH, sKv, sKv, WS_KVP))
        P('s_lshl_b32 s%d, s%d, 9\ns_add_u32 s%d, s%d, s%d' % (sKvMy, sC, sKvMy, sKvMy, sKv))
        P('s_lshl_b32 s%d, s%d, 11\ns_add_u32 s%d, s%d, %d' % (sHst, sT1, sHst, sHst, H_OFF))
        P('s_lshl_b32 s%d, s%d, 11\ns_add_u32 s%d, s%d, %d' % (sT1, sW, sT1, sT1, H_OFF))
        P('s_mul_i32 s%d, s%d, 114688\ns_add_u32 s%d, s%d, s%d\ns_mul_i32 s%d, s%d, 114688\ns_add_u32 s%d, s%d, s%d' % (sHE, sEb, sHE, sHE, sT1, sHL, sLb, sHL, sHL, sT1))
        P('s_lshl_b32 s%d, s%d, 9\ns_add_u32 s%d, s%d, s%d\ns_add_u32 s%d, s%d, %d' % (sPE, sEb, sPE, sPE, sFo, sPE, sPE, FH - FL_OFF))
        P('s_lshl_b32 s%d, s%d, 9\ns_add_u32 s%d, s%d, s%d\ns_add_u32 s%d, s%d, %d' % (sPL, sLb, sPL, sPL, sFo, sPL, sPL, FH - FL_OFF))
        self.xreg0 = xr = [16 + 4 * i if i < 20 else 176 + 4 * (i - 20) for i in range(28)]
        P('v_and_b32 v%d, 15, v0\nv_lshrrev_b32 v%d, 5, v0\nv_xor_b32 v%d, v%d, v%d\nv_lshlrev_b32 v%d, 4, v%d\nv_and_b32 v%d, 31, v0\nv_lshl_add_u32 v%d, v%d, 9, v%d\nv_add_u32 v%d, s%d, v%d'
          % (vT, vrd, vrd, vrd, vT, vrd, vrd, vT, vrd, vT, vrd, vrd, sT5, vrd))
        xrd = lambda k: mk('v_xor_b32 v%d, %d, v%d\nds_read_b128 %s, v%d' % (vrd + 1 + (k & 1), 32 * (k & 15), vrd, v(xr[k], 4), vrd + 1 + (k & 1)))
        vrs = vrd + 3
        P('v_and_b32 v%d, 15, v0\nv_lshlrev_b32 v%d, 4, v%d\nv_lshrrev_b32 v%d, 5, v0\nv_lshl_add_u32 v%d, v%d, 3, v%d\nv_and_b32 v%d, 31, v0\nv_lshl_add_u32 v%d, v%d, 9, v%d\nv_add_u32 v%d, s%d, v%d'
          % (vrs, vrs, vrs, vT, vrs, vT, vrs, vT, vrs, vT, vrs, vrs, sT5, vrs))
        P('s_and_b32 s%d, s%d, 7\ns_lshl_b32 s%d, s%d, 6\nv_xor_b32 v%d, s%d, v%d' % (sT0, sM, sT0, sT0, vrs, sT0, vrs))

        def resrd(half):
            l = P.newlabel('Lres')
            t = ['s_cmp_%s_u32 s%d, 8' % ('lt' if half else 'ge', sM), 's_cbranch_scc1 %s' % l]
            for g in range(4):
                t += ['v_xor_b32 v%d, %d, v%d' % (vrs + 1, 16 * g, vrs), 'ds_read_b64 %s, v%d' % (a(216 + 2 * g, 2), vrs + 1)]
            return [I('\n'.join(t + [l + ':']), kind='block', src=[('v', vrs)], dst=[('v', vrs + 1)])]
        P.add(self.stamp('issued'))
        P.add([wait_tok(tA)])
        P.add(self.stamp('xA'))
        for k in range(16):
            P.add(xrd(k))
        P.add(resrd(0))
        vS, vOne = 172, 174
        P('v_mov_b32 v%d, 0x3f803f80\ns_waitcnt lgkmcnt(0)' % vOne)
        xb = xdma(1)
        self.tok_xb = tok(xb[-1][-1])
        d = self.dots([xr[k] + i for k in range(16) for i in range(4)], vS, vOne, True)
        P.add(spread(xb[:o['nxb1']], d))
        self.late_dma = xb[o['nxb1']:] + wq[8:]
        self.late_rd = [xrd(k) for k in range(16, 28)] + [resrd(1)]
        self.late_dots = self.dots([xr[k] + i for k in range(16, 28) for i in range(4)], vS, vOne, False) + self.dots_end(vS)
        P('s_add_u32 s%d, s%d, 0x01010101' % (sNonce, sNonce))
        P('v_mov_b32 v%d, s%d' % (vNonce, sNonce))
        P('s_lshl_b32 s%d, s%d, 4\ns_add_u32 s%d, s%d, s%d\ns_lshl_b32 s%d, s%d, 7\ns_add_u32 s%d, s%d, %d'
          % (sT2, sC, sT2, sT2, sM, sT2, sT2, sT2, sT2, WS_XCC))
        P('s_add_u32 s%d, s%d, s%d\nv_mov_b32 v%d, s%d\ns_mov_b64 exec, 1' % (sT3, sNonce, sXcc, vT, sT3))
        P('buffer_store_dword v%d, off, %s, s%d sc1' % (vT, self.srd(SRD_WS), sT2))
        P('s_mov_b64 exec, -1')

    def s1(self, l):
        P = self.P
        o = self.o
        AK, AV, AQ, WB, SB = 96, 112, 128, 144, 160
        RLB, XE = SB, SB + 8
        NB = 4
        vS = 172 if l == 0 else vT + 2
        P.comment('==== layer %d : S1' % l)
        kh = 8 if l == 0 else 4
        vTrV, vTrQ, vCs = vT + 3, (vT + 2 if l == 0 else vDummy), vPA
        trkv = self.trbase(vTr, 128, kh, add=L_WQ) + mk('v_bfe_u32 v%d, v0, 3, 1\nv_lshl_add_u32 v%d, v%d, 6, v%d\nv_xor_b32 v%d, 64, v%d' % (vT, vTr, vT, vTr, vTrV, vTr))
        trq = self.trbase(vTrQ, 64, kh, add=L_Q)
        fin = self.stats_finish(vS, False)
        fin += mk('s_lshl_b32 s%d, s%d, 12\ns_add_u32 s%d, s%d, %d' % (sT4, sW, sT4, sT4, L_KVS))
        bounce = mk('v_and_b32 v%d, 31, v0\nv_lshl_add_u32 v%d, v%d, 2, s%d\nds_write_b32 v%d, v%d' % (vT + 1, vT + 1, vT + 1, sT4, vT + 1, vRl))
        fin += bounce
        fin += mk('v_sub_f32 v%d, 0, v%d' % (vMean, vMean)) + self.split_act(XE, vMean, vT)
        fin += mk('v_cndmask_b32 v%d, v%d, 0, s[%d:%d]\nv_mov_b32 v%d, 0\nv_mov_b32 v%d, 0' % (XE, XE, sHalf, sHalf + 1, XE + 2, XE + 3))
        if l == 0:
            xreg = self.xreg0
            P.add(trkv)
            P.add([wait_tok(self.tok_wq1)])
            P('s_barrier')
            P.add(self.stamp('wq_ready'))
            lds = []
        else:
            xreg = [16 + 4 * (i % 20) for i in range(28)]
            P.add(self.pa(28))
            P('s_add_u32 s%d, s%d, %d' % (sT4, sFo, FXIN - FL_OFF))
            P.add(self.poll_issue(sT4, o['pdi']))
            P('s_add_u32 s%d, s%d, s%d\ns_lshl_b32 s%d, s%d, 13' % (sT5, sBlk, sXin, sT3, sW))
            P.add(trkv + trq)
            lds = self.frag_loads([v(r, 4) for r in xreg], SRD_CL, sT5, 0, flags='sc1')
        nq = 0 if l == 0 else 8
        jobs = []
        for k in range(28):
            if l == 0 and k == 16:
                jobs += [(t, kk) for kk in range(7) for t in 'KV']
            jobs += [('k', k), ('v', k)] + ([('q', k)] if k < nq else [])
        jobs += [('k', 'e'), ('v', 'e')]
        nmain = len(jobs)
        jobs += [('q', k) for k in range(nq, 28)] + ([('q', 'e')] if l else [('Q', kk) for kk in range(7)])
        vo, vb, CSA = RLB, RLB + 4, 208

        def rd(j):
            t, k = jobs[j]
            b = WB + 4 * (j % NB)
            if k == 'e':
                return mk('ds_read_b64 %s, v%d offset:%d\nv_mov_b32 v%d, 0\nv_mov_b32 v%d, 0' % (v(b, 2), vCs, 256 * 'qkv'.index(t), b + 2, b + 3))
            base = {'q': vTrQ, 'k': vTr, 'v': vTrV, 'K': vb, 'V': vb + 1, 'Q': vTr}[t]
            rs = 64 if t in 'qQ' else 128
            return mk('ds_read_b64_tr_b16 %s, v%d offset:%d\nds_read_b64_tr_b16 %s, v%d offset:%d' % (v(b, 2), base, 16 * rs * k, v(b + 2, 2), base, 16 * rs * k + (32 // kh) * rs))
        for j in range(NB):
            P.add(rd(j))
        if l == 1:
            P.add(self.poll_check(sT4))
            P.add(self.stamp('x2_seen'))
            P.add(flat(lds[:o['look']]))
            P('s_add_u32 s%d, s%d, 1\nv_mov_b32 v%d, s%d' % (sNonce, sNonce, vNonce, sNonce))
        P('v_and_b32 v%d, 31, v0\nv_lshlrev_b32 v%d, 3, v%d\nv_add_u32 v%d, %d, v%d' % (vCs, vCs, vCs, vCs, L_CS, vCs))
        slots = []
        for j, (t, k) in enumerate(jobs):
            w = v(WB + 4 * (j % NB), 4)
            if t.isupper():
                sl = mfma(CSA + 16 * (t == 'V'), v(CSA + 16 if t == 'Q' else vo, 4), w, k == 0)
            else:
                x = v(XE if k == 'e' else xreg[k], 4)
                A, B = (w, x) if t == 'q' else (x, w)
                sl = mfma({'q': AQ, 'k': AK, 'v': AV}[t], A, B, k == 0)
            if l == 0 and j == 32 - NB:
                sl += self.late_dots + [wait_tok(self.tok_wq)] + mk('s_waitcnt lgkmcnt(0)\ns_barrier') + (self.stamp('bar2') if self.fine else [])
                sl += mk('s_mul_i32 s%d, s%d, %d\nv_add_u32 v%d, s%d, v%d\nv_add_u32 v%d, s%d, v%d' % (sT0, sW, 7 * 2048, vb, sT0, vTr, vb + 1, sT0, vTrV))
            if j % 2 == 0 and j + 1 < len(jobs) and j + 1 != nmain and o['s1pair']:
                also_waits_for(sl[0], v(WB + 4 * ((j + 1) % NB), 4))
            if j + NB < len(jobs) and not (j < nmain <= j + NB):
                sl += rd(j + NB)
            slots.append(sl)
        if l == 0:
            n = len(self.late_dma)
            for i, g in enumerate(self.late_dma):
                slots[(i * o['latespan']) // n] += g
            r0 = 32 - NB - 7
            slots[r0] += [wait_tok(self.tok_xb)]
            for i, g in enumerate(self.late_rd):
                slots[r0 + i // 2] += g
            slots[29] += mk('\n'.join('v_mov_b32 v%d, 0x3f803f80' % (vo + i) for i in range(4)))
            for i in range(0, len(fin), 4):
                slots[30 + i // 4] += fin[i:i + 4]
            pre, qd = self.wq_dma(175, True)
            self.tok_q = tok(qd[-1][-1])
            for i, g in enumerate([pre] + qd):
                slots[37 + i] += g
            slots[o['tslot']] += self.prefetch(vT, [(SRD_WO, 25)]) + self.touch_attn(0, vT)
            slots[47] += mk('v_and_b32 v%d, 31, v0\nv_lshlrev_b32 v%d, 2, v%d\ns_lshl_b32 s%d, s%d, 8\nv_add_u32 v%d, %d, v%d\nv_add_u32 v%d, s%d, v%d'
                            % (vb, vb, vb, sT0, sW, vb, L_KVB, vb, vb + 1, sT0, vb))
            slots[48] += mk('\n'.join('ds_write_b32 v%d, v%d offset:%d' % (vb + 1, CSA + 16 * t, 128 * t) for t in range(2)))
            slots[50] += mk('s_waitcnt lgkmcnt(0)\ns_barrier')
            for t in range(2):
                r = RLB
                slots[50 + 5 * t] += mk('\n'.join('ds_read_b32 v%d, v%d offset:%d' % (r + ww, vb, 256 * ww + 128 * t) for ww in range(4)))
                slots[53 + 5 * t] += mk('v_add_f32 v%d, v%d, v%d\nv_add_f32 v%d, v%d, v%d\nv_add_f32 v%d, v%d, v%d' % (r, r, r + 1, r + 2, r + 2, r + 3, r, r, r + 2))
                slots[54 + 5 * t] += self.split_w(r + 2, r, r + 1) + mk('ds_write_b64 v%d, %s offset:%d' % (vCs, v(r + 2, 2), 256 * (t + 1)))
        else:
            n = o['look']
            for j in range(0, nmain, 2):
                if n < 28:
                    k_free = n - 20
                    assert k_free < 0 or j >= jobs.index(('q', k_free))
                    slots[j] += lds[n]
                    n += 1
            st = self.frag_loads([v(SB + 4 * (i % 4), 4) for i in range(7)], SRD_CL, sT3, XST_OFF, st=sT1, flags='sc1')
            a0, a1 = o['sta'], o['stb']
            for i in range(4):
                slots[a0 + 2 * i] += st[i]
            ex = []
            for i in range(1, 16):
                ex += mk('v_add_f32 v%d, v%d, v%d' % (vS, vS if i > 1 else SB, SB + i))
            for i in range(0, 15, 2):
                slots[a1 - 8 + i // 2] += ex[i:i + 2]
            for i in range(3):
                slots[a1 + 2 * i] += st[4 + i]
            ex = flat(mk('v_add_f32 v%d, v%d, v%d' % (vS, vS, SB + i)) for i in range(12)) + fin
            e0 = o['stc']
            per = -(-len(ex) // (61 - e0))
            for i in range(61 - e0):
                slots[e0 + i] += ex[i * per:(i + 1) * per]
        RB = [WB + 4 * ((nmain - 4 + g) % NB) for g in range(4)]
        vEps = vT + 1
        slots[nmain - 5] += mk('v_lshrrev_b32 v%d, 5, v0\nv_lshl_add_u32 v%d, v%d, 4, s%d' % (vT + 2, vT + 2, vT + 2, sT4))
        for g in range(4):
            slots[nmain - 4 + g] += mk('ds_read_b128 %s, v%d offset:%d' % (v(RB[g], 4), vT + 2, 32 * g))
        slots[nmain - 1] += mk('v_mov_b32 v%d, 0x3f803f80\nv_add_u32 v%d, s%d, v%d\nv_mov_b32 v%d, %s' % (vPoll, vT, sT4, vL16, vEps, f32(1e-6)))
        vG = SB + 12
        ga = self.kv_lane_addr(vG, vG + 1, vG + 2, gather=True)
        for i in range(0, len(ga), 3):
            slots[(o['stb'] + 1 if l else 60) + i // 3] += ga[i:i + 3]
        P.add(flat(slots[:nmain]))
        P.add(self.stamp('s1_kv_mfma'))
        DK = WB
        for hf in range(2):
            R = lambda i: v(RB[2 * hf + i // 4] + i % 4, 2)
            P.add(self.phi8(AK + 8 * hf, R, RLB, vEps) + self.pack(AK + 4 * hf, AK + 8 * hf, 4))
            P.add(flat(mk('v_pk_mul_f32 %s, %s, %s' % (v(AV + 8 * hf + i, 2), v(AV + 8 * hf + i, 2), R(i))) for i in range(0, 8, 2)))
            P.add(self.pack(AV + 4 * hf, AV + 8 * hf, 4))
            for i in range(4):
                P('v_cndmask_b32 v%d, v%d, v%d, s[%d:%d]' % (AV + 4 * hf + i, AV + 4 * hf + i, vPoll, sN28, sN28 + 1))
        P.add(mfma(DK, v(AK, 4), v(AV, 4), True) + mfma(DK, v(AK + 4, 4), v(AV + 4, 4)))
        P('s_mov_b32 s%d, 0x80808080\ns_mov_b32 s%d, 0x80808080' % (sT0 + 1, sT0 + 2))
        for q in range(4):
            P('ds_write_b128 v%d, %s offset:%d' % (vT, v(DK + 4 * q, 4), 1024 * q))
        P('v_lshlrev_b32 v%d, 3, v0\ns_waitcnt lgkmcnt(0)\ns_barrier' % vT)
        for ww in range(4):
            P('ds_read_b128 %s, v%d offset:%d' % (v(AK + 4 * ww, 4), vG, 4096 * ww))
        if l == 1:
            for j in range(nmain, nmain + NB):
                P.add(rd(j))
        for x, y in ((AK, AK + 4), (AK + 8, AK + 12), (AK, AK + 8)):
            for i in (0, 2):
                P('v_pk_add_f32 %s, %s, %s' % (v(x + i, 2), v(x + i, 2), v(y + i, 2)))
        P.add(self.pack(AK, AK, 2))
        for i in range(2):
            P('v_cndmask_b32 v%d, v%d, v%d, s[%d:%d]' % (AK + i, AK + i, vNonce, sT0 + 1, sT0 + 2))
        P('buffer_store_dwordx2 %s, v%d, %s, s%d offen sc1' % (v(AK, 2), vT, self.srd(SRD_WS), sKvMy))
        P.add(self.stamp('kv_pub'))
        PQ = self.PQ = 104

        def qepi():
            L = []
            for hf in range(2):
                L += self.phi8(AQ + 8 * hf, lambda i: v(vRl, 2) + ' op_sel_hi:[1,0]', 48, vEps) + self.pack(PQ + 4 * hf, AQ + 8 * hf, 4)
            for i in (6, 7):
                L += mk('v_cndmask_b32 v%d, v%d, 0, s[%d:%d]' % (PQ + i, PQ + i, sHalf, sHalf + 1))
            return L
        if l == 0:
            P.add(trq + mk('\n'.join('v_mov_b32 v%d, 0x3f803f80' % (CSA + 16 + i) for i in range(4))))
            P('s_mul_i32 s%d, s%d, %d\nv_add_u32 v%d, s%d, v%d' % (sT0, sW, 7 * 1024, vTr, sT0, vTrQ))
            pre = [wait_tok(self.tok_q)] + mk('s_barrier') + flat(rd(j) for j in range(nmain, nmain + NB))
            va = CSA + 20
            post = mk('v_and_b32 v%d, 31, v0\nv_lshlrev_b32 v%d, 2, v%d\nv_add_u32 v%d, %d, v%d\ns_lshl_b32 s%d, s%d, 7\nv_add_u32 v%d, s%d, v%d\nds_write_b32 v%d, v%d'
                      % (va, va, va, va, L_KVS, va, sT0, sW, va + 1, sT0, va, va + 1, CSA))

            def qfin():
                L = mk('\n'.join('ds_read_b32 v%d, v%d offset:%d' % (WB + 4 + ww, va, 128 * ww) for ww in range(4)))
                L += mk('v_add_f32 v%d, v%d, v%d\nv_add_f32 v%d, v%d, v%d\nv_add_f32 v%d, v%d, v%d' % (WB + 4, WB + 4, WB + 5, WB + 6, WB + 6, WB + 7, WB + 4, WB + 4, WB + 6))
                L += self.split_w(WB, WB + 4, WB + 5) + mk('v_mov_b32 v%d, 0\nv_mov_b32 v%d, 0\nds_write_b64 v%d, %s' % (WB + 2, WB + 3, va + 2, v(WB, 2)))
                return L + mfma(AQ, v(WB, 4), v(XE, 4)) + qepi()
            post += mk('v_mov_b32 v%d, v%d' % (va + 2, vCs))
            self.staging(pre, slots[nmain:], post, qfin)
        else:
            P.add(spread(slots[nmain:], self.kvx_pre(1)))
            P.add(qepi())

    PARK = 140

    def wo_dma(self, vwo):
        wo = [mk('v_lshrrev_b32 v%d, 2, v0\nv_mul_u32_u24 v%d, 896, v%d\nv_and_b32 v%d, 3, v0\nv_lshl_add_u32 v%d, v%d, 4, v%d\ns_lshl_b32 s%d, s%d, 6\nv_add_u32 v%d, s%d, v%d'
                 % (vwo, vwo, vwo, vT, vwo, vT, vwo, sQ0, sM, vwo, sQ0, vwo))
              + mk('s_mul_i32 s%d, s%d, %d\ns_lshl_b32 s%d, s%d, 10\ns_add_u32 s%d, s%d, %d' % (sQ1, sW, 16 * 896, sT3, sW, sT3, sT3, L_WO))]
        for t in range(7):
            wo.append(mk('s_add_u32 m0, s%d, %d\ns_add_u32 s%d, s%d, %d\nbuffer_load_dwordx4 v%d, %s, s%d offen lds' % (sT3, 4096 * t, sQ0, sQ1, t * 64 * 896, vwo, self.srd(SRD_WO), sQ0)))
        last = I('s_mov_b32 s%d, %d\ns_mov_b32 m0, %d\ns_mov_b64 exec, 0xffff\nbuffer_load_dwordx4 v%d, %s, s%d offen lds\ns_mov_b64 exec, -1'
                 % (sQ0, 448 * 896, L_WO + 28672, vwo, self.srd(SRD_WO), sQ0), kind='block', nvm=1, src=[('v', vwo)])
        self.tok_wo = tok(last)
        return wo + [[last]]

    def staging(self, qpre, qslots, qpost, qepi):
        P = self.P
        lskip, ljoin = P.newlabel('Lnostage'), P.newlabel('Lstaged')
        v1a, t0, t1, vp, vb, vb2 = 112, 113, 114, 115, 116, 168
        P('s_cmp_lt_u32 s%d, 14\ns_cselect_b32 s%d, s%d, 0' % (sM, SRD_W1 + 2, SRD_W1 + 2))
        P('v_lshrrev_b32 v%d, 2, v0\nv_mul_u32_u24 v%d, 3584, v%d\nv_and_b32 v%d, 3, v0\nv_lshl_add_u32 v%d, v%d, 4, v%d'
          % (v1a, v1a, v1a, vT, v1a, vT, v1a))
        P('s_lshl_b32 s%d, s%d, 2\ns_add_u32 s%d, s%d, s%d\ns_lshl_b32 s%d, s%d, 6\nv_add_u32 v%d, s%d, v%d' % (sT5, sM, sT5, sT5, sW, sT5, sT5, v1a, sT5, v1a))
        P('s_mul_i32 s%d, s%d, 14336\ns_add_u32 s%d, s%d, %d\ns_mul_i32 s%d, s%d, 21504\ns_mul_i32 s%d, s%d, %d' % (sT3, sW, sT3, sT3, L_EX, sQ1, sW, sWi, sD1, 14 * 16 * 3584))

        def issue(k):
            g = mk('s_add_u32 m0, s%d, %d' % ((sT3, 1024 * k) if k < 14 else (sQ1, 1024 * (k - 14))))
            g += mk('s_add_u32 s%d, s%d, %d' % (sQ0, sWi, k * 16 * 3584) if k < 14 else 's_sub_u32 s%d, %d, s%d' % (sQ0, k * 16 * 3584, sWi))
            g += mk('buffer_load_dwordx4 v%d, %s, s%d offen lds' % (v1a, self.srd(SRD_W1), sQ0))
            return g
        dm = [issue(k) for k in range(28)]
        tk = [tok(g[-1]) for g in dm]
        park = mk('\n'.join('v_accvgpr_read_b32 v%d, a%d' % (160 + i, 216 + i) for i in range(8)))
        park += mk('v_add_u32 v%d, s%d, v%d' % (vp, sQ1, vL16))
        park += flat(mk('ds_read_b128 %s, v%d offset:%d' % (a(self.PARK + 4 * i, 4), vp, 1024 * i)) for i in range(21))
        ht = self.touch([(16, SRD_CL, sHst, b * 114688) for b in range(self.o['htk'])], vT) if self.o['htk'] else []
        P.add(flat(dm[:7]) + qpre + ht + (self.stamp('q_go') if self.fine else []))
        for i, g in enumerate(dm[7:14]):
            qslots[self.o['w1q'] + 2 * i] += g
        P.add(spread(qslots, park) + qpost)
        P('s_lshl_b32 s%d, s%d, 11\ns_add_u32 s%d, s%d, %d' % (sT4, sC, sT4, sT4, WS_XCC))
        P('v_and_b32 v%d, 15, v0\nv_lshlrev_b32 v%d, 7, v%d' % (vPA, vPA, vPA))
        P('buffer_load_dword v%d, v%d, %s, s%d offen sc1' % (vPoll, vPA, self.srd(SRD_WS), sT4))
        P('s_waitcnt lgkmcnt(0)\ns_barrier')
        if self.fine:
            P.add(self.stamp('q_done'))
        vo, D = 124, 128
        ad = self.trbase(t1, 64, 4) + mk('v_add_u32 v%d, s%d, v%d\nv_add_u32 v%d, s%d, v%d' % (t0, sT3, t1, t1, sQ1, t1))
        ad += mk('\n'.join('v_mov_b32 v%d, 0x3f803f80' % (vo + i) for i in range(4)))
        n1 = self.o['w1pre']
        for k in range(14, 14 + n1):
            lb = P.newlabel('Lnw')
            blk = I('s_cmp_ge_u32 s%d, 14\ns_cbranch_scc1 %s\n%s\n%s:' % (sM, lb, '\n'.join(x.text for x in dm[k]), lb), kind='block', nvm=1, src=[('v', v1a)], cost=20)
            blk.tok = tk[k]
            dm[k] = [blk]
        P.add(spread(dm[14:14 + n1], qepi() + ad) if n1 else qepi() + ad)
        P.add(self.stamp('sweep_start') + self.sweep_loads())
        P.add([I('s_cmp_ge_u32 s%d, 14\ns_cbranch_scc1 %s' % (sM, lskip), kind='block')])
        self.ool.append('%s:\ns_waitcnt vmcnt(0)\ns_branch %s' % (lskip, ljoin))
        P('v_and_b32 v%d, 31, v0\nv_lshlrev_b32 v%d, 1, v%d\nbuffer_load_ushort v%d, v%d, %s, s%d offen' % (vT, vT, vT, vb, vT, self.srd(SRD_B1), sT5))
        P('v_lshrrev_b32 v%d, 5, v0\nv_lshlrev_b32 v%d, 3, v%d\ns_lshl_b32 s%d, s%d, 5' % (vT, vT, vT, sT2, sFe))
        P('buffer_load_dwordx2 %s, v%d, %s, s%d offen\nbuffer_load_dwordx2 %s, v%d, %s, s%d offen offset:16'
          % (v(vb2, 2), vT, self.srd(SRD_B2), sT2, v(vb2 + 2, 2), vT, self.srd(SRD_B2), sT2))

        def consume(k):
            va, o = (t0, 1024 * k) if k < 14 else (t1, 1024 * (k - 14))
            L = [wait_tok(tk[k])] + mk('ds_read_b64_tr_b16 %s, v%d offset:%d\nds_read_b64_tr_b16 %s, v%d offset:%d' % (w1half(k, 0), va, o, w1half(k, 1), va, o + 512))
            return L + (mfma(D, v(vo, 4), w1reg(k - 2), k == 2) if k >= 2 else [])
        for k in range(14):
            P.add((dm[14 + n1 + k] if 14 + n1 + k < 28 else []) + consume(k))
        P.label(ljoin)
        P.add([I('s_nop 1', kind='block', states=2)])
        P.add(self.kvx_pre(0))
        l2 = P.newlabel('Lnowo')
        wo = flat(self.wo_dma(117))
        txt, _ = finalize(wo)
        blk = I('s_cmp_ge_u32 s%d, 14\ns_cbranch_scc1 %s\n%s\n%s:' % (sM, l2, '\n'.join(t.strip() for t in txt.split('\n') if t.strip()), l2),
                kind='block', nvm=8, dst=[('v', 117), ('v', vT)], src=[('v', 0)])
        self.tok_wo = tok(blk)
        self.after_kvb = [blk]
        ns = self.o['w1o']
        L = flat(consume(k) for k in range(ns, 28)) + mfma(D, v(vo, 4), w1reg(26)) + mfma(D, v(vo, 4), w1reg(27))
        L += self.unpack(144, vb2, 4) + mk('\n'.join('v_mov_b32 v%d, 0' % r for r in range(152, 156)))
        L += mk('s_lshl_b32 s%d, s%d, 7\ns_add_u32 s%d, s%d, %d\nv_lshrrev_b32 v%d, 5, v0\nv_lshl_add_u32 v%d, v%d, 6, s%d' % (sT0, sW, sT0, sT0, L_B2, vT, vT, vT, sT0))
        for q in range(4):
            L += mk('ds_write_b128 v%d, %s offset:%d' % (vT, v(144 + 4 * min(q, 2), 4), 16 * q))
        L += self.split_w(vW1X, D, vT + 1) + mk('v_lshl_or_b32 v%d, v%d, 16, v%d' % (vb, vb, vb))
        L += mk('v_cndmask_b32 v%d, v%d, v%d, s[%d:%d]\nv_cndmask_b32 v%d, v%d, 0, s[%d:%d]' % (vW1X, vW1X, vb, sHalf, sHalf + 1, vW1X + 1, vW1X + 1, sHalf, sHalf + 1))
        self.after_x1 = L + mk('s_waitcnt lgkmcnt(0)')
        self.after_o = flat(consume(k) for k in range(14, ns)) + self.xsrc() + [wait_tok(self.tok_wo)] + mk('s_waitcnt lgkmcnt(0)\ns_barrier') + flat(self.s2_rd(i) for i in range(4))

    def sweep_loads(self):
        return flat(self.frag_loads([v(32 + 4 * i, 4) for i in range(8)], SRD_WS, sKv, 0, flags='sc1'))

    def w2_prefetch(self, va, first, per):
        m = (1 << per) - 1
        txt = ['s_lshr_b32 s%d, s%d, 3' % (sQ0, sC), 's_mul_i32 s%d, s%d, 14' % (sQ0, sQ0), 's_add_u32 s%d, s%d, s%d' % (sQ0, sQ0, sM),
               's_lshl_b32 s%d, s%d, 2' % (sQ0, sQ0), 's_add_u32 s%d, s%d, s%d' % (sQ0, sQ0, sW), 's_mul_i32 s%d, s%d, %d' % (sQ0, sQ0, per * 128),
               's_add_u32 s%d, s%d, %d' % (sQ0, sQ0, first * 128), 'v_lshlrev_b32 v%d, 7, v0' % va,
               's_mov_b32 exec_lo, 0x%x' % (m & 0xffffffff), 's_mov_b32 exec_hi, 0x%x' % (m >> 32),
               'buffer_load_dword v%d, v%d, %s, s%d offen' % (vDummy, va, self.srd(SRD_W2), sQ0), 's_mov_b64 exec, -1']
        return [I('\n'.join(txt), kind='block', nvm=1, src=[('v', 0)], dst=[('v', va)], cost=52)]

    W2V = (15, 106, 5, 13, 140)

    def w2_addr(self):
        v2a, tA, tB, vp, tS = self.W2V
        L = mk('v_lshrrev_b32 v%d, 3, v0\nv_mul_u32_u24 v%d, 896, v%d\nv_lshrrev_b32 v%d, 2, v0\nv_and_b32 v%d, 4, v%d\nv_xor_b32 v%d, v%d, v0\nv_and_b32 v%d, 7, v%d\nv_lshl_add_u32 v%d, v%d, 4, v%d'
               % (v2a, v2a, v2a, vT, vT, vT, vT, vT, vT, vT, v2a, vT, v2a))
        L += mk('s_lshr_b32 s%d, s%d, 1\ns_lshl_b32 s%d, s%d, 7\ns_mul_i32 s%d, s%d, %d\ns_add_u32 s%d, s%d, s%d\nv_add_u32 v%d, s%d, v%d'
                % (sT0, sM, sT0, sT0, sT2, sW, 32 * 896, sT0, sT0, sT2, v2a, sT0, v2a))
        L += mk('s_mul_i32 s%d, s%d, 7168\ns_add_u32 s%d, s%d, %d\ns_lshl_b32 s%d, s%d, 12\ns_add_u32 s%d, s%d, %d'
                % (sRot, sW, sRot, sRot, L_EX, sQ1, sW, sQ1, sQ1, L_KVS))
        L += mk('s_lshr_b32 s%d, s%d, 1' % (sT0, sW)) + self.trbase(tA, 128, 4, xor16=sT0)
        L += mk('s_and_b32 s%d, s%d, 1\nv_bfe_u32 v%d, v0, 3, 1\nv_xor_b32 v%d, s%d, v%d\nv_lshl_add_u32 v%d, v%d, 6, v%d\nv_xor_b32 v%d, 64, v%d'
                % (sT0, sW, vT, vT, sT0, vT, tA, vT, tA, tA + 1, tA))
        L += mk('s_mul_i32 s%d, s%d, 10240\nv_add_u32 v%d, s%d, v%d\nv_add_u32 v%d, s%d, v%d' % (sWi, sW, tS, sWi, tA, tS + 1, sWi, tA + 1))
        L2 = mk('v_add_u32 v%d, s%d, v%d\nv_add_u32 v%d, s%d, v%d\nv_add_u32 v%d, s%d, v%d\nv_add_u32 v%d, s%d, v%d' % (tB, sQ1, tA, tB + 1, sQ1, tA + 1, tA, sRot, tA, tA + 1, sRot, tA + 1))
        L2 += mk('s_mul_i32 s%d, s%d, 21504\nv_add_u32 v%d, s%d, v%d' % (sT0, sW, vp, sT0, vL16))
        return L, L2

    def w2_steps(self, u0, u1, shadow):
        v2a, tA, tB, vp, tS = self.W2V
        NS = 5

        def where(u):
            n = (u - u0) % NS
            if shadow:
                return sWi, tS, n * 2048
            return (sRot, tA, n * 2048) if n < 3 else (sQ1, tB, (n - 3) * 2048)

        def issue(u):
            out = []
            base, _, o = where(u)
            for i in range(2):
                g = mk('s_add_u32 m0, s%d, %d' % (base, o + 1024 * i))
                g += mk('s_mov_b32 s%d, %d' % (sQ0, (128 * (u // 2) + 16 * (u % 2) + 8 * i) * 896))
                out += g + mk('buffer_load_dwordx4 v%d, %s, s%d offen lds' % (v2a, self.srd(SRD_W2), sQ0))
            return out, tok(out[-1])
        tk, first, steps, prev = {}, [], [], None
        for u in range(u0, min(u0 + NS - 1, u1)):
            g, tk[u] = issue(u)
            first.append(g)
        for u in range(u0, u1):
            _, ta, o = where(u)
            A = []
            if u + NS - 1 < u1:
                if prev:
                    A += [wait_tok(prev)]
                g, tk[u + NS - 1] = issue(u + NS - 1)
                A += g
            B = [wait_tok(tk[u])]
            for js in range(2):
                b = W2A + 8 * u + 4 * js
                B += mk('ds_read_b64_tr_b16 %s, v%d offset:%d\nds_read_b64_tr_b16 %s, v%d offset:%d' % (a(b, 2), ta + js, o, a(b + 2, 2), ta + js, o + 1024))
            prev = tok(B[-1])
            steps.append((A, B))
        return first, steps

    def w2_stage(self, fill, u0, u1, extra):
        P = self.P
        first, steps = self.w2_steps(u0, 28, False)
        P.add(flat(first))
        rest = [mk('ds_write_b128 v%d, %s offset:%d' % (self.W2V[3], a(self.PARK + 4 * i, 4), 1024 * i)) for i in range(21)]
        out, done = [], 0
        for n, (A, B) in enumerate(steps):
            u = u0 + n
            want = sum(1 for i in range(21) if 17 + (i + 1) // 2 <= u)
            out.append((A, rest[done:want], B + extra.get(u, []) + (self.stamp('w2_%d' % u) if self.fine else [])))
            done = want
        P.add(spread([A + flat(R) + B for A, R, B in out[:u1 - u0]], fill, start=0, end=self.o['w2fill']))
        return out[u1 - u0:]

    K10 = 98

    def kvx_pre(self, l):
        L = []
        RES = 160
        if l == 1:
            L += mk('s_add_u32 s%d, s%d, s%d' % (sT0, sOst, sXin))
            for j in range(2):
                L += mk('buffer_load_dwordx4 %s, v%d, %s, s%d offen offset:%d sc1' % (v(RES + 4 * j, 4), vL16, self.srd(SRD_CL), sT0, 1024 * j))
            L += [I('s_mul_i32 s%d, s%d, %d\ns_add_u32 s%d, s%d, s%d\ns_addc_u32 s%d, s%d, 0\ns_sub_u32 s%d, s%d, s%d'
                    % (sT0, sSlow, LOFF, SRD_CL, SRD_CL, sT0, SRD_CL + 1, SRD_CL + 1, SRD_CL + 2, SRD_CL + 2, sT0), kind='block', cost=16)]
        L += [I('s_cmp_eq_u32 s%d, 3\ns_cselect_b32 s%d, 0xffff0000, 0\ns_cselect_b32 s%d, 0xffff0000, 0' % (sW, sPm, sPm + 1), kind='block', cost=12)]
        L += self.kv_lane_addr(self.KA, self.KA + 1, self.KA + 2, gather=False)
        g, t = self.KA + 1, self.KA + 2
        L += mk('\n'.join(['v_bfe_u32 v%d, v0, 3, 1' % g, 'v_and_b32 v%d, 3, v0' % t, 'v_lshl_add_u32 v%d, v%d, 2, v%d' % (g, g, t),
                           'v_cmp_eq_u32 vcc, 7, v%d' % g, 'v_bfe_u32 v%d, v0, 4, 1' % t, 'v_mad_u32_u24 v%d, v%d, 14, v%d' % (g, t, g),
                           'v_bfe_u32 v%d, v0, 2, 1' % t, 'v_mad_u32_u24 v%d, v%d, 7, v%d' % (g, t, g), 'v_cndmask_b32 v%d, v%d, 28, vcc' % (g, g),
                           'v_and_b32 v%d, 32, v0' % t, 'v_add_u32 v%d, v%d, v%d' % (g, g, t), 'v_lshlrev_b32 v%d, 5, v%d' % (g, g), 'v_add_u32 v%d, %d, v%d' % (g, L_KVB, g)]))
        L += mk('s_and_b32 s%d, s%d, 0x1fff\ns_or_b32 s%d, s%d, 0x4000\ns_lshl_b32 s%d, s%d, 16' % (sTag, sNonce, sTag, sTag, sTag + 1, sTag))
        L += mk('v_mov_b32 v%d, 0x3f80\nv_mov_b32 v%d, 0x3f800000' % (self.K10, self.K10 + 1))
        return L

    KA = 100

    def kvx(self, l):
        P = self.P
        P.comment('==== layer %d : kv exchange' % l)
        if l == 0:
            lw, lb = P.newlabel('Lxcc'), P.newlabel('Lxok')
            P('v_subrev_u32 v%d, s%d, v%d\nv_cmp_lt_u32 vcc, 15, v%d' % (vPoll, sNonce, vPoll, vPoll))
            P.add([I('s_cbranch_vccnz %s\n%s:' % (lw, lb), kind='block')])
            self.ool.append('\n'.join([
                lw + ':',
                'buffer_load_dword v%d, v%d, %s, s%d offen sc1' % (vPoll, vPA, self.srd(SRD_WS), sT4),
                's_add_u32 s%d, s%d, 1' % (sSpin, sSpin),
                's_cmp_gt_u32 s%d, 0x40000' % sSpin,
                's_cbranch_scc1 L_end',
                's_waitcnt vmcnt(0)',
                'v_subrev_u32 v%d, s%d, v%d' % (vPoll, sNonce, vPoll),
                'v_cmp_lt_u32 vcc, 15, v%d' % vPoll,
                's_cbranch_vccnz %s' % lw,
                's_branch %s' % lb]))
            P('v_cmp_ne_u32 vcc, s%d, v%d\ns_cmp_lg_u64 vcc, 0\ns_cselect_b32 s%d, 1, 0\ns_mov_b32 s%d, %d\ns_cselect_b32 s%d, %d, s%d' % (sXcc, vPoll, sSlow, sXin, X1_OFF if self.o['alias'] else XIN_OFF, sXin, XIN_OFF, sXin))
        K10, K01 = self.K10, self.K10 + 1
        sw = []
        if l == 1:
            sw = (mk('s_sleep %d' % self.o['kvdelay']) if self.o['kvdelay'] else []) + self.stamp('sweep_start') + self.sweep_loads()
        if not self.o['swlate']:
            P.add(sw)
        P('v_and_b32 v%d, 15, v0\nv_lshlrev_b32 v%d, 11, v%d\nv_add_u32 v%d, 2044, v%d' % (vPA, vPA, vPA, vPA, vPA))
        P.add(self.trbase(vTr, 64, 7, add=L_WO))
        P.add(self.s2_pre(l))
        P('s_mov_b32 s%d, 0x88888888\ns_mov_b32 s%d, 0x88888888' % (sPm, sPm + 1))
        if self.o['swlate']:
            P.add(sw)
        lsw, lre = P.newlabel('Lsweep'), P.newlabel('Lresweep')
        P.label(lsw)
        B = 32
        bad, S = vT, 64
        P('v_mov_b32 v%d, 0' % bad)
        for i in range(8):
            for k in range(4):
                for hh, K in enumerate((K10, K01)):
                    P('v_dot2_f32_bf16 v%d, v%d, v%d, %s' % (S + 2 * k + hh, B + 4 * i + k, K, 'v%d' % (S + 2 * k + hh) if i else '0'))
            for k in (2, 3):
                P('v_bitop3_b32 v%d, v%d, s%d, v%d bitop3:0xbe' % (bad, B + 4 * i + k, sNonce, bad))
        P('v_cmp_ne_u32 vcc, 0, v%d\ns_and_b64 vcc, vcc, s[%d:%d]' % (bad, sPm, sPm + 1))
        P.add([I('s_cbranch_vccnz %s' % lre, kind='block', states=1)])
        self.ool.append('%s:\ns_sleep 6\ns_add_u32 s%d, s%d, 1\ns_cmp_gt_u32 s%d, 0x40000\ns_cbranch_scc1 L_end\n%s\ns_waitcnt vmcnt(0)\ns_branch %s'
                        % (lre, sSpin, sSpin, sSpin, '\n'.join(x.text for x in self.sweep_loads()), lsw))
        P.add(self.stamp('sweep_done'))
        for k in range(4):
            P('v_permlane32_swap_b32 v%d, v%d' % (S + k, S + 4 + k))
        for k in (0, 2):
            P('v_pk_add_f32 %s, %s, %s' % (v(S + k, 2), v(S + k, 2), v(S + 4 + k, 2)))
        P.add(self.pack(S, S, 2))
        P('ds_write_b64 v%d, %s' % (self.KA, v(S, 2)))
        P('s_waitcnt lgkmcnt(0)\ns_barrier')
        KF, D = 72, 80
        P('ds_read_b128 %s, v%d\nds_read_b128 %s, v%d offset:16' % (v(KF, 4), self.KA + 1, v(KF + 4, 4), self.KA + 1))
        P.add(flat(self.s2_rd(i) for i in range(4)) if l else self.after_kvb)
        P.add(mfma(D, v(KF, 4), v(self.PQ, 4), True))
        for i in (6, 7):
            P('v_cndmask_b32 v%d, v%d, 0, s[%d:%d]' % (KF + i, KF + i, sHalf, sHalf + 1))
        P.add(mfma(D, v(KF + 4, 4), v(self.PQ + 4, 4)))
        t1 = 120
        P('v_add_f32 v%d, %s, v%d\nv_rcp_f32 v%d, v%d\nv_mul_f32 v%d, s%d, v%d' % (t1, f32(1e-6), D + 7, t1, t1, t1, sLn2, t1))
        for r in range(0, 16, 2):
            P('v_pk_mul_f32 %s, %s, %s op_sel_hi:[1,0]' % (v(D + r, 2), v(D + r, 2), v(t1, 2)))
        P('v_mov_b32 v%d, s%d\nv_mov_b32 v%d, s%d' % (D + 7, sTag + 1, D + 15, sTag + 1))
        P.add(self.pack(D, D, 8))
        st = self.stores(['buffer_store_dwordx4 %s, v%d, %s, s%d offen offset:%d' % (v(D + 4 * j, 4), vL16, self.srd(SRD_CL), sOst, 1024 * j) for j in range(2)], last=1)
        P.add(st)
        P.add(self.stamp('o_pub'))

    def s2_rd(self, i):
        WB, o = 144 + 4 * (i % 4), 1792 * (i // 2) + 896 * (i % 2)
        return mk('ds_read_b64_tr_b16 %s, v%d offset:%d\nds_read_b64_tr_b16 %s, v%d offset:%d' % (v(WB, 2), vTr, o, v(WB + 2, 2), vTr, o + 256))

    def s2_pre(self, l):
        L = self.s4_consts(l)
        L += mk('s_add_u32 s%d, s%d, %d' % (sT4, sOst, X1_OFF))
        L += mk('s_lshr_b32 s%d, s%d, 2\ns_lshl_b32 s%d, s%d, 10\ns_and_b32 s%d, s%d, 3\ns_lshl_b32 s%d, s%d, 2\ns_add_u32 s%d, s%d, s%d\ns_add_u32 s%d, s%d, s%d\ns_add_u32 s%d, s%d, %d'
                % (sT5, sM, sT5, sT5, sT1, sM, sT1, sT1, sT5, sT5, sT1, sT5, sT5, sBlk, sT5, sT5, X1_OFF + 28672))
        return L + self.unpack(16, 160, 8)

    def s2(self, l):
        P = self.P
        o = self.o
        P.comment('==== layer %d : S2' % l)
        ACC, OF, WB, RES = 16, 32, 144, 160
        NB = 4
        lre, lfail = P.newlabel('Ls2'), P.newlabel('Ls2again')
        if l == 0:
            P.add(self.after_o)
        P.label(lre)
        P.add(self.poll_issue(sBlk, o['pdo'] if l else 0))
        rd = self.s2_rd
        bad = vT
        P('v_mov_b32 v%d, 0' % bad)
        P.add(self.poll_check(sBlk, tag=True))
        P.add(self.stamp('o_seen'))
        oreg = [OF + 4 * (i % (28 if l else 18)) for i in range(32)]
        lds = self.frag_loads([v(r, 4) for r in oreg], SRD_CL, sBlk, O_OFF, flags='sc1')
        n = o['look2']
        P.add(flat(lds[:n]))
        chk = lambda i: mk('v_bitop3_b32 v%d, v%d, s%d, v%d bitop3:0xbe\nv_and_b32 v%d, 0xffff, v%d' % (bad, oreg[i] + 3, sTag + 1, bad, oreg[i] + 3, oreg[i] + 3))
        P.add(chk(0))
        for i in range(32):
            if i + n < 32:
                P.add(lds[i + n])
            P.add(mfma(ACC, v(WB + 4 * (i % NB), 4), v(oreg[i], 4)))
            if self.fine and i in (0, 8, 16, 31):
                P.add(self.stamp('s2_%d' % i))
            if i + NB < 32:
                P.add(rd(i + NB))
            if i + 1 < 32:
                P.add(chk(i + 1))
            if i == 28:
                P.add(self.pa(14, blocks=True, reg=vT + 2))
        P('v_cmp_lt_u32 vcc, 0xffff, v%d' % bad)
        P.add([I('s_cbranch_vccnz %s' % lfail, kind='block', states=1)])
        again = '\n'.join(x.text for x in self.unpack(ACC, RES, 8) + flat(rd(i) for i in range(NB)))
        self.ool.append('%s:\ns_add_u32 s%d, s%d, 1\ns_cmp_gt_u32 s%d, 0x40000\ns_cbranch_scc1 L_end\ns_nop 15\n%s\ns_waitcnt lgkmcnt(0)\ns_branch %s'
                        % (lfail, sSpin, sSpin, sSpin, again, lre))
        P('v_mov_b32 v%d, v%d' % (vPA, vT + 2))
        P.add(self.pack(OF, ACC, 8))
        P.add(self.stores(['buffer_store_dwordx4 %s, v%d, %s, s%d offen offset:%d' % (v(OF + 4 * j, 4), vL16, self.srd(SRD_CL), sT4, 1024 * j) for j in range(2)], last=2))
        P.add(self.row_stats(OF, 8, vT, vT + 2))
        st = self.stores(['buffer_store_dword v%d, v%d, %s, s%d offen' % (vT, vL16, self.srd(SRD_CL), sT5)])
        tk = tok(st[-1])
        P.add(st)
        if self.fine:
            P.add(self.stamp('x1_st'))
        P.add(self.flag([tk], sFoMy, FX1 - FO))
        P.add(self.stamp('x1_pub'))

    def gelu(self, acc, KK, T):
        pr = range(0, 16, 2)
        A = flat(mk('v_pk_mul_f32 %s, %s, %s' % (v(T + i, 2), v(acc + i, 2), v(acc + i, 2))) for i in pr)
        A += flat(mk('v_pk_fma_f32 %s, %s, %s, %s op_sel:[0,1,0] op_sel_hi:[1,1,0]' % (v(T + i, 2), v(T + i, 2), v(KK, 2), v(KK, 2))) for i in pr)
        A += flat(mk('v_pk_mul_f32 %s, %s, %s' % (v(T + i, 2), v(T + i, 2), v(acc + i, 2))) for i in pr)
        E = flat(mk('v_exp_f32 v%d, v%d' % (T + i, T + i)) for i in range(16))
        B = flat(mk('v_pk_fma_f32 %s, %s, %s, %s op_sel_hi:[1,0,0]' % (v(T + i, 2), v(T + i, 2), v(KK + 2, 2), v(KK + 2, 2))) for i in pr)
        R = flat(mk('v_rcp_f32 v%d, v%d' % (T + i, T + i)) for i in range(16))
        C = flat(mk('v_pk_mul_f32 %s, %s, %s' % (v(acc + i, 2), v(acc + i, 2), v(T + i, 2))) for i in pr)
        pk = self.pack(acc, acc, 8)
        g4 = lambda f, g: flat(mk(f(4 * g + i)) for i in range(4))
        e = lambda g: E[4 * g:4 * g + 4]
        r = lambda g: R[4 * g:4 * g + 4]
        b = lambda g: g4(lambda i: 'v_fma_f32 v%d, v%d, v%d, v%d' % (T + i, T + i, KK + 2, KK + 2), g)
        c = lambda g: g4(lambda i: 'v_mul_f32 v%d, v%d, v%d' % (acc + i, acc + i, T + i), g) + pk[2 * g:2 * g + 2]
        tail = e(0) + e(1) + b(0) + r(0) + e(2) + b(1) + c(0) + r(1) + e(3) + b(2) + c(1) + r(2) + b(3) + c(2) + r(3) + c(3)
        return A, A + E + B + R + C + pk, tail

    XSRC = (4, 5, 6, 7, 8, 9, 10, 11, 12, 13, 14, 15, 20, 21)

    def xsrc(self):
        L = mk('s_lshl_b32 s%d, s%d, 1\ns_mul_i32 s%d, s%d, 14\ns_add_u32 s%d, s%d, s%d\ns_mov_b32 s%d, %d' % (sT0, sW, sT1, sD1, sT1, sT1, sT0, sT2, X1_OFF))
        for c, r in enumerate(self.XSRC):
            if c:
                L += mk('s_add_u32 s%d, s%d, 8\ns_cmp_ge_u32 s%d, 28\ns_cselect_b32 s%d, 28, 0\ns_cselect_b32 s%d, 0x8000, 0\ns_sub_u32 s%d, s%d, s%d\ns_add_u32 s%d, s%d, s%d'
                        % (sT0, sT0, sT0, sT3, r, sT0, sT0, sT3, sT2, sT2, r))
                L += mk('s_add_u32 s%d, s%d, 8\ns_cmp_ge_u32 s%d, 28\ns_cselect_b32 s%d, 28, 0\ns_sub_u32 s%d, s%d, s%d' % (sT1, sT1, sT1, sT3, sT1, sT1, sT3))
            L += mk('s_lshl_b32 s%d, s%d, 10\ns_add_u32 s%d, s%d, s%d' % (r, sT1, r, r, sT2))
        return L

    SEL = 172

    def s4_consts(self, l):
        U, SEL = 120, self.SEL
        sel = mk('\n'.join(['v_lshrrev_b32 v%d, 5, v0' % SEL,
                             'v_lshlrev_b32 v%d, 2, v%d' % (SEL, SEL), 'v_and_b32 v%d, 31, v0' % (SEL + 1), 'v_sub_u32 v%d, v%d, v%d' % (U, SEL + 1, SEL),
                             'v_mov_b32 v%d, 0x3f80' % (U + 1), 'v_mov_b32 v%d, 0x3f800000' % (U + 2)]))
        for q, r0 in enumerate((0, 2, 8, 10)):
            sel += mk('v_cmp_eq_u32 vcc, %d, v%d\nv_cmp_eq_u32 s[%d:%d], %d, v%d\ns_nop 0\nv_cndmask_b32 v%d, 0, v%d, vcc\nv_cndmask_b32 v%d, v%d, v%d, s[%d:%d]'
                      % (r0, U, sPm, sPm + 1, r0 + 1, U, SEL + q, U + 1, SEL + q, SEL + q, U + 2, sPm, sPm + 1))
        for q, sB in enumerate((sEb, sLb)):
            sel += mk('s_lshl_b32 s%d, s%d, 15\ns_lshl_b32 s%d, s%d, 10\ns_add_u32 s%d, s%d, s%d\ns_add_u32 s%d, s%d, %d' % (sT0, sB, sT2, sFe, sT0, sT0, sT2, sRes + q, sT0, X1_OFF))
            if l == 0:
                sel += mk('s_add_u32 s%d, s%d, s%d\ns_lshl_b32 s%d, s%d, 13' % (sFin + q, sT0, sXin, sT0, sB))
                sel += mk('s_lshr_b32 s%d, s%d, 2\ns_lshl_b32 s%d, s%d, 10\ns_add_u32 s%d, s%d, s%d\ns_and_b32 s%d, s%d, 3\ns_lshl_b32 s%d, s%d, 2\ns_add_u32 s%d, s%d, s%d\ns_add_u32 s%d, s%d, %d'
                          % (sT2, sFe, sT2, sT2, sT0, sT0, sT2, sT2, sFe, sT2, sT2, sT0, sT0, sT2, sFin + 2 + q, sT0, XST_OFF))
                sel += mk('s_lshl_b32 s%d, s%d, 5\ns_add_u32 s%d, s%d, s%d\ns_lshl_b32 s%d, s%d, 2\ns_add_u32 s%d, s%d, %d' % (sT2, sB, sT2, sT2, sFe, sT2, sT2, sFin + 4 + q, sT2, FXIN))
            else:
                sel += mk('s_lshl_b32 s%d, s%d, 2\ns_add_u32 s%d, s%d, s%d\ns_mul_i32 s%d, s%d, %d\ns_lshl_b32 s%d, s%d, 5\ns_add_u32 s%d, s%d, s%d'
                          % (sT0, sC, sT0, sT0, sB, sT0, sT0, 32 * 896, sT2, sFe, sFin + q, sT0, sT2))

        return sel

    def mlp(self, l):
        P = self.P
        o = self.o
        P.comment('==== layer %d : MLP' % l)
        ACC = (16, 32)
        XB, EXB, WEX, T, RING = 48, 72, 76, 80, 108
        KK = (96, 100)
        SEL, vB2, vX2 = self.SEL, 104, 105
        NB = 6
        if l == 0:
            P.add(self.after_x1)
        P('s_mov_b32 s%d, %d' % (sT4, FX1))
        if not o['p1']:
            P.add(self.poll_issue(sT4, o['pdx']))
        P('s_lshl_b32 s%d, s%d, 11' % (sT5, sW))
        P('v_mov_b32 v%d, v%d\nv_mov_b32 v%d, v%d' % (WEX, vW1X, WEX + 1, vW1X + 1))
        P('\n'.join('v_mov_b32 v%d, 0' % r for r in (WEX + 2, WEX + 3, EXB + 2, EXB + 3)))
        vE8, vK16 = vTr, vT + 3
        P('v_lshlrev_b32 v%d, 3, v0\nv_add_u32 v%d, %d, v%d' % (vE8, vE8, L_KVS, vE8))
        P('v_and_b32 v%d, 31, v0\nv_lshlrev_b32 v%d, 4, v%d\nv_add_u32 v%d, %d, v%d' % (vK16, vK16, vK16, vK16, L_KVS + 512, vK16))
        P('v_add_u32 v%d, %d, v%d' % (vX2, 56 * 1024, vL16))
        P('s_lshl_b32 s%d, s%d, 7\ns_add_u32 s%d, s%d, %d\nv_lshrrev_b32 v%d, 5, v0\nv_lshl_add_u32 v%d, v%d, 6, s%d' % (sT3, sW, sT3, sT3, L_B2, vB2, vB2, vB2, sT3))
        P('s_add_u32 s%d, s%d, %d' % (sT1, sBlk, X1_OFF + 28672))
        if o['p1']:
            lq = P.newlabel('Lnp')
            c = self.poll_check(sT4)[0]
            P.add([I('s_cmp_lg_u32 s%d, 0\ns_cbranch_scc1 %s\n%s\ns_waitcnt vmcnt(0)\n%s\n%s:\ns_barrier'
                     % (sW, lq, '\n'.join(x.text for x in self.poll_issue(sT4, o['pdx'] if l else 0)), c.text, lq), kind='block', src=[('v', vPA)], dst=c.dst, states=2)])
        else:
            P.add(self.poll_check(sT4))
        P.add(self.stamp('x1_seen'))
        xd, tc = [], []
        for c, r in enumerate(self.XSRC):
            g = mk('s_add_u32 m0, s%d, %d' % (sT5, 8192 * c))
            g += mk('buffer_load_dwordx4 v%d, %s, s%d offen sc1 lds\nbuffer_load_dwordx4 v%d, %s, s%d offen offset:1024 sc1 lds' % (vL16, self.srd(SRD_CL), r, vL16, self.srd(SRD_CL), r))
            tc.append(tok(g[-1]))
            xd.append(g)
        stl = [mk('buffer_load_dwordx4 %s, v%d, %s, s%d offen offset:%d sc1' % (v(RING + 4 * i, 4), vL16, self.srd(SRD_CL), sT1, 1024 * i)) for i in range(4)]
        sp = o['stpos']
        P.add({0: flat(stl) + xd[0] + xd[1], 1: xd[0] + xd[1] + flat(stl), 2: xd[0] + xd[1], 3: xd[0] + flat(stl[:2]) + xd[1]}[sp])
        K0 = KK[1]
        st0 = []
        for x, y in ((0, 1), (2, 3), (4, 5), (6, 7), (8, 9), (10, 11), (12, 13), (0, 2), (4, 6), (8, 10), (0, 4), (8, 12)):
            st0 += mk('v_add_f32 v%d, v%d, v%d' % (RING + x, RING + x, RING + y))
        st0 += mk('v_add_f32 v%d, v%d, v%d' % (T, RING, RING + 8))
        st0 += self.stats_finish(T, True)
        st0 += mk('\n'.join(['v_rcp_f32 v%d, v%d' % (K0 + 2, vRl),
                             'v_mul_f32 v%d, s%d, v%d' % (K0, sC0, vRl),
                             'v_mul_f32 v%d, v%d, v%d' % (T, vRl, vRl),
                             'v_mul_f32 v%d, s%d, v%d' % (K0 + 1, sC1, vRl),
                             'v_mul_f32 v%d, v%d, v%d' % (K0 + 1, K0 + 1, T),
                             'v_sub_f32 v%d, 0, v%d' % (vMean, vMean),
                             'v_cndmask_b32 v%d, v%d, v%d, s[%d:%d]' % (vMean, vMean, K0 + 2, sHalf, sHalf + 1)]))
        st0 += self.split_act(T + 2, vMean, T)
        st0 += mk('s_lshl_b32 s%d, s%d, 10\nv_add_u32 v%d, s%d, v%d\nv_add_u32 v%d, s%d, v%d' % (sT4, sW, vT, sT4, vE8, vT + 1, sT4, vK16))
        st0 += mk('ds_write_b64 v%d, %s\nds_write_b128 v%d, %s' % (vT, v(T + 2, 2), vT + 1, v(K0, 4)))
        tst = tok(st0[-1])

        def hpub(b):
            pre = mk('s_add_u32 s%d, s%d, %d' % (sT4, sHst, b * 114688))
            st = self.stores(['buffer_store_dwordx4 %s, v%d, %s, s%d offen offset:%d' % (v(ACC[b & 1] + 4 * j, 4), vL16, self.srd(SRD_CL), sT4, 1024 * j) for j in range(2)], last=4)
            return pre + st, tok(st[-1])
        hflag = lambda b, tk: self.flag([tk], sFoMy, FH - FO + 512 * b)
        extrd = lambda b: mk('ds_read_b64 %s, v%d offset:%d\nds_read_b128 %s, v%d offset:%d' % (v(EXB, 2), vE8, 1024 * b, v(KK[b & 1], 4), vK16, 1024 * b))
        extmf = lambda b: mfma(ACC[b & 1], v(WEX, 4), v(EXB, 4))
        hreg = [RING + 4 * (i % 16) for i in range(56)]

        def hload(i):
            blk, kap = divmod(i, 28)
            g = mk('s_add_u32 s%d, s%d, %d' % (sHs, (sHE, sHL)[blk], 8192 * (kap // 2))) if kap % 2 == 0 else []
            return g + mk('buffer_load_dwordx4 %s, v%d, %s, s%d offen offset:%d sc1' % (v(hreg[i], 4), vL16, self.srd(SRD_CL), sHs, 1024 * (kap % 2)))
        P.add([wait_tok(tc[0])])
        P('s_barrier')
        P.add(self.stamp('s3_b0'))
        rdj = lambda j: mk('ds_read_b128 %s, v%d offset:%d' % (v(XB + 4 * (j % NB), 4), vL16 if j < 56 else vX2, 1024 * (j % 56)))
        for j in range(NB):
            P.add(rdj(j))
        isl = lambda c: 0 if c == 2 else o['x0'] + (o['xstep'] * (c - 3)) // 2
        bars, cov = {}, 0
        for c in range(1, 14):
            sj = 8 * c - 5
            if c > cov or sj in (27, 43):
                cov = max([c] + [d for d in range(3, 14) if isl(d) + o['xlag'] <= sj])
                bars[sj] = [tc[cov]] + ([tst] if sj == 27 else [])
        slots = []
        for j in range(112):
            b, k = divmod(j, 28)
            sl = mfma(ACC[b & 1], w1reg(k), v(XB + 4 * (j % NB), 4), k == 0)
            if k % 2 == 0:
                also_waits_for(sl[0], v(XB + 4 * ((j + 1) % NB), 4))
            if j in bars:
                sl += (self.stamp('pb%d' % j) if self.fine else []) + [wait_tok(*bars[j])] + mk('s_barrier') + (self.stamp('ab%d' % j) if self.fine else [])
            if k % 2 == 1:
                for jj in (j + NB - 1, j + NB):
                    if jj < 112:
                        sl += rdj(jj)
            if (k == 25 and b) or j == 27:
                sl += extrd(b)
            if (k == 27 and b) or j == 30:
                sl += extmf(b if k == 27 else 0)
            slots.append(sl)
        slots[0] += stl[0] + stl[1] if sp == 2 else []
        slots[1 if sp == 2 else 0] += xd[2]
        slots[3 if sp == 2 else 2] += stl[2] + stl[3] if sp >= 2 else []
        for c in range(3, 14):
            slots[isl(c)] += xd[c]
        pre0, pre1 = self.w2_addr() if l == 0 else ([], [])
        slots[26] += pre1
        nsh = o['nsh'] if l == 0 else 0
        if nsh:
            first, steps = self.w2_steps(0, nsh, True)
            p0 = o['sh0']
            for i, g in enumerate(first):
                slots[p0 + 2 * i] += g
            p1 = p0 + 2 * len(first) + o['shgap']
            for n, (A, B) in enumerate(steps):
                sj = p1 + (n * (110 - p1)) // nsh
                slots[sj] += A
                slots[sj + 1] += B
            if o['idlew2'] < 13:
                slots[o['pf2']] += self.w2_prefetch(vT, 1024 * o['idlew2'], -(-(12544 - 1024 * o['idlew2']) // 112))
        out = spread(slots[:o['st0']], pre0) + spread(slots[o['st0']:o['st1']], st0) + flat(slots[o['st1']:28])
        pend = None
        for b in range(1, 4):
            gA, _, tail = self.gelu(ACC[(b - 1) & 1], KK[(b - 1) & 1], T)
            s0 = 28 * b + (5 if b == 1 else 2)
            st, nxt = hpub(b - 1)
            if l == 0 and b < 3 and not nsh:
                st = st + self.w2_prefetch(vT, (b - 1) * 6272, 56)
            slots[s0] += gA
            if pend is not None and l == 1:
                slots[28 * b + o['flagpos']] += hflag(b - 2, pend)
            pend = nxt
            if b == 3 and l == 1:
                slots[84 + o['pollE']] += self.pa(14) + self.poll_issue(sPE)
                n3 = o['n3']
                slots[112 - n3] += (self.stamp('preE') if self.fine else []) + self.poll_check(sPE) + (self.stamp('gotE') if self.fine else [])
                for i in range(n3):
                    slots[112 - n3 + i] += hload(i)
            if b == 1 or self.fine:
                out += self.stamp('s3_b%d' % b)
            out += flat(slots[28 * b:s0 + 1]) + spread(slots[s0 + 1:28 * b + 28], tail + st, end=28 * b + o['gend'] - s0)
        P.add(out)
        P('s_waitcnt lgkmcnt(0)\ns_barrier')
        P.add(self.stamp('s3_end'))
        AE, AL, RX, RS = 48, 16, 80, 96
        vEW, vER = (vTr, vT, vT + 1), vT + 3
        resid = lambda q: mk('buffer_load_dwordx4 %s, v%d, %s, s%d offen sc1' % (v(RS, 4), vL16, self.srd(SRD_CL), sRes + q))
        cinit = lambda A: flat(mk('ds_read_b128 %s, v%d offset:%d' % (v(A + 4 * q, 4), vB2, 16 * q)) for q in range(4))
        ad = []
        for n, x in enumerate((2, 1, 3)):
            ad += mk('s_xor_b32 s%d, s%d, %d\ns_mul_i32 s%d, s%d, 6144\ns_add_u32 s%d, s%d, %d\nv_add_u32 v%d, s%d, v%d'
                     % (sT3, sW, x, sT3, sT3, sT3, sT3, L_EX + 2048 * (x - 1), vEW[n], sT3, vL16))
        ad += mk('s_mul_i32 s%d, s%d, 6144\ns_add_u32 s%d, s%d, %d\nv_add_u32 v%d, s%d, v%d' % (sT3, sW, sT3, sT3, L_EX, vER, sT3, vL16))
        gA, gall, _ = self.gelu(ACC[1], KK[1], T)
        st, p3 = hpub(3)
        npre = o['npre']
        if l == 0:
            npre, u1 = o['npre0'], o['w2u1']
            fl = hflag(0, pend) + hflag(1, pend) + hflag(2, pend)
            w2rest = self.w2_stage(gall[:o['flat']] + fl + gall[o['flat']:] + st, nsh, u1, {u1 - 2: self.pa(14) + self.poll_issue(sPE)})
            P.add(cinit(AE) + self.poll_check(sPE) + resid(0) + flat(hload(i) for i in range(npre)))
        else:
            P.add(spread([resid(0)] + [hload(i) for i in range(o['n3'], npre)], gall[:40] + hflag(2, pend) + cinit(AE) + gall[40:] + st))
        if self.fine:
            P.add(self.stamp('g3_end'))

        exch_write = lambda A: flat(mk('ds_write_b128 v%d, %s\nds_write_b128 v%d, %s offset:1024' % (vEW[n], v(r, 4), vEW[n], v(r + 4, 4)))
                                    for n, r in enumerate((A + 8, A + 16, A + 24)))
        exch_read = lambda: flat(mk('ds_read_b128 %s, v%d offset:%d' % (v(RX + 4 * q, 4), vER, 1024 * q)) for q in range(6))

        def addv(d, x, y, n, pk):
            if pk:
                return flat(mk('v_pk_add_f32 %s, %s, %s' % (v(d + i, 2), v(x + i, 2), v(y + i, 2))) for i in range(0, n, 2))
            return flat(mk('v_add_f32 v%d, v%d, v%d' % (d + i, x + i, y + i)) for i in range(n))

        def finish(A, q, pk):
            L = addv(A, A, RX, 8, pk) + addv(RX + 8, RX + 8, RX + 16, 8, pk) + addv(A, A, RX + 8, 8, pk) + self.pack(A, A, 4)
            if l == 0:
                L += self.stores(['buffer_store_dwordx4 %s, v%d, %s, s%d offen' % (v(A, 4), vL16, self.srd(SRD_CL), sFin + q)])
                rs = self.row_stats(A, 4, RX, RX + 2)
                blk = I('\n'.join(x.text for x in rs[:9]), kind='block', src=[r for x in rs[:9] for r in x.src], dst=[('v', RX), ('v', RX + 1), ('v', RX + 2)], states=1, cost=60)
                L += [blk] + mk('s_nop 2') + rs[9:]
                st = self.stores(['buffer_store_dword v%d, v%d, %s, s%d offen' % (RX, vL16, self.srd(SRD_CL), sFin + 2 + q)])
                tk = tok(st[-1])
                return L + st, self.flag([tk], sFin + 4 + q)
            L += mk('v_permlane32_swap_b32 v%d, v%d\nv_permlane32_swap_b32 v%d, v%d' % (A, A + 2, A + 1, A + 3))
            L += mk('buffer_store_dwordx4 %s, v%d, %s, s%d offen %s' % (v(A, 4), vPA, self.srd(SRD_OUT), sFin + q, ('', 'sc1', 'nt', 'sc0 sc1')[o['outf']]))
            return L, []

        slots = []
        nt = o['ntail']
        order = [(i, js) for i in range(56 - nt) for js in range(2)] + [(i, 1) for i in range(56 - nt, 56)] + [(i, 0) for i in range(56 - nt, 56)]
        for i, js in order:
            blk, kap = divmod(i, 28)
            A = (AE, AL)[blk]
            sl = mfma(A, v(SEL, 4), v(RS, 4)) if kap == 0 and js == 0 else []
            slots.append(sl + mfma(A + 16 * js, a(W2A + 8 * kap + 4 * js, 4), v(hreg[i], 4), kap == 0 and js == 1))
        sidx = 0
        for i in range(npre, 56):
            sidx = max(sidx, 2 * (i - 16) + 1 if i >= 16 else 0)
            if i == 28:
                sidx = max(sidx, o['lateL'])
                slots[sidx] += (self.stamp('preL') if self.fine else []) + self.poll_check(sPL) + (self.stamp('gotL') if self.fine else [])
            slots[sidx] += hload(i)
            assert sidx <= 2 * i - 6
            sidx += 1 if 2 * (i + 1) - sidx - 2 < o['lead'] else 2
        if l == 0:
            for n, (A, R, B) in enumerate(w2rest):
                sj = 1 + o['w2sp'] * n
                slots[sj] += A
                for i, g in enumerate(R):
                    slots[sj + i] += g
                slots[sj + len(R)] += B
                assert sj + len(R) <= 2 * (u1 + n) - 4
        if True:
            slots[o['flag3'] if l else o['flag30']] += (self.stamp('preF') if self.fine else []) + hflag(3, p3) + (self.stamp('gotF') if self.fine else [])
        slots[o['pollL']] += self.poll_issue(sPL)
        for i in range(0, len(ad), 4):
            slots[2 * (i // 4) + 30] += ad[i:i + 4]
        slots[40] += resid(1)
        if l == 0:
            slots[52] += mk('s_waitcnt lgkmcnt(0)\ns_barrier')
        slots[46] += cinit(AL)
        if l == 1:
            slots[44] += mk('v_and_b32 v%d, 31, v0\nv_mul_u32_u24 v%d, 896, v%d\nv_lshrrev_b32 v%d, 5, v0\nv_lshl_add_u32 v%d, v%d, 4, v%d'
                            % (vPA, vPA, vPA, vPoll, vPA, vPoll, vPA))
        P.add(flat(slots[:56]))
        P.add(self.stamp('s4_E'))
        late = slots[56:]
        fin, fl = finish(AE, 0, False)
        xb0 = o['xbar']
        P.add(spread(late[:xb0], exch_write(AE), start=2, end=9))
        late[xb0] += (self.stamp('preX') if self.fine else []) + mk('s_waitcnt lgkmcnt(0)\ns_barrier') + (self.stamp('gotX') if self.fine else []) + exch_read()
        late[34] += (self.stamp('preY') if self.fine else []) + mk('s_barrier') + (self.stamp('gotY') if self.fine else [])
        late[44] += fl
        wl = exch_write(AL)
        if l == 1 and o['wb'] == 3:
            lw = P.newlabel('Lnowb')
            late[o['wbslot']] += [I('s_or_b32 s%d, s%d, s%d\ns_cmp_lg_u32 s%d, 0\ns_cbranch_scc1 %s\nbuffer_wbl2 sc1\n%s:' % (sT0, sM, sW, sT0, lw, lw), kind='block', cost=12)]
        for i in range(4):
            late[56 - nt + 2 + i] += [wl[2 + i]]
        P.add(spread(late[xb0:], fin, start=4, end=33 - xb0))
        P.add(self.stamp('s4_L'))
        P.add(wl[:2] + mk('s_waitcnt lgkmcnt(0)\ns_barrier') + exch_read())
        fin, fl = finish(AL, 1, True)
        P.add(fin + fl)
        P.add(self.stamp('x2_pub'))

    def build(self):
        P = self.P
        self.prologue()
        for l in range(2):
            self.layer = l
            self.s1(l)
            if self.stop == 's1_%d' % l:
                break
            self.kvx(l)
            if self.stop == 'o_%d' % l:
                break
            lnext = 'L_layer%d' % (l + 1)
            if l == 0:
                lsk = P.newlabel('Lskipmlp')
                P.add([I('s_cmp_ge_u32 s%d, 14\ns_cbranch_scc1 %s' % (sM, lsk), kind='block')])
                lp = P.newlabel('Lidle')
                t = [x.text for x in self.pa(28)] + ['s_mov_b32 s%d, %d' % (sT4, FXIN), lp + ':', 's_sleep %d' % self.o['isl'],
                                                     'buffer_load_dword v%d, v%d, %s, s%d offen sc1' % (vPoll, vPA, self.srd(SRD_CL), sT4),
                                                     's_add_u32 s%d, s%d, 1' % (sSpin, sSpin), 's_cmp_gt_u32 s%d, 0x40000' % sSpin, 's_cbranch_scc1 L_end',
                                                     's_waitcnt vmcnt(0)', 'v_cmp_ne_u32 vcc, s%d, v%d' % (sNonce, vPoll), 's_cbranch_vccnz %s' % lp,
                                                     's_sleep %d' % self.o['isl2']]
                self.ool.append('%s:\n%s\ns_waitcnt vmcnt(0) lgkmcnt(0)\n%s\ns_branch %s' % (lsk, self.idle_work(), '\n'.join(t), lnext))
            else:
                if self.o['wb'] in (1, 2):
                    lw, lp = P.newlabel('Lwb'), P.newlabel('Lwbp')
                    P.add([I('s_cmp_ge_u32 s%d, 14\ns_cbranch_scc1 %s' % (sM, lw), kind='block')])
                    t = [lw + ':']
                    if self.o['outt']:
                        lo = P.newlabel('Lot')
                        t += ['s_cmp_lg_u32 s%d, 15' % sM, 's_cbranch_scc1 %s' % lo, 'v_lshlrev_b32 v%d, 7, v0' % vT, 's_mov_b32 exec_hi, 0xffffff']
                        for i in range(4):
                            t += ['s_add_u32 s%d, s%d, %d' % (sT2, sX, i * 56 * 128), 'buffer_load_dword v%d, v%d, %s, s%d offen' % (vDummy, vT, self.srd(SRD_OUT), sT2)]
                        t += ['s_mov_b64 exec, -1', 's_waitcnt vmcnt(0)', lo + ':']
                    t += ['s_cmp_lg_u32 s%d, 14' % sM, 's_cbranch_scc1 L_fin', 's_cmp_lg_u32 s%d, 0' % sW, 's_cbranch_scc1 L_fin']
                    t += [x.text for x in self.pa(14, blocks=True)]
                    t += ['s_mov_b32 s%d, %d' % (sT4, FH + 512 * self.o['wbblk'] if self.o['wbblk'] >= 0 else FX1), 's_sleep %d' % self.o['wbsl']] + (['buffer_wbl2 sc1', 's_waitcnt vmcnt(0)'] if self.o['wb'] == 2 else []) + [lp + ':', 's_sleep 4',
                          'buffer_load_dword v%d, v%d, %s, s%d offen sc1' % (vPoll, vPA, self.srd(SRD_CL), sT4),
                          's_add_u32 s%d, s%d, 1' % (sSpin, sSpin), 's_cmp_gt_u32 s%d, 0x40000' % sSpin, 's_cbranch_scc1 L_end',
                          's_waitcnt vmcnt(0)', 'v_cmp_ne_u32 vcc, s%d, v%d' % (sNonce, vPoll), 's_cbranch_vccnz %s' % lp,
                          's_sleep %d' % self.o['wbs2'], 'buffer_wbl2 sc1', 's_waitcnt vmcnt(0)', 's_branch L_fin']
                    self.ool.append('\n'.join(t))
                else:
                    P.add([I('s_cmp_ge_u32 s%d, 14\ns_cbranch_scc1 L_fin' % sM, kind='block')])
            self.s2(l)
            if self.stop == 'x1_%d' % l:
                P.label(lnext)
                break
            self.mlp(l)
            P.label(lnext)
            if l == 0:
                P('s_add_u32 s%d, s%d, %d\ns_add_u32 s%d, s%d, %d' % (sKv, sKv, KVP_L, sKvMy, sKvMy, KVP_L))
            if self.stop == 'x2_%d' % l:
                break
        P.add([I('s_cmp_lg_u32 s2, 0\ns_cbranch_scc1 L_fin\ns_cmp_lg_u32 s%d, 0\ns_cbranch_scc1 L_fin' % sW, kind='block')])
        P('s_mov_b64 exec, 1\nbuffer_store_dword v%d, off, %s, 0 sc1\ns_mov_b64 exec, -1' % (vNonce, self.srd(SRD_WS)))
        if self.probe is not None:
            P.add(self.stamp('end'))
            P.add([I('s_waitcnt lgkmcnt(0)\ns_sub_u32 s94, s94, s96\ns_lshl_b32 s94, s94, 2\ns_add_u32 s94, s94, 10000\nL_pr:\ns_memrealtime s[98:99]\ns_waitcnt lgkmcnt(0)\n'
                     's_sub_u32 s98, s98, s96\ns_cmp_lt_u32 s98, s94\ns_cbranch_scc1 L_pr', kind='block')])
        P.label('L_fin')
        if self.stamps:
            P('s_lshl_b32 s%d, s2, 2\ns_add_u32 s%d, s%d, s%d\ns_lshl_b32 s%d, s%d, 8\ns_add_u32 s%d, s%d, %d' % (sT0, sT0, sT0, sW, sT0, sT0, sT0, sT0, WS_STAMP))
            P.add(self.stamp('end'))
            P('s_memrealtime s[%d:%d]\ns_waitcnt lgkmcnt(0)\nv_writelane_b32 v%d, s%d, 63' % (sStamp, sStamp + 1, vStamp, sStamp))
            P('v_writelane_b32 v%d, s%d, 61' % (vStamp, sSpin))
            P('v_lshlrev_b32 v%d, 2, v0\nbuffer_store_dword v%d, v%d, %s, s%d offen' % (vT, vStamp, vT, self.srd(SRD_WS), sT0))
        P.label('L_end')
        P('s_endpgm')
        body, L = finalize(P.L)
        self.final = L
        ool = '\n'.join('\n'.join(('    ' + t if not t.endswith(':') else t) for t in b.split('\n') if t.strip()) for b in self.ool)
        head = open('cdna_kernels/%s.s.ref' % KNAME[:-7]).read().split('\n')
        hdr = [h for h in head if h.startswith(';') and '@launch' not in h]
        txt = '\n'.join(hdr) + '\n; @launch grid=(256,1,1) block=(256,1,1) lds=%d\n' % LDS_BYTES + DOC.lstrip('\n')
        txt += '.amdgcn_target "amdgcn-amd-amdhsa--gfx950"\n.text\n.globl %s\n.p2align 8\n.type %s,@function\n%s:\n' % (KNAME, KNAME, KNAME)
        txt += body + ool + '\nL_code_end:\n'
        txt += '''.section .rodata,"a"
.p2align 6
.amdhsa_kernel %s
  .amdhsa_next_free_vgpr 512
  .amdhsa_next_free_sgpr 102
  .amdhsa_accum_offset 256
  .amdhsa_group_segment_fixed_size 0
  .amdhsa_kernarg_size 88
  .amdhsa_user_sgpr_count 2
  .amdhsa_user_sgpr_kernarg_segment_ptr 1
  .amdhsa_system_sgpr_workgroup_id_x 1
.end_amdhsa_kernel
''' % KNAME
        return txt


if __name__ == '__main__':
    import argparse
    ap = argparse.ArgumentParser()
    ap.add_argument('-o', default='k.s')
    ap.add_argument('--stop', default=None)
    ap.add_argument('--stamps', action='store_true')
    ap.add_argument('opts', nargs='*')
    A = ap.parse_args()
    opt = {k: (x if k in ('probe', 'light') else int(x)) for k, x in (t.split('=') for t in A.opts)}
    g = Gen(stop=A.stop, stamps=A.stamps, **opt)
    open(A.o, 'w').write(g.build())
    if A.stamps:
        open(A.o + '.stamps', 'w').write('\n'.join(g.stamp_names))
    n = {}
    for x in g.final:
        n[x.kind] = n.get(x.kind, 0) + 1
    nops = sum(x.states for x in g.final if x.op == 's_nop')
    print('instructions', n, 'nop states', nops)
```

```python
import sys, struct
from asmgen import *

KNAME = 'interleave_layers__linear_attn_block__mixer_channel_mlp__prompt_kernel'


def f32(x):
    return '0x%08x' % struct.unpack('<I', struct.pack('<f', x))[0]


LOG2E = 1.4426950408889634
LN2 = 0.6931471805599453
MF = 'v_mfma_f32_32x32x16_bf16'

WS_XCC = 0x8000
WS_STAMP = 0x10000
WS_KVP = 0x200000
KVP_CH = 9216
KVP_L = 0xA0000
WS_CL = 0x400000
LOFF = 0xD9000
O_OFF, X1_OFF, H_OFF, XIN_OFF, XST_OFF, FL_OFF = 0, 0x20000, 0x40000, 0xB0000, 0xD0000, 0xD8000
FO, FX1, FXIN, FH = FL_OFF, FL_OFF + 512, FL_OFF + 1024, FL_OFF + 1536

L_WQ = 0
L_Q = 57344
L_XB = 28672
L_EX = 86016
L_XS = 86016
L_WO = 114688
L_KVS = 143616
L_KVB = L_KVS + 16384
L_CS = L_KVB + 2048
L_B2 = L_CS + 768
LDS_BYTES = 163840
assert L_B2 + 512 <= LDS_BYTES

SRD_WQ, SRD_WO, SRD_W1, SRD_W2, SRD_X, SRD_OUT, SRD_B1, SRD_B2, SRD_CL, SRD_WS = range(4, 44, 4)
sC, sM, sW, sNonce, sSlow, sX, sSpin = 44, 45, 46, 47, 48, 49, 50
sT0, sT1, sT2, sT3, sT4, sT5 = 51, 52, 53, 54, 55, 56
sLn2, sXcc, sWi = 57, 58, 59
sN28, sHalf = 60, 62
sZm = 64
sXin, sD1 = 66, 67
sKA = 68
sEb, sLb, sC0, sC1, sHs, sFe = 68, 69, 70, 71, 72, 73
sBlk, sOst, sFo, sFoMy, sKv, sKvMy, sHE, sHL, sPE, sPL = 74, 75, 76, 77, 78, 79, 80, 81, 82, 83
sHst = 84
sRot = 85
sQ0, sQ1 = 86, 87
sFin, sRes = 28, 34
sTag = 22
sPm = 88
sStamp = 90
sPC = 92

vLane, vL16, vDummy, vTr, vNonce, vMean, vRl, vW1X, _w1x1, vPoll, vPA = range(0, 11)
vT = 11
vStamp = 15
vPoll2, vPoll3 = 15, 5
W2A = 0
W1A = 224
W1V = 176


def w1reg(k):
    return a(W1A + 4 * k, 4) if k < 8 else v(W1V + 4 * (k - 8), 4)


def w1half(k, hh):
    return a(W1A + 4 * k + 2 * hh, 2) if k < 8 else v(W1V + 4 * (k - 8) + 2 * hh, 2)


def flat(LL):
    return [x for L in LL for x in L]


def mfma(D, A, B, first=False):
    return mk('%s %s, %s, %s, %s' % (MF, v(D, 16), A, B, '0' if first else v(D, 16)))


DOC = """
;   cluster c = 16 workgroups that share 128 tokens (ids with equal id%8, i.e. normally one die); member m = head m.
;   and nothing is reused, so the result does not depend on the placement.  Readers always bypass L1 (sc1).
"""


class Gen:
    def __init__(self, stop=None, stamps=False, **opt):
        self.P = Prog()
        self.ool = []
        self.stop = stop
        self.stamps = stamps
        self.nstamp = 0
        self.stamp_names = []
        self.probe = opt.pop('probe', None)
        self.light = opt.pop('light', None)
        self.fine = bool(self.light or self.probe)
        if self.light is not None:
            self.light = self.light.split('+')
            assert len(self.light) <= 4
        self.seen = {}
        self.o = dict(kvdelay=8, cpf2=3, swlate=0, xmask=1, stf=7, poll2=0, psl=0, pdo=5, pdx=2, p1=1, pdi=0, s1pair=1, sta=13, stb=33, stc=48, isl=8, isl2=8, pollE=16, n3=4, st0=10, st1=23, stpos=1, x0=6, xstep=8, xlag=12, flagpos=8, gend=26, pollL=20, lateL=32, flag3=12, xbar=13, ntail=8, lead=16, look=6, pref=0, touch=1, codepf=1, rot=1, stnt=0, idlewq=0, reuse=1, npre=14, wqlate=84, pf0=1, w1q=4, w1pre=4, w1o=19, nxb1=12, pfslot=50, w2fill=4, w2u1=22, w2sp=6, npre0=9, flag30=4, nsh=17, sh0=48, shgap=6, f3u=23, peu=22, alias=1, flat=24, pf2=98, htk=0, wb=0, wbblk=3, wbsl=100, wbs2=0, wbslot=36, outf=0, outt=0, idlew2=11, woslot=41, tslot=46, latespan=14, strot=1, w1b2=70, look2=10, l1touch=0, xsc1=1, storder=0)
        self.o.update(opt)

    def srd(self, r):
        return s(r, 4)

    def stamp(self, name):
        if self.probe is not None:
            self.seen[name] = self.seen.get(name, 0) + 1
            if self.probe == '%s#%d' % (name, self.seen[name]):
                return [I('s_memrealtime s[94:95]', kind='block', states=1)]
            return []
        if not self.stamps:
            return []
        if self.light is not None:
            self.seen[name] = self.seen.get(name, 0) + 1
            key = '%s#%d' % (name, self.seen[name])
            if name == 'end':
                self.stamp_names.append('end')
                t = ['s_memtime s[88:89]', 's_waitcnt lgkmcnt(0) vmcnt(0)', 'v_writelane_b32 v%d, s98, 62' % vStamp]
                for i, r in enumerate([100] + [90 + 2 * j for j in range(len(self.stamp_names) - 2)] + [88]):
                    t.append('v_writelane_b32 v%d, s%d, %d' % (vStamp, r, i))
                return [I('\n'.join(t), kind='block', drain_lgkm=True)]
            if name != 'start' and key not in self.light:
                return []
            r = 100 if name == 'start' else 90 + 2 * (len(self.stamp_names) - 1)
            self.stamp_names.append(key if name != 'start' else name)
            return [I('s_memtime s[%d:%d]' % (r, r + 1), kind='block')]
        i = self.nstamp
        self.nstamp += 1
        self.stamp_names.append(name)
        t = 's_memtime s[%d:%d]\ns_waitcnt lgkmcnt(0)\nv_writelane_b32 v%d, s%d, %d' % (sStamp, sStamp + 1, vStamp, sStamp, i)
        return [I(t, kind='block', dst=[], src=[], drain_lgkm=True, states=3)]

    def stores(self, lines, last=0):
        insts = mk('\n'.join(lines))
        src = [r for x in insts for r in x.src]
        wide = [r for x in insts for r in x.wide]
        ls, lb = self.P.newlabel('Lslow'), self.P.newlabel('Lback')
        fl = ' nt' if self.layer == 1 and self.o['stf'] & last else ''
        txt = 's_cmp_lg_u32 s%d, 0\ns_cbranch_scc1 %s\n%s\n%s:' % (sSlow, ls, '\n'.join(l + fl for l in lines), lb)
        self.ool.append('%s:\n%s\ns_branch %s' % (ls, '\n'.join(l + ' sc1' for l in lines), lb))
        return [I(txt, kind='block', src=src, nvm=len(lines), wide=wide, states=1, cost=8 + 4 * len(lines))]

    def flag(self, toks, soff, off=0):
        st = self.stores(['buffer_store_dword v%d, off, %s, s%d offset:%d' % (vNonce, self.srd(SRD_CL), soff, off)])[0]
        st.text = 's_mov_b64 exec, 1\n' + st.text + '\ns_mov_b64 exec, -1'
        st.cost += 8
        return [wait_tok(*toks), st]

    def poll_issue(self, soff, delay=0):
        return (mk('s_sleep %d' % delay) if delay else []) + mk('buffer_load_dword v%d, v%d, %s, s%d offen sc1' % (vPoll, vPA, self.srd(SRD_CL), soff))

    def poll_check(self, soff, tag=False):
        ls, lb = self.P.newlabel('Lspin'), self.P.newlabel('Lgot')

        def cmp(r):
            if tag:
                return 'v_lshrrev_b32 v%d, 16, v%d\nv_cmp_ne_u32 vcc, s%d, v%d' % (r, r, sTag, r)
            return 'v_cmp_ne_u32 vcc, s%d, v%d' % (sNonce, r)
        ld = lambda r: 'buffer_load_dword v%d, v%d, %s, s%d offen sc1' % (r, vPA, self.srd(SRD_CL), soff)
        if self.o['poll2']:
            l1 = self.P.newlabel('Lsp')
            t = [ls + ':', ld(vPoll2), 's_sleep 2', l1 + ':', ld(vPoll3), 's_waitcnt vmcnt(1)', cmp(vPoll2), 's_cbranch_vccz %s' % lb,
                 ld(vPoll2), 's_add_u32 s%d, s%d, 1' % (sSpin, sSpin), 's_cmp_gt_u32 s%d, 0x40000' % sSpin, 's_cbranch_scc1 L_end',
                 's_waitcnt vmcnt(1)', cmp(vPoll3), 's_cbranch_vccnz %s' % l1, 's_branch %s' % lb]
        else:
            t = [ls + ':'] + (['s_sleep %d' % self.o['psl']] if self.o['psl'] else []) + [ld(vPoll), 's_add_u32 s%d, s%d, 1' % (sSpin, sSpin), 's_cmp_gt_u32 s%d, 0x40000' % sSpin, 's_cbranch_scc1 L_end',
                 's_waitcnt vmcnt(0)', cmp(vPoll), 's_cbranch_vccnz %s' % ls, 's_branch %s' % lb]
        self.ool.append('\n'.join(t))
        return [I(cmp(vPoll) + '\ns_cbranch_vccnz %s\n%s:' % (ls, lb), kind='block', src=[('v', vPoll)], dst=[('x', 'vcc'), ('v', vPoll)], states=2, cost=8)]

    def pa(self, n, blocks=False, reg=vPA):
        L = 'v_and_b32 v%d, %d, v0\n' % (reg, 15 if n <= 16 else 31)
        if n not in (16, 32):
            L += 'v_min_u32 v%d, %d, v%d\n' % (reg, n - 1, reg)
        L += 'v_lshlrev_b32 v%d, 2, v%d\n' % (reg, reg)
        if blocks:
            L += 'v_lshrrev_b32 v%d, 4, v0\nv_lshl_add_u32 v%d, v%d, 7, v%d' % (vT + 3, reg, vT + 3, reg)
        return mk(L)

    def trbase(self, dst, RS, kh, add=0, xor16=None):
        t = vT
        L = ['v_lshrrev_b32 v%d, 5, v%d' % (dst, vLane),
             'v_mul_u32_u24 v%d, %d, v%d' % (dst, kh, dst),
             'v_bfe_u32 v%d, v%d, 2, 2' % (t, vLane),
             'v_add_u32 v%d, v%d, v%d' % (dst, dst, t),
             'v_mul_u32_u24 v%d, %d, v%d' % (dst, RS, dst),
             'v_bfe_u32 v%d, v%d, 4, 1' % (t, vLane)]
        if xor16 is not None:
            L.append('v_xor_b32 v%d, s%d, v%d' % (t, xor16, t))
        L += ['v_lshl_add_u32 v%d, v%d, 5, v%d' % (dst, t, dst),
              'v_and_b32 v%d, 3, v%d' % (t, vLane),
              'v_lshl_add_u32 v%d, v%d, 3, v%d' % (dst, t, dst)]
        if add:
            L.append('v_add_u32 v%d, %d, v%d' % (dst, add, dst))
        return mk('\n'.join(L))

    def frag_loads(self, dsts, srd, sbase, const0, stride=1024, flags='', st=sT0):
        out = []
        cur = None
        for i, d in enumerate(dsts):
            off = const0 + i * stride
            grp = []
            if cur is None or not (0 <= off - cur <= 4095):
                cur = off
                grp += mk('s_add_u32 s%d, s%d, %d' % (st, sbase, off))
            grp += mk('buffer_load_dwordx4 %s, v%d, %s, s%d offen offset:%d %s' % (d, vL16, self.srd(srd), st, off - cur, flags))
            out.append(grp)
        return out

    def stats_finish(self, acc, double_ln):
        t1, t2 = vT + 1, vT + 2
        L = ['v_mov_b32 v%d, v%d' % (t1, acc),
             'v_mov_b32 v%d, v%d' % (vMean, acc),
             'v_permlane32_swap_b32 v%d, v%d' % (vMean, t1),
             'v_mul_f32 v%d, %s, v%d' % (vMean, f32(1.0 / 448), vMean),
             'v_mul_f32 v%d, %s, v%d' % (t1, f32(1.0 / 448), t1),
             'v_fma_f32 v%d, -v%d, v%d, v%d' % (t1, vMean, vMean, t1),
             'v_max_f32 v%d, 0, v%d' % (t1, t1),
             'v_add_f32 v%d, %s, v%d' % (t2, f32(1e-5), t1),
             'v_rsq_f32 v%d, v%d' % (vRl, t2)]
        if double_ln:
            L += ['v_mul_f32 v%d, v%d, v%d' % (t2, vRl, vRl),
                  'v_fmaak_f32 v%d, v%d, v%d, %s' % (t1, t1, t2, f32(1e-5)),
                  'v_rsq_f32 v%d, v%d' % (t1, t1),
                  'v_mul_f32 v%d, v%d, v%d' % (vRl, vRl, t1)]
        else:
            L += ['v_mul_f32 v%d, %s, v%d' % (vRl, f32(LOG2E), vRl)]
        return mk('\n'.join(L))

    def split_act(self, d0, val, t):
        return mk('\n'.join([
            'v_cvt_pk_bf16_f32 v%d, v%d, v%d' % (d0 + 1, val, val),
            'v_and_b32 v%d, 0xffff0000, v%d' % (t, d0 + 1),
            'v_sub_f32 v%d, v%d, v%d' % (t, val, t),
            'v_cvt_pk_bf16_f32 v%d, v%d, v%d' % (d0, val, t),
            'v_and_b32 v%d, 0xffff, v%d' % (d0 + 1, d0 + 1),
            'v_cndmask_b32 v%d, v%d, 0, s[%d:%d]' % (d0 + 1, d0 + 1, sHalf, sHalf + 1)]))

    def split_w(self, d0, val, t):
        return mk('\n'.join([
            'v_cvt_pk_bf16_f32 v%d, v%d, v%d' % (d0, val, val),
            'v_and_b32 v%d, 0xffff0000, v%d' % (t, d0),
            'v_sub_f32 v%d, v%d, v%d' % (t, val, t),
            'v_cvt_pk_bf16_f32 v%d, v%d, 0' % (d0 + 1, t)]))

    def phi8(self, r0, R, T, eps):
        L = ['v_pk_mul_f32 %s, %s, %s' % (v(r0 + i, 2), v(r0 + i, 2), R(i)) for i in range(0, 8, 2)]
        for i in range(8):
            L += ['v_exp_f32 v%d, v%d clamp' % (T + i, r0 + i), 'v_max_f32 v%d, 0, v%d' % (r0 + i, r0 + i)]
        L += ['v_pk_fma_f32 %s, %s, s[%d:%d], %s op_sel:[0,1,0] op_sel_hi:[1,1,1]' % (v(r0 + i, 2), v(r0 + i, 2), sLn2 - 1, sLn2, v(T + i, 2)) for i in range(0, 8, 2)]
        L += ['v_pk_add_f32 %s, %s, %s op_sel_hi:[1,0]' % (v(r0 + i, 2), v(r0 + i, 2), v(eps, 2)) for i in range(0, 8, 2)]
        return mk('\n'.join(L))

    def pack(self, dst, src, n):
        return mk('\n'.join('v_cvt_pk_bf16_f32 v%d, v%d, v%d' % (dst + i, src + 2 * i, src + 2 * i + 1) for i in range(n)))

    def unpack(self, dst, src, n):
        L = []
        for i in reversed(range(n)):
            L.append('v_and_b32 v%d, 0xffff0000, v%d' % (dst + 2 * i + 1, src + i))
            L.append('v_lshlrev_b32 v%d, 16, v%d' % (dst + 2 * i, src + i))
        return mk('\n'.join(L))

    def dots(self, regs, acc, ones, first):
        L = []
        for i, r in enumerate(regs):
            z = first and i == 0
            L.append('v_dot2_f32_bf16 v%d, v%d, v%d, %s' % (acc, r, ones, '0' if z else 'v%d' % acc))
            L.append('v_dot2_f32_bf16 v%d, v%d, v%d, %s' % (acc + 1, r, r, '0' if z else 'v%d' % (acc + 1)))
        return mk('\n'.join(L))

    def dots_end(self, acc):
        return mk('v_permlane32_swap_b32 v%d, v%d\nv_add_f32 v%d, v%d, v%d' % (acc, acc + 1, acc, acc, acc + 1))

    def row_stats(self, src, n, acc, ones):
        return mk('v_mov_b32 v%d, 0x3f803f80' % ones) + self.dots(range(src, src + n), acc, ones, True) + self.dots_end(acc)

    def kv_lane_addr(self, d, t, u, gather):
        L = []
        if gather:
            L += ['v_and_b32 v%d, 31, v0' % t, 'v_lshrrev_b32 v%d, 5, v0' % d]
        else:
            L += ['v_lshrrev_b32 v%d, 5, v0' % t, 'v_and_b32 v%d, 15, v0' % u, 'v_lshl_add_u32 v%d, v%d, 1, v%d' % (t, u, t), 'v_bfe_u32 v%d, v0, 4, 1' % d]
        L += ['v_lshrrev_b32 v%d, 3, v%d' % (u, t), 'v_sub_u32 v%d, v%d, v%d' % (u, t, u)]
        if not gather:
            L += ['v_and_b32 v%d, 7, v%d' % (t, t), 'v_cmp_eq_u32 vcc, 7, v%d' % t, 'v_cndmask_b32 v%d, v%d, 31, vcc' % (u, u)]
        L += ['v_lshl_add_u32 v%d, v%d, 5, v%d' % (d, d, u)]
        sh, qs, base = (4, 10, L_KVS) if gather else (5, 3, L_KVB)
        L += ['s_lshl_b32 s%d, s%d, %d' % (sT2, sW, qs), 'v_lshlrev_b32 v%d, %d, v%d' % (d, sh, d), 'v_add_u32 v%d, s%d, v%d' % (d, sT2, d)]
        L += ['v_and_b32 v%d, 1, v%d' % (t, u), 'v_lshlrev_b32 v%d, %d, v%d' % (t, 5 + sh, t), 'v_lshrrev_b32 v%d, 1, v%d' % (u, u)]
        L += ['v_cmp_gt_u32 vcc, 4, v%d' % u]
        L += ['v_lshl_add_u32 v%d, v%d, %d, v%d' % (t, u, qs, t), 'v_add_u32 v%d, %d, v%d' % (t, 28 << sh, t)]
        L += ['s_and_b64 vcc, vcc, s[%d:%d]' % ((sZm, sZm + 1) if gather else (sPm, sPm + 1)), 'v_cndmask_b32 v%d, v%d, v%d, vcc' % (d, d, t),
              'v_add_u32 v%d, %d, v%d' % (d, base, d)]
        return mk('\n'.join(L))

    def wq_dma(self, va, q):
        if q:
            ad = 'v_lshrrev_b32 v%d, 2, v0\nv_mul_u32_u24 v%d, 2688, v%d\nv_and_b32 v%d, 3, v0\nv_lshl_add_u32 v%d, v%d, 4, v%d' % (va, va, va, vT, va, vT, va)
        else:
            ad = ('v_lshrrev_b32 v%d, 3, v0\nv_mul_u32_u24 v%d, 2688, v%d\nv_and_b32 v%d, 3, v0\nv_lshl_add_u32 v%d, v%d, 4, v%d\n'
                  'v_lshrrev_b32 v%d, 2, v0\nv_xor_b32 v%d, v%d, v0\nv_bfe_u32 v%d, v%d, 2, 1\nv_mul_u32_u24 v%d, 896, v%d\nv_add3_u32 v%d, v%d, v%d, s%d'
                  % (va, va, va, vT, va, vT, va, vT, vT, vT, vT, vT, vT, vT, va, va, vT, sQ0))
        rows = 16 if q else 8
        pre = mk('s_mul_i32 s%d, s%d, 56\ns_add_u32 s%d, s%d, 896' % (sQ1, sM, sQ0, sQ1)) + mk(ad)
        if q:
            pre += mk('v_add_u32 v%d, s%d, v%d' % (va, sQ1, va))
        pre += mk('s_mul_i32 s%d, s%d, %d\ns_lshl_b32 s%d, s%d, 10' % (sRot, sW, rows * 2688, sQ1, sW))
        out = []
        for t in range(7 if q else 14):
            out.append(mk('s_add_u32 m0, s%d, %d\ns_add_u32 s%d, s%d, %d\nbuffer_load_dwordx4 v%d, %s, s%d offen lds'
                          % (sQ1, (L_Q if q else L_WQ) + 4096 * t, sQ0, sRot, 4 * t * rows * 2688, va, self.srd(SRD_WQ), sQ0)))
        return pre, out

    def touch(self, items, va):
        if not self.o['touch']:
            return []
        txt = ['v_lshlrev_b32 v%d, 7, v0' % va]
        cur = None
        n = 0
        for nl, srd, sg, c in items:
            if nl != cur:
                txt.append('s_mov_b64 exec, 0x%x' % ((1 << nl) - 1))
                cur = nl
            txt.append('s_add_u32 s%d, s%d, %d' % (sT2, sg, c) if sg is not None else 's_mov_b32 s%d, %d' % (sT2, c))
            txt.append('buffer_load_dword v%d, v%d, %s, s%d offen sc1' % (vDummy, va, self.srd(srd), sT2))
            n += 1
        txt.append('s_mov_b64 exec, -1')
        return [I('\n'.join(txt), kind='block', nvm=n, dst=[('v', va)], src=[('v', 0)], states=1, cost=12 * n)]

    def touch_attn(self, lo, va):
        pre = mk('s_lshr_b32 s%d, s%d, 2\ns_lshl_b32 s%d, s%d, 10\ns_add_u32 s%d, s%d, s%d\ns_add_u32 s%d, s%d, %d\ns_add_u32 s%d, s%d, %d\ns_mul_i32 s%d, s%d, 896'
                 % (sT1, sM, sT1, sT1, sT1, sT1, sBlk, sT1, sT1, X1_OFF + 28672, sT3, sOst, X1_OFF, sT0, sW))
        pre = [I('\n'.join(x.text for x in pre) + '\ns_cmp_lt_u32 s%d, 14\ns_cselect_b32 s%d, s%d, s%d\ns_cselect_b32 s%d, s%d, s%d'
                 % (sM, sT1, sT1, sOst, sT3, sT3, sOst), kind='block', cost=36)]
        return pre + self.touch([(16, SRD_CL, sOst, lo), (16, SRD_CL, sT3, lo), (8, SRD_CL, sT1, lo), (7, SRD_CL, sT0, lo + FL_OFF)], va)

    def prefetch(self, va, items):
        txt, n = ['v_lshlrev_b32 v%d, 7, v0' % va], 0
        for srd, per in items:
            for j in range(0, per, 64):
                nl = min(64, per - j)
                txt += ['s_mul_i32 s%d, s%d, %d' % (sT2, sWi, per * 128), 's_add_u32 s%d, s%d, %d' % (sT2, sT2, j * 128),
                        's_mov_b32 exec_lo, 0x%x' % (((1 << nl) - 1) & 0xffffffff), 's_mov_b32 exec_hi, 0x%x' % (((1 << nl) - 1) >> 32),
                        'buffer_load_dword v%d, v%d, %s, s%d offen' % (vDummy, va, self.srd(srd), sT2)]
                n += 1
        return [I('\n'.join(txt + ['s_mov_b64 exec, -1']), kind='block', nvm=n, src=[('v', 0)], dst=[('v', va)], cost=20 * n)]

    def idle_work(self):
        va = vT
        l = self.P.newlabel('Lnowarm')
        T = ['s_cmp_lg_u32 s%d, 0' % sSlow, 's_cbranch_scc1 %s' % l,
             'v_lshlrev_b32 v%d, 7, v0' % va,
             's_and_b32 s%d, s%d, 1' % (sT0, sM), 's_lshl_b32 s%d, s%d, 2' % (sT0, sT0), 's_add_u32 s%d, s%d, s%d' % (sT0, sT0, sW)]
        ld = lambda srd, fl: 'buffer_load_dword v%d, v%d, %s, s%d offen %s' % (vDummy, va, self.srd(srd), sT2, fl)
        nw2 = self.o['idlew2']
        if nw2:
            T += ['s_lshr_b32 s%d, s%d, 3' % (sT1, sC), 's_lshl_b32 s%d, s%d, 3' % (sT1, sT1), 's_add_u32 s%d, s%d, s%d' % (sT1, sT1, sT0),
                  's_lshl_b32 s%d, s%d, 13' % (sT2, sT1)]
            for i in range(nw2):
                T += [ld(SRD_W2, ''), 's_add_u32 s%d, s%d, 131072' % (sT2, sT2)]
        for i in range(2 * self.o['htk'] - (self.o['htk'] > 1), 7):
            T += ['s_lshl_b32 s%d, s%d, 13' % (sT2, sT0), 's_add_u32 s%d, s%d, %d' % (sT2, sT2, H_OFF + i * 65536), ld(SRD_CL, 'sc1')]
        if not self.o['alias']:
            for i in range(2):
                T += ['s_lshl_b32 s%d, s%d, 13' % (sT2, sT0), 's_add_u32 s%d, s%d, %d' % (sT2, sT2, XIN_OFF + i * 65536), ld(SRD_CL, 'sc1')]
        T += ['s_lshl_b32 s%d, s%d, 12' % (sT2, sT0), 's_add_u32 s%d, s%d, %d' % (sT2, sT2, XST_OFF), 's_mov_b32 exec_hi, 0', ld(SRD_CL, 'sc1'), 's_mov_b64 exec, -1']
        T += [l + ':']
        return '\n'.join(T)

    def prologue(self):
        P = self.P
        o = self.o
        P('s_cmp_ge_u32 s2, 256\ns_cbranch_scc1 L_end')
        if self.probe is not None:
            P.add([I('s_memrealtime s[96:97]\ns_memrealtime s[94:95]', kind='block', states=1)])
        P('s_load_dwordx16 s[%d:%d], s[0:1], 0' % (sKA, sKA + 15))
        P('s_load_dwordx4 s[%d:%d], s[0:1], 64' % (sKA + 16, sKA + 19))
        P('s_load_dwordx2 s[%d:%d], s[0:1], 80' % (sKA + 20, sKA + 21))
        P('v_lshrrev_b32 v%d, 6, v0\nv_and_b32 v0, 63, v0\nv_readfirstlane_b32 s%d, v%d' % (vT, sW, vT))
        P('s_lshr_b32 s%d, s2, 3\ns_lshl_b32 s%d, s%d, 2\ns_add_u32 s%d, s%d, s%d' % (sM, sWi, sM, sWi, sWi, sW))
        if o['codepf']:
            P.add([I('s_getpc_b64 s[%d:%d]\nL_pc:' % (sPC, sPC + 1), kind='block', dst=[], states=1)])
            P('s_lshl_b32 s%d, s%d, 9\nv_lshlrev_b32 v%d, 7, v0\nv_add_u32 v%d, s%d, v%d' % (sT0, sWi, vT, vT, sT0, vT))
            P.add([I('v_min_u32 v%d, L_code_end-L_pc-4, v%d\ns_mov_b64 exec, 15\nglobal_load_dword v%d, v%d, s[%d:%d]\ns_mov_b64 exec, -1'
                     % (vT, vT, vDummy, vT, sPC, sPC + 1), kind='block', dst=[('v', vT)], src=[('v', vT)], nvm=1)])
        P('s_and_b32 s%d, s2, 7\ns_lshr_b32 s%d, s%d, 4\ns_lshl_b32 s%d, s%d, 3\ns_add_u32 s%d, s%d, s%d\ns_and_b32 s%d, s%d, 15'
          % (sC, sT0, sM, sT0, sT0, sC, sC, sT0, sM, sM))
        P('v_lshlrev_b32 v%d, 4, v0' % vL16)
        if self.stamps:
            P('v_mov_b32 v%d, 0' % vStamp)
            P.add(self.stamp('start'))
            if self.light is not None:
                P('s_memrealtime s[98:99]\ns_waitcnt lgkmcnt(0)')
            else:
                assert not o['poll2']
                P('s_memrealtime s[%d:%d]\ns_waitcnt lgkmcnt(0)\nv_writelane_b32 v%d, s%d, 62' % (sStamp, sStamp + 1, vStamp, sStamp))
        P('s_lshl_b32 s%d, s%d, 2\ns_add_u32 s%d, s%d, s%d\ns_mul_i32 s%d, s%d, %d' % (sX, sC, sX, sX, sW, sX, sX, 32 * 896))
        vq, vxb, vxh, vxa, vrd = 160, 163, 164, 165, 167
        P('v_lshrrev_b32 v%d, 5, v0\nv_and_b32 v%d, 31, v0\nv_xor_b32 v%d, v%d, v%d\nv_lshlrev_b32 v%d, 4, v%d\nv_mul_u32_u24 v%d, 896, v%d'
          % (vxh, vT, vxb, vT, vxh, vxb, vxb, vxh, vxh))
        ka = sKA

        def mksrd(r, p, size):
            P('s_mov_b32 s%d, s%d\ns_mov_b32 s%d, s%d\ns_mov_b32 s%d, %d\ns_mov_b32 s%d, 0x20000' % (r, p, r + 1, p + 1, r + 2, size, r + 3))
        P('s_lshl_b32 s%d, s%d, 14\ns_add_u32 s%d, s%d, %d' % (sT5, sW, sT5, sT5, L_XS))
        mksrd(SRD_X, ka + 0, 2048 * 896)
        if self.probe:
            P.add(self.stamp('karg'))

        def xdma(half):
            out = []
            for i in range(16):
                if half:
                    g = mk('s_mov_b32 s%d, %d\nv_xad_u32 v%d, v%d, s%d, v%d' % (sT0, ((2 * i) & 15) << 4, vxa + (i & 1), vxb, sT0, vxh))
                    g += mk('s_add_u32 s%d, s%d, %d\ns_add_u32 m0, s%d, %d' % (sT1, sX, 2 * i * 896 + 512, sT5, 1024 * i))
                    ld = 'buffer_load_dwordx4 v%d, %s, s%d offen lds' % (vxa + (i & 1), self.srd(SRD_X), sT1)
                    if o['xmask']:
                        m = 0xff00ffff if i & 4 else 0x00ffffff
                        out.append(g + [I('s_mov_b32 exec_lo, 0x%x\ns_mov_b32 exec_hi, 0x%x\n%s\ns_mov_b64 exec, -1' % (m, m, ld), kind='block', nvm=1,
                                          src=[('v', vxa + (i & 1))], cost=20)])
                    else:
                        out.append(g + mk(ld))
                    continue
                g = mk('s_add_u32 s%d, s%d, %d\ns_and_b32 s%d, s%d, 15' % (sT4, sM, i, sT4, sT4) if o['rot'] else 's_mov_b32 s%d, %d' % (sT4, i))
                g += mk('s_lshl_b32 s%d, s%d, 5\ns_and_b32 s%d, s%d, 0xf0\nv_xad_u32 v%d, v%d, s%d, v%d' % (sT0, sT4, sT0, sT0, vxa + (i & 1), vxb, sT0, vxh))
                g += mk('s_mul_i32 s%d, s%d, 1792\ns_add_u32 s%d, s%d, s%d\ns_lshl_b32 s%d, s%d, 10\ns_add_u32 m0, s%d, s%d' % (sT1, sT4, sT1, sT1, sX, sT4, sT4, sT4, sT5))
                g += mk('buffer_load_dwordx4 v%d, %s, s%d offen lds' % (vxa + (i & 1), self.srd(SRD_X), sT1))
                out.append(g)
            return out
        mksrd(SRD_WQ, ka + 2, 448 * 2688)
        if o['pf0']:
            P('v_lshlrev_b32 v%d, 7, v0\ns_lshl_b32 s%d, s%d, 2\ns_add_u32 s%d, s%d, s%d\ns_mul_i32 s%d, s%d, %d\ns_mul_i32 s%d, s%d, %d\ns_add_u32 s%d, s%d, s%d\ns_mul_i32 s%d, s%d, 49'
              % (vxa, sT0, sM, sT0, sT0, sW, sT0, sT0, 14 * 128, sT1, sC, 128 * 896, sT0, sT0, sT1, sT1, sWi))
            if o['pf0'] == 1:
                P('v_add_u32 v%d, s%d, v0\nv_mul_u32_u24 v%d, 37450, v%d\nv_lshrrev_b32 v%d, 19, v%d\nv_mul_u32_u24 v%d, 896, v%d\nv_lshl_add_u32 v%d, v%d, 7, v%d'
                  % (vT, sT1, vxa + 1, vT, vxa + 1, vxa + 1, vxa + 1, vxa + 1, vxa + 1, vT, vxa + 1))
                P.add([I('s_mov_b64 exec, 0x3fff\nbuffer_load_dword v%d, v%d, %s, s%d offen\ns_mov_b32 exec_lo, -1\ns_mov_b32 exec_hi, 0x1ffff\n'
                         'buffer_load_dword v%d, v%d, %s, 0 offen offset:896\ns_mov_b64 exec, -1'
                         % (vDummy, vxa, self.srd(SRD_X), sT0, vDummy, vxa + 1, self.srd(SRD_WQ)), kind='block', nvm=2, src=[('v', vxa), ('v', vxa + 1)])])
            else:
                P.add([I('s_mov_b64 exec, 0x3fff\nbuffer_load_dword v%d, v%d, %s, s%d offen\ns_mov_b64 exec, -1' % (vDummy, vxa, self.srd(SRD_X), sT0),
                         kind='block', nvm=1, src=[('v', vxa)])])
                P.add(self.prefetch(vxa, [(SRD_WQ, 74)]))
        body = [x.text for x in xdma(0)[0]]
        body[0] = 's_add_u32 s%d, s%d, s%d' % (sT4, sM, sT2) if o['rot'] else 's_mov_b32 s%d, s%d' % (sT4, sT2)
        loop = I('\n'.join(['s_mov_b32 s%d, 0' % sT2, 'L_xa:'] + body[:-1] + ['s_add_u32 s%d, s%d, 1' % (sT2, sT2), 's_cmp_lt_u32 s%d, 16' % sT2, body[-1],
                                                                            's_cbranch_scc1 L_xa']), kind='block', nvm=16, src=[('v', vxb), ('v', vxh)] + regs_of(s(SRD_X, 4)), dst=[('v', vxa)])
        tA = tok(loop)
        P.add([loop])
        if self.probe:
            P.add(self.stamp('xiss'))
        P('s_load_dword s%d, s[%d:%d], 0' % (sNonce, ka + 20, ka + 21))
        mksrd(SRD_OUT, ka + 16, 2048 * 896)
        pre, wq = self.wq_dma(vq, False)
        self.tok_wq1, self.tok_wq = tok(wq[7][-1]), tok(wq[-1][-1])
        P.add(pre + flat(wq[:8]))
        mksrd(SRD_WO, ka + 4, 448 * 896)
        mksrd(SRD_W1, ka + 8, 448 * 3584)
        mksrd(SRD_B1, ka + 10, 3584)
        mksrd(SRD_W2, ka + 12, 1792 * 896)
        mksrd(SRD_B2, ka + 14, 896)
        mksrd(SRD_WS, ka + 20, WS_CL)
        P('s_lshl_b32 s%d, s%d, 21\ns_add_u32 s%d, s%d, %d' % (sT0, sC, sT0, sT0, WS_CL))
        P('s_add_u32 s%d, s%d, s%d\ns_addc_u32 s%d, s%d, 0\ns_mov_b32 s%d, 0x200000\ns_mov_b32 s%d, 0x20000'
          % (SRD_CL, ka + 20, sT0, SRD_CL + 1, ka + 21, SRD_CL + 2, SRD_CL + 3))
        P('s_mov_b32 s%d, %s\ns_mov_b32 s%d, 0\ns_mov_b32 s%d, -1' % (sLn2, f32(LN2), sHalf, sHalf + 1))
        P('s_mov_b32 s%d, 0x10000000\ns_mov_b32 s%d, 0x10000000\ns_mov_b32 s%d, 0' % (sN28, sN28 + 1, sSpin))
        P('s_getreg_b32 s%d, hwreg(HW_REG_XCC_ID, 0, 4)' % sXcc)
        P('s_and_b32 s%d, s%d, 1\ns_sub_u32 s%d, 3, s%d' % (sEb, sM, sLb, sEb))
        P('s_cmp_eq_u32 s%d, 3\ns_cselect_b32 s%d, -1, 0\ns_mov_b32 s%d, 0' % (sW, sZm + 1, sZm))
        P('s_lshr_b32 s%d, s%d, 3' % (sD1, sC) if o['strot'] else 's_mov_b32 s%d, 0' % sD1)
        c0 = -2.0 * 0.7978845608028654 * LOG2E
        P('s_mov_b32 s%d, %s\ns_mov_b32 s%d, %s' % (sC0, f32(c0), sC1, f32(c0 * 0.044715)))
        P('s_lshr_b32 s%d, s%d, 1\ns_lshl_b32 s%d, s%d, 2\ns_and_b32 s%d, s%d, 1\ns_lshl_b32 s%d, s%d, 1\ns_add_u32 s%d, s%d, s%d\ns_lshr_b32 s%d, s%d, 1\ns_add_u32 s%d, s%d, s%d'
          % (sFe, sM, sFe, sFe, sT0, sW, sT0, sT0, sFe, sFe, sT0, sT0, sW, sFe, sFe, sT0))
        P('s_lshl_b32 s%d, s%d, 15\ns_lshl_b32 s%d, s%d, 11\ns_add_u32 s%d, s%d, s%d' % (sBlk, sW, sOst, sM, sOst, sOst, sBlk))
        P('s_lshl_b32 s%d, s%d, 7\ns_add_u32 s%d, s%d, %d\ns_lshl_b32 s%d, s%d, 2\ns_add_u32 s%d, s%d, s%d' % (sFo, sW, sFo, sFo, FL_OFF, sT0, sM, sFoMy, sFo, sT0))
        P('s_lshl_b32 s%d, s%d, 2\ns_add_u32 s%d, s%d, s%d\ns_mul_i32 s%d, s%d, %d\ns_add_u32 s%d, s%d, %d' % (sT1, sM, sT1, sT1, sW, sKv, sT1, KVP_CH, sKv, sKv, WS_KVP))
        P('s_lshl_b32 s%d, s%d, 9\ns_add_u32 s%d, s%d, s%d' % (sKvMy, sC, sKvMy, sKvMy, sKv))
        P('s_lshl_b32 s%d, s%d, 11\ns_add_u32 s%d, s%d, %d' % (sHst, sT1, sHst, sHst, H_OFF))
        P('s_lshl_b32 s%d, s%d, 11\ns_add_u32 s%d, s%d, %d' % (sT1, sW, sT1, sT1, H_OFF))
        P('s_mul_i32 s%d, s%d, 114688\ns_add_u32 s%d, s%d, s%d\ns_mul_i32 s%d, s%d, 114688\ns_add_u32 s%d, s%d, s%d' % (sHE, sEb, sHE, sHE, sT1, sHL, sLb, sHL, sHL, sT1))
        P('s_lshl_b32 s%d, s%d, 9\ns_add_u32 s%d, s%d, s%d\ns_add_u32 s%d, s%d, %d' % (sPE, sEb, sPE, sPE, sFo, sPE, sPE, FH - FL_OFF))
        P('s_lshl_b32 s%d, s%d, 9\ns_add_u32 s%d, s%d, s%d\ns_add_u32 s%d, s%d, %d' % (sPL, sLb, sPL, sPL, sFo, sPL, sPL, FH - FL_OFF))
        self.xreg0 = xr = [16 + 4 * i if i < 20 else 176 + 4 * (i - 20) for i in range(28)]
        P('v_and_b32 v%d, 15, v0\nv_lshrrev_b32 v%d, 5, v0\nv_xor_b32 v%d, v%d, v%d\nv_lshlrev_b32 v%d, 4, v%d\nv_and_b32 v%d, 31, v0\nv_lshl_add_u32 v%d, v%d, 9, v%d\nv_add_u32 v%d, s%d, v%d'
          % (vT, vrd, vrd, vrd, vT, vrd, vrd, vT, vrd, vT, vrd, vrd, sT5, vrd))
        xrd = lambda k: mk('v_xor_b32 v%d, %d, v%d\nds_read_b128 %s, v%d' % (vrd + 1 + (k & 1), 32 * (k & 15), vrd, v(xr[k], 4), vrd + 1 + (k & 1)))
        vrs = vrd + 3
        P('v_and_b32 v%d, 15, v0\nv_lshlrev_b32 v%d, 4, v%d\nv_lshrrev_b32 v%d, 5, v0\nv_lshl_add_u32 v%d, v%d, 3, v%d\nv_and_b32 v%d, 31, v0\nv_lshl_add_u32 v%d, v%d, 9, v%d\nv_add_u32 v%d, s%d, v%d'
          % (vrs, vrs, vrs, vT, vrs, vT, vrs, vT, vrs, vT, vrs, vrs, sT5, vrs))
        P('s_and_b32 s%d, s%d, 7\ns_lshl_b32 s%d, s%d, 6\nv_xor_b32 v%d, s%d, v%d' % (sT0, sM, sT0, sT0, vrs, sT0, vrs))

        def resrd(half):
            l = P.newlabel('Lres')
            t = ['s_cmp_%s_u32 s%d, 8' % ('lt' if half else 'ge', sM), 's_cbranch_scc1 %s' % l]
            for g in range(4):
                t += ['v_xor_b32 v%d, %d, v%d' % (vrs + 1, 16 * g, vrs), 'ds_read_b64 %s, v%d' % (a(216 + 2 * g, 2), vrs + 1)]
            return [I('\n'.join(t + [l + ':']), kind='block', src=[('v', vrs)], dst=[('v', vrs + 1)])]
        P.add(self.stamp('issued'))
        P.add([wait_tok(tA)])
        P.add(self.stamp('xA'))
        for k in range(16):
            P.add(xrd(k))
        P.add(resrd(0))
        vS, vOne = 172, 174
        P('v_mov_b32 v%d, 0x3f803f80\ns_waitcnt lgkmcnt(0)' % vOne)
        xb = xdma(1)
        self.tok_xb = tok(xb[-1][-1])
        d = self.dots([xr[k] + i for k in range(16) for i in range(4)], vS, vOne, True)
        P.add(spread(xb[:o['nxb1']], d))
        self.late_dma = xb[o['nxb1']:] + wq[8:]
        self.late_rd = [xrd(k) for k in range(16, 28)] + [resrd(1)]
        self.late_dots = self.dots([xr[k] + i for k in range(16, 28) for i in range(4)], vS, vOne, False) + self.dots_end(vS)
        P('s_add_u32 s%d, s%d, 0x01010101' % (sNonce, sNonce))
        P('v_mov_b32 v%d, s%d' % (vNonce, sNonce))
        P('s_lshl_b32 s%d, s%d, 4\ns_add_u32 s%d, s%d, s%d\ns_lshl_b32 s%d, s%d, 7\ns_add_u32 s%d, s%d, %d'
          % (sT2, sC, sT2, sT2, sM, sT2, sT2, sT2, sT2, WS_XCC))
        P('s_add_u32 s%d, s%d, s%d\nv_mov_b32 v%d, s%d\ns_mov_b64 exec, 1' % (sT3, sNonce, sXcc, vT, sT3))
        P('buffer_store_dword v%d, off, %s, s%d sc1' % (vT, self.srd(SRD_WS), sT2))
        P('s_mov_b64 exec, -1')

    def s1(self, l):
        P = self.P
        o = self.o
        AK, AV, AQ, WB, SB = 96, 112, 128, 144, 160
        RLB, XE = SB, SB + 8
        NB = 4
        vS = 172 if l == 0 else vT + 2
        P.comment('==== layer %d : S1' % l)
        kh = 8 if l == 0 else 4
        vTrV, vTrQ, vCs = vT + 3, (vT + 2 if l == 0 else vDummy), vPA
        trkv = self.trbase(vTr, 128, kh, add=L_WQ) + mk('v_bfe_u32 v%d, v0, 3, 1\nv_lshl_add_u32 v%d, v%d, 6, v%d\nv_xor_b32 v%d, 64, v%d' % (vT, vTr, vT, vTr, vTrV, vTr))
        trq = self.trbase(vTrQ, 64, kh, add=L_Q)
        fin = self.stats_finish(vS, False)
        fin += mk('s_lshl_b32 s%d, s%d, 12\ns_add_u32 s%d, s%d, %d' % (sT4, sW, sT4, sT4, L_KVS))
        bounce = mk('v_and_b32 v%d, 31, v0\nv_lshl_add_u32 v%d, v%d, 2, s%d\nds_write_b32 v%d, v%d' % (vT + 1, vT + 1, vT + 1, sT4, vT + 1, vRl))
        fin += bounce
        fin += mk('v_sub_f32 v%d, 0, v%d' % (vMean, vMean)) + self.split_act(XE, vMean, vT)
        fin += mk('v_cndmask_b32 v%d, v%d, 0, s[%d:%d]\nv_mov_b32 v%d, 0\nv_mov_b32 v%d, 0' % (XE, XE, sHalf, sHalf + 1, XE + 2, XE + 3))
        if l == 0:
            xreg = self.xreg0
            P.add(trkv)
            P.add([wait_tok(self.tok_wq1)])
            P('s_barrier')
            P.add(self.stamp('wq_ready'))
            lds = []
        else:
            xreg = [16 + 4 * (i % 20) for i in range(28)]
            P.add(self.pa(28))
            P('s_add_u32 s%d, s%d, %d' % (sT4, sFo, FXIN - FL_OFF))
            P.add(self.poll_issue(sT4, o['pdi']))
            P('s_add_u32 s%d, s%d, s%d\ns_lshl_b32 s%d, s%d, 13' % (sT5, sBlk, sXin, sT3, sW))
            P.add(trkv + trq)
            lds = self.frag_loads([v(r, 4) for r in xreg], SRD_CL, sT5, 0, flags='sc1')
        nq = 0 if l == 0 else 8
        jobs = []
        for k in range(28):
            if l == 0 and k == 16:
                jobs += [(t, kk) for kk in range(7) for t in 'KV']
            jobs += [('k', k), ('v', k)] + ([('q', k)] if k < nq else [])
        jobs += [('k', 'e'), ('v', 'e')]
        nmain = len(jobs)
        jobs += [('q', k) for k in range(nq, 28)] + ([('q', 'e')] if l else [('Q', kk) for kk in range(7)])
        vo, vb, CSA = RLB, RLB + 4, 208

        def rd(j):
            t, k = jobs[j]
            b = WB + 4 * (j % NB)
            if k == 'e':
                return mk('ds_read_b64 %s, v%d offset:%d\nv_mov_b32 v%d, 0\nv_mov_b32 v%d, 0' % (v(b, 2), vCs, 256 * 'qkv'.index(t), b + 2, b + 3))
            base = {'q': vTrQ, 'k': vTr, 'v': vTrV, 'K': vb, 'V': vb + 1, 'Q': vTr}[t]
            rs = 64 if t in 'qQ' else 128
            return mk('ds_read_b64_tr_b16 %s, v%d offset:%d\nds_read_b64_tr_b16 %s, v%d offset:%d' % (v(b, 2), base, 16 * rs * k, v(b + 2, 2), base, 16 * rs * k + (32 // kh) * rs))
        for j in range(NB):
            P.add(rd(j))
        if l == 1:
            P.add(self.poll_check(sT4))
            P.add(self.stamp('x2_seen'))
            P.add(flat(lds[:o['look']]))
            P('s_add_u32 s%d, s%d, 1\nv_mov_b32 v%d, s%d' % (sNonce, sNonce, vNonce, sNonce))
        P('v_and_b32 v%d, 31, v0\nv_lshlrev_b32 v%d, 3, v%d\nv_add_u32 v%d, %d, v%d' % (vCs, vCs, vCs, vCs, L_CS, vCs))
        slots = []
        for j, (t, k) in enumerate(jobs):
            w = v(WB + 4 * (j % NB), 4)
            if t.isupper():
                sl = mfma(CSA + 16 * (t == 'V'), v(CSA + 16 if t == 'Q' else vo, 4), w, k == 0)
            else:
                x = v(XE if k == 'e' else xreg[k], 4)
                A, B = (w, x) if t == 'q' else (x, w)
                sl = mfma({'q': AQ, 'k': AK, 'v': AV}[t], A, B, k == 0)
            if l == 0 and j == 32 - NB:
                sl += self.late_dots + [wait_tok(self.tok_wq)] + mk('s_waitcnt lgkmcnt(0)\ns_barrier') + (self.stamp('bar2') if self.fine else [])
                sl += mk('s_mul_i32 s%d, s%d, %d\nv_add_u32 v%d, s%d, v%d\nv_add_u32 v%d, s%d, v%d' % (sT0, sW, 7 * 2048, vb, sT0, vTr, vb + 1, sT0, vTrV))
            if j % 2 == 0 and j + 1 < len(jobs) and j + 1 != nmain and o['s1pair']:
                also_waits_for(sl[0], v(WB + 4 * ((j + 1) % NB), 4))
            if j + NB < len(jobs) and not (j < nmain <= j + NB):
                sl += rd(j + NB)
            slots.append(sl)
        if l == 0:
            n = len(self.late_dma)
            for i, g in enumerate(self.late_dma):
                slots[(i * o['latespan']) // n] += g
            r0 = 32 - NB - 7
            slots[r0] += [wait_tok(self.tok_xb)]
            for i, g in enumerate(self.late_rd):
                slots[r0 + i // 2] += g
            slots[29] += mk('\n'.join('v_mov_b32 v%d, 0x3f803f80' % (vo + i) for i in range(4)))
            for i in range(0, len(fin), 4):
                slots[30 + i // 4] += fin[i:i + 4]
            pre, qd = self.wq_dma(175, True)
            self.tok_q = tok(qd[-1][-1])
            for i, g in enumerate([pre] + qd):
                slots[37 + i] += g
            slots[o['tslot']] += self.prefetch(vT, [(SRD_WO, 25)]) + self.touch_attn(0, vT)
            slots[47] += mk('v_and_b32 v%d, 31, v0\nv_lshlrev_b32 v%d, 2, v%d\ns_lshl_b32 s%d, s%d, 8\nv_add_u32 v%d, %d, v%d\nv_add_u32 v%d, s%d, v%d'
                            % (vb, vb, vb, sT0, sW, vb, L_KVB, vb, vb + 1, sT0, vb))
            slots[48] += mk('\n'.join('ds_write_b32 v%d, v%d offset:%d' % (vb + 1, CSA + 16 * t, 128 * t) for t in range(2)))
            slots[50] += mk('s_waitcnt lgkmcnt(0)\ns_barrier')
            for t in range(2):
                r = RLB
                slots[50 + 5 * t] += mk('\n'.join('ds_read_b32 v%d, v%d offset:%d' % (r + ww, vb, 256 * ww + 128 * t) for ww in range(4)))
                slots[53 + 5 * t] += mk('v_add_f32 v%d, v%d, v%d\nv_add_f32 v%d, v%d, v%d\nv_add_f32 v%d, v%d, v%d' % (r, r, r + 1, r + 2, r + 2, r + 3, r, r, r + 2))
                slots[54 + 5 * t] += self.split_w(r + 2, r, r + 1) + mk('ds_write_b64 v%d, %s offset:%d' % (vCs, v(r + 2, 2), 256 * (t + 1)))
        else:
            n = o['look']
            for j in range(0, nmain, 2):
                if n < 28:
                    k_free = n - 20
                    assert k_free < 0 or j >= jobs.index(('q', k_free))
                    slots[j] += lds[n]
                    n += 1
            st = self.frag_loads([v(SB + 4 * (i % 4), 4) for i in range(7)], SRD_CL, sT3, XST_OFF, st=sT1, flags='sc1')
            a0, a1 = o['sta'], o['stb']
            for i in range(4):
                slots[a0 + 2 * i] += st[i]
            ex = []
            for i in range(1, 16):
                ex += mk('v_add_f32 v%d, v%d, v%d' % (vS, vS if i > 1 else SB, SB + i))
            for i in range(0, 15, 2):
                slots[a1 - 8 + i // 2] += ex[i:i + 2]
            for i in range(3):
                slots[a1 + 2 * i] += st[4 + i]
            ex = flat(mk('v_add_f32 v%d, v%d, v%d' % (vS, vS, SB + i)) for i in range(12)) + fin
            e0 = o['stc']
            per = -(-len(ex) // (61 - e0))
            for i in range(61 - e0):
                slots[e0 + i] += ex[i * per:(i + 1) * per]
        RB = [WB + 4 * ((nmain - 4 + g) % NB) for g in range(4)]
        vEps = vT + 1
        slots[nmain - 5] += mk('v_lshrrev_b32 v%d, 5, v0\nv_lshl_add_u32 v%d, v%d, 4, s%d' % (vT + 2, vT + 2, vT + 2, sT4))
        for g in range(4):
            slots[nmain - 4 + g] += mk('ds_read_b128 %s, v%d offset:%d' % (v(RB[g], 4), vT + 2, 32 * g))
        slots[nmain - 1] += mk('v_mov_b32 v%d, 0x3f803f80\nv_add_u32 v%d, s%d, v%d\nv_mov_b32 v%d, %s' % (vPoll, vT, sT4, vL16, vEps, f32(1e-6)))
        vG = SB + 12
        ga = self.kv_lane_addr(vG, vG + 1, vG + 2, gather=True)
        for i in range(0, len(ga), 3):
            slots[(o['stb'] + 1 if l else 60) + i // 3] += ga[i:i + 3]
        P.add(flat(slots[:nmain]))
        P.add(self.stamp('s1_kv_mfma'))
        DK = WB
        for hf in range(2):
            R = lambda i: v(RB[2 * hf + i // 4] + i % 4, 2)
            P.add(self.phi8(AK + 8 * hf, R, RLB, vEps) + self.pack(AK + 4 * hf, AK + 8 * hf, 4))
            P.add(flat(mk('v_pk_mul_f32 %s, %s, %s' % (v(AV + 8 * hf + i, 2), v(AV + 8 * hf + i, 2), R(i))) for i in range(0, 8, 2)))
            P.add(self.pack(AV + 4 * hf, AV + 8 * hf, 4))
            for i in range(4):
                P('v_cndmask_b32 v%d, v%d, v%d, s[%d:%d]' % (AV + 4 * hf + i, AV + 4 * hf + i, vPoll, sN28, sN28 + 1))
        P.add(mfma(DK, v(AK, 4), v(AV, 4), True) + mfma(DK, v(AK + 4, 4), v(AV + 4, 4)))
        P('s_mov_b32 s%d, 0x80808080\ns_mov_b32 s%d, 0x80808080' % (sT0 + 1, sT0 + 2))
        for q in range(4):
            P('ds_write_b128 v%d, %s offset:%d' % (vT, v(DK + 4 * q, 4), 1024 * q))
        P('v_lshlrev_b32 v%d, 3, v0\ns_waitcnt lgkmcnt(0)\ns_barrier' % vT)
        for ww in range(4):
            P('ds_read_b128 %s, v%d offset:%d' % (v(AK + 4 * ww, 4), vG, 4096 * ww))
        if l == 1:
            for j in range(nmain, nmain + NB):
                P.add(rd(j))
        for x, y in ((AK, AK + 4), (AK + 8, AK + 12), (AK, AK + 8)):
            for i in (0, 2):
                P('v_pk_add_f32 %s, %s, %s' % (v(x + i, 2), v(x + i, 2), v(y + i, 2)))
        P.add(self.pack(AK, AK, 2))
        for i in range(2):
            P('v_cndmask_b32 v%d, v%d, v%d, s[%d:%d]' % (AK + i, AK + i, vNonce, sT0 + 1, sT0 + 2))
        P('buffer_store_dwordx2 %s, v%d, %s, s%d offen sc1' % (v(AK, 2), vT, self.srd(SRD_WS), sKvMy))
        P.add(self.stamp('kv_pub'))
        PQ = self.PQ = 104

        def qepi():
            L = []
            for hf in range(2):
                L += self.phi8(AQ + 8 * hf, lambda i: v(vRl, 2) + ' op_sel_hi:[1,0]', 48, vEps) + self.pack(PQ + 4 * hf, AQ + 8 * hf, 4)
            for i in (6, 7):
                L += mk('v_cndmask_b32 v%d, v%d, 0, s[%d:%d]' % (PQ + i, PQ + i, sHalf, sHalf + 1))
            return L
        if l == 0:
            P.add(trq + mk('\n'.join('v_mov_b32 v%d, 0x3f803f80' % (CSA + 16 + i) for i in range(4))))
            P('s_mul_i32 s%d, s%d, %d\nv_add_u32 v%d, s%d, v%d' % (sT0, sW, 7 * 1024, vTr, sT0, vTrQ))
            pre = [wait_tok(self.tok_q)] + mk('s_barrier') + flat(rd(j) for j in range(nmain, nmain + NB))
            va = CSA + 20
            post = mk('v_and_b32 v%d, 31, v0\nv_lshlrev_b32 v%d, 2, v%d\nv_add_u32 v%d, %d, v%d\ns_lshl_b32 s%d, s%d, 7\nv_add_u32 v%d, s%d, v%d\nds_write_b32 v%d, v%d'
                      % (va, va, va, va, L_KVS, va, sT0, sW, va + 1, sT0, va, va + 1, CSA))

            def qfin():
                L = mk('\n'.join('ds_read_b32 v%d, v%d offset:%d' % (WB + 4 + ww, va, 128 * ww) for ww in range(4)))
                L += mk('v_add_f32 v%d, v%d, v%d\nv_add_f32 v%d, v%d, v%d\nv_add_f32 v%d, v%d, v%d' % (WB + 4, WB + 4, WB + 5, WB + 6, WB + 6, WB + 7, WB + 4, WB + 4, WB + 6))
                L += self.split_w(WB, WB + 4, WB + 5) + mk('v_mov_b32 v%d, 0\nv_mov_b32 v%d, 0\nds_write_b64 v%d, %s' % (WB + 2, WB + 3, va + 2, v(WB, 2)))
                return L + mfma(AQ, v(WB, 4), v(XE, 4)) + qepi()
            post += mk('v_mov_b32 v%d, v%d' % (va + 2, vCs))
            self.staging(pre, slots[nmain:], post, qfin)
        else:
            P.add(spread(slots[nmain:], self.kvx_pre(1)))
            P.add(qepi())

    PARK = 140

    def wo_dma(self, vwo):
        wo = [mk('v_lshrrev_b32 v%d, 2, v0\nv_mul_u32_u24 v%d, 896, v%d\nv_and_b32 v%d, 3, v0\nv_lshl_add_u32 v%d, v%d, 4, v%d\ns_lshl_b32 s%d, s%d, 6\nv_add_u32 v%d, s%d, v%d'
                 % (vwo, vwo, vwo, vT, vwo, vT, vwo, sQ0, sM, vwo, sQ0, vwo))
              + mk('s_mul_i32 s%d, s%d, %d\ns_lshl_b32 s%d, s%d, 10\ns_add_u32 s%d, s%d, %d' % (sQ1, sW, 16 * 896, sT3, sW, sT3, sT3, L_WO))]
        for t in range(7):
            wo.append(mk('s_add_u32 m0, s%d, %d\ns_add_u32 s%d, s%d, %d\nbuffer_load_dwordx4 v%d, %s, s%d offen lds' % (sT3, 4096 * t, sQ0, sQ1, t * 64 * 896, vwo, self.srd(SRD_WO), sQ0)))
        last = I('s_mov_b32 s%d, %d\ns_mov_b32 m0, %d\ns_mov_b64 exec, 0xffff\nbuffer_load_dwordx4 v%d, %s, s%d offen lds\ns_mov_b64 exec, -1'
                 % (sQ0, 448 * 896, L_WO + 28672, vwo, self.srd(SRD_WO), sQ0), kind='block', nvm=1, src=[('v', vwo)])
        self.tok_wo = tok(last)
        return wo + [[last]]

    def staging(self, qpre, qslots, qpost, qepi):
        P = self.P
        lskip, ljoin = P.newlabel('Lnostage'), P.newlabel('Lstaged')
        v1a, t0, t1, vp, vb, vb2 = 112, 113, 114, 115, 116, 168
        P('s_cmp_lt_u32 s%d, 14\ns_cselect_b32 s%d, s%d, 0' % (sM, SRD_W1 + 2, SRD_W1 + 2))
        P('v_lshrrev_b32 v%d, 2, v0\nv_mul_u32_u24 v%d, 3584, v%d\nv_and_b32 v%d, 3, v0\nv_lshl_add_u32 v%d, v%d, 4, v%d'
          % (v1a, v1a, v1a, vT, v1a, vT, v1a))
        P('s_lshl_b32 s%d, s%d, 2\ns_add_u32 s%d, s%d, s%d\ns_lshl_b32 s%d, s%d, 6\nv_add_u32 v%d, s%d, v%d' % (sT5, sM, sT5, sT5, sW, sT5, sT5, v1a, sT5, v1a))
        P('s_mul_i32 s%d, s%d, 14336\ns_add_u32 s%d, s%d, %d\ns_mul_i32 s%d, s%d, 21504\ns_mul_i32 s%d, s%d, %d' % (sT3, sW, sT3, sT3, L_EX, sQ1, sW, sWi, sD1, 14 * 16 * 3584))

        def issue(k):
            g = mk('s_add_u32 m0, s%d, %d' % ((sT3, 1024 * k) if k < 14 else (sQ1, 1024 * (k - 14))))
            g += mk('s_add_u32 s%d, s%d, %d' % (sQ0, sWi, k * 16 * 3584) if k < 14 else 's_sub_u32 s%d, %d, s%d' % (sQ0, k * 16 * 3584, sWi))
            g += mk('buffer_load_dwordx4 v%d, %s, s%d offen lds' % (v1a, self.srd(SRD_W1), sQ0))
            return g
        dm = [issue(k) for k in range(28)]
        tk = [tok(g[-1]) for g in dm]
        park = mk('\n'.join('v_accvgpr_read_b32 v%d, a%d' % (160 + i, 216 + i) for i in range(8)))
        park += mk('v_add_u32 v%d, s%d, v%d' % (vp, sQ1, vL16))
        park += flat(mk('ds_read_b128 %s, v%d offset:%d' % (a(self.PARK + 4 * i, 4), vp, 1024 * i)) for i in range(21))
        ht = self.touch([(16, SRD_CL, sHst, b * 114688) for b in range(self.o['htk'])], vT) if self.o['htk'] else []
        P.add(flat(dm[:7]) + qpre + ht + (self.stamp('q_go') if self.fine else []))
        for i, g in enumerate(dm[7:14]):
            qslots[self.o['w1q'] + 2 * i] += g
        P.add(spread(qslots, park) + qpost)
        P('s_lshl_b32 s%d, s%d, 11\ns_add_u32 s%d, s%d, %d' % (sT4, sC, sT4, sT4, WS_XCC))
        P('v_and_b32 v%d, 15, v0\nv_lshlrev_b32 v%d, 7, v%d' % (vPA, vPA, vPA))
        P('buffer_load_dword v%d, v%d, %s, s%d offen sc1' % (vPoll, vPA, self.srd(SRD_WS), sT4))
        P('s_waitcnt lgkmcnt(0)\ns_barrier')
        if self.fine:
            P.add(self.stamp('q_done'))
        vo, D = 124, 128
        ad = self.trbase(t1, 64, 4) + mk('v_add_u32 v%d, s%d, v%d\nv_add_u32 v%d, s%d, v%d' % (t0, sT3, t1, t1, sQ1, t1))
        ad += mk('\n'.join('v_mov_b32 v%d, 0x3f803f80' % (vo + i) for i in range(4)))
        n1 = self.o['w1pre']
        for k in range(14, 14 + n1):
            lb = P.newlabel('Lnw')
            blk = I('s_cmp_ge_u32 s%d, 14\ns_cbranch_scc1 %s\n%s\n%s:' % (sM, lb, '\n'.join(x.text for x in dm[k]), lb), kind='block', nvm=1, src=[('v', v1a)], cost=20)
            blk.tok = tk[k]
            dm[k] = [blk]
        P.add(spread(dm[14:14 + n1], qepi() + ad) if n1 else qepi() + ad)
        P.add(self.stamp('sweep_start') + self.sweep_loads())
        P.add([I('s_cmp_ge_u32 s%d, 14\ns_cbranch_scc1 %s' % (sM, lskip), kind='block')])
        self.ool.append('%s:\ns_waitcnt vmcnt(0)\ns_branch %s' % (lskip, ljoin))
        P('v_and_b32 v%d, 31, v0\nv_lshlrev_b32 v%d, 1, v%d\nbuffer_load_ushort v%d, v%d, %s, s%d offen' % (vT, vT, vT, vb, vT, self.srd(SRD_B1), sT5))
        P('v_lshrrev_b32 v%d, 5, v0\nv_lshlrev_b32 v%d, 3, v%d\ns_lshl_b32 s%d, s%d, 5' % (vT, vT, vT, sT2, sFe))
        P('buffer_load_dwordx2 %s, v%d, %s, s%d offen\nbuffer_load_dwordx2 %s, v%d, %s, s%d offen offset:16'
          % (v(vb2, 2), vT, self.srd(SRD_B2), sT2, v(vb2 + 2, 2), vT, self.srd(SRD_B2), sT2))

        def consume(k):
            va, o = (t0, 1024 * k) if k < 14 else (t1, 1024 * (k - 14))
            L = [wait_tok(tk[k])] + mk('ds_read_b64_tr_b16 %s, v%d offset:%d\nds_read_b64_tr_b16 %s, v%d offset:%d' % (w1half(k, 0), va, o, w1half(k, 1), va, o + 512))
            return L + (mfma(D, v(vo, 4), w1reg(k - 2), k == 2) if k >= 2 else [])
        for k in range(14):
            P.add((dm[14 + n1 + k] if 14 + n1 + k < 28 else []) + consume(k))
        P.label(ljoin)
        P.add([I('s_nop 1', kind='block', states=2)])
        P.add(self.kvx_pre(0))
        l2 = P.newlabel('Lnowo')
        wo = flat(self.wo_dma(117))
        txt, _ = finalize(wo)
        blk = I('s_cmp_ge_u32 s%d, 14\ns_cbranch_scc1 %s\n%s\n%s:' % (sM, l2, '\n'.join(t.strip() for t in txt.split('\n') if t.strip()), l2),
                kind='block', nvm=8, dst=[('v', 117), ('v', vT)], src=[('v', 0)])
        self.tok_wo = tok(blk)
        self.after_kvb = [blk]
        ns = self.o['w1o']
        L = flat(consume(k) for k in range(ns, 28)) + mfma(D, v(vo, 4), w1reg(26)) + mfma(D, v(vo, 4), w1reg(27))
        L += self.unpack(144, vb2, 4) + mk('\n'.join('v_mov_b32 v%d, 0' % r for r in range(152, 156)))
        L += mk('s_lshl_b32 s%d, s%d, 7\ns_add_u32 s%d, s%d, %d\nv_lshrrev_b32 v%d, 5, v0\nv_lshl_add_u32 v%d, v%d, 6, s%d' % (sT0, sW, sT0, sT0, L_B2, vT, vT, vT, sT0))
        for q in range(4):
            L += mk('ds_write_b128 v%d, %s offset:%d' % (vT, v(144 + 4 * min(q, 2), 4), 16 * q))
        L += self.split_w(vW1X, D, vT + 1) + mk('v_lshl_or_b32 v%d, v%d, 16, v%d' % (vb, vb, vb))
        L += mk('v_cndmask_b32 v%d, v%d, v%d, s[%d:%d]\nv_cndmask_b32 v%d, v%d, 0, s[%d:%d]' % (vW1X, vW1X, vb, sHalf, sHalf + 1, vW1X + 1, vW1X + 1, sHalf, sHalf + 1))
        self.after_x1 = L + mk('s_waitcnt lgkmcnt(0)')
        self.after_o = flat(consume(k) for k in range(14, ns)) + self.xsrc() + [wait_tok(self.tok_wo)] + mk('s_waitcnt lgkmcnt(0)\ns_barrier') + flat(self.s2_rd(i) for i in range(4))

    def sweep_loads(self):
        return flat(self.frag_loads([v(32 + 4 * i, 4) for i in range(8)], SRD_WS, sKv, 0, flags='sc1'))

    def w2_prefetch(self, va, first, per):
        m = (1 << per) - 1
        txt = ['s_lshr_b32 s%d, s%d, 3' % (sQ0, sC), 's_mul_i32 s%d, s%d, 14' % (sQ0, sQ0), 's_add_u32 s%d, s%d, s%d' % (sQ0, sQ0, sM),
               's_lshl_b32 s%d, s%d, 2' % (sQ0, sQ0), 's_add_u32 s%d, s%d, s%d' % (sQ0, sQ0, sW), 's_mul_i32 s%d, s%d, %d' % (sQ0, sQ0, per * 128),
               's_add_u32 s%d, s%d, %d' % (sQ0, sQ0, first * 128), 'v_lshlrev_b32 v%d, 7, v0' % va,
               's_mov_b32 exec_lo, 0x%x' % (m & 0xffffffff), 's_mov_b32 exec_hi, 0x%x' % (m >> 32),
               'buffer_load_dword v%d, v%d, %s, s%d offen' % (vDummy, va, self.srd(SRD_W2), sQ0), 's_mov_b64 exec, -1']
        return [I('\n'.join(txt), kind='block', nvm=1, src=[('v', 0)], dst=[('v', va)], cost=52)]

    W2V = (15, 106, 5, 13, 140)

    def w2_addr(self):
        v2a, tA, tB, vp, tS = self.W2V
        L = mk('v_lshrrev_b32 v%d, 3, v0\nv_mul_u32_u24 v%d, 896, v%d\nv_lshrrev_b32 v%d, 2, v0\nv_and_b32 v%d, 4, v%d\nv_xor_b32 v%d, v%d, v0\nv_and_b32 v%d, 7, v%d\nv_lshl_add_u32 v%d, v%d, 4, v%d'
               % (v2a, v2a, v2a, vT, vT, vT, vT, vT, vT, vT, v2a, vT, v2a))
        L += mk('s_lshr_b32 s%d, s%d, 1\ns_lshl_b32 s%d, s%d, 7\ns_mul_i32 s%d, s%d, %d\ns_add_u32 s%d, s%d, s%d\nv_add_u32 v%d, s%d, v%d'
                % (sT0, sM, sT0, sT0, sT2, sW, 32 * 896, sT0, sT0, sT2, v2a, sT0, v2a))
        L += mk('s_mul_i32 s%d, s%d, 7168\ns_add_u32 s%d, s%d, %d\ns_lshl_b32 s%d, s%d, 12\ns_add_u32 s%d, s%d, %d'
                % (sRot, sW, sRot, sRot, L_EX, sQ1, sW, sQ1, sQ1, L_KVS))
        L += mk('s_lshr_b32 s%d, s%d, 1' % (sT0, sW)) + self.trbase(tA, 128, 4, xor16=sT0)
        L += mk('s_and_b32 s%d, s%d, 1\nv_bfe_u32 v%d, v0, 3, 1\nv_xor_b32 v%d, s%d, v%d\nv_lshl_add_u32 v%d, v%d, 6, v%d\nv_xor_b32 v%d, 64, v%d'
                % (sT0, sW, vT, vT, sT0, vT, tA, vT, tA, tA + 1, tA))
        L += mk('s_mul_i32 s%d, s%d, 10240\nv_add_u32 v%d, s%d, v%d\nv_add_u32 v%d, s%d, v%d' % (sWi, sW, tS, sWi, tA, tS + 1, sWi, tA + 1))
        L2 = mk('v_add_u32 v%d, s%d, v%d\nv_add_u32 v%d, s%d, v%d\nv_add_u32 v%d, s%d, v%d\nv_add_u32 v%d, s%d, v%d' % (tB, sQ1, tA, tB + 1, sQ1, tA + 1, tA, sRot, tA, tA + 1, sRot, tA + 1))
        L2 += mk('s_mul_i32 s%d, s%d, 21504\nv_add_u32 v%d, s%d, v%d' % (sT0, sW, vp, sT0, vL16))
        return L, L2

    def w2_steps(self, u0, u1, shadow):
        v2a, tA, tB, vp, tS = self.W2V
        NS = 5

        def where(u):
            n = (u - u0) % NS
            if shadow:
                return sWi, tS, n * 2048
            return (sRot, tA, n * 2048) if n < 3 else (sQ1, tB, (n - 3) * 2048)

        def issue(u):
            out = []
            base, _, o = where(u)
            for i in range(2):
                g = mk('s_add_u32 m0, s%d, %d' % (base, o + 1024 * i))
                g += mk('s_mov_b32 s%d, %d' % (sQ0, (128 * (u // 2) + 16 * (u % 2) + 8 * i) * 896))
                out += g + mk('buffer_load_dwordx4 v%d, %s, s%d offen lds' % (v2a, self.srd(SRD_W2), sQ0))
            return out, tok(out[-1])
        tk, first, steps, prev = {}, [], [], None
        for u in range(u0, min(u0 + NS - 1, u1)):
            g, tk[u] = issue(u)
            first.append(g)
        for u in range(u0, u1):
            _, ta, o = where(u)
            A = []
            if u + NS - 1 < u1:
                if prev:
                    A += [wait_tok(prev)]
                g, tk[u + NS - 1] = issue(u + NS - 1)
                A += g
            B = [wait_tok(tk[u])]
            for js in range(2):
                b = W2A + 8 * u + 4 * js
                B += mk('ds_read_b64_tr_b16 %s, v%d offset:%d\nds_read_b64_tr_b16 %s, v%d offset:%d' % (a(b, 2), ta + js, o, a(b + 2, 2), ta + js, o + 1024))
            prev = tok(B[-1])
            steps.append((A, B))
        return first, steps

    def w2_stage(self, fill, u0, u1, extra):
        P = self.P
        first, steps = self.w2_steps(u0, 28, False)
        P.add(flat(first))
        rest = [mk('ds_write_b128 v%d, %s offset:%d' % (self.W2V[3], a(self.PARK + 4 * i, 4), 1024 * i)) for i in range(21)]
        out, done = [], 0
        for n, (A, B) in enumerate(steps):
            u = u0 + n
            want = sum(1 for i in range(21) if 17 + (i + 1) // 2 <= u)
            out.append((A, rest[done:want], B + extra.get(u, []) + (self.stamp('w2_%d' % u) if self.fine else [])))
            done = want
        P.add(spread([A + flat(R) + B for A, R, B in out[:u1 - u0]], fill, start=0, end=self.o['w2fill']))
        return out[u1 - u0:]

    K10 = 98

    def kvx_pre(self, l):
        L = []
        RES = 160
        if l == 1:
            L += mk('s_add_u32 s%d, s%d, s%d' % (sT0, sOst, sXin))
            for j in range(2):
                L += mk('buffer_load_dwordx4 %s, v%d, %s, s%d offen offset:%d sc1' % (v(RES + 4 * j, 4), vL16, self.srd(SRD_CL), sT0, 1024 * j))
            L += [I('s_mul_i32 s%d, s%d, %d\ns_add_u32 s%d, s%d, s%d\ns_addc_u32 s%d, s%d, 0\ns_sub_u32 s%d, s%d, s%d'
                    % (sT0, sSlow, LOFF, SRD_CL, SRD_CL, sT0, SRD_CL + 1, SRD_CL + 1, SRD_CL + 2, SRD_CL + 2, sT0), kind='block', cost=16)]
        L += [I('s_cmp_eq_u32 s%d, 3\ns_cselect_b32 s%d, 0xffff0000, 0\ns_cselect_b32 s%d, 0xffff0000, 0' % (sW, sPm, sPm + 1), kind='block', cost=12)]
        L += self.kv_lane_addr(self.KA, self.KA + 1, self.KA + 2, gather=False)
        g, t = self.KA + 1, self.KA + 2
        L += mk('\n'.join(['v_bfe_u32 v%d, v0, 3, 1' % g, 'v_and_b32 v%d, 3, v0' % t, 'v_lshl_add_u32 v%d, v%d, 2, v%d' % (g, g, t),
                           'v_cmp_eq_u32 vcc, 7, v%d' % g, 'v_bfe_u32 v%d, v0, 4, 1' % t, 'v_mad_u32_u24 v%d, v%d, 14, v%d' % (g, t, g),
                           'v_bfe_u32 v%d, v0, 2, 1' % t, 'v_mad_u32_u24 v%d, v%d, 7, v%d' % (g, t, g), 'v_cndmask_b32 v%d, v%d, 28, vcc' % (g, g),
                           'v_and_b32 v%d, 32, v0' % t, 'v_add_u32 v%d, v%d, v%d' % (g, g, t), 'v_lshlrev_b32 v%d, 5, v%d' % (g, g), 'v_add_u32 v%d, %d, v%d' % (g, L_KVB, g)]))
        L += mk('s_and_b32 s%d, s%d, 0x1fff\ns_or_b32 s%d, s%d, 0x4000\ns_lshl_b32 s%d, s%d, 16' % (sTag, sNonce, sTag, sTag, sTag + 1, sTag))
        L += mk('v_mov_b32 v%d, 0x3f80\nv_mov_b32 v%d, 0x3f800000' % (self.K10, self.K10 + 1))
        return L

    KA = 100

    def kvx(self, l):
        P = self.P
        P.comment('==== layer %d : kv exchange' % l)
        if l == 0:
            lw, lb = P.newlabel('Lxcc'), P.newlabel('Lxok')
            P('v_subrev_u32 v%d, s%d, v%d\nv_cmp_lt_u32 vcc, 15, v%d' % (vPoll, sNonce, vPoll, vPoll))
            P.add([I('s_cbranch_vccnz %s\n%s:' % (lw, lb), kind='block')])
            self.ool.append('\n'.join([
                lw + ':',
                'buffer_load_dword v%d, v%d, %s, s%d offen sc1' % (vPoll, vPA, self.srd(SRD_WS), sT4),
                's_add_u32 s%d, s%d, 1' % (sSpin, sSpin),
                's_cmp_gt_u32 s%d, 0x40000' % sSpin,
                's_cbranch_scc1 L_end',
                's_waitcnt vmcnt(0)',
                'v_subrev_u32 v%d, s%d, v%d' % (vPoll, sNonce, vPoll),
                'v_cmp_lt_u32 vcc, 15, v%d' % vPoll,
                's_cbranch_vccnz %s' % lw,
                's_branch %s' % lb]))
            P('v_cmp_ne_u32 vcc, s%d, v%d\ns_cmp_lg_u64 vcc, 0\ns_cselect_b32 s%d, 1, 0\ns_mov_b32 s%d, %d\ns_cselect_b32 s%d, %d, s%d' % (sXcc, vPoll, sSlow, sXin, X1_OFF if self.o['alias'] else XIN_OFF, sXin, XIN_OFF, sXin))
        K10, K01 = self.K10, self.K10 + 1
        sw = []
        if l == 1:
            sw = (mk('s_sleep %d' % self.o['kvdelay']) if self.o['kvdelay'] else []) + self.stamp('sweep_start') + self.sweep_loads()
        if not self.o['swlate']:
            P.add(sw)
        P('v_and_b32 v%d, 15, v0\nv_lshlrev_b32 v%d, 11, v%d\nv_add_u32 v%d, 2044, v%d' % (vPA, vPA, vPA, vPA, vPA))
        P.add(self.trbase(vTr, 64, 7, add=L_WO))
        P.add(self.s2_pre(l))
        P('s_mov_b32 s%d, 0x88888888\ns_mov_b32 s%d, 0x88888888' % (sPm, sPm + 1))
        if self.o['swlate']:
            P.add(sw)
        lsw, lre = P.newlabel('Lsweep'), P.newlabel('Lresweep')
        P.label(lsw)
        B = 32
        bad, S = vT, 64
        P('v_mov_b32 v%d, 0' % bad)
        for i in range(8):
            for k in range(4):
                for hh, K in enumerate((K10, K01)):
                    P('v_dot2_f32_bf16 v%d, v%d, v%d, %s' % (S + 2 * k + hh, B + 4 * i + k, K, 'v%d' % (S + 2 * k + hh) if i else '0'))
            for k in (2, 3):
                P('v_bitop3_b32 v%d, v%d, s%d, v%d bitop3:0xbe' % (bad, B + 4 * i + k, sNonce, bad))
        P('v_cmp_ne_u32 vcc, 0, v%d\ns_and_b64 vcc, vcc, s[%d:%d]' % (bad, sPm, sPm + 1))
        P.add([I('s_cbranch_vccnz %s' % lre, kind='block', states=1)])
        self.ool.append('%s:\ns_sleep 6\ns_add_u32 s%d, s%d, 1\ns_cmp_gt_u32 s%d, 0x40000\ns_cbranch_scc1 L_end\n%s\ns_waitcnt vmcnt(0)\ns_branch %s'
                        % (lre, sSpin, sSpin, sSpin, '\n'.join(x.text for x in self.sweep_loads()), lsw))
        P.add(self.stamp('sweep_done'))
        for k in range(4):
            P('v_permlane32_swap_b32 v%d, v%d' % (S + k, S + 4 + k))
        for k in (0, 2):
            P('v_pk_add_f32 %s, %s, %s' % (v(S + k, 2), v(S + k, 2), v(S + 4 + k, 2)))
        P.add(self.pack(S, S, 2))
        P('ds_write_b64 v%d, %s' % (self.KA, v(S, 2)))
        P('s_waitcnt lgkmcnt(0)\ns_barrier')
        KF, D = 72, 80
        P('ds_read_b128 %s, v%d\nds_read_b128 %s, v%d offset:16' % (v(KF, 4), self.KA + 1, v(KF + 4, 4), self.KA + 1))
        P.add(flat(self.s2_rd(i) for i in range(4)) if l else self.after_kvb)
        P.add(mfma(D, v(KF, 4), v(self.PQ, 4), True))
        for i in (6, 7):
            P('v_cndmask_b32 v%d, v%d, 0, s[%d:%d]' % (KF + i, KF + i, sHalf, sHalf + 1))
        P.add(mfma(D, v(KF + 4, 4), v(self.PQ + 4, 4)))
        t1 = 120
        P('v_add_f32 v%d, %s, v%d\nv_rcp_f32 v%d, v%d\nv_mul_f32 v%d, s%d, v%d' % (t1, f32(1e-6), D + 7, t1, t1, t1, sLn2, t1))
        for r in range(0, 16, 2):
            P('v_pk_mul_f32 %s, %s, %s op_sel_hi:[1,0]' % (v(D + r, 2), v(D + r, 2), v(t1, 2)))
        P('v_mov_b32 v%d, s%d\nv_mov_b32 v%d, s%d' % (D + 7, sTag + 1, D + 15, sTag + 1))
        P.add(self.pack(D, D, 8))
        st = self.stores(['buffer_store_dwordx4 %s, v%d, %s, s%d offen offset:%d' % (v(D + 4 * j, 4), vL16, self.srd(SRD_CL), sOst, 1024 * j) for j in range(2)], last=1)
        P.add(st)
        P.add(self.stamp('o_pub'))

    def s2_rd(self, i):
        WB, o = 144 + 4 * (i % 4), 1792 * (i // 2) + 896 * (i % 2)
        return mk('ds_read_b64_tr_b16 %s, v%d offset:%d\nds_read_b64_tr_b16 %s, v%d offset:%d' % (v(WB, 2), vTr, o, v(WB + 2, 2), vTr, o + 256))

    def s2_pre(self, l):
        L = self.s4_consts(l)
        L += mk('s_add_u32 s%d, s%d, %d' % (sT4, sOst, X1_OFF))
        L += mk('s_lshr_b32 s%d, s%d, 2\ns_lshl_b32 s%d, s%d, 10\ns_and_b32 s%d, s%d, 3\ns_lshl_b32 s%d, s%d, 2\ns_add_u32 s%d, s%d, s%d\ns_add_u32 s%d, s%d, s%d\ns_add_u32 s%d, s%d, %d'
                % (sT5, sM, sT5, sT5, sT1, sM, sT1, sT1, sT5, sT5, sT1, sT5, sT5, sBlk, sT5, sT5, X1_OFF + 28672))
        return L + self.unpack(16, 160, 8)

    def s2(self, l):
        P = self.P
        o = self.o
        P.comment('==== layer %d : S2' % l)
        ACC, OF, WB, RES = 16, 32, 144, 160
        NB = 4
        lre, lfail = P.newlabel('Ls2'), P.newlabel('Ls2again')
        if l == 0:
            P.add(self.after_o)
        P.label(lre)
        P.add(self.poll_issue(sBlk, o['pdo'] if l else 0))
        rd = self.s2_rd
        bad = vT
        P('v_mov_b32 v%d, 0' % bad)
        P.add(self.poll_check(sBlk, tag=True))
        P.add(self.stamp('o_seen'))
        oreg = [OF + 4 * (i % (28 if l else 18)) for i in range(32)]
        lds = self.frag_loads([v(r, 4) for r in oreg], SRD_CL, sBlk, O_OFF, flags='sc1')
        n = o['look2']
        P.add(flat(lds[:n]))
        chk = lambda i: mk('v_bitop3_b32 v%d, v%d, s%d, v%d bitop3:0xbe\nv_and_b32 v%d, 0xffff, v%d' % (bad, oreg[i] + 3, sTag + 1, bad, oreg[i] + 3, oreg[i] + 3))
        P.add(chk(0))
        for i in range(32):
            if i + n < 32:
                P.add(lds[i + n])
            P.add(mfma(ACC, v(WB + 4 * (i % NB), 4), v(oreg[i], 4)))
            if self.fine and i in (0, 8, 16, 31):
                P.add(self.stamp('s2_%d' % i))
            if i + NB < 32:
                P.add(rd(i + NB))
            if i + 1 < 32:
                P.add(chk(i + 1))
            if i == 28:
                P.add(self.pa(14, blocks=True, reg=vT + 2))
        P('v_cmp_lt_u32 vcc, 0xffff, v%d' % bad)
        P.add([I('s_cbranch_vccnz %s' % lfail, kind='block', states=1)])
        again = '\n'.join(x.text for x in self.unpack(ACC, RES, 8) + flat(rd(i) for i in range(NB)))
        self.ool.append('%s:\ns_add_u32 s%d, s%d, 1\ns_cmp_gt_u32 s%d, 0x40000\ns_cbranch_scc1 L_end\ns_nop 15\n%s\ns_waitcnt lgkmcnt(0)\ns_branch %s'
                        % (lfail, sSpin, sSpin, sSpin, again, lre))
        P('v_mov_b32 v%d, v%d' % (vPA, vT + 2))
        P.add(self.pack(OF, ACC, 8))
        P.add(self.stores(['buffer_store_dwordx4 %s, v%d, %s, s%d offen offset:%d' % (v(OF + 4 * j, 4), vL16, self.srd(SRD_CL), sT4, 1024 * j) for j in range(2)], last=2))
        P.add(self.row_stats(OF, 8, vT, vT + 2))
        st = self.stores(['buffer_store_dword v%d, v%d, %s, s%d offen' % (vT, vL16, self.srd(SRD_CL), sT5)])
        tk = tok(st[-1])
        P.add(st)
        if self.fine:
            P.add(self.stamp('x1_st'))
        P.add(self.flag([tk], sFoMy, FX1 - FO))
        P.add(self.stamp('x1_pub'))

    def gelu(self, acc, KK, T):
        pr = range(0, 16, 2)
        A = flat(mk('v_pk_mul_f32 %s, %s, %s' % (v(T + i, 2), v(acc + i, 2), v(acc + i, 2))) for i in pr)
        A += flat(mk('v_pk_fma_f32 %s, %s, %s, %s op_sel:[0,1,0] op_sel_hi:[1,1,0]' % (v(T + i, 2), v(T + i, 2), v(KK, 2), v(KK, 2))) for i in pr)
        A += flat(mk('v_pk_mul_f32 %s, %s, %s' % (v(T + i, 2), v(T + i, 2), v(acc + i, 2))) for i in pr)
        E = flat(mk('v_exp_f32 v%d, v%d' % (T + i, T + i)) for i in range(16))
        B = flat(mk('v_pk_fma_f32 %s, %s, %s, %s op_sel_hi:[1,0,0]' % (v(T + i, 2), v(T + i, 2), v(KK + 2, 2), v(KK + 2, 2))) for i in pr)
        R = flat(mk('v_rcp_f32 v%d, v%d' % (T + i, T + i)) for i in range(16))
        C = flat(mk('v_pk_mul_f32 %s, %s, %s' % (v(acc + i, 2), v(acc + i, 2), v(T + i, 2))) for i in pr)
        pk = self.pack(acc, acc, 8)
        g4 = lambda f, g: flat(mk(f(4 * g + i)) for i in range(4))
        e = lambda g: E[4 * g:4 * g + 4]
        r = lambda g: R[4 * g:4 * g + 4]
        b = lambda g: g4(lambda i: 'v_fma_f32 v%d, v%d, v%d, v%d' % (T + i, T + i, KK + 2, KK + 2), g)
        c = lambda g: g4(lambda i: 'v_mul_f32 v%d, v%d, v%d' % (acc + i, acc + i, T + i), g) + pk[2 * g:2 * g + 2]
        tail = e(0) + e(1) + b(0) + r(0) + e(2) + b(1) + c(0) + r(1) + e(3) + b(2) + c(1) + r(2) + b(3) + c(2) + r(3) + c(3)
        return A, A + E + B + R + C + pk, tail

    XSRC = (4, 5, 6, 7, 8, 9, 10, 11, 12, 13, 14, 15, 20, 21)

    def xsrc(self):
        L = mk('s_lshl_b32 s%d, s%d, 1\ns_mul_i32 s%d, s%d, 14\ns_add_u32 s%d, s%d, s%d\ns_mov_b32 s%d, %d' % (sT0, sW, sT1, sD1, sT1, sT1, sT0, sT2, X1_OFF))
        for c, r in enumerate(self.XSRC):
            if c:
                L += mk('s_add_u32 s%d, s%d, 8\ns_cmp_ge_u32 s%d, 28\ns_cselect_b32 s%d, 28, 0\ns_cselect_b32 s%d, 0x8000, 0\ns_sub_u32 s%d, s%d, s%d\ns_add_u32 s%d, s%d, s%d'
                        % (sT0, sT0, sT0, sT3, r, sT0, sT0, sT3, sT2, sT2, r))
                L += mk('s_add_u32 s%d, s%d, 8\ns_cmp_ge_u32 s%d, 28\ns_cselect_b32 s%d, 28, 0\ns_sub_u32 s%d, s%d, s%d' % (sT1, sT1, sT1, sT3, sT1, sT1, sT3))
            L += mk('s_lshl_b32 s%d, s%d, 10\ns_add_u32 s%d, s%d, s%d' % (r, sT1, r, r, sT2))
        return L

    SEL = 172

    def s4_consts(self, l):
        U, SEL = 120, self.SEL
        sel = mk('\n'.join(['v_lshrrev_b32 v%d, 5, v0' % SEL,
                             'v_lshlrev_b32 v%d, 2, v%d' % (SEL, SEL), 'v_and_b32 v%d, 31, v0' % (SEL + 1), 'v_sub_u32 v%d, v%d, v%d' % (U, SEL + 1, SEL),
                             'v_mov_b32 v%d, 0x3f80' % (U + 1), 'v_mov_b32 v%d, 0x3f800000' % (U + 2)]))
        for q, r0 in enumerate((0, 2, 8, 10)):
            sel += mk('v_cmp_eq_u32 vcc, %d, v%d\nv_cmp_eq_u32 s[%d:%d], %d, v%d\ns_nop 0\nv_cndmask_b32 v%d, 0, v%d, vcc\nv_cndmask_b32 v%d, v%d, v%d, s[%d:%d]'
                      % (r0, U, sPm, sPm + 1, r0 + 1, U, SEL + q, U + 1, SEL + q, SEL + q, U + 2, sPm, sPm + 1))
        for q, sB in enumerate((sEb, sLb)):
            sel += mk('s_lshl_b32 s%d, s%d, 15\ns_lshl_b32 s%d, s%d, 10\ns_add_u32 s%d, s%d, s%d\ns_add_u32 s%d, s%d, %d' % (sT0, sB, sT2, sFe, sT0, sT0, sT2, sRes + q, sT0, X1_OFF))
            if l == 0:
                sel += mk('s_add_u32 s%d, s%d, s%d\ns_lshl_b32 s%d, s%d, 13' % (sFin + q, sT0, sXin, sT0, sB))
                sel += mk('s_lshr_b32 s%d, s%d, 2\ns_lshl_b32 s%d, s%d, 10\ns_add_u32 s%d, s%d, s%d\ns_and_b32 s%d, s%d, 3\ns_lshl_b32 s%d, s%d, 2\ns_add_u32 s%d, s%d, s%d\ns_add_u32 s%d, s%d, %d'
                          % (sT2, sFe, sT2, sT2, sT0, sT0, sT2, sT2, sFe, sT2, sT2, sT0, sT0, sT2, sFin + 2 + q, sT0, XST_OFF))
                sel += mk('s_lshl_b32 s%d, s%d, 5\ns_add_u32 s%d, s%d, s%d\ns_lshl_b32 s%d, s%d, 2\ns_add_u32 s%d, s%d, %d' % (sT2, sB, sT2, sT2, sFe, sT2, sT2, sFin + 4 + q, sT2, FXIN))
            else:
                sel += mk('s_lshl_b32 s%d, s%d, 2\ns_add_u32 s%d, s%d, s%d\ns_mul_i32 s%d, s%d, %d\ns_lshl_b32 s%d, s%d, 5\ns_add_u32 s%d, s%d, s%d'
                          % (sT0, sC, sT0, sT0, sB, sT0, sT0, 32 * 896, sT2, sFe, sFin + q, sT0, sT2))

        return sel

    def mlp(self, l):
        P = self.P
        o = self.o
        P.comment('==== layer %d : MLP' % l)
        ACC = (16, 32)
        XB, EXB, WEX, T, RING = 48, 72, 76, 80, 108
        KK = (96, 100)
        SEL, vB2, vX2 = self.SEL, 104, 105
        NB = 6
        if l == 0:
            P.add(self.after_x1)
        P('s_mov_b32 s%d, %d' % (sT4, FX1))
        if not o['p1']:
            P.add(self.poll_issue(sT4, o['pdx']))
        P('s_lshl_b32 s%d, s%d, 11' % (sT5, sW))
        P('v_mov_b32 v%d, v%d\nv_mov_b32 v%d, v%d' % (WEX, vW1X, WEX + 1, vW1X + 1))
        P('\n'.join('v_mov_b32 v%d, 0' % r for r in (WEX + 2, WEX + 3, EXB + 2, EXB + 3)))
        vE8, vK16 = vTr, vT + 3
        P('v_lshlrev_b32 v%d, 3, v0\nv_add_u32 v%d, %d, v%d' % (vE8, vE8, L_KVS, vE8))
        P('v_and_b32 v%d, 31, v0\nv_lshlrev_b32 v%d, 4, v%d\nv_add_u32 v%d, %d, v%d' % (vK16, vK16, vK16, vK16, L_KVS + 512, vK16))
        P('v_add_u32 v%d, %d, v%d' % (vX2, 56 * 1024, vL16))
        P('s_lshl_b32 s%d, s%d, 7\ns_add_u32 s%d, s%d, %d\nv_lshrrev_b32 v%d, 5, v0\nv_lshl_add_u32 v%d, v%d, 6, s%d' % (sT3, sW, sT3, sT3, L_B2, vB2, vB2, vB2, sT3))
        P('s_add_u32 s%d, s%d, %d' % (sT1, sBlk, X1_OFF + 28672))
        if o['p1']:
            lq = P.newlabel('Lnp')
            c = self.poll_check(sT4)[0]
            P.add([I('s_cmp_lg_u32 s%d, 0\ns_cbranch_scc1 %s\n%s\ns_waitcnt vmcnt(0)\n%s\n%s:\ns_barrier'
                     % (sW, lq, '\n'.join(x.text for x in self.poll_issue(sT4, o['pdx'] if l else 0)), c.text, lq), kind='block', src=[('v', vPA)], dst=c.dst, states=2)])
        else:
            P.add(self.poll_check(sT4))
        P.add(self.stamp('x1_seen'))
        xd, tc = [], []
        for c, r in enumerate(self.XSRC):
            g = mk('s_add_u32 m0, s%d, %d' % (sT5, 8192 * c))
            g += mk('buffer_load_dwordx4 v%d, %s, s%d offen sc1 lds\nbuffer_load_dwordx4 v%d, %s, s%d offen offset:1024 sc1 lds' % (vL16, self.srd(SRD_CL), r, vL16, self.srd(SRD_CL), r))
            tc.append(tok(g[-1]))
            xd.append(g)
        stl = [mk('buffer_load_dwordx4 %s, v%d, %s, s%d offen offset:%d sc1' % (v(RING + 4 * i, 4), vL16, self.srd(SRD_CL), sT1, 1024 * i)) for i in range(4)]
        sp = o['stpos']
        P.add({0: flat(stl) + xd[0] + xd[1], 1: xd[0] + xd[1] + flat(stl), 2: xd[0] + xd[1], 3: xd[0] + flat(stl[:2]) + xd[1]}[sp])
        K0 = KK[1]
        st0 = []
        for x, y in ((0, 1), (2, 3), (4, 5), (6, 7), (8, 9), (10, 11), (12, 13), (0, 2), (4, 6), (8, 10), (0, 4), (8, 12)):
            st0 += mk('v_add_f32 v%d, v%d, v%d' % (RING + x, RING + x, RING + y))
        st0 += mk('v_add_f32 v%d, v%d, v%d' % (T, RING, RING + 8))
        st0 += self.stats_finish(T, True)
        st0 += mk('\n'.join(['v_rcp_f32 v%d, v%d' % (K0 + 2, vRl),
                             'v_mul_f32 v%d, s%d, v%d' % (K0, sC0, vRl),
                             'v_mul_f32 v%d, v%d, v%d' % (T, vRl, vRl),
                             'v_mul_f32 v%d, s%d, v%d' % (K0 + 1, sC1, vRl),
                             'v_mul_f32 v%d, v%d, v%d' % (K0 + 1, K0 + 1, T),
                             'v_sub_f32 v%d, 0, v%d' % (vMean, vMean),
                             'v_cndmask_b32 v%d, v%d, v%d, s[%d:%d]' % (vMean, vMean, K0 + 2, sHalf, sHalf + 1)]))
        st0 += self.split_act(T + 2, vMean, T)
        st0 += mk('s_lshl_b32 s%d, s%d, 10\nv_add_u32 v%d, s%d, v%d\nv_add_u32 v%d, s%d, v%d' % (sT4, sW, vT, sT4, vE8, vT + 1, sT4, vK16))
        st0 += mk('ds_write_b64 v%d, %s\nds_write_b128 v%d, %s' % (vT, v(T + 2, 2), vT + 1, v(K0, 4)))
        tst = tok(st0[-1])

        def hpub(b):
            pre = mk('s_add_u32 s%d, s%d, %d' % (sT4, sHst, b * 114688))
            st = self.stores(['buffer_store_dwordx4 %s, v%d, %s, s%d offen offset:%d' % (v(ACC[b & 1] + 4 * j, 4), vL16, self.srd(SRD_CL), sT4, 1024 * j) for j in range(2)], last=4)
            return pre + st, tok(st[-1])
        hflag = lambda b, tk: self.flag([tk], sFoMy, FH - FO + 512 * b)
        extrd = lambda b: mk('ds_read_b64 %s, v%d offset:%d\nds_read_b128 %s, v%d offset:%d' % (v(EXB, 2), vE8, 1024 * b, v(KK[b & 1], 4), vK16, 1024 * b))
        extmf = lambda b: mfma(ACC[b & 1], v(WEX, 4), v(EXB, 4))
        hreg = [RING + 4 * (i % 16) for i in range(56)]

        def hload(i):
            blk, kap = divmod(i, 28)
            g = mk('s_add_u32 s%d, s%d, %d' % (sHs, (sHE, sHL)[blk], 8192 * (kap // 2))) if kap % 2 == 0 else []
            return g + mk('buffer_load_dwordx4 %s, v%d, %s, s%d offen offset:%d sc1' % (v(hreg[i], 4), vL16, self.srd(SRD_CL), sHs, 1024 * (kap % 2)))
        P.add([wait_tok(tc[0])])
        P('s_barrier')
        P.add(self.stamp('s3_b0'))
        rdj = lambda j: mk('ds_read_b128 %s, v%d offset:%d' % (v(XB + 4 * (j % NB), 4), vL16 if j < 56 else vX2, 1024 * (j % 56)))
        for j in range(NB):
            P.add(rdj(j))
        isl = lambda c: 0 if c == 2 else o['x0'] + (o['xstep'] * (c - 3)) // 2
        bars, cov = {}, 0
        for c in range(1, 14):
            sj = 8 * c - 5
            if c > cov or sj in (27, 43):
                cov = max([c] + [d for d in range(3, 14) if isl(d) + o['xlag'] <= sj])
                bars[sj] = [tc[cov]] + ([tst] if sj == 27 else [])
        slots = []
        for j in range(112):
            b, k = divmod(j, 28)
            sl = mfma(ACC[b & 1], w1reg(k), v(XB + 4 * (j % NB), 4), k == 0)
            if k % 2 == 0:
                also_waits_for(sl[0], v(XB + 4 * ((j + 1) % NB), 4))
            if j in bars:
                sl += (self.stamp('pb%d' % j) if self.fine else []) + [wait_tok(*bars[j])] + mk('s_barrier') + (self.stamp('ab%d' % j) if self.fine else [])
            if k % 2 == 1:
                for jj in (j + NB - 1, j + NB):
                    if jj < 112:
                        sl += rdj(jj)
            if (k == 25 and b) or j == 27:
                sl += extrd(b)
            if (k == 27 and b) or j == 30:
                sl += extmf(b if k == 27 else 0)
            slots.append(sl)
        slots[0] += stl[0] + stl[1] if sp == 2 else []
        slots[1 if sp == 2 else 0] += xd[2]
        slots[3 if sp == 2 else 2] += stl[2] + stl[3] if sp >= 2 else []
        for c in range(3, 14):
            slots[isl(c)] += xd[c]
        pre0, pre1 = self.w2_addr() if l == 0 else ([], [])
        slots[26] += pre1
        nsh = o['nsh'] if l == 0 else 0
        if nsh:
            first, steps = self.w2_steps(0, nsh, True)
            p0 = o['sh0']
            for i, g in enumerate(first):
                slots[p0 + 2 * i] += g
            p1 = p0 + 2 * len(first) + o['shgap']
            for n, (A, B) in enumerate(steps):
                sj = p1 + (n * (110 - p1)) // nsh
                slots[sj] += A
                slots[sj + 1] += B
            if o['idlew2'] < 13:
                slots[o['pf2']] += self.w2_prefetch(vT, 1024 * o['idlew2'], -(-(12544 - 1024 * o['idlew2']) // 112))
        out = spread(slots[:o['st0']], pre0) + spread(slots[o['st0']:o['st1']], st0) + flat(slots[o['st1']:28])
        pend = None
        for b in range(1, 4):
            gA, _, tail = self.gelu(ACC[(b - 1) & 1], KK[(b - 1) & 1], T)
            s0 = 28 * b + (5 if b == 1 else 2)
            st, nxt = hpub(b - 1)
            if l == 0 and b < 3 and not nsh:
                st = st + self.w2_prefetch(vT, (b - 1) * 6272, 56)
            slots[s0] += gA
            if pend is not None and l == 1:
                slots[28 * b + o['flagpos']] += hflag(b - 2, pend)
            pend = nxt
            if b == 3 and l == 1:
                slots[84 + o['pollE']] += self.pa(14) + self.poll_issue(sPE)
                n3 = o['n3']
                slots[112 - n3] += (self.stamp('preE') if self.fine else []) + self.poll_check(sPE) + (self.stamp('gotE') if self.fine else [])
                for i in range(n3):
                    slots[112 - n3 + i] += hload(i)
            if b == 1 or self.fine:
                out += self.stamp('s3_b%d' % b)
            out += flat(slots[28 * b:s0 + 1]) + spread(slots[s0 + 1:28 * b + 28], tail + st, end=28 * b + o['gend'] - s0)
        P.add(out)
        P('s_waitcnt lgkmcnt(0)\ns_barrier')
        P.add(self.stamp('s3_end'))
        AE, AL, RX, RS = 48, 16, 80, 96
        vEW, vER = (vTr, vT, vT + 1), vT + 3
        resid = lambda q: mk('buffer_load_dwordx4 %s, v%d, %s, s%d offen sc1' % (v(RS, 4), vL16, self.srd(SRD_CL), sRes + q))
        cinit = lambda A: flat(mk('ds_read_b128 %s, v%d offset:%d' % (v(A + 4 * q, 4), vB2, 16 * q)) for q in range(4))
        ad = []
        for n, x in enumerate((2, 1, 3)):
            ad += mk('s_xor_b32 s%d, s%d, %d\ns_mul_i32 s%d, s%d, 6144\ns_add_u32 s%d, s%d, %d\nv_add_u32 v%d, s%d, v%d'
                     % (sT3, sW, x, sT3, sT3, sT3, sT3, L_EX + 2048 * (x - 1), vEW[n], sT3, vL16))
        ad += mk('s_mul_i32 s%d, s%d, 6144\ns_add_u32 s%d, s%d, %d\nv_add_u32 v%d, s%d, v%d' % (sT3, sW, sT3, sT3, L_EX, vER, sT3, vL16))
        gA, gall, _ = self.gelu(ACC[1], KK[1], T)
        st, p3 = hpub(3)
        npre = o['npre']
        if l == 0:
            npre, u1 = o['npre0'], o['w2u1']
            fl = hflag(0, pend) + hflag(1, pend) + hflag(2, pend)
            w2rest = self.w2_stage(gall[:o['flat']] + fl + gall[o['flat']:] + st, nsh, u1, {u1 - 2: self.pa(14) + self.poll_issue(sPE)})
            P.add(cinit(AE) + self.poll_check(sPE) + resid(0) + flat(hload(i) for i in range(npre)))
        else:
            P.add(spread([resid(0)] + [hload(i) for i in range(o['n3'], npre)], gall[:40] + hflag(2, pend) + cinit(AE) + gall[40:] + st))
        if self.fine:
            P.add(self.stamp('g3_end'))

        exch_write = lambda A: flat(mk('ds_write_b128 v%d, %s\nds_write_b128 v%d, %s offset:1024' % (vEW[n], v(r, 4), vEW[n], v(r + 4, 4)))
                                    for n, r in enumerate((A + 8, A + 16, A + 24)))
        exch_read = lambda: flat(mk('ds_read_b128 %s, v%d offset:%d' % (v(RX + 4 * q, 4), vER, 1024 * q)) for q in range(6))

        def addv(d, x, y, n, pk):
            if pk:
                return flat(mk('v_pk_add_f32 %s, %s, %s' % (v(d + i, 2), v(x + i, 2), v(y + i, 2))) for i in range(0, n, 2))
            return flat(mk('v_add_f32 v%d, v%d, v%d' % (d + i, x + i, y + i)) for i in range(n))

        def finish(A, q, pk):
            L = addv(A, A, RX, 8, pk) + addv(RX + 8, RX + 8, RX + 16, 8, pk) + addv(A, A, RX + 8, 8, pk) + self.pack(A, A, 4)
            if l == 0:
                L += self.stores(['buffer_store_dwordx4 %s, v%d, %s, s%d offen' % (v(A, 4), vL16, self.srd(SRD_CL), sFin + q)])
                rs = self.row_stats(A, 4, RX, RX + 2)
                blk = I('\n'.join(x.text for x in rs[:9]), kind='block', src=[r for x in rs[:9] for r in x.src], dst=[('v', RX), ('v', RX + 1), ('v', RX + 2)], states=1, cost=60)
                L += [blk] + mk('s_nop 2') + rs[9:]
                st = self.stores(['buffer_store_dword v%d, v%d, %s, s%d offen' % (RX, vL16, self.srd(SRD_CL), sFin + 2 + q)])
                tk = tok(st[-1])
                return L + st, self.flag([tk], sFin + 4 + q)
            L += mk('v_permlane32_swap_b32 v%d, v%d\nv_permlane32_swap_b32 v%d, v%d' % (A, A + 2, A + 1, A + 3))
            L += mk('buffer_store_dwordx4 %s, v%d, %s, s%d offen %s' % (v(A, 4), vPA, self.srd(SRD_OUT), sFin + q, ('', 'sc1', 'nt', 'sc0 sc1')[o['outf']]))
            return L, []

        slots = []
        nt = o['ntail']
        order = [(i, js) for i in range(56 - nt) for js in range(2)] + [(i, 1) for i in range(56 - nt, 56)] + [(i, 0) for i in range(56 - nt, 56)]
        for i, js in order:
            blk, kap = divmod(i, 28)
            A = (AE, AL)[blk]
            sl = mfma(A, v(SEL, 4), v(RS, 4)) if kap == 0 and js == 0 else []
            slots.append(sl + mfma(A + 16 * js, a(W2A + 8 * kap + 4 * js, 4), v(hreg[i], 4), kap == 0 and js == 1))
        sidx = 0
        for i in range(npre, 56):
            sidx = max(sidx, 2 * (i - 16) + 1 if i >= 16 else 0)
            if i == 28:
                sidx = max(sidx, o['lateL'])
                slots[sidx] += (self.stamp('preL') if self.fine else []) + self.poll_check(sPL) + (self.stamp('gotL') if self.fine else [])
            slots[sidx] += hload(i)
            assert sidx <= 2 * i - 6
            sidx += 1 if 2 * (i + 1) - sidx - 2 < o['lead'] else 2
        if l == 0:
            for n, (A, R, B) in enumerate(w2rest):
                sj = 1 + o['w2sp'] * n
                slots[sj] += A
                for i, g in enumerate(R):
                    slots[sj + i] += g
                slots[sj + len(R)] += B
                assert sj + len(R) <= 2 * (u1 + n) - 4
        if True:
            slots[o['flag3'] if l else o['flag30']] += (self.stamp('preF') if self.fine else []) + hflag(3, p3) + (self.stamp('gotF') if self.fine else [])
        slots[o['pollL']] += self.poll_issue(sPL)
        for i in range(0, len(ad), 4):
            slots[2 * (i // 4) + 30] += ad[i:i + 4]
        slots[40] += resid(1)
        if l == 0:
            slots[52] += mk('s_waitcnt lgkmcnt(0)\ns_barrier')
        slots[46] += cinit(AL)
        if l == 1:
            slots[44] += mk('v_and_b32 v%d, 31, v0\nv_mul_u32_u24 v%d, 896, v%d\nv_lshrrev_b32 v%d, 5, v0\nv_lshl_add_u32 v%d, v%d, 4, v%d'
                            % (vPA, vPA, vPA, vPoll, vPA, vPoll, vPA))
        P.add(flat(slots[:56]))
        P.add(self.stamp('s4_E'))
        late = slots[56:]
        fin, fl = finish(AE, 0, False)
        xb0 = o['xbar']
        P.add(spread(late[:xb0], exch_write(AE), start=2, end=9))
        late[xb0] += (self.stamp('preX') if self.fine else []) + mk('s_waitcnt lgkmcnt(0)\ns_barrier') + (self.stamp('gotX') if self.fine else []) + exch_read()
        late[34] += (self.stamp('preY') if self.fine else []) + mk('s_barrier') + (self.stamp('gotY') if self.fine else [])
        late[44] += fl
        wl = exch_write(AL)
        if l == 1 and o['wb'] == 3:
            lw = P.newlabel('Lnowb')
            late[o['wbslot']] += [I('s_or_b32 s%d, s%d, s%d\ns_cmp_lg_u32 s%d, 0\ns_cbranch_scc1 %s\nbuffer_wbl2 sc1\n%s:' % (sT0, sM, sW, sT0, lw, lw), kind='block', cost=12)]
        for i in range(4):
            late[56 - nt + 2 + i] += [wl[2 + i]]
        P.add(spread(late[xb0:], fin, start=4, end=33 - xb0))
        P.add(self.stamp('s4_L'))
        P.add(wl[:2] + mk('s_waitcnt lgkmcnt(0)\ns_barrier') + exch_read())
        fin, fl = finish(AL, 1, True)
        P.add(fin + fl)
        P.add(self.stamp('x2_pub'))

    def build(self):
        P = self.P
        self.prologue()
        for l in range(2):
            self.layer = l
            self.s1(l)
            if self.stop == 's1_%d' % l:
                break
            self.kvx(l)
            if self.stop == 'o_%d' % l:
                break
            lnext = 'L_layer%d' % (l + 1)
            if l == 0:
                lsk = P.newlabel('Lskipmlp')
                P.add([I('s_cmp_ge_u32 s%d, 14\ns_cbranch_scc1 %s' % (sM, lsk), kind='block')])
                lp = P.newlabel('Lidle')
                t = [x.text for x in self.pa(28)] + ['s_mov_b32 s%d, %d' % (sT4, FXIN), lp + ':', 's_sleep %d' % self.o['isl'],
                                                     'buffer_load_dword v%d, v%d, %s, s%d offen sc1' % (vPoll, vPA, self.srd(SRD_CL), sT4),
                                                     's_add_u32 s%d, s%d, 1' % (sSpin, sSpin), 's_cmp_gt_u32 s%d, 0x40000' % sSpin, 's_cbranch_scc1 L_end',
                                                     's_waitcnt vmcnt(0)', 'v_cmp_ne_u32 vcc, s%d, v%d' % (sNonce, vPoll), 's_cbranch_vccnz %s' % lp,
                                                     's_sleep %d' % self.o['isl2']]
                def code_pf(n, first, end):
                    return ['s_getpc_b64 s[%d:%d]' % (sPm, sPm + 1), 'L_pc%d:' % n, 's_sub_u32 s%d, s%d, L_pc%d-%s' % (sPm, sPm, n, first),
                            's_subb_u32 s%d, s%d, 0' % (sPm + 1, sPm + 1),
                            's_lshr_b32 s%d, s%d, 3' % (sT1, sC), 's_lshl_b32 s%d, s%d, 1' % (sT1, sT1), 's_and_b32 s%d, s%d, 1' % (sT0, sM),
                            's_add_u32 s%d, s%d, s%d' % (sT1, sT1, sT0), 's_lshl_b32 s%d, s%d, 2' % (sT1, sT1), 's_add_u32 s%d, s%d, s%d' % (sT1, sT1, sW),
                            's_lshl_b32 s%d, s%d, 11' % (sT1, sT1), 'v_lshlrev_b32 v%d, 7, v0' % vT, 'v_add_u32 v%d, s%d, v%d' % (vT, sT1, vT),
                            'v_min_u32 v%d, %s-%s-4, v%d' % (vT, end, first, vT), 's_mov_b64 exec, 0xffff',
                            'global_load_dword v%d, v%d, s[%d:%d]' % (vPoll, vT, sPm, sPm + 1), 's_mov_b64 exec, -1']
                if self.o['cpf2'] & 1:
                    t = t[:-1] + code_pf(2, lnext, 'L_code_end') + ['s_waitcnt vmcnt(0)']
                t0 = code_pf(3, 'L_mlp0', lnext) if self.o['cpf2'] & 2 else []
                P.label('L_mlp0')
                self.ool.append('%s:\n%s\ns_waitcnt vmcnt(0) lgkmcnt(0)\n%s\ns_branch %s' % (lsk, '\n'.join(t0 + [self.idle_work()]), '\n'.join(t), lnext))
            else:
                if self.o['wb'] in (1, 2):
                    lw, lp = P.newlabel('Lwb'), P.newlabel('Lwbp')
                    P.add([I('s_cmp_ge_u32 s%d, 14\ns_cbranch_scc1 %s' % (sM, lw), kind='block')])
                    t = [lw + ':']
                    if self.o['outt']:
                        lo = P.newlabel('Lot')
                        t += ['s_cmp_lg_u32 s%d, 15' % sM, 's_cbranch_scc1 %s' % lo, 'v_lshlrev_b32 v%d, 7, v0' % vT, 's_mov_b32 exec_hi, 0xffffff']
                        for i in range(4):
                            t += ['s_add_u32 s%d, s%d, %d' % (sT2, sX, i * 56 * 128), 'buffer_load_dword v%d, v%d, %s, s%d offen' % (vDummy, vT, self.srd(SRD_OUT), sT2)]
                        t += ['s_mov_b64 exec, -1', 's_waitcnt vmcnt(0)', lo + ':']
                    t += ['s_cmp_lg_u32 s%d, 14' % sM, 's_cbranch_scc1 L_fin', 's_cmp_lg_u32 s%d, 0' % sW, 's_cbranch_scc1 L_fin']
                    t += [x.text for x in self.pa(14, blocks=True)]
                    t += ['s_mov_b32 s%d, %d' % (sT4, FH + 512 * self.o['wbblk'] if self.o['wbblk'] >= 0 else FX1), 's_sleep %d' % self.o['wbsl']] + (['buffer_wbl2 sc1', 's_waitcnt vmcnt(0)'] if self.o['wb'] == 2 else []) + [lp + ':', 's_sleep 4',
                          'buffer_load_dword v%d, v%d, %s, s%d offen sc1' % (vPoll, vPA, self.srd(SRD_CL), sT4),
                          's_add_u32 s%d, s%d, 1' % (sSpin, sSpin), 's_cmp_gt_u32 s%d, 0x40000' % sSpin, 's_cbranch_scc1 L_end',
                          's_waitcnt vmcnt(0)', 'v_cmp_ne_u32 vcc, s%d, v%d' % (sNonce, vPoll), 's_cbranch_vccnz %s' % lp,
                          's_sleep %d' % self.o['wbs2'], 'buffer_wbl2 sc1', 's_waitcnt vmcnt(0)', 's_branch L_fin']
                    self.ool.append('\n'.join(t))
                else:
                    P.add([I('s_cmp_ge_u32 s%d, 14\ns_cbranch_scc1 L_fin' % sM, kind='block')])
            self.s2(l)
            if self.stop == 'x1_%d' % l:
                P.label(lnext)
                break
            self.mlp(l)
            P.label(lnext)
            if l == 0:
                P('s_add_u32 s%d, s%d, %d\ns_add_u32 s%d, s%d, %d' % (sKv, sKv, KVP_L, sKvMy, sKvMy, KVP_L))
            if self.stop == 'x2_%d' % l:
                break
        P.add([I('s_cmp_lg_u32 s2, 0\ns_cbranch_scc1 L_fin\ns_cmp_lg_u32 s%d, 0\ns_cbranch_scc1 L_fin' % sW, kind='block')])
        P('s_mov_b64 exec, 1\nbuffer_store_dword v%d, off, %s, 0 sc1\ns_mov_b64 exec, -1' % (vNonce, self.srd(SRD_WS)))
        if self.probe is not None:
            P.add(self.stamp('end'))
            P.add([I('s_waitcnt lgkmcnt(0)\ns_sub_u32 s94, s94, s96\ns_lshl_b32 s94, s94, 2\ns_add_u32 s94, s94, 10000\nL_pr:\ns_memrealtime s[98:99]\ns_waitcnt lgkmcnt(0)\n'
                     's_sub_u32 s98, s98, s96\ns_cmp_lt_u32 s98, s94\ns_cbranch_scc1 L_pr', kind='block')])
        P.label('L_fin')
        if self.stamps:
            P('s_lshl_b32 s%d, s2, 2\ns_add_u32 s%d, s%d, s%d\ns_lshl_b32 s%d, s%d, 8\ns_add_u32 s%d, s%d, %d' % (sT0, sT0, sT0, sW, sT0, sT0, sT0, sT0, WS_STAMP))
            P.add(self.stamp('end'))
            P('s_memrealtime s[%d:%d]\ns_waitcnt lgkmcnt(0)\nv_writelane_b32 v%d, s%d, 63' % (sStamp, sStamp + 1, vStamp, sStamp))
            P('v_writelane_b32 v%d, s%d, 61' % (vStamp, sSpin))
            P('v_lshlrev_b32 v%d, 2, v0\nbuffer_store_dword v%d, v%d, %s, s%d offen' % (vT, vStamp, vT, self.srd(SRD_WS), sT0))
        P.label('L_end')
        P('s_endpgm')
        body, L = finalize(P.L)
        self.final = L
        ool = '\n'.join('\n'.join(('    ' + t if not t.endswith(':') else t) for t in b.split('\n') if t.strip()) for b in self.ool)
        head = open('cdna_kernels/%s.s.ref' % KNAME[:-7]).read().split('\n')
        hdr = [h for h in head if h.startswith(';') and '@launch' not in h]
        txt = '\n'.join(hdr) + '\n; @launch grid=(256,1,1) block=(256,1,1) lds=%d\n' % LDS_BYTES + DOC.lstrip('\n')
        txt += '.amdgcn_target "amdgcn-amd-amdhsa--gfx950"\n.text\n.globl %s\n.p2align 8\n.type %s,@function\n%s:\n' % (KNAME, KNAME, KNAME)
        txt += body + ool + '\nL_code_end:\n'
        txt += '''.section .rodata,"a"
.p2align 6
.amdhsa_kernel %s
  .amdhsa_next_free_vgpr 512
  .amdhsa_next_free_sgpr 102
  .amdhsa_accum_offset 256
  .amdhsa_group_segment_fixed_size 0
  .amdhsa_kernarg_size 88
  .amdhsa_user_sgpr_count 2
  .amdhsa_user_sgpr_kernarg_segment_ptr 1
  .amdhsa_system_sgpr_workgroup_id_x 1
.end_amdhsa_kernel
''' % KNAME
        return txt


if __name__ == '__main__':
    import argparse
    ap = argparse.ArgumentParser()
    ap.add_argument('-o', default='k.s')
    ap.add_argument('--stop', default=None)
    ap.add_argument('--stamps', action='store_true')
    ap.add_argument('opts', nargs='*')
    A = ap.parse_args()
    opt = {k: (x if k in ('probe', 'light') else int(x)) for k, x in (t.split('=') for t in A.opts)}
    g = Gen(stop=A.stop, stamps=A.stamps, **opt)
    open(A.o, 'w').write(g.build())
    if A.stamps:
        open(A.o + '.stamps', 'w').write('\n'.join(g.stamp_names))
    n = {}
    for x in g.final:
        n[x.kind] = n.get(x.kind, 0) + 1
    nops = sum(x.states for x in g.final if x.op == 's_nop')
    print('instructions', n, 'nop states', nops)
```

```python
import sys, struct
from asmgen import *

KNAME = 'interleave_layers__linear_attn_block__mixer_channel_mlp__prompt_kernel'


def f32(x):
    return '0x%08x' % struct.unpack('<I', struct.pack('<f', x))[0]


LOG2E = 1.4426950408889634
LN2 = 0.6931471805599453
MF = 'v_mfma_f32_32x32x16_bf16'

WS_XCC = 0x8000
WS_STAMP = 0x10000
WS_KVP = 0x200000
KVP_CH = 9216
KVP_L = 0xA0000
WS_CL = 0x400000
LOFF = 0xD9000
O_OFF, X1_OFF, H_OFF, XIN_OFF, XST_OFF, FL_OFF = 0, 0x20000, 0x40000, 0xB0000, 0xD0000, 0xD8000
FO, FX1, FXIN, FH = FL_OFF, FL_OFF + 512, FL_OFF + 1024, FL_OFF + 1536

L_WQ = 0
L_Q = 57344
L_XB = 28672
L_EX = 86016
L_XS = 86016
L_WO = 114688
L_KVS = 143616
L_KVB = L_KVS + 16384
L_CS = L_KVB + 2048
L_B2 = L_CS + 768
LDS_BYTES = 163840
assert L_B2 + 512 <= LDS_BYTES

SRD_WQ, SRD_WO, SRD_W1, SRD_W2, SRD_X, SRD_OUT, SRD_B1, SRD_B2, SRD_CL, SRD_WS = range(4, 44, 4)
sC, sM, sW, sNonce, sSlow, sX, sSpin = 44, 45, 46, 47, 48, 49, 50
sT0, sT1, sT2, sT3, sT4, sT5 = 51, 52, 53, 54, 55, 56
sLn2, sXcc, sWi = 57, 58, 59
sN28, sHalf = 60, 62
sZm = 64
sXin, sD1 = 66, 67
sKA = 68
sEb, sLb, sC0, sC1, sHs, sFe = 68, 69, 70, 71, 72, 73
sBlk, sOst, sFo, sFoMy, sKv, sKvMy, sHE, sHL, sPE, sPL = 74, 75, 76, 77, 78, 79, 80, 81, 82, 83
sHst = 84
sRot = 85
sQ0, sQ1 = 86, 87
sFin, sRes = 28, 34
sTag = 22
sPm = 88
sStamp = 90
sPC = 92

vLane, vL16, vDummy, vTr, vNonce, vMean, vRl, vW1X, _w1x1, vPoll, vPA = range(0, 11)
vT = 11
vStamp = 15
vPoll2, vPoll3 = 15, 5
W2A = 0
W1A = 224
W1V = 176


def w1reg(k):
    return a(W1A + 4 * k, 4) if k < 8 else v(W1V + 4 * (k - 8), 4)


def w1half(k, hh):
    return a(W1A + 4 * k + 2 * hh, 2) if k < 8 else v(W1V + 4 * (k - 8) + 2 * hh, 2)


def flat(LL):
    return [x for L in LL for x in L]


def mfma(D, A, B, first=False):
    return mk('%s %s, %s, %s, %s' % (MF, v(D, 16), A, B, '0' if first else v(D, 16)))


DOC = """
;   cluster c = 16 workgroups that share 128 tokens (ids with equal id%8, i.e. normally one die); member m = head m.
;   and nothing is reused, so the result does not depend on the placement.  Readers always bypass L1 (sc1).
"""


class Gen:
    def __init__(self, stop=None, stamps=False, **opt):
        self.P = Prog()
        self.ool = []
        self.stop = stop
        self.stamps = stamps
        self.nstamp = 0
        self.stamp_names = []
        self.probe = opt.pop('probe', None)
        self.light = opt.pop('light', None)
        self.fine = bool(self.light or self.probe)
        if self.light is not None:
            self.light = self.light.split('+')
            assert len(self.light) <= 4
        self.seen = {}
        self.o = dict(kvdelay=8, swat=0, resl=6, cpf2=3, swlate=0, xmask=1, stf=7, poll2=0, psl=0, pdo=5, pdx=2, p1=1, pdi=0, s1pair=1, sta=13, stb=33, stc=48, isl=8, isl2=8, pollE=16, n3=4, st0=10, st1=23, stpos=1, x0=6, xstep=8, xlag=12, flagpos=8, gend=26, pollL=20, lateL=32, flag3=12, xbar=13, ntail=8, lead=16, look=6, pref=0, touch=1, codepf=1, rot=1, stnt=0, idlewq=0, reuse=1, npre=14, wqlate=84, pf0=1, w1q=4, w1pre=4, w1o=19, nxb1=12, pfslot=50, w2fill=4, w2u1=22, w2sp=6, npre0=9, flag30=4, nsh=17, sh0=48, shgap=6, f3u=23, peu=22, alias=1, flat=24, pf2=98, htk=0, wb=0, wbblk=3, wbsl=100, wbs2=0, wbslot=36, outf=0, outt=0, idlew2=11, woslot=41, tslot=46, latespan=14, strot=1, w1b2=70, look2=10, l1touch=0, xsc1=1, storder=0)
        self.o.update(opt)

    def srd(self, r):
        return s(r, 4)

    def stamp(self, name):
        if self.probe is not None:
            self.seen[name] = self.seen.get(name, 0) + 1
            if self.probe == '%s#%d' % (name, self.seen[name]):
                return [I('s_memrealtime s[94:95]', kind='block', states=1)]
            return []
        if not self.stamps:
            return []
        if self.light is not None:
            self.seen[name] = self.seen.get(name, 0) + 1
            key = '%s#%d' % (name, self.seen[name])
            if name == 'end':
                self.stamp_names.append('end')
                t = ['s_memtime s[88:89]', 's_waitcnt lgkmcnt(0) vmcnt(0)', 'v_writelane_b32 v%d, s98, 62' % vStamp]
                for i, r in enumerate([100] + [90 + 2 * j for j in range(len(self.stamp_names) - 2)] + [88]):
                    t.append('v_writelane_b32 v%d, s%d, %d' % (vStamp, r, i))
                return [I('\n'.join(t), kind='block', drain_lgkm=True)]
            if name != 'start' and key not in self.light:
                return []
            r = 100 if name == 'start' else 90 + 2 * (len(self.stamp_names) - 1)
            self.stamp_names.append(key if name != 'start' else name)
            return [I('s_memtime s[%d:%d]' % (r, r + 1), kind='block')]
        i = self.nstamp
        self.nstamp += 1
        self.stamp_names.append(name)
        t = 's_memtime s[%d:%d]\ns_waitcnt lgkmcnt(0)\nv_writelane_b32 v%d, s%d, %d' % (sStamp, sStamp + 1, vStamp, sStamp, i)
        return [I(t, kind='block', dst=[], src=[], drain_lgkm=True, states=3)]

    def stores(self, lines, last=0):
        insts = mk('\n'.join(lines))
        src = [r for x in insts for r in x.src]
        wide = [r for x in insts for r in x.wide]
        ls, lb = self.P.newlabel('Lslow'), self.P.newlabel('Lback')
        fl = ' nt' if self.layer == 1 and self.o['stf'] & last else ''
        txt = 's_cmp_lg_u32 s%d, 0\ns_cbranch_scc1 %s\n%s\n%s:' % (sSlow, ls, '\n'.join(l + fl for l in lines), lb)
        self.ool.append('%s:\n%s\ns_branch %s' % (ls, '\n'.join(l + ' sc1' for l in lines), lb))
        return [I(txt, kind='block', src=src, nvm=len(lines), wide=wide, states=1, cost=8 + 4 * len(lines))]

    def flag(self, toks, soff, off=0):
        st = self.stores(['buffer_store_dword v%d, off, %s, s%d offset:%d' % (vNonce, self.srd(SRD_CL), soff, off)])[0]
        st.text = 's_mov_b64 exec, 1\n' + st.text + '\ns_mov_b64 exec, -1'
        st.cost += 8
        return [wait_tok(*toks), st]

    def poll_issue(self, soff, delay=0):
        return (mk('s_sleep %d' % delay) if delay else []) + mk('buffer_load_dword v%d, v%d, %s, s%d offen sc1' % (vPoll, vPA, self.srd(SRD_CL), soff))

    def poll_check(self, soff, tag=False):
        ls, lb = self.P.newlabel('Lspin'), self.P.newlabel('Lgot')

        def cmp(r):
            if tag:
                return 'v_lshrrev_b32 v%d, 16, v%d\nv_cmp_ne_u32 vcc, s%d, v%d' % (r, r, sTag, r)
            return 'v_cmp_ne_u32 vcc, s%d, v%d' % (sNonce, r)
        ld = lambda r: 'buffer_load_dword v%d, v%d, %s, s%d offen sc1' % (r, vPA, self.srd(SRD_CL), soff)
        if self.o['poll2']:
            l1 = self.P.newlabel('Lsp')
            t = [ls + ':', ld(vPoll2), 's_sleep 2', l1 + ':', ld(vPoll3), 's_waitcnt vmcnt(1)', cmp(vPoll2), 's_cbranch_vccz %s' % lb,
                 ld(vPoll2), 's_add_u32 s%d, s%d, 1' % (sSpin, sSpin), 's_cmp_gt_u32 s%d, 0x40000' % sSpin, 's_cbranch_scc1 L_end',
                 's_waitcnt vmcnt(1)', cmp(vPoll3), 's_cbranch_vccnz %s' % l1, 's_branch %s' % lb]
        else:
            t = [ls + ':'] + (['s_sleep %d' % self.o['psl']] if self.o['psl'] else []) + [ld(vPoll), 's_add_u32 s%d, s%d, 1' % (sSpin, sSpin), 's_cmp_gt_u32 s%d, 0x40000' % sSpin, 's_cbranch_scc1 L_end',
                 's_waitcnt vmcnt(0)', cmp(vPoll), 's_cbranch_vccnz %s' % ls, 's_branch %s' % lb]
        self.ool.append('\n'.join(t))
        return [I(cmp(vPoll) + '\ns_cbranch_vccnz %s\n%s:' % (ls, lb), kind='block', src=[('v', vPoll)], dst=[('x', 'vcc'), ('v', vPoll)], states=2, cost=8)]

    def pa(self, n, blocks=False, reg=vPA):
        L = 'v_and_b32 v%d, %d, v0\n' % (reg, 15 if n <= 16 else 31)
        if n not in (16, 32):
            L += 'v_min_u32 v%d, %d, v%d\n' % (reg, n - 1, reg)
        L += 'v_lshlrev_b32 v%d, 2, v%d\n' % (reg, reg)
        if blocks:
            L += 'v_lshrrev_b32 v%d, 4, v0\nv_lshl_add_u32 v%d, v%d, 7, v%d' % (vT + 3, reg, vT + 3, reg)
        return mk(L)

    def trbase(self, dst, RS, kh, add=0, xor16=None):
        t = vT
        L = ['v_lshrrev_b32 v%d, 5, v%d' % (dst, vLane),
             'v_mul_u32_u24 v%d, %d, v%d' % (dst, kh, dst),
             'v_bfe_u32 v%d, v%d, 2, 2' % (t, vLane),
             'v_add_u32 v%d, v%d, v%d' % (dst, dst, t),
             'v_mul_u32_u24 v%d, %d, v%d' % (dst, RS, dst),
             'v_bfe_u32 v%d, v%d, 4, 1' % (t, vLane)]
        if xor16 is not None:
            L.append('v_xor_b32 v%d, s%d, v%d' % (t, xor16, t))
        L += ['v_lshl_add_u32 v%d, v%d, 5, v%d' % (dst, t, dst),
              'v_and_b32 v%d, 3, v%d' % (t, vLane),
              'v_lshl_add_u32 v%d, v%d, 3, v%d' % (dst, t, dst)]
        if add:
            L.append('v_add_u32 v%d, %d, v%d' % (dst, add, dst))
        return mk('\n'.join(L))

    def frag_loads(self, dsts, srd, sbase, const0, stride=1024, flags='', st=sT0):
        out = []
        cur = None
        for i, d in enumerate(dsts):
            off = const0 + i * stride
            grp = []
            if cur is None or not (0 <= off - cur <= 4095):
                cur = off
                grp += mk('s_add_u32 s%d, s%d, %d' % (st, sbase, off))
            grp += mk('buffer_load_dwordx4 %s, v%d, %s, s%d offen offset:%d %s' % (d, vL16, self.srd(srd), st, off - cur, flags))
            out.append(grp)
        return out

    def stats_finish(self, acc, double_ln):
        t1, t2 = vT + 1, vT + 2
        L = ['v_mov_b32 v%d, v%d' % (t1, acc),
             'v_mov_b32 v%d, v%d' % (vMean, acc),
             'v_permlane32_swap_b32 v%d, v%d' % (vMean, t1),
             'v_mul_f32 v%d, %s, v%d' % (vMean, f32(1.0 / 448), vMean),
             'v_mul_f32 v%d, %s, v%d' % (t1, f32(1.0 / 448), t1),
             'v_fma_f32 v%d, -v%d, v%d, v%d' % (t1, vMean, vMean, t1),
             'v_max_f32 v%d, 0, v%d' % (t1, t1),
             'v_add_f32 v%d, %s, v%d' % (t2, f32(1e-5), t1),
             'v_rsq_f32 v%d, v%d' % (vRl, t2)]
        if double_ln:
            L += ['v_mul_f32 v%d, v%d, v%d' % (t2, vRl, vRl),
                  'v_fmaak_f32 v%d, v%d, v%d, %s' % (t1, t1, t2, f32(1e-5)),
                  'v_rsq_f32 v%d, v%d' % (t1, t1),
                  'v_mul_f32 v%d, v%d, v%d' % (vRl, vRl, t1)]
        else:
            L += ['v_mul_f32 v%d, %s, v%d' % (vRl, f32(LOG2E), vRl)]
        return mk('\n'.join(L))

    def split_act(self, d0, val, t):
        return mk('\n'.join([
            'v_cvt_pk_bf16_f32 v%d, v%d, v%d' % (d0 + 1, val, val),
            'v_and_b32 v%d, 0xffff0000, v%d' % (t, d0 + 1),
            'v_sub_f32 v%d, v%d, v%d' % (t, val, t),
            'v_cvt_pk_bf16_f32 v%d, v%d, v%d' % (d0, val, t),
            'v_and_b32 v%d, 0xffff, v%d' % (d0 + 1, d0 + 1),
            'v_cndmask_b32 v%d, v%d, 0, s[%d:%d]' % (d0 + 1, d0 + 1, sHalf, sHalf + 1)]))

    def split_w(self, d0, val, t):
        return mk('\n'.join([
            'v_cvt_pk_bf16_f32 v%d, v%d, v%d' % (d0, val, val),
            'v_and_b32 v%d, 0xffff0000, v%d' % (t, d0),
            'v_sub_f32 v%d, v%d, v%d' % (t, val, t),
            'v_cvt_pk_bf16_f32 v%d, v%d, 0' % (d0 + 1, t)]))

    def phi8(self, r0, R, T, eps):
        L = ['v_pk_mul_f32 %s, %s, %s' % (v(r0 + i, 2), v(r0 + i, 2), R(i)) for i in range(0, 8, 2)]
        for i in range(8):
            L += ['v_exp_f32 v%d, v%d clamp' % (T + i, r0 + i), 'v_max_f32 v%d, 0, v%d' % (r0 + i, r0 + i)]
        L += ['v_pk_fma_f32 %s, %s, s[%d:%d], %s op_sel:[0,1,0] op_sel_hi:[1,1,1]' % (v(r0 + i, 2), v(r0 + i, 2), sLn2 - 1, sLn2, v(T + i, 2)) for i in range(0, 8, 2)]
        L += ['v_pk_add_f32 %s, %s, %s op_sel_hi:[1,0]' % (v(r0 + i, 2), v(r0 + i, 2), v(eps, 2)) for i in range(0, 8, 2)]
        return mk('\n'.join(L))

    def pack(self, dst, src, n):
        return mk('\n'.join('v_cvt_pk_bf16_f32 v%d, v%d, v%d' % (dst + i, src + 2 * i, src + 2 * i + 1) for i in range(n)))

    def unpack(self, dst, src, n):
        L = []
        for i in reversed(range(n)):
            L.append('v_and_b32 v%d, 0xffff0000, v%d' % (dst + 2 * i + 1, src + i))
            L.append('v_lshlrev_b32 v%d, 16, v%d' % (dst + 2 * i, src + i))
        return mk('\n'.join(L))

    def dots(self, regs, acc, ones, first):
        L = []
        for i, r in enumerate(regs):
            z = first and i == 0
            L.append('v_dot2_f32_bf16 v%d, v%d, v%d, %s' % (acc, r, ones, '0' if z else 'v%d' % acc))
            L.append('v_dot2_f32_bf16 v%d, v%d, v%d, %s' % (acc + 1, r, r, '0' if z else 'v%d' % (acc + 1)))
        return mk('\n'.join(L))

    def dots_end(self, acc):
        return mk('v_permlane32_swap_b32 v%d, v%d\nv_add_f32 v%d, v%d, v%d' % (acc, acc + 1, acc, acc, acc + 1))

    def row_stats(self, src, n, acc, ones):
        return mk('v_mov_b32 v%d, 0x3f803f80' % ones) + self.dots(range(src, src + n), acc, ones, True) + self.dots_end(acc)

    def kv_lane_addr(self, d, t, u, gather):
        L = []
        if gather:
            L += ['v_and_b32 v%d, 31, v0' % t, 'v_lshrrev_b32 v%d, 5, v0' % d]
        else:
            L += ['v_lshrrev_b32 v%d, 5, v0' % t, 'v_and_b32 v%d, 15, v0' % u, 'v_lshl_add_u32 v%d, v%d, 1, v%d' % (t, u, t), 'v_bfe_u32 v%d, v0, 4, 1' % d]
        L += ['v_lshrrev_b32 v%d, 3, v%d' % (u, t), 'v_sub_u32 v%d, v%d, v%d' % (u, t, u)]
        if not gather:
            L += ['v_and_b32 v%d, 7, v%d' % (t, t), 'v_cmp_eq_u32 vcc, 7, v%d' % t, 'v_cndmask_b32 v%d, v%d, 31, vcc' % (u, u)]
        L += ['v_lshl_add_u32 v%d, v%d, 5, v%d' % (d, d, u)]
        sh, qs, base = (4, 10, L_KVS) if gather else (5, 3, L_KVB)
        L += ['s_lshl_b32 s%d, s%d, %d' % (sT2, sW, qs), 'v_lshlrev_b32 v%d, %d, v%d' % (d, sh, d), 'v_add_u32 v%d, s%d, v%d' % (d, sT2, d)]
        L += ['v_and_b32 v%d, 1, v%d' % (t, u), 'v_lshlrev_b32 v%d, %d, v%d' % (t, 5 + sh, t), 'v_lshrrev_b32 v%d, 1, v%d' % (u, u)]
        L += ['v_cmp_gt_u32 vcc, 4, v%d' % u]
        L += ['v_lshl_add_u32 v%d, v%d, %d, v%d' % (t, u, qs, t), 'v_add_u32 v%d, %d, v%d' % (t, 28 << sh, t)]
        L += ['s_and_b64 vcc, vcc, s[%d:%d]' % ((sZm, sZm + 1) if gather else (sPm, sPm + 1)), 'v_cndmask_b32 v%d, v%d, v%d, vcc' % (d, d, t),
              'v_add_u32 v%d, %d, v%d' % (d, base, d)]
        return mk('\n'.join(L))

    def wq_dma(self, va, q):
        if q:
            ad = 'v_lshrrev_b32 v%d, 2, v0\nv_mul_u32_u24 v%d, 2688, v%d\nv_and_b32 v%d, 3, v0\nv_lshl_add_u32 v%d, v%d, 4, v%d' % (va, va, va, vT, va, vT, va)
        else:
            ad = ('v_lshrrev_b32 v%d, 3, v0\nv_mul_u32_u24 v%d, 2688, v%d\nv_and_b32 v%d, 3, v0\nv_lshl_add_u32 v%d, v%d, 4, v%d\n'
                  'v_lshrrev_b32 v%d, 2, v0\nv_xor_b32 v%d, v%d, v0\nv_bfe_u32 v%d, v%d, 2, 1\nv_mul_u32_u24 v%d, 896, v%d\nv_add3_u32 v%d, v%d, v%d, s%d'
                  % (va, va, va, vT, va, vT, va, vT, vT, vT, vT, vT, vT, vT, va, va, vT, sQ0))
        rows = 16 if q else 8
        pre = mk('s_mul_i32 s%d, s%d, 56\ns_add_u32 s%d, s%d, 896' % (sQ1, sM, sQ0, sQ1)) + mk(ad)
        if q:
            pre += mk('v_add_u32 v%d, s%d, v%d' % (va, sQ1, va))
        pre += mk('s_mul_i32 s%d, s%d, %d\ns_lshl_b32 s%d, s%d, 10' % (sRot, sW, rows * 2688, sQ1, sW))
        out = []
        for t in range(7 if q else 14):
            out.append(mk('s_add_u32 m0, s%d, %d\ns_add_u32 s%d, s%d, %d\nbuffer_load_dwordx4 v%d, %s, s%d offen lds'
                          % (sQ1, (L_Q if q else L_WQ) + 4096 * t, sQ0, sRot, 4 * t * rows * 2688, va, self.srd(SRD_WQ), sQ0)))
        return pre, out

    def touch(self, items, va):
        if not self.o['touch']:
            return []
        txt = ['v_lshlrev_b32 v%d, 7, v0' % va]
        cur = None
        n = 0
        for nl, srd, sg, c in items:
            if nl != cur:
                txt.append('s_mov_b64 exec, 0x%x' % ((1 << nl) - 1))
                cur = nl
            txt.append('s_add_u32 s%d, s%d, %d' % (sT2, sg, c) if sg is not None else 's_mov_b32 s%d, %d' % (sT2, c))
            txt.append('buffer_load_dword v%d, v%d, %s, s%d offen sc1' % (vDummy, va, self.srd(srd), sT2))
            n += 1
        txt.append('s_mov_b64 exec, -1')
        return [I('\n'.join(txt), kind='block', nvm=n, dst=[('v', va)], src=[('v', 0)], states=1, cost=12 * n)]

    def touch_attn(self, lo, va):
        pre = mk('s_lshr_b32 s%d, s%d, 2\ns_lshl_b32 s%d, s%d, 10\ns_add_u32 s%d, s%d, s%d\ns_add_u32 s%d, s%d, %d\ns_add_u32 s%d, s%d, %d\ns_mul_i32 s%d, s%d, 896'
                 % (sT1, sM, sT1, sT1, sT1, sT1, sBlk, sT1, sT1, X1_OFF + 28672, sT3, sOst, X1_OFF, sT0, sW))
        pre = [I('\n'.join(x.text for x in pre) + '\ns_cmp_lt_u32 s%d, 14\ns_cselect_b32 s%d, s%d, s%d\ns_cselect_b32 s%d, s%d, s%d'
                 % (sM, sT1, sT1, sOst, sT3, sT3, sOst), kind='block', cost=36)]
        return pre + self.touch([(16, SRD_CL, sOst, lo), (16, SRD_CL, sT3, lo), (8, SRD_CL, sT1, lo), (7, SRD_CL, sT0, lo + FL_OFF)], va)

    def prefetch(self, va, items):
        txt, n = ['v_lshlrev_b32 v%d, 7, v0' % va], 0
        for srd, per in items:
            for j in range(0, per, 64):
                nl = min(64, per - j)
                txt += ['s_mul_i32 s%d, s%d, %d' % (sT2, sWi, per * 128), 's_add_u32 s%d, s%d, %d' % (sT2, sT2, j * 128),
                        's_mov_b32 exec_lo, 0x%x' % (((1 << nl) - 1) & 0xffffffff), 's_mov_b32 exec_hi, 0x%x' % (((1 << nl) - 1) >> 32),
                        'buffer_load_dword v%d, v%d, %s, s%d offen' % (vDummy, va, self.srd(srd), sT2)]
                n += 1
        return [I('\n'.join(txt + ['s_mov_b64 exec, -1']), kind='block', nvm=n, src=[('v', 0)], dst=[('v', va)], cost=20 * n)]

    def idle_work(self):
        va = vT
        l = self.P.newlabel('Lnowarm')
        T = ['s_cmp_lg_u32 s%d, 0' % sSlow, 's_cbranch_scc1 %s' % l,
             'v_lshlrev_b32 v%d, 7, v0' % va,
             's_and_b32 s%d, s%d, 1' % (sT0, sM), 's_lshl_b32 s%d, s%d, 2' % (sT0, sT0), 's_add_u32 s%d, s%d, s%d' % (sT0, sT0, sW)]
        ld = lambda srd, fl: 'buffer_load_dword v%d, v%d, %s, s%d offen %s' % (vDummy, va, self.srd(srd), sT2, fl)
        nw2 = self.o['idlew2']
        if nw2:
            T += ['s_lshr_b32 s%d, s%d, 3' % (sT1, sC), 's_lshl_b32 s%d, s%d, 3' % (sT1, sT1), 's_add_u32 s%d, s%d, s%d' % (sT1, sT1, sT0),
                  's_lshl_b32 s%d, s%d, 13' % (sT2, sT1)]
            for i in range(nw2):
                T += [ld(SRD_W2, ''), 's_add_u32 s%d, s%d, 131072' % (sT2, sT2)]
        for i in range(2 * self.o['htk'] - (self.o['htk'] > 1), 7):
            T += ['s_lshl_b32 s%d, s%d, 13' % (sT2, sT0), 's_add_u32 s%d, s%d, %d' % (sT2, sT2, H_OFF + i * 65536), ld(SRD_CL, 'sc1')]
        if not self.o['alias']:
            for i in range(2):
                T += ['s_lshl_b32 s%d, s%d, 13' % (sT2, sT0), 's_add_u32 s%d, s%d, %d' % (sT2, sT2, XIN_OFF + i * 65536), ld(SRD_CL, 'sc1')]
        T += ['s_lshl_b32 s%d, s%d, 12' % (sT2, sT0), 's_add_u32 s%d, s%d, %d' % (sT2, sT2, XST_OFF), 's_mov_b32 exec_hi, 0', ld(SRD_CL, 'sc1'), 's_mov_b64 exec, -1']
        T += [l + ':']
        return '\n'.join(T)

    def prologue(self):
        P = self.P
        o = self.o
        P('s_cmp_ge_u32 s2, 256\ns_cbranch_scc1 L_end')
        if self.probe is not None:
            P.add([I('s_memrealtime s[96:97]\ns_memrealtime s[94:95]', kind='block', states=1)])
        P('s_load_dwordx16 s[%d:%d], s[0:1], 0' % (sKA, sKA + 15))
        P('s_load_dwordx4 s[%d:%d], s[0:1], 64' % (sKA + 16, sKA + 19))
        P('s_load_dwordx2 s[%d:%d], s[0:1], 80' % (sKA + 20, sKA + 21))
        P('v_lshrrev_b32 v%d, 6, v0\nv_and_b32 v0, 63, v0\nv_readfirstlane_b32 s%d, v%d' % (vT, sW, vT))
        P('s_lshr_b32 s%d, s2, 3\ns_lshl_b32 s%d, s%d, 2\ns_add_u32 s%d, s%d, s%d' % (sM, sWi, sM, sWi, sWi, sW))
        if o['codepf']:
            P.add([I('s_getpc_b64 s[%d:%d]\nL_pc:' % (sPC, sPC + 1), kind='block', dst=[], states=1)])
            P('s_lshl_b32 s%d, s%d, 9\nv_lshlrev_b32 v%d, 7, v0\nv_add_u32 v%d, s%d, v%d' % (sT0, sWi, vT, vT, sT0, vT))
            P.add([I('v_min_u32 v%d, L_code_end-L_pc-4, v%d\ns_mov_b64 exec, 15\nglobal_load_dword v%d, v%d, s[%d:%d]\ns_mov_b64 exec, -1'
                     % (vT, vT, vDummy, vT, sPC, sPC + 1), kind='block', dst=[('v', vT)], src=[('v', vT)], nvm=1)])
        P('s_and_b32 s%d, s2, 7\ns_lshr_b32 s%d, s%d, 4\ns_lshl_b32 s%d, s%d, 3\ns_add_u32 s%d, s%d, s%d\ns_and_b32 s%d, s%d, 15'
          % (sC, sT0, sM, sT0, sT0, sC, sC, sT0, sM, sM))
        P('v_lshlrev_b32 v%d, 4, v0' % vL16)
        if self.stamps:
            P('v_mov_b32 v%d, 0' % vStamp)
            P.add(self.stamp('start'))
            if self.light is not None:
                P('s_memrealtime s[98:99]\ns_waitcnt lgkmcnt(0)')
            else:
                assert not o['poll2']
                P('s_memrealtime s[%d:%d]\ns_waitcnt lgkmcnt(0)\nv_writelane_b32 v%d, s%d, 62' % (sStamp, sStamp + 1, vStamp, sStamp))
        P('s_lshl_b32 s%d, s%d, 2\ns_add_u32 s%d, s%d, s%d\ns_mul_i32 s%d, s%d, %d' % (sX, sC, sX, sX, sW, sX, sX, 32 * 896))
        vq, vxb, vxh, vxa, vrd = 160, 163, 164, 165, 167
        P('v_lshrrev_b32 v%d, 5, v0\nv_and_b32 v%d, 31, v0\nv_xor_b32 v%d, v%d, v%d\nv_lshlrev_b32 v%d, 4, v%d\nv_mul_u32_u24 v%d, 896, v%d'
          % (vxh, vT, vxb, vT, vxh, vxb, vxb, vxh, vxh))
        ka = sKA

        def mksrd(r, p, size):
            P('s_mov_b32 s%d, s%d\ns_mov_b32 s%d, s%d\ns_mov_b32 s%d, %d\ns_mov_b32 s%d, 0x20000' % (r, p, r + 1, p + 1, r + 2, size, r + 3))
        P('s_lshl_b32 s%d, s%d, 14\ns_add_u32 s%d, s%d, %d' % (sT5, sW, sT5, sT5, L_XS))
        mksrd(SRD_X, ka + 0, 2048 * 896)
        if self.probe:
            P.add(self.stamp('karg'))

        def xdma(half):
            out = []
            for i in range(16):
                if half:
                    g = mk('s_mov_b32 s%d, %d\nv_xad_u32 v%d, v%d, s%d, v%d' % (sT0, ((2 * i) & 15) << 4, vxa + (i & 1), vxb, sT0, vxh))
                    g += mk('s_add_u32 s%d, s%d, %d\ns_add_u32 m0, s%d, %d' % (sT1, sX, 2 * i * 896 + 512, sT5, 1024 * i))
                    ld = 'buffer_load_dwordx4 v%d, %s, s%d offen lds' % (vxa + (i & 1), self.srd(SRD_X), sT1)
                    if o['xmask']:
                        m = 0xff00ffff if i & 4 else 0x00ffffff
                        out.append(g + [I('s_mov_b32 exec_lo, 0x%x\ns_mov_b32 exec_hi, 0x%x\n%s\ns_mov_b64 exec, -1' % (m, m, ld), kind='block', nvm=1,
                                          src=[('v', vxa + (i & 1))], cost=20)])
                    else:
                        out.append(g + mk(ld))
                    continue
                g = mk('s_add_u32 s%d, s%d, %d\ns_and_b32 s%d, s%d, 15' % (sT4, sM, i, sT4, sT4) if o['rot'] else 's_mov_b32 s%d, %d' % (sT4, i))
                g += mk('s_lshl_b32 s%d, s%d, 5\ns_and_b32 s%d, s%d, 0xf0\nv_xad_u32 v%d, v%d, s%d, v%d' % (sT0, sT4, sT0, sT0, vxa + (i & 1), vxb, sT0, vxh))
                g += mk('s_mul_i32 s%d, s%d, 1792\ns_add_u32 s%d, s%d, s%d\ns_lshl_b32 s%d, s%d, 10\ns_add_u32 m0, s%d, s%d' % (sT1, sT4, sT1, sT1, sX, sT4, sT4, sT4, sT5))
                g += mk('buffer_load_dwordx4 v%d, %s, s%d offen lds' % (vxa + (i & 1), self.srd(SRD_X), sT1))
                out.append(g)
            return out
        mksrd(SRD_WQ, ka + 2, 448 * 2688)
        if o['pf0']:
            P('v_lshlrev_b32 v%d, 7, v0\ns_lshl_b32 s%d, s%d, 2\ns_add_u32 s%d, s%d, s%d\ns_mul_i32 s%d, s%d, %d\ns_mul_i32 s%d, s%d, %d\ns_add_u32 s%d, s%d, s%d\ns_mul_i32 s%d, s%d, 49'
              % (vxa, sT0, sM, sT0, sT0, sW, sT0, sT0, 14 * 128, sT1, sC, 128 * 896, sT0, sT0, sT1, sT1, sWi))
            if o['pf0'] == 1:
                P('v_add_u32 v%d, s%d, v0\nv_mul_u32_u24 v%d, 37450, v%d\nv_lshrrev_b32 v%d, 19, v%d\nv_mul_u32_u24 v%d, 896, v%d\nv_lshl_add_u32 v%d, v%d, 7, v%d'
                  % (vT, sT1, vxa + 1, vT, vxa + 1, vxa + 1, vxa + 1, vxa + 1, vxa + 1, vT, vxa + 1))
                P.add([I('s_mov_b64 exec, 0x3fff\nbuffer_load_dword v%d, v%d, %s, s%d offen\ns_mov_b32 exec_lo, -1\ns_mov_b32 exec_hi, 0x1ffff\n'
                         'buffer_load_dword v%d, v%d, %s, 0 offen offset:896\ns_mov_b64 exec, -1'
                         % (vDummy, vxa, self.srd(SRD_X), sT0, vDummy, vxa + 1, self.srd(SRD_WQ)), kind='block', nvm=2, src=[('v', vxa), ('v', vxa + 1)])])
            else:
                P.add([I('s_mov_b64 exec, 0x3fff\nbuffer_load_dword v%d, v%d, %s, s%d offen\ns_mov_b64 exec, -1' % (vDummy, vxa, self.srd(SRD_X), sT0),
                         kind='block', nvm=1, src=[('v', vxa)])])
                P.add(self.prefetch(vxa, [(SRD_WQ, 74)]))
        body = [x.text for x in xdma(0)[0]]
        body[0] = 's_add_u32 s%d, s%d, s%d' % (sT4, sM, sT2) if o['rot'] else 's_mov_b32 s%d, s%d' % (sT4, sT2)
        loop = I('\n'.join(['s_mov_b32 s%d, 0' % sT2, 'L_xa:'] + body[:-1] + ['s_add_u32 s%d, s%d, 1' % (sT2, sT2), 's_cmp_lt_u32 s%d, 16' % sT2, body[-1],
                                                                            's_cbranch_scc1 L_xa']), kind='block', nvm=16, src=[('v', vxb), ('v', vxh)] + regs_of(s(SRD_X, 4)), dst=[('v', vxa)])
        tA = tok(loop)
        P.add([loop])
        if self.probe:
            P.add(self.stamp('xiss'))
        P('s_load_dword s%d, s[%d:%d], 0' % (sNonce, ka + 20, ka + 21))
        mksrd(SRD_OUT, ka + 16, 2048 * 896)
        pre, wq = self.wq_dma(vq, False)
        self.tok_wq1, self.tok_wq = tok(wq[7][-1]), tok(wq[-1][-1])
        P.add(pre + flat(wq[:8]))
        mksrd(SRD_WO, ka + 4, 448 * 896)
        mksrd(SRD_W1, ka + 8, 448 * 3584)
        mksrd(SRD_B1, ka + 10, 3584)
        mksrd(SRD_W2, ka + 12, 1792 * 896)
        mksrd(SRD_B2, ka + 14, 896)
        mksrd(SRD_WS, ka + 20, WS_CL)
        P('s_lshl_b32 s%d, s%d, 21\ns_add_u32 s%d, s%d, %d' % (sT0, sC, sT0, sT0, WS_CL))
        P('s_add_u32 s%d, s%d, s%d\ns_addc_u32 s%d, s%d, 0\ns_mov_b32 s%d, 0x200000\ns_mov_b32 s%d, 0x20000'
          % (SRD_CL, ka + 20, sT0, SRD_CL + 1, ka + 21, SRD_CL + 2, SRD_CL + 3))
        P('s_mov_b32 s%d, %s\ns_mov_b32 s%d, 0\ns_mov_b32 s%d, -1' % (sLn2, f32(LN2), sHalf, sHalf + 1))
        P('s_mov_b32 s%d, 0x10000000\ns_mov_b32 s%d, 0x10000000\ns_mov_b32 s%d, 0' % (sN28, sN28 + 1, sSpin))
        P('s_getreg_b32 s%d, hwreg(HW_REG_XCC_ID, 0, 4)' % sXcc)
        P('s_and_b32 s%d, s%d, 1\ns_sub_u32 s%d, 3, s%d' % (sEb, sM, sLb, sEb))
        P('s_cmp_eq_u32 s%d, 3\ns_cselect_b32 s%d, -1, 0\ns_mov_b32 s%d, 0' % (sW, sZm + 1, sZm))
        P('s_lshr_b32 s%d, s%d, 3' % (sD1, sC) if o['strot'] else 's_mov_b32 s%d, 0' % sD1)
        c0 = -2.0 * 0.7978845608028654 * LOG2E
        P('s_mov_b32 s%d, %s\ns_mov_b32 s%d, %s' % (sC0, f32(c0), sC1, f32(c0 * 0.044715)))
        P('s_lshr_b32 s%d, s%d, 1\ns_lshl_b32 s%d, s%d, 2\ns_and_b32 s%d, s%d, 1\ns_lshl_b32 s%d, s%d, 1\ns_add_u32 s%d, s%d, s%d\ns_lshr_b32 s%d, s%d, 1\ns_add_u32 s%d, s%d, s%d'
          % (sFe, sM, sFe, sFe, sT0, sW, sT0, sT0, sFe, sFe, sT0, sT0, sW, sFe, sFe, sT0))
        P('s_lshl_b32 s%d, s%d, 15\ns_lshl_b32 s%d, s%d, 11\ns_add_u32 s%d, s%d, s%d' % (sBlk, sW, sOst, sM, sOst, sOst, sBlk))
        P('s_lshl_b32 s%d, s%d, 7\ns_add_u32 s%d, s%d, %d\ns_lshl_b32 s%d, s%d, 2\ns_add_u32 s%d, s%d, s%d' % (sFo, sW, sFo, sFo, FL_OFF, sT0, sM, sFoMy, sFo, sT0))
        P('s_lshl_b32 s%d, s%d, 2\ns_add_u32 s%d, s%d, s%d\ns_mul_i32 s%d, s%d, %d\ns_add_u32 s%d, s%d, %d' % (sT1, sM, sT1, sT1, sW, sKv, sT1, KVP_CH, sKv, sKv, WS_KVP))
        P('s_lshl_b32 s%d, s%d, 9\ns_add_u32 s%d, s%d, s%d' % (sKvMy, sC, sKvMy, sKvMy, sKv))
        P('s_lshl_b32 s%d, s%d, 11\ns_add_u32 s%d, s%d, %d' % (sHst, sT1, sHst, sHst, H_OFF))
        P('s_lshl_b32 s%d, s%d, 11\ns_add_u32 s%d, s%d, %d' % (sT1, sW, sT1, sT1, H_OFF))
        P('s_mul_i32 s%d, s%d, 114688\ns_add_u32 s%d, s%d, s%d\ns_mul_i32 s%d, s%d, 114688\ns_add_u32 s%d, s%d, s%d' % (sHE, sEb, sHE, sHE, sT1, sHL, sLb, sHL, sHL, sT1))
        P('s_lshl_b32 s%d, s%d, 9\ns_add_u32 s%d, s%d, s%d\ns_add_u32 s%d, s%d, %d' % (sPE, sEb, sPE, sPE, sFo, sPE, sPE, FH - FL_OFF))
        P('s_lshl_b32 s%d, s%d, 9\ns_add_u32 s%d, s%d, s%d\ns_add_u32 s%d, s%d, %d' % (sPL, sLb, sPL, sPL, sFo, sPL, sPL, FH - FL_OFF))
        self.xreg0 = xr = [16 + 4 * i if i < 20 else 176 + 4 * (i - 20) for i in range(28)]
        P('v_and_b32 v%d, 15, v0\nv_lshrrev_b32 v%d, 5, v0\nv_xor_b32 v%d, v%d, v%d\nv_lshlrev_b32 v%d, 4, v%d\nv_and_b32 v%d, 31, v0\nv_lshl_add_u32 v%d, v%d, 9, v%d\nv_add_u32 v%d, s%d, v%d'
          % (vT, vrd, vrd, vrd, vT, vrd, vrd, vT, vrd, vT, vrd, vrd, sT5, vrd))
        xrd = lambda k: mk('v_xor_b32 v%d, %d, v%d\nds_read_b128 %s, v%d' % (vrd + 1 + (k & 1), 32 * (k & 15), vrd, v(xr[k], 4), vrd + 1 + (k & 1)))
        vrs = vrd + 3
        P('v_and_b32 v%d, 15, v0\nv_lshlrev_b32 v%d, 4, v%d\nv_lshrrev_b32 v%d, 5, v0\nv_lshl_add_u32 v%d, v%d, 3, v%d\nv_and_b32 v%d, 31, v0\nv_lshl_add_u32 v%d, v%d, 9, v%d\nv_add_u32 v%d, s%d, v%d'
          % (vrs, vrs, vrs, vT, vrs, vT, vrs, vT, vrs, vT, vrs, vrs, sT5, vrs))
        P('s_and_b32 s%d, s%d, 7\ns_lshl_b32 s%d, s%d, 6\nv_xor_b32 v%d, s%d, v%d' % (sT0, sM, sT0, sT0, vrs, sT0, vrs))

        def resrd(half):
            l = P.newlabel('Lres')
            t = ['s_cmp_%s_u32 s%d, 8' % ('lt' if half else 'ge', sM), 's_cbranch_scc1 %s' % l]
            for g in range(4):
                t += ['v_xor_b32 v%d, %d, v%d' % (vrs + 1, 16 * g, vrs), 'ds_read_b64 %s, v%d' % (a(216 + 2 * g, 2), vrs + 1)]
            return [I('\n'.join(t + [l + ':']), kind='block', src=[('v', vrs)], dst=[('v', vrs + 1)])]
        P.add(self.stamp('issued'))
        P.add([wait_tok(tA)])
        P.add(self.stamp('xA'))
        for k in range(16):
            P.add(xrd(k))
        P.add(resrd(0))
        vS, vOne = 172, 174
        P('v_mov_b32 v%d, 0x3f803f80\ns_waitcnt lgkmcnt(0)' % vOne)
        xb = xdma(1)
        self.tok_xb = tok(xb[-1][-1])
        d = self.dots([xr[k] + i for k in range(16) for i in range(4)], vS, vOne, True)
        P.add(spread(xb[:o['nxb1']], d))
        self.late_dma = xb[o['nxb1']:] + wq[8:]
        self.late_rd = [xrd(k) for k in range(16, 28)] + [resrd(1)]
        self.late_dots = self.dots([xr[k] + i for k in range(16, 28) for i in range(4)], vS, vOne, False) + self.dots_end(vS)
        P('s_add_u32 s%d, s%d, 0x01010101' % (sNonce, sNonce))
        P('v_mov_b32 v%d, s%d' % (vNonce, sNonce))
        P('s_lshl_b32 s%d, s%d, 4\ns_add_u32 s%d, s%d, s%d\ns_lshl_b32 s%d, s%d, 7\ns_add_u32 s%d, s%d, %d'
          % (sT2, sC, sT2, sT2, sM, sT2, sT2, sT2, sT2, WS_XCC))
        P('s_add_u32 s%d, s%d, s%d\nv_mov_b32 v%d, s%d\ns_mov_b64 exec, 1' % (sT3, sNonce, sXcc, vT, sT3))
        P('buffer_store_dword v%d, off, %s, s%d sc1' % (vT, self.srd(SRD_WS), sT2))
        P('s_mov_b64 exec, -1')

    def s1(self, l):
        P = self.P
        o = self.o
        AK, AV, AQ, WB, SB = 96, 112, 128, 144, 160
        RLB, XE = SB, SB + 8
        NB = 4
        vS = 172 if l == 0 else vT + 2
        P.comment('==== layer %d : S1' % l)
        kh = 8 if l == 0 else 4
        vTrV, vTrQ, vCs = vT + 3, (vT + 2 if l == 0 else vDummy), vPA
        trkv = self.trbase(vTr, 128, kh, add=L_WQ) + mk('v_bfe_u32 v%d, v0, 3, 1\nv_lshl_add_u32 v%d, v%d, 6, v%d\nv_xor_b32 v%d, 64, v%d' % (vT, vTr, vT, vTr, vTrV, vTr))
        trq = self.trbase(vTrQ, 64, kh, add=L_Q)
        fin = self.stats_finish(vS, False)
        fin += mk('s_lshl_b32 s%d, s%d, 12\ns_add_u32 s%d, s%d, %d' % (sT4, sW, sT4, sT4, L_KVS))
        bounce = mk('v_and_b32 v%d, 31, v0\nv_lshl_add_u32 v%d, v%d, 2, s%d\nds_write_b32 v%d, v%d' % (vT + 1, vT + 1, vT + 1, sT4, vT + 1, vRl))
        fin += bounce
        fin += mk('v_sub_f32 v%d, 0, v%d' % (vMean, vMean)) + self.split_act(XE, vMean, vT)
        fin += mk('v_cndmask_b32 v%d, v%d, 0, s[%d:%d]\nv_mov_b32 v%d, 0\nv_mov_b32 v%d, 0' % (XE, XE, sHalf, sHalf + 1, XE + 2, XE + 3))
        if l == 0:
            xreg = self.xreg0
            P.add(trkv)
            P.add([wait_tok(self.tok_wq1)])
            P('s_barrier')
            P.add(self.stamp('wq_ready'))
            lds = []
        else:
            xreg = [16 + 4 * (i % 20) for i in range(28)]
            P.add(self.pa(28))
            P('s_add_u32 s%d, s%d, %d' % (sT4, sFo, FXIN - FL_OFF))
            P.add(self.poll_issue(sT4, o['pdi']))
            P('s_add_u32 s%d, s%d, s%d\ns_lshl_b32 s%d, s%d, 13' % (sT5, sBlk, sXin, sT3, sW))
            P.add(trkv + trq)
            lds = self.frag_loads([v(r, 4) for r in xreg], SRD_CL, sT5, 0, flags='sc1')
        nq = 0 if l == 0 else 8
        jobs = []
        for k in range(28):
            if l == 0 and k == 16:
                jobs += [(t, kk) for kk in range(7) for t in 'KV']
            jobs += [('k', k), ('v', k)] + ([('q', k)] if k < nq else [])
        jobs += [('k', 'e'), ('v', 'e')]
        nmain = len(jobs)
        jobs += [('q', k) for k in range(nq, 28)] + ([('q', 'e')] if l else [('Q', kk) for kk in range(7)])
        vo, vb, CSA = RLB, RLB + 4, 208

        def rd(j):
            t, k = jobs[j]
            b = WB + 4 * (j % NB)
            if k == 'e':
                return mk('ds_read_b64 %s, v%d offset:%d\nv_mov_b32 v%d, 0\nv_mov_b32 v%d, 0' % (v(b, 2), vCs, 256 * 'qkv'.index(t), b + 2, b + 3))
            base = {'q': vTrQ, 'k': vTr, 'v': vTrV, 'K': vb, 'V': vb + 1, 'Q': vTr}[t]
            rs = 64 if t in 'qQ' else 128
            return mk('ds_read_b64_tr_b16 %s, v%d offset:%d\nds_read_b64_tr_b16 %s, v%d offset:%d' % (v(b, 2), base, 16 * rs * k, v(b + 2, 2), base, 16 * rs * k + (32 // kh) * rs))
        for j in range(NB):
            P.add(rd(j))
        if l == 1:
            P.add(self.poll_check(sT4))
            P.add(self.stamp('x2_seen'))
            P.add(flat(lds[:o['look']]))
            P('s_add_u32 s%d, s%d, 1\nv_mov_b32 v%d, s%d' % (sNonce, sNonce, vNonce, sNonce))
        P('v_and_b32 v%d, 31, v0\nv_lshlrev_b32 v%d, 3, v%d\nv_add_u32 v%d, %d, v%d' % (vCs, vCs, vCs, vCs, L_CS, vCs))
        slots = []
        for j, (t, k) in enumerate(jobs):
            w = v(WB + 4 * (j % NB), 4)
            if t.isupper():
                sl = mfma(CSA + 16 * (t == 'V'), v(CSA + 16 if t == 'Q' else vo, 4), w, k == 0)
            else:
                x = v(XE if k == 'e' else xreg[k], 4)
                A, B = (w, x) if t == 'q' else (x, w)
                sl = mfma({'q': AQ, 'k': AK, 'v': AV}[t], A, B, k == 0)
            if l == 0 and j == 32 - NB:
                sl += self.late_dots + [wait_tok(self.tok_wq)] + mk('s_waitcnt lgkmcnt(0)\ns_barrier') + (self.stamp('bar2') if self.fine else [])
                sl += mk('s_mul_i32 s%d, s%d, %d\nv_add_u32 v%d, s%d, v%d\nv_add_u32 v%d, s%d, v%d' % (sT0, sW, 7 * 2048, vb, sT0, vTr, vb + 1, sT0, vTrV))
            if j % 2 == 0 and j + 1 < len(jobs) and j + 1 != nmain and o['s1pair']:
                also_waits_for(sl[0], v(WB + 4 * ((j + 1) % NB), 4))
            if j + NB < len(jobs) and not (j < nmain <= j + NB):
                sl += rd(j + NB)
            slots.append(sl)
        if l == 0:
            n = len(self.late_dma)
            for i, g in enumerate(self.late_dma):
                slots[(i * o['latespan']) // n] += g
            r0 = 32 - NB - 7
            slots[r0] += [wait_tok(self.tok_xb)]
            for i, g in enumerate(self.late_rd):
                slots[r0 + i // 2] += g
            slots[29] += mk('\n'.join('v_mov_b32 v%d, 0x3f803f80' % (vo + i) for i in range(4)))
            for i in range(0, len(fin), 4):
                slots[30 + i // 4] += fin[i:i + 4]
            pre, qd = self.wq_dma(175, True)
            self.tok_q = tok(qd[-1][-1])
            for i, g in enumerate([pre] + qd):
                slots[37 + i] += g
            slots[o['tslot']] += self.prefetch(vT, [(SRD_WO, 25)]) + self.touch_attn(0, vT)
            slots[47] += mk('v_and_b32 v%d, 31, v0\nv_lshlrev_b32 v%d, 2, v%d\ns_lshl_b32 s%d, s%d, 8\nv_add_u32 v%d, %d, v%d\nv_add_u32 v%d, s%d, v%d'
                            % (vb, vb, vb, sT0, sW, vb, L_KVB, vb, vb + 1, sT0, vb))
            slots[48] += mk('\n'.join('ds_write_b32 v%d, v%d offset:%d' % (vb + 1, CSA + 16 * t, 128 * t) for t in range(2)))
            slots[50] += mk('s_waitcnt lgkmcnt(0)\ns_barrier')
            for t in range(2):
                r = RLB
                slots[50 + 5 * t] += mk('\n'.join('ds_read_b32 v%d, v%d offset:%d' % (r + ww, vb, 256 * ww + 128 * t) for ww in range(4)))
                slots[53 + 5 * t] += mk('v_add_f32 v%d, v%d, v%d\nv_add_f32 v%d, v%d, v%d\nv_add_f32 v%d, v%d, v%d' % (r, r, r + 1, r + 2, r + 2, r + 3, r, r, r + 2))
                slots[54 + 5 * t] += self.split_w(r + 2, r, r + 1) + mk('ds_write_b64 v%d, %s offset:%d' % (vCs, v(r + 2, 2), 256 * (t + 1)))
        else:
            n = o['look']
            for j in range(0, nmain, 2):
                if n < 28:
                    k_free = n - 20
                    assert k_free < 0 or j >= jobs.index(('q', k_free))
                    slots[j] += lds[n]
                    n += 1
            st = self.frag_loads([v(SB + 4 * (i % 4), 4) for i in range(7)], SRD_CL, sT3, XST_OFF, st=sT1, flags='sc1')
            a0, a1 = o['sta'], o['stb']
            for i in range(4):
                slots[a0 + 2 * i] += st[i]
            ex = []
            for i in range(1, 16):
                ex += mk('v_add_f32 v%d, v%d, v%d' % (vS, vS if i > 1 else SB, SB + i))
            for i in range(0, 15, 2):
                slots[a1 - 8 + i // 2] += ex[i:i + 2]
            for i in range(3):
                slots[a1 + 2 * i] += st[4 + i]
            ex = flat(mk('v_add_f32 v%d, v%d, v%d' % (vS, vS, SB + i)) for i in range(12)) + fin
            e0 = o['stc']
            per = -(-len(ex) // (61 - e0))
            for i in range(61 - e0):
                slots[e0 + i] += ex[i * per:(i + 1) * per]
        RB = [WB + 4 * ((nmain - 4 + g) % NB) for g in range(4)]
        vEps = vT + 1
        slots[nmain - 5] += mk('v_lshrrev_b32 v%d, 5, v0\nv_lshl_add_u32 v%d, v%d, 4, s%d' % (vT + 2, vT + 2, vT + 2, sT4))
        for g in range(4):
            slots[nmain - 4 + g] += mk('ds_read_b128 %s, v%d offset:%d' % (v(RB[g], 4), vT + 2, 32 * g))
        slots[nmain - 1] += mk('v_mov_b32 v%d, 0x3f803f80\nv_add_u32 v%d, s%d, v%d\nv_mov_b32 v%d, %s' % (vPoll, vT, sT4, vL16, vEps, f32(1e-6)))
        vG = SB + 12
        ga = self.kv_lane_addr(vG, vG + 1, vG + 2, gather=True)
        for i in range(0, len(ga), 3):
            slots[(o['stb'] + 1 if l else 60) + i // 3] += ga[i:i + 3]
        P.add(flat(slots[:nmain]))
        P.add(self.stamp('s1_kv_mfma'))
        DK = WB
        for hf in range(2):
            R = lambda i: v(RB[2 * hf + i // 4] + i % 4, 2)
            P.add(self.phi8(AK + 8 * hf, R, RLB, vEps) + self.pack(AK + 4 * hf, AK + 8 * hf, 4))
            P.add(flat(mk('v_pk_mul_f32 %s, %s, %s' % (v(AV + 8 * hf + i, 2), v(AV + 8 * hf + i, 2), R(i))) for i in range(0, 8, 2)))
            P.add(self.pack(AV + 4 * hf, AV + 8 * hf, 4))
            for i in range(4):
                P('v_cndmask_b32 v%d, v%d, v%d, s[%d:%d]' % (AV + 4 * hf + i, AV + 4 * hf + i, vPoll, sN28, sN28 + 1))
        P.add(mfma(DK, v(AK, 4), v(AV, 4), True) + mfma(DK, v(AK + 4, 4), v(AV + 4, 4)))
        P('s_mov_b32 s%d, 0x80808080\ns_mov_b32 s%d, 0x80808080' % (sT0 + 1, sT0 + 2))
        for q in range(4):
            P('ds_write_b128 v%d, %s offset:%d' % (vT, v(DK + 4 * q, 4), 1024 * q))
        P('v_lshlrev_b32 v%d, 3, v0\ns_waitcnt lgkmcnt(0)\ns_barrier' % vT)
        for ww in range(4):
            P('ds_read_b128 %s, v%d offset:%d' % (v(AK + 4 * ww, 4), vG, 4096 * ww))
        if l == 1:
            for j in range(nmain, nmain + NB):
                P.add(rd(j))
        for x, y in ((AK, AK + 4), (AK + 8, AK + 12), (AK, AK + 8)):
            for i in (0, 2):
                P('v_pk_add_f32 %s, %s, %s' % (v(x + i, 2), v(x + i, 2), v(y + i, 2)))
        P.add(self.pack(AK, AK, 2))
        for i in range(2):
            P('v_cndmask_b32 v%d, v%d, v%d, s[%d:%d]' % (AK + i, AK + i, vNonce, sT0 + 1, sT0 + 2))
        P('buffer_store_dwordx2 %s, v%d, %s, s%d offen sc1' % (v(AK, 2), vT, self.srd(SRD_WS), sKvMy))
        P.add(self.stamp('kv_pub'))
        PQ = self.PQ = 104

        def qepi():
            L = []
            for hf in range(2):
                L += self.phi8(AQ + 8 * hf, lambda i: v(vRl, 2) + ' op_sel_hi:[1,0]', 32, vEps) + self.pack(PQ + 4 * hf, AQ + 8 * hf, 4)
            for i in (6, 7):
                L += mk('v_cndmask_b32 v%d, v%d, 0, s[%d:%d]' % (PQ + i, PQ + i, sHalf, sHalf + 1))
            return L
        if l == 0:
            P.add(trq + mk('\n'.join('v_mov_b32 v%d, 0x3f803f80' % (CSA + 16 + i) for i in range(4))))
            P('s_mul_i32 s%d, s%d, %d\nv_add_u32 v%d, s%d, v%d' % (sT0, sW, 7 * 1024, vTr, sT0, vTrQ))
            pre = [wait_tok(self.tok_q)] + mk('s_barrier') + flat(rd(j) for j in range(nmain, nmain + NB))
            va = CSA + 20
            post = mk('v_and_b32 v%d, 31, v0\nv_lshlrev_b32 v%d, 2, v%d\nv_add_u32 v%d, %d, v%d\ns_lshl_b32 s%d, s%d, 7\nv_add_u32 v%d, s%d, v%d\nds_write_b32 v%d, v%d'
                      % (va, va, va, va, L_KVS, va, sT0, sW, va + 1, sT0, va, va + 1, CSA))

            def qfin():
                L = mk('\n'.join('ds_read_b32 v%d, v%d offset:%d' % (WB + 4 + ww, va, 128 * ww) for ww in range(4)))
                L += mk('v_add_f32 v%d, v%d, v%d\nv_add_f32 v%d, v%d, v%d\nv_add_f32 v%d, v%d, v%d' % (WB + 4, WB + 4, WB + 5, WB + 6, WB + 6, WB + 7, WB + 4, WB + 4, WB + 6))
                L += self.split_w(WB, WB + 4, WB + 5) + mk('v_mov_b32 v%d, 0\nv_mov_b32 v%d, 0\nds_write_b64 v%d, %s' % (WB + 2, WB + 3, va + 2, v(WB, 2)))
                return L + mfma(AQ, v(WB, 4), v(XE, 4)) + qepi()
            post += mk('v_mov_b32 v%d, v%d' % (va + 2, vCs))
            self.staging(pre, slots[nmain:], post, qfin)
        else:
            if o['swat']:
                slots[nmain + o['swat']] += self.stamp('sweep_start') + self.sweep_loads()
            P.add(spread(slots[nmain:], self.kvx_pre(1)))
            P.add(qepi())

    PARK = 140

    def wo_dma(self, vwo):
        wo = [mk('v_lshrrev_b32 v%d, 2, v0\nv_mul_u32_u24 v%d, 896, v%d\nv_and_b32 v%d, 3, v0\nv_lshl_add_u32 v%d, v%d, 4, v%d\ns_lshl_b32 s%d, s%d, 6\nv_add_u32 v%d, s%d, v%d'
                 % (vwo, vwo, vwo, vT, vwo, vT, vwo, sQ0, sM, vwo, sQ0, vwo))
              + mk('s_mul_i32 s%d, s%d, %d\ns_lshl_b32 s%d, s%d, 10\ns_add_u32 s%d, s%d, %d' % (sQ1, sW, 16 * 896, sT3, sW, sT3, sT3, L_WO))]
        for t in range(7):
            wo.append(mk('s_add_u32 m0, s%d, %d\ns_add_u32 s%d, s%d, %d\nbuffer_load_dwordx4 v%d, %s, s%d offen lds' % (sT3, 4096 * t, sQ0, sQ1, t * 64 * 896, vwo, self.srd(SRD_WO), sQ0)))
        last = I('s_mov_b32 s%d, %d\ns_mov_b32 m0, %d\ns_mov_b64 exec, 0xffff\nbuffer_load_dwordx4 v%d, %s, s%d offen lds\ns_mov_b64 exec, -1'
                 % (sQ0, 448 * 896, L_WO + 28672, vwo, self.srd(SRD_WO), sQ0), kind='block', nvm=1, src=[('v', vwo)])
        self.tok_wo = tok(last)
        return wo + [[last]]

    def staging(self, qpre, qslots, qpost, qepi):
        P = self.P
        lskip, ljoin = P.newlabel('Lnostage'), P.newlabel('Lstaged')
        v1a, t0, t1, vp, vb, vb2 = 112, 113, 114, 115, 116, 168
        P('s_cmp_lt_u32 s%d, 14\ns_cselect_b32 s%d, s%d, 0' % (sM, SRD_W1 + 2, SRD_W1 + 2))
        P('v_lshrrev_b32 v%d, 2, v0\nv_mul_u32_u24 v%d, 3584, v%d\nv_and_b32 v%d, 3, v0\nv_lshl_add_u32 v%d, v%d, 4, v%d'
          % (v1a, v1a, v1a, vT, v1a, vT, v1a))
        P('s_lshl_b32 s%d, s%d, 2\ns_add_u32 s%d, s%d, s%d\ns_lshl_b32 s%d, s%d, 6\nv_add_u32 v%d, s%d, v%d' % (sT5, sM, sT5, sT5, sW, sT5, sT5, v1a, sT5, v1a))
        P('s_mul_i32 s%d, s%d, 14336\ns_add_u32 s%d, s%d, %d\ns_mul_i32 s%d, s%d, 21504\ns_mul_i32 s%d, s%d, %d' % (sT3, sW, sT3, sT3, L_EX, sQ1, sW, sWi, sD1, 14 * 16 * 3584))

        def issue(k):
            g = mk('s_add_u32 m0, s%d, %d' % ((sT3, 1024 * k) if k < 14 else (sQ1, 1024 * (k - 14))))
            g += mk('s_add_u32 s%d, s%d, %d' % (sQ0, sWi, k * 16 * 3584) if k < 14 else 's_sub_u32 s%d, %d, s%d' % (sQ0, k * 16 * 3584, sWi))
            g += mk('buffer_load_dwordx4 v%d, %s, s%d offen lds' % (v1a, self.srd(SRD_W1), sQ0))
            return g
        dm = [issue(k) for k in range(28)]
        tk = [tok(g[-1]) for g in dm]
        park = mk('\n'.join('v_accvgpr_read_b32 v%d, a%d' % (160 + i, 216 + i) for i in range(8)))
        park += mk('v_add_u32 v%d, s%d, v%d' % (vp, sQ1, vL16))
        park += flat(mk('ds_read_b128 %s, v%d offset:%d' % (a(self.PARK + 4 * i, 4), vp, 1024 * i)) for i in range(21))
        ht = self.touch([(16, SRD_CL, sHst, b * 114688) for b in range(self.o['htk'])], vT) if self.o['htk'] else []
        P.add(flat(dm[:7]) + qpre + ht + (self.stamp('q_go') if self.fine else []))
        for i, g in enumerate(dm[7:14]):
            qslots[self.o['w1q'] + 2 * i] += g
        P.add(spread(qslots, park) + qpost)
        P('s_lshl_b32 s%d, s%d, 11\ns_add_u32 s%d, s%d, %d' % (sT4, sC, sT4, sT4, WS_XCC))
        P('v_and_b32 v%d, 15, v0\nv_lshlrev_b32 v%d, 7, v%d' % (vPA, vPA, vPA))
        P('buffer_load_dword v%d, v%d, %s, s%d offen sc1' % (vPoll, vPA, self.srd(SRD_WS), sT4))
        P('s_waitcnt lgkmcnt(0)\ns_barrier')
        if self.fine:
            P.add(self.stamp('q_done'))
        vo, D = 124, 128
        ad = self.trbase(t1, 64, 4) + mk('v_add_u32 v%d, s%d, v%d\nv_add_u32 v%d, s%d, v%d' % (t0, sT3, t1, t1, sQ1, t1))
        ad += mk('\n'.join('v_mov_b32 v%d, 0x3f803f80' % (vo + i) for i in range(4)))
        n1 = self.o['w1pre']
        for k in range(14, 14 + n1):
            lb = P.newlabel('Lnw')
            blk = I('s_cmp_ge_u32 s%d, 14\ns_cbranch_scc1 %s\n%s\n%s:' % (sM, lb, '\n'.join(x.text for x in dm[k]), lb), kind='block', nvm=1, src=[('v', v1a)], cost=20)
            blk.tok = tk[k]
            dm[k] = [blk]
        P.add(spread(dm[14:14 + n1], qepi() + ad) if n1 else qepi() + ad)
        P.add(self.stamp('sweep_start') + self.sweep_loads())
        P.add([I('s_cmp_ge_u32 s%d, 14\ns_cbranch_scc1 %s' % (sM, lskip), kind='block')])
        self.ool.append('%s:\ns_waitcnt vmcnt(0)\ns_branch %s' % (lskip, ljoin))
        P('v_and_b32 v%d, 31, v0\nv_lshlrev_b32 v%d, 1, v%d\nbuffer_load_ushort v%d, v%d, %s, s%d offen' % (vT, vT, vT, vb, vT, self.srd(SRD_B1), sT5))
        P('v_lshrrev_b32 v%d, 5, v0\nv_lshlrev_b32 v%d, 3, v%d\ns_lshl_b32 s%d, s%d, 5' % (vT, vT, vT, sT2, sFe))
        P('buffer_load_dwordx2 %s, v%d, %s, s%d offen\nbuffer_load_dwordx2 %s, v%d, %s, s%d offen offset:16'
          % (v(vb2, 2), vT, self.srd(SRD_B2), sT2, v(vb2 + 2, 2), vT, self.srd(SRD_B2), sT2))

        def consume(k):
            va, o = (t0, 1024 * k) if k < 14 else (t1, 1024 * (k - 14))
            L = [wait_tok(tk[k])] + mk('ds_read_b64_tr_b16 %s, v%d offset:%d\nds_read_b64_tr_b16 %s, v%d offset:%d' % (w1half(k, 0), va, o, w1half(k, 1), va, o + 512))
            return L + (mfma(D, v(vo, 4), w1reg(k - 2), k == 2) if k >= 2 else [])
        for k in range(14):
            P.add((dm[14 + n1 + k] if 14 + n1 + k < 28 else []) + consume(k))
        P.label(ljoin)
        P.add([I('s_nop 1', kind='block', states=2)])
        P.add(self.kvx_pre(0))
        l2 = P.newlabel('Lnowo')
        wo = flat(self.wo_dma(117))
        txt, _ = finalize(wo)
        blk = I('s_cmp_ge_u32 s%d, 14\ns_cbranch_scc1 %s\n%s\n%s:' % (sM, l2, '\n'.join(t.strip() for t in txt.split('\n') if t.strip()), l2),
                kind='block', nvm=8, dst=[('v', 117), ('v', vT)], src=[('v', 0)])
        self.tok_wo = tok(blk)
        self.after_kvb = [blk]
        ns = self.o['w1o']
        L = flat(consume(k) for k in range(ns, 28)) + mfma(D, v(vo, 4), w1reg(26)) + mfma(D, v(vo, 4), w1reg(27))
        L += self.unpack(144, vb2, 4) + mk('\n'.join('v_mov_b32 v%d, 0' % r for r in range(152, 156)))
        L += mk('s_lshl_b32 s%d, s%d, 7\ns_add_u32 s%d, s%d, %d\nv_lshrrev_b32 v%d, 5, v0\nv_lshl_add_u32 v%d, v%d, 6, s%d' % (sT0, sW, sT0, sT0, L_B2, vT, vT, vT, sT0))
        for q in range(4):
            L += mk('ds_write_b128 v%d, %s offset:%d' % (vT, v(144 + 4 * min(q, 2), 4), 16 * q))
        L += self.split_w(vW1X, D, vT + 1) + mk('v_lshl_or_b32 v%d, v%d, 16, v%d' % (vb, vb, vb))
        L += mk('v_cndmask_b32 v%d, v%d, v%d, s[%d:%d]\nv_cndmask_b32 v%d, v%d, 0, s[%d:%d]' % (vW1X, vW1X, vb, sHalf, sHalf + 1, vW1X + 1, vW1X + 1, sHalf, sHalf + 1))
        self.after_x1 = L + mk('s_waitcnt lgkmcnt(0)')
        self.after_o = flat(consume(k) for k in range(14, ns)) + self.xsrc() + [wait_tok(self.tok_wo)] + mk('s_waitcnt lgkmcnt(0)\ns_barrier') + flat(self.s2_rd(i) for i in range(4))

    def sweep_loads(self):
        return flat(self.frag_loads([v(48 + 4 * i, 4) for i in range(8)], SRD_WS, sKv, 0, flags='sc1', st=sQ0))

    def w2_prefetch(self, va, first, per):
        m = (1 << per) - 1
        txt = ['s_lshr_b32 s%d, s%d, 3' % (sQ0, sC), 's_mul_i32 s%d, s%d, 14' % (sQ0, sQ0), 's_add_u32 s%d, s%d, s%d' % (sQ0, sQ0, sM),
               's_lshl_b32 s%d, s%d, 2' % (sQ0, sQ0), 's_add_u32 s%d, s%d, s%d' % (sQ0, sQ0, sW), 's_mul_i32 s%d, s%d, %d' % (sQ0, sQ0, per * 128),
               's_add_u32 s%d, s%d, %d' % (sQ0, sQ0, first * 128), 'v_lshlrev_b32 v%d, 7, v0' % va,
               's_mov_b32 exec_lo, 0x%x' % (m & 0xffffffff), 's_mov_b32 exec_hi, 0x%x' % (m >> 32),
               'buffer_load_dword v%d, v%d, %s, s%d offen' % (vDummy, va, self.srd(SRD_W2), sQ0), 's_mov_b64 exec, -1']
        return [I('\n'.join(txt), kind='block', nvm=1, src=[('v', 0)], dst=[('v', va)], cost=52)]

    W2V = (15, 106, 5, 13, 140)

    def w2_addr(self):
        v2a, tA, tB, vp, tS = self.W2V
        L = mk('v_lshrrev_b32 v%d, 3, v0\nv_mul_u32_u24 v%d, 896, v%d\nv_lshrrev_b32 v%d, 2, v0\nv_and_b32 v%d, 4, v%d\nv_xor_b32 v%d, v%d, v0\nv_and_b32 v%d, 7, v%d\nv_lshl_add_u32 v%d, v%d, 4, v%d'
               % (v2a, v2a, v2a, vT, vT, vT, vT, vT, vT, vT, v2a, vT, v2a))
        L += mk('s_lshr_b32 s%d, s%d, 1\ns_lshl_b32 s%d, s%d, 7\ns_mul_i32 s%d, s%d, %d\ns_add_u32 s%d, s%d, s%d\nv_add_u32 v%d, s%d, v%d'
                % (sT0, sM, sT0, sT0, sT2, sW, 32 * 896, sT0, sT0, sT2, v2a, sT0, v2a))
        L += mk('s_mul_i32 s%d, s%d, 7168\ns_add_u32 s%d, s%d, %d\ns_lshl_b32 s%d, s%d, 12\ns_add_u32 s%d, s%d, %d'
                % (sRot, sW, sRot, sRot, L_EX, sQ1, sW, sQ1, sQ1, L_KVS))
        L += mk('s_lshr_b32 s%d, s%d, 1' % (sT0, sW)) + self.trbase(tA, 128, 4, xor16=sT0)
        L += mk('s_and_b32 s%d, s%d, 1\nv_bfe_u32 v%d, v0, 3, 1\nv_xor_b32 v%d, s%d, v%d\nv_lshl_add_u32 v%d, v%d, 6, v%d\nv_xor_b32 v%d, 64, v%d'
                % (sT0, sW, vT, vT, sT0, vT, tA, vT, tA, tA + 1, tA))
        L += mk('s_mul_i32 s%d, s%d, 10240\nv_add_u32 v%d, s%d, v%d\nv_add_u32 v%d, s%d, v%d' % (sWi, sW, tS, sWi, tA, tS + 1, sWi, tA + 1))
        L2 = mk('v_add_u32 v%d, s%d, v%d\nv_add_u32 v%d, s%d, v%d\nv_add_u32 v%d, s%d, v%d\nv_add_u32 v%d, s%d, v%d' % (tB, sQ1, tA, tB + 1, sQ1, tA + 1, tA, sRot, tA, tA + 1, sRot, tA + 1))
        L2 += mk('s_mul_i32 s%d, s%d, 21504\nv_add_u32 v%d, s%d, v%d' % (sT0, sW, vp, sT0, vL16))
        return L, L2

    def w2_steps(self, u0, u1, shadow):
        v2a, tA, tB, vp, tS = self.W2V
        NS = 5

        def where(u):
            n = (u - u0) % NS
            if shadow:
                return sWi, tS, n * 2048
            return (sRot, tA, n * 2048) if n < 3 else (sQ1, tB, (n - 3) * 2048)

        def issue(u):
            out = []
            base, _, o = where(u)
            for i in range(2):
                g = mk('s_add_u32 m0, s%d, %d' % (base, o + 1024 * i))
                g += mk('s_mov_b32 s%d, %d' % (sQ0, (128 * (u // 2) + 16 * (u % 2) + 8 * i) * 896))
                out += g + mk('buffer_load_dwordx4 v%d, %s, s%d offen lds' % (v2a, self.srd(SRD_W2), sQ0))
            return out, tok(out[-1])
        tk, first, steps, prev = {}, [], [], None
        for u in range(u0, min(u0 + NS - 1, u1)):
            g, tk[u] = issue(u)
            first.append(g)
        for u in range(u0, u1):
            _, ta, o = where(u)
            A = []
            if u + NS - 1 < u1:
                if prev:
                    A += [wait_tok(prev)]
                g, tk[u + NS - 1] = issue(u + NS - 1)
                A += g
            B = [wait_tok(tk[u])]
            for js in range(2):
                b = W2A + 8 * u + 4 * js
                B += mk('ds_read_b64_tr_b16 %s, v%d offset:%d\nds_read_b64_tr_b16 %s, v%d offset:%d' % (a(b, 2), ta + js, o, a(b + 2, 2), ta + js, o + 1024))
            prev = tok(B[-1])
            steps.append((A, B))
        return first, steps

    def w2_stage(self, fill, u0, u1, extra):
        P = self.P
        first, steps = self.w2_steps(u0, 28, False)
        P.add(flat(first))
        rest = [mk('ds_write_b128 v%d, %s offset:%d' % (self.W2V[3], a(self.PARK + 4 * i, 4), 1024 * i)) for i in range(21)]
        out, done = [], 0
        for n, (A, B) in enumerate(steps):
            u = u0 + n
            want = sum(1 for i in range(21) if 17 + (i + 1) // 2 <= u)
            out.append((A, rest[done:want], B + extra.get(u, []) + (self.stamp('w2_%d' % u) if self.fine else [])))
            done = want
        P.add(spread([A + flat(R) + B for A, R, B in out[:u1 - u0]], fill, start=0, end=self.o['w2fill']))
        return out[u1 - u0:]

    K10 = 98

    def kvx_pre(self, l):
        L = []
        RES = 160
        if l == 1:
            L += mk('s_add_u32 s%d, s%d, s%d' % (sT0, sOst, sXin))
            for j in range(2):
                L += mk('buffer_load_dwordx4 %s, v%d, %s, s%d offen offset:%d sc1' % (v(RES + 4 * j, 4), vL16, self.srd(SRD_CL), sT0, 1024 * j))
            L += [I('s_mul_i32 s%d, s%d, %d\ns_add_u32 s%d, s%d, s%d\ns_addc_u32 s%d, s%d, 0\ns_sub_u32 s%d, s%d, s%d'
                    % (sT0, sSlow, LOFF, SRD_CL, SRD_CL, sT0, SRD_CL + 1, SRD_CL + 1, SRD_CL + 2, SRD_CL + 2, sT0), kind='block', cost=16)]
        L += [I('s_cmp_eq_u32 s%d, 3\ns_cselect_b32 s%d, 0xffff0000, 0\ns_cselect_b32 s%d, 0xffff0000, 0' % (sW, sPm, sPm + 1), kind='block', cost=12)]
        L += self.kv_lane_addr(self.KA, self.KA + 1, self.KA + 2, gather=False)
        g, t = self.KA + 1, self.KA + 2
        L += mk('\n'.join(['v_bfe_u32 v%d, v0, 3, 1' % g, 'v_and_b32 v%d, 3, v0' % t, 'v_lshl_add_u32 v%d, v%d, 2, v%d' % (g, g, t),
                           'v_cmp_eq_u32 vcc, 7, v%d' % g, 'v_bfe_u32 v%d, v0, 4, 1' % t, 'v_mad_u32_u24 v%d, v%d, 14, v%d' % (g, t, g),
                           'v_bfe_u32 v%d, v0, 2, 1' % t, 'v_mad_u32_u24 v%d, v%d, 7, v%d' % (g, t, g), 'v_cndmask_b32 v%d, v%d, 28, vcc' % (g, g),
                           'v_and_b32 v%d, 32, v0' % t, 'v_add_u32 v%d, v%d, v%d' % (g, g, t), 'v_lshlrev_b32 v%d, 5, v%d' % (g, g), 'v_add_u32 v%d, %d, v%d' % (g, L_KVB, g)]))
        L += mk('s_and_b32 s%d, s%d, 0x1fff\ns_or_b32 s%d, s%d, 0x4000\ns_lshl_b32 s%d, s%d, 16' % (sTag, sNonce, sTag, sTag, sTag + 1, sTag))
        L += mk('v_mov_b32 v%d, 0x3f80\nv_mov_b32 v%d, 0x3f800000' % (self.K10, self.K10 + 1))
        return L

    KA = 100

    def kvx(self, l):
        P = self.P
        P.comment('==== layer %d : kv exchange' % l)
        if l == 0:
            lw, lb = P.newlabel('Lxcc'), P.newlabel('Lxok')
            P('v_subrev_u32 v%d, s%d, v%d\nv_cmp_lt_u32 vcc, 15, v%d' % (vPoll, sNonce, vPoll, vPoll))
            P.add([I('s_cbranch_vccnz %s\n%s:' % (lw, lb), kind='block')])
            self.ool.append('\n'.join([
                lw + ':',
                'buffer_load_dword v%d, v%d, %s, s%d offen sc1' % (vPoll, vPA, self.srd(SRD_WS), sT4),
                's_add_u32 s%d, s%d, 1' % (sSpin, sSpin),
                's_cmp_gt_u32 s%d, 0x40000' % sSpin,
                's_cbranch_scc1 L_end',
                's_waitcnt vmcnt(0)',
                'v_subrev_u32 v%d, s%d, v%d' % (vPoll, sNonce, vPoll),
                'v_cmp_lt_u32 vcc, 15, v%d' % vPoll,
                's_cbranch_vccnz %s' % lw,
                's_branch %s' % lb]))
            P('v_cmp_ne_u32 vcc, s%d, v%d\ns_cmp_lg_u64 vcc, 0\ns_cselect_b32 s%d, 1, 0\ns_mov_b32 s%d, %d\ns_cselect_b32 s%d, %d, s%d' % (sXcc, vPoll, sSlow, sXin, X1_OFF if self.o['alias'] else XIN_OFF, sXin, XIN_OFF, sXin))
        K10, K01 = self.K10, self.K10 + 1
        sw = []
        if l == 1 and not self.o['swat']:
            sw = (mk('s_sleep %d' % self.o['kvdelay']) if self.o['kvdelay'] else []) + self.stamp('sweep_start') + self.sweep_loads()
        if not self.o['swlate']:
            P.add(sw)
        P('v_and_b32 v%d, 15, v0\nv_lshlrev_b32 v%d, 11, v%d\nv_add_u32 v%d, 2044, v%d' % (vPA, vPA, vPA, vPA, vPA))
        P.add(self.trbase(vTr, 64, 7, add=L_WO))
        P.add(self.s2_pre(l))
        P('s_mov_b32 s%d, 0x88888888\ns_mov_b32 s%d, 0x88888888' % (sPm, sPm + 1))
        if self.o['swlate']:
            P.add(sw)
        lsw, lre = P.newlabel('Lsweep'), P.newlabel('Lresweep')
        P.label(lsw)
        B = 48
        bad, S = vT, 80
        P('v_mov_b32 v%d, 0' % bad)
        for i in range(8):
            for k in range(4):
                for hh, K in enumerate((K10, K01)):
                    P('v_dot2_f32_bf16 v%d, v%d, v%d, %s' % (S + 2 * k + hh, B + 4 * i + k, K, 'v%d' % (S + 2 * k + hh) if i else '0'))
            for k in (2, 3):
                P('v_bitop3_b32 v%d, v%d, s%d, v%d bitop3:0xbe' % (bad, B + 4 * i + k, sNonce, bad))
        P('v_cmp_ne_u32 vcc, 0, v%d\ns_and_b64 vcc, vcc, s[%d:%d]' % (bad, sPm, sPm + 1))
        P.add([I('s_cbranch_vccnz %s' % lre, kind='block', states=1)])
        self.ool.append('%s:\ns_sleep %d\ns_add_u32 s%d, s%d, 1\ns_cmp_gt_u32 s%d, 0x40000\ns_cbranch_scc1 L_end\n%s\ns_waitcnt vmcnt(0)\ns_branch %s'
                        % (lre, self.o['resl'], sSpin, sSpin, sSpin, '\n'.join(x.text for x in self.sweep_loads()), lsw))
        P.add(self.stamp('sweep_done'))
        for k in range(4):
            P('v_permlane32_swap_b32 v%d, v%d' % (S + k, S + 4 + k))
        for k in (0, 2):
            P('v_pk_add_f32 %s, %s, %s' % (v(S + k, 2), v(S + k, 2), v(S + 4 + k, 2)))
        P.add(self.pack(S, S, 2))
        P('ds_write_b64 v%d, %s' % (self.KA, v(S, 2)))
        P('s_waitcnt lgkmcnt(0)\ns_barrier')
        KF, D = 72, 80
        P('ds_read_b128 %s, v%d\nds_read_b128 %s, v%d offset:16' % (v(KF, 4), self.KA + 1, v(KF + 4, 4), self.KA + 1))
        P.add(flat(self.s2_rd(i) for i in range(4)) if l else self.after_kvb)
        P.add(mfma(D, v(KF, 4), v(self.PQ, 4), True))
        for i in (6, 7):
            P('v_cndmask_b32 v%d, v%d, 0, s[%d:%d]' % (KF + i, KF + i, sHalf, sHalf + 1))
        P.add(mfma(D, v(KF + 4, 4), v(self.PQ + 4, 4)))
        t1 = 120
        P('v_add_f32 v%d, %s, v%d\nv_rcp_f32 v%d, v%d\nv_mul_f32 v%d, s%d, v%d' % (t1, f32(1e-6), D + 7, t1, t1, t1, sLn2, t1))
        for r in range(0, 16, 2):
            P('v_pk_mul_f32 %s, %s, %s op_sel_hi:[1,0]' % (v(D + r, 2), v(D + r, 2), v(t1, 2)))
        P('v_mov_b32 v%d, s%d\nv_mov_b32 v%d, s%d' % (D + 7, sTag + 1, D + 15, sTag + 1))
        P.add(self.pack(D, D, 8))
        st = self.stores(['buffer_store_dwordx4 %s, v%d, %s, s%d offen offset:%d' % (v(D + 4 * j, 4), vL16, self.srd(SRD_CL), sOst, 1024 * j) for j in range(2)], last=1)
        P.add(st)
        P.add(self.stamp('o_pub'))

    def s2_rd(self, i):
        WB, o = 144 + 4 * (i % 4), 1792 * (i // 2) + 896 * (i % 2)
        return mk('ds_read_b64_tr_b16 %s, v%d offset:%d\nds_read_b64_tr_b16 %s, v%d offset:%d' % (v(WB, 2), vTr, o, v(WB + 2, 2), vTr, o + 256))

    def s2_pre(self, l):
        L = self.s4_consts(l)
        L += mk('s_add_u32 s%d, s%d, %d' % (sT4, sOst, X1_OFF))
        L += mk('s_lshr_b32 s%d, s%d, 2\ns_lshl_b32 s%d, s%d, 10\ns_and_b32 s%d, s%d, 3\ns_lshl_b32 s%d, s%d, 2\ns_add_u32 s%d, s%d, s%d\ns_add_u32 s%d, s%d, s%d\ns_add_u32 s%d, s%d, %d'
                % (sT5, sM, sT5, sT5, sT1, sM, sT1, sT1, sT5, sT5, sT1, sT5, sT5, sBlk, sT5, sT5, X1_OFF + 28672))
        return L + self.unpack(16, 160, 8)

    def s2(self, l):
        P = self.P
        o = self.o
        P.comment('==== layer %d : S2' % l)
        ACC, OF, WB, RES = 16, 32, 144, 160
        NB = 4
        lre, lfail = P.newlabel('Ls2'), P.newlabel('Ls2again')
        if l == 0:
            P.add(self.after_o)
        P.label(lre)
        P.add(self.poll_issue(sBlk, o['pdo'] if l else 0))
        rd = self.s2_rd
        bad = vT
        P('v_mov_b32 v%d, 0' % bad)
        P.add(self.poll_check(sBlk, tag=True))
        P.add(self.stamp('o_seen'))
        oreg = [OF + 4 * (i % (28 if l else 18)) for i in range(32)]
        lds = self.frag_loads([v(r, 4) for r in oreg], SRD_CL, sBlk, O_OFF, flags='sc1')
        n = o['look2']
        P.add(flat(lds[:n]))
        chk = lambda i: mk('v_bitop3_b32 v%d, v%d, s%d, v%d bitop3:0xbe\nv_and_b32 v%d, 0xffff, v%d' % (bad, oreg[i] + 3, sTag + 1, bad, oreg[i] + 3, oreg[i] + 3))
        P.add(chk(0))
        for i in range(32):
            if i + n < 32:
                P.add(lds[i + n])
            P.add(mfma(ACC, v(WB + 4 * (i % NB), 4), v(oreg[i], 4)))
            if self.fine and i in (0, 8, 16, 31):
                P.add(self.stamp('s2_%d' % i))
            if i + NB < 32:
                P.add(rd(i + NB))
            if i + 1 < 32:
                P.add(chk(i + 1))
            if i == 28:
                P.add(self.pa(14, blocks=True, reg=vT + 2))
        P('v_cmp_lt_u32 vcc, 0xffff, v%d' % bad)
        P.add([I('s_cbranch_vccnz %s' % lfail, kind='block', states=1)])
        again = '\n'.join(x.text for x in self.unpack(ACC, RES, 8) + flat(rd(i) for i in range(NB)))
        self.ool.append('%s:\ns_add_u32 s%d, s%d, 1\ns_cmp_gt_u32 s%d, 0x40000\ns_cbranch_scc1 L_end\ns_nop 15\n%s\ns_waitcnt lgkmcnt(0)\ns_branch %s'
                        % (lfail, sSpin, sSpin, sSpin, again, lre))
        P('v_mov_b32 v%d, v%d' % (vPA, vT + 2))
        P.add(self.pack(OF, ACC, 8))
        P.add(self.stores(['buffer_store_dwordx4 %s, v%d, %s, s%d offen offset:%d' % (v(OF + 4 * j, 4), vL16, self.srd(SRD_CL), sT4, 1024 * j) for j in range(2)], last=2))
        P.add(self.row_stats(OF, 8, vT, vT + 2))
        st = self.stores(['buffer_store_dword v%d, v%d, %s, s%d offen' % (vT, vL16, self.srd(SRD_CL), sT5)])
        tk = tok(st[-1])
        P.add(st)
        if self.fine:
            P.add(self.stamp('x1_st'))
        P.add(self.flag([tk], sFoMy, FX1 - FO))
        P.add(self.stamp('x1_pub'))

    def gelu(self, acc, KK, T):
        pr = range(0, 16, 2)
        A = flat(mk('v_pk_mul_f32 %s, %s, %s' % (v(T + i, 2), v(acc + i, 2), v(acc + i, 2))) for i in pr)
        A += flat(mk('v_pk_fma_f32 %s, %s, %s, %s op_sel:[0,1,0] op_sel_hi:[1,1,0]' % (v(T + i, 2), v(T + i, 2), v(KK, 2), v(KK, 2))) for i in pr)
        A += flat(mk('v_pk_mul_f32 %s, %s, %s' % (v(T + i, 2), v(T + i, 2), v(acc + i, 2))) for i in pr)
        E = flat(mk('v_exp_f32 v%d, v%d' % (T + i, T + i)) for i in range(16))
        B = flat(mk('v_pk_fma_f32 %s, %s, %s, %s op_sel_hi:[1,0,0]' % (v(T + i, 2), v(T + i, 2), v(KK + 2, 2), v(KK + 2, 2))) for i in pr)
        R = flat(mk('v_rcp_f32 v%d, v%d' % (T + i, T + i)) for i in range(16))
        C = flat(mk('v_pk_mul_f32 %s, %s, %s' % (v(acc + i, 2), v(acc + i, 2), v(T + i, 2))) for i in pr)
        pk = self.pack(acc, acc, 8)
        g4 = lambda f, g: flat(mk(f(4 * g + i)) for i in range(4))
        e = lambda g: E[4 * g:4 * g + 4]
        r = lambda g: R[4 * g:4 * g + 4]
        b = lambda g: g4(lambda i: 'v_fma_f32 v%d, v%d, v%d, v%d' % (T + i, T + i, KK + 2, KK + 2), g)
        c = lambda g: g4(lambda i: 'v_mul_f32 v%d, v%d, v%d' % (acc + i, acc + i, T + i), g) + pk[2 * g:2 * g + 2]
        tail = e(0) + e(1) + b(0) + r(0) + e(2) + b(1) + c(0) + r(1) + e(3) + b(2) + c(1) + r(2) + b(3) + c(2) + r(3) + c(3)
        return A, A + E + B + R + C + pk, tail

    XSRC = (4, 5, 6, 7, 8, 9, 10, 11, 12, 13, 14, 15, 20, 21)

    def xsrc(self):
        L = mk('s_lshl_b32 s%d, s%d, 1\ns_mul_i32 s%d, s%d, 14\ns_add_u32 s%d, s%d, s%d\ns_mov_b32 s%d, %d' % (sT0, sW, sT1, sD1, sT1, sT1, sT0, sT2, X1_OFF))
        for c, r in enumerate(self.XSRC):
            if c:
                L += mk('s_add_u32 s%d, s%d, 8\ns_cmp_ge_u32 s%d, 28\ns_cselect_b32 s%d, 28, 0\ns_cselect_b32 s%d, 0x8000, 0\ns_sub_u32 s%d, s%d, s%d\ns_add_u32 s%d, s%d, s%d'
                        % (sT0, sT0, sT0, sT3, r, sT0, sT0, sT3, sT2, sT2, r))
                L += mk('s_add_u32 s%d, s%d, 8\ns_cmp_ge_u32 s%d, 28\ns_cselect_b32 s%d, 28, 0\ns_sub_u32 s%d, s%d, s%d' % (sT1, sT1, sT1, sT3, sT1, sT1, sT3))
            L += mk('s_lshl_b32 s%d, s%d, 10\ns_add_u32 s%d, s%d, s%d' % (r, sT1, r, r, sT2))
        return L

    SEL = 172

    def s4_consts(self, l):
        U, SEL = 120, self.SEL
        sel = mk('\n'.join(['v_lshrrev_b32 v%d, 5, v0' % SEL,
                             'v_lshlrev_b32 v%d, 2, v%d' % (SEL, SEL), 'v_and_b32 v%d, 31, v0' % (SEL + 1), 'v_sub_u32 v%d, v%d, v%d' % (U, SEL + 1, SEL),
                             'v_mov_b32 v%d, 0x3f80' % (U + 1), 'v_mov_b32 v%d, 0x3f800000' % (U + 2)]))
        for q, r0 in enumerate((0, 2, 8, 10)):
            sel += mk('v_cmp_eq_u32 vcc, %d, v%d\nv_cmp_eq_u32 s[%d:%d], %d, v%d\ns_nop 0\nv_cndmask_b32 v%d, 0, v%d, vcc\nv_cndmask_b32 v%d, v%d, v%d, s[%d:%d]'
                      % (r0, U, sPm, sPm + 1, r0 + 1, U, SEL + q, U + 1, SEL + q, SEL + q, U + 2, sPm, sPm + 1))
        for q, sB in enumerate((sEb, sLb)):
            sel += mk('s_lshl_b32 s%d, s%d, 15\ns_lshl_b32 s%d, s%d, 10\ns_add_u32 s%d, s%d, s%d\ns_add_u32 s%d, s%d, %d' % (sT0, sB, sT2, sFe, sT0, sT0, sT2, sRes + q, sT0, X1_OFF))
            if l == 0:
                sel += mk('s_add_u32 s%d, s%d, s%d\ns_lshl_b32 s%d, s%d, 13' % (sFin + q, sT0, sXin, sT0, sB))
                sel += mk('s_lshr_b32 s%d, s%d, 2\ns_lshl_b32 s%d, s%d, 10\ns_add_u32 s%d, s%d, s%d\ns_and_b32 s%d, s%d, 3\ns_lshl_b32 s%d, s%d, 2\ns_add_u32 s%d, s%d, s%d\ns_add_u32 s%d, s%d, %d'
                          % (sT2, sFe, sT2, sT2, sT0, sT0, sT2, sT2, sFe, sT2, sT2, sT0, sT0, sT2, sFin + 2 + q, sT0, XST_OFF))
                sel += mk('s_lshl_b32 s%d, s%d, 5\ns_add_u32 s%d, s%d, s%d\ns_lshl_b32 s%d, s%d, 2\ns_add_u32 s%d, s%d, %d' % (sT2, sB, sT2, sT2, sFe, sT2, sT2, sFin + 4 + q, sT2, FXIN))
            else:
                sel += mk('s_lshl_b32 s%d, s%d, 2\ns_add_u32 s%d, s%d, s%d\ns_mul_i32 s%d, s%d, %d\ns_lshl_b32 s%d, s%d, 5\ns_add_u32 s%d, s%d, s%d'
                          % (sT0, sC, sT0, sT0, sB, sT0, sT0, 32 * 896, sT2, sFe, sFin + q, sT0, sT2))

        return sel

    def mlp(self, l):
        P = self.P
        o = self.o
        P.comment('==== layer %d : MLP' % l)
        ACC = (16, 32)
        XB, EXB, WEX, T, RING = 48, 72, 76, 80, 108
        KK = (96, 100)
        SEL, vB2, vX2 = self.SEL, 104, 105
        NB = 6
        if l == 0:
            P.add(self.after_x1)
        P('s_mov_b32 s%d, %d' % (sT4, FX1))
        if not o['p1']:
            P.add(self.poll_issue(sT4, o['pdx']))
        P('s_lshl_b32 s%d, s%d, 11' % (sT5, sW))
        P('v_mov_b32 v%d, v%d\nv_mov_b32 v%d, v%d' % (WEX, vW1X, WEX + 1, vW1X + 1))
        P('\n'.join('v_mov_b32 v%d, 0' % r for r in (WEX + 2, WEX + 3, EXB + 2, EXB + 3)))
        vE8, vK16 = vTr, vT + 3
        P('v_lshlrev_b32 v%d, 3, v0\nv_add_u32 v%d, %d, v%d' % (vE8, vE8, L_KVS, vE8))
        P('v_and_b32 v%d, 31, v0\nv_lshlrev_b32 v%d, 4, v%d\nv_add_u32 v%d, %d, v%d' % (vK16, vK16, vK16, vK16, L_KVS + 512, vK16))
        P('v_add_u32 v%d, %d, v%d' % (vX2, 56 * 1024, vL16))
        P('s_lshl_b32 s%d, s%d, 7\ns_add_u32 s%d, s%d, %d\nv_lshrrev_b32 v%d, 5, v0\nv_lshl_add_u32 v%d, v%d, 6, s%d' % (sT3, sW, sT3, sT3, L_B2, vB2, vB2, vB2, sT3))
        P('s_add_u32 s%d, s%d, %d' % (sT1, sBlk, X1_OFF + 28672))
        if o['p1']:
            lq = P.newlabel('Lnp')
            c = self.poll_check(sT4)[0]
            P.add([I('s_cmp_lg_u32 s%d, 0\ns_cbranch_scc1 %s\n%s\ns_waitcnt vmcnt(0)\n%s\n%s:\ns_barrier'
                     % (sW, lq, '\n'.join(x.text for x in self.poll_issue(sT4, o['pdx'] if l else 0)), c.text, lq), kind='block', src=[('v', vPA)], dst=c.dst, states=2)])
        else:
            P.add(self.poll_check(sT4))
        P.add(self.stamp('x1_seen'))
        xd, tc = [], []
        for c, r in enumerate(self.XSRC):
            g = mk('s_add_u32 m0, s%d, %d' % (sT5, 8192 * c))
            g += mk('buffer_load_dwordx4 v%d, %s, s%d offen sc1 lds\nbuffer_load_dwordx4 v%d, %s, s%d offen offset:1024 sc1 lds' % (vL16, self.srd(SRD_CL), r, vL16, self.srd(SRD_CL), r))
            tc.append(tok(g[-1]))
            xd.append(g)
        stl = [mk('buffer_load_dwordx4 %s, v%d, %s, s%d offen offset:%d sc1' % (v(RING + 4 * i, 4), vL16, self.srd(SRD_CL), sT1, 1024 * i)) for i in range(4)]
        sp = o['stpos']
        P.add({0: flat(stl) + xd[0] + xd[1], 1: xd[0] + xd[1] + flat(stl), 2: xd[0] + xd[1], 3: xd[0] + flat(stl[:2]) + xd[1]}[sp])
        K0 = KK[1]
        st0 = []
        for x, y in ((0, 1), (2, 3), (4, 5), (6, 7), (8, 9), (10, 11), (12, 13), (0, 2), (4, 6), (8, 10), (0, 4), (8, 12)):
            st0 += mk('v_add_f32 v%d, v%d, v%d' % (RING + x, RING + x, RING + y))
        st0 += mk('v_add_f32 v%d, v%d, v%d' % (T, RING, RING + 8))
        st0 += self.stats_finish(T, True)
        st0 += mk('\n'.join(['v_rcp_f32 v%d, v%d' % (K0 + 2, vRl),
                             'v_mul_f32 v%d, s%d, v%d' % (K0, sC0, vRl),
                             'v_mul_f32 v%d, v%d, v%d' % (T, vRl, vRl),
                             'v_mul_f32 v%d, s%d, v%d' % (K0 + 1, sC1, vRl),
                             'v_mul_f32 v%d, v%d, v%d' % (K0 + 1, K0 + 1, T),
                             'v_sub_f32 v%d, 0, v%d' % (vMean, vMean),
                             'v_cndmask_b32 v%d, v%d, v%d, s[%d:%d]' % (vMean, vMean, K0 + 2, sHalf, sHalf + 1)]))
        st0 += self.split_act(T + 2, vMean, T)
        st0 += mk('s_lshl_b32 s%d, s%d, 10\nv_add_u32 v%d, s%d, v%d\nv_add_u32 v%d, s%d, v%d' % (sT4, sW, vT, sT4, vE8, vT + 1, sT4, vK16))
        st0 += mk('ds_write_b64 v%d, %s\nds_write_b128 v%d, %s' % (vT, v(T + 2, 2), vT + 1, v(K0, 4)))
        tst = tok(st0[-1])

        def hpub(b):
            pre = mk('s_add_u32 s%d, s%d, %d' % (sT4, sHst, b * 114688))
            st = self.stores(['buffer_store_dwordx4 %s, v%d, %s, s%d offen offset:%d' % (v(ACC[b & 1] + 4 * j, 4), vL16, self.srd(SRD_CL), sT4, 1024 * j) for j in range(2)], last=4)
            return pre + st, tok(st[-1])
        hflag = lambda b, tk: self.flag([tk], sFoMy, FH - FO + 512 * b)
        extrd = lambda b: mk('ds_read_b64 %s, v%d offset:%d\nds_read_b128 %s, v%d offset:%d' % (v(EXB, 2), vE8, 1024 * b, v(KK[b & 1], 4), vK16, 1024 * b))
        extmf = lambda b: mfma(ACC[b & 1], v(WEX, 4), v(EXB, 4))
        hreg = [RING + 4 * (i % 16) for i in range(56)]

        def hload(i):
            blk, kap = divmod(i, 28)
            g = mk('s_add_u32 s%d, s%d, %d' % (sHs, (sHE, sHL)[blk], 8192 * (kap // 2))) if kap % 2 == 0 else []
            return g + mk('buffer_load_dwordx4 %s, v%d, %s, s%d offen offset:%d sc1' % (v(hreg[i], 4), vL16, self.srd(SRD_CL), sHs, 1024 * (kap % 2)))
        P.add([wait_tok(tc[0])])
        P('s_barrier')
        P.add(self.stamp('s3_b0'))
        rdj = lambda j: mk('ds_read_b128 %s, v%d offset:%d' % (v(XB + 4 * (j % NB), 4), vL16 if j < 56 else vX2, 1024 * (j % 56)))
        for j in range(NB):
            P.add(rdj(j))
        isl = lambda c: 0 if c == 2 else o['x0'] + (o['xstep'] * (c - 3)) // 2
        bars, cov = {}, 0
        for c in range(1, 14):
            sj = 8 * c - 5
            if c > cov or sj in (27, 43):
                cov = max([c] + [d for d in range(3, 14) if isl(d) + o['xlag'] <= sj])
                bars[sj] = [tc[cov]] + ([tst] if sj == 27 else [])
        slots = []
        for j in range(112):
            b, k = divmod(j, 28)
            sl = mfma(ACC[b & 1], w1reg(k), v(XB + 4 * (j % NB), 4), k == 0)
            if k % 2 == 0:
                also_waits_for(sl[0], v(XB + 4 * ((j + 1) % NB), 4))
            if j in bars:
                sl += (self.stamp('pb%d' % j) if self.fine else []) + [wait_tok(*bars[j])] + mk('s_barrier') + (self.stamp('ab%d' % j) if self.fine else [])
            if k % 2 == 1:
                for jj in (j + NB - 1, j + NB):
                    if jj < 112:
                        sl += rdj(jj)
            if (k == 25 and b) or j == 27:
                sl += extrd(b)
            if (k == 27 and b) or j == 30:
                sl += extmf(b if k == 27 else 0)
            slots.append(sl)
        slots[0] += stl[0] + stl[1] if sp == 2 else []
        slots[1 if sp == 2 else 0] += xd[2]
        slots[3 if sp == 2 else 2] += stl[2] + stl[3] if sp >= 2 else []
        for c in range(3, 14):
            slots[isl(c)] += xd[c]
        pre0, pre1 = self.w2_addr() if l == 0 else ([], [])
        slots[26] += pre1
        nsh = o['nsh'] if l == 0 else 0
        if nsh:
            first, steps = self.w2_steps(0, nsh, True)
            p0 = o['sh0']
            for i, g in enumerate(first):
                slots[p0 + 2 * i] += g
            p1 = p0 + 2 * len(first) + o['shgap']
            for n, (A, B) in enumerate(steps):
                sj = p1 + (n * (110 - p1)) // nsh
                slots[sj] += A
                slots[sj + 1] += B
            if o['idlew2'] < 13:
                slots[o['pf2']] += self.w2_prefetch(vT, 1024 * o['idlew2'], -(-(12544 - 1024 * o['idlew2']) // 112))
        out = spread(slots[:o['st0']], pre0) + spread(slots[o['st0']:o['st1']], st0) + flat(slots[o['st1']:28])
        pend = None
        for b in range(1, 4):
            gA, _, tail = self.gelu(ACC[(b - 1) & 1], KK[(b - 1) & 1], T)
            s0 = 28 * b + (5 if b == 1 else 2)
            st, nxt = hpub(b - 1)
            if l == 0 and b < 3 and not nsh:
                st = st + self.w2_prefetch(vT, (b - 1) * 6272, 56)
            slots[s0] += gA
            if pend is not None and l == 1:
                slots[28 * b + o['flagpos']] += hflag(b - 2, pend)
            pend = nxt
            if b == 3 and l == 1:
                slots[84 + o['pollE']] += self.pa(14) + self.poll_issue(sPE)
                n3 = o['n3']
                slots[112 - n3] += (self.stamp('preE') if self.fine else []) + self.poll_check(sPE) + (self.stamp('gotE') if self.fine else [])
                for i in range(n3):
                    slots[112 - n3 + i] += hload(i)
            if b == 1 or self.fine:
                out += self.stamp('s3_b%d' % b)
            out += flat(slots[28 * b:s0 + 1]) + spread(slots[s0 + 1:28 * b + 28], tail + st, end=28 * b + o['gend'] - s0)
        P.add(out)
        P('s_waitcnt lgkmcnt(0)\ns_barrier')
        P.add(self.stamp('s3_end'))
        AE, AL, RX, RS = 48, 16, 80, 96
        vEW, vER = (vTr, vT, vT + 1), vT + 3
        resid = lambda q: mk('buffer_load_dwordx4 %s, v%d, %s, s%d offen sc1' % (v(RS, 4), vL16, self.srd(SRD_CL), sRes + q))
        cinit = lambda A: flat(mk('ds_read_b128 %s, v%d offset:%d' % (v(A + 4 * q, 4), vB2, 16 * q)) for q in range(4))
        ad = []
        for n, x in enumerate((2, 1, 3)):
            ad += mk('s_xor_b32 s%d, s%d, %d\ns_mul_i32 s%d, s%d, 6144\ns_add_u32 s%d, s%d, %d\nv_add_u32 v%d, s%d, v%d'
                     % (sT3, sW, x, sT3, sT3, sT3, sT3, L_EX + 2048 * (x - 1), vEW[n], sT3, vL16))
        ad += mk('s_mul_i32 s%d, s%d, 6144\ns_add_u32 s%d, s%d, %d\nv_add_u32 v%d, s%d, v%d' % (sT3, sW, sT3, sT3, L_EX, vER, sT3, vL16))
        gA, gall, _ = self.gelu(ACC[1], KK[1], T)
        st, p3 = hpub(3)
        npre = o['npre']
        if l == 0:
            npre, u1 = o['npre0'], o['w2u1']
            fl = hflag(0, pend) + hflag(1, pend) + hflag(2, pend)
            w2rest = self.w2_stage(gall[:o['flat']] + fl + gall[o['flat']:] + st, nsh, u1, {u1 - 2: self.pa(14) + self.poll_issue(sPE)})
            P.add(cinit(AE) + self.poll_check(sPE) + resid(0) + flat(hload(i) for i in range(npre)))
        else:
            P.add(spread([resid(0)] + [hload(i) for i in range(o['n3'], npre)], gall[:40] + hflag(2, pend) + cinit(AE) + gall[40:] + st))
        if self.fine:
            P.add(self.stamp('g3_end'))

        exch_write = lambda A: flat(mk('ds_write_b128 v%d, %s\nds_write_b128 v%d, %s offset:1024' % (vEW[n], v(r, 4), vEW[n], v(r + 4, 4)))
                                    for n, r in enumerate((A + 8, A + 16, A + 24)))
        exch_read = lambda: flat(mk('ds_read_b128 %s, v%d offset:%d' % (v(RX + 4 * q, 4), vER, 1024 * q)) for q in range(6))

        def addv(d, x, y, n, pk):
            if pk:
                return flat(mk('v_pk_add_f32 %s, %s, %s' % (v(d + i, 2), v(x + i, 2), v(y + i, 2))) for i in range(0, n, 2))
            return flat(mk('v_add_f32 v%d, v%d, v%d' % (d + i, x + i, y + i)) for i in range(n))

        def finish(A, q, pk):
            L = addv(A, A, RX, 8, pk) + addv(RX + 8, RX + 8, RX + 16, 8, pk) + addv(A, A, RX + 8, 8, pk) + self.pack(A, A, 4)
            if l == 0:
                L += self.stores(['buffer_store_dwordx4 %s, v%d, %s, s%d offen' % (v(A, 4), vL16, self.srd(SRD_CL), sFin + q)])
                rs = self.row_stats(A, 4, RX, RX + 2)
                blk = I('\n'.join(x.text for x in rs[:9]), kind='block', src=[r for x in rs[:9] for r in x.src], dst=[('v', RX), ('v', RX + 1), ('v', RX + 2)], states=1, cost=60)
                L += [blk] + mk('s_nop 2') + rs[9:]
                st = self.stores(['buffer_store_dword v%d, v%d, %s, s%d offen' % (RX, vL16, self.srd(SRD_CL), sFin + 2 + q)])
                tk = tok(st[-1])
                return L + st, self.flag([tk], sFin + 4 + q)
            L += mk('v_permlane32_swap_b32 v%d, v%d\nv_permlane32_swap_b32 v%d, v%d' % (A, A + 2, A + 1, A + 3))
            L += mk('buffer_store_dwordx4 %s, v%d, %s, s%d offen %s' % (v(A, 4), vPA, self.srd(SRD_OUT), sFin + q, ('', 'sc1', 'nt', 'sc0 sc1')[o['outf']]))
            return L, []

        slots = []
        nt = o['ntail']
        order = [(i, js) for i in range(56 - nt) for js in range(2)] + [(i, 1) for i in range(56 - nt, 56)] + [(i, 0) for i in range(56 - nt, 56)]
        for i, js in order:
            blk, kap = divmod(i, 28)
            A = (AE, AL)[blk]
            sl = mfma(A, v(SEL, 4), v(RS, 4)) if kap == 0 and js == 0 else []
            slots.append(sl + mfma(A + 16 * js, a(W2A + 8 * kap + 4 * js, 4), v(hreg[i], 4), kap == 0 and js == 1))
        sidx = 0
        for i in range(npre, 56):
            sidx = max(sidx, 2 * (i - 16) + 1 if i >= 16 else 0)
            if i == 28:
                sidx = max(sidx, o['lateL'])
                slots[sidx] += (self.stamp('preL') if self.fine else []) + self.poll_check(sPL) + (self.stamp('gotL') if self.fine else [])
            slots[sidx] += hload(i)
            assert sidx <= 2 * i - 6
            sidx += 1 if 2 * (i + 1) - sidx - 2 < o['lead'] else 2
        if l == 0:
            for n, (A, R, B) in enumerate(w2rest):
                sj = 1 + o['w2sp'] * n
                slots[sj] += A
                for i, g in enumerate(R):
                    slots[sj + i] += g
                slots[sj + len(R)] += B
                assert sj + len(R) <= 2 * (u1 + n) - 4
        if True:
            slots[o['flag3'] if l else o['flag30']] += (self.stamp('preF') if self.fine else []) + hflag(3, p3) + (self.stamp('gotF') if self.fine else [])
        slots[o['pollL']] += self.poll_issue(sPL)
        for i in range(0, len(ad), 4):
            slots[2 * (i // 4) + 30] += ad[i:i + 4]
        slots[40] += resid(1)
        if l == 0:
            slots[52] += mk('s_waitcnt lgkmcnt(0)\ns_barrier')
        slots[46] += cinit(AL)
        if l == 1:
            slots[44] += mk('v_and_b32 v%d, 31, v0\nv_mul_u32_u24 v%d, 896, v%d\nv_lshrrev_b32 v%d, 5, v0\nv_lshl_add_u32 v%d, v%d, 4, v%d'
                            % (vPA, vPA, vPA, vPoll, vPA, vPoll, vPA))
        P.add(flat(slots[:56]))
        P.add(self.stamp('s4_E'))
        late = slots[56:]
        fin, fl = finish(AE, 0, False)
        xb0 = o['xbar']
        P.add(spread(late[:xb0], exch_write(AE), start=2, end=9))
        late[xb0] += (self.stamp('preX') if self.fine else []) + mk('s_waitcnt lgkmcnt(0)\ns_barrier') + (self.stamp('gotX') if self.fine else []) + exch_read()
        late[34] += (self.stamp('preY') if self.fine else []) + mk('s_barrier') + (self.stamp('gotY') if self.fine else [])
        late[44] += fl
        wl = exch_write(AL)
        if l == 1 and o['wb'] == 3:
            lw = P.newlabel('Lnowb')
            late[o['wbslot']] += [I('s_or_b32 s%d, s%d, s%d\ns_cmp_lg_u32 s%d, 0\ns_cbranch_scc1 %s\nbuffer_wbl2 sc1\n%s:' % (sT0, sM, sW, sT0, lw, lw), kind='block', cost=12)]
        for i in range(4):
            late[56 - nt + 2 + i] += [wl[2 + i]]
        P.add(spread(late[xb0:], fin, start=4, end=33 - xb0))
        P.add(self.stamp('s4_L'))
        P.add(wl[:2] + mk('s_waitcnt lgkmcnt(0)\ns_barrier') + exch_read())
        fin, fl = finish(AL, 1, True)
        P.add(fin + fl)
        P.add(self.stamp('x2_pub'))

    def build(self):
        P = self.P
        self.prologue()
        for l in range(2):
            self.layer = l
            self.s1(l)
            if self.stop == 's1_%d' % l:
                break
            self.kvx(l)
            if self.stop == 'o_%d' % l:
                break
            lnext = 'L_layer%d' % (l + 1)
            if l == 0:
                lsk = P.newlabel('Lskipmlp')
                P.add([I('s_cmp_ge_u32 s%d, 14\ns_cbranch_scc1 %s' % (sM, lsk), kind='block')])
                lp = P.newlabel('Lidle')
                t = [x.text for x in self.pa(28)] + ['s_mov_b32 s%d, %d' % (sT4, FXIN), lp + ':', 's_sleep %d' % self.o['isl'],
                                                     'buffer_load_dword v%d, v%d, %s, s%d offen sc1' % (vPoll, vPA, self.srd(SRD_CL), sT4),
                                                     's_add_u32 s%d, s%d, 1' % (sSpin, sSpin), 's_cmp_gt_u32 s%d, 0x40000' % sSpin, 's_cbranch_scc1 L_end',
                                                     's_waitcnt vmcnt(0)', 'v_cmp_ne_u32 vcc, s%d, v%d' % (sNonce, vPoll), 's_cbranch_vccnz %s' % lp,
                                                     's_sleep %d' % self.o['isl2']]
                def code_pf(n, first, end):
                    return ['s_getpc_b64 s[%d:%d]' % (sPm, sPm + 1), 'L_pc%d:' % n, 's_sub_u32 s%d, s%d, L_pc%d-%s' % (sPm, sPm, n, first),
                            's_subb_u32 s%d, s%d, 0' % (sPm + 1, sPm + 1),
                            's_lshr_b32 s%d, s%d, 3' % (sT1, sC), 's_lshl_b32 s%d, s%d, 1' % (sT1, sT1), 's_and_b32 s%d, s%d, 1' % (sT0, sM),
                            's_add_u32 s%d, s%d, s%d' % (sT1, sT1, sT0), 's_lshl_b32 s%d, s%d, 2' % (sT1, sT1), 's_add_u32 s%d, s%d, s%d' % (sT1, sT1, sW),
                            's_lshl_b32 s%d, s%d, 11' % (sT1, sT1), 'v_lshlrev_b32 v%d, 7, v0' % vT, 'v_add_u32 v%d, s%d, v%d' % (vT, sT1, vT),
                            'v_min_u32 v%d, %s-%s-4, v%d' % (vT, end, first, vT), 's_mov_b64 exec, 0xffff',
                            'global_load_dword v%d, v%d, s[%d:%d]' % (vPoll, vT, sPm, sPm + 1), 's_mov_b64 exec, -1']
                if self.o['cpf2'] & 1:
                    t = t[:-1] + code_pf(2, lnext, 'L_code_end') + ['s_waitcnt vmcnt(0)']
                t0 = code_pf(3, 'L_mlp0', lnext) if self.o['cpf2'] & 2 else []
                P.label('L_mlp0')
                self.ool.append('%s:\n%s\ns_waitcnt vmcnt(0) lgkmcnt(0)\n%s\ns_branch %s' % (lsk, '\n'.join(t0 + [self.idle_work()]), '\n'.join(t), lnext))
            else:
                if self.o['wb'] in (1, 2):
                    lw, lp = P.newlabel('Lwb'), P.newlabel('Lwbp')
                    P.add([I('s_cmp_ge_u32 s%d, 14\ns_cbranch_scc1 %s' % (sM, lw), kind='block')])
                    t = [lw + ':']
                    if self.o['outt']:
                        lo = P.newlabel('Lot')
                        t += ['s_cmp_lg_u32 s%d, 15' % sM, 's_cbranch_scc1 %s' % lo, 'v_lshlrev_b32 v%d, 7, v0' % vT, 's_mov_b32 exec_hi, 0xffffff']
                        for i in range(4):
                            t += ['s_add_u32 s%d, s%d, %d' % (sT2, sX, i * 56 * 128), 'buffer_load_dword v%d, v%d, %s, s%d offen' % (vDummy, vT, self.srd(SRD_OUT), sT2)]
                        t += ['s_mov_b64 exec, -1', 's_waitcnt vmcnt(0)', lo + ':']
                    t += ['s_cmp_lg_u32 s%d, 14' % sM, 's_cbranch_scc1 L_fin', 's_cmp_lg_u32 s%d, 0' % sW, 's_cbranch_scc1 L_fin']
                    t += [x.text for x in self.pa(14, blocks=True)]
                    t += ['s_mov_b32 s%d, %d' % (sT4, FH + 512 * self.o['wbblk'] if self.o['wbblk'] >= 0 else FX1), 's_sleep %d' % self.o['wbsl']] + (['buffer_wbl2 sc1', 's_waitcnt vmcnt(0)'] if self.o['wb'] == 2 else []) + [lp + ':', 's_sleep 4',
                          'buffer_load_dword v%d, v%d, %s, s%d offen sc1' % (vPoll, vPA, self.srd(SRD_CL), sT4),
                          's_add_u32 s%d, s%d, 1' % (sSpin, sSpin), 's_cmp_gt_u32 s%d, 0x40000' % sSpin, 's_cbranch_scc1 L_end',
                          's_waitcnt vmcnt(0)', 'v_cmp_ne_u32 vcc, s%d, v%d' % (sNonce, vPoll), 's_cbranch_vccnz %s' % lp,
                          's_sleep %d' % self.o['wbs2'], 'buffer_wbl2 sc1', 's_waitcnt vmcnt(0)', 's_branch L_fin']
                    self.ool.append('\n'.join(t))
                else:
                    P.add([I('s_cmp_ge_u32 s%d, 14\ns_cbranch_scc1 L_fin' % sM, kind='block')])
            self.s2(l)
            if self.stop == 'x1_%d' % l:
                P.label(lnext)
                break
            self.mlp(l)
            P.label(lnext)
            if l == 0:
                P('s_add_u32 s%d, s%d, %d\ns_add_u32 s%d, s%d, %d' % (sKv, sKv, KVP_L, sKvMy, sKvMy, KVP_L))
            if self.stop == 'x2_%d' % l:
                break
        P.add([I('s_cmp_lg_u32 s2, 0\ns_cbranch_scc1 L_fin\ns_cmp_lg_u32 s%d, 0\ns_cbranch_scc1 L_fin' % sW, kind='block')])
        P('s_mov_b64 exec, 1\nbuffer_store_dword v%d, off, %s, 0 sc1\ns_mov_b64 exec, -1' % (vNonce, self.srd(SRD_WS)))
        if self.probe is not None:
            P.add(self.stamp('end'))
            P.add([I('s_waitcnt lgkmcnt(0)\ns_sub_u32 s94, s94, s96\ns_lshl_b32 s94, s94, 2\ns_add_u32 s94, s94, 10000\nL_pr:\ns_memrealtime s[98:99]\ns_waitcnt lgkmcnt(0)\n'
                     's_sub_u32 s98, s98, s96\ns_cmp_lt_u32 s98, s94\ns_cbranch_scc1 L_pr', kind='block')])
        P.label('L_fin')
        if self.stamps:
            P('s_lshl_b32 s%d, s2, 2\ns_add_u32 s%d, s%d, s%d\ns_lshl_b32 s%d, s%d, 8\ns_add_u32 s%d, s%d, %d' % (sT0, sT0, sT0, sW, sT0, sT0, sT0, sT0, WS_STAMP))
            P.add(self.stamp('end'))
            P('s_memrealtime s[%d:%d]\ns_waitcnt lgkmcnt(0)\nv_writelane_b32 v%d, s%d, 63' % (sStamp, sStamp + 1, vStamp, sStamp))
            P('v_writelane_b32 v%d, s%d, 61' % (vStamp, sSpin))
            P('v_lshlrev_b32 v%d, 2, v0\nbuffer_store_dword v%d, v%d, %s, s%d offen' % (vT, vStamp, vT, self.srd(SRD_WS), sT0))
        P.label('L_end')
        P('s_endpgm')
        body, L = finalize(P.L)
        self.final = L
        ool = '\n'.join('\n'.join(('    ' + t if not t.endswith(':') else t) for t in b.split('\n') if t.strip()) for b in self.ool)
        head = open('cdna_kernels/%s.s.ref' % KNAME[:-7]).read().split('\n')
        hdr = [h for h in head if h.startswith(';') and '@launch' not in h]
        txt = '\n'.join(hdr) + '\n; @launch grid=(256,1,1) block=(256,1,1) lds=%d\n' % LDS_BYTES + DOC.lstrip('\n')
        txt += '.amdgcn_target "amdgcn-amd-amdhsa--gfx950"\n.text\n.globl %s\n.p2align 8\n.type %s,@function\n%s:\n' % (KNAME, KNAME, KNAME)
        txt += body + ool + '\nL_code_end:\n'
        txt += '''.section .rodata,"a"
.p2align 6
.amdhsa_kernel %s
  .amdhsa_next_free_vgpr 512
  .amdhsa_next_free_sgpr 102
  .amdhsa_accum_offset 256
  .amdhsa_group_segment_fixed_size 0
  .amdhsa_kernarg_size 88
  .amdhsa_user_sgpr_count 2
  .amdhsa_user_sgpr_kernarg_segment_ptr 1
  .amdhsa_system_sgpr_workgroup_id_x 1
.end_amdhsa_kernel
''' % KNAME
        return txt


if __name__ == '__main__':
    import argparse
    ap = argparse.ArgumentParser()
    ap.add_argument('-o', default='k.s')
    ap.add_argument('--stop', default=None)
    ap.add_argument('--stamps', action='store_true')
    ap.add_argument('opts', nargs='*')
    A = ap.parse_args()
    opt = {k: (x if k in ('probe', 'light') else int(x)) for k, x in (t.split('=') for t in A.opts)}
    g = Gen(stop=A.stop, stamps=A.stamps, **opt)
    open(A.o, 'w').write(g.build())
    if A.stamps:
        open(A.o + '.stamps', 'w').write('\n'.join(g.stamp_names))
    n = {}
    for x in g.final:
        n[x.kind] = n.get(x.kind, 0) + 1
    nops = sum(x.states for x in g.final if x.op == 's_nop')
    print('instructions', n, 'nop states', nops)
```

```python
import sys, struct
from asmgen import *

KNAME = 'interleave_layers__linear_attn_block__mixer_channel_mlp__prompt_kernel'


def f32(x):
    return '0x%08x' % struct.unpack('<I', struct.pack('<f', x))[0]


LOG2E = 1.4426950408889634
LN2 = 0.6931471805599453
MF = 'v_mfma_f32_32x32x16_bf16'

WS_XCC = 0x8000
WS_STAMP = 0x10000
WS_KVP = 0x200000
KVP_CH = 9216
KVP_L = 0xA0000
WS_CL = 0x400000
LOFF = 0xD9000
O_OFF, X1_OFF, H_OFF, XIN_OFF, XST_OFF, FL_OFF = 0, 0x20000, 0x40000, 0xB0000, 0xD0000, 0xD8000
FO, FX1, FXIN, FH = FL_OFF, FL_OFF + 512, FL_OFF + 1024, FL_OFF + 1536

L_WQ = 0
L_Q = 57344
L_XB = 28672
L_EX = 86016
L_XS = 86016
L_WO = 114688
L_KVS = 143616
L_KVB = L_KVS + 16384
L_CS = L_KVB + 2048
L_B2 = L_CS + 768
LDS_BYTES = 163840
assert L_B2 + 512 <= LDS_BYTES

SRD_WQ, SRD_WO, SRD_W1, SRD_W2, SRD_X, SRD_OUT, SRD_B1, SRD_B2, SRD_CL, SRD_WS = range(4, 44, 4)
sC, sM, sW, sNonce, sSlow, sX, sSpin = 44, 45, 46, 47, 48, 49, 50
sT0, sT1, sT2, sT3, sT4, sT5 = 51, 52, 53, 54, 55, 56
sLn2, sXcc, sWi = 57, 58, 59
sN28, sHalf = 60, 62
sZm = 64
sXin, sD1 = 66, 67
sKA = 68
sEb, sLb, sC0, sC1, sHs, sFe = 68, 69, 70, 71, 72, 73
sBlk, sOst, sFo, sFoMy, sKv, sKvMy, sHE, sHL, sPE, sPL = 74, 75, 76, 77, 78, 79, 80, 81, 82, 83
sHst = 84
sRot = 85
sQ0, sQ1 = 86, 87
sFin, sRes = 28, 34
sTag = 22
sPm = 88
sStamp = 90
sPC = 92

vLane, vL16, vDummy, vTr, vNonce, vMean, vRl, vW1X, _w1x1, vPoll, vPA = range(0, 11)
vT = 11
vStamp = 15
vPoll2, vPoll3 = 15, 5
W2A = 0
W1A = 224
W1V = 176


def w1reg(k):
    return a(W1A + 4 * k, 4) if k < 8 else v(W1V + 4 * (k - 8), 4)


def w1half(k, hh):
    return a(W1A + 4 * k + 2 * hh, 2) if k < 8 else v(W1V + 4 * (k - 8) + 2 * hh, 2)


def flat(LL):
    return [x for L in LL for x in L]


def mfma(D, A, B, first=False):
    return mk('%s %s, %s, %s, %s' % (MF, v(D, 16), A, B, '0' if first else v(D, 16)))


DOC = """
;   cluster c = 16 workgroups that share 128 tokens (ids with equal id%8, i.e. normally one die); member m = head m.
;   and nothing is reused, so the result does not depend on the placement.  Readers always bypass L1 (sc1).
"""


class Gen:
    def __init__(self, stop=None, stamps=False, **opt):
        self.P = Prog()
        self.ool = []
        self.stop = stop
        self.stamps = stamps
        self.nstamp = 0
        self.stamp_names = []
        self.probe = opt.pop('probe', None)
        self.light = opt.pop('light', None)
        self.fine = bool(self.light or self.probe)
        if self.light is not None:
            self.light = self.light.split('+')
            assert len(self.light) <= 4
        self.seen = {}
        self.o = dict(kvdelay=8, swat=20, resl=4, cpf2=3, swlate=0, xmask=1, stf=7, poll2=0, psl=0, pdo=5, pdo0=0, pdx=2, p1=1, pdi=0, s1pair=1, sta=13, stb=33, stc=48, isl=8, isl2=8, pollE=16, n3=4, st0=10, st1=23, stpos=1, x0=6, xstep=8, xlag=12, flagpos=8, gend=26, pollL=20, lateL=32, flag3=12, xbar=13, ntail=8, lead=16, look=6, pref=0, touch=1, codepf=1, rot=1, stnt=0, idlewq=0, reuse=1, npre=14, wqlate=84, pf0=1, w1q=4, w1pre=4, w1o=14, w1s=28, s2x=0, nxb1=12, pfslot=50, w2fill=4, w2u1=22, w2sp=6, npre0=9, flag30=4, nsh=17, sh0=48, shgap=6, f3u=23, peu=22, alias=1, flat=24, pf2=98, htk=0, wb=0, wbblk=3, wbsl=100, wbs2=0, wbslot=36, outf=0, outt=0, idlew2=11, woslot=41, tslot=46, latespan=14, strot=1, w1b2=70, look2=10, l1touch=0, xsc1=1, storder=0)
        self.o.update(opt)

    def srd(self, r):
        return s(r, 4)

    def stamp(self, name):
        if self.probe is not None:
            self.seen[name] = self.seen.get(name, 0) + 1
            if self.probe == '%s#%d' % (name, self.seen[name]):
                return [I('s_memrealtime s[94:95]', kind='block', states=1)]
            return []
        if not self.stamps:
            return []
        if self.light is not None:
            self.seen[name] = self.seen.get(name, 0) + 1
            key = '%s#%d' % (name, self.seen[name])
            if name == 'end':
                self.stamp_names.append('end')
                t = ['s_memtime s[88:89]', 's_waitcnt lgkmcnt(0) vmcnt(0)', 'v_writelane_b32 v%d, s98, 62' % vStamp]
                for i, r in enumerate([100] + [90 + 2 * j for j in range(len(self.stamp_names) - 2)] + [88]):
                    t.append('v_writelane_b32 v%d, s%d, %d' % (vStamp, r, i))
                return [I('\n'.join(t), kind='block', drain_lgkm=True)]
            if name != 'start' and key not in self.light:
                return []
            r = 100 if name == 'start' else 90 + 2 * (len(self.stamp_names) - 1)
            self.stamp_names.append(key if name != 'start' else name)
            return [I('s_memtime s[%d:%d]' % (r, r + 1), kind='block')]
        i = self.nstamp
        self.nstamp += 1
        self.stamp_names.append(name)
        t = 's_memtime s[%d:%d]\ns_waitcnt lgkmcnt(0)\nv_writelane_b32 v%d, s%d, %d' % (sStamp, sStamp + 1, vStamp, sStamp, i)
        return [I(t, kind='block', dst=[], src=[], drain_lgkm=True, states=3)]

    def stores(self, lines, last=0):
        insts = mk('\n'.join(lines))
        src = [r for x in insts for r in x.src]
        wide = [r for x in insts for r in x.wide]
        ls, lb = self.P.newlabel('Lslow'), self.P.newlabel('Lback')
        fl = ' nt' if self.layer == 1 and self.o['stf'] & last else ''
        txt = 's_cmp_lg_u32 s%d, 0\ns_cbranch_scc1 %s\n%s\n%s:' % (sSlow, ls, '\n'.join(l + fl for l in lines), lb)
        self.ool.append('%s:\n%s\ns_branch %s' % (ls, '\n'.join(l + ' sc1' for l in lines), lb))
        return [I(txt, kind='block', src=src, nvm=len(lines), wide=wide, states=1, cost=8 + 4 * len(lines))]

    def flag(self, toks, soff, off=0):
        st = self.stores(['buffer_store_dword v%d, off, %s, s%d offset:%d' % (vNonce, self.srd(SRD_CL), soff, off)])[0]
        st.text = 's_mov_b64 exec, 1\n' + st.text + '\ns_mov_b64 exec, -1'
        st.cost += 8
        return [wait_tok(*toks), st]

    def poll_issue(self, soff, delay=0):
        return (mk('s_sleep %d' % delay) if delay else []) + mk('buffer_load_dword v%d, v%d, %s, s%d offen sc1' % (vPoll, vPA, self.srd(SRD_CL), soff))

    def poll_check(self, soff, tag=False):
        ls, lb = self.P.newlabel('Lspin'), self.P.newlabel('Lgot')

        def cmp(r):
            if tag:
                return 'v_lshrrev_b32 v%d, 16, v%d\nv_cmp_ne_u32 vcc, s%d, v%d' % (r, r, sTag, r)
            return 'v_cmp_ne_u32 vcc, s%d, v%d' % (sNonce, r)
        ld = lambda r: 'buffer_load_dword v%d, v%d, %s, s%d offen sc1' % (r, vPA, self.srd(SRD_CL), soff)
        if self.o['poll2']:
            l1 = self.P.newlabel('Lsp')
            t = [ls + ':', ld(vPoll2), 's_sleep 2', l1 + ':', ld(vPoll3), 's_waitcnt vmcnt(1)', cmp(vPoll2), 's_cbranch_vccz %s' % lb,
                 ld(vPoll2), 's_add_u32 s%d, s%d, 1' % (sSpin, sSpin), 's_cmp_gt_u32 s%d, 0x40000' % sSpin, 's_cbranch_scc1 L_end',
                 's_waitcnt vmcnt(1)', cmp(vPoll3), 's_cbranch_vccnz %s' % l1, 's_branch %s' % lb]
        else:
            t = [ls + ':'] + (['s_sleep %d' % self.o['psl']] if self.o['psl'] else []) + [ld(vPoll), 's_add_u32 s%d, s%d, 1' % (sSpin, sSpin), 's_cmp_gt_u32 s%d, 0x40000' % sSpin, 's_cbranch_scc1 L_end',
                 's_waitcnt vmcnt(0)', cmp(vPoll), 's_cbranch_vccnz %s' % ls, 's_branch %s' % lb]
        self.ool.append('\n'.join(t))
        return [I(cmp(vPoll) + '\ns_cbranch_vccnz %s\n%s:' % (ls, lb), kind='block', src=[('v', vPoll)], dst=[('x', 'vcc'), ('v', vPoll)], states=2, cost=8)]

    def pa(self, n, blocks=False, reg=vPA):
        L = 'v_and_b32 v%d, %d, v0\n' % (reg, 15 if n <= 16 else 31)
        if n not in (16, 32):
            L += 'v_min_u32 v%d, %d, v%d\n' % (reg, n - 1, reg)
        L += 'v_lshlrev_b32 v%d, 2, v%d\n' % (reg, reg)
        if blocks:
            L += 'v_lshrrev_b32 v%d, 4, v0\nv_lshl_add_u32 v%d, v%d, 7, v%d' % (vT + 3, reg, vT + 3, reg)
        return mk(L)

    def trbase(self, dst, RS, kh, add=0, xor16=None):
        t = vT
        L = ['v_lshrrev_b32 v%d, 5, v%d' % (dst, vLane),
             'v_mul_u32_u24 v%d, %d, v%d' % (dst, kh, dst),
             'v_bfe_u32 v%d, v%d, 2, 2' % (t, vLane),
             'v_add_u32 v%d, v%d, v%d' % (dst, dst, t),
             'v_mul_u32_u24 v%d, %d, v%d' % (dst, RS, dst),
             'v_bfe_u32 v%d, v%d, 4, 1' % (t, vLane)]
        if xor16 is not None:
            L.append('v_xor_b32 v%d, s%d, v%d' % (t, xor16, t))
        L += ['v_lshl_add_u32 v%d, v%d, 5, v%d' % (dst, t, dst),
              'v_and_b32 v%d, 3, v%d' % (t, vLane),
              'v_lshl_add_u32 v%d, v%d, 3, v%d' % (dst, t, dst)]
        if add:
            L.append('v_add_u32 v%d, %d, v%d' % (dst, add, dst))
        return mk('\n'.join(L))

    def tr_kv(self, kh):
        return self.trbase(vTr, 128, kh, add=L_WQ) + mk('v_bfe_u32 v%d, v0, 3, 1\nv_lshl_add_u32 v%d, v%d, 6, v%d\nv_xor_b32 v%d, 64, v%d' % (vT, vTr, vT, vTr, vT + 3, vTr))

    def frag_loads(self, dsts, srd, sbase, const0, stride=1024, flags='', st=sT0):
        out = []
        cur = None
        for i, d in enumerate(dsts):
            off = const0 + i * stride
            grp = []
            if cur is None or not (0 <= off - cur <= 4095):
                cur = off
                grp += mk('s_add_u32 s%d, s%d, %d' % (st, sbase, off))
            grp += mk('buffer_load_dwordx4 %s, v%d, %s, s%d offen offset:%d %s' % (d, vL16, self.srd(srd), st, off - cur, flags))
            out.append(grp)
        return out

    def stats_finish(self, acc, double_ln):
        t1, t2 = vT + 1, vT + 2
        L = ['v_mov_b32 v%d, v%d' % (t1, acc),
             'v_mov_b32 v%d, v%d' % (vMean, acc),
             'v_permlane32_swap_b32 v%d, v%d' % (vMean, t1),
             'v_mul_f32 v%d, %s, v%d' % (vMean, f32(1.0 / 448), vMean),
             'v_mul_f32 v%d, %s, v%d' % (t1, f32(1.0 / 448), t1),
             'v_fma_f32 v%d, -v%d, v%d, v%d' % (t1, vMean, vMean, t1),
             'v_max_f32 v%d, 0, v%d' % (t1, t1),
             'v_add_f32 v%d, %s, v%d' % (t2, f32(1e-5), t1),
             'v_rsq_f32 v%d, v%d' % (vRl, t2)]
        if double_ln:
            L += ['v_mul_f32 v%d, v%d, v%d' % (t2, vRl, vRl),
                  'v_fmaak_f32 v%d, v%d, v%d, %s' % (t1, t1, t2, f32(1e-5)),
                  'v_rsq_f32 v%d, v%d' % (t1, t1),
                  'v_mul_f32 v%d, v%d, v%d' % (vRl, vRl, t1)]
        else:
            L += ['v_mul_f32 v%d, %s, v%d' % (vRl, f32(LOG2E), vRl)]
        return mk('\n'.join(L))

    def split_act(self, d0, val, t):
        return mk('\n'.join([
            'v_cvt_pk_bf16_f32 v%d, v%d, v%d' % (d0 + 1, val, val),
            'v_and_b32 v%d, 0xffff0000, v%d' % (t, d0 + 1),
            'v_sub_f32 v%d, v%d, v%d' % (t, val, t),
            'v_cvt_pk_bf16_f32 v%d, v%d, v%d' % (d0, val, t),
            'v_and_b32 v%d, 0xffff, v%d' % (d0 + 1, d0 + 1),
            'v_cndmask_b32 v%d, v%d, 0, s[%d:%d]' % (d0 + 1, d0 + 1, sHalf, sHalf + 1)]))

    def split_w(self, d0, val, t):
        return mk('\n'.join([
            'v_cvt_pk_bf16_f32 v%d, v%d, v%d' % (d0, val, val),
            'v_and_b32 v%d, 0xffff0000, v%d' % (t, d0),
            'v_sub_f32 v%d, v%d, v%d' % (t, val, t),
            'v_cvt_pk_bf16_f32 v%d, v%d, 0' % (d0 + 1, t)]))

    def phi8(self, r0, R, T, eps):
        L = ['v_pk_mul_f32 %s, %s, %s' % (v(r0 + i, 2), v(r0 + i, 2), R(i)) for i in range(0, 8, 2)]
        for i in range(8):
            L += ['v_exp_f32 v%d, v%d clamp' % (T + i, r0 + i), 'v_max_f32 v%d, 0, v%d' % (r0 + i, r0 + i)]
        L += ['v_pk_fma_f32 %s, %s, s[%d:%d], %s op_sel:[0,1,0] op_sel_hi:[1,1,1]' % (v(r0 + i, 2), v(r0 + i, 2), sLn2 - 1, sLn2, v(T + i, 2)) for i in range(0, 8, 2)]
        L += ['v_pk_add_f32 %s, %s, %s op_sel_hi:[1,0]' % (v(r0 + i, 2), v(r0 + i, 2), v(eps, 2)) for i in range(0, 8, 2)]
        return mk('\n'.join(L))

    def pack(self, dst, src, n):
        return mk('\n'.join('v_cvt_pk_bf16_f32 v%d, v%d, v%d' % (dst + i, src + 2 * i, src + 2 * i + 1) for i in range(n)))

    def unpack(self, dst, src, n):
        L = []
        for i in reversed(range(n)):
            L.append('v_and_b32 v%d, 0xffff0000, v%d' % (dst + 2 * i + 1, src + i))
            L.append('v_lshlrev_b32 v%d, 16, v%d' % (dst + 2 * i, src + i))
        return mk('\n'.join(L))

    def dots(self, regs, acc, ones, first):
        L = []
        for i, r in enumerate(regs):
            z = first and i == 0
            L.append('v_dot2_f32_bf16 v%d, v%d, v%d, %s' % (acc, r, ones, '0' if z else 'v%d' % acc))
            L.append('v_dot2_f32_bf16 v%d, v%d, v%d, %s' % (acc + 1, r, r, '0' if z else 'v%d' % (acc + 1)))
        return mk('\n'.join(L))

    def dots_end(self, acc):
        return mk('v_permlane32_swap_b32 v%d, v%d\nv_add_f32 v%d, v%d, v%d' % (acc, acc + 1, acc, acc, acc + 1))

    def row_stats(self, src, n, acc, ones):
        return mk('v_mov_b32 v%d, 0x3f803f80' % ones) + self.dots(range(src, src + n), acc, ones, True) + self.dots_end(acc)

    def kv_lane_addr(self, d, t, u, gather):
        L = []
        if gather:
            L += ['v_and_b32 v%d, 31, v0' % t, 'v_lshrrev_b32 v%d, 5, v0' % d]
        else:
            L += ['v_lshrrev_b32 v%d, 5, v0' % t, 'v_and_b32 v%d, 15, v0' % u, 'v_lshl_add_u32 v%d, v%d, 1, v%d' % (t, u, t), 'v_bfe_u32 v%d, v0, 4, 1' % d]
        L += ['v_lshrrev_b32 v%d, 3, v%d' % (u, t), 'v_sub_u32 v%d, v%d, v%d' % (u, t, u)]
        if not gather:
            L += ['v_and_b32 v%d, 7, v%d' % (t, t), 'v_cmp_eq_u32 vcc, 7, v%d' % t, 'v_cndmask_b32 v%d, v%d, 31, vcc' % (u, u)]
        L += ['v_lshl_add_u32 v%d, v%d, 5, v%d' % (d, d, u)]
        sh, qs, base = (4, 10, L_KVS) if gather else (5, 3, L_KVB)
        L += ['s_lshl_b32 s%d, s%d, %d' % (sT2, sW, qs), 'v_lshlrev_b32 v%d, %d, v%d' % (d, sh, d), 'v_add_u32 v%d, s%d, v%d' % (d, sT2, d)]
        L += ['v_and_b32 v%d, 1, v%d' % (t, u), 'v_lshlrev_b32 v%d, %d, v%d' % (t, 5 + sh, t), 'v_lshrrev_b32 v%d, 1, v%d' % (u, u)]
        L += ['v_cmp_gt_u32 vcc, 4, v%d' % u]
        L += ['v_lshl_add_u32 v%d, v%d, %d, v%d' % (t, u, qs, t), 'v_add_u32 v%d, %d, v%d' % (t, 28 << sh, t)]
        L += ['s_and_b64 vcc, vcc, s[%d:%d]' % ((sZm, sZm + 1) if gather else (sPm, sPm + 1)), 'v_cndmask_b32 v%d, v%d, v%d, vcc' % (d, d, t),
              'v_add_u32 v%d, %d, v%d' % (d, base, d)]
        return mk('\n'.join(L))

    def wq_dma(self, va, q):
        if q:
            ad = 'v_lshrrev_b32 v%d, 2, v0\nv_mul_u32_u24 v%d, 2688, v%d\nv_and_b32 v%d, 3, v0\nv_lshl_add_u32 v%d, v%d, 4, v%d' % (va, va, va, vT, va, vT, va)
        else:
            ad = ('v_lshrrev_b32 v%d, 3, v0\nv_mul_u32_u24 v%d, 2688, v%d\nv_and_b32 v%d, 3, v0\nv_lshl_add_u32 v%d, v%d, 4, v%d\n'
                  'v_lshrrev_b32 v%d, 2, v0\nv_xor_b32 v%d, v%d, v0\nv_bfe_u32 v%d, v%d, 2, 1\nv_mul_u32_u24 v%d, 896, v%d\nv_add3_u32 v%d, v%d, v%d, s%d'
                  % (va, va, va, vT, va, vT, va, vT, vT, vT, vT, vT, vT, vT, va, va, vT, sQ0))
        rows = 16 if q else 8
        pre = mk('s_mul_i32 s%d, s%d, 56\ns_add_u32 s%d, s%d, 896' % (sQ1, sM, sQ0, sQ1)) + mk(ad)
        if q:
            pre += mk('v_add_u32 v%d, s%d, v%d' % (va, sQ1, va))
        pre += mk('s_mul_i32 s%d, s%d, %d\ns_lshl_b32 s%d, s%d, 10' % (sRot, sW, rows * 2688, sQ1, sW))
        out = []
        for t in range(7 if q else 14):
            out.append(mk('s_add_u32 m0, s%d, %d\ns_add_u32 s%d, s%d, %d\nbuffer_load_dwordx4 v%d, %s, s%d offen lds'
                          % (sQ1, (L_Q if q else L_WQ) + 4096 * t, sQ0, sRot, 4 * t * rows * 2688, va, self.srd(SRD_WQ), sQ0)))
        return pre, out

    def touch(self, items, va):
        if not self.o['touch']:
            return []
        txt = ['v_lshlrev_b32 v%d, 7, v0' % va]
        cur = None
        n = 0
        for nl, srd, sg, c in items:
            if nl != cur:
                txt.append('s_mov_b64 exec, 0x%x' % ((1 << nl) - 1))
                cur = nl
            txt.append('s_add_u32 s%d, s%d, %d' % (sT2, sg, c) if sg is not None else 's_mov_b32 s%d, %d' % (sT2, c))
            txt.append('buffer_load_dword v%d, v%d, %s, s%d offen sc1' % (vDummy, va, self.srd(srd), sT2))
            n += 1
        txt.append('s_mov_b64 exec, -1')
        return [I('\n'.join(txt), kind='block', nvm=n, dst=[('v', va)], src=[('v', 0)], states=1, cost=12 * n)]

    def touch_attn(self, lo, va):
        pre = mk('s_lshr_b32 s%d, s%d, 2\ns_lshl_b32 s%d, s%d, 10\ns_add_u32 s%d, s%d, s%d\ns_add_u32 s%d, s%d, %d\ns_add_u32 s%d, s%d, %d\ns_mul_i32 s%d, s%d, 896'
                 % (sT1, sM, sT1, sT1, sT1, sT1, sBlk, sT1, sT1, X1_OFF + 28672, sT3, sOst, X1_OFF, sT0, sW))
        pre = [I('\n'.join(x.text for x in pre) + '\ns_cmp_lt_u32 s%d, 14\ns_cselect_b32 s%d, s%d, s%d\ns_cselect_b32 s%d, s%d, s%d'
                 % (sM, sT1, sT1, sOst, sT3, sT3, sOst), kind='block', cost=36)]
        return pre + self.touch([(16, SRD_CL, sOst, lo), (16, SRD_CL, sT3, lo), (8, SRD_CL, sT1, lo), (7, SRD_CL, sT0, lo + FL_OFF)], va)

    def prefetch(self, va, items):
        txt, n = ['v_lshlrev_b32 v%d, 7, v0' % va], 0
        for srd, per in items:
            for j in range(0, per, 64):
                nl = min(64, per - j)
                txt += ['s_mul_i32 s%d, s%d, %d' % (sT2, sWi, per * 128), 's_add_u32 s%d, s%d, %d' % (sT2, sT2, j * 128),
                        's_mov_b32 exec_lo, 0x%x' % (((1 << nl) - 1) & 0xffffffff), 's_mov_b32 exec_hi, 0x%x' % (((1 << nl) - 1) >> 32),
                        'buffer_load_dword v%d, v%d, %s, s%d offen' % (vDummy, va, self.srd(srd), sT2)]
                n += 1
        return [I('\n'.join(txt + ['s_mov_b64 exec, -1']), kind='block', nvm=n, src=[('v', 0)], dst=[('v', va)], cost=20 * n)]

    def idle_work(self):
        va = vT
        l = self.P.newlabel('Lnowarm')
        T = ['s_cmp_lg_u32 s%d, 0' % sSlow, 's_cbranch_scc1 %s' % l,
             'v_lshlrev_b32 v%d, 7, v0' % va,
             's_and_b32 s%d, s%d, 1' % (sT0, sM), 's_lshl_b32 s%d, s%d, 2' % (sT0, sT0), 's_add_u32 s%d, s%d, s%d' % (sT0, sT0, sW)]
        ld = lambda srd, fl: 'buffer_load_dword v%d, v%d, %s, s%d offen %s' % (vDummy, va, self.srd(srd), sT2, fl)
        nw2 = self.o['idlew2']
        if nw2:
            T += ['s_lshr_b32 s%d, s%d, 3' % (sT1, sC), 's_lshl_b32 s%d, s%d, 3' % (sT1, sT1), 's_add_u32 s%d, s%d, s%d' % (sT1, sT1, sT0),
                  's_lshl_b32 s%d, s%d, 13' % (sT2, sT1)]
            for i in range(nw2):
                T += [ld(SRD_W2, ''), 's_add_u32 s%d, s%d, 131072' % (sT2, sT2)]
        for i in range(2 * self.o['htk'] - (self.o['htk'] > 1), 7):
            T += ['s_lshl_b32 s%d, s%d, 13' % (sT2, sT0), 's_add_u32 s%d, s%d, %d' % (sT2, sT2, H_OFF + i * 65536), ld(SRD_CL, 'sc1')]
        if not self.o['alias']:
            for i in range(2):
                T += ['s_lshl_b32 s%d, s%d, 13' % (sT2, sT0), 's_add_u32 s%d, s%d, %d' % (sT2, sT2, XIN_OFF + i * 65536), ld(SRD_CL, 'sc1')]
        T += ['s_lshl_b32 s%d, s%d, 12' % (sT2, sT0), 's_add_u32 s%d, s%d, %d' % (sT2, sT2, XST_OFF), 's_mov_b32 exec_hi, 0', ld(SRD_CL, 'sc1'), 's_mov_b64 exec, -1']
        T += [l + ':']
        return '\n'.join(T)

    def prologue(self):
        P = self.P
        o = self.o
        P('s_cmp_ge_u32 s2, 256\ns_cbranch_scc1 L_end')
        if self.probe is not None:
            P.add([I('s_memrealtime s[96:97]\ns_memrealtime s[94:95]', kind='block', states=1)])
        P('s_load_dwordx16 s[%d:%d], s[0:1], 0' % (sKA, sKA + 15))
        P('s_load_dwordx4 s[%d:%d], s[0:1], 64' % (sKA + 16, sKA + 19))
        P('s_load_dwordx2 s[%d:%d], s[0:1], 80' % (sKA + 20, sKA + 21))
        P('v_lshrrev_b32 v%d, 6, v0\nv_and_b32 v0, 63, v0\nv_readfirstlane_b32 s%d, v%d' % (vT, sW, vT))
        P('s_lshr_b32 s%d, s2, 3\ns_lshl_b32 s%d, s%d, 2\ns_add_u32 s%d, s%d, s%d' % (sM, sWi, sM, sWi, sWi, sW))
        if o['codepf']:
            P.add([I('s_getpc_b64 s[%d:%d]\nL_pc:' % (sPC, sPC + 1), kind='block', dst=[], states=1)])
            P('s_lshl_b32 s%d, s%d, 9\nv_lshlrev_b32 v%d, 7, v0\nv_add_u32 v%d, s%d, v%d' % (sT0, sWi, vT, vT, sT0, vT))
            P.add([I('v_min_u32 v%d, L_code_end-L_pc-4, v%d\ns_mov_b64 exec, 15\nglobal_load_dword v%d, v%d, s[%d:%d]\ns_mov_b64 exec, -1'
                     % (vT, vT, vDummy, vT, sPC, sPC + 1), kind='block', dst=[('v', vT)], src=[('v', vT)], nvm=1)])
        P('s_and_b32 s%d, s2, 7\ns_lshr_b32 s%d, s%d, 4\ns_lshl_b32 s%d, s%d, 3\ns_add_u32 s%d, s%d, s%d\ns_and_b32 s%d, s%d, 15'
          % (sC, sT0, sM, sT0, sT0, sC, sC, sT0, sM, sM))
        P('v_lshlrev_b32 v%d, 4, v0' % vL16)
        if self.stamps:
            P('v_mov_b32 v%d, 0' % vStamp)
            P.add(self.stamp('start'))
            if self.light is not None:
                P('s_memrealtime s[98:99]\ns_waitcnt lgkmcnt(0)')
            else:
                assert not o['poll2']
                P('s_memrealtime s[%d:%d]\ns_waitcnt lgkmcnt(0)\nv_writelane_b32 v%d, s%d, 62' % (sStamp, sStamp + 1, vStamp, sStamp))
        P('s_lshl_b32 s%d, s%d, 2\ns_add_u32 s%d, s%d, s%d\ns_mul_i32 s%d, s%d, %d' % (sX, sC, sX, sX, sW, sX, sX, 32 * 896))
        vq, vxb, vxh, vxa, vrd = 160, 163, 164, 165, 167
        P('v_lshrrev_b32 v%d, 5, v0\nv_and_b32 v%d, 31, v0\nv_xor_b32 v%d, v%d, v%d\nv_lshlrev_b32 v%d, 4, v%d\nv_mul_u32_u24 v%d, 896, v%d'
          % (vxh, vT, vxb, vT, vxh, vxb, vxb, vxh, vxh))
        ka = sKA

        def mksrd(r, p, size):
            P('s_mov_b32 s%d, s%d\ns_mov_b32 s%d, s%d\ns_mov_b32 s%d, %d\ns_mov_b32 s%d, 0x20000' % (r, p, r + 1, p + 1, r + 2, size, r + 3))
        P('s_lshl_b32 s%d, s%d, 14\ns_add_u32 s%d, s%d, %d' % (sT5, sW, sT5, sT5, L_XS))
        mksrd(SRD_X, ka + 0, 2048 * 896)
        if self.probe:
            P.add(self.stamp('karg'))

        def xdma(half):
            out = []
            for i in range(16):
                if half:
                    g = mk('s_mov_b32 s%d, %d\nv_xad_u32 v%d, v%d, s%d, v%d' % (sT0, ((2 * i) & 15) << 4, vxa + (i & 1), vxb, sT0, vxh))
                    g += mk('s_add_u32 s%d, s%d, %d\ns_add_u32 m0, s%d, %d' % (sT1, sX, 2 * i * 896 + 512, sT5, 1024 * i))
                    ld = 'buffer_load_dwordx4 v%d, %s, s%d offen lds' % (vxa + (i & 1), self.srd(SRD_X), sT1)
                    if o['xmask']:
                        m = 0xff00ffff if i & 4 else 0x00ffffff
                        out.append(g + [I('s_mov_b32 exec_lo, 0x%x\ns_mov_b32 exec_hi, 0x%x\n%s\ns_mov_b64 exec, -1' % (m, m, ld), kind='block', nvm=1,
                                          src=[('v', vxa + (i & 1))], cost=20)])
                    else:
                        out.append(g + mk(ld))
                    continue
                g = mk('s_add_u32 s%d, s%d, %d\ns_and_b32 s%d, s%d, 15' % (sT4, sM, i, sT4, sT4) if o['rot'] else 's_mov_b32 s%d, %d' % (sT4, i))
                g += mk('s_lshl_b32 s%d, s%d, 5\ns_and_b32 s%d, s%d, 0xf0\nv_xad_u32 v%d, v%d, s%d, v%d' % (sT0, sT4, sT0, sT0, vxa + (i & 1), vxb, sT0, vxh))
                g += mk('s_mul_i32 s%d, s%d, 1792\ns_add_u32 s%d, s%d, s%d\ns_lshl_b32 s%d, s%d, 10\ns_add_u32 m0, s%d, s%d' % (sT1, sT4, sT1, sT1, sX, sT4, sT4, sT4, sT5))
                g += mk('buffer_load_dwordx4 v%d, %s, s%d offen lds' % (vxa + (i & 1), self.srd(SRD_X), sT1))
                out.append(g)
            return out
        mksrd(SRD_WQ, ka + 2, 448 * 2688)
        if o['pf0']:
            P('v_lshlrev_b32 v%d, 7, v0\ns_lshl_b32 s%d, s%d, 2\ns_add_u32 s%d, s%d, s%d\ns_mul_i32 s%d, s%d, %d\ns_mul_i32 s%d, s%d, %d\ns_add_u32 s%d, s%d, s%d\ns_mul_i32 s%d, s%d, 49'
              % (vxa, sT0, sM, sT0, sT0, sW, sT0, sT0, 14 * 128, sT1, sC, 128 * 896, sT0, sT0, sT1, sT1, sWi))
            if o['pf0'] == 1:
                P('v_add_u32 v%d, s%d, v0\nv_mul_u32_u24 v%d, 37450, v%d\nv_lshrrev_b32 v%d, 19, v%d\nv_mul_u32_u24 v%d, 896, v%d\nv_lshl_add_u32 v%d, v%d, 7, v%d'
                  % (vT, sT1, vxa + 1, vT, vxa + 1, vxa + 1, vxa + 1, vxa + 1, vxa + 1, vT, vxa + 1))
                P.add([I('s_mov_b64 exec, 0x3fff\nbuffer_load_dword v%d, v%d, %s, s%d offen\ns_mov_b32 exec_lo, -1\ns_mov_b32 exec_hi, 0x1ffff\n'
                         'buffer_load_dword v%d, v%d, %s, 0 offen offset:896\ns_mov_b64 exec, -1'
                         % (vDummy, vxa, self.srd(SRD_X), sT0, vDummy, vxa + 1, self.srd(SRD_WQ)), kind='block', nvm=2, src=[('v', vxa), ('v', vxa + 1)])])
            else:
                P.add([I('s_mov_b64 exec, 0x3fff\nbuffer_load_dword v%d, v%d, %s, s%d offen\ns_mov_b64 exec, -1' % (vDummy, vxa, self.srd(SRD_X), sT0),
                         kind='block', nvm=1, src=[('v', vxa)])])
                P.add(self.prefetch(vxa, [(SRD_WQ, 74)]))
        body = [x.text for x in xdma(0)[0]]
        body[0] = 's_add_u32 s%d, s%d, s%d' % (sT4, sM, sT2) if o['rot'] else 's_mov_b32 s%d, s%d' % (sT4, sT2)
        loop = I('\n'.join(['s_mov_b32 s%d, 0' % sT2, 'L_xa:'] + body[:-1] + ['s_add_u32 s%d, s%d, 1' % (sT2, sT2), 's_cmp_lt_u32 s%d, 16' % sT2, body[-1],
                                                                            's_cbranch_scc1 L_xa']), kind='block', nvm=16, src=[('v', vxb), ('v', vxh)] + regs_of(s(SRD_X, 4)), dst=[('v', vxa)])
        tA = tok(loop)
        P.add([loop])
        if self.probe:
            P.add(self.stamp('xiss'))
        P('s_load_dword s%d, s[%d:%d], 0' % (sNonce, ka + 20, ka + 21))
        mksrd(SRD_OUT, ka + 16, 2048 * 896)
        pre, wq = self.wq_dma(vq, False)
        self.tok_wq1, self.tok_wq = tok(wq[7][-1]), tok(wq[-1][-1])
        P.add(pre + flat(wq[:8]))
        mksrd(SRD_WO, ka + 4, 448 * 896)
        mksrd(SRD_W1, ka + 8, 448 * 3584)
        mksrd(SRD_B1, ka + 10, 3584)
        mksrd(SRD_W2, ka + 12, 1792 * 896)
        mksrd(SRD_B2, ka + 14, 896)
        mksrd(SRD_WS, ka + 20, WS_CL)
        P('s_lshl_b32 s%d, s%d, 21\ns_add_u32 s%d, s%d, %d' % (sT0, sC, sT0, sT0, WS_CL))
        P('s_add_u32 s%d, s%d, s%d\ns_addc_u32 s%d, s%d, 0\ns_mov_b32 s%d, 0x200000\ns_mov_b32 s%d, 0x20000'
          % (SRD_CL, ka + 20, sT0, SRD_CL + 1, ka + 21, SRD_CL + 2, SRD_CL + 3))
        P('s_mov_b32 s%d, %s\ns_mov_b32 s%d, 0\ns_mov_b32 s%d, -1' % (sLn2, f32(LN2), sHalf, sHalf + 1))
        P('s_mov_b32 s%d, 0x10000000\ns_mov_b32 s%d, 0x10000000\ns_mov_b32 s%d, 0' % (sN28, sN28 + 1, sSpin))
        P('s_getreg_b32 s%d, hwreg(HW_REG_XCC_ID, 0, 4)' % sXcc)
        P('s_and_b32 s%d, s%d, 1\ns_sub_u32 s%d, 3, s%d' % (sEb, sM, sLb, sEb))
        P('s_cmp_eq_u32 s%d, 3\ns_cselect_b32 s%d, -1, 0\ns_mov_b32 s%d, 0' % (sW, sZm + 1, sZm))
        P('s_lshr_b32 s%d, s%d, 3' % (sD1, sC) if o['strot'] else 's_mov_b32 s%d, 0' % sD1)
        c0 = -2.0 * 0.7978845608028654 * LOG2E
        P('s_mov_b32 s%d, %s\ns_mov_b32 s%d, %s' % (sC0, f32(c0), sC1, f32(c0 * 0.044715)))
        P('s_lshr_b32 s%d, s%d, 1\ns_lshl_b32 s%d, s%d, 2\ns_and_b32 s%d, s%d, 1\ns_lshl_b32 s%d, s%d, 1\ns_add_u32 s%d, s%d, s%d\ns_lshr_b32 s%d, s%d, 1\ns_add_u32 s%d, s%d, s%d'
          % (sFe, sM, sFe, sFe, sT0, sW, sT0, sT0, sFe, sFe, sT0, sT0, sW, sFe, sFe, sT0))
        P('s_lshl_b32 s%d, s%d, 15\ns_lshl_b32 s%d, s%d, 11\ns_add_u32 s%d, s%d, s%d' % (sBlk, sW, sOst, sM, sOst, sOst, sBlk))
        P('s_lshl_b32 s%d, s%d, 7\ns_add_u32 s%d, s%d, %d\ns_lshl_b32 s%d, s%d, 2\ns_add_u32 s%d, s%d, s%d' % (sFo, sW, sFo, sFo, FL_OFF, sT0, sM, sFoMy, sFo, sT0))
        P('s_lshl_b32 s%d, s%d, 2\ns_add_u32 s%d, s%d, s%d\ns_mul_i32 s%d, s%d, %d\ns_add_u32 s%d, s%d, %d' % (sT1, sM, sT1, sT1, sW, sKv, sT1, KVP_CH, sKv, sKv, WS_KVP))
        P('s_lshl_b32 s%d, s%d, 9\ns_add_u32 s%d, s%d, s%d' % (sKvMy, sC, sKvMy, sKvMy, sKv))
        P('s_lshl_b32 s%d, s%d, 11\ns_add_u32 s%d, s%d, %d' % (sHst, sT1, sHst, sHst, H_OFF))
        P('s_lshl_b32 s%d, s%d, 11\ns_add_u32 s%d, s%d, %d' % (sT1, sW, sT1, sT1, H_OFF))
        P('s_mul_i32 s%d, s%d, 114688\ns_add_u32 s%d, s%d, s%d\ns_mul_i32 s%d, s%d, 114688\ns_add_u32 s%d, s%d, s%d' % (sHE, sEb, sHE, sHE, sT1, sHL, sLb, sHL, sHL, sT1))
        P('s_lshl_b32 s%d, s%d, 9\ns_add_u32 s%d, s%d, s%d\ns_add_u32 s%d, s%d, %d' % (sPE, sEb, sPE, sPE, sFo, sPE, sPE, FH - FL_OFF))
        P('s_lshl_b32 s%d, s%d, 9\ns_add_u32 s%d, s%d, s%d\ns_add_u32 s%d, s%d, %d' % (sPL, sLb, sPL, sPL, sFo, sPL, sPL, FH - FL_OFF))
        self.xreg0 = xr = [16 + 4 * i if i < 20 else 176 + 4 * (i - 20) for i in range(28)]
        P('v_and_b32 v%d, 15, v0\nv_lshrrev_b32 v%d, 5, v0\nv_xor_b32 v%d, v%d, v%d\nv_lshlrev_b32 v%d, 4, v%d\nv_and_b32 v%d, 31, v0\nv_lshl_add_u32 v%d, v%d, 9, v%d\nv_add_u32 v%d, s%d, v%d'
          % (vT, vrd, vrd, vrd, vT, vrd, vrd, vT, vrd, vT, vrd, vrd, sT5, vrd))
        xrd = lambda k: mk('v_xor_b32 v%d, %d, v%d\nds_read_b128 %s, v%d' % (vrd + 1 + (k & 1), 32 * (k & 15), vrd, v(xr[k], 4), vrd + 1 + (k & 1)))
        vrs = vrd + 3
        P('v_and_b32 v%d, 15, v0\nv_lshlrev_b32 v%d, 4, v%d\nv_lshrrev_b32 v%d, 5, v0\nv_lshl_add_u32 v%d, v%d, 3, v%d\nv_and_b32 v%d, 31, v0\nv_lshl_add_u32 v%d, v%d, 9, v%d\nv_add_u32 v%d, s%d, v%d'
          % (vrs, vrs, vrs, vT, vrs, vT, vrs, vT, vrs, vT, vrs, vrs, sT5, vrs))
        P('s_and_b32 s%d, s%d, 7\ns_lshl_b32 s%d, s%d, 6\nv_xor_b32 v%d, s%d, v%d' % (sT0, sM, sT0, sT0, vrs, sT0, vrs))

        def resrd(half):
            l = P.newlabel('Lres')
            t = ['s_cmp_%s_u32 s%d, 8' % ('lt' if half else 'ge', sM), 's_cbranch_scc1 %s' % l]
            for g in range(4):
                t += ['v_xor_b32 v%d, %d, v%d' % (vrs + 1, 16 * g, vrs), 'ds_read_b64 %s, v%d' % (a(216 + 2 * g, 2), vrs + 1)]
            return [I('\n'.join(t + [l + ':']), kind='block', src=[('v', vrs)], dst=[('v', vrs + 1)])]
        P('s_add_u32 s%d, s%d, 0x01010101' % (sNonce, sNonce))
        P('v_mov_b32 v%d, s%d' % (vNonce, sNonce))
        P('s_lshl_b32 s%d, s%d, 4\ns_add_u32 s%d, s%d, s%d\ns_lshl_b32 s%d, s%d, 7\ns_add_u32 s%d, s%d, %d'
          % (sT2, sC, sT2, sT2, sM, sT2, sT2, sT2, sT2, WS_XCC))
        P('s_add_u32 s%d, s%d, s%d\nv_mov_b32 v%d, s%d\ns_mov_b64 exec, 1' % (sT3, sNonce, sXcc, vT, sT3))
        P('buffer_store_dword v%d, off, %s, s%d sc1' % (vT, self.srd(SRD_WS), sT2))
        P('s_mov_b64 exec, -1')
        P.add(self.tr_kv(8))
        P.add(self.stamp('issued'))
        P.add([wait_tok(tA)])
        P.add(self.stamp('xA'))
        for k in range(16):
            P.add(xrd(k))
        P.add(resrd(0))
        vS, vOne = 172, 174
        P('v_mov_b32 v%d, 0x3f803f80\ns_waitcnt lgkmcnt(0)' % vOne)
        xb = xdma(1)
        self.tok_xb = tok(xb[-1][-1])
        d = self.dots([xr[k] + i for k in range(16) for i in range(4)], vS, vOne, True)
        P.add(spread(xb[:o['nxb1']], d))
        self.late_dma = xb[o['nxb1']:] + wq[8:]
        self.late_rd = [xrd(k) for k in range(16, 28)] + [resrd(1)]
        self.late_dots = self.dots([xr[k] + i for k in range(16, 28) for i in range(4)], vS, vOne, False) + self.dots_end(vS)

    def s1(self, l):
        P = self.P
        o = self.o
        AK, AV, AQ, WB, SB = 96, 112, 128, 144, 160
        RLB, XE = SB, SB + 8
        NB = 4
        vS = 172 if l == 0 else vT + 2
        P.comment('==== layer %d : S1' % l)
        kh = 8 if l == 0 else 4
        vTrV, vTrQ, vCs = vT + 3, (vT + 2 if l == 0 else vDummy), vPA
        trq = self.trbase(vTrQ, 64, kh, add=L_Q)
        fin = self.stats_finish(vS, False)
        fin += mk('s_lshl_b32 s%d, s%d, 12\ns_add_u32 s%d, s%d, %d' % (sT4, sW, sT4, sT4, L_KVS))
        bounce = mk('v_and_b32 v%d, 31, v0\nv_lshl_add_u32 v%d, v%d, 2, s%d\nds_write_b32 v%d, v%d' % (vT + 1, vT + 1, vT + 1, sT4, vT + 1, vRl))
        fin += bounce
        fin += mk('v_sub_f32 v%d, 0, v%d' % (vMean, vMean)) + self.split_act(XE, vMean, vT)
        fin += mk('v_cndmask_b32 v%d, v%d, 0, s[%d:%d]\nv_mov_b32 v%d, 0\nv_mov_b32 v%d, 0' % (XE, XE, sHalf, sHalf + 1, XE + 2, XE + 3))
        if l == 0:
            xreg = self.xreg0
            P.add([wait_tok(self.tok_wq1)])
            P('s_barrier')
            P.add(self.stamp('wq_ready'))
            lds = []
        else:
            xreg = [16 + 4 * (i % 20) for i in range(28)]
            P.add(self.pa(28))
            P('s_add_u32 s%d, s%d, %d' % (sT4, sFo, FXIN - FL_OFF))
            P.add(self.poll_issue(sT4, o['pdi']))
            P('s_add_u32 s%d, s%d, s%d\ns_lshl_b32 s%d, s%d, 13' % (sT5, sBlk, sXin, sT3, sW))
            P.add(self.tr_kv(kh) + trq)
            lds = self.frag_loads([v(r, 4) for r in xreg], SRD_CL, sT5, 0, flags='sc1')
        nq = 0 if l == 0 else 8
        jobs = []
        for k in range(28):
            if l == 0 and k == 16:
                jobs += [(t, kk) for kk in range(7) for t in 'KV']
            jobs += [('k', k), ('v', k)] + ([('q', k)] if k < nq else [])
        jobs += [('k', 'e'), ('v', 'e')]
        nmain = len(jobs)
        jobs += [('q', k) for k in range(nq, 28)] + ([('q', 'e')] if l else [('Q', kk) for kk in range(7)])
        vo, vb, CSA = RLB, RLB + 4, 208

        def rd(j):
            t, k = jobs[j]
            b = WB + 4 * (j % NB)
            if k == 'e':
                return mk('ds_read_b64 %s, v%d offset:%d\nv_mov_b32 v%d, 0\nv_mov_b32 v%d, 0' % (v(b, 2), vCs, 256 * 'qkv'.index(t), b + 2, b + 3))
            base = {'q': vTrQ, 'k': vTr, 'v': vTrV, 'K': vb, 'V': vb + 1, 'Q': vTr}[t]
            rs = 64 if t in 'qQ' else 128
            return mk('ds_read_b64_tr_b16 %s, v%d offset:%d\nds_read_b64_tr_b16 %s, v%d offset:%d' % (v(b, 2), base, 16 * rs * k, v(b + 2, 2), base, 16 * rs * k + (32 // kh) * rs))
        for j in range(NB):
            P.add(rd(j))
        if l == 1:
            P.add(self.poll_check(sT4))
            P.add(self.stamp('x2_seen'))
            P.add(flat(lds[:o['look']]))
            P('s_add_u32 s%d, s%d, 1\nv_mov_b32 v%d, s%d' % (sNonce, sNonce, vNonce, sNonce))
        P('v_and_b32 v%d, 31, v0\nv_lshlrev_b32 v%d, 3, v%d\nv_add_u32 v%d, %d, v%d' % (vCs, vCs, vCs, vCs, L_CS, vCs))
        slots = []
        for j, (t, k) in enumerate(jobs):
            w = v(WB + 4 * (j % NB), 4)
            if t.isupper():
                sl = mfma(CSA + 16 * (t == 'V'), v(CSA + 16 if t == 'Q' else vo, 4), w, k == 0)
            else:
                x = v(XE if k == 'e' else xreg[k], 4)
                A, B = (w, x) if t == 'q' else (x, w)
                sl = mfma({'q': AQ, 'k': AK, 'v': AV}[t], A, B, k == 0)
            if l == 0 and j == 32 - NB:
                sl += self.late_dots + [wait_tok(self.tok_wq)] + mk('s_waitcnt lgkmcnt(0)\ns_barrier') + (self.stamp('bar2') if self.fine else [])
                sl += mk('s_mul_i32 s%d, s%d, %d\nv_add_u32 v%d, s%d, v%d\nv_add_u32 v%d, s%d, v%d' % (sT0, sW, 7 * 2048, vb, sT0, vTr, vb + 1, sT0, vTrV))
            if j % 2 == 0 and j + 1 < len(jobs) and j + 1 != nmain and o['s1pair']:
                also_waits_for(sl[0], v(WB + 4 * ((j + 1) % NB), 4))
            if j + NB < len(jobs) and not (j < nmain <= j + NB):
                sl += rd(j + NB)
            slots.append(sl)
        if l == 0:
            n = len(self.late_dma)
            for i, g in enumerate(self.late_dma):
                slots[(i * o['latespan']) // n] += g
            r0 = 32 - NB - 7
            slots[r0] += [wait_tok(self.tok_xb)]
            for i, g in enumerate(self.late_rd):
                slots[r0 + i // 2] += g
            slots[29] += mk('\n'.join('v_mov_b32 v%d, 0x3f803f80' % (vo + i) for i in range(4)))
            for i in range(0, len(fin), 4):
                slots[30 + i // 4] += fin[i:i + 4]
            pre, qd = self.wq_dma(175, True)
            self.tok_q = tok(qd[-1][-1])
            for i, g in enumerate([pre] + qd):
                slots[37 + i] += g
            slots[o['tslot']] += self.prefetch(vT, [(SRD_WO, 25)]) + self.touch_attn(0, vT)
            slots[47] += mk('v_and_b32 v%d, 31, v0\nv_lshlrev_b32 v%d, 2, v%d\ns_lshl_b32 s%d, s%d, 8\nv_add_u32 v%d, %d, v%d\nv_add_u32 v%d, s%d, v%d'
                            % (vb, vb, vb, sT0, sW, vb, L_KVB, vb, vb + 1, sT0, vb))
            slots[48] += mk('\n'.join('ds_write_b32 v%d, v%d offset:%d' % (vb + 1, CSA + 16 * t, 128 * t) for t in range(2)))
            slots[50] += mk('s_waitcnt lgkmcnt(0)\ns_barrier')
            for t in range(2):
                r = RLB
                slots[50 + 5 * t] += mk('\n'.join('ds_read_b32 v%d, v%d offset:%d' % (r + ww, vb, 256 * ww + 128 * t) for ww in range(4)))
                slots[53 + 5 * t] += mk('v_add_f32 v%d, v%d, v%d\nv_add_f32 v%d, v%d, v%d\nv_add_f32 v%d, v%d, v%d' % (r, r, r + 1, r + 2, r + 2, r + 3, r, r, r + 2))
                slots[54 + 5 * t] += self.split_w(r + 2, r, r + 1) + mk('ds_write_b64 v%d, %s offset:%d' % (vCs, v(r + 2, 2), 256 * (t + 1)))
        else:
            n = o['look']
            for j in range(0, nmain, 2):
                if n < 28:
                    k_free = n - 20
                    assert k_free < 0 or j >= jobs.index(('q', k_free))
                    slots[j] += lds[n]
                    n += 1
            st = self.frag_loads([v(SB + 4 * (i % 4), 4) for i in range(7)], SRD_CL, sT3, XST_OFF, st=sT1, flags='sc1')
            a0, a1 = o['sta'], o['stb']
            for i in range(4):
                slots[a0 + 2 * i] += st[i]
            ex = []
            for i in range(1, 16):
                ex += mk('v_add_f32 v%d, v%d, v%d' % (vS, vS if i > 1 else SB, SB + i))
            for i in range(0, 15, 2):
                slots[a1 - 8 + i // 2] += ex[i:i + 2]
            for i in range(3):
                slots[a1 + 2 * i] += st[4 + i]
            ex = flat(mk('v_add_f32 v%d, v%d, v%d' % (vS, vS, SB + i)) for i in range(12)) + fin
            e0 = o['stc']
            per = -(-len(ex) // (61 - e0))
            for i in range(61 - e0):
                slots[e0 + i] += ex[i * per:(i + 1) * per]
        RB = [WB + 4 * ((nmain - 4 + g) % NB) for g in range(4)]
        vEps = vT + 1
        slots[nmain - 5] += mk('v_lshrrev_b32 v%d, 5, v0\nv_lshl_add_u32 v%d, v%d, 4, s%d' % (vT + 2, vT + 2, vT + 2, sT4))
        for g in range(4):
            slots[nmain - 4 + g] += mk('ds_read_b128 %s, v%d offset:%d' % (v(RB[g], 4), vT + 2, 32 * g))
        slots[nmain - 1] += mk('v_mov_b32 v%d, 0x3f803f80\nv_add_u32 v%d, s%d, v%d\nv_mov_b32 v%d, %s' % (vPoll, vT, sT4, vL16, vEps, f32(1e-6)))
        vG = SB + 12
        ga = self.kv_lane_addr(vG, vG + 1, vG + 2, gather=True)
        for i in range(0, len(ga), 3):
            slots[(o['stb'] + 1 if l else 60) + i // 3] += ga[i:i + 3]
        P.add(flat(slots[:nmain]))
        P.add(self.stamp('s1_kv_mfma'))
        DK = WB
        for hf in range(2):
            R = lambda i: v(RB[2 * hf + i // 4] + i % 4, 2)
            P.add(self.phi8(AK + 8 * hf, R, RLB, vEps) + self.pack(AK + 4 * hf, AK + 8 * hf, 4))
            P.add(flat(mk('v_pk_mul_f32 %s, %s, %s' % (v(AV + 8 * hf + i, 2), v(AV + 8 * hf + i, 2), R(i))) for i in range(0, 8, 2)))
            P.add(self.pack(AV + 4 * hf, AV + 8 * hf, 4))
            for i in range(4):
                P('v_cndmask_b32 v%d, v%d, v%d, s[%d:%d]' % (AV + 4 * hf + i, AV + 4 * hf + i, vPoll, sN28, sN28 + 1))
        P.add(mfma(DK, v(AK, 4), v(AV, 4), True) + mfma(DK, v(AK + 4, 4), v(AV + 4, 4)))
        P('s_mov_b32 s%d, 0x80808080\ns_mov_b32 s%d, 0x80808080' % (sT0 + 1, sT0 + 2))
        for q in range(4):
            P('ds_write_b128 v%d, %s offset:%d' % (vT, v(DK + 4 * q, 4), 1024 * q))
        P('v_lshlrev_b32 v%d, 3, v0\ns_waitcnt lgkmcnt(0)\ns_barrier' % vT)
        for ww in range(4):
            P('ds_read_b128 %s, v%d offset:%d' % (v(AK + 4 * ww, 4), vG, 4096 * ww))
        if l == 1:
            for j in range(nmain, nmain + NB):
                P.add(rd(j))
        for x, y in ((AK, AK + 4), (AK + 8, AK + 12), (AK, AK + 8)):
            for i in (0, 2):
                P('v_pk_add_f32 %s, %s, %s' % (v(x + i, 2), v(x + i, 2), v(y + i, 2)))
        P.add(self.pack(AK, AK, 2))
        for i in range(2):
            P('v_cndmask_b32 v%d, v%d, v%d, s[%d:%d]' % (AK + i, AK + i, vNonce, sT0 + 1, sT0 + 2))
        P('buffer_store_dwordx2 %s, v%d, %s, s%d offen sc1' % (v(AK, 2), vT, self.srd(SRD_WS), sKvMy))
        P.add(self.stamp('kv_pub'))
        PQ = self.PQ = 104

        def qepi():
            L = []
            for hf in range(2):
                L += self.phi8(AQ + 8 * hf, lambda i: v(vRl, 2) + ' op_sel_hi:[1,0]', 32, vEps) + self.pack(PQ + 4 * hf, AQ + 8 * hf, 4)
            for i in (6, 7):
                L += mk('v_cndmask_b32 v%d, v%d, 0, s[%d:%d]' % (PQ + i, PQ + i, sHalf, sHalf + 1))
            return L
        if l == 0:
            P.add(trq + mk('\n'.join('v_mov_b32 v%d, 0x3f803f80' % (CSA + 16 + i) for i in range(4))))
            P('s_mul_i32 s%d, s%d, %d\nv_add_u32 v%d, s%d, v%d' % (sT0, sW, 7 * 1024, vTr, sT0, vTrQ))
            pre = [wait_tok(self.tok_q)] + mk('s_barrier') + flat(rd(j) for j in range(nmain, nmain + NB))
            va = CSA + 20
            post = mk('v_and_b32 v%d, 31, v0\nv_lshlrev_b32 v%d, 2, v%d\nv_add_u32 v%d, %d, v%d\ns_lshl_b32 s%d, s%d, 7\nv_add_u32 v%d, s%d, v%d\nds_write_b32 v%d, v%d'
                      % (va, va, va, va, L_KVS, va, sT0, sW, va + 1, sT0, va, va + 1, CSA))

            def qfin():
                L = mk('\n'.join('ds_read_b32 v%d, v%d offset:%d' % (WB + 4 + ww, va, 128 * ww) for ww in range(4)))
                L += mk('v_add_f32 v%d, v%d, v%d\nv_add_f32 v%d, v%d, v%d\nv_add_f32 v%d, v%d, v%d' % (WB + 4, WB + 4, WB + 5, WB + 6, WB + 6, WB + 7, WB + 4, WB + 4, WB + 6))
                L += self.split_w(WB, WB + 4, WB + 5) + mk('v_mov_b32 v%d, 0\nv_mov_b32 v%d, 0\nds_write_b64 v%d, %s' % (WB + 2, WB + 3, va + 2, v(WB, 2)))
                return L + mfma(AQ, v(WB, 4), v(XE, 4)) + qepi()
            post += mk('v_mov_b32 v%d, v%d' % (va + 2, vCs))
            self.staging(pre, slots[nmain:], post, qfin)
        else:
            if o['swat']:
                slots[nmain + o['swat']] += self.stamp('sweep_start') + self.sweep_loads()
            P.add(spread(slots[nmain:], self.kvx_pre(1)))
            P.add(qepi())

    PARK = 140

    def wo_dma(self, vwo):
        wo = [mk('v_lshrrev_b32 v%d, 2, v0\nv_mul_u32_u24 v%d, 896, v%d\nv_and_b32 v%d, 3, v0\nv_lshl_add_u32 v%d, v%d, 4, v%d\ns_lshl_b32 s%d, s%d, 6\nv_add_u32 v%d, s%d, v%d'
                 % (vwo, vwo, vwo, vT, vwo, vT, vwo, sQ0, sM, vwo, sQ0, vwo))
              + mk('s_mul_i32 s%d, s%d, %d\ns_lshl_b32 s%d, s%d, 10\ns_add_u32 s%d, s%d, %d' % (sQ1, sW, 16 * 896, sT3, sW, sT3, sT3, L_WO))]
        for t in range(7):
            wo.append(mk('s_add_u32 m0, s%d, %d\ns_add_u32 s%d, s%d, %d\nbuffer_load_dwordx4 v%d, %s, s%d offen lds' % (sT3, 4096 * t, sQ0, sQ1, t * 64 * 896, vwo, self.srd(SRD_WO), sQ0)))
        last = I('s_mov_b32 s%d, %d\ns_mov_b32 m0, %d\ns_mov_b64 exec, 0xffff\nbuffer_load_dwordx4 v%d, %s, s%d offen lds\ns_mov_b64 exec, -1'
                 % (sQ0, 448 * 896, L_WO + 28672, vwo, self.srd(SRD_WO), sQ0), kind='block', nvm=1, src=[('v', vwo)])
        self.tok_wo = tok(last)
        return wo + [[last]]

    def staging(self, qpre, qslots, qpost, qepi):
        P = self.P
        lskip, ljoin = P.newlabel('Lnostage'), P.newlabel('Lstaged')
        v1a, t0, t1, vp, vb, vb2 = 112, 113, 114, 115, 116, 168
        P('s_cmp_lt_u32 s%d, 14\ns_cselect_b32 s%d, s%d, 0' % (sM, SRD_W1 + 2, SRD_W1 + 2))
        P('v_lshrrev_b32 v%d, 2, v0\nv_mul_u32_u24 v%d, 3584, v%d\nv_and_b32 v%d, 3, v0\nv_lshl_add_u32 v%d, v%d, 4, v%d'
          % (v1a, v1a, v1a, vT, v1a, vT, v1a))
        P('s_lshl_b32 s%d, s%d, 2\ns_add_u32 s%d, s%d, s%d\ns_lshl_b32 s%d, s%d, 6\nv_add_u32 v%d, s%d, v%d' % (sT5, sM, sT5, sT5, sW, sT5, sT5, v1a, sT5, v1a))
        P('s_mul_i32 s%d, s%d, 14336\ns_add_u32 s%d, s%d, %d\ns_mul_i32 s%d, s%d, 21504\ns_mul_i32 s%d, s%d, %d' % (sT3, sW, sT3, sT3, L_EX, sQ1, sW, sWi, sD1, 14 * 16 * 3584))

        def issue(k):
            g = mk('s_add_u32 m0, s%d, %d' % ((sT3, 1024 * k) if k < 14 else (sQ1, 1024 * (k - 14))))
            g += mk('s_add_u32 s%d, s%d, %d' % (sQ0, sWi, k * 16 * 3584) if k < 14 else 's_sub_u32 s%d, %d, s%d' % (sQ0, k * 16 * 3584, sWi))
            g += mk('buffer_load_dwordx4 v%d, %s, s%d offen lds' % (v1a, self.srd(SRD_W1), sQ0))
            return g
        dm = [issue(k) for k in range(28)]
        tk = [tok(g[-1]) for g in dm]
        park = mk('\n'.join('v_accvgpr_read_b32 v%d, a%d' % (160 + i, 216 + i) for i in range(8)))
        park += mk('v_add_u32 v%d, s%d, v%d' % (vp, sQ1, vL16))
        park += flat(mk('ds_read_b128 %s, v%d offset:%d' % (a(self.PARK + 4 * i, 4), vp, 1024 * i)) for i in range(21))
        ht = self.touch([(16, SRD_CL, sHst, b * 114688) for b in range(self.o['htk'])], vT) if self.o['htk'] else []
        P.add(flat(dm[:7]) + qpre + ht + (self.stamp('q_go') if self.fine else []))
        for i, g in enumerate(dm[7:14]):
            qslots[self.o['w1q'] + 2 * i] += g
        P.add(spread(qslots, park + self.kvx_pre(0)) + qpost)
        P('s_lshl_b32 s%d, s%d, 11\ns_add_u32 s%d, s%d, %d' % (sT4, sC, sT4, sT4, WS_XCC))
        P('v_and_b32 v%d, 15, v0\nv_lshlrev_b32 v%d, 7, v%d' % (vPA, vPA, vPA))
        P('buffer_load_dword v%d, v%d, %s, s%d offen sc1' % (vPoll, vPA, self.srd(SRD_WS), sT4))
        P('s_waitcnt lgkmcnt(0)\ns_barrier')
        if self.fine:
            P.add(self.stamp('q_done'))
        vo, D = 124, 128
        ad = self.trbase(t1, 64, 4) + mk('v_add_u32 v%d, s%d, v%d\nv_add_u32 v%d, s%d, v%d' % (t0, sT3, t1, t1, sQ1, t1))
        ad += mk('\n'.join('v_mov_b32 v%d, 0x3f803f80' % (vo + i) for i in range(4)))
        n1 = self.o['w1pre']
        for k in range(14, 14 + n1):
            lb = P.newlabel('Lnw')
            blk = I('s_cmp_ge_u32 s%d, 14\ns_cbranch_scc1 %s\n%s\n%s:' % (sM, lb, '\n'.join(x.text for x in dm[k]), lb), kind='block', nvm=1, src=[('v', v1a)], cost=20)
            blk.tok = tk[k]
            dm[k] = [blk]
        P.add(spread(dm[14:14 + n1], qepi() + ad) if n1 else qepi() + ad)
        P.add(self.stamp('sweep_start') + self.sweep_loads())
        P.add([I('s_cmp_ge_u32 s%d, 14\ns_cbranch_scc1 %s' % (sM, lskip), kind='block')])
        self.ool.append('%s:\ns_waitcnt vmcnt(0)\ns_branch %s' % (lskip, ljoin))
        P('v_and_b32 v%d, 31, v0\nv_lshlrev_b32 v%d, 1, v%d\nbuffer_load_ushort v%d, v%d, %s, s%d offen' % (vT, vT, vT, vb, vT, self.srd(SRD_B1), sT5))
        P('v_lshrrev_b32 v%d, 5, v0\nv_lshlrev_b32 v%d, 3, v%d\ns_lshl_b32 s%d, s%d, 5' % (vT, vT, vT, sT2, sFe))
        P('buffer_load_dwordx2 %s, v%d, %s, s%d offen\nbuffer_load_dwordx2 %s, v%d, %s, s%d offen offset:16'
          % (v(vb2, 2), vT, self.srd(SRD_B2), sT2, v(vb2 + 2, 2), vT, self.srd(SRD_B2), sT2))

        def consume(k):
            va, o = (t0, 1024 * k) if k < 14 else (t1, 1024 * (k - 14))
            L = [wait_tok(tk[k])] + mk('ds_read_b64_tr_b16 %s, v%d offset:%d\nds_read_b64_tr_b16 %s, v%d offset:%d' % (w1half(k, 0), va, o, w1half(k, 1), va, o + 512))
            return L + (mfma(D, v(vo, 4), w1reg(k - 2), k == 2) if k >= 2 else [])
        for k in range(14):
            P.add((dm[14 + n1 + k] if 14 + n1 + k < 28 else []) + consume(k))
        P.add(mfma(D, v(vo, 4), w1reg(12)) + mfma(D, v(vo, 4), w1reg(13)))
        P.label(ljoin)
        P.add([I('s_nop 1', kind='block', states=2)])
        l2 = P.newlabel('Lnowo')
        wo = flat(self.wo_dma(117))
        txt, _ = finalize(wo)
        blk = I('s_cmp_ge_u32 s%d, 14\ns_cbranch_scc1 %s\n%s\n%s:' % (sM, l2, '\n'.join(t.strip() for t in txt.split('\n') if t.strip()), l2),
                kind='block', nvm=8, dst=[('v', 117), ('v', vT)], src=[('v', 0)])
        self.tok_wo = tok(blk)
        self.after_kvb = [blk]
        D2 = 88
        self.in_s2 = [[] for _ in range(32)]
        na, nb = self.o['w1o'], self.o['w1s']
        cons = lambda k: consume(k)[:3]
        cs2 = lambda k, first: mfma(D2 if na <= k < nb else D, v(vo, 4), w1reg(k), first)
        La = flat(cons(k) + (cs2(k - 1, False) if k > 14 else []) for k in range(14, na)) + (cs2(na - 1, False) if na > 14 else [])
        for n, k in enumerate(range(na, nb)):
            i = (n * 28) // (nb - na)
            self.in_s2[i] += cons(k)
            self.in_s2[i + 3] += cs2(k, k == na)
        xs = self.xsrc()
        if self.o['s2x']:
            for i, g in enumerate(xs):
                self.in_s2[2 * i + 1] += g
        else:
            La += flat(xs)
        L = flat(cons(k) + (cs2(k - 1, False) if k > nb else []) for k in range(nb, 28)) + (cs2(27, False) if nb < 28 else [])
        L += mk('v_add_f32 v%d, v%d, v%d' % (D, D, D2)) if nb > na else []
        L += self.unpack(144, vb2, 4) + mk('\n'.join('v_mov_b32 v%d, 0' % r for r in range(152, 156)))
        L += mk('s_lshl_b32 s%d, s%d, 7\ns_add_u32 s%d, s%d, %d\nv_lshrrev_b32 v%d, 5, v0\nv_lshl_add_u32 v%d, v%d, 6, s%d' % (sT0, sW, sT0, sT0, L_B2, vT, vT, vT, sT0))
        for q in range(4):
            L += mk('ds_write_b128 v%d, %s offset:%d' % (vT, v(144 + 4 * min(q, 2), 4), 16 * q))
        L += self.split_w(vW1X, D, vT + 1) + mk('v_lshl_or_b32 v%d, v%d, 16, v%d' % (vb, vb, vb))
        L += mk('v_cndmask_b32 v%d, v%d, v%d, s[%d:%d]\nv_cndmask_b32 v%d, v%d, 0, s[%d:%d]' % (vW1X, vW1X, vb, sHalf, sHalf + 1, vW1X + 1, vW1X + 1, sHalf, sHalf + 1))
        self.after_x1 = L + mk('s_waitcnt lgkmcnt(0)')
        self.after_o = La + [wait_tok(self.tok_wo)] + mk('s_waitcnt lgkmcnt(0)\ns_barrier') + flat(self.s2_rd(i) for i in range(4))

    def sweep_loads(self):
        return flat(self.frag_loads([v(48 + 4 * i, 4) for i in range(8)], SRD_WS, sKv, 0, flags='sc1', st=sQ0))

    def w2_prefetch(self, va, first, per):
        m = (1 << per) - 1
        txt = ['s_lshr_b32 s%d, s%d, 3' % (sQ0, sC), 's_mul_i32 s%d, s%d, 14' % (sQ0, sQ0), 's_add_u32 s%d, s%d, s%d' % (sQ0, sQ0, sM),
               's_lshl_b32 s%d, s%d, 2' % (sQ0, sQ0), 's_add_u32 s%d, s%d, s%d' % (sQ0, sQ0, sW), 's_mul_i32 s%d, s%d, %d' % (sQ0, sQ0, per * 128),
               's_add_u32 s%d, s%d, %d' % (sQ0, sQ0, first * 128), 'v_lshlrev_b32 v%d, 7, v0' % va,
               's_mov_b32 exec_lo, 0x%x' % (m & 0xffffffff), 's_mov_b32 exec_hi, 0x%x' % (m >> 32),
               'buffer_load_dword v%d, v%d, %s, s%d offen' % (vDummy, va, self.srd(SRD_W2), sQ0), 's_mov_b64 exec, -1']
        return [I('\n'.join(txt), kind='block', nvm=1, src=[('v', 0)], dst=[('v', va)], cost=52)]

    V2B = 12
    W2V = (15, 106, 5, 13, 140)

    def w2_addr(self):
        v2a, tA, tB, vp, tS = self.W2V
        L = mk('v_lshrrev_b32 v%d, 3, v0\nv_mul_u32_u24 v%d, 896, v%d\nv_lshrrev_b32 v%d, 2, v0\nv_and_b32 v%d, 4, v%d\nv_xor_b32 v%d, v%d, v0\nv_and_b32 v%d, 7, v%d\nv_lshl_add_u32 v%d, v%d, 4, v%d'
               % (v2a, v2a, v2a, vT, vT, vT, vT, vT, vT, vT, v2a, vT, v2a))
        L += mk('s_lshr_b32 s%d, s%d, 1\ns_lshl_b32 s%d, s%d, 7\ns_mul_i32 s%d, s%d, %d\ns_add_u32 s%d, s%d, s%d\nv_add_u32 v%d, s%d, v%d'
                % (sT0, sM, sT0, sT0, sT2, sW, 32 * 896, sT0, sT0, sT2, v2a, sT0, v2a))
        L += mk('s_mul_i32 s%d, s%d, 7168\ns_add_u32 s%d, s%d, %d\ns_lshl_b32 s%d, s%d, 12\ns_add_u32 s%d, s%d, %d'
                % (sRot, sW, sRot, sRot, L_EX, sQ1, sW, sQ1, sQ1, L_KVS))
        L += mk('s_lshr_b32 s%d, s%d, 1' % (sT0, sW)) + self.trbase(tA, 128, 4, xor16=sT0)
        L += mk('s_and_b32 s%d, s%d, 1\nv_bfe_u32 v%d, v0, 3, 1\nv_xor_b32 v%d, s%d, v%d\nv_lshl_add_u32 v%d, v%d, 6, v%d\nv_xor_b32 v%d, 64, v%d'
                % (sT0, sW, vT, vT, sT0, vT, tA, vT, tA, tA + 1, tA))
        L += mk('s_mul_i32 s%d, s%d, 10240\nv_add_u32 v%d, s%d, v%d\nv_add_u32 v%d, s%d, v%d' % (sWi, sW, tS, sWi, tA, tS + 1, sWi, tA + 1))
        L2 = mk('v_add_u32 v%d, s%d, v%d\nv_add_u32 v%d, s%d, v%d\nv_add_u32 v%d, s%d, v%d\nv_add_u32 v%d, s%d, v%d' % (tB, sQ1, tA, tB + 1, sQ1, tA + 1, tA, sRot, tA, tA + 1, sRot, tA + 1))
        L2 += mk('s_mul_i32 s%d, s%d, 21504\nv_add_u32 v%d, s%d, v%d\nv_add_u32 v%d, %d, v%d' % (sT0, sW, vp, sT0, vL16, self.V2B, 8 * 896 - 1024, v2a))
        return L, L2

    def w2_steps(self, u0, u1, shadow):
        v2a, tA, tB, vp, tS = self.W2V
        NS = 5

        def where(u):
            n = (u - u0) % NS
            if shadow:
                return sWi, tS, n * 2048
            return (sRot, tA, n * 2048) if n < 3 else (sQ1, tB, (n - 3) * 2048)

        def issue(u):
            out = []
            base, _, o = where(u)
            out += mk('s_add_u32 m0, s%d, %d\ns_mov_b32 s%d, %d' % (base, o, sQ0, (128 * (u // 2) + 16 * (u % 2)) * 896))
            out += mk('buffer_load_dwordx4 v%d, %s, s%d offen lds\nbuffer_load_dwordx4 v%d, %s, s%d offen offset:1024 lds'
                      % (v2a, self.srd(SRD_W2), sQ0, self.V2B, self.srd(SRD_W2), sQ0))
            return out, tok(out[-1])
        tk, first, steps, prev = {}, [], [], None
        for u in range(u0, min(u0 + NS - 1, u1)):
            g, tk[u] = issue(u)
            first.append(g)
        for u in range(u0, u1):
            _, ta, o = where(u)
            A = []
            if u + NS - 1 < u1:
                if prev:
                    A += [wait_tok(prev)]
                g, tk[u + NS - 1] = issue(u + NS - 1)
                A += g
            B = [wait_tok(tk[u])]
            for js in range(2):
                b = W2A + 8 * u + 4 * js
                B += mk('ds_read_b64_tr_b16 %s, v%d offset:%d\nds_read_b64_tr_b16 %s, v%d offset:%d' % (a(b, 2), ta + js, o, a(b + 2, 2), ta + js, o + 1024))
            prev = tok(B[-1])
            steps.append((A, B))
        return first, steps

    def w2_stage(self, fill, u0, u1, extra):
        P = self.P
        first, steps = self.w2_steps(u0, 28, False)
        P.add(flat(first))
        rest = [mk('ds_write_b128 v%d, %s offset:%d' % (self.W2V[3], a(self.PARK + 4 * i, 4), 1024 * i)) for i in range(21)]
        out, done = [], 0
        for n, (A, B) in enumerate(steps):
            u = u0 + n
            want = sum(1 for i in range(21) if 17 + (i + 1) // 2 <= u)
            out.append((A, rest[done:want], B + extra.get(u, []) + (self.stamp('w2_%d' % u) if self.fine else [])))
            done = want
        P.add(spread([A + flat(R) + B for A, R, B in out[:u1 - u0]], fill, start=0, end=self.o['w2fill']))
        return out[u1 - u0:]

    K10 = 98

    def kvx_pre(self, l):
        L = []
        RES = 160
        if l == 1:
            L += mk('s_add_u32 s%d, s%d, s%d' % (sT0, sOst, sXin))
            for j in range(2):
                L += mk('buffer_load_dwordx4 %s, v%d, %s, s%d offen offset:%d sc1' % (v(RES + 4 * j, 4), vL16, self.srd(SRD_CL), sT0, 1024 * j))
            L += [I('s_mul_i32 s%d, s%d, %d\ns_add_u32 s%d, s%d, s%d\ns_addc_u32 s%d, s%d, 0\ns_sub_u32 s%d, s%d, s%d'
                    % (sT0, sSlow, LOFF, SRD_CL, SRD_CL, sT0, SRD_CL + 1, SRD_CL + 1, SRD_CL + 2, SRD_CL + 2, sT0), kind='block', cost=16)]
        L += [I('s_cmp_eq_u32 s%d, 3\ns_cselect_b32 s%d, 0xffff0000, 0\ns_cselect_b32 s%d, 0xffff0000, 0' % (sW, sPm, sPm + 1), kind='block', cost=12)]
        L += self.kv_lane_addr(self.KA, self.KA + 1, self.KA + 2, gather=False)
        g, t = self.KA + 1, self.KA + 2
        L += mk('\n'.join(['v_bfe_u32 v%d, v0, 3, 1' % g, 'v_and_b32 v%d, 3, v0' % t, 'v_lshl_add_u32 v%d, v%d, 2, v%d' % (g, g, t),
                           'v_cmp_eq_u32 vcc, 7, v%d' % g, 'v_bfe_u32 v%d, v0, 4, 1' % t, 'v_mad_u32_u24 v%d, v%d, 14, v%d' % (g, t, g),
                           'v_bfe_u32 v%d, v0, 2, 1' % t, 'v_mad_u32_u24 v%d, v%d, 7, v%d' % (g, t, g), 'v_cndmask_b32 v%d, v%d, 28, vcc' % (g, g),
                           'v_and_b32 v%d, 32, v0' % t, 'v_add_u32 v%d, v%d, v%d' % (g, g, t), 'v_lshlrev_b32 v%d, 5, v%d' % (g, g), 'v_add_u32 v%d, %d, v%d' % (g, L_KVB, g)]))
        L += mk('s_and_b32 s%d, s%d, 0x1fff\ns_or_b32 s%d, s%d, 0x4000\ns_lshl_b32 s%d, s%d, 16' % (sTag, sNonce, sTag, sTag, sTag + 1, sTag))
        L += mk('v_mov_b32 v%d, 0x3f80\nv_mov_b32 v%d, 0x3f800000' % (self.K10, self.K10 + 1))
        return L

    KA = 100

    def kvx(self, l):
        P = self.P
        P.comment('==== layer %d : kv exchange' % l)
        if l == 0:
            lw, lb = P.newlabel('Lxcc'), P.newlabel('Lxok')
            P('v_subrev_u32 v%d, s%d, v%d\nv_cmp_lt_u32 vcc, 15, v%d' % (vPoll, sNonce, vPoll, vPoll))
            P.add([I('s_cbranch_vccnz %s\n%s:' % (lw, lb), kind='block')])
            self.ool.append('\n'.join([
                lw + ':',
                'buffer_load_dword v%d, v%d, %s, s%d offen sc1' % (vPoll, vPA, self.srd(SRD_WS), sT4),
                's_add_u32 s%d, s%d, 1' % (sSpin, sSpin),
                's_cmp_gt_u32 s%d, 0x40000' % sSpin,
                's_cbranch_scc1 L_end',
                's_waitcnt vmcnt(0)',
                'v_subrev_u32 v%d, s%d, v%d' % (vPoll, sNonce, vPoll),
                'v_cmp_lt_u32 vcc, 15, v%d' % vPoll,
                's_cbranch_vccnz %s' % lw,
                's_branch %s' % lb]))
            P('v_cmp_ne_u32 vcc, s%d, v%d\ns_cmp_lg_u64 vcc, 0\ns_cselect_b32 s%d, 1, 0\ns_mov_b32 s%d, %d\ns_cselect_b32 s%d, %d, s%d' % (sXcc, vPoll, sSlow, sXin, X1_OFF if self.o['alias'] else XIN_OFF, sXin, XIN_OFF, sXin))
        K10, K01 = self.K10, self.K10 + 1
        sw = []
        if l == 1 and not self.o['swat']:
            sw = (mk('s_sleep %d' % self.o['kvdelay']) if self.o['kvdelay'] else []) + self.stamp('sweep_start') + self.sweep_loads()
        if not self.o['swlate']:
            P.add(sw)
        P('v_and_b32 v%d, 15, v0\nv_lshlrev_b32 v%d, 11, v%d\nv_add_u32 v%d, 2044, v%d' % (vPA, vPA, vPA, vPA, vPA))
        P.add(self.trbase(vTr, 64, 7, add=L_WO))
        P.add(self.s2_pre(l))
        P('s_mov_b32 s%d, 0x88888888\ns_mov_b32 s%d, 0x88888888' % (sPm, sPm + 1))
        if self.o['swlate']:
            P.add(sw)
        lsw, lre = P.newlabel('Lsweep'), P.newlabel('Lresweep')
        P.label(lsw)
        B = 48
        bad, S = vT, 80
        P('v_mov_b32 v%d, 0' % bad)
        for i in range(8):
            for k in range(4):
                for hh, K in enumerate((K10, K01)):
                    P('v_dot2_f32_bf16 v%d, v%d, v%d, %s' % (S + 2 * k + hh, B + 4 * i + k, K, 'v%d' % (S + 2 * k + hh) if i else '0'))
            for k in (2, 3):
                P('v_bitop3_b32 v%d, v%d, s%d, v%d bitop3:0xbe' % (bad, B + 4 * i + k, sNonce, bad))
        P('v_cmp_ne_u32 vcc, 0, v%d\ns_and_b64 vcc, vcc, s[%d:%d]' % (bad, sPm, sPm + 1))
        P.add([I('s_cbranch_vccnz %s' % lre, kind='block', states=1)])
        self.ool.append('%s:\ns_sleep %d\ns_add_u32 s%d, s%d, 1\ns_cmp_gt_u32 s%d, 0x40000\ns_cbranch_scc1 L_end\n%s\ns_waitcnt vmcnt(0)\ns_branch %s'
                        % (lre, self.o['resl'], sSpin, sSpin, sSpin, '\n'.join(x.text for x in self.sweep_loads()), lsw))
        P.add(self.stamp('sweep_done'))
        for k in range(4):
            P('v_permlane32_swap_b32 v%d, v%d' % (S + k, S + 4 + k))
        for k in (0, 2):
            P('v_pk_add_f32 %s, %s, %s' % (v(S + k, 2), v(S + k, 2), v(S + 4 + k, 2)))
        P.add(self.pack(S, S, 2))
        P('ds_write_b64 v%d, %s' % (self.KA, v(S, 2)))
        P('s_waitcnt lgkmcnt(0)\ns_barrier')
        KF, D = 72, 80
        P('ds_read_b128 %s, v%d\nds_read_b128 %s, v%d offset:16' % (v(KF, 4), self.KA + 1, v(KF + 4, 4), self.KA + 1))
        P.add(flat(self.s2_rd(i) for i in range(4)) if l else self.after_kvb)
        P.add(mfma(D, v(KF, 4), v(self.PQ, 4), True))
        for i in (6, 7):
            P('v_cndmask_b32 v%d, v%d, 0, s[%d:%d]' % (KF + i, KF + i, sHalf, sHalf + 1))
        P.add(mfma(D, v(KF + 4, 4), v(self.PQ + 4, 4)))
        t1 = 120
        P('v_add_f32 v%d, %s, v%d\nv_rcp_f32 v%d, v%d\nv_mul_f32 v%d, s%d, v%d' % (t1, f32(1e-6), D + 7, t1, t1, t1, sLn2, t1))
        for r in range(0, 16, 2):
            P('v_pk_mul_f32 %s, %s, %s op_sel_hi:[1,0]' % (v(D + r, 2), v(D + r, 2), v(t1, 2)))
        P('v_mov_b32 v%d, s%d\nv_mov_b32 v%d, s%d' % (D + 7, sTag + 1, D + 15, sTag + 1))
        P.add(self.pack(D, D, 8))
        st = self.stores(['buffer_store_dwordx4 %s, v%d, %s, s%d offen offset:%d' % (v(D + 4 * j, 4), vL16, self.srd(SRD_CL), sOst, 1024 * j) for j in range(2)], last=1)
        P.add(st)
        P.add(self.stamp('o_pub'))

    def s2_rd(self, i):
        WB, o = 144 + 4 * (i % 4), 1792 * (i // 2) + 896 * (i % 2)
        return mk('ds_read_b64_tr_b16 %s, v%d offset:%d\nds_read_b64_tr_b16 %s, v%d offset:%d' % (v(WB, 2), vTr, o, v(WB + 2, 2), vTr, o + 256))

    def s2_pre(self, l):
        L = self.s4_consts(l)
        L += mk('s_add_u32 s%d, s%d, %d' % (sT4, sOst, X1_OFF))
        L += mk('s_lshr_b32 s%d, s%d, 2\ns_lshl_b32 s%d, s%d, 10\ns_and_b32 s%d, s%d, 3\ns_lshl_b32 s%d, s%d, 2\ns_add_u32 s%d, s%d, s%d\ns_add_u32 s%d, s%d, s%d\ns_add_u32 s%d, s%d, %d'
                % (sT5, sM, sT5, sT5, sT1, sM, sT1, sT1, sT5, sT5, sT1, sT5, sT5, sBlk, sT5, sT5, X1_OFF + 28672))
        return L + self.unpack(16, 160, 8)

    def s2(self, l):
        P = self.P
        o = self.o
        P.comment('==== layer %d : S2' % l)
        ACC, OF, WB, RES = 16, 32, 144, 160
        NB = 4
        lre, lfail = P.newlabel('Ls2'), P.newlabel('Ls2again')
        if l == 0:
            P.add(self.after_o)
        P.label(lre)
        P.add(self.poll_issue(sBlk, o['pdo'] if l else o['pdo0']))
        rd = self.s2_rd
        bad = vT
        P('v_mov_b32 v%d, 0' % bad)
        P.add(self.poll_check(sBlk, tag=True))
        P.add(self.stamp('o_seen'))
        oreg = [OF + 4 * (i % (28 if l else 14)) for i in range(32)]
        lds = self.frag_loads([v(r, 4) for r in oreg], SRD_CL, sBlk, O_OFF, flags='sc1')
        n = o['look2']
        P.add(flat(lds[:n]))
        chk = lambda i: mk('v_bitop3_b32 v%d, v%d, s%d, v%d bitop3:0xbe\nv_and_b32 v%d, 0xffff, v%d' % (bad, oreg[i] + 3, sTag + 1, bad, oreg[i] + 3, oreg[i] + 3))
        P.add(chk(0))
        for i in range(32):
            if i + n < 32:
                P.add(lds[i + n])
            P.add(mfma(ACC, v(WB + 4 * (i % NB), 4), v(oreg[i], 4)))
            if self.fine and i in (0, 8, 16, 31):
                P.add(self.stamp('s2_%d' % i))
            if i + NB < 32:
                P.add(rd(i + NB))
            if l == 0:
                P.add(self.in_s2[i])
            if i + 1 < 32:
                P.add(chk(i + 1))
            if i == 28:
                P.add(self.pa(14, blocks=True, reg=vT + 2))
        P('v_cmp_lt_u32 vcc, 0xffff, v%d' % bad)
        P.add([I('s_cbranch_vccnz %s' % lfail, kind='block', states=1)])
        again = '\n'.join(x.text for x in self.unpack(ACC, RES, 8) + flat(rd(i) for i in range(NB)))
        self.ool.append('%s:\ns_add_u32 s%d, s%d, 1\ns_cmp_gt_u32 s%d, 0x40000\ns_cbranch_scc1 L_end\ns_nop 15\n%s\ns_waitcnt lgkmcnt(0)\ns_branch %s'
                        % (lfail, sSpin, sSpin, sSpin, again, lre))
        P('v_mov_b32 v%d, v%d' % (vPA, vT + 2))
        P.add(self.pack(OF, ACC, 8))
        P.add(self.stores(['buffer_store_dwordx4 %s, v%d, %s, s%d offen offset:%d' % (v(OF + 4 * j, 4), vL16, self.srd(SRD_CL), sT4, 1024 * j) for j in range(2)], last=2))
        P.add(self.row_stats(OF, 8, vT, vT + 2))
        st = self.stores(['buffer_store_dword v%d, v%d, %s, s%d offen' % (vT, vL16, self.srd(SRD_CL), sT5)])
        tk = tok(st[-1])
        P.add(st)
        if self.fine:
            P.add(self.stamp('x1_st'))
        P.add(self.flag([tk], sFoMy, FX1 - FO))
        P.add(self.stamp('x1_pub'))

    def gelu(self, acc, KK, T):
        pr = range(0, 16, 2)
        A = flat(mk('v_pk_mul_f32 %s, %s, %s' % (v(T + i, 2), v(acc + i, 2), v(acc + i, 2))) for i in pr)
        A += flat(mk('v_pk_fma_f32 %s, %s, %s, %s op_sel:[0,1,0] op_sel_hi:[1,1,0]' % (v(T + i, 2), v(T + i, 2), v(KK, 2), v(KK, 2))) for i in pr)
        A += flat(mk('v_pk_mul_f32 %s, %s, %s' % (v(T + i, 2), v(T + i, 2), v(acc + i, 2))) for i in pr)
        E = flat(mk('v_exp_f32 v%d, v%d' % (T + i, T + i)) for i in range(16))
        B = flat(mk('v_pk_fma_f32 %s, %s, %s, %s op_sel_hi:[1,0,0]' % (v(T + i, 2), v(T + i, 2), v(KK + 2, 2), v(KK + 2, 2))) for i in pr)
        R = flat(mk('v_rcp_f32 v%d, v%d' % (T + i, T + i)) for i in range(16))
        C = flat(mk('v_pk_mul_f32 %s, %s, %s' % (v(acc + i, 2), v(acc + i, 2), v(T + i, 2))) for i in pr)
        pk = self.pack(acc, acc, 8)
        g4 = lambda f, g: flat(mk(f(4 * g + i)) for i in range(4))
        e = lambda g: E[4 * g:4 * g + 4]
        r = lambda g: R[4 * g:4 * g + 4]
        b = lambda g: g4(lambda i: 'v_fma_f32 v%d, v%d, v%d, v%d' % (T + i, T + i, KK + 2, KK + 2), g)
        c = lambda g: g4(lambda i: 'v_mul_f32 v%d, v%d, v%d' % (acc + i, acc + i, T + i), g) + pk[2 * g:2 * g + 2]
        tail = e(0) + e(1) + b(0) + r(0) + e(2) + b(1) + c(0) + r(1) + e(3) + b(2) + c(1) + r(2) + b(3) + c(2) + r(3) + c(3)
        return A, A + E + B + R + C + pk, tail

    XSRC = (4, 5, 6, 7, 8, 9, 10, 11, 12, 13, 14, 15, 20, 21)

    def xsrc(self):
        k, kk, bo, t = sQ0, sT1, sT2, sT3
        out = []
        for c, r in enumerate(self.XSRC):
            if c == 0:
                L = 's_lshl_b32 s%d, s%d, 1\ns_mul_i32 s%d, s%d, 14\ns_add_u32 s%d, s%d, s%d\ns_mov_b32 s%d, %d\n' % (k, sW, kk, sD1, kk, kk, k, bo, X1_OFF)
            else:
                L = ('s_add_u32 s%d, s%d, 8\ns_cmp_ge_u32 s%d, 28\ns_cselect_b32 s%d, 28, 0\ns_cselect_b32 s%d, 0x8000, 0\ns_sub_u32 s%d, s%d, s%d\ns_add_u32 s%d, s%d, s%d\n'
                     % (k, k, k, t, r, k, k, t, bo, bo, r))
                L += 's_add_u32 s%d, s%d, 8\ns_cmp_ge_u32 s%d, 28\ns_cselect_b32 s%d, 28, 0\ns_sub_u32 s%d, s%d, s%d\n' % (kk, kk, kk, t, kk, kk, t)
            out.append([I(L + 's_lshl_b32 s%d, s%d, 10\ns_add_u32 s%d, s%d, s%d' % (r, kk, r, r, bo), kind='block', cost=48)])
        return out

    SEL = 172

    def s4_consts(self, l):
        U, SEL = 120, self.SEL
        sel = mk('\n'.join(['v_lshrrev_b32 v%d, 5, v0' % SEL,
                             'v_lshlrev_b32 v%d, 2, v%d' % (SEL, SEL), 'v_and_b32 v%d, 31, v0' % (SEL + 1), 'v_sub_u32 v%d, v%d, v%d' % (U, SEL + 1, SEL),
                             'v_mov_b32 v%d, 0x3f80' % (U + 1), 'v_mov_b32 v%d, 0x3f800000' % (U + 2)]))
        for q, r0 in enumerate((0, 2, 8, 10)):
            sel += mk('v_cmp_eq_u32 vcc, %d, v%d\nv_cmp_eq_u32 s[%d:%d], %d, v%d\ns_nop 0\nv_cndmask_b32 v%d, 0, v%d, vcc\nv_cndmask_b32 v%d, v%d, v%d, s[%d:%d]'
                      % (r0, U, sPm, sPm + 1, r0 + 1, U, SEL + q, U + 1, SEL + q, SEL + q, U + 2, sPm, sPm + 1))
        for q, sB in enumerate((sEb, sLb)):
            sel += mk('s_lshl_b32 s%d, s%d, 15\ns_lshl_b32 s%d, s%d, 10\ns_add_u32 s%d, s%d, s%d\ns_add_u32 s%d, s%d, %d' % (sT0, sB, sT2, sFe, sT0, sT0, sT2, sRes + q, sT0, X1_OFF))
            if l == 0:
                sel += mk('s_add_u32 s%d, s%d, s%d\ns_lshl_b32 s%d, s%d, 13' % (sFin + q, sT0, sXin, sT0, sB))
                sel += mk('s_lshr_b32 s%d, s%d, 2\ns_lshl_b32 s%d, s%d, 10\ns_add_u32 s%d, s%d, s%d\ns_and_b32 s%d, s%d, 3\ns_lshl_b32 s%d, s%d, 2\ns_add_u32 s%d, s%d, s%d\ns_add_u32 s%d, s%d, %d'
                          % (sT2, sFe, sT2, sT2, sT0, sT0, sT2, sT2, sFe, sT2, sT2, sT0, sT0, sT2, sFin + 2 + q, sT0, XST_OFF))
                sel += mk('s_lshl_b32 s%d, s%d, 5\ns_add_u32 s%d, s%d, s%d\ns_lshl_b32 s%d, s%d, 2\ns_add_u32 s%d, s%d, %d' % (sT2, sB, sT2, sT2, sFe, sT2, sT2, sFin + 4 + q, sT2, FXIN))
            else:
                sel += mk('s_lshl_b32 s%d, s%d, 2\ns_add_u32 s%d, s%d, s%d\ns_mul_i32 s%d, s%d, %d\ns_lshl_b32 s%d, s%d, 5\ns_add_u32 s%d, s%d, s%d'
                          % (sT0, sC, sT0, sT0, sB, sT0, sT0, 32 * 896, sT2, sFe, sFin + q, sT0, sT2))

        return sel

    def mlp(self, l):
        P = self.P
        o = self.o
        P.comment('==== layer %d : MLP' % l)
        ACC = (16, 32)
        XB, EXB, WEX, T, RING = 48, 72, 76, 80, 108
        KK = (96, 100)
        SEL, vB2, vX2 = self.SEL, 104, 105
        NB = 6
        if l == 0:
            P.add(self.after_x1)
        P('s_mov_b32 s%d, %d' % (sT4, FX1))
        if not o['p1']:
            P.add(self.poll_issue(sT4, o['pdx']))
        P('s_lshl_b32 s%d, s%d, 11' % (sT5, sW))
        P('v_mov_b32 v%d, v%d\nv_mov_b32 v%d, v%d' % (WEX, vW1X, WEX + 1, vW1X + 1))
        P('\n'.join('v_mov_b32 v%d, 0' % r for r in (WEX + 2, WEX + 3, EXB + 2, EXB + 3)))
        vE8, vK16 = vTr, vT + 3
        P('v_lshlrev_b32 v%d, 3, v0\nv_add_u32 v%d, %d, v%d' % (vE8, vE8, L_KVS, vE8))
        P('v_and_b32 v%d, 31, v0\nv_lshlrev_b32 v%d, 4, v%d\nv_add_u32 v%d, %d, v%d' % (vK16, vK16, vK16, vK16, L_KVS + 512, vK16))
        P('v_add_u32 v%d, %d, v%d' % (vX2, 56 * 1024, vL16))
        P('s_lshl_b32 s%d, s%d, 7\ns_add_u32 s%d, s%d, %d\nv_lshrrev_b32 v%d, 5, v0\nv_lshl_add_u32 v%d, v%d, 6, s%d' % (sT3, sW, sT3, sT3, L_B2, vB2, vB2, vB2, sT3))
        P('s_add_u32 s%d, s%d, %d' % (sT1, sBlk, X1_OFF + 28672))
        if o['p1']:
            lq = P.newlabel('Lnp')
            c = self.poll_check(sT4)[0]
            P.add([I('s_cmp_lg_u32 s%d, 0\ns_cbranch_scc1 %s\n%s\ns_waitcnt vmcnt(0)\n%s\n%s:\ns_barrier'
                     % (sW, lq, '\n'.join(x.text for x in self.poll_issue(sT4, o['pdx'] if l else 0)), c.text, lq), kind='block', src=[('v', vPA)], dst=c.dst, states=2)])
        else:
            P.add(self.poll_check(sT4))
        P.add(self.stamp('x1_seen'))
        xd, tc = [], []
        for c, r in enumerate(self.XSRC):
            g = mk('s_add_u32 m0, s%d, %d' % (sT5, 8192 * c))
            g += mk('buffer_load_dwordx4 v%d, %s, s%d offen sc1 lds\nbuffer_load_dwordx4 v%d, %s, s%d offen offset:1024 sc1 lds' % (vL16, self.srd(SRD_CL), r, vL16, self.srd(SRD_CL), r))
            tc.append(tok(g[-1]))
            xd.append(g)
        stl = [mk('buffer_load_dwordx4 %s, v%d, %s, s%d offen offset:%d sc1' % (v(RING + 4 * i, 4), vL16, self.srd(SRD_CL), sT1, 1024 * i)) for i in range(4)]
        sp = o['stpos']
        P.add({0: flat(stl) + xd[0] + xd[1], 1: xd[0] + xd[1] + flat(stl), 2: xd[0] + xd[1], 3: xd[0] + flat(stl[:2]) + xd[1]}[sp])
        K0 = KK[1]
        st0 = []
        for x, y in ((0, 1), (2, 3), (4, 5), (6, 7), (8, 9), (10, 11), (12, 13), (0, 2), (4, 6), (8, 10), (0, 4), (8, 12)):
            st0 += mk('v_add_f32 v%d, v%d, v%d' % (RING + x, RING + x, RING + y))
        st0 += mk('v_add_f32 v%d, v%d, v%d' % (T, RING, RING + 8))
        st0 += self.stats_finish(T, True)
        st0 += mk('\n'.join(['v_rcp_f32 v%d, v%d' % (K0 + 2, vRl),
                             'v_mul_f32 v%d, s%d, v%d' % (K0, sC0, vRl),
                             'v_mul_f32 v%d, v%d, v%d' % (T, vRl, vRl),
                             'v_mul_f32 v%d, s%d, v%d' % (K0 + 1, sC1, vRl),
                             'v_mul_f32 v%d, v%d, v%d' % (K0 + 1, K0 + 1, T),
                             'v_sub_f32 v%d, 0, v%d' % (vMean, vMean),
                             'v_cndmask_b32 v%d, v%d, v%d, s[%d:%d]' % (vMean, vMean, K0 + 2, sHalf, sHalf + 1)]))
        st0 += self.split_act(T + 2, vMean, T)
        st0 += mk('s_lshl_b32 s%d, s%d, 10\nv_add_u32 v%d, s%d, v%d\nv_add_u32 v%d, s%d, v%d' % (sT4, sW, vT, sT4, vE8, vT + 1, sT4, vK16))
        st0 += mk('ds_write_b64 v%d, %s\nds_write_b128 v%d, %s' % (vT, v(T + 2, 2), vT + 1, v(K0, 4)))
        tst = tok(st0[-1])

        def hpub(b):
            pre = mk('s_add_u32 s%d, s%d, %d' % (sT4, sHst, b * 114688))
            st = self.stores(['buffer_store_dwordx4 %s, v%d, %s, s%d offen offset:%d' % (v(ACC[b & 1] + 4 * j, 4), vL16, self.srd(SRD_CL), sT4, 1024 * j) for j in range(2)], last=4)
            return pre + st, tok(st[-1])
        hflag = lambda b, tk: self.flag([tk], sFoMy, FH - FO + 512 * b)
        extrd = lambda b: mk('ds_read_b64 %s, v%d offset:%d\nds_read_b128 %s, v%d offset:%d' % (v(EXB, 2), vE8, 1024 * b, v(KK[b & 1], 4), vK16, 1024 * b))
        extmf = lambda b: mfma(ACC[b & 1], v(WEX, 4), v(EXB, 4))
        hreg = [RING + 4 * (i % 16) for i in range(56)]

        def hload(i):
            blk, kap = divmod(i, 28)
            g = mk('s_add_u32 s%d, s%d, %d' % (sHs, (sHE, sHL)[blk], 8192 * (kap // 2))) if kap % 2 == 0 else []
            return g + mk('buffer_load_dwordx4 %s, v%d, %s, s%d offen offset:%d sc1' % (v(hreg[i], 4), vL16, self.srd(SRD_CL), sHs, 1024 * (kap % 2)))
        P.add([wait_tok(tc[0])])
        P('s_barrier')
        P.add(self.stamp('s3_b0'))
        rdj = lambda j: mk('ds_read_b128 %s, v%d offset:%d' % (v(XB + 4 * (j % NB), 4), vL16 if j < 56 else vX2, 1024 * (j % 56)))
        for j in range(NB):
            P.add(rdj(j))
        isl = lambda c: 0 if c == 2 else o['x0'] + (o['xstep'] * (c - 3)) // 2
        bars, cov = {}, 0
        for c in range(1, 14):
            sj = 8 * c - 5
            if c > cov or sj in (27, 43):
                cov = max([c] + [d for d in range(3, 14) if isl(d) + o['xlag'] <= sj])
                bars[sj] = [tc[cov]] + ([tst] if sj == 27 else [])
        slots = []
        for j in range(112):
            b, k = divmod(j, 28)
            sl = mfma(ACC[b & 1], w1reg(k), v(XB + 4 * (j % NB), 4), k == 0)
            if k % 2 == 0:
                also_waits_for(sl[0], v(XB + 4 * ((j + 1) % NB), 4))
            if j in bars:
                sl += (self.stamp('pb%d' % j) if self.fine else []) + [wait_tok(*bars[j])] + mk('s_barrier') + (self.stamp('ab%d' % j) if self.fine else [])
            if k % 2 == 1:
                for jj in (j + NB - 1, j + NB):
                    if jj < 112:
                        sl += rdj(jj)
            if (k == 25 and b) or j == 27:
                sl += extrd(b)
            if (k == 27 and b) or j == 30:
                sl += extmf(b if k == 27 else 0)
            slots.append(sl)
        slots[0] += stl[0] + stl[1] if sp == 2 else []
        slots[1 if sp == 2 else 0] += xd[2]
        slots[3 if sp == 2 else 2] += stl[2] + stl[3] if sp >= 2 else []
        for c in range(3, 14):
            slots[isl(c)] += xd[c]
        pre0, pre1 = self.w2_addr() if l == 0 else ([], [])
        slots[26] += pre1
        nsh = o['nsh'] if l == 0 else 0
        if nsh:
            first, steps = self.w2_steps(0, nsh, True)
            p0 = o['sh0']
            for i, g in enumerate(first):
                slots[p0 + 2 * i] += g
            p1 = p0 + 2 * len(first) + o['shgap']
            for n, (A, B) in enumerate(steps):
                sj = p1 + (n * (110 - p1)) // nsh
                slots[sj] += A
                slots[sj + 1] += B
            if o['idlew2'] < 13:
                slots[o['pf2']] += self.w2_prefetch(vT, 1024 * o['idlew2'], -(-(12544 - 1024 * o['idlew2']) // 112))
        out = spread(slots[:o['st0']], pre0) + spread(slots[o['st0']:o['st1']], st0) + flat(slots[o['st1']:28])
        pend = None
        for b in range(1, 4):
            gA, _, tail = self.gelu(ACC[(b - 1) & 1], KK[(b - 1) & 1], T)
            s0 = 28 * b + (5 if b == 1 else 2)
            st, nxt = hpub(b - 1)
            if l == 0 and b < 3 and not nsh:
                st = st + self.w2_prefetch(vT, (b - 1) * 6272, 56)
            slots[s0] += gA
            if pend is not None and l == 1:
                slots[28 * b + o['flagpos']] += hflag(b - 2, pend)
            pend = nxt
            if b == 3 and l == 1:
                slots[84 + o['pollE']] += self.pa(14) + self.poll_issue(sPE)
                n3 = o['n3']
                slots[112 - n3] += (self.stamp('preE') if self.fine else []) + self.poll_check(sPE) + (self.stamp('gotE') if self.fine else [])
                for i in range(n3):
                    slots[112 - n3 + i] += hload(i)
            if b == 1 or self.fine:
                out += self.stamp('s3_b%d' % b)
            out += flat(slots[28 * b:s0 + 1]) + spread(slots[s0 + 1:28 * b + 28], tail + st, end=28 * b + o['gend'] - s0)
        P.add(out)
        P('s_waitcnt lgkmcnt(0)\ns_barrier')
        P.add(self.stamp('s3_end'))
        AE, AL, RX, RS = 48, 16, 80, 96
        vEW, vER = (vTr, vT, vT + 1), vT + 3
        resid = lambda q: mk('buffer_load_dwordx4 %s, v%d, %s, s%d offen sc1' % (v(RS, 4), vL16, self.srd(SRD_CL), sRes + q))
        cinit = lambda A: flat(mk('ds_read_b128 %s, v%d offset:%d' % (v(A + 4 * q, 4), vB2, 16 * q)) for q in range(4))
        ad = []
        for n, x in enumerate((2, 1, 3)):
            ad += mk('s_xor_b32 s%d, s%d, %d\ns_mul_i32 s%d, s%d, 6144\ns_add_u32 s%d, s%d, %d\nv_add_u32 v%d, s%d, v%d'
                     % (sT3, sW, x, sT3, sT3, sT3, sT3, L_EX + 2048 * (x - 1), vEW[n], sT3, vL16))
        ad += mk('s_mul_i32 s%d, s%d, 6144\ns_add_u32 s%d, s%d, %d\nv_add_u32 v%d, s%d, v%d' % (sT3, sW, sT3, sT3, L_EX, vER, sT3, vL16))
        gA, gall, _ = self.gelu(ACC[1], KK[1], T)
        st, p3 = hpub(3)
        npre = o['npre']
        if l == 0:
            npre, u1 = o['npre0'], o['w2u1']
            fl = hflag(0, pend) + hflag(1, pend) + hflag(2, pend)
            w2rest = self.w2_stage(gall[:o['flat']] + fl + gall[o['flat']:] + st, nsh, u1, {u1 - 2: self.pa(14) + self.poll_issue(sPE)})
            P.add(cinit(AE) + self.poll_check(sPE) + resid(0) + flat(hload(i) for i in range(npre)))
        else:
            P.add(spread([resid(0)] + [hload(i) for i in range(o['n3'], npre)], gall[:40] + hflag(2, pend) + cinit(AE) + gall[40:] + st))
        if self.fine:
            P.add(self.stamp('g3_end'))

        exch_write = lambda A: flat(mk('ds_write_b128 v%d, %s\nds_write_b128 v%d, %s offset:1024' % (vEW[n], v(r, 4), vEW[n], v(r + 4, 4)))
                                    for n, r in enumerate((A + 8, A + 16, A + 24)))
        exch_read = lambda: flat(mk('ds_read_b128 %s, v%d offset:%d' % (v(RX + 4 * q, 4), vER, 1024 * q)) for q in range(6))

        def addv(d, x, y, n, pk):
            if pk:
                return flat(mk('v_pk_add_f32 %s, %s, %s' % (v(d + i, 2), v(x + i, 2), v(y + i, 2))) for i in range(0, n, 2))
            return flat(mk('v_add_f32 v%d, v%d, v%d' % (d + i, x + i, y + i)) for i in range(n))

        def finish(A, q, pk):
            L = addv(A, A, RX, 8, pk) + addv(RX + 8, RX + 8, RX + 16, 8, pk) + addv(A, A, RX + 8, 8, pk) + self.pack(A, A, 4)
            if l == 0:
                L += self.stores(['buffer_store_dwordx4 %s, v%d, %s, s%d offen' % (v(A, 4), vL16, self.srd(SRD_CL), sFin + q)])
                rs = self.row_stats(A, 4, RX, RX + 2)
                blk = I('\n'.join(x.text for x in rs[:9]), kind='block', src=[r for x in rs[:9] for r in x.src], dst=[('v', RX), ('v', RX + 1), ('v', RX + 2)], states=1, cost=60)
                L += [blk] + mk('s_nop 2') + rs[9:]
                st = self.stores(['buffer_store_dword v%d, v%d, %s, s%d offen' % (RX, vL16, self.srd(SRD_CL), sFin + 2 + q)])
                tk = tok(st[-1])
                return L + st, self.flag([tk], sFin + 4 + q)
            L += mk('v_permlane32_swap_b32 v%d, v%d\nv_permlane32_swap_b32 v%d, v%d' % (A, A + 2, A + 1, A + 3))
            L += mk('buffer_store_dwordx4 %s, v%d, %s, s%d offen %s' % (v(A, 4), vPA, self.srd(SRD_OUT), sFin + q, ('', 'sc1', 'nt', 'sc0 sc1')[o['outf']]))
            return L, []

        slots = []
        nt = o['ntail']
        order = [(i, js) for i in range(56 - nt) for js in range(2)] + [(i, 1) for i in range(56 - nt, 56)] + [(i, 0) for i in range(56 - nt, 56)]
        for i, js in order:
            blk, kap = divmod(i, 28)
            A = (AE, AL)[blk]
            sl = mfma(A, v(SEL, 4), v(RS, 4)) if kap == 0 and js == 0 else []
            slots.append(sl + mfma(A + 16 * js, a(W2A + 8 * kap + 4 * js, 4), v(hreg[i], 4), kap == 0 and js == 1))
        sidx = 0
        for i in range(npre, 56):
            sidx = max(sidx, 2 * (i - 16) + 1 if i >= 16 else 0)
            if i == 28:
                sidx = max(sidx, o['lateL'])
                slots[sidx] += (self.stamp('preL') if self.fine else []) + self.poll_check(sPL) + (self.stamp('gotL') if self.fine else [])
            slots[sidx] += hload(i)
            assert sidx <= 2 * i - 6
            sidx += 1 if 2 * (i + 1) - sidx - 2 < o['lead'] else 2
        if l == 0:
            for n, (A, R, B) in enumerate(w2rest):
                sj = 1 + o['w2sp'] * n
                slots[sj] += A
                for i, g in enumerate(R):
                    slots[sj + i] += g
                slots[sj + len(R)] += B
                assert sj + len(R) <= 2 * (u1 + n) - 4
        if True:
            slots[o['flag3'] if l else o['flag30']] += (self.stamp('preF') if self.fine else []) + hflag(3, p3) + (self.stamp('gotF') if self.fine else [])
        slots[o['pollL']] += self.poll_issue(sPL)
        for i in range(0, len(ad), 4):
            slots[2 * (i // 4) + 30] += ad[i:i + 4]
        slots[40] += resid(1)
        if l == 0:
            slots[52] += mk('s_waitcnt lgkmcnt(0)\ns_barrier')
        slots[46] += cinit(AL)
        if l == 1:
            slots[44] += mk('v_and_b32 v%d, 31, v0\nv_mul_u32_u24 v%d, 896, v%d\nv_lshrrev_b32 v%d, 5, v0\nv_lshl_add_u32 v%d, v%d, 4, v%d'
                            % (vPA, vPA, vPA, vPoll, vPA, vPoll, vPA))
        P.add(flat(slots[:56]))
        P.add(self.stamp('s4_E'))
        late = slots[56:]
        fin, fl = finish(AE, 0, False)
        xb0 = o['xbar']
        P.add(spread(late[:xb0], exch_write(AE), start=2, end=9))
        late[xb0] += (self.stamp('preX') if self.fine else []) + mk('s_waitcnt lgkmcnt(0)\ns_barrier') + (self.stamp('gotX') if self.fine else []) + exch_read()
        late[34] += (self.stamp('preY') if self.fine else []) + mk('s_barrier') + (self.stamp('gotY') if self.fine else [])
        late[44] += fl
        wl = exch_write(AL)
        if l == 1 and o['wb'] == 3:
            lw = P.newlabel('Lnowb')
            late[o['wbslot']] += [I('s_or_b32 s%d, s%d, s%d\ns_cmp_lg_u32 s%d, 0\ns_cbranch_scc1 %s\nbuffer_wbl2 sc1\n%s:' % (sT0, sM, sW, sT0, lw, lw), kind='block', cost=12)]
        for i in range(4):
            late[56 - nt + 2 + i] += [wl[2 + i]]
        P.add(spread(late[xb0:], fin, start=4, end=33 - xb0))
        P.add(self.stamp('s4_L'))
        P.add(wl[:2] + mk('s_waitcnt lgkmcnt(0)\ns_barrier') + exch_read())
        fin, fl = finish(AL, 1, True)
        P.add(fin + fl)
        P.add(self.stamp('x2_pub'))

    def build(self):
        P = self.P
        self.prologue()
        for l in range(2):
            self.layer = l
            self.s1(l)
            if self.stop == 's1_%d' % l:
                break
            self.kvx(l)
            if self.stop == 'o_%d' % l:
                break
            lnext = 'L_layer%d' % (l + 1)
            if l == 0:
                lsk = P.newlabel('Lskipmlp')
                P.add([I('s_cmp_ge_u32 s%d, 14\ns_cbranch_scc1 %s' % (sM, lsk), kind='block')])
                lp = P.newlabel('Lidle')
                t = [x.text for x in self.pa(28)] + ['s_mov_b32 s%d, %d' % (sT4, FXIN), lp + ':', 's_sleep %d' % self.o['isl'],
                                                     'buffer_load_dword v%d, v%d, %s, s%d offen sc1' % (vPoll, vPA, self.srd(SRD_CL), sT4),
                                                     's_add_u32 s%d, s%d, 1' % (sSpin, sSpin), 's_cmp_gt_u32 s%d, 0x40000' % sSpin, 's_cbranch_scc1 L_end',
                                                     's_waitcnt vmcnt(0)', 'v_cmp_ne_u32 vcc, s%d, v%d' % (sNonce, vPoll), 's_cbranch_vccnz %s' % lp,
                                                     's_sleep %d' % self.o['isl2']]
                def code_pf(n, first, end):
                    return ['s_getpc_b64 s[%d:%d]' % (sPm, sPm + 1), 'L_pc%d:' % n, 's_sub_u32 s%d, s%d, L_pc%d-%s' % (sPm, sPm, n, first),
                            's_subb_u32 s%d, s%d, 0' % (sPm + 1, sPm + 1),
                            's_lshr_b32 s%d, s%d, 3' % (sT1, sC), 's_lshl_b32 s%d, s%d, 1' % (sT1, sT1), 's_and_b32 s%d, s%d, 1' % (sT0, sM),
                            's_add_u32 s%d, s%d, s%d' % (sT1, sT1, sT0), 's_lshl_b32 s%d, s%d, 2' % (sT1, sT1), 's_add_u32 s%d, s%d, s%d' % (sT1, sT1, sW),
                            's_lshl_b32 s%d, s%d, 11' % (sT1, sT1), 'v_lshlrev_b32 v%d, 7, v0' % vT, 'v_add_u32 v%d, s%d, v%d' % (vT, sT1, vT),
                            'v_min_u32 v%d, %s-%s-4, v%d' % (vT, end, first, vT), 's_mov_b64 exec, 0xffff',
                            'global_load_dword v%d, v%d, s[%d:%d]' % (vPoll, vT, sPm, sPm + 1), 's_mov_b64 exec, -1']
                if self.o['cpf2'] & 1:
                    t = t[:-1] + code_pf(2, lnext, 'L_code_end') + ['s_waitcnt vmcnt(0)']
                t0 = code_pf(3, 'L_mlp0', lnext) if self.o['cpf2'] & 2 else []
                P.label('L_mlp0')
                self.ool.append('%s:\n%s\ns_waitcnt vmcnt(0) lgkmcnt(0)\n%s\ns_branch %s' % (lsk, '\n'.join(t0 + [self.idle_work()]), '\n'.join(t), lnext))
            else:
                if self.o['wb'] in (1, 2):
                    lw, lp = P.newlabel('Lwb'), P.newlabel('Lwbp')
                    P.add([I('s_cmp_ge_u32 s%d, 14\ns_cbranch_scc1 %s' % (sM, lw), kind='block')])
                    t = [lw + ':']
                    if self.o['outt']:
                        lo = P.newlabel('Lot')
                        t += ['s_cmp_lg_u32 s%d, 15' % sM, 's_cbranch_scc1 %s' % lo, 'v_lshlrev_b32 v%d, 7, v0' % vT, 's_mov_b32 exec_hi, 0xffffff']
                        for i in range(4):
                            t += ['s_add_u32 s%d, s%d, %d' % (sT2, sX, i * 56 * 128), 'buffer_load_dword v%d, v%d, %s, s%d offen' % (vDummy, vT, self.srd(SRD_OUT), sT2)]
                        t += ['s_mov_b64 exec, -1', 's_waitcnt vmcnt(0)', lo + ':']
                    t += ['s_cmp_lg_u32 s%d, 14' % sM, 's_cbranch_scc1 L_fin', 's_cmp_lg_u32 s%d, 0' % sW, 's_cbranch_scc1 L_fin']
                    t += [x.text for x in self.pa(14, blocks=True)]
                    t += ['s_mov_b32 s%d, %d' % (sT4, FH + 512 * self.o['wbblk'] if self.o['wbblk'] >= 0 else FX1), 's_sleep %d' % self.o['wbsl']] + (['buffer_wbl2 sc1', 's_waitcnt vmcnt(0)'] if self.o['wb'] == 2 else []) + [lp + ':', 's_sleep 4',
                          'buffer_load_dword v%d, v%d, %s, s%d offen sc1' % (vPoll, vPA, self.srd(SRD_CL), sT4),
                          's_add_u32 s%d, s%d, 1' % (sSpin, sSpin), 's_cmp_gt_u32 s%d, 0x40000' % sSpin, 's_cbranch_scc1 L_end',
                          's_waitcnt vmcnt(0)', 'v_cmp_ne_u32 vcc, s%d, v%d' % (sNonce, vPoll), 's_cbranch_vccnz %s' % lp,
                          's_sleep %d' % self.o['wbs2'], 'buffer_wbl2 sc1', 's_waitcnt vmcnt(0)', 's_branch L_fin']
                    self.ool.append('\n'.join(t))
                else:
                    P.add([I('s_cmp_ge_u32 s%d, 14\ns_cbranch_scc1 L_fin' % sM, kind='block')])
            self.s2(l)
            if self.stop == 'x1_%d' % l:
                P.label(lnext)
                break
            self.mlp(l)
            P.label(lnext)
            if l == 0:
                P('s_add_u32 s%d, s%d, %d\ns_add_u32 s%d, s%d, %d' % (sKv, sKv, KVP_L, sKvMy, sKvMy, KVP_L))
            if self.stop == 'x2_%d' % l:
                break
        P.add([I('s_cmp_lg_u32 s2, 0\ns_cbranch_scc1 L_fin\ns_cmp_lg_u32 s%d, 0\ns_cbranch_scc1 L_fin' % sW, kind='block')])
        P('s_mov_b64 exec, 1\nbuffer_store_dword v%d, off, %s, 0 sc1\ns_mov_b64 exec, -1' % (vNonce, self.srd(SRD_WS)))
        if self.probe is not None:
            P.add(self.stamp('end'))
            P.add([I('s_waitcnt lgkmcnt(0)\ns_sub_u32 s94, s94, s96\ns_lshl_b32 s94, s94, 2\ns_add_u32 s94, s94, 10000\nL_pr:\ns_memrealtime s[98:99]\ns_waitcnt lgkmcnt(0)\n'
                     's_sub_u32 s98, s98, s96\ns_cmp_lt_u32 s98, s94\ns_cbranch_scc1 L_pr', kind='block')])
        P.label('L_fin')
        if self.stamps:
            P('s_lshl_b32 s%d, s2, 2\ns_add_u32 s%d, s%d, s%d\ns_lshl_b32 s%d, s%d, 8\ns_add_u32 s%d, s%d, %d' % (sT0, sT0, sT0, sW, sT0, sT0, sT0, sT0, WS_STAMP))
            P.add(self.stamp('end'))
            P('s_memrealtime s[%d:%d]\ns_waitcnt lgkmcnt(0)\nv_writelane_b32 v%d, s%d, 63' % (sStamp, sStamp + 1, vStamp, sStamp))
            P('v_writelane_b32 v%d, s%d, 61' % (vStamp, sSpin))
            P('v_lshlrev_b32 v%d, 2, v0\nbuffer_store_dword v%d, v%d, %s, s%d offen' % (vT, vStamp, vT, self.srd(SRD_WS), sT0))
        P.label('L_end')
        P('s_endpgm')
        body, L = finalize(P.L)
        self.final = L
        ool = '\n'.join('\n'.join(('    ' + t if not t.endswith(':') else t) for t in b.split('\n') if t.strip()) for b in self.ool)
        head = open('cdna_kernels/%s.s.ref' % KNAME[:-7]).read().split('\n')
        hdr = [h for h in head if h.startswith(';') and '@launch' not in h]
        txt = '\n'.join(hdr) + '\n; @launch grid=(256,1,1) block=(256,1,1) lds=%d\n' % LDS_BYTES + DOC.lstrip('\n')
        txt += '.amdgcn_target "amdgcn-amd-amdhsa--gfx950"\n.text\n.globl %s\n.p2align 8\n.type %s,@function\n%s:\n' % (KNAME, KNAME, KNAME)
        txt += body + ool + '\nL_code_end:\n'
        txt += '''.section .rodata,"a"
.p2align 6
.amdhsa_kernel %s
  .amdhsa_next_free_vgpr 512
  .amdhsa_next_free_sgpr 102
  .amdhsa_accum_offset 256
  .amdhsa_group_segment_fixed_size 0
  .amdhsa_kernarg_size 88
  .amdhsa_user_sgpr_count 2
  .amdhsa_user_sgpr_kernarg_segment_ptr 1
  .amdhsa_system_sgpr_workgroup_id_x 1
.end_amdhsa_kernel
''' % KNAME
        return txt


if __name__ == '__main__':
    import argparse
    ap = argparse.ArgumentParser()
    ap.add_argument('-o', default='k.s')
    ap.add_argument('--stop', default=None)
    ap.add_argument('--stamps', action='store_true')
    ap.add_argument('opts', nargs='*')
    A = ap.parse_args()
    opt = {k: (x if k in ('probe', 'light') else int(x)) for k, x in (t.split('=') for t in A.opts)}
    g = Gen(stop=A.stop, stamps=A.stamps, **opt)
    open(A.o, 'w').write(g.build())
    if A.stamps:
        open(A.o + '.stamps', 'w').write('\n'.join(g.stamp_names))
    n = {}
    for x in g.final:
        n[x.kind] = n.get(x.kind, 0) + 1
    nops = sum(x.states for x in g.final if x.op == 's_nop')
    print('instructions', n, 'nop states', nops)
```

```python
import sys, struct
from asmgen import *

KNAME = 'interleave_layers__linear_attn_block__mixer_channel_mlp__prompt_kernel'


def f32(x):
    return '0x%08x' % struct.unpack('<I', struct.pack('<f', x))[0]


LOG2E = 1.4426950408889634
LN2 = 0.6931471805599453
MF = 'v_mfma_f32_32x32x16_bf16'

WS_XCC = 0x8000
WS_STAMP = 0x10000
WS_KVP = 0x200000
KVP_CH = 9216
KVP_L = 0xA0000
WS_CL = 0x400000
LOFF = 0xD9000
O_OFF, X1_OFF, H_OFF, XIN_OFF, XST_OFF, FL_OFF = 0, 0x20000, 0x40000, 0xB0000, 0xD0000, 0xD8000
FO, FX1, FXIN, FH = FL_OFF, FL_OFF + 512, FL_OFF + 1024, FL_OFF + 1536

L_WQ = 0
L_Q = 57344
L_XB = 28672
L_EX = 86016
L_XS = 86016
L_WO = 114688
L_KVS = 143616
L_KVB = L_KVS + 16384
L_CS = L_KVB + 2048
L_B2 = L_CS + 768
LDS_BYTES = 163840
assert L_B2 + 512 <= LDS_BYTES

SRD_WQ, SRD_WO, SRD_W1, SRD_W2, SRD_X, SRD_OUT, SRD_B1, SRD_B2, SRD_CL, SRD_WS = range(4, 44, 4)
sC, sM, sW, sNonce, sSlow, sX, sSpin = 44, 45, 46, 47, 48, 49, 50
sT0, sT1, sT2, sT3, sT4, sT5 = 51, 52, 53, 54, 55, 56
sLn2, sXcc, sWi = 57, 58, 59
sN28, sHalf = 60, 62
sZm = 64
sXin, sD1 = 66, 67
sKA = 68
sEb, sLb, sC0, sC1, sHs, sFe = 68, 69, 70, 71, 72, 73
sBlk, sOst, sFo, sFoMy, sKv, sKvMy, sHE, sHL, sPE, sPL = 74, 75, 76, 77, 78, 79, 80, 81, 82, 83
sHst = 84
sRot = 85
sQ0, sQ1 = 86, 87
sFin, sRes = 28, 34
sTag = 22
sPm = 88
sStamp = 90
sPC = 92

vLane, vL16, vDummy, vTr, vNonce, vMean, vRl, vW1X, _w1x1, vPoll, vPA = range(0, 11)
vT = 11
vStamp = 15
vPoll2, vPoll3 = 15, 5
W2A = 0
W1A = 224
W1V = 176


def w1reg(k):
    return a(W1A + 4 * k, 4) if k < 8 else v(W1V + 4 * (k - 8), 4)


def w1half(k, hh):
    return a(W1A + 4 * k + 2 * hh, 2) if k < 8 else v(W1V + 4 * (k - 8) + 2 * hh, 2)


def flat(LL):
    return [x for L in LL for x in L]


def mfma(D, A, B, first=False):
    return mk('%s %s, %s, %s, %s' % (MF, v(D, 16), A, B, '0' if first else v(D, 16)))


DOC = """
;   cluster c = 16 workgroups that share 128 tokens (ids with equal id%8, i.e. normally one die); member m = head m.
;   and nothing is reused, so the result does not depend on the placement.  Readers always bypass L1 (sc1).
"""


class Gen:
    def __init__(self, stop=None, stamps=False, **opt):
        self.P = Prog()
        self.ool = []
        self.stop = stop
        self.stamps = stamps
        self.nstamp = 0
        self.stamp_names = []
        self.probe = opt.pop('probe', None)
        self.light = opt.pop('light', None)
        self.fine = bool(self.light or self.probe)
        if self.light is not None:
            self.light = self.light.split('+')
            assert len(self.light) <= 4
        self.seen = {}
        self.o = dict(kvdelay=8, swat=20, resl=4, cpf2=3, swlate=0, xmask=1, stf=7, poll2=0, psl=0, pdo=5, pdo0=0, pdx=2, p1=1, pdi=0, s1pair=1, sta=13, stb=33, stc=48, isl=8, isl2=8, pollE=16, n3=4, st0=10, st1=23, stpos=1, x0=6, xstep=8, xlag=12, flagpos=8, gend=26, pollL=20, lateL=32, flag3=12, xbar=13, ntail=8, lead=16, look=6, pref=0, touch=1, codepf=1, rot=1, stnt=0, idlewq=0, reuse=1, npre=14, wqlate=84, pf0=1, w1q=4, w1pre=4, w1o=14, w1s=28, s2x=0, nxb1=12, pfslot=50, w2fill=4, w2u1=22, w2sp=6, npre0=9, flag30=4, nsh=17, sh0=48, shgap=6, f3u=23, peu=22, alias=1, flat=24, pf2=98, htk=0, wb=0, wbblk=3, wbsl=100, wbs2=0, wbslot=36, outf=0, outt=0, idlew2=13, w2x=3, w1x=1, woslot=41, tslot=46, latespan=14, strot=1, w1b2=70, look2=10, l1touch=0, xsc1=1, storder=0)
        self.o.update(opt)

    def srd(self, r):
        return s(r, 4)

    def stamp(self, name):
        if self.probe is not None:
            self.seen[name] = self.seen.get(name, 0) + 1
            if self.probe == '%s#%d' % (name, self.seen[name]):
                return [I('s_memrealtime s[94:95]', kind='block', states=1)]
            return []
        if not self.stamps:
            return []
        if self.light is not None:
            self.seen[name] = self.seen.get(name, 0) + 1
            key = '%s#%d' % (name, self.seen[name])
            if name == 'end':
                self.stamp_names.append('end')
                t = ['s_memtime s[88:89]', 's_waitcnt lgkmcnt(0) vmcnt(0)', 'v_writelane_b32 v%d, s98, 62' % vStamp]
                for i, r in enumerate([100] + [90 + 2 * j for j in range(len(self.stamp_names) - 2)] + [88]):
                    t.append('v_writelane_b32 v%d, s%d, %d' % (vStamp, r, i))
                return [I('\n'.join(t), kind='block', drain_lgkm=True)]
            if name != 'start' and key not in self.light:
                return []
            r = 100 if name == 'start' else 90 + 2 * (len(self.stamp_names) - 1)
            self.stamp_names.append(key if name != 'start' else name)
            return [I('s_memtime s[%d:%d]' % (r, r + 1), kind='block')]
        i = self.nstamp
        self.nstamp += 1
        self.stamp_names.append(name)
        t = 's_memtime s[%d:%d]\ns_waitcnt lgkmcnt(0)\nv_writelane_b32 v%d, s%d, %d' % (sStamp, sStamp + 1, vStamp, sStamp, i)
        return [I(t, kind='block', dst=[], src=[], drain_lgkm=True, states=3)]

    def stores(self, lines, last=0):
        insts = mk('\n'.join(lines))
        src = [r for x in insts for r in x.src]
        wide = [r for x in insts for r in x.wide]
        ls, lb = self.P.newlabel('Lslow'), self.P.newlabel('Lback')
        fl = ' nt' if self.layer == 1 and self.o['stf'] & last else ''
        txt = 's_cmp_lg_u32 s%d, 0\ns_cbranch_scc1 %s\n%s\n%s:' % (sSlow, ls, '\n'.join(l + fl for l in lines), lb)
        self.ool.append('%s:\n%s\ns_branch %s' % (ls, '\n'.join(l + ' sc1' for l in lines), lb))
        return [I(txt, kind='block', src=src, nvm=len(lines), wide=wide, states=1, cost=8 + 4 * len(lines))]

    def flag(self, toks, soff, off=0):
        st = self.stores(['buffer_store_dword v%d, off, %s, s%d offset:%d' % (vNonce, self.srd(SRD_CL), soff, off)])[0]
        st.text = 's_mov_b64 exec, 1\n' + st.text + '\ns_mov_b64 exec, -1'
        st.cost += 8
        return [wait_tok(*toks), st]

    def poll_issue(self, soff, delay=0):
        return (mk('s_sleep %d' % delay) if delay else []) + mk('buffer_load_dword v%d, v%d, %s, s%d offen sc1' % (vPoll, vPA, self.srd(SRD_CL), soff))

    def poll_check(self, soff, tag=False):
        ls, lb = self.P.newlabel('Lspin'), self.P.newlabel('Lgot')

        def cmp(r):
            if tag:
                return 'v_lshrrev_b32 v%d, 16, v%d\nv_cmp_ne_u32 vcc, s%d, v%d' % (r, r, sTag, r)
            return 'v_cmp_ne_u32 vcc, s%d, v%d' % (sNonce, r)
        ld = lambda r: 'buffer_load_dword v%d, v%d, %s, s%d offen sc1' % (r, vPA, self.srd(SRD_CL), soff)
        if self.o['poll2']:
            l1 = self.P.newlabel('Lsp')
            t = [ls + ':', ld(vPoll2), 's_sleep 2', l1 + ':', ld(vPoll3), 's_waitcnt vmcnt(1)', cmp(vPoll2), 's_cbranch_vccz %s' % lb,
                 ld(vPoll2), 's_add_u32 s%d, s%d, 1' % (sSpin, sSpin), 's_cmp_gt_u32 s%d, 0x40000' % sSpin, 's_cbranch_scc1 L_end',
                 's_waitcnt vmcnt(1)', cmp(vPoll3), 's_cbranch_vccnz %s' % l1, 's_branch %s' % lb]
        else:
            t = [ls + ':'] + (['s_sleep %d' % self.o['psl']] if self.o['psl'] else []) + [ld(vPoll), 's_add_u32 s%d, s%d, 1' % (sSpin, sSpin), 's_cmp_gt_u32 s%d, 0x40000' % sSpin, 's_cbranch_scc1 L_end',
                 's_waitcnt vmcnt(0)', cmp(vPoll), 's_cbranch_vccnz %s' % ls, 's_branch %s' % lb]
        self.ool.append('\n'.join(t))
        return [I(cmp(vPoll) + '\ns_cbranch_vccnz %s\n%s:' % (ls, lb), kind='block', src=[('v', vPoll)], dst=[('x', 'vcc'), ('v', vPoll)], states=2, cost=8)]

    def pa(self, n, blocks=False, reg=vPA):
        L = 'v_and_b32 v%d, %d, v0\n' % (reg, 15 if n <= 16 else 31)
        if n not in (16, 32):
            L += 'v_min_u32 v%d, %d, v%d\n' % (reg, n - 1, reg)
        L += 'v_lshlrev_b32 v%d, 2, v%d\n' % (reg, reg)
        if blocks:
            L += 'v_lshrrev_b32 v%d, 4, v0\nv_lshl_add_u32 v%d, v%d, 7, v%d' % (vT + 3, reg, vT + 3, reg)
        return mk(L)

    def trbase(self, dst, RS, kh, add=0, xor16=None):
        t = vT
        L = ['v_lshrrev_b32 v%d, 5, v%d' % (dst, vLane),
             'v_mul_u32_u24 v%d, %d, v%d' % (dst, kh, dst),
             'v_bfe_u32 v%d, v%d, 2, 2' % (t, vLane),
             'v_add_u32 v%d, v%d, v%d' % (dst, dst, t),
             'v_mul_u32_u24 v%d, %d, v%d' % (dst, RS, dst),
             'v_bfe_u32 v%d, v%d, 4, 1' % (t, vLane)]
        if xor16 is not None:
            L.append('v_xor_b32 v%d, s%d, v%d' % (t, xor16, t))
        L += ['v_lshl_add_u32 v%d, v%d, 5, v%d' % (dst, t, dst),
              'v_and_b32 v%d, 3, v%d' % (t, vLane),
              'v_lshl_add_u32 v%d, v%d, 3, v%d' % (dst, t, dst)]
        if add:
            L.append('v_add_u32 v%d, %d, v%d' % (dst, add, dst))
        return mk('\n'.join(L))

    def tr_kv(self, kh):
        return self.trbase(vTr, 128, kh, add=L_WQ) + mk('v_bfe_u32 v%d, v0, 3, 1\nv_lshl_add_u32 v%d, v%d, 6, v%d\nv_xor_b32 v%d, 64, v%d' % (vT, vTr, vT, vTr, vT + 3, vTr))

    def frag_loads(self, dsts, srd, sbase, const0, stride=1024, flags='', st=sT0):
        out = []
        cur = None
        for i, d in enumerate(dsts):
            off = const0 + i * stride
            grp = []
            if cur is None or not (0 <= off - cur <= 4095):
                cur = off
                grp += mk('s_add_u32 s%d, s%d, %d' % (st, sbase, off))
            grp += mk('buffer_load_dwordx4 %s, v%d, %s, s%d offen offset:%d %s' % (d, vL16, self.srd(srd), st, off - cur, flags))
            out.append(grp)
        return out

    def stats_finish(self, acc, double_ln):
        t1, t2 = vT + 1, vT + 2
        L = ['v_mov_b32 v%d, v%d' % (t1, acc),
             'v_mov_b32 v%d, v%d' % (vMean, acc),
             'v_permlane32_swap_b32 v%d, v%d' % (vMean, t1),
             'v_mul_f32 v%d, %s, v%d' % (vMean, f32(1.0 / 448), vMean),
             'v_mul_f32 v%d, %s, v%d' % (t1, f32(1.0 / 448), t1),
             'v_fma_f32 v%d, -v%d, v%d, v%d' % (t1, vMean, vMean, t1),
             'v_max_f32 v%d, 0, v%d' % (t1, t1),
             'v_add_f32 v%d, %s, v%d' % (t2, f32(1e-5), t1),
             'v_rsq_f32 v%d, v%d' % (vRl, t2)]
        if double_ln:
            L += ['v_mul_f32 v%d, v%d, v%d' % (t2, vRl, vRl),
                  'v_fmaak_f32 v%d, v%d, v%d, %s' % (t1, t1, t2, f32(1e-5)),
                  'v_rsq_f32 v%d, v%d' % (t1, t1),
                  'v_mul_f32 v%d, v%d, v%d' % (vRl, vRl, t1)]
        else:
            L += ['v_mul_f32 v%d, %s, v%d' % (vRl, f32(LOG2E), vRl)]
        return mk('\n'.join(L))

    def split_act(self, d0, val, t):
        return mk('\n'.join([
            'v_cvt_pk_bf16_f32 v%d, v%d, v%d' % (d0 + 1, val, val),
            'v_and_b32 v%d, 0xffff0000, v%d' % (t, d0 + 1),
            'v_sub_f32 v%d, v%d, v%d' % (t, val, t),
            'v_cvt_pk_bf16_f32 v%d, v%d, v%d' % (d0, val, t),
            'v_and_b32 v%d, 0xffff, v%d' % (d0 + 1, d0 + 1),
            'v_cndmask_b32 v%d, v%d, 0, s[%d:%d]' % (d0 + 1, d0 + 1, sHalf, sHalf + 1)]))

    def split_w(self, d0, val, t):
        return mk('\n'.join([
            'v_cvt_pk_bf16_f32 v%d, v%d, v%d' % (d0, val, val),
            'v_and_b32 v%d, 0xffff0000, v%d' % (t, d0),
            'v_sub_f32 v%d, v%d, v%d' % (t, val, t),
            'v_cvt_pk_bf16_f32 v%d, v%d, 0' % (d0 + 1, t)]))

    def phi8(self, r0, R, T, eps):
        L = ['v_pk_mul_f32 %s, %s, %s' % (v(r0 + i, 2), v(r0 + i, 2), R(i)) for i in range(0, 8, 2)]
        for i in range(8):
            L += ['v_exp_f32 v%d, v%d clamp' % (T + i, r0 + i), 'v_max_f32 v%d, 0, v%d' % (r0 + i, r0 + i)]
        L += ['v_pk_fma_f32 %s, %s, s[%d:%d], %s op_sel:[0,1,0] op_sel_hi:[1,1,1]' % (v(r0 + i, 2), v(r0 + i, 2), sLn2 - 1, sLn2, v(T + i, 2)) for i in range(0, 8, 2)]
        L += ['v_pk_add_f32 %s, %s, %s op_sel_hi:[1,0]' % (v(r0 + i, 2), v(r0 + i, 2), v(eps, 2)) for i in range(0, 8, 2)]
        return mk('\n'.join(L))

    def pack(self, dst, src, n):
        return mk('\n'.join('v_cvt_pk_bf16_f32 v%d, v%d, v%d' % (dst + i, src + 2 * i, src + 2 * i + 1) for i in range(n)))

    def unpack(self, dst, src, n):
        L = []
        for i in reversed(range(n)):
            L.append('v_and_b32 v%d, 0xffff0000, v%d' % (dst + 2 * i + 1, src + i))
            L.append('v_lshlrev_b32 v%d, 16, v%d' % (dst + 2 * i, src + i))
        return mk('\n'.join(L))

    def dots(self, regs, acc, ones, first):
        L = []
        for i, r in enumerate(regs):
            z = first and i == 0
            L.append('v_dot2_f32_bf16 v%d, v%d, v%d, %s' % (acc, r, ones, '0' if z else 'v%d' % acc))
            L.append('v_dot2_f32_bf16 v%d, v%d, v%d, %s' % (acc + 1, r, r, '0' if z else 'v%d' % (acc + 1)))
        return mk('\n'.join(L))

    def dots_end(self, acc):
        return mk('v_permlane32_swap_b32 v%d, v%d\nv_add_f32 v%d, v%d, v%d' % (acc, acc + 1, acc, acc, acc + 1))

    def row_stats(self, src, n, acc, ones):
        return mk('v_mov_b32 v%d, 0x3f803f80' % ones) + self.dots(range(src, src + n), acc, ones, True) + self.dots_end(acc)

    def kv_lane_addr(self, d, t, u, gather):
        L = []
        if gather:
            L += ['v_and_b32 v%d, 31, v0' % t, 'v_lshrrev_b32 v%d, 5, v0' % d]
        else:
            L += ['v_lshrrev_b32 v%d, 5, v0' % t, 'v_and_b32 v%d, 15, v0' % u, 'v_lshl_add_u32 v%d, v%d, 1, v%d' % (t, u, t), 'v_bfe_u32 v%d, v0, 4, 1' % d]
        L += ['v_lshrrev_b32 v%d, 3, v%d' % (u, t), 'v_sub_u32 v%d, v%d, v%d' % (u, t, u)]
        if not gather:
            L += ['v_and_b32 v%d, 7, v%d' % (t, t), 'v_cmp_eq_u32 vcc, 7, v%d' % t, 'v_cndmask_b32 v%d, v%d, 31, vcc' % (u, u)]
        L += ['v_lshl_add_u32 v%d, v%d, 5, v%d' % (d, d, u)]
        sh, qs, base = (4, 10, L_KVS) if gather else (5, 3, L_KVB)
        L += ['s_lshl_b32 s%d, s%d, %d' % (sT2, sW, qs), 'v_lshlrev_b32 v%d, %d, v%d' % (d, sh, d), 'v_add_u32 v%d, s%d, v%d' % (d, sT2, d)]
        L += ['v_and_b32 v%d, 1, v%d' % (t, u), 'v_lshlrev_b32 v%d, %d, v%d' % (t, 5 + sh, t), 'v_lshrrev_b32 v%d, 1, v%d' % (u, u)]
        L += ['v_cmp_gt_u32 vcc, 4, v%d' % u]
        L += ['v_lshl_add_u32 v%d, v%d, %d, v%d' % (t, u, qs, t), 'v_add_u32 v%d, %d, v%d' % (t, 28 << sh, t)]
        L += ['s_and_b64 vcc, vcc, s[%d:%d]' % ((sZm, sZm + 1) if gather else (sPm, sPm + 1)), 'v_cndmask_b32 v%d, v%d, v%d, vcc' % (d, d, t),
              'v_add_u32 v%d, %d, v%d' % (d, base, d)]
        return mk('\n'.join(L))

    def wq_dma(self, va, q):
        if q:
            ad = 'v_lshrrev_b32 v%d, 2, v0\nv_mul_u32_u24 v%d, 2688, v%d\nv_and_b32 v%d, 3, v0\nv_lshl_add_u32 v%d, v%d, 4, v%d' % (va, va, va, vT, va, vT, va)
        else:
            ad = ('v_lshrrev_b32 v%d, 3, v0\nv_mul_u32_u24 v%d, 2688, v%d\nv_and_b32 v%d, 3, v0\nv_lshl_add_u32 v%d, v%d, 4, v%d\n'
                  'v_lshrrev_b32 v%d, 2, v0\nv_xor_b32 v%d, v%d, v0\nv_bfe_u32 v%d, v%d, 2, 1\nv_mul_u32_u24 v%d, 896, v%d\nv_add3_u32 v%d, v%d, v%d, s%d'
                  % (va, va, va, vT, va, vT, va, vT, vT, vT, vT, vT, vT, vT, va, va, vT, sQ0))
        rows = 16 if q else 8
        pre = mk('s_mul_i32 s%d, s%d, 56\ns_add_u32 s%d, s%d, 896' % (sQ1, sM, sQ0, sQ1)) + mk(ad)
        if q:
            pre += mk('v_add_u32 v%d, s%d, v%d' % (va, sQ1, va))
        pre += mk('s_mul_i32 s%d, s%d, %d\ns_lshl_b32 s%d, s%d, 10' % (sRot, sW, rows * 2688, sQ1, sW))
        out = []
        for t in range(7 if q else 14):
            out.append(mk('s_add_u32 m0, s%d, %d\ns_add_u32 s%d, s%d, %d\nbuffer_load_dwordx4 v%d, %s, s%d offen lds'
                          % (sQ1, (L_Q if q else L_WQ) + 4096 * t, sQ0, sRot, 4 * t * rows * 2688, va, self.srd(SRD_WQ), sQ0)))
        return pre, out

    def touch(self, items, va):
        if not self.o['touch']:
            return []
        txt = ['v_lshlrev_b32 v%d, 7, v0' % va]
        cur = None
        n = 0
        for nl, srd, sg, c in items:
            if nl != cur:
                txt.append('s_mov_b64 exec, 0x%x' % ((1 << nl) - 1))
                cur = nl
            txt.append('s_add_u32 s%d, s%d, %d' % (sT2, sg, c) if sg is not None else 's_mov_b32 s%d, %d' % (sT2, c))
            txt.append('buffer_load_dword v%d, v%d, %s, s%d offen sc1' % (vDummy, va, self.srd(srd), sT2))
            n += 1
        txt.append('s_mov_b64 exec, -1')
        return [I('\n'.join(txt), kind='block', nvm=n, dst=[('v', va)], src=[('v', 0)], states=1, cost=12 * n)]

    def touch_attn(self, lo, va):
        pre = mk('s_lshr_b32 s%d, s%d, 2\ns_lshl_b32 s%d, s%d, 10\ns_add_u32 s%d, s%d, s%d\ns_add_u32 s%d, s%d, %d\ns_add_u32 s%d, s%d, %d\ns_mul_i32 s%d, s%d, 896'
                 % (sT1, sM, sT1, sT1, sT1, sT1, sBlk, sT1, sT1, X1_OFF + 28672, sT3, sOst, X1_OFF, sT0, sW))
        pre = [I('\n'.join(x.text for x in pre) + '\ns_cmp_lt_u32 s%d, 14\ns_cselect_b32 s%d, s%d, s%d\ns_cselect_b32 s%d, s%d, s%d'
                 % (sM, sT1, sT1, sOst, sT3, sT3, sOst), kind='block', cost=36)]
        return pre + self.touch([(16, SRD_CL, sOst, lo), (16, SRD_CL, sT3, lo), (8, SRD_CL, sT1, lo), (7, SRD_CL, sT0, lo + FL_OFF)], va)

    def prefetch(self, va, items):
        txt, n = ['v_lshlrev_b32 v%d, 7, v0' % va], 0
        for srd, per in items:
            for j in range(0, per, 64):
                nl = min(64, per - j)
                txt += ['s_mul_i32 s%d, s%d, %d' % (sT2, sWi, per * 128), 's_add_u32 s%d, s%d, %d' % (sT2, sT2, j * 128),
                        's_mov_b32 exec_lo, 0x%x' % (((1 << nl) - 1) & 0xffffffff), 's_mov_b32 exec_hi, 0x%x' % (((1 << nl) - 1) >> 32),
                        'buffer_load_dword v%d, v%d, %s, s%d offen' % (vDummy, va, self.srd(srd), sT2)]
                n += 1
        return [I('\n'.join(txt + ['s_mov_b64 exec, -1']), kind='block', nvm=n, src=[('v', 0)], dst=[('v', va)], cost=20 * n)]

    def idle_work(self):
        va = vT
        l = self.P.newlabel('Lnowarm')
        T = ['s_cmp_lg_u32 s%d, 0' % sSlow, 's_cbranch_scc1 %s' % l,
             'v_lshlrev_b32 v%d, 7, v0' % va,
             's_and_b32 s%d, s%d, 1' % (sT0, sM), 's_lshl_b32 s%d, s%d, 2' % (sT0, sT0), 's_add_u32 s%d, s%d, s%d' % (sT0, sT0, sW)]
        ld = lambda srd, fl: 'buffer_load_dword v%d, v%d, %s, s%d offen %s' % (vDummy, va, self.srd(srd), sT2, fl)
        nw2 = self.o['idlew2']
        if nw2:
            T += ['s_lshr_b32 s%d, s%d, 3' % (sT1, sC), 's_lshl_b32 s%d, s%d, 3' % (sT1, sT1), 's_add_u32 s%d, s%d, s%d' % (sT1, sT1, sT0),
                  's_lshl_b32 s%d, s%d, 13' % (sT2, sT1)]
            xm = self.o['w2x']
            if xm:
                T += ['s_mov_b32 s%d, s%d' % (sT1, sT2), 's_and_b32 s%d, s%d, %d' % (sT3, sC, xm)]
                for i in range(-(-nw2 // (xm + 1)) * (xm + 1)):
                    T += ['s_xor_b32 s%d, s%d, %d' % (sT2, sT3, i), 's_lshl_b32 s%d, s%d, 17' % (sT2, sT2), 's_add_u32 s%d, s%d, s%d' % (sT2, sT2, sT1), ld(SRD_W2, '')]
            else:
                for i in range(nw2):
                    T += [ld(SRD_W2, ''), 's_add_u32 s%d, s%d, 131072' % (sT2, sT2)]
        for i in range(2 * self.o['htk'] - (self.o['htk'] > 1), 7):
            T += ['s_lshl_b32 s%d, s%d, 13' % (sT2, sT0), 's_add_u32 s%d, s%d, %d' % (sT2, sT2, H_OFF + i * 65536), ld(SRD_CL, 'sc1')]
        if not self.o['alias']:
            for i in range(2):
                T += ['s_lshl_b32 s%d, s%d, 13' % (sT2, sT0), 's_add_u32 s%d, s%d, %d' % (sT2, sT2, XIN_OFF + i * 65536), ld(SRD_CL, 'sc1')]
        T += ['s_lshl_b32 s%d, s%d, 12' % (sT2, sT0), 's_add_u32 s%d, s%d, %d' % (sT2, sT2, XST_OFF), 's_mov_b32 exec_hi, 0', ld(SRD_CL, 'sc1'), 's_mov_b64 exec, -1']
        T += [l + ':']
        return '\n'.join(T)

    def prologue(self):
        P = self.P
        o = self.o
        P('s_cmp_ge_u32 s2, 256\ns_cbranch_scc1 L_end')
        if self.probe is not None:
            P.add([I('s_memrealtime s[96:97]\ns_memrealtime s[94:95]', kind='block', states=1)])
        P('s_load_dwordx16 s[%d:%d], s[0:1], 0' % (sKA, sKA + 15))
        P('s_load_dwordx4 s[%d:%d], s[0:1], 64' % (sKA + 16, sKA + 19))
        P('s_load_dwordx2 s[%d:%d], s[0:1], 80' % (sKA + 20, sKA + 21))
        P('v_lshrrev_b32 v%d, 6, v0\nv_and_b32 v0, 63, v0\nv_readfirstlane_b32 s%d, v%d' % (vT, sW, vT))
        P('s_lshr_b32 s%d, s2, 3\ns_lshl_b32 s%d, s%d, 2\ns_add_u32 s%d, s%d, s%d' % (sM, sWi, sM, sWi, sWi, sW))
        if o['codepf']:
            P.add([I('s_getpc_b64 s[%d:%d]\nL_pc:' % (sPC, sPC + 1), kind='block', dst=[], states=1)])
            P('s_lshl_b32 s%d, s%d, 9\nv_lshlrev_b32 v%d, 7, v0\nv_add_u32 v%d, s%d, v%d' % (sT0, sWi, vT, vT, sT0, vT))
            P.add([I('v_min_u32 v%d, L_code_end-L_pc-4, v%d\ns_mov_b64 exec, 15\nglobal_load_dword v%d, v%d, s[%d:%d]\ns_mov_b64 exec, -1'
                     % (vT, vT, vDummy, vT, sPC, sPC + 1), kind='block', dst=[('v', vT)], src=[('v', vT)], nvm=1)])
        P('s_and_b32 s%d, s2, 7\ns_lshr_b32 s%d, s%d, 4\ns_lshl_b32 s%d, s%d, 3\ns_add_u32 s%d, s%d, s%d\ns_and_b32 s%d, s%d, 15'
          % (sC, sT0, sM, sT0, sT0, sC, sC, sT0, sM, sM))
        P('v_lshlrev_b32 v%d, 4, v0' % vL16)
        if self.stamps:
            P('v_mov_b32 v%d, 0' % vStamp)
            P.add(self.stamp('start'))
            if self.light is not None:
                P('s_memrealtime s[98:99]\ns_waitcnt lgkmcnt(0)')
            else:
                assert not o['poll2']
                P('s_memrealtime s[%d:%d]\ns_waitcnt lgkmcnt(0)\nv_writelane_b32 v%d, s%d, 62' % (sStamp, sStamp + 1, vStamp, sStamp))
        P('s_lshl_b32 s%d, s%d, 2\ns_add_u32 s%d, s%d, s%d\ns_mul_i32 s%d, s%d, %d' % (sX, sC, sX, sX, sW, sX, sX, 32 * 896))
        vq, vxb, vxh, vxa, vrd = 160, 163, 164, 165, 167
        P('v_lshrrev_b32 v%d, 5, v0\nv_and_b32 v%d, 31, v0\nv_xor_b32 v%d, v%d, v%d\nv_lshlrev_b32 v%d, 4, v%d\nv_mul_u32_u24 v%d, 896, v%d'
          % (vxh, vT, vxb, vT, vxh, vxb, vxb, vxh, vxh))
        ka = sKA

        def mksrd(r, p, size):
            P('s_mov_b32 s%d, s%d\ns_mov_b32 s%d, s%d\ns_mov_b32 s%d, %d\ns_mov_b32 s%d, 0x20000' % (r, p, r + 1, p + 1, r + 2, size, r + 3))
        P('s_lshl_b32 s%d, s%d, 14\ns_add_u32 s%d, s%d, %d' % (sT5, sW, sT5, sT5, L_XS))
        mksrd(SRD_X, ka + 0, 2048 * 896)
        if self.probe:
            P.add(self.stamp('karg'))

        def xdma(half):
            out = []
            for i in range(16):
                if half:
                    g = mk('s_mov_b32 s%d, %d\nv_xad_u32 v%d, v%d, s%d, v%d' % (sT0, ((2 * i) & 15) << 4, vxa + (i & 1), vxb, sT0, vxh))
                    g += mk('s_add_u32 s%d, s%d, %d\ns_add_u32 m0, s%d, %d' % (sT1, sX, 2 * i * 896 + 512, sT5, 1024 * i))
                    ld = 'buffer_load_dwordx4 v%d, %s, s%d offen lds' % (vxa + (i & 1), self.srd(SRD_X), sT1)
                    if o['xmask']:
                        m = 0xff00ffff if i & 4 else 0x00ffffff
                        out.append(g + [I('s_mov_b32 exec_lo, 0x%x\ns_mov_b32 exec_hi, 0x%x\n%s\ns_mov_b64 exec, -1' % (m, m, ld), kind='block', nvm=1,
                                          src=[('v', vxa + (i & 1))], cost=20)])
                    else:
                        out.append(g + mk(ld))
                    continue
                g = mk('s_add_u32 s%d, s%d, %d\ns_and_b32 s%d, s%d, 15' % (sT4, sM, i, sT4, sT4) if o['rot'] else 's_mov_b32 s%d, %d' % (sT4, i))
                g += mk('s_lshl_b32 s%d, s%d, 5\ns_and_b32 s%d, s%d, 0xf0\nv_xad_u32 v%d, v%d, s%d, v%d' % (sT0, sT4, sT0, sT0, vxa + (i & 1), vxb, sT0, vxh))
                g += mk('s_mul_i32 s%d, s%d, 1792\ns_add_u32 s%d, s%d, s%d\ns_lshl_b32 s%d, s%d, 10\ns_add_u32 m0, s%d, s%d' % (sT1, sT4, sT1, sT1, sX, sT4, sT4, sT4, sT5))
                g += mk('buffer_load_dwordx4 v%d, %s, s%d offen lds' % (vxa + (i & 1), self.srd(SRD_X), sT1))
                out.append(g)
            return out
        mksrd(SRD_WQ, ka + 2, 448 * 2688)
        if o['pf0']:
            P('v_lshlrev_b32 v%d, 7, v0\ns_lshl_b32 s%d, s%d, 2\ns_add_u32 s%d, s%d, s%d\ns_mul_i32 s%d, s%d, %d\ns_mul_i32 s%d, s%d, %d\ns_add_u32 s%d, s%d, s%d\ns_mul_i32 s%d, s%d, 49'
              % (vxa, sT0, sM, sT0, sT0, sW, sT0, sT0, 14 * 128, sT1, sC, 128 * 896, sT0, sT0, sT1, sT1, sWi))
            if o['pf0'] == 1:
                P('v_add_u32 v%d, s%d, v0\nv_mul_u32_u24 v%d, 37450, v%d\nv_lshrrev_b32 v%d, 19, v%d\nv_mul_u32_u24 v%d, 896, v%d\nv_lshl_add_u32 v%d, v%d, 7, v%d'
                  % (vT, sT1, vxa + 1, vT, vxa + 1, vxa + 1, vxa + 1, vxa + 1, vxa + 1, vT, vxa + 1))
                P.add([I('s_mov_b64 exec, 0x3fff\nbuffer_load_dword v%d, v%d, %s, s%d offen\ns_mov_b32 exec_lo, -1\ns_mov_b32 exec_hi, 0x1ffff\n'
                         'buffer_load_dword v%d, v%d, %s, 0 offen offset:896\ns_mov_b64 exec, -1'
                         % (vDummy, vxa, self.srd(SRD_X), sT0, vDummy, vxa + 1, self.srd(SRD_WQ)), kind='block', nvm=2, src=[('v', vxa), ('v', vxa + 1)])])
            else:
                P.add([I('s_mov_b64 exec, 0x3fff\nbuffer_load_dword v%d, v%d, %s, s%d offen\ns_mov_b64 exec, -1' % (vDummy, vxa, self.srd(SRD_X), sT0),
                         kind='block', nvm=1, src=[('v', vxa)])])
                P.add(self.prefetch(vxa, [(SRD_WQ, 74)]))
        body = [x.text for x in xdma(0)[0]]
        body[0] = 's_add_u32 s%d, s%d, s%d' % (sT4, sM, sT2) if o['rot'] else 's_mov_b32 s%d, s%d' % (sT4, sT2)
        loop = I('\n'.join(['s_mov_b32 s%d, 0' % sT2, 'L_xa:'] + body[:-1] + ['s_add_u32 s%d, s%d, 1' % (sT2, sT2), 's_cmp_lt_u32 s%d, 16' % sT2, body[-1],
                                                                            's_cbranch_scc1 L_xa']), kind='block', nvm=16, src=[('v', vxb), ('v', vxh)] + regs_of(s(SRD_X, 4)), dst=[('v', vxa)])
        tA = tok(loop)
        P.add([loop])
        if self.probe:
            P.add(self.stamp('xiss'))
        P('s_load_dword s%d, s[%d:%d], 0' % (sNonce, ka + 20, ka + 21))
        mksrd(SRD_OUT, ka + 16, 2048 * 896)
        pre, wq = self.wq_dma(vq, False)
        self.tok_wq1, self.tok_wq = tok(wq[7][-1]), tok(wq[-1][-1])
        P.add(pre + flat(wq[:8]))
        mksrd(SRD_WO, ka + 4, 448 * 896)
        mksrd(SRD_W1, ka + 8, 448 * 3584)
        mksrd(SRD_B1, ka + 10, 3584)
        mksrd(SRD_W2, ka + 12, 1792 * 896)
        mksrd(SRD_B2, ka + 14, 896)
        mksrd(SRD_WS, ka + 20, WS_CL)
        P('s_lshl_b32 s%d, s%d, 21\ns_add_u32 s%d, s%d, %d' % (sT0, sC, sT0, sT0, WS_CL))
        P('s_add_u32 s%d, s%d, s%d\ns_addc_u32 s%d, s%d, 0\ns_mov_b32 s%d, 0x200000\ns_mov_b32 s%d, 0x20000'
          % (SRD_CL, ka + 20, sT0, SRD_CL + 1, ka + 21, SRD_CL + 2, SRD_CL + 3))
        P('s_mov_b32 s%d, %s\ns_mov_b32 s%d, 0\ns_mov_b32 s%d, -1' % (sLn2, f32(LN2), sHalf, sHalf + 1))
        P('s_mov_b32 s%d, 0x10000000\ns_mov_b32 s%d, 0x10000000\ns_mov_b32 s%d, 0' % (sN28, sN28 + 1, sSpin))
        P('s_getreg_b32 s%d, hwreg(HW_REG_XCC_ID, 0, 4)' % sXcc)
        P('s_and_b32 s%d, s%d, 1\ns_sub_u32 s%d, 3, s%d' % (sEb, sM, sLb, sEb))
        P('s_cmp_eq_u32 s%d, 3\ns_cselect_b32 s%d, -1, 0\ns_mov_b32 s%d, 0' % (sW, sZm + 1, sZm))
        P('s_lshr_b32 s%d, s%d, 3' % (sD1, sC) if o['strot'] else 's_mov_b32 s%d, 0' % sD1)
        c0 = -2.0 * 0.7978845608028654 * LOG2E
        P('s_mov_b32 s%d, %s\ns_mov_b32 s%d, %s' % (sC0, f32(c0), sC1, f32(c0 * 0.044715)))
        P('s_lshr_b32 s%d, s%d, 1\ns_lshl_b32 s%d, s%d, 2\ns_and_b32 s%d, s%d, 1\ns_lshl_b32 s%d, s%d, 1\ns_add_u32 s%d, s%d, s%d\ns_lshr_b32 s%d, s%d, 1\ns_add_u32 s%d, s%d, s%d'
          % (sFe, sM, sFe, sFe, sT0, sW, sT0, sT0, sFe, sFe, sT0, sT0, sW, sFe, sFe, sT0))
        P('s_lshl_b32 s%d, s%d, 15\ns_lshl_b32 s%d, s%d, 11\ns_add_u32 s%d, s%d, s%d' % (sBlk, sW, sOst, sM, sOst, sOst, sBlk))
        P('s_lshl_b32 s%d, s%d, 7\ns_add_u32 s%d, s%d, %d\ns_lshl_b32 s%d, s%d, 2\ns_add_u32 s%d, s%d, s%d' % (sFo, sW, sFo, sFo, FL_OFF, sT0, sM, sFoMy, sFo, sT0))
        P('s_lshl_b32 s%d, s%d, 2\ns_add_u32 s%d, s%d, s%d\ns_mul_i32 s%d, s%d, %d\ns_add_u32 s%d, s%d, %d' % (sT1, sM, sT1, sT1, sW, sKv, sT1, KVP_CH, sKv, sKv, WS_KVP))
        P('s_lshl_b32 s%d, s%d, 9\ns_add_u32 s%d, s%d, s%d' % (sKvMy, sC, sKvMy, sKvMy, sKv))
        P('s_lshl_b32 s%d, s%d, 11\ns_add_u32 s%d, s%d, %d' % (sHst, sT1, sHst, sHst, H_OFF))
        P('s_lshl_b32 s%d, s%d, 11\ns_add_u32 s%d, s%d, %d' % (sT1, sW, sT1, sT1, H_OFF))
        P('s_mul_i32 s%d, s%d, 114688\ns_add_u32 s%d, s%d, s%d\ns_mul_i32 s%d, s%d, 114688\ns_add_u32 s%d, s%d, s%d' % (sHE, sEb, sHE, sHE, sT1, sHL, sLb, sHL, sHL, sT1))
        P('s_lshl_b32 s%d, s%d, 9\ns_add_u32 s%d, s%d, s%d\ns_add_u32 s%d, s%d, %d' % (sPE, sEb, sPE, sPE, sFo, sPE, sPE, FH - FL_OFF))
        P('s_lshl_b32 s%d, s%d, 9\ns_add_u32 s%d, s%d, s%d\ns_add_u32 s%d, s%d, %d' % (sPL, sLb, sPL, sPL, sFo, sPL, sPL, FH - FL_OFF))
        self.xreg0 = xr = [16 + 4 * i if i < 20 else 176 + 4 * (i - 20) for i in range(28)]
        P('v_and_b32 v%d, 15, v0\nv_lshrrev_b32 v%d, 5, v0\nv_xor_b32 v%d, v%d, v%d\nv_lshlrev_b32 v%d, 4, v%d\nv_and_b32 v%d, 31, v0\nv_lshl_add_u32 v%d, v%d, 9, v%d\nv_add_u32 v%d, s%d, v%d'
          % (vT, vrd, vrd, vrd, vT, vrd, vrd, vT, vrd, vT, vrd, vrd, sT5, vrd))
        xrd = lambda k: mk('v_xor_b32 v%d, %d, v%d\nds_read_b128 %s, v%d' % (vrd + 1 + (k & 1), 32 * (k & 15), vrd, v(xr[k], 4), vrd + 1 + (k & 1)))
        vrs = vrd + 3
        P('v_and_b32 v%d, 15, v0\nv_lshlrev_b32 v%d, 4, v%d\nv_lshrrev_b32 v%d, 5, v0\nv_lshl_add_u32 v%d, v%d, 3, v%d\nv_and_b32 v%d, 31, v0\nv_lshl_add_u32 v%d, v%d, 9, v%d\nv_add_u32 v%d, s%d, v%d'
          % (vrs, vrs, vrs, vT, vrs, vT, vrs, vT, vrs, vT, vrs, vrs, sT5, vrs))
        P('s_and_b32 s%d, s%d, 7\ns_lshl_b32 s%d, s%d, 6\nv_xor_b32 v%d, s%d, v%d' % (sT0, sM, sT0, sT0, vrs, sT0, vrs))

        def resrd(half):
            l = P.newlabel('Lres')
            t = ['s_cmp_%s_u32 s%d, 8' % ('lt' if half else 'ge', sM), 's_cbranch_scc1 %s' % l]
            for g in range(4):
                t += ['v_xor_b32 v%d, %d, v%d' % (vrs + 1, 16 * g, vrs), 'ds_read_b64 %s, v%d' % (a(216 + 2 * g, 2), vrs + 1)]
            return [I('\n'.join(t + [l + ':']), kind='block', src=[('v', vrs)], dst=[('v', vrs + 1)])]
        P('s_add_u32 s%d, s%d, 0x01010101' % (sNonce, sNonce))
        P('v_mov_b32 v%d, s%d' % (vNonce, sNonce))
        P('s_lshl_b32 s%d, s%d, 4\ns_add_u32 s%d, s%d, s%d\ns_lshl_b32 s%d, s%d, 7\ns_add_u32 s%d, s%d, %d'
          % (sT2, sC, sT2, sT2, sM, sT2, sT2, sT2, sT2, WS_XCC))
        P('s_add_u32 s%d, s%d, s%d\nv_mov_b32 v%d, s%d\ns_mov_b64 exec, 1' % (sT3, sNonce, sXcc, vT, sT3))
        P('buffer_store_dword v%d, off, %s, s%d sc1' % (vT, self.srd(SRD_WS), sT2))
        P('s_mov_b64 exec, -1')
        P.add(self.tr_kv(8))
        P.add(self.stamp('issued'))
        P.add([wait_tok(tA)])
        P.add(self.stamp('xA'))
        for k in range(16):
            P.add(xrd(k))
        P.add(resrd(0))
        vS, vOne = 172, 174
        P('v_mov_b32 v%d, 0x3f803f80\ns_waitcnt lgkmcnt(0)' % vOne)
        xb = xdma(1)
        self.tok_xb = tok(xb[-1][-1])
        d = self.dots([xr[k] + i for k in range(16) for i in range(4)], vS, vOne, True)
        P.add(spread(xb[:o['nxb1']], d))
        self.late_dma = xb[o['nxb1']:] + wq[8:]
        self.late_rd = [xrd(k) for k in range(16, 28)] + [resrd(1)]
        self.late_dots = self.dots([xr[k] + i for k in range(16, 28) for i in range(4)], vS, vOne, False) + self.dots_end(vS)

    def s1(self, l):
        P = self.P
        o = self.o
        AK, AV, AQ, WB, SB = 96, 112, 128, 144, 160
        RLB, XE = SB, SB + 8
        NB = 4
        vS = 172 if l == 0 else vT + 2
        P.comment('==== layer %d : S1' % l)
        kh = 8 if l == 0 else 4
        vTrV, vTrQ, vCs = vT + 3, (vT + 2 if l == 0 else vDummy), vPA
        trq = self.trbase(vTrQ, 64, kh, add=L_Q)
        fin = self.stats_finish(vS, False)
        fin += mk('s_lshl_b32 s%d, s%d, 12\ns_add_u32 s%d, s%d, %d' % (sT4, sW, sT4, sT4, L_KVS))
        bounce = mk('v_and_b32 v%d, 31, v0\nv_lshl_add_u32 v%d, v%d, 2, s%d\nds_write_b32 v%d, v%d' % (vT + 1, vT + 1, vT + 1, sT4, vT + 1, vRl))
        fin += bounce
        fin += mk('v_sub_f32 v%d, 0, v%d' % (vMean, vMean)) + self.split_act(XE, vMean, vT)
        fin += mk('v_cndmask_b32 v%d, v%d, 0, s[%d:%d]\nv_mov_b32 v%d, 0\nv_mov_b32 v%d, 0' % (XE, XE, sHalf, sHalf + 1, XE + 2, XE + 3))
        if l == 0:
            xreg = self.xreg0
            P.add([wait_tok(self.tok_wq1)])
            P('s_barrier')
            P.add(self.stamp('wq_ready'))
            lds = []
        else:
            xreg = [16 + 4 * (i % 20) for i in range(28)]
            P.add(self.pa(28))
            P('s_add_u32 s%d, s%d, %d' % (sT4, sFo, FXIN - FL_OFF))
            P.add(self.poll_issue(sT4, o['pdi']))
            P('s_add_u32 s%d, s%d, s%d\ns_lshl_b32 s%d, s%d, 13' % (sT5, sBlk, sXin, sT3, sW))
            P.add(self.tr_kv(kh) + trq)
            lds = self.frag_loads([v(r, 4) for r in xreg], SRD_CL, sT5, 0, flags='sc1')
        nq = 0 if l == 0 else 8
        jobs = []
        for k in range(28):
            if l == 0 and k == 16:
                jobs += [(t, kk) for kk in range(7) for t in 'KV']
            jobs += [('k', k), ('v', k)] + ([('q', k)] if k < nq else [])
        jobs += [('k', 'e'), ('v', 'e')]
        nmain = len(jobs)
        jobs += [('q', k) for k in range(nq, 28)] + ([('q', 'e')] if l else [('Q', kk) for kk in range(7)])
        vo, vb, CSA = RLB, RLB + 4, 208

        def rd(j):
            t, k = jobs[j]
            b = WB + 4 * (j % NB)
            if k == 'e':
                return mk('ds_read_b64 %s, v%d offset:%d\nv_mov_b32 v%d, 0\nv_mov_b32 v%d, 0' % (v(b, 2), vCs, 256 * 'qkv'.index(t), b + 2, b + 3))
            base = {'q': vTrQ, 'k': vTr, 'v': vTrV, 'K': vb, 'V': vb + 1, 'Q': vTr}[t]
            rs = 64 if t in 'qQ' else 128
            return mk('ds_read_b64_tr_b16 %s, v%d offset:%d\nds_read_b64_tr_b16 %s, v%d offset:%d' % (v(b, 2), base, 16 * rs * k, v(b + 2, 2), base, 16 * rs * k + (32 // kh) * rs))
        for j in range(NB):
            P.add(rd(j))
        if l == 1:
            P.add(self.poll_check(sT4))
            P.add(self.stamp('x2_seen'))
            P.add(flat(lds[:o['look']]))
            P('s_add_u32 s%d, s%d, 1\nv_mov_b32 v%d, s%d' % (sNonce, sNonce, vNonce, sNonce))
        P('v_and_b32 v%d, 31, v0\nv_lshlrev_b32 v%d, 3, v%d\nv_add_u32 v%d, %d, v%d' % (vCs, vCs, vCs, vCs, L_CS, vCs))
        slots = []
        for j, (t, k) in enumerate(jobs):
            w = v(WB + 4 * (j % NB), 4)
            if t.isupper():
                sl = mfma(CSA + 16 * (t == 'V'), v(CSA + 16 if t == 'Q' else vo, 4), w, k == 0)
            else:
                x = v(XE if k == 'e' else xreg[k], 4)
                A, B = (w, x) if t == 'q' else (x, w)
                sl = mfma({'q': AQ, 'k': AK, 'v': AV}[t], A, B, k == 0)
            if l == 0 and j == 32 - NB:
                sl += self.late_dots + [wait_tok(self.tok_wq)] + mk('s_waitcnt lgkmcnt(0)\ns_barrier') + (self.stamp('bar2') if self.fine else [])
                sl += mk('s_mul_i32 s%d, s%d, %d\nv_add_u32 v%d, s%d, v%d\nv_add_u32 v%d, s%d, v%d' % (sT0, sW, 7 * 2048, vb, sT0, vTr, vb + 1, sT0, vTrV))
            if j % 2 == 0 and j + 1 < len(jobs) and j + 1 != nmain and o['s1pair']:
                also_waits_for(sl[0], v(WB + 4 * ((j + 1) % NB), 4))
            if j + NB < len(jobs) and not (j < nmain <= j + NB):
                sl += rd(j + NB)
            slots.append(sl)
        if l == 0:
            n = len(self.late_dma)
            for i, g in enumerate(self.late_dma):
                slots[(i * o['latespan']) // n] += g
            r0 = 32 - NB - 7
            slots[r0] += [wait_tok(self.tok_xb)]
            for i, g in enumerate(self.late_rd):
                slots[r0 + i // 2] += g
            slots[29] += mk('\n'.join('v_mov_b32 v%d, 0x3f803f80' % (vo + i) for i in range(4)))
            for i in range(0, len(fin), 4):
                slots[30 + i // 4] += fin[i:i + 4]
            pre, qd = self.wq_dma(175, True)
            self.tok_q = tok(qd[-1][-1])
            for i, g in enumerate([pre] + qd):
                slots[37 + i] += g
            slots[o['tslot']] += self.prefetch(vT, [(SRD_WO, 25)]) + self.touch_attn(0, vT)
            slots[47] += mk('v_and_b32 v%d, 31, v0\nv_lshlrev_b32 v%d, 2, v%d\ns_lshl_b32 s%d, s%d, 8\nv_add_u32 v%d, %d, v%d\nv_add_u32 v%d, s%d, v%d'
                            % (vb, vb, vb, sT0, sW, vb, L_KVB, vb, vb + 1, sT0, vb))
            slots[48] += mk('\n'.join('ds_write_b32 v%d, v%d offset:%d' % (vb + 1, CSA + 16 * t, 128 * t) for t in range(2)))
            slots[50] += mk('s_waitcnt lgkmcnt(0)\ns_barrier')
            for t in range(2):
                r = RLB
                slots[50 + 5 * t] += mk('\n'.join('ds_read_b32 v%d, v%d offset:%d' % (r + ww, vb, 256 * ww + 128 * t) for ww in range(4)))
                slots[53 + 5 * t] += mk('v_add_f32 v%d, v%d, v%d\nv_add_f32 v%d, v%d, v%d\nv_add_f32 v%d, v%d, v%d' % (r, r, r + 1, r + 2, r + 2, r + 3, r, r, r + 2))
                slots[54 + 5 * t] += self.split_w(r + 2, r, r + 1) + mk('ds_write_b64 v%d, %s offset:%d' % (vCs, v(r + 2, 2), 256 * (t + 1)))
        else:
            n = o['look']
            for j in range(0, nmain, 2):
                if n < 28:
                    k_free = n - 20
                    assert k_free < 0 or j >= jobs.index(('q', k_free))
                    slots[j] += lds[n]
                    n += 1
            st = self.frag_loads([v(SB + 4 * (i % 4), 4) for i in range(7)], SRD_CL, sT3, XST_OFF, st=sT1, flags='sc1')
            a0, a1 = o['sta'], o['stb']
            for i in range(4):
                slots[a0 + 2 * i] += st[i]
            ex = []
            for i in range(1, 16):
                ex += mk('v_add_f32 v%d, v%d, v%d' % (vS, vS if i > 1 else SB, SB + i))
            for i in range(0, 15, 2):
                slots[a1 - 8 + i // 2] += ex[i:i + 2]
            for i in range(3):
                slots[a1 + 2 * i] += st[4 + i]
            ex = flat(mk('v_add_f32 v%d, v%d, v%d' % (vS, vS, SB + i)) for i in range(12)) + fin
            e0 = o['stc']
            per = -(-len(ex) // (61 - e0))
            for i in range(61 - e0):
                slots[e0 + i] += ex[i * per:(i + 1) * per]
        RB = [WB + 4 * ((nmain - 4 + g) % NB) for g in range(4)]
        vEps = vT + 1
        slots[nmain - 5] += mk('v_lshrrev_b32 v%d, 5, v0\nv_lshl_add_u32 v%d, v%d, 4, s%d' % (vT + 2, vT + 2, vT + 2, sT4))
        for g in range(4):
            slots[nmain - 4 + g] += mk('ds_read_b128 %s, v%d offset:%d' % (v(RB[g], 4), vT + 2, 32 * g))
        slots[nmain - 1] += mk('v_mov_b32 v%d, 0x3f803f80\nv_add_u32 v%d, s%d, v%d\nv_mov_b32 v%d, %s' % (vPoll, vT, sT4, vL16, vEps, f32(1e-6)))
        vG = SB + 12
        ga = self.kv_lane_addr(vG, vG + 1, vG + 2, gather=True)
        for i in range(0, len(ga), 3):
            slots[(o['stb'] + 1 if l else 60) + i // 3] += ga[i:i + 3]
        P.add(flat(slots[:nmain]))
        P.add(self.stamp('s1_kv_mfma'))
        DK = WB
        for hf in range(2):
            R = lambda i: v(RB[2 * hf + i // 4] + i % 4, 2)
            P.add(self.phi8(AK + 8 * hf, R, RLB, vEps) + self.pack(AK + 4 * hf, AK + 8 * hf, 4))
            P.add(flat(mk('v_pk_mul_f32 %s, %s, %s' % (v(AV + 8 * hf + i, 2), v(AV + 8 * hf + i, 2), R(i))) for i in range(0, 8, 2)))
            P.add(self.pack(AV + 4 * hf, AV + 8 * hf, 4))
            for i in range(4):
                P('v_cndmask_b32 v%d, v%d, v%d, s[%d:%d]' % (AV + 4 * hf + i, AV + 4 * hf + i, vPoll, sN28, sN28 + 1))
        P.add(mfma(DK, v(AK, 4), v(AV, 4), True) + mfma(DK, v(AK + 4, 4), v(AV + 4, 4)))
        P('s_mov_b32 s%d, 0x80808080\ns_mov_b32 s%d, 0x80808080' % (sT0 + 1, sT0 + 2))
        for q in range(4):
            P('ds_write_b128 v%d, %s offset:%d' % (vT, v(DK + 4 * q, 4), 1024 * q))
        P('v_lshlrev_b32 v%d, 3, v0\ns_waitcnt lgkmcnt(0)\ns_barrier' % vT)
        for ww in range(4):
            P('ds_read_b128 %s, v%d offset:%d' % (v(AK + 4 * ww, 4), vG, 4096 * ww))
        if l == 1:
            for j in range(nmain, nmain + NB):
                P.add(rd(j))
        for x, y in ((AK, AK + 4), (AK + 8, AK + 12), (AK, AK + 8)):
            for i in (0, 2):
                P('v_pk_add_f32 %s, %s, %s' % (v(x + i, 2), v(x + i, 2), v(y + i, 2)))
        P.add(self.pack(AK, AK, 2))
        for i in range(2):
            P('v_cndmask_b32 v%d, v%d, v%d, s[%d:%d]' % (AK + i, AK + i, vNonce, sT0 + 1, sT0 + 2))
        P('buffer_store_dwordx2 %s, v%d, %s, s%d offen sc1' % (v(AK, 2), vT, self.srd(SRD_WS), sKvMy))
        P.add(self.stamp('kv_pub'))
        PQ = self.PQ = 104

        def qepi():
            L = []
            for hf in range(2):
                L += self.phi8(AQ + 8 * hf, lambda i: v(vRl, 2) + ' op_sel_hi:[1,0]', 32, vEps) + self.pack(PQ + 4 * hf, AQ + 8 * hf, 4)
            for i in (6, 7):
                L += mk('v_cndmask_b32 v%d, v%d, 0, s[%d:%d]' % (PQ + i, PQ + i, sHalf, sHalf + 1))
            return L
        if l == 0:
            P.add(trq + mk('\n'.join('v_mov_b32 v%d, 0x3f803f80' % (CSA + 16 + i) for i in range(4))))
            P('s_mul_i32 s%d, s%d, %d\nv_add_u32 v%d, s%d, v%d' % (sT0, sW, 7 * 1024, vTr, sT0, vTrQ))
            pre = [wait_tok(self.tok_q)] + mk('s_barrier') + flat(rd(j) for j in range(nmain, nmain + NB))
            va = CSA + 20
            post = mk('v_and_b32 v%d, 31, v0\nv_lshlrev_b32 v%d, 2, v%d\nv_add_u32 v%d, %d, v%d\ns_lshl_b32 s%d, s%d, 7\nv_add_u32 v%d, s%d, v%d\nds_write_b32 v%d, v%d'
                      % (va, va, va, va, L_KVS, va, sT0, sW, va + 1, sT0, va, va + 1, CSA))

            def qfin():
                L = mk('\n'.join('ds_read_b32 v%d, v%d offset:%d' % (WB + 4 + ww, va, 128 * ww) for ww in range(4)))
                L += mk('v_add_f32 v%d, v%d, v%d\nv_add_f32 v%d, v%d, v%d\nv_add_f32 v%d, v%d, v%d' % (WB + 4, WB + 4, WB + 5, WB + 6, WB + 6, WB + 7, WB + 4, WB + 4, WB + 6))
                L += self.split_w(WB, WB + 4, WB + 5) + mk('v_mov_b32 v%d, 0\nv_mov_b32 v%d, 0\nds_write_b64 v%d, %s' % (WB + 2, WB + 3, va + 2, v(WB, 2)))
                return L + mfma(AQ, v(WB, 4), v(XE, 4)) + qepi()
            post += mk('v_mov_b32 v%d, v%d' % (va + 2, vCs))
            self.staging(pre, slots[nmain:], post, qfin)
        else:
            if o['swat']:
                slots[nmain + o['swat']] += self.stamp('sweep_start') + self.sweep_loads()
            P.add(spread(slots[nmain:], self.kvx_pre(1)))
            P.add(qepi())

    PARK = 140

    def wo_dma(self, vwo):
        wo = [mk('v_lshrrev_b32 v%d, 2, v0\nv_mul_u32_u24 v%d, 896, v%d\nv_and_b32 v%d, 3, v0\nv_lshl_add_u32 v%d, v%d, 4, v%d\ns_lshl_b32 s%d, s%d, 6\nv_add_u32 v%d, s%d, v%d'
                 % (vwo, vwo, vwo, vT, vwo, vT, vwo, sQ0, sM, vwo, sQ0, vwo))
              + mk('s_mul_i32 s%d, s%d, %d\ns_lshl_b32 s%d, s%d, 10\ns_add_u32 s%d, s%d, %d' % (sQ1, sW, 16 * 896, sT3, sW, sT3, sT3, L_WO))]
        for t in range(7):
            wo.append(mk('s_add_u32 m0, s%d, %d\ns_add_u32 s%d, s%d, %d\nbuffer_load_dwordx4 v%d, %s, s%d offen lds' % (sT3, 4096 * t, sQ0, sQ1, t * 64 * 896, vwo, self.srd(SRD_WO), sQ0)))
        last = I('s_mov_b32 s%d, %d\ns_mov_b32 m0, %d\ns_mov_b64 exec, 0xffff\nbuffer_load_dwordx4 v%d, %s, s%d offen lds\ns_mov_b64 exec, -1'
                 % (sQ0, 448 * 896, L_WO + 28672, vwo, self.srd(SRD_WO), sQ0), kind='block', nvm=1, src=[('v', vwo)])
        self.tok_wo = tok(last)
        return wo + [[last]]

    def staging(self, qpre, qslots, qpost, qepi):
        P = self.P
        lskip, ljoin = P.newlabel('Lnostage'), P.newlabel('Lstaged')
        v1a, t0, t1, vp, vb, vb2 = 112, 113, 114, 115, 116, 168
        P('s_cmp_lt_u32 s%d, 14\ns_cselect_b32 s%d, s%d, 0' % (sM, SRD_W1 + 2, SRD_W1 + 2))
        P('v_lshrrev_b32 v%d, 2, v0\nv_mul_u32_u24 v%d, 3584, v%d\nv_and_b32 v%d, 3, v0\nv_lshl_add_u32 v%d, v%d, 4, v%d'
          % (v1a, v1a, v1a, vT, v1a, vT, v1a))
        P('s_lshl_b32 s%d, s%d, 2\ns_add_u32 s%d, s%d, s%d\ns_lshl_b32 s%d, s%d, 6\nv_add_u32 v%d, s%d, v%d' % (sT5, sM, sT5, sT5, sW, sT5, sT5, v1a, sT5, v1a))
        P('s_mul_i32 s%d, s%d, 14336\ns_add_u32 s%d, s%d, %d\ns_mul_i32 s%d, s%d, 21504\ns_mul_i32 s%d, s%d, %d' % (sT3, sW, sT3, sT3, L_EX, sQ1, sW, sWi, sD1, 14 * 16 * 3584))
        if self.o['w1x']:
            P('s_and_b32 s%d, s%d, 1\ns_mul_i32 s4, s%d, 7168\ns_mul_i32 s5, s%d, %d\ns_sub_u32 s6, 7168, s4\ns_sub_u32 s7, %d, s5' % (sT0, sC, sT0, sT0, 7 * 16 * 3584, 7 * 16 * 3584))
            P('s_add_u32 s4, s4, s%d\ns_add_u32 s6, s6, s%d\ns_add_u32 s5, s5, s%d\ns_add_u32 s7, s7, s%d' % (sT3, sT3, sWi, sWi))

        def issue(k):
            if k < 14 and self.o['w1x']:
                g = mk('s_add_u32 m0, s%d, %d\ns_add_u32 s%d, s%d, %d' % (4 + 2 * (k // 7), 1024 * (k % 7), sQ0, 5 + 2 * (k // 7), (k % 7) * 16 * 3584))
            else:
                g = mk('s_add_u32 m0, s%d, %d' % ((sT3, 1024 * k) if k < 14 else (sQ1, 1024 * (k - 14))))
                g += mk('s_add_u32 s%d, s%d, %d' % (sQ0, sWi, k * 16 * 3584) if k < 14 else 's_sub_u32 s%d, %d, s%d' % (sQ0, k * 16 * 3584, sWi))
            g += mk('buffer_load_dwordx4 v%d, %s, s%d offen lds' % (v1a, self.srd(SRD_W1), sQ0))
            return g
        dm = [issue(k) for k in range(28)]
        tk = [tok(g[-1]) for g in dm]
        park = mk('\n'.join('v_accvgpr_read_b32 v%d, a%d' % (160 + i, 216 + i) for i in range(8)))
        park += mk('v_add_u32 v%d, s%d, v%d' % (vp, sQ1, vL16))
        park += flat(mk('ds_read_b128 %s, v%d offset:%d' % (a(self.PARK + 4 * i, 4), vp, 1024 * i)) for i in range(21))
        ht = self.touch([(16, SRD_CL, sHst, b * 114688) for b in range(self.o['htk'])], vT) if self.o['htk'] else []
        P.add(flat(dm[:7]) + qpre + ht + (self.stamp('q_go') if self.fine else []))
        for i, g in enumerate(dm[7:14]):
            qslots[self.o['w1q'] + 2 * i] += g
        P.add(spread(qslots, park + self.kvx_pre(0)) + qpost)
        P('s_lshl_b32 s%d, s%d, 11\ns_add_u32 s%d, s%d, %d' % (sT4, sC, sT4, sT4, WS_XCC))
        P('v_and_b32 v%d, 15, v0\nv_lshlrev_b32 v%d, 7, v%d' % (vPA, vPA, vPA))
        P('buffer_load_dword v%d, v%d, %s, s%d offen sc1' % (vPoll, vPA, self.srd(SRD_WS), sT4))
        P('s_waitcnt lgkmcnt(0)\ns_barrier')
        if self.fine:
            P.add(self.stamp('q_done'))
        vo, D = 124, 128
        ad = self.trbase(t1, 64, 4) + mk('v_add_u32 v%d, s%d, v%d\nv_add_u32 v%d, s%d, v%d' % (t0, sT3, t1, t1, sQ1, t1))
        ad += mk('\n'.join('v_mov_b32 v%d, 0x3f803f80' % (vo + i) for i in range(4)))
        n1 = self.o['w1pre']
        for k in range(14, 14 + n1):
            lb = P.newlabel('Lnw')
            blk = I('s_cmp_ge_u32 s%d, 14\ns_cbranch_scc1 %s\n%s\n%s:' % (sM, lb, '\n'.join(x.text for x in dm[k]), lb), kind='block', nvm=1, src=[('v', v1a)], cost=20)
            blk.tok = tk[k]
            dm[k] = [blk]
        P.add(spread(dm[14:14 + n1], qepi() + ad) if n1 else qepi() + ad)
        P.add(self.stamp('sweep_start') + self.sweep_loads())
        P.add([I('s_cmp_ge_u32 s%d, 14\ns_cbranch_scc1 %s' % (sM, lskip), kind='block')])
        self.ool.append('%s:\ns_waitcnt vmcnt(0)\ns_branch %s' % (lskip, ljoin))
        P('v_and_b32 v%d, 31, v0\nv_lshlrev_b32 v%d, 1, v%d\nbuffer_load_ushort v%d, v%d, %s, s%d offen' % (vT, vT, vT, vb, vT, self.srd(SRD_B1), sT5))
        P('v_lshrrev_b32 v%d, 5, v0\nv_lshlrev_b32 v%d, 3, v%d\ns_lshl_b32 s%d, s%d, 5' % (vT, vT, vT, sT2, sFe))
        P('buffer_load_dwordx2 %s, v%d, %s, s%d offen\nbuffer_load_dwordx2 %s, v%d, %s, s%d offen offset:16'
          % (v(vb2, 2), vT, self.srd(SRD_B2), sT2, v(vb2 + 2, 2), vT, self.srd(SRD_B2), sT2))

        def consume(k):
            va, o = (t0, 1024 * k) if k < 14 else (t1, 1024 * (k - 14))
            L = [wait_tok(tk[max(k, 13) if self.o['w1x'] else k])] + mk('ds_read_b64_tr_b16 %s, v%d offset:%d\nds_read_b64_tr_b16 %s, v%d offset:%d' % (w1half(k, 0), va, o, w1half(k, 1), va, o + 512))
            return L + (mfma(D, v(vo, 4), w1reg(k - 2), k == 2) if k >= 2 else [])
        for k in range(14):
            P.add((dm[14 + n1 + k] if 14 + n1 + k < 28 else []) + consume(k))
        P.add(mfma(D, v(vo, 4), w1reg(12)) + mfma(D, v(vo, 4), w1reg(13)))
        P.label(ljoin)
        P.add([I('s_nop 1', kind='block', states=2)])
        l2 = P.newlabel('Lnowo')
        wo = flat(self.wo_dma(117))
        txt, _ = finalize(wo)
        blk = I('s_cmp_ge_u32 s%d, 14\ns_cbranch_scc1 %s\n%s\n%s:' % (sM, l2, '\n'.join(t.strip() for t in txt.split('\n') if t.strip()), l2),
                kind='block', nvm=8, dst=[('v', 117), ('v', vT)], src=[('v', 0)])
        self.tok_wo = tok(blk)
        self.after_kvb = [blk]
        D2 = 88
        self.in_s2 = [[] for _ in range(32)]
        na, nb = self.o['w1o'], self.o['w1s']
        cons = lambda k: consume(k)[:3]
        cs2 = lambda k, first: mfma(D2 if na <= k < nb else D, v(vo, 4), w1reg(k), first)
        La = flat(cons(k) + (cs2(k - 1, False) if k > 14 else []) for k in range(14, na)) + (cs2(na - 1, False) if na > 14 else [])
        for n, k in enumerate(range(na, nb)):
            i = (n * 28) // (nb - na)
            self.in_s2[i] += cons(k)
            self.in_s2[i + 3] += cs2(k, k == na)
        xs = self.xsrc()
        if self.o['s2x']:
            for i, g in enumerate(xs):
                self.in_s2[2 * i + 1] += g
        else:
            La += flat(xs)
        L = flat(cons(k) + (cs2(k - 1, False) if k > nb else []) for k in range(nb, 28)) + (cs2(27, False) if nb < 28 else [])
        L += mk('v_add_f32 v%d, v%d, v%d' % (D, D, D2)) if nb > na else []
        L += self.unpack(144, vb2, 4) + mk('\n'.join('v_mov_b32 v%d, 0' % r for r in range(152, 156)))
        L += mk('s_lshl_b32 s%d, s%d, 7\ns_add_u32 s%d, s%d, %d\nv_lshrrev_b32 v%d, 5, v0\nv_lshl_add_u32 v%d, v%d, 6, s%d' % (sT0, sW, sT0, sT0, L_B2, vT, vT, vT, sT0))
        for q in range(4):
            L += mk('ds_write_b128 v%d, %s offset:%d' % (vT, v(144 + 4 * min(q, 2), 4), 16 * q))
        L += self.split_w(vW1X, D, vT + 1) + mk('v_lshl_or_b32 v%d, v%d, 16, v%d' % (vb, vb, vb))
        L += mk('v_cndmask_b32 v%d, v%d, v%d, s[%d:%d]\nv_cndmask_b32 v%d, v%d, 0, s[%d:%d]' % (vW1X, vW1X, vb, sHalf, sHalf + 1, vW1X + 1, vW1X + 1, sHalf, sHalf + 1))
        self.after_x1 = L + mk('s_waitcnt lgkmcnt(0)')
        self.after_o = La + [wait_tok(self.tok_wo)] + mk('s_waitcnt lgkmcnt(0)\ns_barrier') + flat(self.s2_rd(i) for i in range(4))

    def sweep_loads(self):
        return flat(self.frag_loads([v(48 + 4 * i, 4) for i in range(8)], SRD_WS, sKv, 0, flags='sc1', st=sQ0))

    def w2_prefetch(self, va, first, per):
        m = (1 << per) - 1
        txt = ['s_lshr_b32 s%d, s%d, 3' % (sQ0, sC), 's_mul_i32 s%d, s%d, 14' % (sQ0, sQ0), 's_add_u32 s%d, s%d, s%d' % (sQ0, sQ0, sM),
               's_lshl_b32 s%d, s%d, 2' % (sQ0, sQ0), 's_add_u32 s%d, s%d, s%d' % (sQ0, sQ0, sW), 's_mul_i32 s%d, s%d, %d' % (sQ0, sQ0, per * 128),
               's_add_u32 s%d, s%d, %d' % (sQ0, sQ0, first * 128), 'v_lshlrev_b32 v%d, 7, v0' % va,
               's_mov_b32 exec_lo, 0x%x' % (m & 0xffffffff), 's_mov_b32 exec_hi, 0x%x' % (m >> 32),
               'buffer_load_dword v%d, v%d, %s, s%d offen' % (vDummy, va, self.srd(SRD_W2), sQ0), 's_mov_b64 exec, -1']
        return [I('\n'.join(txt), kind='block', nvm=1, src=[('v', 0)], dst=[('v', va)], cost=52)]

    V2B = 12
    W2V = (15, 106, 5, 13, 140)

    def w2_addr(self):
        v2a, tA, tB, vp, tS = self.W2V
        L = mk('v_lshrrev_b32 v%d, 3, v0\nv_mul_u32_u24 v%d, 896, v%d\nv_lshrrev_b32 v%d, 2, v0\nv_and_b32 v%d, 4, v%d\nv_xor_b32 v%d, v%d, v0\nv_and_b32 v%d, 7, v%d\nv_lshl_add_u32 v%d, v%d, 4, v%d'
               % (v2a, v2a, v2a, vT, vT, vT, vT, vT, vT, vT, v2a, vT, v2a))
        L += mk('s_lshr_b32 s%d, s%d, 1\ns_lshl_b32 s%d, s%d, 7\ns_mul_i32 s%d, s%d, %d\ns_add_u32 s%d, s%d, s%d\nv_add_u32 v%d, s%d, v%d'
                % (sT0, sM, sT0, sT0, sT2, sW, 32 * 896, sT0, sT0, sT2, v2a, sT0, v2a))
        L += mk('s_mul_i32 s%d, s%d, 7168\ns_add_u32 s%d, s%d, %d\ns_lshl_b32 s%d, s%d, 12\ns_add_u32 s%d, s%d, %d'
                % (sRot, sW, sRot, sRot, L_EX, sQ1, sW, sQ1, sQ1, L_KVS))
        L += mk('s_lshr_b32 s%d, s%d, 1' % (sT0, sW)) + self.trbase(tA, 128, 4, xor16=sT0)
        L += mk('s_and_b32 s%d, s%d, 1\nv_bfe_u32 v%d, v0, 3, 1\nv_xor_b32 v%d, s%d, v%d\nv_lshl_add_u32 v%d, v%d, 6, v%d\nv_xor_b32 v%d, 64, v%d'
                % (sT0, sW, vT, vT, sT0, vT, tA, vT, tA, tA + 1, tA))
        L += mk('s_mul_i32 s%d, s%d, 10240\nv_add_u32 v%d, s%d, v%d\nv_add_u32 v%d, s%d, v%d' % (sWi, sW, tS, sWi, tA, tS + 1, sWi, tA + 1))
        L2 = mk('v_add_u32 v%d, s%d, v%d\nv_add_u32 v%d, s%d, v%d\nv_add_u32 v%d, s%d, v%d\nv_add_u32 v%d, s%d, v%d' % (tB, sQ1, tA, tB + 1, sQ1, tA + 1, tA, sRot, tA, tA + 1, sRot, tA + 1))
        L2 += mk('s_mul_i32 s%d, s%d, 21504\nv_add_u32 v%d, s%d, v%d\nv_add_u32 v%d, %d, v%d' % (sT0, sW, vp, sT0, vL16, self.V2B, 8 * 896 - 1024, v2a))
        return L, L2

    def w2_steps(self, u0, u1, shadow):
        v2a, tA, tB, vp, tS = self.W2V
        NS = 5

        def where(u):
            n = (u - u0) % NS
            if shadow:
                return sWi, tS, n * 2048
            return (sRot, tA, n * 2048) if n < 3 else (sQ1, tB, (n - 3) * 2048)

        def issue(u):
            out = []
            base, _, o = where(u)
            out += mk('s_add_u32 m0, s%d, %d\ns_mov_b32 s%d, %d' % (base, o, sQ0, (128 * (u // 2) + 16 * (u % 2)) * 896))
            out += mk('buffer_load_dwordx4 v%d, %s, s%d offen lds\nbuffer_load_dwordx4 v%d, %s, s%d offen offset:1024 lds'
                      % (v2a, self.srd(SRD_W2), sQ0, self.V2B, self.srd(SRD_W2), sQ0))
            return out, tok(out[-1])
        tk, first, steps, prev = {}, [], [], None
        for u in range(u0, min(u0 + NS - 1, u1)):
            g, tk[u] = issue(u)
            first.append(g)
        for u in range(u0, u1):
            _, ta, o = where(u)
            A = []
            if u + NS - 1 < u1:
                if prev:
                    A += [wait_tok(prev)]
                g, tk[u + NS - 1] = issue(u + NS - 1)
                A += g
            B = [wait_tok(tk[u])]
            for js in range(2):
                b = W2A + 8 * u + 4 * js
                B += mk('ds_read_b64_tr_b16 %s, v%d offset:%d\nds_read_b64_tr_b16 %s, v%d offset:%d' % (a(b, 2), ta + js, o, a(b + 2, 2), ta + js, o + 1024))
            prev = tok(B[-1])
            steps.append((A, B))
        return first, steps

    def w2_stage(self, fill, u0, u1, extra):
        P = self.P
        first, steps = self.w2_steps(u0, 28, False)
        P.add(flat(first))
        rest = [mk('ds_write_b128 v%d, %s offset:%d' % (self.W2V[3], a(self.PARK + 4 * i, 4), 1024 * i)) for i in range(21)]
        out, done = [], 0
        for n, (A, B) in enumerate(steps):
            u = u0 + n
            want = sum(1 for i in range(21) if 17 + (i + 1) // 2 <= u)
            out.append((A, rest[done:want], B + extra.get(u, []) + (self.stamp('w2_%d' % u) if self.fine else [])))
            done = want
        P.add(spread([A + flat(R) + B for A, R, B in out[:u1 - u0]], fill, start=0, end=self.o['w2fill']))
        return out[u1 - u0:]

    K10 = 98

    def kvx_pre(self, l):
        L = []
        RES = 160
        if l == 1:
            L += mk('s_add_u32 s%d, s%d, s%d' % (sT0, sOst, sXin))
            for j in range(2):
                L += mk('buffer_load_dwordx4 %s, v%d, %s, s%d offen offset:%d sc1' % (v(RES + 4 * j, 4), vL16, self.srd(SRD_CL), sT0, 1024 * j))
            L += [I('s_mul_i32 s%d, s%d, %d\ns_add_u32 s%d, s%d, s%d\ns_addc_u32 s%d, s%d, 0\ns_sub_u32 s%d, s%d, s%d'
                    % (sT0, sSlow, LOFF, SRD_CL, SRD_CL, sT0, SRD_CL + 1, SRD_CL + 1, SRD_CL + 2, SRD_CL + 2, sT0), kind='block', cost=16)]
        L += [I('s_cmp_eq_u32 s%d, 3\ns_cselect_b32 s%d, 0xffff0000, 0\ns_cselect_b32 s%d, 0xffff0000, 0' % (sW, sPm, sPm + 1), kind='block', cost=12)]
        L += self.kv_lane_addr(self.KA, self.KA + 1, self.KA + 2, gather=False)
        g, t = self.KA + 1, self.KA + 2
        L += mk('\n'.join(['v_bfe_u32 v%d, v0, 3, 1' % g, 'v_and_b32 v%d, 3, v0' % t, 'v_lshl_add_u32 v%d, v%d, 2, v%d' % (g, g, t),
                           'v_cmp_eq_u32 vcc, 7, v%d' % g, 'v_bfe_u32 v%d, v0, 4, 1' % t, 'v_mad_u32_u24 v%d, v%d, 14, v%d' % (g, t, g),
                           'v_bfe_u32 v%d, v0, 2, 1' % t, 'v_mad_u32_u24 v%d, v%d, 7, v%d' % (g, t, g), 'v_cndmask_b32 v%d, v%d, 28, vcc' % (g, g),
                           'v_and_b32 v%d, 32, v0' % t, 'v_add_u32 v%d, v%d, v%d' % (g, g, t), 'v_lshlrev_b32 v%d, 5, v%d' % (g, g), 'v_add_u32 v%d, %d, v%d' % (g, L_KVB, g)]))
        L += mk('s_and_b32 s%d, s%d, 0x1fff\ns_or_b32 s%d, s%d, 0x4000\ns_lshl_b32 s%d, s%d, 16' % (sTag, sNonce, sTag, sTag, sTag + 1, sTag))
        L += mk('v_mov_b32 v%d, 0x3f80\nv_mov_b32 v%d, 0x3f800000' % (self.K10, self.K10 + 1))
        return L

    KA = 100

    def kvx(self, l):
        P = self.P
        P.comment('==== layer %d : kv exchange' % l)
        if l == 0:
            lw, lb = P.newlabel('Lxcc'), P.newlabel('Lxok')
            P('v_subrev_u32 v%d, s%d, v%d\nv_cmp_lt_u32 vcc, 15, v%d' % (vPoll, sNonce, vPoll, vPoll))
            P.add([I('s_cbranch_vccnz %s\n%s:' % (lw, lb), kind='block')])
            self.ool.append('\n'.join([
                lw + ':',
                'buffer_load_dword v%d, v%d, %s, s%d offen sc1' % (vPoll, vPA, self.srd(SRD_WS), sT4),
                's_add_u32 s%d, s%d, 1' % (sSpin, sSpin),
                's_cmp_gt_u32 s%d, 0x40000' % sSpin,
                's_cbranch_scc1 L_end',
                's_waitcnt vmcnt(0)',
                'v_subrev_u32 v%d, s%d, v%d' % (vPoll, sNonce, vPoll),
                'v_cmp_lt_u32 vcc, 15, v%d' % vPoll,
                's_cbranch_vccnz %s' % lw,
                's_branch %s' % lb]))
            P('v_cmp_ne_u32 vcc, s%d, v%d\ns_cmp_lg_u64 vcc, 0\ns_cselect_b32 s%d, 1, 0\ns_mov_b32 s%d, %d\ns_cselect_b32 s%d, %d, s%d' % (sXcc, vPoll, sSlow, sXin, X1_OFF if self.o['alias'] else XIN_OFF, sXin, XIN_OFF, sXin))
        K10, K01 = self.K10, self.K10 + 1
        sw = []
        if l == 1 and not self.o['swat']:
            sw = (mk('s_sleep %d' % self.o['kvdelay']) if self.o['kvdelay'] else []) + self.stamp('sweep_start') + self.sweep_loads()
        if not self.o['swlate']:
            P.add(sw)
        P('v_and_b32 v%d, 15, v0\nv_lshlrev_b32 v%d, 11, v%d\nv_add_u32 v%d, 2044, v%d' % (vPA, vPA, vPA, vPA, vPA))
        P.add(self.trbase(vTr, 64, 7, add=L_WO))
        P.add(self.s2_pre(l))
        P('s_mov_b32 s%d, 0x88888888\ns_mov_b32 s%d, 0x88888888' % (sPm, sPm + 1))
        if self.o['swlate']:
            P.add(sw)
        lsw, lre = P.newlabel('Lsweep'), P.newlabel('Lresweep')
        P.label(lsw)
        B = 48
        bad, S = vT, 80
        P('v_mov_b32 v%d, 0' % bad)
        for i in range(8):
            for k in range(4):
                for hh, K in enumerate((K10, K01)):
                    P('v_dot2_f32_bf16 v%d, v%d, v%d, %s' % (S + 2 * k + hh, B + 4 * i + k, K, 'v%d' % (S + 2 * k + hh) if i else '0'))
            for k in (2, 3):
                P('v_bitop3_b32 v%d, v%d, s%d, v%d bitop3:0xbe' % (bad, B + 4 * i + k, sNonce, bad))
        P('v_cmp_ne_u32 vcc, 0, v%d\ns_and_b64 vcc, vcc, s[%d:%d]' % (bad, sPm, sPm + 1))
        P.add([I('s_cbranch_vccnz %s' % lre, kind='block', states=1)])
        self.ool.append('%s:\ns_sleep %d\ns_add_u32 s%d, s%d, 1\ns_cmp_gt_u32 s%d, 0x40000\ns_cbranch_scc1 L_end\n%s\ns_waitcnt vmcnt(0)\ns_branch %s'
                        % (lre, self.o['resl'], sSpin, sSpin, sSpin, '\n'.join(x.text for x in self.sweep_loads()), lsw))
        P.add(self.stamp('sweep_done'))
        for k in range(4):
            P('v_permlane32_swap_b32 v%d, v%d' % (S + k, S + 4 + k))
        for k in (0, 2):
            P('v_pk_add_f32 %s, %s, %s' % (v(S + k, 2), v(S + k, 2), v(S + 4 + k, 2)))
        P.add(self.pack(S, S, 2))
        P('ds_write_b64 v%d, %s' % (self.KA, v(S, 2)))
        P('s_waitcnt lgkmcnt(0)\ns_barrier')
        KF, D = 72, 80
        P('ds_read_b128 %s, v%d\nds_read_b128 %s, v%d offset:16' % (v(KF, 4), self.KA + 1, v(KF + 4, 4), self.KA + 1))
        P.add(flat(self.s2_rd(i) for i in range(4)) if l else self.after_kvb)
        P.add(mfma(D, v(KF, 4), v(self.PQ, 4), True))
        for i in (6, 7):
            P('v_cndmask_b32 v%d, v%d, 0, s[%d:%d]' % (KF + i, KF + i, sHalf, sHalf + 1))
        P.add(mfma(D, v(KF + 4, 4), v(self.PQ + 4, 4)))
        t1 = 120
        P('v_add_f32 v%d, %s, v%d\nv_rcp_f32 v%d, v%d\nv_mul_f32 v%d, s%d, v%d' % (t1, f32(1e-6), D + 7, t1, t1, t1, sLn2, t1))
        for r in range(0, 16, 2):
            P('v_pk_mul_f32 %s, %s, %s op_sel_hi:[1,0]' % (v(D + r, 2), v(D + r, 2), v(t1, 2)))
        P('v_mov_b32 v%d, s%d\nv_mov_b32 v%d, s%d' % (D + 7, sTag + 1, D + 15, sTag + 1))
        P.add(self.pack(D, D, 8))
        st = self.stores(['buffer_store_dwordx4 %s, v%d, %s, s%d offen offset:%d' % (v(D + 4 * j, 4), vL16, self.srd(SRD_CL), sOst, 1024 * j) for j in range(2)], last=1)
        P.add(st)
        P.add(self.stamp('o_pub'))

    def s2_rd(self, i):
        WB, o = 144 + 4 * (i % 4), 1792 * (i // 2) + 896 * (i % 2)
        return mk('ds_read_b64_tr_b16 %s, v%d offset:%d\nds_read_b64_tr_b16 %s, v%d offset:%d' % (v(WB, 2), vTr, o, v(WB + 2, 2), vTr, o + 256))

    def s2_pre(self, l):
        L = self.s4_consts(l)
        L += mk('s_add_u32 s%d, s%d, %d' % (sT4, sOst, X1_OFF))
        L += mk('s_lshr_b32 s%d, s%d, 2\ns_lshl_b32 s%d, s%d, 10\ns_and_b32 s%d, s%d, 3\ns_lshl_b32 s%d, s%d, 2\ns_add_u32 s%d, s%d, s%d\ns_add_u32 s%d, s%d, s%d\ns_add_u32 s%d, s%d, %d'
                % (sT5, sM, sT5, sT5, sT1, sM, sT1, sT1, sT5, sT5, sT1, sT5, sT5, sBlk, sT5, sT5, X1_OFF + 28672))
        return L + self.unpack(16, 160, 8)

    def s2(self, l):
        P = self.P
        o = self.o
        P.comment('==== layer %d : S2' % l)
        ACC, OF, WB, RES = 16, 32, 144, 160
        NB = 4
        lre, lfail = P.newlabel('Ls2'), P.newlabel('Ls2again')
        if l == 0:
            P.add(self.after_o)
        P.label(lre)
        P.add(self.poll_issue(sBlk, o['pdo'] if l else o['pdo0']))
        rd = self.s2_rd
        bad = vT
        P('v_mov_b32 v%d, 0' % bad)
        P.add(self.poll_check(sBlk, tag=True))
        P.add(self.stamp('o_seen'))
        oreg = [OF + 4 * (i % (28 if l else 14)) for i in range(32)]
        lds = self.frag_loads([v(r, 4) for r in oreg], SRD_CL, sBlk, O_OFF, flags='sc1')
        n = o['look2']
        P.add(flat(lds[:n]))
        chk = lambda i: mk('v_bitop3_b32 v%d, v%d, s%d, v%d bitop3:0xbe\nv_and_b32 v%d, 0xffff, v%d' % (bad, oreg[i] + 3, sTag + 1, bad, oreg[i] + 3, oreg[i] + 3))
        P.add(chk(0))
        for i in range(32):
            if i + n < 32:
                P.add(lds[i + n])
            P.add(mfma(ACC, v(WB + 4 * (i % NB), 4), v(oreg[i], 4)))
            if self.fine and i in (0, 8, 16, 31):
                P.add(self.stamp('s2_%d' % i))
            if i + NB < 32:
                P.add(rd(i + NB))
            if l == 0:
                P.add(self.in_s2[i])
            if i + 1 < 32:
                P.add(chk(i + 1))
            if i == 28:
                P.add(self.pa(14, blocks=True, reg=vT + 2))
        P('v_cmp_lt_u32 vcc, 0xffff, v%d' % bad)
        P.add([I('s_cbranch_vccnz %s' % lfail, kind='block', states=1)])
        again = '\n'.join(x.text for x in self.unpack(ACC, RES, 8) + flat(rd(i) for i in range(NB)))
        self.ool.append('%s:\ns_add_u32 s%d, s%d, 1\ns_cmp_gt_u32 s%d, 0x40000\ns_cbranch_scc1 L_end\ns_nop 15\n%s\ns_waitcnt lgkmcnt(0)\ns_branch %s'
                        % (lfail, sSpin, sSpin, sSpin, again, lre))
        P('v_mov_b32 v%d, v%d' % (vPA, vT + 2))
        P.add(self.pack(OF, ACC, 8))
        P.add(self.stores(['buffer_store_dwordx4 %s, v%d, %s, s%d offen offset:%d' % (v(OF + 4 * j, 4), vL16, self.srd(SRD_CL), sT4, 1024 * j) for j in range(2)], last=2))
        P.add(self.row_stats(OF, 8, vT, vT + 2))
        st = self.stores(['buffer_store_dword v%d, v%d, %s, s%d offen' % (vT, vL16, self.srd(SRD_CL), sT5)])
        tk = tok(st[-1])
        P.add(st)
        if self.fine:
            P.add(self.stamp('x1_st'))
        P.add(self.flag([tk], sFoMy, FX1 - FO))
        P.add(self.stamp('x1_pub'))

    def gelu(self, acc, KK, T):
        pr = range(0, 16, 2)
        A = flat(mk('v_pk_mul_f32 %s, %s, %s' % (v(T + i, 2), v(acc + i, 2), v(acc + i, 2))) for i in pr)
        A += flat(mk('v_pk_fma_f32 %s, %s, %s, %s op_sel:[0,1,0] op_sel_hi:[1,1,0]' % (v(T + i, 2), v(T + i, 2), v(KK, 2), v(KK, 2))) for i in pr)
        A += flat(mk('v_pk_mul_f32 %s, %s, %s' % (v(T + i, 2), v(T + i, 2), v(acc + i, 2))) for i in pr)
        E = flat(mk('v_exp_f32 v%d, v%d' % (T + i, T + i)) for i in range(16))
        B = flat(mk('v_pk_fma_f32 %s, %s, %s, %s op_sel_hi:[1,0,0]' % (v(T + i, 2), v(T + i, 2), v(KK + 2, 2), v(KK + 2, 2))) for i in pr)
        R = flat(mk('v_rcp_f32 v%d, v%d' % (T + i, T + i)) for i in range(16))
        C = flat(mk('v_pk_mul_f32 %s, %s, %s' % (v(acc + i, 2), v(acc + i, 2), v(T + i, 2))) for i in pr)
        pk = self.pack(acc, acc, 8)
        g4 = lambda f, g: flat(mk(f(4 * g + i)) for i in range(4))
        e = lambda g: E[4 * g:4 * g + 4]
        r = lambda g: R[4 * g:4 * g + 4]
        b = lambda g: g4(lambda i: 'v_fma_f32 v%d, v%d, v%d, v%d' % (T + i, T + i, KK + 2, KK + 2), g)
        c = lambda g: g4(lambda i: 'v_mul_f32 v%d, v%d, v%d' % (acc + i, acc + i, T + i), g) + pk[2 * g:2 * g + 2]
        tail = e(0) + e(1) + b(0) + r(0) + e(2) + b(1) + c(0) + r(1) + e(3) + b(2) + c(1) + r(2) + b(3) + c(2) + r(3) + c(3)
        return A, A + E + B + R + C + pk, tail

    XSRC = (4, 5, 6, 7, 8, 9, 10, 11, 12, 13, 14, 15, 20, 21)

    def xsrc(self):
        k, kk, bo, t = sQ0, sT1, sT2, sT3
        out = []
        for c, r in enumerate(self.XSRC):
            if c == 0:
                L = 's_lshl_b32 s%d, s%d, 1\ns_mul_i32 s%d, s%d, 14\ns_add_u32 s%d, s%d, s%d\ns_mov_b32 s%d, %d\n' % (k, sW, kk, sD1, kk, kk, k, bo, X1_OFF)
            else:
                L = ('s_add_u32 s%d, s%d, 8\ns_cmp_ge_u32 s%d, 28\ns_cselect_b32 s%d, 28, 0\ns_cselect_b32 s%d, 0x8000, 0\ns_sub_u32 s%d, s%d, s%d\ns_add_u32 s%d, s%d, s%d\n'
                     % (k, k, k, t, r, k, k, t, bo, bo, r))
                L += 's_add_u32 s%d, s%d, 8\ns_cmp_ge_u32 s%d, 28\ns_cselect_b32 s%d, 28, 0\ns_sub_u32 s%d, s%d, s%d\n' % (kk, kk, kk, t, kk, kk, t)
            out.append([I(L + 's_lshl_b32 s%d, s%d, 10\ns_add_u32 s%d, s%d, s%d' % (r, kk, r, r, bo), kind='block', cost=48)])
        return out

    SEL = 172

    def s4_consts(self, l):
        U, SEL = 120, self.SEL
        sel = mk('\n'.join(['v_lshrrev_b32 v%d, 5, v0' % SEL,
                             'v_lshlrev_b32 v%d, 2, v%d' % (SEL, SEL), 'v_and_b32 v%d, 31, v0' % (SEL + 1), 'v_sub_u32 v%d, v%d, v%d' % (U, SEL + 1, SEL),
                             'v_mov_b32 v%d, 0x3f80' % (U + 1), 'v_mov_b32 v%d, 0x3f800000' % (U + 2)]))
        for q, r0 in enumerate((0, 2, 8, 10)):
            sel += mk('v_cmp_eq_u32 vcc, %d, v%d\nv_cmp_eq_u32 s[%d:%d], %d, v%d\ns_nop 0\nv_cndmask_b32 v%d, 0, v%d, vcc\nv_cndmask_b32 v%d, v%d, v%d, s[%d:%d]'
                      % (r0, U, sPm, sPm + 1, r0 + 1, U, SEL + q, U + 1, SEL + q, SEL + q, U + 2, sPm, sPm + 1))
        for q, sB in enumerate((sEb, sLb)):
            sel += mk('s_lshl_b32 s%d, s%d, 15\ns_lshl_b32 s%d, s%d, 10\ns_add_u32 s%d, s%d, s%d\ns_add_u32 s%d, s%d, %d' % (sT0, sB, sT2, sFe, sT0, sT0, sT2, sRes + q, sT0, X1_OFF))
            if l == 0:
                sel += mk('s_add_u32 s%d, s%d, s%d\ns_lshl_b32 s%d, s%d, 13' % (sFin + q, sT0, sXin, sT0, sB))
                sel += mk('s_lshr_b32 s%d, s%d, 2\ns_lshl_b32 s%d, s%d, 10\ns_add_u32 s%d, s%d, s%d\ns_and_b32 s%d, s%d, 3\ns_lshl_b32 s%d, s%d, 2\ns_add_u32 s%d, s%d, s%d\ns_add_u32 s%d, s%d, %d'
                          % (sT2, sFe, sT2, sT2, sT0, sT0, sT2, sT2, sFe, sT2, sT2, sT0, sT0, sT2, sFin + 2 + q, sT0, XST_OFF))
                sel += mk('s_lshl_b32 s%d, s%d, 5\ns_add_u32 s%d, s%d, s%d\ns_lshl_b32 s%d, s%d, 2\ns_add_u32 s%d, s%d, %d' % (sT2, sB, sT2, sT2, sFe, sT2, sT2, sFin + 4 + q, sT2, FXIN))
            else:
                sel += mk('s_lshl_b32 s%d, s%d, 2\ns_add_u32 s%d, s%d, s%d\ns_mul_i32 s%d, s%d, %d\ns_lshl_b32 s%d, s%d, 5\ns_add_u32 s%d, s%d, s%d'
                          % (sT0, sC, sT0, sT0, sB, sT0, sT0, 32 * 896, sT2, sFe, sFin + q, sT0, sT2))

        return sel

    def mlp(self, l):
        P = self.P
        o = self.o
        P.comment('==== layer %d : MLP' % l)
        ACC = (16, 32)
        XB, EXB, WEX, T, RING = 48, 72, 76, 80, 108
        KK = (96, 100)
        SEL, vB2, vX2 = self.SEL, 104, 105
        NB = 6
        if l == 0:
            P.add(self.after_x1)
        P('s_mov_b32 s%d, %d' % (sT4, FX1))
        if not o['p1']:
            P.add(self.poll_issue(sT4, o['pdx']))
        P('s_lshl_b32 s%d, s%d, 11' % (sT5, sW))
        P('v_mov_b32 v%d, v%d\nv_mov_b32 v%d, v%d' % (WEX, vW1X, WEX + 1, vW1X + 1))
        P('\n'.join('v_mov_b32 v%d, 0' % r for r in (WEX + 2, WEX + 3, EXB + 2, EXB + 3)))
        vE8, vK16 = vTr, vT + 3
        P('v_lshlrev_b32 v%d, 3, v0\nv_add_u32 v%d, %d, v%d' % (vE8, vE8, L_KVS, vE8))
        P('v_and_b32 v%d, 31, v0\nv_lshlrev_b32 v%d, 4, v%d\nv_add_u32 v%d, %d, v%d' % (vK16, vK16, vK16, vK16, L_KVS + 512, vK16))
        P('v_add_u32 v%d, %d, v%d' % (vX2, 56 * 1024, vL16))
        P('s_lshl_b32 s%d, s%d, 7\ns_add_u32 s%d, s%d, %d\nv_lshrrev_b32 v%d, 5, v0\nv_lshl_add_u32 v%d, v%d, 6, s%d' % (sT3, sW, sT3, sT3, L_B2, vB2, vB2, vB2, sT3))
        P('s_add_u32 s%d, s%d, %d' % (sT1, sBlk, X1_OFF + 28672))
        if o['p1']:
            lq = P.newlabel('Lnp')
            c = self.poll_check(sT4)[0]
            P.add([I('s_cmp_lg_u32 s%d, 0\ns_cbranch_scc1 %s\n%s\ns_waitcnt vmcnt(0)\n%s\n%s:\ns_barrier'
                     % (sW, lq, '\n'.join(x.text for x in self.poll_issue(sT4, o['pdx'] if l else 0)), c.text, lq), kind='block', src=[('v', vPA)], dst=c.dst, states=2)])
        else:
            P.add(self.poll_check(sT4))
        P.add(self.stamp('x1_seen'))
        xd, tc = [], []
        for c, r in enumerate(self.XSRC):
            g = mk('s_add_u32 m0, s%d, %d' % (sT5, 8192 * c))
            g += mk('buffer_load_dwordx4 v%d, %s, s%d offen sc1 lds\nbuffer_load_dwordx4 v%d, %s, s%d offen offset:1024 sc1 lds' % (vL16, self.srd(SRD_CL), r, vL16, self.srd(SRD_CL), r))
            tc.append(tok(g[-1]))
            xd.append(g)
        stl = [mk('buffer_load_dwordx4 %s, v%d, %s, s%d offen offset:%d sc1' % (v(RING + 4 * i, 4), vL16, self.srd(SRD_CL), sT1, 1024 * i)) for i in range(4)]
        sp = o['stpos']
        P.add({0: flat(stl) + xd[0] + xd[1], 1: xd[0] + xd[1] + flat(stl), 2: xd[0] + xd[1], 3: xd[0] + flat(stl[:2]) + xd[1]}[sp])
        K0 = KK[1]
        st0 = []
        for x, y in ((0, 1), (2, 3), (4, 5), (6, 7), (8, 9), (10, 11), (12, 13), (0, 2), (4, 6), (8, 10), (0, 4), (8, 12)):
            st0 += mk('v_add_f32 v%d, v%d, v%d' % (RING + x, RING + x, RING + y))
        st0 += mk('v_add_f32 v%d, v%d, v%d' % (T, RING, RING + 8))
        st0 += self.stats_finish(T, True)
        st0 += mk('\n'.join(['v_rcp_f32 v%d, v%d' % (K0 + 2, vRl),
                             'v_mul_f32 v%d, s%d, v%d' % (K0, sC0, vRl),
                             'v_mul_f32 v%d, v%d, v%d' % (T, vRl, vRl),
                             'v_mul_f32 v%d, s%d, v%d' % (K0 + 1, sC1, vRl),
                             'v_mul_f32 v%d, v%d, v%d' % (K0 + 1, K0 + 1, T),
                             'v_sub_f32 v%d, 0, v%d' % (vMean, vMean),
                             'v_cndmask_b32 v%d, v%d, v%d, s[%d:%d]' % (vMean, vMean, K0 + 2, sHalf, sHalf + 1)]))
        st0 += self.split_act(T + 2, vMean, T)
        st0 += mk('s_lshl_b32 s%d, s%d, 10\nv_add_u32 v%d, s%d, v%d\nv_add_u32 v%d, s%d, v%d' % (sT4, sW, vT, sT4, vE8, vT + 1, sT4, vK16))
        st0 += mk('ds_write_b64 v%d, %s\nds_write_b128 v%d, %s' % (vT, v(T + 2, 2), vT + 1, v(K0, 4)))
        tst = tok(st0[-1])

        def hpub(b):
            pre = mk('s_add_u32 s%d, s%d, %d' % (sT4, sHst, b * 114688))
            st = self.stores(['buffer_store_dwordx4 %s, v%d, %s, s%d offen offset:%d' % (v(ACC[b & 1] + 4 * j, 4), vL16, self.srd(SRD_CL), sT4, 1024 * j) for j in range(2)], last=4)
            return pre + st, tok(st[-1])
        hflag = lambda b, tk: self.flag([tk], sFoMy, FH - FO + 512 * b)
        extrd = lambda b: mk('ds_read_b64 %s, v%d offset:%d\nds_read_b128 %s, v%d offset:%d' % (v(EXB, 2), vE8, 1024 * b, v(KK[b & 1], 4), vK16, 1024 * b))
        extmf = lambda b: mfma(ACC[b & 1], v(WEX, 4), v(EXB, 4))
        hreg = [RING + 4 * (i % 16) for i in range(56)]

        def hload(i):
            blk, kap = divmod(i, 28)
            g = mk('s_add_u32 s%d, s%d, %d' % (sHs, (sHE, sHL)[blk], 8192 * (kap // 2))) if kap % 2 == 0 else []
            return g + mk('buffer_load_dwordx4 %s, v%d, %s, s%d offen offset:%d sc1' % (v(hreg[i], 4), vL16, self.srd(SRD_CL), sHs, 1024 * (kap % 2)))
        P.add([wait_tok(tc[0])])
        P('s_barrier')
        P.add(self.stamp('s3_b0'))
        rdj = lambda j: mk('ds_read_b128 %s, v%d offset:%d' % (v(XB + 4 * (j % NB), 4), vL16 if j < 56 else vX2, 1024 * (j % 56)))
        for j in range(NB):
            P.add(rdj(j))
        isl = lambda c: 0 if c == 2 else o['x0'] + (o['xstep'] * (c - 3)) // 2
        bars, cov = {}, 0
        for c in range(1, 14):
            sj = 8 * c - 5
            if c > cov or sj in (27, 43):
                cov = max([c] + [d for d in range(3, 14) if isl(d) + o['xlag'] <= sj])
                bars[sj] = [tc[cov]] + ([tst] if sj == 27 else [])
        slots = []
        for j in range(112):
            b, k = divmod(j, 28)
            sl = mfma(ACC[b & 1], w1reg(k), v(XB + 4 * (j % NB), 4), k == 0)
            if k % 2 == 0:
                also_waits_for(sl[0], v(XB + 4 * ((j + 1) % NB), 4))
            if j in bars:
                sl += (self.stamp('pb%d' % j) if self.fine else []) + [wait_tok(*bars[j])] + mk('s_barrier') + (self.stamp('ab%d' % j) if self.fine else [])
            if k % 2 == 1:
                for jj in (j + NB - 1, j + NB):
                    if jj < 112:
                        sl += rdj(jj)
            if (k == 25 and b) or j == 27:
                sl += extrd(b)
            if (k == 27 and b) or j == 30:
                sl += extmf(b if k == 27 else 0)
            slots.append(sl)
        slots[0] += stl[0] + stl[1] if sp == 2 else []
        slots[1 if sp == 2 else 0] += xd[2]
        slots[3 if sp == 2 else 2] += stl[2] + stl[3] if sp >= 2 else []
        for c in range(3, 14):
            slots[isl(c)] += xd[c]
        pre0, pre1 = self.w2_addr() if l == 0 else ([], [])
        slots[26] += pre1
        nsh = o['nsh'] if l == 0 else 0
        if nsh:
            first, steps = self.w2_steps(0, nsh, True)
            p0 = o['sh0']
            for i, g in enumerate(first):
                slots[p0 + 2 * i] += g
            p1 = p0 + 2 * len(first) + o['shgap']
            for n, (A, B) in enumerate(steps):
                sj = p1 + (n * (110 - p1)) // nsh
                slots[sj] += A
                slots[sj + 1] += B
            if o['idlew2'] < 13:
                slots[o['pf2']] += self.w2_prefetch(vT, 1024 * o['idlew2'], -(-(12544 - 1024 * o['idlew2']) // 112))
        out = spread(slots[:o['st0']], pre0) + spread(slots[o['st0']:o['st1']], st0) + flat(slots[o['st1']:28])
        pend = None
        for b in range(1, 4):
            gA, _, tail = self.gelu(ACC[(b - 1) & 1], KK[(b - 1) & 1], T)
            s0 = 28 * b + (5 if b == 1 else 2)
            st, nxt = hpub(b - 1)
            if l == 0 and b < 3 and not nsh:
                st = st + self.w2_prefetch(vT, (b - 1) * 6272, 56)
            slots[s0] += gA
            if pend is not None and l == 1:
                slots[28 * b + o['flagpos']] += hflag(b - 2, pend)
            pend = nxt
            if b == 3 and l == 1:
                slots[84 + o['pollE']] += self.pa(14) + self.poll_issue(sPE)
                n3 = o['n3']
                slots[112 - n3] += (self.stamp('preE') if self.fine else []) + self.poll_check(sPE) + (self.stamp('gotE') if self.fine else [])
                for i in range(n3):
                    slots[112 - n3 + i] += hload(i)
            if b == 1 or self.fine:
                out += self.stamp('s3_b%d' % b)
            out += flat(slots[28 * b:s0 + 1]) + spread(slots[s0 + 1:28 * b + 28], tail + st, end=28 * b + o['gend'] - s0)
        P.add(out)
        P('s_waitcnt lgkmcnt(0)\ns_barrier')
        P.add(self.stamp('s3_end'))
        AE, AL, RX, RS = 48, 16, 80, 96
        vEW, vER = (vTr, vT, vT + 1), vT + 3
        resid = lambda q: mk('buffer_load_dwordx4 %s, v%d, %s, s%d offen sc1' % (v(RS, 4), vL16, self.srd(SRD_CL), sRes + q))
        cinit = lambda A: flat(mk('ds_read_b128 %s, v%d offset:%d' % (v(A + 4 * q, 4), vB2, 16 * q)) for q in range(4))
        ad = []
        for n, x in enumerate((2, 1, 3)):
            ad += mk('s_xor_b32 s%d, s%d, %d\ns_mul_i32 s%d, s%d, 6144\ns_add_u32 s%d, s%d, %d\nv_add_u32 v%d, s%d, v%d'
                     % (sT3, sW, x, sT3, sT3, sT3, sT3, L_EX + 2048 * (x - 1), vEW[n], sT3, vL16))
        ad += mk('s_mul_i32 s%d, s%d, 6144\ns_add_u32 s%d, s%d, %d\nv_add_u32 v%d, s%d, v%d' % (sT3, sW, sT3, sT3, L_EX, vER, sT3, vL16))
        gA, gall, _ = self.gelu(ACC[1], KK[1], T)
        st, p3 = hpub(3)
        npre = o['npre']
        if l == 0:
            npre, u1 = o['npre0'], o['w2u1']
            fl = hflag(0, pend) + hflag(1, pend) + hflag(2, pend)
            w2rest = self.w2_stage(gall[:o['flat']] + fl + gall[o['flat']:] + st, nsh, u1, {u1 - 2: self.pa(14) + self.poll_issue(sPE)})
            P.add(cinit(AE) + self.poll_check(sPE) + resid(0) + flat(hload(i) for i in range(npre)))
        else:
            P.add(spread([resid(0)] + [hload(i) for i in range(o['n3'], npre)], gall[:40] + hflag(2, pend) + cinit(AE) + gall[40:] + st))
        if self.fine:
            P.add(self.stamp('g3_end'))

        exch_write = lambda A: flat(mk('ds_write_b128 v%d, %s\nds_write_b128 v%d, %s offset:1024' % (vEW[n], v(r, 4), vEW[n], v(r + 4, 4)))
                                    for n, r in enumerate((A + 8, A + 16, A + 24)))
        exch_read = lambda: flat(mk('ds_read_b128 %s, v%d offset:%d' % (v(RX + 4 * q, 4), vER, 1024 * q)) for q in range(6))

        def addv(d, x, y, n, pk):
            if pk:
                return flat(mk('v_pk_add_f32 %s, %s, %s' % (v(d + i, 2), v(x + i, 2), v(y + i, 2))) for i in range(0, n, 2))
            return flat(mk('v_add_f32 v%d, v%d, v%d' % (d + i, x + i, y + i)) for i in range(n))

        def finish(A, q, pk):
            L = addv(A, A, RX, 8, pk) + addv(RX + 8, RX + 8, RX + 16, 8, pk) + addv(A, A, RX + 8, 8, pk) + self.pack(A, A, 4)
            if l == 0:
                L += self.stores(['buffer_store_dwordx4 %s, v%d, %s, s%d offen' % (v(A, 4), vL16, self.srd(SRD_CL), sFin + q)])
                rs = self.row_stats(A, 4, RX, RX + 2)
                blk = I('\n'.join(x.text for x in rs[:9]), kind='block', src=[r for x in rs[:9] for r in x.src], dst=[('v', RX), ('v', RX + 1), ('v', RX + 2)], states=1, cost=60)
                L += [blk] + mk('s_nop 2') + rs[9:]
                st = self.stores(['buffer_store_dword v%d, v%d, %s, s%d offen' % (RX, vL16, self.srd(SRD_CL), sFin + 2 + q)])
                tk = tok(st[-1])
                return L + st, self.flag([tk], sFin + 4 + q)
            L += mk('v_permlane32_swap_b32 v%d, v%d\nv_permlane32_swap_b32 v%d, v%d' % (A, A + 2, A + 1, A + 3))
            L += mk('buffer_store_dwordx4 %s, v%d, %s, s%d offen %s' % (v(A, 4), vPA, self.srd(SRD_OUT), sFin + q, ('', 'sc1', 'nt', 'sc0 sc1')[o['outf']]))
            return L, []

        slots = []
        nt = o['ntail']
        order = [(i, js) for i in range(56 - nt) for js in range(2)] + [(i, 1) for i in range(56 - nt, 56)] + [(i, 0) for i in range(56 - nt, 56)]
        for i, js in order:
            blk, kap = divmod(i, 28)
            A = (AE, AL)[blk]
            sl = mfma(A, v(SEL, 4), v(RS, 4)) if kap == 0 and js == 0 else []
            slots.append(sl + mfma(A + 16 * js, a(W2A + 8 * kap + 4 * js, 4), v(hreg[i], 4), kap == 0 and js == 1))
        sidx = 0
        for i in range(npre, 56):
            sidx = max(sidx, 2 * (i - 16) + 1 if i >= 16 else 0)
            if i == 28:
                sidx = max(sidx, o['lateL'])
                slots[sidx] += (self.stamp('preL') if self.fine else []) + self.poll_check(sPL) + (self.stamp('gotL') if self.fine else [])
            slots[sidx] += hload(i)
            assert sidx <= 2 * i - 6
            sidx += 1 if 2 * (i + 1) - sidx - 2 < o['lead'] else 2
        if l == 0:
            for n, (A, R, B) in enumerate(w2rest):
                sj = 1 + o['w2sp'] * n
                slots[sj] += A
                for i, g in enumerate(R):
                    slots[sj + i] += g
                slots[sj + len(R)] += B
                assert sj + len(R) <= 2 * (u1 + n) - 4
        if True:
            slots[o['flag3'] if l else o['flag30']] += (self.stamp('preF') if self.fine else []) + hflag(3, p3) + (self.stamp('gotF') if self.fine else [])
        slots[o['pollL']] += self.poll_issue(sPL)
        for i in range(0, len(ad), 4):
            slots[2 * (i // 4) + 30] += ad[i:i + 4]
        slots[40] += resid(1)
        if l == 0:
            slots[52] += mk('s_waitcnt lgkmcnt(0)\ns_barrier')
        slots[46] += cinit(AL)
        if l == 1:
            slots[44] += mk('v_and_b32 v%d, 31, v0\nv_mul_u32_u24 v%d, 896, v%d\nv_lshrrev_b32 v%d, 5, v0\nv_lshl_add_u32 v%d, v%d, 4, v%d'
                            % (vPA, vPA, vPA, vPoll, vPA, vPoll, vPA))
        P.add(flat(slots[:56]))
        P.add(self.stamp('s4_E'))
        late = slots[56:]
        fin, fl = finish(AE, 0, False)
        xb0 = o['xbar']
        P.add(spread(late[:xb0], exch_write(AE), start=2, end=9))
        late[xb0] += (self.stamp('preX') if self.fine else []) + mk('s_waitcnt lgkmcnt(0)\ns_barrier') + (self.stamp('gotX') if self.fine else []) + exch_read()
        late[34] += (self.stamp('preY') if self.fine else []) + mk('s_barrier') + (self.stamp('gotY') if self.fine else [])
        late[44] += fl
        wl = exch_write(AL)
        if l == 1 and o['wb'] == 3:
            lw = P.newlabel('Lnowb')
            late[o['wbslot']] += [I('s_or_b32 s%d, s%d, s%d\ns_cmp_lg_u32 s%d, 0\ns_cbranch_scc1 %s\nbuffer_wbl2 sc1\n%s:' % (sT0, sM, sW, sT0, lw, lw), kind='block', cost=12)]
        for i in range(4):
            late[56 - nt + 2 + i] += [wl[2 + i]]
        P.add(spread(late[xb0:], fin, start=4, end=33 - xb0))
        P.add(self.stamp('s4_L'))
        P.add(wl[:2] + mk('s_waitcnt lgkmcnt(0)\ns_barrier') + exch_read())
        fin, fl = finish(AL, 1, True)
        P.add(fin + fl)
        P.add(self.stamp('x2_pub'))

    def build(self):
        P = self.P
        self.prologue()
        for l in range(2):
            self.layer = l
            self.s1(l)
            if self.stop == 's1_%d' % l:
                break
            self.kvx(l)
            if self.stop == 'o_%d' % l:
                break
            lnext = 'L_layer%d' % (l + 1)
            if l == 0:
                lsk = P.newlabel('Lskipmlp')
                P.add([I('s_cmp_ge_u32 s%d, 14\ns_cbranch_scc1 %s' % (sM, lsk), kind='block')])
                lp = P.newlabel('Lidle')
                t = [x.text for x in self.pa(28)] + ['s_mov_b32 s%d, %d' % (sT4, FXIN), lp + ':', 's_sleep %d' % self.o['isl'],
                                                     'buffer_load_dword v%d, v%d, %s, s%d offen sc1' % (vPoll, vPA, self.srd(SRD_CL), sT4),
                                                     's_add_u32 s%d, s%d, 1' % (sSpin, sSpin), 's_cmp_gt_u32 s%d, 0x40000' % sSpin, 's_cbranch_scc1 L_end',
                                                     's_waitcnt vmcnt(0)', 'v_cmp_ne_u32 vcc, s%d, v%d' % (sNonce, vPoll), 's_cbranch_vccnz %s' % lp,
                                                     's_sleep %d' % self.o['isl2']]
                def code_pf(n, first, end):
                    return ['s_getpc_b64 s[%d:%d]' % (sPm, sPm + 1), 'L_pc%d:' % n, 's_sub_u32 s%d, s%d, L_pc%d-%s' % (sPm, sPm, n, first),
                            's_subb_u32 s%d, s%d, 0' % (sPm + 1, sPm + 1),
                            's_lshr_b32 s%d, s%d, 3' % (sT1, sC), 's_lshl_b32 s%d, s%d, 1' % (sT1, sT1), 's_and_b32 s%d, s%d, 1' % (sT0, sM),
                            's_add_u32 s%d, s%d, s%d' % (sT1, sT1, sT0), 's_lshl_b32 s%d, s%d, 2' % (sT1, sT1), 's_add_u32 s%d, s%d, s%d' % (sT1, sT1, sW),
                            's_lshl_b32 s%d, s%d, 11' % (sT1, sT1), 'v_lshlrev_b32 v%d, 7, v0' % vT, 'v_add_u32 v%d, s%d, v%d' % (vT, sT1, vT),
                            'v_min_u32 v%d, %s-%s-4, v%d' % (vT, end, first, vT), 's_mov_b64 exec, 0xffff',
                            'global_load_dword v%d, v%d, s[%d:%d]' % (vPoll, vT, sPm, sPm + 1), 's_mov_b64 exec, -1']
                if self.o['cpf2'] & 1:
                    t = t[:-1] + code_pf(2, lnext, 'L_code_end') + ['s_waitcnt vmcnt(0)']
                t0 = code_pf(3, 'L_mlp0', lnext) if self.o['cpf2'] & 2 else []
                P.label('L_mlp0')
                self.ool.append('%s:\n%s\ns_waitcnt vmcnt(0) lgkmcnt(0)\n%s\ns_branch %s' % (lsk, '\n'.join(t0 + [self.idle_work()]), '\n'.join(t), lnext))
            else:
                if self.o['wb'] in (1, 2):
                    lw, lp = P.newlabel('Lwb'), P.newlabel('Lwbp')
                    P.add([I('s_cmp_ge_u32 s%d, 14\ns_cbranch_scc1 %s' % (sM, lw), kind='block')])
                    t = [lw + ':']
                    if self.o['outt']:
                        lo = P.newlabel('Lot')
                        t += ['s_cmp_lg_u32 s%d, 15' % sM, 's_cbranch_scc1 %s' % lo, 'v_lshlrev_b32 v%d, 7, v0' % vT, 's_mov_b32 exec_hi, 0xffffff']
                        for i in range(4):
                            t += ['s_add_u32 s%d, s%d, %d' % (sT2, sX, i * 56 * 128), 'buffer_load_dword v%d, v%d, %s, s%d offen' % (vDummy, vT, self.srd(SRD_OUT), sT2)]
                        t += ['s_mov_b64 exec, -1', 's_waitcnt vmcnt(0)', lo + ':']
                    t += ['s_cmp_lg_u32 s%d, 14' % sM, 's_cbranch_scc1 L_fin', 's_cmp_lg_u32 s%d, 0' % sW, 's_cbranch_scc1 L_fin']
                    t += [x.text for x in self.pa(14, blocks=True)]
                    t += ['s_mov_b32 s%d, %d' % (sT4, FH + 512 * self.o['wbblk'] if self.o['wbblk'] >= 0 else FX1), 's_sleep %d' % self.o['wbsl']] + (['buffer_wbl2 sc1', 's_waitcnt vmcnt(0)'] if self.o['wb'] == 2 else []) + [lp + ':', 's_sleep 4',
                          'buffer_load_dword v%d, v%d, %s, s%d offen sc1' % (vPoll, vPA, self.srd(SRD_CL), sT4),
                          's_add_u32 s%d, s%d, 1' % (sSpin, sSpin), 's_cmp_gt_u32 s%d, 0x40000' % sSpin, 's_cbranch_scc1 L_end',
                          's_waitcnt vmcnt(0)', 'v_cmp_ne_u32 vcc, s%d, v%d' % (sNonce, vPoll), 's_cbranch_vccnz %s' % lp,
                          's_sleep %d' % self.o['wbs2'], 'buffer_wbl2 sc1', 's_waitcnt vmcnt(0)', 's_branch L_fin']
                    self.ool.append('\n'.join(t))
                else:
                    P.add([I('s_cmp_ge_u32 s%d, 14\ns_cbranch_scc1 L_fin' % sM, kind='block')])
            self.s2(l)
            if self.stop == 'x1_%d' % l:
                P.label(lnext)
                break
            self.mlp(l)
            P.label(lnext)
            if l == 0:
                P('s_add_u32 s%d, s%d, %d\ns_add_u32 s%d, s%d, %d' % (sKv, sKv, KVP_L, sKvMy, sKvMy, KVP_L))
            if self.stop == 'x2_%d' % l:
                break
        P.add([I('s_cmp_lg_u32 s2, 0\ns_cbranch_scc1 L_fin\ns_cmp_lg_u32 s%d, 0\ns_cbranch_scc1 L_fin' % sW, kind='block')])
        P('s_mov_b64 exec, 1\nbuffer_store_dword v%d, off, %s, 0 sc1\ns_mov_b64 exec, -1' % (vNonce, self.srd(SRD_WS)))
        if self.probe is not None:
            P.add(self.stamp('end'))
            P.add([I('s_waitcnt lgkmcnt(0)\ns_sub_u32 s94, s94, s96\ns_lshl_b32 s94, s94, 2\ns_add_u32 s94, s94, 10000\nL_pr:\ns_memrealtime s[98:99]\ns_waitcnt lgkmcnt(0)\n'
                     's_sub_u32 s98, s98, s96\ns_cmp_lt_u32 s98, s94\ns_cbranch_scc1 L_pr', kind='block')])
        P.label('L_fin')
        if self.stamps:
            P('s_lshl_b32 s%d, s2, 2\ns_add_u32 s%d, s%d, s%d\ns_lshl_b32 s%d, s%d, 8\ns_add_u32 s%d, s%d, %d' % (sT0, sT0, sT0, sW, sT0, sT0, sT0, sT0, WS_STAMP))
            P.add(self.stamp('end'))
            P('s_memrealtime s[%d:%d]\ns_waitcnt lgkmcnt(0)\nv_writelane_b32 v%d, s%d, 63' % (sStamp, sStamp + 1, vStamp, sStamp))
            P('v_writelane_b32 v%d, s%d, 61' % (vStamp, sSpin))
            P('v_lshlrev_b32 v%d, 2, v0\nbuffer_store_dword v%d, v%d, %s, s%d offen' % (vT, vStamp, vT, self.srd(SRD_WS), sT0))
        P.label('L_end')
        P('s_endpgm')
        body, L = finalize(P.L)
        self.final = L
        ool = '\n'.join('\n'.join(('    ' + t if not t.endswith(':') else t) for t in b.split('\n') if t.strip()) for b in self.ool)
        head = open('cdna_kernels/%s.s.ref' % KNAME[:-7]).read().split('\n')
        hdr = [h for h in head if h.startswith(';') and '@launch' not in h]
        txt = '\n'.join(hdr) + '\n; @launch grid=(256,1,1) block=(256,1,1) lds=%d\n' % LDS_BYTES + DOC.lstrip('\n')
        txt += '.amdgcn_target "amdgcn-amd-amdhsa--gfx950"\n.text\n.globl %s\n.p2align 8\n.type %s,@function\n%s:\n' % (KNAME, KNAME, KNAME)
        txt += body + ool + '\nL_code_end:\n'
        txt += '''.section .rodata,"a"
.p2align 6
.amdhsa_kernel %s
  .amdhsa_next_free_vgpr 512
  .amdhsa_next_free_sgpr 102
  .amdhsa_accum_offset 256
  .amdhsa_group_segment_fixed_size 0
  .amdhsa_kernarg_size 88
  .amdhsa_user_sgpr_count 2
  .amdhsa_user_sgpr_kernarg_segment_ptr 1
  .amdhsa_system_sgpr_workgroup_id_x 1
.end_amdhsa_kernel
''' % KNAME
        return txt


if __name__ == '__main__':
    import argparse
    ap = argparse.ArgumentParser()
    ap.add_argument('-o', default='k.s')
    ap.add_argument('--stop', default=None)
    ap.add_argument('--stamps', action='store_true')
    ap.add_argument('opts', nargs='*')
    A = ap.parse_args()
    opt = {k: (x if k in ('probe', 'light') else int(x)) for k, x in (t.split('=') for t in A.opts)}
    g = Gen(stop=A.stop, stamps=A.stamps, **opt)
    open(A.o, 'w').write(g.build())
    if A.stamps:
        open(A.o + '.stamps', 'w').write('\n'.join(g.stamp_names))
    n = {}
    for x in g.final:
        n[x.kind] = n.get(x.kind, 0) + 1
    nops = sum(x.states for x in g.final if x.op == 's_nop')
    print('instructions', n, 'nop states', nops)
```
